```python
import torch

def _softmax(x, axis=-1):
    return torch.softmax(x, dim=axis)
def _gelu(x):
    return torch.nn.functional.gelu(x, approximate="tanh")
def _silu(x):
    return torch.nn.functional.silu(x)
def _sigmoid(x):
    return torch.sigmoid(x)
def _layernorm(x, axis=-1, eps=1e-5):
    m = x.mean(dim=axis, keepdim=True)
    v = x.var(dim=axis, keepdim=True, unbiased=False)
    return (x - m) / torch.sqrt(v + eps)
def _scatter_add(tgt, idx, src, axis=0):
    return tgt.clone().index_add_(axis, idx, src)
def _segment_sum(src, seg, n):
    out = torch.zeros((n,) + src.shape[1:], dtype=src.dtype)
    return out.index_add_(0, seg, src)
def _pad(x, pw):
    flat = tuple(v for pair in reversed(pw) for v in pair)
    return torch.nn.functional.pad(x, flat)

kernel_name = 'gated_mix__ssm_conv_s5__ssm_conv_h3__prompt'

def setup_inputs():

    _w = (lambda a: (lambda t: t.to(torch.bfloat16) if t.is_floating_point() else t)(torch.as_tensor(a)))
    def _A_setup():
        B, S, D = 1, 2048, 1024
        P = D
        Lambda_re = -0.5 * (lambda _x: torch.exp(torch.as_tensor(_x)))((lambda *s: torch.randn(*s, dtype=torch.bfloat16) * 0.2)(P))
        Lambda_im = (lambda *s: torch.randn(*s, dtype=torch.bfloat16) * 0.4)(P) * 1.0
        B_re = (lambda *s: torch.randn(*s, dtype=torch.bfloat16) * 0.2)(P, D) * (D ** -0.5)
        B_im = (lambda *s: torch.randn(*s, dtype=torch.bfloat16) * 0.2)(P, D) * (D ** -0.5)
        C_re = (lambda *s: torch.randn(*s, dtype=torch.bfloat16) * 0.2)(D, P) * (P ** -0.5)
        C_im = (lambda *s: torch.randn(*s, dtype=torch.bfloat16) * 0.2)(D, P) * (P ** -0.5)
        log_dt = (lambda *s: torch.randn(*s, dtype=torch.bfloat16) * 0.2)(P) * 0.3 - 2.0
        Dskip = (lambda *s: torch.randn(*s, dtype=torch.bfloat16) * 0.05)(D)
        return {
            "x": _w((lambda *s: torch.randn(*s, dtype=torch.bfloat16) * 0.05)(B, S, D)),
            "Lambda_re": _w(Lambda_re),
            "Lambda_im": _w(Lambda_im),
            "B_re": _w(B_re),
            "B_im": _w(B_im),
            "C_re": _w(C_re),
            "C_im": _w(C_im),
            "log_dt": _w(log_dt),
            "Dskip": _w(Dskip),
        }
    _A_in = _A_setup()

    def _B_setup():
        B, S, D = 1, 2048, 1024
        ks = 4
        return {
            "q": _w((lambda *s: torch.randn(*s, dtype=torch.bfloat16) * 0.05)(B, S, D)),
            "k": _w((lambda *s: torch.randn(*s, dtype=torch.bfloat16) * 0.4)(B, S, D)),
            "v": _w((lambda *s: torch.randn(*s, dtype=torch.bfloat16) * 0.2)(B, S, D)),
            "shift_k": _w((lambda *s: torch.randn(*s, dtype=torch.bfloat16) * 0.4)(D, ks) * 0.5),
            "ssm_k": _w((lambda *s: torch.randn(*s, dtype=torch.bfloat16) * 0.4)(D, S) * (1.0 / S ** 0.5)),
            "ssm_D": _w((lambda *s: torch.randn(*s, dtype=torch.bfloat16) * 0.2)(D)),
        }
    _B_in = _B_setup()

    return {
        "A_x": _A_in["x"],
        "A_Lambda_re": _A_in["Lambda_re"],
        "A_Lambda_im": _A_in["Lambda_im"],
        "A_B_re": _A_in["B_re"],
        "A_B_im": _A_in["B_im"],
        "A_C_re": _A_in["C_re"],
        "A_C_im": _A_in["C_im"],
        "A_log_dt": _A_in["log_dt"],
        "A_Dskip": _A_in["Dskip"],
        "B_q": _B_in["q"],
        "B_k": _B_in["k"],
        "B_v": _B_in["v"],
        "B_shift_k": _B_in["shift_k"],
        "B_ssm_k": _B_in["ssm_k"],
        "B_ssm_D": _B_in["ssm_D"],
        "gate_w": _w((lambda *s: torch.randn(*s, dtype=torch.bfloat16) * 0.05)(1024) * 16.0),
    }

def reference(A_x, A_Lambda_re, A_Lambda_im, A_B_re, A_B_im, A_C_re, A_C_im, A_log_dt, A_Dskip, B_q, B_k, B_v, B_shift_k, B_ssm_k, B_ssm_D, gate_w):
    def _A_ref(x, Lambda_re, Lambda_im, B_re, B_im, C_re, C_im, log_dt, Dskip):
        Bsz, L, H = x.shape
        Lam = Lambda_re + 1j * Lambda_im
        Bmat = B_re + 1j * B_im
        Cmat = C_re + 1j * C_im
        dt = torch.exp(log_dt)
        Lam_bar = torch.exp(dt * Lam)
        B_bar = ((Lam_bar - 1.0) / Lam)[:, None] * Bmat
        Bu = torch.einsum("bld,pd->blp", x + 0j, B_bar)
        h = torch.zeros_like(Bu[:, 0, :])
        hs = []
        for t in range(L):
            h = Lam_bar[None, :] * h + Bu[:, t, :]
            hs.append(h)
        hseq = torch.stack(hs, 1)
        y = 2.0 * torch.einsum("blp,dp->bld", hseq, Cmat).real + x * Dskip[None, None, :]
        return y

    def _B_ref(q, k, v, shift_k, ssm_k, ssm_D):
        B, S, D = q.shape
        ks = shift_k.shape[-1]
        k_pad = _pad(k, ((0, 0), (ks - 1, 0), (0, 0)))
        k_shift = torch.zeros_like(k)
        for t in range(ks):
            k_shift = k_shift + k_pad[:, t:t + S, :] * shift_k[:, ks - 1 - t][None, None, :]
        kv = k_shift * v
        L = 2 * S
        kv_pad = _pad(kv, ((0, 0), (0, S), (0, 0)))
        kf_pad = _pad(ssm_k, ((0, 0), (0, S)))
        kv_f = (lambda x, axes=(-2,-1): torch.fft.rfft2(x.float(), dim=axes))(kv_pad[:, None, :, :], axes=(1, 2))
        kf_f = (lambda x, axes=(-2,-1): torch.fft.rfft2(x.float(), dim=axes))(kf_pad[:, None, :], axes=(1, 2))
        kf_f = (lambda x, *d: x.permute(*d))(kf_f, 1, 2, 0)
        y_f = kv_f * kf_f[None, :, :, :]
        y = (lambda x, s, axes=(-2,-1): torch.fft.irfft2(x, s=s, dim=axes).to(torch.bfloat16))(y_f, (1, L), axes=(1, 2))[:, 0, :S, :]
        y = y + kv * ssm_D[None, None, :]
        return q * y

    x = A_x
    g = _sigmoid((x * gate_w).sum(-1, keepdims=True))
    a = _A_ref(x, A_Lambda_re, A_Lambda_im, A_B_re, A_B_im, A_C_re, A_C_im, A_log_dt, A_Dskip)
    b = _B_ref(x, B_k, B_v, B_shift_k, B_ssm_k, B_ssm_D)
    return g * a + (1 - g) * b
```

```python
import re

TRANS = ("v_exp_f32", "v_log_f32", "v_rcp_f32", "v_rsq_f32", "v_sqrt_f32", "v_sin_f32", "v_cos_f32", "v_rcp_iflag_f32")

def _regs(tok):
    tok = tok.strip()
    tok = tok.lstrip("-")
    if tok.startswith("abs(") or tok.startswith("neg("):
        tok = tok[4:-1]
    tok = tok.strip("|")
    m = re.fullmatch(r"([vas])(\d+)", tok)
    if m:
        return [(m.group(1), int(m.group(2)))]
    m = re.fullmatch(r"([vas])\[(\d+):(\d+)\]", tok)
    if m:
        return [(m.group(1), i) for i in range(int(m.group(2)), int(m.group(3)) + 1)]
    if tok in ("vcc", "vcc_lo", "vcc_hi"):
        return [("s", "vcc")]
    if tok in ("exec", "exec_lo", "exec_hi"):
        return [("s", "exec")]
    if tok == "m0":
        return [("s", "m0")]
    return []

class Ins:
    __slots__ = ("text", "op", "dst", "src", "kind", "passes", "srcC", "store_data", "is_lds_dma", "dpp")
    def __init__(self, text):
        self.text = text
        t = text.split(";")[0].strip()
        parts = t.split(None, 1)
        self.op = parts[0] if parts else ""
        rest = parts[1] if len(parts) > 1 else ""
        ops = []
        depth = 0; cur = ""
        for ch in rest:
            if ch in "[(": depth += 1
            if ch in "])": depth -= 1
            if ch == "," and depth == 0:
                ops.append(cur); cur = ""
            else:
                cur += ch
        if cur.strip(): ops.append(cur)
        mods = ""
        if ops:
            last = ops[-1].strip().split(None, 1)
            ops[-1] = last[0]
            mods = last[1] if len(last) > 1 else ""
        ops = [o.strip() for o in ops]
        op = self.op
        self.dst = []; self.src = []; self.srcC = []; self.store_data = []
        self.passes = 0; self.is_lds_dma = False
        self.dpp = ("_dpp" in op) or ("quad_perm" in mods) or ("row_" in mods)
        R = [_regs(o) for o in ops]
        if op.startswith("v_mfma"):
            self.kind = "mfma"
            self.passes = 8 if "32x32x16" in op else 4 if "16x16x32" in op else 16
            self.dst = R[0]; self.src = R[1] + R[2]; self.srcC = R[3]
        elif op.startswith("v_cmp"):
            self.kind = "valu"
            self.dst = R[0]; self.src = sum(R[1:], [])
            if op.startswith("v_cmpx"): self.dst = self.dst + [("s", "exec")]
        elif op.startswith("v_readfirstlane") or op.startswith("v_readlane"):
            self.kind = "valu"; self.dst = R[0]; self.src = sum(R[1:], [])
        elif op.startswith("v_permlane"):
            self.kind = "valu"; self.dst = R[0] + R[1]; self.src = R[0] + R[1]
        elif op.startswith("v_"):
            self.kind = "valu"
            if "_co_" in op or op.startswith("v_div_scale") or op.startswith("v_mad_u64"):
                self.dst = R[0] + R[1]; self.src = sum(R[2:], [])
            else:
                self.dst = R[0] if R else []; self.src = sum(R[1:], [])
            if op.startswith("v_fmac") or op.startswith("v_dot2c") or op.startswith("v_pk_fmac") or self.dpp or op.startswith("v_writelane"):
                self.src = self.src + self.dst
            if op.startswith("v_cndmask") and len(ops) == 3:
                self.src = self.src + [("s", "vcc")]
        elif op.startswith("buffer_") or op.startswith("global_") or op.startswith("flat_"):
            self.kind = "vmem"
            lds = " lds" in (" " + mods) or "_lds_" in op
            self.is_lds_dma = lds
            if op in ("buffer_wbl2", "buffer_inv"):
                pass
            elif lds:
                self.src = sum(R, []) + [("s", "m0")]
            elif "load" in op:
                self.dst = R[0]; self.src = sum(R[1:], [])
                if "d16" in op: self.src = self.src + R[0]
            elif "store" in op:
                self.src = sum(R, [])
                if "x3" in op or "x4" in op:
                    self.store_data = R[0] if op.startswith("buffer_") else R[1]
            elif "atomic" in op:
                self.src = sum(R, [])
                if "sc0" in mods:
                    self.dst = R[0]
        elif op.startswith("ds_"):
            self.kind = "ds"
            if "read" in op or "permute" in op or "swizzle" in op or "_rtn" in op:
                self.dst = R[0]; self.src = sum(R[1:], [])
            else:
                self.src = sum(R, [])
        elif op.startswith("s_"):
            self.kind = "salu"
            if op.startswith("s_cmp") or op.startswith("s_cbranch") or op in ("s_branch", "s_barrier", "s_waitcnt", "s_nop", "s_endpgm", "s_setprio", "s_sleep"):
                self.src = sum(R, [])
            else:
                self.dst = R[0] if R else []; self.src = sum(R[1:], [])
                if "saveexec" in op: self.dst = self.dst + [("s", "exec")]
        else:
            self.kind = "other"

    def states(self):
        if self.op == "s_nop":
            return int(self.text.split()[1], 0) + 1
        return 1

def required(prod, cons):
    need = 0
    pd = set(prod.dst)
    cs = set(cons.src); cd = set(cons.dst); cc = set(cons.srcC)
    if prod.kind == "valu":
        vd = {r for r in pd if r[0] in "va"}
        sd = {r for r in pd if r[0] == "s"}
        if cons.kind == "mfma" and vd & (cs | cc): need = max(need, 2)
        if cons.kind == "mfma" and ("s", "exec") in sd: need = max(need, 4)
        if cons.kind == "valu":
            if prod.op.split("_e")[0] in TRANS or prod.op in TRANS:
                if vd & cs and not (cons.op in TRANS): need = max(need, 1)
            if cons.op.startswith("v_permlane") and vd & cs: need = max(need, 2)
            if cons.dpp and vd & cs: need = max(need, 2)
            if (cons.op.startswith("v_readfirstlane") or cons.op.startswith("v_readlane")) and vd & cs: need = max(need, 1)
            if sd & cs: need = max(need, 4 if cons.op.startswith(("v_readlane", "v_writelane", "v_div_fmas")) else 2)
            if ("s", "exec") in sd and (cons.dpp or cons.op.startswith(("v_readlane", "v_readfirstlane", "v_writelane", "v_permlane"))): need = max(need, 5)
            if "sdwa" in prod.text and vd & (cs | cd): need = max(need, 1)
        if cons.kind == "vmem" and sd & cs: need = max(need, 5)
        if cons.kind == "salu" and sd & cs: need = max(need, 2)
    if prod.kind == "mfma":
        far = {2: 5, 4: 8, 8: 12, 16: 20}[prod.passes]
        ovl = {2: 4, 4: 6, 8: 10, 16: 18}[prod.passes]
        war = {2: 1, 4: 3, 8: 7, 16: 15}[prod.passes]
        if cons.kind == "mfma":
            if pd & cs: need = max(need, far)
            if pd & cc and not (prod.dst == cons.srcC and prod.passes == cons.passes): need = max(need, ovl)
            if pd & cd and not (pd & cc): need = max(need, ovl)
        elif cons.kind in ("valu", "vmem", "ds"):
            if pd & (cs | cd): need = max(need, far)
            if cons.kind == "valu" and set(prod.srcC) & cd: need = max(need, war)
    if prod.kind == "vmem" and prod.store_data:
        if set(prod.store_data) & cd: need = max(need, 2)
    if prod.kind == "salu" and ("s", "m0") in pd and cons.is_lds_dma: need = max(need, 1)
    return need

class Asm:
    def __init__(self):
        self.items = []
    def __call__(self, text):
        for line in text.split("\n"):
            line = line.strip()
            if not line: continue
            if line.endswith(":") or line.startswith("."):
                self.items.append(line)
            elif line.startswith(";"):
                self.items.append("    " + line)
            else:
                self.items.append(Ins(line))
    def raw(self, text):
        self.items.append(text)
    def render(self):
        out = []
        hist = []
        npad = 0
        for it in self.items:
            if isinstance(it, str):
                out.append(it if (it.endswith(":") or it.startswith(" ")) else it)
                continue
            need = 0
            dist = 0
            for p in reversed(hist):
                r = required(p, it)
                if r - dist > need: need = r - dist
                dist += p.states()
                if dist >= 24: break
            while need > 0:
                n = min(need, 16)
                nop = Ins(f"s_nop {n-1}")
                out.append("    " + nop.text); hist.append(nop); need -= n; npad += 1
            out.append("    " + it.text)
            hist.append(it)
            if it.op in ("s_branch", "s_endpgm"):
                hist = []
            if len(hist) > 40: hist = hist[-40:]
        return "\n".join(out) + "\n"
```

```python
import sys, os
sys.path.insert(0, os.path.dirname(os.path.abspath(__file__)))
from asmlib import Asm

NAME = "gated_mix__ssm_conv_s5__ssm_conv_h3__prompt"
OPT = {a[2:].split("=")[0]: (a.split("=")[1] if "=" in a else 1) for a in sys.argv if a.startswith("--")}
WS_BASE = int(OPT.get("wsbase", 0)) << 20
WS_H    = WS_BASE + 0
WS_KVT  = WS_BASE + (8 << 20)
WS_Y2T  = WS_BASE + (12 << 20)
WS_G    = WS_BASE + (16 << 20)
WS_EBOX = WS_BASE + (17 << 20)

P = dict(x=16, Lre=18, Lim=20, Bre=22, Bim=24, Cre=26, Cim=28, logdt=30, Dskip=32, q=34, k=36, v=38,
         shk=40, ssmk=42, ssmD=44, gw=46, out=48, dbg=50, ws=52)
def sp(n): return f"s[{P[n]}:{P[n]+1}]"
def vr(a, n=1): return f"v{a}" if n == 1 else f"v[{a}:{a+n-1}]"
def sr(a, n=1): return f"s{a}" if n == 1 else f"s[{a}:{a+n-1}]"

def load_kernargs(A):
    A("s_load_dwordx16 s[16:31], s[0:1], 0")
    A("s_load_dwordx16 s[32:47], s[0:1], 64")
    A("s_load_dwordx4 s[48:51], s[0:1], 128")
    A("s_load_dwordx2 s[52:53], s[0:1], 144")

def srd(A, d, ptr, nbytes, off=0, off_sreg=None):
    p = P[ptr]
    if off == 0 and off_sreg is None:
        A(f"s_mov_b32 s{d}, s{p}")
        A(f"s_mov_b32 s{d+1}, s{p+1}")
    else:
        if off_sreg is None:
            A(f"s_add_u32 s{d}, s{p}, {off:#x}")
            A(f"s_addc_u32 s{d+1}, s{p+1}, 0")
        else:
            A(f"s_add_u32 s{d}, s{p}, s{off_sreg}")
            A(f"s_addc_u32 s{d+1}, s{p+1}, 0")
            if off:
                A(f"s_add_u32 s{d}, s{d}, {off:#x}")
                A(f"s_addc_u32 s{d+1}, s{d+1}, 0")
    A(f"s_mov_b32 s{d+2}, {nbytes:#x}")
    A(f"s_mov_b32 s{d+3}, 0x20000")

SAFE_PK = [False]
def pk(op, d, a, b, c=None, bsel=None, neg_b=False, asel=None, neg_lo=None, neg_hi=None):
    if not SAFE_PK[0]:
        L = []
        for w in range(2):
            aa = a + (1 - w if asel == "swap" else w)
            bb = b + (bsel if bsel is not None else w)
            na = (neg_lo if w == 0 else neg_hi)
            sa = "-" if (na and na[0]) else ""
            sb = "-" if neg_b else ""
            if op == "fma": L.append(f"v_fma_f32 v{d+w}, {sa}v{aa}, {sb}v{bb}, v{c+w}")
            else:
                assert not sa and not sb
                L.append(f"v_{op}_f32 v{d+w}, v{aa}, v{bb}")
        return "\n".join(L)
    n = 3 if c is not None else 2
    osl = [0]*n; osh = [1]*n
    if bsel is not None:
        osl[1] = bsel; osh[1] = bsel
    if asel == "swap":
        osl[0] = 1; osh[0] = 0
    s = f"v_pk_{op}_f32 {vr(d,2)}, {vr(a,2)}, {vr(b,2)}"
    if c is not None: s += f", {vr(c,2)}"
    s += " op_sel:[" + ",".join(map(str, osl)) + "] op_sel_hi:[" + ",".join(map(str, osh)) + "]"
    nl = [0]*n; nh = [0]*n
    if neg_b: nl[1] = 1; nh[1] = 1
    if neg_lo: nl = neg_lo
    if neg_hi: nh = neg_hi
    if any(nl): s += " neg_lo:[" + ",".join(map(str, nl)) + "]"
    if any(nh): s += " neg_hi:[" + ",".join(map(str, nh)) + "]"
    return s

def cmul(A, d, a, b, add=None, t=None):
    o = d if t is None else t
    if add is None:
        A(f"v_mul_f32 v{o}, v{a}, v{b}")
        A(f"v_mul_f32 v{o+1}, v{a}, v{b+1}")
    else:
        A(f"v_fma_f32 v{o}, v{a}, v{b}, v{add}")
        A(f"v_fma_f32 v{o+1}, v{a}, v{b+1}, v{add+1}")
    A(f"v_fma_f32 v{o}, -v{a+1}, v{b+1}, v{o}")
    A(f"v_fma_f32 v{o+1}, v{a+1}, v{b}, v{o+1}")
    if t is not None:
        A(f"v_mov_b32 v{d}, v{t}")
        A(f"v_mov_b32 v{d+1}, v{t+1}")

STAMPS = "--stamps" in sys.argv
class Stamper:
    def __init__(self, A, kern, reg=250): self.A = A; self.n = 0; self.kern = kern; self.reg = reg
    def __call__(self, name=""):
        if not STAMPS or self.n >= 16: return
        self.A(f"s_memrealtime s[98:99]")
        self.A(f"s_memtime s[96:97]")
        self.A("s_waitcnt lgkmcnt(0)")
        self.A(f"v_writelane_b32 v{self.reg}, s98, {self.n}")
        self.A(f"v_writelane_b32 v{self.reg}, s96, {self.n+16}")
        self.n += 1
    def flush(self):
        if not STAMPS: return
        A = self.A
        A("s_mov_b64 exec, -1")
        A("s_waitcnt vmcnt(0)")
        self()
        srd(A, 92, "ws", 1 << 20, (20 << 20) + self.kern * (256 << 10))
        A("v_and_b32 v254, 63, v0")
        A("v_lshrrev_b32 v253, 6, v0")
        A("v_lshlrev_b32 v253, 7, v253")
        A("v_lshl_add_u32 v253, v254, 2, v253")
        A("s_lshl_b32 s98, s2, 10")
        A("v_add_u32 v253, s98, v253")
        A("s_mov_b32 exec_hi, 0")
        A(f"buffer_store_dword v{self.reg}, v253, s[92:95], 0 offen")

def tile_ids(A):
    A("s_and_b32 s54, s2, 7")
    A("s_lshr_b32 s55, s2, 3")
    A("s_lshr_b32 s4, s54, 1")
    A("s_lshl_b32 s4, s4, 2")
    A("s_and_b32 s6, s55, 3")
    A("s_add_u32 s4, s4, s6")
    A("s_and_b32 s5, s54, 1")
    A("s_lshl_b32 s5, s5, 3")
    A("s_lshr_b32 s6, s55, 2")
    A("s_add_u32 s5, s5, s6")

K1_NST = 16
def gen_k1(A):
    A("k1_kernel:")
    A("s_cmp_ge_u32 s2, 256")
    A("s_cbranch_scc1 k1_end")
    load_kernargs(A)
    tile_ids(A)
    A("v_and_b32 v1, 63, v0")
    A("v_lshrrev_b32 v2, 6, v0")
    A("v_readfirstlane_b32 s3, v2")
    A("s_cmp_ge_u32 s3, 4")
    A("s_cbranch_scc1 k1_helper")
    gen_k1_consumer(A)
    A("k1_helper:")
    gen_k1_helper(A)
    A("k1_end:")
    A("s_endpgm")

def gen_k1_consumer(A):
    ACC = 64
    FA, FB = 128, 144
    AD, BD = 160, 168
    LAM, C2, MU, MU2, MU4, MU8 = 176, 178, 180, 182, 184, 186
    EL = 192
    UR2 = 224
    ST = Stamper(A, 0, 63)
    ST()
    A("s_and_b32 s6, s3, 1")
    A("s_lshr_b32 s7, s3, 1")
    A("v_and_b32 v4, 31, v1")
    A("s_lshl_b32 s8, s5, 6")
    A("s_lshl_b32 s9, s7, 5")
    A("s_add_u32 s8, s8, s9")
    A("v_add_u32 v3, s8, v4")
    A("v_lshlrev_b32 v5, 1, v3")
    A("v_lshrrev_b32 v6, 5, v1")
    A("s_lshl_b32 s10, s4, 1")
    A("s_add_u32 s10, s10, s6")
    A("s_waitcnt lgkmcnt(0)")
    A(f"global_load_ushort v8, v5, {sp('Lre')}")
    A(f"global_load_ushort v9, v5, {sp('Lim')}")
    A(f"global_load_ushort v10, v5, {sp('logdt')}")
    srd(A, 56, "ws", 256 << 10, WS_EBOX)
    srd(A, 60, "ws", 8 << 20, WS_H)
    srd(A, 64, "dbg", 256)
    A("s_lshl_b32 s11, s10, 13")
    A("v_lshl_add_u32 v7, v3, 3, s11")
    A("v_mov_b32 v12, 0")
    A("v_mov_b32 v13, 0")
    A("buffer_store_dwordx2 v[12:13], v7, s[56:59], 0 offen sc1")
    TD = int(OPT.get("touch", 0))
    TSTR = int(OPT.get("tstr", 128))
    ntouch0 = 0
    def touch(sl):
        A(f"global_load_dword v61, v[188:189], off offset:{sl*128}")
        if TSTR == 64: A(f"global_load_dword v61, v[188:189], off offset:{sl*128+64}")
    if TD:
        A("v_lshrrev_b32 v16, 4, v1")
        A(f"v_mov_b32 v188, s{P['x']}")
        A(f"v_mov_b32 v189, s{P['x']+1}")
        A(f"v_mov_b32 v17, s{P['Bre']}")
        A(f"v_mov_b32 v18, s{P['Bre']+1}")
        A("v_cmp_eq_u32 vcc, 1, v16")
        A("v_cndmask_b32 v188, v188, v17, vcc")
        A("v_cndmask_b32 v189, v189, v18, vcc")
        A(f"v_mov_b32 v17, s{P['Bim']}")
        A(f"v_mov_b32 v18, s{P['Bim']+1}")
        A("v_cmp_eq_u32 vcc, 2, v16")
        A("v_cndmask_b32 v188, v188, v17, vcc")
        A("v_cndmask_b32 v189, v189, v18, vcc")
        A("s_lshr_b32 s11, s54, 1")
        A("s_and_b32 s12, s54, 1")
        A("v_mov_b32 v17, s11")
        A("v_mov_b32 v18, s12")
        A("v_add_u32 v16, -1, v16")
        A("v_cmp_gt_u32 vcc, 2, v16")
        A("v_cndmask_b32 v17, v17, v18, vcc")
        A("v_lshlrev_b32 v17, 9, v17")
        A("v_and_b32 v18, 15, v1")
        A("s_lshl_b32 s11, s55, 4")
        A("v_add3_u32 v17, v17, v18, s11")
        A("v_lshlrev_b32 v17, 11, v17")
        A("v_add_co_u32 v188, vcc, v188, v17")
        A("v_addc_co_u32 v189, vcc, 0, v189, vcc")
        A("s_lshl_b32 s11, s3, 7")
        A("v_add_co_u32 v188, vcc, s11, v188")
        A("v_addc_co_u32 v189, vcc, 0, v189, vcc")
        for sl in range(0, TD, 4):
            touch(sl); ntouch0 += 2 if TSTR == 64 else 1
    A("v_bfe_u32 v11, v1, 1, 3")
    A("v_xor_b32 v11, v11, v6")
    A("s_lshl_b32 s11, s6, 13")
    A("v_lshl_add_u32 v14, v4, 7, s11")
    A("s_lshl_b32 s11, s7, 12")
    A("s_add_u32 s11, s11, 16384")
    A("v_lshl_add_u32 v15, v4, 7, s11")
    for ks in range(4):
        A(f"v_xor_b32 v16, {2*ks}, v11")
        A(f"v_lshl_add_u32 v{AD+ks}, v16, 4, v14")
        A(f"v_lshl_add_u32 v{BD+ks}, v16, 4, v15")
        A(f"v_add_u32 v{AD+4+ks}, 0x10000, v{AD+ks}")
        A(f"v_add_u32 v{BD+4+ks}, 0x10000, v{BD+ks}")
    for r in range(64):
        A(f"v_mov_b32 v{ACC+r}, 0")
    A(f"s_waitcnt vmcnt({ntouch0})")
    A("v_lshlrev_b32 v8, 16, v8")
    A("v_lshlrev_b32 v9, 16, v9")
    A("v_lshlrev_b32 v10, 16, v10")
    A("s_mov_b32 s12, 0x3fb8aa3b")
    A("v_mul_f32 v10, s12, v10")
    A("v_exp_f32 v10, v10")
    A("v_cvt_pk_bf16_f32 v10, v10, v10")
    A("v_lshlrev_b32 v10, 16, v10")
    A("v_mul_f32 v16, v10, v8")
    A("v_mul_f32 v17, v10, v9")
    A("v_mul_f32 v16, s12, v16")
    A("v_exp_f32 v16, v16")
    A("v_mul_f32 v17, 0.15915494, v17")
    A("v_rndne_f32 v18, v17")
    A("v_sub_f32 v17, v17, v18")
    A("v_cos_f32 v18, v17")
    A("v_sin_f32 v19, v17")
    A(f"v_mul_f32 v{LAM}, v16, v18")
    A(f"v_mul_f32 v{LAM+1}, v16, v19")
    A(f"v_add_f32 v16, -1.0, v{LAM}")
    A("v_mul_f32 v17, v8, v8")
    A("v_fma_f32 v17, v9, v9, v17")
    A("v_rcp_f32 v17, v17")
    A("v_mul_f32 v18, v16, v8")
    A(f"v_fma_f32 v18, v{LAM+1}, v9, v18")
    A(f"v_mul_f32 v19, v{LAM+1}, v8")
    A("v_fma_f32 v19, -v16, v9, v19")
    A("v_add_f32 v17, v17, v17")
    A(f"v_mul_f32 v{C2}, v18, v17")
    A(f"v_mul_f32 v{C2+1}, v19, v17")
    cmul(A, 16, LAM, LAM)
    cmul(A, 18, 16, 16)
    cmul(A, 16, 18, 18)
    cmul(A, MU, 16, 16)
    cmul(A, MU2, MU, MU)
    cmul(A, MU4, MU2, MU2)
    cmul(A, MU8, MU4, MU4)

    def rd(stage, ks, buf, which):
        slot = stage % 4
        hi = 4 if slot >= 2 else 0
        so = (slot & 1) * 32768
        if which < 2:
            return f"ds_read_b128 {vr(FA+buf*8+which*4,4)}, v{AD+hi+ks} offset:{so + which*4096}"
        ri = which - 2
        return f"ds_read_b128 {vr(FB+buf*8+ri*4,4)}, v{BD+hi+ks} offset:{so + ri*8192}"
    def mf(buf, mt, ri):
        acc = ACC + ri*32 + mt*16
        if "mf16" in OPT:
            mf.cnt = getattr(mf, "cnt", 0) + 1
            o = acc + 8*((mf.cnt >> 2) & 1)
            return "\n".join(f"v_mfma_f32_16x16x32_bf16 {vr(o+4*z,4)}, {vr(FA+buf*8+mt*4,4)}, {vr(FB+buf*8+ri*4,4)}, {vr(o+4*z,4)}" for z in range(2))
        return f"v_mfma_f32_32x32x16_bf16 {vr(acc,16)}, {vr(FA+buf*8+mt*4,4)}, {vr(FB+buf*8+ri*4,4)}, {vr(acc,16)}"
    RD_ORDER = [0, 2, 1, 3]
    MF_ORDER = [(0,0), (1,0), (1,1), (0,1)]
    ST()
    A("s_barrier")
    ST()
    A("s_cmp_lg_u32 s3, 0")
    A("s_cbranch_scc1 k1c_noflag")
    A("s_lshl_b32 s11, 1, s4")
    A("v_mov_b32 v16, s11")
    A("s_lshl_b32 s11, s5, 4")
    A("v_mov_b32 v17, s11")
    A("s_mov_b64 exec, 1")
    A("buffer_atomic_or v16, v17, s[64:67], 0 offen sc1")
    A("s_mov_b64 exec, -1")
    A("k1c_noflag:")
    for w in RD_ORDER: A(rd(0, 0, 0, w))
    for s in range(K1_NST):
        for ks in range(4):
            buf = ks & 1
            last = (s == K1_NST-1 and ks == 3)
            if ks == 3 and not last:
                A("s_barrier")
            ns, nks = (s, ks+1) if ks < 3 else (s+1, 0)
            for i in range(4):
                if last:
                    A(f"s_waitcnt lgkmcnt({[2,1,0,0][i]})")
                elif i < 3:
                    A("s_waitcnt lgkmcnt(2)")
                if "nomfma" not in OPT: A(mf(buf, *MF_ORDER[i]))
                if not last and "nords" not in OPT: A(rd(ns, nks, buf ^ 1, RD_ORDER[i]))
            if s in (3, 7, 11) and ks == 3: ST()
            if TD and ks == 1 and s % 4 == 0 and s + TD < K1_NST: touch(s + TD)
            if s == 10 and ks == 0:
                A("s_lshl_b32 s11, s5, 4")
                A("v_mov_b32 v17, s11")
                A("buffer_load_dword v20, v17, s[64:67], 0 offen sc1")
    ST()
    def UR(t): return ACC + (t >> 3)*16 + 2*(t & 7)
    def UI(t): return ACC + 32 + (t >> 3)*16 + 2*(t & 7)
    E = [(24, 26), (28, 30)]
    cr, ci = UR(0), UI(0)
    for t in range(1, 16):
        nr, ni = E[t & 1]
        A(pk("fma", nr, cr, LAM, UR(t), bsel=0))
        A(pk("fma", ni, ci, LAM, UI(t), bsel=0))
        A(pk("fma", nr, ci, LAM, nr, bsel=1, neg_b=True))
        A(pk("fma", ni, cr, LAM, ni, bsel=1))
        cr, ci = nr, ni
    A("v_mov_b32 v32, v28\nv_mov_b32 v33, v30\nv_mov_b32 v34, v29\nv_mov_b32 v35, v31")
    cmul(A, 36, MU, 32, add=34)
    A("v_mov_b32 v38, v36\nv_mov_b32 v39, v37\nv_mov_b32 v40, 0\nv_mov_b32 v41, 0")
    A("v_permlane32_swap_b32 v40, v38")
    A("v_permlane32_swap_b32 v41, v39")
    cmul(A, 42, MU2, 40, add=36)
    A("v_or_b32 v42, 1, v42")
    A("s_mov_b32 s12, 0")
    A("s_mov_b32 s13, -1")
    A("s_mov_b64 exec, s[12:13]")
    A("buffer_store_dwordx2 v[42:43], v7, s[56:59], 0 offen sc1")
    A("s_mov_b64 exec, -1")
    ST()
    for t in range(16):
        n = UR2 + 2*t
        A(pk("mul", n, UR(t), C2, bsel=0))
        A(pk("fma", n, UI(t), C2, n, bsel=1, neg_b=True))
        A(pk("mul", UI(t), UI(t), C2, bsel=0))
        A(pk("fma", UI(t), UR(t), C2, UI(t), bsel=1))
    cmul(A, 44, C2, 40)
    cmul(A, 46, C2, 32)
    cmul(A, 48, C2, MU2)
    A("v_cmp_lt_u32 vcc, 31, v1")
    A(f"v_cndmask_b32 v48, v{C2}, v48, vcc")
    A(f"v_cndmask_b32 v49, v{C2+1}, v49, vcc")
    A("v_lshlrev_b32 v50, 13, v6")
    A("v_sub_u32 v50, v7, v50")
    for k in range(16):
        A(f"v_subrev_u32 v{128+k}, {(1+2*k)*8192:#x}, v50")
    A("s_add_u32 s11, s10, 1")
    A("v_sub_u32 v51, s11, v6")
    A("v_lshrrev_b32 v51, 1, v51")
    A("s_lshl_b32 s14, 1, s4")
    A("s_sub_u32 s14, s14, 1")
    ST()
    A("s_waitcnt vmcnt(1)")
    A("k1c_flagchk:")
    A("v_readfirstlane_b32 s11, v20")
    A("s_and_b32 s11, s11, s14")
    A("s_cmp_eq_u32 s11, s14")
    A("s_cbranch_scc1 k1c_poll")
    A("s_sleep 2")
    A("buffer_load_dword v20, v17, s[64:67], 0 offen sc1")
    A("s_waitcnt vmcnt(0)")
    A("s_branch k1c_flagchk")
    A("k1c_poll:")
    for k in range(16):
        A(f"buffer_load_dwordx2 {vr(EL+2*k,2)}, v{128+k}, s[56:59], 0 offen sc1")
    A("s_waitcnt vmcnt(0)")
    A("v_mov_b32 v52, 0")
    for k in range(0, 16, 2):
        A(f"v_and_b32 v53, 1, v{EL+2*k}")
        A(f"v_and_b32 v54, 1, v{EL+2*k+2}")
        A("v_add3_u32 v52, v52, v53, v54")
    A("v_cmp_ne_u32 vcc, v52, v51")
    A("s_cmp_lg_u64 vcc, 0")
    A("s_cbranch_scc1 k1c_poll")
    ST()
    g = EL + 30
    G = [52, 54]
    for k in range(14, -1, -1):
        n = G[k & 1]
        A(pk("fma", n, g, MU8, EL+2*k, bsel=0))
        A(pk("fma", n, g, MU8, n, bsel=1, asel="swap", neg_lo=[1,0,0]))
        g = n
    A("v_mov_b32 v54, v52\nv_mov_b32 v55, v53\nv_mov_b32 v56, v52\nv_mov_b32 v57, v53")
    A("v_permlane32_swap_b32 v54, v56")
    A("v_permlane32_swap_b32 v55, v57")
    cmul(A, 58, MU4, 56, add=54)
    cmul(A, 52, 48, 58, add=44)
    cmul(A, 54, MU, 52, add=46)
    A("v_mov_b32 v56, v52\nv_mov_b32 v57, v54\nv_mov_b32 v58, v53\nv_mov_b32 v59, v55")
    cr, ci = 56, 58
    for t in range(16):
        nr, ni = UR2 + 2*t, UI(t)
        A(pk("fma", nr, cr, LAM, nr, bsel=0))
        A(pk("fma", ni, ci, LAM, ni, bsel=0))
        A(pk("fma", nr, ci, LAM, nr, bsel=1, neg_b=True))
        A(pk("fma", ni, cr, LAM, ni, bsel=1))
        cr, ci = nr, ni
    ST()
    A("s_lshl_b32 s11, s3, 13")
    A("s_add_u32 s11, s11, 0x20000")
    A("v_lshl_add_u32 v16, v6, 11, s11")
    A("v_lshl_add_u32 v16, v4, 6, v16")
    A("v_bfe_u32 v17, v1, 1, 2")
    for q in range(4):
        A(f"v_xor_b32 v18, {q}, v17")
        A(f"v_lshl_add_u32 v{20+q}, v18, 4, v16")
    for plane in range(2):
        for e in range(2):
            for hf in range(2):
                d = 128 + ((plane*2 + e)*2 + hf)*4
                for m in range(4):
                    t = hf*8 + 2*m
                    if plane == 0:
                        A(f"v_cvt_pk_bf16_f32 v{d+m}, v{UR2+2*t+e}, v{UR2+2*(t+1)+e}")
                    else:
                        A(f"v_cvt_pk_bf16_f32 v{d+m}, -v{UI(t)+e}, -v{UI(t+1)+e}")
                A(f"ds_write_b128 v{20+2*e+hf}, {vr(d,4)} offset:{plane*4096}")
    A("v_bfe_u32 v16, v1, 2, 2")
    A("v_lshl_add_u32 v16, v6, 3, v16")
    A("v_and_b32 v17, 1, v1")
    A("v_bfe_u32 v18, v1, 4, 1")
    A("v_lshl_add_u32 v17, v17, 1, v18")
    A("v_bfe_u32 v18, v16, 1, 2")
    A("v_xor_b32 v17, v17, v18")
    A("v_lshlrev_b32 v17, 4, v17")
    A("v_lshl_add_u32 v17, v16, 6, v17")
    A("v_bfe_u32 v18, v1, 1, 1")
    A("v_lshl_add_u32 v17, v18, 3, v17")
    A("v_add_u32 v17, s11, v17")
    A("v_xor_b32 v18, 32, v17")
    A("v_add_u32 v18, 256, v18")
    A("s_lshl_b32 s11, s10, 18")
    A("s_lshl_b32 s12, s5, 13")
    A("s_add_u32 s11, s11, s12")
    A("s_lshl_b32 s12, s7, 11")
    A("s_add_u32 s11, s11, s12")
    A("v_lshl_add_u32 v19, v1, 4, s11")
    A("s_waitcnt lgkmcnt(0)")
    idx = 0
    for tblk in range(2):
        for plane in range(2):
            for ksl in range(2):
                d = 160 + idx*4
                o = plane*4096 + tblk*2048 + ksl*1024
                A(f"ds_read_b64_tr_b16 {vr(d,2)}, v17 offset:{o}")
                A(f"ds_read_b64_tr_b16 {vr(d+2,2)}, v18 offset:{o}")
                idx += 1
    idx = 0
    for tblk in range(2):
        for plane in range(2):
            A(f"s_mov_b32 s12, {tblk*131072 + plane*4096:#x}")
            for ksl in range(2):
                d = 160 + idx*4
                A(f"s_waitcnt lgkmcnt({14 - 2*idx})")
                A(f"buffer_store_dwordx4 {vr(d,4)}, v19, s[60:63], s12 offen offset:{ksl*1024}")
                idx += 1
    ST()
    ST.flush()
    A("s_endpgm")

def gen_k1_helper(A):
    VA, VB = 8, 12
    ST = Stamper(A, 0)
    ST()
    A("s_sub_u32 s3, s3, 4")
    A("s_lshr_b32 s6, s3, 1")
    A("s_and_b32 s7, s3, 1")
    A("v_lshrrev_b32 v3, 5, v1")
    A("v_lshlrev_b32 v3, 5, v3")
    A("v_bfe_u32 v4, v1, 3, 1")
    A("v_lshl_add_u32 v3, v4, 4, v3")
    A("v_bfe_u32 v4, v1, 4, 1")
    A("v_add_u32 v3, v3, v4")
    A("s_lshl_b32 s8, s4, 7")
    A("s_lshl_b32 s9, s6, 6")
    A("s_add_u32 s8, s8, s9")
    A("s_lshl_b32 s9, s7, 3")
    A("s_add_u32 s8, s8, s9")
    A("v_add_u32 v3, s8, v3")
    A("v_lshlrev_b32 v3, 11, v3")
    A("v_and_b32 v4, 7, v1")
    A("v_lshrrev_b32 v5, 4, v1")
    A("v_xor_b32 v4, v4, v5")
    A("v_lshlrev_b32 v4, 4, v4")
    A("v_xor_b32 v5, 64, v4")
    A("s_lshl_b32 s8, s5, 6")
    A("s_lshl_b32 s9, s7, 5")
    A("s_add_u32 s8, s8, s9")
    A("v_lshrrev_b32 v6, 3, v1")
    A("v_add_u32 v6, s8, v6")
    A("v_lshlrev_b32 v6, 11, v6")
    for n in range(4):
        c = 4 + (n & 1)
        A(f"v_add_u32 v{VA+n}, v3, v{c}")
        A(f"v_add_u32 v{VB+n}, v6, v{c}")
        if n:
            A(f"v_add_u32 v{VA+n}, {n*(4096-1024)}, v{VA+n}")
            A(f"v_add_u32 v{VB+n}, {n*(16384-1024)}, v{VB+n}")
    A("s_lshl_b32 s10, s3, 12")
    A("s_waitcnt lgkmcnt(0)")
    srd(A, 56, "x", 4 << 20)
    A("s_cmp_ge_u32 s3, 2")
    A(f"s_cselect_b32 s60, s{P['Bim']}, s{P['Bre']}")
    A(f"s_cselect_b32 s61, s{P['Bim']+1}, s{P['Bre']+1}")
    A(f"s_mov_b32 s62, {2<<20:#x}")
    A("s_mov_b32 s63, 0x20000")
    NTG = " nt" if "ntg" in OPT else ""
    NTP = " nt" if "ntp" in OPT else ""
    if "rot" in OPT:
        A("s_lshr_b32 s90, s55, 2")
        A("s_lshl_b32 s90, s90, 1")
        A("s_and_b32 s91, s55, 3")
        A("s_lshl_b32 s91, s91, 2")
        A("s_add_u32 s90, s90, s91")
    def issue(st):
        slot = st % 4
        if "rot" in OPT:
            A(f"s_add_u32 s11, s90, {st}")
            A("s_and_b32 s11, s11, 15")
            A("s_lshl_b32 s11, s11, 7")
        else:
            A(f"s_mov_b32 s11, {st*128}")
        A(f"s_add_u32 m0, s10, {slot*32768:#x}")
        for n in range(4):
            A(f"buffer_load_dwordx4 v{VA+n}, s[56:59], s11 offen offset:{n*1024} lds{NTG}")
        A(f"s_add_u32 m0, s10, {slot*32768+16384:#x}")
        for n in range(4):
            A(f"buffer_load_dwordx4 v{VB+n}, s[60:63], s11 offen offset:{n*1024} lds{NTG}")
    for st in range(3): issue(st)
    KR, VR_, SK = 32, 52, 68
    XG, GW = 72, 88
    A("s_and_b32 s12, s55, 1")
    A("s_lshl_b32 s13, s54, 1")
    A("s_add_u32 s12, s12, s13")
    A("s_lshr_b32 s13, s55, 1")
    A("s_lshl_b32 s13, s13, 7")
    A("s_lshl_b32 s14, s3, 5")
    A("s_add_u32 s13, s13, s14")
    A("v_lshrrev_b32 v16, 5, v1")
    A("v_lshl_add_u32 v16, v16, 4, s13")
    A("v_and_b32 v17, 31, v1")
    A("s_lshl_b32 s14, s12, 5")
    A("v_add_u32 v17, s14, v17")
    A("v_lshlrev_b32 v18, 11, v16")
    A("v_lshl_add_u32 v18, v17, 2, v18")
    for i in range(3):
        A(f"v_subrev_u32 v{19+i}, {(3-i)*2048}, v18")
    A("v_lshlrev_b32 v22, 4, v17")
    A("v_lshlrev_b32 v23, 13, v17")
    A("v_lshlrev_b32 v24, 1, v16")
    A("v_sub_u32 v23, v23, v24")
    A("v_add_u32 v23, 4064, v23")
    A("s_lshl_b32 s14, s4, 7")
    A("s_lshl_b32 s15, s5, 3")
    A("s_add_u32 s14, s14, s15")
    A("s_lshl_b32 s15, s3, 1")
    A("s_add_u32 s14, s14, s15")
    A("s_lshl_b32 s15, s14, 11")
    A("v_lshlrev_b32 v25, 4, v1")
    A("v_add_u32 v26, s15, v25")
    srd(A, 64, "k", 4 << 20)
    srd(A, 68, "v", 4 << 20)
    srd(A, 72, "ws", 4 << 20, WS_KVT)
    srd(A, 76, "ws", 8192, WS_G)
    for i in range(8):
        A(f"s_mov_b32 s{80+i}, {i*4096}")
    NPREP = 19 + 16 + 1 + 4 + 2
    def prep_loads():
        for i in range(3):
            A(f"buffer_load_dword v{KR+i}, v{19+i}, s[64:67], 0 offen{NTP}")
        for i in range(16):
            A(f"buffer_load_dword v{KR+3+i}, v18, s[64:67], s{80+(i>>1)} offen offset:{(i&1)*2048}{NTP}")
        A(f"global_load_dwordx4 {vr(SK,4)}, v22, {sp('shk')}")
        for i in range(16):
            A(f"buffer_load_dword v{VR_+i}, v18, s[68:71], s{80+(i>>1)} offen offset:{(i&1)*2048}{NTP}")
        for r in range(2):
            for hh in range(2):
                A(f"buffer_load_dwordx4 {vr(XG+r*8+hh*4,4)}, v26, s[56:59], 0 offen offset:{r*2048+hh*1024}")
        for hh in range(2):
            A(f"global_load_dwordx4 {vr(GW+hh*4,4)}, v25, {sp('gw')} offset:{hh*1024}")
    ST()
    A("s_waitcnt vmcnt(16)")
    ST()
    A("s_barrier")
    for s in range(K1_NST-1):
        younger = (8 if s+2 < K1_NST else 0) + (NPREP if s >= 13 else 0)
        A(f"s_waitcnt vmcnt({younger})")
        A("s_barrier")
        if s+3 < K1_NST and "nodma" not in OPT: issue(s+3)
        if s == 12: prep_loads()
    ST()
    KF = 96
    SP = 136
    OUT = 144
    A("s_mov_b32 s12, 0xffff0000")
    A(f"s_waitcnt vmcnt({16+6})")
    ST()
    for i in range(19):
        A(f"v_lshlrev_b32 v{KF+2*i}, 16, v{KR+i}")
        A(f"v_and_b32 v{KF+2*i+1}, s12, v{KR+i}")
    for jx in range(4):
        for cc in range(2):
            src = SK + cc*2 + (jx >> 1)
            if jx & 1: A(f"v_and_b32 v{SP+2*jx+cc}, s12, v{src}")
            else: A(f"v_lshlrev_b32 v{SP+2*jx+cc}, 16, v{src}")
    def rnd(pair, tmp):
        A(f"v_cvt_pk_bf16_f32 v{tmp}, v{pair}, v{pair+1}")
        A(f"v_lshlrev_b32 v{pair}, 16, v{tmp}")
        A(f"v_and_b32 v{pair+1}, s12, v{tmp}")
    A(f"s_waitcnt vmcnt(6)")
    for t in range(16):
        a, b, tm = 176 + (t & 1)*8, 178 + (t & 1)*8, 180 + (t & 1)*8
        vv = 182 + (t & 1)*8
        A(pk("mul", a, KF+2*t, SP+6))
        A(pk("mul", b, KF+2*(t+1), SP+4))
        rnd(a, tm); rnd(b, tm+1)
        A(pk("add", a, a, b))
        A(pk("mul", b, KF+2*(t+2), SP+2))
        rnd(a, tm); rnd(b, tm+1)
        A(pk("add", a, a, b))
        A(pk("mul", b, KF+2*(t+3), SP+0))
        rnd(a, tm); rnd(b, tm+1)
        A(pk("add", a, a, b))
        A(f"v_lshlrev_b32 v{vv}, 16, v{VR_+t}")
        A(f"v_and_b32 v{vv+1}, s12, v{VR_+t}")
        rnd(a, tm)
        A(pk("mul", OUT+2*t, a, vv))
    for cc in range(2):
        for hf in range(2):
            d = 192 + (cc*2+hf)*4
            for m in range(4):
                mm = hf*4 + m
                A(f"v_cvt_pk_bf16_f32 v{d+m}, v{OUT+2*(15-2*mm)+cc}, v{OUT+2*(14-2*mm)+cc}")
            A(f"buffer_store_dwordx4 {vr(d,4)}, v23, s[72:75], s{80+cc} offen offset:{hf*16}")
    ST()
    A("s_waitcnt vmcnt(4)")
    for i in range(8):
        A(f"v_lshlrev_b32 v{96+2*i}, 16, v{GW+i}")
        A(f"v_and_b32 v{97+2*i}, s12, v{GW+i}")
    for r in range(2):
        acc = 112 + r
        A(f"v_mov_b32 v{acc}, 0")
        for i in range(8):
            A(f"v_lshlrev_b32 v116, 16, v{XG+r*8+i}")
            A(f"v_and_b32 v117, s12, v{XG+r*8+i}")
            A(pk("mul", 116, 116, 96+2*i))
            rnd(116, 118)
            A(f"v_add_f32 v{acc}, v{acc}, v116")
            A(f"v_add_f32 v{acc}, v{acc}, v117")
    for r in range(2):
        acc = 112 + r
        for sh in (1, 2, 4, 8):
            A(f"v_add_f32_dpp v{acc}, v{acc}, v{acc} row_shr:{sh} row_mask:0xf bank_mask:0xf bound_ctrl:0")
        A(f"v_add_f32_dpp v{acc}, v{acc}, v{acc} row_bcast:15 row_mask:0xa bank_mask:0xf")
        A(f"v_add_f32_dpp v{acc}, v{acc}, v{acc} row_bcast:31 row_mask:0xc bank_mask:0xf")
    A("v_readlane_b32 s8, v112, 63")
    A("v_readlane_b32 s9, v113, 63")
    A("v_mov_b32 v116, s8")
    A("v_mov_b32 v117, s9")
    A("v_cmp_eq_u32 vcc, 1, v1")
    A("v_cndmask_b32 v116, v116, v117, vcc")
    A("v_cvt_pk_bf16_f32 v116, v116, v116")
    A("v_lshlrev_b32 v116, 16, v116")
    A("v_mul_f32 v116, 0xbfb8aa3b, v116")
    A("v_exp_f32 v116, v116")
    A("v_add_f32 v116, 1.0, v116")
    A("v_rcp_f32 v116, v116")
    A("v_cvt_pk_bf16_f32 v117, v116, v116")
    A("v_lshlrev_b32 v116, 16, v117")
    A("v_sub_f32 v118, 1.0, v116")
    A("v_cvt_pk_bf16_f32 v116, v116, v118")
    A("s_lshl_b32 s14, s14, 2")
    A("v_lshl_add_u32 v117, v1, 2, s14")
    A("s_mov_b64 exec, 3")
    A("buffer_store_dword v116, v117, s[76:79], 0 offen")
    ST()
    ST.flush()
    A("s_endpgm")

def descriptor(name, vgpr, sgpr=100):
    return f""".section .rodata,"a"
.p2align 6
.amdhsa_kernel {name}
  .amdhsa_next_free_vgpr {vgpr}
  .amdhsa_next_free_sgpr {sgpr}
  .amdhsa_accum_offset {min(256,(vgpr+3)//4*4)}
  .amdhsa_group_segment_fixed_size 0
  .amdhsa_kernarg_size 152
  .amdhsa_user_sgpr_count 2
  .amdhsa_user_sgpr_kernarg_segment_ptr 1
  .amdhsa_system_sgpr_workgroup_id_x 1
  .amdhsa_float_denorm_mode_32 3
.end_amdhsa_kernel
"""

def header_comments():
    ref = open(os.path.join(os.path.dirname(os.path.abspath(__file__)), "..", NAME + ".s.ref")).read().split("\n")
    out = []
    for l in ref:
        if not l.startswith(";"): break
        if "@launch" in l or "Override launch" in l or "grid=ceil" in l: continue
        out.append(l)
    return "\n".join(out) + "\n"

def build(with_k2=True):
    s = header_comments()
    s += "; generated by tools/gen.py\n"
    s += "; @launch kernel=k1_kernel grid=(256,1,1) block=(512,1,1) lds=163840\n"
    if with_k2:
        s += "; @launch kernel=k2_kernel grid=(256,1,1) block=(512,1,1) lds=163840\n"
    s += '.amdgcn_target "amdgcn-amd-amdhsa--gfx950"\n.text\n'
    A = Asm()
    A.raw(".globl k1_kernel\n.p2align 8\n.type k1_kernel,@function")
    gen_k1(A)
    if with_k2:
        from gen_k2 import gen_k2
        A.raw(".globl k2_kernel\n.p2align 8\n.type k2_kernel,@function")
        gen_k2(A)
    s += A.render()
    s += descriptor("k1_kernel", 256)
    if with_k2:
        s += descriptor("k2_kernel", 256)
    return s

if __name__ == "__main__":
    out = sys.argv[1] if len(sys.argv) > 1 and not sys.argv[1].startswith("--") else os.path.join(os.path.dirname(os.path.abspath(__file__)), "..", NAME + ".s")
    open(out, "w").write(build(with_k2="--k1only" not in sys.argv))
    print("wrote", out)
```

```python
from gen import *

NST = 32
NS2 = 6
PD = 4
CONV_BASE = NS2 * 8192
CONV_SZ = 12928
CONV_PER_STAGE = 14

class VQ:
    def __init__(self, A): self.A = A; self.n = 0; self.tags = {}; self.done = 0
    def issue(self, text, tag=None):
        self.A(text); self.n += 1
        if tag is not None: self.tags[tag] = self.n
    def wait(self, tag):
        k = self.tags[tag]
        if k <= self.done: return
        cnt = self.n - k
        assert cnt <= 63, cnt
        self.A(f"s_waitcnt vmcnt({cnt})"); self.done = k

def gen_k2(A):
    A("k2_kernel:")
    A("s_cmp_ge_u32 s2, 256")
    A("s_cbranch_scc1 k2_end")
    load_kernargs(A)
    tile_ids(A)
    A("v_and_b32 v1, 63, v0")
    A("v_lshrrev_b32 v2, 6, v0")
    A("v_readfirstlane_b32 s3, v2")
    A("s_and_b32 s15, s54, 1")
    A("s_lshl_b32 s15, s15, 4")
    A("s_cmp_ge_u32 s3, 4")
    A("s_cbranch_scc1 k2_helper")
    gen_k2_gemm(A)
    A("k2_helper:")
    gen_k2_helper(A)
    A("k2_end:")
    A("s_endpgm")

def gen_k2_gemm(A):
    ACC = 32
    AF = 64
    FB = 128
    BD = 144
    XR, GR, DK, YR = 200, 164, 180, 184
    V = VQ(A)
    ST = Stamper(A, 1)
    ST()
    A("s_lshl_b32 s6, s4, 2")
    A("s_add_u32 s6, s6, s3")
    A("s_lshl_b32 s7, s6, 17")
    A("v_lshl_add_u32 v3, v1, 4, s7")
    A("v_and_b32 v4, 31, v1")
    A("v_lshrrev_b32 v6, 5, v1")
    A("v_bfe_u32 v11, v1, 1, 3")
    A("v_xor_b32 v11, v11, v6")
    A("v_lshlrev_b32 v14, 7, v4")
    for ks in range(4):
        A(f"v_xor_b32 v16, {2*ks}, v11")
        A(f"v_lshl_add_u32 v{BD+ks}, v16, 4, v14")
    A("s_waitcnt lgkmcnt(0)")
    srd(A, 56, "ws", 8 << 20, WS_H)
    def aload(st, ks):
        if ks == 0:
            A(f"s_add_u32 s11, s15, {st}")
            A("s_and_b32 s11, s11, 31")
            A("s_lshl_b32 s11, s11, 12")
        r = AF + ((st % PD)*4 + ks)*4
        V.issue(f"buffer_load_dwordx4 {vr(r,4)}, v3, s[56:59], s11 offen offset:{ks*1024}", ("A", st, ks))
    for st in range(PD):
        for ks in range(4): aload(st, ks)
    srd(A, 60, "x", 4 << 20)
    srd(A, 64, "dbg", 256)
    srd(A, 68, "ws", 4 << 20, WS_Y2T)
    srd(A, 72, "ws", 8192, WS_G)
    srd(A, 76, "out", 8 << 20)
    for i in range(16):
        A(f"s_mov_b32 s{80+i}, {i*4096}")
    A("s_lshl_b32 s7, s6, 5")
    A("v_lshl_add_u32 v7, v6, 4, s7")
    A("s_lshl_b32 s8, s5, 6")
    A("v_add_u32 v8, s8, v4")
    A("v_lshlrev_b32 v9, 1, v8")
    A("v_lshl_add_u32 v10, v7, 11, v9")
    A("v_lshlrev_b32 v12, 2, v7")
    A("v_lshlrev_b32 v13, 12, v8")
    A("v_lshl_add_u32 v13, v7, 1, v13")
    A("v_add_u32 v15, 0x20000, v13")
    A("v_lshlrev_b32 v17, 12, v7")
    A("v_lshl_add_u32 v17, v8, 2, v17")
    A("s_lshl_b32 s9, s5, 4")
    A("v_mov_b32 v18, s9")
    def rd(st, ks, buf, nt):
        return f"ds_read_b128 {vr(FB+buf*8+nt*4,4)}, v{BD+ks} offset:{(st % NS2)*8192 + nt*4096}"
    def mf(st, ks, buf, nt):
        a = AF + ((st % PD)*4 + ks)*4
        c = vr(ACC+nt*16, 16)
        return f"v_mfma_f32_32x32x16_bf16 {c}, {vr(a,4)}, {vr(FB+buf*8+nt*4,4)}, {'0' if (st == 0 and ks == 0) else c}"
    ST()
    A("s_barrier")
    ST()
    A(rd(0, 0, 0, 0)); A(rd(0, 0, 0, 1))
    xl = [(nt, r) for nt in range(2) for r in range(16)]
    for st in range(NST):
        for ks in range(4):
            buf = ks & 1
            last = (st == NST-1 and ks == 3)
            if ks == 3 and not last: A("s_barrier")
            ns, nks = (st, ks+1) if ks < 3 else (st+1, 0)
            V.wait(("A", st, ks))
            A("s_waitcnt lgkmcnt(1)")
            A(mf(st, ks, buf, 0))
            if not last: A(rd(ns, nks, buf ^ 1, 0))
            A(f"s_waitcnt lgkmcnt({0 if last else 1})")
            A(mf(st, ks, buf, 1))
            if not last: A(rd(ns, nks, buf ^ 1, 1))
            if st + PD < NST: aload(st + PD, ks)
            if st % 4 == 3 and ks == 3: ST()
            if 16 <= st < 24:
                nt, r = xl[(st-16)*4 + ks]
                V.issue(f"buffer_load_ushort v{XR+nt*16+r}, v10, s[60:63], s{80+(r>>1)} offen offset:{(r&1)*2048+nt*64}", "x")
            if st == 24:
                V.issue(f"buffer_load_dwordx4 {vr(GR+ks*4,4)}, v12, s[72:75], 0 offen offset:{ks*16}", "g")
            if st == 25 and ks < 2:
                V.issue(f"global_load_ushort v{DK+ks}, v9, {sp('Dskip')} offset:{ks*64}", "dk")
            if st == 28 and ks == 0:
                V.issue("buffer_load_dword v19, v18, s[64:67], 0 offen sc1", "flag")
            if st == 29 and ks == 3:
                V.wait("flag")
                A("k2g_flagchk:")
                A("v_readfirstlane_b32 s11, v19")
                A("s_cmp_eq_u32 s11, 16")
                A("s_cbranch_scc1 k2g_flagok")
                A("s_sleep 2")
                A("buffer_load_dword v19, v18, s[64:67], 0 offen sc1")
                A("s_waitcnt vmcnt(0)")
                A("s_branch k2g_flagchk")
                A("k2g_flagok:")
                ST()
                for nt in range(2):
                    for hf in range(2):
                        V.issue(f"buffer_load_dwordx4 {vr(YR+nt*8+hf*4,4)}, v{13 if nt == 0 else 15}, s[68:71], 0 offen offset:{hf*16} sc1", "y2")
    A("s_mov_b32 s12, 0xffff0000")
    V.wait("dk")
    G0, OM = 64, 80
    for r in range(16):
        A(f"v_lshlrev_b32 v{G0+r}, 16, v{GR+r}")
        A(f"v_and_b32 v{OM+r}, s12, v{GR+r}")
    A(f"v_lshlrev_b32 v{DK}, 16, v{DK}")
    A(f"v_lshlrev_b32 v{DK+1}, 16, v{DK+1}")
    def rnd(pair, tmp):
        A(f"v_cvt_pk_bf16_f32 v{tmp}, v{pair}, v{pair+1}")
        A(f"v_lshlrev_b32 v{pair}, 16, v{tmp}")
        A(f"v_and_b32 v{pair+1}, s12, v{tmp}")
    V.wait("y2")
    for nt in range(2):
        for m in range(8):
            b = 96 + (m & 1)*12
            xf, xd, yy, tm = b, b+2, b+4, b+6
            A(f"v_lshlrev_b32 v{xf}, 16, v{XR+nt*16+2*m}")
            A(f"v_lshlrev_b32 v{xf+1}, 16, v{XR+nt*16+2*m+1}")
            A(f"v_lshlrev_b32 v{yy}, 16, v{YR+nt*8+m}")
            A(f"v_and_b32 v{yy+1}, s12, v{YR+nt*8+m}")
            A(pk("mul", xd, xf, DK, bsel=nt))
            A(pk("mul", yy, xf, yy))
            rnd(xd, tm); rnd(yy, tm+1)
            A(pk("mul", yy, yy, OM+2*m))
            a = ACC + nt*16 + 2*m
            A(pk("add", a, a, xd))
            rnd(yy, tm)
            A(pk("fma", a, a, G0+2*m, yy))
            for e in range(2):
                A(f"buffer_store_dword v{a+e}, v17, s[76:79], s{80+2*m+e} offen offset:{nt*128}")
    ST()
    ST.flush()
    A("s_endpgm")

def gen_k2_helper(A):
    V = VQ(A)
    ST = Stamper(A, 1)
    ST()
    VC = 8
    ACC = 32
    BF = 64
    AFR = 128
    A("s_sub_u32 s3, s3, 4")
    A("s_lshl_b32 s8, s5, 6")
    A("s_lshl_b32 s9, s3, 4")
    A("s_add_u32 s8, s8, s9")
    A("v_lshrrev_b32 v6, 3, v1")
    A("v_add_u32 v6, s8, v6")
    A("v_lshlrev_b32 v6, 11, v6")
    A("v_and_b32 v4, 7, v1")
    A("v_lshrrev_b32 v5, 4, v1")
    A("v_xor_b32 v4, v4, v5")
    A("v_lshlrev_b32 v4, 4, v4")
    A(f"v_add_u32 v{VC}, v6, v4")
    A("v_xor_b32 v4, 64, v4")
    A(f"v_add_u32 v{VC+1}, v6, v4")
    A(f"v_add_u32 v{VC+1}, {16384-1024}, v{VC+1}")
    A("s_lshl_b32 s10, s3, 11")
    A("s_lshl_b32 s6, s54, 5")
    A("s_add_u32 s6, s6, s55")
    A("s_lshr_b32 s7, s6, 4")
    A("s_lshl_b32 s6, s6, 2")
    A("s_add_u32 s6, s6, s3")
    A("s_lshl_b32 s12, s6, 12")
    A(f"s_mul_i32 s13, s3, {CONV_SZ}")
    A(f"s_add_u32 s13, s13, {CONV_BASE}")
    A("v_lshlrev_b32 v7, 4, v1")
    A("v_add_u32 v10, 2, v7")
    A("s_waitcnt lgkmcnt(0)")
    srd(A, 56, "Cre", 2 << 20)
    srd(A, 60, "Cim", 2 << 20)
    srd(A, 64, "ssmk", 4096, off_sreg=12)
    srd(A, 68, "ws", 4096, WS_KVT, off_sreg=12)
    srd(A, 72, "ws", 4096, WS_Y2T, off_sreg=12)
    srd(A, 76, "dbg", 256)
    A("s_load_dword s80, s[64:65], 0")
    A("s_lshr_b32 s14, s6, 1")
    A("s_lshl_b32 s14, s14, 2")
    A(f"s_load_dword s81, {sp('ssmD')}, s14")
    def cissue(st):
        A(f"s_add_u32 s11, s15, {st}")
        A("s_and_b32 s11, s11, 31")
        A("s_lshr_b32 s11, s11, 1")
        A("s_lshl_b32 s11, s11, 7")
        A(f"s_add_u32 m0, s10, {(st % NS2)*8192:#x}")
        sr_ = "s[56:59]" if st % 2 == 0 else "s[60:63]"
        for n in range(2):
            V.issue(f"buffer_load_dwordx4 v{VC+n}, {sr_}, s11 offen offset:{n*1024} lds", ("C", st))
    cissue(0); cissue(1)
    A("s_add_u32 m0, s13, 32")
    for i in range(4): V.issue(f"buffer_load_dwordx4 v7, s[64:67], 0 offen offset:{i*1024} lds")
    A("s_add_u32 m0, s13, 4192")
    for i in range(4): V.issue(f"buffer_load_dwordx4 v10, s[64:67], 0 offen offset:{i*1024} lds")
    A("s_add_u32 m0, s13, 8320")
    for i in range(4): V.issue(f"buffer_load_dwordx4 v7, s[68:71], 0 offen offset:{i*1024} lds", "conv")
    for st in range(2, NS2-1): cissue(st)
    A("v_and_b32 v11, 15, v1")
    A("v_and_b32 v12, 7, v1")
    A("v_lshlrev_b32 v12, 2, v12")
    A("v_bfe_u32 v13, v1, 3, 1")
    A("v_mul_u32_u24 v13, 4160, v13")
    A("v_add3_u32 v12, v12, v13, s13")
    A("s_waitcnt lgkmcnt(0)")
    A("s_lshl_b32 s80, s80, 16")
    A("v_mov_b32 v14, s80")
    A("v_cmp_eq_u32 vcc, 15, v11")
    A("v_mov_b32 v15, 0")
    A("v_cndmask_b32 v14, 0, v14, vcc")
    A("ds_write_b32 v12, v14")
    A("v_mov_b32 v14, 0")
    A("v_lshlrev_b32 v12, 3, v1")
    A("v_add_u32 v12, s13, v12")
    A("ds_write_b64 v12, v[14:15] offset:12416")
    A("s_and_b32 s14, s6, 1")
    A("s_lshl_b32 s14, s14, 4")
    A("s_lshr_b32 s81, s81, s14")
    A("s_lshl_b32 s81, s81, 16")
    A("v_lshl_add_u32 v12, v5, 3, v11")
    A("v_lshlrev_b32 v12, 1, v12")
    A("v_and_b32 v13, 1, v1")
    A("v_mul_u32_u24 v13, 4158, v13")
    A("v_sub_u32 v12, v12, v13")
    A("s_add_u32 s14, s13, 4160")
    A("v_add_u32 v16, s14, v12")
    for i in range(1, 4): A(f"v_add_u32 v{16+i}, {1024*i}, v16")
    A("v_lshlrev_b32 v12, 5, v11")
    A("v_lshlrev_b32 v13, 4, v5")
    A("v_sub_u32 v20, v13, v12")
    A(f"s_add_u32 s14, s13, {8320+480}")
    A("v_add_u32 v20, s14, v20")
    A("v_lshl_add_u32 v13, v5, 3, v12")
    A(f"s_add_u32 s14, s13, {8320+504}")
    A("v_sub_u32 v21, s14, v13")
    A("v_and_b32 v13, 1, v5")
    A("v_lshl_add_u32 v22, v13, 9, v12")
    A("v_lshrrev_b32 v13, 1, v5")
    A("v_lshl_add_u32 v22, v13, 4, v22")
    A("s_lshl_b32 s7, s7, 4")
    A("v_mov_b32 v23, s7")
    A("v_mov_b32 v24, 1")

    ops = []
    def reads(r):
        L = []
        s = r & 1
        seqA = [("A", r, q) for q in range(8)]
        for i in range(8):
            L.append((f"ds_read_b128 {vr(BF+s*32+i*4,4)}, v20 offset:{3584-512*i+64*r}", ("B", r, i)))
            o = 128*(i & 1) + 16*r
            d = AFR + s*32 + i*4
            L.append((f"ds_read2_b32 {vr(d,2)}, v{16+(i>>1)} offset0:{o} offset1:{o+1}", None))
            L.append((f"ds_read2_b32 {vr(d+2,2)}, v{16+(i>>1)} offset0:{o+2} offset1:{o+3}", ("A", r, i)))
        return L
    def first_order(L):
        return L[1:3] + [L[3*i] for i in range(8)] + [x for i in range(1, 8) for x in L[3*i+1:3*i+3]]
    for t, tag in first_order(reads(0)): ops.append(("rd", t, tag))
    for r in range(8):
        s = r & 1
        nxt = first_order(reads(r+1)) if r < 7 else [(f"ds_read_b64 {vr(BF+(s^1)*32+2*n,2)}, v21 offset:{3584-512*n}", ("KV", n)) for n in range(8)]
        cnt = 0
        for q in range(8):
            for n in range(q, 8):
                c = vr(ACC+4*n, 4)
                ops.append(("mf", f"v_mfma_f32_16x16x32_bf16 {c}, {vr(AFR+s*32+4*q,4)}, {vr(BF+s*32+4*(n-q),4)}, {'0' if (r == 0 and q == 0) else c}",
                            [("A", r, q), ("B", r, n-q)]))
                cnt += 1
                if nxt and cnt >= 2:
                    t, tag = nxt.pop(0); ops.append(("rd", t, tag))
        assert not nxt
    class LQ:
        n = 0; tags = {}; done = 0
    def emit(op):
        if op[0] == "rd":
            A(op[1]); LQ.n += 1
            if op[2] is not None: LQ.tags[op[2]] = LQ.n
        else:
            k = max(LQ.tags[t] for t in op[2])
            if k > LQ.done:
                A(f"s_waitcnt lgkmcnt({min(15, LQ.n - k)})"); LQ.done = max(k, LQ.n - 15)
            A(op[1])
    def post():
        KVR = BF
        A("s_mov_b32 s12, 0xffff0000")
        A("s_waitcnt lgkmcnt(0)")
        A("v_mov_b32 v26, s81")
        A("v_mov_b32 v27, s81")
        for n in range(8):
            y = ACC + 4*n
            t = 96 + (n & 1)*12
            A(f"v_and_b32 v{t}, s12, v{KVR+2*n+1}")
            A(f"v_lshlrev_b32 v{t+1}, 16, v{KVR+2*n+1}")
            A(f"v_and_b32 v{t+2}, s12, v{KVR+2*n}")
            A(f"v_lshlrev_b32 v{t+3}, 16, v{KVR+2*n}")
            A(pk("mul", t, t, 26)); A(pk("mul", t+2, t+2, 26))
            for pr in (t, t+2, y, y+2):
                A(f"v_cvt_pk_bf16_f32 v{t+4}, v{pr}, v{pr+1}")
                A(f"v_lshlrev_b32 v{pr}, 16, v{t+4}")
                A(f"v_and_b32 v{pr+1}, s12, v{t+4}")
            A(pk("add", t, t, y)); A(pk("add", t+2, t+2, y+2))
            d = 128 + (n >> 1)*4 + (n & 1)*2
            A(f"v_cvt_pk_bf16_f32 v{d}, v{t}, v{t+1}")
            A(f"v_cvt_pk_bf16_f32 v{d+1}, v{t+2}, v{t+3}")
            if n & 1:
                d = 128 + (n >> 1)*4
                A(f"v_permlane16_swap_b32 v{d}, v{d+2}")
                A(f"v_permlane16_swap_b32 v{d+1}, v{d+3}")
                V.issue(f"buffer_store_dwordx4 {vr(d,4)}, v22, s[72:75], 0 offen offset:{(n>>1)*1024} sc1", "y2")
    ST()
    V.wait(("C", 0))
    ST()
    A("s_barrier")
    pos = 0
    state = "conv"
    for st in range(NST-1):
        if state == "conv":
            if st == 0:
                V.wait("conv")
                A("s_waitcnt lgkmcnt(0)")
                ST()
            cnt = 0
            while pos < len(ops) and cnt < CONV_PER_STAGE:
                if ops[pos][0] == "mf": cnt += 1
                emit(ops[pos]); pos += 1
            while pos < len(ops) and ops[pos][0] == "rd":
                emit(ops[pos]); pos += 1
            if pos == len(ops): state = "post"
        elif state == "post":
            ST(); post(); ST(); state = "drain"
        elif state == "drain":
            V.wait("y2"); ST(); state = "flag"
        V.wait(("C", st+1))
        A("s_barrier")
        if state == "flag":
            A("s_cmp_lg_u32 s3, 0")
            A("s_cbranch_scc1 k2h_noflag")
            A("s_mov_b64 exec, 1")
            A("buffer_atomic_add v24, v23, s[76:79], 0 offen sc1")
            A("s_mov_b64 exec, -1")
            A("k2h_noflag:")
            state = "done"
            print("k2: flag after barrier", st+1)
        if st + NS2 - 1 < NST: cissue(st + NS2 - 1)
    ST.flush()
    A("s_endpgm")
```

```python
import sys, os
sys.path.insert(0, os.path.dirname(os.path.abspath(__file__)))
from asmlib import Asm
from gen import (NAME, P, sp, vr, sr, load_kernargs, srd, pk, cmul, tile_ids, Stamper, OPT, header_comments, descriptor)
import gen

KN = NAME + "_kernel"
WB = int(OPT.get('wsbase', 0)) << 20
WS_H    = WB + 0
WS_KVT  = WB + (8 << 20)
WS_G    = WB + (16 << 20)
WS_EBOX = WB + (17 << 20)
WS_FLG  = WB + (18 << 20)
FLG_SZ = 192 << 10
KF_OFF = 128 << 10
YF_OFF = 160 << 10
N1 = 16
N2 = 32
NS2 = 8
PD = int(OPT.get("pd", 4))
CRING = 32768
KREG = 98304
UREG = KREG + 4*8320
LFLAG = UREG + 4*4608
PACK = 0
SPIN = int(OPT.get("spin", 1 << 16))

XL = "xl" in OPT
KVL = "kvl" in OPT
LFI = "lf" in OPT
HFL_OFF = 192 << 10
WS_HL = WB + (24 << 20)
if LFI: FLG_SZ = 320 << 10
LS = " sc1"
class VQ:
    def __init__(self, A): self.A = A; self.n = 0; self.tags = {}; self.done = 0
    def issue(self, text, tag=None):
        self.A(text); self.n += 1
        if tag is not None: self.tags[tag] = self.n
    def wait(self, tag):
        k = self.tags[tag]
        if k <= self.done: return
        cnt = self.n - k
        if cnt > 63: cnt = 63
        self.A(f"s_waitcnt vmcnt({cnt})"); self.done = self.n - cnt
    def drained(self): self.done = self.n

SLEEP = int(OPT.get("sleep", 4))
def spin_all_ones(A, name, vreg, reload, cmpval="1", sctr=89, pre=None):
    A(f"s_mov_b32 s{sctr}, {SPIN}")
    A(f"{name}_chk:")
    if pre: A(pre)
    A(f"v_cmp_ne_u32 vcc, {cmpval}, v{vreg}")
    A("s_cmp_eq_u64 vcc, 0")
    A(f"s_cbranch_scc1 {name}_ok")
    A(f"s_sub_u32 s{sctr}, s{sctr}, 1")
    A(f"s_cbranch_scc1 {name}_ok")
    A(f"s_sleep {SLEEP}")
    A(reload)
    A("s_waitcnt vmcnt(0)")
    A(f"s_branch {name}_chk")
    A(f"{name}_ok:")

def rest_kernargs(A):
    A("s_load_dwordx16 s[32:47], s[0:1], 64")
    A("s_load_dwordx4 s[48:51], s[0:1], 128")
    A("s_load_dwordx2 s[52:53], s[0:1], 144")

PGN = [0]
def visit(A, pages_by_wave):
    if "pg" not in OPT: return
    for w, pages in enumerate(pages_by_wave):
        if not pages: continue
        PGN[0] += 1; n = PGN[0]
        A(f"s_cmp_lg_u32 s3, {w}")
        A(f"s_cbranch_scc1 pgv{n}")
        for i, p_ in enumerate(pages):
            A("s_getpc_b64 s[96:97]")
            A(f"pgv{n}_{i}:")
            A(f"s_add_u32 s96, s96, PGOFF({p_},pgv{n}_{i})")
            A(f"s_addc_u32 s97, s97, PGHI({p_},pgv{n}_{i})")
            A("s_swappc_b64 s[98:99], s[96:97]")
        A(f"pgv{n}:")

def gen_kernel(A):
    A(f"{KN}:")
    A("s_cmp_ge_u32 s2, 256")
    A("s_cbranch_scc1 L_end")
    if "ka" in OPT: A("s_load_dwordx16 s[16:31], s[0:1], 0")
    else: load_kernargs(A)
    for i in range(int(OPT.get("diagsleep", 0))): A("s_sleep 127")
    tile_ids(A)
    if XL:
        A("s_lshl_b32 s4, s54, 1")
        A("s_and_b32 s6, s55, 1")
        A("s_add_u32 s4, s4, s6")
        A("s_lshr_b32 s5, s55, 1")
    A("v_and_b32 v1, 63, v0")
    A("v_lshrrev_b32 v2, 6, v0")
    A("v_readfirstlane_b32 s3, v2")
    if "hlow" in OPT: A("s_xor_b32 s3, s3, 4")
    A("s_lshr_b32 s15, s55, 2")
    A("s_lshl_b32 s15, s15, 2")
    A("s_and_b32 s6, s55, 3")
    A("s_lshl_b32 s6, s6, 3")
    A("s_add_u32 s15, s15, s6")
    if OPT.get("rot2") == "0": A("s_mov_b32 s15, 0")
    if LFI:
        A("s_and_b32 s15, s54, 1")
        A("s_lshl_b32 s15, s15, 4")
    if OPT.get("rot2") == "2":
        A("s_lshr_b32 s15, s55, 2\ns_xor_b32 s15, s15, s55\ns_and_b32 s15, s15, 1\ns_lshl_b32 s15, s15, 4")
    if OPT.get("rot2") == "3":
        A("s_lshr_b32 s15, s55, 2\ns_add_u32 s15, s15, s55\ns_and_b32 s15, s15, 3\ns_lshl_b32 s15, s15, 1")
    if XL:
        A("s_and_b32 s15, s55, 1")
        A("s_lshl_b32 s15, s15, 4")
        A("s_and_b32 s6, s55, 14")
        A("s_add_u32 s15, s15, s6")
        if OPT.get("rot2") == "0": A("s_mov_b32 s15, 0")
    A("s_cmp_ge_u32 s3, 4")
    if OPT.get("hfirst") == "2":
        A("s_cbranch_scc0 L_consumer")
        helper(A)
    elif "hfirst" in OPT:
        A("s_cbranch_scc0 L_consumer")
        helper(A)
        A("L_consumer:")
        consumer(A)
    else:
        A("s_cbranch_scc1 L_helper")
        consumer(A)
        A("L_helper:")
        helper(A)
    A("L_end:")
    A("s_endpgm")


def consumer(A):
    ACC = 64
    FA, FB = 128, 144
    AD, BD = 160, 168
    LAM, C2, MU, MU2, MU4, MU8 = 176, 178, 180, 182, 184, 186
    EL = 192
    UR2 = 224
    ST = Stamper(A, 0, 63)
    ST()
    if "ka" in OPT: rest_kernargs(A)
    if "prio" in OPT: A(f"s_setprio {OPT['prio']}")
    A("s_and_b32 s6, s3, 1")
    A("s_lshr_b32 s7, s3, 1")
    A("v_and_b32 v4, 31, v1")
    A("s_lshl_b32 s8, s5, 6")
    A("s_lshl_b32 s9, s7, 5")
    A("s_add_u32 s8, s8, s9")
    A("v_add_u32 v3, s8, v4")
    A("v_lshlrev_b32 v5, 1, v3")
    A("v_lshrrev_b32 v6, 5, v1")
    A("s_lshl_b32 s10, s4, 1")
    A("s_add_u32 s10, s10, s6")
    if "nocode" not in OPT:
        A("s_getpc_b64 s[12:13]")
        A("c_pc:")
        A(f"s_sub_u32 s12, s12, c_pc-{KN}")
        A("s_subb_u32 s13, s13, 0")
        A("s_lshl_b32 s11, s3, 14")
        A("v_lshl_add_u32 v24, v1, 7, s11")
        A("v_min_u32 v24, CODE_LAST, v24")
        A("global_load_dword v25, v24, s[12:13]")
        A("v_add_u32 v24, 0x2000, v24")
        A("v_min_u32 v24, CODE_LAST, v24")
        A("global_load_dword v26, v24, s[12:13]")
    A("s_waitcnt lgkmcnt(0)")
    A(f"global_load_ushort v8, v5, {sp('Lre')}")
    A(f"global_load_ushort v9, v5, {sp('Lim')}")
    A(f"global_load_ushort v10, v5, {sp('logdt')}")
    srd(A, 56, "ws", 256 << 10, WS_EBOX)
    srd(A, 60, "ws", (32 if LFI else 8) << 20, WS_H)
    srd(A, 64, "dbg", 256)
    srd(A, 68, "ws", FLG_SZ, WS_FLG)
    A("s_lshl_b32 s11, s10, 13")
    A("v_lshl_add_u32 v7, v3, 3, s11")
    A("v_mov_b32 v12, 0")
    A("v_mov_b32 v13, 0")
    A("buffer_store_dwordx2 v[12:13], v7, s[56:59], 0 offen sc1")
    A("s_lshl_b32 s11, s10, 4")
    A("s_add_u32 s11, s11, s5")
    A("s_lshl_b32 s11, s11, 1")
    A("s_add_u32 s11, s11, s7")
    A("s_lshl_b32 s11, s11, 7")
    A("v_mov_b32 v60, s11")
    A("buffer_store_dword v12, v60, s[68:71], 0 offen sc1")
    if LFI:
        A(f"v_add_u32 v62, {HFL_OFF:#x}, v60")
        A("buffer_store_dword v12, v62, s[68:71], 0 offen sc1")
    A("v_cmp_le_u32 vcc, s10, v4")
    A("v_cndmask_b32 v22, 0, 1, vcc")
    A("v_mov_b32 v23, 1")
    A("v_bfe_u32 v11, v1, 1, 3")
    A("v_xor_b32 v11, v11, v6")
    A("s_lshl_b32 s11, s6, 13")
    A("v_lshl_add_u32 v14, v4, 7, s11")
    A("s_lshl_b32 s11, s7, 12")
    A("s_add_u32 s11, s11, 16384")
    A("v_lshl_add_u32 v15, v4, 7, s11")
    for ks in range(4):
        A(f"v_xor_b32 v16, {2*ks}, v11")
        A(f"v_lshl_add_u32 v{AD+ks}, v16, 4, v14")
        A(f"v_lshl_add_u32 v{BD+ks}, v16, 4, v15")
        A(f"v_add_u32 v{AD+4+ks}, 0x10000, v{AD+ks}")
        A(f"v_add_u32 v{BD+4+ks}, 0x10000, v{BD+ks}")
    if XL:
        A("s_cmp_lg_u32 s3, 0")
        A("s_cbranch_scc1 c_noxcc")
        A("s_getreg_b32 s11, hwreg(HW_REG_XCC_ID, 0, 4)")
        A("s_lshl_b32 s11, 1, s11")
        A("v_mov_b32 v16, s11")
        A("s_lshl_b32 s11, s54, 2")
        A("s_add_u32 s11, s11, 32")
        A("v_mov_b32 v17, s11")
        A("s_mov_b64 exec, 1")
        A("buffer_atomic_or v16, v17, s[64:67], 0 offen sc1")
        A("s_mov_b64 exec, -1")
        A("c_noxcc:")
    A("s_lshl_b32 s11, s3, 2")
    A(f"s_add_u32 s11, s11, {LFLAG:#x}")
    A("v_mov_b32 v61, s11")
    A("ds_write_b32 v61, v23 offset:16")
    A("v_mov_b32 v21, v1")
    A("v_bfe_i32 v2, v1, 3, 1")
    A("v_lshlrev_b32 v21, 2, v21")
    A("s_waitcnt vmcnt(0)")
    A("v_lshlrev_b32 v8, 16, v8")
    A("v_lshlrev_b32 v9, 16, v9")
    A("v_lshlrev_b32 v10, 16, v10")
    A("s_mov_b32 s12, 0x3fb8aa3b")
    A("v_mul_f32 v10, s12, v10")
    A("v_exp_f32 v10, v10")
    A("v_cvt_pk_bf16_f32 v10, v10, v10")
    A("v_lshlrev_b32 v10, 16, v10")
    A("v_mul_f32 v16, v10, v8")
    A("v_mul_f32 v17, v10, v9")
    A("v_mul_f32 v16, s12, v16")
    A("v_exp_f32 v16, v16")
    A("v_mul_f32 v17, 0.15915494, v17")
    A("v_rndne_f32 v18, v17")
    A("v_sub_f32 v17, v17, v18")
    A("v_cos_f32 v18, v17")
    A("v_sin_f32 v19, v17")
    A(f"v_mul_f32 v{LAM}, v16, v18")
    A(f"v_mul_f32 v{LAM+1}, v16, v19")
    A(f"v_add_f32 v16, -1.0, v{LAM}")
    A("v_mul_f32 v17, v8, v8")
    A("v_fma_f32 v17, v9, v9, v17")
    A("v_rcp_f32 v17, v17")
    A("v_mul_f32 v18, v16, v8")
    A(f"v_fma_f32 v18, v{LAM+1}, v9, v18")
    A(f"v_mul_f32 v19, v{LAM+1}, v8")
    A("v_fma_f32 v19, -v16, v9, v19")
    A("v_add_f32 v17, v17, v17")
    A(f"v_mul_f32 v{C2}, v18, v17")
    A(f"v_mul_f32 v{C2+1}, v19, v17")
    cmul(A, 16, LAM, LAM); cmul(A, 18, 16, 16); cmul(A, 16, 18, 18)
    cmul(A, MU, 16, 16); cmul(A, MU2, MU, MU); cmul(A, MU4, MU2, MU2); cmul(A, MU8, MU4, MU4)
    cmul(A, 48, C2, MU2)
    A("v_cmp_lt_u32 vcc, 31, v1")
    A(f"v_cndmask_b32 v48, v{C2}, v48, vcc")
    A(f"v_cndmask_b32 v49, v{C2+1}, v49, vcc")
    A("v_lshlrev_b32 v50, 13, v6")
    A("v_sub_u32 v50, v7, v50")
    A("s_add_u32 s11, s10, 1")
    A("v_sub_u32 v51, s11, v6")
    A("v_lshrrev_b32 v51, 1, v51")

    def rd(stage, ks, buf, which):
        slot = stage % 3
        hi = 4 if slot >= 2 else 0
        so = (slot & 1) * 32768
        if which < 2:
            return f"ds_read_b128 {vr(FA+buf*8+which*4,4)}, v{AD+hi+ks} offset:{so + which*4096}"
        ri = which - 2
        return f"ds_read_b128 {vr(FB+buf*8+ri*4,4)}, v{BD+hi+ks} offset:{so + ri*8192}"
    def mf(buf, mt, ri, first):
        acc = ACC + ri*32 + mt*16
        return f"v_mfma_f32_32x32x16_bf16 {vr(acc,16)}, {vr(FA+buf*8+mt*4,4)}, {vr(FB+buf*8+ri*4,4)}, {'0' if first else vr(acc,16)}"
    RD_ORDER = [0, 2, 1, 3]
    MF_ORDER = [(0,0), (1,0), (1,1), (0,1)]
    ST()
    A("s_barrier")
    ST()
    def initbit():
        A("s_cmp_lg_u32 s3, 0")
        A("s_cbranch_scc1 c_noflag")
        A("s_lshr_b32 s11, s2, 6")
        A("s_lshl_b32 s11, 1, s11")
        if KVL or LFI:
            A("s_getreg_b32 s12, hwreg(HW_REG_XCC_ID, 0, 4)")
            A("s_lshl_b32 s12, 0x100, s12")
            A("s_or_b32 s11, s11, s12")
        A("v_mov_b32 v16, s11")
        A("s_and_b32 s11, s2, 63")
        A("s_lshl_b32 s11, s11, 2")
        A("v_mov_b32 v17, s11")
        A("s_mov_b64 exec, 1")
        A("buffer_atomic_or v16, v17, s[64:67], 0 offen sc1")
        A("s_mov_b64 exec, -1")
        A("c_noflag:")
    if "ka" not in OPT: initbit()
    for w in RD_ORDER: A(rd(0, 0, 0, w))
    for s in range(N1):
        for ks in range(4):
            buf = ks & 1
            last = (s == N1-1 and ks == 3)
            if ks == 3:
                A("s_waitcnt lgkmcnt(0)")
                A("s_barrier")
                if "ka" in OPT and s == 1: initbit()
            ns, nks = (s, ks+1) if ks < 3 else (s+1, 0)
            for i in range(4):
                if ks < 3 and i < 3: A("s_waitcnt lgkmcnt(2)")
                A(mf(buf, *MF_ORDER[i], s == 0 and ks == 0))
                if not last: A(rd(ns, nks, buf ^ 1, RD_ORDER[i]))
            if "pret" in OPT and 4 <= s < 12 and ks == 1:
                i = s - 4
                if i == 0:
                    A("s_lshl_b32 s11, s10, 18\ns_lshl_b32 s12, s5, 13\ns_add_u32 s11, s11, s12\ns_lshl_b32 s12, s7, 11\ns_add_u32 s11, s11, s12")
                    A("v_lshl_add_u32 v61, v1, 4, s11")
                A(f"s_mov_b32 s12, {(i>>2)*131072 + ((i>>1)&1)*4096:#x}")
                A(f"buffer_store_dwordx4 v[12:15], v61, s[60:63], s12 offen offset:{(i&1)*1024}{OPT['pret'].replace('_', ' ') if OPT['pret'] != 1 else ''}")
            if s in ((3, 7, 11) if 'fine' not in OPT else range(3, 15)) and ks == 3: ST()
            if s == 12 and ks == 0 and "noinit" not in OPT:
                A("buffer_load_dword v20, v21, s[64:67], 0 offen sc1")
    ST()
    if "fine" in OPT: ST.n = 40
    if "cl" in OPT: gen.SAFE_PK[0] = True
    def UR(t): return ACC + (t >> 3)*16 + 2*(t & 7)
    def UI(t): return ACC + 32 + (t >> 3)*16 + 2*(t & 7)
    E = [(24, 26), (28, 30)]
    cr, ci = UR(0), UI(0)
    for t in range(1, 16):
        nr, ni = E[t & 1]
        A(pk("fma", nr, cr, LAM, UR(t), bsel=0))
        A(pk("fma", ni, ci, LAM, UI(t), bsel=0))
        A(pk("fma", nr, ci, LAM, nr, bsel=1, neg_b=True))
        A(pk("fma", ni, cr, LAM, ni, bsel=1))
        cr, ci = nr, ni
    A("v_mov_b32 v32, v28\nv_mov_b32 v33, v30\nv_mov_b32 v34, v29\nv_mov_b32 v35, v31")
    cmul(A, 36, MU, 32, add=34)
    A("v_mov_b32 v38, v36\nv_mov_b32 v39, v37\nv_mov_b32 v40, 0\nv_mov_b32 v41, 0")
    A("v_permlane32_swap_b32 v40, v38")
    A("v_permlane32_swap_b32 v41, v39")
    cmul(A, 42, MU2, 40, add=36)
    A("v_or_b32 v42, 1, v42")
    A("s_mov_b32 s12, 0")
    A("s_mov_b32 s13, -1")
    A("s_mov_b64 exec, s[12:13]")
    A("buffer_store_dwordx2 v[42:43], v7, s[56:59], 0 offen sc1")
    A("s_mov_b64 exec, -1")
    ST()
    for t in range(16):
        n = UR2 + 2*t
        A(pk("mul", n, UR(t), C2, bsel=0))
        A(pk("fma", n, UI(t), C2, n, bsel=1, neg_b=True))
        A(pk("mul", UI(t), UI(t), C2, bsel=0))
        A(pk("fma", UI(t), UR(t), C2, UI(t), bsel=1))
    cmul(A, 44, C2, 40)
    cmul(A, 46, C2, 32)
    for k in range(16):
        A(f"v_subrev_u32 v{128+k}, {(1+2*k)*8192:#x}, v50")
    if "pz" in OPT:
        A("s_mov_b64 exec, 1")
        A("ds_write_b32 v61, v12 offset:16")
        A("s_mov_b64 exec, -1")
    ST()
    A("s_waitcnt vmcnt(1)")
    if XL:
        spin_all_ones(A, "c_init", 52, "buffer_load_dword v20, v21, s[64:67], 0 offen sc1", "-1", pre="v_or_b32 v52, v20, v2")
        A("s_add_u32 s11, s54, 8")
        A("v_readlane_b32 s14, v20, s11")
        A("s_bcnt1_i32_b32 s14, s14")
    else:
        spin_all_ones(A, "c_init", 52, "buffer_load_dword v20, v21, s[64:67], 0 offen sc1", "15", pre="v_and_b32 v52, 15, v20")
        if LFI:
            A("s_getreg_b32 s11, hwreg(HW_REG_XCC_ID, 0, 4)")
            A("s_lshl_b32 s11, 0x100, s11")
            A("s_or_b32 s11, s11, 15")
            A("v_and_b32 v52, 7, v1")
            A("v_cmp_eq_u32 s[12:13], s54, v52")
            A("v_cmp_ne_u32 vcc, s11, v20")
            A("s_and_b64 vcc, vcc, s[12:13]")
            A("s_cselect_b32 s14, 0, 1")
    for k in range(16):
        A(f"buffer_load_dwordx2 {vr(EL+2*k,2)}, v{128+k}, s[56:59], 0 offen sc1")
    A(f"s_mov_b32 s88, {SPIN}")
    A("c_poll:")
    A("s_waitcnt vmcnt(0)")
    A("v_mov_b32 v52, 0")
    for k in range(16):
        A(f"v_and_b32 v{144+k}, 1, v{EL+2*k}")
    for k in range(0, 16, 2):
        A(f"v_add3_u32 v52, v52, v{144+k}, v{145+k}")
    A("v_cmp_ne_u32 vcc, v52, v51")
    A("s_cmp_eq_u64 vcc, 0")
    A("s_cbranch_scc1 c_polled")
    A("s_sub_u32 s88, s88, 1")
    A("s_cbranch_scc1 c_polled")
    if "fastpoll" in OPT:
        for k in range(16):
            A(f"v_cmpx_eq_u32 vcc, 0, v{144+k}")
            A(f"buffer_load_dwordx2 {vr(EL+2*k,2)}, v{128+k}, s[56:59], 0 offen sc1")
            A("s_mov_b64 exec, -1")
    else:
        A(f"s_sleep {SLEEP}")
        for k in range(16):
            A(f"v_cmp_eq_u32 vcc, 0, v{144+k}")
            A("s_mov_b64 exec, vcc")
            A(f"buffer_load_dwordx2 {vr(EL+2*k,2)}, v{128+k}, s[56:59], 0 offen sc1")
            A("s_mov_b64 exec, -1")
    A("s_branch c_poll")
    A("c_polled:")
    if "pz" in OPT:
        A("s_mov_b64 exec, 1")
        A("ds_write_b32 v61, v23 offset:16")
        A("s_mov_b64 exec, -1")
    ST()
    g = EL + 30
    G = [52, 54]
    for k in range(14, -1, -1):
        n = G[k & 1]
        A(pk("fma", n, g, MU8, EL+2*k, bsel=0))
        A(pk("fma", n, g, MU8, n, bsel=1, asel="swap", neg_lo=[1,0,0]))
        g = n
    A("v_mov_b32 v54, v52\nv_mov_b32 v55, v53\nv_mov_b32 v56, v52\nv_mov_b32 v57, v53")
    A("v_permlane32_swap_b32 v54, v56")
    A("v_permlane32_swap_b32 v55, v57")
    cmul(A, 58, MU4, 56, add=54)
    cmul(A, 52, 48, 58, add=44)
    cmul(A, 54, MU, 52, add=46)
    A("v_mov_b32 v56, v52\nv_mov_b32 v57, v54\nv_mov_b32 v58, v53\nv_mov_b32 v59, v55")
    A("s_lshl_b32 s11, s3, 13")
    A("v_lshl_add_u32 v16, v6, 11, s11")
    A("v_lshl_add_u32 v16, v4, 6, v16")
    A("v_bfe_u32 v17, v1, 1, 2")
    for q in range(4):
        A(f"v_xor_b32 v18, {q}, v17")
        A(f"v_lshl_add_u32 v{20+q}, v18, 4, v16")
    cr, ci = 56, 58
    def packhalf(hf):
        for plane in range(2):
            for e in range(2):
                d = 128 + ((plane*2 + e)*2 + hf)*4
                for m in range(4):
                    t = hf*8 + 2*m
                    if plane == 0: A(f"v_cvt_pk_bf16_f32 v{d+m}, v{UR2+2*t+e}, v{UR2+2*(t+1)+e}")
                    else: A(f"v_cvt_pk_bf16_f32 v{d+m}, -v{UI(t)+e}, -v{UI(t+1)+e}")
                A(f"ds_write_b128 v{20+2*e+hf}, {vr(d,4)} offset:{plane*4096}")
    for t in range(16):
        nr, ni = UR2 + 2*t, UI(t)
        A(pk("fma", nr, cr, LAM, nr, bsel=0))
        A(pk("fma", ni, ci, LAM, ni, bsel=0))
        A(pk("fma", nr, ci, LAM, nr, bsel=1, neg_b=True))
        A(pk("fma", ni, cr, LAM, ni, bsel=1))
        cr, ci = nr, ni
        if t == 7: packhalf(0)
    packhalf(1)
    if "pz" in OPT:
        A("s_mov_b64 exec, 1")
        A("ds_write_b32 v61, v12 offset:16")
        A("s_mov_b64 exec, -1")
    gen.SAFE_PK[0] = False
    if "cl" in OPT:
        A(f"v_mov_b32 v24, {LFLAG:#x}")
        A("v_mov_b32 v25, 1")
        A("s_mov_b64 exec, 1")
        A("ds_add_u32 v24, v25 offset:8")
        A("s_mov_b64 exec, -1")
    A("v_bfe_u32 v16, v1, 2, 2")
    A("v_lshl_add_u32 v16, v6, 3, v16")
    A("v_and_b32 v17, 1, v1")
    A("v_bfe_u32 v18, v1, 4, 1")
    A("v_lshl_add_u32 v17, v17, 1, v18")
    A("v_bfe_u32 v18, v16, 1, 2")
    A("v_xor_b32 v17, v17, v18")
    A("v_lshlrev_b32 v17, 4, v17")
    A("v_lshl_add_u32 v17, v16, 6, v17")
    A("v_bfe_u32 v18, v1, 1, 1")
    A("v_lshl_add_u32 v17, v18, 3, v17")
    A("v_add_u32 v17, s11, v17")
    A("v_xor_b32 v18, 32, v17")
    A("v_add_u32 v18, 256, v18")
    A("s_lshl_b32 s11, s10, 18")
    A("s_lshl_b32 s12, s5, 13")
    A("s_add_u32 s11, s11, s12")
    A("s_lshl_b32 s12, s7, 11")
    A("s_add_u32 s11, s11, s12")
    A("v_lshl_add_u32 v19, v1, 4, s11")
    ST()
    A("s_waitcnt lgkmcnt(0)")
    idx = 0
    for tblk in range(2):
        for plane in range(2):
            for ksl in range(2):
                d = 160 + idx*4
                o = plane*4096 + tblk*2048 + ksl*1024
                A(f"ds_read_b64_tr_b16 {vr(d,2)}, v17 offset:{o}")
                A(f"ds_read_b64_tr_b16 {vr(d+2,2)}, v18 offset:{o}")
                idx += 1
    def hstores(pol, base=0):
        idx = 0
        for tblk in range(2):
            for plane in range(2):
                A(f"s_mov_b32 s12, {base + tblk*131072 + plane*4096:#x}")
                for ksl in range(2):
                    d = 160 + idx*4
                    A(f"s_waitcnt lgkmcnt({14 - 2*idx})")
                    A(f"buffer_store_dwordx4 {vr(d,4)}, v19, s[60:63], s12 offen offset:{ksl*1024}{pol}")
                    idx += 1
    if XL:
        A("s_cmp_eq_u32 s14, 1")
        A("s_cbranch_scc1 c_hl")
        hstores(" sc1")
        A("s_branch c_he")
        A("c_hl:")
        hstores("")
        A("c_he:")
        A("s_nop 1")
    elif LFI:
        hstores(str(OPT.get("hp", "")).replace("_", " "), WS_HL - WS_H)
        A("v_mov_b32 v23, 1")
        A("s_waitcnt vmcnt(0)")
        A("buffer_store_dword v23, v62, s[68:71], 0 offen")
        hstores(" sc1")
    else:
        hstores(" sc1")
    if gen.STAMPS:
        A("v_mov_b32 v251, v63"); ST.reg = 251
    ACC2 = 32
    AF = 64
    FB2 = 128
    BD2 = 144
    XR, GR, DK, YR = 200, 164, 180, 184
    A("s_lshl_b32 s6, s4, 2")
    A("s_add_u32 s6, s6, s3")
    A("s_lshl_b32 s7, s6, 17")
    A("v_lshl_add_u32 v3, v1, 4, s7")
    A(f"v_lshlrev_b32 v14, 7, v4")
    A(f"v_add_u32 v14, {CRING:#x}, v14")
    for ks in range(4):
        A(f"v_xor_b32 v16, {2*ks}, v11")
        A(f"v_lshl_add_u32 v{BD2+ks}, v16, 4, v14")
    A("s_lshr_b32 s7, s6, 1")
    A("s_lshl_b32 s7, s7, 12")
    A("v_lshl_add_u32 v22, v4, 7, s7")
    if LFI:
        A("s_lshl_b32 s8, s15, 7")
        A("s_add_u32 s8, s8, s7")
        A("s_xor_b32 s9, s8, 2048")
        A("v_and_b32 v16, 15, v1")
        A("v_lshl_add_u32 v28, v16, 7, s9")
        A("s_cmp_eq_u32 s14, 1")
        A(f"s_cselect_b32 s9, {HFL_OFF:#x}, 0")
        A(f"s_cselect_b32 s13, {WS_HL - WS_H:#x}, 0")
        A("s_add_u32 s8, s8, s9")
        A("v_lshl_add_u32 v22, v16, 7, s8")
    A("v_mov_b32 v23, 1")
    srd(A, 76, "out", 8 << 20)
    for i in range(8):
        A(f"s_mov_b32 s{80+i}, {i*4096}")
    A("s_lshl_b32 s7, s6, 5")
    A("v_lshl_add_u32 v7, v6, 4, s7")
    A("s_lshl_b32 s8, s5, 6")
    A("v_add_u32 v8, s8, v4")
    A("v_lshlrev_b32 v17, 12, v7")
    A("v_lshl_add_u32 v17, v8, 2, v17")
    A("v_add_u32 v24, 0x8000, v17")
    A("s_mul_i32 s8, s3, 8320")
    A(f"s_add_u32 s8, s8, {KREG}")
    A("v_lshl_add_u32 v25, v1, 4, s8")
    A("s_mul_i32 s8, s3, 4608")
    A(f"s_add_u32 s8, s8, {UREG}")
    A("v_lshl_add_u32 v26, v1, 4, s8")
    ST()
    A("s_waitcnt vmcnt(0)")
    if XL:
        A("s_cmp_eq_u32 s14, 1")
        A("s_cbranch_scc1 c_fl")
        A("buffer_store_dword v23, v60, s[68:71], 0 offen sc1")
        A("s_branch c_fe")
        A("c_fl:")
        A("buffer_store_dword v23, v60, s[68:71], 0 offen")
        A("c_fe:")
    else:
        A("buffer_store_dword v23, v60, s[68:71], 0 offen sc1")
    A(f"v_mov_b32 v20, {LFLAG:#x}")
    A("s_mov_b64 exec, 1")
    A("ds_add_u32 v20, v23")
    A("s_mov_b64 exec, -1")
    A("s_waitcnt lgkmcnt(0)")
    ST()
    visit(A, [[int(x)] for x in str(OPT.get("pgc", "")).split(",") if x])
    PH = "ph" in OPT
    HFL = "buffer_load_dword v19, v22, s[68:71], 0 offen sc1"
    slowp = []
    def need(tile_hi, name):
        m = (1 << (2*tile_hi + 2)) - 1
        A(f"s_and_b32 s88, s90, {m:#x}")
        A(f"s_cmp_eq_u32 s88, {m:#x}")
        A(f"s_cbranch_scc0 {name}_s")
        A(f"{name}:")
        slowp.append((name, m))
    A(HFL)
    A("s_waitcnt vmcnt(0)")
    if PH:
        A("v_cmp_eq_u32 s[90:91], 1, v19")
        need(PD // 2 - 1, "c_n0")
    else:
        spin_all_ones(A, "c_hf", 19, HFL)
    ST()
    V = VQ(A)
    def aload(st, ks):
        if ks == 0:
            A(f"s_add_u32 s11, s15, {st}")
            A("s_and_b32 s11, s11, 31")
            A("s_lshl_b32 s11, s11, 12")
            if LFI and st < 16: A("s_add_u32 s11, s11, s13")
        r = AF + ((st % PD)*4 + ks)*4
        V.issue(f"buffer_load_dwordx4 {vr(r,4)}, v3, s[60:63], s11 offen offset:{ks*1024} sc1", ("A", st, ks))
    for st in range(PD):
        for ks in range(4): aload(st, ks)
    def rd2(st, ks, buf, nt):
        return f"ds_read_b128 {vr(FB2+buf*8+nt*4,4)}, v{BD2+ks} offset:{(st % NS2)*8192 + nt*4096}"
    def mf2(st, ks, buf, nt):
        a = AF + ((st % PD)*4 + ks)*4
        c = vr(ACC2+nt*16, 16)
        return f"v_mfma_f32_32x32x16_bf16 {c}, {vr(a,4)}, {vr(FB2+buf*8+nt*4,4)}, {'0' if (st == 0 and ks == 0) else c}"
    PHR = [int(x) for x in str(OPT.get("phr", "0,2,4")).split(",")]
    if PH: V.issue(HFL, ("hf", 0))
    A("s_barrier")
    ST2 = Stamper(A, 1, 250)
    ST2()
    A(rd2(0, 0, 0, 0)); A(rd2(0, 0, 0, 1))
    class L2: n = 2; tags = {(0, 0, 0): 1, (0, 0, 1): 2}; done = 0
    def lrd(text, tag=None):
        A(text); L2.n += 1
        if tag is not None: L2.tags[tag] = L2.n
    def lwait(tag):
        k = L2.tags[tag]
        if k > L2.done:
            A(f"s_waitcnt lgkmcnt({min(15, L2.n - k)})"); L2.done = max(k, L2.n - 15)
    ER = [(XR + 4*i, 25, 1024*i) for i in range(8)] + [(GR + 4*i, 26, 1024*i) for i in range(4)]
    for st in range(N2):
        for ks in range(4):
            buf = ks & 1
            last = (st == N2-1 and ks == 3)
            if ks == 3 and not last: A("s_barrier")
            ns, nks = (st, ks+1) if ks < 3 else (st+1, 0)
            V.wait(("A", st, ks))
            lwait((st, ks, 0))
            A(mf2(st, ks, buf, 0))
            if not last: lrd(rd2(ns, nks, buf ^ 1, 0), (ns, nks, 0))
            lwait((st, ks, 1))
            A(mf2(st, ks, buf, 1))
            if not last: lrd(rd2(ns, nks, buf ^ 1, 1), (ns, nks, 1))
            if PH and ks == 0 and st % 2 == 0 and st + PD < N2:
                if ("hf", st) in V.tags:
                    V.wait(("hf", st))
                    A("v_cmp_eq_u32 s[90:91], 1, v19")
                need((st + PD) // 2, f"c_n{st+2}")
            if st + PD < N2: aload(st + PD, ks)
            if PH and ks == 1 and st in PHR: V.issue(HFL, ("hf", st + 2))
            if LFI and st == 16 - PD - 3 and ks == 0:
                V.issue("buffer_load_dword v19, v28, s[68:71], 0 offen sc1", "rf")
            if LFI and st == 16 - PD - 1 and ks == 3:
                V.wait("rf")
                spin_all_ones(A, "c_rf", 19, "buffer_load_dword v19, v28, s[68:71], 0 offen sc1")
            if (st % 4 == 3 if 'fine2' not in OPT else int(OPT['fine2']) <= st < int(OPT['fine2']) + 14) and ks == 3: ST2()
            if st >= N2 - 2 and ER:
                for z in range(2):
                    if ER:
                        r_, a_, o_ = ER.pop(0)
                        lrd(f"ds_read_b128 {vr(r_,4)}, v{a_} offset:{o_}", "er")
    lwait("er")
    ST2()
    for nt in range(2):
        for r in range(16):
            a = ACC2 + nt*16 + r
            A(f"v_fma_f32 v{a}, v{a}, v{GR+r}, v{XR+nt*16+r}")
            A(f"buffer_store_dword v{a}, v{17 if r < 8 else 24}, s[76:79], s{80+(r&7)} offen offset:{nt*128}{OPT.get('os', '').replace('_', ' ')}")
    ST2()
    gen.SAFE_PK[0] = False
    if "leak" in OPT:
        i = int(OPT["leak"])
        A("s_cmp_lg_u32 s2, 8")
        A("s_cbranch_scc1 c_noleak")
        A("s_cmp_lg_u32 s3, 0")
        A("s_cbranch_scc1 c_noleak")
        A("v_readlane_b32 s8, v251, 0")
        A(f"v_readlane_b32 s9, v{251 if i < 100 else 250}, {i % 100}")
        A("s_sub_u32 s9, s9, s8")
        A("s_memrealtime s[10:11]")
        A("s_waitcnt lgkmcnt(0)")
        A("s_add_u32 s9, s9, s10")
        A("c_leak:")
        A("s_memrealtime s[10:11]")
        A("s_waitcnt lgkmcnt(0)")
        A("s_sub_u32 s12, s9, s10")
        A("s_cmp_gt_i32 s12, 0")
        A("s_cbranch_scc1 c_leak")
        A("c_noleak:")
    if "dbgt" in OPT:
        A("s_cmp_lg_u32 s2, 0")
        A("s_cbranch_scc1 c_nodbg")
        A("s_cmp_lg_u32 s3, 0")
        A("s_cbranch_scc1 c_nodbg")
        A("s_waitcnt vmcnt(0)")
        ST()
        srd(A, 64, "dbg", 256)
        A("v_readlane_b32 s8, v251, 0")
        A("v_readlane_b32 s9, v251, 16")
        for i, idx in enumerate([2, 3, 6, 9, 13, ST.n-1]):
            A(f"v_readlane_b32 s10, v251, {idx}")
            A("s_sub_u32 s10, s10, s8")
            A("v_mov_b32 v2, s10")
            A(f"v_mov_b32 v3, {32+4*i}")
            A("buffer_store_dword v2, v3, s[64:67], 0 offen")
        for i, idx in enumerate([6, ST.n-1]):
            A(f"v_readlane_b32 s10, v251, {16+idx}")
            A("s_sub_u32 s10, s10, s9")
            A("v_mov_b32 v2, s10")
            A(f"v_mov_b32 v3, {56+4*i}")
            A("buffer_store_dword v2, v3, s[64:67], 0 offen")
        A("c_nodbg:")
    ST.flush()
    ST2.flush()
    A("s_endpgm")
    for name, m in slowp:
        A(f"{name}_s:")
        A(f"s_mov_b32 s89, {SPIN}")
        A(f"{name}_l:")
        A("s_waitcnt vmcnt(0)")
        A(HFL)
        A("s_waitcnt vmcnt(0)")
        A("v_cmp_eq_u32 s[90:91], 1, v19")
        A(f"s_and_b32 s88, s90, {m:#x}")
        A(f"s_cmp_eq_u32 s88, {m:#x}")
        A(f"s_cbranch_scc1 {name}")
        A("s_sub_u32 s89, s89, 1")
        A(f"s_cbranch_scc1 {name}")
        A("s_sleep 2")
        A(f"s_branch {name}_l")

def helper(A):
    V = VQ(A)
    VA, VB = 8, 12
    ST = Stamper(A, 0, 250)
    ST()
    if "hprio" in OPT: A("s_setprio 3")
    A("s_sub_u32 s3, s3, 4")
    A("s_lshr_b32 s6, s3, 1")
    A("s_and_b32 s7, s3, 1")
    A("v_lshrrev_b32 v3, 5, v1")
    A("v_lshlrev_b32 v3, 5, v3")
    A("v_bfe_u32 v4, v1, 3, 1")
    A("v_lshl_add_u32 v3, v4, 4, v3")
    A("v_bfe_u32 v4, v1, 4, 1")
    A("v_add_u32 v3, v3, v4")
    A("s_lshl_b32 s8, s4, 7")
    A("s_lshl_b32 s9, s6, 6")
    A("s_add_u32 s8, s8, s9")
    A("s_lshl_b32 s9, s7, 3")
    A("s_add_u32 s8, s8, s9")
    A("v_add_u32 v3, s8, v3")
    A("v_lshlrev_b32 v3, 11, v3")
    A("v_and_b32 v4, 7, v1")
    A("v_lshrrev_b32 v5, 4, v1")
    A("v_xor_b32 v4, v4, v5")
    A("v_lshlrev_b32 v4, 4, v4")
    A("v_xor_b32 v5, 64, v4")
    A("s_lshl_b32 s8, s5, 6")
    A("s_lshl_b32 s9, s7, 5")
    A("s_add_u32 s8, s8, s9")
    A("v_lshrrev_b32 v6, 3, v1")
    A("v_add_u32 v7, s8, v6")
    A("v_lshlrev_b32 v7, 11, v7")
    for n in range(4):
        c = 4 + (n & 1)
        A(f"v_add_u32 v{VA+n}, v3, v{c}")
        A(f"v_add_u32 v{VB+n}, v7, v{c}")
        if n:
            A(f"v_add_u32 v{VA+n}, {n*(4096-1024)}, v{VA+n}")
            A(f"v_add_u32 v{VB+n}, {n*(16384-1024)}, v{VB+n}")
    VC = 28
    A("s_lshl_b32 s8, s5, 6")
    A("s_lshl_b32 s9, s3, 4")
    A("s_add_u32 s8, s8, s9")
    A("v_add_u32 v7, s8, v6")
    A("v_lshlrev_b32 v7, 11, v7")
    A(f"v_add_u32 v{VC}, v7, v4")
    A(f"v_add_u32 v{VC+1}, v7, v5")
    A(f"v_add_u32 v{VC+1}, {16384-1024}, v{VC+1}")
    A("s_lshl_b32 s10, s3, 12")
    A("s_lshr_b32 s90, s55, 2")
    A("s_lshl_b32 s90, s90, 1")
    A("s_and_b32 s91, s55, 3")
    A("s_lshl_b32 s91, s91, 2")
    A("s_add_u32 s90, s90, s91")
    if OPT.get("rot1") == "0": A("s_mov_b32 s90, 0")
    if OPT.get("rot1") == "2":
        A("s_lshr_b32 s90, s55, 2\ns_xor_b32 s90, s90, s55\ns_and_b32 s90, s90, 1\ns_lshl_b32 s90, s90, 3")
    if OPT.get("rot1") == "3": A("s_mov_b32 s90, s91")
    if OPT.get("rot1") == "4": A("s_sub_u32 s90, s90, s91")
    if OPT.get("rot1") == "5":
        A("s_lshr_b32 s90, s55, 2\ns_add_u32 s90, s90, s55\ns_and_b32 s90, s90, 3")
    if XL:
        A("s_and_b32 s90, s55, 1")
        A("s_lshl_b32 s90, s90, 3")
        A("s_lshr_b32 s91, s55, 1")
        A("s_add_u32 s90, s90, s91")
        if OPT.get("rot1") == "0": A("s_mov_b32 s90, 0")
    A("s_and_b32 s12, s55, 1")
    A("s_lshl_b32 s13, s54, 1")
    A("s_add_u32 s12, s12, s13")
    A("s_lshr_b32 s13, s55, 1")
    A("s_lshl_b32 s8, s2, 7")
    A(f"s_add_u32 s8, s8, {KF_OFF:#x}")
    A("v_mov_b32 v30, s8")
    A("s_lshl_b32 s88, s54, 5")
    A("s_add_u32 s88, s88, s55")
    A("s_lshl_b32 s8, s88, 7")
    A(f"s_add_u32 s8, s8, {YF_OFF:#x}")
    A("v_mov_b32 v31, s8")
    A("s_lshl_b32 s88, s88, 2")
    A("s_add_u32 s88, s88, s3")
    A("v_mov_b32 v2, 0")
    A("s_waitcnt lgkmcnt(0)")
    srd(A, 56, "x", 4 << 20)
    A("s_cmp_ge_u32 s3, 2")
    A(f"s_cselect_b32 s60, s{P['Bim']}, s{P['Bre']}")
    A(f"s_cselect_b32 s61, s{P['Bim']+1}, s{P['Bre']+1}")
    A(f"s_mov_b32 s62, {2<<20:#x}")
    A("s_mov_b32 s63, 0x20000")
    if "ka" in OPT: rest_kernargs(A)
    else: srd(A, 92, "ws", FLG_SZ, WS_FLG)
    def issue(st, fill=0):
        slot = st % 3
        A(f"s_add_u32 s11, s90, {st}")
        A("s_and_b32 s11, s11, 15")
        A("s_lshl_b32 s11, s11, 7")
        A(f"s_add_u32 m0, s10, {slot*32768:#x}")
        for n in range(4):
            V.issue(f"buffer_load_dwordx4 v{VA+n}, s[56:59], s11 offen offset:{n*1024}{' nt' if 'ntx' in OPT else ''} lds")
            if fill: do_work(fill, True)
        A(f"s_add_u32 m0, s10, {slot*32768+16384:#x}")
        for n in range(4):
            V.issue(f"buffer_load_dwordx4 v{VB+n}, s[60:63], s11 offen offset:{n*1024}{' nt' if 'ntb' in OPT else ''} lds", ("S", st))
            if fill: do_work(fill, n < 3)
        if fill and owed[0]:
            do_work(min(owed[0], int(OPT.get("nw", 30)))); owed[0] = 0
    def sloads():
        A("s_lshl_b32 s8, s88, 12")
        A(f"s_load_dword s100, {sp('ssmk')}, s8")
        A("s_lshr_b32 s8, s88, 1")
        A("s_lshl_b32 s8, s8, 2")
        A(f"s_load_dword s101, {sp('ssmD')}, s8")
    if "ka" not in OPT: sloads()
    XT = "xt" in OPT
    def xtouch(k):
        A(f"s_cmp_lg_u32 s3, {k}")
        A(f"s_cbranch_scc1 h_xt{k}")
        A("global_load_dword v241, v240, s[96:97]")
        A(f"h_xt{k}:")
    if XT:
        A("s_cmp_ge_u32 s2, 192")
        A(f"s_cselect_b32 s96, s{P['Bim']}, s{P['Bre']}")
        A(f"s_cselect_b32 s97, s{P['Bim']+1}, s{P['Bre']+1}")
        A("s_and_b32 s98, s2, 63")
        A("s_cmp_lt_u32 s2, 128")
        A(f"s_cselect_b32 s96, s{P['x']}, s96")
        A(f"s_cselect_b32 s97, s{P['x']+1}, s97")
        A("s_cselect_b32 s98, s2, s98")
        A("s_lshl_b32 s98, s98, 15")
        A("s_lshl_b32 s99, s3, 9")
        A("s_add_u32 s98, s98, s99")
        A("v_and_b32 v240, 15, v1")
        A("v_lshlrev_b32 v240, 11, v240")
        A("v_lshrrev_b32 v242, 4, v1")
        A("v_lshl_add_u32 v240, v242, 7, v240")
        A("v_add_u32 v240, s98, v240")
        xtouch(0)
        if OPT["xt"] == "all": xtouch(1); xtouch(2); xtouch(3)
    issue(0)
    if XT and OPT["xt"] != "all": xtouch(1)
    if "ka" in OPT:
        issue(1)
        A("s_waitcnt lgkmcnt(0)")
        srd(A, 92, "ws", FLG_SZ, WS_FLG)
        sloads()
    V.issue("buffer_store_dword v2, v30, s[92:95], 0 offen sc1")
    V.issue("buffer_store_dword v2, v31, s[92:95], 0 offen sc1", "clr")
    if "ka" not in OPT: issue(1)
    if XT and OPT["xt"] != "all": xtouch(2); xtouch(3)
    if OPT.get("hfirst") == "2":
        A("s_branch h_cont")
        A("L_consumer:")
        consumer(A)
        A("h_cont:")
    KR, VR_, SK = 32, 52, 68
    XG, GW = 72, 88
    A("s_lshl_b32 s13, s13, 7")
    A("s_lshl_b32 s14, s3, 5")
    A("s_add_u32 s13, s13, s14")
    A("v_lshrrev_b32 v16, 5, v1")
    A("v_lshl_add_u32 v16, v16, 4, s13")
    A("v_and_b32 v17, 31, v1")
    A("s_lshl_b32 s14, s12, 5")
    A("v_add_u32 v17, s14, v17")
    A("v_lshlrev_b32 v18, 11, v16")
    A("v_lshl_add_u32 v18, v17, 2, v18")
    for i in range(3):
        A(f"v_subrev_u32 v{19+i}, {(3-i)*2048}, v18")
    A("v_lshlrev_b32 v22, 4, v17")
    A("v_and_b32 v23, 31, v1")
    A("v_mul_u32_u24 v23, 544, v23")
    A("v_lshrrev_b32 v24, 5, v1")
    A("v_lshlrev_b32 v24, 5, v24")
    A("v_sub_u32 v23, v23, v24")
    A("s_lshl_b32 s8, s3, 6")
    A(f"s_sub_u32 s8, {UREG+224}, s8")
    A("v_add_u32 v23, s8, v23")
    A("v_lshrrev_b32 v24, 4, v1")
    A("s_lshl_b32 s8, s3, 4")
    A("v_add_u32 v24, s8, v24")
    A("v_and_b32 v2, 15, v1")
    A("v_lshlrev_b32 v2, 4, v2")
    A("s_lshl_b32 s8, s12, 6")
    A("v_add_u32 v27, s8, v24")
    A("v_lshl_add_u32 v27, v27, 12, v2")
    A("s_lshr_b32 s8, s55, 1")
    A("s_lshl_b32 s8, s8, 8")
    A("s_sub_u32 s8, 3840, s8")
    A("v_add_u32 v27, s8, v27")
    A("v_mul_u32_u24 v24, 272, v24")
    A("v_add_u32 v24, v24, v2")
    A(f"v_add_u32 v24, {UREG:#x}, v24")
    A("s_lshl_b32 s14, s4, 7")
    A("s_lshl_b32 s8, s5, 3")
    A("s_add_u32 s14, s14, s8")
    A("s_lshl_b32 s8, s3, 1")
    A("s_add_u32 s14, s14, s8")
    A("s_lshl_b32 s8, s14, 11")
    A("v_lshlrev_b32 v25, 4, v1")
    A("v_add_u32 v26, s8, v25")
    A("v_add_u32 v3, 0x8000, v27")
    srd(A, 64, "k", 4 << 20)
    srd(A, 68, "v", 4 << 20)
    srd(A, 72, "ws", 4 << 20, WS_KVT)
    srd(A, 76, "ws", 8192, WS_G)
    for i in range(8):
        A(f"s_mov_b32 s{80+i}, {i*4096}")
    NTP = " nt" if "ntp" in OPT else ""
    KVD = "kvdma" in OPT
    if KVD:
        A("v_lshrrev_b32 v19, 3, v1")
        A("v_add_u32 v19, s13, v19")
        A("v_lshlrev_b32 v19, 11, v19")
        A("v_and_b32 v20, 7, v1")
        A("v_lshl_add_u32 v19, v20, 4, v19")
        A("s_lshl_b32 s8, s12, 7")
        A("v_add_u32 v19, s8, v19")
        A("v_subrev_u32 v20, 16384, v19")
        A("v_lshrrev_b32 v21, 5, v1")
        A("v_lshlrev_b32 v21, 11, v21")
        A("v_and_b32 v18, 31, v1")
        A("v_lshl_add_u32 v21, v18, 2, v21")
        A("s_lshl_b32 s8, s3, 12")
        A(f"s_add_u32 s91, s8, {KREG}")
        A("v_add_u32 v21, s91, v21")
    def kvdma():
        A("s_add_u32 m0, s91, 16384")
        V.issue(f"buffer_load_dwordx4 v20, s[64:67], 0 offen{NTP} lds")
        for i in range(4):
            A(f"s_add_u32 m0, s91, {16384 + 1024*(i+1)}")
            A(f"s_mov_b32 s99, {i*16384}")
            V.issue(f"buffer_load_dwordx4 v19, s[64:67], s99 offen{NTP} lds")
        V.issue(f"global_load_dwordx4 {vr(SK,4)}, v22, {sp('shk')}", "k")
        for i in range(4):
            A(f"s_add_u32 m0, s91, {1024*i}")
            A(f"s_mov_b32 s99, {i*16384}")
            V.issue(f"buffer_load_dwordx4 v19, s[68:71], s99 offen{NTP} lds", "v")
    pl = []
    for i in range(3): pl.append((f"buffer_load_dword v{KR+i}, v{19+i}, s[64:67], 0 offen{NTP}", None))
    for i in range(16): pl.append((f"buffer_load_dword v{KR+3+i}, v18, s[64:67], s{80+(i>>1)} offen offset:{(i&1)*2048}{NTP}", None))
    pl.append((f"global_load_dwordx4 {vr(SK,4)}, v22, {sp('shk')}", "k"))
    for i in range(16): pl.append((f"buffer_load_dword v{VR_+i}, v18, s[68:71], s{80+(i>>1)} offen offset:{(i&1)*2048}{NTP}", "v"))
    for r in range(2):
        for hh in range(2): pl.append((f"buffer_load_dwordx4 {vr(XG+r*8+hh*4,4)}, v26, s[56:59], 0 offen offset:{r*2048+hh*1024}", None))
    for hh in range(2): pl.append((f"global_load_dwordx4 {vr(GW+hh*4,4)}, v25, {sp('gw')} offset:{hh*1024}", "gate"))
    KF = 96; SP = 136; OUT = 144
    work = []
    def W(x):
        if callable(x): work.append(x)
        else: work.extend(x.split("\n"))
    def rndW(pair, tmp):
        W(f"v_cvt_pk_bf16_f32 v{tmp}, v{pair}, v{pair+1}")
        W(f"v_lshlrev_b32 v{pair}, 16, v{tmp}")
        W(f"v_and_b32 v{pair+1}, s12, v{tmp}")
    W("s_mov_b32 s12, 0xffff0000")
    W(lambda: V.wait("gate"))
    for i in range(8):
        W(f"v_lshlrev_b32 v{96+2*i}, 16, v{GW+i}")
        W(f"v_and_b32 v{97+2*i}, s12, v{GW+i}")
    for r in range(2):
        acc = 112 + r
        W(f"v_mov_b32 v{acc}, 0")
        for i in range(8):
            W(f"v_lshlrev_b32 v116, 16, v{XG+r*8+i}")
            W(f"v_and_b32 v117, s12, v{XG+r*8+i}")
            W(pk("mul", 116, 116, 96+2*i))
            rndW(116, 118)
            W(f"v_add_f32 v{acc}, v{acc}, v116")
            W(f"v_add_f32 v{acc}, v{acc}, v117")
    for r in range(2):
        acc = 112 + r
        for sh in (1, 2, 4, 8):
            W(f"v_add_f32_dpp v{acc}, v{acc}, v{acc} row_shr:{sh} row_mask:0xf bank_mask:0xf bound_ctrl:0")
        W(f"v_add_f32_dpp v{acc}, v{acc}, v{acc} row_bcast:15 row_mask:0xa bank_mask:0xf")
        W(f"v_add_f32_dpp v{acc}, v{acc}, v{acc} row_bcast:31 row_mask:0xc bank_mask:0xf")
    for t in ["v_readlane_b32 s8, v112, 63", "v_readlane_b32 s9, v113, 63", "v_mov_b32 v116, s8", "v_mov_b32 v117, s9",
              "v_cmp_eq_u32 vcc, 1, v1", "v_cndmask_b32 v116, v116, v117, vcc", "v_cvt_pk_bf16_f32 v116, v116, v116",
              "v_lshlrev_b32 v116, 16, v116", "v_mul_f32 v116, 0xbfb8aa3b, v116", "v_exp_f32 v116, v116", "v_add_f32 v116, 1.0, v116",
              "v_rcp_f32 v116, v116", "v_cvt_pk_bf16_f32 v117, v116, v116", "v_lshlrev_b32 v116, 16, v117", "v_sub_f32 v118, 1.0, v116",
              "v_cvt_pk_bf16_f32 v116, v116, v118", "s_lshl_b32 s14, s14, 2", "v_lshl_add_u32 v117, v1, 2, s14"]:
        W(t)
    def gstore():
        A("s_mov_b64 exec, 3")
        V.issue(f"buffer_store_dword v116, v117, s[76:79], 0 offen{LS}", "g")
        A("s_mov_b64 exec, -1")
    W(gstore)
    W("KVSTART")
    W(lambda: V.wait("k"))
    if KVD:
        for i in range(19):
            W(f"ds_read_b32 v{KR+i}, v21 offset:{16384 + (5+i)*128}")
            if i == 9: W("s_waitcnt lgkmcnt(0)")
        W("s_waitcnt lgkmcnt(0)")
    for i in range(19):
        W(f"v_lshlrev_b32 v{KF+2*i}, 16, v{KR+i}")
        W(f"v_and_b32 v{KF+2*i+1}, s12, v{KR+i}")
    for jx in range(4):
        for cc in range(2):
            src = SK + cc*2 + (jx >> 1)
            W(f"v_and_b32 v{SP+2*jx+cc}, s12, v{src}" if jx & 1 else f"v_lshlrev_b32 v{SP+2*jx+cc}, 16, v{src}")
    W(lambda: V.wait("v"))
    if KVD:
        for i in range(16):
            W(f"ds_read_b32 v{VR_+i}, v21 offset:{i*128}")
            if i == 7: W("s_waitcnt lgkmcnt(0)")
        W("s_waitcnt lgkmcnt(0)")
    for t in range(16):
        vv = 176 + (t & 1)*2
        W(f"v_lshlrev_b32 v{vv}, 16, v{VR_+t}")
        W(f"v_and_b32 v{vv+1}, s12, v{VR_+t}")
        for cc in range(2): W(f"v_mul_f32 v{OUT+2*t+cc}, v{KF+2*t+cc}, v{SP+6+cc}")
        for jx in (2, 1, 0):
            for cc in range(2): W(f"v_fmac_f32 v{OUT+2*t+cc}, v{KF+2*(t+3-jx)+cc}, v{SP+2*jx+cc}")
        for cc in range(2): W(f"v_mul_f32 v{OUT+2*t+cc}, v{OUT+2*t+cc}, v{vv+cc}")
    for cc in range(2):
        for hf in range(2):
            d = 192 + (cc*2+hf)*4
            for m in range(4):
                mm = hf*4 + m
                W(f"v_cvt_pk_bf16_f32 v{d+m}, v{OUT+2*(15-2*mm)+cc}, v{OUT+2*(14-2*mm)+cc}")
            W(f"ds_write_b128 v23, {vr(d,4)} offset:{cc*272+hf*16}")
    W("s_waitcnt lgkmcnt(0)")
    W("BARRIER")
    for i in range(4): W(f"ds_read_b128 {vr(192+4*i,4)}, v24 offset:{i*4*272}")
    def kvstores():
        def block(pol):
            for i in range(4):
                A(f"s_waitcnt lgkmcnt({3-i})")
                V.issue(f"buffer_store_dwordx4 {vr(192+4*i,4)}, v{27 if i < 2 else 3}, s[72:75], s{80+4*(i&1)} offen{pol}", "kvt")
        if not KVL:
            block(" sc1"); return
        V.wait("cls")
        A("s_getreg_b32 s98, hwreg(HW_REG_XCC_ID, 0, 4)")
        A("s_lshl_b32 s98, 0x100, s98")
        A("s_or_b32 s98, s98, 15")
        A("v_and_b32 v246, 7, v1")
        A("v_cmp_eq_u32 s[96:97], s54, v246")
        A("v_cmp_ne_u32 vcc, s98, v247")
        A("s_and_b64 vcc, vcc, s[96:97]")
        A("s_cbranch_scc0 h_kvl")
        n0 = V.n
        block(" sc1")
        A("s_branch h_kve")
        A("h_kvl:")
        V.n = n0
        block("")
        A("h_kve:")
    W(kvstores)
    def wgflag(name, vaddr):
        A("s_cmp_lg_u32 s3, 0")
        A(f"s_cbranch_scc1 {name}")
        A("v_mov_b32 v6, 1")
        A(f"buffer_store_dword v6, v{vaddr}, s[92:95], 0 offen{LS}")
        A(f"{name}:")
    wpos = [0]
    blocked = [False]
    owed = [0]
    cur = [0]
    PL = int(OPT.get("pl", 4))
    KVW = PL + int(OPT.get("kvd", 3))
    def do_work(n, nowait=False):
        while n > 0 and wpos[0] < len(work) and not blocked[0]:
            w = work[wpos[0]]
            if nowait and "nw" in OPT and (callable(w) or w.startswith("s_waitcnt")):
                owed[0] += n; return
            wpos[0] += 1
            if w == "BARRIER":
                blocked[0] = True; return
            if w == "KVSTART":
                if cur[0] < KVW:
                    wpos[0] -= 1; return
                continue
            if callable(w): w()
            else: A(w)
            n -= 1
    PREP0 = int(OPT.get("prep0", 2))
    print("prep work items", len(work))
    UL = 40
    ACC = 64; BF = 96; AFR = 160
    def setup_conv(A):
        A("s_lshl_b32 s12, s88, 12")
        srd(A, 64, "ssmk", 4096, off_sreg=12)
        srd(A, 68, "ws", 4096, WS_KVT, off_sreg=12)
        A("s_mov_b32 s80, s100")
        A("s_mov_b32 s81, s101")
        A("v_and_b32 v37, 15, v1")
        A("s_lshr_b32 s8, s88, 6")
        A("s_and_b32 s8, s8, 1")
        A("s_lshl_b32 s8, s8, 3")
        A("s_add_u32 s8, s8, s54")
        A("v_lshl_add_u32 v32, v37, 4, s8")
        A("s_lshr_b32 s8, s4, 2")
        A("s_lshl_b32 s8, s8, 1")
        A("s_and_b32 s9, s4, 3")
        A("s_lshl_b32 s9, s9, 3")
        A("s_add_u32 s8, s8, s9")
        A("v_lshrrev_b32 v38, 3, v37")
        A("v_and_b32 v39, 7, v37")
        A("v_lshl_add_u32 v38, v39, 5, v38")
        A("v_add_u32 v38, s8, v38")
        A("v_and_b32 v39, 16, v1")
        A("v_cmp_ne_u32 vcc, 0, v39")
        A("v_cndmask_b32 v32, v32, v38, vcc")
        A("v_lshlrev_b32 v32, 7, v32")
        A(f"v_add_u32 v32, {KF_OFF:#x}, v32")
        A("v_lshlrev_b32 v33, 2, v1")
        srd(A, 76, "dbg", 256)
        A(f"s_mul_i32 s13, s3, 8320")
        A(f"s_add_u32 s13, s13, {KREG}")
        A(f"s_mul_i32 s82, s3, 4608")
        A(f"s_add_u32 s82, s82, {UREG}")
        A("v_add_u32 v36, 2, v25")
        A("v_lshrrev_b32 v5, 4, v1")
        A("v_and_b32 v37, 15, v1")
        A("v_lshl_add_u32 v38, v5, 3, v37")
        A("v_lshlrev_b32 v38, 1, v38")
        A("v_and_b32 v39, 1, v1")
        A("v_mul_u32_u24 v39, 4158, v39")
        A("v_sub_u32 v38, v38, v39")
        A("s_add_u32 s14, s13, 4160")
        A("v_add_u32 v16, s14, v38")
        for i in range(1, 4): A(f"v_add_u32 v{16+i}, {1024*i}, v16")
        A("v_lshlrev_b32 v38, 5, v37")
        A("v_lshlrev_b32 v39, 4, v5")
        A("v_sub_u32 v20, v39, v38")
        A("s_add_u32 s14, s82, 480")
        A("v_add_u32 v20, s14, v20")
        A("v_lshl_add_u32 v39, v5, 3, v38")
        A("s_add_u32 s14, s82, 504")
        A("v_sub_u32 v21, s14, v39")
        A("v_and_b32 v39, 1, v5")
        A("v_lshl_add_u32 v22, v39, 9, v38")
        A("v_lshrrev_b32 v39, 1, v5")
        A("v_lshl_add_u32 v22, v39, 4, v22")
        A("v_add_u32 v23, s82, v25")
        A("s_and_b32 s8, s54, 1")
        A("s_lshl_b32 s8, s8, 9")
        A("s_lshl_b32 s9, s55, 4")
        A("s_add_u32 s8, s8, s9")
        A("s_lshl_b32 s9, s3, 2")
        A("s_add_u32 s8, s8, s9")
        A("v_add_u32 v24, s8, v5")
        A("v_lshlrev_b32 v24, 11, v24")
        A("v_lshl_add_u32 v24, v37, 7, v24")
        A("v_and_b32 v38, 7, v1")
        A("v_lshlrev_b32 v38, 2, v38")
        A("v_bfe_u32 v39, v1, 3, 1")
        A("v_mul_u32_u24 v39, 4160, v39")
        A("v_add3_u32 v38, v38, v39, s13")
        A("s_lshl_b32 s80, s80, 16")
        A("v_mov_b32 v56, s80")
        A("v_cmp_eq_u32 vcc, 15, v37")
        A("v_cndmask_b32 v56, 0, v56, vcc")
        A("ds_write_b32 v38, v56")
        A("s_and_b32 s14, s88, 1")
        A("s_lshl_b32 s14, s14, 4")
        A("s_lshr_b32 s81, s81, s14")
        A("s_lshl_b32 s81, s81, 16")
    setup_conv(W)
    def cissue(st):
        A(f"s_add_u32 s11, s15, {st}")
        A("s_and_b32 s11, s11, 31")
        A("s_lshr_b32 s11, s11, 1")
        A("s_lshl_b32 s11, s11, 7")
        A(f"s_add_u32 m0, s10, {(st % NS2)*8192:#x}")
        sr_ = "s[56:59]" if st % 2 == 0 else "s[60:63]"
        for n in range(2):
            V.issue(f"buffer_load_dwordx4 v{VC+n}, {sr_}, s11 offen offset:{n*1024}{' nt' if 'ntc' in OPT else ''} lds", ("C", st))
    def uloads():
        for i in range(4): A(f"buffer_load_dwordx4 {vr(UL+4*i,4)}, v25, s[68:71], 0 offen offset:{i*1024} sc1")
    CE = int(OPT.get("ce", 2))
    def ctouch():
        A("s_cmp_ge_u32 s3, 2")
        A(f"s_cselect_b32 s96, s{P['Cim']}, s{P['Cre']}")
        A(f"s_cselect_b32 s97, s{P['Cim']+1}, s{P['Cre']+1}")
        A("s_lshl_b32 s98, s2, 13")
        A("s_and_b32 s99, s3, 1")
        A("s_lshl_b32 s99, s99, 12")
        A("s_add_u32 s98, s98, s99")
        A("v_and_b32 v240, 31, v1")
        if "km" in OPT:
            A("s_add_u32 s96, s96, s98")
            A("s_addc_u32 s97, s97, 0")
            A("s_lshl_b32 s98, s88, 12")
            A(f"s_add_u32 s98, s{P['ssmk']}, s98")
            A(f"s_addc_u32 s99, s{P['ssmk']+1}, 0")
            A("v_mov_b32 v242, s96")
            A("v_mov_b32 v243, s97")
            A("v_mov_b32 v244, s98")
            A("v_mov_b32 v245, s99")
            A("v_cmp_lt_u32 s[96:97], 31, v1")
            A("v_cndmask_b32 v242, v242, v244, s[96:97]")
            A("v_cndmask_b32 v243, v243, v245, s[96:97]")
            A("v_lshlrev_b32 v240, 7, v240")
            A("v_add_co_u32 v242, s[96:97], v242, v240")
            A("v_addc_co_u32 v243, s[96:97], 0, v243, s[96:97]")
            V.issue("global_load_dword v241, v[242:243], off")
        else:
            A("v_lshl_add_u32 v240, v240, 7, s98")
            V.issue("global_load_dword v241, v240, s[96:97]" + str(OPT.get("cmf", "")).replace("_", " "))
    DP = [int(x) for x in str(OPT["dp"]).split(",")] if "dp" in OPT else []
    if DP:
        assert KVD and PL == DP[-1]
        A(f"s_and_b32 s89, s55, {len(DP)-1}" if len(DP) in (2, 4) else "s_mov_b32 s89, 0")
    FILL = int(OPT.get("fill", 7))
    kst = [None]
    KW = int(OPT.get("kw", 3))
    CHK = int(OPT.get("chk", 13))
    A(f"v_mov_b32 v6, {LFLAG:#x}")
    A("v_mov_b32 v7, 0")
    A("ds_write_b32 v6, v7 offset:8")
    A("ds_write_b32 v6, v7")
    A("ds_write_b32 v6, v7 offset:4")
    ST()
    A("s_waitcnt lgkmcnt(0)")
    V.wait("clr" if "ka" not in OPT else ("S", 0))
    ST()
    A("s_barrier")
    issue(2)
    for t, tag in pl[36:]: V.issue(t, tag)
    if PL < 0:
        for t, tag in pl[:36]: V.issue(t, tag)
    for s in range(N1):
        V.wait(("S", min(s+1, N1-1)))
        if kst[0] is not None and s == min(kst[0] + KW, 15): V.wait("kvt"); V.wait("g")
        A("s_barrier")
        if kst[0] is not None and s == min(kst[0] + KW, 15):
            wgflag("h_kflag", 30); print("k flag after barrier", s+1)
        blocked[0] = False
        cur[0] = s
        if s+3 < N1: issue(s+3, FILL if (s >= PREP0 and "nofill" not in OPT) else 0)
        if DP:
            if s in DP:
                gi = DP.index(s)
                A(f"s_cmp_lg_u32 s89, {gi}")
                A(f"s_cbranch_scc1 h_dp{gi}")
                n0, tg = V.n, dict(V.tags)
                kvdma(); ctouch()
                V.n, V.tags = n0, tg
                A(f"h_dp{gi}:")
            if s == DP[-1] + 1:
                V.tags["k"] = V.tags["v"] = V.n
        else:
            if s == PL:
                if KVD: kvdma()
                else:
                    for t, tag in pl[:36]: V.issue(t, tag)
            if s == int(OPT.get("cm", -1)):
                ctouch()
            if "pg" in OPT and s == int(OPT.get("cm", -1)):
                A("s_getpc_b64 s[96:97]")
                A("h_pc:")
                A(f"s_sub_u32 s96, s96, h_pc-{KN}")
                A("s_subb_u32 s97, s97, 0")
                A("s_lshl_b32 s98, s3, 13")
                A("s_add_u32 s98, s98, 0x2000")
                A("v_lshl_add_u32 v240, v1, 7, s98")
                A("v_min_u32 v240, CODE_LAST, v240")
                V.issue("global_load_dword v241, v240, s[96:97]")
            if KVL and s == int(OPT.get("cls", OPT.get("cm", 6))):
                A("v_lshlrev_b32 v246, 2, v1")
                V.issue(f"global_load_dword v247, v246, {sp('dbg')} sc1", "cls")
        if "xe" in OPT and s == int(OPT["xe"]):
            A("s_lshl_b32 s98, s4, 2")
            A("s_add_u32 s98, s98, s3")
            A("s_lshl_b32 s98, s98, 5")
            A("v_lshrrev_b32 v248, 3, v1")
            A("v_add_u32 v248, s98, v248")
            A("v_lshlrev_b32 v248, 11, v248")
            A("v_and_b32 v249, 7, v1")
            A("v_lshl_add_u32 v248, v249, 4, v248")
            A("s_lshl_b32 s98, s5, 7")
            A("v_add_u32 v248, s98, v248")
            for i in range(4):
                A(f"s_mov_b32 s98, {i*16384}")
                V.issue(f"buffer_load_dwordx4 {vr(224+4*i,4)}, v248, s[56:59], s98 offen")
        if kst[0] is None and "kvt" in V.tags and "g" in V.tags: kst[0] = s
        if s == 12:
            do_work(10000)
            assert wpos[0] == len(work), (wpos[0], len(work))
            V.issue("buffer_load_dword v34, v33, s[76:79], 0 offen sc1")
            V.issue("buffer_load_dword v35, v32, s[92:95], 0 offen sc1", "kf")
            ST()
        if s == 13:
            V.wait("g")
            NTK = " nt" if "ntp" in OPT else ""
            A("s_add_u32 m0, s13, 32")
            for i in range(0 if "nokd" in OPT else 4): V.issue(f"buffer_load_dwordx4 v25, s[64:67], 0 offen offset:{i*1024}{NTK} lds")
            A("s_add_u32 m0, s13, 4192")
            for i in range(0 if "nokd" in OPT else 4): V.issue(f"buffer_load_dwordx4 v36, s[64:67], 0 offen offset:{i*1024}{NTK} lds", "K")
            srd(A, 56, "Cre", 2 << 20)
            srd(A, 60, "Cim", 2 << 20)
            A("s_lshl_b32 s10, s3, 11")
            A(f"s_add_u32 s10, s10, {CRING:#x}")
            if "etouch" in OPT:
                V.issue("buffer_load_dword v58, v24, s[56:59], 0 offen")
                V.issue("buffer_load_dword v59, v24, s[60:63], 0 offen")
            A("v_mov_b32 v56, 0")
            A("v_mov_b32 v57, 0")
            A("v_lshlrev_b32 v38, 3, v1")
            A("v_add_u32 v38, s82, v38")
            A("ds_write_b64 v38, v[56:57] offset:4096")
            ST()
        if s == 13: visit(A, [[int(x)] for x in str(OPT.get("pgh", "")).split(",") if x])
        if s == CHK:
            V.wait("kf")
            A("s_mov_b32 s83, 0")
            A("v_and_b32 v34, 15, v34")
            A("v_cmp_ne_u32 vcc, 15, v34")
            A("v_cmp_ne_u32 s[84:85], 1, v35")
            A("s_or_b64 vcc, vcc, s[84:85]")
            A("s_cbranch_scc1 h_nou")
            A("s_mov_b32 s83, 1")
            uloads()
            A("h_nou:")
    ST()
    if "hprio" in OPT: A("s_setprio 0")
    A("s_cmp_lg_u32 s83, 0")
    A("s_cbranch_scc1 h_haveu")
    spin_all_ones(A, "h_init", 34, "buffer_load_dword v34, v33, s[76:79], 0 offen sc1", "15", pre="v_and_b32 v34, 15, v34")
    spin_all_ones(A, "h_kf", 35, "buffer_load_dword v35, v32, s[92:95], 0 offen sc1")
    uloads()
    A("h_haveu:")
    A("s_waitcnt vmcnt(0)")
    V.drained()
    for i in range(4): A(f"ds_write_b128 v23, {vr(UL+4*i,4)} offset:{1024*i}")
    A("s_waitcnt lgkmcnt(0)")
    ST()
    ops = []
    def reads(r):
        L = []
        s = r & 1
        for i in range(8):
            L.append((f"ds_read_b128 {vr(BF+s*32+i*4,4)}, v20 offset:{3584-512*i+64*r}", ("B", r, i)))
            o = 128*(i & 1) + 16*r
            d = AFR + s*32 + i*4
            L.append((f"ds_read2_b32 {vr(d,2)}, v{16+(i>>1)} offset0:{o} offset1:{o+1}", None))
            L.append((f"ds_read2_b32 {vr(d+2,2)}, v{16+(i>>1)} offset0:{o+2} offset1:{o+3}", ("A", r, i)))
        return L
    def first_order(L):
        return L[1:3] + [L[3*i] for i in range(8)] + [x for i in range(1, 8) for x in L[3*i+1:3*i+3]]
    for t, tag in first_order(reads(0)): ops.append(("rd", t, tag))
    for r in range(8):
        s = r & 1
        nxt = first_order(reads(r+1)) if r < 7 else [(f"ds_read_b64 {vr(BF+(s^1)*32+2*n,2)}, v21 offset:{3584-512*n}", ("KV", n)) for n in range(8)]
        cnt = 0
        for q in range(8):
            for n in range(q, 8):
                c = vr(ACC+4*n, 4)
                ops.append(("mf", f"v_mfma_f32_16x16x32_bf16 {c}, {vr(AFR+s*32+4*q,4)}, {vr(BF+s*32+4*(n-q),4)}, {'0' if (r == 0 and q == 0) else c}",
                            [("A", r, q), ("B", r, n-q)]))
                cnt += 1
                if nxt and cnt >= 2:
                    t, tag = nxt.pop(0); ops.append(("rd", t, tag))
        assert not nxt
    if "pz" in OPT:
        PZ = int(OPT["pz"]) if OPT["pz"] != 1 else 9
        new_ops = []; cnt = 0; k = 0
        new_ops.append(("rd", "ds_read_b32 v63, v62 offset:16", ("Z", 0)))
        for op in ops:
            if op[0] == "mf":
                if cnt % PZ == 0:
                    new_ops.append(("chk", k)); k += 1
                    new_ops.append(("rd", "ds_read_b32 v63, v62 offset:16", ("Z", k)))
                cnt += 1
            new_ops.append(op)
        ops[:] = new_ops
        A("s_lshl_b32 s8, s3, 2")
        A(f"s_add_u32 s8, s8, {LFLAG:#x}")
        A("v_mov_b32 v62, s8")
    pzslow = []
    class LQ: n = 0; tags = {}; done = 0
    def emit(op):
        if op[0] == "chk":
            k = LQ.tags[("Z", op[1])]
            if k > LQ.done:
                A(f"s_waitcnt lgkmcnt({min(15, LQ.n - k)})"); LQ.done = max(k, LQ.n - 15)
            A("v_readfirstlane_b32 s83, v63")
            A("s_cmp_lg_u32 s83, 0")
            A(f"s_cbranch_scc1 h_pz{op[1]}_s")
            A(f"h_pz{op[1]}:")
            pzslow.append(op[1])
            return
        if op[0] == "rd":
            A(op[1]); LQ.n += 1
            if op[2] is not None: LQ.tags[op[2]] = LQ.n
        elif op[0] == "mf":
            k = max(LQ.tags[t] for t in op[2])
            if k > LQ.done:
                A(f"s_waitcnt lgkmcnt({min(15, LQ.n - k)})"); LQ.done = max(k, LQ.n - 15)
            A(op[1])
        else:
            op[1]()
    KVR = BF
    ystores = []
    def T(text):
        for t1 in text.split("\n"): ops.append(("fn", lambda t1=t1: A(t1)))
    T("s_mov_b32 s12, 0xffff0000"); T("s_waitcnt lgkmcnt(0)"); T("v_mov_b32 v26, s81"); T("v_mov_b32 v27, s81")
    for n in range(8):
        y = ACC + 4*n
        t = 128 + (n & 1)*12
        T(f"v_and_b32 v{t}, s12, v{KVR+2*n+1}"); T(f"v_lshlrev_b32 v{t+1}, 16, v{KVR+2*n+1}")
        T(f"v_and_b32 v{t+2}, s12, v{KVR+2*n}"); T(f"v_lshlrev_b32 v{t+3}, 16, v{KVR+2*n}")
        T(pk("mul", t, t, 26)); T(pk("mul", t+2, t+2, 26))
        for pr in (t, t+2, y, y+2):
            T(f"v_cvt_pk_bf16_f32 v{t+4}, v{pr}, v{pr+1}"); T(f"v_lshlrev_b32 v{pr}, 16, v{t+4}"); T(f"v_and_b32 v{pr+1}, s12, v{t+4}")
        T(pk("add", t, t, y)); T(pk("add", t+2, t+2, y+2))
        d = 160 + (n >> 1)*4 + (n & 1)*2
        T(f"v_cvt_pk_bf16_f32 v{d}, v{t}, v{t+1}"); T(f"v_cvt_pk_bf16_f32 v{d+1}, v{t+2}, v{t+3}")
        if n & 1:
            d = 160 + (n >> 1)*4
            T(f"v_permlane16_swap_b32 v{d}, v{d+2}"); T(f"v_permlane16_swap_b32 v{d+1}, v{d+3}")
            ystores.append(f"buffer_store_dwordx4 {vr(d,4)}, v22, s[84:87], 0 offen offset:{(n>>1)*1024} sc1")
    pos = [0]
    def run_ops(budget):
        while pos[0] < len(ops) and budget > 0:
            op = ops[pos[0]]; pos[0] += 1
            emit(op)
            budget -= 4 if op[0] == "mf" else 1
    if "cl" in OPT:
        A(f"v_mov_b32 v60, {LFLAG:#x}")
        A(f"s_mov_b32 s89, {SPIN*4}")
        A("h_cl:")
        A("ds_read_b32 v62, v60 offset:8")
        A("s_waitcnt lgkmcnt(0)")
        A("v_readfirstlane_b32 s83, v62")
        A("s_cmp_ge_u32 s83, 4")
        A("s_cbranch_scc1 h_clok")
        A("s_sub_u32 s89, s89, 1")
        A("s_cbranch_scc1 h_clok")
        A("s_sleep 1")
        A("s_branch h_cl")
        A("h_clok:")
        run_ops(int(OPT.get("p0", 300)))
    PACE = int(OPT.get("pace", 190))
    NPACE = int(OPT.get("npace", 7))
    for st in range(NPACE):
        run_ops(PACE)
        cissue(st)
    FREE = int(OPT.get("free", 1 << 30))
    run_ops(FREE)
    ST()
    def yflag():
        V.wait("y2")
        A("s_mov_b64 exec, 1")
        A("ds_add_rtn_u32 v62, v60, v61 offset:4")
        A("s_mov_b64 exec, -1")
        A("s_waitcnt lgkmcnt(0)")
        A("v_readfirstlane_b32 s83, v62")
        A("s_cmp_lg_u32 s83, 3")
        A("s_cbranch_scc1 h_noy")
        A("buffer_store_dword v61, v31, s[92:95], 0 offen sc1")
        A("h_noy:")
    XR, GR, DK, YR, OM, TM = 64, 96, 112, 116, 132, 148
    EW = []
    def E(t):
        if callable(t): EW.append(t)
        else: EW.extend(t.split("\n"))
    YC = "yc" in OPT
    def esetup(E):
        E("s_lshl_b32 s6, s4, 2")
        E("s_add_u32 s6, s6, s3")
        E("s_lshl_b32 s7, s6, 5")
        E("v_lshrrev_b32 v6, 5, v1")
        E("v_and_b32 v4, 31, v1")
        E("v_lshl_add_u32 v7, v6, 4, s7")
        E("s_lshl_b32 s8, s5, 6")
        E("v_add_u32 v8, s8, v4")
        E("v_lshlrev_b32 v9, 1, v8")
        E("v_lshlrev_b32 v12, 2, v7")
        E("v_lshlrev_b32 v13, 12, v8")
        E("v_lshl_add_u32 v13, v7, 1, v13")
        E("v_add_u32 v15, 0x20000, v13")
        E("s_lshl_b32 s9, s5, 11")
        E(f"s_add_u32 s9, s9, {YF_OFF:#x}")
        E("v_and_b32 v18, 15, v1")
        E("v_lshl_add_u32 v18, v18, 7, s9")
        E("v_lshrrev_b32 v10, 3, v1")
        E("v_add_u32 v10, s7, v10")
        E("v_lshlrev_b32 v10, 11, v10")
        E("v_and_b32 v11, 7, v1")
        E("v_lshl_add_u32 v10, v11, 4, v10")
        E("s_lshl_b32 s8, s5, 7")
        E("v_add_u32 v10, s8, v10")
        E("v_lshlrev_b32 v11, 11, v6")
        E("v_lshl_add_u32 v11, v4, 1, v11")
        E("v_add_u32 v11, s82, v11")
        E("v_add_u32 v14, s13, v25")
        if YC:
            E("v_lshrrev_b32 v13, 4, v1")
            E("s_lshl_b32 s8, s3, 4")
            E("v_add_u32 v13, s8, v13")
            E("v_and_b32 v15, 15, v1")
            E("v_lshlrev_b32 v15, 4, v15")
            E("v_mul_u32_u24 v16, 272, v13")
            E("v_add_u32 v16, v16, v15")
            E("s_lshl_b32 s8, s5, 6")
            E("v_add_u32 v13, s8, v13")
            E("v_lshl_add_u32 v13, v13, 12, v15")
            E("s_lshl_b32 s8, s4, 8")
            E("v_add_u32 v13, s8, v13")
            E("v_mul_u32_u24 v17, 272, v4")
            E("v_lshl_add_u32 v17, v6, 5, v17")
            E("s_lshl_b32 s8, s3, 6")
            E("v_add_u32 v17, s8, v17")
        srd(E, 64, "x", 4 << 20)
        srd(E, 68, "ws", 4 << 20, WS_KVT)
        srd(E, 72, "ws", 8192, WS_G)
    def tail_setup(X):
        for i in range(4): X(f"s_mov_b32 s{84+i}, s{68+i}")
        X(f"v_mov_b32 v60, {LFLAG:#x}")
        X("v_mov_b32 v61, 1")
        esetup(X)
    def tail_loads():
        for t in ystores: V.issue(t, "y2")
        for i in range(4):
            if "xe" in OPT:
                A(f"ds_write_b128 v23, {vr(224+4*i,4)} offset:{i*1024}")
                continue
            A(f"s_add_u32 m0, s82, {i*1024}")
            A(f"s_mov_b32 s8, {i*16384}")
            V.issue("buffer_load_dwordx4 v10, s[64:67], s8 offen lds")
        if "r2" in OPT:
            for q in range(4):
                V.issue(f"buffer_load_dwordx4 {vr(GR+q*4,4)}, v12, s[72:75], 0 offen offset:{q*16} sc1")
        for q in range(2):
            V.issue(f"global_load_ushort v{DK+q}, v9, {sp('Dskip')} offset:{q*64}", "xg")
    late = pos[0] < len(ops) or "deft" in OPT
    if not late:
        tail_setup(A)
        A(f"s_mov_b32 s89, {SPIN*4}")
        A("h_lf:")
        A("ds_read_b32 v62, v60")
        A("s_waitcnt lgkmcnt(0)")
        A("v_readfirstlane_b32 s83, v62")
        A("s_cmp_ge_u32 s83, 4")
        A("s_cbranch_scc1 h_lfok")
        A("s_sub_u32 s89, s89, 1")
        A("s_cbranch_scc1 h_lfok")
        A("s_sleep 2")
        A("s_branch h_lf")
        A("h_lfok:")
        ST()
        tail_loads()
        for st in range(NPACE, NS2-1): cissue(st)
        if "yfl" not in OPT: yflag()
    else:
        ST()
        for st in range(NPACE, NS2-1): cissue(st)
        tail_setup(A if "deft" in OPT else E)
        if "r2" in OPT:
            E(f"AT:{int(OPT.get('deft', 0))}")
            E(tail_loads)
            E("YIELD"); E("YIELD")
        else:
            for i in range(int(OPT.get("deft", 0))): E("YIELD")
            E(tail_loads)
            E("YIELD"); E("YIELD"); E("YIELD")
            E(yflag)
            E("YIELD"); E("YIELD")
    def yloads():
        for q in range(4 if "r2" not in OPT else 0):
            V.issue(f"buffer_load_dwordx4 {vr(GR+q*4,4)}, v12, s[72:75], 0 offen offset:{q*16} sc1")
        V.wait("yf")
        spin_all_ones(A, "h_yf", 19, "buffer_load_dword v19, v18, s[92:95], 0 offen sc1")
        if YC:
            for i in range(4):
                A(f"s_mov_b32 s8, {i*16384}")
                V.issue(f"buffer_load_dwordx4 {vr(YR+i*4,4)}, v13, s[68:71], s8 offen sc1", "eps")
            return
        for nt in range(2):
            for hf in range(2):
                V.issue(f"buffer_load_dwordx4 {vr(YR+nt*8+hf*4,4)}, v{13 if nt == 0 else 15}, s[68:71], 0 offen offset:{hf*16} sc1", "eps")
    YL = int(OPT.get("yl", 2))
    assert YL >= 1
    V.wait(("C", 0))
    if OPT.get("hprio") == "2": A("s_setprio 3")
    A("s_barrier")
    def rndE(pair, tmp):
        E(f"v_cvt_pk_bf16_f32 v{tmp}, v{pair}, v{pair+1}")
        E(f"v_lshlrev_b32 v{pair}, 16, v{tmp}")
        E(f"v_and_b32 v{pair+1}, s12, v{tmp}")
    if "r2" in OPT:
        XD = 176
        GYF, GYL, GYE = [int(v) for v in str(OPT["r2"]).split(",")]
        E("AT:1")
        E(lambda: V.wait("xg"))
        for nt in range(2):
            for r in range(16):
                E(f"ds_read_u16 v{XR+nt*16+r}, v11 offset:{r*128+nt*64}")
            E("YIELD")
        E("s_waitcnt lgkmcnt(0)")
        E("s_mov_b32 s12, 0xffff0000")
        for r in range(16):
            E(f"v_and_b32 v{OM+r}, s12, v{GR+r}")
            E(f"v_lshlrev_b32 v{GR+r}, 16, v{GR+r}")
        for i in range(4): E(f"ds_write_b128 v23, {vr(GR+4*i,4)} offset:{1024*i}")
        E(f"v_lshlrev_b32 v{DK}, 16, v{DK}")
        E(f"v_lshlrev_b32 v{DK+1}, 16, v{DK+1}")
        for nt in range(2):
            for m in range(8):
                xf = XR + nt*16 + 2*m; xd = XD + nt*16 + 2*m
                E(f"v_lshlrev_b32 v{xf}, 16, v{xf}")
                E(f"v_lshlrev_b32 v{xf+1}, 16, v{xf+1}")
                E(pk("mul", xd, xf, DK, bsel=nt))
                rndE(xd, TM + (m & 1))
                E(pk("mul", xd, xd, GR+2*m))
        E(f"AT:{GYE}")
        E(lambda: V.wait("eps"))
        for i in range(4): E(f"ds_write_b128 v16, {vr(YR+i*4,4)} offset:{i*4*272}")
        E("s_waitcnt lgkmcnt(0)")
        E("YIELD")
        for nt in range(2):
            for hf in range(2): E(f"ds_read_b128 {vr(YR+nt*8+hf*4,4)}, v17 offset:{nt*32*272 + hf*16}")
        E("YIELD")
        E("s_waitcnt lgkmcnt(0)")
        for nt in range(2):
            for m in range(8):
                b = TM + (m & 1)*4
                yy, tm = b, b+2
                xf = XR + nt*16 + 2*m; xd = XD + nt*16 + 2*m
                E(f"v_lshlrev_b32 v{yy}, 16, v{YR+nt*8+m}")
                E(f"v_and_b32 v{yy+1}, s12, v{YR+nt*8+m}")
                E(pk("mul", yy, xf, yy))
                rndE(yy, tm)
                E(pk("mul", yy, yy, OM+2*m))
                rndE(yy, tm)
                E(pk("add", xd, xd, yy))
                if m & 1: E(f"ds_write_b128 v14, {vr(xd-2,4)} offset:{(nt*4+(m>>1))*1024}")
        E("YIELD")
        E("s_waitcnt lgkmcnt(0)")
    else:
        if YL > 0:
            for i in range(YL-1): E("YIELD")
            E(lambda: V.issue("buffer_load_dword v19, v18, s[92:95], 0 offen sc1", "yf"))
            E("YIELD"); E("YIELD")
            E(yloads)
        for i in range(int(OPT.get("ey", 4))): E("YIELD")
        E(lambda: V.wait("eps"))
        if YC:
            for i in range(4): E(f"ds_write_b128 v16, {vr(YR+i*4,4)} offset:{i*4*272}")
            E("s_waitcnt lgkmcnt(0)")
            E("YIELD")
            for nt in range(2):
                for hf in range(2): E(f"ds_read_b128 {vr(YR+nt*8+hf*4,4)}, v17 offset:{nt*32*272 + hf*16}")
        for nt in range(2):
            for r in range(16):
                E(f"ds_read_u16 v{XR+nt*16+r}, v11 offset:{r*128+nt*64}")
                if r % 8 == 7: E("s_waitcnt lgkmcnt(0)")
        E("s_mov_b32 s12, 0xffff0000")
        for r in range(16):
            E(f"v_and_b32 v{OM+r}, s12, v{GR+r}")
            E(f"v_lshlrev_b32 v{GR+r}, 16, v{GR+r}")
        for i in range(4): E(f"ds_write_b128 v23, {vr(GR+4*i,4)} offset:{1024*i}")
        E(f"v_lshlrev_b32 v{DK}, 16, v{DK}")
        E(f"v_lshlrev_b32 v{DK+1}, 16, v{DK+1}")
        for nt in range(2):
            for m in range(8):
                b = TM + (m & 1)*8
                xd, yy, tm = b, b+2, b+4
                xf = XR + nt*16 + 2*m
                E(f"v_lshlrev_b32 v{xf}, 16, v{xf}")
                E(f"v_lshlrev_b32 v{xf+1}, 16, v{xf+1}")
                E(f"v_lshlrev_b32 v{yy}, 16, v{YR+nt*8+m}")
                E(f"v_and_b32 v{yy+1}, s12, v{YR+nt*8+m}")
                E(pk("mul", xd, xf, DK, bsel=nt))
                E(pk("mul", yy, xf, yy))
                rndE(xd, tm); rndE(yy, tm+1)
                E(pk("mul", yy, yy, OM+2*m))
                rndE(yy, tm)
                E(pk("fma", xf, xd, GR+2*m, yy))
                if m & 1: E(f"ds_write_b128 v14, {vr(xf-2,4)} offset:{(nt*4+(m>>1))*1024}")
        E("s_waitcnt lgkmcnt(0)")
    epos = [0]
    est = [0]
    def ework(n):
        while n > 0 and epos[0] < len(EW):
            w = EW[epos[0]]; epos[0] += 1
            if w == "YIELD": return
            if isinstance(w, str) and w.startswith("AT:"):
                if est[0] < int(w[3:]):
                    epos[0] -= 1; return
                continue
            if callable(w): w()
            else: A(w)
            n -= 1
    EPER = int(OPT.get("eper", 24))
    for st in range(N2-1):
        est[0] = st
        if "r2" in OPT:
            if "yfl" in OPT and st == int(OPT["yfl"]): yflag()
            if st == GYF: V.issue("buffer_load_dword v19, v18, s[92:95], 0 offen sc1", "yf")
            if st == GYL: yloads()
        if pos[0] < len(ops):
            run_ops(int(OPT.get("convper", 70)))
        elif epos[0] < len(EW):
            ework(EPER)
            if epos[0] >= len(EW): print("R done before barrier Q", st+1); ST(); assert st + 1 <= N2 - 3
        V.wait(("C", st+1))
        A("s_barrier")
        if st + NS2 - 1 < N2: cissue(st + NS2 - 1)
    assert epos[0] >= len(EW)
    ST.flush()
    A("s_endpgm")
    for k in pzslow:
        A(f"h_pz{k}_s:")
        A(f"s_mov_b32 s89, {SPIN*4}")
        A(f"h_pz{k}_l:")
        A("s_sleep 1")
        A("ds_read_b32 v63, v62 offset:16")
        A("s_waitcnt lgkmcnt(0)")
        A("v_readfirstlane_b32 s83, v63")
        A("s_cmp_eq_u32 s83, 0")
        A(f"s_cbranch_scc1 h_pz{k}")
        A("s_sub_u32 s89, s89, 1")
        A(f"s_cbranch_scc1 h_pz{k}")
        A(f"s_branch h_pz{k}_l")

def build():
    s = header_comments()
    s += "; generated by tools/gen2.py (fused single kernel)\n"
    s += "; @launch grid=(256,1,1) block=(512,1,1) lds=163840\n"
    s += '.amdgcn_target "amdgcn-amd-amdhsa--gfx950"\n.text\n'
    A = Asm()
    A.raw(f".globl {KN}\n.p2align 8\n.type {KN},@function")
    gen_kernel(A)
    s += A.render()
    s += descriptor(KN, 256, 102)
    import subprocess, tempfile, re
    def assemble(text):
        with tempfile.TemporaryDirectory() as td:
            open(td + "/a.s", "w").write(text)
            subprocess.run(["clang", "-x", "assembler", "-target", "amdgcn-amd-amdhsa", "-mcpu=gfx950", "-c", td + "/a.s", "-o", td + "/a.o"], check=True)
            o = subprocess.run(["llvm-objdump", "-h", "-d", td + "/a.o"], capture_output=True, text=True).stdout
        return o
    probe = re.sub(r"PGHI\(\d+,\w+\)", "0", re.sub(r"PGOFF\(\d+,\w+\)", "0x12345", s.replace("CODE_LAST", "0x12345")))
    o = assemble(probe)
    size = int(re.search(r"\.text\s+([0-9a-f]+)", o).group(1), 16)
    if "pg" in OPT:
        sizes = [4 * len(m.group(1).split()) for m in re.finditer(r"// [0-9A-F]+: ([0-9A-F ]+)$", o, re.M)]
        lines = s.split("\n"); out = []; addr = 0; k = 0; npg = 0; incode = False; prev = ""; laddr = {}
        for ln in lines:
            st = ln.strip()
            if st == f"{KN}:": incode = True
            if st.startswith(".section"): incode = False
            if incode and ln.startswith("    ") and st and not st.startswith(";"):
                sz = sizes[k]; k += 1
                if (addr % 4096) + sz + 4 > 4096:
                    npg += 1
                    labs = []
                    while out and out[-1].strip().endswith(":"): labs.insert(0, out.pop())
                    if not prev.startswith(("s_endpgm", "s_branch")): out.append(f"    s_branch PGS{npg}"); addr += 4
                    while addr % 4096: out.append("    s_nop 0"); addr += 4
                    out.append("    s_setpc_b64 s[98:99]"); addr += 4
                    out.append(f"PGS{npg}:")
                    out += labs
                    for l_ in labs: laddr[l_.strip()[:-1]] = addr
                addr += sz; prev = st
            if st.endswith(":"): laddr[st[:-1]] = addr
            out.append(ln)
        assert k == len(sizes), (k, len(sizes))
        s = "\n".join(out).replace(".p2align 8\n.type", ".p2align 12\n.type")
        s = re.sub(r"PGOFF\((\d+),(\w+)\)", lambda m: hex((int(m.group(1))*4096 - laddr[m.group(2)]) & 0xffffffff), s)
        s = re.sub(r"PGHI\((\d+),(\w+)\)", lambda m: "0" if int(m.group(1))*4096 >= laddr[m.group(2)] else "-1", s)
        print({k: hex(v) for k, v in laddr.items() if k in ("L_consumer", "c_poll", "c_polled", "c_hf_chk", "h_haveu", "h_lf", "c_noflag", "c_init_chk")})
        size = addr
        print("page stubs", npg)
    print("code bytes", size)
    assert size <= 65536
    return s.replace("CODE_LAST", hex(size - 4))

if __name__ == "__main__":
    out = sys.argv[1] if len(sys.argv) > 1 and not sys.argv[1].startswith("--") else os.path.join(os.path.dirname(os.path.abspath(__file__)), "..", NAME + ".s")
    open(out, "w").write(build())
    print("wrote", out)
```

```python
import sys, os
sys.path.insert(0, os.path.dirname(os.path.abspath(__file__)))
from asmlib import Asm
from gen import (NAME, P, sp, vr, sr, load_kernargs, srd, pk, cmul, tile_ids, Stamper, OPT, header_comments, descriptor)
import gen

KN = NAME + "_kernel"
WB = int(OPT.get('wsbase', 0)) << 20
WS_H    = WB + 0
WS_KVT  = WB + (8 << 20)
WS_G    = WB + (16 << 20)
WS_EBOX = WB + (17 << 20)
WS_FLG  = WB + (18 << 20)
FLG_SZ = 448 << 10
KF_OFF = 128 << 10
YF_OFF = 160 << 10
N1 = 16
N2 = 16
NS2 = 4
DF_OFF = 192 << 10
PF_OFF = 320 << 10
WS_PART = WB + (24 << 20)
HWS = "hws" in OPT
PD = int(OPT.get("pd", 4))
CRING = 32768
KREG = 98304
UREG = KREG + 4*8320
LFLAG = UREG + 4*4608
PACK = 0
SPIN = int(OPT.get("spin", 1 << 16))

XL = "xl" in OPT
KVL = "kvl" in OPT
LFI = "lf" in OPT
HFL_OFF = 192 << 10
WS_HL = WB + (24 << 20)
LS = " sc1"
PZM = int(OPT.get("pzm", 3))
class VQ:
    def __init__(self, A): self.A = A; self.n = 0; self.tags = {}; self.done = 0
    def issue(self, text, tag=None):
        self.A(text); self.n += 1
        if tag is not None: self.tags[tag] = self.n
    def wait(self, tag):
        k = self.tags[tag]
        if k <= self.done: return
        cnt = self.n - k
        if cnt > 63: cnt = 63
        self.A(f"s_waitcnt vmcnt({cnt})"); self.done = self.n - cnt
    def drained(self): self.done = self.n

SLEEP = int(OPT.get("sleep", 4))
def spin_all_ones(A, name, vreg, reload, cmpval="1", sctr=89, pre=None):
    A(f"s_mov_b32 s{sctr}, {SPIN}")
    A(f"{name}_chk:")
    if pre: A(pre)
    A(f"v_cmp_ne_u32 vcc, {cmpval}, v{vreg}")
    A("s_cmp_eq_u64 vcc, 0")
    A(f"s_cbranch_scc1 {name}_ok")
    A(f"s_sub_u32 s{sctr}, s{sctr}, 1")
    A(f"s_cbranch_scc1 {name}_ok")
    A(f"s_sleep {SLEEP}")
    A(reload)
    A("s_waitcnt vmcnt(0)")
    A(f"s_branch {name}_chk")
    A(f"{name}_ok:")

def rest_kernargs(A):
    A("s_load_dwordx16 s[32:47], s[0:1], 64")
    A("s_load_dwordx4 s[48:51], s[0:1], 128")
    A("s_load_dwordx2 s[52:53], s[0:1], 144")

PGN = [0]
def visit(A, pages_by_wave):
    if "pg" not in OPT: return
    for w, pages in enumerate(pages_by_wave):
        if not pages: continue
        PGN[0] += 1; n = PGN[0]
        A(f"s_cmp_lg_u32 s3, {w}")
        A(f"s_cbranch_scc1 pgv{n}")
        for i, p_ in enumerate(pages):
            A("s_getpc_b64 s[96:97]")
            A(f"pgv{n}_{i}:")
            A(f"s_add_u32 s96, s96, PGOFF({p_},pgv{n}_{i})")
            A(f"s_addc_u32 s97, s97, PGHI({p_},pgv{n}_{i})")
            A("s_swappc_b64 s[98:99], s[96:97]")
        A(f"pgv{n}:")

def gen_kernel(A):
    A(f"{KN}:")
    A("s_cmp_ge_u32 s2, 256")
    A("s_cbranch_scc1 L_end")
    if "ka" in OPT: A("s_load_dwordx16 s[16:31], s[0:1], 0")
    else: load_kernargs(A)
    for i in range(int(OPT.get("diagsleep", 0))): A("s_sleep 127")
    tile_ids(A)
    if XL:
        A("s_lshl_b32 s4, s54, 1")
        A("s_and_b32 s6, s55, 1")
        A("s_add_u32 s4, s4, s6")
        A("s_lshr_b32 s5, s55, 1")
    A("v_and_b32 v1, 63, v0")
    A("v_lshrrev_b32 v2, 6, v0")
    A("v_readfirstlane_b32 s3, v2")
    if "hlow" in OPT: A("s_xor_b32 s3, s3, 4")
    A("s_and_b32 s15, s55, 3")
    A("s_lshl_b32 s15, s15, 2")
    if OPT.get("rot2") == "0": A("s_mov_b32 s15, 0")
    A("s_cmp_ge_u32 s3, 4")
    if OPT.get("hfirst") == "2":
        A("s_cbranch_scc0 L_consumer")
        helper(A)
    elif "hfirst" in OPT:
        A("s_cbranch_scc0 L_consumer")
        helper(A)
        A("L_consumer:")
        consumer(A)
    else:
        A("s_cbranch_scc1 L_helper")
        consumer(A)
        A("L_helper:")
        helper(A)
    A("L_end:")
    A("s_endpgm")


def consumer(A):
    ACC = 64
    FA, FB = 128, 144
    AD, BD = 160, 168
    LAM, C2, MU, MU2, MU4, MU8 = 176, 178, 180, 182, 184, 186
    EL = 192
    UR2 = 224
    ST = Stamper(A, 0, 63)
    ST()
    if "ka" in OPT: rest_kernargs(A)
    if "prio" in OPT: A(f"s_setprio {OPT['prio']}")
    A("s_and_b32 s6, s3, 1")
    A("s_lshr_b32 s7, s3, 1")
    A("v_and_b32 v4, 31, v1")
    A("s_lshl_b32 s8, s5, 6")
    A("s_lshl_b32 s9, s7, 5")
    A("s_add_u32 s8, s8, s9")
    A("v_add_u32 v3, s8, v4")
    A("v_lshlrev_b32 v5, 1, v3")
    A("v_lshrrev_b32 v6, 5, v1")
    A("s_lshl_b32 s10, s4, 1")
    A("s_add_u32 s10, s10, s6")
    if "nocode" not in OPT:
        A("s_getpc_b64 s[12:13]")
        A("c_pc:")
        A(f"s_sub_u32 s12, s12, c_pc-{KN}")
        A("s_subb_u32 s13, s13, 0")
        A("s_lshl_b32 s11, s3, 14")
        A("v_lshl_add_u32 v24, v1, 7, s11")
        A("v_min_u32 v24, CODE_LAST, v24")
        A("global_load_dword v25, v24, s[12:13]")
        A("v_add_u32 v24, 0x2000, v24")
        A("v_min_u32 v24, CODE_LAST, v24")
        A("global_load_dword v26, v24, s[12:13]")
    A("s_waitcnt lgkmcnt(0)")
    A(f"global_load_ushort v8, v5, {sp('Lre')}")
    A(f"global_load_ushort v9, v5, {sp('Lim')}")
    A(f"global_load_ushort v10, v5, {sp('logdt')}")
    srd(A, 56, "ws", 256 << 10, WS_EBOX)
    if HWS: srd(A, 60, "ws", 8 << 20, WS_H)
    else: srd(A, 60, "out", 8 << 20)
    srd(A, 64, "dbg", 256)
    srd(A, 68, "ws", FLG_SZ, WS_FLG)
    A("s_lshl_b32 s11, s10, 13")
    A("v_lshl_add_u32 v7, v3, 3, s11")
    A("v_mov_b32 v12, 0")
    A("v_mov_b32 v13, 0")
    A("buffer_store_dwordx2 v[12:13], v7, s[56:59], 0 offen sc1")
    A("s_lshl_b32 s11, s10, 4")
    A("s_add_u32 s11, s11, s5")
    A("s_lshl_b32 s11, s11, 1")
    A("s_add_u32 s11, s11, s7")
    A("s_lshl_b32 s11, s11, 7")
    A("v_mov_b32 v60, s11")
    A("buffer_store_dword v12, v60, s[68:71], 0 offen sc1")
    A("s_lshl_b32 s72, s4, 4")
    A("s_add_u32 s72, s72, s5")
    A("s_lshl_b32 s72, s72, 2")
    A("s_add_u32 s72, s72, s3")
    A("s_lshl_b32 s72, s72, 7")
    A(f"s_add_u32 s11, s72, {DF_OFF:#x}")
    A("v_mov_b32 v62, s11")
    A("buffer_store_dword v12, v62, s[68:71], 0 offen sc1")
    A(f"v_add_u32 v62, {PF_OFF - DF_OFF:#x}, v62")
    A("buffer_store_dword v12, v62, s[68:71], 0 offen sc1")
    A("v_cmp_le_u32 vcc, s10, v4")
    A("v_cndmask_b32 v22, 0, 1, vcc")
    A("v_mov_b32 v23, 1")
    A("v_bfe_u32 v11, v1, 1, 3")
    A("v_xor_b32 v11, v11, v6")
    A("s_lshl_b32 s11, s6, 13")
    A("v_lshl_add_u32 v14, v4, 7, s11")
    A("s_lshl_b32 s11, s7, 12")
    A("s_add_u32 s11, s11, 16384")
    A("v_lshl_add_u32 v15, v4, 7, s11")
    for ks in range(4):
        A(f"v_xor_b32 v16, {2*ks}, v11")
        A(f"v_lshl_add_u32 v{AD+ks}, v16, 4, v14")
        A(f"v_lshl_add_u32 v{BD+ks}, v16, 4, v15")
        A(f"v_add_u32 v{AD+4+ks}, 0x10000, v{AD+ks}")
        A(f"v_add_u32 v{BD+4+ks}, 0x10000, v{BD+ks}")
    if XL:
        A("s_cmp_lg_u32 s3, 0")
        A("s_cbranch_scc1 c_noxcc")
        A("s_getreg_b32 s11, hwreg(HW_REG_XCC_ID, 0, 4)")
        A("s_lshl_b32 s11, 1, s11")
        A("v_mov_b32 v16, s11")
        A("s_lshl_b32 s11, s54, 2")
        A("s_add_u32 s11, s11, 32")
        A("v_mov_b32 v17, s11")
        A("s_mov_b64 exec, 1")
        A("buffer_atomic_or v16, v17, s[64:67], 0 offen sc1")
        A("s_mov_b64 exec, -1")
        A("c_noxcc:")
    A("s_lshl_b32 s11, s3, 2")
    A(f"s_add_u32 s11, s11, {LFLAG:#x}")
    A("v_mov_b32 v61, s11")
    A(f"ds_write_b32 v61, {'v23' if PZM & 1 else 'v12'} offset:16")
    A("v_mov_b32 v21, v1")
    A("v_bfe_i32 v2, v1, 3, 1")
    A("v_lshlrev_b32 v21, 2, v21")
    A("s_waitcnt vmcnt(0)")
    A("v_lshlrev_b32 v8, 16, v8")
    A("v_lshlrev_b32 v9, 16, v9")
    A("v_lshlrev_b32 v10, 16, v10")
    A("s_mov_b32 s12, 0x3fb8aa3b")
    A("v_mul_f32 v10, s12, v10")
    A("v_exp_f32 v10, v10")
    A("v_cvt_pk_bf16_f32 v10, v10, v10")
    A("v_lshlrev_b32 v10, 16, v10")
    A("v_mul_f32 v16, v10, v8")
    A("v_mul_f32 v17, v10, v9")
    A("v_mul_f32 v16, s12, v16")
    A("v_exp_f32 v16, v16")
    A("v_mul_f32 v17, 0.15915494, v17")
    A("v_rndne_f32 v18, v17")
    A("v_sub_f32 v17, v17, v18")
    A("v_cos_f32 v18, v17")
    A("v_sin_f32 v19, v17")
    A(f"v_mul_f32 v{LAM}, v16, v18")
    A(f"v_mul_f32 v{LAM+1}, v16, v19")
    A(f"v_add_f32 v16, -1.0, v{LAM}")
    A("v_mul_f32 v17, v8, v8")
    A("v_fma_f32 v17, v9, v9, v17")
    A("v_rcp_f32 v17, v17")
    A("v_mul_f32 v18, v16, v8")
    A(f"v_fma_f32 v18, v{LAM+1}, v9, v18")
    A(f"v_mul_f32 v19, v{LAM+1}, v8")
    A("v_fma_f32 v19, -v16, v9, v19")
    A("v_add_f32 v17, v17, v17")
    A(f"v_mul_f32 v{C2}, v18, v17")
    A(f"v_mul_f32 v{C2+1}, v19, v17")
    cmul(A, 16, LAM, LAM); cmul(A, 18, 16, 16); cmul(A, 16, 18, 18)
    cmul(A, MU, 16, 16); cmul(A, MU2, MU, MU); cmul(A, MU4, MU2, MU2); cmul(A, MU8, MU4, MU4)
    cmul(A, 48, C2, MU2)
    A("v_cmp_lt_u32 vcc, 31, v1")
    A(f"v_cndmask_b32 v48, v{C2}, v48, vcc")
    A(f"v_cndmask_b32 v49, v{C2+1}, v49, vcc")
    A("v_lshlrev_b32 v50, 13, v6")
    A("v_sub_u32 v50, v7, v50")
    A("s_add_u32 s11, s10, 1")
    A("v_sub_u32 v51, s11, v6")
    A("v_lshrrev_b32 v51, 1, v51")

    def rd(stage, ks, buf, which):
        slot = stage % 3
        hi = 4 if slot >= 2 else 0
        so = (slot & 1) * 32768
        if which < 2:
            return f"ds_read_b128 {vr(FA+buf*8+which*4,4)}, v{AD+hi+ks} offset:{so + which*4096}"
        ri = which - 2
        return f"ds_read_b128 {vr(FB+buf*8+ri*4,4)}, v{BD+hi+ks} offset:{so + ri*8192}"
    def mf(buf, mt, ri, first):
        acc = ACC + ri*32 + mt*16
        return f"v_mfma_f32_32x32x16_bf16 {vr(acc,16)}, {vr(FA+buf*8+mt*4,4)}, {vr(FB+buf*8+ri*4,4)}, {'0' if first else vr(acc,16)}"
    RD_ORDER = [0, 2, 1, 3]
    MF_ORDER = [(0,0), (1,0), (1,1), (0,1)]
    ST()
    A("s_barrier")
    ST()
    def initbit():
        A("s_cmp_lg_u32 s3, 0")
        A("s_cbranch_scc1 c_noflag")
        A("s_lshr_b32 s11, s2, 6")
        A("s_lshl_b32 s11, 1, s11")
        if True:
            A("s_getreg_b32 s12, hwreg(HW_REG_XCC_ID, 0, 4)")
            A("s_lshl_b32 s12, 0x100, s12")
            A("s_or_b32 s11, s11, s12")
        A("v_mov_b32 v16, s11")
        A("s_and_b32 s11, s2, 63")
        A("s_lshl_b32 s11, s11, 2")
        A("v_mov_b32 v17, s11")
        A("s_mov_b64 exec, 1")
        A("buffer_atomic_or v16, v17, s[64:67], 0 offen sc1")
        A("s_mov_b64 exec, -1")
        A("c_noflag:")
    if "ka" not in OPT: initbit()
    for w in RD_ORDER: A(rd(0, 0, 0, w))
    for s in range(N1):
        for ks in range(4):
            buf = ks & 1
            last = (s == N1-1 and ks == 3)
            if ks == 3:
                A("s_waitcnt lgkmcnt(0)")
                A("s_barrier")
                if "ka" in OPT and s == 1: initbit()
            ns, nks = (s, ks+1) if ks < 3 else (s+1, 0)
            for i in range(4):
                if ks < 3 and i < 3: A("s_waitcnt lgkmcnt(2)")
                A(mf(buf, *MF_ORDER[i], s == 0 and ks == 0))
                if not last: A(rd(ns, nks, buf ^ 1, RD_ORDER[i]))
            if "pret" in OPT and 4 <= s < 12 and ks == 1:
                i = s - 4
                if i == 0:
                    A("s_lshl_b32 s11, s10, 18\ns_lshl_b32 s12, s5, 13\ns_add_u32 s11, s11, s12\ns_lshl_b32 s12, s7, 11\ns_add_u32 s11, s11, s12")
                    A("v_lshl_add_u32 v61, v1, 4, s11")
                A(f"s_mov_b32 s12, {(i>>2)*131072 + ((i>>1)&1)*4096:#x}")
                A(f"buffer_store_dwordx4 v[12:15], v61, s[60:63], s12 offen offset:{(i&1)*1024}{OPT['pret'].replace('_', ' ') if OPT['pret'] != 1 else ''}")
            if s in ((3, 7, 11) if 'fine' not in OPT else range(3, 15)) and ks == 3: ST()
            if s == 12 and ks == 0 and "noinit" not in OPT:
                A("buffer_load_dword v20, v21, s[64:67], 0 offen sc1")
    ST()
    if "fine" in OPT: ST.n = 40
    if "cl" in OPT: gen.SAFE_PK[0] = True
    def UR(t): return ACC + (t >> 3)*16 + 2*(t & 7)
    def UI(t): return ACC + 32 + (t >> 3)*16 + 2*(t & 7)
    E = [(24, 26), (28, 30)]
    cr, ci = UR(0), UI(0)
    for t in range(1, 16):
        nr, ni = E[t & 1]
        A(pk("fma", nr, cr, LAM, UR(t), bsel=0))
        A(pk("fma", ni, ci, LAM, UI(t), bsel=0))
        A(pk("fma", nr, ci, LAM, nr, bsel=1, neg_b=True))
        A(pk("fma", ni, cr, LAM, ni, bsel=1))
        cr, ci = nr, ni
    A("v_mov_b32 v32, v28\nv_mov_b32 v33, v30\nv_mov_b32 v34, v29\nv_mov_b32 v35, v31")
    cmul(A, 36, MU, 32, add=34)
    A("v_mov_b32 v38, v36\nv_mov_b32 v39, v37\nv_mov_b32 v40, 0\nv_mov_b32 v41, 0")
    A("v_permlane32_swap_b32 v40, v38")
    A("v_permlane32_swap_b32 v41, v39")
    cmul(A, 42, MU2, 40, add=36)
    A("v_or_b32 v42, 1, v42")
    A("s_mov_b32 s12, 0")
    A("s_mov_b32 s13, -1")
    A("s_mov_b64 exec, s[12:13]")
    A("buffer_store_dwordx2 v[42:43], v7, s[56:59], 0 offen sc1")
    A("s_mov_b64 exec, -1")
    ST()
    for t in range(16):
        n = UR2 + 2*t
        A(pk("mul", n, UR(t), C2, bsel=0))
        A(pk("fma", n, UI(t), C2, n, bsel=1, neg_b=True))
        A(pk("mul", UI(t), UI(t), C2, bsel=0))
        A(pk("fma", UI(t), UR(t), C2, UI(t), bsel=1))
    cmul(A, 44, C2, 40)
    cmul(A, 46, C2, 32)
    for k in range(16):
        A(f"v_subrev_u32 v{128+k}, {(1+2*k)*8192:#x}, v50")
    if "pz" in OPT:
        A("s_mov_b64 exec, 1")
        A("ds_write_b32 v61, v12 offset:16")
        A("s_mov_b64 exec, -1")
    ST()
    A("s_waitcnt vmcnt(1)")
    if XL:
        spin_all_ones(A, "c_init", 52, "buffer_load_dword v20, v21, s[64:67], 0 offen sc1", "-1", pre="v_or_b32 v52, v20, v2")
        A("s_add_u32 s11, s54, 8")
        A("v_readlane_b32 s14, v20, s11")
        A("s_bcnt1_i32_b32 s14, s14")
    else:
        spin_all_ones(A, "c_init", 52, "buffer_load_dword v20, v21, s[64:67], 0 offen sc1", "15", pre="v_and_b32 v52, 15, v20")
        if True:
            A("s_getreg_b32 s11, hwreg(HW_REG_XCC_ID, 0, 4)")
            A("s_lshl_b32 s11, 0x100, s11")
            A("s_or_b32 s11, s11, 15")
            A("v_and_b32 v52, 7, v1")
            A("v_cmp_eq_u32 s[12:13], s54, v52")
            A("v_cmp_ne_u32 vcc, s11, v20")
            A("s_and_b64 vcc, vcc, s[12:13]")
            A("s_cselect_b32 s14, 0, 1")
            if "nolocal" in OPT: A("s_mov_b32 s14, 0")
    for k in range(16):
        A(f"buffer_load_dwordx2 {vr(EL+2*k,2)}, v{128+k}, s[56:59], 0 offen sc1")
    A(f"s_mov_b32 s88, {SPIN}")
    A("c_poll:")
    A("s_waitcnt vmcnt(0)")
    A("v_mov_b32 v52, 0")
    for k in range(16):
        A(f"v_and_b32 v{144+k}, 1, v{EL+2*k}")
    for k in range(0, 16, 2):
        A(f"v_add3_u32 v52, v52, v{144+k}, v{145+k}")
    A("v_cmp_ne_u32 vcc, v52, v51")
    A("s_cmp_eq_u64 vcc, 0")
    A("s_cbranch_scc1 c_polled")
    A("s_sub_u32 s88, s88, 1")
    A("s_cbranch_scc1 c_polled")
    if "fastpoll" in OPT:
        for k in range(16):
            A(f"v_cmpx_eq_u32 vcc, 0, v{144+k}")
            A(f"buffer_load_dwordx2 {vr(EL+2*k,2)}, v{128+k}, s[56:59], 0 offen sc1")
            A("s_mov_b64 exec, -1")
    else:
        A(f"s_sleep {SLEEP}")
        for k in range(16):
            A(f"v_cmp_eq_u32 vcc, 0, v{144+k}")
            A("s_mov_b64 exec, vcc")
            A(f"buffer_load_dwordx2 {vr(EL+2*k,2)}, v{128+k}, s[56:59], 0 offen sc1")
            A("s_mov_b64 exec, -1")
    A("s_branch c_poll")
    A("c_polled:")
    if "pz" in OPT and PZM & 2:
        A("s_mov_b64 exec, 1")
        A("ds_write_b32 v61, v23 offset:16")
        A("s_mov_b64 exec, -1")
    ST()
    g = EL + 30
    G = [52, 54]
    for k in range(14, -1, -1):
        n = G[k & 1]
        A(pk("fma", n, g, MU8, EL+2*k, bsel=0))
        A(pk("fma", n, g, MU8, n, bsel=1, asel="swap", neg_lo=[1,0,0]))
        g = n
    A("v_mov_b32 v54, v52\nv_mov_b32 v55, v53\nv_mov_b32 v56, v52\nv_mov_b32 v57, v53")
    A("v_permlane32_swap_b32 v54, v56")
    A("v_permlane32_swap_b32 v55, v57")
    cmul(A, 58, MU4, 56, add=54)
    cmul(A, 52, 48, 58, add=44)
    cmul(A, 54, MU, 52, add=46)
    A("v_mov_b32 v56, v52\nv_mov_b32 v57, v54\nv_mov_b32 v58, v53\nv_mov_b32 v59, v55")
    A("s_lshl_b32 s11, s3, 13")
    A("v_lshl_add_u32 v16, v6, 11, s11")
    A("v_lshl_add_u32 v16, v4, 6, v16")
    A("v_bfe_u32 v17, v1, 1, 2")
    for q in range(4):
        A(f"v_xor_b32 v18, {q}, v17")
        A(f"v_lshl_add_u32 v{20+q}, v18, 4, v16")
    cr, ci = 56, 58
    def packhalf(hf):
        for plane in range(2):
            for e in range(2):
                d = 128 + ((plane*2 + e)*2 + hf)*4
                for m in range(4):
                    t = hf*8 + 2*m
                    if plane == 0: A(f"v_cvt_pk_bf16_f32 v{d+m}, v{UR2+2*t+e}, v{UR2+2*(t+1)+e}")
                    else: A(f"v_cvt_pk_bf16_f32 v{d+m}, -v{UI(t)+e}, -v{UI(t+1)+e}")
                A(f"ds_write_b128 v{20+2*e+hf}, {vr(d,4)} offset:{plane*4096}")
    for t in range(16):
        nr, ni = UR2 + 2*t, UI(t)
        A(pk("fma", nr, cr, LAM, nr, bsel=0))
        A(pk("fma", ni, ci, LAM, ni, bsel=0))
        A(pk("fma", nr, ci, LAM, nr, bsel=1, neg_b=True))
        A(pk("fma", ni, cr, LAM, ni, bsel=1))
        cr, ci = nr, ni
        if t == 7: packhalf(0)
    packhalf(1)
    if "pz" in OPT:
        A("s_mov_b64 exec, 1")
        A("ds_write_b32 v61, v12 offset:16")
        A("s_mov_b64 exec, -1")
    gen.SAFE_PK[0] = False
    if "cl" in OPT:
        A(f"v_mov_b32 v24, {LFLAG:#x}")
        A("v_mov_b32 v25, 1")
        A("s_mov_b64 exec, 1")
        A("ds_add_u32 v24, v25 offset:8")
        A("s_mov_b64 exec, -1")
    A("v_bfe_u32 v16, v1, 2, 2")
    A("v_lshl_add_u32 v16, v6, 3, v16")
    A("v_and_b32 v17, 1, v1")
    A("v_bfe_u32 v18, v1, 4, 1")
    A("v_lshl_add_u32 v17, v17, 1, v18")
    A("v_bfe_u32 v18, v16, 1, 2")
    A("v_xor_b32 v17, v17, v18")
    A("v_lshlrev_b32 v17, 4, v17")
    A("v_lshl_add_u32 v17, v16, 6, v17")
    A("v_bfe_u32 v18, v1, 1, 1")
    A("v_lshl_add_u32 v17, v18, 3, v17")
    A("v_add_u32 v17, s11, v17")
    A("v_xor_b32 v18, 32, v17")
    A("v_add_u32 v18, 256, v18")
    A("s_lshl_b32 s11, s4, 7")
    A("s_lshl_b32 s12, s6, 6")
    A("s_add_u32 s11, s11, s12")
    A("s_and_b32 s12, s5, 7")
    A("s_lshl_b32 s12, s12, 2")
    A("s_add_u32 s11, s11, s12")
    A("s_add_u32 s11, s11, s7")
    A("s_lshl_b32 s11, s11, 12")
    A("s_lshr_b32 s13, s5, 3")
    A("s_lshl_b32 s13, s13, 11")
    A("s_add_u32 s11, s11, s13")
    A("v_lshl_add_u32 v19, v1, 4, s11")
    ST()
    A("s_waitcnt lgkmcnt(0)")
    idx = 0
    for tblk in range(2):
        for plane in range(2):
            for ksl in range(2):
                d = 160 + idx*4
                o = plane*4096 + tblk*2048 + ksl*1024
                A(f"ds_read_b64_tr_b16 {vr(d,2)}, v17 offset:{o}")
                A(f"ds_read_b64_tr_b16 {vr(d+2,2)}, v18 offset:{o}")
                idx += 1
    def hstores(pol):
        idx = 0
        for tblk in range(2):
            for plane in range(2):
                A(f"s_mov_b32 s12, {tblk*131072 + plane*8192:#x}")
                for ksl in range(2):
                    d = 160 + idx*4
                    A(f"s_waitcnt lgkmcnt({14 - 2*idx})")
                    A(f"buffer_store_dwordx4 {vr(d,4)}, v19, s[60:63], s12 offen offset:{ksl*1024}{pol}")
                    idx += 1
    A("s_cmp_eq_u32 s14, 1")
    A("s_cbranch_scc1 c_hl")
    hstores(" sc1")
    A("s_branch c_he")
    A("c_hl:")
    hstores(str(OPT.get("hpol", "")).replace("_", " "))
    A("c_he:")
    A(f"v_mov_b32 v20, {LFLAG:#x}")
    A("v_mov_b32 v23, 1")
    A("s_mov_b64 exec, 1")
    A("ds_add_u32 v20, v23 offset:12")
    A("s_mov_b64 exec, -1")
    if gen.STAMPS:
        A("v_mov_b32 v251, v63"); ST.reg = 251
    ACC2 = 32
    AF = 96
    FB2 = 160
    BD2 = 192
    GR, XR, RV = 196, 212, 96
    A("s_lshl_b32 s6, s4, 2")
    A("s_add_u32 s6, s6, s3")
    A("s_lshl_b32 s7, s6, 17")
    A("s_add_u32 s7, s7, s13")
    A("v_lshl_add_u32 v3, v1, 4, s7")
    A("v_add_u32 v2, 0x1000, v3")
    A(f"v_lshlrev_b32 v14, 7, v4")
    A(f"v_add_u32 v14, {CRING:#x}, v14")
    for ks in range(4):
        A(f"v_xor_b32 v16, {2*ks}, v11")
        A(f"v_lshl_add_u32 v{BD2+ks}, v16, 4, v14")
    A("s_lshr_b32 s7, s6, 1")
    A("s_lshl_b32 s7, s7, 12")
    A("s_add_u32 s7, s7, s13")
    A("v_and_b32 v16, 15, v1")
    A("v_lshl_add_u32 v22, v16, 7, s7")
    A("v_mov_b32 v23, 1")
    srd(A, 76, "out", 8 << 20)
    srd(A, 92, "ws", 8 << 20, WS_PART)
    for i in range(8):
        A(f"s_mov_b32 s{80+i}, {i*4096}")
    A("s_lshl_b32 s7, s6, 5")
    A("v_lshl_add_u32 v7, v6, 4, s7")
    A("s_lshl_b32 s8, s5, 6")
    A("v_add_u32 v8, s8, v4")
    A("v_lshlrev_b32 v17, 12, v7")
    A("v_lshl_add_u32 v17, v8, 2, v17")
    A("v_add_u32 v24, 0x8000, v17")
    A("s_mul_i32 s8, s3, 8320")
    A(f"s_add_u32 s8, s8, {KREG}")
    A("v_lshl_add_u32 v25, v1, 4, s8")
    A("s_mul_i32 s8, s3, 4608")
    A(f"s_add_u32 s8, s8, {UREG}")
    A("v_lshl_add_u32 v26, v1, 4, s8")
    A("s_xor_b32 s73, s72, 4096")
    A("s_lshl_b32 s74, s73, 6")
    A("s_add_u32 s75, s74, 4096")
    A("s_and_b32 s8, s72, 0xfffff1ff")
    A(f"s_add_u32 s8, s8, {DF_OFF:#x}")
    A("v_lshl_add_u32 v27, v1, 9, s8")
    A(f"s_add_u32 s8, s73, {PF_OFF:#x}")
    A("v_mov_b32 v28, s8")
    A("v_cmp_gt_u32 vcc, 8, v1")
    A("v_cndmask_b32 v27, v28, v27, vcc")
    A("v_lshlrev_b32 v28, 4, v1")
    A(f"s_add_u32 s8, s72, {DF_OFF:#x}")
    A("v_mov_b32 v29, s8")
    A(f"v_add_u32 v30, {PF_OFF - DF_OFF:#x}, v29")
    ST()
    A("s_waitcnt vmcnt(0)")
    def modestore(text, name):
        A("s_cmp_eq_u32 s14, 1")
        A(f"s_cbranch_scc1 {name}_l")
        A(text + " sc1")
        A(f"s_branch {name}_e")
        A(f"{name}_l:")
        A(text)
        A(f"{name}_e:")
    modestore("buffer_store_dword v23, v60, s[68:71], 0 offen", "c_hfs")
    A(f"v_mov_b32 v20, {LFLAG:#x}")
    A("s_mov_b64 exec, 1")
    A("ds_add_u32 v20, v23")
    A("s_mov_b64 exec, -1")
    A("s_waitcnt lgkmcnt(0)")
    ST()
    HFL = "buffer_load_dword v19, v22, s[68:71], 0 offen sc1"
    A(HFL)
    A("s_waitcnt vmcnt(0)")
    spin_all_ones(A, "c_hf", 19, HFL)
    ST()
    V = VQ(A)
    alast = [None]
    def aload(st, ks):
        if alast[0] != st:
            alast[0] = st
            A(f"s_add_u32 s11, s15, {st}")
            A("s_and_b32 s11, s11, 15")
            A("s_lshl_b32 s11, s11, 13")
            if "abla" in OPT and st >= int(OPT["abla"]): A("s_mov_b32 s11, 0")
        r = AF + ((st % PD)*4 + ks)*4
        V.issue(f"buffer_load_dwordx4 {vr(r,4)}, v{3 if ks < 2 else 2}, s[60:63], s11 offen offset:{(ks & 1)*1024}{OPT.get('asc', '_sc1').replace('_', ' ') if OPT.get('asc') != 1 else ''}", ("A", st, ks))
    PD0 = int(OPT.get("pd0", PD))
    for st in range(PD0):
        for ks in range(4): aload(st, ks)
    def rd2(st, ks, nt, slot):
        return f"ds_read_b128 {vr(FB2+slot*4,4)}, v{BD2+ks} offset:{(st % NS2)*16384 + nt*4096}"
    def mf2(st, ks, nt, slot):
        a = AF + ((st % PD)*4 + ks)*4
        c = vr(ACC2+nt*16, 16)
        return f"v_mfma_f32_32x32x16_bf16 {c}, {vr(a,4)}, {vr(FB2+slot*4,4)}, {'0' if (st == 0 and ks == 0) else c}"
    if "cprio2" in OPT: A(f"s_setprio {OPT['cprio2']}")
    A("s_barrier")
    ST2 = Stamper(A, 1, 250)
    ST2()
    class L2: n = 0; tags = {}; done = 0
    def lrd(text, tag=None):
        A(text); L2.n += 1
        if tag is not None: L2.tags[tag] = L2.n
    def lwait(tag):
        k = L2.tags[tag]
        if k > L2.done:
            A(f"s_waitcnt lgkmcnt({min(15, L2.n - k)})"); L2.done = max(k, L2.n - 15)
    for nt in range(4): lrd(rd2(0, 0, nt, nt), (0, 0, nt))
    for st in range(N2 - 1):
        for ks in range(4):
            buf = ks & 1
            if ks == 3: A("s_barrier")
            ns, nks = (st, ks+1) if ks < 3 else (st+1, 0)
            F3 = int(OPT.get("fine3", -9))
            if st in (F3, F3 + 1) or (st == F3 + 2 and ks == 0): ST2()
            V.wait(("A", st, ks))
            if st in (F3, F3 + 1) and not (st == F3 + 1 and ks == 3): ST2()
            for nt in range(4):
                lwait((st, ks, nt))
                A(mf2(st, ks, nt, buf*4 + nt))
                lrd(rd2(ns, nks, nt, (buf ^ 1)*4 + nt), (ns, nks, nt))
            if st == 0 and PD0 < PD:
                for z in range(PD0, PD):
                    if ks == z - PD0 or (ks == 3 and z - PD0 > 3):
                        for k2 in range(4): aload(z, k2)
            if st + PD < N2: aload(st + PD, ks)
            if (st % 2 == 1 if 'fine2' not in OPT else True) and ks == 3 and "fine3" not in OPT: ST2()
    st = N2 - 1
    slot = {(0, nt): nt for nt in range(4)}
    order = [(ks, nt) for ks in range(4) for nt in (0, 1)] + [(ks, nt) for ks in range(4) for nt in (2, 3)]
    pend = [x for x in order if x not in slot]
    free = [4, 5, 6]
    late7 = [7]
    def fill():
        while pend and free:
            x = pend.pop(0); sl = free.pop(0); slot[x] = sl
            lrd(rd2(st, x[0], x[1], sl), (st, x[0], x[1]))
    fill()
    pst = [f"buffer_store_dwordx4 {vr(ACC2+4*i,4)}, v28, s[92:95], s{74 if i < 4 else 75} offen offset:{(i & 3)*1024} sc1" for i in range(8)]
    for i, (ks, nt) in enumerate(order):
        V.wait(("A", st, ks))
        if (ks, nt) == (3, 0):
            modestore("buffer_store_dword v23, v29, s[68:71], 0 offen", "c_dfs"); V.n += 1
        lwait((st, ks, nt))
        A(mf2(st, ks, nt, slot[(ks, nt)]))
        if i: free.append(slot[order[i-1]])
        else: free.extend(late7)
        fill()
        if i >= 10:
            for z in range(2 if i < 14 else 0):
                if pst: V.issue(pst.pop(0), "ps")
    while pst: V.issue(pst.pop(0), "ps")
    ST2()
    A("s_waitcnt vmcnt(0)")
    A("buffer_store_dword v23, v30, s[68:71], 0 offen sc1")
    PFL = "buffer_load_dword v19, v27, s[68:71], 0 offen sc1"
    A(PFL)
    ST2()
    A("s_barrier")
    for i in range(8): A(f"ds_read_b128 {vr(XR + 4*i,4)}, v25 offset:{1024*i}")
    for i in range(4): A(f"ds_read_b128 {vr(GR + 4*i,4)}, v26 offset:{1024*i}")
    A("s_waitcnt lgkmcnt(0)")
    for nt in range(2):
        for r in range(16):
            A(f"v_fma_f32 v{XR+nt*16+r}, v{ACC2+(2+nt)*16+r}, v{GR+r}, v{XR+nt*16+r}")
    ST2()
    A("s_waitcnt vmcnt(0)")
    spin_all_ones(A, "c_pf", 19, PFL)
    A("s_lshl_b32 s12, s72, 6")
    A("s_add_u32 s13, s12, 4096")
    for i in range(8):
        A(f"buffer_load_dwordx4 {vr(RV+4*i,4)}, v28, s[92:95], s{12 if i < 4 else 13} offen offset:{(i & 3)*1024} sc1")
    ST2()
    for nt in range(2):
        for r in range(16):
            i = (nt*16 + r) // 4
            if r % 4 == 0: A(f"s_waitcnt vmcnt({7 - i + nt*16 + r})")
            a = XR + nt*16 + r
            A(f"v_fma_f32 v{a}, v{RV+nt*16+r}, v{GR+r}, v{a}")
            A(f"buffer_store_dword v{a}, v{17 if r < 8 else 24}, s[76:79], s{80+(r&7)} offen offset:{nt*128}{OPT.get('os', '').replace('_', ' ')}")
    ST2()
    gen.SAFE_PK[0] = False
    if "leak" in OPT:
        i = int(OPT["leak"])
        A("s_cmp_lg_u32 s2, 8")
        A("s_cbranch_scc1 c_noleak")
        A("s_cmp_lg_u32 s3, 0")
        A("s_cbranch_scc1 c_noleak")
        A("v_readlane_b32 s8, v251, 0")
        A(f"v_readlane_b32 s9, v{251 if i < 100 else 250}, {i % 100}")
        A("s_sub_u32 s9, s9, s8")
        A("s_memrealtime s[10:11]")
        A("s_waitcnt lgkmcnt(0)")
        A("s_add_u32 s9, s9, s10")
        A("c_leak:")
        A("s_memrealtime s[10:11]")
        A("s_waitcnt lgkmcnt(0)")
        A("s_sub_u32 s12, s9, s10")
        A("s_cmp_gt_i32 s12, 0")
        A("s_cbranch_scc1 c_leak")
        A("c_noleak:")
    if "dbgt" in OPT:
        A("s_cmp_lg_u32 s2, 0")
        A("s_cbranch_scc1 c_nodbg")
        A("s_cmp_lg_u32 s3, 0")
        A("s_cbranch_scc1 c_nodbg")
        A("s_waitcnt vmcnt(0)")
        ST()
        srd(A, 64, "dbg", 256)
        A("v_readlane_b32 s8, v251, 0")
        A("v_readlane_b32 s9, v251, 16")
        for i, idx in enumerate([2, 3, 6, 9, 13, ST.n-1]):
            A(f"v_readlane_b32 s10, v251, {idx}")
            A("s_sub_u32 s10, s10, s8")
            A("v_mov_b32 v2, s10")
            A(f"v_mov_b32 v3, {32+4*i}")
            A("buffer_store_dword v2, v3, s[64:67], 0 offen")
        for i, idx in enumerate([6, ST.n-1]):
            A(f"v_readlane_b32 s10, v251, {16+idx}")
            A("s_sub_u32 s10, s10, s9")
            A("v_mov_b32 v2, s10")
            A(f"v_mov_b32 v3, {56+4*i}")
            A("buffer_store_dword v2, v3, s[64:67], 0 offen")
        A("c_nodbg:")
    ST.flush()
    ST2.flush()
    A("s_endpgm")

def helper(A):
    V = VQ(A)
    VA, VB = 8, 12
    ST = Stamper(A, 0, 250)
    ST()
    if "hprio" in OPT: A("s_setprio 3")
    A("s_sub_u32 s3, s3, 4")
    A("s_lshr_b32 s6, s3, 1")
    A("s_and_b32 s7, s3, 1")
    A("v_lshrrev_b32 v3, 5, v1")
    A("v_lshlrev_b32 v3, 5, v3")
    A("v_bfe_u32 v4, v1, 3, 1")
    A("v_lshl_add_u32 v3, v4, 4, v3")
    A("v_bfe_u32 v4, v1, 4, 1")
    A("v_add_u32 v3, v3, v4")
    A("s_lshl_b32 s8, s4, 7")
    A("s_lshl_b32 s9, s6, 6")
    A("s_add_u32 s8, s8, s9")
    A("s_lshl_b32 s9, s7, 3")
    A("s_add_u32 s8, s8, s9")
    A("v_add_u32 v3, s8, v3")
    A("v_lshlrev_b32 v3, 11, v3")
    A("v_and_b32 v4, 7, v1")
    A("v_lshrrev_b32 v5, 4, v1")
    A("v_xor_b32 v4, v4, v5")
    A("v_lshlrev_b32 v4, 4, v4")
    A("v_xor_b32 v5, 64, v4")
    A("s_lshl_b32 s8, s5, 6")
    A("s_lshl_b32 s9, s7, 5")
    A("s_add_u32 s8, s8, s9")
    A("v_lshrrev_b32 v6, 3, v1")
    A("v_add_u32 v7, s8, v6")
    A("v_lshlrev_b32 v7, 11, v7")
    for n in range(4):
        c = 4 + (n & 1)
        A(f"v_add_u32 v{VA+n}, v3, v{c}")
        A(f"v_add_u32 v{VB+n}, v7, v{c}")
        if n:
            A(f"v_add_u32 v{VA+n}, {n*(4096-1024)}, v{VA+n}")
            A(f"v_add_u32 v{VB+n}, {n*(16384-1024)}, v{VB+n}")
    VC = 28
    A("s_and_b32 s8, s5, 7")
    A("s_lshl_b32 s8, s8, 6")
    A("s_lshl_b32 s9, s3, 4")
    A("s_add_u32 s8, s8, s9")
    A("v_add_u32 v7, s8, v6")
    A("v_lshlrev_b32 v7, 11, v7")
    A(f"v_add_u32 v{VC}, v7, v4")
    A(f"v_add_u32 v{VC+1}, v7, v5")
    A(f"v_add_u32 v{VC+1}, {16384-1024}, v{VC+1}")
    A("s_lshl_b32 s10, s3, 12")
    A("s_lshr_b32 s90, s55, 2")
    A("s_lshl_b32 s90, s90, 1")
    A("s_and_b32 s91, s55, 3")
    A("s_lshl_b32 s91, s91, 2")
    A("s_add_u32 s90, s90, s91")
    if OPT.get("rot1") == "0": A("s_mov_b32 s90, 0")
    if OPT.get("rot1") == "2":
        A("s_lshr_b32 s90, s55, 2\ns_xor_b32 s90, s90, s55\ns_and_b32 s90, s90, 1\ns_lshl_b32 s90, s90, 3")
    if OPT.get("rot1") == "3": A("s_mov_b32 s90, s91")
    if OPT.get("rot1") == "4": A("s_sub_u32 s90, s90, s91")
    if OPT.get("rot1") == "5":
        A("s_lshr_b32 s90, s55, 2\ns_add_u32 s90, s90, s55\ns_and_b32 s90, s90, 3")
    if XL:
        A("s_and_b32 s90, s55, 1")
        A("s_lshl_b32 s90, s90, 3")
        A("s_lshr_b32 s91, s55, 1")
        A("s_add_u32 s90, s90, s91")
        if OPT.get("rot1") == "0": A("s_mov_b32 s90, 0")
    A("s_and_b32 s12, s55, 1")
    A("s_lshl_b32 s13, s54, 1")
    A("s_add_u32 s12, s12, s13")
    A("s_lshr_b32 s13, s55, 1")
    A("s_lshl_b32 s8, s2, 7")
    A(f"s_add_u32 s8, s8, {KF_OFF:#x}")
    A("v_mov_b32 v30, s8")
    A("s_lshl_b32 s88, s54, 5")
    A("s_add_u32 s88, s88, s55")
    A("s_lshl_b32 s8, s88, 7")
    A(f"s_add_u32 s8, s8, {YF_OFF:#x}")
    A("v_mov_b32 v31, s8")
    A("s_lshl_b32 s88, s88, 2")
    A("s_add_u32 s88, s88, s3")
    A("v_mov_b32 v2, 0")
    A("s_waitcnt lgkmcnt(0)")
    srd(A, 56, "x", 4 << 20)
    A("s_cmp_ge_u32 s3, 2")
    A(f"s_cselect_b32 s60, s{P['Bim']}, s{P['Bre']}")
    A(f"s_cselect_b32 s61, s{P['Bim']+1}, s{P['Bre']+1}")
    A(f"s_mov_b32 s62, {2<<20:#x}")
    A("s_mov_b32 s63, 0x20000")
    if "ka" in OPT: rest_kernargs(A)
    else: srd(A, 92, "ws", FLG_SZ, WS_FLG)
    def issue(st, fill=0):
        slot = st % 3
        A(f"s_add_u32 s11, s90, {st}")
        A("s_and_b32 s11, s11, 15")
        A("s_lshl_b32 s11, s11, 7")
        A(f"s_add_u32 m0, s10, {slot*32768:#x}")
        for n in range(4):
            V.issue(f"buffer_load_dwordx4 v{VA+n}, s[56:59], s11 offen offset:{n*1024}{' nt' if 'ntx' in OPT else ''} lds")
            if fill: do_work(fill, True)
        A(f"s_add_u32 m0, s10, {slot*32768+16384:#x}")
        for n in range(4):
            V.issue(f"buffer_load_dwordx4 v{VB+n}, s[60:63], s11 offen offset:{n*1024}{' nt' if 'ntb' in OPT else ''} lds", ("S", st))
            if fill: do_work(fill, n < 3)
        if fill and owed[0]:
            do_work(min(owed[0], int(OPT.get("nw", 30)))); owed[0] = 0
    def sloads():
        A("s_lshl_b32 s8, s88, 12")
        A(f"s_load_dword s100, {sp('ssmk')}, s8")
        A("s_lshr_b32 s8, s88, 1")
        A("s_lshl_b32 s8, s8, 2")
        A(f"s_load_dword s101, {sp('ssmD')}, s8")
    if "ka" not in OPT: sloads()
    XT = "xt" in OPT
    def xtouch(k):
        A(f"s_cmp_lg_u32 s3, {k}")
        A(f"s_cbranch_scc1 h_xt{k}")
        A("global_load_dword v241, v240, s[96:97]")
        A(f"h_xt{k}:")
    if XT:
        A("s_cmp_ge_u32 s2, 192")
        A(f"s_cselect_b32 s96, s{P['Bim']}, s{P['Bre']}")
        A(f"s_cselect_b32 s97, s{P['Bim']+1}, s{P['Bre']+1}")
        A("s_and_b32 s98, s2, 63")
        A("s_cmp_lt_u32 s2, 128")
        A(f"s_cselect_b32 s96, s{P['x']}, s96")
        A(f"s_cselect_b32 s97, s{P['x']+1}, s97")
        A("s_cselect_b32 s98, s2, s98")
        A("s_lshl_b32 s98, s98, 15")
        A("s_lshl_b32 s99, s3, 9")
        A("s_add_u32 s98, s98, s99")
        A("v_and_b32 v240, 15, v1")
        A("v_lshlrev_b32 v240, 11, v240")
        A("v_lshrrev_b32 v242, 4, v1")
        A("v_lshl_add_u32 v240, v242, 7, v240")
        A("v_add_u32 v240, s98, v240")
        xtouch(0)
        if OPT["xt"] == "all": xtouch(1); xtouch(2); xtouch(3)
    issue(0)
    if XT and OPT["xt"] != "all": xtouch(1)
    if "ka" in OPT:
        issue(1)
        A("s_waitcnt lgkmcnt(0)")
        srd(A, 92, "ws", FLG_SZ, WS_FLG)
        sloads()
    V.issue("buffer_store_dword v2, v30, s[92:95], 0 offen sc1")
    V.issue("buffer_store_dword v2, v31, s[92:95], 0 offen sc1", "clr")
    if "ka" not in OPT: issue(1)
    if XT and OPT["xt"] != "all": xtouch(2); xtouch(3)
    if OPT.get("hfirst") == "2":
        A("s_branch h_cont")
        A("L_consumer:")
        consumer(A)
        A("h_cont:")
    KR, VR_, SK = 32, 52, 68
    XG, GW = 72, 88
    A("s_lshl_b32 s13, s13, 7")
    A("s_lshl_b32 s14, s3, 5")
    A("s_add_u32 s13, s13, s14")
    A("v_lshrrev_b32 v16, 5, v1")
    A("v_lshl_add_u32 v16, v16, 4, s13")
    A("v_and_b32 v17, 31, v1")
    A("s_lshl_b32 s14, s12, 5")
    A("v_add_u32 v17, s14, v17")
    A("v_lshlrev_b32 v18, 11, v16")
    A("v_lshl_add_u32 v18, v17, 2, v18")
    for i in range(3):
        A(f"v_subrev_u32 v{19+i}, {(3-i)*2048}, v18")
    A("v_lshlrev_b32 v22, 4, v17")
    A("v_and_b32 v23, 31, v1")
    A("v_mul_u32_u24 v23, 544, v23")
    A("v_lshrrev_b32 v24, 5, v1")
    A("v_lshlrev_b32 v24, 5, v24")
    A("v_sub_u32 v23, v23, v24")
    A("s_lshl_b32 s8, s3, 6")
    A(f"s_sub_u32 s8, {UREG+224}, s8")
    A("v_add_u32 v23, s8, v23")
    A("v_lshrrev_b32 v24, 4, v1")
    A("s_lshl_b32 s8, s3, 4")
    A("v_add_u32 v24, s8, v24")
    A("v_and_b32 v2, 15, v1")
    A("v_lshlrev_b32 v2, 4, v2")
    A("s_lshl_b32 s8, s12, 6")
    A("v_add_u32 v27, s8, v24")
    A("v_lshl_add_u32 v27, v27, 12, v2")
    A("s_lshr_b32 s8, s55, 1")
    A("s_lshl_b32 s8, s8, 8")
    A("s_sub_u32 s8, 3840, s8")
    A("v_add_u32 v27, s8, v27")
    A("v_mul_u32_u24 v24, 272, v24")
    A("v_add_u32 v24, v24, v2")
    A(f"v_add_u32 v24, {UREG:#x}, v24")
    A("s_lshl_b32 s14, s4, 7")
    A("s_lshl_b32 s8, s5, 3")
    A("s_add_u32 s14, s14, s8")
    A("s_lshl_b32 s8, s3, 1")
    A("s_add_u32 s14, s14, s8")
    A("s_lshl_b32 s8, s14, 11")
    A("v_lshlrev_b32 v25, 4, v1")
    A("v_add_u32 v26, s8, v25")
    A("v_add_u32 v3, 0x8000, v27")
    srd(A, 64, "k", 4 << 20)
    srd(A, 68, "v", 4 << 20)
    srd(A, 72, "ws", 4 << 20, WS_KVT)
    srd(A, 76, "ws", 8192, WS_G)
    for i in range(8):
        A(f"s_mov_b32 s{80+i}, {i*4096}")
    NTP = " nt" if "ntp" in OPT else ""
    KVD = "kvdma" in OPT
    if KVD:
        A("v_lshrrev_b32 v19, 3, v1")
        A("v_add_u32 v19, s13, v19")
        A("v_lshlrev_b32 v19, 11, v19")
        A("v_and_b32 v20, 7, v1")
        A("v_lshl_add_u32 v19, v20, 4, v19")
        A("s_lshl_b32 s8, s12, 7")
        A("v_add_u32 v19, s8, v19")
        A("v_subrev_u32 v20, 16384, v19")
        A("v_lshrrev_b32 v21, 5, v1")
        A("v_lshlrev_b32 v21, 11, v21")
        A("v_and_b32 v18, 31, v1")
        A("v_lshl_add_u32 v21, v18, 2, v21")
        A("s_lshl_b32 s8, s3, 12")
        A(f"s_add_u32 s91, s8, {KREG}")
        A("v_add_u32 v21, s91, v21")
    def kvdma():
        A("s_add_u32 m0, s91, 16384")
        V.issue(f"buffer_load_dwordx4 v20, s[64:67], 0 offen{NTP} lds")
        for i in range(4):
            A(f"s_add_u32 m0, s91, {16384 + 1024*(i+1)}")
            A(f"s_mov_b32 s99, {i*16384}")
            V.issue(f"buffer_load_dwordx4 v19, s[64:67], s99 offen{NTP} lds")
        V.issue(f"global_load_dwordx4 {vr(SK,4)}, v22, {sp('shk')}", "k")
        for i in range(4):
            A(f"s_add_u32 m0, s91, {1024*i}")
            A(f"s_mov_b32 s99, {i*16384}")
            V.issue(f"buffer_load_dwordx4 v19, s[68:71], s99 offen{NTP} lds", "v")
    pl = []
    for i in range(3): pl.append((f"buffer_load_dword v{KR+i}, v{19+i}, s[64:67], 0 offen{NTP}", None))
    for i in range(16): pl.append((f"buffer_load_dword v{KR+3+i}, v18, s[64:67], s{80+(i>>1)} offen offset:{(i&1)*2048}{NTP}", None))
    pl.append((f"global_load_dwordx4 {vr(SK,4)}, v22, {sp('shk')}", "k"))
    for i in range(16): pl.append((f"buffer_load_dword v{VR_+i}, v18, s[68:71], s{80+(i>>1)} offen offset:{(i&1)*2048}{NTP}", "v"))
    for r in range(2):
        for hh in range(2): pl.append((f"buffer_load_dwordx4 {vr(XG+r*8+hh*4,4)}, v26, s[56:59], 0 offen offset:{r*2048+hh*1024}", None))
    for hh in range(2): pl.append((f"global_load_dwordx4 {vr(GW+hh*4,4)}, v25, {sp('gw')} offset:{hh*1024}", "gate"))
    KF = 96; SP = 136; OUT = 144
    work = []
    def W(x):
        if callable(x): work.append(x)
        else: work.extend(x.split("\n"))
    def rndW(pair, tmp):
        W(f"v_cvt_pk_bf16_f32 v{tmp}, v{pair}, v{pair+1}")
        W(f"v_lshlrev_b32 v{pair}, 16, v{tmp}")
        W(f"v_and_b32 v{pair+1}, s12, v{tmp}")
    W("s_mov_b32 s12, 0xffff0000")
    W(lambda: V.wait("gate"))
    for i in range(8):
        W(f"v_lshlrev_b32 v{96+2*i}, 16, v{GW+i}")
        W(f"v_and_b32 v{97+2*i}, s12, v{GW+i}")
    for r in range(2):
        acc = 112 + r
        W(f"v_mov_b32 v{acc}, 0")
        for i in range(8):
            W(f"v_lshlrev_b32 v116, 16, v{XG+r*8+i}")
            W(f"v_and_b32 v117, s12, v{XG+r*8+i}")
            W(pk("mul", 116, 116, 96+2*i))
            rndW(116, 118)
            W(f"v_add_f32 v{acc}, v{acc}, v116")
            W(f"v_add_f32 v{acc}, v{acc}, v117")
    for r in range(2):
        acc = 112 + r
        for sh in (1, 2, 4, 8):
            W(f"v_add_f32_dpp v{acc}, v{acc}, v{acc} row_shr:{sh} row_mask:0xf bank_mask:0xf bound_ctrl:0")
        W(f"v_add_f32_dpp v{acc}, v{acc}, v{acc} row_bcast:15 row_mask:0xa bank_mask:0xf")
        W(f"v_add_f32_dpp v{acc}, v{acc}, v{acc} row_bcast:31 row_mask:0xc bank_mask:0xf")
    for t in ["v_readlane_b32 s8, v112, 63", "v_readlane_b32 s9, v113, 63", "v_mov_b32 v116, s8", "v_mov_b32 v117, s9",
              "v_cmp_eq_u32 vcc, 1, v1", "v_cndmask_b32 v116, v116, v117, vcc", "v_cvt_pk_bf16_f32 v116, v116, v116",
              "v_lshlrev_b32 v116, 16, v116", "v_mul_f32 v116, 0xbfb8aa3b, v116", "v_exp_f32 v116, v116", "v_add_f32 v116, 1.0, v116",
              "v_rcp_f32 v116, v116", "v_cvt_pk_bf16_f32 v117, v116, v116", "v_lshlrev_b32 v116, 16, v117", "v_sub_f32 v118, 1.0, v116",
              "v_cvt_pk_bf16_f32 v116, v116, v118", "s_lshl_b32 s14, s14, 2", "v_lshl_add_u32 v117, v1, 2, s14"]:
        W(t)
    def gstore():
        A("s_mov_b64 exec, 3")
        V.issue(f"buffer_store_dword v116, v117, s[76:79], 0 offen{LS}", "g")
        A("s_mov_b64 exec, -1")
    W(gstore)
    W("KVSTART")
    W(lambda: V.wait("k"))
    if KVD:
        for i in range(19):
            W(f"ds_read_b32 v{KR+i}, v21 offset:{16384 + (5+i)*128}")
            if i == 9: W("s_waitcnt lgkmcnt(0)")
        W("s_waitcnt lgkmcnt(0)")
    for i in range(19):
        W(f"v_lshlrev_b32 v{KF+2*i}, 16, v{KR+i}")
        W(f"v_and_b32 v{KF+2*i+1}, s12, v{KR+i}")
    for jx in range(4):
        for cc in range(2):
            src = SK + cc*2 + (jx >> 1)
            W(f"v_and_b32 v{SP+2*jx+cc}, s12, v{src}" if jx & 1 else f"v_lshlrev_b32 v{SP+2*jx+cc}, 16, v{src}")
    W(lambda: V.wait("v"))
    if KVD:
        for i in range(16):
            W(f"ds_read_b32 v{VR_+i}, v21 offset:{i*128}")
            if i == 7: W("s_waitcnt lgkmcnt(0)")
        W("s_waitcnt lgkmcnt(0)")
    for t in range(16):
        vv = 176 + (t & 1)*2
        W(f"v_lshlrev_b32 v{vv}, 16, v{VR_+t}")
        W(f"v_and_b32 v{vv+1}, s12, v{VR_+t}")
        for cc in range(2): W(f"v_mul_f32 v{OUT+2*t+cc}, v{KF+2*t+cc}, v{SP+6+cc}")
        for jx in (2, 1, 0):
            for cc in range(2): W(f"v_fmac_f32 v{OUT+2*t+cc}, v{KF+2*(t+3-jx)+cc}, v{SP+2*jx+cc}")
        for cc in range(2): W(f"v_mul_f32 v{OUT+2*t+cc}, v{OUT+2*t+cc}, v{vv+cc}")
    for cc in range(2):
        for hf in range(2):
            d = 192 + (cc*2+hf)*4
            for m in range(4):
                mm = hf*4 + m
                W(f"v_cvt_pk_bf16_f32 v{d+m}, v{OUT+2*(15-2*mm)+cc}, v{OUT+2*(14-2*mm)+cc}")
            W(f"ds_write_b128 v23, {vr(d,4)} offset:{cc*272+hf*16}")
    W("s_waitcnt lgkmcnt(0)")
    W("BARRIER")
    for i in range(4): W(f"ds_read_b128 {vr(192+4*i,4)}, v24 offset:{i*4*272}")
    def kvstores():
        def block(pol):
            for i in range(4):
                A(f"s_waitcnt lgkmcnt({3-i})")
                V.issue(f"buffer_store_dwordx4 {vr(192+4*i,4)}, v{27 if i < 2 else 3}, s[72:75], s{80+4*(i&1)} offen{pol}", "kvt")
        if not KVL:
            block(" sc1"); return
        V.wait("cls")
        A("s_getreg_b32 s98, hwreg(HW_REG_XCC_ID, 0, 4)")
        A("s_lshl_b32 s98, 0x100, s98")
        A("s_or_b32 s98, s98, 15")
        A("v_and_b32 v246, 7, v1")
        A("v_cmp_eq_u32 s[96:97], s54, v246")
        A("v_cmp_ne_u32 vcc, s98, v247")
        A("s_and_b64 vcc, vcc, s[96:97]")
        A("s_cbranch_scc0 h_kvl")
        n0 = V.n
        block(" sc1")
        A("s_branch h_kve")
        A("h_kvl:")
        V.n = n0
        block("")
        A("h_kve:")
    W(kvstores)
    def wgflag(name, vaddr):
        A("s_cmp_lg_u32 s3, 0")
        A(f"s_cbranch_scc1 {name}")
        A("v_mov_b32 v6, 1")
        A(f"buffer_store_dword v6, v{vaddr}, s[92:95], 0 offen{LS}")
        A(f"{name}:")
    wpos = [0]
    blocked = [False]
    owed = [0]
    cur = [0]
    PL = int(OPT.get("pl", 4))
    KVW = PL + int(OPT.get("kvd", 3))
    def do_work(n, nowait=False):
        while n > 0 and wpos[0] < len(work) and not blocked[0]:
            w = work[wpos[0]]
            if nowait and "nw" in OPT and (callable(w) or w.startswith("s_waitcnt")):
                owed[0] += n; return
            wpos[0] += 1
            if w == "BARRIER":
                blocked[0] = True; return
            if w == "KVSTART":
                if cur[0] < KVW:
                    wpos[0] -= 1; return
                continue
            if callable(w): w()
            else: A(w)
            n -= 1
    PREP0 = int(OPT.get("prep0", 2))
    print("prep work items", len(work))
    UL = 40
    ACC = 64; BF = 96; AFR = 160
    def setup_conv(A):
        A("s_lshl_b32 s12, s88, 12")
        srd(A, 64, "ssmk", 4096, off_sreg=12)
        srd(A, 68, "ws", 4096, WS_KVT, off_sreg=12)
        A("s_mov_b32 s80, s100")
        A("s_mov_b32 s81, s101")
        A("v_and_b32 v37, 15, v1")
        A("s_lshr_b32 s8, s88, 6")
        A("s_and_b32 s8, s8, 1")
        A("s_lshl_b32 s8, s8, 3")
        A("s_add_u32 s8, s8, s54")
        A("v_lshl_add_u32 v32, v37, 4, s8")
        A("s_lshr_b32 s8, s4, 2")
        A("s_lshl_b32 s8, s8, 1")
        A("s_and_b32 s9, s4, 3")
        A("s_lshl_b32 s9, s9, 3")
        A("s_add_u32 s8, s8, s9")
        A("v_lshrrev_b32 v38, 3, v37")
        A("v_and_b32 v39, 7, v37")
        A("v_lshl_add_u32 v38, v39, 5, v38")
        A("v_add_u32 v38, s8, v38")
        A("v_and_b32 v39, 16, v1")
        A("v_cmp_ne_u32 vcc, 0, v39")
        A("v_cndmask_b32 v32, v32, v38, vcc")
        A("v_lshlrev_b32 v32, 7, v32")
        A(f"v_add_u32 v32, {KF_OFF:#x}, v32")
        A("v_lshlrev_b32 v33, 2, v1")
        srd(A, 76, "dbg", 256)
        A(f"s_mul_i32 s13, s3, 8320")
        A(f"s_add_u32 s13, s13, {KREG}")
        A(f"s_mul_i32 s82, s3, 4608")
        A(f"s_add_u32 s82, s82, {UREG}")
        A("v_add_u32 v36, 2, v25")
        A("v_lshrrev_b32 v5, 4, v1")
        A("v_and_b32 v37, 15, v1")
        A("v_lshl_add_u32 v38, v5, 3, v37")
        A("v_lshlrev_b32 v38, 1, v38")
        A("v_and_b32 v39, 1, v1")
        A("v_mul_u32_u24 v39, 4158, v39")
        A("v_sub_u32 v38, v38, v39")
        A("s_add_u32 s14, s13, 4160")
        A("v_add_u32 v16, s14, v38")
        for i in range(1, 4): A(f"v_add_u32 v{16+i}, {1024*i}, v16")
        A("v_lshlrev_b32 v38, 5, v37")
        A("v_lshlrev_b32 v39, 4, v5")
        A("v_sub_u32 v20, v39, v38")
        A("s_add_u32 s14, s82, 480")
        A("v_add_u32 v20, s14, v20")
        A("v_lshl_add_u32 v39, v5, 3, v38")
        A("s_add_u32 s14, s82, 504")
        A("v_sub_u32 v21, s14, v39")
        A("v_and_b32 v39, 1, v5")
        A("v_lshl_add_u32 v22, v39, 9, v38")
        A("v_lshrrev_b32 v39, 1, v5")
        A("v_lshl_add_u32 v22, v39, 4, v22")
        A("v_add_u32 v23, s82, v25")
        A("s_and_b32 s8, s54, 1")
        A("s_lshl_b32 s8, s8, 9")
        A("s_lshl_b32 s9, s55, 4")
        A("s_add_u32 s8, s8, s9")
        A("s_lshl_b32 s9, s3, 2")
        A("s_add_u32 s8, s8, s9")
        A("v_add_u32 v24, s8, v5")
        A("v_lshlrev_b32 v24, 11, v24")
        A("v_lshl_add_u32 v24, v37, 7, v24")
        A("v_and_b32 v38, 7, v1")
        A("v_lshlrev_b32 v38, 2, v38")
        A("v_bfe_u32 v39, v1, 3, 1")
        A("v_mul_u32_u24 v39, 4160, v39")
        A("v_add3_u32 v38, v38, v39, s13")
        A("s_lshl_b32 s80, s80, 16")
        A("v_mov_b32 v56, s80")
        A("v_cmp_eq_u32 vcc, 15, v37")
        A("v_cndmask_b32 v56, 0, v56, vcc")
        A("ds_write_b32 v38, v56")
        A("s_and_b32 s14, s88, 1")
        A("s_lshl_b32 s14, s14, 4")
        A("s_lshr_b32 s81, s81, s14")
        A("s_lshl_b32 s81, s81, 16")
    setup_conv(W)
    def cissue(st):
        A(f"s_add_u32 s11, s15, {st}")
        A("s_and_b32 s11, s11, 15")
        A("s_lshr_b32 s11, s11, 1")
        A("s_lshl_b32 s11, s11, 7")
        if "ablc" in OPT and st >= int(OPT["ablc"]): A("s_mov_b32 s11, 0")
        sr_ = "s[56:59]" if st % 2 == 0 else "s[60:63]"
        nt_ = ' nt' if 'ntc' in OPT else ''
        A("s_add_u32 s99, s11, s91")
        A(f"s_add_u32 m0, s10, {(st % NS2)*16384:#x}")
        for n in range(2):
            V.issue(f"buffer_load_dwordx4 v{VC+n}, {sr_}, s99 offen offset:{n*1024}{nt_} lds")
        A("s_add_u32 s11, s11, s90")
        A(f"s_add_u32 m0, s10, {(st % NS2)*16384 + 8192:#x}")
        for n in range(2):
            V.issue(f"buffer_load_dwordx4 v{VC+n}, {sr_}, s11 offen offset:{n*1024}{nt_} lds", ("C", st))
    def uloads():
        for i in range(4): A(f"buffer_load_dwordx4 {vr(UL+4*i,4)}, v25, s[68:71], 0 offen offset:{i*1024} sc1")
    CE = int(OPT.get("ce", 2))
    def ctouch():
        A("s_cmp_ge_u32 s3, 2")
        A(f"s_cselect_b32 s96, s{P['Cim']}, s{P['Cre']}")
        A(f"s_cselect_b32 s97, s{P['Cim']+1}, s{P['Cre']+1}")
        A("s_lshl_b32 s98, s2, 13")
        A("s_and_b32 s99, s3, 1")
        A("s_lshl_b32 s99, s99, 12")
        A("s_add_u32 s98, s98, s99")
        A("v_and_b32 v240, 31, v1")
        if "km" in OPT:
            A("s_add_u32 s96, s96, s98")
            A("s_addc_u32 s97, s97, 0")
            A("s_lshl_b32 s98, s88, 12")
            A(f"s_add_u32 s98, s{P['ssmk']}, s98")
            A(f"s_addc_u32 s99, s{P['ssmk']+1}, 0")
            A("v_mov_b32 v242, s96")
            A("v_mov_b32 v243, s97")
            A("v_mov_b32 v244, s98")
            A("v_mov_b32 v245, s99")
            A("v_cmp_lt_u32 s[96:97], 31, v1")
            A("v_cndmask_b32 v242, v242, v244, s[96:97]")
            A("v_cndmask_b32 v243, v243, v245, s[96:97]")
            A("v_lshlrev_b32 v240, 7, v240")
            A("v_add_co_u32 v242, s[96:97], v242, v240")
            A("v_addc_co_u32 v243, s[96:97], 0, v243, s[96:97]")
            V.issue("global_load_dword v241, v[242:243], off")
        else:
            A("v_lshl_add_u32 v240, v240, 7, s98")
            V.issue("global_load_dword v241, v240, s[96:97]" + str(OPT.get("cmf", "")).replace("_", " "))
    DP = [int(x) for x in str(OPT["dp"]).split(",")] if "dp" in OPT else []
    if DP:
        assert KVD and PL == DP[-1]
        A(f"s_and_b32 s89, s55, {len(DP)-1}" if len(DP) in (2, 4) else "s_mov_b32 s89, 0")
    FILL = int(OPT.get("fill", 7))
    kst = [None]
    KW = int(OPT.get("kw", 3))
    CHK = int(OPT.get("chk", 13))
    KFS = int(OPT.get("kfs", 12))
    KDS = int(OPT.get("kds", 13))
    WEND = min(KFS, KDS, 12)
    UWS = int(OPT.get("uws", 99))
    CPRE = int(OPT.get("cpre", 14))
    assert CPRE != 13 or CHK <= 13 or True
    nU = [0]; cdone = [0]; cnt_at_uw = [0]
    NC0 = int(OPT.get("nc0", 3))
    NCP = int(OPT.get("ncp", 3))
    A(f"v_mov_b32 v6, {LFLAG:#x}")
    A("v_mov_b32 v7, 0")
    A("ds_write_b32 v6, v7 offset:8")
    A("ds_write_b32 v6, v7")
    A("ds_write_b32 v6, v7 offset:4")
    A("ds_write_b32 v6, v7 offset:12")
    ST()
    A("s_waitcnt lgkmcnt(0)")
    V.wait("clr" if "ka" not in OPT else ("S", 0))
    ST()
    A("s_barrier")
    issue(2)
    for t, tag in pl[36:]: V.issue(t, tag)
    if PL < 0:
        for t, tag in pl[:36]: V.issue(t, tag)
    for s in range(N1):
        V.wait(("S", min(s+1, N1-1)))
        if kst[0] is not None and s == min(kst[0] + KW, 15): V.wait("kvt"); V.wait("g")
        A("s_barrier")
        if kst[0] is not None and s == min(kst[0] + KW, 15):
            wgflag("h_kflag", 30); print("k flag after barrier", s+1)
        blocked[0] = False
        cur[0] = s
        if s+3 < N1: issue(s+3, FILL if (s >= PREP0 and "nofill" not in OPT) else 0)
        if DP:
            if s in DP:
                gi = DP.index(s)
                A(f"s_cmp_lg_u32 s89, {gi}")
                A(f"s_cbranch_scc1 h_dp{gi}")
                n0, tg = V.n, dict(V.tags)
                kvdma(); ctouch()
                V.n, V.tags = n0, tg
                A(f"h_dp{gi}:")
            if s == DP[-1] + 1:
                V.tags["k"] = V.tags["v"] = V.n
        else:
            if s == PL:
                if KVD: kvdma()
                else:
                    for t, tag in pl[:36]: V.issue(t, tag)
            if s == int(OPT.get("cm", -1)):
                ctouch()
            if "pg" in OPT and s == int(OPT.get("cm", -1)):
                A("s_getpc_b64 s[96:97]")
                A("h_pc:")
                A(f"s_sub_u32 s96, s96, h_pc-{KN}")
                A("s_subb_u32 s97, s97, 0")
                A("s_lshl_b32 s98, s3, 13")
                A("s_add_u32 s98, s98, 0x2000")
                A("v_lshl_add_u32 v240, v1, 7, s98")
                A("v_min_u32 v240, CODE_LAST, v240")
                V.issue("global_load_dword v241, v240, s[96:97]")
            if KVL and s == int(OPT.get("cls", OPT.get("cm", 6))):
                A("v_lshlrev_b32 v246, 2, v1")
                V.issue(f"global_load_dword v247, v246, {sp('dbg')} sc1", "cls")
        if "xe" in OPT and s == int(OPT["xe"]):
            A("s_lshl_b32 s98, s4, 2")
            A("s_add_u32 s98, s98, s3")
            A("s_lshl_b32 s98, s98, 5")
            A("v_lshrrev_b32 v248, 3, v1")
            A("v_add_u32 v248, s98, v248")
            A("v_lshlrev_b32 v248, 11, v248")
            A("v_and_b32 v249, 7, v1")
            A("v_lshl_add_u32 v248, v249, 4, v248")
            A("s_lshl_b32 s98, s5, 7")
            A("v_add_u32 v248, s98, v248")
            for i in range(4):
                A(f"s_mov_b32 s98, {i*16384}")
                V.issue(f"buffer_load_dwordx4 {vr(224+4*i,4)}, v248, s[56:59], s98 offen")
        if kst[0] is None and "kvt" in V.tags and "g" in V.tags: kst[0] = s
        if s == WEND:
            do_work(10000)
            assert wpos[0] == len(work), (wpos[0], len(work))
        if s == KFS:
            V.issue("buffer_load_dword v34, v33, s[76:79], 0 offen sc1")
            V.issue("buffer_load_dword v35, v32, s[92:95], 0 offen sc1", "kf")
            ST()
        if s == KDS:
            V.wait("g")
            NTK = " nt" if "ntp" in OPT else ""
            A("s_add_u32 m0, s13, 32")
            for i in range(4): V.issue(f"buffer_load_dwordx4 v25, s[64:67], 0 offen offset:{i*1024}{NTK} lds")
            A("s_add_u32 m0, s13, 4192")
            for i in range(4): V.issue(f"buffer_load_dwordx4 v36, s[64:67], 0 offen offset:{i*1024}{NTK} lds", "K")
        if s == 13:
            srd(A, 56, "Cre", 2 << 20)
            srd(A, 60, "Cim", 2 << 20)
            A("s_lshl_b32 s10, s3, 11")
            A(f"s_add_u32 s10, s10, {CRING:#x}")
            A("s_lshr_b32 s90, s5, 3")
            A("s_xor_b32 s91, s90, 1")
            A("s_lshl_b32 s91, s91, 20")
            A("s_lshl_b32 s11, s90, 10")
            A("s_add_u32 s91, s91, s11")
            A("s_mul_i32 s90, s90, 0x100400")
            if "etouch" in OPT:
                V.issue("buffer_load_dword v58, v24, s[56:59], 0 offen")
                V.issue("buffer_load_dword v59, v24, s[60:63], 0 offen")
            A("v_mov_b32 v56, 0")
            A("v_mov_b32 v57, 0")
            A("v_lshlrev_b32 v38, 3, v1")
            A("v_add_u32 v38, s82, v38")
            A("ds_write_b64 v38, v[56:57] offset:4096")
            ST()
        if s == 13: visit(A, [[int(x)] for x in str(OPT.get("pgh", "")).split(",") if x])
        if s == CHK:
            V.wait("kf")
            A("s_mov_b32 s83, 0")
            A("v_and_b32 v34, 15, v34")
            A("v_cmp_ne_u32 vcc, 15, v34")
            A("v_cmp_ne_u32 s[84:85], 1, v35")
            A("s_or_b64 vcc, vcc, s[84:85]")
            A("s_cbranch_scc1 h_nou")
            A("s_mov_b32 s83, 1")
            uloads()
            A("h_nou:")
            nU[0] = V.n
        if s == UWS:
            A("s_cmp_lg_u32 s83, 1")
            A("s_cbranch_scc1 h_nouw")
            A(f"s_waitcnt vmcnt({V.n - nU[0]})")
            for i in range(4): A(f"ds_write_b128 v23, {vr(UL+4*i,4)} offset:{1024*i}")
            A("s_mov_b32 s83, 2")
            A("h_nouw:")
            cnt_at_uw[0] = nU[0]
        if CPRE == 13 and s == 13: cissue(0); cissue(1); cdone[0] = 2
        if CPRE == 13 and s == 14: cissue(2); cdone[0] = 3
        if CPRE in (14, 15) and s == CPRE:
            for z in range(NC0): cissue(z)
            cdone[0] = NC0
    ST()
    if "hprio" in OPT: A("s_setprio 0")
    if UWS < 16:
        A("s_cmp_eq_u32 s83, 2")
        A("s_cbranch_scc1 h_uw2")
    A("s_cmp_lg_u32 s83, 0")
    A("s_cbranch_scc1 h_haveu")
    spin_all_ones(A, "h_init", 34, "buffer_load_dword v34, v33, s[76:79], 0 offen sc1", "15", pre="v_and_b32 v34, 15, v34")
    spin_all_ones(A, "h_kf", 35, "buffer_load_dword v35, v32, s[92:95], 0 offen sc1")
    uloads()
    A("s_waitcnt vmcnt(0)")
    A("s_branch h_u2")
    A("h_haveu:")
    A(f"s_waitcnt vmcnt({V.n - nU[0]})")
    A("h_u2:")
    V.done = max(V.done, nU[0])
    if CPRE == 16:
        for z in range(NC0): cissue(z)
        cdone[0] = NC0
    for i in range(4): A(f"ds_write_b128 v23, {vr(UL+4*i,4)} offset:{1024*i}")
    if UWS < 16:
        A("s_branch h_uw3")
        A("h_uw2:")
        A(f"s_waitcnt vmcnt({V.n - cnt_at_uw[0]})")
        A("h_uw3:")
    A("s_waitcnt lgkmcnt(0)")
    ST()
    ops = []
    def reads(r):
        L = []
        s = r & 1
        for i in range(8):
            L.append((f"ds_read_b128 {vr(BF+s*32+i*4,4)}, v20 offset:{3584-512*i+64*r}", ("B", r, i)))
            o = 128*(i & 1) + 16*r
            d = AFR + s*32 + i*4
            L.append((f"ds_read2_b32 {vr(d,2)}, v{16+(i>>1)} offset0:{o} offset1:{o+1}", None))
            L.append((f"ds_read2_b32 {vr(d+2,2)}, v{16+(i>>1)} offset0:{o+2} offset1:{o+3}", ("A", r, i)))
        return L
    def first_order(L):
        return L[1:3] + [L[3*i] for i in range(8)] + [x for i in range(1, 8) for x in L[3*i+1:3*i+3]]
    for t, tag in first_order(reads(0)): ops.append(("rd", t, tag))
    for r in range(8):
        s = r & 1
        nxt = first_order(reads(r+1)) if r < 7 else [(f"ds_read_b64 {vr(BF+(s^1)*32+2*n,2)}, v21 offset:{3584-512*n}", ("KV", n)) for n in range(8)]
        cnt = 0
        for q in range(8):
            for n in range(q, 8):
                c = vr(ACC+4*n, 4)
                ops.append(("mf", f"v_mfma_f32_16x16x32_bf16 {c}, {vr(AFR+s*32+4*q,4)}, {vr(BF+s*32+4*(n-q),4)}, {'0' if (r == 0 and q == 0) else c}",
                            [("A", r, q), ("B", r, n-q)]))
                cnt += 1
                if nxt and cnt >= 2:
                    t, tag = nxt.pop(0); ops.append(("rd", t, tag))
        assert not nxt
    if "pz" in OPT:
        PZ = int(OPT["pz"]) if OPT["pz"] != 1 else 9
        new_ops = []; cnt = 0; k = 0
        new_ops.append(("rd", "ds_read_b32 v63, v62 offset:16", ("Z", 0)))
        for op in ops:
            if op[0] == "mf":
                if cnt % PZ == 0:
                    new_ops.append(("chk", k)); k += 1
                    new_ops.append(("rd", "ds_read_b32 v63, v62 offset:16", ("Z", k)))
                cnt += 1
            new_ops.append(op)
        ops[:] = new_ops
        A("s_lshl_b32 s8, s3, 2")
        A(f"s_add_u32 s8, s8, {LFLAG:#x}")
        A("v_mov_b32 v62, s8")
    pzslow = []
    class LQ: n = 0; tags = {}; done = 0
    def emit(op):
        if op[0] == "chk":
            k = LQ.tags[("Z", op[1])]
            if k > LQ.done:
                A(f"s_waitcnt lgkmcnt({min(15, LQ.n - k)})"); LQ.done = max(k, LQ.n - 15)
            A("v_readfirstlane_b32 s83, v63")
            A("s_cmp_lg_u32 s83, 0")
            A(f"s_cbranch_scc1 h_pz{op[1]}_s")
            A(f"h_pz{op[1]}:")
            pzslow.append(op[1])
            return
        if op[0] == "rd":
            A(op[1]); LQ.n += 1
            if op[2] is not None: LQ.tags[op[2]] = LQ.n
        elif op[0] == "mf":
            k = max(LQ.tags[t] for t in op[2])
            if k > LQ.done:
                A(f"s_waitcnt lgkmcnt({min(15, LQ.n - k)})"); LQ.done = max(k, LQ.n - 15)
            A(op[1])
        else:
            op[1]()
    NMF = len(ops)
    KVR = BF
    ystores = []
    def T(text):
        for t1 in text.split("\n"): ops.append(("fn", lambda t1=t1: A(t1)))
    T("s_mov_b32 s12, 0xffff0000"); T("s_waitcnt lgkmcnt(0)"); T("v_mov_b32 v26, s81"); T("v_mov_b32 v27, s81")
    for n in range(8):
        y = ACC + 4*n
        t = 128 + (n & 1)*12
        T(f"v_and_b32 v{t}, s12, v{KVR+2*n+1}"); T(f"v_lshlrev_b32 v{t+1}, 16, v{KVR+2*n+1}")
        T(f"v_and_b32 v{t+2}, s12, v{KVR+2*n}"); T(f"v_lshlrev_b32 v{t+3}, 16, v{KVR+2*n}")
        T(pk("mul", t, t, 26)); T(pk("mul", t+2, t+2, 26))
        for pr in (t, t+2, y, y+2):
            T(f"v_cvt_pk_bf16_f32 v{t+4}, v{pr}, v{pr+1}"); T(f"v_lshlrev_b32 v{pr}, 16, v{t+4}"); T(f"v_and_b32 v{pr+1}, s12, v{t+4}")
        T(pk("add", t, t, y)); T(pk("add", t+2, t+2, y+2))
        d = 160 + (n >> 1)*4 + (n & 1)*2
        T(f"v_cvt_pk_bf16_f32 v{d}, v{t}, v{t+1}"); T(f"v_cvt_pk_bf16_f32 v{d+1}, v{t+2}, v{t+3}")
        if n & 1:
            d = 160 + (n >> 1)*4
            T(f"v_permlane16_swap_b32 v{d}, v{d+2}"); T(f"v_permlane16_swap_b32 v{d+1}, v{d+3}")
            yst_ = f"buffer_store_dwordx4 {vr(d,4)}, v22, s[84:87], 0 offen offset:{(n>>1)*1024} sc1"
            if "yinl" in OPT: ops.append(("fn", lambda t1=yst_: V.issue(t1, "y2")))
            else: ystores.append(yst_)
    pos = [0]
    def run_ops(budget, lim=1 << 30):
        while pos[0] < min(len(ops), lim) and budget > 0:
            op = ops[pos[0]]; pos[0] += 1
            emit(op)
            budget -= 4 if op[0] == "mf" else 1
    if "cl" in OPT:
        A(f"v_mov_b32 v60, {LFLAG:#x}")
        A(f"s_mov_b32 s89, {SPIN*4}")
        A("h_cl:")
        A("ds_read_b32 v62, v60 offset:8")
        A("s_waitcnt lgkmcnt(0)")
        A("v_readfirstlane_b32 s83, v62")
        A("s_cmp_ge_u32 s83, 4")
        A("s_cbranch_scc1 h_clok")
        A("s_sub_u32 s89, s89, 1")
        A("s_cbranch_scc1 h_clok")
        A("s_sleep 1")
        A("s_branch h_cl")
        A("h_clok:")
        run_ops(int(OPT.get("p0", 300)))
    PACE = int(OPT.get("pace", 190))
    NPRE = int(OPT.get("npre", 230))
    mfidx = [i for i, op in enumerate(ops[:NMF]) if op[0] == "mf"]
    LIM0 = NMF if NPRE >= len(mfidx) else mfidx[NPRE]
    if "nopzl" not in OPT:
        keep = ops[:LIM0] + [op for op in ops[LIM0:NMF] if not (op[0] == "chk" or (op[0] == "rd" and op[2] is not None and op[2][0] == "Z"))] + ops[NMF:]
        NMF -= len(ops) - len(keep); ops[:] = keep
    def late_c():
        while cdone[0] < NCP: cissue(cdone[0]); cdone[0] += 1
    LATEC = int(OPT.get("latec", 1 << 30))
    if LATEC < len(mfidx) and mfidx[LATEC] < LIM0:
        while pos[0] < mfidx[LATEC]: run_ops(PACE, mfidx[LATEC])
        late_c()
    while pos[0] < LIM0:
        run_ops(PACE, LIM0)
    late_c()
    ST()
    def yflag():
        V.wait("y2")
        A("s_mov_b64 exec, 1")
        A("ds_add_rtn_u32 v62, v60, v61 offset:4")
        A("s_mov_b64 exec, -1")
        A("s_waitcnt lgkmcnt(0)")
        A("v_readfirstlane_b32 s83, v62")
        A("s_cmp_lg_u32 s83, 3")
        A("s_cbranch_scc1 h_noy")
        A("buffer_store_dword v61, v31, s[92:95], 0 offen sc1")
        A("h_noy:")
    XR, GR, DK, YR, OM, TM = 64, 228, 224, 116, 132, 148
    VYW, VYR, VYF = 44, 45, 46
    EW = []
    def E(t):
        if callable(t): EW.append(t)
        else: EW.extend(t.split("\n"))
    YC = "yc" in OPT
    def esetup(E):
        E("s_lshl_b32 s6, s4, 2")
        E("s_add_u32 s6, s6, s3")
        E("s_lshl_b32 s7, s6, 5")
        E("v_lshrrev_b32 v6, 5, v1")
        E("v_and_b32 v4, 31, v1")
        E("v_lshl_add_u32 v7, v6, 4, s7")
        E("s_lshl_b32 s8, s5, 6")
        E("v_add_u32 v8, s8, v4")
        E("v_lshlrev_b32 v9, 1, v8")
        E("v_lshlrev_b32 v12, 2, v7")
        E("v_lshlrev_b32 v13, 12, v8")
        E("v_lshl_add_u32 v13, v7, 1, v13")
        E("v_add_u32 v15, 0x20000, v13")
        E("s_lshl_b32 s9, s5, 11")
        E(f"s_add_u32 s9, s9, {YF_OFF:#x}")
        E(f"v_and_b32 v{VYF}, 15, v1")
        E(f"v_lshl_add_u32 v{VYF}, v{VYF}, 7, s9")
        E("v_lshrrev_b32 v10, 3, v1")
        E("v_add_u32 v10, s7, v10")
        E("v_lshlrev_b32 v10, 11, v10")
        E("v_and_b32 v11, 7, v1")
        E("v_lshl_add_u32 v10, v11, 4, v10")
        E("s_lshl_b32 s8, s5, 7")
        E("v_add_u32 v10, s8, v10")
        E("v_lshlrev_b32 v11, 11, v6")
        E("v_lshl_add_u32 v11, v4, 1, v11")
        if "ypre" in OPT: E("v_add_u32 v11, s82, v11")
        else:
            E("s_lshl_b32 s8, s3, 12")
            E("v_add_u32 v11, s8, v11")
        E("v_add_u32 v14, s13, v25")
        if YC:
            E("v_lshrrev_b32 v13, 4, v1")
            E("s_lshl_b32 s8, s3, 4")
            E("v_add_u32 v13, s8, v13")
            E("v_and_b32 v15, 15, v1")
            E("v_lshlrev_b32 v15, 4, v15")
            E(f"v_mul_u32_u24 v{VYW}, 272, v13")
            E(f"v_add_u32 v{VYW}, v{VYW}, v15")
            E("s_lshl_b32 s8, s5, 6")
            E("v_add_u32 v13, s8, v13")
            E("v_lshl_add_u32 v13, v13, 12, v15")
            E("s_lshl_b32 s8, s4, 8")
            E("v_add_u32 v13, s8, v13")
            E(f"v_mul_u32_u24 v{VYR}, 272, v4")
            E(f"v_lshl_add_u32 v{VYR}, v6, 5, v{VYR}")
            E("s_lshl_b32 s8, s3, 6")
            E(f"v_add_u32 v{VYR}, s8, v{VYR}")
        srd(E, 64, "x", 4 << 20)
        srd(E, 68, "ws", 4 << 20, WS_KVT)
        srd(E, 72, "ws", 8192, WS_G)
    def tail_setup(X):
        for i in range(4): X(f"s_mov_b32 s{84+i}, s{68+i}")
        X(f"v_mov_b32 v60, {LFLAG:#x}")
        X("v_mov_b32 v61, 1")
        esetup(X)
    def xg_loads():
        if "ypre" in OPT:
            A("s_waitcnt lgkmcnt(0)")
            A("s_mov_b32 s9, s82")
        else: A("s_lshl_b32 s9, s3, 12")
        for i in range(4):
            A(f"s_add_u32 m0, s9, {i*1024}")
            A(f"s_mov_b32 s8, {i*16384}")
            V.issue("buffer_load_dwordx4 v10, s[64:67], s8 offen lds")
        for q in range(4):
            V.issue(f"buffer_load_dwordx4 {vr(GR+q*4,4)}, v12, s[72:75], 0 offen offset:{q*16} sc1")
        for q in range(2):
            V.issue(f"global_load_ushort v{DK+q}, v9, {sp('Dskip')} offset:{q*64}", "xg")
    YFL_LD = f"buffer_load_dword v19, v{VYF}, s[92:95], 0 offen sc1"
    def yloads():
        A(YFL_LD)
        A("s_waitcnt vmcnt(0)")
        spin_all_ones(A, "h_yf", 19, YFL_LD)
        for i in range(4):
            A(f"s_mov_b32 s8, {i*16384}")
            V.issue(f"buffer_load_dwordx4 {vr(YR+i*4,4)}, v13, s[68:71], s8 offen sc1", "eps")
    YPRE = "ypre" in OPT
    def yloads_pre():
        V.wait("yf")
        spin_all_ones(A, "h_yf", 19, YFL_LD)
        for i in range(4):
            A(f"s_mov_b32 s8, {i*16384}")
            V.issue(f"buffer_load_dwordx4 {vr(YR+i*4,4)}, v13, s[68:71], s8 offen sc1", "eps")
    if YPRE:
        run_ops(1 << 30)
        tail_setup(A)
        if "ywait" in OPT:
            A(f"s_mov_b32 s89, {SPIN*4}\nh_lf:\nds_read_b32 v62, v60 offset:12\ns_waitcnt lgkmcnt(0)\nv_readfirstlane_b32 s83, v62\ns_cmp_ge_u32 s83, 4\ns_cbranch_scc1 h_lfok\ns_sub_u32 s89, s89, 1\ns_cbranch_scc0 h_lf\nh_lfok:")
        for t in ystores:
            if "noy2" in OPT: V.tags["y2"] = V.n
            else: V.issue(t, "y2")
        if "xglate" not in OPT: xg_loads()
    else:
        tail_setup(A)
    V.wait(("C", 0))
    ST()
    if "hprio2" in OPT: A(f"s_setprio {OPT['hprio2']}")
    A("s_barrier")
    STH = Stamper(A, 1, 249)
    STH()
    XGS = int(OPT.get("xgs", -1))
    if YPRE and "xglate" not in OPT: XGS = 99
    if XGS < 0: xg_loads()
    def rndE(pair, tmp):
        E(f"v_cvt_pk_bf16_f32 v{tmp}, v{pair}, v{pair+1}")
        E(f"v_lshlrev_b32 v{pair}, 16, v{tmp}")
        E(f"v_and_b32 v{pair+1}, s12, v{tmp}")
    XD = 176
    E(lambda: V.wait("xg"))
    for nt in range(2):
        for r in range(16):
            E(f"ds_read_u16 v{XR+nt*16+r}, v11 offset:{r*128+nt*64}")
    E("s_waitcnt lgkmcnt(0)")
    E("XREAD")
    E("s_mov_b32 s12, 0xffff0000")
    for r in range(16):
        E(f"v_and_b32 v{OM+r}, s12, v{GR+r}")
        E(f"v_lshlrev_b32 v{GR+r}, 16, v{GR+r}")
    for i in range(4): E(f"ds_write_b128 v23, {vr(GR+4*i,4)} offset:{1024*i}")
    E(f"v_lshlrev_b32 v{DK}, 16, v{DK}")
    E(f"v_lshlrev_b32 v{DK+1}, 16, v{DK+1}")
    def zipE(chains):
        chains = [[x for t in c for x in t.split("\n")] for c in chains]
        for i in range(max(len(c) for c in chains)):
            for c in chains:
                if i < len(c): E(c[i])
    def rndT(pair, tmp):
        return [f"v_cvt_pk_bf16_f32 v{tmp}, v{pair}, v{pair+1}", f"v_lshlrev_b32 v{pair}, 16, v{tmp}", f"v_and_b32 v{pair+1}, s12, v{tmp}"]
    for nt in range(2):
        for m0 in range(0, 8, 4):
            ch = []
            for m in range(m0, m0 + 4):
                xf = XR + nt*16 + 2*m; xd = XD + nt*16 + 2*m
                ch.append([f"v_lshlrev_b32 v{xf}, 16, v{xf}", f"v_lshlrev_b32 v{xf+1}, 16, v{xf+1}", pk("mul", xd, xf, DK, bsel=nt)] + rndT(xd, TM + (m & 3)) + [pk("mul", xd, xd, GR+2*m)])
            zipE(ch)
    EW1 = list(EW); EW.clear()
    E(lambda: V.wait("eps"))
    for i in range(4): E(f"ds_write_b128 v{VYW}, {vr(YR+i*4,4)} offset:{i*4*272}")
    E("s_waitcnt lgkmcnt(0)")
    E("s_mov_b64 exec, 1\nds_add_u32 v60, v61 offset:8\ns_mov_b64 exec, -1")
    E(f"s_mov_b32 s89, {SPIN*4}\nh_yx:\nds_read_b32 v62, v60 offset:8\ns_waitcnt lgkmcnt(0)\nv_readfirstlane_b32 s83, v62\ns_cmp_ge_u32 s83, 4\ns_cbranch_scc1 h_yxok\ns_sub_u32 s89, s89, 1\ns_cbranch_scc0 h_yx\nh_yxok:")
    for nt in range(2):
        for hf in range(2): E(f"ds_read_b128 {vr(YR+nt*8+hf*4,4)}, v{VYR} offset:{nt*32*272 + hf*16}")
    E("s_waitcnt lgkmcnt(0)")
    for nt in range(2):
        for m0 in range(0, 8, 4):
            ch = []
            for m in range(m0, m0 + 4):
                b = TM + (m & 3)*4
                yy, tm = b, b+2
                xf = XR + nt*16 + 2*m; xd = XD + nt*16 + 2*m
                ch.append([f"v_lshlrev_b32 v{yy}, 16, v{YR+nt*8+m}", f"v_and_b32 v{yy+1}, s12, v{YR+nt*8+m}", pk("mul", yy, xf, yy)] + rndT(yy, tm)
                          + [pk("mul", yy, yy, OM+2*m)] + rndT(yy, tm) + [pk("add", xd, xd, yy)])
            zipE(ch)
            for m in (m0 + 1, m0 + 3):
                xd = XD + nt*16 + 2*m
                E(f"ds_write_b128 v14, {vr(xd-2,4)} offset:{(nt*4+(m>>1))*1024}")
    E("s_waitcnt lgkmcnt(0)")
    EW2 = list(EW); EW.clear(); EW.extend(EW1)
    epos = [0]
    xread = [None]
    def ework(n):
        while n > 0 and epos[0] < len(EW):
            w = EW[epos[0]]
            epos[0] += 1
            if w == "XREAD":
                xread[0] = cur_st[0]; continue
            if callable(w): w()
            else: A(w)
            n -= 1
    cur_st = [0]
    EPER = int(OPT.get("eper", 60))
    CONVPER = int(OPT.get("convper", 44))
    POSTPER = int(OPT.get("postper", 80))
    YST = int(OPT.get("yst", 12))
    YINL = "yinl" in OPT
    XST = int(OPT.get("xst", 0))
    ydone = None; yfl = False; yld = False
    YPS = int(OPT.get("yps", 99))
    e2pos = [0]
    i0 = next(i for i, w in enumerate(EW2) if isinstance(w, str) and w.startswith("s_mov_b64 exec, 1"))
    i1 = next(i for i, w in enumerate(EW2) if w == "h_yxok:")
    def e2hold(i): return i0 < i <= i1
    for st in range(N2-1):
        cur_st[0] = st
        if pos[0] < NMF: run_ops(CONVPER, NMF)
        elif pos[0] < len(ops): run_ops(POSTPER)
        elif st >= XST and "xg" in V.tags and epos[0] < len(EW): ework(EPER)
        elif yld and st >= YPS and epos[0] >= len(EW):
            n_ = EPER
            while n_ > 0 and e2pos[0] < len(EW2):
                w = EW2[e2pos[0]]; e2pos[0] += 1
                if callable(w): w()
                else: A(w)
                n_ -= 1
                while e2pos[0] < len(EW2) and isinstance(EW2[e2pos[0]], str) and e2hold(e2pos[0]):
                    A(EW2[e2pos[0]]); e2pos[0] += 1
            if e2pos[0] >= len(EW2): print("R done in stage", st)
        if YINL and ydone is None and pos[0] >= len(ops): ydone = st; print("last y2 store in stage", st)
        FH = OPT.get("fineh", "")
        if (FH == "a" and st < 14) or (FH == "ab" and st < 7): STH()
        V.wait(("C", st+1))
        if (FH == "b" and st < 14) or (FH == "ab" and st < 7): STH()
        A("s_barrier")
        if NCP <= st + NS2 - 1 < N2: cissue(st + NS2 - 1)
        if st == XGS: xg_loads()
        if not YPRE and not YINL and pos[0] >= len(ops) and ydone is None and st >= YST:
            for t in ystores: V.issue(t, "y2")
            ydone = st; print("y2 stores after barrier", st + 1)
        if YPRE and ydone is None: ydone = -1
        if ydone is not None and not yfl and st >= ydone + int(OPT.get("yfl", 3)):
            yflag(); yfl = True; print("y flag after barrier", st + 1)
        if yfl and st == int(OPT.get("gyf", 12)): V.issue(YFL_LD, "yf")
        if yfl and "yf" in V.tags and st == int(OPT.get("gyl", 13)):
            yloads_pre(); yld = True; print("y loads after barrier", st + 1)
        if pos[0] >= NMF and "convend" not in V.tags: V.tags["convend"] = 0; print("conv MFMAs done in stage", st)
    assert ydone is not None and (xread[0] is None or xread[0] <= N2 - 2), (pos[0], len(ops), epos[0], len(EW), xread)
    print("x read in stage", xread[0], " leftover x-part items", len(EW) - epos[0])
    cur_st[0] = 99
    if not yfl: yflag()
    if not yld and "yearly" in OPT: yloads(); yld = True
    if xread[0] is None:
        EW[EW.index("XREAD")] = "XSYNC"
    def ework_all():
        while epos[0] < len(EW):
            w = EW[epos[0]]; epos[0] += 1
            if w == "XREAD": continue
            if w == "XSYNC":
                A("s_mov_b64 exec, 1\nds_add_u32 v60, v61 offset:8\ns_mov_b64 exec, -1"); xs[0] = 4; continue
            if callable(w): w()
            else: A(w)
    xs = [0]
    ework_all()
    ST()
    if not yld: yloads()
    ST()
    for w in EW2[e2pos[0]:]:
        if isinstance(w, str) and w.startswith("s_cmp_ge_u32 s83, 4") and xs[0]: w = "s_cmp_ge_u32 s83, 8"
        if isinstance(w, str) and w.startswith("ds_write_b128 v%d" % VYW) and xs[0] == 4:
            A(f"s_mov_b32 s89, {SPIN*4}\nh_xs:\nds_read_b32 v62, v60 offset:8\ns_waitcnt lgkmcnt(0)\nv_readfirstlane_b32 s83, v62\ns_cmp_ge_u32 s83, 4\ns_cbranch_scc1 h_xsok\ns_sub_u32 s89, s89, 1\ns_cbranch_scc0 h_xs\nh_xsok:")
            xs[0] = 5
        if callable(w): w()
        else: A(w)
    ST()
    A("s_barrier")
    STH.flush()
    ST.flush()
    A("s_endpgm")
    for k in pzslow:
        A(f"h_pz{k}_s:")
        A(f"s_mov_b32 s89, {SPIN*4}")
        A(f"h_pz{k}_l:")
        A("s_sleep 1")
        A("ds_read_b32 v63, v62 offset:16")
        A("s_waitcnt lgkmcnt(0)")
        A("v_readfirstlane_b32 s83, v63")
        A("s_cmp_eq_u32 s83, 0")
        A(f"s_cbranch_scc1 h_pz{k}")
        A("s_sub_u32 s89, s89, 1")
        A(f"s_cbranch_scc1 h_pz{k}")
        A(f"s_branch h_pz{k}_l")

def build():
    s = header_comments()
    s += "; generated by tools/gen8.py (fused single kernel, split-K GEMM2)\n"
    s += "; @launch grid=(256,1,1) block=(512,1,1) lds=163840\n"
    s += '.amdgcn_target "amdgcn-amd-amdhsa--gfx950"\n.text\n'
    A = Asm()
    A.raw(f".globl {KN}\n.p2align 8\n.type {KN},@function")
    gen_kernel(A)
    s += A.render()
    s += descriptor(KN, 256, 102)
    import subprocess, tempfile, re
    def assemble(text):
        with tempfile.TemporaryDirectory() as td:
            open(td + "/a.s", "w").write(text)
            subprocess.run(["clang", "-x", "assembler", "-target", "amdgcn-amd-amdhsa", "-mcpu=gfx950", "-c", td + "/a.s", "-o", td + "/a.o"], check=True)
            o = subprocess.run(["llvm-objdump", "-h", "-d", td + "/a.o"], capture_output=True, text=True).stdout
        return o
    probe = re.sub(r"PGHI\(\d+,\w+\)", "0", re.sub(r"PGOFF\(\d+,\w+\)", "0x12345", s.replace("CODE_LAST", "0x12345")))
    o = assemble(probe)
    size = int(re.search(r"\.text\s+([0-9a-f]+)", o).group(1), 16)
    if "pg" in OPT:
        sizes = [4 * len(m.group(1).split()) for m in re.finditer(r"// [0-9A-F]+: ([0-9A-F ]+)$", o, re.M)]
        lines = s.split("\n"); out = []; addr = 0; k = 0; npg = 0; incode = False; prev = ""; laddr = {}
        for ln in lines:
            st = ln.strip()
            if st == f"{KN}:": incode = True
            if st.startswith(".section"): incode = False
            if incode and ln.startswith("    ") and st and not st.startswith(";"):
                sz = sizes[k]; k += 1
                if (addr % 4096) + sz + 4 > 4096:
                    npg += 1
                    labs = []
                    while out and out[-1].strip().endswith(":"): labs.insert(0, out.pop())
                    if not prev.startswith(("s_endpgm", "s_branch")): out.append(f"    s_branch PGS{npg}"); addr += 4
                    while addr % 4096: out.append("    s_nop 0"); addr += 4
                    out.append("    s_setpc_b64 s[98:99]"); addr += 4
                    out.append(f"PGS{npg}:")
                    out += labs
                    for l_ in labs: laddr[l_.strip()[:-1]] = addr
                addr += sz; prev = st
            if st.endswith(":"): laddr[st[:-1]] = addr
            out.append(ln)
        assert k == len(sizes), (k, len(sizes))
        s = "\n".join(out).replace(".p2align 8\n.type", ".p2align 12\n.type")
        s = re.sub(r"PGOFF\((\d+),(\w+)\)", lambda m: hex((int(m.group(1))*4096 - laddr[m.group(2)]) & 0xffffffff), s)
        s = re.sub(r"PGHI\((\d+),(\w+)\)", lambda m: "0" if int(m.group(1))*4096 >= laddr[m.group(2)] else "-1", s)
        print({k: hex(v) for k, v in laddr.items() if k in ("L_consumer", "c_poll", "c_polled", "c_hf_chk", "h_haveu", "h_lf", "c_noflag", "c_init_chk")})
        size = addr
        print("page stubs", npg)
    print("code bytes", size)
    assert size <= 65536
    return s.replace("CODE_LAST", hex(size - 4))

if __name__ == "__main__":
    out = sys.argv[1] if len(sys.argv) > 1 and not sys.argv[1].startswith("--") else os.path.join(os.path.dirname(os.path.abspath(__file__)), "..", NAME + ".s")
    open(out, "w").write(build())
    print("wrote", out)
```

```python
import sys, os
sys.path.insert(0, os.path.dirname(os.path.abspath(__file__)))
from asmlib import Asm
from gen import (NAME, P, sp, vr, sr, load_kernargs, srd, pk, cmul, tile_ids, Stamper, OPT, header_comments, descriptor)
import gen

KN = NAME + "_kernel"
WS_H    = 0
WS_KVT  = 8 << 20
WS_G    = 16 << 20
WS_EBOX = 17 << 20
WS_FLG  = 18 << 20
HF_OFF  = 0
KF_OFF  = 128 << 10
YF_OFF  = 160 << 10
PF_OFF  = 192 << 10
FLG_SZ  = 320 << 10
WS_PART = 24 << 20
N1 = 16
N2 = 16
NS2 = 4
PD = 4
CRING = 32768
KREG = 98304
UREG = KREG + 4*8320
LFLAG = UREG + 4*4608
SPIN = int(OPT.get("spin", 1 << 16))
SLEEP = int(OPT.get("sleep", 4))
def opt(k, d): return int(OPT.get(k, d))

class VQ:
    def __init__(self, A): self.A = A; self.n = 0; self.tags = {}; self.done = 0
    def issue(self, text, tag=None):
        self.A(text); self.n += 1
        if tag is not None: self.tags[tag] = self.n
    def wait(self, tag):
        k = self.tags[tag]
        if k <= self.done: return
        cnt = min(63, self.n - k)
        self.A(f"s_waitcnt vmcnt({cnt})"); self.done = self.n - cnt
    def drained(self): self.done = self.n

class LQ:
    def __init__(self, A): self.A = A; self.n = 0; self.tags = {}; self.done = 0
    def issue(self, text, tag=None):
        self.A(text); self.n += 1
        if tag is not None: self.tags[tag] = self.n
    def wait(self, tag):
        k = self.tags[tag]
        if k > self.done:
            self.A(f"s_waitcnt lgkmcnt({min(15, self.n - k)})"); self.done = max(k, self.n - 15)
    def drain(self):
        self.A("s_waitcnt lgkmcnt(0)"); self.done = self.n

def spin_all(A, name, vreg, reload, cmpval="1", sctr=89, pre=None):
    A(f"s_mov_b32 s{sctr}, {SPIN}")
    A(f"{name}_chk:")
    if pre: A(pre)
    A(f"v_cmp_ne_u32 vcc, {cmpval}, v{vreg}")
    A("s_cmp_eq_u64 vcc, 0")
    A(f"s_cbranch_scc1 {name}_ok")
    A(f"s_sub_u32 s{sctr}, s{sctr}, 1")
    A(f"s_cbranch_scc1 {name}_ok")
    A(f"s_sleep {SLEEP}")
    A(reload)
    A("s_waitcnt vmcnt(0)")
    A(f"s_branch {name}_chk")
    A(f"{name}_ok:")

def lds_spin(A, name, vaddr, off, vtmp, target, stmp=8, sctr=89):
    A(f"s_mov_b32 s{sctr}, {SPIN*4}")
    A(f"{name}:")
    A(f"ds_read_b32 v{vtmp}, v{vaddr} offset:{off}")
    A("s_waitcnt lgkmcnt(0)")
    A(f"v_readfirstlane_b32 s{stmp}, v{vtmp}")
    A(f"s_cmp_ge_u32 s{stmp}, {target}")
    A(f"s_cbranch_scc1 {name}_ok")
    A(f"s_sub_u32 s{sctr}, s{sctr}, 1")
    A(f"s_cbranch_scc0 {name}")
    A(f"{name}_ok:")

def lds_inc(A, vaddr, vone, off):
    A("s_mov_b64 exec, 1")
    A(f"ds_add_u32 v{vaddr}, v{vone} offset:{off}")
    A("s_mov_b64 exec, -1")

def zip_chains(A, chains):
    chains = [[x for t in c for x in t.split("\n")] for c in chains]
    for i in range(max(len(c) for c in chains)):
        for c in chains:
            if i < len(c): A(c[i])

def local_check(A, vbits, vtmp, sdst_pair, stmp):
    A(f"s_getreg_b32 s{stmp}, hwreg(HW_REG_XCC_ID, 0, 4)")
    A(f"s_lshl_b32 s{stmp}, 0x100, s{stmp}")
    A(f"s_or_b32 s{stmp}, s{stmp}, 15")
    A(f"v_and_b32 v{vtmp}, 7, v1")
    A(f"v_cmp_eq_u32 s[{sdst_pair}:{sdst_pair+1}], s54, v{vtmp}")
    A(f"v_cmp_ne_u32 vcc, s{stmp}, v{vbits}")
    A(f"s_and_b64 vcc, vcc, s[{sdst_pair}:{sdst_pair+1}]")

ORD = opt("ord", 1)
def tile_of(A, i, dst):
    if i == 0: A(f"s_mov_b32 s{dst}, s15")
    elif ORD:
        A(f"s_cmp_le_u32 s15, {i-1}")
        A(f"s_cselect_b32 s{dst}, {i}, {i-1}")
    else:
        A(f"s_add_u32 s{dst}, s15, {i}")
        A(f"s_and_b32 s{dst}, s{dst}, 7")

def gen_kernel(A):
    A(f"{KN}:")
    A("s_cmp_ge_u32 s2, 256")
    A("s_cbranch_scc1 L_end")
    load_kernargs(A)
    tile_ids(A)
    A("v_and_b32 v1, 63, v0")
    A("v_lshrrev_b32 v2, 6, v0")
    A("s_and_b32 s15, s5, 7")
    A("v_readfirstlane_b32 s3, v2")
    A("s_cmp_ge_u32 s3, 4")
    A("s_cbranch_scc0 L_consumer")
    helper(A)
    A("L_consumer:")
    consumer(A)
    A("L_end:")
    A("s_endpgm")


def consumer(A):
    ACC = 64
    FA, FB = 128, 144
    AD, BD = 160, 168
    LAM, C2, MU, MU2, MU4, MU8 = 176, 178, 180, 182, 184, 186
    EL = 192
    UR2 = 224
    ST = Stamper(A, 0, 63)
    ST()
    A(f"s_setprio {opt('prio', 2)}")
    A("s_and_b32 s6, s3, 1")
    A("s_lshr_b32 s7, s3, 1")
    A("v_and_b32 v4, 31, v1")
    A("s_lshl_b32 s8, s5, 6")
    A("s_lshl_b32 s9, s7, 5")
    A("s_add_u32 s8, s8, s9")
    A("v_add_u32 v3, s8, v4")
    A("v_lshlrev_b32 v5, 1, v3")
    A("v_lshrrev_b32 v6, 5, v1")
    A("s_lshl_b32 s10, s4, 1")
    A("s_add_u32 s10, s10, s6")
    if "nocode" not in OPT:
        A("s_getpc_b64 s[12:13]")
        A("c_pc:")
        A(f"s_sub_u32 s12, s12, c_pc-{KN}")
        A("s_subb_u32 s13, s13, 0")
        A("s_lshl_b32 s11, s3, 14")
        A("v_lshl_add_u32 v24, v1, 7, s11")
        A("v_min_u32 v24, CODE_LAST, v24")
        A("global_load_dword v25, v24, s[12:13]")
        A("v_add_u32 v24, 0x2000, v24")
        A("v_min_u32 v24, CODE_LAST, v24")
        A("global_load_dword v26, v24, s[12:13]")
    A("s_waitcnt lgkmcnt(0)")
    A(f"global_load_ushort v8, v5, {sp('Lre')}")
    A(f"global_load_ushort v9, v5, {sp('Lim')}")
    A(f"global_load_ushort v10, v5, {sp('logdt')}")
    srd(A, 56, "ws", 256 << 10, WS_EBOX)
    srd(A, 60, "ws", 8 << 20, WS_H)
    srd(A, 64, "dbg", 256)
    srd(A, 68, "ws", FLG_SZ, WS_FLG)
    A("s_lshl_b32 s11, s10, 13")
    A("v_lshl_add_u32 v7, v3, 3, s11")
    A("v_mov_b32 v12, 0")
    A("v_mov_b32 v13, 0")
    A("buffer_store_dwordx2 v[12:13], v7, s[56:59], 0 offen sc1")
    A("s_lshl_b32 s11, s10, 4")
    A("s_add_u32 s11, s11, s5")
    A("s_lshl_b32 s11, s11, 1")
    A("s_add_u32 s11, s11, s7")
    A("s_lshl_b32 s11, s11, 7")
    A("v_mov_b32 v60, s11")
    A("buffer_store_dword v12, v60, s[68:71], 0 offen sc1")
    A("s_lshl_b32 s72, s4, 4")
    A("s_add_u32 s72, s72, s5")
    A("s_lshl_b32 s72, s72, 2")
    A("s_add_u32 s72, s72, s3")
    A("s_lshl_b32 s72, s72, 7")
    A(f"s_add_u32 s11, s72, {PF_OFF:#x}")
    A("v_mov_b32 v30, s11")
    A("buffer_store_dword v12, v30, s[68:71], 0 offen sc1")
    A("v_mov_b32 v23, 1")
    A("v_bfe_u32 v11, v1, 1, 3")
    A("v_xor_b32 v11, v11, v6")
    A("s_lshl_b32 s11, s6, 13")
    A("v_lshl_add_u32 v14, v4, 7, s11")
    A("s_lshl_b32 s11, s7, 12")
    A("s_add_u32 s11, s11, 16384")
    A("v_lshl_add_u32 v15, v4, 7, s11")
    for ks in range(4):
        A(f"v_xor_b32 v16, {2*ks}, v11")
        A(f"v_lshl_add_u32 v{AD+ks}, v16, 4, v14")
        A(f"v_lshl_add_u32 v{BD+ks}, v16, 4, v15")
        A(f"v_add_u32 v{AD+4+ks}, 0x10000, v{AD+ks}")
        A(f"v_add_u32 v{BD+4+ks}, 0x10000, v{BD+ks}")
    A("v_lshlrev_b32 v21, 2, v1")
    A("s_waitcnt vmcnt(0)")
    A("v_lshlrev_b32 v8, 16, v8")
    A("v_lshlrev_b32 v9, 16, v9")
    A("v_lshlrev_b32 v10, 16, v10")
    A("s_mov_b32 s12, 0x3fb8aa3b")
    A("v_mul_f32 v10, s12, v10")
    A("v_exp_f32 v10, v10")
    A("v_cvt_pk_bf16_f32 v10, v10, v10")
    A("v_lshlrev_b32 v10, 16, v10")
    A("v_mul_f32 v16, v10, v8")
    A("v_mul_f32 v17, v10, v9")
    A("v_mul_f32 v16, s12, v16")
    A("v_exp_f32 v16, v16")
    A("v_mul_f32 v17, 0.15915494, v17")
    A("v_rndne_f32 v18, v17")
    A("v_sub_f32 v17, v17, v18")
    A("v_cos_f32 v18, v17")
    A("v_sin_f32 v19, v17")
    A(f"v_mul_f32 v{LAM}, v16, v18")
    A(f"v_mul_f32 v{LAM+1}, v16, v19")
    A(f"v_add_f32 v16, -1.0, v{LAM}")
    A("v_mul_f32 v17, v8, v8")
    A("v_fma_f32 v17, v9, v9, v17")
    A("v_rcp_f32 v17, v17")
    A("v_mul_f32 v18, v16, v8")
    A(f"v_fma_f32 v18, v{LAM+1}, v9, v18")
    A(f"v_mul_f32 v19, v{LAM+1}, v8")
    A("v_fma_f32 v19, -v16, v9, v19")
    A("v_add_f32 v17, v17, v17")
    A(f"v_mul_f32 v{C2}, v18, v17")
    A(f"v_mul_f32 v{C2+1}, v19, v17")
    cmul(A, 16, LAM, LAM); cmul(A, 18, 16, 16); cmul(A, 16, 18, 18)
    cmul(A, MU, 16, 16); cmul(A, MU2, MU, MU); cmul(A, MU4, MU2, MU2); cmul(A, MU8, MU4, MU4)
    cmul(A, 48, C2, MU2)
    A("v_cmp_lt_u32 vcc, 31, v1")
    A(f"v_cndmask_b32 v48, v{C2}, v48, vcc")
    A(f"v_cndmask_b32 v49, v{C2+1}, v49, vcc")
    A("v_lshlrev_b32 v50, 13, v6")
    A("v_sub_u32 v50, v7, v50")
    A("s_add_u32 s11, s10, 1")
    A("v_sub_u32 v51, s11, v6")
    A("v_lshrrev_b32 v51, 1, v51")
    def rd(stage, ks, buf, which):
        slot = stage % 3
        hi = 4 if slot >= 2 else 0
        so = (slot & 1) * 32768
        if which < 2:
            return f"ds_read_b128 {vr(FA+buf*8+which*4,4)}, v{AD+hi+ks} offset:{so + which*4096}"
        ri = which - 2
        return f"ds_read_b128 {vr(FB+buf*8+ri*4,4)}, v{BD+hi+ks} offset:{so + ri*8192}"
    def mf(buf, mt, ri, first):
        acc = ACC + ri*32 + mt*16
        return f"v_mfma_f32_32x32x16_bf16 {vr(acc,16)}, {vr(FA+buf*8+mt*4,4)}, {vr(FB+buf*8+ri*4,4)}, {'0' if first else vr(acc,16)}"
    RD_ORDER = [0, 2, 1, 3]
    MF_ORDER = [(0,0), (1,0), (1,1), (0,1)]
    ST()
    A("s_barrier")
    ST()
    A("s_cmp_lg_u32 s3, 0")
    A("s_cbranch_scc1 c_noflag")
    A("s_lshr_b32 s11, s2, 6")
    A("s_lshl_b32 s11, 1, s11")
    A("s_getreg_b32 s12, hwreg(HW_REG_XCC_ID, 0, 4)")
    A("s_lshl_b32 s12, 0x100, s12")
    A("s_or_b32 s11, s11, s12")
    A("v_mov_b32 v16, s11")
    A("s_and_b32 s11, s2, 63")
    A("s_lshl_b32 s11, s11, 2")
    A("v_mov_b32 v17, s11")
    A("s_mov_b64 exec, 1")
    A("buffer_atomic_or v16, v17, s[64:67], 0 offen sc1")
    A("s_mov_b64 exec, -1")
    A("c_noflag:")
    for w in RD_ORDER: A(rd(0, 0, 0, w))
    for s in range(N1):
        for ks in range(4):
            buf = ks & 1
            last = (s == N1-1 and ks == 3)
            if ks == 3:
                A("s_waitcnt lgkmcnt(0)")
                A("s_barrier")
            ns, nks = (s, ks+1) if ks < 3 else (s+1, 0)
            for i in range(4):
                if ks < 3 and i < 3: A("s_waitcnt lgkmcnt(2)")
                A(mf(buf, *MF_ORDER[i], s == 0 and ks == 0))
                if not last: A(rd(ns, nks, buf ^ 1, RD_ORDER[i]))
            if s in (3, 7, 11) and ks == 3: ST()
            if s == 12 and ks == 0:
                A("buffer_load_dword v20, v21, s[64:67], 0 offen sc1")
    ST()
    def UR(t): return ACC + (t >> 3)*16 + 2*(t & 7)
    def UI(t): return ACC + 32 + (t >> 3)*16 + 2*(t & 7)
    E = [(24, 26), (28, 30 - 30 + 44)]
    cr, ci = UR(0), UI(0)
    for t in range(1, 16):
        nr, ni = E[t & 1]
        A(pk("fma", nr, cr, LAM, UR(t), bsel=0))
        A(pk("fma", ni, ci, LAM, UI(t), bsel=0))
        A(pk("fma", nr, ci, LAM, nr, bsel=1, neg_b=True))
        A(pk("fma", ni, cr, LAM, ni, bsel=1))
        cr, ci = nr, ni
    A("v_mov_b32 v32, v28\nv_mov_b32 v33, v44\nv_mov_b32 v34, v29\nv_mov_b32 v35, v45")
    cmul(A, 36, MU, 32, add=34)
    A("v_mov_b32 v38, v36\nv_mov_b32 v39, v37\nv_mov_b32 v40, 0\nv_mov_b32 v41, 0")
    A("v_permlane32_swap_b32 v40, v38")
    A("v_permlane32_swap_b32 v41, v39")
    cmul(A, 42, MU2, 40, add=36)
    A("v_or_b32 v42, 1, v42")
    A("s_mov_b32 s12, 0")
    A("s_mov_b32 s13, -1")
    A("s_mov_b64 exec, s[12:13]")
    A("buffer_store_dwordx2 v[42:43], v7, s[56:59], 0 offen sc1")
    A("s_mov_b64 exec, -1")
    ST()
    for t in range(16):
        n = UR2 + 2*t
        A(pk("mul", n, UR(t), C2, bsel=0))
        A(pk("fma", n, UI(t), C2, n, bsel=1, neg_b=True))
        A(pk("mul", UI(t), UI(t), C2, bsel=0))
        A(pk("fma", UI(t), UR(t), C2, UI(t), bsel=1))
    cmul(A, 44, C2, 40)
    cmul(A, 46, C2, 32)
    for k in range(16):
        A(f"v_subrev_u32 v{128+k}, {(1+2*k)*8192:#x}, v50")
    ST()
    A("s_waitcnt vmcnt(1)")
    spin_all(A, "c_init", 52, "buffer_load_dword v20, v21, s[64:67], 0 offen sc1", "15", pre="v_and_b32 v52, 15, v20")
    local_check(A, 20, 52, 12, 11)
    A("s_cselect_b32 s14, 0, 1")
    if "nolocal" in OPT: A("s_mov_b32 s14, 0")
    for k in range(16):
        A(f"buffer_load_dwordx2 {vr(EL+2*k,2)}, v{128+k}, s[56:59], 0 offen sc1")
    A(f"s_mov_b32 s88, {SPIN}")
    A("c_poll:")
    A("s_waitcnt vmcnt(0)")
    A("v_mov_b32 v52, 0")
    for k in range(16):
        A(f"v_and_b32 v{144+k}, 1, v{EL+2*k}")
    for k in range(0, 16, 2):
        A(f"v_add3_u32 v52, v52, v{144+k}, v{145+k}")
    A("v_cmp_ne_u32 vcc, v52, v51")
    A("s_cmp_eq_u64 vcc, 0")
    A("s_cbranch_scc1 c_polled")
    A("s_sub_u32 s88, s88, 1")
    A("s_cbranch_scc1 c_polled")
    A(f"s_sleep {opt('psleep', SLEEP)}")
    for k in range(16):
        A(f"v_cmp_eq_u32 vcc, 0, v{144+k}")
        A("s_mov_b64 exec, vcc")
        A(f"buffer_load_dwordx2 {vr(EL+2*k,2)}, v{128+k}, s[56:59], 0 offen sc1")
        A("s_mov_b64 exec, -1")
    A("s_branch c_poll")
    A("c_polled:")
    ST()
    g = EL + 30
    G = [52, 54]
    for k in range(14, -1, -1):
        n = G[k & 1]
        A(pk("fma", n, g, MU8, EL+2*k, bsel=0))
        A(pk("fma", n, g, MU8, n, bsel=1, asel="swap", neg_lo=[1,0,0]))
        g = n
    A("v_mov_b32 v54, v52\nv_mov_b32 v55, v53\nv_mov_b32 v56, v52\nv_mov_b32 v57, v53")
    A("v_permlane32_swap_b32 v54, v56")
    A("v_permlane32_swap_b32 v55, v57")
    cmul(A, 58, MU4, 56, add=54)
    cmul(A, 52, 48, 58, add=44)
    cmul(A, 54, MU, 52, add=46)
    A("v_mov_b32 v56, v52\nv_mov_b32 v57, v54\nv_mov_b32 v58, v53\nv_mov_b32 v59, v55")
    A("s_lshl_b32 s11, s3, 13")
    A("v_lshl_add_u32 v16, v6, 11, s11")
    A("v_lshl_add_u32 v16, v4, 6, v16")
    A("v_bfe_u32 v17, v1, 1, 2")
    for q in range(4):
        A(f"v_xor_b32 v18, {q}, v17")
        A(f"v_lshl_add_u32 v{20+q}, v18, 4, v16")
    A("v_mov_b32 v31, 1")
    cr, ci = 56, 58
    def packhalf(hf):
        for plane in range(2):
            for e in range(2):
                d = 128 + ((plane*2 + e)*2 + hf)*4
                for m in range(4):
                    t = hf*8 + 2*m
                    if plane == 0: A(f"v_cvt_pk_bf16_f32 v{d+m}, v{UR2+2*t+e}, v{UR2+2*(t+1)+e}")
                    else: A(f"v_cvt_pk_bf16_f32 v{d+m}, -v{UI(t)+e}, -v{UI(t+1)+e}")
                A(f"ds_write_b128 v{20+2*e+hf}, {vr(d,4)} offset:{plane*4096}")
    for t in range(16):
        nr, ni = UR2 + 2*t, UI(t)
        A(pk("fma", nr, cr, LAM, nr, bsel=0))
        A(pk("fma", ni, ci, LAM, ni, bsel=0))
        A(pk("fma", nr, ci, LAM, nr, bsel=1, neg_b=True))
        A(pk("fma", ni, cr, LAM, ni, bsel=1))
        cr, ci = nr, ni
        if t == 7: packhalf(0)
    packhalf(1)
    A("v_bfe_u32 v16, v1, 2, 2")
    A("v_lshl_add_u32 v16, v6, 3, v16")
    A("v_and_b32 v24, 1, v1")
    A("v_bfe_u32 v18, v1, 4, 1")
    A("v_lshl_add_u32 v24, v24, 1, v18")
    A("v_bfe_u32 v18, v16, 1, 2")
    A("v_xor_b32 v24, v24, v18")
    A("v_lshlrev_b32 v24, 4, v24")
    A("v_lshl_add_u32 v24, v16, 6, v24")
    A("v_bfe_u32 v18, v1, 1, 1")
    A("v_lshl_add_u32 v24, v18, 3, v24")
    A("v_xor_b32 v25, 32, v24")
    A("v_add_u32 v25, 256, v25")
    A("v_add_u32 v17, s11, v24")
    A("v_add_u32 v18, s11, v25")
    A("s_lshl_b32 s11, s4, 7")
    A("s_lshl_b32 s12, s6, 6")
    A("s_add_u32 s11, s11, s12")
    A("s_and_b32 s12, s5, 7")
    A("s_lshl_b32 s12, s12, 2")
    A("s_add_u32 s11, s11, s12")
    A("s_add_u32 s11, s11, s7")
    A("s_lshl_b32 s11, s11, 12")
    A("s_lshr_b32 s13, s5, 3")
    A("s_lshl_b32 s13, s13, 11")
    A("s_add_u32 s11, s11, s13")
    A("v_lshl_add_u32 v19, v1, 4, s11")
    A(f"v_mov_b32 v20, {LFLAG:#x}")
    ST()
    A("s_waitcnt lgkmcnt(0)")
    lds_inc(A, 20, 31, 12)
    AF = 160
    idx = 0
    for tblk in range(2):
        for plane in range(2):
            for ksl in range(2):
                d = AF + idx*4
                o = plane*4096 + tblk*2048 + ksl*1024
                A(f"ds_read_b64_tr_b16 {vr(d,2)}, v17 offset:{o}")
                A(f"ds_read_b64_tr_b16 {vr(d+2,2)}, v18 offset:{o}")
                idx += 1
    V = VQ(A)
    idx = 0
    for tblk in range(2):
        for plane in range(2):
            A(f"s_mov_b32 s12, {tblk*131072 + plane*8192:#x}")
            for ksl in range(2):
                d = AF + idx*4
                A(f"s_waitcnt lgkmcnt({min(15, 14 - 2*idx)})")
                V.issue(f"buffer_store_dwordx4 {vr(d,4)}, v19, s[60:63], s12 offen offset:{ksl*1024} sc1", "hst")
                idx += 1
    ACC2 = 96
    FB2 = 224
    BD2 = 32
    GR = 36
    ST2 = Stamper(A, 1, 62)
    A("s_lshl_b32 s6, s4, 2")
    A("s_add_u32 s6, s6, s3")
    A("s_lshr_b32 s7, s3, 1")
    A("s_lshl_b32 s7, s7, 13")
    A("s_and_b32 s8, s3, 1")
    A("s_lshl_b32 s8, s8, 11")
    A("s_add_u32 s7, s7, s8")
    A("v_add_u32 v17, s7, v24")
    A("v_add_u32 v18, s7, v25")
    A("s_lshl_b32 s7, s6, 17")
    A("s_add_u32 s7, s7, s13")
    A("v_lshl_add_u32 v3, v1, 4, s7")
    A("v_add_u32 v2, 0x1000, v3")
    A(f"v_lshlrev_b32 v14, 7, v4")
    A(f"v_add_u32 v14, {CRING:#x}, v14")
    for ks in range(4):
        A(f"v_xor_b32 v16, {2*ks}, v11")
        A(f"v_lshl_add_u32 v{BD2+ks}, v16, 4, v14")
    A("s_lshr_b32 s7, s6, 1")
    A("s_lshl_b32 s7, s7, 12")
    A("s_add_u32 s7, s7, s13")
    A("v_bfe_u32 v16, v1, 1, 3")
    if ORD:
        A("v_subrev_u32 v14, 1, v16")
        A("v_cmp_le_u32 vcc, s15, v14")
        A("v_cndmask_b32 v14, v14, v16, vcc")
        A("v_mov_b32 v19, s15")
        A("v_cmp_eq_u32 vcc, 0, v16")
        A("v_cndmask_b32 v16, v14, v19, vcc")
    else:
        A("v_add_u32 v16, s15, v16")
        A("v_and_b32 v16, 7, v16")
    A("v_and_b32 v14, 1, v1")
    A("v_lshl_add_u32 v16, v16, 1, v14")
    A("v_lshl_add_u32 v22, v16, 7, s7")
    srd(A, 64, "ws", 8192, WS_G)
    srd(A, 76, "out", 8 << 20)
    srd(A, 92, "ws", 8 << 20, WS_PART)
    for i in range(8):
        A(f"s_mov_b32 s{80+i}, {i*4096}")
    A("s_lshl_b32 s7, s6, 5")
    A("v_lshl_add_u32 v7, v6, 4, s7")
    A("s_lshl_b32 s8, s5, 6")
    A("v_add_u32 v8, s8, v4")
    A("v_lshlrev_b32 v26, 12, v7")
    A("v_lshl_add_u32 v26, v8, 2, v26")
    A("v_add_u32 v27, 0x8000, v26")
    A("v_lshlrev_b32 v7, 2, v7")
    A("v_lshlrev_b32 v8, 1, v8")
    A("s_mul_i32 s8, s3, 4608")
    A(f"s_add_u32 s8, s8, {UREG}")
    A("v_lshlrev_b32 v61, 11, v6")
    A("v_lshl_add_u32 v61, v4, 1, v61")
    A("v_add_u32 v61, s8, v61")
    A("v_mul_u32_u24 v21, 272, v4")
    A("v_lshl_add_u32 v21, v6, 5, v21")
    A("s_lshl_b32 s8, s3, 6")
    A("v_add_u32 v21, s8, v21")
    A("s_xor_b32 s73, s72, 4096")
    A("s_lshl_b32 s74, s73, 6")
    A("s_add_u32 s75, s74, 4096")
    A(f"s_add_u32 s8, s73, {PF_OFF:#x}")
    A("v_mov_b32 v29, s8")
    A("v_lshlrev_b32 v28, 4, v1")
    A("v_mov_b32 v23, 1")
    A(f"s_mov_b32 s89, {SPIN*4}")
    A("c_lw:")
    A("ds_read_b128 v[52:55], v20 offset:4")
    A("s_waitcnt lgkmcnt(0)")
    A("v_min_u32 v54, v54, v55")
    A("v_min_u32 v53, 1, v53")
    A("v_readfirstlane_b32 s8, v54")
    A("v_readfirstlane_b32 s9, v53")
    A("s_add_u32 s8, s8, s9")
    A("s_cmp_ge_u32 s8, 5")
    A("s_cbranch_scc1 c_lwok")
    A("s_sub_u32 s89, s89, 1")
    A("s_cbranch_scc0 c_lw")
    A("c_lwok:")
    L = LQ(A)
    for st in range(2):
        for ks in range(4):
            d = AF + (st*4 + ks)*4
            o = (ks >> 1)*16384 + st*4096 + (ks & 1)*1024
            L.issue(f"ds_read_b64_tr_b16 {vr(d,2)}, v17 offset:{o}")
            L.issue(f"ds_read_b64_tr_b16 {vr(d+2,2)}, v18 offset:{o}", ("A", st, ks))
    for q in range(4):
        V.issue(f"buffer_load_dwordx4 {vr(GR+q*4,4)}, v7, s[64:67], 0 offen offset:{q*16} sc1")
    for q in range(2):
        V.issue(f"global_load_ushort v{52+q}, v8, {sp('Dskip')} offset:{q*64}", "g")
    ST()
    HFL = "buffer_load_dword v19, v22, s[68:71], 0 offen sc1"
    slowp = []
    def need(i):
        m = ((1 << (2*i + 2)) - 1) & ~3
        name = f"c_n{len(slowp)}"
        A(f"s_and_b32 s88, s90, {m:#x}")
        A(f"s_cmp_eq_u32 s88, {m:#x}")
        A(f"s_cbranch_scc0 {name}_s")
        A(f"{name}:")
        slowp.append((name, m))
    alast = [None]
    def aload(st, ks):
        if alast[0] != st:
            alast[0] = st
            tile_of(A, st >> 1, 11)
            A("s_lshl_b32 s11, s11, 14")
            if st & 1: A("s_add_u32 s11, s11, 8192")
        r = AF + ((st % PD)*4 + ks)*4
        V.issue(f"buffer_load_dwordx4 {vr(r,4)}, v{3 if ks < 2 else 2}, s[60:63], s11 offen offset:{(ks & 1)*1024} sc1", ("A", st, ks))
    def rd2(st, ks, nt, slot):
        return f"ds_read_b128 {vr(FB2+slot*4,4)}, v{BD2+ks} offset:{(st % NS2)*16384 + nt*4096}"
    def mf2(st, ks, nt, slot):
        a = AF + ((st % PD)*4 + ks)*4
        c = vr(ACC2+nt*16, 16)
        return f"v_mfma_f32_32x32x16_bf16 {c}, {vr(a,4)}, {vr(FB2+slot*4,4)}, {'0' if (st == 0 and ks == 0) else c}"
    def await_(st, ks):
        if st < 2: L.wait(("A", st, ks))
        else: V.wait(("A", st, ks))
    ST2()
    for nt in range(4): L.issue(rd2(0, 0, nt, nt), (0, 0, nt))
    HFK = opt("hfk", 3)
    N1K = opt("n1k", 2)
    DIST = opt("dist", 3)
    assert DIST in (2, 3, 4)
    polls = [0]
    def hfpoll():
        polls[0] += 1
        V.issue(HFL, ("hf", polls[0]))
    def hfseen():
        V.wait(("hf", polls[0]))
        A("v_cmp_eq_u32 s[90:91], 1, v19")
    for st in range(N2 - 1):
        for ks in range(4):
            buf = ks & 1
            if ks == 3 and st >= 1: A("s_barrier")
            ns, nks = (st, ks+1) if ks < 3 else (st+1, 0)
            await_(st, ks)
            for nt in range(4):
                L.wait((st, ks, nt))
                A(mf2(st, ks, nt, buf*4 + nt))
                L.issue(rd2(ns, nks, nt, (buf ^ 1)*4 + nt), (ns, nks, nt))
            if st == 0 and ks == HFK:
                V.wait("hst")
                A("s_cmp_eq_u32 s14, 1")
                A("s_cbranch_scc1 c_hfs_l")
                A("buffer_store_dword v23, v60, s[68:71], 0 offen sc1")
                A("s_branch c_hfs_e")
                A("c_hfs_l:")
                A("buffer_store_dword v23, v60, s[68:71], 0 offen")
                A("c_hfs_e:")
                V.n += 1
                hfpoll()
                if "fine3" in OPT: ST2()
            if st == 1 and ks == N1K:
                if "fine3" in OPT: ST2()
                hfseen(); need(1)
                if "fine3" in OPT: ST2()
                for z in (2, 3):
                    for k2 in range(4): aload(z, k2)
                hfpoll()
            if st >= 2:
                if st == 2 and ks == 0:
                    if "fine3" in OPT: ST2()
                    hfseen(); need(2)
                    if "fine3" in OPT: ST2()
                    for z in range(4, 2 + DIST):
                        for k2 in range(4): aload(z, k2)
                    hfpoll()
                z = st + DIST
                if z < N2:
                    if ks == 0 and z % 2 == 0 and z // 2 >= 3:
                        if z // 2 == 3: hfseen()
                        if not (int(OPT.get("abl", 0)) & 2): need(z // 2)
                    aload(z, ks)
            if "fine3" in OPT:
                if st in (1, 2, 3, 4) and ks == 3: ST2()
                if st == 2 and ks == 0: ST2()
            elif (st % 2 == 1 if 'fine2' not in OPT else True) and ks == 3: ST2()
    st = N2 - 1
    slot = {(0, nt): nt for nt in range(4)}
    order = [(ks, nt) for ks in range(4) for nt in (0, 1)] + [(ks, nt) for ks in range(4) for nt in (2, 3)]
    pend = [x for x in order if x not in slot]
    free = [4, 5, 6]
    def fill():
        while pend and free:
            x = pend.pop(0); sl = free.pop(0); slot[x] = sl
            L.issue(rd2(st, x[0], x[1], sl), (st, x[0], x[1]))
    fill()
    pst = [f"buffer_store_dwordx4 {vr(ACC2+4*i,4)}, v28, s[92:95], s{74 if i < 4 else 75} offen offset:{(i & 3)*1024} sc1" for i in range(8)]
    for i, (ks, nt) in enumerate(order):
        V.wait(("A", st, ks))
        L.wait((st, ks, nt))
        A(mf2(st, ks, nt, slot[(ks, nt)]))
        free.append(slot[order[i-1]] if i else 7)
        fill()
        if i >= 10:
            for z in range(2 if i < 14 else 0):
                if pst: V.issue(pst.pop(0), "ps")
    while pst: V.issue(pst.pop(0), "ps")
    ST2()
    YR, OM, GF, XQ, T0, RV = 160, 176, 192, 64, 208, 160
    KEEP = ACC2 + 32
    PFL = "buffer_load_dword v19, v29, s[68:71], 0 offen sc1"
    A("s_mov_b32 s12, 0xffff0000")
    for nt in range(2):
        for r in range(16): A(f"ds_read_u16 v{XQ+nt*16+r}, v61 offset:{r*128+nt*64}")
    for nt in range(2):
        for hf in range(2): A(f"ds_read_b128 {vr(YR+nt*8+hf*4,4)}, v21 offset:{nt*32*272 + hf*16}")
    for r in range(16):
        A(f"v_lshlrev_b32 v{GF+r}, 16, v{GR+r}")
        A(f"v_and_b32 v{OM+r}, s12, v{GR+r}")
    A("v_lshlrev_b32 v52, 16, v52")
    A("v_lshlrev_b32 v53, 16, v53")
    A("s_waitcnt lgkmcnt(0)")
    PFG = opt("pfg", 2)
    gi = 0
    def pfstore():
        A("s_waitcnt vmcnt(0)")
        A("buffer_store_dword v23, v30, s[68:71], 0 offen sc1")
        A(PFL)
    for nt in range(2):
        for m0 in range(0, 8, 4):
            if gi == PFG: pfstore()
            gi += 1
            ch = []
            for m in range(m0, m0 + 4):
                b_ = T0 + (m & 3)*6
                yy, xd, tm = b_, b_ + 2, b_ + 4
                xf = XQ + nt*16 + 2*m; ka = KEEP + nt*16 + 2*m
                ch.append([f"v_lshlrev_b32 v{xf}, 16, v{xf}", f"v_lshlrev_b32 v{xf+1}, 16, v{xf+1}",
                           f"v_lshlrev_b32 v{yy}, 16, v{YR+nt*8+m}", f"v_and_b32 v{yy+1}, s12, v{YR+nt*8+m}",
                           f"v_mul_f32 v{xd}, v{xf}, v{52+nt}", f"v_mul_f32 v{xd+1}, v{xf+1}, v{52+nt}",
                           f"v_mul_f32 v{yy}, v{xf}, v{yy}", f"v_mul_f32 v{yy+1}, v{xf+1}, v{yy+1}",
                           f"v_cvt_pk_bf16_f32 v{tm}, v{xd}, v{xd+1}", f"v_cvt_pk_bf16_f32 v{tm+1}, v{yy}, v{yy+1}",
                           f"v_lshlrev_b32 v{xd}, 16, v{tm}", f"v_and_b32 v{xd+1}, s12, v{tm}",
                           f"v_lshlrev_b32 v{yy}, 16, v{tm+1}", f"v_and_b32 v{yy+1}, s12, v{tm+1}",
                           f"v_add_f32 v{ka}, v{ka}, v{xd}", f"v_add_f32 v{ka+1}, v{ka+1}, v{xd+1}",
                           f"v_mul_f32 v{yy}, v{yy}, v{OM+2*m}", f"v_mul_f32 v{yy+1}, v{yy+1}, v{OM+2*m+1}",
                           f"v_cvt_pk_bf16_f32 v{tm}, v{yy}, v{yy+1}", f"v_lshlrev_b32 v{yy}, 16, v{tm}", f"v_and_b32 v{yy+1}, s12, v{tm}",
                           f"v_fma_f32 v{ka}, v{ka}, v{GF+2*m}, v{yy}", f"v_fma_f32 v{ka+1}, v{ka+1}, v{GF+2*m+1}, v{yy+1}"])
            zip_chains(A, ch)
    if gi == PFG: pfstore()
    ST2()
    A("s_waitcnt vmcnt(0)")
    spin_all(A, "c_pf", 19, PFL)
    A("s_lshl_b32 s12, s72, 6")
    A("s_add_u32 s13, s12, 4096")
    for i in range(8):
        A(f"buffer_load_dwordx4 {vr(RV+4*i,4)}, v28, s[92:95], s{12 if i < 4 else 13} offen offset:{(i & 3)*1024} sc1")
    ST2()
    for nt in range(2):
        for r in range(16):
            i = (nt*16 + r) // 4
            if r % 4 == 0: A(f"s_waitcnt vmcnt({7 - i + nt*16 + r})")
            a = KEEP + nt*16 + r
            A(f"v_fma_f32 v{a}, v{RV+nt*16+r}, v{GF+r}, v{a}")
            A(f"buffer_store_dword v{a}, v{26 if r < 8 else 27}, s[76:79], s{80+(r&7)} offen offset:{nt*128} nt")
    ST2()
    if "leak" in OPT:
        i = int(OPT["leak"])
        A("s_cmp_lg_u32 s2, 8")
        A("s_cbranch_scc1 c_noleak")
        A("s_cmp_lg_u32 s3, 0")
        A("s_cbranch_scc1 c_noleak")
        A("v_readlane_b32 s8, v63, 0")
        A(f"v_readlane_b32 s9, v{63 if i < 100 else 62}, {i % 100}")
        A("s_sub_u32 s9, s9, s8")
        A("s_memrealtime s[10:11]")
        A("s_waitcnt lgkmcnt(0)")
        A("s_add_u32 s9, s9, s10")
        A("c_leak:")
        A("s_memrealtime s[10:11]")
        A("s_waitcnt lgkmcnt(0)")
        A("s_sub_u32 s12, s9, s10")
        A("s_cmp_gt_i32 s12, 0")
        A("s_cbranch_scc1 c_leak")
        A("c_noleak:")
    ST.flush()
    ST2.flush()
    A("s_endpgm")
    for name, m in slowp:
        A(f"{name}_s:")
        A(f"s_mov_b32 s89, {SPIN}")
        A(f"{name}_l:")
        A("s_waitcnt vmcnt(0)")
        A(HFL)
        A("s_waitcnt vmcnt(0)")
        A("v_cmp_eq_u32 s[90:91], 1, v19")
        A(f"s_and_b32 s88, s90, {m:#x}")
        A(f"s_cmp_eq_u32 s88, {m:#x}")
        A(f"s_cbranch_scc1 {name}")
        A("s_sub_u32 s89, s89, 1")
        A(f"s_cbranch_scc1 {name}")
        A(f"s_branch {name}_l")

def helper(A):
    V = VQ(A)
    VA, VB = 8, 12
    ST = Stamper(A, 0, 58)
    ST()
    A("s_sub_u32 s3, s3, 4")
    A("s_lshr_b32 s6, s3, 1")
    A("s_and_b32 s7, s3, 1")
    A("v_lshrrev_b32 v3, 5, v1")
    A("v_lshlrev_b32 v3, 5, v3")
    A("v_bfe_u32 v4, v1, 3, 1")
    A("v_lshl_add_u32 v3, v4, 4, v3")
    A("v_bfe_u32 v4, v1, 4, 1")
    A("v_add_u32 v3, v3, v4")
    A("s_lshl_b32 s8, s4, 7")
    A("s_lshl_b32 s9, s6, 6")
    A("s_add_u32 s8, s8, s9")
    A("s_lshl_b32 s9, s7, 3")
    A("s_add_u32 s8, s8, s9")
    A("v_add_u32 v3, s8, v3")
    A("v_lshlrev_b32 v3, 11, v3")
    A("v_and_b32 v4, 7, v1")
    A("v_lshrrev_b32 v5, 4, v1")
    A("v_xor_b32 v4, v4, v5")
    A("v_lshlrev_b32 v4, 4, v4")
    A("v_xor_b32 v5, 64, v4")
    A("s_lshl_b32 s8, s5, 6")
    A("s_lshl_b32 s9, s7, 5")
    A("s_add_u32 s8, s8, s9")
    A("v_lshrrev_b32 v6, 3, v1")
    A("v_add_u32 v7, s8, v6")
    A("v_lshlrev_b32 v7, 11, v7")
    for n in range(4):
        c = 4 + (n & 1)
        A(f"v_add_u32 v{VA+n}, v3, v{c}")
        A(f"v_add_u32 v{VB+n}, v7, v{c}")
        if n:
            A(f"v_add_u32 v{VA+n}, {n*(4096-1024)}, v{VA+n}")
            A(f"v_add_u32 v{VB+n}, {n*(16384-1024)}, v{VB+n}")
    A("s_lshl_b32 s10, s3, 12")
    A("s_lshr_b32 s90, s55, 2")
    A("s_lshl_b32 s90, s90, 1")
    A("s_and_b32 s91, s55, 3")
    A("s_lshl_b32 s91, s91, 2")
    A("s_add_u32 s90, s90, s91")
    A("s_waitcnt lgkmcnt(0)")
    srd(A, 56, "x", 4 << 20)
    A("s_cmp_ge_u32 s3, 2")
    A(f"s_cselect_b32 s60, s{P['Bim']}, s{P['Bre']}")
    A(f"s_cselect_b32 s61, s{P['Bim']+1}, s{P['Bre']+1}")
    A(f"s_mov_b32 s62, {2<<20:#x}")
    A("s_mov_b32 s63, 0x20000")
    def issue(st, fill=0):
        slot = st % 3
        A(f"s_add_u32 s11, s90, {st}")
        A("s_and_b32 s11, s11, 15")
        A("s_lshl_b32 s11, s11, 7")
        A(f"s_add_u32 m0, s10, {slot*32768:#x}")
        for n in range(4):
            V.issue(f"buffer_load_dwordx4 v{VA+n}, s[56:59], s11 offen offset:{n*1024} lds")
            if fill: do_work(fill)
        A(f"s_add_u32 m0, s10, {slot*32768+16384:#x}")
        for n in range(4):
            V.issue(f"buffer_load_dwordx4 v{VB+n}, s[60:63], s11 offen offset:{n*1024} lds", ("S", st))
            if fill: do_work(fill)
    issue(0)
    VC = 28
    A("s_and_b32 s8, s5, 7")
    A("s_lshl_b32 s8, s8, 6")
    A("s_lshl_b32 s9, s3, 4")
    A("s_add_u32 s8, s8, s9")
    A("v_add_u32 v7, s8, v6")
    A("v_lshlrev_b32 v7, 11, v7")
    A(f"v_add_u32 v{VC}, v7, v4")
    A(f"v_add_u32 v{VC+1}, v7, v5")
    A(f"v_add_u32 v{VC+1}, {16384-1024}, v{VC+1}")
    A("s_and_b32 s12, s55, 1")
    A("s_lshl_b32 s13, s54, 1")
    A("s_add_u32 s12, s12, s13")
    A("s_lshr_b32 s13, s55, 1")
    A("s_lshl_b32 s8, s2, 7")
    A(f"s_add_u32 s8, s8, {KF_OFF:#x}")
    A("v_mov_b32 v30, s8")
    A("s_lshl_b32 s88, s54, 5")
    A("s_add_u32 s88, s88, s55")
    A("s_lshl_b32 s8, s88, 7")
    A(f"s_add_u32 s8, s8, {YF_OFF:#x}")
    A("v_mov_b32 v31, s8")
    A("s_lshl_b32 s88, s88, 2")
    A("s_add_u32 s88, s88, s3")
    A("v_mov_b32 v2, 0")
    srd(A, 92, "ws", FLG_SZ, WS_FLG)
    A("s_lshl_b32 s8, s88, 12")
    A(f"s_load_dword s100, {sp('ssmk')}, s8")
    A("s_lshr_b32 s8, s88, 1")
    A("s_lshl_b32 s8, s8, 2")
    A(f"s_load_dword s101, {sp('ssmD')}, s8")
    V.issue("buffer_store_dword v2, v30, s[92:95], 0 offen sc1")
    V.issue("buffer_store_dword v2, v31, s[92:95], 0 offen sc1", "clr")
    issue(1)
    KR, VR_, SK = 32, 208, 68
    XG, GW = 72, 88
    A("s_lshl_b32 s13, s13, 7")
    A("s_lshl_b32 s14, s3, 5")
    A("s_add_u32 s13, s13, s14")
    A("v_and_b32 v17, 31, v1")
    A("s_lshl_b32 s14, s12, 5")
    A("v_add_u32 v17, s14, v17")
    A("v_lshlrev_b32 v22, 4, v17")
    A("v_and_b32 v23, 31, v1")
    A("v_mul_u32_u24 v23, 544, v23")
    A("v_lshrrev_b32 v24, 5, v1")
    A("v_lshlrev_b32 v24, 5, v24")
    A("v_sub_u32 v23, v23, v24")
    A("s_lshl_b32 s8, s3, 6")
    A(f"s_sub_u32 s8, {UREG+224}, s8")
    A("v_add_u32 v23, s8, v23")
    A("v_lshrrev_b32 v24, 4, v1")
    A("s_lshl_b32 s8, s3, 4")
    A("v_add_u32 v24, s8, v24")
    A("v_and_b32 v2, 15, v1")
    A("v_lshlrev_b32 v2, 4, v2")
    A("s_lshl_b32 s8, s12, 6")
    A("v_add_u32 v27, s8, v24")
    A("v_lshl_add_u32 v27, v27, 12, v2")
    A("s_lshr_b32 s8, s55, 1")
    A("s_lshl_b32 s8, s8, 8")
    A("s_sub_u32 s8, 3840, s8")
    A("v_add_u32 v27, s8, v27")
    A("v_mul_u32_u24 v24, 272, v24")
    A("v_add_u32 v24, v24, v2")
    A(f"v_add_u32 v24, {UREG:#x}, v24")
    A("s_lshl_b32 s14, s4, 7")
    A("s_lshl_b32 s8, s5, 3")
    A("s_add_u32 s14, s14, s8")
    A("s_lshl_b32 s8, s3, 1")
    A("s_add_u32 s14, s14, s8")
    A("s_lshl_b32 s8, s14, 11")
    A("v_lshlrev_b32 v25, 4, v1")
    A("v_add_u32 v26, s8, v25")
    A("v_add_u32 v3, 0x8000, v27")
    srd(A, 64, "k", 4 << 20)
    srd(A, 68, "v", 4 << 20)
    srd(A, 72, "ws", 4 << 20, WS_KVT)
    srd(A, 76, "ws", 8192, WS_G)
    for i in range(8):
        A(f"s_mov_b32 s{80+i}, {i*4096}")
    NTP = " nt" if "ntp" in OPT else ""
    A("v_lshrrev_b32 v19, 3, v1")
    A("v_add_u32 v19, s13, v19")
    A("v_lshlrev_b32 v19, 11, v19")
    A("v_and_b32 v20, 7, v1")
    A("v_lshl_add_u32 v19, v20, 4, v19")
    A("s_lshl_b32 s8, s12, 7")
    A("v_add_u32 v19, s8, v19")
    A("v_subrev_u32 v20, 16384, v19")
    A("v_lshrrev_b32 v21, 5, v1")
    A("v_lshlrev_b32 v21, 11, v21")
    A("v_and_b32 v18, 31, v1")
    A("v_lshl_add_u32 v21, v18, 2, v21")
    A("s_lshl_b32 s8, s3, 12")
    A(f"s_add_u32 s91, s8, {KREG}")
    A("v_add_u32 v21, s91, v21")
    def kvdma():
        A("s_add_u32 m0, s91, 16384")
        V.issue(f"buffer_load_dwordx4 v20, s[64:67], 0 offen{NTP} lds")
        for i in range(4):
            A(f"s_add_u32 m0, s91, {16384 + 1024*(i+1)}")
            A(f"s_mov_b32 s99, {i*16384}")
            V.issue(f"buffer_load_dwordx4 v19, s[64:67], s99 offen{NTP} lds")
        V.issue(f"global_load_dwordx4 {vr(SK,4)}, v22, {sp('shk')}", "k")
        for i in range(4):
            A(f"s_add_u32 m0, s91, {1024*i}")
            A(f"s_mov_b32 s99, {i*16384}")
            V.issue(f"buffer_load_dwordx4 v19, s[68:71], s99 offen{NTP} lds", "v")
    gl = []
    for r in range(2):
        for hh in range(2): gl.append((f"buffer_load_dwordx4 {vr(XG+r*8+hh*4,4)}, v26, s[56:59], 0 offen offset:{r*2048+hh*1024}", None))
    for hh in range(2): gl.append((f"global_load_dwordx4 {vr(GW+hh*4,4)}, v25, {sp('gw')} offset:{hh*1024}", "gate"))
    KF = 96; SP = 136; OUT = 144
    work = []
    def W(x):
        if callable(x): work.append(x)
        else: work.extend(x.split("\n"))
    def rndW(pair, tmp):
        W(f"v_cvt_pk_bf16_f32 v{tmp}, v{pair}, v{pair+1}")
        W(f"v_lshlrev_b32 v{pair}, 16, v{tmp}")
        W(f"v_and_b32 v{pair+1}, s12, v{tmp}")
    W("s_mov_b32 s12, 0xffff0000")
    W(lambda: V.wait("gate"))
    for i in range(8):
        W(f"v_lshlrev_b32 v{96+2*i}, 16, v{GW+i}")
        W(f"v_and_b32 v{97+2*i}, s12, v{GW+i}")
    for r in range(2):
        acc = 112 + r
        W(f"v_mov_b32 v{acc}, 0")
        for i in range(8):
            W(f"v_lshlrev_b32 v116, 16, v{XG+r*8+i}")
            W(f"v_and_b32 v117, s12, v{XG+r*8+i}")
            W(pk("mul", 116, 116, 96+2*i))
            rndW(116, 118)
            W(f"v_add_f32 v{acc}, v{acc}, v116")
            W(f"v_add_f32 v{acc}, v{acc}, v117")
    for r in range(2):
        acc = 112 + r
        for sh in (1, 2, 4, 8):
            W(f"v_add_f32_dpp v{acc}, v{acc}, v{acc} row_shr:{sh} row_mask:0xf bank_mask:0xf bound_ctrl:0")
        W(f"v_add_f32_dpp v{acc}, v{acc}, v{acc} row_bcast:15 row_mask:0xa bank_mask:0xf")
        W(f"v_add_f32_dpp v{acc}, v{acc}, v{acc} row_bcast:31 row_mask:0xc bank_mask:0xf")
    for t in ["v_readlane_b32 s8, v112, 63", "v_readlane_b32 s9, v113, 63", "v_mov_b32 v116, s8", "v_mov_b32 v117, s9",
              "v_cmp_eq_u32 vcc, 1, v1", "v_cndmask_b32 v116, v116, v117, vcc", "v_cvt_pk_bf16_f32 v116, v116, v116",
              "v_lshlrev_b32 v116, 16, v116", "v_mul_f32 v116, 0xbfb8aa3b, v116", "v_exp_f32 v116, v116", "v_add_f32 v116, 1.0, v116",
              "v_rcp_f32 v116, v116", "v_cvt_pk_bf16_f32 v117, v116, v116", "v_lshlrev_b32 v116, 16, v117", "v_sub_f32 v118, 1.0, v116",
              "v_cvt_pk_bf16_f32 v116, v116, v118", "s_lshl_b32 s14, s14, 2", "v_lshl_add_u32 v117, v1, 2, s14"]:
        W(t)
    def gstore():
        A("s_mov_b64 exec, 3")
        V.issue("buffer_store_dword v116, v117, s[76:79], 0 offen sc1", "g")
        A("s_mov_b64 exec, -1")
    W(gstore)
    W("KVSTART")
    W(lambda: V.wait("k"))
    for i in range(19):
        W(f"ds_read_b32 v{KR+i}, v21 offset:{16384 + (5+i)*128}")
        if i == 9: W("s_waitcnt lgkmcnt(0)")
    W("s_waitcnt lgkmcnt(0)")
    for i in range(19):
        W(f"v_lshlrev_b32 v{KF+2*i}, 16, v{KR+i}")
        W(f"v_and_b32 v{KF+2*i+1}, s12, v{KR+i}")
    for jx in range(4):
        for cc in range(2):
            src = SK + cc*2 + (jx >> 1)
            W(f"v_and_b32 v{SP+2*jx+cc}, s12, v{src}" if jx & 1 else f"v_lshlrev_b32 v{SP+2*jx+cc}, 16, v{src}")
    W(lambda: V.wait("v"))
    for i in range(16):
        W(f"ds_read_b32 v{VR_+i}, v21 offset:{i*128}")
        if i == 7: W("s_waitcnt lgkmcnt(0)")
    W("s_waitcnt lgkmcnt(0)")
    for t in range(16):
        vv = 176 + (t & 1)*2
        W(f"v_lshlrev_b32 v{vv}, 16, v{VR_+t}")
        W(f"v_and_b32 v{vv+1}, s12, v{VR_+t}")
        for cc in range(2): W(f"v_mul_f32 v{OUT+2*t+cc}, v{KF+2*t+cc}, v{SP+6+cc}")
        for jx in (2, 1, 0):
            for cc in range(2): W(f"v_fmac_f32 v{OUT+2*t+cc}, v{KF+2*(t+3-jx)+cc}, v{SP+2*jx+cc}")
        for cc in range(2): W(f"v_mul_f32 v{OUT+2*t+cc}, v{OUT+2*t+cc}, v{vv+cc}")
    for cc in range(2):
        for hf in range(2):
            d = 192 + (cc*2+hf)*4
            for m in range(4):
                mm = hf*4 + m
                W(f"v_cvt_pk_bf16_f32 v{d+m}, v{OUT+2*(15-2*mm)+cc}, v{OUT+2*(14-2*mm)+cc}")
            W(f"ds_write_b128 v23, {vr(d,4)} offset:{cc*272+hf*16}")
    W("s_waitcnt lgkmcnt(0)")
    W("BARRIER")
    for i in range(4): W(f"ds_read_b128 {vr(192+4*i,4)}, v24 offset:{i*4*272}")
    KVL = "nokvl" not in OPT
    def kvstores():
        def block(pol):
            for i in range(4):
                A(f"s_waitcnt lgkmcnt({3-i})")
                V.issue(f"buffer_store_dwordx4 {vr(192+4*i,4)}, v{27 if i < 2 else 3}, s[72:75], s{80+4*(i&1)} offen{pol}", "kvt")
        if not KVL:
            block(" sc1"); return
        V.wait("cls")
        local_check(A, 247, 246, 96, 98)
        A("s_cbranch_scc0 h_kvl")
        n0 = V.n
        block(" sc1")
        A("s_branch h_kve")
        A("h_kvl:")
        V.n = n0
        block("")
        A("h_kve:")
    W(kvstores)
    wpos = [0]
    blocked = [False]
    cur = [0]
    PL = opt("pl", 1)
    KVW = PL + opt("kvd", 3)
    def do_work(n):
        while n > 0 and wpos[0] < len(work) and not blocked[0]:
            w = work[wpos[0]]
            wpos[0] += 1
            if w == "BARRIER":
                blocked[0] = True; return
            if w == "KVSTART":
                if cur[0] < KVW:
                    wpos[0] -= 1; return
                continue
            if callable(w): w()
            else: A(w)
            n -= 1
    PREP0 = opt("prep0", 1)
    UL = 40
    ACC = 64; BF = 96; AFR = 160; KD = 224
    def setup_conv(A):
        A("s_lshl_b32 s12, s88, 12")
        srd(A, 64, "ssmk", 4096, off_sreg=12)
        srd(A, 68, "ws", 4096, WS_KVT, off_sreg=12)
        A("s_mov_b32 s80, s100")
        A("s_mov_b32 s81, s101")
        A("v_and_b32 v37, 15, v1")
        A("s_lshr_b32 s8, s88, 6")
        A("s_and_b32 s8, s8, 1")
        A("s_lshl_b32 s8, s8, 3")
        A("s_add_u32 s8, s8, s54")
        A("v_lshl_add_u32 v32, v37, 4, s8")
        A("s_lshr_b32 s8, s4, 2")
        A("s_lshl_b32 s8, s8, 1")
        A("s_and_b32 s9, s4, 3")
        A("s_lshl_b32 s9, s9, 3")
        A("s_add_u32 s8, s8, s9")
        A("v_lshrrev_b32 v38, 3, v37")
        A("v_and_b32 v39, 7, v37")
        A("v_lshl_add_u32 v38, v39, 5, v38")
        A("v_add_u32 v38, s8, v38")
        A("v_and_b32 v39, 16, v1")
        A("v_cmp_ne_u32 vcc, 0, v39")
        A("v_cndmask_b32 v32, v32, v38, vcc")
        A("v_lshlrev_b32 v32, 7, v32")
        A(f"v_add_u32 v32, {KF_OFF:#x}, v32")
        A("v_lshlrev_b32 v33, 2, v1")
        srd(A, 76, "dbg", 256)
        A(f"s_mul_i32 s13, s3, 8320")
        A(f"s_add_u32 s13, s13, {KREG}")
        A(f"s_mul_i32 s82, s3, 4608")
        A(f"s_add_u32 s82, s82, {UREG}")
        A("v_add_u32 v36, 2, v25")
        A("v_lshrrev_b32 v5, 4, v1")
        A("v_and_b32 v37, 15, v1")
        A("v_lshl_add_u32 v38, v5, 3, v37")
        A("v_lshlrev_b32 v38, 1, v38")
        A("v_and_b32 v39, 1, v1")
        A("v_mul_u32_u24 v39, 4158, v39")
        A("v_sub_u32 v38, v38, v39")
        A("s_add_u32 s14, s13, 4160")
        A("v_add_u32 v16, s14, v38")
        for i in range(1, 4): A(f"v_add_u32 v{16+i}, {1024*i}, v16")
        A("v_lshlrev_b32 v38, 5, v37")
        A("v_lshlrev_b32 v39, 4, v5")
        A("v_sub_u32 v20, v39, v38")
        A("s_add_u32 s14, s82, 480")
        A("v_add_u32 v20, s14, v20")
        A("v_lshl_add_u32 v39, v5, 3, v38")
        A("s_add_u32 s14, s82, 504")
        A("v_sub_u32 v21, s14, v39")
        A("v_and_b32 v39, 1, v5")
        A("v_lshl_add_u32 v22, v39, 9, v38")
        A("v_lshrrev_b32 v39, 1, v5")
        A("v_lshl_add_u32 v22, v39, 4, v22")
        A("v_add_u32 v23, s82, v25")
        A("v_and_b32 v38, 7, v1")
        A("v_lshlrev_b32 v38, 2, v38")
        A("v_bfe_u32 v39, v1, 3, 1")
        A("v_mul_u32_u24 v39, 4160, v39")
        A("v_add3_u32 v38, v38, v39, s13")
        A("s_lshl_b32 s80, s80, 16")
        A("v_mov_b32 v56, s80")
        A("v_cmp_eq_u32 vcc, 15, v37")
        A("v_cndmask_b32 v56, 0, v56, vcc")
        A("ds_write_b32 v38, v56")
        A("s_and_b32 s14, s88, 1")
        A("s_lshl_b32 s14, s14, 4")
        A("s_lshr_b32 s81, s81, s14")
        A("s_lshl_b32 s81, s81, 16")
        A(f"v_mov_b32 v60, {LFLAG:#x}")
        A("v_mov_b32 v61, 1")
    setup_conv(W)
    print("prep work items", len(work))
    def cissue(st):
        tile_of(A, st >> 1, 11)
        A("s_lshl_b32 s11, s11, 7")
        sr_ = "s[56:59]" if st % 2 == 0 else "s[60:63]"
        A("s_add_u32 s99, s11, s91")
        A(f"s_add_u32 m0, s10, {(st % NS2)*16384:#x}")
        for n in range(2):
            V.issue(f"buffer_load_dwordx4 v{VC+n}, {sr_}, s99 offen offset:{n*1024} lds")
        A("s_add_u32 s11, s11, s90")
        A(f"s_add_u32 m0, s10, {(st % NS2)*16384 + 8192:#x}")
        for n in range(2):
            V.issue(f"buffer_load_dwordx4 v{VC+n}, {sr_}, s11 offen offset:{n*1024} lds", ("C", st))
    def uloads():
        for i in range(4): A(f"buffer_load_dwordx4 {vr(UL+4*i,4)}, v25, s[68:71], 0 offen offset:{i*1024} sc1")
    def ctouch():
        A("s_cmp_ge_u32 s3, 2")
        A(f"s_cselect_b32 s96, s{P['Cim']}, s{P['Cre']}")
        A(f"s_cselect_b32 s97, s{P['Cim']+1}, s{P['Cre']+1}")
        A("s_lshl_b32 s98, s2, 13")
        A("s_and_b32 s99, s3, 1")
        A("s_lshl_b32 s99, s99, 12")
        A("s_add_u32 s98, s98, s99")
        A("v_and_b32 v240, 31, v1")
        A("v_lshl_add_u32 v240, v240, 7, s98")
        V.issue("global_load_dword v241, v240, s[96:97]")
    FILL = opt("fill", 10)
    kst = [None]
    KW = opt("kw", 2)
    CHK = opt("chk", 13)
    KFS = opt("kfs", 12)
    KDS = opt("kds", 12)
    UWS = opt("uws", 14)
    WEND = min(KFS, KDS, 12)
    CM = opt("cm", 6)
    assert KDS <= CHK < UWS <= 15
    nU = [0]; cdone = [0]
    NC0 = opt("nc0", 2)
    A(f"v_mov_b32 v6, {LFLAG:#x}")
    A("v_mov_b32 v7, 0")
    for o in (4, 8, 12, 16): A(f"ds_write_b32 v6, v7 offset:{o}")
    ST()
    A("s_waitcnt lgkmcnt(0)")
    V.wait("clr")
    ST()
    A("s_barrier")
    issue(2)
    for t, tag in gl: V.issue(t, tag)
    for s in range(N1):
        V.wait(("S", min(s+1, N1-1)))
        if kst[0] is not None and s == min(kst[0] + KW, 15): V.wait("kvt"); V.wait("g")
        A("s_barrier")
        if kst[0] is not None and s == min(kst[0] + KW, 15):
            A("s_cmp_lg_u32 s3, 0")
            A("s_cbranch_scc1 h_kflag")
            A("v_mov_b32 v6, 1")
            A("buffer_store_dword v6, v30, s[92:95], 0 offen sc1")
            A("h_kflag:")
            print("k flag after barrier", s+1)
        blocked[0] = False
        cur[0] = s
        if s+3 < N1: issue(s+3, FILL if s >= PREP0 else 0)
        if s == PL: kvdma()
        if s == CM: ctouch()
        if KVL and s == opt("cls", 6):
            A("v_lshlrev_b32 v246, 2, v1")
            V.issue(f"global_load_dword v247, v246, {sp('dbg')} sc1", "cls")
        if kst[0] is None and "kvt" in V.tags and "g" in V.tags: kst[0] = s
        if s == WEND:
            do_work(10000)
            assert wpos[0] == len(work), (wpos[0], len(work))
        if s == KFS:
            V.issue("buffer_load_dword v34, v33, s[76:79], 0 offen sc1")
            V.issue("buffer_load_dword v35, v32, s[92:95], 0 offen sc1", "kf")
            ST()
        if s == KDS:
            V.wait("g")
            A("s_add_u32 m0, s13, 32")
            for i in range(4): V.issue(f"buffer_load_dwordx4 v25, s[64:67], 0 offen offset:{i*1024}{NTP} lds")
            A("s_add_u32 m0, s13, 4192")
            for i in range(4): V.issue(f"buffer_load_dwordx4 v36, s[64:67], 0 offen offset:{i*1024}{NTP} lds", "K")
        if s == 13:
            srd(A, 56, "Cre", 2 << 20)
            srd(A, 60, "Cim", 2 << 20)
            A("s_lshl_b32 s10, s3, 11")
            A(f"s_add_u32 s10, s10, {CRING:#x}")
            A("s_lshr_b32 s90, s5, 3")
            A("s_xor_b32 s91, s90, 1")
            A("s_lshl_b32 s91, s91, 20")
            A("s_lshl_b32 s11, s90, 10")
            A("s_add_u32 s91, s91, s11")
            A("s_mul_i32 s90, s90, 0x100400")
            A("v_mov_b32 v56, 0")
            A("v_mov_b32 v57, 0")
            A("v_lshlrev_b32 v38, 3, v1")
            A("v_add_u32 v38, s82, v38")
            A("ds_write_b64 v38, v[56:57] offset:4096")
            ST()
        if s == CHK:
            V.wait("kf")
            A("s_mov_b32 s83, 0")
            A("v_and_b32 v34, 15, v34")
            A("v_cmp_ne_u32 vcc, 15, v34")
            A("v_cmp_ne_u32 s[84:85], 1, v35")
            A("s_or_b64 vcc, vcc, s[84:85]")
            A("s_cbranch_scc1 h_nou")
            A("s_mov_b32 s83, 1")
            uloads()
            A("h_nou:")
            nU[0] = V.n
        if s == 15:
            for z in range(NC0): cissue(z)
            cdone[0] = NC0
        if s == UWS:
            A("s_cmp_lg_u32 s83, 1")
            A("s_cbranch_scc1 h_nouw")
            A(f"s_waitcnt vmcnt({V.n - nU[0]})")
            for i in range(4): A(f"ds_write_b128 v23, {vr(UL+4*i,4)} offset:{1024*i}")
            A("h_nouw:")
    ST()
    A("s_cmp_lg_u32 s83, 0")
    A("s_cbranch_scc1 h_haveu")
    spin_all(A, "h_init", 34, "buffer_load_dword v34, v33, s[76:79], 0 offen sc1", "15", pre="v_and_b32 v34, 15, v34")
    spin_all(A, "h_kf", 35, "buffer_load_dword v35, v32, s[92:95], 0 offen sc1")
    uloads()
    A("s_waitcnt vmcnt(0)")
    for i in range(4): A(f"ds_write_b128 v23, {vr(UL+4*i,4)} offset:{1024*i}")
    A("h_haveu:")
    V.done = max(V.done, nU[0])
    lds_inc(A, 60, 61, 8)
    for i in range(4): A(f"s_mov_b32 s{84+i}, s{68+i}")
    srd(A, 68, "ws", 4 << 20, WS_KVT)
    A("s_waitcnt lgkmcnt(0)")
    ST()
    L = LQ(A)
    ops = []
    def reads(r):
        R = []
        s = r & 1
        for i in range(8):
            R.append((f"ds_read_b128 {vr(BF+s*32+i*4,4)}, v20 offset:{3584-512*i+64*r}", ("B", r, i)))
            o = 128*(i & 1) + 16*r
            d = AFR + s*32 + i*4
            R.append((f"ds_read2_b32 {vr(d,2)}, v{16+(i>>1)} offset0:{o} offset1:{o+1}", None))
            R.append((f"ds_read2_b32 {vr(d+2,2)}, v{16+(i>>1)} offset0:{o+2} offset1:{o+3}", ("A", r, i)))
        return R
    def first_order(R):
        return R[1:3] + [R[3*i] for i in range(8)] + [x for i in range(1, 8) for x in R[3*i+1:3*i+3]]
    KVT = 40
    for n in range(8): ops.append(("rd", f"ds_read_b64 {vr(KVT+2*n,2)}, v21 offset:{3584-512*n}", ("KV", n)))
    for t, tag in first_order(reads(0)): ops.append(("rd", t, tag))
    fill = []
    fill.append(("s_mov_b32 s12, 0xffff0000", None)); fill.append(("v_mov_b32 v26, s81", None))
    for n in range(8):
        k = KD + 4*n
        c = [f"v_and_b32 v{k}, s12, v{KVT+2*n+1}", f"v_lshlrev_b32 v{k+1}, 16, v{KVT+2*n+1}", f"v_and_b32 v{k+2}, s12, v{KVT+2*n}", f"v_lshlrev_b32 v{k+3}, 16, v{KVT+2*n}"]
        c += [f"v_mul_f32 v{k+i}, v{k+i}, v26" for i in range(4)]
        c += [f"v_cvt_pk_bf16_f32 v56, v{k}, v{k+1}", f"v_cvt_pk_bf16_f32 v57, v{k+2}, v{k+3}",
              f"v_lshlrev_b32 v{k}, 16, v56", f"v_and_b32 v{k+1}, s12, v56", f"v_lshlrev_b32 v{k+2}, 16, v57", f"v_and_b32 v{k+3}, s12, v57"]
        for i, t in enumerate(c): fill.append((t, ("KV", n) if i == 0 else None))
    YD = 40
    def post(n):
        y = ACC + 4*n; k = KD + 4*n
        d = YD + (n >> 1)*4 + (n & 1)*2
        c = [f"v_cvt_pk_bf16_f32 v56, v{y}, v{y+1}", f"v_cvt_pk_bf16_f32 v57, v{y+2}, v{y+3}",
             f"v_lshlrev_b32 v{y}, 16, v56", f"v_and_b32 v{y+1}, s12, v56", f"v_lshlrev_b32 v{y+2}, 16, v57", f"v_and_b32 v{y+3}, s12, v57"]
        c += [f"v_add_f32 v{k+i}, v{k+i}, v{y+i}" for i in range(4)]
        c += [f"v_cvt_pk_bf16_f32 v{d}, v{k}, v{k+1}", f"v_cvt_pk_bf16_f32 v{d+1}, v{k+2}, v{k+3}"]
        if n & 1:
            d = YD + (n >> 1)*4
            c += [f"v_permlane16_swap_b32 v{d}, v{d+2}", f"v_permlane16_swap_b32 v{d+1}, v{d+3}"]
        return c
    ystores = [f"buffer_store_dwordx4 {vr(YD+4*k,4)}, v22, s[84:87], 0 offen offset:{k*1024} sc1" for k in range(4)]
    LATEC = opt("latec", 200)
    CFM = opt("cfm", 80)
    FPM = opt("fpm", 2)
    nmf = 0
    postq = []
    for r in range(8):
        s = r & 1
        nxt = first_order(reads(r+1)) if r < 7 else []
        cnt = 0
        for q in range(8):
            for n in range(q, 8):
                c = vr(ACC+4*n, 4)
                ops.append(("mf", f"v_mfma_f32_16x16x32_bf16 {c}, {vr(AFR+s*32+4*q,4)}, {vr(BF+s*32+4*(n-q),4)}, {'0' if (r == 0 and q == 0) else c}",
                            [("A", r, q), ("B", r, n-q)]))
                nmf += 1; cnt += 1
                if nxt and cnt >= 2:
                    t, tag = nxt.pop(0); ops.append(("rd", t, tag))
                elif r < 7:
                    for z in range(FPM):
                        if fill: ops.append(("fill",) + fill.pop(0))
                if nmf == LATEC: ops.append(("latec",))
                if nmf == CFM: ops.append(("cf",))
                if r == 7:
                    if n == q: postq += [(nmf + 3, t) for t in post(n)]
                    for z in range(opt("ppm", 3)):
                        if postq and postq[0][0] <= nmf and q < 7: ops.append(("fill", postq.pop(0)[1], None))
        assert not nxt
    assert not fill and CFM < LATEC
    for _, t in postq: ops.append(("fill", t, None))
    for op in ops:
        if op[0] == "rd": L.issue(op[1], op[2])
        elif op[0] == "mf":
            for t in op[2]: pass
            k = max(op[2], key=lambda t: L.tags[t])
            L.wait(k)
            A(op[1])
        elif op[0] == "fill":
            if op[2] is not None: L.wait(op[2])
            A(op[1])
        elif op[0] == "latec":
            while cdone[0] < NS2: cissue(cdone[0]); cdone[0] += 1
        elif op[0] == "cf":
            while cdone[0] < 2: cissue(cdone[0]); cdone[0] += 1
            V.wait(("C", 1))
            lds_inc(A, 60, 61, 16); L.n += 1
    ST()
    YST = opt("yst", 0)
    if YST == 0:
        for t in ystores: V.issue(t, "y2")
    A("v_lshrrev_b32 v8, 4, v1")
    A("s_lshl_b32 s8, s3, 4")
    A("v_add_u32 v8, s8, v8")
    A("v_and_b32 v11, 15, v1")
    A("s_lshl_b32 s9, s5, 11")
    A(f"s_add_u32 s9, s9, {YF_OFF:#x}")
    A("v_lshl_add_u32 v10, v11, 7, s9")
    A("v_lshlrev_b32 v11, 4, v11")
    A("v_mul_u32_u24 v9, 272, v8")
    A("v_add_u32 v9, v9, v11")
    A("s_lshl_b32 s8, s5, 6")
    A("v_add_u32 v8, s8, v8")
    A("v_lshl_add_u32 v8, v8, 12, v11")
    A("s_lshl_b32 s8, s4, 8")
    A("v_add_u32 v8, s8, v8")
    srd(A, 64, "x", 4 << 20)
    A("s_lshl_b32 s8, s4, 2")
    A("s_add_u32 s8, s8, s3")
    A("s_lshl_b32 s8, s8, 5")
    A("v_lshrrev_b32 v12, 3, v1")
    A("v_add_u32 v12, s8, v12")
    A("v_lshlrev_b32 v12, 11, v12")
    A("v_and_b32 v11, 7, v1")
    A("v_lshl_add_u32 v12, v11, 4, v12")
    A("s_lshl_b32 s8, s5, 7")
    A("v_add_u32 v12, s8, v12")
    ST()
    YR = 116
    YFL_LD = "buffer_load_dword v19, v10, s[92:95], 0 offen sc1"
    YFL, GYF, GYL, GYW = opt("yfl", 5), opt("gyf", 8), opt("gyl", 10), opt("gyw", 12)
    XGS = opt("xgs", 7); XGW = opt("xgw", 10)
    assert XGS < XGW <= N2 - 2
    STH = Stamper(A, 1, 59)
    for st in range(1, N2-1):
        V.wait(("C", st+1))
        if st == XGW: V.wait("xt")
        if "fineh" in OPT: STH()
        A("s_barrier")
        if NS2 <= st + NS2 - 1 < N2: cissue(st + NS2 - 1)
        if "abl" in OPT and st >= 2 and st < 13 and int(OPT["abl"]) & 1:
            continue_ = True
            for tg in ("y2", "xt", "yf", "eps"): V.tags.setdefault(tg, 0)
            continue
        if YST and st == YST:
            for t in ystores: V.issue(t, "y2")
        if st == XGS:
            for i in range(4):
                A(f"s_add_u32 m0, s82, {i*1024}")
                A(f"s_mov_b32 s8, {i*16384}")
                V.issue("buffer_load_dwordx4 v12, s[64:67], s8 offen lds", "xt")
        if st == YFL:
            V.wait("y2")
            A("s_mov_b64 exec, 1")
            A("ds_add_rtn_u32 v62, v60, v61 offset:4")
            A("s_mov_b64 exec, -1")
            A("s_waitcnt lgkmcnt(0)")
            A("v_readfirstlane_b32 s83, v62")
            A("s_cmp_lg_u32 s83, 3")
            A("s_cbranch_scc1 h_noy")
            A("buffer_store_dword v61, v31, s[92:95], 0 offen sc1")
            A("h_noy:")
        if st == GYF: V.issue(YFL_LD, "yf")
        if st == GYL:
            V.wait("yf")
            spin_all(A, "h_yf", 19, YFL_LD)
            for i in range(4):
                A(f"s_mov_b32 s8, {i*16384}")
                V.issue(f"buffer_load_dwordx4 {vr(YR+i*4,4)}, v8, s[68:71], s8 offen sc1", "eps")
        if st == GYW:
            V.wait("eps")
            for i in range(4): A(f"ds_write_b128 v9, {vr(YR+i*4,4)} offset:{i*4*272}")
            A("s_waitcnt lgkmcnt(0)")
    assert YST < YFL < GYF < GYL < GYW <= N2 - 3
    STH.flush()
    ST.flush()
    A("s_endpgm")

def build():
    s = header_comments()
    s += "; generated by tools/gen9.py (fused single kernel, split-K GEMM2; gen8 h layout)\n"
    s += "; @launch grid=(256,1,1) block=(512,1,1) lds=163840\n"
    s += '.amdgcn_target "amdgcn-amd-amdhsa--gfx950"\n.text\n'
    A = Asm()
    A.raw(f".globl {KN}\n.p2align 8\n.type {KN},@function")
    gen_kernel(A)
    s += A.render()
    s += descriptor(KN, 256, 102)
    import subprocess, tempfile, re
    with tempfile.TemporaryDirectory() as td:
        open(td + "/a.s", "w").write(s.replace("CODE_LAST", "0x12345"))
        subprocess.run(["clang", "-x", "assembler", "-target", "amdgcn-amd-amdhsa", "-mcpu=gfx950", "-c", td + "/a.s", "-o", td + "/a.o"], check=True)
        o = subprocess.run(["llvm-objdump", "-h", td + "/a.o"], capture_output=True, text=True).stdout
    size = int(re.search(r"\.text\s+([0-9a-f]+)", o).group(1), 16)
    print("code bytes", size)
    assert size <= 65536
    return s.replace("CODE_LAST", hex(size - 4))

if __name__ == "__main__":
    out = sys.argv[1] if len(sys.argv) > 1 and not sys.argv[1].startswith("--") else os.path.join(os.path.dirname(os.path.abspath(__file__)), "..", NAME + ".s")
    open(out, "w").write(build())
    print("wrote", out)
```

```python
import sys, os
sys.path.insert(0, os.path.dirname(os.path.abspath(__file__)))
from asmlib import Asm
from gen import (NAME, P, sp, vr, sr, load_kernargs, srd, pk, cmul, tile_ids, Stamper, OPT, header_comments, descriptor)
import gen

KN = NAME + "_kernel"
WS_H    = 0
WS_KVT  = 8 << 20
WS_G    = 16 << 20
WS_EBOX = 17 << 20
WS_FLG  = 18 << 20
HF_OFF  = 0
KF_OFF  = 128 << 10
YF_OFF  = 160 << 10
PF_OFF  = 192 << 10
FLG_SZ  = 320 << 10
WS_PART = 24 << 20
N1 = 16
N2 = 16
NS2 = 4
PD = 4
CRING = 32768
KREG = 98304
UREG = KREG + 4*8320
LFLAG = UREG + 4*4608
SPIN = int(OPT.get("spin", 1 << 16))
SLEEP = int(OPT.get("sleep", 4))
def opt(k, d): return int(OPT.get(k, d))

class VQ:
    def __init__(self, A): self.A = A; self.n = 0; self.tags = {}; self.done = 0
    def issue(self, text, tag=None):
        self.A(text); self.n += 1
        if tag is not None: self.tags[tag] = self.n
    def wait(self, tag):
        k = self.tags[tag]
        if k <= self.done: return
        cnt = min(63, self.n - k)
        self.A(f"s_waitcnt vmcnt({cnt})"); self.done = self.n - cnt
    def drained(self): self.done = self.n

class LQ:
    def __init__(self, A): self.A = A; self.n = 0; self.tags = {}; self.done = 0
    def issue(self, text, tag=None):
        self.A(text); self.n += 1
        if tag is not None: self.tags[tag] = self.n
    def wait(self, tag):
        k = self.tags[tag]
        if k > self.done:
            self.A(f"s_waitcnt lgkmcnt({min(15, self.n - k)})"); self.done = max(k, self.n - 15)
    def drain(self):
        self.A("s_waitcnt lgkmcnt(0)"); self.done = self.n

def spin_all(A, name, vreg, reload, cmpval="1", sctr=89, pre=None):
    A(f"s_mov_b32 s{sctr}, {SPIN}")
    A(f"{name}_chk:")
    if pre: A(pre)
    A(f"v_cmp_ne_u32 vcc, {cmpval}, v{vreg}")
    A("s_cmp_eq_u64 vcc, 0")
    A(f"s_cbranch_scc1 {name}_ok")
    A(f"s_sub_u32 s{sctr}, s{sctr}, 1")
    A(f"s_cbranch_scc1 {name}_ok")
    A(f"s_sleep {SLEEP}")
    A(reload)
    A("s_waitcnt vmcnt(0)")
    A(f"s_branch {name}_chk")
    A(f"{name}_ok:")

def lds_spin(A, name, vaddr, off, vtmp, target, stmp=8, sctr=89):
    A(f"s_mov_b32 s{sctr}, {SPIN*4}")
    A(f"{name}:")
    A(f"ds_read_b32 v{vtmp}, v{vaddr} offset:{off}")
    A("s_waitcnt lgkmcnt(0)")
    A(f"v_readfirstlane_b32 s{stmp}, v{vtmp}")
    A(f"s_cmp_ge_u32 s{stmp}, {target}")
    A(f"s_cbranch_scc1 {name}_ok")
    A(f"s_sub_u32 s{sctr}, s{sctr}, 1")
    A(f"s_cbranch_scc0 {name}")
    A(f"{name}_ok:")

def lds_inc(A, vaddr, vone, off):
    A("s_mov_b64 exec, 1")
    A(f"ds_add_u32 v{vaddr}, v{vone} offset:{off}")
    A("s_mov_b64 exec, -1")

def zip_chains(A, chains):
    chains = [[x for t in c for x in t.split("\n")] for c in chains]
    for i in range(max(len(c) for c in chains)):
        for c in chains:
            if i < len(c): A(c[i])

def local_check(A, vbits, vtmp, sdst_pair, stmp):
    A(f"s_getreg_b32 s{stmp}, hwreg(HW_REG_XCC_ID, 0, 4)")
    A(f"s_lshl_b32 s{stmp}, 0x100, s{stmp}")
    A(f"s_or_b32 s{stmp}, s{stmp}, 15")
    A(f"v_and_b32 v{vtmp}, 7, v1")
    A(f"v_cmp_eq_u32 s[{sdst_pair}:{sdst_pair+1}], s54, v{vtmp}")
    A(f"v_cmp_ne_u32 vcc, s{stmp}, v{vbits}")
    A(f"s_and_b64 vcc, vcc, s[{sdst_pair}:{sdst_pair+1}]")

ORD = opt("ord", 1)
def tile_of(A, i, dst):
    if i == 0: A(f"s_mov_b32 s{dst}, s15")
    elif ORD:
        A(f"s_cmp_le_u32 s15, {i-1}")
        A(f"s_cselect_b32 s{dst}, {i}, {i-1}")
    else:
        A(f"s_add_u32 s{dst}, s15, {i}")
        A(f"s_and_b32 s{dst}, s{dst}, 7")

def gen_kernel(A):
    A(f"{KN}:")
    A("s_cmp_ge_u32 s2, 256")
    A("s_cbranch_scc1 L_end")
    load_kernargs(A)
    tile_ids(A)
    A("v_and_b32 v1, 63, v0")
    A("v_lshrrev_b32 v2, 6, v0")
    A("s_and_b32 s15, s5, 7")
    A("v_readfirstlane_b32 s3, v2")
    A("s_cmp_ge_u32 s3, 4")
    A("s_cbranch_scc0 L_consumer")
    helper(A)
    A("L_consumer:")
    consumer(A)
    A("L_end:")
    A("s_endpgm")


def consumer(A):
    ACC = 64
    FA, FB = 128, 144
    AD, BD = 160, 168
    LAM, C2, MU, MU2, MU4, MU8 = 176, 178, 180, 182, 184, 186
    EL = 192
    UR2 = 224
    ST = Stamper(A, 0, 63)
    ST()
    A(f"s_setprio {opt('prio', 2)}")
    A("s_and_b32 s6, s3, 1")
    A("s_lshr_b32 s7, s3, 1")
    A("v_and_b32 v4, 31, v1")
    A("s_lshl_b32 s8, s5, 6")
    A("s_lshl_b32 s9, s7, 5")
    A("s_add_u32 s8, s8, s9")
    A("v_add_u32 v3, s8, v4")
    A("v_lshlrev_b32 v5, 1, v3")
    A("v_lshrrev_b32 v6, 5, v1")
    A("s_lshl_b32 s10, s4, 1")
    A("s_add_u32 s10, s10, s6")
    if "nocode" not in OPT:
        A("s_getpc_b64 s[12:13]")
        A("c_pc:")
        A(f"s_sub_u32 s12, s12, c_pc-{KN}")
        A("s_subb_u32 s13, s13, 0")
        A("s_lshl_b32 s11, s3, 14")
        A("v_lshl_add_u32 v24, v1, 7, s11")
        A("v_min_u32 v24, CODE_LAST, v24")
        A("global_load_dword v25, v24, s[12:13]")
        A("v_add_u32 v24, 0x2000, v24")
        A("v_min_u32 v24, CODE_LAST, v24")
        A("global_load_dword v26, v24, s[12:13]")
    A("s_waitcnt lgkmcnt(0)")
    A(f"global_load_ushort v8, v5, {sp('Lre')}")
    A(f"global_load_ushort v9, v5, {sp('Lim')}")
    A(f"global_load_ushort v10, v5, {sp('logdt')}")
    srd(A, 56, "ws", 256 << 10, WS_EBOX)
    srd(A, 60, "ws", 8 << 20, WS_H)
    srd(A, 64, "dbg", 256)
    srd(A, 68, "ws", FLG_SZ, WS_FLG)
    A("s_lshl_b32 s11, s10, 13")
    A("v_lshl_add_u32 v7, v3, 3, s11")
    A("v_mov_b32 v12, 0")
    A("v_mov_b32 v13, 0")
    A("buffer_store_dwordx2 v[12:13], v7, s[56:59], 0 offen sc1")
    A("s_lshl_b32 s11, s10, 4")
    A("s_add_u32 s11, s11, s5")
    A("s_lshl_b32 s11, s11, 1")
    A("s_add_u32 s11, s11, s7")
    A("s_lshl_b32 s11, s11, 7")
    A("v_mov_b32 v60, s11")
    A("buffer_store_dword v12, v60, s[68:71], 0 offen sc1")
    A("s_lshl_b32 s72, s4, 4")
    A("s_add_u32 s72, s72, s5")
    A("s_lshl_b32 s72, s72, 2")
    A("s_add_u32 s72, s72, s3")
    A("s_lshl_b32 s72, s72, 7")
    A(f"s_add_u32 s11, s72, {PF_OFF:#x}")
    A("v_mov_b32 v30, s11")
    A("buffer_store_dword v12, v30, s[68:71], 0 offen sc1")
    A("v_mov_b32 v23, 1")
    A("v_bfe_u32 v11, v1, 1, 3")
    A("v_xor_b32 v11, v11, v6")
    A("s_lshl_b32 s11, s6, 13")
    A("v_lshl_add_u32 v14, v4, 7, s11")
    A("s_lshl_b32 s11, s7, 12")
    A("s_add_u32 s11, s11, 16384")
    A("v_lshl_add_u32 v15, v4, 7, s11")
    for ks in range(4):
        A(f"v_xor_b32 v16, {2*ks}, v11")
        A(f"v_lshl_add_u32 v{AD+ks}, v16, 4, v14")
        A(f"v_lshl_add_u32 v{BD+ks}, v16, 4, v15")
        A(f"v_add_u32 v{AD+4+ks}, 0x10000, v{AD+ks}")
        A(f"v_add_u32 v{BD+4+ks}, 0x10000, v{BD+ks}")
    A("v_lshlrev_b32 v21, 2, v1")
    A("s_waitcnt vmcnt(0)")
    A("v_lshlrev_b32 v8, 16, v8")
    A("v_lshlrev_b32 v9, 16, v9")
    A("v_lshlrev_b32 v10, 16, v10")
    A("s_mov_b32 s12, 0x3fb8aa3b")
    A("v_mul_f32 v10, s12, v10")
    A("v_exp_f32 v10, v10")
    A("v_cvt_pk_bf16_f32 v10, v10, v10")
    A("v_lshlrev_b32 v10, 16, v10")
    A("v_mul_f32 v16, v10, v8")
    A("v_mul_f32 v17, v10, v9")
    A("v_mul_f32 v16, s12, v16")
    A("v_exp_f32 v16, v16")
    A("v_mul_f32 v17, 0.15915494, v17")
    A("v_rndne_f32 v18, v17")
    A("v_sub_f32 v17, v17, v18")
    A("v_cos_f32 v18, v17")
    A("v_sin_f32 v19, v17")
    A(f"v_mul_f32 v{LAM}, v16, v18")
    A(f"v_mul_f32 v{LAM+1}, v16, v19")
    A(f"v_add_f32 v16, -1.0, v{LAM}")
    A("v_mul_f32 v17, v8, v8")
    A("v_fma_f32 v17, v9, v9, v17")
    A("v_rcp_f32 v17, v17")
    A("v_mul_f32 v18, v16, v8")
    A(f"v_fma_f32 v18, v{LAM+1}, v9, v18")
    A(f"v_mul_f32 v19, v{LAM+1}, v8")
    A("v_fma_f32 v19, -v16, v9, v19")
    A("v_add_f32 v17, v17, v17")
    A(f"v_mul_f32 v{C2}, v18, v17")
    A(f"v_mul_f32 v{C2+1}, v19, v17")
    cmul(A, 16, LAM, LAM); cmul(A, 18, 16, 16); cmul(A, 16, 18, 18)
    cmul(A, MU, 16, 16); cmul(A, MU2, MU, MU); cmul(A, MU4, MU2, MU2); cmul(A, MU8, MU4, MU4)
    cmul(A, 48, C2, MU2)
    A("v_cmp_lt_u32 vcc, 31, v1")
    A(f"v_cndmask_b32 v48, v{C2}, v48, vcc")
    A(f"v_cndmask_b32 v49, v{C2+1}, v49, vcc")
    A("v_lshlrev_b32 v50, 13, v6")
    A("v_sub_u32 v50, v7, v50")
    A("s_add_u32 s11, s10, 1")
    A("v_sub_u32 v51, s11, v6")
    A("v_lshrrev_b32 v51, 1, v51")
    def rd(stage, ks, buf, which):
        slot = stage % 3
        hi = 4 if slot >= 2 else 0
        so = (slot & 1) * 32768
        if which < 2:
            return f"ds_read_b128 {vr(FA+buf*8+which*4,4)}, v{AD+hi+ks} offset:{so + which*4096}"
        ri = which - 2
        return f"ds_read_b128 {vr(FB+buf*8+ri*4,4)}, v{BD+hi+ks} offset:{so + ri*8192}"
    def mf(buf, mt, ri, first):
        acc = ACC + ri*32 + mt*16
        return f"v_mfma_f32_32x32x16_bf16 {vr(acc,16)}, {vr(FA+buf*8+mt*4,4)}, {vr(FB+buf*8+ri*4,4)}, {'0' if first else vr(acc,16)}"
    RD_ORDER = [0, 2, 1, 3]
    MF_ORDER = [(0,0), (1,0), (1,1), (0,1)]
    ST()
    A("s_barrier")
    ST()
    A("s_cmp_lg_u32 s3, 0")
    A("s_cbranch_scc1 c_noflag")
    A("s_lshr_b32 s11, s2, 6")
    A("s_lshl_b32 s11, 1, s11")
    A("s_getreg_b32 s12, hwreg(HW_REG_XCC_ID, 0, 4)")
    A("s_lshl_b32 s12, 0x100, s12")
    A("s_or_b32 s11, s11, s12")
    A("v_mov_b32 v16, s11")
    A("s_and_b32 s11, s2, 63")
    A("s_lshl_b32 s11, s11, 2")
    A("v_mov_b32 v17, s11")
    A("s_mov_b64 exec, 1")
    A("buffer_atomic_or v16, v17, s[64:67], 0 offen sc1")
    A("s_mov_b64 exec, -1")
    A("c_noflag:")
    for w in RD_ORDER: A(rd(0, 0, 0, w))
    for s in range(N1):
        for ks in range(4):
            buf = ks & 1
            last = (s == N1-1 and ks == 3)
            if ks == 3:
                A("s_waitcnt lgkmcnt(0)")
                A("s_barrier")
            ns, nks = (s, ks+1) if ks < 3 else (s+1, 0)
            for i in range(4):
                if ks < 3 and i < 3: A("s_waitcnt lgkmcnt(2)")
                A(mf(buf, *MF_ORDER[i], s == 0 and ks == 0))
                if not last: A(rd(ns, nks, buf ^ 1, RD_ORDER[i]))
            if (s in (3, 7, 11) if "fine1" not in OPT else s >= 3) and ks == 3: ST()
            if s == 12 and ks == 0:
                A("buffer_load_dword v20, v21, s[64:67], 0 offen sc1")
    ST()
    if "fine1" in OPT: ST.n = 40
    gen.SAFE_PK[0] = bool(opt("pk", 0) & 1)
    def UR(t): return ACC + (t >> 3)*16 + 2*(t & 7)
    def UI(t): return ACC + 32 + (t >> 3)*16 + 2*(t & 7)
    E = [(24, 26), (28, 30 - 30 + 44)]
    cr, ci = UR(0), UI(0)
    for t in range(1, 16):
        nr, ni = E[t & 1]
        A(pk("fma", nr, cr, LAM, UR(t), bsel=0))
        A(pk("fma", ni, ci, LAM, UI(t), bsel=0))
        A(pk("fma", nr, ci, LAM, nr, bsel=1, neg_b=True))
        A(pk("fma", ni, cr, LAM, ni, bsel=1))
        cr, ci = nr, ni
    A("v_mov_b32 v32, v28\nv_mov_b32 v33, v44\nv_mov_b32 v34, v29\nv_mov_b32 v35, v45")
    cmul(A, 36, MU, 32, add=34)
    A("v_mov_b32 v38, v36\nv_mov_b32 v39, v37\nv_mov_b32 v40, 0\nv_mov_b32 v41, 0")
    A("v_permlane32_swap_b32 v40, v38")
    A("v_permlane32_swap_b32 v41, v39")
    cmul(A, 42, MU2, 40, add=36)
    A("v_or_b32 v42, 1, v42")
    A("s_mov_b32 s12, 0")
    A("s_mov_b32 s13, -1")
    A("s_mov_b64 exec, s[12:13]")
    A("buffer_store_dwordx2 v[42:43], v7, s[56:59], 0 offen sc1")
    A("s_mov_b64 exec, -1")
    ST()
    for t in range(16):
        n = UR2 + 2*t
        A(pk("mul", n, UR(t), C2, bsel=0))
        A(pk("fma", n, UI(t), C2, n, bsel=1, neg_b=True))
        A(pk("mul", UI(t), UI(t), C2, bsel=0))
        A(pk("fma", UI(t), UR(t), C2, UI(t), bsel=1))
    cmul(A, 44, C2, 40)
    cmul(A, 46, C2, 32)
    for k in range(16):
        A(f"v_subrev_u32 v{128+k}, {(1+2*k)*8192:#x}, v50")
    ST()
    A("s_waitcnt vmcnt(1)")
    spin_all(A, "c_init", 52, "buffer_load_dword v20, v21, s[64:67], 0 offen sc1", "15", pre="v_and_b32 v52, 15, v20")
    local_check(A, 20, 52, 12, 11)
    A("s_cselect_b32 s14, 0, 1")
    if "nolocal" in OPT: A("s_mov_b32 s14, 0")
    for k in range(16):
        A(f"buffer_load_dwordx2 {vr(EL+2*k,2)}, v{128+k}, s[56:59], 0 offen sc1")
    BD2 = 32
    A("s_lshl_b32 s11, s3, 13")
    A("v_lshl_add_u32 v16, v6, 11, s11")
    A("v_lshl_add_u32 v16, v4, 6, v16")
    A("v_bfe_u32 v17, v1, 1, 2")
    for q in range(4):
        A(f"v_xor_b32 v18, {q}, v17")
        A(f"v_lshl_add_u32 v{64+q}, v18, 4, v16")
    A("v_mov_b32 v31, 1")
    A("v_bfe_u32 v16, v1, 2, 2")
    A("v_lshl_add_u32 v16, v6, 3, v16")
    A("v_and_b32 v24, 1, v1")
    A("v_bfe_u32 v18, v1, 4, 1")
    A("v_lshl_add_u32 v24, v24, 1, v18")
    A("v_bfe_u32 v18, v16, 1, 2")
    A("v_xor_b32 v24, v24, v18")
    A("v_lshlrev_b32 v24, 4, v24")
    A("v_lshl_add_u32 v24, v16, 6, v24")
    A("v_bfe_u32 v18, v1, 1, 1")
    A("v_lshl_add_u32 v24, v18, 3, v24")
    A("v_xor_b32 v25, 32, v24")
    A("v_add_u32 v25, 256, v25")
    A("v_add_u32 v68, s11, v24")
    A("v_add_u32 v69, s11, v25")
    A("s_lshl_b32 s11, s4, 7")
    A("s_lshl_b32 s12, s6, 6")
    A("s_add_u32 s11, s11, s12")
    A("s_and_b32 s12, s5, 7")
    A("s_lshl_b32 s12, s12, 2")
    A("s_add_u32 s11, s11, s12")
    A("s_add_u32 s11, s11, s7")
    A("s_lshl_b32 s11, s11, 12")
    A("s_lshr_b32 s13, s5, 3")
    A("s_lshl_b32 s13, s13, 11")
    A("s_add_u32 s11, s11, s13")
    A("v_lshl_add_u32 v72, v1, 4, s11")
    A(f"v_mov_b32 v20, {LFLAG:#x}")
    A("s_lshl_b32 s6, s4, 2")
    A("s_add_u32 s6, s6, s3")
    A("s_lshr_b32 s7, s3, 1")
    A("s_lshl_b32 s7, s7, 13")
    A("s_and_b32 s8, s3, 1")
    A("s_lshl_b32 s8, s8, 11")
    A("s_add_u32 s7, s7, s8")
    A("v_add_u32 v70, s7, v24")
    A("v_add_u32 v71, s7, v25")
    A("s_lshl_b32 s7, s6, 17")
    A("s_add_u32 s7, s7, s13")
    A("v_lshl_add_u32 v3, v1, 4, s7")
    A("v_add_u32 v2, 0x1000, v3")
    A(f"v_lshlrev_b32 v14, 7, v4")
    A(f"v_add_u32 v14, {CRING:#x}, v14")
    for ks in range(4):
        A(f"v_xor_b32 v16, {2*ks}, v11")
        A(f"v_lshl_add_u32 v{BD2+ks}, v16, 4, v14")
    A("s_lshr_b32 s7, s6, 1")
    A("s_lshl_b32 s7, s7, 12")
    A("s_add_u32 s7, s7, s13")
    A("v_bfe_u32 v16, v1, 1, 3")
    if ORD:
        A("v_subrev_u32 v14, 1, v16")
        A("v_cmp_le_u32 vcc, s15, v14")
        A("v_cndmask_b32 v14, v14, v16, vcc")
        A("v_mov_b32 v19, s15")
        A("v_cmp_eq_u32 vcc, 0, v16")
        A("v_cndmask_b32 v16, v14, v19, vcc")
    else:
        A("v_add_u32 v16, s15, v16")
        A("v_and_b32 v16, 7, v16")
    A("v_and_b32 v14, 1, v1")
    A("v_lshl_add_u32 v16, v16, 1, v14")
    A("v_lshl_add_u32 v22, v16, 7, s7")
    srd(A, 64, "ws", 8192, WS_G)
    srd(A, 76, "out", 8 << 20)
    srd(A, 92, "ws", 8 << 20, WS_PART)
    for i in range(8):
        A(f"s_mov_b32 s{80+i}, {i*4096}")
    A("s_lshl_b32 s7, s6, 5")
    A("v_lshl_add_u32 v7, v6, 4, s7")
    A("s_lshl_b32 s8, s5, 6")
    A("v_add_u32 v8, s8, v4")
    A("v_lshlrev_b32 v26, 12, v7")
    A("v_lshl_add_u32 v26, v8, 2, v26")
    A("v_add_u32 v27, 0x8000, v26")
    A("v_lshlrev_b32 v7, 2, v7")
    A("v_lshlrev_b32 v8, 1, v8")
    A("s_mul_i32 s8, s3, 4608")
    A(f"s_add_u32 s8, s8, {UREG}")
    A("v_lshlrev_b32 v61, 11, v6")
    A("v_lshl_add_u32 v61, v4, 1, v61")
    A("v_add_u32 v61, s8, v61")
    A("v_mul_u32_u24 v21, 272, v4")
    A("v_lshl_add_u32 v21, v6, 5, v21")
    A("s_lshl_b32 s8, s3, 6")
    A("v_add_u32 v21, s8, v21")
    A("s_xor_b32 s73, s72, 4096")
    A("s_lshl_b32 s74, s73, 6")
    A("s_add_u32 s75, s74, 4096")
    A(f"s_add_u32 s8, s73, {PF_OFF:#x}")
    A("v_mov_b32 v29, s8")
    A("v_lshlrev_b32 v28, 4, v1")
    A("v_mov_b32 v23, 1")
    A(f"s_mov_b32 s88, {SPIN}")
    A("c_poll:")
    A("s_waitcnt vmcnt(0)")
    A("v_mov_b32 v52, 0")
    for k in range(16):
        A(f"v_and_b32 v{144+k}, 1, v{EL+2*k}")
    for k in range(0, 16, 2):
        A(f"v_add3_u32 v52, v52, v{144+k}, v{145+k}")
    A("v_cmp_ne_u32 vcc, v52, v51")
    A("s_cmp_eq_u64 vcc, 0")
    A("s_cbranch_scc1 c_polled")
    A("s_sub_u32 s88, s88, 1")
    A("s_cbranch_scc1 c_polled")
    A(f"s_sleep {opt('psleep', SLEEP)}")
    for k in range(16):
        A(f"v_cmp_eq_u32 vcc, 0, v{144+k}")
        A("s_mov_b64 exec, vcc")
        A(f"buffer_load_dwordx2 {vr(EL+2*k,2)}, v{128+k}, s[56:59], 0 offen sc1")
        A("s_mov_b64 exec, -1")
    A("s_branch c_poll")
    A("c_polled:")
    ST()
    g = EL + 30
    G = [52, 54]
    for k in range(14, -1, -1):
        n = G[k & 1]
        A(pk("fma", n, g, MU8, EL+2*k, bsel=0))
        A(pk("fma", n, g, MU8, n, bsel=1, asel="swap", neg_lo=[1,0,0]))
        g = n
    A("v_mov_b32 v54, v52\nv_mov_b32 v55, v53\nv_mov_b32 v56, v52\nv_mov_b32 v57, v53")
    A("v_permlane32_swap_b32 v54, v56")
    A("v_permlane32_swap_b32 v55, v57")
    cmul(A, 58, MU4, 56, add=54)
    cmul(A, 52, 48, 58, add=44)
    cmul(A, 54, MU, 52, add=46)
    A("v_mov_b32 v56, v52\nv_mov_b32 v57, v54\nv_mov_b32 v58, v53\nv_mov_b32 v59, v55")
    cr, ci = 56, 58
    def packhalf(hf):
        for plane in range(2):
            for e in range(2):
                d = 128 + ((plane*2 + e)*2 + hf)*4
                for m in range(4):
                    t = hf*8 + 2*m
                    if plane == 0: A(f"v_cvt_pk_bf16_f32 v{d+m}, v{UR2+2*t+e}, v{UR2+2*(t+1)+e}")
                    else: A(f"v_cvt_pk_bf16_f32 v{d+m}, -v{UI(t)+e}, -v{UI(t+1)+e}")
                A(f"ds_write_b128 v{64+2*e+hf}, {vr(d,4)} offset:{plane*4096}")
    for t in range(16):
        nr, ni = UR2 + 2*t, UI(t)
        A(pk("fma", nr, cr, LAM, nr, bsel=0))
        A(pk("fma", ni, ci, LAM, ni, bsel=0))
        A(pk("fma", nr, ci, LAM, nr, bsel=1, neg_b=True))
        A(pk("fma", ni, cr, LAM, ni, bsel=1))
        cr, ci = nr, ni
        if t == 7: packhalf(0)
    packhalf(1)
    gen.SAFE_PK[0] = False
    ST()
    A("s_waitcnt lgkmcnt(0)")
    lds_inc(A, 20, 31, 12)
    AF = 160
    idx = 0
    for tblk in range(2):
        for plane in range(2):
            for ksl in range(2):
                d = AF + idx*4
                o = plane*4096 + tblk*2048 + ksl*1024
                A(f"ds_read_b64_tr_b16 {vr(d,2)}, v68 offset:{o}")
                A(f"ds_read_b64_tr_b16 {vr(d+2,2)}, v69 offset:{o}")
                idx += 1
    V = VQ(A)
    idx = 0
    for tblk in range(2):
        for plane in range(2):
            A(f"s_mov_b32 s12, {tblk*131072 + plane*8192:#x}")
            for ksl in range(2):
                d = AF + idx*4
                A(f"s_waitcnt lgkmcnt({min(15, 14 - 2*idx)})")
                V.issue(f"buffer_store_dwordx4 {vr(d,4)}, v72, s[60:63], s12 offen offset:{ksl*1024} sc1", "hst")
                idx += 1
    ACC2 = 96
    FB2 = 224
    GR = 36
    ST2 = Stamper(A, 1, 62)
    A(f"s_mov_b32 s89, {SPIN*4}")
    A("c_lw:")
    A("ds_read_b128 v[52:55], v20 offset:4")
    A("s_waitcnt lgkmcnt(0)")
    A("v_min_u32 v54, v54, v55")
    A("v_min_u32 v53, 1, v53")
    A("v_readfirstlane_b32 s8, v54")
    A("v_readfirstlane_b32 s9, v53")
    A("s_add_u32 s8, s8, s9")
    A("s_cmp_ge_u32 s8, 5")
    A("s_cbranch_scc1 c_lwok")
    A("s_sub_u32 s89, s89, 1")
    A("s_cbranch_scc0 c_lw")
    A("c_lwok:")
    L = LQ(A)
    for st in range(2):
        for ks in range(4):
            d = AF + (st*4 + ks)*4
            o = (ks >> 1)*16384 + st*4096 + (ks & 1)*1024
            L.issue(f"ds_read_b64_tr_b16 {vr(d,2)}, v70 offset:{o}")
            L.issue(f"ds_read_b64_tr_b16 {vr(d+2,2)}, v71 offset:{o}", ("A", st, ks))
    for q in range(4):
        V.issue(f"buffer_load_dwordx4 {vr(GR+q*4,4)}, v7, s[64:67], 0 offen offset:{q*16} sc1")
    for q in range(2):
        V.issue(f"global_load_ushort v{52+q}, v8, {sp('Dskip')} offset:{q*64}", "g")
    ST()
    HFL = "buffer_load_dword v19, v22, s[68:71], 0 offen sc1"
    slowp = []
    def need(i):
        m = ((1 << (2*i + 2)) - 1) & ~3
        name = f"c_n{len(slowp)}"
        A(f"s_and_b32 s88, s90, {m:#x}")
        A(f"s_cmp_eq_u32 s88, {m:#x}")
        A(f"s_cbranch_scc0 {name}_s")
        A(f"{name}:")
        slowp.append((name, m))
    alast = [None]
    def aload(st, ks):
        if alast[0] != st:
            alast[0] = st
            tile_of(A, st >> 1, 11)
            A("s_lshl_b32 s11, s11, 14")
            if st & 1: A("s_add_u32 s11, s11, 8192")
        r = AF + ((st % PD)*4 + ks)*4
        V.issue(f"buffer_load_dwordx4 {vr(r,4)}, v{3 if ks < 2 else 2}, s[60:63], s11 offen offset:{(ks & 1)*1024} sc1", ("A", st, ks))
    def rd2(st, ks, nt, slot):
        return f"ds_read_b128 {vr(FB2+slot*4,4)}, v{BD2+ks} offset:{(st % NS2)*16384 + nt*4096}"
    def mf2(st, ks, nt, slot):
        a = AF + ((st % PD)*4 + ks)*4
        c = vr(ACC2+nt*16, 16)
        return f"v_mfma_f32_32x32x16_bf16 {c}, {vr(a,4)}, {vr(FB2+slot*4,4)}, {'0' if (st == 0 and ks == 0) else c}"
    def await_(st, ks):
        if st < 2: L.wait(("A", st, ks))
        else: V.wait(("A", st, ks))
    ST2()
    for nt in range(4): L.issue(rd2(0, 0, nt, nt), (0, 0, nt))
    HFK = opt("hfk", 3)
    N1K = opt("n1k", 2)
    DIST = opt("dist", 3)
    assert DIST in (2, 3, 4)
    polls = [0]
    def hfpoll():
        polls[0] += 1
        V.issue(HFL, ("hf", polls[0]))
    def hfseen():
        V.wait(("hf", polls[0]))
        A("v_cmp_eq_u32 s[90:91], 1, v19")
    for st in range(N2 - 1):
        for ks in range(4):
            buf = ks & 1
            if ks == 3 and st >= 1: A("s_barrier")
            ns, nks = (st, ks+1) if ks < 3 else (st+1, 0)
            await_(st, ks)
            for nt in range(4):
                L.wait((st, ks, nt))
                A(mf2(st, ks, nt, buf*4 + nt))
                L.issue(rd2(ns, nks, nt, (buf ^ 1)*4 + nt), (ns, nks, nt))
            if st == 0 and ks == HFK:
                V.wait("hst")
                A("s_cmp_eq_u32 s14, 1")
                A("s_cbranch_scc1 c_hfs_l")
                A("buffer_store_dword v23, v60, s[68:71], 0 offen sc1")
                A("s_branch c_hfs_e")
                A("c_hfs_l:")
                A("buffer_store_dword v23, v60, s[68:71], 0 offen")
                A("c_hfs_e:")
                V.n += 1
                hfpoll()
                if "fine3" in OPT: ST2()
            if st == 1 and ks == N1K:
                if "fine3" in OPT: ST2()
                hfseen(); need(1)
                if "fine3" in OPT: ST2()
                for z in (2, 3):
                    for k2 in range(4): aload(z, k2)
                hfpoll()
            if st >= 2:
                if st == 2 and ks == 0:
                    if "fine3" in OPT: ST2()
                    hfseen(); need(2)
                    if "fine3" in OPT: ST2()
                    for z in range(4, 2 + DIST):
                        for k2 in range(4): aload(z, k2)
                    hfpoll()
                z = st + DIST
                if z < N2:
                    if ks == 0 and z % 2 == 0 and z // 2 >= 3:
                        if z // 2 == 3: hfseen()
                        if not (int(OPT.get("abl", 0)) & 2): need(z // 2)
                    aload(z, ks)
            if "fine3" in OPT:
                if st in (1, 2, 3, 4) and ks == 3: ST2()
                if st == 2 and ks == 0: ST2()
            elif (st % 2 == 1 if 'fine2' not in OPT else True) and ks == 3: ST2()
    st = N2 - 1
    slot = {(0, nt): nt for nt in range(4)}
    order = [(ks, nt) for ks in range(4) for nt in (0, 1)] + [(ks, nt) for ks in range(4) for nt in (2, 3)]
    pend = [x for x in order if x not in slot]
    free = [4, 5, 6]
    def fill():
        while pend and free:
            x = pend.pop(0); sl = free.pop(0); slot[x] = sl
            L.issue(rd2(st, x[0], x[1], sl), (st, x[0], x[1]))
    fill()
    pst = [f"buffer_store_dwordx4 {vr(ACC2+4*i,4)}, v28, s[92:95], s{74 if i < 4 else 75} offen offset:{(i & 3)*1024} sc1" for i in range(8)]
    for i, (ks, nt) in enumerate(order):
        V.wait(("A", st, ks))
        L.wait((st, ks, nt))
        A(mf2(st, ks, nt, slot[(ks, nt)]))
        free.append(slot[order[i-1]] if i else 7)
        fill()
        if i >= 10:
            for z in range(2 if i < 14 else 0):
                if pst: V.issue(pst.pop(0), "ps")
    while pst: V.issue(pst.pop(0), "ps")
    ST2()
    YR, OM, GF, XQ, T0, RV = 160, 176, 192, 64, 208, 160
    KEEP = ACC2 + 32
    PFL = "buffer_load_dword v19, v29, s[68:71], 0 offen sc1"
    A("s_mov_b32 s12, 0xffff0000")
    for nt in range(2):
        for r in range(16): A(f"ds_read_u16 v{XQ+nt*16+r}, v61 offset:{r*128+nt*64}")
    for nt in range(2):
        for hf in range(2): A(f"ds_read_b128 {vr(YR+nt*8+hf*4,4)}, v21 offset:{nt*32*272 + hf*16}")
    for r in range(16):
        A(f"v_lshlrev_b32 v{GF+r}, 16, v{GR+r}")
        A(f"v_and_b32 v{OM+r}, s12, v{GR+r}")
    A("v_lshlrev_b32 v52, 16, v52")
    A("v_lshlrev_b32 v53, 16, v53")
    A("s_waitcnt lgkmcnt(0)")
    PFG = opt("pfg", 2)
    gi = 0
    def pfstore():
        A("s_waitcnt vmcnt(0)")
        A("buffer_store_dword v23, v30, s[68:71], 0 offen sc1")
        A(PFL)
    for nt in range(2):
        for m0 in range(0, 8, 4):
            if gi == PFG: pfstore()
            gi += 1
            ch = []
            for m in range(m0, m0 + 4):
                b_ = T0 + (m & 3)*6
                yy, xd, tm = b_, b_ + 2, b_ + 4
                xf = XQ + nt*16 + 2*m; ka = KEEP + nt*16 + 2*m
                ch.append([f"v_lshlrev_b32 v{xf}, 16, v{xf}", f"v_lshlrev_b32 v{xf+1}, 16, v{xf+1}",
                           f"v_lshlrev_b32 v{yy}, 16, v{YR+nt*8+m}", f"v_and_b32 v{yy+1}, s12, v{YR+nt*8+m}",
                           f"v_mul_f32 v{xd}, v{xf}, v{52+nt}", f"v_mul_f32 v{xd+1}, v{xf+1}, v{52+nt}",
                           f"v_mul_f32 v{yy}, v{xf}, v{yy}", f"v_mul_f32 v{yy+1}, v{xf+1}, v{yy+1}",
                           f"v_cvt_pk_bf16_f32 v{tm}, v{xd}, v{xd+1}", f"v_cvt_pk_bf16_f32 v{tm+1}, v{yy}, v{yy+1}",
                           f"v_lshlrev_b32 v{xd}, 16, v{tm}", f"v_and_b32 v{xd+1}, s12, v{tm}",
                           f"v_lshlrev_b32 v{yy}, 16, v{tm+1}", f"v_and_b32 v{yy+1}, s12, v{tm+1}",
                           f"v_add_f32 v{ka}, v{ka}, v{xd}", f"v_add_f32 v{ka+1}, v{ka+1}, v{xd+1}",
                           f"v_mul_f32 v{yy}, v{yy}, v{OM+2*m}", f"v_mul_f32 v{yy+1}, v{yy+1}, v{OM+2*m+1}",
                           f"v_cvt_pk_bf16_f32 v{tm}, v{yy}, v{yy+1}", f"v_lshlrev_b32 v{yy}, 16, v{tm}", f"v_and_b32 v{yy+1}, s12, v{tm}",
                           f"v_fma_f32 v{ka}, v{ka}, v{GF+2*m}, v{yy}", f"v_fma_f32 v{ka+1}, v{ka+1}, v{GF+2*m+1}, v{yy+1}"])
            zip_chains(A, ch)
    if gi == PFG: pfstore()
    ST2()
    A("s_waitcnt vmcnt(0)")
    spin_all(A, "c_pf", 19, PFL)
    A("s_lshl_b32 s12, s72, 6")
    A("s_add_u32 s13, s12, 4096")
    for i in range(8):
        A(f"buffer_load_dwordx4 {vr(RV+4*i,4)}, v28, s[92:95], s{12 if i < 4 else 13} offen offset:{(i & 3)*1024} sc1")
    ST2()
    for nt in range(2):
        for r in range(16):
            i = (nt*16 + r) // 4
            if r % 4 == 0: A(f"s_waitcnt vmcnt({7 - i + nt*16 + r})")
            a = KEEP + nt*16 + r
            A(f"v_fma_f32 v{a}, v{RV+nt*16+r}, v{GF+r}, v{a}")
            A(f"buffer_store_dword v{a}, v{26 if r < 8 else 27}, s[76:79], s{80+(r&7)} offen offset:{nt*128} nt")
    ST2()
    if "leak" in OPT:
        i = int(OPT["leak"])
        A("s_cmp_lg_u32 s2, 8")
        A("s_cbranch_scc1 c_noleak")
        A("s_cmp_lg_u32 s3, 0")
        A("s_cbranch_scc1 c_noleak")
        A("v_readlane_b32 s8, v63, 0")
        A(f"v_readlane_b32 s9, v{63 if i < 100 else 62}, {i % 100}")
        A("s_sub_u32 s9, s9, s8")
        A("s_memrealtime s[10:11]")
        A("s_waitcnt lgkmcnt(0)")
        A("s_add_u32 s9, s9, s10")
        A("c_leak:")
        A("s_memrealtime s[10:11]")
        A("s_waitcnt lgkmcnt(0)")
        A("s_sub_u32 s12, s9, s10")
        A("s_cmp_gt_i32 s12, 0")
        A("s_cbranch_scc1 c_leak")
        A("c_noleak:")
    ST.flush()
    ST2.flush()
    A("s_endpgm")
    for name, m in slowp:
        A(f"{name}_s:")
        A(f"s_mov_b32 s89, {SPIN}")
        A(f"{name}_l:")
        A("s_waitcnt vmcnt(0)")
        A(HFL)
        A("s_waitcnt vmcnt(0)")
        A("v_cmp_eq_u32 s[90:91], 1, v19")
        A(f"s_and_b32 s88, s90, {m:#x}")
        A(f"s_cmp_eq_u32 s88, {m:#x}")
        A(f"s_cbranch_scc1 {name}")
        A("s_sub_u32 s89, s89, 1")
        A(f"s_cbranch_scc1 {name}")
        A(f"s_branch {name}_l")

def helper(A):
    V = VQ(A)
    VA, VB = 8, 12
    ST = Stamper(A, 0, 58)
    STH = Stamper(A, 1, 59)
    ST()
    if "hprio1" in OPT: A(f"s_setprio {OPT['hprio1']}")
    A("s_sub_u32 s3, s3, 4")
    A("s_lshr_b32 s6, s3, 1")
    A("s_and_b32 s7, s3, 1")
    A("v_lshrrev_b32 v3, 5, v1")
    A("v_lshlrev_b32 v3, 5, v3")
    A("v_bfe_u32 v4, v1, 3, 1")
    A("v_lshl_add_u32 v3, v4, 4, v3")
    A("v_bfe_u32 v4, v1, 4, 1")
    A("v_add_u32 v3, v3, v4")
    A("s_lshl_b32 s8, s4, 7")
    A("s_lshl_b32 s9, s6, 6")
    A("s_add_u32 s8, s8, s9")
    A("s_lshl_b32 s9, s7, 3")
    A("s_add_u32 s8, s8, s9")
    A("v_add_u32 v3, s8, v3")
    A("v_lshlrev_b32 v3, 11, v3")
    A("v_and_b32 v4, 7, v1")
    A("v_lshrrev_b32 v5, 4, v1")
    A("v_xor_b32 v4, v4, v5")
    A("v_lshlrev_b32 v4, 4, v4")
    A("v_xor_b32 v5, 64, v4")
    A("s_lshl_b32 s8, s5, 6")
    A("s_lshl_b32 s9, s7, 5")
    A("s_add_u32 s8, s8, s9")
    A("v_lshrrev_b32 v6, 3, v1")
    A("v_add_u32 v7, s8, v6")
    A("v_lshlrev_b32 v7, 11, v7")
    for n in range(4):
        c = 4 + (n & 1)
        A(f"v_add_u32 v{VA+n}, v3, v{c}")
        A(f"v_add_u32 v{VB+n}, v7, v{c}")
        if n:
            A(f"v_add_u32 v{VA+n}, {n*(4096-1024)}, v{VA+n}")
            A(f"v_add_u32 v{VB+n}, {n*(16384-1024)}, v{VB+n}")
    A("s_lshl_b32 s10, s3, 12")
    A("s_lshr_b32 s90, s55, 2")
    A("s_lshl_b32 s90, s90, 1")
    A("s_and_b32 s91, s55, 3")
    A("s_lshl_b32 s91, s91, 2")
    A("s_add_u32 s90, s90, s91")
    A("s_waitcnt lgkmcnt(0)")
    srd(A, 56, "x", 4 << 20)
    A("s_cmp_ge_u32 s3, 2")
    A(f"s_cselect_b32 s60, s{P['Bim']}, s{P['Bre']}")
    A(f"s_cselect_b32 s61, s{P['Bim']+1}, s{P['Bre']+1}")
    A(f"s_mov_b32 s62, {2<<20:#x}")
    A("s_mov_b32 s63, 0x20000")
    def issue(st, fill=0):
        slot = st % 3
        A(f"s_add_u32 s11, s90, {st}")
        A("s_and_b32 s11, s11, 15")
        A("s_lshl_b32 s11, s11, 7")
        A(f"s_add_u32 m0, s10, {slot*32768:#x}")
        for n in range(4):
            V.issue(f"buffer_load_dwordx4 v{VA+n}, s[56:59], s11 offen offset:{n*1024} lds")
            if fill: do_work(fill)
        A(f"s_add_u32 m0, s10, {slot*32768+16384:#x}")
        for n in range(4):
            V.issue(f"buffer_load_dwordx4 v{VB+n}, s[60:63], s11 offen offset:{n*1024} lds", ("S", st))
            if fill: do_work(fill)
    issue(0)
    VC = 28
    A("s_and_b32 s8, s5, 7")
    A("s_lshl_b32 s8, s8, 6")
    A("s_lshl_b32 s9, s3, 4")
    A("s_add_u32 s8, s8, s9")
    A("v_add_u32 v7, s8, v6")
    A("v_lshlrev_b32 v7, 11, v7")
    A(f"v_add_u32 v{VC}, v7, v4")
    A(f"v_add_u32 v{VC+1}, v7, v5")
    A(f"v_add_u32 v{VC+1}, {16384-1024}, v{VC+1}")
    A("s_and_b32 s12, s55, 1")
    A("s_lshl_b32 s13, s54, 1")
    A("s_add_u32 s12, s12, s13")
    A("s_lshr_b32 s13, s55, 1")
    A("s_lshl_b32 s8, s2, 7")
    A(f"s_add_u32 s8, s8, {KF_OFF:#x}")
    A("v_mov_b32 v30, s8")
    A("s_lshl_b32 s88, s54, 5")
    A("s_add_u32 s88, s88, s55")
    A("s_lshl_b32 s8, s88, 7")
    A(f"s_add_u32 s8, s8, {YF_OFF:#x}")
    A("v_mov_b32 v31, s8")
    A("s_lshl_b32 s88, s88, 2")
    A("s_add_u32 s88, s88, s3")
    A("v_mov_b32 v2, 0")
    srd(A, 92, "ws", FLG_SZ, WS_FLG)
    A("s_lshl_b32 s8, s88, 12")
    A(f"s_load_dword s100, {sp('ssmk')}, s8")
    A("s_lshr_b32 s8, s88, 1")
    A("s_lshl_b32 s8, s8, 2")
    A(f"s_load_dword s101, {sp('ssmD')}, s8")
    V.issue("buffer_store_dword v2, v30, s[92:95], 0 offen sc1")
    V.issue("buffer_store_dword v2, v31, s[92:95], 0 offen sc1", "clr")
    issue(1)
    KR, VR_, SK = 32, 208, 68
    XG, GW = 72, 88
    A("s_lshl_b32 s13, s13, 7")
    A("s_lshl_b32 s14, s3, 5")
    A("s_add_u32 s13, s13, s14")
    A("v_and_b32 v17, 31, v1")
    A("s_lshl_b32 s14, s12, 5")
    A("v_add_u32 v17, s14, v17")
    A("v_lshlrev_b32 v22, 4, v17")
    A("v_and_b32 v23, 31, v1")
    A("v_mul_u32_u24 v23, 544, v23")
    A("v_lshrrev_b32 v24, 5, v1")
    A("v_lshlrev_b32 v24, 5, v24")
    A("v_sub_u32 v23, v23, v24")
    A("s_lshl_b32 s8, s3, 6")
    A(f"s_sub_u32 s8, {UREG+224}, s8")
    A("v_add_u32 v23, s8, v23")
    A("v_lshrrev_b32 v24, 4, v1")
    A("s_lshl_b32 s8, s3, 4")
    A("v_add_u32 v24, s8, v24")
    A("v_and_b32 v2, 15, v1")
    A("v_lshlrev_b32 v2, 4, v2")
    A("s_lshl_b32 s8, s12, 6")
    A("v_add_u32 v27, s8, v24")
    A("v_lshl_add_u32 v27, v27, 12, v2")
    A("s_lshr_b32 s8, s55, 1")
    A("s_lshl_b32 s8, s8, 8")
    A("s_sub_u32 s8, 3840, s8")
    A("v_add_u32 v27, s8, v27")
    A("v_mul_u32_u24 v24, 272, v24")
    A("v_add_u32 v24, v24, v2")
    A(f"v_add_u32 v24, {UREG:#x}, v24")
    A("s_lshl_b32 s14, s4, 7")
    A("s_lshl_b32 s8, s5, 3")
    A("s_add_u32 s14, s14, s8")
    A("s_lshl_b32 s8, s3, 1")
    A("s_add_u32 s14, s14, s8")
    A("s_lshl_b32 s8, s14, 11")
    A("v_lshlrev_b32 v25, 4, v1")
    A("v_add_u32 v26, s8, v25")
    A("v_add_u32 v3, 0x8000, v27")
    srd(A, 64, "k", 4 << 20)
    srd(A, 68, "v", 4 << 20)
    srd(A, 72, "ws", 4 << 20, WS_KVT)
    srd(A, 76, "ws", 8192, WS_G)
    for i in range(8):
        A(f"s_mov_b32 s{80+i}, {i*4096}")
    NTP = " nt" if "ntp" in OPT else ""
    A("v_lshrrev_b32 v19, 3, v1")
    A("v_add_u32 v19, s13, v19")
    A("v_lshlrev_b32 v19, 11, v19")
    A("v_and_b32 v20, 7, v1")
    A("v_lshl_add_u32 v19, v20, 4, v19")
    A("s_lshl_b32 s8, s12, 7")
    A("v_add_u32 v19, s8, v19")
    A("v_subrev_u32 v20, 16384, v19")
    A("v_lshrrev_b32 v21, 5, v1")
    A("v_lshlrev_b32 v21, 11, v21")
    A("v_and_b32 v18, 31, v1")
    A("v_lshl_add_u32 v21, v18, 2, v21")
    A("s_lshl_b32 s8, s3, 12")
    A(f"s_add_u32 s91, s8, {KREG}")
    A("v_add_u32 v21, s91, v21")
    def kvdma():
        A("s_add_u32 m0, s91, 16384")
        V.issue(f"buffer_load_dwordx4 v20, s[64:67], 0 offen{NTP} lds")
        for i in range(4):
            A(f"s_add_u32 m0, s91, {16384 + 1024*(i+1)}")
            A(f"s_mov_b32 s99, {i*16384}")
            V.issue(f"buffer_load_dwordx4 v19, s[64:67], s99 offen{NTP} lds")
        V.issue(f"global_load_dwordx4 {vr(SK,4)}, v22, {sp('shk')}", "k")
        for i in range(4):
            A(f"s_add_u32 m0, s91, {1024*i}")
            A(f"s_mov_b32 s99, {i*16384}")
            V.issue(f"buffer_load_dwordx4 v19, s[68:71], s99 offen{NTP} lds", "v")
    gl = []
    for r in range(2):
        for hh in range(2): gl.append((f"buffer_load_dwordx4 {vr(XG+r*8+hh*4,4)}, v26, s[56:59], 0 offen offset:{r*2048+hh*1024}", None))
    for hh in range(2): gl.append((f"global_load_dwordx4 {vr(GW+hh*4,4)}, v25, {sp('gw')} offset:{hh*1024}", "gate"))
    KF = 96; SP = 136; OUT = 144
    work = []
    def W(x):
        if callable(x): work.append(x)
        else: work.extend(x.split("\n"))
    def rndW(pair, tmp):
        W(f"v_cvt_pk_bf16_f32 v{tmp}, v{pair}, v{pair+1}")
        W(f"v_lshlrev_b32 v{pair}, 16, v{tmp}")
        W(f"v_and_b32 v{pair+1}, s12, v{tmp}")
    W("s_mov_b32 s12, 0xffff0000")
    W(lambda: V.wait("gate"))
    for i in range(8):
        W(f"v_lshlrev_b32 v{96+2*i}, 16, v{GW+i}")
        W(f"v_and_b32 v{97+2*i}, s12, v{GW+i}")
    for r in range(2):
        acc = 112 + r
        W(f"v_mov_b32 v{acc}, 0")
        for i in range(8):
            W(f"v_lshlrev_b32 v116, 16, v{XG+r*8+i}")
            W(f"v_and_b32 v117, s12, v{XG+r*8+i}")
            W(pk("mul", 116, 116, 96+2*i))
            rndW(116, 118)
            W(f"v_add_f32 v{acc}, v{acc}, v116")
            W(f"v_add_f32 v{acc}, v{acc}, v117")
    for r in range(2):
        acc = 112 + r
        for sh in (1, 2, 4, 8):
            W(f"v_add_f32_dpp v{acc}, v{acc}, v{acc} row_shr:{sh} row_mask:0xf bank_mask:0xf bound_ctrl:0")
        W(f"v_add_f32_dpp v{acc}, v{acc}, v{acc} row_bcast:15 row_mask:0xa bank_mask:0xf")
        W(f"v_add_f32_dpp v{acc}, v{acc}, v{acc} row_bcast:31 row_mask:0xc bank_mask:0xf")
    for t in ["v_readlane_b32 s8, v112, 63", "v_readlane_b32 s9, v113, 63", "v_mov_b32 v116, s8", "v_mov_b32 v117, s9",
              "v_cmp_eq_u32 vcc, 1, v1", "v_cndmask_b32 v116, v116, v117, vcc", "v_cvt_pk_bf16_f32 v116, v116, v116",
              "v_lshlrev_b32 v116, 16, v116", "v_mul_f32 v116, 0xbfb8aa3b, v116", "v_exp_f32 v116, v116", "v_add_f32 v116, 1.0, v116",
              "v_rcp_f32 v116, v116", "v_cvt_pk_bf16_f32 v117, v116, v116", "v_lshlrev_b32 v116, 16, v117", "v_sub_f32 v118, 1.0, v116",
              "v_cvt_pk_bf16_f32 v116, v116, v118", "s_lshl_b32 s14, s14, 2", "v_lshl_add_u32 v117, v1, 2, s14"]:
        W(t)
    def gstore():
        A("s_mov_b64 exec, 3")
        V.issue("buffer_store_dword v116, v117, s[76:79], 0 offen sc1", "g")
        A("s_mov_b64 exec, -1")
    W(gstore)
    W("KVSTART")
    W(lambda: V.wait("k"))
    for i in range(19):
        W(f"ds_read_b32 v{KR+i}, v21 offset:{16384 + (5+i)*128}")
        if i == 9: W("s_waitcnt lgkmcnt(0)")
    W("s_waitcnt lgkmcnt(0)")
    for i in range(19):
        W(f"v_lshlrev_b32 v{KF+2*i}, 16, v{KR+i}")
        W(f"v_and_b32 v{KF+2*i+1}, s12, v{KR+i}")
    for jx in range(4):
        for cc in range(2):
            src = SK + cc*2 + (jx >> 1)
            W(f"v_and_b32 v{SP+2*jx+cc}, s12, v{src}" if jx & 1 else f"v_lshlrev_b32 v{SP+2*jx+cc}, 16, v{src}")
    W(lambda: V.wait("v"))
    for i in range(16):
        W(f"ds_read_b32 v{VR_+i}, v21 offset:{i*128}")
        if i == 7: W("s_waitcnt lgkmcnt(0)")
    W("s_waitcnt lgkmcnt(0)")
    for t in range(16):
        vv = 176 + (t & 1)*2
        W(f"v_lshlrev_b32 v{vv}, 16, v{VR_+t}")
        W(f"v_and_b32 v{vv+1}, s12, v{VR_+t}")
        if opt("pk", 0) & 2:
            o = OUT + 2*t
            W(f"v_pk_mul_f32 {vr(o,2)}, {vr(KF+2*t,2)}, {vr(SP+6,2)}")
            for jx in (2, 1, 0): W(f"v_pk_fma_f32 {vr(o,2)}, {vr(KF+2*(t+3-jx),2)}, {vr(SP+2*jx,2)}, {vr(o,2)}")
            W(f"v_pk_mul_f32 {vr(o,2)}, {vr(o,2)}, {vr(vv,2)}")
            continue
        for cc in range(2): W(f"v_mul_f32 v{OUT+2*t+cc}, v{KF+2*t+cc}, v{SP+6+cc}")
        for jx in (2, 1, 0):
            for cc in range(2): W(f"v_fmac_f32 v{OUT+2*t+cc}, v{KF+2*(t+3-jx)+cc}, v{SP+2*jx+cc}")
        for cc in range(2): W(f"v_mul_f32 v{OUT+2*t+cc}, v{OUT+2*t+cc}, v{vv+cc}")
    for cc in range(2):
        for hf in range(2):
            d = 192 + (cc*2+hf)*4
            for m in range(4):
                mm = hf*4 + m
                W(f"v_cvt_pk_bf16_f32 v{d+m}, v{OUT+2*(15-2*mm)+cc}, v{OUT+2*(14-2*mm)+cc}")
            W(f"ds_write_b128 v23, {vr(d,4)} offset:{cc*272+hf*16}")
    W("s_waitcnt lgkmcnt(0)")
    W("BARRIER")
    for i in range(4): W(f"ds_read_b128 {vr(192+4*i,4)}, v24 offset:{i*4*272}")
    KVL = "nokvl" not in OPT
    def kvstores():
        def block(pol):
            for i in range(4):
                A(f"s_waitcnt lgkmcnt({3-i})")
                V.issue(f"buffer_store_dwordx4 {vr(192+4*i,4)}, v{27 if i < 2 else 3}, s[72:75], s{80+4*(i&1)} offen{pol}", "kvt")
        if not KVL:
            block(" sc1"); return
        V.wait("cls")
        local_check(A, 247, 246, 96, 98)
        A("s_cbranch_scc0 h_kvl")
        n0 = V.n
        block(" sc1")
        A("s_branch h_kve")
        A("h_kvl:")
        V.n = n0
        block("")
        A("h_kve:")
    W(kvstores)
    wpos = [0]
    blocked = [False]
    cur = [0]
    PL = opt("pl", 1)
    KVW = PL + opt("kvd", 3)
    def do_work(n):
        while n > 0 and wpos[0] < len(work) and not blocked[0]:
            w = work[wpos[0]]
            wpos[0] += 1
            if w == "BARRIER":
                blocked[0] = True; return
            if w == "KVSTART":
                if cur[0] < KVW:
                    wpos[0] -= 1; return
                continue
            if callable(w): w()
            else: A(w)
            n -= 1
    PREP0 = opt("prep0", 1)
    UL = 40
    ACC = 64; BF = 96; AFR = 160; KD = 224
    def setup_conv(A):
        A("s_lshl_b32 s12, s88, 12")
        srd(A, 64, "ssmk", 4096, off_sreg=12)
        srd(A, 68, "ws", 4096, WS_KVT, off_sreg=12)
        A("s_mov_b32 s80, s100")
        A("s_mov_b32 s81, s101")
        A("v_and_b32 v37, 15, v1")
        A("s_lshr_b32 s8, s88, 6")
        A("s_and_b32 s8, s8, 1")
        A("s_lshl_b32 s8, s8, 3")
        A("s_add_u32 s8, s8, s54")
        A("v_lshl_add_u32 v32, v37, 4, s8")
        A("s_lshr_b32 s8, s4, 2")
        A("s_lshl_b32 s8, s8, 1")
        A("s_and_b32 s9, s4, 3")
        A("s_lshl_b32 s9, s9, 3")
        A("s_add_u32 s8, s8, s9")
        A("v_lshrrev_b32 v38, 3, v37")
        A("v_and_b32 v39, 7, v37")
        A("v_lshl_add_u32 v38, v39, 5, v38")
        A("v_add_u32 v38, s8, v38")
        A("v_and_b32 v39, 16, v1")
        A("v_cmp_ne_u32 vcc, 0, v39")
        A("v_cndmask_b32 v32, v32, v38, vcc")
        A("v_lshlrev_b32 v32, 7, v32")
        A(f"v_add_u32 v32, {KF_OFF:#x}, v32")
        A("v_lshlrev_b32 v33, 2, v1")
        srd(A, 76, "dbg", 256)
        A(f"s_mul_i32 s13, s3, 8320")
        A(f"s_add_u32 s13, s13, {KREG}")
        A(f"s_mul_i32 s82, s3, 4608")
        A(f"s_add_u32 s82, s82, {UREG}")
        A("v_add_u32 v36, 2, v25")
        A("v_and_b32 v38, 7, v1")
        A("v_lshlrev_b32 v38, 2, v38")
        A("v_bfe_u32 v39, v1, 3, 1")
        A("v_mul_u32_u24 v39, 4160, v39")
        A("v_add3_u32 v38, v38, v39, s13")
        A("s_lshl_b32 s80, s80, 16")
        A("v_mov_b32 v56, s80")
        A("v_cmp_eq_u32 vcc, 15, v37")
        A("v_cndmask_b32 v56, 0, v56, vcc")
        A("ds_write_b32 v38, v56")
        A("s_and_b32 s14, s88, 1")
        A("s_lshl_b32 s14, s14, 4")
        A("s_lshr_b32 s81, s81, s14")
        A("s_lshl_b32 s81, s81, 16")
        A(f"v_mov_b32 v60, {LFLAG:#x}")
        A("v_mov_b32 v61, 1")
    def setup_late(A):
        A("v_lshrrev_b32 v5, 4, v1")
        A("v_and_b32 v37, 15, v1")
        A("v_lshl_add_u32 v38, v5, 3, v37")
        A("v_lshlrev_b32 v38, 1, v38")
        A("v_and_b32 v39, 1, v1")
        A("v_mul_u32_u24 v39, 4158, v39")
        A("v_sub_u32 v38, v38, v39")
        A("s_add_u32 s14, s13, 4160")
        A("v_add_u32 v16, s14, v38")
        for i in range(1, 4): A(f"v_add_u32 v{16+i}, {1024*i}, v16")
        A("v_lshlrev_b32 v38, 5, v37")
        A("v_lshlrev_b32 v39, 4, v5")
        A("v_sub_u32 v20, v39, v38")
        A("s_add_u32 s14, s82, 480")
        A("v_add_u32 v20, s14, v20")
        A("v_lshl_add_u32 v39, v5, 3, v38")
        A("s_add_u32 s14, s82, 504")
        A("v_sub_u32 v21, s14, v39")
        A("v_and_b32 v39, 1, v5")
        A("v_lshl_add_u32 v22, v39, 9, v38")
        A("v_lshrrev_b32 v39, 1, v5")
        A("v_lshl_add_u32 v22, v39, 4, v22")
        A("v_add_u32 v23, s82, v25")
    setup_conv(W)
    print("prep work items", len(work))
    def cissue(st):
        tile_of(A, st >> 1, 11)
        A("s_lshl_b32 s11, s11, 7")
        sr_ = "s[56:59]" if st % 2 == 0 else "s[60:63]"
        A("s_add_u32 s99, s11, s91")
        A(f"s_add_u32 m0, s10, {(st % NS2)*16384:#x}")
        for n in range(2):
            V.issue(f"buffer_load_dwordx4 v{VC+n}, {sr_}, s99 offen offset:{n*1024} lds")
        A("s_add_u32 s11, s11, s90")
        A(f"s_add_u32 m0, s10, {(st % NS2)*16384 + 8192:#x}")
        for n in range(2):
            V.issue(f"buffer_load_dwordx4 v{VC+n}, {sr_}, s11 offen offset:{n*1024} lds", ("C", st))
    def uloads():
        for i in range(4): A(f"buffer_load_dwordx4 {vr(UL+4*i,4)}, v25, s[68:71], 0 offen offset:{i*1024} sc1")
    def ctouch():
        A("s_cmp_ge_u32 s3, 2")
        A(f"s_cselect_b32 s96, s{P['Cim']}, s{P['Cre']}")
        A(f"s_cselect_b32 s97, s{P['Cim']+1}, s{P['Cre']+1}")
        A("s_lshl_b32 s98, s2, 13")
        A("s_and_b32 s99, s3, 1")
        A("s_lshl_b32 s99, s99, 12")
        A("s_add_u32 s98, s98, s99")
        A("v_and_b32 v240, 31, v1")
        A("v_lshl_add_u32 v240, v240, 7, s98")
        V.issue("global_load_dword v241, v240, s[96:97]")
    FILL = opt("fill", 10)
    kst = [None]
    KW = opt("kw", 2)
    CHK = opt("chk", 13)
    KFS = opt("kfs", 12)
    KDS = opt("kds", 12)
    UWS = opt("uws", 14)
    WEND = min(KFS, KDS, 12)
    CM = opt("cm", 6)
    assert CHK < UWS <= 15
    nU = [0]; cdone = [0]
    NC0 = opt("nc0", 2)
    A(f"v_mov_b32 v6, {LFLAG:#x}")
    A("v_mov_b32 v7, 0")
    for o in (4, 8, 12, 16): A(f"ds_write_b32 v6, v7 offset:{o}")
    ST()
    A("s_waitcnt lgkmcnt(0)")
    V.wait("clr")
    ST()
    A("s_barrier")
    issue(2)
    for t, tag in gl: V.issue(t, tag)
    for s in range(N1):
        V.wait(("S", min(s+1, N1-1)))
        if kst[0] is not None and s == min(kst[0] + KW, 15): V.wait("kvt"); V.wait("g")
        if "fine1" in OPT: STH()
        A("s_barrier")
        if kst[0] is not None and s == min(kst[0] + KW, 15):
            A("s_cmp_lg_u32 s3, 0")
            A("s_cbranch_scc1 h_kflag")
            A("v_mov_b32 v6, 1")
            A("buffer_store_dword v6, v30, s[92:95], 0 offen sc1")
            A("h_kflag:")
            print("k flag after barrier", s+1)
        blocked[0] = False
        cur[0] = s
        FM = opt("fmode", 0)
        if s+3 < N1 and FM == 0: issue(s+3, FILL if s >= PREP0 else 0)
        elif s+3 < N1 and FM == 1:
            issue(s+3)
            if s >= PREP0: do_work(8*FILL)
        if s == PL - 100: pass
        if s == PL: kvdma()
        if s == CM: ctouch()
        if KVL and s == opt("cls", 6):
            A("v_lshlrev_b32 v246, 2, v1")
            V.issue(f"global_load_dword v247, v246, {sp('dbg')} sc1", "cls")
        if kst[0] is None and "kvt" in V.tags and "g" in V.tags: kst[0] = s
        if s == WEND:
            do_work(10000)
            assert wpos[0] == len(work), (wpos[0], len(work))
        if s == KFS:
            V.issue("buffer_load_dword v34, v33, s[76:79], 0 offen sc1")
            V.issue("buffer_load_dword v35, v32, s[92:95], 0 offen sc1", "kf")
            ST()
        if s == KDS and KDS < CHK:
            V.wait("g")
            A("s_add_u32 m0, s13, 32")
            for i in range(4): V.issue(f"buffer_load_dwordx4 v25, s[64:67], 0 offen offset:{i*1024}{NTP} lds")
            A("s_add_u32 m0, s13, 4192")
            for i in range(4): V.issue(f"buffer_load_dwordx4 v36, s[64:67], 0 offen offset:{i*1024}{NTP} lds", "K")
        if s == 13:
            srd(A, 56, "Cre", 2 << 20)
            srd(A, 60, "Cim", 2 << 20)
            A("s_lshl_b32 s10, s3, 11")
            A(f"s_add_u32 s10, s10, {CRING:#x}")
            A("s_lshr_b32 s90, s5, 3")
            A("s_xor_b32 s91, s90, 1")
            A("s_lshl_b32 s91, s91, 20")
            A("s_lshl_b32 s11, s90, 10")
            A("s_add_u32 s91, s91, s11")
            A("s_mul_i32 s90, s90, 0x100400")
            A("v_mov_b32 v56, 0")
            A("v_mov_b32 v57, 0")
            A("v_lshlrev_b32 v38, 3, v1")
            A("v_add_u32 v38, s82, v38")
            A("ds_write_b64 v38, v[56:57] offset:4096")
            ST()
        if s == CHK:
            V.wait("kf")
            A("s_mov_b32 s83, 0")
            A("v_and_b32 v34, 15, v34")
            A("v_cmp_ne_u32 vcc, 15, v34")
            A("v_cmp_ne_u32 s[84:85], 1, v35")
            A("s_or_b64 vcc, vcc, s[84:85]")
            A("s_cbranch_scc1 h_nou")
            A("s_mov_b32 s83, 1")
            uloads()
            A("h_nou:")
            nU[0] = V.n
        if s == KDS and KDS >= CHK:
            V.wait("g")
            A("s_add_u32 m0, s13, 32")
            for i in range(4): V.issue(f"buffer_load_dwordx4 v25, s[64:67], 0 offen offset:{i*1024}{NTP} lds")
            A("s_add_u32 m0, s13, 4192")
            for i in range(4): V.issue(f"buffer_load_dwordx4 v36, s[64:67], 0 offen offset:{i*1024}{NTP} lds", "K")
        if s == opt("lates", 14): setup_late(A)
        if s == 15:
            for z in range(NC0): cissue(z)
            cdone[0] = NC0
        if s == UWS:
            A("s_cmp_lg_u32 s83, 1")
            A("s_cbranch_scc1 h_nouw")
            A(f"s_waitcnt vmcnt({V.n - nU[0]})")
            for i in range(4): A(f"ds_write_b128 v23, {vr(UL+4*i,4)} offset:{1024*i}")
            A("h_nouw:")
    ST()
    if "hprio1" in OPT: A("s_setprio 0")
    A("s_cmp_lg_u32 s83, 0")
    A("s_cbranch_scc1 h_haveu")
    spin_all(A, "h_init", 34, "buffer_load_dword v34, v33, s[76:79], 0 offen sc1", "15", pre="v_and_b32 v34, 15, v34")
    spin_all(A, "h_kf", 35, "buffer_load_dword v35, v32, s[92:95], 0 offen sc1")
    uloads()
    A("s_waitcnt vmcnt(0)")
    for i in range(4): A(f"ds_write_b128 v23, {vr(UL+4*i,4)} offset:{1024*i}")
    A("h_haveu:")
    V.done = max(V.done, nU[0])
    V.wait("K")
    lds_inc(A, 60, 61, 8)
    for i in range(4): A(f"s_mov_b32 s{84+i}, s{68+i}")
    srd(A, 68, "ws", 4 << 20, WS_KVT)
    A("s_waitcnt lgkmcnt(0)")
    ST()
    L = LQ(A)
    ops = []
    def reads(r):
        R = []
        s = r & 1
        for i in range(8):
            R.append((f"ds_read_b128 {vr(BF+s*32+i*4,4)}, v20 offset:{3584-512*i+64*r}", ("B", r, i)))
            o = 128*(i & 1) + 16*r
            d = AFR + s*32 + i*4
            R.append((f"ds_read2_b32 {vr(d,2)}, v{16+(i>>1)} offset0:{o} offset1:{o+1}", None))
            R.append((f"ds_read2_b32 {vr(d+2,2)}, v{16+(i>>1)} offset0:{o+2} offset1:{o+3}", ("A", r, i)))
        return R
    def first_order(R):
        return R[1:3] + [R[3*i] for i in range(8)] + [x for i in range(1, 8) for x in R[3*i+1:3*i+3]]
    KVT = 40
    for n in range(8): ops.append(("rd", f"ds_read_b64 {vr(KVT+2*n,2)}, v21 offset:{3584-512*n}", ("KV", n)))
    for t, tag in first_order(reads(0)): ops.append(("rd", t, tag))
    fill = []
    fill.append(("s_mov_b32 s12, 0xffff0000", None)); fill.append(("v_mov_b32 v26, s81", None))
    for n in range(8):
        k = KD + 4*n
        c = [f"v_and_b32 v{k}, s12, v{KVT+2*n+1}", f"v_lshlrev_b32 v{k+1}, 16, v{KVT+2*n+1}", f"v_and_b32 v{k+2}, s12, v{KVT+2*n}", f"v_lshlrev_b32 v{k+3}, 16, v{KVT+2*n}"]
        c += [f"v_mul_f32 v{k+i}, v{k+i}, v26" for i in range(4)]
        c += [f"v_cvt_pk_bf16_f32 v56, v{k}, v{k+1}", f"v_cvt_pk_bf16_f32 v57, v{k+2}, v{k+3}",
              f"v_lshlrev_b32 v{k}, 16, v56", f"v_and_b32 v{k+1}, s12, v56", f"v_lshlrev_b32 v{k+2}, 16, v57", f"v_and_b32 v{k+3}, s12, v57"]
        for i, t in enumerate(c): fill.append((t, ("KV", n) if i == 0 else None))
    YD = 40
    def post(n):
        y = ACC + 4*n; k = KD + 4*n
        d = YD + (n >> 1)*4 + (n & 1)*2
        c = [f"v_cvt_pk_bf16_f32 v56, v{y}, v{y+1}", f"v_cvt_pk_bf16_f32 v57, v{y+2}, v{y+3}",
             f"v_lshlrev_b32 v{y}, 16, v56", f"v_and_b32 v{y+1}, s12, v56", f"v_lshlrev_b32 v{y+2}, 16, v57", f"v_and_b32 v{y+3}, s12, v57"]
        c += [f"v_add_f32 v{k+i}, v{k+i}, v{y+i}" for i in range(4)]
        c += [f"v_cvt_pk_bf16_f32 v{d}, v{k}, v{k+1}", f"v_cvt_pk_bf16_f32 v{d+1}, v{k+2}, v{k+3}"]
        if n & 1:
            d = YD + (n >> 1)*4
            c += [f"v_permlane16_swap_b32 v{d}, v{d+2}", f"v_permlane16_swap_b32 v{d+1}, v{d+3}"]
        return c
    ystores = [f"buffer_store_dwordx4 {vr(YD+4*k,4)}, v22, s[84:87], 0 offen offset:{k*1024} sc1" for k in range(4)]
    LATEC = opt("latec", 200)
    CFM = opt("cfm", 80)
    FPM = opt("fpm", 2)
    nmf = 0
    postq = []
    for r in range(8):
        s = r & 1
        nxt = first_order(reads(r+1)) if r < 7 else []
        cnt = 0
        for q in range(8):
            for n in range(q, 8):
                c = vr(ACC+4*n, 4)
                ops.append(("mf", f"v_mfma_f32_16x16x32_bf16 {c}, {vr(AFR+s*32+4*q,4)}, {vr(BF+s*32+4*(n-q),4)}, {'0' if (r == 0 and q == 0) else c}",
                            [("A", r, q), ("B", r, n-q)]))
                nmf += 1; cnt += 1
                if nxt and cnt >= 2:
                    t, tag = nxt.pop(0); ops.append(("rd", t, tag))
                elif r < 7:
                    for z in range(FPM):
                        if fill: ops.append(("fill",) + fill.pop(0))
                if nmf == LATEC: ops.append(("latec",))
                if nmf == CFM: ops.append(("cf",))
                if r == 7:
                    if n == q: postq += [(nmf + 3, t) for t in post(n)]
                    for z in range(opt("ppm", 3)):
                        if postq and postq[0][0] <= nmf and q < 7: ops.append(("fill", postq.pop(0)[1], None))
        assert not nxt
    assert not fill and CFM < LATEC
    for _, t in postq: ops.append(("fill", t, None))
    for op in ops:
        if op[0] == "rd": L.issue(op[1], op[2])
        elif op[0] == "mf":
            for t in op[2]: pass
            k = max(op[2], key=lambda t: L.tags[t])
            L.wait(k)
            A(op[1])
        elif op[0] == "fill":
            if op[2] is not None: L.wait(op[2])
            A(op[1])
        elif op[0] == "latec":
            while cdone[0] < NS2: cissue(cdone[0]); cdone[0] += 1
        elif op[0] == "cf":
            while cdone[0] < 2: cissue(cdone[0]); cdone[0] += 1
            V.wait(("C", 1))
            lds_inc(A, 60, 61, 16); L.n += 1
    ST()
    YST = opt("yst", 0)
    if YST == 0:
        for t in ystores: V.issue(t, "y2")
    A("v_lshrrev_b32 v8, 4, v1")
    A("s_lshl_b32 s8, s3, 4")
    A("v_add_u32 v8, s8, v8")
    A("v_and_b32 v11, 15, v1")
    A("s_lshl_b32 s9, s5, 11")
    A(f"s_add_u32 s9, s9, {YF_OFF:#x}")
    A("v_lshl_add_u32 v10, v11, 7, s9")
    A("v_lshlrev_b32 v11, 4, v11")
    A("v_mul_u32_u24 v9, 272, v8")
    A("v_add_u32 v9, v9, v11")
    A("s_lshl_b32 s8, s5, 6")
    A("v_add_u32 v8, s8, v8")
    A("v_lshl_add_u32 v8, v8, 12, v11")
    A("s_lshl_b32 s8, s4, 8")
    A("v_add_u32 v8, s8, v8")
    srd(A, 64, "x", 4 << 20)
    A("s_lshl_b32 s8, s4, 2")
    A("s_add_u32 s8, s8, s3")
    A("s_lshl_b32 s8, s8, 5")
    A("v_lshrrev_b32 v12, 3, v1")
    A("v_add_u32 v12, s8, v12")
    A("v_lshlrev_b32 v12, 11, v12")
    A("v_and_b32 v11, 7, v1")
    A("v_lshl_add_u32 v12, v11, 4, v12")
    A("s_lshl_b32 s8, s5, 7")
    A("v_add_u32 v12, s8, v12")
    ST()
    YR = 116
    YFL_LD = "buffer_load_dword v19, v10, s[92:95], 0 offen sc1"
    YFL, GYF, GYL, GYW = opt("yfl", 5), opt("gyf", 8), opt("gyl", 10), opt("gyw", 12)
    XGS = opt("xgs", 7); XGW = opt("xgw", 10)
    assert XGS < XGW <= N2 - 2
    for st in range(1, N2-1):
        V.wait(("C", st+1))
        if st == XGW: V.wait("xt")
        if "fineh" in OPT: STH()
        A("s_barrier")
        if NS2 <= st + NS2 - 1 < N2: cissue(st + NS2 - 1)
        if "abl" in OPT and st >= 2 and st < 13 and int(OPT["abl"]) & 1:
            continue_ = True
            for tg in ("y2", "xt", "yf", "eps"): V.tags.setdefault(tg, 0)
            continue
        if YST and st == YST:
            for t in ystores: V.issue(t, "y2")
        if st == XGS:
            for i in range(4):
                A(f"s_add_u32 m0, s82, {i*1024}")
                A(f"s_mov_b32 s8, {i*16384}")
                V.issue("buffer_load_dwordx4 v12, s[64:67], s8 offen lds", "xt")
        if st == YFL:
            V.wait("y2")
            A("s_mov_b64 exec, 1")
            A("ds_add_rtn_u32 v62, v60, v61 offset:4")
            A("s_mov_b64 exec, -1")
            A("s_waitcnt lgkmcnt(0)")
            A("v_readfirstlane_b32 s83, v62")
            A("s_cmp_lg_u32 s83, 3")
            A("s_cbranch_scc1 h_noy")
            A("buffer_store_dword v61, v31, s[92:95], 0 offen sc1")
            A("h_noy:")
        if st == GYF: V.issue(YFL_LD, "yf")
        if st == GYL:
            V.wait("yf")
            spin_all(A, "h_yf", 19, YFL_LD)
            for i in range(4):
                A(f"s_mov_b32 s8, {i*16384}")
                V.issue(f"buffer_load_dwordx4 {vr(YR+i*4,4)}, v8, s[68:71], s8 offen sc1", "eps")
        if st == GYW:
            V.wait("eps")
            for i in range(4): A(f"ds_write_b128 v9, {vr(YR+i*4,4)} offset:{i*4*272}")
            A("s_waitcnt lgkmcnt(0)")
    assert YST < YFL < GYF < GYL < GYW <= N2 - 3
    STH.flush()
    ST.flush()
    A("s_endpgm")

def build():
    s = header_comments()
    s += "; generated by tools/gen9.py (fused single kernel, split-K GEMM2; gen8 h layout)\n"
    s += "; @launch grid=(256,1,1) block=(512,1,1) lds=163840\n"
    s += '.amdgcn_target "amdgcn-amd-amdhsa--gfx950"\n.text\n'
    A = Asm()
    A.raw(f".globl {KN}\n.p2align 8\n.type {KN},@function")
    gen_kernel(A)
    s += A.render()
    s += descriptor(KN, 256, 102)
    import subprocess, tempfile, re
    with tempfile.TemporaryDirectory() as td:
        open(td + "/a.s", "w").write(s.replace("CODE_LAST", "0x12345"))
        subprocess.run(["clang", "-x", "assembler", "-target", "amdgcn-amd-amdhsa", "-mcpu=gfx950", "-c", td + "/a.s", "-o", td + "/a.o"], check=True)
        o = subprocess.run(["llvm-objdump", "-h", td + "/a.o"], capture_output=True, text=True).stdout
    size = int(re.search(r"\.text\s+([0-9a-f]+)", o).group(1), 16)
    print("code bytes", size)
    assert size <= 65536
    return s.replace("CODE_LAST", hex(size - 4))

if __name__ == "__main__":
    out = sys.argv[1] if len(sys.argv) > 1 and not sys.argv[1].startswith("--") else os.path.join(os.path.dirname(os.path.abspath(__file__)), "..", NAME + ".s")
    open(out, "w").write(build())
    print("wrote", out)
```

```python
import sys, os
sys.path.insert(0, os.path.dirname(os.path.abspath(__file__)))
from asmlib import Asm
from gen import (NAME, P, sp, vr, sr, load_kernargs, srd, pk, cmul, tile_ids, Stamper, OPT, header_comments, descriptor)
import gen

KN = NAME + "_kernel"
WS_H    = 0
WS_KVT  = 8 << 20
WS_G    = 16 << 20
WS_EBOX = 17 << 20
WS_FLG  = 18 << 20
HF_OFF  = 0
KF_OFF  = 128 << 10
YF_OFF  = 160 << 10
PF_OFF  = 192 << 10
FLG_SZ  = 320 << 10
WS_PART = 24 << 20
N1 = 16
N2 = 16
NS2 = 4
PD = 4
CRING = 32768
KREG = 98304
UREG = KREG + 4*8320
LFLAG = UREG + 4*4608
SPIN = int(OPT.get("spin", 1 << 16))
SLEEP = int(OPT.get("sleep", 4))
def opt(k, d): return int(OPT.get(k, d))

class VQ:
    def __init__(self, A): self.A = A; self.n = 0; self.tags = {}; self.done = 0
    def issue(self, text, tag=None):
        self.A(text); self.n += 1
        if tag is not None: self.tags[tag] = self.n
    def wait(self, tag):
        k = self.tags[tag]
        if k <= self.done: return
        cnt = min(63, self.n - k)
        self.A(f"s_waitcnt vmcnt({cnt})"); self.done = self.n - cnt
    def drained(self): self.done = self.n

class LQ:
    def __init__(self, A): self.A = A; self.n = 0; self.tags = {}; self.done = 0
    def issue(self, text, tag=None):
        self.A(text); self.n += 1
        if tag is not None: self.tags[tag] = self.n
    def wait(self, tag):
        k = self.tags[tag]
        if k > self.done:
            self.A(f"s_waitcnt lgkmcnt({min(15, self.n - k)})"); self.done = max(k, self.n - 15)
    def drain(self):
        self.A("s_waitcnt lgkmcnt(0)"); self.done = self.n

def spin_all(A, name, vreg, reload, cmpval="1", sctr=89, pre=None):
    A(f"s_mov_b32 s{sctr}, {SPIN}")
    A(f"{name}_chk:")
    if pre: A(pre)
    A(f"v_cmp_ne_u32 vcc, {cmpval}, v{vreg}")
    A("s_cmp_eq_u64 vcc, 0")
    A(f"s_cbranch_scc1 {name}_ok")
    A(f"s_sub_u32 s{sctr}, s{sctr}, 1")
    A(f"s_cbranch_scc1 {name}_ok")
    A(f"s_sleep {SLEEP}")
    A(reload)
    A("s_waitcnt vmcnt(0)")
    A(f"s_branch {name}_chk")
    A(f"{name}_ok:")

def lds_spin(A, name, vaddr, off, vtmp, target, stmp=8, sctr=89):
    A(f"s_mov_b32 s{sctr}, {SPIN*4}")
    A(f"{name}:")
    A(f"ds_read_b32 v{vtmp}, v{vaddr} offset:{off}")
    A("s_waitcnt lgkmcnt(0)")
    A(f"v_readfirstlane_b32 s{stmp}, v{vtmp}")
    A(f"s_cmp_ge_u32 s{stmp}, {target}")
    A(f"s_cbranch_scc1 {name}_ok")
    A(f"s_sub_u32 s{sctr}, s{sctr}, 1")
    A(f"s_cbranch_scc0 {name}")
    A(f"{name}_ok:")

def lds_inc(A, vaddr, vone, off):
    A("s_mov_b64 exec, 1")
    A(f"ds_add_u32 v{vaddr}, v{vone} offset:{off}")
    A("s_mov_b64 exec, -1")

def zip_chains(A, chains):
    chains = [[x for t in c for x in t.split("\n")] for c in chains]
    for i in range(max(len(c) for c in chains)):
        for c in chains:
            if i < len(c): A(c[i])

def local_check(A, vbits, vtmp, sdst_pair, stmp):
    A(f"s_getreg_b32 s{stmp}, hwreg(HW_REG_XCC_ID, 0, 4)")
    A(f"s_lshl_b32 s{stmp}, 0x100, s{stmp}")
    A(f"s_or_b32 s{stmp}, s{stmp}, 15")
    A(f"v_and_b32 v{vtmp}, 7, v1")
    A(f"v_cmp_eq_u32 s[{sdst_pair}:{sdst_pair+1}], s54, v{vtmp}")
    A(f"v_cmp_ne_u32 vcc, s{stmp}, v{vbits}")
    A(f"s_and_b64 vcc, vcc, s[{sdst_pair}:{sdst_pair+1}]")

ORD = opt("ord", 1)
def tile_of(A, i, dst):
    if i == 0: A(f"s_mov_b32 s{dst}, s15")
    elif ORD:
        A(f"s_cmp_le_u32 s15, {i-1}")
        A(f"s_cselect_b32 s{dst}, {i}, {i-1}")
    else:
        A(f"s_add_u32 s{dst}, s15, {i}")
        A(f"s_and_b32 s{dst}, s{dst}, 7")

def gen_kernel(A):
    A(f"{KN}:")
    A("s_cmp_ge_u32 s2, 256")
    A("s_cbranch_scc1 L_end")
    load_kernargs(A)
    tile_ids(A)
    A("v_and_b32 v1, 63, v0")
    A("v_lshrrev_b32 v2, 6, v0")
    A("s_and_b32 s15, s5, 7")
    A("v_readfirstlane_b32 s3, v2")
    A("s_cmp_ge_u32 s3, 4")
    A("s_cbranch_scc0 L_consumer")
    helper(A)
    A("L_consumer:")
    consumer(A)
    A("L_end:")
    A("s_endpgm")


def consumer(A):
    ACC = 64
    FA, FB = 128, 144
    AD, BD = 160, 168
    LAM, C2, MU, MU2, MU4, MU8 = 176, 178, 180, 182, 184, 186
    EL = 192
    UR2 = 224
    ST = Stamper(A, 0, 63)
    ST()
    A(f"s_setprio {opt('prio', 2)}")
    A("s_and_b32 s6, s3, 1")
    A("s_lshr_b32 s7, s3, 1")
    A("v_and_b32 v4, 31, v1")
    A("s_lshl_b32 s8, s5, 6")
    A("s_lshl_b32 s9, s7, 5")
    A("s_add_u32 s8, s8, s9")
    A("v_add_u32 v3, s8, v4")
    A("v_lshlrev_b32 v5, 1, v3")
    A("v_lshrrev_b32 v6, 5, v1")
    A("s_lshl_b32 s10, s4, 1")
    A("s_add_u32 s10, s10, s6")
    if "nocode" not in OPT:
        A("s_getpc_b64 s[12:13]")
        A("c_pc:")
        A(f"s_sub_u32 s12, s12, c_pc-{KN}")
        A("s_subb_u32 s13, s13, 0")
        A("s_lshl_b32 s11, s3, 14")
        A("v_lshl_add_u32 v24, v1, 7, s11")
        A("v_min_u32 v24, CODE_LAST, v24")
        A("global_load_dword v25, v24, s[12:13]")
        A("v_add_u32 v24, 0x2000, v24")
        A("v_min_u32 v24, CODE_LAST, v24")
        A("global_load_dword v26, v24, s[12:13]")
    A("s_waitcnt lgkmcnt(0)")
    A(f"global_load_ushort v8, v5, {sp('Lre')}")
    A(f"global_load_ushort v9, v5, {sp('Lim')}")
    A(f"global_load_ushort v10, v5, {sp('logdt')}")
    srd(A, 56, "ws", 256 << 10, WS_EBOX)
    srd(A, 60, "ws", 8 << 20, WS_H)
    srd(A, 64, "dbg", 256)
    srd(A, 68, "ws", FLG_SZ, WS_FLG)
    A("s_lshl_b32 s11, s10, 13")
    A("v_lshl_add_u32 v7, v3, 3, s11")
    A("v_mov_b32 v12, 0")
    A("v_mov_b32 v13, 0")
    A("buffer_store_dwordx2 v[12:13], v7, s[56:59], 0 offen sc1")
    A("s_lshl_b32 s11, s10, 4")
    A("s_add_u32 s11, s11, s5")
    A("s_lshl_b32 s11, s11, 1")
    A("s_add_u32 s11, s11, s7")
    A("s_lshl_b32 s11, s11, 7")
    A("v_mov_b32 v60, s11")
    A("buffer_store_dword v12, v60, s[68:71], 0 offen sc1")
    A("s_lshl_b32 s72, s4, 4")
    A("s_add_u32 s72, s72, s5")
    A("s_lshl_b32 s72, s72, 2")
    A("s_add_u32 s72, s72, s3")
    A("s_lshl_b32 s72, s72, 7")
    A(f"s_add_u32 s11, s72, {PF_OFF:#x}")
    A("v_mov_b32 v30, s11")
    A("buffer_store_dword v12, v30, s[68:71], 0 offen sc1")
    A("v_mov_b32 v23, 1")
    A("v_bfe_u32 v11, v1, 1, 3")
    A("v_xor_b32 v11, v11, v6")
    A("s_lshl_b32 s11, s6, 13")
    A("v_lshl_add_u32 v14, v4, 7, s11")
    A("s_lshl_b32 s11, s7, 12")
    A("s_add_u32 s11, s11, 16384")
    A("v_lshl_add_u32 v15, v4, 7, s11")
    for ks in range(4):
        A(f"v_xor_b32 v16, {2*ks}, v11")
        A(f"v_lshl_add_u32 v{AD+ks}, v16, 4, v14")
        A(f"v_lshl_add_u32 v{BD+ks}, v16, 4, v15")
        A(f"v_add_u32 v{AD+4+ks}, 0x10000, v{AD+ks}")
        A(f"v_add_u32 v{BD+4+ks}, 0x10000, v{BD+ks}")
    A("v_lshlrev_b32 v21, 2, v1")
    A("s_waitcnt vmcnt(0)")
    A("v_lshlrev_b32 v8, 16, v8")
    A("v_lshlrev_b32 v9, 16, v9")
    A("v_lshlrev_b32 v10, 16, v10")
    A("s_mov_b32 s12, 0x3fb8aa3b")
    A("v_mul_f32 v10, s12, v10")
    A("v_exp_f32 v10, v10")
    A("v_cvt_pk_bf16_f32 v10, v10, v10")
    A("v_lshlrev_b32 v10, 16, v10")
    A("v_mul_f32 v16, v10, v8")
    A("v_mul_f32 v17, v10, v9")
    A("v_mul_f32 v16, s12, v16")
    A("v_exp_f32 v16, v16")
    A("v_mul_f32 v17, 0.15915494, v17")
    A("v_rndne_f32 v18, v17")
    A("v_sub_f32 v17, v17, v18")
    A("v_cos_f32 v18, v17")
    A("v_sin_f32 v19, v17")
    A(f"v_mul_f32 v{LAM}, v16, v18")
    A(f"v_mul_f32 v{LAM+1}, v16, v19")
    A(f"v_add_f32 v16, -1.0, v{LAM}")
    A("v_mul_f32 v17, v8, v8")
    A("v_fma_f32 v17, v9, v9, v17")
    A("v_rcp_f32 v17, v17")
    A("v_mul_f32 v18, v16, v8")
    A(f"v_fma_f32 v18, v{LAM+1}, v9, v18")
    A(f"v_mul_f32 v19, v{LAM+1}, v8")
    A("v_fma_f32 v19, -v16, v9, v19")
    A("v_add_f32 v17, v17, v17")
    A(f"v_mul_f32 v{C2}, v18, v17")
    A(f"v_mul_f32 v{C2+1}, v19, v17")
    cmul(A, 16, LAM, LAM); cmul(A, 18, 16, 16); cmul(A, 16, 18, 18)
    cmul(A, MU, 16, 16); cmul(A, MU2, MU, MU); cmul(A, MU4, MU2, MU2); cmul(A, MU8, MU4, MU4)
    cmul(A, 48, C2, MU2)
    A("v_cmp_lt_u32 vcc, 31, v1")
    A(f"v_cndmask_b32 v48, v{C2}, v48, vcc")
    A(f"v_cndmask_b32 v49, v{C2+1}, v49, vcc")
    A("v_lshlrev_b32 v50, 13, v6")
    A("v_sub_u32 v50, v7, v50")
    A("s_add_u32 s11, s10, 1")
    A("v_sub_u32 v51, s11, v6")
    A("v_lshrrev_b32 v51, 1, v51")
    def rd(stage, ks, buf, which):
        slot = stage % 3
        hi = 4 if slot >= 2 else 0
        so = (slot & 1) * 32768
        if which < 2:
            return f"ds_read_b128 {vr(FA+buf*8+which*4,4)}, v{AD+hi+ks} offset:{so + which*4096}"
        ri = which - 2
        return f"ds_read_b128 {vr(FB+buf*8+ri*4,4)}, v{BD+hi+ks} offset:{so + ri*8192}"
    def mf(buf, mt, ri, first):
        acc = ACC + ri*32 + mt*16
        return f"v_mfma_f32_32x32x16_bf16 {vr(acc,16)}, {vr(FA+buf*8+mt*4,4)}, {vr(FB+buf*8+ri*4,4)}, {'0' if first else vr(acc,16)}"
    RD_ORDER = [0, 2, 1, 3]
    MF_ORDER = [(0,0), (1,0), (1,1), (0,1)]
    ST()
    A("s_barrier")
    ST()
    A("s_cmp_lg_u32 s3, 0")
    A("s_cbranch_scc1 c_noflag")
    A("s_lshr_b32 s11, s2, 6")
    A("s_lshl_b32 s11, 1, s11")
    A("s_getreg_b32 s12, hwreg(HW_REG_XCC_ID, 0, 4)")
    A("s_lshl_b32 s12, 0x100, s12")
    A("s_or_b32 s11, s11, s12")
    A("v_mov_b32 v16, s11")
    A("s_and_b32 s11, s2, 63")
    A("s_lshl_b32 s11, s11, 2")
    A("v_mov_b32 v17, s11")
    A("s_mov_b64 exec, 1")
    A("buffer_atomic_or v16, v17, s[64:67], 0 offen sc1")
    A("s_mov_b64 exec, -1")
    A("c_noflag:")
    for w in RD_ORDER: A(rd(0, 0, 0, w))
    for s in range(N1):
        for ks in range(4):
            buf = ks & 1
            last = (s == N1-1 and ks == 3)
            if ks == 3:
                A("s_waitcnt lgkmcnt(0)")
                A("s_barrier")
            ns, nks = (s, ks+1) if ks < 3 else (s+1, 0)
            for i in range(4):
                if ks < 3 and i < 3: A("s_waitcnt lgkmcnt(2)")
                A(mf(buf, *MF_ORDER[i], s == 0 and ks == 0))
                if not last: A(rd(ns, nks, buf ^ 1, RD_ORDER[i]))
            if (s in (3, 7, 11) if "fine1" not in OPT else s >= 3) and ks == 3: ST()
            if s == 12 and ks == 0:
                A("buffer_load_dword v20, v21, s[64:67], 0 offen sc1")
    ST()
    if "fine1" in OPT: ST.n = 40
    gen.SAFE_PK[0] = bool(opt("pk", 0) & 1)
    def UR(t): return ACC + (t >> 3)*16 + 2*(t & 7)
    def UI(t): return ACC + 32 + (t >> 3)*16 + 2*(t & 7)
    E = [(24, 26), (28, 30 - 30 + 44)]
    cr, ci = UR(0), UI(0)
    for t in range(1, 16):
        nr, ni = E[t & 1]
        A(pk("fma", nr, cr, LAM, UR(t), bsel=0))
        A(pk("fma", ni, ci, LAM, UI(t), bsel=0))
        A(pk("fma", nr, ci, LAM, nr, bsel=1, neg_b=True))
        A(pk("fma", ni, cr, LAM, ni, bsel=1))
        cr, ci = nr, ni
    A("v_mov_b32 v32, v28\nv_mov_b32 v33, v44\nv_mov_b32 v34, v29\nv_mov_b32 v35, v45")
    cmul(A, 36, MU, 32, add=34)
    A("v_mov_b32 v38, v36\nv_mov_b32 v39, v37\nv_mov_b32 v40, 0\nv_mov_b32 v41, 0")
    A("v_permlane32_swap_b32 v40, v38")
    A("v_permlane32_swap_b32 v41, v39")
    cmul(A, 42, MU2, 40, add=36)
    A("v_or_b32 v42, 1, v42")
    A("s_mov_b32 s12, 0")
    A("s_mov_b32 s13, -1")
    A("s_mov_b64 exec, s[12:13]")
    A("buffer_store_dwordx2 v[42:43], v7, s[56:59], 0 offen sc1")
    A("s_mov_b64 exec, -1")
    ST()
    for t in range(16):
        n = UR2 + 2*t
        A(pk("mul", n, UR(t), C2, bsel=0))
        A(pk("fma", n, UI(t), C2, n, bsel=1, neg_b=True))
        A(pk("mul", UI(t), UI(t), C2, bsel=0))
        A(pk("fma", UI(t), UR(t), C2, UI(t), bsel=1))
    cmul(A, 44, C2, 40)
    cmul(A, 46, C2, 32)
    for k in range(16):
        A(f"v_subrev_u32 v{128+k}, {(1+2*k)*8192:#x}, v50")
    ST()
    A("s_waitcnt vmcnt(1)")
    spin_all(A, "c_init", 52, "buffer_load_dword v20, v21, s[64:67], 0 offen sc1", "15", pre="v_and_b32 v52, 15, v20")
    local_check(A, 20, 52, 12, 11)
    A("s_cselect_b32 s14, 0, 1")
    if "nolocal" in OPT: A("s_mov_b32 s14, 0")
    for k in range(16):
        A(f"buffer_load_dwordx2 {vr(EL+2*k,2)}, v{128+k}, s[56:59], 0 offen sc1")
    BD2 = 32
    A("s_lshl_b32 s11, s3, 13")
    A("v_lshl_add_u32 v16, v6, 11, s11")
    A("v_lshl_add_u32 v16, v4, 6, v16")
    A("v_bfe_u32 v17, v1, 1, 2")
    for q in range(4):
        A(f"v_xor_b32 v18, {q}, v17")
        A(f"v_lshl_add_u32 v{64+q}, v18, 4, v16")
    A("v_mov_b32 v31, 1")
    A("v_bfe_u32 v16, v1, 2, 2")
    A("v_lshl_add_u32 v16, v6, 3, v16")
    A("v_and_b32 v24, 1, v1")
    A("v_bfe_u32 v18, v1, 4, 1")
    A("v_lshl_add_u32 v24, v24, 1, v18")
    A("v_bfe_u32 v18, v16, 1, 2")
    A("v_xor_b32 v24, v24, v18")
    A("v_lshlrev_b32 v24, 4, v24")
    A("v_lshl_add_u32 v24, v16, 6, v24")
    A("v_bfe_u32 v18, v1, 1, 1")
    A("v_lshl_add_u32 v24, v18, 3, v24")
    A("v_xor_b32 v25, 32, v24")
    A("v_add_u32 v25, 256, v25")
    A("v_add_u32 v68, s11, v24")
    A("v_add_u32 v69, s11, v25")
    A("s_lshl_b32 s11, s4, 7")
    A("s_lshl_b32 s12, s6, 6")
    A("s_add_u32 s11, s11, s12")
    A("s_and_b32 s12, s5, 7")
    A("s_lshl_b32 s12, s12, 2")
    A("s_add_u32 s11, s11, s12")
    A("s_add_u32 s11, s11, s7")
    A("s_lshl_b32 s11, s11, 12")
    A("s_lshr_b32 s13, s5, 3")
    A("s_lshl_b32 s13, s13, 11")
    A("s_add_u32 s11, s11, s13")
    A("v_lshl_add_u32 v72, v1, 4, s11")
    A(f"v_mov_b32 v20, {LFLAG:#x}")
    A("s_lshl_b32 s6, s4, 2")
    A("s_add_u32 s6, s6, s3")
    A("s_lshr_b32 s7, s3, 1")
    A("s_lshl_b32 s7, s7, 13")
    A("s_and_b32 s8, s3, 1")
    A("s_lshl_b32 s8, s8, 11")
    A("s_add_u32 s7, s7, s8")
    A("v_add_u32 v70, s7, v24")
    A("v_add_u32 v71, s7, v25")
    A("s_lshl_b32 s7, s6, 17")
    A("s_add_u32 s7, s7, s13")
    A("v_lshl_add_u32 v3, v1, 4, s7")
    A("v_add_u32 v2, 0x1000, v3")
    A(f"v_lshlrev_b32 v14, 7, v4")
    A(f"v_add_u32 v14, {CRING:#x}, v14")
    for ks in range(4):
        A(f"v_xor_b32 v16, {2*ks}, v11")
        A(f"v_lshl_add_u32 v{BD2+ks}, v16, 4, v14")
    A("s_lshr_b32 s7, s6, 1")
    A("s_lshl_b32 s7, s7, 12")
    A("s_add_u32 s7, s7, s13")
    A("v_bfe_u32 v16, v1, 1, 3")
    if ORD:
        A("v_subrev_u32 v14, 1, v16")
        A("v_cmp_le_u32 vcc, s15, v14")
        A("v_cndmask_b32 v14, v14, v16, vcc")
        A("v_mov_b32 v19, s15")
        A("v_cmp_eq_u32 vcc, 0, v16")
        A("v_cndmask_b32 v16, v14, v19, vcc")
    else:
        A("v_add_u32 v16, s15, v16")
        A("v_and_b32 v16, 7, v16")
    A("v_and_b32 v14, 1, v1")
    A("v_lshl_add_u32 v16, v16, 1, v14")
    A("v_lshl_add_u32 v22, v16, 7, s7")
    srd(A, 64, "ws", 8192, WS_G)
    srd(A, 76, "out", 8 << 20)
    srd(A, 92, "ws", 8 << 20, WS_PART)
    for i in range(8):
        A(f"s_mov_b32 s{80+i}, {i*4096}")
    A("s_lshl_b32 s7, s6, 5")
    A("v_lshl_add_u32 v7, v6, 4, s7")
    A("s_lshl_b32 s8, s5, 6")
    A("v_add_u32 v8, s8, v4")
    A("v_lshlrev_b32 v26, 12, v7")
    A("v_lshl_add_u32 v26, v8, 2, v26")
    A("v_add_u32 v27, 0x8000, v26")
    A("v_lshlrev_b32 v7, 2, v7")
    A("v_lshlrev_b32 v8, 1, v8")
    A("s_mul_i32 s8, s3, 4608")
    A(f"s_add_u32 s8, s8, {UREG}")
    A("v_lshlrev_b32 v61, 11, v6")
    A("v_lshl_add_u32 v61, v4, 1, v61")
    A("v_add_u32 v61, s8, v61")
    A("v_mul_u32_u24 v21, 272, v4")
    A("v_lshl_add_u32 v21, v6, 5, v21")
    A("s_lshl_b32 s8, s3, 6")
    A("v_add_u32 v21, s8, v21")
    A("s_xor_b32 s73, s72, 4096")
    A("s_lshl_b32 s74, s73, 6")
    A("s_add_u32 s75, s74, 4096")
    A(f"s_add_u32 s8, s73, {PF_OFF:#x}")
    A("v_mov_b32 v29, s8")
    A("v_lshlrev_b32 v28, 4, v1")
    A("v_mov_b32 v23, 1")
    A(f"s_mov_b32 s88, {SPIN}")
    A("c_poll:")
    A("s_waitcnt vmcnt(0)")
    A("v_mov_b32 v52, 0")
    for k in range(16):
        A(f"v_and_b32 v{144+k}, 1, v{EL+2*k}")
    for k in range(0, 16, 2):
        A(f"v_add3_u32 v52, v52, v{144+k}, v{145+k}")
    A("v_cmp_ne_u32 vcc, v52, v51")
    A("s_cmp_eq_u64 vcc, 0")
    A("s_cbranch_scc1 c_polled")
    A("s_sub_u32 s88, s88, 1")
    A("s_cbranch_scc1 c_polled")
    A(f"s_sleep {opt('psleep', SLEEP)}")
    for k in range(16):
        A(f"v_cmp_eq_u32 vcc, 0, v{144+k}")
        A("s_mov_b64 exec, vcc")
        A(f"buffer_load_dwordx2 {vr(EL+2*k,2)}, v{128+k}, s[56:59], 0 offen sc1")
        A("s_mov_b64 exec, -1")
    A("s_branch c_poll")
    A("c_polled:")
    ST()
    g = EL + 30
    G = [52, 54]
    for k in range(14, -1, -1):
        n = G[k & 1]
        A(pk("fma", n, g, MU8, EL+2*k, bsel=0))
        A(pk("fma", n, g, MU8, n, bsel=1, asel="swap", neg_lo=[1,0,0]))
        g = n
    A("v_mov_b32 v54, v52\nv_mov_b32 v55, v53\nv_mov_b32 v56, v52\nv_mov_b32 v57, v53")
    A("v_permlane32_swap_b32 v54, v56")
    A("v_permlane32_swap_b32 v55, v57")
    cmul(A, 58, MU4, 56, add=54)
    cmul(A, 52, 48, 58, add=44)
    cmul(A, 54, MU, 52, add=46)
    A("v_mov_b32 v56, v52\nv_mov_b32 v57, v54\nv_mov_b32 v58, v53\nv_mov_b32 v59, v55")
    cr, ci = 56, 58
    def packhalf(hf):
        for plane in range(2):
            for e in range(2):
                d = 128 + ((plane*2 + e)*2 + hf)*4
                for m in range(4):
                    t = hf*8 + 2*m
                    if plane == 0: A(f"v_cvt_pk_bf16_f32 v{d+m}, v{UR2+2*t+e}, v{UR2+2*(t+1)+e}")
                    else: A(f"v_cvt_pk_bf16_f32 v{d+m}, -v{UI(t)+e}, -v{UI(t+1)+e}")
                A(f"ds_write_b128 v{64+2*e+hf}, {vr(d,4)} offset:{plane*4096}")
    for t in range(16):
        nr, ni = UR2 + 2*t, UI(t)
        A(pk("fma", nr, cr, LAM, nr, bsel=0))
        A(pk("fma", ni, ci, LAM, ni, bsel=0))
        A(pk("fma", nr, ci, LAM, nr, bsel=1, neg_b=True))
        A(pk("fma", ni, cr, LAM, ni, bsel=1))
        cr, ci = nr, ni
        if t == 7: packhalf(0)
    packhalf(1)
    gen.SAFE_PK[0] = False
    ST()
    A("s_waitcnt lgkmcnt(0)")
    lds_inc(A, 20, 31, 12)
    AF = 160
    idx = 0
    for tblk in range(2):
        for plane in range(2):
            for ksl in range(2):
                d = AF + idx*4
                o = plane*4096 + tblk*2048 + ksl*1024
                A(f"ds_read_b64_tr_b16 {vr(d,2)}, v68 offset:{o}")
                A(f"ds_read_b64_tr_b16 {vr(d+2,2)}, v69 offset:{o}")
                idx += 1
    V = VQ(A)
    idx = 0
    for tblk in range(2):
        for plane in range(2):
            A(f"s_mov_b32 s12, {tblk*131072 + plane*8192:#x}")
            for ksl in range(2):
                d = AF + idx*4
                A(f"s_waitcnt lgkmcnt({min(15, 14 - 2*idx)})")
                V.issue(f"buffer_store_dwordx4 {vr(d,4)}, v72, s[60:63], s12 offen offset:{ksl*1024} sc1", "hst")
                idx += 1
    ACC2 = 96
    FB2 = 224
    GR = 36
    ST2 = Stamper(A, 1, 62)
    A(f"s_mov_b32 s89, {SPIN*4}")
    A("c_lw:")
    A("ds_read_b128 v[52:55], v20 offset:4")
    A("s_waitcnt lgkmcnt(0)")
    A("v_min_u32 v54, v54, v55")
    A("v_min_u32 v53, 1, v53")
    A("v_readfirstlane_b32 s8, v54")
    A("v_readfirstlane_b32 s9, v53")
    A("s_add_u32 s8, s8, s9")
    A("s_cmp_ge_u32 s8, 5")
    A("s_cbranch_scc1 c_lwok")
    A("s_sub_u32 s89, s89, 1")
    A("s_cbranch_scc0 c_lw")
    A("c_lwok:")
    L = LQ(A)
    for st in range(2):
        for ks in range(4):
            d = AF + (st*4 + ks)*4
            o = (ks >> 1)*16384 + st*4096 + (ks & 1)*1024
            L.issue(f"ds_read_b64_tr_b16 {vr(d,2)}, v70 offset:{o}")
            L.issue(f"ds_read_b64_tr_b16 {vr(d+2,2)}, v71 offset:{o}", ("A", st, ks))
    for q in range(4):
        V.issue(f"buffer_load_dwordx4 {vr(GR+q*4,4)}, v7, s[64:67], 0 offen offset:{q*16} sc1")
    for q in range(2):
        V.issue(f"global_load_ushort v{52+q}, v8, {sp('Dskip')} offset:{q*64}", "g")
    ST()
    HFL = "buffer_load_dword v19, v22, s[68:71], 0 offen sc1"
    slowp = []
    def need(i):
        m = ((1 << (2*i + 2)) - 1) & ~3
        name = f"c_n{len(slowp)}"
        A(f"s_and_b32 s88, s90, {m:#x}")
        A(f"s_cmp_eq_u32 s88, {m:#x}")
        A(f"s_cbranch_scc0 {name}_s")
        A(f"{name}:")
        slowp.append((name, m))
    alast = [None]
    def aload(st, ks):
        if alast[0] != st:
            alast[0] = st
            tile_of(A, st >> 1, 11)
            A("s_lshl_b32 s11, s11, 14")
            if st & 1: A("s_add_u32 s11, s11, 8192")
        r = AF + ((st % PD)*4 + ks)*4
        V.issue(f"buffer_load_dwordx4 {vr(r,4)}, v{3 if ks < 2 else 2}, s[60:63], s11 offen offset:{(ks & 1)*1024} sc1", ("A", st, ks))
    def rd2(st, ks, nt, slot):
        return f"ds_read_b128 {vr(FB2+slot*4,4)}, v{BD2+ks} offset:{(st % NS2)*16384 + nt*4096}"
    def mf2(st, ks, nt, slot):
        a = AF + ((st % PD)*4 + ks)*4
        c = vr(ACC2+nt*16, 16)
        return f"v_mfma_f32_32x32x16_bf16 {c}, {vr(a,4)}, {vr(FB2+slot*4,4)}, {'0' if (st == 0 and ks == 0) else c}"
    def await_(st, ks):
        if st < 2: L.wait(("A", st, ks))
        else: V.wait(("A", st, ks))
    ST2()
    for nt in range(4): L.issue(rd2(0, 0, nt, nt), (0, 0, nt))
    HFK = opt("hfk", 3)
    N1K = opt("n1k", 2)
    DIST = opt("dist", 3)
    assert DIST in (2, 3, 4)
    polls = [0]
    def hfpoll():
        polls[0] += 1
        V.issue(HFL, ("hf", polls[0]))
    def hfseen():
        V.wait(("hf", polls[0]))
        A("v_cmp_eq_u32 s[90:91], 1, v19")
    for st in range(N2 - 1):
        for ks in range(4):
            buf = ks & 1
            if ks == 3 and st >= 1: A("s_barrier")
            ns, nks = (st, ks+1) if ks < 3 else (st+1, 0)
            await_(st, ks)
            for nt in range(4):
                L.wait((st, ks, nt))
                A(mf2(st, ks, nt, buf*4 + nt))
                L.issue(rd2(ns, nks, nt, (buf ^ 1)*4 + nt), (ns, nks, nt))
            if st == 0 and ks == HFK:
                V.wait("hst")
                A("s_cmp_eq_u32 s14, 1")
                A("s_cbranch_scc1 c_hfs_l")
                A("buffer_store_dword v23, v60, s[68:71], 0 offen sc1")
                A("s_branch c_hfs_e")
                A("c_hfs_l:")
                A("buffer_store_dword v23, v60, s[68:71], 0 offen")
                A("c_hfs_e:")
                V.n += 1
                hfpoll()
                if "fine3" in OPT: ST2()
            if st == 1 and ks == N1K:
                if "fine3" in OPT: ST2()
                hfseen(); need(1)
                if "fine3" in OPT: ST2()
                for z in (2, 3):
                    for k2 in range(4): aload(z, k2)
                hfpoll()
            if st >= 2:
                if st == 2 and ks == 0:
                    if "fine3" in OPT: ST2()
                    hfseen(); need(2)
                    if "fine3" in OPT: ST2()
                    for z in range(4, 2 + DIST):
                        for k2 in range(4): aload(z, k2)
                    hfpoll()
                z = st + DIST
                if z < N2:
                    if ks == 0 and z % 2 == 0 and z // 2 >= 3:
                        if z // 2 == 3: hfseen()
                        if not (int(OPT.get("abl", 0)) & 2): need(z // 2)
                    aload(z, ks)
            if "fine3" in OPT:
                if st in (1, 2, 3, 4) and ks == 3: ST2()
                if st == 2 and ks == 0: ST2()
            elif (st % 2 == 1 if 'fine2' not in OPT else True) and ks == 3: ST2()
    st = N2 - 1
    slot = {(0, nt): nt for nt in range(4)}
    order = [(ks, nt) for ks in range(4) for nt in (0, 1)] + [(ks, nt) for ks in range(4) for nt in (2, 3)]
    pend = [x for x in order if x not in slot]
    free = [4, 5, 6]
    def fill():
        while pend and free:
            x = pend.pop(0); sl = free.pop(0); slot[x] = sl
            L.issue(rd2(st, x[0], x[1], sl), (st, x[0], x[1]))
    fill()
    pst = [f"buffer_store_dwordx4 {vr(ACC2+4*i,4)}, v28, s[92:95], s{74 if i < 4 else 75} offen offset:{(i & 3)*1024} sc1" for i in range(8)]
    for i, (ks, nt) in enumerate(order):
        V.wait(("A", st, ks))
        L.wait((st, ks, nt))
        A(mf2(st, ks, nt, slot[(ks, nt)]))
        free.append(slot[order[i-1]] if i else 7)
        fill()
        if i >= 10:
            for z in range(2 if i < 14 else 0):
                if pst: V.issue(pst.pop(0), "ps")
    while pst: V.issue(pst.pop(0), "ps")
    ST2()
    YR, OM, GF, XQ, T0, RV = 160, 176, 192, 64, 208, 160
    KEEP = ACC2 + 32
    PFL = "buffer_load_dword v19, v29, s[68:71], 0 offen sc1"
    A("s_mov_b32 s12, 0xffff0000")
    for nt in range(2):
        for r in range(16): A(f"ds_read_u16 v{XQ+nt*16+r}, v61 offset:{r*128+nt*64}")
    for nt in range(2):
        for hf in range(2): A(f"ds_read_b128 {vr(YR+nt*8+hf*4,4)}, v21 offset:{nt*32*272 + hf*16}")
    for r in range(16):
        A(f"v_lshlrev_b32 v{GF+r}, 16, v{GR+r}")
        A(f"v_and_b32 v{OM+r}, s12, v{GR+r}")
    A("v_lshlrev_b32 v52, 16, v52")
    A("v_lshlrev_b32 v53, 16, v53")
    A("s_waitcnt lgkmcnt(0)")
    PFG = opt("pfg", 2)
    gi = 0
    def pfstore():
        A("s_waitcnt vmcnt(0)")
        A("buffer_store_dword v23, v30, s[68:71], 0 offen sc1")
        A(PFL)
    for nt in range(2):
        for m0 in range(0, 8, 4):
            if gi == PFG: pfstore()
            gi += 1
            ch = []
            for m in range(m0, m0 + 4):
                b_ = T0 + (m & 3)*6
                yy, xd, tm = b_, b_ + 2, b_ + 4
                xf = XQ + nt*16 + 2*m; ka = KEEP + nt*16 + 2*m
                ch.append([f"v_lshlrev_b32 v{xf}, 16, v{xf}", f"v_lshlrev_b32 v{xf+1}, 16, v{xf+1}",
                           f"v_lshlrev_b32 v{yy}, 16, v{YR+nt*8+m}", f"v_and_b32 v{yy+1}, s12, v{YR+nt*8+m}",
                           f"v_mul_f32 v{xd}, v{xf}, v{52+nt}", f"v_mul_f32 v{xd+1}, v{xf+1}, v{52+nt}",
                           f"v_mul_f32 v{yy}, v{xf}, v{yy}", f"v_mul_f32 v{yy+1}, v{xf+1}, v{yy+1}",
                           f"v_cvt_pk_bf16_f32 v{tm}, v{xd}, v{xd+1}", f"v_cvt_pk_bf16_f32 v{tm+1}, v{yy}, v{yy+1}",
                           f"v_lshlrev_b32 v{xd}, 16, v{tm}", f"v_and_b32 v{xd+1}, s12, v{tm}",
                           f"v_lshlrev_b32 v{yy}, 16, v{tm+1}", f"v_and_b32 v{yy+1}, s12, v{tm+1}",
                           f"v_add_f32 v{ka}, v{ka}, v{xd}", f"v_add_f32 v{ka+1}, v{ka+1}, v{xd+1}",
                           f"v_mul_f32 v{yy}, v{yy}, v{OM+2*m}", f"v_mul_f32 v{yy+1}, v{yy+1}, v{OM+2*m+1}",
                           f"v_cvt_pk_bf16_f32 v{tm}, v{yy}, v{yy+1}", f"v_lshlrev_b32 v{yy}, 16, v{tm}", f"v_and_b32 v{yy+1}, s12, v{tm}",
                           f"v_fma_f32 v{ka}, v{ka}, v{GF+2*m}, v{yy}", f"v_fma_f32 v{ka+1}, v{ka+1}, v{GF+2*m+1}, v{yy+1}"])
            zip_chains(A, ch)
    if gi == PFG: pfstore()
    ST2()
    A("s_waitcnt vmcnt(0)")
    spin_all(A, "c_pf", 19, PFL)
    A("s_lshl_b32 s12, s72, 6")
    A("s_add_u32 s13, s12, 4096")
    for i in range(8):
        A(f"buffer_load_dwordx4 {vr(RV+4*i,4)}, v28, s[92:95], s{12 if i < 4 else 13} offen offset:{(i & 3)*1024} sc1")
    ST2()
    for nt in range(2):
        for r in range(16):
            i = (nt*16 + r) // 4
            if r % 4 == 0: A(f"s_waitcnt vmcnt({7 - i + nt*16 + r})")
            a = KEEP + nt*16 + r
            A(f"v_fma_f32 v{a}, v{RV+nt*16+r}, v{GF+r}, v{a}")
            A(f"buffer_store_dword v{a}, v{26 if r < 8 else 27}, s[76:79], s{80+(r&7)} offen offset:{nt*128} nt")
    ST2()
    if "leak" in OPT:
        i = int(OPT["leak"])
        A("s_cmp_lg_u32 s2, 8")
        A("s_cbranch_scc1 c_noleak")
        A("s_cmp_lg_u32 s3, 0")
        A("s_cbranch_scc1 c_noleak")
        A("v_readlane_b32 s8, v63, 0")
        A(f"v_readlane_b32 s9, v{63 if i < 100 else 62}, {i % 100}")
        A("s_sub_u32 s9, s9, s8")
        A("s_memrealtime s[10:11]")
        A("s_waitcnt lgkmcnt(0)")
        A("s_add_u32 s9, s9, s10")
        A("c_leak:")
        A("s_memrealtime s[10:11]")
        A("s_waitcnt lgkmcnt(0)")
        A("s_sub_u32 s12, s9, s10")
        A("s_cmp_gt_i32 s12, 0")
        A("s_cbranch_scc1 c_leak")
        A("c_noleak:")
    if "leak2" in OPT:
        X, i = [int(v) for v in str(OPT["leak2"]).split(":")]
        A(f"s_cmp_lg_u32 s2, {X}")
        A("s_cbranch_scc1 c_noleak2")
        A("s_cmp_lg_u32 s3, 0")
        A("s_cbranch_scc1 c_noleak2")
        A(f"v_readlane_b32 s9, v{63 if i < 100 else 62}, {i % 100}")
        A("s_add_u32 s9, s9, 4000")
        A("c_leak2:")
        A("s_memrealtime s[10:11]")
        A("s_waitcnt lgkmcnt(0)")
        A("s_sub_u32 s12, s9, s10")
        A("s_cmp_gt_i32 s12, 0")
        A("s_cbranch_scc1 c_leak2")
        A("c_noleak2:")
    ST.flush()
    ST2.flush()
    A("s_endpgm")
    for name, m in slowp:
        A(f"{name}_s:")
        A(f"s_mov_b32 s89, {SPIN}")
        A(f"{name}_l:")
        A("s_waitcnt vmcnt(0)")
        A(HFL)
        A("s_waitcnt vmcnt(0)")
        A("v_cmp_eq_u32 s[90:91], 1, v19")
        A(f"s_and_b32 s88, s90, {m:#x}")
        A(f"s_cmp_eq_u32 s88, {m:#x}")
        A(f"s_cbranch_scc1 {name}")
        A("s_sub_u32 s89, s89, 1")
        A(f"s_cbranch_scc1 {name}")
        A(f"s_branch {name}_l")

def helper(A):
    V = VQ(A)
    VA, VB = 8, 12
    ST = Stamper(A, 0, 58)
    STH = Stamper(A, 1, 59)
    ST()
    if "hprio1" in OPT: A(f"s_setprio {OPT['hprio1']}")
    A("s_sub_u32 s3, s3, 4")
    A("s_lshr_b32 s6, s3, 1")
    A("s_and_b32 s7, s3, 1")
    A("v_lshrrev_b32 v3, 5, v1")
    A("v_lshlrev_b32 v3, 5, v3")
    A("v_bfe_u32 v4, v1, 3, 1")
    A("v_lshl_add_u32 v3, v4, 4, v3")
    A("v_bfe_u32 v4, v1, 4, 1")
    A("v_add_u32 v3, v3, v4")
    A("s_lshl_b32 s8, s4, 7")
    A("s_lshl_b32 s9, s6, 6")
    A("s_add_u32 s8, s8, s9")
    A("s_lshl_b32 s9, s7, 3")
    A("s_add_u32 s8, s8, s9")
    A("v_add_u32 v3, s8, v3")
    A("v_lshlrev_b32 v3, 11, v3")
    A("v_and_b32 v4, 7, v1")
    A("v_lshrrev_b32 v5, 4, v1")
    A("v_xor_b32 v4, v4, v5")
    A("v_lshlrev_b32 v4, 4, v4")
    A("v_xor_b32 v5, 64, v4")
    A("s_lshl_b32 s8, s5, 6")
    A("s_lshl_b32 s9, s7, 5")
    A("s_add_u32 s8, s8, s9")
    A("v_lshrrev_b32 v6, 3, v1")
    A("v_add_u32 v7, s8, v6")
    A("v_lshlrev_b32 v7, 11, v7")
    for n in range(4):
        c = 4 + (n & 1)
        A(f"v_add_u32 v{VA+n}, v3, v{c}")
        A(f"v_add_u32 v{VB+n}, v7, v{c}")
        if n:
            A(f"v_add_u32 v{VA+n}, {n*(4096-1024)}, v{VA+n}")
            A(f"v_add_u32 v{VB+n}, {n*(16384-1024)}, v{VB+n}")
    A("s_lshl_b32 s10, s3, 12")
    A("s_lshr_b32 s90, s55, 2")
    A("s_lshl_b32 s90, s90, 1")
    A("s_and_b32 s91, s55, 3")
    A("s_lshl_b32 s91, s91, 2")
    A("s_add_u32 s90, s90, s91")
    A("s_waitcnt lgkmcnt(0)")
    srd(A, 56, "x", 4 << 20)
    A("s_cmp_ge_u32 s3, 2")
    A(f"s_cselect_b32 s60, s{P['Bim']}, s{P['Bre']}")
    A(f"s_cselect_b32 s61, s{P['Bim']+1}, s{P['Bre']+1}")
    A(f"s_mov_b32 s62, {2<<20:#x}")
    A("s_mov_b32 s63, 0x20000")
    def issue(st, fill=0):
        slot = st % 3
        A(f"s_add_u32 s11, s90, {st}")
        A("s_and_b32 s11, s11, 15")
        A("s_lshl_b32 s11, s11, 7")
        A(f"s_add_u32 m0, s10, {slot*32768:#x}")
        for n in range(4):
            V.issue(f"buffer_load_dwordx4 v{VA+n}, s[56:59], s11 offen offset:{n*1024} lds")
            if fill: do_work(fill)
        A(f"s_add_u32 m0, s10, {slot*32768+16384:#x}")
        for n in range(4):
            V.issue(f"buffer_load_dwordx4 v{VB+n}, s[60:63], s11 offen offset:{n*1024} lds", ("S", st))
            if fill: do_work(fill)
    issue(0)
    VC = 28
    A("s_and_b32 s8, s5, 7")
    A("s_lshl_b32 s8, s8, 6")
    A("s_lshl_b32 s9, s3, 4")
    A("s_add_u32 s8, s8, s9")
    A("v_add_u32 v7, s8, v6")
    A("v_lshlrev_b32 v7, 11, v7")
    A(f"v_add_u32 v{VC}, v7, v4")
    A(f"v_add_u32 v{VC+1}, v7, v5")
    A(f"v_add_u32 v{VC+1}, {16384-1024}, v{VC+1}")
    A("s_and_b32 s12, s55, 1")
    A("s_lshl_b32 s13, s54, 1")
    A("s_add_u32 s12, s12, s13")
    A("s_lshr_b32 s13, s55, 1")
    A("s_lshl_b32 s8, s2, 7")
    A(f"s_add_u32 s8, s8, {KF_OFF:#x}")
    A("v_mov_b32 v30, s8")
    A("s_lshl_b32 s88, s54, 5")
    A("s_add_u32 s88, s88, s55")
    A("s_lshl_b32 s8, s88, 7")
    A(f"s_add_u32 s8, s8, {YF_OFF:#x}")
    A("v_mov_b32 v31, s8")
    A("s_lshl_b32 s88, s88, 2")
    A("s_add_u32 s88, s88, s3")
    A("v_mov_b32 v2, 0")
    srd(A, 92, "ws", FLG_SZ, WS_FLG)
    A("s_lshl_b32 s8, s88, 12")
    A(f"s_load_dword s100, {sp('ssmk')}, s8")
    A("s_lshr_b32 s8, s88, 1")
    A("s_lshl_b32 s8, s8, 2")
    A(f"s_load_dword s101, {sp('ssmD')}, s8")
    V.issue("buffer_store_dword v2, v30, s[92:95], 0 offen sc1")
    V.issue("buffer_store_dword v2, v31, s[92:95], 0 offen sc1", "clr")
    issue(1)
    KR, VR_, SK = 32, 208, 68
    XG, GW = 72, 88
    A("s_lshl_b32 s13, s13, 7")
    A("s_lshl_b32 s14, s3, 5")
    A("s_add_u32 s13, s13, s14")
    A("v_and_b32 v17, 31, v1")
    A("s_lshl_b32 s14, s12, 5")
    A("v_add_u32 v17, s14, v17")
    A("v_lshlrev_b32 v22, 4, v17")
    A("v_and_b32 v23, 31, v1")
    A("v_mul_u32_u24 v23, 544, v23")
    A("v_lshrrev_b32 v24, 5, v1")
    A("v_lshlrev_b32 v24, 5, v24")
    A("v_sub_u32 v23, v23, v24")
    A("s_lshl_b32 s8, s3, 6")
    A(f"s_sub_u32 s8, {UREG+224}, s8")
    A("v_add_u32 v23, s8, v23")
    A("v_lshrrev_b32 v24, 4, v1")
    A("s_lshl_b32 s8, s3, 4")
    A("v_add_u32 v24, s8, v24")
    A("v_and_b32 v2, 15, v1")
    A("v_lshlrev_b32 v2, 4, v2")
    A("s_lshl_b32 s8, s12, 6")
    A("v_add_u32 v27, s8, v24")
    A("v_lshl_add_u32 v27, v27, 12, v2")
    A("s_lshr_b32 s8, s55, 1")
    A("s_lshl_b32 s8, s8, 8")
    A("s_sub_u32 s8, 3840, s8")
    A("v_add_u32 v27, s8, v27")
    A("v_mul_u32_u24 v24, 272, v24")
    A("v_add_u32 v24, v24, v2")
    A(f"v_add_u32 v24, {UREG:#x}, v24")
    A("s_lshl_b32 s14, s4, 7")
    A("s_lshl_b32 s8, s5, 3")
    A("s_add_u32 s14, s14, s8")
    A("s_lshl_b32 s8, s3, 1")
    A("s_add_u32 s14, s14, s8")
    A("s_lshl_b32 s8, s14, 11")
    A("v_lshlrev_b32 v25, 4, v1")
    A("v_add_u32 v26, s8, v25")
    A("v_add_u32 v3, 0x8000, v27")
    srd(A, 64, "k", 4 << 20)
    srd(A, 68, "v", 4 << 20)
    srd(A, 72, "ws", 4 << 20, WS_KVT)
    srd(A, 76, "ws", 8192, WS_G)
    for i in range(8):
        A(f"s_mov_b32 s{80+i}, {i*4096}")
    NTP = " nt" if "ntp" in OPT else ""
    A("v_lshrrev_b32 v19, 3, v1")
    A("v_add_u32 v19, s13, v19")
    A("v_lshlrev_b32 v19, 11, v19")
    A("v_and_b32 v20, 7, v1")
    A("v_lshl_add_u32 v19, v20, 4, v19")
    A("s_lshl_b32 s8, s12, 7")
    A("v_add_u32 v19, s8, v19")
    A("v_subrev_u32 v20, 16384, v19")
    A("v_lshrrev_b32 v21, 5, v1")
    A("v_lshlrev_b32 v21, 11, v21")
    A("v_and_b32 v18, 31, v1")
    A("v_lshl_add_u32 v21, v18, 2, v21")
    A("s_lshl_b32 s8, s3, 12")
    A(f"s_add_u32 s91, s8, {KREG}")
    A("v_add_u32 v21, s91, v21")
    def kvdma():
        A("s_add_u32 m0, s91, 16384")
        V.issue(f"buffer_load_dwordx4 v20, s[64:67], 0 offen{NTP} lds")
        for i in range(4):
            A(f"s_add_u32 m0, s91, {16384 + 1024*(i+1)}")
            A(f"s_mov_b32 s99, {i*16384}")
            V.issue(f"buffer_load_dwordx4 v19, s[64:67], s99 offen{NTP} lds")
        V.issue(f"global_load_dwordx4 {vr(SK,4)}, v22, {sp('shk')}", "k")
        for i in range(4):
            A(f"s_add_u32 m0, s91, {1024*i}")
            A(f"s_mov_b32 s99, {i*16384}")
            V.issue(f"buffer_load_dwordx4 v19, s[68:71], s99 offen{NTP} lds", "v")
    gl = []
    for r in range(2):
        for hh in range(2): gl.append((f"buffer_load_dwordx4 {vr(XG+r*8+hh*4,4)}, v26, s[56:59], 0 offen offset:{r*2048+hh*1024}", None))
    for hh in range(2): gl.append((f"global_load_dwordx4 {vr(GW+hh*4,4)}, v25, {sp('gw')} offset:{hh*1024}", "gate"))
    KF = 96; SP = 136; OUT = 144
    work = []
    def W(x):
        if callable(x): work.append(x)
        else: work.extend(x.split("\n"))
    def rndW(pair, tmp):
        W(f"v_cvt_pk_bf16_f32 v{tmp}, v{pair}, v{pair+1}")
        W(f"v_lshlrev_b32 v{pair}, 16, v{tmp}")
        W(f"v_and_b32 v{pair+1}, s12, v{tmp}")
    W("s_mov_b32 s12, 0xffff0000")
    W(lambda: V.wait("gate"))
    for i in range(8):
        W(f"v_lshlrev_b32 v{96+2*i}, 16, v{GW+i}")
        W(f"v_and_b32 v{97+2*i}, s12, v{GW+i}")
    for r in range(2):
        acc = 112 + r
        W(f"v_mov_b32 v{acc}, 0")
        for i in range(8):
            W(f"v_lshlrev_b32 v116, 16, v{XG+r*8+i}")
            W(f"v_and_b32 v117, s12, v{XG+r*8+i}")
            W(pk("mul", 116, 116, 96+2*i))
            rndW(116, 118)
            W(f"v_add_f32 v{acc}, v{acc}, v116")
            W(f"v_add_f32 v{acc}, v{acc}, v117")
    for r in range(2):
        acc = 112 + r
        for sh in (1, 2, 4, 8):
            W(f"v_add_f32_dpp v{acc}, v{acc}, v{acc} row_shr:{sh} row_mask:0xf bank_mask:0xf bound_ctrl:0")
        W(f"v_add_f32_dpp v{acc}, v{acc}, v{acc} row_bcast:15 row_mask:0xa bank_mask:0xf")
        W(f"v_add_f32_dpp v{acc}, v{acc}, v{acc} row_bcast:31 row_mask:0xc bank_mask:0xf")
    for t in ["v_readlane_b32 s8, v112, 63", "v_readlane_b32 s9, v113, 63", "v_mov_b32 v116, s8", "v_mov_b32 v117, s9",
              "v_cmp_eq_u32 vcc, 1, v1", "v_cndmask_b32 v116, v116, v117, vcc", "v_cvt_pk_bf16_f32 v116, v116, v116",
              "v_lshlrev_b32 v116, 16, v116", "v_mul_f32 v116, 0xbfb8aa3b, v116", "v_exp_f32 v116, v116", "v_add_f32 v116, 1.0, v116",
              "v_rcp_f32 v116, v116", "v_cvt_pk_bf16_f32 v117, v116, v116", "v_lshlrev_b32 v116, 16, v117", "v_sub_f32 v118, 1.0, v116",
              "v_cvt_pk_bf16_f32 v116, v116, v118", "s_lshl_b32 s14, s14, 2", "v_lshl_add_u32 v117, v1, 2, s14"]:
        W(t)
    def gstore():
        A("s_mov_b64 exec, 3")
        V.issue("buffer_store_dword v116, v117, s[76:79], 0 offen sc1", "g")
        A("s_mov_b64 exec, -1")
    W(gstore)
    W("KVSTART")
    W(lambda: V.wait("k"))
    for i in range(19):
        W(f"ds_read_b32 v{KR+i}, v21 offset:{16384 + (5+i)*128}")
        if i == 9: W("s_waitcnt lgkmcnt(0)")
    W("s_waitcnt lgkmcnt(0)")
    for i in range(19):
        W(f"v_lshlrev_b32 v{KF+2*i}, 16, v{KR+i}")
        W(f"v_and_b32 v{KF+2*i+1}, s12, v{KR+i}")
    for jx in range(4):
        for cc in range(2):
            src = SK + cc*2 + (jx >> 1)
            W(f"v_and_b32 v{SP+2*jx+cc}, s12, v{src}" if jx & 1 else f"v_lshlrev_b32 v{SP+2*jx+cc}, 16, v{src}")
    W(lambda: V.wait("v"))
    for i in range(16):
        W(f"ds_read_b32 v{VR_+i}, v21 offset:{i*128}")
        if i == 7: W("s_waitcnt lgkmcnt(0)")
    W("s_waitcnt lgkmcnt(0)")
    for t in range(16):
        vv = 176 + (t & 1)*2
        W(f"v_lshlrev_b32 v{vv}, 16, v{VR_+t}")
        W(f"v_and_b32 v{vv+1}, s12, v{VR_+t}")
        if opt("pk", 0) & 2:
            o = OUT + 2*t
            W(f"v_pk_mul_f32 {vr(o,2)}, {vr(KF+2*t,2)}, {vr(SP+6,2)}")
            for jx in (2, 1, 0): W(f"v_pk_fma_f32 {vr(o,2)}, {vr(KF+2*(t+3-jx),2)}, {vr(SP+2*jx,2)}, {vr(o,2)}")
            W(f"v_pk_mul_f32 {vr(o,2)}, {vr(o,2)}, {vr(vv,2)}")
            continue
        for cc in range(2): W(f"v_mul_f32 v{OUT+2*t+cc}, v{KF+2*t+cc}, v{SP+6+cc}")
        for jx in (2, 1, 0):
            for cc in range(2): W(f"v_fmac_f32 v{OUT+2*t+cc}, v{KF+2*(t+3-jx)+cc}, v{SP+2*jx+cc}")
        for cc in range(2): W(f"v_mul_f32 v{OUT+2*t+cc}, v{OUT+2*t+cc}, v{vv+cc}")
    for cc in range(2):
        for hf in range(2):
            d = 192 + (cc*2+hf)*4
            for m in range(4):
                mm = hf*4 + m
                W(f"v_cvt_pk_bf16_f32 v{d+m}, v{OUT+2*(15-2*mm)+cc}, v{OUT+2*(14-2*mm)+cc}")
            W(f"ds_write_b128 v23, {vr(d,4)} offset:{cc*272+hf*16}")
    W("s_waitcnt lgkmcnt(0)")
    W("BARRIER")
    for i in range(4): W(f"ds_read_b128 {vr(192+4*i,4)}, v24 offset:{i*4*272}")
    KVL = "nokvl" not in OPT
    def kvstores():
        def block(pol):
            for i in range(4):
                A(f"s_waitcnt lgkmcnt({3-i})")
                V.issue(f"buffer_store_dwordx4 {vr(192+4*i,4)}, v{27 if i < 2 else 3}, s[72:75], s{80+4*(i&1)} offen{pol}", "kvt")
        if not KVL:
            block(" sc1"); return
        V.wait("cls")
        local_check(A, 247, 246, 96, 98)
        A("s_cbranch_scc0 h_kvl")
        n0 = V.n
        block(" sc1")
        A("s_branch h_kve")
        A("h_kvl:")
        V.n = n0
        block("")
        A("h_kve:")
    W(kvstores)
    wpos = [0]
    blocked = [False]
    cur = [0]
    PL = opt("pl", 1)
    KVW = PL + opt("kvd", 3)
    def do_work(n):
        while n > 0 and wpos[0] < len(work) and not blocked[0]:
            w = work[wpos[0]]
            wpos[0] += 1
            if w == "BARRIER":
                blocked[0] = True; return
            if w == "KVSTART":
                if cur[0] < KVW:
                    wpos[0] -= 1; return
                continue
            if callable(w): w()
            else: A(w)
            n -= 1
    PREP0 = opt("prep0", 1)
    UL = 40
    ACC = 64; BF = 96; AFR = 160; KD = 224
    def setup_conv(A):
        A("s_lshl_b32 s12, s88, 12")
        srd(A, 64, "ssmk", 4096, off_sreg=12)
        srd(A, 68, "ws", 4096, WS_KVT, off_sreg=12)
        A("s_mov_b32 s80, s100")
        A("s_mov_b32 s81, s101")
        A("v_and_b32 v37, 15, v1")
        A("s_lshr_b32 s8, s88, 6")
        A("s_and_b32 s8, s8, 1")
        A("s_lshl_b32 s8, s8, 3")
        A("s_add_u32 s8, s8, s54")
        A("v_lshl_add_u32 v32, v37, 4, s8")
        A("s_lshr_b32 s8, s4, 2")
        A("s_lshl_b32 s8, s8, 1")
        A("s_and_b32 s9, s4, 3")
        A("s_lshl_b32 s9, s9, 3")
        A("s_add_u32 s8, s8, s9")
        A("v_lshrrev_b32 v38, 3, v37")
        A("v_and_b32 v39, 7, v37")
        A("v_lshl_add_u32 v38, v39, 5, v38")
        A("v_add_u32 v38, s8, v38")
        A("v_and_b32 v39, 16, v1")
        A("v_cmp_ne_u32 vcc, 0, v39")
        A("v_cndmask_b32 v32, v32, v38, vcc")
        A("v_lshlrev_b32 v32, 7, v32")
        A(f"v_add_u32 v32, {KF_OFF:#x}, v32")
        A("v_lshlrev_b32 v33, 2, v1")
        srd(A, 76, "dbg", 256)
        A(f"s_mul_i32 s13, s3, 8320")
        A(f"s_add_u32 s13, s13, {KREG}")
        A(f"s_mul_i32 s82, s3, 4608")
        A(f"s_add_u32 s82, s82, {UREG}")
        A("v_add_u32 v36, 2, v25")
        A("v_and_b32 v38, 7, v1")
        A("v_lshlrev_b32 v38, 2, v38")
        A("v_bfe_u32 v39, v1, 3, 1")
        A("v_mul_u32_u24 v39, 4160, v39")
        A("v_add3_u32 v38, v38, v39, s13")
        A("s_lshl_b32 s80, s80, 16")
        A("v_mov_b32 v56, s80")
        A("v_cmp_eq_u32 vcc, 15, v37")
        A("v_cndmask_b32 v56, 0, v56, vcc")
        A("ds_write_b32 v38, v56")
        A("s_and_b32 s14, s88, 1")
        A("s_lshl_b32 s14, s14, 4")
        A("s_lshr_b32 s81, s81, s14")
        A("s_lshl_b32 s81, s81, 16")
        A(f"v_mov_b32 v60, {LFLAG:#x}")
        A("v_mov_b32 v61, 1")
    def setup_late(A):
        A("v_lshrrev_b32 v5, 4, v1")
        A("v_and_b32 v37, 15, v1")
        A("v_lshl_add_u32 v38, v5, 3, v37")
        A("v_lshlrev_b32 v38, 1, v38")
        A("v_and_b32 v39, 1, v1")
        A("v_mul_u32_u24 v39, 4158, v39")
        A("v_sub_u32 v38, v38, v39")
        A("s_add_u32 s14, s13, 4160")
        A("v_add_u32 v16, s14, v38")
        for i in range(1, 4): A(f"v_add_u32 v{16+i}, {1024*i}, v16")
        A("v_lshlrev_b32 v38, 5, v37")
        A("v_lshlrev_b32 v39, 4, v5")
        A("v_sub_u32 v20, v39, v38")
        A("s_add_u32 s14, s82, 480")
        A("v_add_u32 v20, s14, v20")
        A("v_lshl_add_u32 v39, v5, 3, v38")
        A("s_add_u32 s14, s82, 504")
        A("v_sub_u32 v21, s14, v39")
        A("v_and_b32 v39, 1, v5")
        A("v_lshl_add_u32 v22, v39, 9, v38")
        A("v_lshrrev_b32 v39, 1, v5")
        A("v_lshl_add_u32 v22, v39, 4, v22")
        A("v_add_u32 v23, s82, v25")
    setup_conv(W)
    print("prep work items", len(work))
    def cissue(st):
        tile_of(A, st >> 1, 11)
        A("s_lshl_b32 s11, s11, 7")
        sr_ = "s[56:59]" if st % 2 == 0 else "s[60:63]"
        A("s_add_u32 s99, s11, s91")
        A(f"s_add_u32 m0, s10, {(st % NS2)*16384:#x}")
        for n in range(2):
            V.issue(f"buffer_load_dwordx4 v{VC+n}, {sr_}, s99 offen offset:{n*1024} lds")
        A("s_add_u32 s11, s11, s90")
        A(f"s_add_u32 m0, s10, {(st % NS2)*16384 + 8192:#x}")
        for n in range(2):
            V.issue(f"buffer_load_dwordx4 v{VC+n}, {sr_}, s11 offen offset:{n*1024} lds", ("C", st))
    def uloads():
        for i in range(4): A(f"buffer_load_dwordx4 {vr(UL+4*i,4)}, v25, s[68:71], 0 offen offset:{i*1024} sc1")
    def ctouch():
        A("s_cmp_ge_u32 s3, 2")
        A(f"s_cselect_b32 s96, s{P['Cim']}, s{P['Cre']}")
        A(f"s_cselect_b32 s97, s{P['Cim']+1}, s{P['Cre']+1}")
        A("s_lshl_b32 s98, s2, 13")
        A("s_and_b32 s99, s3, 1")
        A("s_lshl_b32 s99, s99, 12")
        A("s_add_u32 s98, s98, s99")
        A("v_and_b32 v240, 31, v1")
        A("v_lshl_add_u32 v240, v240, 7, s98")
        V.issue("global_load_dword v241, v240, s[96:97]")
    FILL = opt("fill", 10)
    kst = [None]
    KW = opt("kw", 2)
    CHK = opt("chk", 13)
    KFS = opt("kfs", 12)
    KDS = opt("kds", 12)
    UWS = opt("uws", 14)
    WEND = min(KFS, KDS, 12)
    CM = opt("cm", 6)
    assert CHK < UWS <= 15
    nU = [0]; cdone = [0]
    NC0 = opt("nc0", 2)
    A(f"v_mov_b32 v6, {LFLAG:#x}")
    A("v_mov_b32 v7, 0")
    for o in (4, 8, 12, 16): A(f"ds_write_b32 v6, v7 offset:{o}")
    ST()
    A("s_waitcnt lgkmcnt(0)")
    V.wait("clr")
    ST()
    A("s_barrier")
    issue(2)
    for t, tag in gl: V.issue(t, tag)
    for s in range(N1):
        V.wait(("S", min(s+1, N1-1)))
        if kst[0] is not None and s == min(kst[0] + KW, 15): V.wait("kvt"); V.wait("g")
        if "fine1" in OPT: STH()
        A("s_barrier")
        if kst[0] is not None and s == min(kst[0] + KW, 15):
            A("s_cmp_lg_u32 s3, 0")
            A("s_cbranch_scc1 h_kflag")
            A("v_mov_b32 v6, 1")
            A("buffer_store_dword v6, v30, s[92:95], 0 offen sc1")
            A("h_kflag:")
            print("k flag after barrier", s+1)
        blocked[0] = False
        cur[0] = s
        FM = opt("fmode", 0)
        if s+3 < N1 and FM == 0: issue(s+3, FILL if s >= PREP0 else 0)
        elif s+3 < N1 and FM == 1:
            issue(s+3)
            if s >= PREP0: do_work(8*FILL)
        if s == PL - 100: pass
        if s == PL: kvdma()
        if s == CM: ctouch()
        if KVL and s == opt("cls", 6):
            A("v_lshlrev_b32 v246, 2, v1")
            V.issue(f"global_load_dword v247, v246, {sp('dbg')} sc1", "cls")
        if kst[0] is None and "kvt" in V.tags and "g" in V.tags: kst[0] = s
        if s == WEND:
            do_work(10000)
            assert wpos[0] == len(work), (wpos[0], len(work))
        if s == KFS:
            V.issue("buffer_load_dword v34, v33, s[76:79], 0 offen sc1")
            V.issue("buffer_load_dword v35, v32, s[92:95], 0 offen sc1", "kf")
            ST()
        if s == KDS and KDS < CHK:
            V.wait("g")
            A("s_add_u32 m0, s13, 32")
            for i in range(4): V.issue(f"buffer_load_dwordx4 v25, s[64:67], 0 offen offset:{i*1024}{NTP} lds")
            A("s_add_u32 m0, s13, 4192")
            for i in range(4): V.issue(f"buffer_load_dwordx4 v36, s[64:67], 0 offen offset:{i*1024}{NTP} lds", "K")
        if s == 13:
            srd(A, 56, "Cre", 2 << 20)
            srd(A, 60, "Cim", 2 << 20)
            A("s_lshl_b32 s10, s3, 11")
            A(f"s_add_u32 s10, s10, {CRING:#x}")
            A("s_lshr_b32 s90, s5, 3")
            A("s_xor_b32 s91, s90, 1")
            A("s_lshl_b32 s91, s91, 20")
            A("s_lshl_b32 s11, s90, 10")
            A("s_add_u32 s91, s91, s11")
            A("s_mul_i32 s90, s90, 0x100400")
            A("v_mov_b32 v56, 0")
            A("v_mov_b32 v57, 0")
            A("v_lshlrev_b32 v38, 3, v1")
            A("v_add_u32 v38, s82, v38")
            A("ds_write_b64 v38, v[56:57] offset:4096")
            ST()
        if s == CHK:
            V.wait("kf")
            A("s_mov_b32 s83, 0")
            A("v_and_b32 v34, 15, v34")
            A("v_cmp_ne_u32 vcc, 15, v34")
            A("v_cmp_ne_u32 s[84:85], 1, v35")
            A("s_or_b64 vcc, vcc, s[84:85]")
            A("s_cbranch_scc1 h_nou")
            A("s_mov_b32 s83, 1")
            uloads()
            A("h_nou:")
            nU[0] = V.n
        if s == KDS and KDS >= CHK:
            V.wait("g")
            A("s_add_u32 m0, s13, 32")
            for i in range(4): V.issue(f"buffer_load_dwordx4 v25, s[64:67], 0 offen offset:{i*1024}{NTP} lds")
            A("s_add_u32 m0, s13, 4192")
            for i in range(4): V.issue(f"buffer_load_dwordx4 v36, s[64:67], 0 offen offset:{i*1024}{NTP} lds", "K")
        if s == opt("lates", 14): setup_late(A)
        if s == 15:
            for z in range(NC0): cissue(z)
            cdone[0] = NC0
        if s == UWS:
            A("s_cmp_lg_u32 s83, 1")
            A("s_cbranch_scc1 h_nouw")
            A(f"s_waitcnt vmcnt({V.n - nU[0]})")
            for i in range(4): A(f"ds_write_b128 v23, {vr(UL+4*i,4)} offset:{1024*i}")
            A("h_nouw:")
    ST()
    if "hprio1" in OPT: A("s_setprio 0")
    A("s_cmp_lg_u32 s83, 0")
    A("s_cbranch_scc1 h_haveu")
    spin_all(A, "h_init", 34, "buffer_load_dword v34, v33, s[76:79], 0 offen sc1", "15", pre="v_and_b32 v34, 15, v34")
    spin_all(A, "h_kf", 35, "buffer_load_dword v35, v32, s[92:95], 0 offen sc1")
    uloads()
    A("s_waitcnt vmcnt(0)")
    for i in range(4): A(f"ds_write_b128 v23, {vr(UL+4*i,4)} offset:{1024*i}")
    A("h_haveu:")
    V.done = max(V.done, nU[0])
    V.wait("K")
    lds_inc(A, 60, 61, 8)
    for i in range(4): A(f"s_mov_b32 s{84+i}, s{68+i}")
    srd(A, 68, "ws", 4 << 20, WS_KVT)
    A("s_waitcnt lgkmcnt(0)")
    ST()
    L = LQ(A)
    ops = []
    def reads(r):
        R = []
        s = r & 1
        for i in range(8):
            R.append((f"ds_read_b128 {vr(BF+s*32+i*4,4)}, v20 offset:{3584-512*i+64*r}", ("B", r, i)))
            o = 128*(i & 1) + 16*r
            d = AFR + s*32 + i*4
            R.append((f"ds_read2_b32 {vr(d,2)}, v{16+(i>>1)} offset0:{o} offset1:{o+1}", None))
            R.append((f"ds_read2_b32 {vr(d+2,2)}, v{16+(i>>1)} offset0:{o+2} offset1:{o+3}", ("A", r, i)))
        return R
    def first_order(R):
        return R[1:3] + [R[3*i] for i in range(8)] + [x for i in range(1, 8) for x in R[3*i+1:3*i+3]]
    KVT = 40
    for n in range(8): ops.append(("rd", f"ds_read_b64 {vr(KVT+2*n,2)}, v21 offset:{3584-512*n}", ("KV", n)))
    for t, tag in first_order(reads(0)): ops.append(("rd", t, tag))
    fill = []
    fill.append(("s_mov_b32 s12, 0xffff0000", None)); fill.append(("v_mov_b32 v26, s81", None))
    for n in range(8):
        k = KD + 4*n
        c = [f"v_and_b32 v{k}, s12, v{KVT+2*n+1}", f"v_lshlrev_b32 v{k+1}, 16, v{KVT+2*n+1}", f"v_and_b32 v{k+2}, s12, v{KVT+2*n}", f"v_lshlrev_b32 v{k+3}, 16, v{KVT+2*n}"]
        c += [f"v_mul_f32 v{k+i}, v{k+i}, v26" for i in range(4)]
        c += [f"v_cvt_pk_bf16_f32 v56, v{k}, v{k+1}", f"v_cvt_pk_bf16_f32 v57, v{k+2}, v{k+3}",
              f"v_lshlrev_b32 v{k}, 16, v56", f"v_and_b32 v{k+1}, s12, v56", f"v_lshlrev_b32 v{k+2}, 16, v57", f"v_and_b32 v{k+3}, s12, v57"]
        for i, t in enumerate(c): fill.append((t, ("KV", n) if i == 0 else None))
    YD = 40
    def post(n):
        y = ACC + 4*n; k = KD + 4*n
        d = YD + (n >> 1)*4 + (n & 1)*2
        c = [f"v_cvt_pk_bf16_f32 v56, v{y}, v{y+1}", f"v_cvt_pk_bf16_f32 v57, v{y+2}, v{y+3}",
             f"v_lshlrev_b32 v{y}, 16, v56", f"v_and_b32 v{y+1}, s12, v56", f"v_lshlrev_b32 v{y+2}, 16, v57", f"v_and_b32 v{y+3}, s12, v57"]
        c += [f"v_add_f32 v{k+i}, v{k+i}, v{y+i}" for i in range(4)]
        c += [f"v_cvt_pk_bf16_f32 v{d}, v{k}, v{k+1}", f"v_cvt_pk_bf16_f32 v{d+1}, v{k+2}, v{k+3}"]
        if n & 1:
            d = YD + (n >> 1)*4
            c += [f"v_permlane16_swap_b32 v{d}, v{d+2}", f"v_permlane16_swap_b32 v{d+1}, v{d+3}"]
        return c
    ystores = [f"buffer_store_dwordx4 {vr(YD+4*k,4)}, v22, s[84:87], 0 offen offset:{k*1024} sc1" for k in range(4)]
    LATEC = opt("latec", 200)
    CFM = opt("cfm", 80)
    FPM = opt("fpm", 2)
    nmf = 0
    postq = []
    for r in range(8):
        s = r & 1
        nxt = first_order(reads(r+1)) if r < 7 else []
        cnt = 0
        for q in range(8):
            for n in range(q, 8):
                c = vr(ACC+4*n, 4)
                ops.append(("mf", f"v_mfma_f32_16x16x32_bf16 {c}, {vr(AFR+s*32+4*q,4)}, {vr(BF+s*32+4*(n-q),4)}, {'0' if (r == 0 and q == 0) else c}",
                            [("A", r, q), ("B", r, n-q)]))
                nmf += 1; cnt += 1
                if nxt and cnt >= 2:
                    t, tag = nxt.pop(0); ops.append(("rd", t, tag))
                elif r < 7:
                    for z in range(FPM):
                        if fill: ops.append(("fill",) + fill.pop(0))
                if nmf == LATEC: ops.append(("latec",))
                if nmf == CFM: ops.append(("cf",))
                if r == 7:
                    if n == q: postq += [(nmf + 3, t) for t in post(n)]
                    for z in range(opt("ppm", 3)):
                        if postq and postq[0][0] <= nmf and q < 7: ops.append(("fill", postq.pop(0)[1], None))
        assert not nxt
    assert not fill and CFM < LATEC
    for _, t in postq: ops.append(("fill", t, None))
    for op in ops:
        if op[0] == "rd": L.issue(op[1], op[2])
        elif op[0] == "mf":
            for t in op[2]: pass
            k = max(op[2], key=lambda t: L.tags[t])
            L.wait(k)
            A(op[1])
        elif op[0] == "fill":
            if op[2] is not None: L.wait(op[2])
            A(op[1])
        elif op[0] == "latec":
            while cdone[0] < NS2: cissue(cdone[0]); cdone[0] += 1
        elif op[0] == "cf":
            while cdone[0] < 2: cissue(cdone[0]); cdone[0] += 1
            V.wait(("C", 1))
            lds_inc(A, 60, 61, 16); L.n += 1
    ST()
    YST = opt("yst", 0)
    if YST == 0:
        for t in ystores: V.issue(t, "y2")
    A("v_lshrrev_b32 v8, 4, v1")
    A("s_lshl_b32 s8, s3, 4")
    A("v_add_u32 v8, s8, v8")
    A("v_and_b32 v11, 15, v1")
    A("s_lshl_b32 s9, s5, 11")
    A(f"s_add_u32 s9, s9, {YF_OFF:#x}")
    A("v_lshl_add_u32 v10, v11, 7, s9")
    A("v_lshlrev_b32 v11, 4, v11")
    A("v_mul_u32_u24 v9, 272, v8")
    A("v_add_u32 v9, v9, v11")
    A("s_lshl_b32 s8, s5, 6")
    A("v_add_u32 v8, s8, v8")
    A("v_lshl_add_u32 v8, v8, 12, v11")
    A("s_lshl_b32 s8, s4, 8")
    A("v_add_u32 v8, s8, v8")
    srd(A, 64, "x", 4 << 20)
    A("s_lshl_b32 s8, s4, 2")
    A("s_add_u32 s8, s8, s3")
    A("s_lshl_b32 s8, s8, 5")
    A("v_lshrrev_b32 v12, 3, v1")
    A("v_add_u32 v12, s8, v12")
    A("v_lshlrev_b32 v12, 11, v12")
    A("v_and_b32 v11, 7, v1")
    A("v_lshl_add_u32 v12, v11, 4, v12")
    A("s_lshl_b32 s8, s5, 7")
    A("v_add_u32 v12, s8, v12")
    ST()
    YR = 116
    YFL_LD = "buffer_load_dword v19, v10, s[92:95], 0 offen sc1"
    YFL, GYF, GYL, GYW = opt("yfl", 5), opt("gyf", 8), opt("gyl", 10), opt("gyw", 12)
    XGS = opt("xgs", 7); XGW = opt("xgw", 10)
    assert XGS < XGW <= N2 - 2
    for st in range(1, N2-1):
        V.wait(("C", st+1))
        if st == XGW: V.wait("xt")
        if "fineh" in OPT: STH()
        A("s_barrier")
        if NS2 <= st + NS2 - 1 < N2: cissue(st + NS2 - 1)
        if "abl" in OPT and st >= 2 and st < 13 and int(OPT["abl"]) & 1:
            continue_ = True
            for tg in ("y2", "xt", "yf", "eps"): V.tags.setdefault(tg, 0)
            continue
        if YST and st == YST:
            for t in ystores: V.issue(t, "y2")
        if st == XGS:
            for i in range(4):
                A(f"s_add_u32 m0, s82, {i*1024}")
                A(f"s_mov_b32 s8, {i*16384}")
                V.issue("buffer_load_dwordx4 v12, s[64:67], s8 offen lds", "xt")
        if st == YFL:
            V.wait("y2")
            A("s_mov_b64 exec, 1")
            A("ds_add_rtn_u32 v62, v60, v61 offset:4")
            A("s_mov_b64 exec, -1")
            A("s_waitcnt lgkmcnt(0)")
            A("v_readfirstlane_b32 s83, v62")
            A("s_cmp_lg_u32 s83, 3")
            A("s_cbranch_scc1 h_noy")
            A("buffer_store_dword v61, v31, s[92:95], 0 offen sc1")
            A("h_noy:")
        if st == GYF: V.issue(YFL_LD, "yf")
        if st == GYL:
            V.wait("yf")
            spin_all(A, "h_yf", 19, YFL_LD)
            for i in range(4):
                A(f"s_mov_b32 s8, {i*16384}")
                V.issue(f"buffer_load_dwordx4 {vr(YR+i*4,4)}, v8, s[68:71], s8 offen sc1", "eps")
        if st == GYW:
            V.wait("eps")
            for i in range(4): A(f"ds_write_b128 v9, {vr(YR+i*4,4)} offset:{i*4*272}")
            A("s_waitcnt lgkmcnt(0)")
    assert YST < YFL < GYF < GYL < GYW <= N2 - 3
    STH.flush()
    ST.flush()
    A("s_endpgm")

def build():
    s = header_comments()
    s += "; generated by tools/gen9.py (fused single kernel, split-K GEMM2; gen8 h layout)\n"
    s += "; @launch grid=(256,1,1) block=(512,1,1) lds=163840\n"
    s += '.amdgcn_target "amdgcn-amd-amdhsa--gfx950"\n.text\n'
    A = Asm()
    A.raw(f".globl {KN}\n.p2align 8\n.type {KN},@function")
    gen_kernel(A)
    s += A.render()
    s += descriptor(KN, 256, 102)
    import subprocess, tempfile, re
    with tempfile.TemporaryDirectory() as td:
        open(td + "/a.s", "w").write(s.replace("CODE_LAST", "0x12345"))
        subprocess.run(["clang", "-x", "assembler", "-target", "amdgcn-amd-amdhsa", "-mcpu=gfx950", "-c", td + "/a.s", "-o", td + "/a.o"], check=True)
        o = subprocess.run(["llvm-objdump", "-h", td + "/a.o"], capture_output=True, text=True).stdout
    size = int(re.search(r"\.text\s+([0-9a-f]+)", o).group(1), 16)
    print("code bytes", size)
    assert size <= 65536
    return s.replace("CODE_LAST", hex(size - 4))

if __name__ == "__main__":
    out = sys.argv[1] if len(sys.argv) > 1 and not sys.argv[1].startswith("--") else os.path.join(os.path.dirname(os.path.abspath(__file__)), "..", NAME + ".s")
    open(out, "w").write(build())
    print("wrote", out)
```

```python
import sys, os
sys.path.insert(0, os.path.dirname(os.path.abspath(__file__)))
from asmlib import Asm
from gen import (NAME, P, sp, vr, sr, load_kernargs, srd, pk, cmul, tile_ids, Stamper, OPT, header_comments, descriptor)
import gen

KN = NAME + "_kernel"
WS_H    = 0
WS_KVT  = 8 << 20
WS_G    = 16 << 20
WS_EBOX = 17 << 20
WS_FLG  = 18 << 20
HF_OFF  = 0
KF_OFF  = 128 << 10
YF_OFF  = 160 << 10
PF_OFF  = 192 << 10
FLG_SZ  = 320 << 10
WS_PART = 24 << 20
N1 = 16
N2 = 16
NS2 = 4
PD = 4
CRING = 32768
KREG = 98304
UREG = KREG + 4*8320
LFLAG = UREG + 4*4608
SPIN = int(OPT.get("spin", 1 << 16))
SLEEP = int(OPT.get("sleep", 4))
def opt(k, d): return int(OPT.get(k, d))

class VQ:
    def __init__(self, A): self.A = A; self.n = 0; self.tags = {}; self.done = 0
    def issue(self, text, tag=None):
        self.A(text); self.n += 1
        if tag is not None: self.tags[tag] = self.n
    def wait(self, tag):
        k = self.tags[tag]
        if k <= self.done: return
        cnt = min(63, self.n - k)
        self.A(f"s_waitcnt vmcnt({cnt})"); self.done = self.n - cnt
    def drained(self): self.done = self.n

class LQ:
    def __init__(self, A): self.A = A; self.n = 0; self.tags = {}; self.done = 0
    def issue(self, text, tag=None):
        self.A(text); self.n += 1
        if tag is not None: self.tags[tag] = self.n
    def wait(self, tag):
        k = self.tags[tag]
        if k > self.done:
            self.A(f"s_waitcnt lgkmcnt({min(15, self.n - k)})"); self.done = max(k, self.n - 15)
    def drain(self):
        self.A("s_waitcnt lgkmcnt(0)"); self.done = self.n

def spin_all(A, name, vreg, reload, cmpval="1", sctr=89, pre=None):
    A(f"s_mov_b32 s{sctr}, {SPIN}")
    A(f"{name}_chk:")
    if pre: A(pre)
    A(f"v_cmp_ne_u32 vcc, {cmpval}, v{vreg}")
    A("s_cmp_eq_u64 vcc, 0")
    A(f"s_cbranch_scc1 {name}_ok")
    A(f"s_sub_u32 s{sctr}, s{sctr}, 1")
    A(f"s_cbranch_scc1 {name}_ok")
    A(f"s_sleep {SLEEP}")
    A(reload)
    A("s_waitcnt vmcnt(0)")
    A(f"s_branch {name}_chk")
    A(f"{name}_ok:")

def lds_spin(A, name, vaddr, off, vtmp, target, stmp=8, sctr=89):
    A(f"s_mov_b32 s{sctr}, {SPIN*4}")
    A(f"{name}:")
    A(f"ds_read_b32 v{vtmp}, v{vaddr} offset:{off}")
    A("s_waitcnt lgkmcnt(0)")
    A(f"v_readfirstlane_b32 s{stmp}, v{vtmp}")
    A(f"s_cmp_ge_u32 s{stmp}, {target}")
    A(f"s_cbranch_scc1 {name}_ok")
    A(f"s_sub_u32 s{sctr}, s{sctr}, 1")
    A(f"s_cbranch_scc0 {name}")
    A(f"{name}_ok:")

def lds_inc(A, vaddr, vone, off):
    A("s_mov_b64 exec, 1")
    A(f"ds_add_u32 v{vaddr}, v{vone} offset:{off}")
    A("s_mov_b64 exec, -1")

def zip_chains(A, chains):
    chains = [[x for t in c for x in t.split("\n")] for c in chains]
    for i in range(max(len(c) for c in chains)):
        for c in chains:
            if i < len(c): A(c[i])

def local_check(A, vbits, vtmp, sdst_pair, stmp):
    A(f"s_getreg_b32 s{stmp}, hwreg(HW_REG_XCC_ID, 0, 4)")
    A(f"s_lshl_b32 s{stmp}, 0x100, s{stmp}")
    A(f"s_or_b32 s{stmp}, s{stmp}, 15")
    A(f"v_and_b32 v{vtmp}, 7, v1")
    A(f"v_cmp_eq_u32 s[{sdst_pair}:{sdst_pair+1}], s54, v{vtmp}")
    A(f"v_cmp_ne_u32 vcc, s{stmp}, v{vbits}")
    A(f"s_and_b64 vcc, vcc, s[{sdst_pair}:{sdst_pair+1}]")

ORD = opt("ord", 1)
def tile_of(A, i, dst):
    if i == 0: A(f"s_mov_b32 s{dst}, s15")
    elif ORD:
        A(f"s_cmp_le_u32 s15, {i-1}")
        A(f"s_cselect_b32 s{dst}, {i}, {i-1}")
    else:
        A(f"s_add_u32 s{dst}, s15, {i}")
        A(f"s_and_b32 s{dst}, s{dst}, 7")

def gen_kernel(A):
    A(f"{KN}:")
    A("s_cmp_ge_u32 s2, 256")
    A("s_cbranch_scc1 L_end")
    load_kernargs(A)
    tile_ids(A)
    A("v_and_b32 v1, 63, v0")
    A("v_lshrrev_b32 v2, 6, v0")
    A("s_and_b32 s15, s5, 7")
    A("v_readfirstlane_b32 s3, v2")
    A("s_cmp_ge_u32 s3, 4")
    A("s_cbranch_scc0 L_consumer")
    helper(A)
    A("L_consumer:")
    consumer(A)
    A("L_end:")
    A("s_endpgm")


def consumer(A):
    ACC = 64
    FA, FB = 128, 144
    AD, BD = 160, 168
    LAM, C2, MU, MU2, MU4, MU8 = 176, 178, 180, 182, 184, 186
    EL = 192
    UR2 = 224
    ST = Stamper(A, 0, 63)
    ST()
    A(f"s_setprio {opt('prio', 2)}")
    A("s_and_b32 s6, s3, 1")
    A("s_lshr_b32 s7, s3, 1")
    A("v_and_b32 v4, 31, v1")
    A("s_lshl_b32 s8, s5, 6")
    A("s_lshl_b32 s9, s7, 5")
    A("s_add_u32 s8, s8, s9")
    A("v_add_u32 v3, s8, v4")
    A("v_lshlrev_b32 v5, 1, v3")
    A("v_lshrrev_b32 v6, 5, v1")
    A("s_lshl_b32 s10, s4, 1")
    A("s_add_u32 s10, s10, s6")
    if "nocode" not in OPT:
        A("s_getpc_b64 s[12:13]")
        A("c_pc:")
        A(f"s_sub_u32 s12, s12, c_pc-{KN}")
        A("s_subb_u32 s13, s13, 0")
        A("s_lshl_b32 s11, s3, 14")
        A("v_lshl_add_u32 v24, v1, 7, s11")
        A("v_min_u32 v24, CODE_LAST, v24")
        A("global_load_dword v25, v24, s[12:13]")
        A("v_add_u32 v24, 0x2000, v24")
        A("v_min_u32 v24, CODE_LAST, v24")
        A("global_load_dword v26, v24, s[12:13]")
    A("s_waitcnt lgkmcnt(0)")
    A(f"global_load_ushort v8, v5, {sp('Lre')}")
    A(f"global_load_ushort v9, v5, {sp('Lim')}")
    A(f"global_load_ushort v10, v5, {sp('logdt')}")
    srd(A, 56, "ws", 256 << 10, WS_EBOX)
    srd(A, 60, "ws", 8 << 20, WS_H)
    srd(A, 64, "dbg", 256)
    srd(A, 68, "ws", FLG_SZ, WS_FLG)
    A("s_lshl_b32 s11, s10, 13")
    A("v_lshl_add_u32 v7, v3, 3, s11")
    A("v_mov_b32 v12, 0")
    A("v_mov_b32 v13, 0")
    A("buffer_store_dwordx2 v[12:13], v7, s[56:59], 0 offen sc1")
    A("s_lshl_b32 s11, s10, 4")
    A("s_add_u32 s11, s11, s5")
    A("s_lshl_b32 s11, s11, 1")
    A("s_add_u32 s11, s11, s7")
    A("s_lshl_b32 s11, s11, 7")
    A("v_mov_b32 v60, s11")
    A("buffer_store_dword v12, v60, s[68:71], 0 offen sc1")
    A("s_lshl_b32 s72, s4, 4")
    A("s_add_u32 s72, s72, s5")
    A("s_lshl_b32 s72, s72, 2")
    A("s_add_u32 s72, s72, s3")
    A("s_lshl_b32 s72, s72, 7")
    A(f"s_add_u32 s11, s72, {PF_OFF:#x}")
    A("v_mov_b32 v30, s11")
    A("buffer_store_dword v12, v30, s[68:71], 0 offen sc1")
    A("v_mov_b32 v23, 1")
    A("v_bfe_u32 v11, v1, 1, 3")
    A("v_xor_b32 v11, v11, v6")
    A("s_lshl_b32 s11, s6, 13")
    A("v_lshl_add_u32 v14, v4, 7, s11")
    A("s_lshl_b32 s11, s7, 12")
    A("s_add_u32 s11, s11, 16384")
    A("v_lshl_add_u32 v15, v4, 7, s11")
    for ks in range(4):
        A(f"v_xor_b32 v16, {2*ks}, v11")
        A(f"v_lshl_add_u32 v{AD+ks}, v16, 4, v14")
        A(f"v_lshl_add_u32 v{BD+ks}, v16, 4, v15")
        A(f"v_add_u32 v{AD+4+ks}, 0x10000, v{AD+ks}")
        A(f"v_add_u32 v{BD+4+ks}, 0x10000, v{BD+ks}")
    A("v_lshlrev_b32 v21, 2, v1")
    A("s_waitcnt vmcnt(0)")
    A("v_lshlrev_b32 v8, 16, v8")
    A("v_lshlrev_b32 v9, 16, v9")
    A("v_lshlrev_b32 v10, 16, v10")
    A("s_mov_b32 s12, 0x3fb8aa3b")
    A("v_mul_f32 v10, s12, v10")
    A("v_exp_f32 v10, v10")
    A("v_cvt_pk_bf16_f32 v10, v10, v10")
    A("v_lshlrev_b32 v10, 16, v10")
    A("v_mul_f32 v16, v10, v8")
    A("v_mul_f32 v17, v10, v9")
    A("v_mul_f32 v16, s12, v16")
    A("v_exp_f32 v16, v16")
    A("v_mul_f32 v17, 0.15915494, v17")
    A("v_rndne_f32 v18, v17")
    A("v_sub_f32 v17, v17, v18")
    A("v_cos_f32 v18, v17")
    A("v_sin_f32 v19, v17")
    A(f"v_mul_f32 v{LAM}, v16, v18")
    A(f"v_mul_f32 v{LAM+1}, v16, v19")
    A(f"v_add_f32 v16, -1.0, v{LAM}")
    A("v_mul_f32 v17, v8, v8")
    A("v_fma_f32 v17, v9, v9, v17")
    A("v_rcp_f32 v17, v17")
    A("v_mul_f32 v18, v16, v8")
    A(f"v_fma_f32 v18, v{LAM+1}, v9, v18")
    A(f"v_mul_f32 v19, v{LAM+1}, v8")
    A("v_fma_f32 v19, -v16, v9, v19")
    A("v_add_f32 v17, v17, v17")
    A(f"v_mul_f32 v{C2}, v18, v17")
    A(f"v_mul_f32 v{C2+1}, v19, v17")
    cmul(A, 16, LAM, LAM); cmul(A, 18, 16, 16); cmul(A, 16, 18, 18)
    cmul(A, MU, 16, 16); cmul(A, MU2, MU, MU); cmul(A, MU4, MU2, MU2); cmul(A, MU8, MU4, MU4)
    cmul(A, 48, C2, MU2)
    A("v_cmp_lt_u32 vcc, 31, v1")
    A(f"v_cndmask_b32 v48, v{C2}, v48, vcc")
    A(f"v_cndmask_b32 v49, v{C2+1}, v49, vcc")
    A("v_lshlrev_b32 v50, 13, v6")
    A("v_sub_u32 v50, v7, v50")
    A("s_add_u32 s11, s10, 1")
    A("v_sub_u32 v51, s11, v6")
    A("v_lshrrev_b32 v51, 1, v51")
    def rd(stage, ks, buf, which):
        slot = stage % 3
        hi = 4 if slot >= 2 else 0
        so = (slot & 1) * 32768
        if which < 2:
            return f"ds_read_b128 {vr(FA+buf*8+which*4,4)}, v{AD+hi+ks} offset:{so + which*4096}"
        ri = which - 2
        return f"ds_read_b128 {vr(FB+buf*8+ri*4,4)}, v{BD+hi+ks} offset:{so + ri*8192}"
    def mf(buf, mt, ri, first):
        acc = ACC + ri*32 + mt*16
        return f"v_mfma_f32_32x32x16_bf16 {vr(acc,16)}, {vr(FA+buf*8+mt*4,4)}, {vr(FB+buf*8+ri*4,4)}, {'0' if first else vr(acc,16)}"
    RD_ORDER = [0, 2, 1, 3]
    MF_ORDER = [(0,0), (1,0), (1,1), (0,1)]
    ST()
    A("s_barrier")
    ST()
    A("s_cmp_lg_u32 s3, 0")
    A("s_cbranch_scc1 c_noflag")
    A("s_lshr_b32 s11, s2, 6")
    A("s_lshl_b32 s11, 1, s11")
    A("s_getreg_b32 s12, hwreg(HW_REG_XCC_ID, 0, 4)")
    A("s_lshl_b32 s12, 0x100, s12")
    A("s_or_b32 s11, s11, s12")
    A("v_mov_b32 v16, s11")
    A("s_and_b32 s11, s2, 63")
    A("s_lshl_b32 s11, s11, 2")
    A("v_mov_b32 v17, s11")
    A("s_mov_b64 exec, 1")
    A("buffer_atomic_or v16, v17, s[64:67], 0 offen sc1")
    A("s_mov_b64 exec, -1")
    A("c_noflag:")
    for w in RD_ORDER: A(rd(0, 0, 0, w))
    for s in range(N1):
        for ks in range(4):
            buf = ks & 1
            last = (s == N1-1 and ks == 3)
            if ks == 3:
                A("s_waitcnt lgkmcnt(0)")
                A("s_barrier")
            ns, nks = (s, ks+1) if ks < 3 else (s+1, 0)
            for i in range(4):
                if ks < 3 and i < 3: A("s_waitcnt lgkmcnt(2)")
                A(mf(buf, *MF_ORDER[i], s == 0 and ks == 0))
                if not last: A(rd(ns, nks, buf ^ 1, RD_ORDER[i]))
            if (s in (3, 7, 11) if "fine1" not in OPT else s >= 3) and ks == 3: ST()
            if s == 12 and ks == 0:
                A("buffer_load_dword v20, v21, s[64:67], 0 offen sc1")
    ST()
    if "fine1" in OPT: ST.n = 40
    gen.SAFE_PK[0] = bool(opt("pk", 0) & 1)
    def UR(t): return ACC + (t >> 3)*16 + 2*(t & 7)
    def UI(t): return ACC + 32 + (t >> 3)*16 + 2*(t & 7)
    E = [(24, 26), (28, 30 - 30 + 44)]
    cr, ci = UR(0), UI(0)
    for t in range(1, 16):
        nr, ni = E[t & 1]
        A(pk("fma", nr, cr, LAM, UR(t), bsel=0))
        A(pk("fma", ni, ci, LAM, UI(t), bsel=0))
        A(pk("fma", nr, ci, LAM, nr, bsel=1, neg_b=True))
        A(pk("fma", ni, cr, LAM, ni, bsel=1))
        cr, ci = nr, ni
    A("v_mov_b32 v32, v28\nv_mov_b32 v33, v44\nv_mov_b32 v34, v29\nv_mov_b32 v35, v45")
    cmul(A, 36, MU, 32, add=34)
    A("v_mov_b32 v38, v36\nv_mov_b32 v39, v37\nv_mov_b32 v40, 0\nv_mov_b32 v41, 0")
    A("v_permlane32_swap_b32 v40, v38")
    A("v_permlane32_swap_b32 v41, v39")
    cmul(A, 42, MU2, 40, add=36)
    A("v_or_b32 v42, 1, v42")
    A("s_mov_b32 s12, 0")
    A("s_mov_b32 s13, -1")
    A("s_mov_b64 exec, s[12:13]")
    A("buffer_store_dwordx2 v[42:43], v7, s[56:59], 0 offen sc1")
    A("s_mov_b64 exec, -1")
    ST()
    for t in range(16):
        n = UR2 + 2*t
        A(pk("mul", n, UR(t), C2, bsel=0))
        A(pk("fma", n, UI(t), C2, n, bsel=1, neg_b=True))
        A(pk("mul", UI(t), UI(t), C2, bsel=0))
        A(pk("fma", UI(t), UR(t), C2, UI(t), bsel=1))
    cmul(A, 44, C2, 40)
    cmul(A, 46, C2, 32)
    for k in range(16):
        A(f"v_subrev_u32 v{128+k}, {(1+2*k)*8192:#x}, v50")
    ST()
    A("s_waitcnt vmcnt(1)")
    spin_all(A, "c_init", 52, "buffer_load_dword v20, v21, s[64:67], 0 offen sc1", "15", pre="v_and_b32 v52, 15, v20")
    local_check(A, 20, 52, 12, 11)
    A("s_cselect_b32 s14, 0, 1")
    if "nolocal" in OPT: A("s_mov_b32 s14, 0")
    for k in range(16):
        A(f"buffer_load_dwordx2 {vr(EL+2*k,2)}, v{128+k}, s[56:59], 0 offen sc1")
    BD2 = 32
    A("s_lshl_b32 s11, s3, 13")
    A("v_lshl_add_u32 v16, v6, 11, s11")
    A("v_lshl_add_u32 v16, v4, 6, v16")
    A("v_bfe_u32 v17, v1, 1, 2")
    for q in range(4):
        A(f"v_xor_b32 v18, {q}, v17")
        A(f"v_lshl_add_u32 v{64+q}, v18, 4, v16")
    A("v_mov_b32 v31, 1")
    A("v_bfe_u32 v16, v1, 2, 2")
    A("v_lshl_add_u32 v16, v6, 3, v16")
    A("v_and_b32 v24, 1, v1")
    A("v_bfe_u32 v18, v1, 4, 1")
    A("v_lshl_add_u32 v24, v24, 1, v18")
    A("v_bfe_u32 v18, v16, 1, 2")
    A("v_xor_b32 v24, v24, v18")
    A("v_lshlrev_b32 v24, 4, v24")
    A("v_lshl_add_u32 v24, v16, 6, v24")
    A("v_bfe_u32 v18, v1, 1, 1")
    A("v_lshl_add_u32 v24, v18, 3, v24")
    A("v_xor_b32 v25, 32, v24")
    A("v_add_u32 v25, 256, v25")
    A("v_add_u32 v68, s11, v24")
    A("v_add_u32 v69, s11, v25")
    A("s_lshl_b32 s11, s4, 7")
    A("s_lshl_b32 s12, s6, 6")
    A("s_add_u32 s11, s11, s12")
    A("s_and_b32 s12, s5, 7")
    A("s_lshl_b32 s12, s12, 2")
    A("s_add_u32 s11, s11, s12")
    A("s_add_u32 s11, s11, s7")
    A("s_lshl_b32 s11, s11, 12")
    A("s_lshr_b32 s13, s5, 3")
    A("s_lshl_b32 s13, s13, 11")
    A("s_add_u32 s11, s11, s13")
    A("v_lshl_add_u32 v72, v1, 4, s11")
    A(f"v_mov_b32 v20, {LFLAG:#x}")
    A("s_lshl_b32 s6, s4, 2")
    A("s_add_u32 s6, s6, s3")
    A("s_lshr_b32 s7, s3, 1")
    A("s_lshl_b32 s7, s7, 13")
    A("s_and_b32 s8, s3, 1")
    A("s_lshl_b32 s8, s8, 11")
    A("s_add_u32 s7, s7, s8")
    A("v_add_u32 v70, s7, v24")
    A("v_add_u32 v71, s7, v25")
    A("s_lshl_b32 s7, s6, 17")
    A("s_add_u32 s7, s7, s13")
    A("v_lshl_add_u32 v3, v1, 4, s7")
    A("v_add_u32 v2, 0x1000, v3")
    A(f"v_lshlrev_b32 v14, 7, v4")
    A(f"v_add_u32 v14, {CRING:#x}, v14")
    for ks in range(4):
        A(f"v_xor_b32 v16, {2*ks}, v11")
        A(f"v_lshl_add_u32 v{BD2+ks}, v16, 4, v14")
    A("s_lshr_b32 s7, s6, 1")
    A("s_lshl_b32 s7, s7, 12")
    A("s_add_u32 s7, s7, s13")
    A("v_bfe_u32 v16, v1, 1, 3")
    if ORD:
        A("v_subrev_u32 v14, 1, v16")
        A("v_cmp_le_u32 vcc, s15, v14")
        A("v_cndmask_b32 v14, v14, v16, vcc")
        A("v_mov_b32 v19, s15")
        A("v_cmp_eq_u32 vcc, 0, v16")
        A("v_cndmask_b32 v16, v14, v19, vcc")
    else:
        A("v_add_u32 v16, s15, v16")
        A("v_and_b32 v16, 7, v16")
    A("v_and_b32 v14, 1, v1")
    A("v_lshl_add_u32 v16, v16, 1, v14")
    A("v_lshl_add_u32 v22, v16, 7, s7")
    srd(A, 64, "ws", 8192, WS_G)
    srd(A, 76, "out", 8 << 20)
    srd(A, 92, "ws", 8 << 20, WS_PART)
    for i in range(8):
        A(f"s_mov_b32 s{80+i}, {i*4096}")
    A("s_lshl_b32 s7, s6, 5")
    A("v_lshl_add_u32 v7, v6, 4, s7")
    A("s_lshl_b32 s8, s5, 6")
    A("v_add_u32 v8, s8, v4")
    A("v_lshlrev_b32 v26, 12, v7")
    A("v_lshl_add_u32 v26, v8, 2, v26")
    A("v_add_u32 v27, 0x8000, v26")
    A("v_lshlrev_b32 v7, 2, v7")
    A("v_lshlrev_b32 v8, 1, v8")
    A("s_mul_i32 s8, s3, 4608")
    A(f"s_add_u32 s8, s8, {UREG}")
    A("v_lshlrev_b32 v61, 11, v6")
    A("v_lshl_add_u32 v61, v4, 1, v61")
    A("v_add_u32 v61, s8, v61")
    A("v_mul_u32_u24 v21, 272, v4")
    A("v_lshl_add_u32 v21, v6, 5, v21")
    A("s_lshl_b32 s8, s3, 6")
    A("v_add_u32 v21, s8, v21")
    A("s_xor_b32 s73, s72, 4096")
    A("s_lshl_b32 s74, s73, 6")
    A("s_add_u32 s75, s74, 4096")
    A(f"s_add_u32 s8, s73, {PF_OFF:#x}")
    A("v_mov_b32 v29, s8")
    A("v_lshlrev_b32 v28, 4, v1")
    A("v_mov_b32 v23, 1")
    A(f"s_mov_b32 s88, {SPIN}")
    A("c_poll:")
    A("s_waitcnt vmcnt(0)")
    A("v_mov_b32 v52, 0")
    for k in range(16):
        A(f"v_and_b32 v{144+k}, 1, v{EL+2*k}")
    for k in range(0, 16, 2):
        A(f"v_add3_u32 v52, v52, v{144+k}, v{145+k}")
    A("v_cmp_ne_u32 vcc, v52, v51")
    A("s_cmp_eq_u64 vcc, 0")
    A("s_cbranch_scc1 c_polled")
    A("s_sub_u32 s88, s88, 1")
    A("s_cbranch_scc1 c_polled")
    A(f"s_sleep {opt('psleep', SLEEP)}")
    for k in range(16):
        A(f"v_cmp_eq_u32 vcc, 0, v{144+k}")
        A("s_mov_b64 exec, vcc")
        A(f"buffer_load_dwordx2 {vr(EL+2*k,2)}, v{128+k}, s[56:59], 0 offen sc1")
        A("s_mov_b64 exec, -1")
    A("s_branch c_poll")
    A("c_polled:")
    ST()
    g = EL + 30
    G = [52, 54]
    for k in range(14, -1, -1):
        n = G[k & 1]
        A(pk("fma", n, g, MU8, EL+2*k, bsel=0))
        A(pk("fma", n, g, MU8, n, bsel=1, asel="swap", neg_lo=[1,0,0]))
        g = n
    A("v_mov_b32 v54, v52\nv_mov_b32 v55, v53\nv_mov_b32 v56, v52\nv_mov_b32 v57, v53")
    A("v_permlane32_swap_b32 v54, v56")
    A("v_permlane32_swap_b32 v55, v57")
    cmul(A, 58, MU4, 56, add=54)
    cmul(A, 52, 48, 58, add=44)
    cmul(A, 54, MU, 52, add=46)
    A("v_mov_b32 v56, v52\nv_mov_b32 v57, v54\nv_mov_b32 v58, v53\nv_mov_b32 v59, v55")
    cr, ci = 56, 58
    def packhalf(hf):
        for plane in range(2):
            for e in range(2):
                d = 128 + ((plane*2 + e)*2 + hf)*4
                for m in range(4):
                    t = hf*8 + 2*m
                    if plane == 0: A(f"v_cvt_pk_bf16_f32 v{d+m}, v{UR2+2*t+e}, v{UR2+2*(t+1)+e}")
                    else: A(f"v_cvt_pk_bf16_f32 v{d+m}, -v{UI(t)+e}, -v{UI(t+1)+e}")
                A(f"ds_write_b128 v{64+2*e+hf}, {vr(d,4)} offset:{plane*4096}")
    for t in range(16):
        nr, ni = UR2 + 2*t, UI(t)
        A(pk("fma", nr, cr, LAM, nr, bsel=0))
        A(pk("fma", ni, ci, LAM, ni, bsel=0))
        A(pk("fma", nr, ci, LAM, nr, bsel=1, neg_b=True))
        A(pk("fma", ni, cr, LAM, ni, bsel=1))
        cr, ci = nr, ni
        if t == 7: packhalf(0)
    packhalf(1)
    gen.SAFE_PK[0] = False
    ST()
    A("s_waitcnt lgkmcnt(0)")
    lds_inc(A, 20, 31, 12)
    AF = 160
    idx = 0
    for tblk in range(2):
        for plane in range(2):
            for ksl in range(2):
                d = AF + idx*4
                o = plane*4096 + tblk*2048 + ksl*1024
                A(f"ds_read_b64_tr_b16 {vr(d,2)}, v68 offset:{o}")
                A(f"ds_read_b64_tr_b16 {vr(d+2,2)}, v69 offset:{o}")
                idx += 1
    V = VQ(A)
    idx = 0
    for tblk in range(2):
        for plane in range(2):
            A(f"s_mov_b32 s12, {tblk*131072 + plane*8192:#x}")
            for ksl in range(2):
                d = AF + idx*4
                A(f"s_waitcnt lgkmcnt({min(15, 14 - 2*idx)})")
                V.issue(f"buffer_store_dwordx4 {vr(d,4)}, v72, s[60:63], s12 offen offset:{ksl*1024} sc1", "hst")
                idx += 1
    ACC2 = 96
    FB2 = 224
    GR = 36
    ST2 = Stamper(A, 1, 62)
    A(f"s_mov_b32 s89, {SPIN*4}")
    A("c_lw:")
    A("ds_read_b128 v[52:55], v20 offset:4")
    A("s_waitcnt lgkmcnt(0)")
    A("v_min_u32 v54, v54, v55")
    A("v_min_u32 v53, 1, v53")
    A("v_readfirstlane_b32 s8, v54")
    A("v_readfirstlane_b32 s9, v53")
    A("s_add_u32 s8, s8, s9")
    A("s_cmp_ge_u32 s8, 5")
    A("s_cbranch_scc1 c_lwok")
    A("s_sub_u32 s89, s89, 1")
    A("s_cbranch_scc0 c_lw")
    A("c_lwok:")
    L = LQ(A)
    for st in range(2):
        for ks in range(4):
            d = AF + (st*4 + ks)*4
            o = (ks >> 1)*16384 + st*4096 + (ks & 1)*1024
            L.issue(f"ds_read_b64_tr_b16 {vr(d,2)}, v70 offset:{o}")
            L.issue(f"ds_read_b64_tr_b16 {vr(d+2,2)}, v71 offset:{o}", ("A", st, ks))
    for q in range(4):
        V.issue(f"buffer_load_dwordx4 {vr(GR+q*4,4)}, v7, s[64:67], 0 offen offset:{q*16} sc1")
    for q in range(2):
        V.issue(f"global_load_ushort v{52+q}, v8, {sp('Dskip')} offset:{q*64}", "g")
    ST()
    HFL = "buffer_load_dword v19, v22, s[68:71], 0 offen sc1"
    slowp = []
    def need(i):
        m = ((1 << (2*i + 2)) - 1) & ~3
        name = f"c_n{len(slowp)}"
        A(f"s_and_b32 s88, s90, {m:#x}")
        A(f"s_cmp_eq_u32 s88, {m:#x}")
        A(f"s_cbranch_scc0 {name}_s")
        A(f"{name}:")
        slowp.append((name, m))
    alast = [None]
    def aload(st, ks):
        if alast[0] != st:
            alast[0] = st
            tile_of(A, st >> 1, 11)
            A("s_lshl_b32 s11, s11, 14")
            if st & 1: A("s_add_u32 s11, s11, 8192")
        r = AF + ((st % PD)*4 + ks)*4
        V.issue(f"buffer_load_dwordx4 {vr(r,4)}, v{3 if ks < 2 else 2}, s[60:63], s11 offen offset:{(ks & 1)*1024} sc1", ("A", st, ks))
    def rd2(st, ks, nt, slot):
        return f"ds_read_b128 {vr(FB2+slot*4,4)}, v{BD2+ks} offset:{(st % NS2)*16384 + nt*4096}"
    def mf2(st, ks, nt, slot):
        a = AF + ((st % PD)*4 + ks)*4
        c = vr(ACC2+nt*16, 16)
        return f"v_mfma_f32_32x32x16_bf16 {c}, {vr(a,4)}, {vr(FB2+slot*4,4)}, {'0' if (st == 0 and ks == 0) else c}"
    def await_(st, ks):
        if st < 2: L.wait(("A", st, ks))
        else: V.wait(("A", st, ks))
    ST2()
    for nt in range(4): L.issue(rd2(0, 0, nt, nt), (0, 0, nt))
    HFK = opt("hfk", 3)
    N1K = opt("n1k", 2)
    DIST = opt("dist", 3)
    assert DIST in (2, 3, 4)
    polls = [0]
    def hfpoll():
        polls[0] += 1
        V.issue(HFL, ("hf", polls[0]))
    def hfseen():
        V.wait(("hf", polls[0]))
        A("v_cmp_eq_u32 s[90:91], 1, v19")
    for st in range(N2 - 1):
        for ks in range(4):
            buf = ks & 1
            if ks == 3 and st >= 1: A("s_barrier")
            ns, nks = (st, ks+1) if ks < 3 else (st+1, 0)
            await_(st, ks)
            for nt in range(4):
                L.wait((st, ks, nt))
                A(mf2(st, ks, nt, buf*4 + nt))
                L.issue(rd2(ns, nks, nt, (buf ^ 1)*4 + nt), (ns, nks, nt))
            if st == 0 and ks == HFK:
                V.wait("hst")
                A("s_cmp_eq_u32 s14, 1")
                A("s_cbranch_scc1 c_hfs_l")
                A("buffer_store_dword v23, v60, s[68:71], 0 offen sc1")
                A("s_branch c_hfs_e")
                A("c_hfs_l:")
                A("buffer_store_dword v23, v60, s[68:71], 0 offen")
                A("c_hfs_e:")
                V.n += 1
                hfpoll()
                if "fine3" in OPT: ST2()
            if st == 1 and ks == N1K:
                if "fine3" in OPT: ST2()
                hfseen(); need(1)
                if "fine3" in OPT: ST2()
                for z in (2, 3):
                    for k2 in range(4): aload(z, k2)
                hfpoll()
            if st >= 2:
                if st == 2 and ks == 0:
                    if "fine3" in OPT: ST2()
                    hfseen(); need(2)
                    if "fine3" in OPT: ST2()
                    for z in range(4, 2 + DIST):
                        for k2 in range(4): aload(z, k2)
                    hfpoll()
                z = st + DIST
                if z < N2:
                    if ks == 0 and z % 2 == 0 and z // 2 >= 3:
                        if z // 2 == 3: hfseen()
                        if not (int(OPT.get("abl", 0)) & 2): need(z // 2)
                    aload(z, ks)
            if "fine3" in OPT:
                if st in (1, 2, 3, 4) and ks == 3: ST2()
                if st == 2 and ks == 0: ST2()
            elif (st % 2 == 1 if 'fine2' not in OPT else True) and ks == 3: ST2()
    st = N2 - 1
    slot = {(0, nt): nt for nt in range(4)}
    order = [(ks, nt) for ks in range(4) for nt in (0, 1)] + [(ks, nt) for ks in range(4) for nt in (2, 3)]
    pend = [x for x in order if x not in slot]
    free = [4, 5, 6]
    def fill():
        while pend and free:
            x = pend.pop(0); sl = free.pop(0); slot[x] = sl
            L.issue(rd2(st, x[0], x[1], sl), (st, x[0], x[1]))
    fill()
    pst = [f"buffer_store_dwordx4 {vr(ACC2+4*i,4)}, v28, s[92:95], s{74 if i < 4 else 75} offen offset:{(i & 3)*1024} sc1" for i in range(8)]
    for i, (ks, nt) in enumerate(order):
        V.wait(("A", st, ks))
        L.wait((st, ks, nt))
        A(mf2(st, ks, nt, slot[(ks, nt)]))
        free.append(slot[order[i-1]] if i else 7)
        fill()
        if i >= 10:
            for z in range(2 if i < 14 else 0):
                if pst: V.issue(pst.pop(0), "ps")
    while pst: V.issue(pst.pop(0), "ps")
    ST2()
    YR, OM, GF, XQ, T0, RV = 160, 176, 192, 64, 208, 160
    KEEP = ACC2 + 32
    PFL = "buffer_load_dword v19, v29, s[68:71], 0 offen sc1"
    A("s_mov_b32 s12, 0xffff0000")
    for nt in range(2):
        for r in range(16): A(f"ds_read_u16 v{XQ+nt*16+r}, v61 offset:{r*128+nt*64}")
    for nt in range(2):
        for hf in range(2): A(f"ds_read_b128 {vr(YR+nt*8+hf*4,4)}, v21 offset:{nt*32*272 + hf*16}")
    for r in range(16):
        A(f"v_lshlrev_b32 v{GF+r}, 16, v{GR+r}")
        A(f"v_and_b32 v{OM+r}, s12, v{GR+r}")
    A("v_lshlrev_b32 v52, 16, v52")
    A("v_lshlrev_b32 v53, 16, v53")
    A("s_waitcnt lgkmcnt(0)")
    PFG = opt("pfg", 2)
    gi = 0
    def pfstore():
        A("s_waitcnt vmcnt(0)")
        A("buffer_store_dword v23, v30, s[68:71], 0 offen sc1")
        A(PFL)
    for nt in range(2):
        for m0 in range(0, 8, 4):
            if gi == PFG: pfstore()
            gi += 1
            ch = []
            for m in range(m0, m0 + 4):
                b_ = T0 + (m & 3)*6
                yy, xd, tm = b_, b_ + 2, b_ + 4
                xf = XQ + nt*16 + 2*m; ka = KEEP + nt*16 + 2*m
                ch.append([f"v_lshlrev_b32 v{xf}, 16, v{xf}", f"v_lshlrev_b32 v{xf+1}, 16, v{xf+1}",
                           f"v_lshlrev_b32 v{yy}, 16, v{YR+nt*8+m}", f"v_and_b32 v{yy+1}, s12, v{YR+nt*8+m}",
                           f"v_mul_f32 v{xd}, v{xf}, v{52+nt}", f"v_mul_f32 v{xd+1}, v{xf+1}, v{52+nt}",
                           f"v_mul_f32 v{yy}, v{xf}, v{yy}", f"v_mul_f32 v{yy+1}, v{xf+1}, v{yy+1}",
                           f"v_cvt_pk_bf16_f32 v{tm}, v{xd}, v{xd+1}", f"v_cvt_pk_bf16_f32 v{tm+1}, v{yy}, v{yy+1}",
                           f"v_lshlrev_b32 v{xd}, 16, v{tm}", f"v_and_b32 v{xd+1}, s12, v{tm}",
                           f"v_lshlrev_b32 v{yy}, 16, v{tm+1}", f"v_and_b32 v{yy+1}, s12, v{tm+1}",
                           f"v_add_f32 v{ka}, v{ka}, v{xd}", f"v_add_f32 v{ka+1}, v{ka+1}, v{xd+1}",
                           f"v_mul_f32 v{yy}, v{yy}, v{OM+2*m}", f"v_mul_f32 v{yy+1}, v{yy+1}, v{OM+2*m+1}",
                           f"v_cvt_pk_bf16_f32 v{tm}, v{yy}, v{yy+1}", f"v_lshlrev_b32 v{yy}, 16, v{tm}", f"v_and_b32 v{yy+1}, s12, v{tm}",
                           f"v_fma_f32 v{ka}, v{ka}, v{GF+2*m}, v{yy}", f"v_fma_f32 v{ka+1}, v{ka+1}, v{GF+2*m+1}, v{yy+1}"])
            zip_chains(A, ch)
    if gi == PFG: pfstore()
    ST2()
    A("s_waitcnt vmcnt(0)")
    spin_all(A, "c_pf", 19, PFL)
    A("s_lshl_b32 s12, s72, 6")
    A("s_add_u32 s13, s12, 4096")
    for i in range(8):
        A(f"buffer_load_dwordx4 {vr(RV+4*i,4)}, v28, s[92:95], s{12 if i < 4 else 13} offen offset:{(i & 3)*1024} sc1")
    ST2()
    for nt in range(2):
        for r in range(16):
            i = (nt*16 + r) // 4
            if r % 4 == 0: A(f"s_waitcnt vmcnt({7 - i + nt*16 + r})")
            a = KEEP + nt*16 + r
            A(f"v_fma_f32 v{a}, v{RV+nt*16+r}, v{GF+r}, v{a}")
            A(f"buffer_store_dword v{a}, v{26 if r < 8 else 27}, s[76:79], s{80+(r&7)} offen offset:{nt*128} nt")
    ST2()
    if "leak" in OPT:
        i = int(OPT["leak"])
        A("s_cmp_lg_u32 s2, 8")
        A("s_cbranch_scc1 c_noleak")
        A("s_cmp_lg_u32 s3, 0")
        A("s_cbranch_scc1 c_noleak")
        A("v_readlane_b32 s8, v63, 0")
        A(f"v_readlane_b32 s9, v{63 if i < 100 else 62}, {i % 100}")
        A("s_sub_u32 s9, s9, s8")
        A("s_memrealtime s[10:11]")
        A("s_waitcnt lgkmcnt(0)")
        A("s_add_u32 s9, s9, s10")
        A("c_leak:")
        A("s_memrealtime s[10:11]")
        A("s_waitcnt lgkmcnt(0)")
        A("s_sub_u32 s12, s9, s10")
        A("s_cmp_gt_i32 s12, 0")
        A("s_cbranch_scc1 c_leak")
        A("c_noleak:")
    if "leak2" in OPT:
        X, i = str(OPT["leak2"]).split(":"); i = int(i)
        if X != "all":
            A(f"s_cmp_lg_u32 s2, {int(X)}")
            A("s_cbranch_scc1 c_noleak2")
        A("s_cmp_lg_u32 s3, 0")
        A("s_cbranch_scc1 c_noleak2")
        A(f"v_readlane_b32 s9, v{63 if i < 100 else 62}, {i % 100}")
        A("s_add_u32 s9, s9, 4000")
        A("c_leak2:")
        A("s_memrealtime s[10:11]")
        A("s_waitcnt lgkmcnt(0)")
        A("s_sub_u32 s12, s9, s10")
        A("s_cmp_gt_i32 s12, 0")
        A("s_cbranch_scc1 c_leak2")
        A("c_noleak2:")
    ST.flush()
    ST2.flush()
    A("s_endpgm")
    for name, m in slowp:
        A(f"{name}_s:")
        A(f"s_mov_b32 s89, {SPIN}")
        A(f"{name}_l:")
        A("s_waitcnt vmcnt(0)")
        A(HFL)
        A("s_waitcnt vmcnt(0)")
        A("v_cmp_eq_u32 s[90:91], 1, v19")
        A(f"s_and_b32 s88, s90, {m:#x}")
        A(f"s_cmp_eq_u32 s88, {m:#x}")
        A(f"s_cbranch_scc1 {name}")
        A("s_sub_u32 s89, s89, 1")
        A(f"s_cbranch_scc1 {name}")
        A(f"s_branch {name}_l")

def helper(A):
    V = VQ(A)
    VA, VB = 8, 12
    ST = Stamper(A, 0, 58)
    STH = Stamper(A, 1, 59)
    ST()
    if "hprio1" in OPT: A(f"s_setprio {OPT['hprio1']}")
    A("s_sub_u32 s3, s3, 4")
    A("s_lshr_b32 s6, s3, 1")
    A("s_and_b32 s7, s3, 1")
    A("v_lshrrev_b32 v3, 5, v1")
    A("v_lshlrev_b32 v3, 5, v3")
    A("v_bfe_u32 v4, v1, 3, 1")
    A("v_lshl_add_u32 v3, v4, 4, v3")
    A("v_bfe_u32 v4, v1, 4, 1")
    A("v_add_u32 v3, v3, v4")
    A("s_lshl_b32 s8, s4, 7")
    A("s_lshl_b32 s9, s6, 6")
    A("s_add_u32 s8, s8, s9")
    A("s_lshl_b32 s9, s7, 3")
    A("s_add_u32 s8, s8, s9")
    A("v_add_u32 v3, s8, v3")
    A("v_lshlrev_b32 v3, 11, v3")
    A("v_and_b32 v4, 7, v1")
    A("v_lshrrev_b32 v5, 4, v1")
    A("v_xor_b32 v4, v4, v5")
    A("v_lshlrev_b32 v4, 4, v4")
    A("v_xor_b32 v5, 64, v4")
    A("s_lshl_b32 s8, s5, 6")
    A("s_lshl_b32 s9, s7, 5")
    A("s_add_u32 s8, s8, s9")
    A("v_lshrrev_b32 v6, 3, v1")
    A("v_add_u32 v7, s8, v6")
    A("v_lshlrev_b32 v7, 11, v7")
    for n in range(4):
        c = 4 + (n & 1)
        A(f"v_add_u32 v{VA+n}, v3, v{c}")
        A(f"v_add_u32 v{VB+n}, v7, v{c}")
        if n:
            A(f"v_add_u32 v{VA+n}, {n*(4096-1024)}, v{VA+n}")
            A(f"v_add_u32 v{VB+n}, {n*(16384-1024)}, v{VB+n}")
    A("s_lshl_b32 s10, s3, 12")
    A("s_lshr_b32 s90, s55, 2")
    A("s_lshl_b32 s90, s90, 1")
    A("s_and_b32 s91, s55, 3")
    A("s_lshl_b32 s91, s91, 2")
    A("s_add_u32 s90, s90, s91")
    A("s_waitcnt lgkmcnt(0)")
    srd(A, 56, "x", 4 << 20)
    A("s_cmp_ge_u32 s3, 2")
    A(f"s_cselect_b32 s60, s{P['Bim']}, s{P['Bre']}")
    A(f"s_cselect_b32 s61, s{P['Bim']+1}, s{P['Bre']+1}")
    A(f"s_mov_b32 s62, {2<<20:#x}")
    A("s_mov_b32 s63, 0x20000")
    def issue(st, fill=0):
        slot = st % 3
        A(f"s_add_u32 s11, s90, {st}")
        A("s_and_b32 s11, s11, 15")
        A("s_lshl_b32 s11, s11, 7")
        A(f"s_add_u32 m0, s10, {slot*32768:#x}")
        for n in range(4):
            V.issue(f"buffer_load_dwordx4 v{VA+n}, s[56:59], s11 offen offset:{n*1024} lds")
            if fill: do_work(fill)
        A(f"s_add_u32 m0, s10, {slot*32768+16384:#x}")
        for n in range(4):
            V.issue(f"buffer_load_dwordx4 v{VB+n}, s[60:63], s11 offen offset:{n*1024} lds", ("S", st))
            if fill: do_work(fill)
    issue(0)
    VC = 28
    A("s_and_b32 s8, s5, 7")
    A("s_lshl_b32 s8, s8, 6")
    A("s_lshl_b32 s9, s3, 4")
    A("s_add_u32 s8, s8, s9")
    A("v_add_u32 v7, s8, v6")
    A("v_lshlrev_b32 v7, 11, v7")
    A(f"v_add_u32 v{VC}, v7, v4")
    A(f"v_add_u32 v{VC+1}, v7, v5")
    A(f"v_add_u32 v{VC+1}, {16384-1024}, v{VC+1}")
    A("s_and_b32 s12, s55, 1")
    A("s_lshl_b32 s13, s54, 1")
    A("s_add_u32 s12, s12, s13")
    A("s_lshr_b32 s13, s55, 1")
    A("s_lshl_b32 s8, s2, 7")
    A(f"s_add_u32 s8, s8, {KF_OFF:#x}")
    A("v_mov_b32 v30, s8")
    A("s_lshl_b32 s88, s54, 5")
    A("s_add_u32 s88, s88, s55")
    A("s_lshl_b32 s8, s88, 7")
    A(f"s_add_u32 s8, s8, {YF_OFF:#x}")
    A("v_mov_b32 v31, s8")
    A("s_lshl_b32 s88, s88, 2")
    A("s_add_u32 s88, s88, s3")
    A("v_mov_b32 v2, 0")
    srd(A, 92, "ws", FLG_SZ, WS_FLG)
    A("s_lshl_b32 s8, s88, 12")
    A(f"s_load_dword s100, {sp('ssmk')}, s8")
    A("s_lshr_b32 s8, s88, 1")
    A("s_lshl_b32 s8, s8, 2")
    A(f"s_load_dword s101, {sp('ssmD')}, s8")
    V.issue("buffer_store_dword v2, v30, s[92:95], 0 offen sc1")
    V.issue("buffer_store_dword v2, v31, s[92:95], 0 offen sc1", "clr")
    issue(1)
    KR, VR_, SK = 32, 208, 68
    XG, GW = 72, 88
    A("s_lshl_b32 s13, s13, 7")
    A("s_lshl_b32 s14, s3, 5")
    A("s_add_u32 s13, s13, s14")
    A("v_and_b32 v17, 31, v1")
    A("s_lshl_b32 s14, s12, 5")
    A("v_add_u32 v17, s14, v17")
    A("v_lshlrev_b32 v22, 4, v17")
    A("v_and_b32 v23, 31, v1")
    A("v_mul_u32_u24 v23, 544, v23")
    A("v_lshrrev_b32 v24, 5, v1")
    A("v_lshlrev_b32 v24, 5, v24")
    A("v_sub_u32 v23, v23, v24")
    A("s_lshl_b32 s8, s3, 6")
    A(f"s_sub_u32 s8, {UREG+224}, s8")
    A("v_add_u32 v23, s8, v23")
    A("v_lshrrev_b32 v24, 4, v1")
    A("s_lshl_b32 s8, s3, 4")
    A("v_add_u32 v24, s8, v24")
    A("v_and_b32 v2, 15, v1")
    A("v_lshlrev_b32 v2, 4, v2")
    A("s_lshl_b32 s8, s12, 6")
    A("v_add_u32 v27, s8, v24")
    A("v_lshl_add_u32 v27, v27, 12, v2")
    A("s_lshr_b32 s8, s55, 1")
    A("s_lshl_b32 s8, s8, 8")
    A("s_sub_u32 s8, 3840, s8")
    A("v_add_u32 v27, s8, v27")
    A("v_mul_u32_u24 v24, 272, v24")
    A("v_add_u32 v24, v24, v2")
    A(f"v_add_u32 v24, {UREG:#x}, v24")
    A("s_lshl_b32 s14, s4, 7")
    A("s_lshl_b32 s8, s5, 3")
    A("s_add_u32 s14, s14, s8")
    A("s_lshl_b32 s8, s3, 1")
    A("s_add_u32 s14, s14, s8")
    A("s_lshl_b32 s8, s14, 11")
    A("v_lshlrev_b32 v25, 4, v1")
    A("v_add_u32 v26, s8, v25")
    A("v_add_u32 v3, 0x8000, v27")
    srd(A, 64, "k", 4 << 20)
    srd(A, 68, "v", 4 << 20)
    srd(A, 72, "ws", 4 << 20, WS_KVT)
    srd(A, 76, "ws", 8192, WS_G)
    for i in range(8):
        A(f"s_mov_b32 s{80+i}, {i*4096}")
    NTP = " nt" if "ntp" in OPT else ""
    A("v_lshrrev_b32 v19, 3, v1")
    A("v_add_u32 v19, s13, v19")
    A("v_lshlrev_b32 v19, 11, v19")
    A("v_and_b32 v20, 7, v1")
    A("v_lshl_add_u32 v19, v20, 4, v19")
    A("s_lshl_b32 s8, s12, 7")
    A("v_add_u32 v19, s8, v19")
    A("v_subrev_u32 v20, 16384, v19")
    A("v_lshrrev_b32 v21, 5, v1")
    A("v_lshlrev_b32 v21, 11, v21")
    A("v_and_b32 v18, 31, v1")
    A("v_lshl_add_u32 v21, v18, 2, v21")
    A("s_lshl_b32 s8, s3, 12")
    A(f"s_add_u32 s91, s8, {KREG}")
    A("v_add_u32 v21, s91, v21")
    def kvdma():
        A("s_add_u32 m0, s91, 16384")
        V.issue(f"buffer_load_dwordx4 v20, s[64:67], 0 offen{NTP} lds")
        for i in range(4):
            A(f"s_add_u32 m0, s91, {16384 + 1024*(i+1)}")
            A(f"s_mov_b32 s99, {i*16384}")
            V.issue(f"buffer_load_dwordx4 v19, s[64:67], s99 offen{NTP} lds")
        V.issue(f"global_load_dwordx4 {vr(SK,4)}, v22, {sp('shk')}", "k")
        for i in range(4):
            A(f"s_add_u32 m0, s91, {1024*i}")
            A(f"s_mov_b32 s99, {i*16384}")
            V.issue(f"buffer_load_dwordx4 v19, s[68:71], s99 offen{NTP} lds", "v")
    gl = []
    for r in range(2):
        for hh in range(2): gl.append((f"buffer_load_dwordx4 {vr(XG+r*8+hh*4,4)}, v26, s[56:59], 0 offen offset:{r*2048+hh*1024}", None))
    for hh in range(2): gl.append((f"global_load_dwordx4 {vr(GW+hh*4,4)}, v25, {sp('gw')} offset:{hh*1024}", "gate"))
    KF = 96; SP = 136; OUT = 144
    work = []
    def W(x):
        if callable(x): work.append(x)
        else: work.extend(x.split("\n"))
    def rndW(pair, tmp):
        W(f"v_cvt_pk_bf16_f32 v{tmp}, v{pair}, v{pair+1}")
        W(f"v_lshlrev_b32 v{pair}, 16, v{tmp}")
        W(f"v_and_b32 v{pair+1}, s12, v{tmp}")
    W("s_mov_b32 s12, 0xffff0000")
    W(lambda: V.wait("gate"))
    for i in range(8):
        W(f"v_lshlrev_b32 v{96+2*i}, 16, v{GW+i}")
        W(f"v_and_b32 v{97+2*i}, s12, v{GW+i}")
    for r in range(2):
        acc = 112 + r
        W(f"v_mov_b32 v{acc}, 0")
        for i in range(8):
            W(f"v_lshlrev_b32 v116, 16, v{XG+r*8+i}")
            W(f"v_and_b32 v117, s12, v{XG+r*8+i}")
            W(pk("mul", 116, 116, 96+2*i))
            rndW(116, 118)
            W(f"v_add_f32 v{acc}, v{acc}, v116")
            W(f"v_add_f32 v{acc}, v{acc}, v117")
    for r in range(2):
        acc = 112 + r
        for sh in (1, 2, 4, 8):
            W(f"v_add_f32_dpp v{acc}, v{acc}, v{acc} row_shr:{sh} row_mask:0xf bank_mask:0xf bound_ctrl:0")
        W(f"v_add_f32_dpp v{acc}, v{acc}, v{acc} row_bcast:15 row_mask:0xa bank_mask:0xf")
        W(f"v_add_f32_dpp v{acc}, v{acc}, v{acc} row_bcast:31 row_mask:0xc bank_mask:0xf")
    for t in ["v_readlane_b32 s8, v112, 63", "v_readlane_b32 s9, v113, 63", "v_mov_b32 v116, s8", "v_mov_b32 v117, s9",
              "v_cmp_eq_u32 vcc, 1, v1", "v_cndmask_b32 v116, v116, v117, vcc", "v_cvt_pk_bf16_f32 v116, v116, v116",
              "v_lshlrev_b32 v116, 16, v116", "v_mul_f32 v116, 0xbfb8aa3b, v116", "v_exp_f32 v116, v116", "v_add_f32 v116, 1.0, v116",
              "v_rcp_f32 v116, v116", "v_cvt_pk_bf16_f32 v117, v116, v116", "v_lshlrev_b32 v116, 16, v117", "v_sub_f32 v118, 1.0, v116",
              "v_cvt_pk_bf16_f32 v116, v116, v118", "s_lshl_b32 s14, s14, 2", "v_lshl_add_u32 v117, v1, 2, s14"]:
        W(t)
    def gstore():
        A("s_mov_b64 exec, 3")
        V.issue("buffer_store_dword v116, v117, s[76:79], 0 offen sc1", "g")
        A("s_mov_b64 exec, -1")
    W(gstore)
    W("KVSTART")
    W(lambda: V.wait("k"))
    for i in range(19):
        W(f"ds_read_b32 v{KR+i}, v21 offset:{16384 + (5+i)*128}")
        if i == 9: W("s_waitcnt lgkmcnt(0)")
    W("s_waitcnt lgkmcnt(0)")
    for i in range(19):
        W(f"v_lshlrev_b32 v{KF+2*i}, 16, v{KR+i}")
        W(f"v_and_b32 v{KF+2*i+1}, s12, v{KR+i}")
    for jx in range(4):
        for cc in range(2):
            src = SK + cc*2 + (jx >> 1)
            W(f"v_and_b32 v{SP+2*jx+cc}, s12, v{src}" if jx & 1 else f"v_lshlrev_b32 v{SP+2*jx+cc}, 16, v{src}")
    W(lambda: V.wait("v"))
    for i in range(16):
        W(f"ds_read_b32 v{VR_+i}, v21 offset:{i*128}")
        if i == 7: W("s_waitcnt lgkmcnt(0)")
    W("s_waitcnt lgkmcnt(0)")
    for t in range(16):
        vv = 176 + (t & 1)*2
        W(f"v_lshlrev_b32 v{vv}, 16, v{VR_+t}")
        W(f"v_and_b32 v{vv+1}, s12, v{VR_+t}")
        if opt("pk", 0) & 2:
            o = OUT + 2*t
            W(f"v_pk_mul_f32 {vr(o,2)}, {vr(KF+2*t,2)}, {vr(SP+6,2)}")
            for jx in (2, 1, 0): W(f"v_pk_fma_f32 {vr(o,2)}, {vr(KF+2*(t+3-jx),2)}, {vr(SP+2*jx,2)}, {vr(o,2)}")
            W(f"v_pk_mul_f32 {vr(o,2)}, {vr(o,2)}, {vr(vv,2)}")
            continue
        for cc in range(2): W(f"v_mul_f32 v{OUT+2*t+cc}, v{KF+2*t+cc}, v{SP+6+cc}")
        for jx in (2, 1, 0):
            for cc in range(2): W(f"v_fmac_f32 v{OUT+2*t+cc}, v{KF+2*(t+3-jx)+cc}, v{SP+2*jx+cc}")
        for cc in range(2): W(f"v_mul_f32 v{OUT+2*t+cc}, v{OUT+2*t+cc}, v{vv+cc}")
    for cc in range(2):
        for hf in range(2):
            d = 192 + (cc*2+hf)*4
            for m in range(4):
                mm = hf*4 + m
                W(f"v_cvt_pk_bf16_f32 v{d+m}, v{OUT+2*(15-2*mm)+cc}, v{OUT+2*(14-2*mm)+cc}")
            W(f"ds_write_b128 v23, {vr(d,4)} offset:{cc*272+hf*16}")
    W("s_waitcnt lgkmcnt(0)")
    W("BARRIER")
    for i in range(4): W(f"ds_read_b128 {vr(192+4*i,4)}, v24 offset:{i*4*272}")
    KVL = "nokvl" not in OPT
    def kvstores():
        def block(pol):
            for i in range(4):
                A(f"s_waitcnt lgkmcnt({3-i})")
                V.issue(f"buffer_store_dwordx4 {vr(192+4*i,4)}, v{27 if i < 2 else 3}, s[72:75], s{80+4*(i&1)} offen{pol}", "kvt")
        if not KVL:
            block(" sc1"); return
        V.wait("cls")
        local_check(A, 247, 246, 96, 98)
        A("s_cbranch_scc0 h_kvl")
        n0 = V.n
        block(" sc1")
        A("s_branch h_kve")
        A("h_kvl:")
        V.n = n0
        block("")
        A("h_kve:")
    W(kvstores)
    wpos = [0]
    blocked = [False]
    cur = [0]
    PL = opt("pl", 1)
    KVW = PL + opt("kvd", 3)
    def do_work(n):
        while n > 0 and wpos[0] < len(work) and not blocked[0]:
            w = work[wpos[0]]
            wpos[0] += 1
            if w == "BARRIER":
                blocked[0] = True; return
            if w == "KVSTART":
                if cur[0] < KVW:
                    wpos[0] -= 1; return
                continue
            if callable(w): w()
            else: A(w)
            n -= 1
    PREP0 = opt("prep0", 1)
    UL = 40
    ACC = 64; BF = 96; AFR = 160; KD = 224
    def setup_conv(A):
        A("s_lshl_b32 s12, s88, 12")
        srd(A, 64, "ssmk", 4096, off_sreg=12)
        srd(A, 68, "ws", 4096, WS_KVT, off_sreg=12)
        A("s_mov_b32 s80, s100")
        A("s_mov_b32 s81, s101")
        A("v_and_b32 v37, 15, v1")
        A("s_lshr_b32 s8, s88, 6")
        A("s_and_b32 s8, s8, 1")
        A("s_lshl_b32 s8, s8, 3")
        A("s_add_u32 s8, s8, s54")
        A("v_lshl_add_u32 v32, v37, 4, s8")
        A("s_lshr_b32 s8, s4, 2")
        A("s_lshl_b32 s8, s8, 1")
        A("s_and_b32 s9, s4, 3")
        A("s_lshl_b32 s9, s9, 3")
        A("s_add_u32 s8, s8, s9")
        A("v_lshrrev_b32 v38, 3, v37")
        A("v_and_b32 v39, 7, v37")
        A("v_lshl_add_u32 v38, v39, 5, v38")
        A("v_add_u32 v38, s8, v38")
        A("v_and_b32 v39, 16, v1")
        A("v_cmp_ne_u32 vcc, 0, v39")
        A("v_cndmask_b32 v32, v32, v38, vcc")
        A("v_lshlrev_b32 v32, 7, v32")
        A(f"v_add_u32 v32, {KF_OFF:#x}, v32")
        A("v_lshlrev_b32 v33, 2, v1")
        srd(A, 76, "dbg", 256)
        A(f"s_mul_i32 s13, s3, 8320")
        A(f"s_add_u32 s13, s13, {KREG}")
        A(f"s_mul_i32 s82, s3, 4608")
        A(f"s_add_u32 s82, s82, {UREG}")
        A("v_add_u32 v36, 2, v25")
        A("v_and_b32 v38, 7, v1")
        A("v_lshlrev_b32 v38, 2, v38")
        A("v_bfe_u32 v39, v1, 3, 1")
        A("v_mul_u32_u24 v39, 4160, v39")
        A("v_add3_u32 v38, v38, v39, s13")
        A("s_lshl_b32 s80, s80, 16")
        A("v_mov_b32 v56, s80")
        A("v_cmp_eq_u32 vcc, 15, v37")
        A("v_cndmask_b32 v56, 0, v56, vcc")
        A("ds_write_b32 v38, v56")
        A("s_and_b32 s14, s88, 1")
        A("s_lshl_b32 s14, s14, 4")
        A("s_lshr_b32 s81, s81, s14")
        A("s_lshl_b32 s81, s81, 16")
        A(f"v_mov_b32 v60, {LFLAG:#x}")
        A("v_mov_b32 v61, 1")
    def setup_late(A):
        A("v_lshrrev_b32 v5, 4, v1")
        A("v_and_b32 v37, 15, v1")
        A("v_lshl_add_u32 v38, v5, 3, v37")
        A("v_lshlrev_b32 v38, 1, v38")
        A("v_and_b32 v39, 1, v1")
        A("v_mul_u32_u24 v39, 4158, v39")
        A("v_sub_u32 v38, v38, v39")
        A("s_add_u32 s14, s13, 4160")
        A("v_add_u32 v16, s14, v38")
        for i in range(1, 4): A(f"v_add_u32 v{16+i}, {1024*i}, v16")
        A("v_lshlrev_b32 v38, 5, v37")
        A("v_lshlrev_b32 v39, 4, v5")
        A("v_sub_u32 v20, v39, v38")
        A("s_add_u32 s14, s82, 480")
        A("v_add_u32 v20, s14, v20")
        A("v_lshl_add_u32 v39, v5, 3, v38")
        A("s_add_u32 s14, s82, 504")
        A("v_sub_u32 v21, s14, v39")
        A("v_and_b32 v39, 1, v5")
        A("v_lshl_add_u32 v22, v39, 9, v38")
        A("v_lshrrev_b32 v39, 1, v5")
        A("v_lshl_add_u32 v22, v39, 4, v22")
        A("v_add_u32 v23, s82, v25")
    setup_conv(W)
    print("prep work items", len(work))
    def cissue(st):
        tile_of(A, st >> 1, 11)
        A("s_lshl_b32 s11, s11, 7")
        sr_ = "s[56:59]" if st % 2 == 0 else "s[60:63]"
        A("s_add_u32 s99, s11, s91")
        A(f"s_add_u32 m0, s10, {(st % NS2)*16384:#x}")
        for n in range(2):
            V.issue(f"buffer_load_dwordx4 v{VC+n}, {sr_}, s99 offen offset:{n*1024} lds")
        A("s_add_u32 s11, s11, s90")
        A(f"s_add_u32 m0, s10, {(st % NS2)*16384 + 8192:#x}")
        for n in range(2):
            V.issue(f"buffer_load_dwordx4 v{VC+n}, {sr_}, s11 offen offset:{n*1024} lds", ("C", st))
    def uloads():
        for i in range(4): A(f"buffer_load_dwordx4 {vr(UL+4*i,4)}, v25, s[68:71], 0 offen offset:{i*1024} sc1")
    def ctouch():
        A("s_cmp_ge_u32 s3, 2")
        A(f"s_cselect_b32 s96, s{P['Cim']}, s{P['Cre']}")
        A(f"s_cselect_b32 s97, s{P['Cim']+1}, s{P['Cre']+1}")
        A("s_lshl_b32 s98, s2, 13")
        A("s_and_b32 s99, s3, 1")
        A("s_lshl_b32 s99, s99, 12")
        A("s_add_u32 s98, s98, s99")
        A("v_and_b32 v240, 31, v1")
        A("v_lshl_add_u32 v240, v240, 7, s98")
        V.issue("global_load_dword v241, v240, s[96:97]")
    FILL = opt("fill", 10)
    kst = [None]
    KW = opt("kw", 2)
    CHK = opt("chk", 13)
    KFS = opt("kfs", 12)
    KDS = opt("kds", 12)
    UWS = opt("uws", 14)
    WEND = min(KFS, KDS, 12)
    CM = opt("cm", 6)
    assert CHK < UWS <= 15
    nU = [0]; cdone = [0]
    NC0 = opt("nc0", 2)
    A(f"v_mov_b32 v6, {LFLAG:#x}")
    A("v_mov_b32 v7, 0")
    for o in (4, 8, 12, 16): A(f"ds_write_b32 v6, v7 offset:{o}")
    ST()
    A("s_waitcnt lgkmcnt(0)")
    V.wait("clr")
    ST()
    A("s_barrier")
    issue(2)
    for t, tag in gl: V.issue(t, tag)
    for s in range(N1):
        V.wait(("S", min(s+1, N1-1)))
        if kst[0] is not None and s == min(kst[0] + KW, 15): V.wait("kvt"); V.wait("g")
        if "fine1" in OPT: STH()
        A("s_barrier")
        if kst[0] is not None and s == min(kst[0] + KW, 15):
            A("s_cmp_lg_u32 s3, 0")
            A("s_cbranch_scc1 h_kflag")
            A("v_mov_b32 v6, 1")
            A("buffer_store_dword v6, v30, s[92:95], 0 offen sc1")
            A("h_kflag:")
            print("k flag after barrier", s+1)
        blocked[0] = False
        cur[0] = s
        FM = opt("fmode", 0)
        if s+3 < N1 and FM == 0: issue(s+3, FILL if s >= PREP0 else 0)
        elif s+3 < N1 and FM == 1:
            issue(s+3)
            if s >= PREP0: do_work(8*FILL)
        if s == PL - 100: pass
        if s == PL: kvdma()
        if s == CM: ctouch()
        if KVL and s == opt("cls", 6):
            A("v_lshlrev_b32 v246, 2, v1")
            V.issue(f"global_load_dword v247, v246, {sp('dbg')} sc1", "cls")
        if kst[0] is None and "kvt" in V.tags and "g" in V.tags: kst[0] = s
        if s == WEND:
            do_work(10000)
            assert wpos[0] == len(work), (wpos[0], len(work))
        if s == KFS:
            V.issue("buffer_load_dword v34, v33, s[76:79], 0 offen sc1")
            V.issue("buffer_load_dword v35, v32, s[92:95], 0 offen sc1", "kf")
            ST()
        if s == KDS and KDS < CHK:
            V.wait("g")
            A("s_add_u32 m0, s13, 32")
            for i in range(4): V.issue(f"buffer_load_dwordx4 v25, s[64:67], 0 offen offset:{i*1024}{NTP} lds")
            A("s_add_u32 m0, s13, 4192")
            for i in range(4): V.issue(f"buffer_load_dwordx4 v36, s[64:67], 0 offen offset:{i*1024}{NTP} lds", "K")
        if s == 13:
            srd(A, 56, "Cre", 2 << 20)
            srd(A, 60, "Cim", 2 << 20)
            A("s_lshl_b32 s10, s3, 11")
            A(f"s_add_u32 s10, s10, {CRING:#x}")
            A("s_lshr_b32 s90, s5, 3")
            A("s_xor_b32 s91, s90, 1")
            A("s_lshl_b32 s91, s91, 20")
            A("s_lshl_b32 s11, s90, 10")
            A("s_add_u32 s91, s91, s11")
            A("s_mul_i32 s90, s90, 0x100400")
            A("v_mov_b32 v56, 0")
            A("v_mov_b32 v57, 0")
            A("v_lshlrev_b32 v38, 3, v1")
            A("v_add_u32 v38, s82, v38")
            A("ds_write_b64 v38, v[56:57] offset:4096")
            ST()
        if s == CHK:
            V.wait("kf")
            A("s_mov_b32 s83, 0")
            A("v_and_b32 v34, 15, v34")
            A("v_cmp_ne_u32 vcc, 15, v34")
            A("v_cmp_ne_u32 s[84:85], 1, v35")
            A("s_or_b64 vcc, vcc, s[84:85]")
            A("s_cbranch_scc1 h_nou")
            A("s_mov_b32 s83, 1")
            uloads()
            A("h_nou:")
            nU[0] = V.n
        if s == KDS and KDS >= CHK:
            V.wait("g")
            A("s_add_u32 m0, s13, 32")
            for i in range(4): V.issue(f"buffer_load_dwordx4 v25, s[64:67], 0 offen offset:{i*1024}{NTP} lds")
            A("s_add_u32 m0, s13, 4192")
            for i in range(4): V.issue(f"buffer_load_dwordx4 v36, s[64:67], 0 offen offset:{i*1024}{NTP} lds", "K")
        if s == opt("lates", 14): setup_late(A)
        if s == 15:
            for z in range(NC0): cissue(z)
            cdone[0] = NC0
        if s == UWS:
            A("s_cmp_lg_u32 s83, 1")
            A("s_cbranch_scc1 h_nouw")
            A(f"s_waitcnt vmcnt({V.n - nU[0]})")
            for i in range(4): A(f"ds_write_b128 v23, {vr(UL+4*i,4)} offset:{1024*i}")
            A("h_nouw:")
    ST()
    if "hprio1" in OPT: A("s_setprio 0")
    A("s_cmp_lg_u32 s83, 0")
    A("s_cbranch_scc1 h_haveu")
    spin_all(A, "h_init", 34, "buffer_load_dword v34, v33, s[76:79], 0 offen sc1", "15", pre="v_and_b32 v34, 15, v34")
    spin_all(A, "h_kf", 35, "buffer_load_dword v35, v32, s[92:95], 0 offen sc1")
    uloads()
    A("s_waitcnt vmcnt(0)")
    for i in range(4): A(f"ds_write_b128 v23, {vr(UL+4*i,4)} offset:{1024*i}")
    A("h_haveu:")
    V.done = max(V.done, nU[0])
    V.wait("K")
    lds_inc(A, 60, 61, 8)
    for i in range(4): A(f"s_mov_b32 s{84+i}, s{68+i}")
    srd(A, 68, "ws", 4 << 20, WS_KVT)
    A("s_waitcnt lgkmcnt(0)")
    ST()
    L = LQ(A)
    ops = []
    def reads(r):
        R = []
        s = r & 1
        for i in range(8):
            R.append((f"ds_read_b128 {vr(BF+s*32+i*4,4)}, v20 offset:{3584-512*i+64*r}", ("B", r, i)))
            o = 128*(i & 1) + 16*r
            d = AFR + s*32 + i*4
            R.append((f"ds_read2_b32 {vr(d,2)}, v{16+(i>>1)} offset0:{o} offset1:{o+1}", None))
            R.append((f"ds_read2_b32 {vr(d+2,2)}, v{16+(i>>1)} offset0:{o+2} offset1:{o+3}", ("A", r, i)))
        return R
    def first_order(R):
        return R[1:3] + [R[3*i] for i in range(8)] + [x for i in range(1, 8) for x in R[3*i+1:3*i+3]]
    KVT = 40
    for n in range(8): ops.append(("rd", f"ds_read_b64 {vr(KVT+2*n,2)}, v21 offset:{3584-512*n}", ("KV", n)))
    for t, tag in first_order(reads(0)): ops.append(("rd", t, tag))
    fill = []
    fill.append(("s_mov_b32 s12, 0xffff0000", None)); fill.append(("v_mov_b32 v26, s81", None))
    for n in range(8):
        k = KD + 4*n
        c = [f"v_and_b32 v{k}, s12, v{KVT+2*n+1}", f"v_lshlrev_b32 v{k+1}, 16, v{KVT+2*n+1}", f"v_and_b32 v{k+2}, s12, v{KVT+2*n}", f"v_lshlrev_b32 v{k+3}, 16, v{KVT+2*n}"]
        c += [f"v_mul_f32 v{k+i}, v{k+i}, v26" for i in range(4)]
        c += [f"v_cvt_pk_bf16_f32 v56, v{k}, v{k+1}", f"v_cvt_pk_bf16_f32 v57, v{k+2}, v{k+3}",
              f"v_lshlrev_b32 v{k}, 16, v56", f"v_and_b32 v{k+1}, s12, v56", f"v_lshlrev_b32 v{k+2}, 16, v57", f"v_and_b32 v{k+3}, s12, v57"]
        for i, t in enumerate(c): fill.append((t, ("KV", n) if i == 0 else None))
    YD = 40
    def post(n):
        y = ACC + 4*n; k = KD + 4*n
        d = YD + (n >> 1)*4 + (n & 1)*2
        c = [f"v_cvt_pk_bf16_f32 v56, v{y}, v{y+1}", f"v_cvt_pk_bf16_f32 v57, v{y+2}, v{y+3}",
             f"v_lshlrev_b32 v{y}, 16, v56", f"v_and_b32 v{y+1}, s12, v56", f"v_lshlrev_b32 v{y+2}, 16, v57", f"v_and_b32 v{y+3}, s12, v57"]
        c += [f"v_add_f32 v{k+i}, v{k+i}, v{y+i}" for i in range(4)]
        c += [f"v_cvt_pk_bf16_f32 v{d}, v{k}, v{k+1}", f"v_cvt_pk_bf16_f32 v{d+1}, v{k+2}, v{k+3}"]
        if n & 1:
            d = YD + (n >> 1)*4
            c += [f"v_permlane16_swap_b32 v{d}, v{d+2}", f"v_permlane16_swap_b32 v{d+1}, v{d+3}"]
        return c
    ystores = [f"buffer_store_dwordx4 {vr(YD+4*k,4)}, v22, s[84:87], 0 offen offset:{k*1024} sc1" for k in range(4)]
    LATEC = opt("latec", 200)
    CFM = opt("cfm", 80)
    FPM = opt("fpm", 2)
    nmf = 0
    postq = []
    for r in range(8):
        s = r & 1
        nxt = first_order(reads(r+1)) if r < 7 else []
        cnt = 0
        for q in range(8):
            for n in range(q, 8):
                c = vr(ACC+4*n, 4)
                ops.append(("mf", f"v_mfma_f32_16x16x32_bf16 {c}, {vr(AFR+s*32+4*q,4)}, {vr(BF+s*32+4*(n-q),4)}, {'0' if (r == 0 and q == 0) else c}",
                            [("A", r, q), ("B", r, n-q)]))
                nmf += 1; cnt += 1
                if nxt and cnt >= 2:
                    t, tag = nxt.pop(0); ops.append(("rd", t, tag))
                elif r < 7:
                    for z in range(FPM):
                        if fill: ops.append(("fill",) + fill.pop(0))
                if nmf == LATEC: ops.append(("latec",))
                if nmf == CFM: ops.append(("cf",))
                if r == 7:
                    if n == q: postq += [(nmf + 3, t) for t in post(n)]
                    for z in range(opt("ppm", 3)):
                        if postq and postq[0][0] <= nmf and q < 7: ops.append(("fill", postq.pop(0)[1], None))
        assert not nxt
    assert not fill and CFM < LATEC
    for _, t in postq: ops.append(("fill", t, None))
    for op in ops:
        if op[0] == "rd": L.issue(op[1], op[2])
        elif op[0] == "mf":
            for t in op[2]: pass
            k = max(op[2], key=lambda t: L.tags[t])
            L.wait(k)
            A(op[1])
        elif op[0] == "fill":
            if op[2] is not None: L.wait(op[2])
            A(op[1])
        elif op[0] == "latec":
            while cdone[0] < NS2: cissue(cdone[0]); cdone[0] += 1
        elif op[0] == "cf":
            while cdone[0] < 2: cissue(cdone[0]); cdone[0] += 1
            V.wait(("C", 1))
            lds_inc(A, 60, 61, 16); L.n += 1
    ST()
    YST = opt("yst", 0)
    if YST == 0:
        for t in ystores: V.issue(t, "y2")
    A("v_lshrrev_b32 v8, 4, v1")
    A("s_lshl_b32 s8, s3, 4")
    A("v_add_u32 v8, s8, v8")
    A("v_and_b32 v11, 15, v1")
    A("s_lshl_b32 s9, s5, 11")
    A(f"s_add_u32 s9, s9, {YF_OFF:#x}")
    A("v_lshl_add_u32 v10, v11, 7, s9")
    A("v_lshlrev_b32 v11, 4, v11")
    A("v_mul_u32_u24 v9, 272, v8")
    A("v_add_u32 v9, v9, v11")
    A("s_lshl_b32 s8, s5, 6")
    A("v_add_u32 v8, s8, v8")
    A("v_lshl_add_u32 v8, v8, 12, v11")
    A("s_lshl_b32 s8, s4, 8")
    A("v_add_u32 v8, s8, v8")
    srd(A, 64, "x", 4 << 20)
    A("s_lshl_b32 s8, s4, 2")
    A("s_add_u32 s8, s8, s3")
    A("s_lshl_b32 s8, s8, 5")
    A("v_lshrrev_b32 v12, 3, v1")
    A("v_add_u32 v12, s8, v12")
    A("v_lshlrev_b32 v12, 11, v12")
    A("v_and_b32 v11, 7, v1")
    A("v_lshl_add_u32 v12, v11, 4, v12")
    A("s_lshl_b32 s8, s5, 7")
    A("v_add_u32 v12, s8, v12")
    ST()
    YR = 116
    YFL_LD = "buffer_load_dword v19, v10, s[92:95], 0 offen sc1"
    YFL, GYF, GYL, GYW = opt("yfl", 5), opt("gyf", 8), opt("gyl", 10), opt("gyw", 12)
    XGS = opt("xgs", 7); XGW = opt("xgw", 10)
    assert XGS < XGW <= N2 - 2
    for st in range(1, N2-1):
        V.wait(("C", st+1))
        if st == XGW: V.wait("xt")
        if "fineh" in OPT: STH()
        A("s_barrier")
        if NS2 <= st + NS2 - 1 < N2: cissue(st + NS2 - 1)
        if "abl" in OPT and st >= 2 and st < 13 and int(OPT["abl"]) & 1:
            continue_ = True
            for tg in ("y2", "xt", "yf", "eps"): V.tags.setdefault(tg, 0)
            continue
        if YST and st == YST:
            for t in ystores: V.issue(t, "y2")
        if st == XGS:
            for i in range(4):
                A(f"s_add_u32 m0, s82, {i*1024}")
                A(f"s_mov_b32 s8, {i*16384}")
                V.issue("buffer_load_dwordx4 v12, s[64:67], s8 offen lds", "xt")
        if st == YFL:
            V.wait("y2")
            A("s_mov_b64 exec, 1")
            A("ds_add_rtn_u32 v62, v60, v61 offset:4")
            A("s_mov_b64 exec, -1")
            A("s_waitcnt lgkmcnt(0)")
            A("v_readfirstlane_b32 s83, v62")
            A("s_cmp_lg_u32 s83, 3")
            A("s_cbranch_scc1 h_noy")
            A("buffer_store_dword v61, v31, s[92:95], 0 offen sc1")
            A("h_noy:")
        if st == GYF: V.issue(YFL_LD, "yf")
        if st == GYL:
            V.wait("yf")
            spin_all(A, "h_yf", 19, YFL_LD)
            for i in range(4):
                A(f"s_mov_b32 s8, {i*16384}")
                V.issue(f"buffer_load_dwordx4 {vr(YR+i*4,4)}, v8, s[68:71], s8 offen sc1", "eps")
        if st == GYW:
            V.wait("eps")
            for i in range(4): A(f"ds_write_b128 v9, {vr(YR+i*4,4)} offset:{i*4*272}")
            A("s_waitcnt lgkmcnt(0)")
    assert YST < YFL < GYF < GYL < GYW <= N2 - 3
    STH.flush()
    ST.flush()
    A("s_endpgm")

def build():
    s = header_comments()
    s += "; generated by tools/gen9.py (fused single kernel, split-K GEMM2; gen8 h layout)\n"
    s += "; @launch grid=(256,1,1) block=(512,1,1) lds=163840\n"
    s += '.amdgcn_target "amdgcn-amd-amdhsa--gfx950"\n.text\n'
    A = Asm()
    A.raw(f".globl {KN}\n.p2align 8\n.type {KN},@function")
    gen_kernel(A)
    s += A.render()
    s += descriptor(KN, 256, 102)
    import subprocess, tempfile, re
    with tempfile.TemporaryDirectory() as td:
        open(td + "/a.s", "w").write(s.replace("CODE_LAST", "0x12345"))
        subprocess.run(["clang", "-x", "assembler", "-target", "amdgcn-amd-amdhsa", "-mcpu=gfx950", "-c", td + "/a.s", "-o", td + "/a.o"], check=True)
        o = subprocess.run(["llvm-objdump", "-h", td + "/a.o"], capture_output=True, text=True).stdout
    size = int(re.search(r"\.text\s+([0-9a-f]+)", o).group(1), 16)
    print("code bytes", size)
    assert size <= 65536
    return s.replace("CODE_LAST", hex(size - 4))

if __name__ == "__main__":
    out = sys.argv[1] if len(sys.argv) > 1 and not sys.argv[1].startswith("--") else os.path.join(os.path.dirname(os.path.abspath(__file__)), "..", NAME + ".s")
    open(out, "w").write(build())
    print("wrote", out)
```

```python
import sys, os
sys.path.insert(0, os.path.dirname(os.path.abspath(__file__)))
from asmlib import Asm
from gen import (NAME, P, sp, vr, sr, load_kernargs, srd, pk, cmul, tile_ids, Stamper, OPT, header_comments, descriptor)
import gen

KN = NAME + "_kernel"
WS_H    = 0
WS_KVT  = 8 << 20
WS_G    = 16 << 20
WS_EBOX = 17 << 20
WS_FLG  = 18 << 20
HF_OFF  = 0
KF_OFF  = 128 << 10
YF_OFF  = 160 << 10
PF_OFF  = 192 << 10
FLG_SZ  = 320 << 10
WS_PART = 24 << 20
N1 = 16
N2 = 16
NS2 = 4
PD = 4
CRING = 32768
KREG = 98304
UREG = KREG + 4*8320
LFLAG = UREG + 4*4608
SPIN = int(OPT.get("spin", 1 << 16))
SLEEP = int(OPT.get("sleep", 4))
def opt(k, d): return int(OPT.get(k, d))

class VQ:
    def __init__(self, A): self.A = A; self.n = 0; self.tags = {}; self.done = 0
    def issue(self, text, tag=None):
        self.A(text); self.n += 1
        if tag is not None: self.tags[tag] = self.n
    def wait(self, tag):
        k = self.tags[tag]
        if k <= self.done: return
        cnt = min(63, self.n - k)
        self.A(f"s_waitcnt vmcnt({cnt})"); self.done = self.n - cnt
    def drained(self): self.done = self.n

class LQ:
    def __init__(self, A): self.A = A; self.n = 0; self.tags = {}; self.done = 0
    def issue(self, text, tag=None):
        self.A(text); self.n += 1
        if tag is not None: self.tags[tag] = self.n
    def wait(self, tag):
        k = self.tags[tag]
        if k > self.done:
            self.A(f"s_waitcnt lgkmcnt({min(15, self.n - k)})"); self.done = max(k, self.n - 15)
    def drain(self):
        self.A("s_waitcnt lgkmcnt(0)"); self.done = self.n

def spin_all(A, name, vreg, reload, cmpval="1", sctr=89, pre=None):
    A(f"s_mov_b32 s{sctr}, {SPIN}")
    A(f"{name}_chk:")
    if pre: A(pre)
    A(f"v_cmp_ne_u32 vcc, {cmpval}, v{vreg}")
    A("s_cmp_eq_u64 vcc, 0")
    A(f"s_cbranch_scc1 {name}_ok")
    A(f"s_sub_u32 s{sctr}, s{sctr}, 1")
    A(f"s_cbranch_scc1 {name}_ok")
    A(f"s_sleep {SLEEP}")
    A(reload)
    A("s_waitcnt vmcnt(0)")
    A(f"s_branch {name}_chk")
    A(f"{name}_ok:")

def lds_spin(A, name, vaddr, off, vtmp, target, stmp=8, sctr=89):
    A(f"s_mov_b32 s{sctr}, {SPIN*4}")
    A(f"{name}:")
    A(f"ds_read_b32 v{vtmp}, v{vaddr} offset:{off}")
    A("s_waitcnt lgkmcnt(0)")
    A(f"v_readfirstlane_b32 s{stmp}, v{vtmp}")
    A(f"s_cmp_ge_u32 s{stmp}, {target}")
    A(f"s_cbranch_scc1 {name}_ok")
    A(f"s_sub_u32 s{sctr}, s{sctr}, 1")
    A(f"s_cbranch_scc0 {name}")
    A(f"{name}_ok:")

def lds_inc(A, vaddr, vone, off):
    A("s_mov_b64 exec, 1")
    A(f"ds_add_u32 v{vaddr}, v{vone} offset:{off}")
    A("s_mov_b64 exec, -1")

def zip_chains(A, chains):
    chains = [[x for t in c for x in t.split("\n")] for c in chains]
    for i in range(max(len(c) for c in chains)):
        for c in chains:
            if i < len(c): A(c[i])

def local_check(A, vbits, vtmp, sdst_pair, stmp):
    A(f"s_getreg_b32 s{stmp}, hwreg(HW_REG_XCC_ID, 0, 4)")
    A(f"s_lshl_b32 s{stmp}, 0x100, s{stmp}")
    A(f"s_or_b32 s{stmp}, s{stmp}, 15")
    A(f"v_and_b32 v{vtmp}, 7, v1")
    A(f"v_cmp_eq_u32 s[{sdst_pair}:{sdst_pair+1}], s54, v{vtmp}")
    A(f"v_cmp_ne_u32 vcc, s{stmp}, v{vbits}")
    A(f"s_and_b64 vcc, vcc, s[{sdst_pair}:{sdst_pair+1}]")

ORD = opt("ord", 1)
def tile_of(A, i, dst):
    if i == 0: A(f"s_mov_b32 s{dst}, s15")
    elif ORD:
        A(f"s_cmp_le_u32 s15, {i-1}")
        A(f"s_cselect_b32 s{dst}, {i}, {i-1}")
    else:
        A(f"s_add_u32 s{dst}, s15, {i}")
        A(f"s_and_b32 s{dst}, s{dst}, 7")

def gen_kernel(A):
    A(f"{KN}:")
    A("s_cmp_ge_u32 s2, 256")
    A("s_cbranch_scc1 L_end")
    load_kernargs(A)
    tile_ids(A)
    A("v_and_b32 v1, 63, v0")
    A("v_lshrrev_b32 v2, 6, v0")
    A("s_and_b32 s15, s5, 7")
    A("v_readfirstlane_b32 s3, v2")
    A("s_cmp_ge_u32 s3, 4")
    A("s_cbranch_scc0 L_consumer")
    helper(A)
    A("L_consumer:")
    consumer(A)
    A("L_end:")
    A("s_endpgm")


def consumer(A):
    ACC = 64
    FA, FB = 128, 144
    AD, BD = 160, 168
    LAM, C2, MU, MU2, MU4, MU8 = 176, 178, 180, 182, 184, 186
    EL = 192
    UR2 = 224
    ST = Stamper(A, 0, 63)
    ST()
    A(f"s_setprio {opt('prio', 2)}")
    A("s_and_b32 s6, s3, 1")
    A("s_lshr_b32 s7, s3, 1")
    A("v_and_b32 v4, 31, v1")
    A("s_lshl_b32 s8, s5, 6")
    A("s_lshl_b32 s9, s7, 5")
    A("s_add_u32 s8, s8, s9")
    A("v_add_u32 v3, s8, v4")
    A("v_lshlrev_b32 v5, 1, v3")
    A("v_lshrrev_b32 v6, 5, v1")
    A("s_lshl_b32 s10, s4, 1")
    A("s_add_u32 s10, s10, s6")
    if "nocode" not in OPT:
        A("s_getpc_b64 s[12:13]")
        A("c_pc:")
        A(f"s_sub_u32 s12, s12, c_pc-{KN}")
        A("s_subb_u32 s13, s13, 0")
        A("s_lshl_b32 s11, s3, 14")
        A("v_lshl_add_u32 v24, v1, 7, s11")
        A("v_min_u32 v24, CODE_LAST, v24")
        A("global_load_dword v25, v24, s[12:13]")
        A("v_add_u32 v24, 0x2000, v24")
        A("v_min_u32 v24, CODE_LAST, v24")
        A("global_load_dword v26, v24, s[12:13]")
    A("s_waitcnt lgkmcnt(0)")
    A(f"global_load_ushort v8, v5, {sp('Lre')}")
    A(f"global_load_ushort v9, v5, {sp('Lim')}")
    A(f"global_load_ushort v10, v5, {sp('logdt')}")
    srd(A, 56, "ws", 256 << 10, WS_EBOX)
    srd(A, 60, "ws", 8 << 20, WS_H)
    srd(A, 64, "dbg", 256)
    srd(A, 68, "ws", FLG_SZ, WS_FLG)
    A("s_lshl_b32 s11, s10, 13")
    A("v_lshl_add_u32 v7, v3, 3, s11")
    A("v_mov_b32 v12, 0")
    A("v_mov_b32 v13, 0")
    A("buffer_store_dwordx2 v[12:13], v7, s[56:59], 0 offen sc1")
    A("s_lshl_b32 s11, s10, 4")
    A("s_add_u32 s11, s11, s5")
    A("s_lshl_b32 s11, s11, 1")
    A("s_add_u32 s11, s11, s7")
    A("s_lshl_b32 s11, s11, 7")
    A("v_mov_b32 v60, s11")
    A("buffer_store_dword v12, v60, s[68:71], 0 offen sc1")
    A("s_lshl_b32 s72, s4, 4")
    A("s_add_u32 s72, s72, s5")
    A("s_lshl_b32 s72, s72, 2")
    A("s_add_u32 s72, s72, s3")
    A("s_lshl_b32 s72, s72, 7")
    A(f"s_add_u32 s11, s72, {PF_OFF:#x}")
    A("v_mov_b32 v30, s11")
    A("buffer_store_dword v12, v30, s[68:71], 0 offen sc1")
    A("v_mov_b32 v23, 1")
    A("v_bfe_u32 v11, v1, 1, 3")
    A("v_xor_b32 v11, v11, v6")
    A("s_lshl_b32 s11, s6, 13")
    A("v_lshl_add_u32 v14, v4, 7, s11")
    A("s_lshl_b32 s11, s7, 12")
    A("s_add_u32 s11, s11, 16384")
    A("v_lshl_add_u32 v15, v4, 7, s11")
    for ks in range(4):
        A(f"v_xor_b32 v16, {2*ks}, v11")
        A(f"v_lshl_add_u32 v{AD+ks}, v16, 4, v14")
        A(f"v_lshl_add_u32 v{BD+ks}, v16, 4, v15")
        A(f"v_add_u32 v{AD+4+ks}, 0x10000, v{AD+ks}")
        A(f"v_add_u32 v{BD+4+ks}, 0x10000, v{BD+ks}")
    A("v_lshlrev_b32 v21, 2, v1")
    A("s_waitcnt vmcnt(0)")
    A("v_lshlrev_b32 v8, 16, v8")
    A("v_lshlrev_b32 v9, 16, v9")
    A("v_lshlrev_b32 v10, 16, v10")
    A("s_mov_b32 s12, 0x3fb8aa3b")
    A("v_mul_f32 v10, s12, v10")
    A("v_exp_f32 v10, v10")
    A("v_cvt_pk_bf16_f32 v10, v10, v10")
    A("v_lshlrev_b32 v10, 16, v10")
    A("v_mul_f32 v16, v10, v8")
    A("v_mul_f32 v17, v10, v9")
    A("v_mul_f32 v16, s12, v16")
    A("v_exp_f32 v16, v16")
    A("v_mul_f32 v17, 0.15915494, v17")
    A("v_rndne_f32 v18, v17")
    A("v_sub_f32 v17, v17, v18")
    A("v_cos_f32 v18, v17")
    A("v_sin_f32 v19, v17")
    A(f"v_mul_f32 v{LAM}, v16, v18")
    A(f"v_mul_f32 v{LAM+1}, v16, v19")
    A(f"v_add_f32 v16, -1.0, v{LAM}")
    A("v_mul_f32 v17, v8, v8")
    A("v_fma_f32 v17, v9, v9, v17")
    A("v_rcp_f32 v17, v17")
    A("v_mul_f32 v18, v16, v8")
    A(f"v_fma_f32 v18, v{LAM+1}, v9, v18")
    A(f"v_mul_f32 v19, v{LAM+1}, v8")
    A("v_fma_f32 v19, -v16, v9, v19")
    A("v_add_f32 v17, v17, v17")
    A(f"v_mul_f32 v{C2}, v18, v17")
    A(f"v_mul_f32 v{C2+1}, v19, v17")
    cmul(A, 16, LAM, LAM); cmul(A, 18, 16, 16); cmul(A, 16, 18, 18)
    cmul(A, MU, 16, 16); cmul(A, MU2, MU, MU); cmul(A, MU4, MU2, MU2); cmul(A, MU8, MU4, MU4)
    cmul(A, 48, C2, MU2)
    A("v_cmp_lt_u32 vcc, 31, v1")
    A(f"v_cndmask_b32 v48, v{C2}, v48, vcc")
    A(f"v_cndmask_b32 v49, v{C2+1}, v49, vcc")
    A("v_lshlrev_b32 v50, 13, v6")
    A("v_sub_u32 v50, v7, v50")
    A("s_add_u32 s11, s10, 1")
    A("v_sub_u32 v51, s11, v6")
    A("v_lshrrev_b32 v51, 1, v51")
    def rd(stage, ks, buf, which):
        slot = stage % 3
        hi = 4 if slot >= 2 else 0
        so = (slot & 1) * 32768
        if which < 2:
            return f"ds_read_b128 {vr(FA+buf*8+which*4,4)}, v{AD+hi+ks} offset:{so + which*4096}"
        ri = which - 2
        return f"ds_read_b128 {vr(FB+buf*8+ri*4,4)}, v{BD+hi+ks} offset:{so + ri*8192}"
    def mf(buf, mt, ri, first):
        acc = ACC + ri*32 + mt*16
        return f"v_mfma_f32_32x32x16_bf16 {vr(acc,16)}, {vr(FA+buf*8+mt*4,4)}, {vr(FB+buf*8+ri*4,4)}, {'0' if first else vr(acc,16)}"
    RD_ORDER = [0, 2, 1, 3]
    MF_ORDER = [(0,0), (1,0), (1,1), (0,1)]
    ST()
    A("s_barrier")
    ST()
    A("s_cmp_lg_u32 s3, 0")
    A("s_cbranch_scc1 c_noflag")
    A("s_lshr_b32 s11, s2, 6")
    A("s_lshl_b32 s11, 1, s11")
    A("s_getreg_b32 s12, hwreg(HW_REG_XCC_ID, 0, 4)")
    A("s_lshl_b32 s12, 0x100, s12")
    A("s_or_b32 s11, s11, s12")
    A("v_mov_b32 v16, s11")
    A("s_and_b32 s11, s2, 63")
    A("s_lshl_b32 s11, s11, 2")
    A("v_mov_b32 v17, s11")
    A("s_mov_b64 exec, 1")
    A("buffer_atomic_or v16, v17, s[64:67], 0 offen sc1")
    A("s_mov_b64 exec, -1")
    A("c_noflag:")
    for w in RD_ORDER: A(rd(0, 0, 0, w))
    for s in range(N1):
        for ks in range(4):
            buf = ks & 1
            last = (s == N1-1 and ks == 3)
            if ks == 3:
                A("s_waitcnt lgkmcnt(0)")
                A("s_barrier")
            ns, nks = (s, ks+1) if ks < 3 else (s+1, 0)
            for i in range(4):
                if ks < 3 and i < 3: A("s_waitcnt lgkmcnt(2)")
                A(mf(buf, *MF_ORDER[i], s == 0 and ks == 0))
                if not last: A(rd(ns, nks, buf ^ 1, RD_ORDER[i]))
            if (s in (3, 7, 11) if "fine1" not in OPT else s >= 3) and ks == 3: ST()
            if s == 12 and ks == 0:
                A("buffer_load_dword v20, v21, s[64:67], 0 offen sc1")
    ST()
    if "fine1" in OPT: ST.n = 40
    gen.SAFE_PK[0] = bool(opt("pk", 0) & 1)
    def UR(t): return ACC + (t >> 3)*16 + 2*(t & 7)
    def UI(t): return ACC + 32 + (t >> 3)*16 + 2*(t & 7)
    E = [(24, 26), (28, 30 - 30 + 44)]
    cr, ci = UR(0), UI(0)
    for t in range(1, 16):
        nr, ni = E[t & 1]
        A(pk("fma", nr, cr, LAM, UR(t), bsel=0))
        A(pk("fma", ni, ci, LAM, UI(t), bsel=0))
        A(pk("fma", nr, ci, LAM, nr, bsel=1, neg_b=True))
        A(pk("fma", ni, cr, LAM, ni, bsel=1))
        cr, ci = nr, ni
    A("v_mov_b32 v32, v28\nv_mov_b32 v33, v44\nv_mov_b32 v34, v29\nv_mov_b32 v35, v45")
    cmul(A, 36, MU, 32, add=34)
    A("v_mov_b32 v38, v36\nv_mov_b32 v39, v37\nv_mov_b32 v40, 0\nv_mov_b32 v41, 0")
    A("v_permlane32_swap_b32 v40, v38")
    A("v_permlane32_swap_b32 v41, v39")
    cmul(A, 42, MU2, 40, add=36)
    A("v_or_b32 v42, 1, v42")
    A("s_mov_b32 s12, 0")
    A("s_mov_b32 s13, -1")
    A("s_mov_b64 exec, s[12:13]")
    A("buffer_store_dwordx2 v[42:43], v7, s[56:59], 0 offen sc1")
    A("s_mov_b64 exec, -1")
    ST()
    for t in range(16):
        n = UR2 + 2*t
        A(pk("mul", n, UR(t), C2, bsel=0))
        A(pk("fma", n, UI(t), C2, n, bsel=1, neg_b=True))
        A(pk("mul", UI(t), UI(t), C2, bsel=0))
        A(pk("fma", UI(t), UR(t), C2, UI(t), bsel=1))
    cmul(A, 44, C2, 40)
    cmul(A, 46, C2, 32)
    for k in range(16):
        A(f"v_subrev_u32 v{128+k}, {(1+2*k)*8192:#x}, v50")
    ST()
    A("s_waitcnt vmcnt(1)")
    spin_all(A, "c_init", 52, "buffer_load_dword v20, v21, s[64:67], 0 offen sc1", "15", pre="v_and_b32 v52, 15, v20")
    local_check(A, 20, 52, 12, 11)
    A("s_cselect_b32 s14, 0, 1")
    if "nolocal" in OPT: A("s_mov_b32 s14, 0")
    for k in range(16):
        A(f"buffer_load_dwordx2 {vr(EL+2*k,2)}, v{128+k}, s[56:59], 0 offen sc1")
    BD2 = 32
    A("s_lshl_b32 s11, s3, 13")
    A("v_lshl_add_u32 v16, v6, 11, s11")
    A("v_lshl_add_u32 v16, v4, 6, v16")
    A("v_bfe_u32 v17, v1, 1, 2")
    for q in range(4):
        A(f"v_xor_b32 v18, {q}, v17")
        A(f"v_lshl_add_u32 v{64+q}, v18, 4, v16")
    A("v_mov_b32 v31, 1")
    A("v_bfe_u32 v16, v1, 2, 2")
    A("v_lshl_add_u32 v16, v6, 3, v16")
    A("v_and_b32 v24, 1, v1")
    A("v_bfe_u32 v18, v1, 4, 1")
    A("v_lshl_add_u32 v24, v24, 1, v18")
    A("v_bfe_u32 v18, v16, 1, 2")
    A("v_xor_b32 v24, v24, v18")
    A("v_lshlrev_b32 v24, 4, v24")
    A("v_lshl_add_u32 v24, v16, 6, v24")
    A("v_bfe_u32 v18, v1, 1, 1")
    A("v_lshl_add_u32 v24, v18, 3, v24")
    A("v_xor_b32 v25, 32, v24")
    A("v_add_u32 v25, 256, v25")
    A("v_add_u32 v68, s11, v24")
    A("v_add_u32 v69, s11, v25")
    A("s_lshl_b32 s11, s4, 7")
    A("s_lshl_b32 s12, s6, 6")
    A("s_add_u32 s11, s11, s12")
    A("s_and_b32 s12, s5, 7")
    A("s_lshl_b32 s12, s12, 2")
    A("s_add_u32 s11, s11, s12")
    A("s_add_u32 s11, s11, s7")
    A("s_lshl_b32 s11, s11, 12")
    A("s_lshr_b32 s13, s5, 3")
    A("s_lshl_b32 s13, s13, 11")
    A("s_add_u32 s11, s11, s13")
    A("v_lshl_add_u32 v72, v1, 4, s11")
    A(f"v_mov_b32 v20, {LFLAG:#x}")
    A("s_lshl_b32 s6, s4, 2")
    A("s_add_u32 s6, s6, s3")
    A("s_lshr_b32 s7, s3, 1")
    A("s_lshl_b32 s7, s7, 13")
    A("s_and_b32 s8, s3, 1")
    A("s_lshl_b32 s8, s8, 11")
    A("s_add_u32 s7, s7, s8")
    A("v_add_u32 v70, s7, v24")
    A("v_add_u32 v71, s7, v25")
    A("s_lshl_b32 s7, s6, 17")
    A("s_add_u32 s7, s7, s13")
    A("v_lshl_add_u32 v3, v1, 4, s7")
    A("v_add_u32 v2, 0x1000, v3")
    A(f"v_lshlrev_b32 v14, 7, v4")
    A(f"v_add_u32 v14, {CRING:#x}, v14")
    for ks in range(4):
        A(f"v_xor_b32 v16, {2*ks}, v11")
        A(f"v_lshl_add_u32 v{BD2+ks}, v16, 4, v14")
    A("s_lshr_b32 s7, s6, 1")
    A("s_lshl_b32 s7, s7, 12")
    A("s_add_u32 s7, s7, s13")
    A("v_bfe_u32 v16, v1, 1, 3")
    if ORD:
        A("v_subrev_u32 v14, 1, v16")
        A("v_cmp_le_u32 vcc, s15, v14")
        A("v_cndmask_b32 v14, v14, v16, vcc")
        A("v_mov_b32 v19, s15")
        A("v_cmp_eq_u32 vcc, 0, v16")
        A("v_cndmask_b32 v16, v14, v19, vcc")
    else:
        A("v_add_u32 v16, s15, v16")
        A("v_and_b32 v16, 7, v16")
    A("v_and_b32 v14, 1, v1")
    A("v_lshl_add_u32 v16, v16, 1, v14")
    A("v_lshl_add_u32 v22, v16, 7, s7")
    srd(A, 64, "ws", 8192, WS_G)
    srd(A, 76, "out", 8 << 20)
    srd(A, 92, "ws", 8 << 20, WS_PART)
    for i in range(8):
        A(f"s_mov_b32 s{80+i}, {i*4096}")
    A("s_lshl_b32 s7, s6, 5")
    A("v_lshl_add_u32 v7, v6, 4, s7")
    A("s_lshl_b32 s8, s5, 6")
    A("v_add_u32 v8, s8, v4")
    A("v_lshlrev_b32 v26, 12, v7")
    A("v_lshl_add_u32 v26, v8, 2, v26")
    A("v_add_u32 v27, 0x8000, v26")
    A("v_lshlrev_b32 v7, 2, v7")
    A("v_lshlrev_b32 v8, 1, v8")
    A("s_mul_i32 s8, s3, 4608")
    A(f"s_add_u32 s8, s8, {UREG}")
    A("v_lshlrev_b32 v61, 11, v6")
    A("v_lshl_add_u32 v61, v4, 1, v61")
    A("v_add_u32 v61, s8, v61")
    A("v_mul_u32_u24 v21, 272, v4")
    A("v_lshl_add_u32 v21, v6, 5, v21")
    A("s_lshl_b32 s8, s3, 6")
    A("v_add_u32 v21, s8, v21")
    A("s_xor_b32 s73, s72, 4096")
    A("s_lshl_b32 s74, s73, 6")
    A("s_add_u32 s75, s74, 4096")
    A(f"s_add_u32 s8, s73, {PF_OFF:#x}")
    A("v_mov_b32 v29, s8")
    A("v_lshlrev_b32 v28, 4, v1")
    A("v_mov_b32 v23, 1")
    A(f"s_mov_b32 s88, {SPIN}")
    A("c_poll:")
    A("s_waitcnt vmcnt(0)")
    A("v_mov_b32 v52, 0")
    for k in range(16):
        A(f"v_and_b32 v{144+k}, 1, v{EL+2*k}")
    for k in range(0, 16, 2):
        A(f"v_add3_u32 v52, v52, v{144+k}, v{145+k}")
    A("v_cmp_ne_u32 vcc, v52, v51")
    A("s_cmp_eq_u64 vcc, 0")
    A("s_cbranch_scc1 c_polled")
    A("s_sub_u32 s88, s88, 1")
    A("s_cbranch_scc1 c_polled")
    A(f"s_sleep {opt('psleep', SLEEP)}")
    for k in range(16):
        A(f"v_cmp_eq_u32 vcc, 0, v{144+k}")
        A("s_mov_b64 exec, vcc")
        A(f"buffer_load_dwordx2 {vr(EL+2*k,2)}, v{128+k}, s[56:59], 0 offen sc1")
        A("s_mov_b64 exec, -1")
    A("s_branch c_poll")
    A("c_polled:")
    ST()
    g = EL + 30
    G = [52, 54]
    for k in range(14, -1, -1):
        n = G[k & 1]
        A(pk("fma", n, g, MU8, EL+2*k, bsel=0))
        A(pk("fma", n, g, MU8, n, bsel=1, asel="swap", neg_lo=[1,0,0]))
        g = n
    A("v_mov_b32 v54, v52\nv_mov_b32 v55, v53\nv_mov_b32 v56, v52\nv_mov_b32 v57, v53")
    A("v_permlane32_swap_b32 v54, v56")
    A("v_permlane32_swap_b32 v55, v57")
    cmul(A, 58, MU4, 56, add=54)
    cmul(A, 52, 48, 58, add=44)
    cmul(A, 54, MU, 52, add=46)
    A("v_mov_b32 v56, v52\nv_mov_b32 v57, v54\nv_mov_b32 v58, v53\nv_mov_b32 v59, v55")
    cr, ci = 56, 58
    def packhalf(hf):
        for plane in range(2):
            for e in range(2):
                d = 128 + ((plane*2 + e)*2 + hf)*4
                for m in range(4):
                    t = hf*8 + 2*m
                    if plane == 0: A(f"v_cvt_pk_bf16_f32 v{d+m}, v{UR2+2*t+e}, v{UR2+2*(t+1)+e}")
                    else: A(f"v_cvt_pk_bf16_f32 v{d+m}, -v{UI(t)+e}, -v{UI(t+1)+e}")
                A(f"ds_write_b128 v{64+2*e+hf}, {vr(d,4)} offset:{plane*4096}")
    for t in range(16):
        nr, ni = UR2 + 2*t, UI(t)
        A(pk("fma", nr, cr, LAM, nr, bsel=0))
        A(pk("fma", ni, ci, LAM, ni, bsel=0))
        A(pk("fma", nr, ci, LAM, nr, bsel=1, neg_b=True))
        A(pk("fma", ni, cr, LAM, ni, bsel=1))
        cr, ci = nr, ni
        if t == 7: packhalf(0)
    packhalf(1)
    gen.SAFE_PK[0] = False
    ST()
    A("s_waitcnt lgkmcnt(0)")
    lds_inc(A, 20, 31, 12)
    AF = 160
    idx = 0
    for tblk in range(2):
        for plane in range(2):
            for ksl in range(2):
                d = AF + idx*4
                o = plane*4096 + tblk*2048 + ksl*1024
                A(f"ds_read_b64_tr_b16 {vr(d,2)}, v68 offset:{o}")
                A(f"ds_read_b64_tr_b16 {vr(d+2,2)}, v69 offset:{o}")
                idx += 1
    V = VQ(A)
    idx = 0
    for tblk in range(2):
        for plane in range(2):
            A(f"s_mov_b32 s12, {tblk*131072 + plane*8192:#x}")
            for ksl in range(2):
                d = AF + idx*4
                A(f"s_waitcnt lgkmcnt({min(15, 14 - 2*idx)})")
                V.issue(f"buffer_store_dwordx4 {vr(d,4)}, v72, s[60:63], s12 offen offset:{ksl*1024} sc1", "hst")
                idx += 1
    ACC2 = 96
    FB2 = 224
    GR = 36
    ST2 = Stamper(A, 1, 62)
    A(f"s_mov_b32 s89, {SPIN*4}")
    A("c_lw:")
    A("ds_read_b128 v[52:55], v20 offset:4")
    A("s_waitcnt lgkmcnt(0)")
    A("v_min_u32 v54, v54, v55")
    A("v_min_u32 v53, 1, v53")
    A("v_readfirstlane_b32 s8, v54")
    A("v_readfirstlane_b32 s9, v53")
    A("s_add_u32 s8, s8, s9")
    A("s_cmp_ge_u32 s8, 5")
    A("s_cbranch_scc1 c_lwok")
    A("s_sub_u32 s89, s89, 1")
    A("s_cbranch_scc0 c_lw")
    A("c_lwok:")
    L = LQ(A)
    for st in range(2):
        for ks in range(4):
            d = AF + (st*4 + ks)*4
            o = (ks >> 1)*16384 + st*4096 + (ks & 1)*1024
            L.issue(f"ds_read_b64_tr_b16 {vr(d,2)}, v70 offset:{o}")
            L.issue(f"ds_read_b64_tr_b16 {vr(d+2,2)}, v71 offset:{o}", ("A", st, ks))
    for q in range(4):
        V.issue(f"buffer_load_dwordx4 {vr(GR+q*4,4)}, v7, s[64:67], 0 offen offset:{q*16} sc1")
    for q in range(2):
        V.issue(f"global_load_ushort v{52+q}, v8, {sp('Dskip')} offset:{q*64}", "g")
    ST()
    HFL = "buffer_load_dword v19, v22, s[68:71], 0 offen sc1"
    slowp = []
    def need(i):
        m = ((1 << (2*i + 2)) - 1) & ~3
        name = f"c_n{len(slowp)}"
        A(f"s_and_b32 s88, s90, {m:#x}")
        A(f"s_cmp_eq_u32 s88, {m:#x}")
        A(f"s_cbranch_scc0 {name}_s")
        A(f"{name}:")
        slowp.append((name, m))
    alast = [None]
    def aload(st, ks):
        if alast[0] != st:
            alast[0] = st
            tile_of(A, st >> 1, 11)
            A("s_lshl_b32 s11, s11, 14")
            if st & 1: A("s_add_u32 s11, s11, 8192")
        r = AF + ((st % PD)*4 + ks)*4
        V.issue(f"buffer_load_dwordx4 {vr(r,4)}, v{3 if ks < 2 else 2}, s[60:63], s11 offen offset:{(ks & 1)*1024} sc1", ("A", st, ks))
    def rd2(st, ks, nt, slot):
        return f"ds_read_b128 {vr(FB2+slot*4,4)}, v{BD2+ks} offset:{(st % NS2)*16384 + nt*4096}"
    def mf2(st, ks, nt, slot):
        a = AF + ((st % PD)*4 + ks)*4
        c = vr(ACC2+nt*16, 16)
        return f"v_mfma_f32_32x32x16_bf16 {c}, {vr(a,4)}, {vr(FB2+slot*4,4)}, {'0' if (st == 0 and ks == 0) else c}"
    def await_(st, ks):
        if st < 2: L.wait(("A", st, ks))
        else: V.wait(("A", st, ks))
    ST2()
    for nt in range(4): L.issue(rd2(0, 0, nt, nt), (0, 0, nt))
    HFK = opt("hfk", 3)
    N1K = opt("n1k", 2)
    DIST = opt("dist", 3)
    assert DIST in (2, 3, 4)
    polls = [0]
    def hfpoll():
        polls[0] += 1
        V.issue(HFL, ("hf", polls[0]))
    def hfseen():
        V.wait(("hf", polls[0]))
        A("v_cmp_eq_u32 s[90:91], 1, v19")
    for st in range(N2 - 1):
        for ks in range(4):
            buf = ks & 1
            if ks == 3 and st >= 1: A("s_barrier")
            ns, nks = (st, ks+1) if ks < 3 else (st+1, 0)
            await_(st, ks)
            for nt in range(4):
                L.wait((st, ks, nt))
                A(mf2(st, ks, nt, buf*4 + nt))
                L.issue(rd2(ns, nks, nt, (buf ^ 1)*4 + nt), (ns, nks, nt))
            if st == 0 and ks == HFK:
                V.wait("hst")
                A("s_cmp_eq_u32 s14, 1")
                A("s_cbranch_scc1 c_hfs_l")
                A("buffer_store_dword v23, v60, s[68:71], 0 offen sc1")
                A("s_branch c_hfs_e")
                A("c_hfs_l:")
                A("buffer_store_dword v23, v60, s[68:71], 0 offen")
                A("c_hfs_e:")
                V.n += 1
                hfpoll()
                if "fine3" in OPT: ST2()
            if st == 1 and ks == N1K:
                if "fine3" in OPT: ST2()
                hfseen(); need(1)
                if "fine3" in OPT: ST2()
                for z in (2, 3):
                    for k2 in range(4): aload(z, k2)
                hfpoll()
            if st >= 2:
                if st == 2 and ks == 0:
                    if "fine3" in OPT: ST2()
                    hfseen(); need(2)
                    if "fine3" in OPT: ST2()
                    for z in range(4, 2 + DIST):
                        for k2 in range(4): aload(z, k2)
                    hfpoll()
                z = st + DIST
                if z < N2:
                    if ks == 0 and z % 2 == 0 and z // 2 >= 3:
                        if z // 2 == 3: hfseen()
                        if not (int(OPT.get("abl", 0)) & 2): need(z // 2)
                    aload(z, ks)
            if "fine3" in OPT:
                if st in (1, 2, 3, 4) and ks == 3: ST2()
                if st == 2 and ks == 0: ST2()
            elif (st % 2 == 1 if 'fine2' not in OPT else True) and ks == 3: ST2()
    st = N2 - 1
    slot = {(0, nt): nt for nt in range(4)}
    order = [(ks, nt) for ks in range(4) for nt in (0, 1)] + [(ks, nt) for ks in range(4) for nt in (2, 3)]
    pend = [x for x in order if x not in slot]
    free = [4, 5, 6]
    def fill():
        while pend and free:
            x = pend.pop(0); sl = free.pop(0); slot[x] = sl
            L.issue(rd2(st, x[0], x[1], sl), (st, x[0], x[1]))
    fill()
    pst = [f"buffer_store_dwordx4 {vr(ACC2+4*i,4)}, v28, s[92:95], s{74 if i < 4 else 75} offen offset:{(i & 3)*1024} sc1" for i in range(8)]
    for i, (ks, nt) in enumerate(order):
        V.wait(("A", st, ks))
        L.wait((st, ks, nt))
        A(mf2(st, ks, nt, slot[(ks, nt)]))
        free.append(slot[order[i-1]] if i else 7)
        fill()
        if i >= 10:
            for z in range(2 if i < 14 else 0):
                if pst: V.issue(pst.pop(0), "ps")
    while pst: V.issue(pst.pop(0), "ps")
    ST2()
    YR, OM, GF, XQ, T0, RV = 160, 176, 192, 64, 208, 160
    KEEP = ACC2 + 32
    PFL = "buffer_load_dword v19, v29, s[68:71], 0 offen sc1"
    A("s_mov_b32 s12, 0xffff0000")
    for nt in range(2):
        for r in range(16): A(f"ds_read_u16 v{XQ+nt*16+r}, v61 offset:{r*128+nt*64}")
    for nt in range(2):
        for hf in range(2): A(f"ds_read_b128 {vr(YR+nt*8+hf*4,4)}, v21 offset:{nt*32*272 + hf*16}")
    for r in range(16):
        A(f"v_lshlrev_b32 v{GF+r}, 16, v{GR+r}")
        A(f"v_and_b32 v{OM+r}, s12, v{GR+r}")
    A("v_lshlrev_b32 v52, 16, v52")
    A("v_lshlrev_b32 v53, 16, v53")
    A("s_waitcnt lgkmcnt(0)")
    PFG = opt("pfg", 2)
    gi = 0
    def pfstore():
        A("s_waitcnt vmcnt(0)")
        A("buffer_store_dword v23, v30, s[68:71], 0 offen sc1")
        A(PFL)
    for nt in range(2):
        for m0 in range(0, 8, 4):
            if gi == PFG: pfstore()
            gi += 1
            ch = []
            for m in range(m0, m0 + 4):
                b_ = T0 + (m & 3)*6
                yy, xd, tm = b_, b_ + 2, b_ + 4
                xf = XQ + nt*16 + 2*m; ka = KEEP + nt*16 + 2*m
                ch.append([f"v_lshlrev_b32 v{xf}, 16, v{xf}", f"v_lshlrev_b32 v{xf+1}, 16, v{xf+1}",
                           f"v_lshlrev_b32 v{yy}, 16, v{YR+nt*8+m}", f"v_and_b32 v{yy+1}, s12, v{YR+nt*8+m}",
                           f"v_mul_f32 v{xd}, v{xf}, v{52+nt}", f"v_mul_f32 v{xd+1}, v{xf+1}, v{52+nt}",
                           f"v_mul_f32 v{yy}, v{xf}, v{yy}", f"v_mul_f32 v{yy+1}, v{xf+1}, v{yy+1}",
                           f"v_cvt_pk_bf16_f32 v{tm}, v{xd}, v{xd+1}", f"v_cvt_pk_bf16_f32 v{tm+1}, v{yy}, v{yy+1}",
                           f"v_lshlrev_b32 v{xd}, 16, v{tm}", f"v_and_b32 v{xd+1}, s12, v{tm}",
                           f"v_lshlrev_b32 v{yy}, 16, v{tm+1}", f"v_and_b32 v{yy+1}, s12, v{tm+1}",
                           f"v_add_f32 v{ka}, v{ka}, v{xd}", f"v_add_f32 v{ka+1}, v{ka+1}, v{xd+1}",
                           f"v_mul_f32 v{yy}, v{yy}, v{OM+2*m}", f"v_mul_f32 v{yy+1}, v{yy+1}, v{OM+2*m+1}",
                           f"v_cvt_pk_bf16_f32 v{tm}, v{yy}, v{yy+1}", f"v_lshlrev_b32 v{yy}, 16, v{tm}", f"v_and_b32 v{yy+1}, s12, v{tm}",
                           f"v_fma_f32 v{ka}, v{ka}, v{GF+2*m}, v{yy}", f"v_fma_f32 v{ka+1}, v{ka+1}, v{GF+2*m+1}, v{yy+1}"])
            zip_chains(A, ch)
    if gi == PFG: pfstore()
    ST2()
    A("s_waitcnt vmcnt(0)")
    spin_all(A, "c_pf", 19, PFL)
    A("s_lshl_b32 s12, s72, 6")
    A("s_add_u32 s13, s12, 4096")
    for i in range(8):
        A(f"buffer_load_dwordx4 {vr(RV+4*i,4)}, v28, s[92:95], s{12 if i < 4 else 13} offen offset:{(i & 3)*1024} sc1")
    ST2()
    for nt in range(2):
        for r in range(16):
            i = (nt*16 + r) // 4
            if r % 4 == 0: A(f"s_waitcnt vmcnt({7 - i + nt*16 + r})")
            a = KEEP + nt*16 + r
            A(f"v_fma_f32 v{a}, v{RV+nt*16+r}, v{GF+r}, v{a}")
            A(f"buffer_store_dword v{a}, v{26 if r < 8 else 27}, s[76:79], s{80+(r&7)} offen offset:{nt*128} nt")
    ST2()
    if "leak" in OPT:
        i = int(OPT["leak"])
        A("s_cmp_lg_u32 s2, 8")
        A("s_cbranch_scc1 c_noleak")
        A("s_cmp_lg_u32 s3, 0")
        A("s_cbranch_scc1 c_noleak")
        A("v_readlane_b32 s8, v63, 0")
        A(f"v_readlane_b32 s9, v{63 if i < 100 else 62}, {i % 100}")
        A("s_sub_u32 s9, s9, s8")
        A("s_memrealtime s[10:11]")
        A("s_waitcnt lgkmcnt(0)")
        A("s_add_u32 s9, s9, s10")
        A("c_leak:")
        A("s_memrealtime s[10:11]")
        A("s_waitcnt lgkmcnt(0)")
        A("s_sub_u32 s12, s9, s10")
        A("s_cmp_gt_i32 s12, 0")
        A("s_cbranch_scc1 c_leak")
        A("c_noleak:")
    if "leak2" in OPT:
        X, i = str(OPT["leak2"]).split(":"); i = int(i)
        if X != "all":
            A(f"s_cmp_lg_u32 s2, {int(X)}")
            A("s_cbranch_scc1 c_noleak2")
        A("s_cmp_lg_u32 s3, 0")
        A("s_cbranch_scc1 c_noleak2")
        A(f"v_readlane_b32 s9, v{63 if i < 100 else 62}, {i % 100}")
        A("s_add_u32 s9, s9, 4000")
        A("c_leak2:")
        A("s_memrealtime s[10:11]")
        A("s_waitcnt lgkmcnt(0)")
        A("s_sub_u32 s12, s9, s10")
        A("s_cmp_gt_i32 s12, 0")
        A("s_cbranch_scc1 c_leak2")
        A("c_noleak2:")
    ST.flush()
    ST2.flush()
    A("s_endpgm")
    for name, m in slowp:
        A(f"{name}_s:")
        A(f"s_mov_b32 s89, {SPIN}")
        A(f"{name}_l:")
        A("s_waitcnt vmcnt(0)")
        A(HFL)
        A("s_waitcnt vmcnt(0)")
        A("v_cmp_eq_u32 s[90:91], 1, v19")
        A(f"s_and_b32 s88, s90, {m:#x}")
        A(f"s_cmp_eq_u32 s88, {m:#x}")
        A(f"s_cbranch_scc1 {name}")
        A("s_sub_u32 s89, s89, 1")
        A(f"s_cbranch_scc1 {name}")
        A(f"s_branch {name}_l")

def helper(A):
    V = VQ(A)
    VA, VB = 8, 12
    ST = Stamper(A, 0, 58)
    STH = Stamper(A, 1, 59)
    ST()
    if "hprio1" in OPT: A(f"s_setprio {OPT['hprio1']}")
    A("s_sub_u32 s3, s3, 4")
    A("s_lshr_b32 s6, s3, 1")
    A("s_and_b32 s7, s3, 1")
    A("v_lshrrev_b32 v3, 5, v1")
    A("v_lshlrev_b32 v3, 5, v3")
    A("v_bfe_u32 v4, v1, 3, 1")
    A("v_lshl_add_u32 v3, v4, 4, v3")
    A("v_bfe_u32 v4, v1, 4, 1")
    A("v_add_u32 v3, v3, v4")
    A("s_lshl_b32 s8, s4, 7")
    A("s_lshl_b32 s9, s6, 6")
    A("s_add_u32 s8, s8, s9")
    A("s_lshl_b32 s9, s7, 3")
    A("s_add_u32 s8, s8, s9")
    A("v_add_u32 v3, s8, v3")
    A("v_lshlrev_b32 v3, 11, v3")
    A("v_and_b32 v4, 7, v1")
    A("v_lshrrev_b32 v5, 4, v1")
    A("v_xor_b32 v4, v4, v5")
    A("v_lshlrev_b32 v4, 4, v4")
    A("v_xor_b32 v5, 64, v4")
    A("s_lshl_b32 s8, s5, 6")
    A("s_lshl_b32 s9, s7, 5")
    A("s_add_u32 s8, s8, s9")
    A("v_lshrrev_b32 v6, 3, v1")
    A("v_add_u32 v7, s8, v6")
    A("v_lshlrev_b32 v7, 11, v7")
    for n in range(4):
        c = 4 + (n & 1)
        A(f"v_add_u32 v{VA+n}, v3, v{c}")
        A(f"v_add_u32 v{VB+n}, v7, v{c}")
        if n:
            A(f"v_add_u32 v{VA+n}, {n*(4096-1024)}, v{VA+n}")
            A(f"v_add_u32 v{VB+n}, {n*(16384-1024)}, v{VB+n}")
    A("s_lshl_b32 s10, s3, 12")
    A("s_lshr_b32 s90, s55, 2")
    A("s_lshl_b32 s90, s90, 1")
    A("s_and_b32 s91, s55, 3")
    A("s_lshl_b32 s91, s91, 2")
    A("s_add_u32 s90, s90, s91")
    A("s_waitcnt lgkmcnt(0)")
    srd(A, 56, "x", 4 << 20)
    A("s_cmp_ge_u32 s3, 2")
    A(f"s_cselect_b32 s60, s{P['Bim']}, s{P['Bre']}")
    A(f"s_cselect_b32 s61, s{P['Bim']+1}, s{P['Bre']+1}")
    A(f"s_mov_b32 s62, {2<<20:#x}")
    A("s_mov_b32 s63, 0x20000")
    def issue(st, fill=0):
        slot = st % 3
        A(f"s_add_u32 s11, s90, {st}")
        A("s_and_b32 s11, s11, 15")
        A("s_lshl_b32 s11, s11, 7")
        A(f"s_add_u32 m0, s10, {slot*32768:#x}")
        for n in range(4):
            V.issue(f"buffer_load_dwordx4 v{VA+n}, s[56:59], s11 offen offset:{n*1024} lds")
            if fill: do_work(fill)
        A(f"s_add_u32 m0, s10, {slot*32768+16384:#x}")
        for n in range(4):
            V.issue(f"buffer_load_dwordx4 v{VB+n}, s[60:63], s11 offen offset:{n*1024} lds", ("S", st))
            if fill: do_work(fill)
    issue(0)
    VC = 28
    A("s_and_b32 s8, s5, 7")
    A("s_lshl_b32 s8, s8, 6")
    A("s_lshl_b32 s9, s3, 4")
    A("s_add_u32 s8, s8, s9")
    A("v_add_u32 v7, s8, v6")
    A("v_lshlrev_b32 v7, 11, v7")
    A(f"v_add_u32 v{VC}, v7, v4")
    A(f"v_add_u32 v{VC+1}, v7, v5")
    A(f"v_add_u32 v{VC+1}, {16384-1024}, v{VC+1}")
    A("s_and_b32 s12, s55, 1")
    A("s_lshl_b32 s13, s54, 1")
    A("s_add_u32 s12, s12, s13")
    A("s_lshr_b32 s13, s55, 1")
    A("s_lshl_b32 s8, s2, 7")
    A(f"s_add_u32 s8, s8, {KF_OFF:#x}")
    A("v_mov_b32 v30, s8")
    A("s_lshl_b32 s88, s54, 5")
    A("s_add_u32 s88, s88, s55")
    A("s_lshl_b32 s8, s88, 7")
    A(f"s_add_u32 s8, s8, {YF_OFF:#x}")
    A("v_mov_b32 v31, s8")
    A("s_lshl_b32 s88, s88, 2")
    A("s_add_u32 s88, s88, s3")
    A("v_mov_b32 v2, 0")
    srd(A, 92, "ws", FLG_SZ, WS_FLG)
    A("s_lshl_b32 s8, s88, 12")
    A(f"s_load_dword s100, {sp('ssmk')}, s8")
    A("s_lshr_b32 s8, s88, 1")
    A("s_lshl_b32 s8, s8, 2")
    A(f"s_load_dword s101, {sp('ssmD')}, s8")
    V.issue("buffer_store_dword v2, v30, s[92:95], 0 offen sc1")
    V.issue("buffer_store_dword v2, v31, s[92:95], 0 offen sc1", "clr")
    issue(1)
    KR, VR_, SK = 32, 208, 68
    XG, GW = 72, 88
    A("s_lshl_b32 s13, s13, 7")
    A("s_lshl_b32 s14, s3, 5")
    A("s_add_u32 s13, s13, s14")
    A("v_and_b32 v17, 31, v1")
    A("s_lshl_b32 s14, s12, 5")
    A("v_add_u32 v17, s14, v17")
    A("v_lshlrev_b32 v22, 4, v17")
    A("v_and_b32 v23, 31, v1")
    A("v_mul_u32_u24 v23, 544, v23")
    A("v_lshrrev_b32 v24, 5, v1")
    A("v_lshlrev_b32 v24, 5, v24")
    A("v_sub_u32 v23, v23, v24")
    A("s_lshl_b32 s8, s3, 6")
    A(f"s_sub_u32 s8, {UREG+224}, s8")
    A("v_add_u32 v23, s8, v23")
    A("v_lshrrev_b32 v24, 4, v1")
    A("s_lshl_b32 s8, s3, 4")
    A("v_add_u32 v24, s8, v24")
    A("v_and_b32 v2, 15, v1")
    A("v_lshlrev_b32 v2, 4, v2")
    A("s_lshl_b32 s8, s12, 6")
    A("v_add_u32 v27, s8, v24")
    A("v_lshl_add_u32 v27, v27, 12, v2")
    A("s_lshr_b32 s8, s55, 1")
    A("s_lshl_b32 s8, s8, 8")
    A("s_sub_u32 s8, 3840, s8")
    A("v_add_u32 v27, s8, v27")
    A("v_mul_u32_u24 v24, 272, v24")
    A("v_add_u32 v24, v24, v2")
    A(f"v_add_u32 v24, {UREG:#x}, v24")
    A("s_lshl_b32 s14, s4, 7")
    A("s_lshl_b32 s8, s5, 3")
    A("s_add_u32 s14, s14, s8")
    A("s_lshl_b32 s8, s3, 1")
    A("s_add_u32 s14, s14, s8")
    A("s_lshl_b32 s8, s14, 11")
    A("v_lshlrev_b32 v25, 4, v1")
    A("v_add_u32 v26, s8, v25")
    A("v_add_u32 v3, 0x8000, v27")
    srd(A, 64, "k", 4 << 20)
    srd(A, 68, "v", 4 << 20)
    srd(A, 72, "ws", 4 << 20, WS_KVT)
    srd(A, 76, "ws", 8192, WS_G)
    for i in range(8):
        A(f"s_mov_b32 s{80+i}, {i*4096}")
    NTP = " nt" if "ntp" in OPT else ""
    A("v_lshrrev_b32 v19, 3, v1")
    A("v_add_u32 v19, s13, v19")
    A("v_lshlrev_b32 v19, 11, v19")
    A("v_and_b32 v20, 7, v1")
    A("v_lshl_add_u32 v19, v20, 4, v19")
    A("s_lshl_b32 s8, s12, 7")
    A("v_add_u32 v19, s8, v19")
    A("v_subrev_u32 v20, 16384, v19")
    A("v_lshrrev_b32 v21, 5, v1")
    A("v_lshlrev_b32 v21, 11, v21")
    A("v_and_b32 v18, 31, v1")
    A("v_lshl_add_u32 v21, v18, 2, v21")
    A("s_lshl_b32 s8, s3, 12")
    A(f"s_add_u32 s91, s8, {KREG}")
    A("v_add_u32 v21, s91, v21")
    def kvdma():
        A("s_add_u32 m0, s91, 16384")
        V.issue(f"buffer_load_dwordx4 v20, s[64:67], 0 offen{NTP} lds")
        for i in range(4):
            A(f"s_add_u32 m0, s91, {16384 + 1024*(i+1)}")
            A(f"s_mov_b32 s99, {i*16384}")
            V.issue(f"buffer_load_dwordx4 v19, s[64:67], s99 offen{NTP} lds")
        V.issue(f"global_load_dwordx4 {vr(SK,4)}, v22, {sp('shk')}", "k")
        for i in range(4):
            A(f"s_add_u32 m0, s91, {1024*i}")
            A(f"s_mov_b32 s99, {i*16384}")
            V.issue(f"buffer_load_dwordx4 v19, s[68:71], s99 offen{NTP} lds", "v")
    gl = []
    for r in range(2):
        for hh in range(2): gl.append((f"buffer_load_dwordx4 {vr(XG+r*8+hh*4,4)}, v26, s[56:59], 0 offen offset:{r*2048+hh*1024}", None))
    for hh in range(2): gl.append((f"global_load_dwordx4 {vr(GW+hh*4,4)}, v25, {sp('gw')} offset:{hh*1024}", "gate"))
    KF = 96; SP = 136; OUT = 144
    work = []
    def W(x):
        if callable(x): work.append(x)
        else: work.extend(x.split("\n"))
    def rndW(pair, tmp):
        W(f"v_cvt_pk_bf16_f32 v{tmp}, v{pair}, v{pair+1}")
        W(f"v_lshlrev_b32 v{pair}, 16, v{tmp}")
        W(f"v_and_b32 v{pair+1}, s12, v{tmp}")
    W("s_mov_b32 s12, 0xffff0000")
    W(lambda: V.wait("gate"))
    for i in range(8):
        W(f"v_lshlrev_b32 v{96+2*i}, 16, v{GW+i}")
        W(f"v_and_b32 v{97+2*i}, s12, v{GW+i}")
    for r in range(2):
        acc = 112 + r
        W(f"v_mov_b32 v{acc}, 0")
        for i in range(8):
            W(f"v_lshlrev_b32 v116, 16, v{XG+r*8+i}")
            W(f"v_and_b32 v117, s12, v{XG+r*8+i}")
            W(pk("mul", 116, 116, 96+2*i))
            rndW(116, 118)
            W(f"v_add_f32 v{acc}, v{acc}, v116")
            W(f"v_add_f32 v{acc}, v{acc}, v117")
    for r in range(2):
        acc = 112 + r
        for sh in (1, 2, 4, 8):
            W(f"v_add_f32_dpp v{acc}, v{acc}, v{acc} row_shr:{sh} row_mask:0xf bank_mask:0xf bound_ctrl:0")
        W(f"v_add_f32_dpp v{acc}, v{acc}, v{acc} row_bcast:15 row_mask:0xa bank_mask:0xf")
        W(f"v_add_f32_dpp v{acc}, v{acc}, v{acc} row_bcast:31 row_mask:0xc bank_mask:0xf")
    for t in ["v_readlane_b32 s8, v112, 63", "v_readlane_b32 s9, v113, 63", "v_mov_b32 v116, s8", "v_mov_b32 v117, s9",
              "v_cmp_eq_u32 vcc, 1, v1", "v_cndmask_b32 v116, v116, v117, vcc", "v_cvt_pk_bf16_f32 v116, v116, v116",
              "v_lshlrev_b32 v116, 16, v116", "v_mul_f32 v116, 0xbfb8aa3b, v116", "v_exp_f32 v116, v116", "v_add_f32 v116, 1.0, v116",
              "v_rcp_f32 v116, v116", "v_cvt_pk_bf16_f32 v117, v116, v116", "v_lshlrev_b32 v116, 16, v117", "v_sub_f32 v118, 1.0, v116",
              "v_cvt_pk_bf16_f32 v116, v116, v118", "s_lshl_b32 s14, s14, 2", "v_lshl_add_u32 v117, v1, 2, s14"]:
        W(t)
    def gstore():
        A("s_mov_b64 exec, 3")
        V.issue("buffer_store_dword v116, v117, s[76:79], 0 offen sc1", "g")
        A("s_mov_b64 exec, -1")
    W(gstore)
    W("KVSTART")
    W(lambda: V.wait("k"))
    for i in range(19):
        W(f"ds_read_b32 v{KR+i}, v21 offset:{16384 + (5+i)*128}")
        if i == 9: W("s_waitcnt lgkmcnt(0)")
    W("s_waitcnt lgkmcnt(0)")
    for i in range(19):
        W(f"v_lshlrev_b32 v{KF+2*i}, 16, v{KR+i}")
        W(f"v_and_b32 v{KF+2*i+1}, s12, v{KR+i}")
    for jx in range(4):
        for cc in range(2):
            src = SK + cc*2 + (jx >> 1)
            W(f"v_and_b32 v{SP+2*jx+cc}, s12, v{src}" if jx & 1 else f"v_lshlrev_b32 v{SP+2*jx+cc}, 16, v{src}")
    W(lambda: V.wait("v"))
    for i in range(16):
        W(f"ds_read_b32 v{VR_+i}, v21 offset:{i*128}")
        if i == 7: W("s_waitcnt lgkmcnt(0)")
    W("s_waitcnt lgkmcnt(0)")
    for t in range(16):
        vv = 176 + (t & 1)*2
        W(f"v_lshlrev_b32 v{vv}, 16, v{VR_+t}")
        W(f"v_and_b32 v{vv+1}, s12, v{VR_+t}")
        if opt("pk", 0) & 2:
            o = OUT + 2*t
            W(f"v_pk_mul_f32 {vr(o,2)}, {vr(KF+2*t,2)}, {vr(SP+6,2)}")
            for jx in (2, 1, 0): W(f"v_pk_fma_f32 {vr(o,2)}, {vr(KF+2*(t+3-jx),2)}, {vr(SP+2*jx,2)}, {vr(o,2)}")
            W(f"v_pk_mul_f32 {vr(o,2)}, {vr(o,2)}, {vr(vv,2)}")
            continue
        for cc in range(2): W(f"v_mul_f32 v{OUT+2*t+cc}, v{KF+2*t+cc}, v{SP+6+cc}")
        for jx in (2, 1, 0):
            for cc in range(2): W(f"v_fmac_f32 v{OUT+2*t+cc}, v{KF+2*(t+3-jx)+cc}, v{SP+2*jx+cc}")
        for cc in range(2): W(f"v_mul_f32 v{OUT+2*t+cc}, v{OUT+2*t+cc}, v{vv+cc}")
    for cc in range(2):
        for hf in range(2):
            d = 192 + (cc*2+hf)*4
            for m in range(4):
                mm = hf*4 + m
                W(f"v_cvt_pk_bf16_f32 v{d+m}, v{OUT+2*(15-2*mm)+cc}, v{OUT+2*(14-2*mm)+cc}")
            W(f"ds_write_b128 v23, {vr(d,4)} offset:{cc*272+hf*16}")
    W("s_waitcnt lgkmcnt(0)")
    W("BARRIER")
    for i in range(4): W(f"ds_read_b128 {vr(192+4*i,4)}, v24 offset:{i*4*272}")
    KVL = "nokvl" not in OPT
    def kvstores():
        def block(pol):
            for i in range(4):
                A(f"s_waitcnt lgkmcnt({3-i})")
                V.issue(f"buffer_store_dwordx4 {vr(192+4*i,4)}, v{27 if i < 2 else 3}, s[72:75], s{80+4*(i&1)} offen{pol}", "kvt")
        if not KVL:
            block(" sc1"); return
        V.wait("cls")
        local_check(A, 247, 246, 96, 98)
        A("s_cbranch_scc0 h_kvl")
        n0 = V.n
        block(" sc1")
        A("s_branch h_kve")
        A("h_kvl:")
        V.n = n0
        block("")
        A("h_kve:")
    W(kvstores)
    wpos = [0]
    blocked = [False]
    cur = [0]
    PL = opt("pl", 1)
    KVW = PL + opt("kvd", 3)
    def do_work(n):
        while n > 0 and wpos[0] < len(work) and not blocked[0]:
            w = work[wpos[0]]
            wpos[0] += 1
            if w == "BARRIER":
                blocked[0] = True; return
            if w == "KVSTART":
                if cur[0] < KVW:
                    wpos[0] -= 1; return
                continue
            if callable(w): w()
            else: A(w)
            n -= 1
    PREP0 = opt("prep0", 1)
    UL = 40
    ACC = 64; BF = 96; AFR = 160; KD = 224
    def setup_conv(A):
        A("s_lshl_b32 s12, s88, 12")
        srd(A, 64, "ssmk", 4096, off_sreg=12)
        srd(A, 68, "ws", 4096, WS_KVT, off_sreg=12)
        A("s_mov_b32 s80, s100")
        A("s_mov_b32 s81, s101")
        A("v_and_b32 v37, 15, v1")
        A("s_lshr_b32 s8, s88, 6")
        A("s_and_b32 s8, s8, 1")
        A("s_lshl_b32 s8, s8, 3")
        A("s_add_u32 s8, s8, s54")
        A("v_lshl_add_u32 v32, v37, 4, s8")
        A("s_lshr_b32 s8, s4, 2")
        A("s_lshl_b32 s8, s8, 1")
        A("s_and_b32 s9, s4, 3")
        A("s_lshl_b32 s9, s9, 3")
        A("s_add_u32 s8, s8, s9")
        A("v_lshrrev_b32 v38, 3, v37")
        A("v_and_b32 v39, 7, v37")
        A("v_lshl_add_u32 v38, v39, 5, v38")
        A("v_add_u32 v38, s8, v38")
        A("v_and_b32 v39, 16, v1")
        A("v_cmp_ne_u32 vcc, 0, v39")
        A("v_cndmask_b32 v32, v32, v38, vcc")
        A("v_lshlrev_b32 v32, 7, v32")
        A(f"v_add_u32 v32, {KF_OFF:#x}, v32")
        A("v_lshlrev_b32 v33, 2, v1")
        srd(A, 76, "dbg", 256)
        A(f"s_mul_i32 s13, s3, 8320")
        A(f"s_add_u32 s13, s13, {KREG}")
        A(f"s_mul_i32 s82, s3, 4608")
        A(f"s_add_u32 s82, s82, {UREG}")
        A("v_add_u32 v36, 2, v25")
        A("v_and_b32 v38, 7, v1")
        A("v_lshlrev_b32 v38, 2, v38")
        A("v_bfe_u32 v39, v1, 3, 1")
        A("v_mul_u32_u24 v39, 4160, v39")
        A("v_add3_u32 v38, v38, v39, s13")
        A("s_lshl_b32 s80, s80, 16")
        A("v_mov_b32 v56, s80")
        A("v_cmp_eq_u32 vcc, 15, v37")
        A("v_cndmask_b32 v56, 0, v56, vcc")
        A("ds_write_b32 v38, v56")
        A("s_and_b32 s14, s88, 1")
        A("s_lshl_b32 s14, s14, 4")
        A("s_lshr_b32 s81, s81, s14")
        A("s_lshl_b32 s81, s81, 16")
        A(f"v_mov_b32 v60, {LFLAG:#x}")
        A("v_mov_b32 v61, 1")
    def setup_late(A):
        A("v_lshrrev_b32 v5, 4, v1")
        A("v_and_b32 v37, 15, v1")
        A("v_lshl_add_u32 v38, v5, 3, v37")
        A("v_lshlrev_b32 v38, 1, v38")
        A("v_and_b32 v39, 1, v1")
        A("v_mul_u32_u24 v39, 4158, v39")
        A("v_sub_u32 v38, v38, v39")
        A("s_add_u32 s14, s13, 4160")
        A("v_add_u32 v16, s14, v38")
        for i in range(1, 4): A(f"v_add_u32 v{16+i}, {1024*i}, v16")
        A("v_lshlrev_b32 v38, 5, v37")
        A("v_lshlrev_b32 v39, 4, v5")
        A("v_sub_u32 v20, v39, v38")
        A("s_add_u32 s14, s82, 480")
        A("v_add_u32 v20, s14, v20")
        A("v_lshl_add_u32 v39, v5, 3, v38")
        A("s_add_u32 s14, s82, 504")
        A("v_sub_u32 v21, s14, v39")
        A("v_and_b32 v39, 1, v5")
        A("v_lshl_add_u32 v22, v39, 9, v38")
        A("v_lshrrev_b32 v39, 1, v5")
        A("v_lshl_add_u32 v22, v39, 4, v22")
        A("v_add_u32 v23, s82, v25")
    setup_conv(W)
    print("prep work items", len(work))
    def cissue(st):
        tile_of(A, st >> 1, 11)
        A("s_lshl_b32 s11, s11, 7")
        sr_ = "s[56:59]" if st % 2 == 0 else "s[60:63]"
        A("s_add_u32 s99, s11, s91")
        A(f"s_add_u32 m0, s10, {(st % NS2)*16384:#x}")
        for n in range(2):
            V.issue(f"buffer_load_dwordx4 v{VC+n}, {sr_}, s99 offen offset:{n*1024} lds")
        A("s_add_u32 s11, s11, s90")
        A(f"s_add_u32 m0, s10, {(st % NS2)*16384 + 8192:#x}")
        for n in range(2):
            V.issue(f"buffer_load_dwordx4 v{VC+n}, {sr_}, s11 offen offset:{n*1024} lds", ("C", st))
    def uloads():
        for i in range(4): A(f"buffer_load_dwordx4 {vr(UL+4*i,4)}, v25, s[68:71], 0 offen offset:{i*1024} sc1")
    def ctouch():
        A("s_cmp_ge_u32 s3, 2")
        A(f"s_cselect_b32 s96, s{P['Cim']}, s{P['Cre']}")
        A(f"s_cselect_b32 s97, s{P['Cim']+1}, s{P['Cre']+1}")
        A("s_lshl_b32 s98, s2, 13")
        A("s_and_b32 s99, s3, 1")
        A("s_lshl_b32 s99, s99, 12")
        A("s_add_u32 s98, s98, s99")
        A("v_and_b32 v240, 31, v1")
        if "km" in OPT:
            A("s_add_u32 s96, s96, s98")
            A("s_addc_u32 s97, s97, 0")
            A("s_lshl_b32 s98, s88, 12")
            A(f"s_add_u32 s98, s{P['ssmk']}, s98")
            A(f"s_addc_u32 s99, s{P['ssmk']+1}, 0")
            A("v_mov_b32 v242, s96")
            A("v_mov_b32 v243, s97")
            A("v_mov_b32 v244, s98")
            A("v_mov_b32 v245, s99")
            A("v_cmp_lt_u32 s[96:97], 31, v1")
            A("v_cndmask_b32 v242, v242, v244, s[96:97]")
            A("v_cndmask_b32 v243, v243, v245, s[96:97]")
            A("v_lshlrev_b32 v240, 7, v240")
            A("v_add_co_u32 v242, s[96:97], v242, v240")
            A("v_addc_co_u32 v243, s[96:97], 0, v243, s[96:97]")
            V.issue("global_load_dword v241, v[242:243], off")
        else:
            A("v_lshl_add_u32 v240, v240, 7, s98")
            V.issue("global_load_dword v241, v240, s[96:97]")
    FILL = opt("fill", 10)
    kst = [None]
    KW = opt("kw", 2)
    CHK = opt("chk", 13)
    KFS = opt("kfs", 12)
    KDS = opt("kds", 12)
    UWS = opt("uws", 14)
    WEND = min(KFS, KDS, 12)
    CM = opt("cm", 6)
    assert CHK < UWS <= 15
    nU = [0]; cdone = [0]
    NC0 = opt("nc0", 2)
    A(f"v_mov_b32 v6, {LFLAG:#x}")
    A("v_mov_b32 v7, 0")
    for o in (4, 8, 12, 16): A(f"ds_write_b32 v6, v7 offset:{o}")
    ST()
    A("s_waitcnt lgkmcnt(0)")
    V.wait("clr")
    ST()
    A("s_barrier")
    issue(2)
    for t, tag in gl: V.issue(t, tag)
    for s in range(N1):
        V.wait(("S", min(s+1, N1-1)))
        if kst[0] is not None and s == min(kst[0] + KW, 15): V.wait("kvt"); V.wait("g")
        if "fine1" in OPT: STH()
        A("s_barrier")
        if kst[0] is not None and s == min(kst[0] + KW, 15):
            A("s_cmp_lg_u32 s3, 0")
            A("s_cbranch_scc1 h_kflag")
            A("v_mov_b32 v6, 1")
            A("buffer_store_dword v6, v30, s[92:95], 0 offen sc1")
            A("h_kflag:")
            print("k flag after barrier", s+1)
        blocked[0] = False
        cur[0] = s
        FM = opt("fmode", 0)
        if s+3 < N1 and FM == 0: issue(s+3, FILL if s >= PREP0 else 0)
        elif s+3 < N1 and FM == 1:
            issue(s+3)
            if s >= PREP0: do_work(8*FILL)
        if s == PL - 100: pass
        if s == PL: kvdma()
        if s == CM: ctouch()
        if KVL and s == opt("cls", 6):
            A("v_lshlrev_b32 v246, 2, v1")
            V.issue(f"global_load_dword v247, v246, {sp('dbg')} sc1", "cls")
        if kst[0] is None and "kvt" in V.tags and "g" in V.tags: kst[0] = s
        if s == WEND:
            do_work(10000)
            assert wpos[0] == len(work), (wpos[0], len(work))
        if s == KFS:
            V.issue("buffer_load_dword v34, v33, s[76:79], 0 offen sc1")
            V.issue("buffer_load_dword v35, v32, s[92:95], 0 offen sc1", "kf")
            ST()
        if s == KDS and KDS < CHK:
            V.wait("g")
            A("s_add_u32 m0, s13, 32")
            for i in range(4): V.issue(f"buffer_load_dwordx4 v25, s[64:67], 0 offen offset:{i*1024}{NTP} lds")
            A("s_add_u32 m0, s13, 4192")
            for i in range(4): V.issue(f"buffer_load_dwordx4 v36, s[64:67], 0 offen offset:{i*1024}{NTP} lds", "K")
        if s == 13:
            srd(A, 56, "Cre", 2 << 20)
            srd(A, 60, "Cim", 2 << 20)
            A("s_lshl_b32 s10, s3, 11")
            A(f"s_add_u32 s10, s10, {CRING:#x}")
            A("s_lshr_b32 s90, s5, 3")
            A("s_xor_b32 s91, s90, 1")
            A("s_lshl_b32 s91, s91, 20")
            A("s_lshl_b32 s11, s90, 10")
            A("s_add_u32 s91, s91, s11")
            A("s_mul_i32 s90, s90, 0x100400")
            A("v_mov_b32 v56, 0")
            A("v_mov_b32 v57, 0")
            A("v_lshlrev_b32 v38, 3, v1")
            A("v_add_u32 v38, s82, v38")
            A("ds_write_b64 v38, v[56:57] offset:4096")
            ST()
        if s == CHK:
            V.wait("kf")
            A("s_mov_b32 s83, 0")
            A("v_and_b32 v34, 15, v34")
            A("v_cmp_ne_u32 vcc, 15, v34")
            A("v_cmp_ne_u32 s[84:85], 1, v35")
            A("s_or_b64 vcc, vcc, s[84:85]")
            A("s_cbranch_scc1 h_nou")
            A("s_mov_b32 s83, 1")
            uloads()
            A("h_nou:")
            nU[0] = V.n
        if s == KDS and KDS >= CHK:
            V.wait("g")
            A("s_add_u32 m0, s13, 32")
            for i in range(4): V.issue(f"buffer_load_dwordx4 v25, s[64:67], 0 offen offset:{i*1024}{NTP} lds")
            A("s_add_u32 m0, s13, 4192")
            for i in range(4): V.issue(f"buffer_load_dwordx4 v36, s[64:67], 0 offen offset:{i*1024}{NTP} lds", "K")
        if s == opt("lates", 14): setup_late(A)
        if s == 15:
            for z in range(NC0): cissue(z)
            cdone[0] = NC0
        if s == UWS:
            A("s_cmp_lg_u32 s83, 1")
            A("s_cbranch_scc1 h_nouw")
            A(f"s_waitcnt vmcnt({V.n - nU[0]})")
            for i in range(4): A(f"ds_write_b128 v23, {vr(UL+4*i,4)} offset:{1024*i}")
            A("h_nouw:")
    ST()
    if "hprio1" in OPT: A("s_setprio 0")
    A("s_cmp_lg_u32 s83, 0")
    A("s_cbranch_scc1 h_haveu")
    spin_all(A, "h_init", 34, "buffer_load_dword v34, v33, s[76:79], 0 offen sc1", "15", pre="v_and_b32 v34, 15, v34")
    spin_all(A, "h_kf", 35, "buffer_load_dword v35, v32, s[92:95], 0 offen sc1")
    uloads()
    A("s_waitcnt vmcnt(0)")
    for i in range(4): A(f"ds_write_b128 v23, {vr(UL+4*i,4)} offset:{1024*i}")
    A("h_haveu:")
    V.done = max(V.done, nU[0])
    V.wait("K")
    lds_inc(A, 60, 61, 8)
    for i in range(4): A(f"s_mov_b32 s{84+i}, s{68+i}")
    srd(A, 68, "ws", 4 << 20, WS_KVT)
    A("s_waitcnt lgkmcnt(0)")
    ST()
    L = LQ(A)
    ops = []
    def reads(r):
        R = []
        s = r & 1
        for i in range(8):
            R.append((f"ds_read_b128 {vr(BF+s*32+i*4,4)}, v20 offset:{3584-512*i+64*r}", ("B", r, i)))
            o = 128*(i & 1) + 16*r
            d = AFR + s*32 + i*4
            R.append((f"ds_read2_b32 {vr(d,2)}, v{16+(i>>1)} offset0:{o} offset1:{o+1}", None))
            R.append((f"ds_read2_b32 {vr(d+2,2)}, v{16+(i>>1)} offset0:{o+2} offset1:{o+3}", ("A", r, i)))
        return R
    def first_order(R):
        return R[1:3] + [R[3*i] for i in range(8)] + [x for i in range(1, 8) for x in R[3*i+1:3*i+3]]
    KVT = 40
    for n in range(8): ops.append(("rd", f"ds_read_b64 {vr(KVT+2*n,2)}, v21 offset:{3584-512*n}", ("KV", n)))
    for t, tag in first_order(reads(0)): ops.append(("rd", t, tag))
    fill = []
    fill.append(("s_mov_b32 s12, 0xffff0000", None)); fill.append(("v_mov_b32 v26, s81", None))
    for n in range(8):
        k = KD + 4*n
        c = [f"v_and_b32 v{k}, s12, v{KVT+2*n+1}", f"v_lshlrev_b32 v{k+1}, 16, v{KVT+2*n+1}", f"v_and_b32 v{k+2}, s12, v{KVT+2*n}", f"v_lshlrev_b32 v{k+3}, 16, v{KVT+2*n}"]
        c += [f"v_mul_f32 v{k+i}, v{k+i}, v26" for i in range(4)]
        c += [f"v_cvt_pk_bf16_f32 v56, v{k}, v{k+1}", f"v_cvt_pk_bf16_f32 v57, v{k+2}, v{k+3}",
              f"v_lshlrev_b32 v{k}, 16, v56", f"v_and_b32 v{k+1}, s12, v56", f"v_lshlrev_b32 v{k+2}, 16, v57", f"v_and_b32 v{k+3}, s12, v57"]
        for i, t in enumerate(c): fill.append((t, ("KV", n) if i == 0 else None))
    YD = 40
    def post(n):
        y = ACC + 4*n; k = KD + 4*n
        d = YD + (n >> 1)*4 + (n & 1)*2
        c = [f"v_cvt_pk_bf16_f32 v56, v{y}, v{y+1}", f"v_cvt_pk_bf16_f32 v57, v{y+2}, v{y+3}",
             f"v_lshlrev_b32 v{y}, 16, v56", f"v_and_b32 v{y+1}, s12, v56", f"v_lshlrev_b32 v{y+2}, 16, v57", f"v_and_b32 v{y+3}, s12, v57"]
        c += [f"v_add_f32 v{k+i}, v{k+i}, v{y+i}" for i in range(4)]
        c += [f"v_cvt_pk_bf16_f32 v{d}, v{k}, v{k+1}", f"v_cvt_pk_bf16_f32 v{d+1}, v{k+2}, v{k+3}"]
        if n & 1:
            d = YD + (n >> 1)*4
            c += [f"v_permlane16_swap_b32 v{d}, v{d+2}", f"v_permlane16_swap_b32 v{d+1}, v{d+3}"]
        return c
    ystores = [f"buffer_store_dwordx4 {vr(YD+4*k,4)}, v22, s[84:87], 0 offen offset:{k*1024} sc1" for k in range(4)]
    LATEC = opt("latec", 200)
    CFM = opt("cfm", 80)
    FPM = opt("fpm", 2)
    nmf = 0
    postq = []
    for r in range(8):
        s = r & 1
        nxt = first_order(reads(r+1)) if r < 7 else []
        cnt = 0
        for q in range(8):
            for n in range(q, 8):
                c = vr(ACC+4*n, 4)
                ops.append(("mf", f"v_mfma_f32_16x16x32_bf16 {c}, {vr(AFR+s*32+4*q,4)}, {vr(BF+s*32+4*(n-q),4)}, {'0' if (r == 0 and q == 0) else c}",
                            [("A", r, q), ("B", r, n-q)]))
                nmf += 1; cnt += 1
                if nxt and cnt >= 2:
                    t, tag = nxt.pop(0); ops.append(("rd", t, tag))
                elif r < 7:
                    for z in range(FPM):
                        if fill: ops.append(("fill",) + fill.pop(0))
                if nmf == LATEC: ops.append(("latec",))
                if nmf == CFM: ops.append(("cf",))
                if r == 7:
                    if n == q: postq += [(nmf + 3, t) for t in post(n)]
                    for z in range(opt("ppm", 3)):
                        if postq and postq[0][0] <= nmf and q < 7: ops.append(("fill", postq.pop(0)[1], None))
        assert not nxt
    assert not fill and CFM < LATEC
    for _, t in postq: ops.append(("fill", t, None))
    for op in ops:
        if op[0] == "rd": L.issue(op[1], op[2])
        elif op[0] == "mf":
            for t in op[2]: pass
            k = max(op[2], key=lambda t: L.tags[t])
            L.wait(k)
            A(op[1])
        elif op[0] == "fill":
            if op[2] is not None: L.wait(op[2])
            A(op[1])
        elif op[0] == "latec":
            while cdone[0] < NS2: cissue(cdone[0]); cdone[0] += 1
        elif op[0] == "cf":
            while cdone[0] < 2: cissue(cdone[0]); cdone[0] += 1
            V.wait(("C", 1))
            lds_inc(A, 60, 61, 16); L.n += 1
    ST()
    YST = opt("yst", 0)
    if YST == 0:
        for t in ystores: V.issue(t, "y2")
    A("v_lshrrev_b32 v8, 4, v1")
    A("s_lshl_b32 s8, s3, 4")
    A("v_add_u32 v8, s8, v8")
    A("v_and_b32 v11, 15, v1")
    A("s_lshl_b32 s9, s5, 11")
    A(f"s_add_u32 s9, s9, {YF_OFF:#x}")
    A("v_lshl_add_u32 v10, v11, 7, s9")
    A("v_lshlrev_b32 v11, 4, v11")
    A("v_mul_u32_u24 v9, 272, v8")
    A("v_add_u32 v9, v9, v11")
    A("s_lshl_b32 s8, s5, 6")
    A("v_add_u32 v8, s8, v8")
    A("v_lshl_add_u32 v8, v8, 12, v11")
    A("s_lshl_b32 s8, s4, 8")
    A("v_add_u32 v8, s8, v8")
    srd(A, 64, "x", 4 << 20)
    A("s_lshl_b32 s8, s4, 2")
    A("s_add_u32 s8, s8, s3")
    A("s_lshl_b32 s8, s8, 5")
    A("v_lshrrev_b32 v12, 3, v1")
    A("v_add_u32 v12, s8, v12")
    A("v_lshlrev_b32 v12, 11, v12")
    A("v_and_b32 v11, 7, v1")
    A("v_lshl_add_u32 v12, v11, 4, v12")
    A("s_lshl_b32 s8, s5, 7")
    A("v_add_u32 v12, s8, v12")
    ST()
    YR = 116
    YFL_LD = "buffer_load_dword v19, v10, s[92:95], 0 offen sc1"
    YFL, GYF, GYL, GYW = opt("yfl", 5), opt("gyf", 8), opt("gyl", 10), opt("gyw", 12)
    XGS = opt("xgs", 7); XGW = opt("xgw", 10)
    assert XGS < XGW <= N2 - 2
    for st in range(1, N2-1):
        V.wait(("C", st+1))
        if st == XGW: V.wait("xt")
        if "fineh" in OPT: STH()
        A("s_barrier")
        if NS2 <= st + NS2 - 1 < N2: cissue(st + NS2 - 1)
        if "abl" in OPT and st >= 2 and st < 13 and int(OPT["abl"]) & 1:
            continue_ = True
            for tg in ("y2", "xt", "yf", "eps"): V.tags.setdefault(tg, 0)
            continue
        if YST and st == YST:
            for t in ystores: V.issue(t, "y2")
        if st == XGS:
            for i in range(4):
                A(f"s_add_u32 m0, s82, {i*1024}")
                A(f"s_mov_b32 s8, {i*16384}")
                V.issue("buffer_load_dwordx4 v12, s[64:67], s8 offen lds", "xt")
        if st == YFL:
            V.wait("y2")
            A("s_mov_b64 exec, 1")
            A("ds_add_rtn_u32 v62, v60, v61 offset:4")
            A("s_mov_b64 exec, -1")
            A("s_waitcnt lgkmcnt(0)")
            A("v_readfirstlane_b32 s83, v62")
            A("s_cmp_lg_u32 s83, 3")
            A("s_cbranch_scc1 h_noy")
            A("buffer_store_dword v61, v31, s[92:95], 0 offen sc1")
            A("h_noy:")
        if st == GYF: V.issue(YFL_LD, "yf")
        if st == GYL:
            V.wait("yf")
            spin_all(A, "h_yf", 19, YFL_LD)
            for i in range(4):
                A(f"s_mov_b32 s8, {i*16384}")
                V.issue(f"buffer_load_dwordx4 {vr(YR+i*4,4)}, v8, s[68:71], s8 offen sc1", "eps")
        if st == GYW:
            V.wait("eps")
            for i in range(4): A(f"ds_write_b128 v9, {vr(YR+i*4,4)} offset:{i*4*272}")
            A("s_waitcnt lgkmcnt(0)")
    assert YST < YFL < GYF < GYL < GYW <= N2 - 3
    STH.flush()
    ST.flush()
    A("s_endpgm")

def build():
    s = header_comments()
    s += "; generated by tools/gen9.py (fused single kernel, split-K GEMM2; gen8 h layout)\n"
    s += "; @launch grid=(256,1,1) block=(512,1,1) lds=163840\n"
    s += '.amdgcn_target "amdgcn-amd-amdhsa--gfx950"\n.text\n'
    A = Asm()
    A.raw(f".globl {KN}\n.p2align 8\n.type {KN},@function")
    gen_kernel(A)
    s += A.render()
    s += descriptor(KN, 256, 102)
    import subprocess, tempfile, re
    with tempfile.TemporaryDirectory() as td:
        open(td + "/a.s", "w").write(s.replace("CODE_LAST", "0x12345"))
        subprocess.run(["clang", "-x", "assembler", "-target", "amdgcn-amd-amdhsa", "-mcpu=gfx950", "-c", td + "/a.s", "-o", td + "/a.o"], check=True)
        o = subprocess.run(["llvm-objdump", "-h", td + "/a.o"], capture_output=True, text=True).stdout
    size = int(re.search(r"\.text\s+([0-9a-f]+)", o).group(1), 16)
    print("code bytes", size)
    assert size <= 65536
    return s.replace("CODE_LAST", hex(size - 4))

if __name__ == "__main__":
    out = sys.argv[1] if len(sys.argv) > 1 and not sys.argv[1].startswith("--") else os.path.join(os.path.dirname(os.path.abspath(__file__)), "..", NAME + ".s")
    open(out, "w").write(build())
    print("wrote", out)
```

```python
import sys, os
sys.path.insert(0, os.path.dirname(os.path.abspath(__file__)))
from asmlib import Asm
from gen import (NAME, P, sp, vr, sr, load_kernargs, srd, pk, cmul, tile_ids, Stamper, OPT, header_comments, descriptor)
import gen

KN = NAME + "_kernel"
WS_H    = 0
WS_KVT  = 8 << 20
WS_G    = 16 << 20
WS_EBOX = 17 << 20
WS_FLG  = 18 << 20
HF_OFF  = 0
KF_OFF  = 128 << 10
YF_OFF  = 160 << 10
PF_OFF  = 192 << 10
FLG_SZ  = 320 << 10
WS_PART = 24 << 20
N1 = 16
N2 = 16
NS2 = 4
PD = 4
CRING = 32768
KREG = 98304
UREG = KREG + 4*8320
LFLAG = UREG + 4*4608
SPIN = int(OPT.get("spin", 1 << 16))
SLEEP = int(OPT.get("sleep", 4))
def opt(k, d): return int(OPT.get(k, d))

class VQ:
    def __init__(self, A): self.A = A; self.n = 0; self.tags = {}; self.done = 0
    def issue(self, text, tag=None):
        self.A(text); self.n += 1
        if tag is not None: self.tags[tag] = self.n
    def wait(self, tag):
        k = self.tags[tag]
        if k <= self.done: return
        cnt = min(63, self.n - k)
        self.A(f"s_waitcnt vmcnt({cnt})"); self.done = self.n - cnt
    def drained(self): self.done = self.n

class LQ:
    def __init__(self, A): self.A = A; self.n = 0; self.tags = {}; self.done = 0
    def issue(self, text, tag=None):
        self.A(text); self.n += 1
        if tag is not None: self.tags[tag] = self.n
    def wait(self, tag):
        k = self.tags[tag]
        if k > self.done:
            self.A(f"s_waitcnt lgkmcnt({min(15, self.n - k)})"); self.done = max(k, self.n - 15)
    def drain(self):
        self.A("s_waitcnt lgkmcnt(0)"); self.done = self.n

def spin_all(A, name, vreg, reload, cmpval="1", sctr=89, pre=None):
    A(f"s_mov_b32 s{sctr}, {SPIN}")
    A(f"{name}_chk:")
    if pre: A(pre)
    A(f"v_cmp_ne_u32 vcc, {cmpval}, v{vreg}")
    A("s_cmp_eq_u64 vcc, 0")
    A(f"s_cbranch_scc1 {name}_ok")
    A(f"s_sub_u32 s{sctr}, s{sctr}, 1")
    A(f"s_cbranch_scc1 {name}_ok")
    A(f"s_sleep {SLEEP}")
    A(reload)
    A("s_waitcnt vmcnt(0)")
    A(f"s_branch {name}_chk")
    A(f"{name}_ok:")

def lds_spin(A, name, vaddr, off, vtmp, target, stmp=8, sctr=89):
    A(f"s_mov_b32 s{sctr}, {SPIN*4}")
    A(f"{name}:")
    A(f"ds_read_b32 v{vtmp}, v{vaddr} offset:{off}")
    A("s_waitcnt lgkmcnt(0)")
    A(f"v_readfirstlane_b32 s{stmp}, v{vtmp}")
    A(f"s_cmp_ge_u32 s{stmp}, {target}")
    A(f"s_cbranch_scc1 {name}_ok")
    A(f"s_sub_u32 s{sctr}, s{sctr}, 1")
    A(f"s_cbranch_scc0 {name}")
    A(f"{name}_ok:")

def lds_inc(A, vaddr, vone, off):
    A("s_mov_b64 exec, 1")
    A(f"ds_add_u32 v{vaddr}, v{vone} offset:{off}")
    A("s_mov_b64 exec, -1")

def zip_chains(A, chains):
    chains = [[x for t in c for x in t.split("\n")] for c in chains]
    for i in range(max(len(c) for c in chains)):
        for c in chains:
            if i < len(c): A(c[i])

def local_check(A, vbits, vtmp, sdst_pair, stmp):
    A(f"s_getreg_b32 s{stmp}, hwreg(HW_REG_XCC_ID, 0, 4)")
    A(f"s_lshl_b32 s{stmp}, 0x100, s{stmp}")
    A(f"s_or_b32 s{stmp}, s{stmp}, 15")
    A(f"v_and_b32 v{vtmp}, 7, v1")
    A(f"v_cmp_eq_u32 s[{sdst_pair}:{sdst_pair+1}], s54, v{vtmp}")
    A(f"v_cmp_ne_u32 vcc, s{stmp}, v{vbits}")
    A(f"s_and_b64 vcc, vcc, s[{sdst_pair}:{sdst_pair+1}]")

ORD = opt("ord", 1)
def tile_of(A, i, dst):
    if i == 0: A(f"s_mov_b32 s{dst}, s15")
    elif ORD:
        A(f"s_cmp_le_u32 s15, {i-1}")
        A(f"s_cselect_b32 s{dst}, {i}, {i-1}")
    else:
        A(f"s_add_u32 s{dst}, s15, {i}")
        A(f"s_and_b32 s{dst}, s{dst}, 7")

def gen_kernel(A):
    A(f"{KN}:")
    A("s_cmp_ge_u32 s2, 256")
    A("s_cbranch_scc1 L_end")
    load_kernargs(A)
    tile_ids(A)
    A("v_and_b32 v1, 63, v0")
    A("v_lshrrev_b32 v2, 6, v0")
    A("s_and_b32 s15, s5, 7")
    A("v_readfirstlane_b32 s3, v2")
    A("s_cmp_ge_u32 s3, 4")
    A("s_cbranch_scc0 L_consumer")
    helper(A)
    A("L_consumer:")
    consumer(A)
    A("L_end:")
    A("s_endpgm")


def consumer(A):
    ACC = 64
    FA, FB = 128, 144
    AD, BD = 160, 168
    LAM, C2, MU, MU2, MU4, MU8 = 176, 178, 180, 182, 184, 186
    EL = 192
    UR2 = 224
    ST = Stamper(A, 0, 63)
    ST()
    A(f"s_setprio {opt('prio', 2)}")
    A("s_and_b32 s6, s3, 1")
    A("s_lshr_b32 s7, s3, 1")
    A("v_and_b32 v4, 31, v1")
    A("s_lshl_b32 s8, s5, 6")
    A("s_lshl_b32 s9, s7, 5")
    A("s_add_u32 s8, s8, s9")
    A("v_add_u32 v3, s8, v4")
    A("v_lshlrev_b32 v5, 1, v3")
    A("v_lshrrev_b32 v6, 5, v1")
    A("s_lshl_b32 s10, s4, 1")
    A("s_add_u32 s10, s10, s6")
    if "nocode" not in OPT:
        A("s_getpc_b64 s[12:13]")
        A("c_pc:")
        A(f"s_sub_u32 s12, s12, c_pc-{KN}")
        A("s_subb_u32 s13, s13, 0")
        A("s_lshl_b32 s11, s3, 14")
        A("v_lshl_add_u32 v24, v1, 7, s11")
        A("v_min_u32 v24, CODE_LAST, v24")
        A("global_load_dword v25, v24, s[12:13]")
        A("v_add_u32 v24, 0x2000, v24")
        A("v_min_u32 v24, CODE_LAST, v24")
        A("global_load_dword v26, v24, s[12:13]")
    A("s_waitcnt lgkmcnt(0)")
    A(f"global_load_ushort v8, v5, {sp('Lre')}")
    A(f"global_load_ushort v9, v5, {sp('Lim')}")
    A(f"global_load_ushort v10, v5, {sp('logdt')}")
    srd(A, 56, "ws", 256 << 10, WS_EBOX)
    srd(A, 60, "ws", 8 << 20, WS_H)
    srd(A, 64, "dbg", 256)
    srd(A, 68, "ws", FLG_SZ, WS_FLG)
    A("s_lshl_b32 s11, s10, 13")
    A("v_lshl_add_u32 v7, v3, 3, s11")
    A("v_mov_b32 v12, 0")
    A("v_mov_b32 v13, 0")
    A("buffer_store_dwordx2 v[12:13], v7, s[56:59], 0 offen sc1")
    A("s_lshl_b32 s11, s10, 4")
    A("s_add_u32 s11, s11, s5")
    A("s_lshl_b32 s11, s11, 1")
    A("s_add_u32 s11, s11, s7")
    A("s_lshl_b32 s11, s11, 7")
    A("v_mov_b32 v60, s11")
    A("buffer_store_dword v12, v60, s[68:71], 0 offen sc1")
    A("s_lshl_b32 s72, s4, 4")
    A("s_add_u32 s72, s72, s5")
    A("s_lshl_b32 s72, s72, 2")
    A("s_add_u32 s72, s72, s3")
    A("s_lshl_b32 s72, s72, 7")
    A(f"s_add_u32 s11, s72, {PF_OFF:#x}")
    A("v_mov_b32 v30, s11")
    A("buffer_store_dword v12, v30, s[68:71], 0 offen sc1")
    A("v_mov_b32 v23, 1")
    A("v_bfe_u32 v11, v1, 1, 3")
    A("v_xor_b32 v11, v11, v6")
    A("s_lshl_b32 s11, s6, 13")
    A("v_lshl_add_u32 v14, v4, 7, s11")
    A("s_lshl_b32 s11, s7, 12")
    A("s_add_u32 s11, s11, 16384")
    A("v_lshl_add_u32 v15, v4, 7, s11")
    for ks in range(4):
        A(f"v_xor_b32 v16, {2*ks}, v11")
        A(f"v_lshl_add_u32 v{AD+ks}, v16, 4, v14")
        A(f"v_lshl_add_u32 v{BD+ks}, v16, 4, v15")
        A(f"v_add_u32 v{AD+4+ks}, 0x10000, v{AD+ks}")
        A(f"v_add_u32 v{BD+4+ks}, 0x10000, v{BD+ks}")
    A("v_lshlrev_b32 v21, 2, v1")
    A("s_waitcnt vmcnt(0)")
    A("v_lshlrev_b32 v8, 16, v8")
    A("v_lshlrev_b32 v9, 16, v9")
    A("v_lshlrev_b32 v10, 16, v10")
    A("s_mov_b32 s12, 0x3fb8aa3b")
    A("v_mul_f32 v10, s12, v10")
    A("v_exp_f32 v10, v10")
    A("v_cvt_pk_bf16_f32 v10, v10, v10")
    A("v_lshlrev_b32 v10, 16, v10")
    A("v_mul_f32 v16, v10, v8")
    A("v_mul_f32 v17, v10, v9")
    A("v_mul_f32 v16, s12, v16")
    A("v_exp_f32 v16, v16")
    A("v_mul_f32 v17, 0.15915494, v17")
    A("v_rndne_f32 v18, v17")
    A("v_sub_f32 v17, v17, v18")
    A("v_cos_f32 v18, v17")
    A("v_sin_f32 v19, v17")
    A(f"v_mul_f32 v{LAM}, v16, v18")
    A(f"v_mul_f32 v{LAM+1}, v16, v19")
    A(f"v_add_f32 v16, -1.0, v{LAM}")
    A("v_mul_f32 v17, v8, v8")
    A("v_fma_f32 v17, v9, v9, v17")
    A("v_rcp_f32 v17, v17")
    A("v_mul_f32 v18, v16, v8")
    A(f"v_fma_f32 v18, v{LAM+1}, v9, v18")
    A(f"v_mul_f32 v19, v{LAM+1}, v8")
    A("v_fma_f32 v19, -v16, v9, v19")
    A("v_add_f32 v17, v17, v17")
    A(f"v_mul_f32 v{C2}, v18, v17")
    A(f"v_mul_f32 v{C2+1}, v19, v17")
    cmul(A, 16, LAM, LAM); cmul(A, 18, 16, 16); cmul(A, 16, 18, 18)
    cmul(A, MU, 16, 16); cmul(A, MU2, MU, MU); cmul(A, MU4, MU2, MU2); cmul(A, MU8, MU4, MU4)
    cmul(A, 48, C2, MU2)
    A("v_cmp_lt_u32 vcc, 31, v1")
    A(f"v_cndmask_b32 v48, v{C2}, v48, vcc")
    A(f"v_cndmask_b32 v49, v{C2+1}, v49, vcc")
    A("v_lshlrev_b32 v50, 13, v6")
    A("v_sub_u32 v50, v7, v50")
    A("s_add_u32 s11, s10, 1")
    A("v_sub_u32 v51, s11, v6")
    A("v_lshrrev_b32 v51, 1, v51")
    def rd(stage, ks, buf, which):
        slot = stage % 3
        hi = 4 if slot >= 2 else 0
        so = (slot & 1) * 32768
        if which < 2:
            return f"ds_read_b128 {vr(FA+buf*8+which*4,4)}, v{AD+hi+ks} offset:{so + which*4096}"
        ri = which - 2
        return f"ds_read_b128 {vr(FB+buf*8+ri*4,4)}, v{BD+hi+ks} offset:{so + ri*8192}"
    def mf(buf, mt, ri, first):
        acc = ACC + ri*32 + mt*16
        return f"v_mfma_f32_32x32x16_bf16 {vr(acc,16)}, {vr(FA+buf*8+mt*4,4)}, {vr(FB+buf*8+ri*4,4)}, {'0' if first else vr(acc,16)}"
    RD_ORDER = [0, 2, 1, 3]
    MF_ORDER = [(0,0), (1,0), (1,1), (0,1)]
    ST()
    A("s_barrier")
    ST()
    A("s_cmp_lg_u32 s3, 0")
    A("s_cbranch_scc1 c_noflag")
    A("s_lshr_b32 s11, s2, 6")
    A("s_lshl_b32 s11, 1, s11")
    A("s_getreg_b32 s12, hwreg(HW_REG_XCC_ID, 0, 4)")
    A("s_lshl_b32 s12, 0x100, s12")
    A("s_or_b32 s11, s11, s12")
    A("v_mov_b32 v16, s11")
    A("s_and_b32 s11, s2, 63")
    A("s_lshl_b32 s11, s11, 2")
    A("v_mov_b32 v17, s11")
    A("s_mov_b64 exec, 1")
    A("buffer_atomic_or v16, v17, s[64:67], 0 offen sc1")
    A("s_mov_b64 exec, -1")
    A("c_noflag:")
    for w in RD_ORDER: A(rd(0, 0, 0, w))
    for s in range(N1):
        for ks in range(4):
            buf = ks & 1
            last = (s == N1-1 and ks == 3)
            if ks == 3:
                A("s_waitcnt lgkmcnt(0)")
                A("s_barrier")
            ns, nks = (s, ks+1) if ks < 3 else (s+1, 0)
            for i in range(4):
                if ks < 3 and i < 3: A("s_waitcnt lgkmcnt(2)")
                A(mf(buf, *MF_ORDER[i], s == 0 and ks == 0))
                if not last: A(rd(ns, nks, buf ^ 1, RD_ORDER[i]))
            if (s in (3, 7, 11) if "fine1" not in OPT else s >= 3) and ks == 3: ST()
            if s == 12 and ks == 0:
                A("buffer_load_dword v20, v21, s[64:67], 0 offen sc1")
    ST()
    if "fine1" in OPT: ST.n = 40
    gen.SAFE_PK[0] = bool(opt("pk", 0) & 1)
    def UR(t): return ACC + (t >> 3)*16 + 2*(t & 7)
    def UI(t): return ACC + 32 + (t >> 3)*16 + 2*(t & 7)
    E = [(24, 26), (28, 30 - 30 + 44)]
    cr, ci = UR(0), UI(0)
    for t in range(1, 16):
        nr, ni = E[t & 1]
        A(pk("fma", nr, cr, LAM, UR(t), bsel=0))
        A(pk("fma", ni, ci, LAM, UI(t), bsel=0))
        A(pk("fma", nr, ci, LAM, nr, bsel=1, neg_b=True))
        A(pk("fma", ni, cr, LAM, ni, bsel=1))
        cr, ci = nr, ni
    A("v_mov_b32 v32, v28\nv_mov_b32 v33, v44\nv_mov_b32 v34, v29\nv_mov_b32 v35, v45")
    cmul(A, 36, MU, 32, add=34)
    A("v_mov_b32 v38, v36\nv_mov_b32 v39, v37\nv_mov_b32 v40, 0\nv_mov_b32 v41, 0")
    A("v_permlane32_swap_b32 v40, v38")
    A("v_permlane32_swap_b32 v41, v39")
    cmul(A, 42, MU2, 40, add=36)
    A("v_or_b32 v42, 1, v42")
    A("s_mov_b32 s12, 0")
    A("s_mov_b32 s13, -1")
    A("s_mov_b64 exec, s[12:13]")
    A("buffer_store_dwordx2 v[42:43], v7, s[56:59], 0 offen sc1")
    A("s_mov_b64 exec, -1")
    ST()
    for t in range(16):
        n = UR2 + 2*t
        A(pk("mul", n, UR(t), C2, bsel=0))
        A(pk("fma", n, UI(t), C2, n, bsel=1, neg_b=True))
        A(pk("mul", UI(t), UI(t), C2, bsel=0))
        A(pk("fma", UI(t), UR(t), C2, UI(t), bsel=1))
    cmul(A, 44, C2, 40)
    cmul(A, 46, C2, 32)
    for k in range(16):
        A(f"v_subrev_u32 v{128+k}, {(1+2*k)*8192:#x}, v50")
    ST()
    A("s_waitcnt vmcnt(1)")
    spin_all(A, "c_init", 52, "buffer_load_dword v20, v21, s[64:67], 0 offen sc1", "15", pre="v_and_b32 v52, 15, v20")
    local_check(A, 20, 52, 12, 11)
    A("s_cselect_b32 s14, 0, 1")
    if "nolocal" in OPT: A("s_mov_b32 s14, 0")
    for k in range(16):
        A(f"buffer_load_dwordx2 {vr(EL+2*k,2)}, v{128+k}, s[56:59], 0 offen sc1")
    BD2 = 32
    A("s_lshl_b32 s11, s3, 13")
    A("v_lshl_add_u32 v16, v6, 11, s11")
    A("v_lshl_add_u32 v16, v4, 6, v16")
    A("v_bfe_u32 v17, v1, 1, 2")
    for q in range(4):
        A(f"v_xor_b32 v18, {q}, v17")
        A(f"v_lshl_add_u32 v{64+q}, v18, 4, v16")
    A("v_mov_b32 v31, 1")
    A("v_bfe_u32 v16, v1, 2, 2")
    A("v_lshl_add_u32 v16, v6, 3, v16")
    A("v_and_b32 v24, 1, v1")
    A("v_bfe_u32 v18, v1, 4, 1")
    A("v_lshl_add_u32 v24, v24, 1, v18")
    A("v_bfe_u32 v18, v16, 1, 2")
    A("v_xor_b32 v24, v24, v18")
    A("v_lshlrev_b32 v24, 4, v24")
    A("v_lshl_add_u32 v24, v16, 6, v24")
    A("v_bfe_u32 v18, v1, 1, 1")
    A("v_lshl_add_u32 v24, v18, 3, v24")
    A("v_xor_b32 v25, 32, v24")
    A("v_add_u32 v25, 256, v25")
    A("v_add_u32 v68, s11, v24")
    A("v_add_u32 v69, s11, v25")
    A("s_lshl_b32 s11, s4, 7")
    A("s_lshl_b32 s12, s6, 6")
    A("s_add_u32 s11, s11, s12")
    A("s_and_b32 s12, s5, 7")
    A("s_lshl_b32 s12, s12, 2")
    A("s_add_u32 s11, s11, s12")
    A("s_add_u32 s11, s11, s7")
    A("s_lshl_b32 s11, s11, 12")
    A("s_lshr_b32 s13, s5, 3")
    A("s_lshl_b32 s13, s13, 11")
    A("s_add_u32 s11, s11, s13")
    A("v_lshl_add_u32 v72, v1, 4, s11")
    A(f"v_mov_b32 v20, {LFLAG:#x}")
    A("s_lshl_b32 s6, s4, 2")
    A("s_add_u32 s6, s6, s3")
    A("s_lshr_b32 s7, s3, 1")
    A("s_lshl_b32 s7, s7, 13")
    A("s_and_b32 s8, s3, 1")
    A("s_lshl_b32 s8, s8, 11")
    A("s_add_u32 s7, s7, s8")
    A("v_add_u32 v70, s7, v24")
    A("v_add_u32 v71, s7, v25")
    A("s_lshl_b32 s7, s6, 17")
    A("s_add_u32 s7, s7, s13")
    A("v_lshl_add_u32 v3, v1, 4, s7")
    A("v_add_u32 v2, 0x1000, v3")
    A(f"v_lshlrev_b32 v14, 7, v4")
    A(f"v_add_u32 v14, {CRING:#x}, v14")
    for ks in range(4):
        A(f"v_xor_b32 v16, {2*ks}, v11")
        A(f"v_lshl_add_u32 v{BD2+ks}, v16, 4, v14")
    A("s_lshr_b32 s7, s6, 1")
    A("s_lshl_b32 s7, s7, 12")
    A("s_add_u32 s7, s7, s13")
    A("v_bfe_u32 v16, v1, 1, 3")
    if ORD:
        A("v_subrev_u32 v14, 1, v16")
        A("v_cmp_le_u32 vcc, s15, v14")
        A("v_cndmask_b32 v14, v14, v16, vcc")
        A("v_mov_b32 v19, s15")
        A("v_cmp_eq_u32 vcc, 0, v16")
        A("v_cndmask_b32 v16, v14, v19, vcc")
    else:
        A("v_add_u32 v16, s15, v16")
        A("v_and_b32 v16, 7, v16")
    A("v_and_b32 v14, 1, v1")
    A("v_lshl_add_u32 v16, v16, 1, v14")
    A("v_lshl_add_u32 v22, v16, 7, s7")
    srd(A, 64, "ws", 8192, WS_G)
    srd(A, 76, "out", 8 << 20)
    srd(A, 92, "ws", 8 << 20, WS_PART)
    for i in range(8):
        A(f"s_mov_b32 s{80+i}, {i*4096}")
    A("s_lshl_b32 s7, s6, 5")
    A("v_lshl_add_u32 v7, v6, 4, s7")
    A("s_lshl_b32 s8, s5, 6")
    A("v_add_u32 v8, s8, v4")
    A("v_lshlrev_b32 v26, 12, v7")
    A("v_lshl_add_u32 v26, v8, 2, v26")
    A("v_add_u32 v27, 0x8000, v26")
    A("v_lshlrev_b32 v7, 2, v7")
    A("v_lshlrev_b32 v8, 1, v8")
    A("s_mul_i32 s8, s3, 4608")
    A(f"s_add_u32 s8, s8, {UREG}")
    A("v_lshlrev_b32 v61, 11, v6")
    A("v_lshl_add_u32 v61, v4, 1, v61")
    A("v_add_u32 v61, s8, v61")
    A("v_mul_u32_u24 v21, 272, v4")
    A("v_lshl_add_u32 v21, v6, 5, v21")
    A("s_lshl_b32 s8, s3, 6")
    A("v_add_u32 v21, s8, v21")
    A("s_xor_b32 s73, s72, 4096")
    A("s_lshl_b32 s74, s73, 6")
    A("s_add_u32 s75, s74, 4096")
    A(f"s_add_u32 s8, s73, {PF_OFF:#x}")
    A("v_mov_b32 v29, s8")
    A("v_lshlrev_b32 v28, 4, v1")
    A("v_mov_b32 v23, 1")
    A(f"s_mov_b32 s88, {SPIN}")
    A("c_poll:")
    A("s_waitcnt vmcnt(0)")
    A("v_mov_b32 v52, 0")
    for k in range(16):
        A(f"v_and_b32 v{144+k}, 1, v{EL+2*k}")
    for k in range(0, 16, 2):
        A(f"v_add3_u32 v52, v52, v{144+k}, v{145+k}")
    A("v_cmp_ne_u32 vcc, v52, v51")
    A("s_cmp_eq_u64 vcc, 0")
    A("s_cbranch_scc1 c_polled")
    A("s_sub_u32 s88, s88, 1")
    A("s_cbranch_scc1 c_polled")
    A(f"s_sleep {opt('psleep', SLEEP)}")
    for k in range(16):
        A(f"v_cmp_eq_u32 vcc, 0, v{144+k}")
        A("s_mov_b64 exec, vcc")
        A(f"buffer_load_dwordx2 {vr(EL+2*k,2)}, v{128+k}, s[56:59], 0 offen sc1")
        A("s_mov_b64 exec, -1")
    A("s_branch c_poll")
    A("c_polled:")
    ST()
    g = EL + 30
    G = [52, 54]
    for k in range(14, -1, -1):
        n = G[k & 1]
        A(pk("fma", n, g, MU8, EL+2*k, bsel=0))
        A(pk("fma", n, g, MU8, n, bsel=1, asel="swap", neg_lo=[1,0,0]))
        g = n
    A("v_mov_b32 v54, v52\nv_mov_b32 v55, v53\nv_mov_b32 v56, v52\nv_mov_b32 v57, v53")
    A("v_permlane32_swap_b32 v54, v56")
    A("v_permlane32_swap_b32 v55, v57")
    cmul(A, 58, MU4, 56, add=54)
    cmul(A, 52, 48, 58, add=44)
    cmul(A, 54, MU, 52, add=46)
    A("v_mov_b32 v56, v52\nv_mov_b32 v57, v54\nv_mov_b32 v58, v53\nv_mov_b32 v59, v55")
    cr, ci = 56, 58
    def packhalf(hf):
        for plane in range(2):
            for e in range(2):
                d = 128 + ((plane*2 + e)*2 + hf)*4
                for m in range(4):
                    t = hf*8 + 2*m
                    if plane == 0: A(f"v_cvt_pk_bf16_f32 v{d+m}, v{UR2+2*t+e}, v{UR2+2*(t+1)+e}")
                    else: A(f"v_cvt_pk_bf16_f32 v{d+m}, -v{UI(t)+e}, -v{UI(t+1)+e}")
                A(f"ds_write_b128 v{64+2*e+hf}, {vr(d,4)} offset:{plane*4096}")
    for t in range(16):
        nr, ni = UR2 + 2*t, UI(t)
        A(pk("fma", nr, cr, LAM, nr, bsel=0))
        A(pk("fma", ni, ci, LAM, ni, bsel=0))
        A(pk("fma", nr, ci, LAM, nr, bsel=1, neg_b=True))
        A(pk("fma", ni, cr, LAM, ni, bsel=1))
        cr, ci = nr, ni
        if t == 7: packhalf(0)
    packhalf(1)
    gen.SAFE_PK[0] = False
    ST()
    A("s_waitcnt lgkmcnt(0)")
    lds_inc(A, 20, 31, 12)
    AF = 160
    idx = 0
    for tblk in range(2):
        for plane in range(2):
            for ksl in range(2):
                d = AF + idx*4
                o = plane*4096 + tblk*2048 + ksl*1024
                A(f"ds_read_b64_tr_b16 {vr(d,2)}, v68 offset:{o}")
                A(f"ds_read_b64_tr_b16 {vr(d+2,2)}, v69 offset:{o}")
                idx += 1
    V = VQ(A)
    idx = 0
    for tblk in range(2):
        for plane in range(2):
            A(f"s_mov_b32 s12, {tblk*131072 + plane*8192:#x}")
            for ksl in range(2):
                d = AF + idx*4
                A(f"s_waitcnt lgkmcnt({min(15, 14 - 2*idx)})")
                V.issue(f"buffer_store_dwordx4 {vr(d,4)}, v72, s[60:63], s12 offen offset:{ksl*1024} sc1", "hst")
                idx += 1
    ACC2 = 96
    FB2 = 224
    GR = 36
    ST2 = Stamper(A, 1, 62)
    A(f"s_mov_b32 s89, {SPIN*4}")
    A("c_lw:")
    A("ds_read_b128 v[52:55], v20 offset:4")
    A("s_waitcnt lgkmcnt(0)")
    A("v_min_u32 v54, v54, v55")
    A("v_min_u32 v53, 1, v53")
    A("v_readfirstlane_b32 s8, v54")
    A("v_readfirstlane_b32 s9, v53")
    A("s_add_u32 s8, s8, s9")
    A("s_cmp_ge_u32 s8, 5")
    A("s_cbranch_scc1 c_lwok")
    A("s_sub_u32 s89, s89, 1")
    A("s_cbranch_scc0 c_lw")
    A("c_lwok:")
    L = LQ(A)
    for st in range(2):
        for ks in range(4):
            d = AF + (st*4 + ks)*4
            o = (ks >> 1)*16384 + st*4096 + (ks & 1)*1024
            L.issue(f"ds_read_b64_tr_b16 {vr(d,2)}, v70 offset:{o}")
            L.issue(f"ds_read_b64_tr_b16 {vr(d+2,2)}, v71 offset:{o}", ("A", st, ks))
    for q in range(4):
        V.issue(f"buffer_load_dwordx4 {vr(GR+q*4,4)}, v7, s[64:67], 0 offen offset:{q*16} sc1")
    for q in range(2):
        V.issue(f"global_load_ushort v{52+q}, v8, {sp('Dskip')} offset:{q*64}", "g")
    ST()
    HFL = "buffer_load_dword v19, v22, s[68:71], 0 offen sc1"
    slowp = []
    def need(i):
        m = ((1 << (2*i + 2)) - 1) & ~3
        name = f"c_n{len(slowp)}"
        A(f"s_and_b32 s88, s90, {m:#x}")
        A(f"s_cmp_eq_u32 s88, {m:#x}")
        A(f"s_cbranch_scc0 {name}_s")
        A(f"{name}:")
        slowp.append((name, m))
    alast = [None]
    def aload(st, ks):
        if alast[0] != st:
            alast[0] = st
            tile_of(A, st >> 1, 11)
            A("s_lshl_b32 s11, s11, 14")
            if st & 1: A("s_add_u32 s11, s11, 8192")
        r = AF + ((st % PD)*4 + ks)*4
        V.issue(f"buffer_load_dwordx4 {vr(r,4)}, v{3 if ks < 2 else 2}, s[60:63], s11 offen offset:{(ks & 1)*1024} sc1", ("A", st, ks))
    def rd2(st, ks, nt, slot):
        return f"ds_read_b128 {vr(FB2+slot*4,4)}, v{BD2+ks} offset:{(st % NS2)*16384 + nt*4096}"
    def mf2(st, ks, nt, slot):
        a = AF + ((st % PD)*4 + ks)*4
        c = vr(ACC2+nt*16, 16)
        return f"v_mfma_f32_32x32x16_bf16 {c}, {vr(a,4)}, {vr(FB2+slot*4,4)}, {'0' if (st == 0 and ks == 0) else c}"
    def await_(st, ks):
        if st < 2: L.wait(("A", st, ks))
        else: V.wait(("A", st, ks))
    ST2()
    for nt in range(4): L.issue(rd2(0, 0, nt, nt), (0, 0, nt))
    HFK = opt("hfk", 3)
    N1K = opt("n1k", 2)
    DIST = opt("dist", 3)
    assert DIST in (2, 3, 4)
    polls = [0]
    def hfpoll():
        polls[0] += 1
        V.issue(HFL, ("hf", polls[0]))
    def hfseen():
        V.wait(("hf", polls[0]))
        A("v_cmp_eq_u32 s[90:91], 1, v19")
    for st in range(N2 - 1):
        for ks in range(4):
            buf = ks & 1
            if ks == 3 and st >= 1: A("s_barrier")
            ns, nks = (st, ks+1) if ks < 3 else (st+1, 0)
            await_(st, ks)
            for nt in range(4):
                L.wait((st, ks, nt))
                A(mf2(st, ks, nt, buf*4 + nt))
                L.issue(rd2(ns, nks, nt, (buf ^ 1)*4 + nt), (ns, nks, nt))
            if st == 0 and ks == HFK:
                V.wait("hst")
                A("s_cmp_eq_u32 s14, 1")
                A("s_cbranch_scc1 c_hfs_l")
                A("buffer_store_dword v23, v60, s[68:71], 0 offen sc1")
                A("s_branch c_hfs_e")
                A("c_hfs_l:")
                A("buffer_store_dword v23, v60, s[68:71], 0 offen")
                A("c_hfs_e:")
                V.n += 1
                hfpoll()
                if "fine3" in OPT: ST2()
            if st == 1 and ks == N1K:
                if "fine3" in OPT: ST2()
                hfseen(); need(1)
                if "fine3" in OPT: ST2()
                for z in (2, 3):
                    for k2 in range(4): aload(z, k2)
                hfpoll()
            if st >= 2:
                if st == 2 and ks == 0:
                    if "fine3" in OPT: ST2()
                    hfseen(); need(2)
                    if "fine3" in OPT: ST2()
                    for z in range(4, 2 + DIST):
                        for k2 in range(4): aload(z, k2)
                    hfpoll()
                z = st + DIST
                if z < N2:
                    if ks == 0 and z % 2 == 0 and z // 2 >= 3:
                        if z // 2 == 3: hfseen()
                        if not (int(OPT.get("abl", 0)) & 2): need(z // 2)
                    aload(z, ks)
            if "fine3" in OPT:
                if st in (1, 2, 3, 4) and ks == 3: ST2()
                if st == 2 and ks == 0: ST2()
            elif (st % 2 == 1 if 'fine2' not in OPT else True) and ks == 3: ST2()
    st = N2 - 1
    slot = {(0, nt): nt for nt in range(4)}
    order = [(ks, nt) for ks in range(4) for nt in (0, 1)] + [(ks, nt) for ks in range(4) for nt in (2, 3)]
    pend = [x for x in order if x not in slot]
    free = [4, 5, 6]
    def fill():
        while pend and free:
            x = pend.pop(0); sl = free.pop(0); slot[x] = sl
            L.issue(rd2(st, x[0], x[1], sl), (st, x[0], x[1]))
    fill()
    pst = [f"buffer_store_dwordx4 {vr(ACC2+4*i,4)}, v28, s[92:95], s{74 if i < 4 else 75} offen offset:{(i & 3)*1024} sc1" for i in range(8)]
    for i, (ks, nt) in enumerate(order):
        V.wait(("A", st, ks))
        L.wait((st, ks, nt))
        A(mf2(st, ks, nt, slot[(ks, nt)]))
        free.append(slot[order[i-1]] if i else 7)
        fill()
        if i >= 10:
            for z in range(2 if i < 14 else 0):
                if pst: V.issue(pst.pop(0), "ps")
    while pst: V.issue(pst.pop(0), "ps")
    ST2()
    YR, OM, GF, XQ, T0, RV = 160, 176, 192, 64, 208, 160
    KEEP = ACC2 + 32
    PFL = "buffer_load_dword v19, v29, s[68:71], 0 offen sc1"
    A("s_mov_b32 s12, 0xffff0000")
    for nt in range(2):
        for r in range(16): A(f"ds_read_u16 v{XQ+nt*16+r}, v61 offset:{r*128+nt*64}")
    for nt in range(2):
        for hf in range(2): A(f"ds_read_b128 {vr(YR+nt*8+hf*4,4)}, v21 offset:{nt*32*272 + hf*16}")
    for r in range(16):
        A(f"v_lshlrev_b32 v{GF+r}, 16, v{GR+r}")
        A(f"v_and_b32 v{OM+r}, s12, v{GR+r}")
    A("v_lshlrev_b32 v52, 16, v52")
    A("v_lshlrev_b32 v53, 16, v53")
    A("s_waitcnt lgkmcnt(0)")
    PFG = opt("pfg", 2)
    gi = 0
    def pfstore():
        A("s_waitcnt vmcnt(0)")
        A("buffer_store_dword v23, v30, s[68:71], 0 offen sc1")
        A(PFL)
    for nt in range(2):
        for m0 in range(0, 8, 4):
            if gi == PFG: pfstore()
            gi += 1
            ch = []
            for m in range(m0, m0 + 4):
                b_ = T0 + (m & 3)*6
                yy, xd, tm = b_, b_ + 2, b_ + 4
                xf = XQ + nt*16 + 2*m; ka = KEEP + nt*16 + 2*m
                ch.append([f"v_lshlrev_b32 v{xf}, 16, v{xf}", f"v_lshlrev_b32 v{xf+1}, 16, v{xf+1}",
                           f"v_lshlrev_b32 v{yy}, 16, v{YR+nt*8+m}", f"v_and_b32 v{yy+1}, s12, v{YR+nt*8+m}",
                           f"v_mul_f32 v{xd}, v{xf}, v{52+nt}", f"v_mul_f32 v{xd+1}, v{xf+1}, v{52+nt}",
                           f"v_mul_f32 v{yy}, v{xf}, v{yy}", f"v_mul_f32 v{yy+1}, v{xf+1}, v{yy+1}",
                           f"v_cvt_pk_bf16_f32 v{tm}, v{xd}, v{xd+1}", f"v_cvt_pk_bf16_f32 v{tm+1}, v{yy}, v{yy+1}",
                           f"v_lshlrev_b32 v{xd}, 16, v{tm}", f"v_and_b32 v{xd+1}, s12, v{tm}",
                           f"v_lshlrev_b32 v{yy}, 16, v{tm+1}", f"v_and_b32 v{yy+1}, s12, v{tm+1}",
                           f"v_add_f32 v{ka}, v{ka}, v{xd}", f"v_add_f32 v{ka+1}, v{ka+1}, v{xd+1}",
                           f"v_mul_f32 v{yy}, v{yy}, v{OM+2*m}", f"v_mul_f32 v{yy+1}, v{yy+1}, v{OM+2*m+1}",
                           f"v_cvt_pk_bf16_f32 v{tm}, v{yy}, v{yy+1}", f"v_lshlrev_b32 v{yy}, 16, v{tm}", f"v_and_b32 v{yy+1}, s12, v{tm}",
                           f"v_fma_f32 v{ka}, v{ka}, v{GF+2*m}, v{yy}", f"v_fma_f32 v{ka+1}, v{ka+1}, v{GF+2*m+1}, v{yy+1}"])
            zip_chains(A, ch)
    if gi == PFG: pfstore()
    ST2()
    A("s_waitcnt vmcnt(0)")
    spin_all(A, "c_pf", 19, PFL)
    A("s_lshl_b32 s12, s72, 6")
    A("s_add_u32 s13, s12, 4096")
    for i in range(8):
        A(f"buffer_load_dwordx4 {vr(RV+4*i,4)}, v28, s[92:95], s{12 if i < 4 else 13} offen offset:{(i & 3)*1024} sc1")
    ST2()
    for nt in range(2):
        for r in range(16):
            i = (nt*16 + r) // 4
            if r % 4 == 0: A(f"s_waitcnt vmcnt({7 - i + nt*16 + r})")
            a = KEEP + nt*16 + r
            A(f"v_fma_f32 v{a}, v{RV+nt*16+r}, v{GF+r}, v{a}")
            A(f"buffer_store_dword v{a}, v{26 if r < 8 else 27}, s[76:79], s{80+(r&7)} offen offset:{nt*128} nt")
    ST2()
    if "leak" in OPT:
        i = int(OPT["leak"])
        A("s_cmp_lg_u32 s2, 8")
        A("s_cbranch_scc1 c_noleak")
        A("s_cmp_lg_u32 s3, 0")
        A("s_cbranch_scc1 c_noleak")
        A("v_readlane_b32 s8, v63, 0")
        A(f"v_readlane_b32 s9, v{63 if i < 100 else 62}, {i % 100}")
        A("s_sub_u32 s9, s9, s8")
        A("s_memrealtime s[10:11]")
        A("s_waitcnt lgkmcnt(0)")
        A("s_add_u32 s9, s9, s10")
        A("c_leak:")
        A("s_memrealtime s[10:11]")
        A("s_waitcnt lgkmcnt(0)")
        A("s_sub_u32 s12, s9, s10")
        A("s_cmp_gt_i32 s12, 0")
        A("s_cbranch_scc1 c_leak")
        A("c_noleak:")
    if "leak2" in OPT:
        X, i = str(OPT["leak2"]).split(":"); i = int(i)
        if X != "all":
            A(f"s_cmp_lg_u32 s2, {int(X)}")
            A("s_cbranch_scc1 c_noleak2")
        A("s_cmp_lg_u32 s3, 0")
        A("s_cbranch_scc1 c_noleak2")
        A(f"v_readlane_b32 s9, v{63 if i < 100 else 62}, {i % 100}")
        A("s_add_u32 s9, s9, 4000")
        A("c_leak2:")
        A("s_memrealtime s[10:11]")
        A("s_waitcnt lgkmcnt(0)")
        A("s_sub_u32 s12, s9, s10")
        A("s_cmp_gt_i32 s12, 0")
        A("s_cbranch_scc1 c_leak2")
        A("c_noleak2:")
    ST.flush()
    ST2.flush()
    A("s_endpgm")
    for name, m in slowp:
        A(f"{name}_s:")
        A(f"s_mov_b32 s89, {SPIN}")
        A(f"{name}_l:")
        A("s_waitcnt vmcnt(0)")
        A(HFL)
        A("s_waitcnt vmcnt(0)")
        A("v_cmp_eq_u32 s[90:91], 1, v19")
        A(f"s_and_b32 s88, s90, {m:#x}")
        A(f"s_cmp_eq_u32 s88, {m:#x}")
        A(f"s_cbranch_scc1 {name}")
        A("s_sub_u32 s89, s89, 1")
        A(f"s_cbranch_scc1 {name}")
        A(f"s_branch {name}_l")

def helper(A):
    V = VQ(A)
    VA, VB = 8, 12
    ST = Stamper(A, 0, 58)
    STH = Stamper(A, 1, 59)
    ST()
    if "hprio1" in OPT: A(f"s_setprio {OPT['hprio1']}")
    A("s_sub_u32 s3, s3, 4")
    A("s_lshr_b32 s6, s3, 1")
    A("s_and_b32 s7, s3, 1")
    A("v_lshrrev_b32 v3, 5, v1")
    A("v_lshlrev_b32 v3, 5, v3")
    A("v_bfe_u32 v4, v1, 3, 1")
    A("v_lshl_add_u32 v3, v4, 4, v3")
    A("v_bfe_u32 v4, v1, 4, 1")
    A("v_add_u32 v3, v3, v4")
    A("s_lshl_b32 s8, s4, 7")
    A("s_lshl_b32 s9, s6, 6")
    A("s_add_u32 s8, s8, s9")
    A("s_lshl_b32 s9, s7, 3")
    A("s_add_u32 s8, s8, s9")
    A("v_add_u32 v3, s8, v3")
    A("v_lshlrev_b32 v3, 11, v3")
    A("v_and_b32 v4, 7, v1")
    A("v_lshrrev_b32 v5, 4, v1")
    A("v_xor_b32 v4, v4, v5")
    A("v_lshlrev_b32 v4, 4, v4")
    A("v_xor_b32 v5, 64, v4")
    A("s_lshl_b32 s8, s5, 6")
    A("s_lshl_b32 s9, s7, 5")
    A("s_add_u32 s8, s8, s9")
    A("v_lshrrev_b32 v6, 3, v1")
    A("v_add_u32 v7, s8, v6")
    A("v_lshlrev_b32 v7, 11, v7")
    for n in range(4):
        c = 4 + (n & 1)
        A(f"v_add_u32 v{VA+n}, v3, v{c}")
        A(f"v_add_u32 v{VB+n}, v7, v{c}")
        if n:
            A(f"v_add_u32 v{VA+n}, {n*(4096-1024)}, v{VA+n}")
            A(f"v_add_u32 v{VB+n}, {n*(16384-1024)}, v{VB+n}")
    A("s_lshl_b32 s10, s3, 12")
    A("s_lshr_b32 s90, s55, 2")
    A("s_lshl_b32 s90, s90, 1")
    A("s_and_b32 s91, s55, 3")
    A("s_lshl_b32 s91, s91, 2")
    A("s_add_u32 s90, s90, s91")
    A("s_waitcnt lgkmcnt(0)")
    srd(A, 56, "x", 4 << 20)
    A("s_cmp_ge_u32 s3, 2")
    A(f"s_cselect_b32 s60, s{P['Bim']}, s{P['Bre']}")
    A(f"s_cselect_b32 s61, s{P['Bim']+1}, s{P['Bre']+1}")
    A(f"s_mov_b32 s62, {2<<20:#x}")
    A("s_mov_b32 s63, 0x20000")
    def issue(st, fill=0):
        slot = st % 3
        A(f"s_add_u32 s11, s90, {st}")
        A("s_and_b32 s11, s11, 15")
        A("s_lshl_b32 s11, s11, 7")
        A(f"s_add_u32 m0, s10, {slot*32768:#x}")
        for n in range(4):
            V.issue(f"buffer_load_dwordx4 v{VA+n}, s[56:59], s11 offen offset:{n*1024} lds")
            if fill: do_work(fill)
        A(f"s_add_u32 m0, s10, {slot*32768+16384:#x}")
        for n in range(4):
            V.issue(f"buffer_load_dwordx4 v{VB+n}, s[60:63], s11 offen offset:{n*1024} lds", ("S", st))
            if fill: do_work(fill)
    issue(0)
    VC = 28
    A("s_and_b32 s8, s5, 7")
    A("s_lshl_b32 s8, s8, 6")
    A("s_lshl_b32 s9, s3, 4")
    A("s_add_u32 s8, s8, s9")
    A("v_add_u32 v7, s8, v6")
    A("v_lshlrev_b32 v7, 11, v7")
    A(f"v_add_u32 v{VC}, v7, v4")
    A(f"v_add_u32 v{VC+1}, v7, v5")
    A(f"v_add_u32 v{VC+1}, {16384-1024}, v{VC+1}")
    A("s_and_b32 s12, s55, 1")
    A("s_lshl_b32 s13, s54, 1")
    A("s_add_u32 s12, s12, s13")
    A("s_lshr_b32 s13, s55, 1")
    A("s_lshl_b32 s8, s2, 7")
    A(f"s_add_u32 s8, s8, {KF_OFF:#x}")
    A("v_mov_b32 v30, s8")
    A("s_lshl_b32 s88, s54, 5")
    A("s_add_u32 s88, s88, s55")
    A("s_lshl_b32 s8, s88, 7")
    A(f"s_add_u32 s8, s8, {YF_OFF:#x}")
    A("v_mov_b32 v31, s8")
    A("s_lshl_b32 s88, s88, 2")
    A("s_add_u32 s88, s88, s3")
    A("v_mov_b32 v2, 0")
    srd(A, 92, "ws", FLG_SZ, WS_FLG)
    A("s_lshl_b32 s8, s88, 12")
    A(f"s_load_dword s100, {sp('ssmk')}, s8")
    A("s_lshr_b32 s8, s88, 1")
    A("s_lshl_b32 s8, s8, 2")
    A(f"s_load_dword s101, {sp('ssmD')}, s8")
    V.issue("buffer_store_dword v2, v30, s[92:95], 0 offen sc1")
    V.issue("buffer_store_dword v2, v31, s[92:95], 0 offen sc1", "clr")
    if opt("pl", 1) >= 0: issue(1)
    KR, VR_, SK = 32, 208, 68
    XG, GW = 72, 88
    A("s_lshl_b32 s13, s13, 7")
    A("s_lshl_b32 s14, s3, 5")
    A("s_add_u32 s13, s13, s14")
    A("v_and_b32 v17, 31, v1")
    A("s_lshl_b32 s14, s12, 5")
    A("v_add_u32 v17, s14, v17")
    A("v_lshlrev_b32 v22, 4, v17")
    A("v_and_b32 v23, 31, v1")
    A("v_mul_u32_u24 v23, 544, v23")
    A("v_lshrrev_b32 v24, 5, v1")
    A("v_lshlrev_b32 v24, 5, v24")
    A("v_sub_u32 v23, v23, v24")
    A("s_lshl_b32 s8, s3, 6")
    A(f"s_sub_u32 s8, {UREG+224}, s8")
    A("v_add_u32 v23, s8, v23")
    A("v_lshrrev_b32 v24, 4, v1")
    A("s_lshl_b32 s8, s3, 4")
    A("v_add_u32 v24, s8, v24")
    A("v_and_b32 v2, 15, v1")
    A("v_lshlrev_b32 v2, 4, v2")
    A("s_lshl_b32 s8, s12, 6")
    A("v_add_u32 v27, s8, v24")
    A("v_lshl_add_u32 v27, v27, 12, v2")
    A("s_lshr_b32 s8, s55, 1")
    A("s_lshl_b32 s8, s8, 8")
    A("s_sub_u32 s8, 3840, s8")
    A("v_add_u32 v27, s8, v27")
    A("v_mul_u32_u24 v24, 272, v24")
    A("v_add_u32 v24, v24, v2")
    A(f"v_add_u32 v24, {UREG:#x}, v24")
    A("s_lshl_b32 s14, s4, 7")
    A("s_lshl_b32 s8, s5, 3")
    A("s_add_u32 s14, s14, s8")
    A("s_lshl_b32 s8, s3, 1")
    A("s_add_u32 s14, s14, s8")
    A("s_lshl_b32 s8, s14, 11")
    A("v_lshlrev_b32 v25, 4, v1")
    A("v_add_u32 v26, s8, v25")
    A("v_add_u32 v3, 0x8000, v27")
    srd(A, 64, "k", 4 << 20)
    srd(A, 68, "v", 4 << 20)
    srd(A, 72, "ws", 4 << 20, WS_KVT)
    srd(A, 76, "ws", 8192, WS_G)
    for i in range(8):
        A(f"s_mov_b32 s{80+i}, {i*4096}")
    NTP = " nt" if "ntp" in OPT else ""
    A("v_lshrrev_b32 v19, 3, v1")
    A("v_add_u32 v19, s13, v19")
    A("v_lshlrev_b32 v19, 11, v19")
    A("v_and_b32 v20, 7, v1")
    A("v_lshl_add_u32 v19, v20, 4, v19")
    A("s_lshl_b32 s8, s12, 7")
    A("v_add_u32 v19, s8, v19")
    A("v_subrev_u32 v20, 16384, v19")
    A("v_lshrrev_b32 v21, 5, v1")
    A("v_lshlrev_b32 v21, 11, v21")
    A("v_and_b32 v18, 31, v1")
    A("v_lshl_add_u32 v21, v18, 2, v21")
    A("s_lshl_b32 s8, s3, 12")
    A(f"s_add_u32 s91, s8, {KREG}")
    A("v_add_u32 v21, s91, v21")
    def kvdma():
        A("s_add_u32 m0, s91, 16384")
        V.issue(f"buffer_load_dwordx4 v20, s[64:67], 0 offen{NTP} lds")
        for i in range(4):
            A(f"s_add_u32 m0, s91, {16384 + 1024*(i+1)}")
            A(f"s_mov_b32 s99, {i*16384}")
            V.issue(f"buffer_load_dwordx4 v19, s[64:67], s99 offen{NTP} lds")
        V.issue(f"global_load_dwordx4 {vr(SK,4)}, v22, {sp('shk')}", "k")
        for i in range(4):
            A(f"s_add_u32 m0, s91, {1024*i}")
            A(f"s_mov_b32 s99, {i*16384}")
            V.issue(f"buffer_load_dwordx4 v19, s[68:71], s99 offen{NTP} lds", "v")
    if opt("pl", 1) < 0:
        kvdma(); issue(1)
    gl = []
    for r in range(2):
        for hh in range(2): gl.append((f"buffer_load_dwordx4 {vr(XG+r*8+hh*4,4)}, v26, s[56:59], 0 offen offset:{r*2048+hh*1024}", None))
    for hh in range(2): gl.append((f"global_load_dwordx4 {vr(GW+hh*4,4)}, v25, {sp('gw')} offset:{hh*1024}", "gate"))
    KF = 96; SP = 136; OUT = 144
    work = []
    def W(x):
        if callable(x): work.append(x)
        else: work.extend(x.split("\n"))
    def rndW(pair, tmp):
        W(f"v_cvt_pk_bf16_f32 v{tmp}, v{pair}, v{pair+1}")
        W(f"v_lshlrev_b32 v{pair}, 16, v{tmp}")
        W(f"v_and_b32 v{pair+1}, s12, v{tmp}")
    W("s_mov_b32 s12, 0xffff0000")
    gate_begin = len(work)
    W(lambda: V.wait("gate"))
    for i in range(8):
        W(f"v_lshlrev_b32 v{96+2*i}, 16, v{GW+i}")
        W(f"v_and_b32 v{97+2*i}, s12, v{GW+i}")
    for r in range(2):
        acc = 112 + r
        W(f"v_mov_b32 v{acc}, 0")
        for i in range(8):
            W(f"v_lshlrev_b32 v116, 16, v{XG+r*8+i}")
            W(f"v_and_b32 v117, s12, v{XG+r*8+i}")
            W(pk("mul", 116, 116, 96+2*i))
            rndW(116, 118)
            W(f"v_add_f32 v{acc}, v{acc}, v116")
            W(f"v_add_f32 v{acc}, v{acc}, v117")
    for r in range(2):
        acc = 112 + r
        for sh in (1, 2, 4, 8):
            W(f"v_add_f32_dpp v{acc}, v{acc}, v{acc} row_shr:{sh} row_mask:0xf bank_mask:0xf bound_ctrl:0")
        W(f"v_add_f32_dpp v{acc}, v{acc}, v{acc} row_bcast:15 row_mask:0xa bank_mask:0xf")
        W(f"v_add_f32_dpp v{acc}, v{acc}, v{acc} row_bcast:31 row_mask:0xc bank_mask:0xf")
    for t in ["v_readlane_b32 s8, v112, 63", "v_readlane_b32 s9, v113, 63", "v_mov_b32 v116, s8", "v_mov_b32 v117, s9",
              "v_cmp_eq_u32 vcc, 1, v1", "v_cndmask_b32 v116, v116, v117, vcc", "v_cvt_pk_bf16_f32 v116, v116, v116",
              "v_lshlrev_b32 v116, 16, v116", "v_mul_f32 v116, 0xbfb8aa3b, v116", "v_exp_f32 v116, v116", "v_add_f32 v116, 1.0, v116",
              "v_rcp_f32 v116, v116", "v_cvt_pk_bf16_f32 v117, v116, v116", "v_lshlrev_b32 v116, 16, v117", "v_sub_f32 v118, 1.0, v116",
              "v_cvt_pk_bf16_f32 v116, v116, v118", "s_lshl_b32 s14, s14, 2", "v_lshl_add_u32 v117, v1, 2, s14"]:
        W(t)
    def gstore():
        A("s_mov_b64 exec, 3")
        V.issue("buffer_store_dword v116, v117, s[76:79], 0 offen sc1", "g")
        A("s_mov_b64 exec, -1")
    W(gstore)
    gate_end = len(work)
    W("KVSTART")
    W(lambda: V.wait("k"))
    for i in range(19):
        W(f"ds_read_b32 v{KR+i}, v21 offset:{16384 + (5+i)*128}")
        if i == 9: W("s_waitcnt lgkmcnt(0)")
    W("s_waitcnt lgkmcnt(0)")
    for i in range(19):
        W(f"v_lshlrev_b32 v{KF+2*i}, 16, v{KR+i}")
        W(f"v_and_b32 v{KF+2*i+1}, s12, v{KR+i}")
    for jx in range(4):
        for cc in range(2):
            src = SK + cc*2 + (jx >> 1)
            W(f"v_and_b32 v{SP+2*jx+cc}, s12, v{src}" if jx & 1 else f"v_lshlrev_b32 v{SP+2*jx+cc}, 16, v{src}")
    W(lambda: V.wait("v"))
    for i in range(16):
        W(f"ds_read_b32 v{VR_+i}, v21 offset:{i*128}")
        if i == 7: W("s_waitcnt lgkmcnt(0)")
    W("s_waitcnt lgkmcnt(0)")
    for t in range(16):
        vv = 176 + (t & 1)*2
        W(f"v_lshlrev_b32 v{vv}, 16, v{VR_+t}")
        W(f"v_and_b32 v{vv+1}, s12, v{VR_+t}")
        if opt("pk", 0) & 2:
            o = OUT + 2*t
            W(f"v_pk_mul_f32 {vr(o,2)}, {vr(KF+2*t,2)}, {vr(SP+6,2)}")
            for jx in (2, 1, 0): W(f"v_pk_fma_f32 {vr(o,2)}, {vr(KF+2*(t+3-jx),2)}, {vr(SP+2*jx,2)}, {vr(o,2)}")
            W(f"v_pk_mul_f32 {vr(o,2)}, {vr(o,2)}, {vr(vv,2)}")
            continue
        for cc in range(2): W(f"v_mul_f32 v{OUT+2*t+cc}, v{KF+2*t+cc}, v{SP+6+cc}")
        for jx in (2, 1, 0):
            for cc in range(2): W(f"v_fmac_f32 v{OUT+2*t+cc}, v{KF+2*(t+3-jx)+cc}, v{SP+2*jx+cc}")
        for cc in range(2): W(f"v_mul_f32 v{OUT+2*t+cc}, v{OUT+2*t+cc}, v{vv+cc}")
    for cc in range(2):
        for hf in range(2):
            d = 192 + (cc*2+hf)*4
            for m in range(4):
                mm = hf*4 + m
                W(f"v_cvt_pk_bf16_f32 v{d+m}, v{OUT+2*(15-2*mm)+cc}, v{OUT+2*(14-2*mm)+cc}")
            W(f"ds_write_b128 v23, {vr(d,4)} offset:{cc*272+hf*16}")
    W("s_waitcnt lgkmcnt(0)")
    W("BARRIER")
    for i in range(4): W(f"ds_read_b128 {vr(192+4*i,4)}, v24 offset:{i*4*272}")
    KVL = "nokvl" not in OPT
    def kvstores():
        def block(pol):
            for i in range(4):
                A(f"s_waitcnt lgkmcnt({3-i})")
                V.issue(f"buffer_store_dwordx4 {vr(192+4*i,4)}, v{27 if i < 2 else 3}, s[72:75], s{80+4*(i&1)} offen{pol}", "kvt")
        if not KVL:
            block(" sc1"); return
        V.wait("cls")
        local_check(A, 247, 246, 96, 98)
        A("s_cbranch_scc0 h_kvl")
        n0 = V.n
        block(" sc1")
        A("s_branch h_kve")
        A("h_kvl:")
        V.n = n0
        block("")
        A("h_kve:")
    W(kvstores)
    if "kvfirst" in OPT:
        gate_part = work[gate_begin:gate_end]
        del work[gate_begin:gate_end]
        work.extend(gate_part)
    wpos = [0]
    blocked = [False]
    cur = [0]
    PL = opt("pl", 1)
    KVW = PL + opt("kvd", 3)
    def do_work(n):
        while n > 0 and wpos[0] < len(work) and not blocked[0]:
            w = work[wpos[0]]
            wpos[0] += 1
            if w == "BARRIER":
                blocked[0] = True; return
            if w == "KVSTART":
                if cur[0] < KVW:
                    wpos[0] -= 1; return
                continue
            if callable(w): w()
            else: A(w)
            n -= 1
    PREP0 = opt("prep0", 1)
    UL = 40
    ACC = 64; BF = 96; AFR = 160; KD = 224
    def setup_conv(A):
        A("s_lshl_b32 s12, s88, 12")
        srd(A, 64, "ssmk", 4096, off_sreg=12)
        srd(A, 68, "ws", 4096, WS_KVT, off_sreg=12)
        A("s_mov_b32 s80, s100")
        A("s_mov_b32 s81, s101")
        A("v_and_b32 v37, 15, v1")
        A("s_lshr_b32 s8, s88, 6")
        A("s_and_b32 s8, s8, 1")
        A("s_lshl_b32 s8, s8, 3")
        A("s_add_u32 s8, s8, s54")
        A("v_lshl_add_u32 v32, v37, 4, s8")
        A("s_lshr_b32 s8, s4, 2")
        A("s_lshl_b32 s8, s8, 1")
        A("s_and_b32 s9, s4, 3")
        A("s_lshl_b32 s9, s9, 3")
        A("s_add_u32 s8, s8, s9")
        A("v_lshrrev_b32 v38, 3, v37")
        A("v_and_b32 v39, 7, v37")
        A("v_lshl_add_u32 v38, v39, 5, v38")
        A("v_add_u32 v38, s8, v38")
        A("v_and_b32 v39, 16, v1")
        A("v_cmp_ne_u32 vcc, 0, v39")
        A("v_cndmask_b32 v32, v32, v38, vcc")
        A("v_lshlrev_b32 v32, 7, v32")
        A(f"v_add_u32 v32, {KF_OFF:#x}, v32")
        A("v_lshlrev_b32 v33, 2, v1")
        srd(A, 76, "dbg", 256)
        A(f"s_mul_i32 s13, s3, 8320")
        A(f"s_add_u32 s13, s13, {KREG}")
        A(f"s_mul_i32 s82, s3, 4608")
        A(f"s_add_u32 s82, s82, {UREG}")
        A("v_add_u32 v36, 2, v25")
        A("v_and_b32 v38, 7, v1")
        A("v_lshlrev_b32 v38, 2, v38")
        A("v_bfe_u32 v39, v1, 3, 1")
        A("v_mul_u32_u24 v39, 4160, v39")
        A("v_add3_u32 v38, v38, v39, s13")
        A("s_lshl_b32 s80, s80, 16")
        A("v_mov_b32 v56, s80")
        A("v_cmp_eq_u32 vcc, 15, v37")
        A("v_cndmask_b32 v56, 0, v56, vcc")
        A("ds_write_b32 v38, v56")
        A("s_and_b32 s14, s88, 1")
        A("s_lshl_b32 s14, s14, 4")
        A("s_lshr_b32 s81, s81, s14")
        A("s_lshl_b32 s81, s81, 16")
        A(f"v_mov_b32 v60, {LFLAG:#x}")
        A("v_mov_b32 v61, 1")
    def setup_late(A):
        A("v_lshrrev_b32 v5, 4, v1")
        A("v_and_b32 v37, 15, v1")
        A("v_lshl_add_u32 v38, v5, 3, v37")
        A("v_lshlrev_b32 v38, 1, v38")
        A("v_and_b32 v39, 1, v1")
        A("v_mul_u32_u24 v39, 4158, v39")
        A("v_sub_u32 v38, v38, v39")
        A("s_add_u32 s14, s13, 4160")
        A("v_add_u32 v16, s14, v38")
        for i in range(1, 4): A(f"v_add_u32 v{16+i}, {1024*i}, v16")
        A("v_lshlrev_b32 v38, 5, v37")
        A("v_lshlrev_b32 v39, 4, v5")
        A("v_sub_u32 v20, v39, v38")
        A("s_add_u32 s14, s82, 480")
        A("v_add_u32 v20, s14, v20")
        A("v_lshl_add_u32 v39, v5, 3, v38")
        A("s_add_u32 s14, s82, 504")
        A("v_sub_u32 v21, s14, v39")
        A("v_and_b32 v39, 1, v5")
        A("v_lshl_add_u32 v22, v39, 9, v38")
        A("v_lshrrev_b32 v39, 1, v5")
        A("v_lshl_add_u32 v22, v39, 4, v22")
        A("v_add_u32 v23, s82, v25")
    setup_conv(W)
    print("prep work items", len(work))
    def cissue(st):
        tile_of(A, st >> 1, 11)
        A("s_lshl_b32 s11, s11, 7")
        sr_ = "s[56:59]" if st % 2 == 0 else "s[60:63]"
        A("s_add_u32 s99, s11, s91")
        A(f"s_add_u32 m0, s10, {(st % NS2)*16384:#x}")
        for n in range(2):
            V.issue(f"buffer_load_dwordx4 v{VC+n}, {sr_}, s99 offen offset:{n*1024} lds")
        A("s_add_u32 s11, s11, s90")
        A(f"s_add_u32 m0, s10, {(st % NS2)*16384 + 8192:#x}")
        for n in range(2):
            V.issue(f"buffer_load_dwordx4 v{VC+n}, {sr_}, s11 offen offset:{n*1024} lds", ("C", st))
    def uloads():
        for i in range(4): A(f"buffer_load_dwordx4 {vr(UL+4*i,4)}, v25, s[68:71], 0 offen offset:{i*1024} sc1")
    def ctouch():
        A("s_cmp_ge_u32 s3, 2")
        A(f"s_cselect_b32 s96, s{P['Cim']}, s{P['Cre']}")
        A(f"s_cselect_b32 s97, s{P['Cim']+1}, s{P['Cre']+1}")
        A("s_lshl_b32 s98, s2, 13")
        A("s_and_b32 s99, s3, 1")
        A("s_lshl_b32 s99, s99, 12")
        A("s_add_u32 s98, s98, s99")
        A("v_and_b32 v240, 31, v1")
        if "km" in OPT:
            A("s_add_u32 s96, s96, s98")
            A("s_addc_u32 s97, s97, 0")
            A("s_lshl_b32 s98, s88, 12")
            A(f"s_add_u32 s98, s{P['ssmk']}, s98")
            A(f"s_addc_u32 s99, s{P['ssmk']+1}, 0")
            A("v_mov_b32 v242, s96")
            A("v_mov_b32 v243, s97")
            A("v_mov_b32 v244, s98")
            A("v_mov_b32 v245, s99")
            A("v_cmp_lt_u32 s[96:97], 31, v1")
            A("v_cndmask_b32 v242, v242, v244, s[96:97]")
            A("v_cndmask_b32 v243, v243, v245, s[96:97]")
            A("v_lshlrev_b32 v240, 7, v240")
            A("v_add_co_u32 v242, s[96:97], v242, v240")
            A("v_addc_co_u32 v243, s[96:97], 0, v243, s[96:97]")
            V.issue("global_load_dword v241, v[242:243], off")
        else:
            A("v_lshl_add_u32 v240, v240, 7, s98")
            V.issue("global_load_dword v241, v240, s[96:97]")
    FILL = opt("fill", 10)
    kst = [None]
    KW = opt("kw", 2)
    CHK = opt("chk", 13)
    KFS = opt("kfs", 12)
    KDS = opt("kds", 11)
    UWS = opt("uws", 14)
    WEND = min(KFS, KDS, 12)
    CM = opt("cm", 6)
    assert CHK < UWS <= 15 and opt("lates", 14) <= UWS
    nU = [0]; cdone = [0]
    NC0 = opt("nc0", 2)
    A(f"v_mov_b32 v6, {LFLAG:#x}")
    A("v_mov_b32 v7, 0")
    for o in (4, 8, 12, 16): A(f"ds_write_b32 v6, v7 offset:{o}")
    ST()
    A("s_waitcnt lgkmcnt(0)")
    V.wait("clr")
    ST()
    A("s_barrier")
    issue(2)
    for t, tag in gl: V.issue(t, tag)
    for s in range(N1):
        V.wait(("S", min(s+1, N1-1)))
        if kst[0] is not None and s == min(kst[0] + KW, 15): V.wait("kvt"); V.wait("g")
        if "fine1" in OPT: STH()
        A("s_barrier")
        if kst[0] is not None and s == min(kst[0] + KW, 15):
            A("s_cmp_lg_u32 s3, 0")
            A("s_cbranch_scc1 h_kflag")
            A("v_mov_b32 v6, 1")
            A("buffer_store_dword v6, v30, s[92:95], 0 offen sc1")
            A("h_kflag:")
            print("k flag after barrier", s+1)
        blocked[0] = False
        cur[0] = s
        FM = opt("fmode", 0)
        fl = opt("fill0", FILL) if s < opt("fill0n", 0) else FILL
        if s+3 < N1 and FM == 0: issue(s+3, fl if s >= PREP0 else 0)
        elif s+3 < N1 and FM == 1:
            issue(s+3)
            if s >= PREP0: do_work(8*FILL)
        if s == PL - 100: pass
        if s == PL and PL >= 0: kvdma()
        if s == CM: ctouch()
        if KVL and s == opt("cls", 6):
            A("v_lshlrev_b32 v246, 2, v1")
            V.issue(f"global_load_dword v247, v246, {sp('dbg')} sc1", "cls")
        if kst[0] is None and "kvt" in V.tags and "g" in V.tags: kst[0] = s
        if s == WEND:
            do_work(10000)
            assert wpos[0] == len(work), (wpos[0], len(work))
        if s == KFS:
            V.issue("buffer_load_dword v34, v33, s[76:79], 0 offen sc1")
            V.issue("buffer_load_dword v35, v32, s[92:95], 0 offen sc1", "kf")
            ST()
        if s == KDS and KDS < CHK:
            V.wait("g")
            A("s_add_u32 m0, s13, 32")
            for i in range(4): V.issue(f"buffer_load_dwordx4 v25, s[64:67], 0 offen offset:{i*1024}{NTP} lds")
            A("s_add_u32 m0, s13, 4192")
            for i in range(4): V.issue(f"buffer_load_dwordx4 v36, s[64:67], 0 offen offset:{i*1024}{NTP} lds", "K")
        if s == 13:
            srd(A, 56, "Cre", 2 << 20)
            srd(A, 60, "Cim", 2 << 20)
            A("s_lshl_b32 s10, s3, 11")
            A(f"s_add_u32 s10, s10, {CRING:#x}")
            A("s_lshr_b32 s90, s5, 3")
            A("s_xor_b32 s91, s90, 1")
            A("s_lshl_b32 s91, s91, 20")
            A("s_lshl_b32 s11, s90, 10")
            A("s_add_u32 s91, s91, s11")
            A("s_mul_i32 s90, s90, 0x100400")
            A("v_mov_b32 v56, 0")
            A("v_mov_b32 v57, 0")
            A("v_lshlrev_b32 v38, 3, v1")
            A("v_add_u32 v38, s82, v38")
            A("ds_write_b64 v38, v[56:57] offset:4096")
            ST()
        if s == CHK:
            V.wait("kf")
            A("s_mov_b32 s83, 0")
            A("v_and_b32 v34, 15, v34")
            A("v_cmp_ne_u32 vcc, 15, v34")
            A("v_cmp_ne_u32 s[84:85], 1, v35")
            A("s_or_b64 vcc, vcc, s[84:85]")
            A("s_cbranch_scc1 h_nou")
            A("s_mov_b32 s83, 1")
            uloads()
            A("h_nou:")
            nU[0] = V.n
        if s == KDS and KDS >= CHK:
            V.wait("g")
            A("s_add_u32 m0, s13, 32")
            for i in range(4): V.issue(f"buffer_load_dwordx4 v25, s[64:67], 0 offen offset:{i*1024}{NTP} lds")
            A("s_add_u32 m0, s13, 4192")
            for i in range(4): V.issue(f"buffer_load_dwordx4 v36, s[64:67], 0 offen offset:{i*1024}{NTP} lds", "K")
        if s == opt("lates", 14): setup_late(A)
        if s == 15:
            for z in range(NC0): cissue(z)
            cdone[0] = NC0
        if s == UWS:
            A("s_cmp_lg_u32 s83, 1")
            A("s_cbranch_scc1 h_nouw")
            A(f"s_waitcnt vmcnt({V.n - nU[0]})")
            for i in range(4): A(f"ds_write_b128 v23, {vr(UL+4*i,4)} offset:{1024*i}")
            A("h_nouw:")
    ST()
    if "hprio1" in OPT: A("s_setprio 0")
    A("s_cmp_lg_u32 s83, 0")
    A("s_cbranch_scc1 h_haveu")
    spin_all(A, "h_init", 34, "buffer_load_dword v34, v33, s[76:79], 0 offen sc1", "15", pre="v_and_b32 v34, 15, v34")
    spin_all(A, "h_kf", 35, "buffer_load_dword v35, v32, s[92:95], 0 offen sc1")
    uloads()
    A("s_waitcnt vmcnt(0)")
    for i in range(4): A(f"ds_write_b128 v23, {vr(UL+4*i,4)} offset:{1024*i}")
    A("h_haveu:")
    V.done = max(V.done, nU[0])
    V.wait("K")
    lds_inc(A, 60, 61, 8)
    for i in range(4): A(f"s_mov_b32 s{84+i}, s{68+i}")
    srd(A, 68, "ws", 4 << 20, WS_KVT)
    A("s_waitcnt lgkmcnt(0)")
    ST()
    L = LQ(A)
    ops = []
    def reads(r):
        R = []
        s = r & 1
        for i in range(8):
            R.append((f"ds_read_b128 {vr(BF+s*32+i*4,4)}, v20 offset:{3584-512*i+64*r}", ("B", r, i)))
            o = 128*(i & 1) + 16*r
            d = AFR + s*32 + i*4
            R.append((f"ds_read2_b32 {vr(d,2)}, v{16+(i>>1)} offset0:{o} offset1:{o+1}", None))
            R.append((f"ds_read2_b32 {vr(d+2,2)}, v{16+(i>>1)} offset0:{o+2} offset1:{o+3}", ("A", r, i)))
        return R
    def first_order(R):
        return R[1:3] + [R[3*i] for i in range(8)] + [x for i in range(1, 8) for x in R[3*i+1:3*i+3]]
    KVT = 40
    for n in range(8): ops.append(("rd", f"ds_read_b64 {vr(KVT+2*n,2)}, v21 offset:{3584-512*n}", ("KV", n)))
    for t, tag in first_order(reads(0)): ops.append(("rd", t, tag))
    fill = []
    fill.append(("s_mov_b32 s12, 0xffff0000", None)); fill.append(("v_mov_b32 v26, s81", None))
    for n in range(8):
        k = KD + 4*n
        c = [f"v_and_b32 v{k}, s12, v{KVT+2*n+1}", f"v_lshlrev_b32 v{k+1}, 16, v{KVT+2*n+1}", f"v_and_b32 v{k+2}, s12, v{KVT+2*n}", f"v_lshlrev_b32 v{k+3}, 16, v{KVT+2*n}"]
        c += [f"v_mul_f32 v{k+i}, v{k+i}, v26" for i in range(4)]
        c += [f"v_cvt_pk_bf16_f32 v56, v{k}, v{k+1}", f"v_cvt_pk_bf16_f32 v57, v{k+2}, v{k+3}",
              f"v_lshlrev_b32 v{k}, 16, v56", f"v_and_b32 v{k+1}, s12, v56", f"v_lshlrev_b32 v{k+2}, 16, v57", f"v_and_b32 v{k+3}, s12, v57"]
        for i, t in enumerate(c): fill.append((t, ("KV", n) if i == 0 else None))
    YD = 40
    def post(n):
        y = ACC + 4*n; k = KD + 4*n
        d = YD + (n >> 1)*4 + (n & 1)*2
        c = [f"v_cvt_pk_bf16_f32 v56, v{y}, v{y+1}", f"v_cvt_pk_bf16_f32 v57, v{y+2}, v{y+3}",
             f"v_lshlrev_b32 v{y}, 16, v56", f"v_and_b32 v{y+1}, s12, v56", f"v_lshlrev_b32 v{y+2}, 16, v57", f"v_and_b32 v{y+3}, s12, v57"]
        c += [f"v_add_f32 v{k+i}, v{k+i}, v{y+i}" for i in range(4)]
        c += [f"v_cvt_pk_bf16_f32 v{d}, v{k}, v{k+1}", f"v_cvt_pk_bf16_f32 v{d+1}, v{k+2}, v{k+3}"]
        if n & 1:
            d = YD + (n >> 1)*4
            c += [f"v_permlane16_swap_b32 v{d}, v{d+2}", f"v_permlane16_swap_b32 v{d+1}, v{d+3}"]
        return c
    ystores = [f"buffer_store_dwordx4 {vr(YD+4*k,4)}, v22, s[84:87], 0 offen offset:{k*1024} sc1" for k in range(4)]
    LATEC = opt("latec", 200)
    CFM = opt("cfm", 80)
    FPM = opt("fpm", 2)
    nmf = 0
    postq = []
    for r in range(8):
        s = r & 1
        nxt = first_order(reads(r+1)) if r < 7 else []
        cnt = 0
        for q in range(8):
            for n in range(q, 8):
                c = vr(ACC+4*n, 4)
                ops.append(("mf", f"v_mfma_f32_16x16x32_bf16 {c}, {vr(AFR+s*32+4*q,4)}, {vr(BF+s*32+4*(n-q),4)}, {'0' if (r == 0 and q == 0) else c}",
                            [("A", r, q), ("B", r, n-q)]))
                nmf += 1; cnt += 1
                if nxt and cnt >= 2:
                    t, tag = nxt.pop(0); ops.append(("rd", t, tag))
                elif r < 7:
                    for z in range(FPM):
                        if fill: ops.append(("fill",) + fill.pop(0))
                if nmf == LATEC: ops.append(("latec",))
                if nmf == CFM: ops.append(("cf",))
                if r == 7:
                    if n == q: postq += [(nmf + 3, t) for t in post(n)]
                    for z in range(opt("ppm", 3)):
                        if postq and postq[0][0] <= nmf and q < 7: ops.append(("fill", postq.pop(0)[1], None))
        assert not nxt
    assert not fill and CFM < LATEC
    for _, t in postq: ops.append(("fill", t, None))
    for op in ops:
        if op[0] == "rd": L.issue(op[1], op[2])
        elif op[0] == "mf":
            for t in op[2]: pass
            k = max(op[2], key=lambda t: L.tags[t])
            L.wait(k)
            A(op[1])
        elif op[0] == "fill":
            if op[2] is not None: L.wait(op[2])
            A(op[1])
        elif op[0] == "latec":
            while cdone[0] < NS2: cissue(cdone[0]); cdone[0] += 1
        elif op[0] == "cf":
            while cdone[0] < 2: cissue(cdone[0]); cdone[0] += 1
            V.wait(("C", 1))
            lds_inc(A, 60, 61, 16); L.n += 1
    ST()
    YST = opt("yst", 0)
    if YST == 0:
        for t in ystores: V.issue(t, "y2")
    A("v_lshrrev_b32 v8, 4, v1")
    A("s_lshl_b32 s8, s3, 4")
    A("v_add_u32 v8, s8, v8")
    A("v_and_b32 v11, 15, v1")
    A("s_lshl_b32 s9, s5, 11")
    A(f"s_add_u32 s9, s9, {YF_OFF:#x}")
    A("v_lshl_add_u32 v10, v11, 7, s9")
    A("v_lshlrev_b32 v11, 4, v11")
    A("v_mul_u32_u24 v9, 272, v8")
    A("v_add_u32 v9, v9, v11")
    A("s_lshl_b32 s8, s5, 6")
    A("v_add_u32 v8, s8, v8")
    A("v_lshl_add_u32 v8, v8, 12, v11")
    A("s_lshl_b32 s8, s4, 8")
    A("v_add_u32 v8, s8, v8")
    srd(A, 64, "x", 4 << 20)
    A("s_lshl_b32 s8, s4, 2")
    A("s_add_u32 s8, s8, s3")
    A("s_lshl_b32 s8, s8, 5")
    A("v_lshrrev_b32 v12, 3, v1")
    A("v_add_u32 v12, s8, v12")
    A("v_lshlrev_b32 v12, 11, v12")
    A("v_and_b32 v11, 7, v1")
    A("v_lshl_add_u32 v12, v11, 4, v12")
    A("s_lshl_b32 s8, s5, 7")
    A("v_add_u32 v12, s8, v12")
    ST()
    YR = 116
    YFL_LD = "buffer_load_dword v19, v10, s[92:95], 0 offen sc1"
    YFL, GYF, GYL, GYW = opt("yfl", 5), opt("gyf", 8), opt("gyl", 10), opt("gyw", 12)
    XGS = opt("xgs", 7); XGW = opt("xgw", 10)
    assert XGS < XGW <= N2 - 2
    for st in range(1, N2-1):
        V.wait(("C", st+1))
        if st == XGW: V.wait("xt")
        if "fineh" in OPT: STH()
        A("s_barrier")
        if NS2 <= st + NS2 - 1 < N2: cissue(st + NS2 - 1)
        if "abl" in OPT and st >= 2 and st < 13 and int(OPT["abl"]) & 1:
            continue_ = True
            for tg in ("y2", "xt", "yf", "eps"): V.tags.setdefault(tg, 0)
            continue
        if YST and st == YST:
            for t in ystores: V.issue(t, "y2")
        if st == XGS:
            for i in range(4):
                A(f"s_add_u32 m0, s82, {i*1024}")
                A(f"s_mov_b32 s8, {i*16384}")
                V.issue("buffer_load_dwordx4 v12, s[64:67], s8 offen lds", "xt")
        if st == YFL:
            V.wait("y2")
            A("s_mov_b64 exec, 1")
            A("ds_add_rtn_u32 v62, v60, v61 offset:4")
            A("s_mov_b64 exec, -1")
            A("s_waitcnt lgkmcnt(0)")
            A("v_readfirstlane_b32 s83, v62")
            A("s_cmp_lg_u32 s83, 3")
            A("s_cbranch_scc1 h_noy")
            A("buffer_store_dword v61, v31, s[92:95], 0 offen sc1")
            A("h_noy:")
        if st == GYF: V.issue(YFL_LD, "yf")
        if st == GYL:
            V.wait("yf")
            spin_all(A, "h_yf", 19, YFL_LD)
            for i in range(4):
                A(f"s_mov_b32 s8, {i*16384}")
                V.issue(f"buffer_load_dwordx4 {vr(YR+i*4,4)}, v8, s[68:71], s8 offen sc1", "eps")
        if st == GYW:
            V.wait("eps")
            for i in range(4): A(f"ds_write_b128 v9, {vr(YR+i*4,4)} offset:{i*4*272}")
            A("s_waitcnt lgkmcnt(0)")
    assert YST < YFL < GYF < GYL < GYW <= N2 - 3
    STH.flush()
    ST.flush()
    A("s_endpgm")

def build():
    s = header_comments()
    s += "; generated by tools/gen9.py (fused single kernel, split-K GEMM2; gen8 h layout)\n"
    s += "; @launch grid=(256,1,1) block=(512,1,1) lds=163840\n"
    s += '.amdgcn_target "amdgcn-amd-amdhsa--gfx950"\n.text\n'
    A = Asm()
    A.raw(f".globl {KN}\n.p2align 8\n.type {KN},@function")
    gen_kernel(A)
    s += A.render()
    s += descriptor(KN, 256, 102)
    import subprocess, tempfile, re
    with tempfile.TemporaryDirectory() as td:
        open(td + "/a.s", "w").write(s.replace("CODE_LAST", "0x12345"))
        subprocess.run(["clang", "-x", "assembler", "-target", "amdgcn-amd-amdhsa", "-mcpu=gfx950", "-c", td + "/a.s", "-o", td + "/a.o"], check=True)
        o = subprocess.run(["llvm-objdump", "-h", td + "/a.o"], capture_output=True, text=True).stdout
    size = int(re.search(r"\.text\s+([0-9a-f]+)", o).group(1), 16)
    print("code bytes", size)
    assert size <= 65536
    return s.replace("CODE_LAST", hex(size - 4))

if __name__ == "__main__":
    out = sys.argv[1] if len(sys.argv) > 1 and not sys.argv[1].startswith("--") else os.path.join(os.path.dirname(os.path.abspath(__file__)), "..", NAME + ".s")
    open(out, "w").write(build())
    print("wrote", out)
```

```python
import sys, os
sys.path.insert(0, os.path.dirname(os.path.abspath(__file__)))
from asmlib import Asm
from gen import (NAME, P, sp, vr, sr, load_kernargs, srd, pk, cmul, tile_ids, Stamper, OPT, header_comments, descriptor)
import gen

KN = NAME + "_kernel"
WS_H    = 0
WS_KVT  = 8 << 20
WS_G    = 16 << 20
WS_EBOX = 17 << 20
WS_FLG  = 18 << 20
HF_OFF  = 0
KF_OFF  = 128 << 10
YF_OFF  = 160 << 10
PF_OFF  = 192 << 10
FLG_SZ  = 320 << 10
WS_PART = 24 << 20
N1 = 16
N2 = 16
NS2 = 4
PD = 4
CRING = 32768
KREG = 98304
UREG = KREG + 4*8320
LFLAG = UREG + 4*4608
SPIN = int(OPT.get("spin", 1 << 16))
SLEEP = int(OPT.get("sleep", 4))
def opt(k, d): return int(OPT.get(k, d))

class VQ:
    def __init__(self, A): self.A = A; self.n = 0; self.tags = {}; self.done = 0
    def issue(self, text, tag=None):
        self.A(text); self.n += 1
        if tag is not None: self.tags[tag] = self.n
    def wait(self, tag):
        k = self.tags[tag]
        if k <= self.done: return
        cnt = min(63, self.n - k)
        self.A(f"s_waitcnt vmcnt({cnt})"); self.done = self.n - cnt
    def drained(self): self.done = self.n

class LQ:
    def __init__(self, A): self.A = A; self.n = 0; self.tags = {}; self.done = 0
    def issue(self, text, tag=None):
        self.A(text); self.n += 1
        if tag is not None: self.tags[tag] = self.n
    def wait(self, tag):
        k = self.tags[tag]
        if k > self.done:
            self.A(f"s_waitcnt lgkmcnt({min(15, self.n - k)})"); self.done = max(k, self.n - 15)
    def drain(self):
        self.A("s_waitcnt lgkmcnt(0)"); self.done = self.n

def spin_all(A, name, vreg, reload, cmpval="1", sctr=89, pre=None):
    A(f"s_mov_b32 s{sctr}, {SPIN}")
    A(f"{name}_chk:")
    if pre: A(pre)
    A(f"v_cmp_ne_u32 vcc, {cmpval}, v{vreg}")
    A("s_cmp_eq_u64 vcc, 0")
    A(f"s_cbranch_scc1 {name}_ok")
    A(f"s_sub_u32 s{sctr}, s{sctr}, 1")
    A(f"s_cbranch_scc1 {name}_ok")
    A(f"s_sleep {SLEEP}")
    A(reload)
    A("s_waitcnt vmcnt(0)")
    A(f"s_branch {name}_chk")
    A(f"{name}_ok:")

def lds_spin(A, name, vaddr, off, vtmp, target, stmp=8, sctr=89):
    A(f"s_mov_b32 s{sctr}, {SPIN*4}")
    A(f"{name}:")
    A(f"ds_read_b32 v{vtmp}, v{vaddr} offset:{off}")
    A("s_waitcnt lgkmcnt(0)")
    A(f"v_readfirstlane_b32 s{stmp}, v{vtmp}")
    A(f"s_cmp_ge_u32 s{stmp}, {target}")
    A(f"s_cbranch_scc1 {name}_ok")
    A(f"s_sub_u32 s{sctr}, s{sctr}, 1")
    A(f"s_cbranch_scc0 {name}")
    A(f"{name}_ok:")

def lds_inc(A, vaddr, vone, off):
    A("s_mov_b64 exec, 1")
    A(f"ds_add_u32 v{vaddr}, v{vone} offset:{off}")
    A("s_mov_b64 exec, -1")

def zip_chains(A, chains):
    chains = [[x for t in c for x in t.split("\n")] for c in chains]
    for i in range(max(len(c) for c in chains)):
        for c in chains:
            if i < len(c): A(c[i])

def local_check(A, vbits, vtmp, sdst_pair, stmp):
    A(f"s_getreg_b32 s{stmp}, hwreg(HW_REG_XCC_ID, 0, 4)")
    A(f"s_lshl_b32 s{stmp}, 0x100, s{stmp}")
    A(f"s_or_b32 s{stmp}, s{stmp}, 15")
    A(f"v_and_b32 v{vtmp}, 7, v1")
    A(f"v_cmp_eq_u32 s[{sdst_pair}:{sdst_pair+1}], s54, v{vtmp}")
    A(f"v_cmp_ne_u32 vcc, s{stmp}, v{vbits}")
    A(f"s_and_b64 vcc, vcc, s[{sdst_pair}:{sdst_pair+1}]")

ORD = opt("ord", 1)
def tile_of(A, i, dst):
    if i == 0: A(f"s_mov_b32 s{dst}, s15")
    elif ORD:
        A(f"s_cmp_le_u32 s15, {i-1}")
        A(f"s_cselect_b32 s{dst}, {i}, {i-1}")
    else:
        A(f"s_add_u32 s{dst}, s15, {i}")
        A(f"s_and_b32 s{dst}, s{dst}, 7")

def gen_kernel(A):
    A(f"{KN}:")
    A("s_cmp_ge_u32 s2, 256")
    A("s_cbranch_scc1 L_end")
    load_kernargs(A)
    tile_ids(A)
    A("v_and_b32 v1, 63, v0")
    A("v_lshrrev_b32 v2, 6, v0")
    A("s_and_b32 s15, s5, 7")
    A("v_readfirstlane_b32 s3, v2")
    A("s_cmp_ge_u32 s3, 4")
    A("s_cbranch_scc0 L_consumer")
    helper(A)
    A("L_consumer:")
    consumer(A)
    A("L_end:")
    A("s_endpgm")


def consumer(A):
    ACC = 64
    FA, FB = 128, 144
    AD, BD = 160, 168
    LAM, C2, MU, MU2, MU4, MU8 = 176, 178, 180, 182, 184, 186
    EL = 192
    UR2 = 224
    ST = Stamper(A, 0, 63)
    ST()
    A(f"s_setprio {opt('prio', 2)}")
    A("s_and_b32 s6, s3, 1")
    A("s_lshr_b32 s7, s3, 1")
    A("v_and_b32 v4, 31, v1")
    A("s_lshl_b32 s8, s5, 6")
    A("s_lshl_b32 s9, s7, 5")
    A("s_add_u32 s8, s8, s9")
    A("v_add_u32 v3, s8, v4")
    A("v_lshlrev_b32 v5, 1, v3")
    A("v_lshrrev_b32 v6, 5, v1")
    A("s_lshl_b32 s10, s4, 1")
    A("s_add_u32 s10, s10, s6")
    if "nocode" not in OPT:
        A("s_getpc_b64 s[12:13]")
        A("c_pc:")
        A(f"s_sub_u32 s12, s12, c_pc-{KN}")
        A("s_subb_u32 s13, s13, 0")
        A("s_lshl_b32 s11, s3, 14")
        A("v_lshl_add_u32 v24, v1, 7, s11")
        A("v_min_u32 v24, CODE_LAST, v24")
        A("global_load_dword v25, v24, s[12:13]")
        A("v_add_u32 v24, 0x2000, v24")
        A("v_min_u32 v24, CODE_LAST, v24")
        A("global_load_dword v26, v24, s[12:13]")
    A("s_waitcnt lgkmcnt(0)")
    A(f"global_load_ushort v8, v5, {sp('Lre')}")
    A(f"global_load_ushort v9, v5, {sp('Lim')}")
    A(f"global_load_ushort v10, v5, {sp('logdt')}")
    srd(A, 56, "ws", 256 << 10, WS_EBOX)
    srd(A, 60, "ws", 8 << 20, WS_H)
    srd(A, 64, "dbg", 256)
    srd(A, 68, "ws", FLG_SZ, WS_FLG)
    A("s_lshl_b32 s11, s10, 13")
    A("v_lshl_add_u32 v7, v3, 3, s11")
    A("v_mov_b32 v12, 0")
    A("v_mov_b32 v13, 0")
    A("buffer_store_dwordx2 v[12:13], v7, s[56:59], 0 offen sc1")
    A("s_lshl_b32 s11, s10, 4")
    A("s_add_u32 s11, s11, s5")
    A("s_lshl_b32 s11, s11, 1")
    A("s_add_u32 s11, s11, s7")
    A("s_lshl_b32 s11, s11, 7")
    A("v_mov_b32 v60, s11")
    A("buffer_store_dword v12, v60, s[68:71], 0 offen sc1")
    A("s_lshl_b32 s72, s4, 4")
    A("s_add_u32 s72, s72, s5")
    A("s_lshl_b32 s72, s72, 2")
    A("s_add_u32 s72, s72, s3")
    A("s_lshl_b32 s72, s72, 7")
    A(f"s_add_u32 s11, s72, {PF_OFF:#x}")
    A("v_mov_b32 v30, s11")
    A("buffer_store_dword v12, v30, s[68:71], 0 offen sc1")
    A("v_mov_b32 v23, 1")
    A("v_bfe_u32 v11, v1, 1, 3")
    A("v_xor_b32 v11, v11, v6")
    A("s_lshl_b32 s11, s6, 13")
    A("v_lshl_add_u32 v14, v4, 7, s11")
    A("s_lshl_b32 s11, s7, 12")
    A("s_add_u32 s11, s11, 16384")
    A("v_lshl_add_u32 v15, v4, 7, s11")
    for ks in range(4):
        A(f"v_xor_b32 v16, {2*ks}, v11")
        A(f"v_lshl_add_u32 v{AD+ks}, v16, 4, v14")
        A(f"v_lshl_add_u32 v{BD+ks}, v16, 4, v15")
        A(f"v_add_u32 v{AD+4+ks}, 0x10000, v{AD+ks}")
        A(f"v_add_u32 v{BD+4+ks}, 0x10000, v{BD+ks}")
    A("v_lshlrev_b32 v21, 2, v1")
    A("s_waitcnt vmcnt(0)")
    A("v_lshlrev_b32 v8, 16, v8")
    A("v_lshlrev_b32 v9, 16, v9")
    A("v_lshlrev_b32 v10, 16, v10")
    A("s_mov_b32 s12, 0x3fb8aa3b")
    A("v_mul_f32 v10, s12, v10")
    A("v_exp_f32 v10, v10")
    A("v_cvt_pk_bf16_f32 v10, v10, v10")
    A("v_lshlrev_b32 v10, 16, v10")
    A("v_mul_f32 v16, v10, v8")
    A("v_mul_f32 v17, v10, v9")
    A("v_mul_f32 v16, s12, v16")
    A("v_exp_f32 v16, v16")
    A("v_mul_f32 v17, 0.15915494, v17")
    A("v_rndne_f32 v18, v17")
    A("v_sub_f32 v17, v17, v18")
    A("v_cos_f32 v18, v17")
    A("v_sin_f32 v19, v17")
    A(f"v_mul_f32 v{LAM}, v16, v18")
    A(f"v_mul_f32 v{LAM+1}, v16, v19")
    A(f"v_add_f32 v16, -1.0, v{LAM}")
    A("v_mul_f32 v17, v8, v8")
    A("v_fma_f32 v17, v9, v9, v17")
    A("v_rcp_f32 v17, v17")
    A("v_mul_f32 v18, v16, v8")
    A(f"v_fma_f32 v18, v{LAM+1}, v9, v18")
    A(f"v_mul_f32 v19, v{LAM+1}, v8")
    A("v_fma_f32 v19, -v16, v9, v19")
    A("v_add_f32 v17, v17, v17")
    A(f"v_mul_f32 v{C2}, v18, v17")
    A(f"v_mul_f32 v{C2+1}, v19, v17")
    cmul(A, 16, LAM, LAM); cmul(A, 18, 16, 16); cmul(A, 16, 18, 18)
    cmul(A, MU, 16, 16); cmul(A, MU2, MU, MU); cmul(A, MU4, MU2, MU2); cmul(A, MU8, MU4, MU4)
    cmul(A, 48, C2, MU2)
    A("v_cmp_lt_u32 vcc, 31, v1")
    A(f"v_cndmask_b32 v48, v{C2}, v48, vcc")
    A(f"v_cndmask_b32 v49, v{C2+1}, v49, vcc")
    A("v_lshlrev_b32 v50, 13, v6")
    A("v_sub_u32 v50, v7, v50")
    A("s_add_u32 s11, s10, 1")
    A("v_sub_u32 v51, s11, v6")
    A("v_lshrrev_b32 v51, 1, v51")
    def rd(stage, ks, buf, which):
        slot = stage % 3
        hi = 4 if slot >= 2 else 0
        so = (slot & 1) * 32768
        if which < 2:
            return f"ds_read_b128 {vr(FA+buf*8+which*4,4)}, v{AD+hi+ks} offset:{so + which*4096}"
        ri = which - 2
        return f"ds_read_b128 {vr(FB+buf*8+ri*4,4)}, v{BD+hi+ks} offset:{so + ri*8192}"
    def mf(buf, mt, ri, first):
        acc = ACC + ri*32 + mt*16
        return f"v_mfma_f32_32x32x16_bf16 {vr(acc,16)}, {vr(FA+buf*8+mt*4,4)}, {vr(FB+buf*8+ri*4,4)}, {'0' if first else vr(acc,16)}"
    RD_ORDER = [0, 2, 1, 3]
    MF_ORDER = [(0,0), (1,0), (1,1), (0,1)]
    ST()
    A("s_barrier")
    ST()
    A("s_cmp_lg_u32 s3, 0")
    A("s_cbranch_scc1 c_noflag")
    A("s_lshr_b32 s11, s2, 6")
    A("s_lshl_b32 s11, 1, s11")
    A("s_getreg_b32 s12, hwreg(HW_REG_XCC_ID, 0, 4)")
    A("s_lshl_b32 s12, 0x100, s12")
    A("s_or_b32 s11, s11, s12")
    A("v_mov_b32 v16, s11")
    A("s_and_b32 s11, s2, 63")
    A("s_lshl_b32 s11, s11, 2")
    A("v_mov_b32 v17, s11")
    A("s_mov_b64 exec, 1")
    A("buffer_atomic_or v16, v17, s[64:67], 0 offen sc1")
    A("s_mov_b64 exec, -1")
    A("c_noflag:")
    for w in RD_ORDER: A(rd(0, 0, 0, w))
    for s in range(N1):
        for ks in range(4):
            buf = ks & 1
            last = (s == N1-1 and ks == 3)
            if ks == 3:
                A("s_waitcnt lgkmcnt(0)")
                A("s_barrier")
            ns, nks = (s, ks+1) if ks < 3 else (s+1, 0)
            for i in range(4):
                if ks < 3 and i < 3: A("s_waitcnt lgkmcnt(2)")
                A(mf(buf, *MF_ORDER[i], s == 0 and ks == 0))
                if not last: A(rd(ns, nks, buf ^ 1, RD_ORDER[i]))
            if (s in (3, 7, 11) if "fine1" not in OPT else s >= 3) and ks == 3: ST()
            if s == 12 and ks == 0:
                A("buffer_load_dword v20, v21, s[64:67], 0 offen sc1")
    ST()
    if "fine1" in OPT: ST.n = 40
    gen.SAFE_PK[0] = bool(opt("pk", 0) & 1)
    def UR(t): return ACC + (t >> 3)*16 + 2*(t & 7)
    def UI(t): return ACC + 32 + (t >> 3)*16 + 2*(t & 7)
    E = [(24, 26), (28, 30 - 30 + 44)]
    cr, ci = UR(0), UI(0)
    for t in range(1, 16):
        nr, ni = E[t & 1]
        A(pk("fma", nr, cr, LAM, UR(t), bsel=0))
        A(pk("fma", ni, ci, LAM, UI(t), bsel=0))
        A(pk("fma", nr, ci, LAM, nr, bsel=1, neg_b=True))
        A(pk("fma", ni, cr, LAM, ni, bsel=1))
        cr, ci = nr, ni
    A("v_mov_b32 v32, v28\nv_mov_b32 v33, v44\nv_mov_b32 v34, v29\nv_mov_b32 v35, v45")
    cmul(A, 36, MU, 32, add=34)
    A("v_mov_b32 v38, v36\nv_mov_b32 v39, v37\nv_mov_b32 v40, 0\nv_mov_b32 v41, 0")
    A("v_permlane32_swap_b32 v40, v38")
    A("v_permlane32_swap_b32 v41, v39")
    cmul(A, 42, MU2, 40, add=36)
    A("v_or_b32 v42, 1, v42")
    A("s_mov_b32 s12, 0")
    A("s_mov_b32 s13, -1")
    A("s_mov_b64 exec, s[12:13]")
    A("buffer_store_dwordx2 v[42:43], v7, s[56:59], 0 offen sc1")
    A("s_mov_b64 exec, -1")
    ST()
    for t in range(16):
        n = UR2 + 2*t
        A(pk("mul", n, UR(t), C2, bsel=0))
        A(pk("fma", n, UI(t), C2, n, bsel=1, neg_b=True))
        A(pk("mul", UI(t), UI(t), C2, bsel=0))
        A(pk("fma", UI(t), UR(t), C2, UI(t), bsel=1))
    cmul(A, 44, C2, 40)
    cmul(A, 46, C2, 32)
    for k in range(16):
        A(f"v_subrev_u32 v{128+k}, {(1+2*k)*8192:#x}, v50")
    ST()
    A("s_waitcnt vmcnt(1)")
    spin_all(A, "c_init", 52, "buffer_load_dword v20, v21, s[64:67], 0 offen sc1", "15", pre="v_and_b32 v52, 15, v20")
    local_check(A, 20, 52, 12, 11)
    A("s_cselect_b32 s14, 0, 1")
    if "nolocal" in OPT: A("s_mov_b32 s14, 0")
    for k in range(16):
        A(f"buffer_load_dwordx2 {vr(EL+2*k,2)}, v{128+k}, s[56:59], 0 offen sc1")
    BD2 = 32
    A("s_lshl_b32 s11, s3, 13")
    A("v_lshl_add_u32 v16, v6, 11, s11")
    A("v_lshl_add_u32 v16, v4, 6, v16")
    A("v_bfe_u32 v17, v1, 1, 2")
    for q in range(4):
        A(f"v_xor_b32 v18, {q}, v17")
        A(f"v_lshl_add_u32 v{64+q}, v18, 4, v16")
    A("v_mov_b32 v31, 1")
    A("v_bfe_u32 v16, v1, 2, 2")
    A("v_lshl_add_u32 v16, v6, 3, v16")
    A("v_and_b32 v24, 1, v1")
    A("v_bfe_u32 v18, v1, 4, 1")
    A("v_lshl_add_u32 v24, v24, 1, v18")
    A("v_bfe_u32 v18, v16, 1, 2")
    A("v_xor_b32 v24, v24, v18")
    A("v_lshlrev_b32 v24, 4, v24")
    A("v_lshl_add_u32 v24, v16, 6, v24")
    A("v_bfe_u32 v18, v1, 1, 1")
    A("v_lshl_add_u32 v24, v18, 3, v24")
    A("v_xor_b32 v25, 32, v24")
    A("v_add_u32 v25, 256, v25")
    A("v_add_u32 v68, s11, v24")
    A("v_add_u32 v69, s11, v25")
    A("s_lshl_b32 s11, s4, 7")
    A("s_lshl_b32 s12, s6, 6")
    A("s_add_u32 s11, s11, s12")
    A("s_and_b32 s12, s5, 7")
    A("s_lshl_b32 s12, s12, 2")
    A("s_add_u32 s11, s11, s12")
    A("s_add_u32 s11, s11, s7")
    A("s_lshl_b32 s11, s11, 12")
    A("s_lshr_b32 s13, s5, 3")
    A("s_lshl_b32 s13, s13, 11")
    A("s_add_u32 s11, s11, s13")
    A("v_lshl_add_u32 v72, v1, 4, s11")
    A(f"v_mov_b32 v20, {LFLAG:#x}")
    A("s_lshl_b32 s6, s4, 2")
    A("s_add_u32 s6, s6, s3")
    A("s_lshr_b32 s7, s3, 1")
    A("s_lshl_b32 s7, s7, 13")
    A("s_and_b32 s8, s3, 1")
    A("s_lshl_b32 s8, s8, 11")
    A("s_add_u32 s7, s7, s8")
    A("v_add_u32 v70, s7, v24")
    A("v_add_u32 v71, s7, v25")
    A("s_lshl_b32 s7, s6, 17")
    A("s_add_u32 s7, s7, s13")
    A("v_lshl_add_u32 v3, v1, 4, s7")
    A("v_add_u32 v2, 0x1000, v3")
    A(f"v_lshlrev_b32 v14, 7, v4")
    A(f"v_add_u32 v14, {CRING:#x}, v14")
    for ks in range(4):
        A(f"v_xor_b32 v16, {2*ks}, v11")
        A(f"v_lshl_add_u32 v{BD2+ks}, v16, 4, v14")
    A("s_lshr_b32 s7, s6, 1")
    A("s_lshl_b32 s7, s7, 12")
    A("s_add_u32 s7, s7, s13")
    A("v_bfe_u32 v16, v1, 1, 3")
    if ORD:
        A("v_subrev_u32 v14, 1, v16")
        A("v_cmp_le_u32 vcc, s15, v14")
        A("v_cndmask_b32 v14, v14, v16, vcc")
        A("v_mov_b32 v19, s15")
        A("v_cmp_eq_u32 vcc, 0, v16")
        A("v_cndmask_b32 v16, v14, v19, vcc")
    else:
        A("v_add_u32 v16, s15, v16")
        A("v_and_b32 v16, 7, v16")
    A("v_and_b32 v14, 1, v1")
    A("v_lshl_add_u32 v16, v16, 1, v14")
    A("v_lshl_add_u32 v22, v16, 7, s7")
    srd(A, 64, "ws", 8192, WS_G)
    srd(A, 76, "out", 8 << 20)
    srd(A, 92, "ws", 8 << 20, WS_PART)
    for i in range(8):
        A(f"s_mov_b32 s{80+i}, {i*4096}")
    A("s_lshl_b32 s7, s6, 5")
    A("v_lshl_add_u32 v7, v6, 4, s7")
    A("s_lshl_b32 s8, s5, 6")
    A("v_add_u32 v8, s8, v4")
    A("v_lshlrev_b32 v26, 12, v7")
    A("v_lshl_add_u32 v26, v8, 2, v26")
    A("v_add_u32 v27, 0x8000, v26")
    A("v_lshlrev_b32 v7, 2, v7")
    A("v_lshlrev_b32 v8, 1, v8")
    A("s_mul_i32 s8, s3, 4608")
    A(f"s_add_u32 s8, s8, {UREG}")
    A("v_lshlrev_b32 v61, 11, v6")
    A("v_lshl_add_u32 v61, v4, 1, v61")
    A("v_add_u32 v61, s8, v61")
    A("v_mul_u32_u24 v21, 272, v4")
    A("v_lshl_add_u32 v21, v6, 5, v21")
    A("s_lshl_b32 s8, s3, 6")
    A("v_add_u32 v21, s8, v21")
    A("s_xor_b32 s73, s72, 4096")
    A("s_lshl_b32 s74, s73, 6")
    A("s_add_u32 s75, s74, 4096")
    A(f"s_add_u32 s8, s73, {PF_OFF:#x}")
    A("v_mov_b32 v29, s8")
    A("v_lshlrev_b32 v28, 4, v1")
    A("v_mov_b32 v23, 1")
    A(f"s_mov_b32 s88, {SPIN}")
    A("c_poll:")
    A("s_waitcnt vmcnt(0)")
    A("v_mov_b32 v52, 0")
    for k in range(16):
        A(f"v_and_b32 v{144+k}, 1, v{EL+2*k}")
    for k in range(0, 16, 2):
        A(f"v_add3_u32 v52, v52, v{144+k}, v{145+k}")
    A("v_cmp_ne_u32 vcc, v52, v51")
    A("s_cmp_eq_u64 vcc, 0")
    A("s_cbranch_scc1 c_polled")
    A("s_sub_u32 s88, s88, 1")
    A("s_cbranch_scc1 c_polled")
    A(f"s_sleep {opt('psleep', SLEEP)}")
    for k in range(16):
        A(f"v_cmp_eq_u32 vcc, 0, v{144+k}")
        A("s_mov_b64 exec, vcc")
        A(f"buffer_load_dwordx2 {vr(EL+2*k,2)}, v{128+k}, s[56:59], 0 offen sc1")
        A("s_mov_b64 exec, -1")
    A("s_branch c_poll")
    A("c_polled:")
    ST()
    g = EL + 30
    G = [52, 54]
    for k in range(14, -1, -1):
        n = G[k & 1]
        A(pk("fma", n, g, MU8, EL+2*k, bsel=0))
        A(pk("fma", n, g, MU8, n, bsel=1, asel="swap", neg_lo=[1,0,0]))
        g = n
    A("v_mov_b32 v54, v52\nv_mov_b32 v55, v53\nv_mov_b32 v56, v52\nv_mov_b32 v57, v53")
    A("v_permlane32_swap_b32 v54, v56")
    A("v_permlane32_swap_b32 v55, v57")
    cmul(A, 58, MU4, 56, add=54)
    cmul(A, 52, 48, 58, add=44)
    cmul(A, 54, MU, 52, add=46)
    A("v_mov_b32 v56, v52\nv_mov_b32 v57, v54\nv_mov_b32 v58, v53\nv_mov_b32 v59, v55")
    cr, ci = 56, 58
    def packhalf(hf):
        for plane in range(2):
            for e in range(2):
                d = 128 + ((plane*2 + e)*2 + hf)*4
                for m in range(4):
                    t = hf*8 + 2*m
                    if plane == 0: A(f"v_cvt_pk_bf16_f32 v{d+m}, v{UR2+2*t+e}, v{UR2+2*(t+1)+e}")
                    else: A(f"v_cvt_pk_bf16_f32 v{d+m}, -v{UI(t)+e}, -v{UI(t+1)+e}")
                A(f"ds_write_b128 v{64+2*e+hf}, {vr(d,4)} offset:{plane*4096}")
    for t in range(16):
        nr, ni = UR2 + 2*t, UI(t)
        A(pk("fma", nr, cr, LAM, nr, bsel=0))
        A(pk("fma", ni, ci, LAM, ni, bsel=0))
        A(pk("fma", nr, ci, LAM, nr, bsel=1, neg_b=True))
        A(pk("fma", ni, cr, LAM, ni, bsel=1))
        cr, ci = nr, ni
        if t == 7: packhalf(0)
    packhalf(1)
    gen.SAFE_PK[0] = False
    ST()
    A("s_waitcnt lgkmcnt(0)")
    lds_inc(A, 20, 31, 12)
    AF = 160
    idx = 0
    for tblk in range(2):
        for plane in range(2):
            for ksl in range(2):
                d = AF + idx*4
                o = plane*4096 + tblk*2048 + ksl*1024
                A(f"ds_read_b64_tr_b16 {vr(d,2)}, v68 offset:{o}")
                A(f"ds_read_b64_tr_b16 {vr(d+2,2)}, v69 offset:{o}")
                idx += 1
    V = VQ(A)
    idx = 0
    for tblk in range(2):
        for plane in range(2):
            A(f"s_mov_b32 s12, {tblk*131072 + plane*8192:#x}")
            for ksl in range(2):
                d = AF + idx*4
                A(f"s_waitcnt lgkmcnt({min(15, 14 - 2*idx)})")
                V.issue(f"buffer_store_dwordx4 {vr(d,4)}, v72, s[60:63], s12 offen offset:{ksl*1024} sc1", "hst")
                idx += 1
    ACC2 = 96
    FB2 = 224
    GR = 36
    ST2 = Stamper(A, 1, 62)
    A(f"s_mov_b32 s89, {SPIN*4}")
    A("c_lw:")
    A("ds_read_b128 v[52:55], v20 offset:4")
    A("s_waitcnt lgkmcnt(0)")
    A("v_min_u32 v54, v54, v55")
    A("v_min_u32 v53, 1, v53")
    A("v_readfirstlane_b32 s8, v54")
    A("v_readfirstlane_b32 s9, v53")
    A("s_add_u32 s8, s8, s9")
    A("s_cmp_ge_u32 s8, 5")
    A("s_cbranch_scc1 c_lwok")
    A("s_sub_u32 s89, s89, 1")
    A("s_cbranch_scc0 c_lw")
    A("c_lwok:")
    L = LQ(A)
    for st in range(2):
        for ks in range(4):
            d = AF + (st*4 + ks)*4
            o = (ks >> 1)*16384 + st*4096 + (ks & 1)*1024
            L.issue(f"ds_read_b64_tr_b16 {vr(d,2)}, v70 offset:{o}")
            L.issue(f"ds_read_b64_tr_b16 {vr(d+2,2)}, v71 offset:{o}", ("A", st, ks))
    for q in range(4):
        V.issue(f"buffer_load_dwordx4 {vr(GR+q*4,4)}, v7, s[64:67], 0 offen offset:{q*16} sc1")
    for q in range(2):
        V.issue(f"global_load_ushort v{52+q}, v8, {sp('Dskip')} offset:{q*64}", "g")
    ST()
    HFL = "buffer_load_dword v19, v22, s[68:71], 0 offen sc1"
    slowp = []
    def need(i):
        m = ((1 << (2*i + 2)) - 1) & ~3
        name = f"c_n{len(slowp)}"
        A(f"s_and_b32 s88, s90, {m:#x}")
        A(f"s_cmp_eq_u32 s88, {m:#x}")
        A(f"s_cbranch_scc0 {name}_s")
        A(f"{name}:")
        slowp.append((name, m))
    alast = [None]
    def aload(st, ks):
        if alast[0] != st:
            alast[0] = st
            tile_of(A, st >> 1, 11)
            A("s_lshl_b32 s11, s11, 14")
            if st & 1: A("s_add_u32 s11, s11, 8192")
        r = AF + ((st % PD)*4 + ks)*4
        V.issue(f"buffer_load_dwordx4 {vr(r,4)}, v{3 if ks < 2 else 2}, s[60:63], s11 offen offset:{(ks & 1)*1024} sc1", ("A", st, ks))
    def rd2(st, ks, nt, slot):
        return f"ds_read_b128 {vr(FB2+slot*4,4)}, v{BD2+ks} offset:{(st % NS2)*16384 + nt*4096}"
    def mf2(st, ks, nt, slot):
        a = AF + ((st % PD)*4 + ks)*4
        c = vr(ACC2+nt*16, 16)
        return f"v_mfma_f32_32x32x16_bf16 {c}, {vr(a,4)}, {vr(FB2+slot*4,4)}, {'0' if (st == 0 and ks == 0) else c}"
    def await_(st, ks):
        if st < 2: L.wait(("A", st, ks))
        else: V.wait(("A", st, ks))
    ST2()
    for nt in range(4): L.issue(rd2(0, 0, nt, nt), (0, 0, nt))
    HFK = opt("hfk", 3)
    N1K = opt("n1k", 2)
    DIST = opt("dist", 3)
    assert DIST in (2, 3, 4)
    polls = [0]
    def hfpoll():
        polls[0] += 1
        V.issue(HFL, ("hf", polls[0]))
    def hfseen():
        V.wait(("hf", polls[0]))
        A("v_cmp_eq_u32 s[90:91], 1, v19")
    FS = opt("fs", 3)
    assert FS == 1 or (FS == 3 and DIST >= 3)
    for st in range(N2 - FS):
        for ks in range(4):
            buf = ks & 1
            if ks == 3 and st >= 1: A("s_barrier")
            ns, nks = (st, ks+1) if ks < 3 else (st+1, 0)
            await_(st, ks)
            for nt in range(4):
                L.wait((st, ks, nt))
                A(mf2(st, ks, nt, buf*4 + nt))
                L.issue(rd2(ns, nks, nt, (buf ^ 1)*4 + nt), (ns, nks, nt))
            if st == 0 and ks == HFK:
                V.wait("hst")
                A("s_cmp_eq_u32 s14, 1")
                A("s_cbranch_scc1 c_hfs_l")
                A("buffer_store_dword v23, v60, s[68:71], 0 offen sc1")
                A("s_branch c_hfs_e")
                A("c_hfs_l:")
                A("buffer_store_dword v23, v60, s[68:71], 0 offen")
                A("c_hfs_e:")
                V.n += 1
                hfpoll()
                if "fine3" in OPT: ST2()
            if st == 1 and ks == N1K:
                if "fine3" in OPT: ST2()
                hfseen(); need(1)
                if "fine3" in OPT: ST2()
                for z in (2, 3):
                    for k2 in range(4): aload(z, k2)
                hfpoll()
            if st >= 2:
                if st == 2 and ks == 0:
                    if "fine3" in OPT: ST2()
                    hfseen(); need(2)
                    if "fine3" in OPT: ST2()
                    for z in range(4, 2 + DIST):
                        for k2 in range(4): aload(z, k2)
                    hfpoll()
                z = st + DIST
                if z < N2:
                    if ks == 0 and z % 2 == 0 and z // 2 >= 3:
                        if z // 2 == 3: hfseen()
                        if not (int(OPT.get("abl", 0)) & 2): need(z // 2)
                    aload(z, ks)
            if "fine3" in OPT:
                if st in (1, 2, 3, 4) and ks == 3: ST2()
                if st == 2 and ks == 0: ST2()
            elif (st % 2 == 1 if 'fine2' not in OPT else True) and ks == 3: ST2()
    f0 = N2 - FS
    S_ = lambda z: [(z, ks, nt) for ks in range(4) for nt in (0, 1)]
    K_ = lambda z: [(z, ks, nt) for ks in range(4) for nt in (2, 3)]
    if FS == 1: order = S_(15) + K_(15); nsend = 8
    else: order = S_(13) + ["b13"] + S_(14) + K_(13) + ["b14"] + S_(15) + K_(14) + K_(15); nsend = 32
    mfs = [x for x in order if not isinstance(x, str)]
    slot = {(f0, 0, nt): nt for nt in range(4)}
    pend = [x for x in mfs if x not in slot]
    free = [4, 5, 6]
    pub = [f0]
    def fill():
        while pend and free and pend[0][0] <= pub[0]:
            x = pend.pop(0); sl = free.pop(0); slot[x] = sl
            L.issue(rd2(x[0], x[1], x[2], sl), x)
    fill()
    pst = [f"buffer_store_dwordx4 {vr(ACC2+4*i,4)}, v28, s[92:95], s{74 if i < 4 else 75} offen offset:{(i & 3)*1024} sc1" for i in range(8)]
    i = 0; prev = None
    for x in order:
        if isinstance(x, str):
            A("s_barrier"); pub[0] += 1; fill(); continue
        V.wait(("A", x[0], x[1]))
        if x not in slot: fill()
        L.wait(x)
        A(mf2(x[0], x[1], x[2], slot[x]))
        free.append(slot[prev] if prev is not None else 7)
        prev = x
        fill()
        i += 1
        if i >= nsend + 3:
            for z in range(2):
                if pst: V.issue(pst.pop(0), "ps")
    while pst: V.issue(pst.pop(0), "ps")
    ST2()
    YR, OM, GF, XQ, T0, RV = 160, 176, 192, 64, 208, ACC2
    KEEP = ACC2 + 32
    PFL = "buffer_load_dword v19, v29, s[68:71], 0 offen sc1"
    A("s_mov_b32 s12, 0xffff0000")
    for nt in range(2):
        for r in range(16): A(f"ds_read_u16 v{XQ+nt*16+r}, v61 offset:{r*128+nt*64}")
    for nt in range(2):
        for hf in range(2): A(f"ds_read_b128 {vr(YR+nt*8+hf*4,4)}, v21 offset:{nt*32*272 + hf*16}")
    for r in range(16):
        A(f"v_lshlrev_b32 v{GF+r}, 16, v{GR+r}")
        A(f"v_and_b32 v{OM+r}, s12, v{GR+r}")
    A("v_lshlrev_b32 v52, 16, v52")
    A("v_lshlrev_b32 v53, 16, v53")
    A("s_waitcnt lgkmcnt(0)")
    PFG = opt("pfg", 2)
    gi = 0
    def pfstore():
        A("s_waitcnt vmcnt(0)")
        A("buffer_store_dword v23, v30, s[68:71], 0 offen sc1")
        A(PFL)
    RCG = opt("rcg", 3)
    def recv():
        A("s_lshl_b32 s12, s72, 6")
        A("s_add_u32 s13, s12, 4096")
        for i in range(8):
            A(f"buffer_load_dwordx4 {vr(RV+4*i,4)}, v28, s[92:95], s{12 if i < 4 else 13} offen offset:{(i & 3)*1024} sc1")
        A("s_mov_b32 s12, 0xffff0000")
    A("s_mov_b32 s90, 0")
    for nt in range(2):
        for m0 in range(0, 8, 4):
            if gi == PFG: pfstore()
            if gi == RCG and RCG > PFG:
                A("s_waitcnt vmcnt(0)")
                A("v_cmp_ne_u32 vcc, 1, v19")
                A("s_cmp_eq_u64 vcc, 0")
                A("s_cbranch_scc0 c_norc")
                recv()
                A("s_mov_b32 s90, 1")
                A("c_norc:")
            gi += 1
            ch = []
            for m in range(m0, m0 + 4):
                b_ = T0 + (m & 3)*6
                yy, xd, tm = b_, b_ + 2, b_ + 4
                xf = XQ + nt*16 + 2*m; ka = KEEP + nt*16 + 2*m
                ch.append([f"v_lshlrev_b32 v{xf}, 16, v{xf}", f"v_lshlrev_b32 v{xf+1}, 16, v{xf+1}",
                           f"v_lshlrev_b32 v{yy}, 16, v{YR+nt*8+m}", f"v_and_b32 v{yy+1}, s12, v{YR+nt*8+m}",
                           f"v_mul_f32 v{xd}, v{xf}, v{52+nt}", f"v_mul_f32 v{xd+1}, v{xf+1}, v{52+nt}",
                           f"v_mul_f32 v{yy}, v{xf}, v{yy}", f"v_mul_f32 v{yy+1}, v{xf+1}, v{yy+1}",
                           f"v_cvt_pk_bf16_f32 v{tm}, v{xd}, v{xd+1}", f"v_cvt_pk_bf16_f32 v{tm+1}, v{yy}, v{yy+1}",
                           f"v_lshlrev_b32 v{xd}, 16, v{tm}", f"v_and_b32 v{xd+1}, s12, v{tm}",
                           f"v_lshlrev_b32 v{yy}, 16, v{tm+1}", f"v_and_b32 v{yy+1}, s12, v{tm+1}",
                           f"v_add_f32 v{ka}, v{ka}, v{xd}", f"v_add_f32 v{ka+1}, v{ka+1}, v{xd+1}",
                           f"v_mul_f32 v{yy}, v{yy}, v{OM+2*m}", f"v_mul_f32 v{yy+1}, v{yy+1}, v{OM+2*m+1}",
                           f"v_cvt_pk_bf16_f32 v{tm}, v{yy}, v{yy+1}", f"v_lshlrev_b32 v{yy}, 16, v{tm}", f"v_and_b32 v{yy+1}, s12, v{tm}",
                           f"v_fma_f32 v{ka}, v{ka}, v{GF+2*m}, v{yy}", f"v_fma_f32 v{ka+1}, v{ka+1}, v{GF+2*m+1}, v{yy+1}"])
            zip_chains(A, ch)
    if gi == PFG: pfstore()
    ST2()
    A("s_cmp_eq_u32 s90, 1")
    A("s_cbranch_scc1 c_havercv")
    A(PFL)
    A("s_waitcnt vmcnt(0)")
    spin_all(A, "c_pf", 19, PFL)
    recv()
    A("c_havercv:")
    ST2()
    for nt in range(2):
        for r in range(16):
            i = (nt*16 + r) // 4
            if r % 4 == 0: A(f"s_waitcnt vmcnt({7 - i + nt*16 + r})")
            a = KEEP + nt*16 + r
            A(f"v_fma_f32 v{a}, v{RV+nt*16+r}, v{GF+r}, v{a}")
            A(f"buffer_store_dword v{a}, v{26 if r < 8 else 27}, s[76:79], s{80+(r&7)} offen offset:{nt*128} nt")
    ST2()
    if "leak" in OPT:
        i = int(OPT["leak"])
        A("s_cmp_lg_u32 s2, 8")
        A("s_cbranch_scc1 c_noleak")
        A("s_cmp_lg_u32 s3, 0")
        A("s_cbranch_scc1 c_noleak")
        A("v_readlane_b32 s8, v63, 0")
        A(f"v_readlane_b32 s9, v{63 if i < 100 else 62}, {i % 100}")
        A("s_sub_u32 s9, s9, s8")
        A("s_memrealtime s[10:11]")
        A("s_waitcnt lgkmcnt(0)")
        A("s_add_u32 s9, s9, s10")
        A("c_leak:")
        A("s_memrealtime s[10:11]")
        A("s_waitcnt lgkmcnt(0)")
        A("s_sub_u32 s12, s9, s10")
        A("s_cmp_gt_i32 s12, 0")
        A("s_cbranch_scc1 c_leak")
        A("c_noleak:")
    if "leak2" in OPT:
        X, i = str(OPT["leak2"]).split(":"); i = int(i)
        if X != "all":
            A(f"s_cmp_lg_u32 s2, {int(X)}")
            A("s_cbranch_scc1 c_noleak2")
        A("s_cmp_lg_u32 s3, 0")
        A("s_cbranch_scc1 c_noleak2")
        A(f"v_readlane_b32 s9, v{63 if i < 100 else 62}, {i % 100}")
        A("s_add_u32 s9, s9, 4000")
        A("c_leak2:")
        A("s_memrealtime s[10:11]")
        A("s_waitcnt lgkmcnt(0)")
        A("s_sub_u32 s12, s9, s10")
        A("s_cmp_gt_i32 s12, 0")
        A("s_cbranch_scc1 c_leak2")
        A("c_noleak2:")
    ST.flush()
    ST2.flush()
    A("s_endpgm")
    for name, m in slowp:
        A(f"{name}_s:")
        A(f"s_mov_b32 s89, {SPIN}")
        A(f"{name}_l:")
        A("s_waitcnt vmcnt(0)")
        A(HFL)
        A("s_waitcnt vmcnt(0)")
        A("v_cmp_eq_u32 s[90:91], 1, v19")
        A(f"s_and_b32 s88, s90, {m:#x}")
        A(f"s_cmp_eq_u32 s88, {m:#x}")
        A(f"s_cbranch_scc1 {name}")
        A("s_sub_u32 s89, s89, 1")
        A(f"s_cbranch_scc1 {name}")
        A(f"s_branch {name}_l")

def helper(A):
    V = VQ(A)
    VA, VB = 8, 12
    ST = Stamper(A, 0, 58)
    STH = Stamper(A, 1, 59)
    ST()
    if "hprio1" in OPT: A(f"s_setprio {OPT['hprio1']}")
    A("s_sub_u32 s3, s3, 4")
    A("s_lshr_b32 s6, s3, 1")
    A("s_and_b32 s7, s3, 1")
    A("v_lshrrev_b32 v3, 5, v1")
    A("v_lshlrev_b32 v3, 5, v3")
    A("v_bfe_u32 v4, v1, 3, 1")
    A("v_lshl_add_u32 v3, v4, 4, v3")
    A("v_bfe_u32 v4, v1, 4, 1")
    A("v_add_u32 v3, v3, v4")
    A("s_lshl_b32 s8, s4, 7")
    A("s_lshl_b32 s9, s6, 6")
    A("s_add_u32 s8, s8, s9")
    A("s_lshl_b32 s9, s7, 3")
    A("s_add_u32 s8, s8, s9")
    A("v_add_u32 v3, s8, v3")
    A("v_lshlrev_b32 v3, 11, v3")
    A("v_and_b32 v4, 7, v1")
    A("v_lshrrev_b32 v5, 4, v1")
    A("v_xor_b32 v4, v4, v5")
    A("v_lshlrev_b32 v4, 4, v4")
    A("v_xor_b32 v5, 64, v4")
    A("s_lshl_b32 s8, s5, 6")
    A("s_lshl_b32 s9, s7, 5")
    A("s_add_u32 s8, s8, s9")
    A("v_lshrrev_b32 v6, 3, v1")
    A("v_add_u32 v7, s8, v6")
    A("v_lshlrev_b32 v7, 11, v7")
    for n in range(4):
        c = 4 + (n & 1)
        A(f"v_add_u32 v{VA+n}, v3, v{c}")
        A(f"v_add_u32 v{VB+n}, v7, v{c}")
        if n:
            A(f"v_add_u32 v{VA+n}, {n*(4096-1024)}, v{VA+n}")
            A(f"v_add_u32 v{VB+n}, {n*(16384-1024)}, v{VB+n}")
    A("s_lshl_b32 s10, s3, 12")
    A("s_lshr_b32 s90, s55, 2")
    A("s_lshl_b32 s90, s90, 1")
    A("s_and_b32 s91, s55, 3")
    A("s_lshl_b32 s91, s91, 2")
    A("s_add_u32 s90, s90, s91")
    A("s_waitcnt lgkmcnt(0)")
    srd(A, 56, "x", 4 << 20)
    A("s_cmp_ge_u32 s3, 2")
    A(f"s_cselect_b32 s60, s{P['Bim']}, s{P['Bre']}")
    A(f"s_cselect_b32 s61, s{P['Bim']+1}, s{P['Bre']+1}")
    A(f"s_mov_b32 s62, {2<<20:#x}")
    A("s_mov_b32 s63, 0x20000")
    def issue(st, fill=0):
        slot = st % 3
        A(f"s_add_u32 s11, s90, {st}")
        A("s_and_b32 s11, s11, 15")
        A("s_lshl_b32 s11, s11, 7")
        A(f"s_add_u32 m0, s10, {slot*32768:#x}")
        for n in range(4):
            V.issue(f"buffer_load_dwordx4 v{VA+n}, s[56:59], s11 offen offset:{n*1024} lds")
            if fill: do_work(fill)
        A(f"s_add_u32 m0, s10, {slot*32768+16384:#x}")
        for n in range(4):
            V.issue(f"buffer_load_dwordx4 v{VB+n}, s[60:63], s11 offen offset:{n*1024} lds", ("S", st))
            if fill: do_work(fill)
    issue(0)
    VC = 28
    A("s_and_b32 s8, s5, 7")
    A("s_lshl_b32 s8, s8, 6")
    A("s_lshl_b32 s9, s3, 4")
    A("s_add_u32 s8, s8, s9")
    A("v_add_u32 v7, s8, v6")
    A("v_lshlrev_b32 v7, 11, v7")
    A(f"v_add_u32 v{VC}, v7, v4")
    A(f"v_add_u32 v{VC+1}, v7, v5")
    A(f"v_add_u32 v{VC+1}, {16384-1024}, v{VC+1}")
    A("s_and_b32 s12, s55, 1")
    A("s_lshl_b32 s13, s54, 1")
    A("s_add_u32 s12, s12, s13")
    A("s_lshr_b32 s13, s55, 1")
    A("s_lshl_b32 s8, s2, 7")
    A(f"s_add_u32 s8, s8, {KF_OFF:#x}")
    A("v_mov_b32 v30, s8")
    A("s_lshl_b32 s88, s54, 5")
    A("s_add_u32 s88, s88, s55")
    A("s_lshl_b32 s8, s88, 7")
    A(f"s_add_u32 s8, s8, {YF_OFF:#x}")
    A("v_mov_b32 v31, s8")
    A("s_lshl_b32 s88, s88, 2")
    A("s_add_u32 s88, s88, s3")
    A("v_mov_b32 v2, 0")
    srd(A, 92, "ws", FLG_SZ, WS_FLG)
    A("s_lshl_b32 s8, s88, 12")
    A(f"s_load_dword s100, {sp('ssmk')}, s8")
    A("s_lshr_b32 s8, s88, 1")
    A("s_lshl_b32 s8, s8, 2")
    A(f"s_load_dword s101, {sp('ssmD')}, s8")
    V.issue("buffer_store_dword v2, v30, s[92:95], 0 offen sc1")
    V.issue("buffer_store_dword v2, v31, s[92:95], 0 offen sc1", "clr")
    if opt("pl", 1) >= 0: issue(1)
    KR, VR_, SK = 32, 208, 68
    XG, GW = 72, 88
    A("s_lshl_b32 s13, s13, 7")
    A("s_lshl_b32 s14, s3, 5")
    A("s_add_u32 s13, s13, s14")
    A("v_and_b32 v17, 31, v1")
    A("s_lshl_b32 s14, s12, 5")
    A("v_add_u32 v17, s14, v17")
    A("v_lshlrev_b32 v22, 4, v17")
    A("v_and_b32 v23, 31, v1")
    A("v_mul_u32_u24 v23, 544, v23")
    A("v_lshrrev_b32 v24, 5, v1")
    A("v_lshlrev_b32 v24, 5, v24")
    A("v_sub_u32 v23, v23, v24")
    A("s_lshl_b32 s8, s3, 6")
    A(f"s_sub_u32 s8, {UREG+224}, s8")
    A("v_add_u32 v23, s8, v23")
    A("v_lshrrev_b32 v24, 4, v1")
    A("s_lshl_b32 s8, s3, 4")
    A("v_add_u32 v24, s8, v24")
    A("v_and_b32 v2, 15, v1")
    A("v_lshlrev_b32 v2, 4, v2")
    A("s_lshl_b32 s8, s12, 6")
    A("v_add_u32 v27, s8, v24")
    A("v_lshl_add_u32 v27, v27, 12, v2")
    A("s_lshr_b32 s8, s55, 1")
    A("s_lshl_b32 s8, s8, 8")
    A("s_sub_u32 s8, 3840, s8")
    A("v_add_u32 v27, s8, v27")
    A("v_mul_u32_u24 v24, 272, v24")
    A("v_add_u32 v24, v24, v2")
    A(f"v_add_u32 v24, {UREG:#x}, v24")
    A("s_lshl_b32 s14, s4, 7")
    A("s_lshl_b32 s8, s5, 3")
    A("s_add_u32 s14, s14, s8")
    A("s_lshl_b32 s8, s3, 1")
    A("s_add_u32 s14, s14, s8")
    A("s_lshl_b32 s8, s14, 11")
    A("v_lshlrev_b32 v25, 4, v1")
    A("v_add_u32 v26, s8, v25")
    A("v_add_u32 v3, 0x8000, v27")
    srd(A, 64, "k", 4 << 20)
    srd(A, 68, "v", 4 << 20)
    srd(A, 72, "ws", 4 << 20, WS_KVT)
    srd(A, 76, "ws", 8192, WS_G)
    for i in range(8):
        A(f"s_mov_b32 s{80+i}, {i*4096}")
    NTP = " nt" if "ntp" in OPT else ""
    A("v_lshrrev_b32 v19, 3, v1")
    A("v_add_u32 v19, s13, v19")
    A("v_lshlrev_b32 v19, 11, v19")
    A("v_and_b32 v20, 7, v1")
    A("v_lshl_add_u32 v19, v20, 4, v19")
    A("s_lshl_b32 s8, s12, 7")
    A("v_add_u32 v19, s8, v19")
    A("v_subrev_u32 v20, 16384, v19")
    A("v_lshrrev_b32 v21, 5, v1")
    A("v_lshlrev_b32 v21, 11, v21")
    A("v_and_b32 v18, 31, v1")
    A("v_lshl_add_u32 v21, v18, 2, v21")
    A("s_lshl_b32 s8, s3, 12")
    A(f"s_add_u32 s91, s8, {KREG}")
    A("v_add_u32 v21, s91, v21")
    def kvdma():
        A("s_add_u32 m0, s91, 16384")
        V.issue(f"buffer_load_dwordx4 v20, s[64:67], 0 offen{NTP} lds")
        for i in range(4):
            A(f"s_add_u32 m0, s91, {16384 + 1024*(i+1)}")
            A(f"s_mov_b32 s99, {i*16384}")
            V.issue(f"buffer_load_dwordx4 v19, s[64:67], s99 offen{NTP} lds")
        V.issue(f"global_load_dwordx4 {vr(SK,4)}, v22, {sp('shk')}", "k")
        for i in range(4):
            A(f"s_add_u32 m0, s91, {1024*i}")
            A(f"s_mov_b32 s99, {i*16384}")
            V.issue(f"buffer_load_dwordx4 v19, s[68:71], s99 offen{NTP} lds", "v")
    if opt("pl", 1) < 0:
        kvdma(); issue(1)
    gl = []
    for r in range(2):
        for hh in range(2): gl.append((f"buffer_load_dwordx4 {vr(XG+r*8+hh*4,4)}, v26, s[56:59], 0 offen offset:{r*2048+hh*1024}", None))
    for hh in range(2): gl.append((f"global_load_dwordx4 {vr(GW+hh*4,4)}, v25, {sp('gw')} offset:{hh*1024}", "gate"))
    KF = 96; SP = 136; OUT = 144
    work = []
    def W(x):
        if callable(x): work.append(x)
        else: work.extend(x.split("\n"))
    def rndW(pair, tmp):
        W(f"v_cvt_pk_bf16_f32 v{tmp}, v{pair}, v{pair+1}")
        W(f"v_lshlrev_b32 v{pair}, 16, v{tmp}")
        W(f"v_and_b32 v{pair+1}, s12, v{tmp}")
    W("s_mov_b32 s12, 0xffff0000")
    gate_begin = len(work)
    W(lambda: V.wait("gate"))
    for i in range(8):
        W(f"v_lshlrev_b32 v{96+2*i}, 16, v{GW+i}")
        W(f"v_and_b32 v{97+2*i}, s12, v{GW+i}")
    for r in range(2):
        acc = 112 + r
        W(f"v_mov_b32 v{acc}, 0")
        for i in range(8):
            W(f"v_lshlrev_b32 v116, 16, v{XG+r*8+i}")
            W(f"v_and_b32 v117, s12, v{XG+r*8+i}")
            W(pk("mul", 116, 116, 96+2*i))
            rndW(116, 118)
            W(f"v_add_f32 v{acc}, v{acc}, v116")
            W(f"v_add_f32 v{acc}, v{acc}, v117")
    for r in range(2):
        acc = 112 + r
        for sh in (1, 2, 4, 8):
            W(f"v_add_f32_dpp v{acc}, v{acc}, v{acc} row_shr:{sh} row_mask:0xf bank_mask:0xf bound_ctrl:0")
        W(f"v_add_f32_dpp v{acc}, v{acc}, v{acc} row_bcast:15 row_mask:0xa bank_mask:0xf")
        W(f"v_add_f32_dpp v{acc}, v{acc}, v{acc} row_bcast:31 row_mask:0xc bank_mask:0xf")
    for t in ["v_readlane_b32 s8, v112, 63", "v_readlane_b32 s9, v113, 63", "v_mov_b32 v116, s8", "v_mov_b32 v117, s9",
              "v_cmp_eq_u32 vcc, 1, v1", "v_cndmask_b32 v116, v116, v117, vcc", "v_cvt_pk_bf16_f32 v116, v116, v116",
              "v_lshlrev_b32 v116, 16, v116", "v_mul_f32 v116, 0xbfb8aa3b, v116", "v_exp_f32 v116, v116", "v_add_f32 v116, 1.0, v116",
              "v_rcp_f32 v116, v116", "v_cvt_pk_bf16_f32 v117, v116, v116", "v_lshlrev_b32 v116, 16, v117", "v_sub_f32 v118, 1.0, v116",
              "v_cvt_pk_bf16_f32 v116, v116, v118", "s_lshl_b32 s14, s14, 2", "v_lshl_add_u32 v117, v1, 2, s14"]:
        W(t)
    def gstore():
        A("s_mov_b64 exec, 3")
        V.issue("buffer_store_dword v116, v117, s[76:79], 0 offen sc1", "g")
        A("s_mov_b64 exec, -1")
    W(gstore)
    gate_end = len(work)
    W("KVSTART")
    W(lambda: V.wait("k"))
    for i in range(19):
        W(f"ds_read_b32 v{KR+i}, v21 offset:{16384 + (5+i)*128}")
        if i == 9: W("s_waitcnt lgkmcnt(0)")
    W("s_waitcnt lgkmcnt(0)")
    for i in range(19):
        W(f"v_lshlrev_b32 v{KF+2*i}, 16, v{KR+i}")
        W(f"v_and_b32 v{KF+2*i+1}, s12, v{KR+i}")
    for jx in range(4):
        for cc in range(2):
            src = SK + cc*2 + (jx >> 1)
            W(f"v_and_b32 v{SP+2*jx+cc}, s12, v{src}" if jx & 1 else f"v_lshlrev_b32 v{SP+2*jx+cc}, 16, v{src}")
    W(lambda: V.wait("v"))
    for i in range(16):
        W(f"ds_read_b32 v{VR_+i}, v21 offset:{i*128}")
        if i == 7: W("s_waitcnt lgkmcnt(0)")
    W("s_waitcnt lgkmcnt(0)")
    for t in range(16):
        vv = 176 + (t & 1)*2
        W(f"v_lshlrev_b32 v{vv}, 16, v{VR_+t}")
        W(f"v_and_b32 v{vv+1}, s12, v{VR_+t}")
        if opt("pk", 0) & 2:
            o = OUT + 2*t
            W(f"v_pk_mul_f32 {vr(o,2)}, {vr(KF+2*t,2)}, {vr(SP+6,2)}")
            for jx in (2, 1, 0): W(f"v_pk_fma_f32 {vr(o,2)}, {vr(KF+2*(t+3-jx),2)}, {vr(SP+2*jx,2)}, {vr(o,2)}")
            W(f"v_pk_mul_f32 {vr(o,2)}, {vr(o,2)}, {vr(vv,2)}")
            continue
        for cc in range(2): W(f"v_mul_f32 v{OUT+2*t+cc}, v{KF+2*t+cc}, v{SP+6+cc}")
        for jx in (2, 1, 0):
            for cc in range(2): W(f"v_fmac_f32 v{OUT+2*t+cc}, v{KF+2*(t+3-jx)+cc}, v{SP+2*jx+cc}")
        for cc in range(2): W(f"v_mul_f32 v{OUT+2*t+cc}, v{OUT+2*t+cc}, v{vv+cc}")
    for cc in range(2):
        for hf in range(2):
            d = 192 + (cc*2+hf)*4
            for m in range(4):
                mm = hf*4 + m
                W(f"v_cvt_pk_bf16_f32 v{d+m}, v{OUT+2*(15-2*mm)+cc}, v{OUT+2*(14-2*mm)+cc}")
            W(f"ds_write_b128 v23, {vr(d,4)} offset:{cc*272+hf*16}")
    W("s_waitcnt lgkmcnt(0)")
    W("BARRIER")
    for i in range(4): W(f"ds_read_b128 {vr(192+4*i,4)}, v24 offset:{i*4*272}")
    KVL = "nokvl" not in OPT
    def kvstores():
        def block(pol):
            for i in range(4):
                A(f"s_waitcnt lgkmcnt({3-i})")
                V.issue(f"buffer_store_dwordx4 {vr(192+4*i,4)}, v{27 if i < 2 else 3}, s[72:75], s{80+4*(i&1)} offen{pol}", "kvt")
        if not KVL:
            block(" sc1"); return
        V.wait("cls")
        local_check(A, 247, 246, 96, 98)
        A("s_cbranch_scc0 h_kvl")
        n0 = V.n
        block(" sc1")
        A("s_branch h_kve")
        A("h_kvl:")
        V.n = n0
        block("")
        A("h_kve:")
    W(kvstores)
    if "kvfirst" in OPT:
        gate_part = work[gate_begin:gate_end]
        del work[gate_begin:gate_end]
        work.extend(gate_part)
    wpos = [0]
    blocked = [False]
    cur = [0]
    PL = opt("pl", 1)
    KVW = PL + opt("kvd", 3)
    def do_work(n):
        while n > 0 and wpos[0] < len(work) and not blocked[0]:
            w = work[wpos[0]]
            wpos[0] += 1
            if w == "BARRIER":
                blocked[0] = True; return
            if w == "KVSTART":
                if cur[0] < KVW:
                    wpos[0] -= 1; return
                continue
            if callable(w): w()
            else: A(w)
            n -= 1
    PREP0 = opt("prep0", 1)
    UL = 40
    ACC = 64; BF = 96; AFR = 160; KD = 224
    def setup_conv(A):
        A("s_lshl_b32 s12, s88, 12")
        srd(A, 64, "ssmk", 4096, off_sreg=12)
        srd(A, 68, "ws", 4096, WS_KVT, off_sreg=12)
        A("s_mov_b32 s80, s100")
        A("s_mov_b32 s81, s101")
        A("v_and_b32 v37, 15, v1")
        A("s_lshr_b32 s8, s88, 6")
        A("s_and_b32 s8, s8, 1")
        A("s_lshl_b32 s8, s8, 3")
        A("s_add_u32 s8, s8, s54")
        A("v_lshl_add_u32 v32, v37, 4, s8")
        A("s_lshr_b32 s8, s4, 2")
        A("s_lshl_b32 s8, s8, 1")
        A("s_and_b32 s9, s4, 3")
        A("s_lshl_b32 s9, s9, 3")
        A("s_add_u32 s8, s8, s9")
        A("v_lshrrev_b32 v38, 3, v37")
        A("v_and_b32 v39, 7, v37")
        A("v_lshl_add_u32 v38, v39, 5, v38")
        A("v_add_u32 v38, s8, v38")
        A("v_and_b32 v39, 16, v1")
        A("v_cmp_ne_u32 vcc, 0, v39")
        A("v_cndmask_b32 v32, v32, v38, vcc")
        A("v_lshlrev_b32 v32, 7, v32")
        A(f"v_add_u32 v32, {KF_OFF:#x}, v32")
        A("v_lshlrev_b32 v33, 2, v1")
        srd(A, 76, "dbg", 256)
        A(f"s_mul_i32 s13, s3, 8320")
        A(f"s_add_u32 s13, s13, {KREG}")
        A(f"s_mul_i32 s82, s3, 4608")
        A(f"s_add_u32 s82, s82, {UREG}")
        A("v_add_u32 v36, 2, v25")
        A("v_and_b32 v38, 7, v1")
        A("v_lshlrev_b32 v38, 2, v38")
        A("v_bfe_u32 v39, v1, 3, 1")
        A("v_mul_u32_u24 v39, 4160, v39")
        A("v_add3_u32 v38, v38, v39, s13")
        A("s_lshl_b32 s80, s80, 16")
        A("v_mov_b32 v56, s80")
        A("v_cmp_eq_u32 vcc, 15, v37")
        A("v_cndmask_b32 v56, 0, v56, vcc")
        A("ds_write_b32 v38, v56")
        A("s_and_b32 s14, s88, 1")
        A("s_lshl_b32 s14, s14, 4")
        A("s_lshr_b32 s81, s81, s14")
        A("s_lshl_b32 s81, s81, 16")
        A(f"v_mov_b32 v60, {LFLAG:#x}")
        A("v_mov_b32 v61, 1")
    def setup_late(A):
        A("v_lshrrev_b32 v5, 4, v1")
        A("v_and_b32 v37, 15, v1")
        A("v_lshl_add_u32 v38, v5, 3, v37")
        A("v_lshlrev_b32 v38, 1, v38")
        A("v_and_b32 v39, 1, v1")
        A("v_mul_u32_u24 v39, 4158, v39")
        A("v_sub_u32 v38, v38, v39")
        A("s_add_u32 s14, s13, 4160")
        A("v_add_u32 v16, s14, v38")
        for i in range(1, 4): A(f"v_add_u32 v{16+i}, {1024*i}, v16")
        A("v_lshlrev_b32 v38, 5, v37")
        A("v_lshlrev_b32 v39, 4, v5")
        A("v_sub_u32 v20, v39, v38")
        A("s_add_u32 s14, s82, 480")
        A("v_add_u32 v20, s14, v20")
        A("v_lshl_add_u32 v39, v5, 3, v38")
        A("s_add_u32 s14, s82, 504")
        A("v_sub_u32 v21, s14, v39")
        A("v_and_b32 v39, 1, v5")
        A("v_lshl_add_u32 v22, v39, 9, v38")
        A("v_lshrrev_b32 v39, 1, v5")
        A("v_lshl_add_u32 v22, v39, 4, v22")
        A("v_add_u32 v23, s82, v25")
    setup_conv(W)
    print("prep work items", len(work))
    def cissue(st):
        tile_of(A, st >> 1, 11)
        A("s_lshl_b32 s11, s11, 7")
        sr_ = "s[56:59]" if st % 2 == 0 else "s[60:63]"
        A("s_add_u32 s99, s11, s91")
        A(f"s_add_u32 m0, s10, {(st % NS2)*16384:#x}")
        for n in range(2):
            V.issue(f"buffer_load_dwordx4 v{VC+n}, {sr_}, s99 offen offset:{n*1024} lds")
        A("s_add_u32 s11, s11, s90")
        A(f"s_add_u32 m0, s10, {(st % NS2)*16384 + 8192:#x}")
        for n in range(2):
            V.issue(f"buffer_load_dwordx4 v{VC+n}, {sr_}, s11 offen offset:{n*1024} lds", ("C", st))
    def uloads():
        for i in range(4): A(f"buffer_load_dwordx4 {vr(UL+4*i,4)}, v25, s[68:71], 0 offen offset:{i*1024} sc1")
    def ctouch():
        A("s_cmp_ge_u32 s3, 2")
        A(f"s_cselect_b32 s96, s{P['Cim']}, s{P['Cre']}")
        A(f"s_cselect_b32 s97, s{P['Cim']+1}, s{P['Cre']+1}")
        A("s_lshl_b32 s98, s2, 13")
        A("s_and_b32 s99, s3, 1")
        A("s_lshl_b32 s99, s99, 12")
        A("s_add_u32 s98, s98, s99")
        A("v_and_b32 v240, 31, v1")
        if "km" in OPT:
            A("s_add_u32 s96, s96, s98")
            A("s_addc_u32 s97, s97, 0")
            A("s_lshl_b32 s98, s88, 12")
            A(f"s_add_u32 s98, s{P['ssmk']}, s98")
            A(f"s_addc_u32 s99, s{P['ssmk']+1}, 0")
            A("v_mov_b32 v242, s96")
            A("v_mov_b32 v243, s97")
            A("v_mov_b32 v244, s98")
            A("v_mov_b32 v245, s99")
            A("v_cmp_lt_u32 s[96:97], 31, v1")
            A("v_cndmask_b32 v242, v242, v244, s[96:97]")
            A("v_cndmask_b32 v243, v243, v245, s[96:97]")
            A("v_lshlrev_b32 v240, 7, v240")
            A("v_add_co_u32 v242, s[96:97], v242, v240")
            A("v_addc_co_u32 v243, s[96:97], 0, v243, s[96:97]")
            V.issue("global_load_dword v241, v[242:243], off")
        else:
            A("v_lshl_add_u32 v240, v240, 7, s98")
            V.issue("global_load_dword v241, v240, s[96:97]")
    FILL = opt("fill", 10)
    kst = [None]
    KW = opt("kw", 2)
    CHK = opt("chk", 13)
    KFS = opt("kfs", 12)
    KDS = opt("kds", 11)
    UWS = opt("uws", 14)
    WEND = min(KFS, KDS, 12)
    CM = opt("cm", 6)
    assert CHK < UWS <= 15 and opt("lates", 14) <= UWS
    nU = [0]; cdone = [0]
    NC0 = opt("nc0", 2)
    A(f"v_mov_b32 v6, {LFLAG:#x}")
    A("v_mov_b32 v7, 0")
    for o in (4, 8, 12, 16): A(f"ds_write_b32 v6, v7 offset:{o}")
    ST()
    A("s_waitcnt lgkmcnt(0)")
    V.wait("clr")
    ST()
    A("s_barrier")
    issue(2)
    for t, tag in gl: V.issue(t, tag)
    for s in range(N1):
        V.wait(("S", min(s+1, N1-1)))
        if kst[0] is not None and s == min(kst[0] + KW, 15): V.wait("kvt"); V.wait("g")
        if "fine1" in OPT: STH()
        A("s_barrier")
        if kst[0] is not None and s == min(kst[0] + KW, 15):
            A("s_cmp_lg_u32 s3, 0")
            A("s_cbranch_scc1 h_kflag")
            A("v_mov_b32 v6, 1")
            A("buffer_store_dword v6, v30, s[92:95], 0 offen sc1")
            A("h_kflag:")
            print("k flag after barrier", s+1)
        blocked[0] = False
        cur[0] = s
        FM = opt("fmode", 0)
        fl = opt("fill0", FILL) if s < opt("fill0n", 0) else FILL
        if s+3 < N1 and FM == 0: issue(s+3, fl if s >= PREP0 else 0)
        elif s+3 < N1 and FM == 1:
            issue(s+3)
            if s >= PREP0: do_work(8*FILL)
        if s == PL - 100: pass
        if s == PL and PL >= 0: kvdma()
        if s == CM: ctouch()
        if KVL and s == opt("cls", 6):
            A("v_lshlrev_b32 v246, 2, v1")
            V.issue(f"global_load_dword v247, v246, {sp('dbg')} sc1", "cls")
        if kst[0] is None and "kvt" in V.tags and "g" in V.tags: kst[0] = s
        if s == WEND:
            do_work(10000)
            assert wpos[0] == len(work), (wpos[0], len(work))
        if s == KFS:
            V.issue("buffer_load_dword v34, v33, s[76:79], 0 offen sc1")
            V.issue("buffer_load_dword v35, v32, s[92:95], 0 offen sc1", "kf")
            ST()
        if s == KDS and KDS < CHK:
            V.wait("g")
            A("s_add_u32 m0, s13, 32")
            for i in range(4): V.issue(f"buffer_load_dwordx4 v25, s[64:67], 0 offen offset:{i*1024}{NTP} lds")
            A("s_add_u32 m0, s13, 4192")
            for i in range(4): V.issue(f"buffer_load_dwordx4 v36, s[64:67], 0 offen offset:{i*1024}{NTP} lds", "K")
        if s == 13:
            srd(A, 56, "Cre", 2 << 20)
            srd(A, 60, "Cim", 2 << 20)
            A("s_lshl_b32 s10, s3, 11")
            A(f"s_add_u32 s10, s10, {CRING:#x}")
            A("s_lshr_b32 s90, s5, 3")
            A("s_xor_b32 s91, s90, 1")
            A("s_lshl_b32 s91, s91, 20")
            A("s_lshl_b32 s11, s90, 10")
            A("s_add_u32 s91, s91, s11")
            A("s_mul_i32 s90, s90, 0x100400")
            A("v_mov_b32 v56, 0")
            A("v_mov_b32 v57, 0")
            A("v_lshlrev_b32 v38, 3, v1")
            A("v_add_u32 v38, s82, v38")
            A("ds_write_b64 v38, v[56:57] offset:4096")
            ST()
        if s == CHK:
            V.wait("kf")
            A("s_mov_b32 s83, 0")
            A("v_and_b32 v34, 15, v34")
            A("v_cmp_ne_u32 vcc, 15, v34")
            A("v_cmp_ne_u32 s[84:85], 1, v35")
            A("s_or_b64 vcc, vcc, s[84:85]")
            A("s_cbranch_scc1 h_nou")
            A("s_mov_b32 s83, 1")
            uloads()
            A("h_nou:")
            nU[0] = V.n
        if s == KDS and KDS >= CHK:
            V.wait("g")
            A("s_add_u32 m0, s13, 32")
            for i in range(4): V.issue(f"buffer_load_dwordx4 v25, s[64:67], 0 offen offset:{i*1024}{NTP} lds")
            A("s_add_u32 m0, s13, 4192")
            for i in range(4): V.issue(f"buffer_load_dwordx4 v36, s[64:67], 0 offen offset:{i*1024}{NTP} lds", "K")
        if s == opt("lates", 14): setup_late(A)
        if s == 15:
            for z in range(NC0): cissue(z)
            cdone[0] = NC0
        if s == UWS:
            A("s_cmp_lg_u32 s83, 1")
            A("s_cbranch_scc1 h_nouw")
            A(f"s_waitcnt vmcnt({V.n - nU[0]})")
            for i in range(4): A(f"ds_write_b128 v23, {vr(UL+4*i,4)} offset:{1024*i}")
            A("h_nouw:")
    ST()
    if "hprio1" in OPT: A("s_setprio 0")
    A("s_cmp_lg_u32 s83, 0")
    A("s_cbranch_scc1 h_haveu")
    spin_all(A, "h_init", 34, "buffer_load_dword v34, v33, s[76:79], 0 offen sc1", "15", pre="v_and_b32 v34, 15, v34")
    spin_all(A, "h_kf", 35, "buffer_load_dword v35, v32, s[92:95], 0 offen sc1")
    uloads()
    A("s_waitcnt vmcnt(0)")
    for i in range(4): A(f"ds_write_b128 v23, {vr(UL+4*i,4)} offset:{1024*i}")
    A("h_haveu:")
    V.done = max(V.done, nU[0])
    V.wait("K")
    lds_inc(A, 60, 61, 8)
    for i in range(4): A(f"s_mov_b32 s{84+i}, s{68+i}")
    srd(A, 68, "ws", 4 << 20, WS_KVT)
    A("s_waitcnt lgkmcnt(0)")
    ST()
    L = LQ(A)
    ops = []
    def reads(r):
        R = []
        s = r & 1
        for i in range(8):
            R.append((f"ds_read_b128 {vr(BF+s*32+i*4,4)}, v20 offset:{3584-512*i+64*r}", ("B", r, i)))
            o = 128*(i & 1) + 16*r
            d = AFR + s*32 + i*4
            R.append((f"ds_read2_b32 {vr(d,2)}, v{16+(i>>1)} offset0:{o} offset1:{o+1}", None))
            R.append((f"ds_read2_b32 {vr(d+2,2)}, v{16+(i>>1)} offset0:{o+2} offset1:{o+3}", ("A", r, i)))
        return R
    def first_order(R):
        return R[1:3] + [R[3*i] for i in range(8)] + [x for i in range(1, 8) for x in R[3*i+1:3*i+3]]
    KVT = 40
    for n in range(8): ops.append(("rd", f"ds_read_b64 {vr(KVT+2*n,2)}, v21 offset:{3584-512*n}", ("KV", n)))
    for t, tag in first_order(reads(0)): ops.append(("rd", t, tag))
    fill = []
    fill.append(("s_mov_b32 s12, 0xffff0000", None)); fill.append(("v_mov_b32 v26, s81", None))
    for n in range(8):
        k = KD + 4*n
        c = [f"v_and_b32 v{k}, s12, v{KVT+2*n+1}", f"v_lshlrev_b32 v{k+1}, 16, v{KVT+2*n+1}", f"v_and_b32 v{k+2}, s12, v{KVT+2*n}", f"v_lshlrev_b32 v{k+3}, 16, v{KVT+2*n}"]
        c += [f"v_mul_f32 v{k+i}, v{k+i}, v26" for i in range(4)]
        c += [f"v_cvt_pk_bf16_f32 v56, v{k}, v{k+1}", f"v_cvt_pk_bf16_f32 v57, v{k+2}, v{k+3}",
              f"v_lshlrev_b32 v{k}, 16, v56", f"v_and_b32 v{k+1}, s12, v56", f"v_lshlrev_b32 v{k+2}, 16, v57", f"v_and_b32 v{k+3}, s12, v57"]
        for i, t in enumerate(c): fill.append((t, ("KV", n) if i == 0 else None))
    YD = 40
    def post(n):
        y = ACC + 4*n; k = KD + 4*n
        d = YD + (n >> 1)*4 + (n & 1)*2
        c = [f"v_cvt_pk_bf16_f32 v56, v{y}, v{y+1}", f"v_cvt_pk_bf16_f32 v57, v{y+2}, v{y+3}",
             f"v_lshlrev_b32 v{y}, 16, v56", f"v_and_b32 v{y+1}, s12, v56", f"v_lshlrev_b32 v{y+2}, 16, v57", f"v_and_b32 v{y+3}, s12, v57"]
        c += [f"v_add_f32 v{k+i}, v{k+i}, v{y+i}" for i in range(4)]
        c += [f"v_cvt_pk_bf16_f32 v{d}, v{k}, v{k+1}", f"v_cvt_pk_bf16_f32 v{d+1}, v{k+2}, v{k+3}"]
        if n & 1:
            d = YD + (n >> 1)*4
            c += [f"v_permlane16_swap_b32 v{d}, v{d+2}", f"v_permlane16_swap_b32 v{d+1}, v{d+3}"]
        return c
    ystores = [f"buffer_store_dwordx4 {vr(YD+4*k,4)}, v22, s[84:87], 0 offen offset:{k*1024} sc1" for k in range(4)]
    LATEC = opt("latec", 200)
    CFM = opt("cfm", 80)
    FPM = opt("fpm", 2)
    nmf = 0
    postq = []
    for r in range(8):
        s = r & 1
        nxt = first_order(reads(r+1)) if r < 7 else []
        cnt = 0
        for q in range(8):
            for n in range(q, 8):
                c = vr(ACC+4*n, 4)
                ops.append(("mf", f"v_mfma_f32_16x16x32_bf16 {c}, {vr(AFR+s*32+4*q,4)}, {vr(BF+s*32+4*(n-q),4)}, {'0' if (r == 0 and q == 0) else c}",
                            [("A", r, q), ("B", r, n-q)]))
                nmf += 1; cnt += 1
                if nxt and cnt >= 2:
                    t, tag = nxt.pop(0); ops.append(("rd", t, tag))
                elif r < 7:
                    for z in range(FPM):
                        if fill: ops.append(("fill",) + fill.pop(0))
                if nmf == LATEC: ops.append(("latec",))
                if nmf == CFM: ops.append(("cf",))
                if r == 7:
                    if n == q: postq += [(nmf + 3, t) for t in post(n)]
                    for z in range(opt("ppm", 3)):
                        if postq and postq[0][0] <= nmf and q < 7: ops.append(("fill", postq.pop(0)[1], None))
        assert not nxt
    assert not fill and CFM < LATEC
    for _, t in postq: ops.append(("fill", t, None))
    for op in ops:
        if op[0] == "rd": L.issue(op[1], op[2])
        elif op[0] == "mf":
            for t in op[2]: pass
            k = max(op[2], key=lambda t: L.tags[t])
            L.wait(k)
            A(op[1])
        elif op[0] == "fill":
            if op[2] is not None: L.wait(op[2])
            A(op[1])
        elif op[0] == "latec":
            while cdone[0] < NS2: cissue(cdone[0]); cdone[0] += 1
        elif op[0] == "cf":
            while cdone[0] < 2: cissue(cdone[0]); cdone[0] += 1
            V.wait(("C", 1))
            lds_inc(A, 60, 61, 16); L.n += 1
    ST()
    YST = opt("yst", 0)
    if YST == 0:
        for t in ystores: V.issue(t, "y2")
    A("v_lshrrev_b32 v8, 4, v1")
    A("s_lshl_b32 s8, s3, 4")
    A("v_add_u32 v8, s8, v8")
    A("v_and_b32 v11, 15, v1")
    A("s_lshl_b32 s9, s5, 11")
    A(f"s_add_u32 s9, s9, {YF_OFF:#x}")
    A("v_lshl_add_u32 v10, v11, 7, s9")
    A("v_lshlrev_b32 v11, 4, v11")
    A("v_mul_u32_u24 v9, 272, v8")
    A("v_add_u32 v9, v9, v11")
    A("s_lshl_b32 s8, s5, 6")
    A("v_add_u32 v8, s8, v8")
    A("v_lshl_add_u32 v8, v8, 12, v11")
    A("s_lshl_b32 s8, s4, 8")
    A("v_add_u32 v8, s8, v8")
    srd(A, 64, "x", 4 << 20)
    A("s_lshl_b32 s8, s4, 2")
    A("s_add_u32 s8, s8, s3")
    A("s_lshl_b32 s8, s8, 5")
    A("v_lshrrev_b32 v12, 3, v1")
    A("v_add_u32 v12, s8, v12")
    A("v_lshlrev_b32 v12, 11, v12")
    A("v_and_b32 v11, 7, v1")
    A("v_lshl_add_u32 v12, v11, 4, v12")
    A("s_lshl_b32 s8, s5, 7")
    A("v_add_u32 v12, s8, v12")
    ST()
    YR = 116
    YFL_LD = "buffer_load_dword v19, v10, s[92:95], 0 offen sc1"
    YFL, GYF, GYL, GYW = opt("yfl", 5), opt("gyf", 8), opt("gyl", 10), opt("gyw", 12)
    XGS = opt("xgs", 7); XGW = opt("xgw", 10)
    assert XGS < XGW <= N2 - 2
    for st in range(1, N2-1):
        V.wait(("C", st+1))
        if st == XGW: V.wait("xt")
        if "fineh" in OPT: STH()
        A("s_barrier")
        if NS2 <= st + NS2 - 1 < N2: cissue(st + NS2 - 1)
        if "abl" in OPT and st >= 2 and st < 13 and int(OPT["abl"]) & 1:
            continue_ = True
            for tg in ("y2", "xt", "yf", "eps"): V.tags.setdefault(tg, 0)
            continue
        if YST and st == YST:
            for t in ystores: V.issue(t, "y2")
        if st == XGS:
            for i in range(4):
                A(f"s_add_u32 m0, s82, {i*1024}")
                A(f"s_mov_b32 s8, {i*16384}")
                V.issue("buffer_load_dwordx4 v12, s[64:67], s8 offen lds", "xt")
        if st == YFL:
            V.wait("y2")
            A("s_mov_b64 exec, 1")
            A("ds_add_rtn_u32 v62, v60, v61 offset:4")
            A("s_mov_b64 exec, -1")
            A("s_waitcnt lgkmcnt(0)")
            A("v_readfirstlane_b32 s83, v62")
            A("s_cmp_lg_u32 s83, 3")
            A("s_cbranch_scc1 h_noy")
            A("buffer_store_dword v61, v31, s[92:95], 0 offen sc1")
            A("h_noy:")
        if st == GYF: V.issue(YFL_LD, "yf")
        if st == GYL:
            V.wait("yf")
            spin_all(A, "h_yf", 19, YFL_LD)
            for i in range(4):
                A(f"s_mov_b32 s8, {i*16384}")
                V.issue(f"buffer_load_dwordx4 {vr(YR+i*4,4)}, v8, s[68:71], s8 offen sc1", "eps")
        if st == GYW:
            V.wait("eps")
            for i in range(4): A(f"ds_write_b128 v9, {vr(YR+i*4,4)} offset:{i*4*272}")
            A("s_waitcnt lgkmcnt(0)")
    assert YST < YFL < GYF < GYL < GYW <= N2 - 3
    STH.flush()
    ST.flush()
    A("s_endpgm")

def build():
    s = header_comments()
    s += "; generated by tools/gen9.py (fused single kernel, split-K GEMM2; gen8 h layout)\n"
    s += "; @launch grid=(256,1,1) block=(512,1,1) lds=163840\n"
    s += '.amdgcn_target "amdgcn-amd-amdhsa--gfx950"\n.text\n'
    A = Asm()
    A.raw(f".globl {KN}\n.p2align 8\n.type {KN},@function")
    gen_kernel(A)
    s += A.render()
    s += descriptor(KN, 256, 102)
    import subprocess, tempfile, re
    with tempfile.TemporaryDirectory() as td:
        open(td + "/a.s", "w").write(s.replace("CODE_LAST", "0x12345"))
        subprocess.run(["clang", "-x", "assembler", "-target", "amdgcn-amd-amdhsa", "-mcpu=gfx950", "-c", td + "/a.s", "-o", td + "/a.o"], check=True)
        o = subprocess.run(["llvm-objdump", "-h", td + "/a.o"], capture_output=True, text=True).stdout
    size = int(re.search(r"\.text\s+([0-9a-f]+)", o).group(1), 16)
    print("code bytes", size)
    assert size <= 65536
    return s.replace("CODE_LAST", hex(size - 4))

if __name__ == "__main__":
    out = sys.argv[1] if len(sys.argv) > 1 and not sys.argv[1].startswith("--") else os.path.join(os.path.dirname(os.path.abspath(__file__)), "..", NAME + ".s")
    open(out, "w").write(build())
    print("wrote", out)
```

```python
import sys, os
sys.path.insert(0, os.path.dirname(os.path.abspath(__file__)))
from asmlib import Asm

NAME = "gated_mix__ssm_conv_s5__ssm_conv_h3__prompt"
OPT = {a[2:].split("=")[0]: (a.split("=")[1] if "=" in a else 1) for a in sys.argv if a.startswith("--")}
WS_BASE = int(OPT.get("wsbase", 0)) << 20
WS_H    = WS_BASE + 0
WS_KVT  = WS_BASE + (8 << 20)
WS_Y2T  = WS_BASE + (12 << 20)
WS_G    = WS_BASE + (16 << 20)
WS_EBOX = WS_BASE + (17 << 20)

P = dict(x=16, Lre=18, Lim=20, Bre=22, Bim=24, Cre=26, Cim=28, logdt=30, Dskip=32, q=34, k=36, v=38,
         shk=40, ssmk=42, ssmD=44, gw=46, out=48, dbg=50, ws=52)
def sp(n): return f"s[{P[n]}:{P[n]+1}]"
def vr(a, n=1): return f"v{a}" if n == 1 else f"v[{a}:{a+n-1}]"
def sr(a, n=1): return f"s{a}" if n == 1 else f"s[{a}:{a+n-1}]"

def load_kernargs(A):
    A("s_load_dwordx16 s[16:31], s[0:1], 0")
    A("s_load_dwordx16 s[32:47], s[0:1], 64")
    A("s_load_dwordx4 s[48:51], s[0:1], 128")
    A("s_load_dwordx2 s[52:53], s[0:1], 144")

def srd(A, d, ptr, nbytes, off=0, off_sreg=None):
    p = P[ptr]
    if off == 0 and off_sreg is None:
        A(f"s_mov_b32 s{d}, s{p}")
        A(f"s_mov_b32 s{d+1}, s{p+1}")
    else:
        if off_sreg is None:
            A(f"s_add_u32 s{d}, s{p}, {off:#x}")
            A(f"s_addc_u32 s{d+1}, s{p+1}, 0")
        else:
            A(f"s_add_u32 s{d}, s{p}, s{off_sreg}")
            A(f"s_addc_u32 s{d+1}, s{p+1}, 0")
            if off:
                A(f"s_add_u32 s{d}, s{d}, {off:#x}")
                A(f"s_addc_u32 s{d+1}, s{d+1}, 0")
    A(f"s_mov_b32 s{d+2}, {nbytes:#x}")
    A(f"s_mov_b32 s{d+3}, 0x20000")

SAFE_PK = [False]
def pk(op, d, a, b, c=None, bsel=None, neg_b=False, asel=None, neg_lo=None, neg_hi=None):
    if not SAFE_PK[0]:
        L = []
        for w in range(2):
            aa = a + (1 - w if asel == "swap" else w)
            bb = b + (bsel if bsel is not None else w)
            na = (neg_lo if w == 0 else neg_hi)
            sa = "-" if (na and na[0]) else ""
            sb = "-" if neg_b else ""
            if op == "fma": L.append(f"v_fma_f32 v{d+w}, {sa}v{aa}, {sb}v{bb}, v{c+w}")
            else:
                assert not sa and not sb
                L.append(f"v_{op}_f32 v{d+w}, v{aa}, v{bb}")
        return "\n".join(L)
    n = 3 if c is not None else 2
    osl = [0]*n; osh = [1]*n
    if bsel is not None:
        osl[1] = bsel; osh[1] = bsel
    if asel == "swap":
        osl[0] = 1; osh[0] = 0
    s = f"v_pk_{op}_f32 {vr(d,2)}, {vr(a,2)}, {vr(b,2)}"
    if c is not None: s += f", {vr(c,2)}"
    s += " op_sel:[" + ",".join(map(str, osl)) + "] op_sel_hi:[" + ",".join(map(str, osh)) + "]"
    nl = [0]*n; nh = [0]*n
    if neg_b: nl[1] = 1; nh[1] = 1
    if neg_lo: nl = neg_lo
    if neg_hi: nh = neg_hi
    if any(nl): s += " neg_lo:[" + ",".join(map(str, nl)) + "]"
    if any(nh): s += " neg_hi:[" + ",".join(map(str, nh)) + "]"
    return s

def cmul(A, d, a, b, add=None, t=None):
    o = d if t is None else t
    if add is None:
        A(f"v_mul_f32 v{o}, v{a}, v{b}")
        A(f"v_mul_f32 v{o+1}, v{a}, v{b+1}")
    else:
        A(f"v_fma_f32 v{o}, v{a}, v{b}, v{add}")
        A(f"v_fma_f32 v{o+1}, v{a}, v{b+1}, v{add+1}")
    A(f"v_fma_f32 v{o}, -v{a+1}, v{b+1}, v{o}")
    A(f"v_fma_f32 v{o+1}, v{a+1}, v{b}, v{o+1}")
    if t is not None:
        A(f"v_mov_b32 v{d}, v{t}")
        A(f"v_mov_b32 v{d+1}, v{t+1}")

STAMPS = "--stamps" in sys.argv
class Stamper:
    def __init__(self, A, kern, reg=250): self.A = A; self.n = 0; self.kern = kern; self.reg = reg
    def __call__(self, name="", final=False):
        if not STAMPS or self.n >= 16: return
        if "--stampmin" in sys.argv and not final and not (self.n == 0 and self.kern == 0): return
        self.A(f"s_memrealtime s[98:99]")
        self.A(f"s_memtime s[96:97]")
        self.A("s_waitcnt lgkmcnt(0)")
        self.A(f"v_writelane_b32 v{self.reg}, s98, {self.n}")
        self.A(f"v_writelane_b32 v{self.reg}, s96, {self.n+16}")
        self.n += 1
    def flush(self):
        if not STAMPS: return
        A = self.A
        A("s_mov_b64 exec, -1")
        A("s_waitcnt vmcnt(0)")
        self(final=True)
        srd(A, 92, "ws", 1 << 20, (20 << 20) + self.kern * (256 << 10))
        A("v_and_b32 v254, 63, v0")
        A("v_lshrrev_b32 v253, 6, v0")
        A("v_lshlrev_b32 v253, 7, v253")
        A("v_lshl_add_u32 v253, v254, 2, v253")
        A("s_lshl_b32 s98, s2, 10")
        A("v_add_u32 v253, s98, v253")
        A("s_mov_b32 exec_hi, 0")
        A(f"buffer_store_dword v{self.reg}, v253, s[92:95], 0 offen")

def tile_ids(A):
    A("s_and_b32 s54, s2, 7")
    A("s_lshr_b32 s55, s2, 3")
    A("s_lshr_b32 s4, s54, 1")
    A("s_lshl_b32 s4, s4, 2")
    A("s_and_b32 s6, s55, 3")
    A("s_add_u32 s4, s4, s6")
    A("s_and_b32 s5, s54, 1")
    A("s_lshl_b32 s5, s5, 3")
    A("s_lshr_b32 s6, s55, 2")
    A("s_add_u32 s5, s5, s6")

K1_NST = 16
def gen_k1(A):
    A("k1_kernel:")
    A("s_cmp_ge_u32 s2, 256")
    A("s_cbranch_scc1 k1_end")
    load_kernargs(A)
    tile_ids(A)
    A("v_and_b32 v1, 63, v0")
    A("v_lshrrev_b32 v2, 6, v0")
    A("v_readfirstlane_b32 s3, v2")
    A("s_cmp_ge_u32 s3, 4")
    A("s_cbranch_scc1 k1_helper")
    gen_k1_consumer(A)
    A("k1_helper:")
    gen_k1_helper(A)
    A("k1_end:")
    A("s_endpgm")

def gen_k1_consumer(A):
    ACC = 64
    FA, FB = 128, 144
    AD, BD = 160, 168
    LAM, C2, MU, MU2, MU4, MU8 = 176, 178, 180, 182, 184, 186
    EL = 192
    UR2 = 224
    ST = Stamper(A, 0, 63)
    ST()
    A("s_and_b32 s6, s3, 1")
    A("s_lshr_b32 s7, s3, 1")
    A("v_and_b32 v4, 31, v1")
    A("s_lshl_b32 s8, s5, 6")
    A("s_lshl_b32 s9, s7, 5")
    A("s_add_u32 s8, s8, s9")
    A("v_add_u32 v3, s8, v4")
    A("v_lshlrev_b32 v5, 1, v3")
    A("v_lshrrev_b32 v6, 5, v1")
    A("s_lshl_b32 s10, s4, 1")
    A("s_add_u32 s10, s10, s6")
    A("s_waitcnt lgkmcnt(0)")
    A(f"global_load_ushort v8, v5, {sp('Lre')}")
    A(f"global_load_ushort v9, v5, {sp('Lim')}")
    A(f"global_load_ushort v10, v5, {sp('logdt')}")
    srd(A, 56, "ws", 256 << 10, WS_EBOX)
    srd(A, 60, "ws", 8 << 20, WS_H)
    srd(A, 64, "dbg", 256)
    A("s_lshl_b32 s11, s10, 13")
    A("v_lshl_add_u32 v7, v3, 3, s11")
    A("v_mov_b32 v12, 0")
    A("v_mov_b32 v13, 0")
    A("buffer_store_dwordx2 v[12:13], v7, s[56:59], 0 offen sc1")
    TD = int(OPT.get("touch", 0))
    TSTR = int(OPT.get("tstr", 128))
    ntouch0 = 0
    def touch(sl):
        A(f"global_load_dword v61, v[188:189], off offset:{sl*128}")
        if TSTR == 64: A(f"global_load_dword v61, v[188:189], off offset:{sl*128+64}")
    if TD:
        A("v_lshrrev_b32 v16, 4, v1")
        A(f"v_mov_b32 v188, s{P['x']}")
        A(f"v_mov_b32 v189, s{P['x']+1}")
        A(f"v_mov_b32 v17, s{P['Bre']}")
        A(f"v_mov_b32 v18, s{P['Bre']+1}")
        A("v_cmp_eq_u32 vcc, 1, v16")
        A("v_cndmask_b32 v188, v188, v17, vcc")
        A("v_cndmask_b32 v189, v189, v18, vcc")
        A(f"v_mov_b32 v17, s{P['Bim']}")
        A(f"v_mov_b32 v18, s{P['Bim']+1}")
        A("v_cmp_eq_u32 vcc, 2, v16")
        A("v_cndmask_b32 v188, v188, v17, vcc")
        A("v_cndmask_b32 v189, v189, v18, vcc")
        A("s_lshr_b32 s11, s54, 1")
        A("s_and_b32 s12, s54, 1")
        A("v_mov_b32 v17, s11")
        A("v_mov_b32 v18, s12")
        A("v_add_u32 v16, -1, v16")
        A("v_cmp_gt_u32 vcc, 2, v16")
        A("v_cndmask_b32 v17, v17, v18, vcc")
        A("v_lshlrev_b32 v17, 9, v17")
        A("v_and_b32 v18, 15, v1")
        A("s_lshl_b32 s11, s55, 4")
        A("v_add3_u32 v17, v17, v18, s11")
        A("v_lshlrev_b32 v17, 11, v17")
        A("v_add_co_u32 v188, vcc, v188, v17")
        A("v_addc_co_u32 v189, vcc, 0, v189, vcc")
        A("s_lshl_b32 s11, s3, 7")
        A("v_add_co_u32 v188, vcc, s11, v188")
        A("v_addc_co_u32 v189, vcc, 0, v189, vcc")
        for sl in range(0, TD, 4):
            touch(sl); ntouch0 += 2 if TSTR == 64 else 1
    A("v_bfe_u32 v11, v1, 1, 3")
    A("v_xor_b32 v11, v11, v6")
    A("s_lshl_b32 s11, s6, 13")
    A("v_lshl_add_u32 v14, v4, 7, s11")
    A("s_lshl_b32 s11, s7, 12")
    A("s_add_u32 s11, s11, 16384")
    A("v_lshl_add_u32 v15, v4, 7, s11")
    for ks in range(4):
        A(f"v_xor_b32 v16, {2*ks}, v11")
        A(f"v_lshl_add_u32 v{AD+ks}, v16, 4, v14")
        A(f"v_lshl_add_u32 v{BD+ks}, v16, 4, v15")
        A(f"v_add_u32 v{AD+4+ks}, 0x10000, v{AD+ks}")
        A(f"v_add_u32 v{BD+4+ks}, 0x10000, v{BD+ks}")
    for r in range(64):
        A(f"v_mov_b32 v{ACC+r}, 0")
    A(f"s_waitcnt vmcnt({ntouch0})")
    A("v_lshlrev_b32 v8, 16, v8")
    A("v_lshlrev_b32 v9, 16, v9")
    A("v_lshlrev_b32 v10, 16, v10")
    A("s_mov_b32 s12, 0x3fb8aa3b")
    A("v_mul_f32 v10, s12, v10")
    A("v_exp_f32 v10, v10")
    A("v_cvt_pk_bf16_f32 v10, v10, v10")
    A("v_lshlrev_b32 v10, 16, v10")
    A("v_mul_f32 v16, v10, v8")
    A("v_mul_f32 v17, v10, v9")
    A("v_mul_f32 v16, s12, v16")
    A("v_exp_f32 v16, v16")
    A("v_mul_f32 v17, 0.15915494, v17")
    A("v_rndne_f32 v18, v17")
    A("v_sub_f32 v17, v17, v18")
    A("v_cos_f32 v18, v17")
    A("v_sin_f32 v19, v17")
    A(f"v_mul_f32 v{LAM}, v16, v18")
    A(f"v_mul_f32 v{LAM+1}, v16, v19")
    A(f"v_add_f32 v16, -1.0, v{LAM}")
    A("v_mul_f32 v17, v8, v8")
    A("v_fma_f32 v17, v9, v9, v17")
    A("v_rcp_f32 v17, v17")
    A("v_mul_f32 v18, v16, v8")
    A(f"v_fma_f32 v18, v{LAM+1}, v9, v18")
    A(f"v_mul_f32 v19, v{LAM+1}, v8")
    A("v_fma_f32 v19, -v16, v9, v19")
    A("v_add_f32 v17, v17, v17")
    A(f"v_mul_f32 v{C2}, v18, v17")
    A(f"v_mul_f32 v{C2+1}, v19, v17")
    cmul(A, 16, LAM, LAM)
    cmul(A, 18, 16, 16)
    cmul(A, 16, 18, 18)
    cmul(A, MU, 16, 16)
    cmul(A, MU2, MU, MU)
    cmul(A, MU4, MU2, MU2)
    cmul(A, MU8, MU4, MU4)

    def rd(stage, ks, buf, which):
        slot = stage % 4
        hi = 4 if slot >= 2 else 0
        so = (slot & 1) * 32768
        if which < 2:
            return f"ds_read_b128 {vr(FA+buf*8+which*4,4)}, v{AD+hi+ks} offset:{so + which*4096}"
        ri = which - 2
        return f"ds_read_b128 {vr(FB+buf*8+ri*4,4)}, v{BD+hi+ks} offset:{so + ri*8192}"
    def mf(buf, mt, ri):
        acc = ACC + ri*32 + mt*16
        if "mf16" in OPT:
            mf.cnt = getattr(mf, "cnt", 0) + 1
            o = acc + 8*((mf.cnt >> 2) & 1)
            return "\n".join(f"v_mfma_f32_16x16x32_bf16 {vr(o+4*z,4)}, {vr(FA+buf*8+mt*4,4)}, {vr(FB+buf*8+ri*4,4)}, {vr(o+4*z,4)}" for z in range(2))
        return f"v_mfma_f32_32x32x16_bf16 {vr(acc,16)}, {vr(FA+buf*8+mt*4,4)}, {vr(FB+buf*8+ri*4,4)}, {vr(acc,16)}"
    RD_ORDER = [0, 2, 1, 3]
    MF_ORDER = [(0,0), (1,0), (1,1), (0,1)]
    ST()
    A("s_barrier")
    ST()
    A("s_cmp_lg_u32 s3, 0")
    A("s_cbranch_scc1 k1c_noflag")
    A("s_lshl_b32 s11, 1, s4")
    A("v_mov_b32 v16, s11")
    A("s_lshl_b32 s11, s5, 4")
    A("v_mov_b32 v17, s11")
    A("s_mov_b64 exec, 1")
    A("buffer_atomic_or v16, v17, s[64:67], 0 offen sc1")
    A("s_mov_b64 exec, -1")
    A("k1c_noflag:")
    for w in RD_ORDER: A(rd(0, 0, 0, w))
    for s in range(K1_NST):
        for ks in range(4):
            buf = ks & 1
            last = (s == K1_NST-1 and ks == 3)
            if ks == 3 and not last:
                A("s_barrier")
            ns, nks = (s, ks+1) if ks < 3 else (s+1, 0)
            for i in range(4):
                if last:
                    A(f"s_waitcnt lgkmcnt({[2,1,0,0][i]})")
                elif i < 3:
                    A("s_waitcnt lgkmcnt(2)")
                if "nomfma" not in OPT: A(mf(buf, *MF_ORDER[i]))
                if not last and "nords" not in OPT: A(rd(ns, nks, buf ^ 1, RD_ORDER[i]))
            if s in (3, 7, 11) and ks == 3: ST()
            if TD and ks == 1 and s % 4 == 0 and s + TD < K1_NST: touch(s + TD)
            if s == 10 and ks == 0:
                A("s_lshl_b32 s11, s5, 4")
                A("v_mov_b32 v17, s11")
                A("buffer_load_dword v20, v17, s[64:67], 0 offen sc1")
    ST()
    def UR(t): return ACC + (t >> 3)*16 + 2*(t & 7)
    def UI(t): return ACC + 32 + (t >> 3)*16 + 2*(t & 7)
    E = [(24, 26), (28, 30)]
    cr, ci = UR(0), UI(0)
    for t in range(1, 16):
        nr, ni = E[t & 1]
        A(pk("fma", nr, cr, LAM, UR(t), bsel=0))
        A(pk("fma", ni, ci, LAM, UI(t), bsel=0))
        A(pk("fma", nr, ci, LAM, nr, bsel=1, neg_b=True))
        A(pk("fma", ni, cr, LAM, ni, bsel=1))
        cr, ci = nr, ni
    A("v_mov_b32 v32, v28\nv_mov_b32 v33, v30\nv_mov_b32 v34, v29\nv_mov_b32 v35, v31")
    cmul(A, 36, MU, 32, add=34)
    A("v_mov_b32 v38, v36\nv_mov_b32 v39, v37\nv_mov_b32 v40, 0\nv_mov_b32 v41, 0")
    A("v_permlane32_swap_b32 v40, v38")
    A("v_permlane32_swap_b32 v41, v39")
    cmul(A, 42, MU2, 40, add=36)
    A("v_or_b32 v42, 1, v42")
    A("s_mov_b32 s12, 0")
    A("s_mov_b32 s13, -1")
    A("s_mov_b64 exec, s[12:13]")
    A("buffer_store_dwordx2 v[42:43], v7, s[56:59], 0 offen sc1")
    A("s_mov_b64 exec, -1")
    ST()
    for t in range(16):
        n = UR2 + 2*t
        A(pk("mul", n, UR(t), C2, bsel=0))
        A(pk("fma", n, UI(t), C2, n, bsel=1, neg_b=True))
        A(pk("mul", UI(t), UI(t), C2, bsel=0))
        A(pk("fma", UI(t), UR(t), C2, UI(t), bsel=1))
    cmul(A, 44, C2, 40)
    cmul(A, 46, C2, 32)
    cmul(A, 48, C2, MU2)
    A("v_cmp_lt_u32 vcc, 31, v1")
    A(f"v_cndmask_b32 v48, v{C2}, v48, vcc")
    A(f"v_cndmask_b32 v49, v{C2+1}, v49, vcc")
    A("v_lshlrev_b32 v50, 13, v6")
    A("v_sub_u32 v50, v7, v50")
    for k in range(16):
        A(f"v_subrev_u32 v{128+k}, {(1+2*k)*8192:#x}, v50")
    A("s_add_u32 s11, s10, 1")
    A("v_sub_u32 v51, s11, v6")
    A("v_lshrrev_b32 v51, 1, v51")
    A("s_lshl_b32 s14, 1, s4")
    A("s_sub_u32 s14, s14, 1")
    ST()
    A("s_waitcnt vmcnt(1)")
    A("k1c_flagchk:")
    A("v_readfirstlane_b32 s11, v20")
    A("s_and_b32 s11, s11, s14")
    A("s_cmp_eq_u32 s11, s14")
    A("s_cbranch_scc1 k1c_poll")
    A("s_sleep 2")
    A("buffer_load_dword v20, v17, s[64:67], 0 offen sc1")
    A("s_waitcnt vmcnt(0)")
    A("s_branch k1c_flagchk")
    A("k1c_poll:")
    for k in range(16):
        A(f"buffer_load_dwordx2 {vr(EL+2*k,2)}, v{128+k}, s[56:59], 0 offen sc1")
    A("s_waitcnt vmcnt(0)")
    A("v_mov_b32 v52, 0")
    for k in range(0, 16, 2):
        A(f"v_and_b32 v53, 1, v{EL+2*k}")
        A(f"v_and_b32 v54, 1, v{EL+2*k+2}")
        A("v_add3_u32 v52, v52, v53, v54")
    A("v_cmp_ne_u32 vcc, v52, v51")
    A("s_cmp_lg_u64 vcc, 0")
    A("s_cbranch_scc1 k1c_poll")
    ST()
    g = EL + 30
    G = [52, 54]
    for k in range(14, -1, -1):
        n = G[k & 1]
        A(pk("fma", n, g, MU8, EL+2*k, bsel=0))
        A(pk("fma", n, g, MU8, n, bsel=1, asel="swap", neg_lo=[1,0,0]))
        g = n
    A("v_mov_b32 v54, v52\nv_mov_b32 v55, v53\nv_mov_b32 v56, v52\nv_mov_b32 v57, v53")
    A("v_permlane32_swap_b32 v54, v56")
    A("v_permlane32_swap_b32 v55, v57")
    cmul(A, 58, MU4, 56, add=54)
    cmul(A, 52, 48, 58, add=44)
    cmul(A, 54, MU, 52, add=46)
    A("v_mov_b32 v56, v52\nv_mov_b32 v57, v54\nv_mov_b32 v58, v53\nv_mov_b32 v59, v55")
    cr, ci = 56, 58
    for t in range(16):
        nr, ni = UR2 + 2*t, UI(t)
        A(pk("fma", nr, cr, LAM, nr, bsel=0))
        A(pk("fma", ni, ci, LAM, ni, bsel=0))
        A(pk("fma", nr, ci, LAM, nr, bsel=1, neg_b=True))
        A(pk("fma", ni, cr, LAM, ni, bsel=1))
        cr, ci = nr, ni
    ST()
    A("s_lshl_b32 s11, s3, 13")
    A("s_add_u32 s11, s11, 0x20000")
    A("v_lshl_add_u32 v16, v6, 11, s11")
    A("v_lshl_add_u32 v16, v4, 6, v16")
    A("v_bfe_u32 v17, v1, 1, 2")
    for q in range(4):
        A(f"v_xor_b32 v18, {q}, v17")
        A(f"v_lshl_add_u32 v{20+q}, v18, 4, v16")
    for plane in range(2):
        for e in range(2):
            for hf in range(2):
                d = 128 + ((plane*2 + e)*2 + hf)*4
                for m in range(4):
                    t = hf*8 + 2*m
                    if plane == 0:
                        A(f"v_cvt_pk_bf16_f32 v{d+m}, v{UR2+2*t+e}, v{UR2+2*(t+1)+e}")
                    else:
                        A(f"v_cvt_pk_bf16_f32 v{d+m}, -v{UI(t)+e}, -v{UI(t+1)+e}")
                A(f"ds_write_b128 v{20+2*e+hf}, {vr(d,4)} offset:{plane*4096}")
    A("v_bfe_u32 v16, v1, 2, 2")
    A("v_lshl_add_u32 v16, v6, 3, v16")
    A("v_and_b32 v17, 1, v1")
    A("v_bfe_u32 v18, v1, 4, 1")
    A("v_lshl_add_u32 v17, v17, 1, v18")
    A("v_bfe_u32 v18, v16, 1, 2")
    A("v_xor_b32 v17, v17, v18")
    A("v_lshlrev_b32 v17, 4, v17")
    A("v_lshl_add_u32 v17, v16, 6, v17")
    A("v_bfe_u32 v18, v1, 1, 1")
    A("v_lshl_add_u32 v17, v18, 3, v17")
    A("v_add_u32 v17, s11, v17")
    A("v_xor_b32 v18, 32, v17")
    A("v_add_u32 v18, 256, v18")
    A("s_lshl_b32 s11, s10, 18")
    A("s_lshl_b32 s12, s5, 13")
    A("s_add_u32 s11, s11, s12")
    A("s_lshl_b32 s12, s7, 11")
    A("s_add_u32 s11, s11, s12")
    A("v_lshl_add_u32 v19, v1, 4, s11")
    A("s_waitcnt lgkmcnt(0)")
    idx = 0
    for tblk in range(2):
        for plane in range(2):
            for ksl in range(2):
                d = 160 + idx*4
                o = plane*4096 + tblk*2048 + ksl*1024
                A(f"ds_read_b64_tr_b16 {vr(d,2)}, v17 offset:{o}")
                A(f"ds_read_b64_tr_b16 {vr(d+2,2)}, v18 offset:{o}")
                idx += 1
    idx = 0
    for tblk in range(2):
        for plane in range(2):
            A(f"s_mov_b32 s12, {tblk*131072 + plane*4096:#x}")
            for ksl in range(2):
                d = 160 + idx*4
                A(f"s_waitcnt lgkmcnt({14 - 2*idx})")
                A(f"buffer_store_dwordx4 {vr(d,4)}, v19, s[60:63], s12 offen offset:{ksl*1024}")
                idx += 1
    ST()
    ST.flush()
    A("s_endpgm")

def gen_k1_helper(A):
    VA, VB = 8, 12
    ST = Stamper(A, 0)
    ST()
    A("s_sub_u32 s3, s3, 4")
    A("s_lshr_b32 s6, s3, 1")
    A("s_and_b32 s7, s3, 1")
    A("v_lshrrev_b32 v3, 5, v1")
    A("v_lshlrev_b32 v3, 5, v3")
    A("v_bfe_u32 v4, v1, 3, 1")
    A("v_lshl_add_u32 v3, v4, 4, v3")
    A("v_bfe_u32 v4, v1, 4, 1")
    A("v_add_u32 v3, v3, v4")
    A("s_lshl_b32 s8, s4, 7")
    A("s_lshl_b32 s9, s6, 6")
    A("s_add_u32 s8, s8, s9")
    A("s_lshl_b32 s9, s7, 3")
    A("s_add_u32 s8, s8, s9")
    A("v_add_u32 v3, s8, v3")
    A("v_lshlrev_b32 v3, 11, v3")
    A("v_and_b32 v4, 7, v1")
    A("v_lshrrev_b32 v5, 4, v1")
    A("v_xor_b32 v4, v4, v5")
    A("v_lshlrev_b32 v4, 4, v4")
    A("v_xor_b32 v5, 64, v4")
    A("s_lshl_b32 s8, s5, 6")
    A("s_lshl_b32 s9, s7, 5")
    A("s_add_u32 s8, s8, s9")
    A("v_lshrrev_b32 v6, 3, v1")
    A("v_add_u32 v6, s8, v6")
    A("v_lshlrev_b32 v6, 11, v6")
    for n in range(4):
        c = 4 + (n & 1)
        A(f"v_add_u32 v{VA+n}, v3, v{c}")
        A(f"v_add_u32 v{VB+n}, v6, v{c}")
        if n:
            A(f"v_add_u32 v{VA+n}, {n*(4096-1024)}, v{VA+n}")
            A(f"v_add_u32 v{VB+n}, {n*(16384-1024)}, v{VB+n}")
    A("s_lshl_b32 s10, s3, 12")
    A("s_waitcnt lgkmcnt(0)")
    srd(A, 56, "x", 4 << 20)
    A("s_cmp_ge_u32 s3, 2")
    A(f"s_cselect_b32 s60, s{P['Bim']}, s{P['Bre']}")
    A(f"s_cselect_b32 s61, s{P['Bim']+1}, s{P['Bre']+1}")
    A(f"s_mov_b32 s62, {2<<20:#x}")
    A("s_mov_b32 s63, 0x20000")
    NTG = " nt" if "ntg" in OPT else ""
    NTP = " nt" if "ntp" in OPT else ""
    if "rot" in OPT:
        A("s_lshr_b32 s90, s55, 2")
        A("s_lshl_b32 s90, s90, 1")
        A("s_and_b32 s91, s55, 3")
        A("s_lshl_b32 s91, s91, 2")
        A("s_add_u32 s90, s90, s91")
    def issue(st):
        slot = st % 4
        if "rot" in OPT:
            A(f"s_add_u32 s11, s90, {st}")
            A("s_and_b32 s11, s11, 15")
            A("s_lshl_b32 s11, s11, 7")
        else:
            A(f"s_mov_b32 s11, {st*128}")
        A(f"s_add_u32 m0, s10, {slot*32768:#x}")
        for n in range(4):
            A(f"buffer_load_dwordx4 v{VA+n}, s[56:59], s11 offen offset:{n*1024} lds{NTG}")
        A(f"s_add_u32 m0, s10, {slot*32768+16384:#x}")
        for n in range(4):
            A(f"buffer_load_dwordx4 v{VB+n}, s[60:63], s11 offen offset:{n*1024} lds{NTG}")
    for st in range(3): issue(st)
    KR, VR_, SK = 32, 52, 68
    XG, GW = 72, 88
    A("s_and_b32 s12, s55, 1")
    A("s_lshl_b32 s13, s54, 1")
    A("s_add_u32 s12, s12, s13")
    A("s_lshr_b32 s13, s55, 1")
    A("s_lshl_b32 s13, s13, 7")
    A("s_lshl_b32 s14, s3, 5")
    A("s_add_u32 s13, s13, s14")
    A("v_lshrrev_b32 v16, 5, v1")
    A("v_lshl_add_u32 v16, v16, 4, s13")
    A("v_and_b32 v17, 31, v1")
    A("s_lshl_b32 s14, s12, 5")
    A("v_add_u32 v17, s14, v17")
    A("v_lshlrev_b32 v18, 11, v16")
    A("v_lshl_add_u32 v18, v17, 2, v18")
    for i in range(3):
        A(f"v_subrev_u32 v{19+i}, {(3-i)*2048}, v18")
    A("v_lshlrev_b32 v22, 4, v17")
    A("v_lshlrev_b32 v23, 13, v17")
    A("v_lshlrev_b32 v24, 1, v16")
    A("v_sub_u32 v23, v23, v24")
    A("v_add_u32 v23, 4064, v23")
    A("s_lshl_b32 s14, s4, 7")
    A("s_lshl_b32 s15, s5, 3")
    A("s_add_u32 s14, s14, s15")
    A("s_lshl_b32 s15, s3, 1")
    A("s_add_u32 s14, s14, s15")
    A("s_lshl_b32 s15, s14, 11")
    A("v_lshlrev_b32 v25, 4, v1")
    A("v_add_u32 v26, s15, v25")
    srd(A, 64, "k", 4 << 20)
    srd(A, 68, "v", 4 << 20)
    srd(A, 72, "ws", 4 << 20, WS_KVT)
    srd(A, 76, "ws", 8192, WS_G)
    for i in range(8):
        A(f"s_mov_b32 s{80+i}, {i*4096}")
    NPREP = 19 + 16 + 1 + 4 + 2
    def prep_loads():
        for i in range(3):
            A(f"buffer_load_dword v{KR+i}, v{19+i}, s[64:67], 0 offen{NTP}")
        for i in range(16):
            A(f"buffer_load_dword v{KR+3+i}, v18, s[64:67], s{80+(i>>1)} offen offset:{(i&1)*2048}{NTP}")
        A(f"global_load_dwordx4 {vr(SK,4)}, v22, {sp('shk')}")
        for i in range(16):
            A(f"buffer_load_dword v{VR_+i}, v18, s[68:71], s{80+(i>>1)} offen offset:{(i&1)*2048}{NTP}")
        for r in range(2):
            for hh in range(2):
                A(f"buffer_load_dwordx4 {vr(XG+r*8+hh*4,4)}, v26, s[56:59], 0 offen offset:{r*2048+hh*1024}")
        for hh in range(2):
            A(f"global_load_dwordx4 {vr(GW+hh*4,4)}, v25, {sp('gw')} offset:{hh*1024}")
    ST()
    A("s_waitcnt vmcnt(16)")
    ST()
    A("s_barrier")
    for s in range(K1_NST-1):
        younger = (8 if s+2 < K1_NST else 0) + (NPREP if s >= 13 else 0)
        A(f"s_waitcnt vmcnt({younger})")
        A("s_barrier")
        if s+3 < K1_NST and "nodma" not in OPT: issue(s+3)
        if s == 12: prep_loads()
    ST()
    KF = 96
    SP = 136
    OUT = 144
    A("s_mov_b32 s12, 0xffff0000")
    A(f"s_waitcnt vmcnt({16+6})")
    ST()
    for i in range(19):
        A(f"v_lshlrev_b32 v{KF+2*i}, 16, v{KR+i}")
        A(f"v_and_b32 v{KF+2*i+1}, s12, v{KR+i}")
    for jx in range(4):
        for cc in range(2):
            src = SK + cc*2 + (jx >> 1)
            if jx & 1: A(f"v_and_b32 v{SP+2*jx+cc}, s12, v{src}")
            else: A(f"v_lshlrev_b32 v{SP+2*jx+cc}, 16, v{src}")
    def rnd(pair, tmp):
        A(f"v_cvt_pk_bf16_f32 v{tmp}, v{pair}, v{pair+1}")
        A(f"v_lshlrev_b32 v{pair}, 16, v{tmp}")
        A(f"v_and_b32 v{pair+1}, s12, v{tmp}")
    A(f"s_waitcnt vmcnt(6)")
    for t in range(16):
        a, b, tm = 176 + (t & 1)*8, 178 + (t & 1)*8, 180 + (t & 1)*8
        vv = 182 + (t & 1)*8
        A(pk("mul", a, KF+2*t, SP+6))
        A(pk("mul", b, KF+2*(t+1), SP+4))
        rnd(a, tm); rnd(b, tm+1)
        A(pk("add", a, a, b))
        A(pk("mul", b, KF+2*(t+2), SP+2))
        rnd(a, tm); rnd(b, tm+1)
        A(pk("add", a, a, b))
        A(pk("mul", b, KF+2*(t+3), SP+0))
        rnd(a, tm); rnd(b, tm+1)
        A(pk("add", a, a, b))
        A(f"v_lshlrev_b32 v{vv}, 16, v{VR_+t}")
        A(f"v_and_b32 v{vv+1}, s12, v{VR_+t}")
        rnd(a, tm)
        A(pk("mul", OUT+2*t, a, vv))
    for cc in range(2):
        for hf in range(2):
            d = 192 + (cc*2+hf)*4
            for m in range(4):
                mm = hf*4 + m
                A(f"v_cvt_pk_bf16_f32 v{d+m}, v{OUT+2*(15-2*mm)+cc}, v{OUT+2*(14-2*mm)+cc}")
            A(f"buffer_store_dwordx4 {vr(d,4)}, v23, s[72:75], s{80+cc} offen offset:{hf*16}")
    ST()
    A("s_waitcnt vmcnt(4)")
    for i in range(8):
        A(f"v_lshlrev_b32 v{96+2*i}, 16, v{GW+i}")
        A(f"v_and_b32 v{97+2*i}, s12, v{GW+i}")
    for r in range(2):
        acc = 112 + r
        A(f"v_mov_b32 v{acc}, 0")
        for i in range(8):
            A(f"v_lshlrev_b32 v116, 16, v{XG+r*8+i}")
            A(f"v_and_b32 v117, s12, v{XG+r*8+i}")
            A(pk("mul", 116, 116, 96+2*i))
            rnd(116, 118)
            A(f"v_add_f32 v{acc}, v{acc}, v116")
            A(f"v_add_f32 v{acc}, v{acc}, v117")
    for r in range(2):
        acc = 112 + r
        for sh in (1, 2, 4, 8):
            A(f"v_add_f32_dpp v{acc}, v{acc}, v{acc} row_shr:{sh} row_mask:0xf bank_mask:0xf bound_ctrl:0")
        A(f"v_add_f32_dpp v{acc}, v{acc}, v{acc} row_bcast:15 row_mask:0xa bank_mask:0xf")
        A(f"v_add_f32_dpp v{acc}, v{acc}, v{acc} row_bcast:31 row_mask:0xc bank_mask:0xf")
    A("v_readlane_b32 s8, v112, 63")
    A("v_readlane_b32 s9, v113, 63")
    A("v_mov_b32 v116, s8")
    A("v_mov_b32 v117, s9")
    A("v_cmp_eq_u32 vcc, 1, v1")
    A("v_cndmask_b32 v116, v116, v117, vcc")
    A("v_cvt_pk_bf16_f32 v116, v116, v116")
    A("v_lshlrev_b32 v116, 16, v116")
    A("v_mul_f32 v116, 0xbfb8aa3b, v116")
    A("v_exp_f32 v116, v116")
    A("v_add_f32 v116, 1.0, v116")
    A("v_rcp_f32 v116, v116")
    A("v_cvt_pk_bf16_f32 v117, v116, v116")
    A("v_lshlrev_b32 v116, 16, v117")
    A("v_sub_f32 v118, 1.0, v116")
    A("v_cvt_pk_bf16_f32 v116, v116, v118")
    A("s_lshl_b32 s14, s14, 2")
    A("v_lshl_add_u32 v117, v1, 2, s14")
    A("s_mov_b64 exec, 3")
    A("buffer_store_dword v116, v117, s[76:79], 0 offen")
    ST()
    ST.flush()
    A("s_endpgm")

def descriptor(name, vgpr, sgpr=100):
    return f""".section .rodata,"a"
.p2align 6
.amdhsa_kernel {name}
  .amdhsa_next_free_vgpr {vgpr}
  .amdhsa_next_free_sgpr {sgpr}
  .amdhsa_accum_offset {min(256,(vgpr+3)//4*4)}
  .amdhsa_group_segment_fixed_size 0
  .amdhsa_kernarg_size 152
  .amdhsa_user_sgpr_count 2
  .amdhsa_user_sgpr_kernarg_segment_ptr 1
  .amdhsa_system_sgpr_workgroup_id_x 1
  .amdhsa_float_denorm_mode_32 3
.end_amdhsa_kernel
"""

def header_comments():
    ref = open(os.path.join(os.path.dirname(os.path.abspath(__file__)), "..", NAME + ".s.ref")).read().split("\n")
    out = []
    for l in ref:
        if not l.startswith(";"): break
        if "@launch" in l or "Override launch" in l or "grid=ceil" in l: continue
        out.append(l)
    return "\n".join(out) + "\n"

def build(with_k2=True):
    s = header_comments()
    s += "; generated by tools/gen.py\n"
    s += "; @launch kernel=k1_kernel grid=(256,1,1) block=(512,1,1) lds=163840\n"
    if with_k2:
        s += "; @launch kernel=k2_kernel grid=(256,1,1) block=(512,1,1) lds=163840\n"
    s += '.amdgcn_target "amdgcn-amd-amdhsa--gfx950"\n.text\n'
    A = Asm()
    A.raw(".globl k1_kernel\n.p2align 8\n.type k1_kernel,@function")
    gen_k1(A)
    if with_k2:
        from gen_k2 import gen_k2
        A.raw(".globl k2_kernel\n.p2align 8\n.type k2_kernel,@function")
        gen_k2(A)
    s += A.render()
    s += descriptor("k1_kernel", 256)
    if with_k2:
        s += descriptor("k2_kernel", 256)
    return s

if __name__ == "__main__":
    out = sys.argv[1] if len(sys.argv) > 1 and not sys.argv[1].startswith("--") else os.path.join(os.path.dirname(os.path.abspath(__file__)), "..", NAME + ".s")
    open(out, "w").write(build(with_k2="--k1only" not in sys.argv))
    print("wrote", out)
```

```python
import sys, os
sys.path.insert(0, os.path.dirname(os.path.abspath(__file__)))
from asmlib import Asm
from gen import (NAME, P, sp, vr, sr, load_kernargs, srd, pk, cmul, tile_ids, Stamper, OPT, header_comments, descriptor)
import gen

KN = NAME + "_kernel"
WS_H    = 0
WS_KVT  = 8 << 20
WS_G    = 16 << 20
WS_EBOX = 17 << 20
WS_FLG  = 18 << 20
HF_OFF  = 0
KF_OFF  = 128 << 10
YF_OFF  = 160 << 10
PF_OFF  = 192 << 10
FLG_SZ  = 320 << 10
WS_PART = 24 << 20
N1 = 16
N2 = 16
NS2 = 4
PD = 4
CRING = 32768
KREG = 98304
UREG = KREG + 4*8320
LFLAG = UREG + 4*4608
SPIN = int(OPT.get("spin", 1 << 16))
SLEEP = int(OPT.get("sleep", 4))
def opt(k, d): return int(OPT.get(k, d))

class VQ:
    def __init__(self, A): self.A = A; self.n = 0; self.tags = {}; self.done = 0
    def issue(self, text, tag=None):
        self.A(text); self.n += 1
        if tag is not None: self.tags[tag] = self.n
    def wait(self, tag):
        k = self.tags[tag]
        if k <= self.done: return
        cnt = min(63, self.n - k)
        self.A(f"s_waitcnt vmcnt({cnt})"); self.done = self.n - cnt
    def drained(self): self.done = self.n

class LQ:
    def __init__(self, A): self.A = A; self.n = 0; self.tags = {}; self.done = 0
    def issue(self, text, tag=None):
        self.A(text); self.n += 1
        if tag is not None: self.tags[tag] = self.n
    def wait(self, tag):
        k = self.tags[tag]
        if k > self.done:
            self.A(f"s_waitcnt lgkmcnt({min(15, self.n - k)})"); self.done = max(k, self.n - 15)
    def drain(self):
        self.A("s_waitcnt lgkmcnt(0)"); self.done = self.n

def spin_all(A, name, vreg, reload, cmpval="1", sctr=89, pre=None):
    A(f"s_mov_b32 s{sctr}, {SPIN}")
    A(f"{name}_chk:")
    if pre: A(pre)
    A(f"v_cmp_ne_u32 vcc, {cmpval}, v{vreg}")
    A("s_cmp_eq_u64 vcc, 0")
    A(f"s_cbranch_scc1 {name}_ok")
    A(f"s_sub_u32 s{sctr}, s{sctr}, 1")
    A(f"s_cbranch_scc1 {name}_ok")
    A(f"s_sleep {SLEEP}")
    A(reload)
    A("s_waitcnt vmcnt(0)")
    A(f"s_branch {name}_chk")
    A(f"{name}_ok:")

def lds_spin(A, name, vaddr, off, vtmp, target, stmp=8, sctr=89):
    A(f"s_mov_b32 s{sctr}, {SPIN*4}")
    A(f"{name}:")
    A(f"ds_read_b32 v{vtmp}, v{vaddr} offset:{off}")
    A("s_waitcnt lgkmcnt(0)")
    A(f"v_readfirstlane_b32 s{stmp}, v{vtmp}")
    A(f"s_cmp_ge_u32 s{stmp}, {target}")
    A(f"s_cbranch_scc1 {name}_ok")
    A(f"s_sub_u32 s{sctr}, s{sctr}, 1")
    A(f"s_cbranch_scc0 {name}")
    A(f"{name}_ok:")

def lds_inc(A, vaddr, vone, off):
    A("s_mov_b64 exec, 1")
    A(f"ds_add_u32 v{vaddr}, v{vone} offset:{off}")
    A("s_mov_b64 exec, -1")

def zip_chains(A, chains):
    chains = [[x for t in c for x in t.split("\n")] for c in chains]
    for i in range(max(len(c) for c in chains)):
        for c in chains:
            if i < len(c): A(c[i])

def local_check(A, vbits, vtmp, sdst_pair, stmp):
    A(f"s_getreg_b32 s{stmp}, hwreg(HW_REG_XCC_ID, 0, 4)")
    A(f"s_lshl_b32 s{stmp}, 0x100, s{stmp}")
    A(f"s_or_b32 s{stmp}, s{stmp}, 15")
    A(f"v_and_b32 v{vtmp}, 7, v1")
    A(f"v_cmp_eq_u32 s[{sdst_pair}:{sdst_pair+1}], s54, v{vtmp}")
    A(f"v_cmp_ne_u32 vcc, s{stmp}, v{vbits}")
    A(f"s_and_b64 vcc, vcc, s[{sdst_pair}:{sdst_pair+1}]")

SNT = opt("snt", 1)
PB = opt("pb", 1)
NPQ = 4 if PB else 8
ORD = opt("ord", 1)
def tile_of(A, i, dst):
    if i == 0: A(f"s_mov_b32 s{dst}, s15")
    elif ORD:
        A(f"s_cmp_le_u32 s15, {i-1}")
        A(f"s_cselect_b32 s{dst}, {i}, {i-1}")
    else:
        A(f"s_add_u32 s{dst}, s15, {i}")
        A(f"s_and_b32 s{dst}, s{dst}, 7")

def gen_kernel(A):
    A(f"{KN}:")
    A("s_cmp_ge_u32 s2, 256")
    A("s_cbranch_scc1 L_end")
    load_kernargs(A)
    tile_ids(A)
    A("v_and_b32 v1, 63, v0")
    A("v_lshrrev_b32 v2, 6, v0")
    A("s_and_b32 s15, s5, 7")
    A("v_readfirstlane_b32 s3, v2")
    A("s_cmp_ge_u32 s3, 4")
    A("s_cbranch_scc0 L_consumer")
    helper(A)
    A("L_consumer:")
    consumer(A)
    A("L_end:")
    A("s_endpgm")


def consumer(A):
    ACC = 64
    FA, FB = 128, 144
    AD, BD = 160, 168
    LAM, C2, MU, MU2, MU4, MU8 = 176, 178, 180, 182, 184, 186
    EL = 192
    UR2 = 224
    ST = Stamper(A, 0, 63)
    ST()
    A(f"s_setprio {opt('prio', 2)}")
    A("s_and_b32 s6, s3, 1")
    A("s_lshr_b32 s7, s3, 1")
    A("v_and_b32 v4, 31, v1")
    A("s_lshl_b32 s8, s5, 6")
    A("s_lshl_b32 s9, s7, 5")
    A("s_add_u32 s8, s8, s9")
    A("v_add_u32 v3, s8, v4")
    A("v_lshlrev_b32 v5, 1, v3")
    A("v_lshrrev_b32 v6, 5, v1")
    A("s_lshl_b32 s10, s4, 1")
    A("s_add_u32 s10, s10, s6")
    if "nocode" not in OPT:
        A("s_getpc_b64 s[12:13]")
        A("c_pc:")
        A(f"s_sub_u32 s12, s12, c_pc-{KN}")
        A("s_subb_u32 s13, s13, 0")
        A("s_lshl_b32 s11, s3, 14")
        A("v_lshl_add_u32 v24, v1, 7, s11")
        A("v_min_u32 v24, CODE_LAST, v24")
        A("global_load_dword v25, v24, s[12:13]")
        A("v_add_u32 v24, 0x2000, v24")
        A("v_min_u32 v24, CODE_LAST, v24")
        A("global_load_dword v26, v24, s[12:13]")
    A("s_waitcnt lgkmcnt(0)")
    A(f"global_load_ushort v8, v5, {sp('Lre')}")
    A(f"global_load_ushort v9, v5, {sp('Lim')}")
    A(f"global_load_ushort v10, v5, {sp('logdt')}")
    srd(A, 56, "ws", 256 << 10, WS_EBOX)
    srd(A, 60, "ws", 8 << 20, WS_H)
    srd(A, 64, "dbg", 256)
    srd(A, 68, "ws", FLG_SZ, WS_FLG)
    A("s_lshl_b32 s11, s10, 13")
    A("v_lshl_add_u32 v7, v3, 3, s11")
    A("v_mov_b32 v12, 0")
    A("v_mov_b32 v13, 0")
    A("buffer_store_dwordx2 v[12:13], v7, s[56:59], 0 offen sc1")
    A("s_lshl_b32 s11, s10, 4")
    A("s_add_u32 s11, s11, s5")
    A("s_lshl_b32 s11, s11, 1")
    A("s_add_u32 s11, s11, s7")
    A("s_lshl_b32 s11, s11, 7")
    A("v_mov_b32 v60, s11")
    A("buffer_store_dword v12, v60, s[68:71], 0 offen sc1")
    A("s_lshl_b32 s72, s4, 4")
    A("s_add_u32 s72, s72, s5")
    A("s_lshl_b32 s72, s72, 2")
    A("s_add_u32 s72, s72, s3")
    A("s_lshl_b32 s72, s72, 7")
    A(f"s_add_u32 s11, s72, {PF_OFF:#x}")
    A("v_mov_b32 v30, s11")
    A("buffer_store_dword v12, v30, s[68:71], 0 offen sc1")
    A("v_mov_b32 v23, 1")
    A("v_bfe_u32 v11, v1, 1, 3")
    A("v_xor_b32 v11, v11, v6")
    A("s_lshl_b32 s11, s6, 13")
    A("v_lshl_add_u32 v14, v4, 7, s11")
    A("s_lshl_b32 s11, s7, 12")
    A("s_add_u32 s11, s11, 16384")
    A("v_lshl_add_u32 v15, v4, 7, s11")
    for ks in range(4):
        A(f"v_xor_b32 v16, {2*ks}, v11")
        A(f"v_lshl_add_u32 v{AD+ks}, v16, 4, v14")
        A(f"v_lshl_add_u32 v{BD+ks}, v16, 4, v15")
        A(f"v_add_u32 v{AD+4+ks}, 0x10000, v{AD+ks}")
        A(f"v_add_u32 v{BD+4+ks}, 0x10000, v{BD+ks}")
    A("v_lshlrev_b32 v21, 2, v1")
    A("s_waitcnt vmcnt(0)")
    A("v_lshlrev_b32 v8, 16, v8")
    A("v_lshlrev_b32 v9, 16, v9")
    A("v_lshlrev_b32 v10, 16, v10")
    A("s_mov_b32 s12, 0x3fb8aa3b")
    A("v_mul_f32 v10, s12, v10")
    A("v_exp_f32 v10, v10")
    A("v_cvt_pk_bf16_f32 v10, v10, v10")
    A("v_lshlrev_b32 v10, 16, v10")
    A("v_mul_f32 v16, v10, v8")
    A("v_mul_f32 v17, v10, v9")
    A("v_mul_f32 v16, s12, v16")
    A("v_exp_f32 v16, v16")
    A("v_mul_f32 v17, 0.15915494, v17")
    A("v_rndne_f32 v18, v17")
    A("v_sub_f32 v17, v17, v18")
    A("v_cos_f32 v18, v17")
    A("v_sin_f32 v19, v17")
    A(f"v_mul_f32 v{LAM}, v16, v18")
    A(f"v_mul_f32 v{LAM+1}, v16, v19")
    A(f"v_add_f32 v16, -1.0, v{LAM}")
    A("v_mul_f32 v17, v8, v8")
    A("v_fma_f32 v17, v9, v9, v17")
    A("v_rcp_f32 v17, v17")
    A("v_mul_f32 v18, v16, v8")
    A(f"v_fma_f32 v18, v{LAM+1}, v9, v18")
    A(f"v_mul_f32 v19, v{LAM+1}, v8")
    A("v_fma_f32 v19, -v16, v9, v19")
    A("v_add_f32 v17, v17, v17")
    A(f"v_mul_f32 v{C2}, v18, v17")
    A(f"v_mul_f32 v{C2+1}, v19, v17")
    cmul(A, 16, LAM, LAM); cmul(A, 18, 16, 16); cmul(A, 16, 18, 18)
    cmul(A, MU, 16, 16); cmul(A, MU2, MU, MU); cmul(A, MU4, MU2, MU2); cmul(A, MU8, MU4, MU4)
    cmul(A, 48, C2, MU2)
    A("v_cmp_lt_u32 vcc, 31, v1")
    A(f"v_cndmask_b32 v48, v{C2}, v48, vcc")
    A(f"v_cndmask_b32 v49, v{C2+1}, v49, vcc")
    A("v_lshlrev_b32 v50, 13, v6")
    A("v_sub_u32 v50, v7, v50")
    A("s_add_u32 s11, s10, 1")
    A("v_sub_u32 v51, s11, v6")
    A("v_lshrrev_b32 v51, 1, v51")
    A("s_lshl_b32 s11, s4, 2")
    A("s_add_u32 s11, s11, s3")
    A("s_lshl_b32 s11, s11, 5")
    A("v_lshrrev_b32 v52, 3, v1")
    A("v_add_u32 v52, s11, v52")
    A("v_lshlrev_b32 v52, 11, v52")
    A("v_and_b32 v16, 7, v1")
    A("v_lshl_add_u32 v52, v16, 4, v52")
    A("s_lshl_b32 s11, s5, 7")
    A("v_add_u32 v52, s11, v52")
    A("s_lshl_b32 s11, s3, 13")
    A("v_lshlrev_b32 v53, 11, v6")
    A("v_lshl_add_u32 v53, v4, 1, v53")
    A("v_add_u32 v53, s11, v53")
    A("s_lshl_b32 s11, s5, 6")
    A("v_add_u32 v54, s11, v4")
    A("v_lshlrev_b32 v54, 1, v54")
    srd(A, 76, "x", 4 << 20)
    srd(A, 92, "ws", 8 << 20, WS_PART)
    A("s_xor_b32 s73, s72, 4096")
    A("s_lshl_b32 s74, s73, 6")
    A("s_add_u32 s75, s74, 4096")
    A("v_lshlrev_b32 v59, 4, v1")

    def rd(stage, ks, buf, which):
        slot = stage % 3
        hi = 4 if slot >= 2 else 0
        so = (slot & 1) * 32768
        if which < 2:
            return f"ds_read_b128 {vr(FA+buf*8+which*4,4)}, v{AD+hi+ks} offset:{so + which*4096}"
        ri = which - 2
        return f"ds_read_b128 {vr(FB+buf*8+ri*4,4)}, v{BD+hi+ks} offset:{so + ri*8192}"
    def mf(buf, mt, ri, first):
        acc = ACC + ri*32 + mt*16
        return f"v_mfma_f32_32x32x16_bf16 {vr(acc,16)}, {vr(FA+buf*8+mt*4,4)}, {vr(FB+buf*8+ri*4,4)}, {'0' if first else vr(acc,16)}"
    RD_ORDER = [0, 2, 1, 3]
    MF_ORDER = [(0,0), (1,0), (1,1), (0,1)]
    ST()
    A("s_barrier")
    ST()
    A("s_cmp_lg_u32 s3, 0")
    A("s_cbranch_scc1 c_noflag")
    A("s_lshr_b32 s11, s2, 6")
    A("s_lshl_b32 s11, 1, s11")
    A("s_getreg_b32 s12, hwreg(HW_REG_XCC_ID, 0, 4)")
    A("s_lshl_b32 s12, 0x100, s12")
    A("s_or_b32 s11, s11, s12")
    A("v_mov_b32 v16, s11")
    A("s_and_b32 s11, s2, 63")
    A("s_lshl_b32 s11, s11, 2")
    A("v_mov_b32 v17, s11")
    A("s_mov_b64 exec, 1")
    A("buffer_atomic_or v16, v17, s[64:67], 0 offen sc1")
    A("s_mov_b64 exec, -1")
    A("c_noflag:")
    for w in RD_ORDER: A(rd(0, 0, 0, w))
    for s in range(N1):
        for ks in range(4):
            buf = ks & 1
            last = (s == N1-1 and ks == 3)
            if ks == 3:
                A("s_waitcnt lgkmcnt(0)")
                A("s_barrier")
            ns, nks = (s, ks+1) if ks < 3 else (s+1, 0)
            for i in range(4):
                if ks < 3 and i < 3: A("s_waitcnt lgkmcnt(2)")
                A(mf(buf, *MF_ORDER[i], s == 0 and ks == 0))
                if not last: A(rd(ns, nks, buf ^ 1, RD_ORDER[i]))
            if (s in (3, 7, 11) if "fine1" not in OPT else s >= 3) and ks == 3: ST()
            if s == 12 and ks == 0:
                A("buffer_load_dword v20, v21, s[64:67], 0 offen sc1")
    ST()
    if "fine1" in OPT: ST.n = 40
    gen.SAFE_PK[0] = bool(opt("pk", 0) & 1)
    def UR(t): return ACC + (t >> 3)*16 + 2*(t & 7)
    def UI(t): return ACC + 32 + (t >> 3)*16 + 2*(t & 7)
    E = [(24, 26), (28, 30 - 30 + 44)]
    cr, ci = UR(0), UI(0)
    for t in range(1, 16):
        nr, ni = E[t & 1]
        A(pk("fma", nr, cr, LAM, UR(t), bsel=0))
        A(pk("fma", ni, ci, LAM, UI(t), bsel=0))
        A(pk("fma", nr, ci, LAM, nr, bsel=1, neg_b=True))
        A(pk("fma", ni, cr, LAM, ni, bsel=1))
        cr, ci = nr, ni
    A("v_mov_b32 v32, v28\nv_mov_b32 v33, v44\nv_mov_b32 v34, v29\nv_mov_b32 v35, v45")
    cmul(A, 36, MU, 32, add=34)
    A("v_mov_b32 v38, v36\nv_mov_b32 v39, v37\nv_mov_b32 v40, 0\nv_mov_b32 v41, 0")
    A("v_permlane32_swap_b32 v40, v38")
    A("v_permlane32_swap_b32 v41, v39")
    cmul(A, 42, MU2, 40, add=36)
    A("v_or_b32 v42, 1, v42")
    A("s_mov_b32 s12, 0")
    A("s_mov_b32 s13, -1")
    A("s_mov_b64 exec, s[12:13]")
    A("buffer_store_dwordx2 v[42:43], v7, s[56:59], 0 offen sc1")
    A("s_mov_b64 exec, -1")
    ST()
    A("s_lshl_b32 s9, s3, 13")
    for i in range(4):
        A(f"s_add_u32 m0, s9, {i*1024}")
        A(f"s_mov_b32 s8, {i*16384}")
        A("buffer_load_dwordx4 v52, s[76:79], s8 offen lds")
    for q in range(2):
        A(f"global_load_ushort v{9+q}, v54, {sp('Dskip')} offset:{q*64}")
    if SNT:
        for i in range(4): A(f"v_mov_b32 v{24+i}, -1")
        for i in range(NPQ): A(f"buffer_store_dwordx4 v[24:27], v59, s[92:95], s{74 if i < 4 else 75} offen offset:{(i & 3)*1024} sc1")
    for t in range(16):
        n = UR2 + 2*t
        A(pk("mul", n, UR(t), C2, bsel=0))
        A(pk("fma", n, UI(t), C2, n, bsel=1, neg_b=True))
        A(pk("mul", UI(t), UI(t), C2, bsel=0))
        A(pk("fma", UI(t), UR(t), C2, UI(t), bsel=1))
    cmul(A, 44, C2, 40)
    cmul(A, 46, C2, 32)
    for k in range(16):
        A(f"v_subrev_u32 v{128+k}, {(1+2*k)*8192:#x}, v50")
    ST()
    A(f"s_waitcnt vmcnt({7 + NPQ if SNT else 7})")
    spin_all(A, "c_init", 52, "buffer_load_dword v20, v21, s[64:67], 0 offen sc1", "15", pre="v_and_b32 v52, 15, v20")
    local_check(A, 20, 52, 12, 11)
    A("s_cselect_b32 s14, 0, 1")
    if "nolocal" in OPT: A("s_mov_b32 s14, 0")
    for k in range(16):
        A(f"buffer_load_dwordx2 {vr(EL+2*k,2)}, v{128+k}, s[56:59], 0 offen sc1")
    XP = list(range(73, 89))
    XDP = [89, 90, 91, 92, 93, 94, 95, 54, 55, 56, 57, 58, 59, 61, 5, 12]
    A(f"s_waitcnt vmcnt({16 + NPQ if SNT else 16})")
    XT = [160 + i for i in range(16)] + [73 + i for i in range(16)]
    for nt in range(2):
        for r in range(16): A(f"ds_read_u16 v{XT[nt*16+r]}, v53 offset:{r*128+nt*64}")
    A("s_waitcnt lgkmcnt(0)")
    for m in range(8): A(f"v_lshl_or_b32 v{XP[8+m]}, v{XT[16+2*m+1]}, 16, v{XT[16+2*m]}" if False else f"v_lshl_or_b32 v{64+m}, v{XT[16+2*m+1]}, 16, v{XT[16+2*m]}")
    for m in range(8): A(f"v_lshl_or_b32 v{XP[m]}, v{XT[2*m+1]}, 16, v{XT[2*m]}")
    for m in range(8): A(f"v_mov_b32 v{XP[8+m]}, v{64+m}")
    BD2 = 32
    A("s_lshl_b32 s11, s3, 13")
    A("v_lshl_add_u32 v16, v6, 11, s11")
    A("v_lshl_add_u32 v16, v4, 6, v16")
    A("v_bfe_u32 v17, v1, 1, 2")
    for q in range(4):
        A(f"v_xor_b32 v18, {q}, v17")
        A(f"v_lshl_add_u32 v{64+q}, v18, 4, v16")
    A("v_mov_b32 v31, 1")
    A("v_bfe_u32 v16, v1, 2, 2")
    A("v_lshl_add_u32 v16, v6, 3, v16")
    A("v_and_b32 v24, 1, v1")
    A("v_bfe_u32 v18, v1, 4, 1")
    A("v_lshl_add_u32 v24, v24, 1, v18")
    A("v_bfe_u32 v18, v16, 1, 2")
    A("v_xor_b32 v24, v24, v18")
    A("v_lshlrev_b32 v24, 4, v24")
    A("v_lshl_add_u32 v24, v16, 6, v24")
    A("v_bfe_u32 v18, v1, 1, 1")
    A("v_lshl_add_u32 v24, v18, 3, v24")
    A("v_xor_b32 v25, 32, v24")
    A("v_add_u32 v25, 256, v25")
    A("v_add_u32 v68, s11, v24")
    A("v_add_u32 v69, s11, v25")
    A("s_lshl_b32 s11, s4, 7")
    A("s_lshl_b32 s12, s6, 6")
    A("s_add_u32 s11, s11, s12")
    A("s_and_b32 s12, s5, 7")
    A("s_lshl_b32 s12, s12, 2")
    A("s_add_u32 s11, s11, s12")
    A("s_add_u32 s11, s11, s7")
    A("s_lshl_b32 s11, s11, 12")
    A("s_lshr_b32 s13, s5, 3")
    A("s_lshl_b32 s13, s13, 11")
    A("s_add_u32 s11, s11, s13")
    A("v_lshl_add_u32 v72, v1, 4, s11")
    A(f"v_mov_b32 v20, {LFLAG:#x}")
    A("s_lshl_b32 s6, s4, 2")
    A("s_add_u32 s6, s6, s3")
    A("s_lshr_b32 s7, s3, 1")
    A("s_lshl_b32 s7, s7, 13")
    A("s_and_b32 s8, s3, 1")
    A("s_lshl_b32 s8, s8, 11")
    A("s_add_u32 s7, s7, s8")
    A("v_add_u32 v70, s7, v24")
    A("v_add_u32 v71, s7, v25")
    A("s_lshl_b32 s7, s6, 17")
    A("s_add_u32 s7, s7, s13")
    A("v_lshl_add_u32 v3, v1, 4, s7")
    A("v_add_u32 v2, 0x1000, v3")
    A(f"v_lshlrev_b32 v14, 7, v4")
    A(f"v_add_u32 v14, {CRING:#x}, v14")
    for ks in range(4):
        A(f"v_xor_b32 v16, {2*ks}, v11")
        A(f"v_lshl_add_u32 v{BD2+ks}, v16, 4, v14")
    A("s_lshr_b32 s7, s6, 1")
    A("s_lshl_b32 s7, s7, 12")
    A("s_add_u32 s7, s7, s13")
    A("v_bfe_u32 v16, v1, 1, 3")
    if ORD:
        A("v_subrev_u32 v14, 1, v16")
        A("v_cmp_le_u32 vcc, s15, v14")
        A("v_cndmask_b32 v14, v14, v16, vcc")
        A("v_mov_b32 v19, s15")
        A("v_cmp_eq_u32 vcc, 0, v16")
        A("v_cndmask_b32 v16, v14, v19, vcc")
    else:
        A("v_add_u32 v16, s15, v16")
        A("v_and_b32 v16, 7, v16")
    A("v_and_b32 v14, 1, v1")
    A("v_lshl_add_u32 v16, v16, 1, v14")
    A("v_lshl_add_u32 v22, v16, 7, s7")
    srd(A, 64, "ws", 8192, WS_G)
    srd(A, 76, "out", 8 << 20)
    for i in range(8):
        A(f"s_mov_b32 s{80+i}, {i*4096}")
    A("s_lshl_b32 s7, s6, 5")
    A("v_lshl_add_u32 v7, v6, 4, s7")
    A("s_lshl_b32 s8, s5, 6")
    A("v_add_u32 v8, s8, v4")
    A("v_lshlrev_b32 v26, 12, v7")
    A("v_lshl_add_u32 v26, v8, 2, v26")
    A("v_add_u32 v27, 0x8000, v26")
    A("v_lshlrev_b32 v7, 2, v7")
    A("v_mul_u32_u24 v21, 272, v4")
    A("v_lshl_add_u32 v21, v6, 5, v21")
    A("s_lshl_b32 s8, s3, 6")
    A("v_add_u32 v21, s8, v21")
    A(f"s_add_u32 s8, s73, {PF_OFF:#x}")
    A("v_mov_b32 v29, s8")
    A("v_lshlrev_b32 v28, 4, v1")
    A("v_mov_b32 v23, 1")
    A(f"s_mov_b32 s88, {SPIN}")
    A("c_poll:")
    A("s_waitcnt vmcnt(0)")
    A("v_mov_b32 v52, 0")
    for k in range(16):
        A(f"v_and_b32 v{144+k}, 1, v{EL+2*k}")
    for k in range(0, 16, 2):
        A(f"v_add3_u32 v52, v52, v{144+k}, v{145+k}")
    A("v_cmp_ne_u32 vcc, v52, v51")
    A("s_cmp_eq_u64 vcc, 0")
    A("s_cbranch_scc1 c_polled")
    A("s_sub_u32 s88, s88, 1")
    A("s_cbranch_scc1 c_polled")
    A(f"s_sleep {opt('psleep', SLEEP)}")
    for k in range(16):
        A(f"v_cmp_eq_u32 vcc, 0, v{144+k}")
        A("s_mov_b64 exec, vcc")
        A(f"buffer_load_dwordx2 {vr(EL+2*k,2)}, v{128+k}, s[56:59], 0 offen sc1")
        A("s_mov_b64 exec, -1")
    A("s_branch c_poll")
    A("c_polled:")
    ST()
    g = EL + 30
    G = [52, 54]
    for k in range(14, -1, -1):
        n = G[k & 1]
        A(pk("fma", n, g, MU8, EL+2*k, bsel=0))
        A(pk("fma", n, g, MU8, n, bsel=1, asel="swap", neg_lo=[1,0,0]))
        g = n
    A("v_mov_b32 v54, v52\nv_mov_b32 v55, v53\nv_mov_b32 v56, v52\nv_mov_b32 v57, v53")
    A("v_permlane32_swap_b32 v54, v56")
    A("v_permlane32_swap_b32 v55, v57")
    cmul(A, 58, MU4, 56, add=54)
    cmul(A, 52, 48, 58, add=44)
    cmul(A, 54, MU, 52, add=46)
    A("v_mov_b32 v56, v52\nv_mov_b32 v57, v54\nv_mov_b32 v58, v53\nv_mov_b32 v59, v55")
    cr, ci = 56, 58
    def packhalf(hf):
        for plane in range(2):
            for e in range(2):
                d = 128 + ((plane*2 + e)*2 + hf)*4
                for m in range(4):
                    t = hf*8 + 2*m
                    if plane == 0: A(f"v_cvt_pk_bf16_f32 v{d+m}, v{UR2+2*t+e}, v{UR2+2*(t+1)+e}")
                    else: A(f"v_cvt_pk_bf16_f32 v{d+m}, -v{UI(t)+e}, -v{UI(t+1)+e}")
                A(f"ds_write_b128 v{64+2*e+hf}, {vr(d,4)} offset:{plane*4096}")
    for t in range(16):
        nr, ni = UR2 + 2*t, UI(t)
        A(pk("fma", nr, cr, LAM, nr, bsel=0))
        A(pk("fma", ni, ci, LAM, ni, bsel=0))
        A(pk("fma", nr, ci, LAM, nr, bsel=1, neg_b=True))
        A(pk("fma", ni, cr, LAM, ni, bsel=1))
        cr, ci = nr, ni
        if t == 7: packhalf(0)
    packhalf(1)
    gen.SAFE_PK[0] = False
    ST()
    A("s_waitcnt lgkmcnt(0)")
    lds_inc(A, 20, 31, 12)
    AF = 160
    idx = 0
    for tblk in range(2):
        for plane in range(2):
            for ksl in range(2):
                d = AF + idx*4
                o = plane*4096 + tblk*2048 + ksl*1024
                A(f"ds_read_b64_tr_b16 {vr(d,2)}, v68 offset:{o}")
                A(f"ds_read_b64_tr_b16 {vr(d+2,2)}, v69 offset:{o}")
                idx += 1
    V = VQ(A)
    idx = 0
    for tblk in range(2):
        for plane in range(2):
            A(f"s_mov_b32 s12, {tblk*131072 + plane*8192:#x}")
            for ksl in range(2):
                d = AF + idx*4
                A(f"s_waitcnt lgkmcnt({min(15, 14 - 2*idx)})")
                V.issue(f"buffer_store_dwordx4 {vr(d,4)}, v72, s[60:63], s12 offen offset:{ksl*1024} sc1", "hst")
                idx += 1
    ACC2 = 96
    FB2 = 224
    GR = 36
    ST2 = Stamper(A, 1, 62)
    A(f"s_mov_b32 s89, {SPIN*4}")
    A("c_lw:")
    A("ds_read_b128 v[52:55], v20 offset:4")
    A("s_waitcnt lgkmcnt(0)")
    A("v_min_u32 v54, v54, v55")
    A("v_min_u32 v53, 1, v53")
    A("v_readfirstlane_b32 s8, v54")
    A("v_readfirstlane_b32 s9, v53")
    A("s_add_u32 s8, s8, s9")
    A("s_cmp_ge_u32 s8, 5")
    A("s_cbranch_scc1 c_lwok")
    A("s_sub_u32 s89, s89, 1")
    A("s_cbranch_scc0 c_lw")
    A("c_lwok:")
    L = LQ(A)
    for st in range(2):
        for ks in range(4):
            d = AF + (st*4 + ks)*4
            o = (ks >> 1)*16384 + st*4096 + (ks & 1)*1024
            L.issue(f"ds_read_b64_tr_b16 {vr(d,2)}, v70 offset:{o}")
            L.issue(f"ds_read_b64_tr_b16 {vr(d+2,2)}, v71 offset:{o}", ("A", st, ks))
    for q in range(4):
        V.issue(f"buffer_load_dwordx4 {vr(GR+q*4,4)}, v7, s[64:67], 0 offen offset:{q*16} sc1", "g")
    ST()
    HFL = "buffer_load_dword v19, v22, s[68:71], 0 offen sc1"
    slowp = []
    def need(i):
        m = ((1 << (2*i + 2)) - 1) & ~3
        name = f"c_n{len(slowp)}"
        A(f"s_and_b32 s88, s90, {m:#x}")
        A(f"s_cmp_eq_u32 s88, {m:#x}")
        A(f"s_cbranch_scc0 {name}_s")
        A(f"{name}:")
        slowp.append((name, m))
    alast = [None]
    def aload(st, ks):
        if alast[0] != st:
            alast[0] = st
            tile_of(A, st >> 1, 11)
            A("s_lshl_b32 s11, s11, 14")
            if st & 1: A("s_add_u32 s11, s11, 8192")
        r = AF + ((st % PD)*4 + ks)*4
        V.issue(f"buffer_load_dwordx4 {vr(r,4)}, v{3 if ks < 2 else 2}, s[60:63], s11 offen offset:{(ks & 1)*1024} sc1", ("A", st, ks))
    def rd2(st, ks, nt, slot):
        return f"ds_read_b128 {vr(FB2+slot*4,4)}, v{BD2+ks} offset:{(st % NS2)*16384 + nt*4096}"
    def mf2(st, ks, nt, slot):
        a = AF + ((st % PD)*4 + ks)*4
        c = vr(ACC2+nt*16, 16)
        return f"v_mfma_f32_32x32x16_bf16 {c}, {vr(a,4)}, {vr(FB2+slot*4,4)}, {'0' if (st == 0 and ks == 0) else c}"
    def await_(st, ks):
        if st < 2: L.wait(("A", st, ks))
        else: V.wait(("A", st, ks))
    ST2()
    for nt in range(4): L.issue(rd2(0, 0, nt, nt), (0, 0, nt))
    HFK = opt("hfk", 3)
    N1K = opt("n1k", 2)
    XPS = opt("xps", 1)
    def xpart():
        A("v_lshlrev_b32 v9, 16, v9")
        A("v_lshlrev_b32 v10, 16, v10")
        A("s_mov_b32 s12, 0xffff0000")
        TT = [13, 15, 16, 17, 18, 24, 25, 8]
        for k0 in range(0, 16, 4):
            ch = []
            for k in range(k0, k0 + 4):
                t0, t1 = TT[2*(k & 3)], TT[2*(k & 3) + 1]
                dk = 9 + (k >> 3)
                ch.append([f"v_lshlrev_b32 v{t0}, 16, v{XP[k]}", f"v_and_b32 v{t1}, s12, v{XP[k]}", f"v_mul_f32 v{t0}, v{t0}, v{dk}", f"v_mul_f32 v{t1}, v{t1}, v{dk}",
                           f"v_cvt_pk_bf16_f32 v{XDP[k]}, v{t0}, v{t1}"])
            zip_chains(A, ch)
    DIST = opt("dist", 3)
    assert DIST in (2, 3, 4)
    polls = [0]
    def hfpoll():
        polls[0] += 1
        V.issue(HFL, ("hf", polls[0]))
    def hfseen():
        V.wait(("hf", polls[0]))
        A("v_cmp_eq_u32 s[90:91], 1, v19")
    FS = opt("fs", 4)
    assert FS == 1 or (FS in (3, 4) and DIST >= 3)
    for st in range(N2 - FS):
        for ks in range(4):
            buf = ks & 1
            if ks == 3 and st >= 1: A("s_barrier")
            ns, nks = (st, ks+1) if ks < 3 else (st+1, 0)
            await_(st, ks)
            for nt in range(4):
                L.wait((st, ks, nt))
                A(mf2(st, ks, nt, buf*4 + nt))
                L.issue(rd2(ns, nks, nt, (buf ^ 1)*4 + nt), (ns, nks, nt))
            if st == 0 and ks == HFK:
                V.wait("hst")
                A("s_cmp_eq_u32 s14, 1")
                A("s_cbranch_scc1 c_hfs_l")
                A("buffer_store_dword v23, v60, s[68:71], 0 offen sc1")
                A("s_branch c_hfs_e")
                A("c_hfs_l:")
                A("buffer_store_dword v23, v60, s[68:71], 0 offen")
                A("c_hfs_e:")
                V.n += 1
                if SNT: V.issue("buffer_store_dword v23, v30, s[68:71], 0 offen sc1")
                hfpoll()
                if "fine3" in OPT: ST2()
            if st == 1 and ks == N1K:
                if "fine3" in OPT: ST2()
                hfseen(); need(1)
                if "fine3" in OPT: ST2()
                for z in (2, 3):
                    for k2 in range(4): aload(z, k2)
                hfpoll()
                if XPS == 0: xpart()
            if st == 1 and ks == 3 and XPS == 1: xpart()
            if st >= 2:
                if st == 2 and ks == 0:
                    if "fine3" in OPT: ST2()
                    hfseen(); need(2)
                    if "fine3" in OPT: ST2()
                    for z in range(4, 2 + DIST):
                        for k2 in range(4): aload(z, k2)
                    hfpoll()
                z = st + DIST
                if z < N2:
                    if ks == 0 and z % 2 == 0 and z // 2 >= 3:
                        if z // 2 == 3: hfseen()
                        if not (int(OPT.get("abl", 0)) & 2): need(z // 2)
                    aload(z, ks)
            if SNT and st == opt("pfl", 5) and ks == 0: V.issue("buffer_load_dword v14, v29, s[68:71], 0 offen sc1", "pf")
            if SNT and st == opt("pfc", 8) and ks == 0:
                V.wait("pf")
                A("v_cmp_ne_u32 vcc, 1, v14")
                A("s_cmp_eq_u64 vcc, 0")
                A("s_cbranch_scc0 c_pfs")
                A("c_pfr:")
            if "fine3" in OPT:
                if st in (1, 2, 3, 4) and ks == 3: ST2()
                if st == 2 and ks == 0: ST2()
            elif "fine4" in OPT:
                if st == N2 - FS - 1 and ks == 3: ST2()
            elif (st % 2 == 1 if 'fine2' not in OPT else True) and ks == 3: ST2()
    f0 = N2 - FS
    S_ = lambda z: [(z, ks, nt) for ks in range(4) for nt in (0, 1)]
    K_ = lambda z: [(z, ks, nt) for ks in range(4) for nt in (2, 3)]
    if FS == 1: order = S_(15) + K_(15); nsend = 8
    elif FS == 3: order = S_(13) + ["b13"] + S_(14) + K_(13) + ["b14"] + S_(15) + K_(14) + K_(15); nsend = 32
    else:
        BP = opt("bp", 4)
        order = []
        if opt("fso", 1) == 0:
            for z in (12, 13, 14): order += S_(z)[:BP] + [f"b{z}"] + S_(z)[BP:]
            order += S_(15) + K_(12) + K_(13) + K_(14) + K_(15); nsend = 32
        else:
            order = S_(12)[:BP] + ["b12"] + S_(12)[BP:] + S_(13) + K_(12)[:BP] + ["b13"] + K_(12)[BP:] + S_(14)[:BP] + ["b14"] + S_(14)[BP:] + S_(15) + K_(13) + K_(14) + K_(15)
            nsend = 40
        for z in range(N2):
            if ("A", z, 0) not in V.tags and z >= 2:
                for k2 in range(4): aload(z, k2)
    mfs = [x for x in order if not isinstance(x, str)]
    slot = {(f0, 0, nt): nt for nt in range(4)}
    pend = [x for x in mfs if x not in slot]
    free = [4, 5, 6]
    pub = [f0]
    def fill():
        while pend and free and pend[0][0] <= pub[0]:
            x = pend.pop(0); sl = free.pop(0); slot[x] = sl
            L.issue(rd2(x[0], x[1], x[2], sl), x)
    fill()
    pst = [f"buffer_store_dwordx4 {vr(ACC2+4*i,4)}, v28, s[92:95], s{74 if i < 4 else 75} offen offset:{(i & 3)*1024} sc1" for i in range(NPQ)]
    pcv = [f"v_cvt_pk_bf16_f32 v{ACC2+k}, v{ACC2+2*k}, v{ACC2+2*k+1}" for k in range(16)] if PB else []
    i = 0; prev = None
    for x in order:
        if isinstance(x, str):
            A("s_barrier"); pub[0] += 1; fill(); continue
        V.wait(("A", x[0], x[1]))
        if x not in slot: fill()
        L.wait(x)
        A(mf2(x[0], x[1], x[2], slot[x]))
        free.append(slot[prev] if prev is not None else 7)
        prev = x
        fill()
        i += 1
        SP = opt("sp", 0)
        if i >= nsend + 3 and pcv:
            for z in range(4): A(pcv.pop(0))
            V.issue(pst.pop(0), "ps")
        elif i >= nsend + 3:
            if SP == 0:
                for z in range(2):
                    if pst: V.issue(pst.pop(0), "ps")
            elif (i - nsend - 3) % SP == 0 and pst: V.issue(pst.pop(0), "ps")
        if "fine4" in OPT and i % 8 == 0: ST2()
    while pst: V.issue(pst.pop(0), "ps")
    ST2()
    YR, OM, GF, T0, RV = 160, 176, 192, 208, ACC2
    KEEP = ACC2 + 32
    PFL = "buffer_load_dword v19, v29, s[68:71], 0 offen sc1"
    A("s_mov_b32 s12, 0xffff0000")
    for nt in range(2):
        for hf in range(2): A(f"ds_read_b128 {vr(YR+nt*8+hf*4,4)}, v21 offset:{nt*32*272 + hf*16}")
    for r in range(16):
        A(f"v_lshlrev_b32 v{GF+r}, 16, v{GR+r}")
        A(f"v_and_b32 v{OM+r}, s12, v{GR+r}")
    A("s_waitcnt lgkmcnt(0)")
    if SNT:
        RCG = opt("rcg", 2)
        def recv_full():
            for i in range(NPQ):
                A(f"buffer_load_dwordx4 {vr(RV+4*i,4)}, v28, s[92:95], s{90 if i < 4 else 91} offen offset:{(i & 3)*1024} sc1")
        first = [True]
        def recv():
            if "lp" in OPT and first[0]:
                first[0] = False
                A(f"buffer_load_dwordx4 {vr(RV+4*NPQ-4,4)}, v28, s[92:95], s{90 if PB else 91} offen offset:3072 sc1")
            else: recv_full()
        A("s_lshl_b32 s90, s72, 6")
        A("s_add_u32 s91, s90, 4096")
        gi = 0
        for nt in range(2):
            for m0 in range(0, 8, 4):
                if gi == RCG: recv()
                gi += 1
                ch = []
                for m in range(m0, m0 + 4):
                    b_ = T0 + (m & 3)*6
                    yy, xf, tm = b_, b_ + 2, b_ + 4
                    xp = XP[nt*8+m]; xd = XDP[nt*8+m]; ka = KEEP + nt*16 + 2*m
                    ch.append([f"v_lshlrev_b32 v{yy}, 16, v{YR+nt*8+m}", f"v_and_b32 v{yy+1}, s12, v{YR+nt*8+m}",
                               f"v_lshlrev_b32 v{xf}, 16, v{xp}", f"v_and_b32 v{xf+1}, s12, v{xp}",
                               f"v_mul_f32 v{yy}, v{xf}, v{yy}", f"v_mul_f32 v{yy+1}, v{xf+1}, v{yy+1}",
                               f"v_lshlrev_b32 v{xf}, 16, v{xd}", f"v_and_b32 v{xf+1}, s12, v{xd}",
                               f"v_cvt_pk_bf16_f32 v{tm}, v{yy}, v{yy+1}",
                               f"v_add_f32 v{ka}, v{ka}, v{xf}", f"v_add_f32 v{ka+1}, v{ka+1}, v{xf+1}",
                               f"v_lshlrev_b32 v{yy}, 16, v{tm}", f"v_and_b32 v{yy+1}, s12, v{tm}",
                               f"v_mul_f32 v{yy}, v{yy}, v{OM+2*m}", f"v_mul_f32 v{yy+1}, v{yy+1}, v{OM+2*m+1}",
                               f"v_cvt_pk_bf16_f32 v{tm}, v{yy}, v{yy+1}", f"v_lshlrev_b32 v{yy}, 16, v{tm}", f"v_and_b32 v{yy+1}, s12, v{tm}",
                               f"v_fma_f32 v{ka}, v{ka}, v{GF+2*m}, v{yy}", f"v_fma_f32 v{ka+1}, v{ka+1}, v{GF+2*m+1}, v{yy+1}"])
                zip_chains(A, ch)
        if gi == RCG: recv()
        ST2()
        if "lp" in OPT:
            LP = f"buffer_load_dwordx4 {vr(RV+4*NPQ-4,4)}, v28, s[92:95], s{90 if PB else 91} offen offset:3072 sc1"
            A(f"s_mov_b32 s89, {SPIN}")
            A("c_lp:")
            A("s_waitcnt vmcnt(0)")
            A(f"v_cmp_eq_u32 vcc, -1, v{RV+4*NPQ-1}")
            A("s_cmp_eq_u64 vcc, 0")
            A("s_cbranch_scc1 c_lpok")
            A("s_sub_u32 s89, s89, 1")
            A("s_cbranch_scc1 c_lpok")
            A(LP)
            A("s_branch c_lp")
            A("c_lpok:")
            recv_full()
        A(f"s_mov_b32 s89, {SPIN}")
        A("c_rc:")
        A("s_waitcnt vmcnt(0)")
        A(f"v_max3_u32 v19, v{RV}, v{RV+1}, v{RV+2}")
        for i in range(3, 4*NPQ-1, 2): A(f"v_max3_u32 v19, v19, v{RV+i}, v{RV+i+1}")
        A(f"v_max_u32 v19, v19, v{RV+4*NPQ-1}")
        A("v_cmp_eq_u32 vcc, -1, v19")
        A("s_cmp_eq_u64 vcc, 0")
        A("s_cbranch_scc1 c_rcok")
        A("s_sub_u32 s89, s89, 1")
        A("s_cbranch_scc1 c_rcok")
        recv()
        A("s_branch c_rc")
        A("c_rcok:")
        ST2()
        for nt in range(2):
            for r in range(16):
                a = KEEP + nt*16 + r
                if PB:
                    w = RV + nt*8 + (r >> 1); t = T0 + (r & 3)
                    A(f"v_and_b32 v{t}, s12, v{w}" if r & 1 else f"v_lshlrev_b32 v{t}, 16, v{w}")
                    A(f"v_fma_f32 v{a}, v{t}, v{GF+r}, v{a}")
                else: A(f"v_fma_f32 v{a}, v{RV+nt*16+r}, v{GF+r}, v{a}")
                A(f"buffer_store_dword v{a}, v{26 if r < 8 else 27}, s[76:79], s{80+(r&7)} offen offset:{nt*128} nt")
        ST2()
    else:
        assert not PB
        PFG = opt("pfg", 2)
        gi = 0
        def pfstore():
            A("s_waitcnt vmcnt(0)")
            A("buffer_store_dword v23, v30, s[68:71], 0 offen sc1")
            A(PFL)
        RCG = opt("rcg", 3)
        def recv():
            A("s_lshl_b32 s12, s72, 6")
            A("s_add_u32 s13, s12, 4096")
            for i in range(8):
                A(f"buffer_load_dwordx4 {vr(RV+4*i,4)}, v28, s[92:95], s{12 if i < 4 else 13} offen offset:{(i & 3)*1024} sc1")
            A("s_mov_b32 s12, 0xffff0000")
        A("s_mov_b32 s90, 0")
        for nt in range(2):
            for m0 in range(0, 8, 4):
                if gi == PFG: pfstore()
                if gi == RCG and RCG > PFG:
                    A("s_waitcnt vmcnt(0)")
                    A("v_cmp_ne_u32 vcc, 1, v19")
                    A("s_cmp_eq_u64 vcc, 0")
                    A("s_cbranch_scc0 c_norc")
                    recv()
                    A("s_mov_b32 s90, 1")
                    A("c_norc:")
                gi += 1
                ch = []
                for m in range(m0, m0 + 4):
                    b_ = T0 + (m & 3)*6
                    yy, xf, tm = b_, b_ + 2, b_ + 4
                    xp = XP[nt*8+m]; xd = XDP[nt*8+m]; ka = KEEP + nt*16 + 2*m
                    ch.append([f"v_lshlrev_b32 v{yy}, 16, v{YR+nt*8+m}", f"v_and_b32 v{yy+1}, s12, v{YR+nt*8+m}",
                               f"v_lshlrev_b32 v{xf}, 16, v{xp}", f"v_and_b32 v{xf+1}, s12, v{xp}",
                               f"v_mul_f32 v{yy}, v{xf}, v{yy}", f"v_mul_f32 v{yy+1}, v{xf+1}, v{yy+1}",
                               f"v_lshlrev_b32 v{xf}, 16, v{xd}", f"v_and_b32 v{xf+1}, s12, v{xd}",
                               f"v_cvt_pk_bf16_f32 v{tm}, v{yy}, v{yy+1}",
                               f"v_add_f32 v{ka}, v{ka}, v{xf}", f"v_add_f32 v{ka+1}, v{ka+1}, v{xf+1}",
                               f"v_lshlrev_b32 v{yy}, 16, v{tm}", f"v_and_b32 v{yy+1}, s12, v{tm}",
                               f"v_mul_f32 v{yy}, v{yy}, v{OM+2*m}", f"v_mul_f32 v{yy+1}, v{yy+1}, v{OM+2*m+1}",
                               f"v_cvt_pk_bf16_f32 v{tm}, v{yy}, v{yy+1}", f"v_lshlrev_b32 v{yy}, 16, v{tm}", f"v_and_b32 v{yy+1}, s12, v{tm}",
                               f"v_fma_f32 v{ka}, v{ka}, v{GF+2*m}, v{yy}", f"v_fma_f32 v{ka+1}, v{ka+1}, v{GF+2*m+1}, v{yy+1}"])
                zip_chains(A, ch)
        if gi == PFG: pfstore()
        ST2()
        A("s_cmp_eq_u32 s90, 1")
        A("s_cbranch_scc1 c_havercv")
        A(PFL)
        A("s_waitcnt vmcnt(0)")
        spin_all(A, "c_pf", 19, PFL)
        recv()
        A("c_havercv:")
        ST2()
        for nt in range(2):
            for r in range(16):
                i = (nt*16 + r) // 4
                if r % 4 == 0: A(f"s_waitcnt vmcnt({7 - i + nt*16 + r})")
                a = KEEP + nt*16 + r
                A(f"v_fma_f32 v{a}, v{RV+nt*16+r}, v{GF+r}, v{a}")
                A(f"buffer_store_dword v{a}, v{26 if r < 8 else 27}, s[76:79], s{80+(r&7)} offen offset:{nt*128} nt")
        ST2()
    if "leak" in OPT:
        i = int(OPT["leak"])
        A("s_cmp_lg_u32 s2, 8")
        A("s_cbranch_scc1 c_noleak")
        A("s_cmp_lg_u32 s3, 0")
        A("s_cbranch_scc1 c_noleak")
        A("v_readlane_b32 s8, v63, 0")
        A(f"v_readlane_b32 s9, v{63 if i < 100 else 62}, {i % 100}")
        A("s_sub_u32 s9, s9, s8")
        A("s_memrealtime s[10:11]")
        A("s_waitcnt lgkmcnt(0)")
        A("s_add_u32 s9, s9, s10")
        A("c_leak:")
        A("s_memrealtime s[10:11]")
        A("s_waitcnt lgkmcnt(0)")
        A("s_sub_u32 s12, s9, s10")
        A("s_cmp_gt_i32 s12, 0")
        A("s_cbranch_scc1 c_leak")
        A("c_noleak:")
    if "leak2" in OPT:
        X, i = str(OPT["leak2"]).split(":"); i = int(i)
        if X != "all":
            A(f"s_cmp_lg_u32 s2, {int(X)}")
            A("s_cbranch_scc1 c_noleak2")
        A("s_cmp_lg_u32 s3, 0")
        A("s_cbranch_scc1 c_noleak2")
        A(f"v_readlane_b32 s9, v{63 if i < 100 else 62}, {i % 100}")
        A("s_add_u32 s9, s9, 4000")
        A("c_leak2:")
        A("s_memrealtime s[10:11]")
        A("s_waitcnt lgkmcnt(0)")
        A("s_sub_u32 s12, s9, s10")
        A("s_cmp_gt_i32 s12, 0")
        A("s_cbranch_scc1 c_leak2")
        A("c_noleak2:")
    ST.flush()
    ST2.flush()
    A("s_endpgm")
    if SNT:
        A("c_pfs:")
        A(f"s_mov_b32 s89, {SPIN}")
        A("c_pfs_l:")
        A("s_waitcnt vmcnt(0)")
        A("buffer_load_dword v14, v29, s[68:71], 0 offen sc1")
        A("s_waitcnt vmcnt(0)")
        A("v_cmp_ne_u32 vcc, 1, v14")
        A("s_cmp_eq_u64 vcc, 0")
        A("s_cbranch_scc1 c_pfr")
        A("s_sub_u32 s89, s89, 1")
        A("s_cbranch_scc1 c_pfr")
        A("s_branch c_pfs_l")
    for name, m in slowp:
        A(f"{name}_s:")
        A(f"s_mov_b32 s89, {SPIN}")
        A(f"{name}_l:")
        A("s_waitcnt vmcnt(0)")
        A(HFL)
        A("s_waitcnt vmcnt(0)")
        A("v_cmp_eq_u32 s[90:91], 1, v19")
        A(f"s_and_b32 s88, s90, {m:#x}")
        A(f"s_cmp_eq_u32 s88, {m:#x}")
        A(f"s_cbranch_scc1 {name}")
        A("s_sub_u32 s89, s89, 1")
        A(f"s_cbranch_scc1 {name}")
        A(f"s_branch {name}_l")

def helper(A):
    V = VQ(A)
    VA, VB = 8, 12
    ST = Stamper(A, 0, 58)
    STH = Stamper(A, 1, 59)
    ST()
    if "hprio1" in OPT: A(f"s_setprio {OPT['hprio1']}")
    A("s_sub_u32 s3, s3, 4")
    A("s_lshr_b32 s6, s3, 1")
    A("s_and_b32 s7, s3, 1")
    A("v_lshrrev_b32 v3, 5, v1")
    A("v_lshlrev_b32 v3, 5, v3")
    A("v_bfe_u32 v4, v1, 3, 1")
    A("v_lshl_add_u32 v3, v4, 4, v3")
    A("v_bfe_u32 v4, v1, 4, 1")
    A("v_add_u32 v3, v3, v4")
    A("s_lshl_b32 s8, s4, 7")
    A("s_lshl_b32 s9, s6, 6")
    A("s_add_u32 s8, s8, s9")
    A("s_lshl_b32 s9, s7, 3")
    A("s_add_u32 s8, s8, s9")
    A("v_add_u32 v3, s8, v3")
    A("v_lshlrev_b32 v3, 11, v3")
    A("v_and_b32 v4, 7, v1")
    A("v_lshrrev_b32 v5, 4, v1")
    A("v_xor_b32 v4, v4, v5")
    A("v_lshlrev_b32 v4, 4, v4")
    A(f"v_add_u32 v{VA}, v3, v4")
    A("s_lshl_b32 s10, s3, 12")
    A("s_lshr_b32 s90, s55, 2")
    A("s_lshl_b32 s90, s90, 1")
    A("s_and_b32 s91, s55, 3")
    A("s_lshl_b32 s91, s91, 2")
    A("s_add_u32 s90, s90, s91")
    A("s_and_b32 s11, s90, 15")
    A("s_lshl_b32 s11, s11, 7")
    A("s_mov_b32 m0, s10")
    A(f"s_mov_b32 s58, {4<<20:#x}")
    A("s_mov_b32 s59, 0x20000")
    if "fine0" in OPT: STH()
    A("s_waitcnt lgkmcnt(0)")
    if "fine0" in OPT: STH()
    A(f"s_mov_b32 s56, s{P['x']}")
    A(f"s_mov_b32 s57, s{P['x']+1}")
    V.issue(f"buffer_load_dwordx4 v{VA}, s[56:59], s11 offen lds")
    A("v_xor_b32 v5, 64, v4")
    A(f"v_add_u32 v{VA+1}, v3, v5")
    A(f"v_add_u32 v{VA+1}, {4096-1024}, v{VA+1}")
    V.issue(f"buffer_load_dwordx4 v{VA+1}, s[56:59], s11 offen offset:1024 lds")
    A(f"v_add_u32 v{VA+2}, {2*(4096-1024)}, v{VA}")
    V.issue(f"buffer_load_dwordx4 v{VA+2}, s[56:59], s11 offen offset:2048 lds")
    A(f"v_add_u32 v{VA+3}, {2*(4096-1024)}, v{VA+1}")
    V.issue(f"buffer_load_dwordx4 v{VA+3}, s[56:59], s11 offen offset:3072 lds")
    A("s_lshl_b32 s8, s5, 6")
    A("s_lshl_b32 s9, s7, 5")
    A("s_add_u32 s8, s8, s9")
    A("v_lshrrev_b32 v6, 3, v1")
    A("v_add_u32 v7, s8, v6")
    A("v_lshlrev_b32 v7, 11, v7")
    A(f"v_add_u32 v{VB}, v7, v4")
    A("s_cmp_ge_u32 s3, 2")
    A(f"s_cselect_b32 s60, s{P['Bim']}, s{P['Bre']}")
    A(f"s_cselect_b32 s61, s{P['Bim']+1}, s{P['Bre']+1}")
    A(f"s_mov_b32 s62, {2<<20:#x}")
    A("s_mov_b32 s63, 0x20000")
    A("s_add_u32 m0, s10, 16384")
    A(f"v_add_u32 v{VB+1}, v7, v5")
    V.issue(f"buffer_load_dwordx4 v{VB}, s[60:63], s11 offen lds")
    A(f"v_add_u32 v{VB+1}, {16384-1024}, v{VB+1}")
    V.issue(f"buffer_load_dwordx4 v{VB+1}, s[60:63], s11 offen offset:1024 lds")
    A(f"v_add_u32 v{VB+2}, {2*(16384-1024)}, v{VB}")
    V.issue(f"buffer_load_dwordx4 v{VB+2}, s[60:63], s11 offen offset:2048 lds")
    A(f"v_add_u32 v{VB+3}, {2*(16384-1024)}, v{VB+1}")
    V.issue(f"buffer_load_dwordx4 v{VB+3}, s[60:63], s11 offen offset:3072 lds", ("S", 0))
    def issue(st, fill=0):
        slot = st % 3
        A(f"s_add_u32 s11, s90, {st}")
        A("s_and_b32 s11, s11, 15")
        A("s_lshl_b32 s11, s11, 7")
        A(f"s_add_u32 m0, s10, {slot*32768:#x}")
        for n in range(4):
            V.issue(f"buffer_load_dwordx4 v{VA+n}, s[56:59], s11 offen offset:{n*1024} lds")
            if fill: do_work(fill)
        A(f"s_add_u32 m0, s10, {slot*32768+16384:#x}")
        for n in range(4):
            V.issue(f"buffer_load_dwordx4 v{VB+n}, s[60:63], s11 offen offset:{n*1024} lds", ("S", st))
            if fill: do_work(fill)
    if "fine0" in OPT: STH()
    VC = 28
    A("s_and_b32 s8, s5, 7")
    A("s_lshl_b32 s8, s8, 6")
    A("s_lshl_b32 s9, s3, 4")
    A("s_add_u32 s8, s8, s9")
    A("v_add_u32 v7, s8, v6")
    A("v_lshlrev_b32 v7, 11, v7")
    A(f"v_add_u32 v{VC}, v7, v4")
    A(f"v_add_u32 v{VC+1}, v7, v5")
    A(f"v_add_u32 v{VC+1}, {16384-1024}, v{VC+1}")
    A("s_and_b32 s12, s55, 1")
    A("s_lshl_b32 s13, s54, 1")
    A("s_add_u32 s12, s12, s13")
    A("s_lshr_b32 s13, s55, 1")
    A("s_lshl_b32 s8, s2, 7")
    A(f"s_add_u32 s8, s8, {KF_OFF:#x}")
    A("v_mov_b32 v30, s8")
    A("s_lshl_b32 s88, s54, 5")
    A("s_add_u32 s88, s88, s55")
    A("s_lshl_b32 s8, s88, 7")
    A(f"s_add_u32 s8, s8, {YF_OFF:#x}")
    A("v_mov_b32 v31, s8")
    A("s_lshl_b32 s88, s88, 2")
    A("s_add_u32 s88, s88, s3")
    A("v_mov_b32 v2, 0")
    srd(A, 92, "ws", FLG_SZ, WS_FLG)
    A("s_lshl_b32 s8, s88, 12")
    A(f"s_load_dword s100, {sp('ssmk')}, s8")
    A("s_lshr_b32 s8, s88, 1")
    A("s_lshl_b32 s8, s8, 2")
    A(f"s_load_dword s101, {sp('ssmD')}, s8")
    V.issue("buffer_store_dword v2, v30, s[92:95], 0 offen sc1")
    V.issue("buffer_store_dword v2, v31, s[92:95], 0 offen sc1", "clr")
    if opt("pl", 1) >= 0: issue(1)
    if "fine0" in OPT: STH()
    KR, VR_, SK = 32, 208, 68
    XG, GW = 72, 88
    A("s_lshl_b32 s13, s13, 7")
    A("s_lshl_b32 s14, s3, 5")
    A("s_add_u32 s13, s13, s14")
    A("v_and_b32 v17, 31, v1")
    A("s_lshl_b32 s14, s12, 5")
    A("v_add_u32 v17, s14, v17")
    A("v_lshlrev_b32 v22, 4, v17")
    A("v_and_b32 v23, 31, v1")
    A("v_mul_u32_u24 v23, 544, v23")
    A("v_lshrrev_b32 v24, 5, v1")
    A("v_lshlrev_b32 v24, 5, v24")
    A("v_sub_u32 v23, v23, v24")
    A("s_lshl_b32 s8, s3, 6")
    A(f"s_sub_u32 s8, {UREG+224}, s8")
    A("v_add_u32 v23, s8, v23")
    A("v_lshrrev_b32 v24, 4, v1")
    A("s_lshl_b32 s8, s3, 4")
    A("v_add_u32 v24, s8, v24")
    A("v_and_b32 v2, 15, v1")
    A("v_lshlrev_b32 v2, 4, v2")
    A("s_lshl_b32 s8, s12, 6")
    A("v_add_u32 v27, s8, v24")
    A("v_lshl_add_u32 v27, v27, 12, v2")
    A("s_lshr_b32 s8, s55, 1")
    A("s_lshl_b32 s8, s8, 8")
    A("s_sub_u32 s8, 3840, s8")
    A("v_add_u32 v27, s8, v27")
    A("v_mul_u32_u24 v24, 272, v24")
    A("v_add_u32 v24, v24, v2")
    A(f"v_add_u32 v24, {UREG:#x}, v24")
    A("s_lshl_b32 s14, s4, 7")
    A("s_lshl_b32 s8, s5, 3")
    A("s_add_u32 s14, s14, s8")
    A("s_lshl_b32 s8, s3, 1")
    A("s_add_u32 s14, s14, s8")
    A("s_lshl_b32 s8, s14, 11")
    A("v_lshlrev_b32 v25, 4, v1")
    A("v_add_u32 v26, s8, v25")
    A("v_add_u32 v3, 0x8000, v27")
    srd(A, 64, "k", 4 << 20)
    srd(A, 68, "v", 4 << 20)
    srd(A, 72, "ws", 4 << 20, WS_KVT)
    srd(A, 76, "ws", 8192, WS_G)
    for i in range(8):
        A(f"s_mov_b32 s{80+i}, {i*4096}")
    NTP = " nt" if "ntp" in OPT else ""
    A("v_lshrrev_b32 v19, 3, v1")
    A("v_add_u32 v19, s13, v19")
    A("v_lshlrev_b32 v19, 11, v19")
    A("v_and_b32 v20, 7, v1")
    A("v_lshl_add_u32 v19, v20, 4, v19")
    A("s_lshl_b32 s8, s12, 7")
    A("v_add_u32 v19, s8, v19")
    A("v_subrev_u32 v20, 16384, v19")
    A("v_lshrrev_b32 v21, 5, v1")
    A("v_lshlrev_b32 v21, 11, v21")
    A("v_and_b32 v18, 31, v1")
    A("v_lshl_add_u32 v21, v18, 2, v21")
    A("s_lshl_b32 s8, s3, 12")
    A(f"s_add_u32 s91, s8, {KREG}")
    A("v_add_u32 v21, s91, v21")
    def kvdma():
        A("s_add_u32 m0, s91, 16384")
        V.issue(f"buffer_load_dwordx4 v20, s[64:67], 0 offen{NTP} lds")
        for i in range(4):
            A(f"s_add_u32 m0, s91, {16384 + 1024*(i+1)}")
            A(f"s_mov_b32 s99, {i*16384}")
            V.issue(f"buffer_load_dwordx4 v19, s[64:67], s99 offen{NTP} lds")
        V.issue(f"global_load_dwordx4 {vr(SK,4)}, v22, {sp('shk')}", "k")
        for i in range(4):
            A(f"s_add_u32 m0, s91, {1024*i}")
            A(f"s_mov_b32 s99, {i*16384}")
            V.issue(f"buffer_load_dwordx4 v19, s[68:71], s99 offen{NTP} lds", "v")
    if opt("pl", 1) < 0:
        kvdma(); issue(1)
    gl = []
    for r in range(2):
        for hh in range(2): gl.append((f"buffer_load_dwordx4 {vr(XG+r*8+hh*4,4)}, v26, s[56:59], 0 offen offset:{r*2048+hh*1024}", None))
    for hh in range(2): gl.append((f"global_load_dwordx4 {vr(GW+hh*4,4)}, v25, {sp('gw')} offset:{hh*1024}", "gate"))
    KF = 96; SP = 136; OUT = 144
    work = []
    def W(x):
        if callable(x): work.append(x)
        else: work.extend(x.split("\n"))
    def rndW(pair, tmp):
        W(f"v_cvt_pk_bf16_f32 v{tmp}, v{pair}, v{pair+1}")
        W(f"v_lshlrev_b32 v{pair}, 16, v{tmp}")
        W(f"v_and_b32 v{pair+1}, s12, v{tmp}")
    W("s_mov_b32 s12, 0xffff0000")
    gate_begin = len(work)
    W(lambda: V.wait("gate"))
    for i in range(8):
        W(f"v_lshlrev_b32 v{96+2*i}, 16, v{GW+i}")
        W(f"v_and_b32 v{97+2*i}, s12, v{GW+i}")
    for r in range(2):
        acc = 112 + r
        W(f"v_mov_b32 v{acc}, 0")
        for i in range(8):
            W(f"v_lshlrev_b32 v116, 16, v{XG+r*8+i}")
            W(f"v_and_b32 v117, s12, v{XG+r*8+i}")
            W(pk("mul", 116, 116, 96+2*i))
            rndW(116, 118)
            W(f"v_add_f32 v{acc}, v{acc}, v116")
            W(f"v_add_f32 v{acc}, v{acc}, v117")
    for r in range(2):
        acc = 112 + r
        for sh in (1, 2, 4, 8):
            W(f"v_add_f32_dpp v{acc}, v{acc}, v{acc} row_shr:{sh} row_mask:0xf bank_mask:0xf bound_ctrl:0")
        W(f"v_add_f32_dpp v{acc}, v{acc}, v{acc} row_bcast:15 row_mask:0xa bank_mask:0xf")
        W(f"v_add_f32_dpp v{acc}, v{acc}, v{acc} row_bcast:31 row_mask:0xc bank_mask:0xf")
    for t in ["v_readlane_b32 s8, v112, 63", "v_readlane_b32 s9, v113, 63", "v_mov_b32 v116, s8", "v_mov_b32 v117, s9",
              "v_cmp_eq_u32 vcc, 1, v1", "v_cndmask_b32 v116, v116, v117, vcc", "v_cvt_pk_bf16_f32 v116, v116, v116",
              "v_lshlrev_b32 v116, 16, v116", "v_mul_f32 v116, 0xbfb8aa3b, v116", "v_exp_f32 v116, v116", "v_add_f32 v116, 1.0, v116",
              "v_rcp_f32 v116, v116", "v_cvt_pk_bf16_f32 v117, v116, v116", "v_lshlrev_b32 v116, 16, v117", "v_sub_f32 v118, 1.0, v116",
              "v_cvt_pk_bf16_f32 v116, v116, v118", "s_lshl_b32 s14, s14, 2", "v_lshl_add_u32 v117, v1, 2, s14"]:
        W(t)
    def gstore():
        A("s_mov_b64 exec, 3")
        V.issue("buffer_store_dword v116, v117, s[76:79], 0 offen sc1", "g")
        A("s_mov_b64 exec, -1")
    W(gstore)
    gate_end = len(work)
    W("KVSTART")
    W(lambda: V.wait("k"))
    for i in range(19):
        W(f"ds_read_b32 v{KR+i}, v21 offset:{16384 + (5+i)*128}")
        if i == 9: W("s_waitcnt lgkmcnt(0)")
    W("s_waitcnt lgkmcnt(0)")
    for i in range(19):
        W(f"v_lshlrev_b32 v{KF+2*i}, 16, v{KR+i}")
        W(f"v_and_b32 v{KF+2*i+1}, s12, v{KR+i}")
    for jx in range(4):
        for cc in range(2):
            src = SK + cc*2 + (jx >> 1)
            W(f"v_and_b32 v{SP+2*jx+cc}, s12, v{src}" if jx & 1 else f"v_lshlrev_b32 v{SP+2*jx+cc}, 16, v{src}")
    W(lambda: V.wait("v"))
    for i in range(16):
        W(f"ds_read_b32 v{VR_+i}, v21 offset:{i*128}")
        if i == 7: W("s_waitcnt lgkmcnt(0)")
    W("s_waitcnt lgkmcnt(0)")
    for t in range(16):
        vv = 176 + (t & 1)*2
        W(f"v_lshlrev_b32 v{vv}, 16, v{VR_+t}")
        W(f"v_and_b32 v{vv+1}, s12, v{VR_+t}")
        if opt("pk", 0) & 2:
            o = OUT + 2*t
            W(f"v_pk_mul_f32 {vr(o,2)}, {vr(KF+2*t,2)}, {vr(SP+6,2)}")
            for jx in (2, 1, 0): W(f"v_pk_fma_f32 {vr(o,2)}, {vr(KF+2*(t+3-jx),2)}, {vr(SP+2*jx,2)}, {vr(o,2)}")
            W(f"v_pk_mul_f32 {vr(o,2)}, {vr(o,2)}, {vr(vv,2)}")
            continue
        for cc in range(2): W(f"v_mul_f32 v{OUT+2*t+cc}, v{KF+2*t+cc}, v{SP+6+cc}")
        for jx in (2, 1, 0):
            for cc in range(2): W(f"v_fmac_f32 v{OUT+2*t+cc}, v{KF+2*(t+3-jx)+cc}, v{SP+2*jx+cc}")
        for cc in range(2): W(f"v_mul_f32 v{OUT+2*t+cc}, v{OUT+2*t+cc}, v{vv+cc}")
    for cc in range(2):
        for hf in range(2):
            d = 192 + (cc*2+hf)*4
            for m in range(4):
                mm = hf*4 + m
                W(f"v_cvt_pk_bf16_f32 v{d+m}, v{OUT+2*(15-2*mm)+cc}, v{OUT+2*(14-2*mm)+cc}")
            W(f"ds_write_b128 v23, {vr(d,4)} offset:{cc*272+hf*16}")
    W("s_waitcnt lgkmcnt(0)")
    W("BARRIER")
    for i in range(4): W(f"ds_read_b128 {vr(192+4*i,4)}, v24 offset:{i*4*272}")
    KVL = "nokvl" not in OPT
    def kvstores():
        def block(pol):
            for i in range(4):
                A(f"s_waitcnt lgkmcnt({3-i})")
                V.issue(f"buffer_store_dwordx4 {vr(192+4*i,4)}, v{27 if i < 2 else 3}, s[72:75], s{80+4*(i&1)} offen{pol}", "kvt")
        if not KVL:
            block(" sc1"); return
        V.wait("cls")
        local_check(A, 247, 246, 96, 98)
        A("s_cbranch_scc0 h_kvl")
        n0 = V.n
        block(" sc1")
        A("s_branch h_kve")
        A("h_kvl:")
        V.n = n0
        block("")
        A("h_kve:")
    W(kvstores)
    if "kvfirst" in OPT:
        gate_part = work[gate_begin:gate_end]
        del work[gate_begin:gate_end]
        work.extend(gate_part)
    wpos = [0]
    blocked = [False]
    cur = [0]
    PL = opt("pl", 1)
    KVW = PL + opt("kvd", 3)
    def do_work(n):
        while n > 0 and wpos[0] < len(work) and not blocked[0]:
            w = work[wpos[0]]
            wpos[0] += 1
            if w == "BARRIER":
                blocked[0] = True; return
            if w == "KVSTART":
                if cur[0] < KVW:
                    wpos[0] -= 1; return
                continue
            if callable(w): w()
            else: A(w)
            n -= 1
    PREP0 = opt("prep0", 1)
    UL = 40
    ACC = 64; BF = 96; AFR = 160; KD = 224
    def setup_conv(A):
        A("s_lshl_b32 s12, s88, 12")
        srd(A, 64, "ssmk", 4096, off_sreg=12)
        srd(A, 68, "ws", 4096, WS_KVT, off_sreg=12)
        A("s_mov_b32 s80, s100")
        A("s_mov_b32 s81, s101")
        A("v_and_b32 v37, 15, v1")
        A("s_lshr_b32 s8, s88, 6")
        A("s_and_b32 s8, s8, 1")
        A("s_lshl_b32 s8, s8, 3")
        A("s_add_u32 s8, s8, s54")
        A("v_lshl_add_u32 v32, v37, 4, s8")
        A("s_lshr_b32 s8, s4, 2")
        A("s_lshl_b32 s8, s8, 1")
        A("s_and_b32 s9, s4, 3")
        A("s_lshl_b32 s9, s9, 3")
        A("s_add_u32 s8, s8, s9")
        A("v_lshrrev_b32 v38, 3, v37")
        A("v_and_b32 v39, 7, v37")
        A("v_lshl_add_u32 v38, v39, 5, v38")
        A("v_add_u32 v38, s8, v38")
        A("v_and_b32 v39, 16, v1")
        A("v_cmp_ne_u32 vcc, 0, v39")
        A("v_cndmask_b32 v32, v32, v38, vcc")
        A("v_lshlrev_b32 v32, 7, v32")
        A(f"v_add_u32 v32, {KF_OFF:#x}, v32")
        A("v_lshlrev_b32 v33, 2, v1")
        srd(A, 76, "dbg", 256)
        A(f"s_mul_i32 s13, s3, 8320")
        A(f"s_add_u32 s13, s13, {KREG}")
        A(f"s_mul_i32 s82, s3, 4608")
        A(f"s_add_u32 s82, s82, {UREG}")
        A("v_add_u32 v36, 2, v25")
        A("v_and_b32 v38, 7, v1")
        A("v_lshlrev_b32 v38, 2, v38")
        A("v_bfe_u32 v39, v1, 3, 1")
        A("v_mul_u32_u24 v39, 4160, v39")
        A("v_add3_u32 v38, v38, v39, s13")
        A("s_lshl_b32 s80, s80, 16")
        A("v_mov_b32 v56, s80")
        A("v_cmp_eq_u32 vcc, 15, v37")
        A("v_cndmask_b32 v56, 0, v56, vcc")
        A("ds_write_b32 v38, v56")
        A("s_and_b32 s14, s88, 1")
        A("s_lshl_b32 s14, s14, 4")
        A("s_lshr_b32 s81, s81, s14")
        A("s_lshl_b32 s81, s81, 16")
        A(f"v_mov_b32 v60, {LFLAG:#x}")
        A("v_mov_b32 v61, 1")
    def setup_late(A):
        A("v_lshrrev_b32 v5, 4, v1")
        A("v_and_b32 v37, 15, v1")
        A("v_lshl_add_u32 v38, v5, 3, v37")
        A("v_lshlrev_b32 v38, 1, v38")
        A("v_and_b32 v39, 1, v1")
        A("v_mul_u32_u24 v39, 4158, v39")
        A("v_sub_u32 v38, v38, v39")
        A("s_add_u32 s14, s13, 4160")
        A("v_add_u32 v16, s14, v38")
        for i in range(1, 4): A(f"v_add_u32 v{16+i}, {1024*i}, v16")
        A("v_lshlrev_b32 v38, 5, v37")
        A("v_lshlrev_b32 v39, 4, v5")
        A("v_sub_u32 v20, v39, v38")
        A("s_add_u32 s14, s82, 480")
        A("v_add_u32 v20, s14, v20")
        A("v_lshl_add_u32 v39, v5, 3, v38")
        A("s_add_u32 s14, s82, 504")
        A("v_sub_u32 v21, s14, v39")
        A("v_and_b32 v39, 1, v5")
        A("v_lshl_add_u32 v22, v39, 9, v38")
        A("v_lshrrev_b32 v39, 1, v5")
        A("v_lshl_add_u32 v22, v39, 4, v22")
        A("v_add_u32 v23, s82, v25")
    setup_conv(W)
    print("prep work items", len(work))
    def cissue(st):
        tile_of(A, st >> 1, 11)
        A("s_lshl_b32 s11, s11, 7")
        sr_ = "s[56:59]" if st % 2 == 0 else "s[60:63]"
        A("s_add_u32 s99, s11, s91")
        A(f"s_add_u32 m0, s10, {(st % NS2)*16384:#x}")
        for n in range(2):
            V.issue(f"buffer_load_dwordx4 v{VC+n}, {sr_}, s99 offen offset:{n*1024} lds")
        A("s_add_u32 s11, s11, s90")
        A(f"s_add_u32 m0, s10, {(st % NS2)*16384 + 8192:#x}")
        for n in range(2):
            V.issue(f"buffer_load_dwordx4 v{VC+n}, {sr_}, s11 offen offset:{n*1024} lds", ("C", st))
    def uloads():
        for i in range(4): A(f"buffer_load_dwordx4 {vr(UL+4*i,4)}, v25, s[68:71], 0 offen offset:{i*1024} sc1")
    def ctouch():
        A("s_cmp_ge_u32 s3, 2")
        A(f"s_cselect_b32 s96, s{P['Cim']}, s{P['Cre']}")
        A(f"s_cselect_b32 s97, s{P['Cim']+1}, s{P['Cre']+1}")
        A("s_lshl_b32 s98, s2, 13")
        A("s_and_b32 s99, s3, 1")
        A("s_lshl_b32 s99, s99, 12")
        A("s_add_u32 s98, s98, s99")
        A("v_and_b32 v240, 31, v1")
        if "km" in OPT:
            A("s_add_u32 s96, s96, s98")
            A("s_addc_u32 s97, s97, 0")
            A("s_lshl_b32 s98, s88, 12")
            A(f"s_add_u32 s98, s{P['ssmk']}, s98")
            A(f"s_addc_u32 s99, s{P['ssmk']+1}, 0")
            A("v_mov_b32 v242, s96")
            A("v_mov_b32 v243, s97")
            A("v_mov_b32 v244, s98")
            A("v_mov_b32 v245, s99")
            A("v_cmp_lt_u32 s[96:97], 31, v1")
            A("v_cndmask_b32 v242, v242, v244, s[96:97]")
            A("v_cndmask_b32 v243, v243, v245, s[96:97]")
            A("v_lshlrev_b32 v240, 7, v240")
            A("v_add_co_u32 v242, s[96:97], v242, v240")
            A("v_addc_co_u32 v243, s[96:97], 0, v243, s[96:97]")
            V.issue("global_load_dword v241, v[242:243], off")
        else:
            A("v_lshl_add_u32 v240, v240, 7, s98")
            V.issue("global_load_dword v241, v240, s[96:97]")
    FILL = opt("fill", 10)
    kst = [None]
    KW = opt("kw", 2)
    CHK = opt("chk", 13)
    KFS = opt("kfs", 12)
    KDS = opt("kds", 11)
    UWS = opt("uws", 14)
    WEND = min(KFS, KDS, 12)
    CM = opt("cm", 6)
    assert CHK < UWS <= 15 and opt("lates", 14) <= UWS
    nU = [0]; cdone = [0]
    NC0 = opt("nc0", 2)
    A(f"v_mov_b32 v6, {LFLAG:#x}")
    A("v_mov_b32 v7, 0")
    for o in (4, 8, 12, 16): A(f"ds_write_b32 v6, v7 offset:{o}")
    ST()
    A("s_waitcnt lgkmcnt(0)")
    V.wait("clr")
    ST()
    if "fine0" in OPT: STH()
    A("s_barrier")
    issue(2)
    if "fine0" in OPT: STH()
    for t, tag in gl: V.issue(t, tag)
    for s in range(N1):
        V.wait(("S", min(s+1, N1-1)))
        if kst[0] is not None and s == min(kst[0] + KW, 15): V.wait("kvt"); V.wait("g")
        if "fine1" in OPT: STH()
        A("s_barrier")
        if kst[0] is not None and s == min(kst[0] + KW, 15):
            A("s_cmp_lg_u32 s3, 0")
            A("s_cbranch_scc1 h_kflag")
            A("v_mov_b32 v6, 1")
            A("buffer_store_dword v6, v30, s[92:95], 0 offen sc1")
            A("h_kflag:")
            print("k flag after barrier", s+1)
        blocked[0] = False
        cur[0] = s
        FM = opt("fmode", 0)
        fl = opt("fill0", FILL) if s < opt("fill0n", 0) else FILL
        if s+3 < N1 and FM == 0: issue(s+3, fl if s >= PREP0 else 0)
        elif s+3 < N1 and FM == 1:
            issue(s+3)
            if s >= PREP0: do_work(8*FILL)
        if s == PL - 100: pass
        if s == PL and PL >= 0: kvdma()
        if s == CM: ctouch()
        if KVL and s == opt("cls", 6):
            A("v_lshlrev_b32 v246, 2, v1")
            V.issue(f"global_load_dword v247, v246, {sp('dbg')} sc1", "cls")
        if kst[0] is None and "kvt" in V.tags and "g" in V.tags: kst[0] = s
        if s == WEND:
            do_work(10000)
            assert wpos[0] == len(work), (wpos[0], len(work))
        if s == KFS:
            V.issue("buffer_load_dword v34, v33, s[76:79], 0 offen sc1")
            V.issue("buffer_load_dword v35, v32, s[92:95], 0 offen sc1", "kf")
            ST()
        if s == KDS and KDS < CHK:
            V.wait("g")
            A("s_add_u32 m0, s13, 32")
            for i in range(4): V.issue(f"buffer_load_dwordx4 v25, s[64:67], 0 offen offset:{i*1024}{NTP} lds")
            A("s_add_u32 m0, s13, 4192")
            for i in range(4): V.issue(f"buffer_load_dwordx4 v36, s[64:67], 0 offen offset:{i*1024}{NTP} lds", "K")
        if s == 13:
            srd(A, 56, "Cre", 2 << 20)
            srd(A, 60, "Cim", 2 << 20)
            A("s_lshl_b32 s10, s3, 11")
            A(f"s_add_u32 s10, s10, {CRING:#x}")
            A("s_lshr_b32 s90, s5, 3")
            A("s_xor_b32 s91, s90, 1")
            A("s_lshl_b32 s91, s91, 20")
            A("s_lshl_b32 s11, s90, 10")
            A("s_add_u32 s91, s91, s11")
            A("s_mul_i32 s90, s90, 0x100400")
            A("v_mov_b32 v56, 0")
            A("v_mov_b32 v57, 0")
            A("v_lshlrev_b32 v38, 3, v1")
            A("v_add_u32 v38, s82, v38")
            A("ds_write_b64 v38, v[56:57] offset:4096")
            ST()
        if s == CHK:
            V.wait("kf")
            A("s_mov_b32 s83, 0")
            A("v_and_b32 v34, 15, v34")
            A("v_cmp_ne_u32 vcc, 15, v34")
            A("v_cmp_ne_u32 s[84:85], 1, v35")
            A("s_or_b64 vcc, vcc, s[84:85]")
            A("s_cbranch_scc1 h_nou")
            A("s_mov_b32 s83, 1")
            uloads()
            A("h_nou:")
            nU[0] = V.n
        if s == KDS and KDS >= CHK:
            V.wait("g")
            A("s_add_u32 m0, s13, 32")
            for i in range(4): V.issue(f"buffer_load_dwordx4 v25, s[64:67], 0 offen offset:{i*1024}{NTP} lds")
            A("s_add_u32 m0, s13, 4192")
            for i in range(4): V.issue(f"buffer_load_dwordx4 v36, s[64:67], 0 offen offset:{i*1024}{NTP} lds", "K")
        if s == opt("lates", 14): setup_late(A)
        if s == 15:
            for z in range(NC0): cissue(z)
            cdone[0] = NC0
        if s == UWS:
            A("s_cmp_lg_u32 s83, 1")
            A("s_cbranch_scc1 h_nouw")
            A(f"s_waitcnt vmcnt({V.n - nU[0]})")
            for i in range(4): A(f"ds_write_b128 v23, {vr(UL+4*i,4)} offset:{1024*i}")
            A("h_nouw:")
    ST()
    if "hprio1" in OPT: A("s_setprio 0")
    A("s_cmp_lg_u32 s83, 0")
    A("s_cbranch_scc1 h_haveu")
    spin_all(A, "h_init", 34, "buffer_load_dword v34, v33, s[76:79], 0 offen sc1", "15", pre="v_and_b32 v34, 15, v34")
    spin_all(A, "h_kf", 35, "buffer_load_dword v35, v32, s[92:95], 0 offen sc1")
    uloads()
    A("s_waitcnt vmcnt(0)")
    for i in range(4): A(f"ds_write_b128 v23, {vr(UL+4*i,4)} offset:{1024*i}")
    A("h_haveu:")
    V.done = max(V.done, nU[0])
    V.wait("K")
    lds_inc(A, 60, 61, 8)
    for i in range(4): A(f"s_mov_b32 s{84+i}, s{68+i}")
    srd(A, 68, "ws", 4 << 20, WS_KVT)
    A("s_waitcnt lgkmcnt(0)")
    ST()
    L = LQ(A)
    ops = []
    def reads(r):
        R = []
        s = r & 1
        for i in range(8):
            R.append((f"ds_read_b128 {vr(BF+s*32+i*4,4)}, v20 offset:{3584-512*i+64*r}", ("B", r, i)))
            o = 128*(i & 1) + 16*r
            d = AFR + s*32 + i*4
            R.append((f"ds_read2_b32 {vr(d,2)}, v{16+(i>>1)} offset0:{o} offset1:{o+1}", None))
            R.append((f"ds_read2_b32 {vr(d+2,2)}, v{16+(i>>1)} offset0:{o+2} offset1:{o+3}", ("A", r, i)))
        return R
    def first_order(R):
        return R[1:3] + [R[3*i] for i in range(8)] + [x for i in range(1, 8) for x in R[3*i+1:3*i+3]]
    KVT = 40
    for n in range(8): ops.append(("rd", f"ds_read_b64 {vr(KVT+2*n,2)}, v21 offset:{3584-512*n}", ("KV", n)))
    for t, tag in first_order(reads(0)): ops.append(("rd", t, tag))
    fill = []
    fill.append(("s_mov_b32 s12, 0xffff0000", None)); fill.append(("v_mov_b32 v26, s81", None))
    for n in range(8):
        k = KD + 4*n
        c = [f"v_and_b32 v{k}, s12, v{KVT+2*n+1}", f"v_lshlrev_b32 v{k+1}, 16, v{KVT+2*n+1}", f"v_and_b32 v{k+2}, s12, v{KVT+2*n}", f"v_lshlrev_b32 v{k+3}, 16, v{KVT+2*n}"]
        c += [f"v_mul_f32 v{k+i}, v{k+i}, v26" for i in range(4)]
        c += [f"v_cvt_pk_bf16_f32 v56, v{k}, v{k+1}", f"v_cvt_pk_bf16_f32 v57, v{k+2}, v{k+3}",
              f"v_lshlrev_b32 v{k}, 16, v56", f"v_and_b32 v{k+1}, s12, v56", f"v_lshlrev_b32 v{k+2}, 16, v57", f"v_and_b32 v{k+3}, s12, v57"]
        for i, t in enumerate(c): fill.append((t, ("KV", n) if i == 0 else None))
    YD = 40
    def post(n):
        y = ACC + 4*n; k = KD + 4*n
        d = YD + (n >> 1)*4 + (n & 1)*2
        c = [f"v_cvt_pk_bf16_f32 v56, v{y}, v{y+1}", f"v_cvt_pk_bf16_f32 v57, v{y+2}, v{y+3}",
             f"v_lshlrev_b32 v{y}, 16, v56", f"v_and_b32 v{y+1}, s12, v56", f"v_lshlrev_b32 v{y+2}, 16, v57", f"v_and_b32 v{y+3}, s12, v57"]
        c += [f"v_add_f32 v{k+i}, v{k+i}, v{y+i}" for i in range(4)]
        c += [f"v_cvt_pk_bf16_f32 v{d}, v{k}, v{k+1}", f"v_cvt_pk_bf16_f32 v{d+1}, v{k+2}, v{k+3}"]
        if n & 1:
            d = YD + (n >> 1)*4
            c += [f"v_permlane16_swap_b32 v{d}, v{d+2}", f"v_permlane16_swap_b32 v{d+1}, v{d+3}"]
        return c
    ystores = [f"buffer_store_dwordx4 {vr(YD+4*k,4)}, v22, s[84:87], 0 offen offset:{k*1024} sc1" for k in range(4)]
    LATEC = opt("latec", 200)
    CFM = opt("cfm", 80)
    FPM = opt("fpm", 2)
    nmf = 0
    postq = []
    for r in range(8):
        s = r & 1
        nxt = first_order(reads(r+1)) if r < 7 else []
        cnt = 0
        for q in range(8):
            for n in range(q, 8):
                c = vr(ACC+4*n, 4)
                ops.append(("mf", f"v_mfma_f32_16x16x32_bf16 {c}, {vr(AFR+s*32+4*q,4)}, {vr(BF+s*32+4*(n-q),4)}, {'0' if (r == 0 and q == 0) else c}",
                            [("A", r, q), ("B", r, n-q)]))
                nmf += 1; cnt += 1
                if nxt and cnt >= 2:
                    t, tag = nxt.pop(0); ops.append(("rd", t, tag))
                elif r < 7:
                    for z in range(FPM):
                        if fill: ops.append(("fill",) + fill.pop(0))
                if nmf == LATEC: ops.append(("latec",))
                if nmf == CFM: ops.append(("cf",))
                if r == 7:
                    if n == q: postq += [(nmf + 3, t) for t in post(n)]
                    for z in range(opt("ppm", 3)):
                        if postq and postq[0][0] <= nmf and q < 7: ops.append(("fill", postq.pop(0)[1], None))
        assert not nxt
    assert not fill and CFM < LATEC
    for _, t in postq: ops.append(("fill", t, None))
    for op in ops:
        if op[0] == "rd": L.issue(op[1], op[2])
        elif op[0] == "mf":
            for t in op[2]: pass
            k = max(op[2], key=lambda t: L.tags[t])
            L.wait(k)
            A(op[1])
        elif op[0] == "fill":
            if op[2] is not None: L.wait(op[2])
            A(op[1])
        elif op[0] == "latec":
            while cdone[0] < NS2: cissue(cdone[0]); cdone[0] += 1
        elif op[0] == "cf":
            while cdone[0] < 2: cissue(cdone[0]); cdone[0] += 1
            V.wait(("C", 1))
            lds_inc(A, 60, 61, 16); L.n += 1
    ST()
    YST = opt("yst", 0)
    if YST == 0:
        for t in ystores: V.issue(t, "y2")
    A("v_lshrrev_b32 v8, 4, v1")
    A("s_lshl_b32 s8, s3, 4")
    A("v_add_u32 v8, s8, v8")
    A("v_and_b32 v11, 15, v1")
    A("s_lshl_b32 s9, s5, 11")
    A(f"s_add_u32 s9, s9, {YF_OFF:#x}")
    A("v_lshl_add_u32 v10, v11, 7, s9")
    A("v_lshlrev_b32 v11, 4, v11")
    A("v_mul_u32_u24 v9, 272, v8")
    A("v_add_u32 v9, v9, v11")
    A("s_lshl_b32 s8, s5, 6")
    A("v_add_u32 v8, s8, v8")
    A("v_lshl_add_u32 v8, v8, 12, v11")
    A("s_lshl_b32 s8, s4, 8")
    A("v_add_u32 v8, s8, v8")
    ST()
    YR = 116
    YFL_LD = "buffer_load_dword v19, v10, s[92:95], 0 offen sc1"
    YFL, GYF, GYL, GYW = opt("yfl", 5), opt("gyf", 8), opt("gyl", 10), opt("gyw", 12)
    for st in range(1, N2-1):
        V.wait(("C", st+1))
        if "fineh" in OPT: STH()
        A("s_barrier")
        if NS2 <= st + NS2 - 1 < N2: cissue(st + NS2 - 1)
        if "abl" in OPT and st >= 2 and st < 13 and int(OPT["abl"]) & 1:
            continue_ = True
            for tg in ("y2", "xt", "yf", "eps"): V.tags.setdefault(tg, 0)
            continue
        if YST and st == YST:
            for t in ystores: V.issue(t, "y2")
        if st == YFL:
            V.wait("y2")
            A("s_mov_b64 exec, 1")
            A("ds_add_rtn_u32 v62, v60, v61 offset:4")
            A("s_mov_b64 exec, -1")
            A("s_waitcnt lgkmcnt(0)")
            A("v_readfirstlane_b32 s83, v62")
            A("s_cmp_lg_u32 s83, 3")
            A("s_cbranch_scc1 h_noy")
            A("buffer_store_dword v61, v31, s[92:95], 0 offen sc1")
            A("h_noy:")
        if st == GYF: V.issue(YFL_LD, "yf")
        if st == GYL:
            V.wait("yf")
            spin_all(A, "h_yf", 19, YFL_LD)
            for i in range(4):
                A(f"s_mov_b32 s8, {i*16384}")
                V.issue(f"buffer_load_dwordx4 {vr(YR+i*4,4)}, v8, s[68:71], s8 offen sc1", "eps")
        if st == GYW:
            V.wait("eps")
            for i in range(4): A(f"ds_write_b128 v9, {vr(YR+i*4,4)} offset:{i*4*272}")
            A("s_waitcnt lgkmcnt(0)")
    assert YST < YFL < GYF < GYL < GYW <= N2 - 3
    STH.flush()
    ST.flush()
    A("s_endpgm")

def build():
    s = header_comments()
    s += "; generated by tools/gen9.py (fused single kernel, split-K GEMM2; gen8 h layout)\n"
    s += "; @launch grid=(256,1,1) block=(512,1,1) lds=163840\n"
    s += '.amdgcn_target "amdgcn-amd-amdhsa--gfx950"\n.text\n'
    A = Asm()
    A.raw(f".globl {KN}\n.p2align 8\n.type {KN},@function")
    gen_kernel(A)
    s += A.render()
    s += descriptor(KN, 256, 102)
    import subprocess, tempfile, re
    with tempfile.TemporaryDirectory() as td:
        open(td + "/a.s", "w").write(s.replace("CODE_LAST", "0x12345"))
        subprocess.run(["clang", "-x", "assembler", "-target", "amdgcn-amd-amdhsa", "-mcpu=gfx950", "-c", td + "/a.s", "-o", td + "/a.o"], check=True)
        o = subprocess.run(["llvm-objdump", "-h", td + "/a.o"], capture_output=True, text=True).stdout
    size = int(re.search(r"\.text\s+([0-9a-f]+)", o).group(1), 16)
    print("code bytes", size)
    assert size <= 65536
    return s.replace("CODE_LAST", hex(size - 4))

if __name__ == "__main__":
    out = sys.argv[1] if len(sys.argv) > 1 and not sys.argv[1].startswith("--") else os.path.join(os.path.dirname(os.path.abspath(__file__)), "..", NAME + ".s")
    open(out, "w").write(build())
    print("wrote", out)
```

```python
import sys, os
sys.path.insert(0, os.path.dirname(os.path.abspath(__file__)))
from asmlib import Asm
from gen import (NAME, P, sp, vr, sr, load_kernargs, srd, pk, cmul, tile_ids, Stamper, OPT, header_comments, descriptor)
import gen

KN = NAME + "_kernel"
WS_H    = 0
WS_KVT  = 8 << 20
WS_G    = 16 << 20
WS_EBOX = 17 << 20
WS_FLG  = 18 << 20
HF_OFF  = 0
KF_OFF  = 128 << 10
YF_OFF  = 160 << 10
PF_OFF  = 192 << 10
FLG_SZ  = 320 << 10
WS_PART = 24 << 20
N1 = 16
N2 = 16
NS2 = 4
PD = 4
CRING = 32768
KREG = 98304
UREG = KREG + 4*8320
LFLAG = UREG + 4*4608
SPIN = int(OPT.get("spin", 1 << 16))
SLEEP = int(OPT.get("sleep", 4))
def opt(k, d): return int(OPT.get(k, d))

class VQ:
    def __init__(self, A): self.A = A; self.n = 0; self.tags = {}; self.done = 0
    def issue(self, text, tag=None):
        self.A(text); self.n += 1
        if tag is not None: self.tags[tag] = self.n
    def wait(self, tag):
        k = self.tags[tag]
        if k <= self.done: return
        cnt = min(63, self.n - k)
        self.A(f"s_waitcnt vmcnt({cnt})"); self.done = self.n - cnt
    def drained(self): self.done = self.n

class LQ:
    def __init__(self, A): self.A = A; self.n = 0; self.tags = {}; self.done = 0
    def issue(self, text, tag=None):
        self.A(text); self.n += 1
        if tag is not None: self.tags[tag] = self.n
    def wait(self, tag):
        k = self.tags[tag]
        if k > self.done:
            self.A(f"s_waitcnt lgkmcnt({min(15, self.n - k)})"); self.done = max(k, self.n - 15)
    def drain(self):
        self.A("s_waitcnt lgkmcnt(0)"); self.done = self.n

def spin_all(A, name, vreg, reload, cmpval="1", sctr=89, pre=None):
    A(f"s_mov_b32 s{sctr}, {SPIN}")
    A(f"{name}_chk:")
    if pre: A(pre)
    A(f"v_cmp_ne_u32 vcc, {cmpval}, v{vreg}")
    A("s_cmp_eq_u64 vcc, 0")
    A(f"s_cbranch_scc1 {name}_ok")
    A(f"s_sub_u32 s{sctr}, s{sctr}, 1")
    A(f"s_cbranch_scc1 {name}_ok")
    A(f"s_sleep {SLEEP}")
    A(reload)
    A("s_waitcnt vmcnt(0)")
    A(f"s_branch {name}_chk")
    A(f"{name}_ok:")

def lds_spin(A, name, vaddr, off, vtmp, target, stmp=8, sctr=89):
    A(f"s_mov_b32 s{sctr}, {SPIN*4}")
    A(f"{name}:")
    A(f"ds_read_b32 v{vtmp}, v{vaddr} offset:{off}")
    A("s_waitcnt lgkmcnt(0)")
    A(f"v_readfirstlane_b32 s{stmp}, v{vtmp}")
    A(f"s_cmp_ge_u32 s{stmp}, {target}")
    A(f"s_cbranch_scc1 {name}_ok")
    A(f"s_sub_u32 s{sctr}, s{sctr}, 1")
    A(f"s_cbranch_scc0 {name}")
    A(f"{name}_ok:")

def lds_inc(A, vaddr, vone, off):
    A("s_mov_b64 exec, 1")
    A(f"ds_add_u32 v{vaddr}, v{vone} offset:{off}")
    A("s_mov_b64 exec, -1")

def zip_chains(A, chains):
    chains = [[x for t in c for x in t.split("\n")] for c in chains]
    for i in range(max(len(c) for c in chains)):
        for c in chains:
            if i < len(c): A(c[i])

def local_check(A, vbits, vtmp, sdst_pair, stmp):
    A(f"s_getreg_b32 s{stmp}, hwreg(HW_REG_XCC_ID, 0, 4)")
    A(f"s_lshl_b32 s{stmp}, 0x100, s{stmp}")
    A(f"s_or_b32 s{stmp}, s{stmp}, 15")
    A(f"v_and_b32 v{vtmp}, 7, v1")
    A(f"v_cmp_eq_u32 s[{sdst_pair}:{sdst_pair+1}], s54, v{vtmp}")
    A(f"v_cmp_ne_u32 vcc, s{stmp}, v{vbits}")
    A(f"s_and_b64 vcc, vcc, s[{sdst_pair}:{sdst_pair+1}]")

SNT = opt("snt", 1)
PB = opt("pb", 1)
NPQ = 4 if PB else 8
FBAR = opt("fb", 1)
ORD = opt("ord", 1)
def tile_of(A, i, dst):
    if i == 0: A(f"s_mov_b32 s{dst}, s15")
    elif ORD:
        A(f"s_cmp_le_u32 s15, {i-1}")
        A(f"s_cselect_b32 s{dst}, {i}, {i-1}")
    else:
        A(f"s_add_u32 s{dst}, s15, {i}")
        A(f"s_and_b32 s{dst}, s{dst}, 7")

def gen_kernel(A):
    A(f"{KN}:")
    A("s_cmp_ge_u32 s2, 256")
    A("s_cbranch_scc1 L_end")
    load_kernargs(A)
    tile_ids(A)
    A("v_and_b32 v1, 63, v0")
    A("v_lshrrev_b32 v2, 6, v0")
    A("s_and_b32 s15, s5, 7")
    A("v_readfirstlane_b32 s3, v2")
    A("s_cmp_ge_u32 s3, 4")
    A("s_cbranch_scc0 L_consumer")
    helper(A)
    A("L_consumer:")
    consumer(A)
    A("L_end:")
    A("s_endpgm")


def consumer(A):
    ACC = 64
    FA, FB = 128, 144
    AD, BD = 160, 168
    LAM, C2, MU, MU2, MU4, MU8 = 176, 178, 180, 182, 184, 186
    EL = 192
    UR2 = 224
    ST = Stamper(A, 0, 63)
    ST()
    A(f"s_setprio {opt('prio', 2)}")
    A("s_and_b32 s6, s3, 1")
    A("s_lshr_b32 s7, s3, 1")
    A("v_and_b32 v4, 31, v1")
    A("s_lshl_b32 s8, s5, 6")
    A("s_lshl_b32 s9, s7, 5")
    A("s_add_u32 s8, s8, s9")
    A("v_add_u32 v3, s8, v4")
    A("v_lshlrev_b32 v5, 1, v3")
    A("v_lshrrev_b32 v6, 5, v1")
    A("s_lshl_b32 s10, s4, 1")
    A("s_add_u32 s10, s10, s6")
    if "nocode" not in OPT:
        A("s_getpc_b64 s[12:13]")
        A("c_pc:")
        A(f"s_sub_u32 s12, s12, c_pc-{KN}")
        A("s_subb_u32 s13, s13, 0")
        A("s_lshl_b32 s11, s3, 14")
        A("v_lshl_add_u32 v24, v1, 7, s11")
        A("v_min_u32 v24, CODE_LAST, v24")
        A("global_load_dword v25, v24, s[12:13]")
        A("v_add_u32 v24, 0x2000, v24")
        A("v_min_u32 v24, CODE_LAST, v24")
        A("global_load_dword v26, v24, s[12:13]")
    A("s_waitcnt lgkmcnt(0)")
    A(f"global_load_ushort v8, v5, {sp('Lre')}")
    A(f"global_load_ushort v9, v5, {sp('Lim')}")
    A(f"global_load_ushort v10, v5, {sp('logdt')}")
    srd(A, 56, "ws", 256 << 10, WS_EBOX)
    srd(A, 60, "ws", 8 << 20, WS_H)
    srd(A, 64, "dbg", 256)
    srd(A, 68, "ws", FLG_SZ, WS_FLG)
    A("s_lshl_b32 s11, s10, 13")
    A("v_lshl_add_u32 v7, v3, 3, s11")
    A("v_mov_b32 v12, 0")
    A("v_mov_b32 v13, 0")
    A("buffer_store_dwordx2 v[12:13], v7, s[56:59], 0 offen sc1")
    A("s_lshl_b32 s11, s10, 4")
    A("s_add_u32 s11, s11, s5")
    A("s_lshl_b32 s11, s11, 1")
    A("s_add_u32 s11, s11, s7")
    A("s_lshl_b32 s11, s11, 7")
    A("v_mov_b32 v60, s11")
    A("buffer_store_dword v12, v60, s[68:71], 0 offen sc1")
    A("s_lshl_b32 s72, s4, 4")
    A("s_add_u32 s72, s72, s5")
    A("s_lshl_b32 s72, s72, 2")
    A("s_add_u32 s72, s72, s3")
    A("s_lshl_b32 s72, s72, 7")
    A(f"s_add_u32 s11, s72, {PF_OFF:#x}")
    A("v_mov_b32 v30, s11")
    A("buffer_store_dword v12, v30, s[68:71], 0 offen sc1")
    A("v_mov_b32 v23, 1")
    A("v_bfe_u32 v11, v1, 1, 3")
    A("v_xor_b32 v11, v11, v6")
    A("s_lshl_b32 s11, s6, 13")
    A("v_lshl_add_u32 v14, v4, 7, s11")
    A("s_lshl_b32 s11, s7, 12")
    A("s_add_u32 s11, s11, 16384")
    A("v_lshl_add_u32 v15, v4, 7, s11")
    for ks in range(4):
        A(f"v_xor_b32 v16, {2*ks}, v11")
        A(f"v_lshl_add_u32 v{AD+ks}, v16, 4, v14")
        A(f"v_lshl_add_u32 v{BD+ks}, v16, 4, v15")
        A(f"v_add_u32 v{AD+4+ks}, 0x10000, v{AD+ks}")
        A(f"v_add_u32 v{BD+4+ks}, 0x10000, v{BD+ks}")
    A("v_lshlrev_b32 v21, 2, v1")
    A("s_waitcnt vmcnt(0)")
    A("v_lshlrev_b32 v8, 16, v8")
    A("v_lshlrev_b32 v9, 16, v9")
    A("v_lshlrev_b32 v10, 16, v10")
    A("s_mov_b32 s12, 0x3fb8aa3b")
    A("v_mul_f32 v10, s12, v10")
    A("v_exp_f32 v10, v10")
    A("v_cvt_pk_bf16_f32 v10, v10, v10")
    A("v_lshlrev_b32 v10, 16, v10")
    A("v_mul_f32 v16, v10, v8")
    A("v_mul_f32 v17, v10, v9")
    A("v_mul_f32 v16, s12, v16")
    A("v_exp_f32 v16, v16")
    A("v_mul_f32 v17, 0.15915494, v17")
    A("v_rndne_f32 v18, v17")
    A("v_sub_f32 v17, v17, v18")
    A("v_cos_f32 v18, v17")
    A("v_sin_f32 v19, v17")
    A(f"v_mul_f32 v{LAM}, v16, v18")
    A(f"v_mul_f32 v{LAM+1}, v16, v19")
    A(f"v_add_f32 v16, -1.0, v{LAM}")
    A("v_mul_f32 v17, v8, v8")
    A("v_fma_f32 v17, v9, v9, v17")
    A("v_rcp_f32 v17, v17")
    A("v_mul_f32 v18, v16, v8")
    A(f"v_fma_f32 v18, v{LAM+1}, v9, v18")
    A(f"v_mul_f32 v19, v{LAM+1}, v8")
    A("v_fma_f32 v19, -v16, v9, v19")
    A("v_add_f32 v17, v17, v17")
    A(f"v_mul_f32 v{C2}, v18, v17")
    A(f"v_mul_f32 v{C2+1}, v19, v17")
    cmul(A, 16, LAM, LAM); cmul(A, 18, 16, 16); cmul(A, 16, 18, 18)
    cmul(A, MU, 16, 16); cmul(A, MU2, MU, MU); cmul(A, MU4, MU2, MU2); cmul(A, MU8, MU4, MU4)
    cmul(A, 48, C2, MU2)
    A("v_cmp_lt_u32 vcc, 31, v1")
    A(f"v_cndmask_b32 v48, v{C2}, v48, vcc")
    A(f"v_cndmask_b32 v49, v{C2+1}, v49, vcc")
    A("v_lshlrev_b32 v50, 13, v6")
    A("v_sub_u32 v50, v7, v50")
    A("s_add_u32 s11, s10, 1")
    A("v_sub_u32 v51, s11, v6")
    A("v_lshrrev_b32 v51, 1, v51")
    A("s_lshl_b32 s11, s4, 2")
    A("s_add_u32 s11, s11, s3")
    A("s_lshl_b32 s11, s11, 5")
    A("v_lshrrev_b32 v52, 3, v1")
    A("v_add_u32 v52, s11, v52")
    A("v_lshlrev_b32 v52, 11, v52")
    A("v_and_b32 v16, 7, v1")
    A("v_lshl_add_u32 v52, v16, 4, v52")
    A("s_lshl_b32 s11, s5, 7")
    A("v_add_u32 v52, s11, v52")
    A("s_lshl_b32 s11, s3, 13")
    A("v_lshlrev_b32 v53, 11, v6")
    A("v_lshl_add_u32 v53, v4, 1, v53")
    A("v_add_u32 v53, s11, v53")
    A("s_lshl_b32 s11, s5, 6")
    A("v_add_u32 v54, s11, v4")
    A("v_lshlrev_b32 v54, 1, v54")
    srd(A, 76, "x", 4 << 20)
    srd(A, 92, "ws", 8 << 20, WS_PART)
    A("s_xor_b32 s73, s72, 4096")
    A("s_lshl_b32 s74, s73, 6")
    A("s_add_u32 s75, s74, 4096")
    A("v_lshlrev_b32 v59, 4, v1")

    def rd(stage, ks, buf, which):
        slot = stage % 3
        hi = 4 if slot >= 2 else 0
        so = (slot & 1) * 32768
        if which < 2:
            return f"ds_read_b128 {vr(FA+buf*8+which*4,4)}, v{AD+hi+ks} offset:{so + which*4096}"
        ri = which - 2
        return f"ds_read_b128 {vr(FB+buf*8+ri*4,4)}, v{BD+hi+ks} offset:{so + ri*8192}"
    def mf(buf, mt, ri, first):
        acc = ACC + ri*32 + mt*16
        return f"v_mfma_f32_32x32x16_bf16 {vr(acc,16)}, {vr(FA+buf*8+mt*4,4)}, {vr(FB+buf*8+ri*4,4)}, {'0' if first else vr(acc,16)}"
    RD_ORDER = [0, 2, 1, 3]
    MF_ORDER = [(0,0), (1,0), (1,1), (0,1)]
    ST()
    A("s_barrier")
    ST()
    A("s_cmp_lg_u32 s3, 0")
    A("s_cbranch_scc1 c_noflag")
    A("s_lshr_b32 s11, s2, 6")
    A("s_lshl_b32 s11, 1, s11")
    A("s_getreg_b32 s12, hwreg(HW_REG_XCC_ID, 0, 4)")
    A("s_lshl_b32 s12, 0x100, s12")
    A("s_or_b32 s11, s11, s12")
    A("v_mov_b32 v16, s11")
    A("s_and_b32 s11, s2, 63")
    A("s_lshl_b32 s11, s11, 2")
    A("v_mov_b32 v17, s11")
    A("s_mov_b64 exec, 1")
    A("buffer_atomic_or v16, v17, s[64:67], 0 offen sc1")
    A("s_mov_b64 exec, -1")
    A("c_noflag:")
    for w in RD_ORDER: A(rd(0, 0, 0, w))
    for s in range(N1):
        for ks in range(4):
            buf = ks & 1
            last = (s == N1-1 and ks == 3)
            if ks == 3:
                A("s_waitcnt lgkmcnt(0)")
                A("s_barrier")
            ns, nks = (s, ks+1) if ks < 3 else (s+1, 0)
            for i in range(4):
                if ks < 3 and i < 3: A("s_waitcnt lgkmcnt(2)")
                A(mf(buf, *MF_ORDER[i], s == 0 and ks == 0))
                if not last: A(rd(ns, nks, buf ^ 1, RD_ORDER[i]))
            if (s in (3, 7, 11) if "fine1" not in OPT else s >= 3) and ks == 3: ST()
            if s == 12 and ks == 0:
                A("buffer_load_dword v20, v21, s[64:67], 0 offen sc1")
    ST()
    if "fine1" in OPT: ST.n = 40
    gen.SAFE_PK[0] = bool(opt("pk", 0) & 1)
    def UR(t): return ACC + (t >> 3)*16 + 2*(t & 7)
    def UI(t): return ACC + 32 + (t >> 3)*16 + 2*(t & 7)
    E = [(24, 26), (28, 30 - 30 + 44)]
    cr, ci = UR(0), UI(0)
    for t in range(1, 16):
        nr, ni = E[t & 1]
        A(pk("fma", nr, cr, LAM, UR(t), bsel=0))
        A(pk("fma", ni, ci, LAM, UI(t), bsel=0))
        A(pk("fma", nr, ci, LAM, nr, bsel=1, neg_b=True))
        A(pk("fma", ni, cr, LAM, ni, bsel=1))
        cr, ci = nr, ni
    A("v_mov_b32 v32, v28\nv_mov_b32 v33, v44\nv_mov_b32 v34, v29\nv_mov_b32 v35, v45")
    cmul(A, 36, MU, 32, add=34)
    A("v_mov_b32 v38, v36\nv_mov_b32 v39, v37\nv_mov_b32 v40, 0\nv_mov_b32 v41, 0")
    A("v_permlane32_swap_b32 v40, v38")
    A("v_permlane32_swap_b32 v41, v39")
    cmul(A, 42, MU2, 40, add=36)
    A("v_or_b32 v42, 1, v42")
    A("s_mov_b32 s12, 0")
    A("s_mov_b32 s13, -1")
    A("s_mov_b64 exec, s[12:13]")
    A("buffer_store_dwordx2 v[42:43], v7, s[56:59], 0 offen sc1")
    A("s_mov_b64 exec, -1")
    def scaling():
        for t in range(16):
            n = UR2 + 2*t
            A(pk("mul", n, UR(t), C2, bsel=0))
            A(pk("fma", n, UI(t), C2, n, bsel=1, neg_b=True))
            A(pk("mul", UI(t), UI(t), C2, bsel=0))
            A(pk("fma", UI(t), UR(t), C2, UI(t), bsel=1))
        cmul(A, 44, C2, 40)
        cmul(A, 46, C2, 32)
    if "lowp" in OPT: A("s_setprio 0")
    ST()
    A("s_lshl_b32 s9, s3, 13")
    for i in range(4):
        A(f"s_add_u32 m0, s9, {i*1024}")
        A(f"s_mov_b32 s8, {i*16384}")
        A("buffer_load_dwordx4 v52, s[76:79], s8 offen lds")
    for q in range(2):
        A(f"global_load_ushort v{9+q}, v54, {sp('Dskip')} offset:{q*64}")
    if SNT:
        for i in range(4): A(f"v_mov_b32 v{24+i}, -1")
        for i in range(NPQ): A(f"buffer_store_dwordx4 v[24:27], v59, s[92:95], s{74 if i < 4 else 75} offen offset:{(i & 3)*1024} sc1")
    if "pollfirst" not in OPT: scaling()
    for k in range(16):
        A(f"v_subrev_u32 v{128+k}, {(1+2*k)*8192:#x}, v50")
    ST()
    A(f"s_waitcnt vmcnt({7 + NPQ if SNT else 7})")
    spin_all(A, "c_init", 52, "buffer_load_dword v20, v21, s[64:67], 0 offen sc1", "15", pre="v_and_b32 v52, 15, v20")
    local_check(A, 20, 52, 12, 11)
    A("s_cselect_b32 s14, 0, 1")
    if "nolocal" in OPT: A("s_mov_b32 s14, 0")
    for k in range(16):
        A(f"buffer_load_dwordx2 {vr(EL+2*k,2)}, v{128+k}, s[56:59], 0 offen sc1")
    if "pollfirst" in OPT: scaling()
    XP = list(range(73, 89))
    XDP = [89, 90, 91, 92, 93, 94, 95, 54, 55, 56, 57, 58, 59, 61, 5, 12]
    A(f"s_waitcnt vmcnt({16 + NPQ if SNT else 16})")
    XT = [160 + i for i in range(16)] + [73 + i for i in range(16)]
    for nt in range(2):
        for r in range(16): A(f"ds_read_u16 v{XT[nt*16+r]}, v53 offset:{r*128+nt*64}")
    A("s_waitcnt lgkmcnt(0)")
    for m in range(8): A(f"v_lshl_or_b32 v{XP[8+m]}, v{XT[16+2*m+1]}, 16, v{XT[16+2*m]}" if False else f"v_lshl_or_b32 v{64+m}, v{XT[16+2*m+1]}, 16, v{XT[16+2*m]}")
    for m in range(8): A(f"v_lshl_or_b32 v{XP[m]}, v{XT[2*m+1]}, 16, v{XT[2*m]}")
    for m in range(8): A(f"v_mov_b32 v{XP[8+m]}, v{64+m}")
    BD2 = 32
    A("s_lshl_b32 s11, s3, 13")
    A("v_lshl_add_u32 v16, v6, 11, s11")
    A("v_lshl_add_u32 v16, v4, 6, v16")
    A("v_bfe_u32 v17, v1, 1, 2")
    for q in range(4):
        A(f"v_xor_b32 v18, {q}, v17")
        A(f"v_lshl_add_u32 v{64+q}, v18, 4, v16")
    A("v_mov_b32 v31, 1")
    A("v_bfe_u32 v16, v1, 2, 2")
    A("v_lshl_add_u32 v16, v6, 3, v16")
    A("v_and_b32 v24, 1, v1")
    A("v_bfe_u32 v18, v1, 4, 1")
    A("v_lshl_add_u32 v24, v24, 1, v18")
    A("v_bfe_u32 v18, v16, 1, 2")
    A("v_xor_b32 v24, v24, v18")
    A("v_lshlrev_b32 v24, 4, v24")
    A("v_lshl_add_u32 v24, v16, 6, v24")
    A("v_bfe_u32 v18, v1, 1, 1")
    A("v_lshl_add_u32 v24, v18, 3, v24")
    A("v_xor_b32 v25, 32, v24")
    A("v_add_u32 v25, 256, v25")
    A("v_add_u32 v68, s11, v24")
    A("v_add_u32 v69, s11, v25")
    A("s_lshl_b32 s11, s4, 7")
    A("s_lshl_b32 s12, s6, 6")
    A("s_add_u32 s11, s11, s12")
    A("s_and_b32 s12, s5, 7")
    A("s_lshl_b32 s12, s12, 2")
    A("s_add_u32 s11, s11, s12")
    A("s_add_u32 s11, s11, s7")
    A("s_lshl_b32 s11, s11, 12")
    A("s_lshr_b32 s13, s5, 3")
    A("s_lshl_b32 s13, s13, 11")
    A("s_add_u32 s11, s11, s13")
    A("v_lshl_add_u32 v72, v1, 4, s11")
    A(f"v_mov_b32 v20, {LFLAG:#x}")
    A("s_lshl_b32 s6, s4, 2")
    A("s_add_u32 s6, s6, s3")
    A("s_lshr_b32 s7, s3, 1")
    A("s_lshl_b32 s7, s7, 13")
    A("s_and_b32 s8, s3, 1")
    A("s_lshl_b32 s8, s8, 11")
    A("s_add_u32 s7, s7, s8")
    A("v_add_u32 v70, s7, v24")
    A("v_add_u32 v71, s7, v25")
    A("s_lshl_b32 s7, s6, 17")
    A("s_add_u32 s7, s7, s13")
    A("v_lshl_add_u32 v3, v1, 4, s7")
    A("v_add_u32 v2, 0x1000, v3")
    A(f"v_lshlrev_b32 v14, 7, v4")
    A(f"v_add_u32 v14, {CRING:#x}, v14")
    for ks in range(4):
        A(f"v_xor_b32 v16, {2*ks}, v11")
        A(f"v_lshl_add_u32 v{BD2+ks}, v16, 4, v14")
    A("s_lshr_b32 s7, s6, 1")
    A("s_lshl_b32 s7, s7, 12")
    A("s_add_u32 s7, s7, s13")
    A("v_bfe_u32 v16, v1, 1, 3")
    if ORD:
        A("v_subrev_u32 v14, 1, v16")
        A("v_cmp_le_u32 vcc, s15, v14")
        A("v_cndmask_b32 v14, v14, v16, vcc")
        A("v_mov_b32 v19, s15")
        A("v_cmp_eq_u32 vcc, 0, v16")
        A("v_cndmask_b32 v16, v14, v19, vcc")
    else:
        A("v_add_u32 v16, s15, v16")
        A("v_and_b32 v16, 7, v16")
    A("v_and_b32 v14, 1, v1")
    A("v_lshl_add_u32 v16, v16, 1, v14")
    A("v_lshl_add_u32 v22, v16, 7, s7")
    srd(A, 64, "ws", 8192, WS_G)
    srd(A, 76, "out", 8 << 20)
    for i in range(8):
        A(f"s_mov_b32 s{80+i}, {i*4096}")
    A("s_lshl_b32 s7, s6, 5")
    A("v_lshl_add_u32 v7, v6, 4, s7")
    A("s_lshl_b32 s8, s5, 6")
    A("v_add_u32 v8, s8, v4")
    A("v_lshlrev_b32 v26, 12, v7")
    A("v_lshl_add_u32 v26, v8, 2, v26")
    A("v_add_u32 v27, 0x8000, v26")
    A("v_lshlrev_b32 v7, 2, v7")
    A("v_mul_u32_u24 v21, 272, v4")
    A("v_lshl_add_u32 v21, v6, 5, v21")
    A("s_lshl_b32 s8, s3, 6")
    A("v_add_u32 v21, s8, v21")
    A(f"s_add_u32 s8, s73, {PF_OFF:#x}")
    A("v_mov_b32 v29, s8")
    A("v_lshlrev_b32 v28, 4, v1")
    A("v_mov_b32 v23, 1")
    A(f"s_mov_b32 s88, {SPIN}")
    A("c_poll:")
    A("s_waitcnt vmcnt(0)")
    A("v_mov_b32 v52, 0")
    for k in range(16):
        A(f"v_and_b32 v{144+k}, 1, v{EL+2*k}")
    for k in range(0, 16, 2):
        A(f"v_add3_u32 v52, v52, v{144+k}, v{145+k}")
    A("v_cmp_ne_u32 vcc, v52, v51")
    A("s_cmp_eq_u64 vcc, 0")
    A("s_cbranch_scc1 c_polled")
    A("s_sub_u32 s88, s88, 1")
    A("s_cbranch_scc1 c_polled")
    A(f"s_sleep {opt('psleep', SLEEP)}")
    for k in range(16):
        A(f"v_cmp_eq_u32 vcc, 0, v{144+k}")
        A("s_mov_b64 exec, vcc")
        A(f"buffer_load_dwordx2 {vr(EL+2*k,2)}, v{128+k}, s[56:59], 0 offen sc1")
        A("s_mov_b64 exec, -1")
    A("s_branch c_poll")
    A("c_polled:")
    if "lowp" in OPT: A(f"s_setprio {opt('prio', 2)}")
    ST()
    g = EL + 30
    G = [52, 54]
    for k in range(14, -1, -1):
        n = G[k & 1]
        A(pk("fma", n, g, MU8, EL+2*k, bsel=0))
        A(pk("fma", n, g, MU8, n, bsel=1, asel="swap", neg_lo=[1,0,0]))
        g = n
    A("v_mov_b32 v54, v52\nv_mov_b32 v55, v53\nv_mov_b32 v56, v52\nv_mov_b32 v57, v53")
    A("v_permlane32_swap_b32 v54, v56")
    A("v_permlane32_swap_b32 v55, v57")
    cmul(A, 58, MU4, 56, add=54)
    cmul(A, 52, 48, 58, add=44)
    cmul(A, 54, MU, 52, add=46)
    A("v_mov_b32 v56, v52\nv_mov_b32 v57, v54\nv_mov_b32 v58, v53\nv_mov_b32 v59, v55")
    cr, ci = 56, 58
    def packhalf(hf):
        for plane in range(2):
            for e in range(2):
                d = 128 + ((plane*2 + e)*2 + hf)*4
                for m in range(4):
                    t = hf*8 + 2*m
                    if plane == 0: A(f"v_cvt_pk_bf16_f32 v{d+m}, v{UR2+2*t+e}, v{UR2+2*(t+1)+e}")
                    else: A(f"v_cvt_pk_bf16_f32 v{d+m}, -v{UI(t)+e}, -v{UI(t+1)+e}")
                A(f"ds_write_b128 v{64+2*e+hf}, {vr(d,4)} offset:{plane*4096}")
    for t in range(16):
        nr, ni = UR2 + 2*t, UI(t)
        A(pk("fma", nr, cr, LAM, nr, bsel=0))
        A(pk("fma", ni, ci, LAM, ni, bsel=0))
        A(pk("fma", nr, ci, LAM, nr, bsel=1, neg_b=True))
        A(pk("fma", ni, cr, LAM, ni, bsel=1))
        cr, ci = nr, ni
        if t == 7: packhalf(0)
    packhalf(1)
    gen.SAFE_PK[0] = False
    EARLY = opt("early", 0)
    HFL = "buffer_load_dword v19, v22, s[68:71], 0 offen sc1"
    if EARLY: A(HFL)
    ST()
    A("s_waitcnt lgkmcnt(0)")
    lds_inc(A, 20, 31, 12)
    AF = 160
    idx = 0
    for tblk in range(2):
        for plane in range(2):
            for ksl in range(2):
                d = AF + idx*4
                o = plane*4096 + tblk*2048 + ksl*1024
                A(f"ds_read_b64_tr_b16 {vr(d,2)}, v68 offset:{o}")
                A(f"ds_read_b64_tr_b16 {vr(d+2,2)}, v69 offset:{o}")
                idx += 1
    V = VQ(A)
    idx = 0
    for tblk in range(2):
        for plane in range(2):
            A(f"s_mov_b32 s12, {tblk*131072 + plane*8192:#x}")
            for ksl in range(2):
                d = AF + idx*4
                A(f"s_waitcnt lgkmcnt({min(15, 14 - 2*idx)})")
                V.issue(f"buffer_store_dwordx4 {vr(d,4)}, v72, s[60:63], s12 offen offset:{ksl*1024} sc1", "hst")
                idx += 1
    ACC2 = 96
    FB2 = 224
    GR = 36
    ST2 = Stamper(A, 1, 62)
    A(f"s_mov_b32 s89, {SPIN*4}")
    A("c_lw:")
    A("ds_read_b128 v[52:55], v20 offset:4")
    A("s_waitcnt lgkmcnt(0)")
    A("v_min_u32 v54, v54, v55")
    A("v_min_u32 v53, 1, v53")
    A("v_readfirstlane_b32 s8, v54")
    A("v_readfirstlane_b32 s9, v53")
    A("s_add_u32 s8, s8, s9")
    A("s_cmp_ge_u32 s8, 5")
    A("s_cbranch_scc1 c_lwok")
    A("s_sub_u32 s89, s89, 1")
    A("s_cbranch_scc0 c_lw")
    A("c_lwok:")
    L = LQ(A)
    for st in range(2):
        for ks in range(4):
            d = AF + (st*4 + ks)*4
            o = (ks >> 1)*16384 + st*4096 + (ks & 1)*1024
            L.issue(f"ds_read_b64_tr_b16 {vr(d,2)}, v70 offset:{o}")
            L.issue(f"ds_read_b64_tr_b16 {vr(d+2,2)}, v71 offset:{o}", ("A", st, ks))
    A("s_mov_b32 s13, 0")
    if EARLY:
        A("s_waitcnt vmcnt(8)")
        A("v_cmp_eq_u32 s[90:91], 1, v19")
        A("s_and_b32 s88, s90, 0xc")
        A("s_cmp_eq_u32 s88, 0xc")
        A("s_cbranch_scc0 c_noearly")
        A("s_mov_b32 s13, 1")
        for z in (2, 3):
            tile_of(A, z >> 1, 11)
            A("s_lshl_b32 s11, s11, 14")
            if z & 1: A("s_add_u32 s11, s11, 8192")
            for k2 in range(4):
                A(f"buffer_load_dwordx4 {vr(AF + (z*4 + k2)*4,4)}, v{3 if k2 < 2 else 2}, s[60:63], s11 offen offset:{(k2 & 1)*1024} sc1")
        A("c_noearly:")
    for q in range(4):
        V.issue(f"buffer_load_dwordx4 {vr(GR+q*4,4)}, v7, s[64:67], 0 offen offset:{q*16} sc1", "g")
    ST()
    slowp = []
    def need(i):
        m = ((1 << (2*i + 2)) - 1) & ~3
        name = f"c_n{len(slowp)}"
        A(f"s_and_b32 s88, s90, {m:#x}")
        A(f"s_cmp_eq_u32 s88, {m:#x}")
        A(f"s_cbranch_scc0 {name}_s")
        A(f"{name}:")
        slowp.append((name, m))
    alast = [None]
    def aload(st, ks):
        if alast[0] != st:
            alast[0] = st
            tile_of(A, st >> 1, 11)
            A("s_lshl_b32 s11, s11, 14")
            if st & 1: A("s_add_u32 s11, s11, 8192")
        r = AF + ((st % PD)*4 + ks)*4
        V.issue(f"buffer_load_dwordx4 {vr(r,4)}, v{3 if ks < 2 else 2}, s[60:63], s11 offen offset:{(ks & 1)*1024} sc1", ("A", st, ks))
    def rd2(st, ks, nt, slot):
        return f"ds_read_b128 {vr(FB2+slot*4,4)}, v{BD2+ks} offset:{(st % NS2)*16384 + nt*4096}"
    def mf2(st, ks, nt, slot):
        a = AF + ((st % PD)*4 + ks)*4
        c = vr(ACC2+nt*16, 16)
        return f"v_mfma_f32_32x32x16_bf16 {c}, {vr(a,4)}, {vr(FB2+slot*4,4)}, {'0' if (st == 0 and ks == 0) else c}"
    def await_(st, ks):
        if st < 2: L.wait(("A", st, ks))
        else: V.wait(("A", st, ks))
    ST2()
    for nt in range(4): L.issue(rd2(0, 0, nt, nt), (0, 0, nt))
    HFK = opt("hfk", 3)
    N1K = opt("n1k", 2)
    XPS = opt("xps", 1)
    xfill = []
    def xpart(A=A):
        A("v_lshlrev_b32 v9, 16, v9")
        A("v_lshlrev_b32 v10, 16, v10")
        A("s_mov_b32 s12, 0xffff0000")
        TT = [13, 15, 16, 17, 18, 24, 25, 8]
        for k0 in range(0, 16, 4):
            ch = []
            for k in range(k0, k0 + 4):
                t0, t1 = TT[2*(k & 3)], TT[2*(k & 3) + 1]
                dk = 9 + (k >> 3)
                ch.append([f"v_lshlrev_b32 v{t0}, 16, v{XP[k]}", f"v_and_b32 v{t1}, s12, v{XP[k]}", f"v_mul_f32 v{t0}, v{t0}, v{dk}", f"v_mul_f32 v{t1}, v{t1}, v{dk}",
                           f"v_cvt_pk_bf16_f32 v{XDP[k]}, v{t0}, v{t1}"])
            zip_chains(A, ch)
    if XPS == 2: xpart(xfill.append)
    DIST = opt("dist", 3)
    assert DIST in (2, 3, 4)
    polls = [0]
    def hfpoll():
        polls[0] += 1
        V.issue(HFL, ("hf", polls[0]))
    def hfseen():
        V.wait(("hf", polls[0]))
        A("v_cmp_eq_u32 s[90:91], 1, v19")
    FS = opt("fs", 4)
    assert FS == 1 or (FS in (3, 4) and DIST >= 3)
    for st in range(N2 - FS):
        for ks in range(4):
            buf = ks & 1
            if ks == 3 and st >= FBAR: A("s_barrier")
            if ks == 3 and st == 1 and FBAR > 1:
                lds_spin(A, "c_cf2", 20, 20, 14, 4); L.done = L.n
            ns, nks = (st, ks+1) if ks < 3 else (st+1, 0)
            await_(st, ks)
            for nt in range(4):
                L.wait((st, ks, nt))
                A(mf2(st, ks, nt, buf*4 + nt))
                L.issue(rd2(ns, nks, nt, (buf ^ 1)*4 + nt), (ns, nks, nt))
                for z in range(opt("xfm", 3)):
                    if xfill: A(xfill.pop(0))
            if st == 0 and ks == HFK:
                if EARLY:
                    cnt = V.n - V.tags["hst"]
                    A("s_cmp_eq_u32 s13, 1")
                    A("s_cbranch_scc1 c_hw_e")
                    A(f"s_waitcnt vmcnt({cnt})")
                    A("s_branch c_hw_d")
                    A("c_hw_e:")
                    A(f"s_waitcnt vmcnt({cnt + 8})")
                    A("c_hw_d:")
                    V.done = V.tags["hst"]
                else: V.wait("hst")
                A("s_cmp_eq_u32 s14, 1")
                A("s_cbranch_scc1 c_hfs_l")
                A("buffer_store_dword v23, v60, s[68:71], 0 offen sc1")
                A("s_branch c_hfs_e")
                A("c_hfs_l:")
                A("buffer_store_dword v23, v60, s[68:71], 0 offen")
                A("c_hfs_e:")
                V.n += 1
                if SNT: V.issue("buffer_store_dword v23, v30, s[68:71], 0 offen sc1")
                hfpoll()
                if "fine3" in OPT: ST2()
            if st == 1 and ks == opt("rp", -1): hfpoll()
            if st == 1 and ks == N1K:
                if "fine3" in OPT: ST2()
                if EARLY:
                    A("s_cmp_eq_u32 s13, 1")
                    A("s_cbranch_scc1 c_skipy")
                hfseen(); need(1)
                if "fine3" in OPT: ST2()
                for z in (2, 3):
                    for k2 in range(4): aload(z, k2)
                if EARLY:
                    A("c_skipy:")
                    V.done = min(V.done, V.tags[("hf", polls[0])] - 1)
                hfpoll()
                if XPS == 0: xpart()
            if st == 1 and ks == 3 and XPS == 1: xpart()
            if st >= 2:
                if st == 2 and ks == 0:
                    if "fine3" in OPT: ST2()
                    hfseen(); need(2)
                    if "fine3" in OPT: ST2()
                    for z in range(4, 2 + DIST):
                        for k2 in range(4): aload(z, k2)
                    hfpoll()
                z = st + DIST
                if z < N2:
                    if ks == 0 and z % 2 == 0 and z // 2 >= 3:
                        if z // 2 == 3: hfseen()
                        if not (int(OPT.get("abl", 0)) & 2): need(z // 2)
                    aload(z, ks)
            if SNT and st == opt("pfl", 5) and ks == 0: V.issue("buffer_load_dword v14, v29, s[68:71], 0 offen sc1", "pf")
            if SNT and st == opt("pfc", 8) and ks == 0:
                V.wait("pf")
                A("v_cmp_ne_u32 vcc, 1, v14")
                A("s_cmp_eq_u64 vcc, 0")
                A("s_cbranch_scc0 c_pfs")
                A("c_pfr:")
            if "fine3" in OPT:
                if st in (1, 2, 3, 4) and ks == 3: ST2()
                if st == 2 and ks == 0: ST2()
            elif "fine4" in OPT:
                if st == N2 - FS - 1 and ks == 3: ST2()
            elif (st % 2 == 1 if 'fine2' not in OPT else True) and ks == 3: ST2()
    f0 = N2 - FS
    S_ = lambda z: [(z, ks, nt) for ks in range(4) for nt in (0, 1)]
    K_ = lambda z: [(z, ks, nt) for ks in range(4) for nt in (2, 3)]
    if FS == 1: order = S_(15) + K_(15); nsend = 8
    elif FS == 3: order = S_(13) + ["b13"] + S_(14) + K_(13) + ["b14"] + S_(15) + K_(14) + K_(15); nsend = 32
    else:
        BP = opt("bp", 4)
        order = []
        if opt("fso", 1) == 0:
            for z in (12, 13, 14): order += S_(z)[:BP] + [f"b{z}"] + S_(z)[BP:]
            order += S_(15) + K_(12) + K_(13) + K_(14) + K_(15); nsend = 32
        else:
            order = S_(12)[:BP] + ["b12"] + S_(12)[BP:] + S_(13) + K_(12)[:BP] + ["b13"] + K_(12)[BP:] + S_(14)[:BP] + ["b14"] + S_(14)[BP:] + S_(15) + K_(13) + K_(14) + K_(15)
            nsend = 40
        for z in range(N2):
            if ("A", z, 0) not in V.tags and z >= 2:
                for k2 in range(4): aload(z, k2)
    mfs = [x for x in order if not isinstance(x, str)]
    slot = {(f0, 0, nt): nt for nt in range(4)}
    pend = [x for x in mfs if x not in slot]
    free = [4, 5, 6]
    pub = [f0]
    def fill():
        while pend and free and pend[0][0] <= pub[0]:
            x = pend.pop(0); sl = free.pop(0); slot[x] = sl
            L.issue(rd2(x[0], x[1], x[2], sl), x)
    fill()
    pst = [f"buffer_store_dwordx4 {vr(ACC2+4*i,4)}, v28, s[92:95], s{74 if i < 4 else 75} offen offset:{(i & 3)*1024} sc1" for i in range(NPQ)]
    pcv = [f"v_cvt_pk_bf16_f32 v{ACC2+k}, v{ACC2+2*k}, v{ACC2+2*k+1}" for k in range(16)] if PB else []
    i = 0; prev = None
    for x in order:
        if isinstance(x, str):
            A("s_barrier"); pub[0] += 1; fill(); continue
        V.wait(("A", x[0], x[1]))
        if x not in slot: fill()
        L.wait(x)
        A(mf2(x[0], x[1], x[2], slot[x]))
        free.append(slot[prev] if prev is not None else 7)
        prev = x
        fill()
        i += 1
        SP = opt("sp", 0)
        if i >= nsend + 3 and pcv:
            for z in range(4): A(pcv.pop(0))
            V.issue(pst.pop(0), "ps")
        elif i >= nsend + 3:
            if SP == 0:
                for z in range(2):
                    if pst: V.issue(pst.pop(0), "ps")
            elif (i - nsend - 3) % SP == 0 and pst: V.issue(pst.pop(0), "ps")
        if "fine4" in OPT and i % 8 == 0: ST2()
    while pst: V.issue(pst.pop(0), "ps")
    ST2()
    YR, OM, GF, T0, RV = 160, 176, 192, 208, ACC2
    KEEP = ACC2 + 32
    PFL = "buffer_load_dword v19, v29, s[68:71], 0 offen sc1"
    A("s_mov_b32 s12, 0xffff0000")
    for nt in range(2):
        for hf in range(2): A(f"ds_read_b128 {vr(YR+nt*8+hf*4,4)}, v21 offset:{nt*32*272 + hf*16}")
    for r in range(16):
        A(f"v_lshlrev_b32 v{GF+r}, 16, v{GR+r}")
        A(f"v_and_b32 v{OM+r}, s12, v{GR+r}")
    A("s_waitcnt lgkmcnt(0)")
    if SNT:
        RCG = opt("rcg", 2)
        def recv_full():
            for i in range(NPQ):
                A(f"buffer_load_dwordx4 {vr(RV+4*i,4)}, v28, s[92:95], s{90 if i < 4 else 91} offen offset:{(i & 3)*1024} sc1")
        first = [True]
        def recv():
            if "lp" in OPT and first[0]:
                first[0] = False
                A(f"buffer_load_dwordx4 {vr(RV+4*NPQ-4,4)}, v28, s[92:95], s{90 if PB else 91} offen offset:3072 sc1")
            else: recv_full()
        A("s_lshl_b32 s90, s72, 6")
        A("s_add_u32 s91, s90, 4096")
        gi = 0
        for nt in range(2):
            for m0 in range(0, 8, 4):
                if gi == RCG: recv()
                gi += 1
                ch = []
                for m in range(m0, m0 + 4):
                    b_ = T0 + (m & 3)*6
                    yy, xf, tm = b_, b_ + 2, b_ + 4
                    xp = XP[nt*8+m]; xd = XDP[nt*8+m]; ka = KEEP + nt*16 + 2*m
                    ch.append([f"v_lshlrev_b32 v{yy}, 16, v{YR+nt*8+m}", f"v_and_b32 v{yy+1}, s12, v{YR+nt*8+m}",
                               f"v_lshlrev_b32 v{xf}, 16, v{xp}", f"v_and_b32 v{xf+1}, s12, v{xp}",
                               f"v_mul_f32 v{yy}, v{xf}, v{yy}", f"v_mul_f32 v{yy+1}, v{xf+1}, v{yy+1}",
                               f"v_lshlrev_b32 v{xf}, 16, v{xd}", f"v_and_b32 v{xf+1}, s12, v{xd}",
                               f"v_cvt_pk_bf16_f32 v{tm}, v{yy}, v{yy+1}",
                               f"v_add_f32 v{ka}, v{ka}, v{xf}", f"v_add_f32 v{ka+1}, v{ka+1}, v{xf+1}",
                               f"v_lshlrev_b32 v{yy}, 16, v{tm}", f"v_and_b32 v{yy+1}, s12, v{tm}",
                               f"v_mul_f32 v{yy}, v{yy}, v{OM+2*m}", f"v_mul_f32 v{yy+1}, v{yy+1}, v{OM+2*m+1}",
                               f"v_cvt_pk_bf16_f32 v{tm}, v{yy}, v{yy+1}", f"v_lshlrev_b32 v{yy}, 16, v{tm}", f"v_and_b32 v{yy+1}, s12, v{tm}",
                               f"v_fma_f32 v{ka}, v{ka}, v{GF+2*m}, v{yy}", f"v_fma_f32 v{ka+1}, v{ka+1}, v{GF+2*m+1}, v{yy+1}"])
                zip_chains(A, ch)
        if gi == RCG: recv()
        ST2()
        if "lp" in OPT:
            LP = f"buffer_load_dwordx4 {vr(RV+4*NPQ-4,4)}, v28, s[92:95], s{90 if PB else 91} offen offset:3072 sc1"
            A(f"s_mov_b32 s89, {SPIN}")
            A("c_lp:")
            A("s_waitcnt vmcnt(0)")
            A(f"v_cmp_eq_u32 vcc, -1, v{RV+4*NPQ-1}")
            A("s_cmp_eq_u64 vcc, 0")
            A("s_cbranch_scc1 c_lpok")
            A("s_sub_u32 s89, s89, 1")
            A("s_cbranch_scc1 c_lpok")
            A(LP)
            A("s_branch c_lp")
            A("c_lpok:")
            recv_full()
        A(f"s_mov_b32 s89, {SPIN}")
        A("c_rc:")
        A("s_waitcnt vmcnt(0)")
        A(f"v_max3_u32 v19, v{RV}, v{RV+1}, v{RV+2}")
        for i in range(3, 4*NPQ-1, 2): A(f"v_max3_u32 v19, v19, v{RV+i}, v{RV+i+1}")
        A(f"v_max_u32 v19, v19, v{RV+4*NPQ-1}")
        A("v_cmp_eq_u32 vcc, -1, v19")
        A("s_cmp_eq_u64 vcc, 0")
        A("s_cbranch_scc1 c_rcok")
        A("s_sub_u32 s89, s89, 1")
        A("s_cbranch_scc1 c_rcok")
        recv()
        A("s_branch c_rc")
        A("c_rcok:")
        ST2()
        for nt in range(2):
            for r in range(16):
                a = KEEP + nt*16 + r
                if PB:
                    w = RV + nt*8 + (r >> 1); t = T0 + (r & 3)
                    A(f"v_and_b32 v{t}, s12, v{w}" if r & 1 else f"v_lshlrev_b32 v{t}, 16, v{w}")
                    A(f"v_fma_f32 v{a}, v{t}, v{GF+r}, v{a}")
                else: A(f"v_fma_f32 v{a}, v{RV+nt*16+r}, v{GF+r}, v{a}")
                A(f"buffer_store_dword v{a}, v{26 if r < 8 else 27}, s[76:79], s{80+(r&7)} offen offset:{nt*128} nt")
        ST2()
    else:
        assert not PB
        PFG = opt("pfg", 2)
        gi = 0
        def pfstore():
            A("s_waitcnt vmcnt(0)")
            A("buffer_store_dword v23, v30, s[68:71], 0 offen sc1")
            A(PFL)
        RCG = opt("rcg", 3)
        def recv():
            A("s_lshl_b32 s12, s72, 6")
            A("s_add_u32 s13, s12, 4096")
            for i in range(8):
                A(f"buffer_load_dwordx4 {vr(RV+4*i,4)}, v28, s[92:95], s{12 if i < 4 else 13} offen offset:{(i & 3)*1024} sc1")
            A("s_mov_b32 s12, 0xffff0000")
        A("s_mov_b32 s90, 0")
        for nt in range(2):
            for m0 in range(0, 8, 4):
                if gi == PFG: pfstore()
                if gi == RCG and RCG > PFG:
                    A("s_waitcnt vmcnt(0)")
                    A("v_cmp_ne_u32 vcc, 1, v19")
                    A("s_cmp_eq_u64 vcc, 0")
                    A("s_cbranch_scc0 c_norc")
                    recv()
                    A("s_mov_b32 s90, 1")
                    A("c_norc:")
                gi += 1
                ch = []
                for m in range(m0, m0 + 4):
                    b_ = T0 + (m & 3)*6
                    yy, xf, tm = b_, b_ + 2, b_ + 4
                    xp = XP[nt*8+m]; xd = XDP[nt*8+m]; ka = KEEP + nt*16 + 2*m
                    ch.append([f"v_lshlrev_b32 v{yy}, 16, v{YR+nt*8+m}", f"v_and_b32 v{yy+1}, s12, v{YR+nt*8+m}",
                               f"v_lshlrev_b32 v{xf}, 16, v{xp}", f"v_and_b32 v{xf+1}, s12, v{xp}",
                               f"v_mul_f32 v{yy}, v{xf}, v{yy}", f"v_mul_f32 v{yy+1}, v{xf+1}, v{yy+1}",
                               f"v_lshlrev_b32 v{xf}, 16, v{xd}", f"v_and_b32 v{xf+1}, s12, v{xd}",
                               f"v_cvt_pk_bf16_f32 v{tm}, v{yy}, v{yy+1}",
                               f"v_add_f32 v{ka}, v{ka}, v{xf}", f"v_add_f32 v{ka+1}, v{ka+1}, v{xf+1}",
                               f"v_lshlrev_b32 v{yy}, 16, v{tm}", f"v_and_b32 v{yy+1}, s12, v{tm}",
                               f"v_mul_f32 v{yy}, v{yy}, v{OM+2*m}", f"v_mul_f32 v{yy+1}, v{yy+1}, v{OM+2*m+1}",
                               f"v_cvt_pk_bf16_f32 v{tm}, v{yy}, v{yy+1}", f"v_lshlrev_b32 v{yy}, 16, v{tm}", f"v_and_b32 v{yy+1}, s12, v{tm}",
                               f"v_fma_f32 v{ka}, v{ka}, v{GF+2*m}, v{yy}", f"v_fma_f32 v{ka+1}, v{ka+1}, v{GF+2*m+1}, v{yy+1}"])
                zip_chains(A, ch)
        if gi == PFG: pfstore()
        ST2()
        A("s_cmp_eq_u32 s90, 1")
        A("s_cbranch_scc1 c_havercv")
        A(PFL)
        A("s_waitcnt vmcnt(0)")
        spin_all(A, "c_pf", 19, PFL)
        recv()
        A("c_havercv:")
        ST2()
        for nt in range(2):
            for r in range(16):
                i = (nt*16 + r) // 4
                if r % 4 == 0: A(f"s_waitcnt vmcnt({7 - i + nt*16 + r})")
                a = KEEP + nt*16 + r
                A(f"v_fma_f32 v{a}, v{RV+nt*16+r}, v{GF+r}, v{a}")
                A(f"buffer_store_dword v{a}, v{26 if r < 8 else 27}, s[76:79], s{80+(r&7)} offen offset:{nt*128} nt")
        ST2()
    if "leak" in OPT:
        i = int(OPT["leak"])
        A("s_cmp_lg_u32 s2, 8")
        A("s_cbranch_scc1 c_noleak")
        A("s_cmp_lg_u32 s3, 0")
        A("s_cbranch_scc1 c_noleak")
        A("v_readlane_b32 s8, v63, 0")
        A(f"v_readlane_b32 s9, v{63 if i < 100 else 62}, {i % 100}")
        A("s_sub_u32 s9, s9, s8")
        A("s_memrealtime s[10:11]")
        A("s_waitcnt lgkmcnt(0)")
        A("s_add_u32 s9, s9, s10")
        A("c_leak:")
        A("s_memrealtime s[10:11]")
        A("s_waitcnt lgkmcnt(0)")
        A("s_sub_u32 s12, s9, s10")
        A("s_cmp_gt_i32 s12, 0")
        A("s_cbranch_scc1 c_leak")
        A("c_noleak:")
    if "leak2" in OPT:
        X, i = str(OPT["leak2"]).split(":"); i = int(i)
        if X != "all":
            A(f"s_cmp_lg_u32 s2, {int(X)}")
            A("s_cbranch_scc1 c_noleak2")
        A("s_cmp_lg_u32 s3, 0")
        A("s_cbranch_scc1 c_noleak2")
        A(f"v_readlane_b32 s9, v{63 if i < 100 else 62}, {i % 100}")
        A("s_add_u32 s9, s9, 4000")
        A("c_leak2:")
        A("s_memrealtime s[10:11]")
        A("s_waitcnt lgkmcnt(0)")
        A("s_sub_u32 s12, s9, s10")
        A("s_cmp_gt_i32 s12, 0")
        A("s_cbranch_scc1 c_leak2")
        A("c_noleak2:")
    ST.flush()
    ST2.flush()
    A("s_endpgm")
    if SNT:
        A("c_pfs:")
        A(f"s_mov_b32 s89, {SPIN}")
        A("c_pfs_l:")
        A("s_waitcnt vmcnt(0)")
        A("buffer_load_dword v14, v29, s[68:71], 0 offen sc1")
        A("s_waitcnt vmcnt(0)")
        A("v_cmp_ne_u32 vcc, 1, v14")
        A("s_cmp_eq_u64 vcc, 0")
        A("s_cbranch_scc1 c_pfr")
        A("s_sub_u32 s89, s89, 1")
        A("s_cbranch_scc1 c_pfr")
        A("s_branch c_pfs_l")
    for name, m in slowp:
        A(f"{name}_s:")
        A(f"s_mov_b32 s89, {SPIN}")
        A(f"{name}_l:")
        A("s_waitcnt vmcnt(0)")
        A(HFL)
        A("s_waitcnt vmcnt(0)")
        A("v_cmp_eq_u32 s[90:91], 1, v19")
        A(f"s_and_b32 s88, s90, {m:#x}")
        A(f"s_cmp_eq_u32 s88, {m:#x}")
        A(f"s_cbranch_scc1 {name}")
        A("s_sub_u32 s89, s89, 1")
        A(f"s_cbranch_scc1 {name}")
        A(f"s_branch {name}_l")

def helper(A):
    V = VQ(A)
    VA, VB = 8, 12
    ST = Stamper(A, 0, 58)
    STH = Stamper(A, 1, 59)
    ST()
    if "hprio1" in OPT: A(f"s_setprio {OPT['hprio1']}")
    A("s_sub_u32 s3, s3, 4")
    A("s_lshr_b32 s6, s3, 1")
    A("s_and_b32 s7, s3, 1")
    A("v_lshrrev_b32 v3, 5, v1")
    A("v_lshlrev_b32 v3, 5, v3")
    A("v_bfe_u32 v4, v1, 3, 1")
    A("v_lshl_add_u32 v3, v4, 4, v3")
    A("v_bfe_u32 v4, v1, 4, 1")
    A("v_add_u32 v3, v3, v4")
    A("s_lshl_b32 s8, s4, 7")
    A("s_lshl_b32 s9, s6, 6")
    A("s_add_u32 s8, s8, s9")
    A("s_lshl_b32 s9, s7, 3")
    A("s_add_u32 s8, s8, s9")
    A("v_add_u32 v3, s8, v3")
    A("v_lshlrev_b32 v3, 11, v3")
    A("v_and_b32 v4, 7, v1")
    A("v_lshrrev_b32 v5, 4, v1")
    A("v_xor_b32 v4, v4, v5")
    A("v_lshlrev_b32 v4, 4, v4")
    A(f"v_add_u32 v{VA}, v3, v4")
    A("s_lshl_b32 s10, s3, 12")
    A("s_lshr_b32 s90, s55, 2")
    A("s_lshl_b32 s90, s90, 1")
    A("s_and_b32 s91, s55, 3")
    A("s_lshl_b32 s91, s91, 2")
    A("s_add_u32 s90, s90, s91")
    A("s_and_b32 s11, s90, 15")
    A("s_lshl_b32 s11, s11, 7")
    A("s_mov_b32 m0, s10")
    A(f"s_mov_b32 s58, {4<<20:#x}")
    A("s_mov_b32 s59, 0x20000")
    if "fine0" in OPT: STH()
    A("s_waitcnt lgkmcnt(0)")
    if "fine0" in OPT: STH()
    A(f"s_mov_b32 s56, s{P['x']}")
    A(f"s_mov_b32 s57, s{P['x']+1}")
    V.issue(f"buffer_load_dwordx4 v{VA}, s[56:59], s11 offen lds")
    A("v_xor_b32 v5, 64, v4")
    A(f"v_add_u32 v{VA+1}, v3, v5")
    A(f"v_add_u32 v{VA+1}, {4096-1024}, v{VA+1}")
    V.issue(f"buffer_load_dwordx4 v{VA+1}, s[56:59], s11 offen offset:1024 lds")
    A(f"v_add_u32 v{VA+2}, {2*(4096-1024)}, v{VA}")
    V.issue(f"buffer_load_dwordx4 v{VA+2}, s[56:59], s11 offen offset:2048 lds")
    A(f"v_add_u32 v{VA+3}, {2*(4096-1024)}, v{VA+1}")
    V.issue(f"buffer_load_dwordx4 v{VA+3}, s[56:59], s11 offen offset:3072 lds")
    A("s_lshl_b32 s8, s5, 6")
    A("s_lshl_b32 s9, s7, 5")
    A("s_add_u32 s8, s8, s9")
    A("v_lshrrev_b32 v6, 3, v1")
    A("v_add_u32 v7, s8, v6")
    A("v_lshlrev_b32 v7, 11, v7")
    A(f"v_add_u32 v{VB}, v7, v4")
    A("s_cmp_ge_u32 s3, 2")
    A(f"s_cselect_b32 s60, s{P['Bim']}, s{P['Bre']}")
    A(f"s_cselect_b32 s61, s{P['Bim']+1}, s{P['Bre']+1}")
    A(f"s_mov_b32 s62, {2<<20:#x}")
    A("s_mov_b32 s63, 0x20000")
    A("s_add_u32 m0, s10, 16384")
    A(f"v_add_u32 v{VB+1}, v7, v5")
    V.issue(f"buffer_load_dwordx4 v{VB}, s[60:63], s11 offen lds")
    A(f"v_add_u32 v{VB+1}, {16384-1024}, v{VB+1}")
    V.issue(f"buffer_load_dwordx4 v{VB+1}, s[60:63], s11 offen offset:1024 lds")
    A(f"v_add_u32 v{VB+2}, {2*(16384-1024)}, v{VB}")
    V.issue(f"buffer_load_dwordx4 v{VB+2}, s[60:63], s11 offen offset:2048 lds")
    A(f"v_add_u32 v{VB+3}, {2*(16384-1024)}, v{VB+1}")
    V.issue(f"buffer_load_dwordx4 v{VB+3}, s[60:63], s11 offen offset:3072 lds", ("S", 0))
    def issue(st, fill=0):
        slot = st % 3
        A(f"s_add_u32 s11, s90, {st}")
        A("s_and_b32 s11, s11, 15")
        A("s_lshl_b32 s11, s11, 7")
        A(f"s_add_u32 m0, s10, {slot*32768:#x}")
        for n in range(4):
            V.issue(f"buffer_load_dwordx4 v{VA+n}, s[56:59], s11 offen offset:{n*1024} lds")
            if fill: do_work(fill)
        A(f"s_add_u32 m0, s10, {slot*32768+16384:#x}")
        for n in range(4):
            V.issue(f"buffer_load_dwordx4 v{VB+n}, s[60:63], s11 offen offset:{n*1024} lds", ("S", st))
            if fill: do_work(fill)
    if "fine0" in OPT: STH()
    VC = 28
    A("s_and_b32 s8, s5, 7")
    A("s_lshl_b32 s8, s8, 6")
    A("s_lshl_b32 s9, s3, 4")
    A("s_add_u32 s8, s8, s9")
    A("v_add_u32 v7, s8, v6")
    A("v_lshlrev_b32 v7, 11, v7")
    A(f"v_add_u32 v{VC}, v7, v4")
    A(f"v_add_u32 v{VC+1}, v7, v5")
    A(f"v_add_u32 v{VC+1}, {16384-1024}, v{VC+1}")
    A("s_and_b32 s12, s55, 1")
    A("s_lshl_b32 s13, s54, 1")
    A("s_add_u32 s12, s12, s13")
    A("s_lshr_b32 s13, s55, 1")
    A("s_lshl_b32 s8, s2, 7")
    A(f"s_add_u32 s8, s8, {KF_OFF:#x}")
    A("v_mov_b32 v30, s8")
    A("s_lshl_b32 s88, s54, 5")
    A("s_add_u32 s88, s88, s55")
    A("s_lshl_b32 s8, s88, 7")
    A(f"s_add_u32 s8, s8, {YF_OFF:#x}")
    A("v_mov_b32 v31, s8")
    A("s_lshl_b32 s88, s88, 2")
    A("s_add_u32 s88, s88, s3")
    A("v_mov_b32 v2, 0")
    srd(A, 92, "ws", FLG_SZ, WS_FLG)
    A("s_lshl_b32 s8, s88, 12")
    A(f"s_load_dword s100, {sp('ssmk')}, s8")
    A("s_lshr_b32 s8, s88, 1")
    A("s_lshl_b32 s8, s8, 2")
    A(f"s_load_dword s101, {sp('ssmD')}, s8")
    V.issue("buffer_store_dword v2, v30, s[92:95], 0 offen sc1")
    V.issue("buffer_store_dword v2, v31, s[92:95], 0 offen sc1", "clr")
    if opt("pl", 1) >= 0: issue(1)
    if "fine0" in OPT: STH()
    KR, VR_, SK = 32, 208, 68
    XG, GW = 72, 88
    A("s_lshl_b32 s13, s13, 7")
    A("s_lshl_b32 s14, s3, 5")
    A("s_add_u32 s13, s13, s14")
    A("v_and_b32 v17, 31, v1")
    A("s_lshl_b32 s14, s12, 5")
    A("v_add_u32 v17, s14, v17")
    A("v_lshlrev_b32 v22, 4, v17")
    A("v_and_b32 v23, 31, v1")
    A("v_mul_u32_u24 v23, 544, v23")
    A("v_lshrrev_b32 v24, 5, v1")
    A("v_lshlrev_b32 v24, 5, v24")
    A("v_sub_u32 v23, v23, v24")
    A("s_lshl_b32 s8, s3, 6")
    A(f"s_sub_u32 s8, {UREG+224}, s8")
    A("v_add_u32 v23, s8, v23")
    A("v_lshrrev_b32 v24, 4, v1")
    A("s_lshl_b32 s8, s3, 4")
    A("v_add_u32 v24, s8, v24")
    A("v_and_b32 v2, 15, v1")
    A("v_lshlrev_b32 v2, 4, v2")
    A("s_lshl_b32 s8, s12, 6")
    A("v_add_u32 v27, s8, v24")
    A("v_lshl_add_u32 v27, v27, 12, v2")
    A("s_lshr_b32 s8, s55, 1")
    A("s_lshl_b32 s8, s8, 8")
    A("s_sub_u32 s8, 3840, s8")
    A("v_add_u32 v27, s8, v27")
    A("v_mul_u32_u24 v24, 272, v24")
    A("v_add_u32 v24, v24, v2")
    A(f"v_add_u32 v24, {UREG:#x}, v24")
    A("s_lshl_b32 s14, s4, 7")
    A("s_lshl_b32 s8, s5, 3")
    A("s_add_u32 s14, s14, s8")
    A("s_lshl_b32 s8, s3, 1")
    A("s_add_u32 s14, s14, s8")
    A("s_lshl_b32 s8, s14, 11")
    A("v_lshlrev_b32 v25, 4, v1")
    A("v_add_u32 v26, s8, v25")
    A("v_add_u32 v3, 0x8000, v27")
    srd(A, 64, "k", 4 << 20)
    srd(A, 68, "v", 4 << 20)
    srd(A, 72, "ws", 4 << 20, WS_KVT)
    srd(A, 76, "ws", 8192, WS_G)
    for i in range(8):
        A(f"s_mov_b32 s{80+i}, {i*4096}")
    NTP = " nt" if "ntp" in OPT else ""
    A("v_lshrrev_b32 v19, 3, v1")
    A("v_add_u32 v19, s13, v19")
    A("v_lshlrev_b32 v19, 11, v19")
    A("v_and_b32 v20, 7, v1")
    A("v_lshl_add_u32 v19, v20, 4, v19")
    A("s_lshl_b32 s8, s12, 7")
    A("v_add_u32 v19, s8, v19")
    A("v_subrev_u32 v20, 16384, v19")
    A("v_lshrrev_b32 v21, 5, v1")
    A("v_lshlrev_b32 v21, 11, v21")
    A("v_and_b32 v18, 31, v1")
    A("v_lshl_add_u32 v21, v18, 2, v21")
    A("s_lshl_b32 s8, s3, 12")
    A(f"s_add_u32 s91, s8, {KREG}")
    A("v_add_u32 v21, s91, v21")
    def kvdma():
        A("s_add_u32 m0, s91, 16384")
        V.issue(f"buffer_load_dwordx4 v20, s[64:67], 0 offen{NTP} lds")
        for i in range(4):
            A(f"s_add_u32 m0, s91, {16384 + 1024*(i+1)}")
            A(f"s_mov_b32 s99, {i*16384}")
            V.issue(f"buffer_load_dwordx4 v19, s[64:67], s99 offen{NTP} lds")
        V.issue(f"global_load_dwordx4 {vr(SK,4)}, v22, {sp('shk')}", "k")
        for i in range(4):
            A(f"s_add_u32 m0, s91, {1024*i}")
            A(f"s_mov_b32 s99, {i*16384}")
            V.issue(f"buffer_load_dwordx4 v19, s[68:71], s99 offen{NTP} lds", "v")
    if opt("pl", 1) < 0:
        kvdma(); issue(1)
    gl = []
    for r in range(2):
        for hh in range(2): gl.append((f"buffer_load_dwordx4 {vr(XG+r*8+hh*4,4)}, v26, s[56:59], 0 offen offset:{r*2048+hh*1024}", None))
    for hh in range(2): gl.append((f"global_load_dwordx4 {vr(GW+hh*4,4)}, v25, {sp('gw')} offset:{hh*1024}", "gate"))
    KF = 96; SP = 136; OUT = 144
    work = []
    def W(x):
        if callable(x): work.append(x)
        else: work.extend(x.split("\n"))
    def rndW(pair, tmp):
        W(f"v_cvt_pk_bf16_f32 v{tmp}, v{pair}, v{pair+1}")
        W(f"v_lshlrev_b32 v{pair}, 16, v{tmp}")
        W(f"v_and_b32 v{pair+1}, s12, v{tmp}")
    W("s_mov_b32 s12, 0xffff0000")
    gate_begin = len(work)
    W(lambda: V.wait("gate"))
    for i in range(8):
        W(f"v_lshlrev_b32 v{96+2*i}, 16, v{GW+i}")
        W(f"v_and_b32 v{97+2*i}, s12, v{GW+i}")
    for r in range(2):
        acc = 112 + r
        W(f"v_mov_b32 v{acc}, 0")
        for i in range(8):
            W(f"v_lshlrev_b32 v116, 16, v{XG+r*8+i}")
            W(f"v_and_b32 v117, s12, v{XG+r*8+i}")
            W(pk("mul", 116, 116, 96+2*i))
            rndW(116, 118)
            W(f"v_add_f32 v{acc}, v{acc}, v116")
            W(f"v_add_f32 v{acc}, v{acc}, v117")
    for r in range(2):
        acc = 112 + r
        for sh in (1, 2, 4, 8):
            W(f"v_add_f32_dpp v{acc}, v{acc}, v{acc} row_shr:{sh} row_mask:0xf bank_mask:0xf bound_ctrl:0")
        W(f"v_add_f32_dpp v{acc}, v{acc}, v{acc} row_bcast:15 row_mask:0xa bank_mask:0xf")
        W(f"v_add_f32_dpp v{acc}, v{acc}, v{acc} row_bcast:31 row_mask:0xc bank_mask:0xf")
    for t in ["v_readlane_b32 s8, v112, 63", "v_readlane_b32 s9, v113, 63", "v_mov_b32 v116, s8", "v_mov_b32 v117, s9",
              "v_cmp_eq_u32 vcc, 1, v1", "v_cndmask_b32 v116, v116, v117, vcc", "v_cvt_pk_bf16_f32 v116, v116, v116",
              "v_lshlrev_b32 v116, 16, v116", "v_mul_f32 v116, 0xbfb8aa3b, v116", "v_exp_f32 v116, v116", "v_add_f32 v116, 1.0, v116",
              "v_rcp_f32 v116, v116", "v_cvt_pk_bf16_f32 v117, v116, v116", "v_lshlrev_b32 v116, 16, v117", "v_sub_f32 v118, 1.0, v116",
              "v_cvt_pk_bf16_f32 v116, v116, v118", "s_lshl_b32 s14, s14, 2", "v_lshl_add_u32 v117, v1, 2, s14"]:
        W(t)
    def gstore():
        A("s_mov_b64 exec, 3")
        V.issue("buffer_store_dword v116, v117, s[76:79], 0 offen sc1", "g")
        A("s_mov_b64 exec, -1")
    W(gstore)
    gate_end = len(work)
    W("KVSTART")
    W(lambda: V.wait("k"))
    for i in range(19):
        W(f"ds_read_b32 v{KR+i}, v21 offset:{16384 + (5+i)*128}")
        if i == 9: W("s_waitcnt lgkmcnt(0)")
    W("s_waitcnt lgkmcnt(0)")
    for i in range(19):
        W(f"v_lshlrev_b32 v{KF+2*i}, 16, v{KR+i}")
        W(f"v_and_b32 v{KF+2*i+1}, s12, v{KR+i}")
    for jx in range(4):
        for cc in range(2):
            src = SK + cc*2 + (jx >> 1)
            W(f"v_and_b32 v{SP+2*jx+cc}, s12, v{src}" if jx & 1 else f"v_lshlrev_b32 v{SP+2*jx+cc}, 16, v{src}")
    W(lambda: V.wait("v"))
    for i in range(16):
        W(f"ds_read_b32 v{VR_+i}, v21 offset:{i*128}")
        if i == 7: W("s_waitcnt lgkmcnt(0)")
    W("s_waitcnt lgkmcnt(0)")
    for t in range(16):
        vv = 176 + (t & 1)*2
        W(f"v_lshlrev_b32 v{vv}, 16, v{VR_+t}")
        W(f"v_and_b32 v{vv+1}, s12, v{VR_+t}")
        if opt("pk", 0) & 2:
            o = OUT + 2*t
            W(f"v_pk_mul_f32 {vr(o,2)}, {vr(KF+2*t,2)}, {vr(SP+6,2)}")
            for jx in (2, 1, 0): W(f"v_pk_fma_f32 {vr(o,2)}, {vr(KF+2*(t+3-jx),2)}, {vr(SP+2*jx,2)}, {vr(o,2)}")
            W(f"v_pk_mul_f32 {vr(o,2)}, {vr(o,2)}, {vr(vv,2)}")
            continue
        for cc in range(2): W(f"v_mul_f32 v{OUT+2*t+cc}, v{KF+2*t+cc}, v{SP+6+cc}")
        for jx in (2, 1, 0):
            for cc in range(2): W(f"v_fmac_f32 v{OUT+2*t+cc}, v{KF+2*(t+3-jx)+cc}, v{SP+2*jx+cc}")
        for cc in range(2): W(f"v_mul_f32 v{OUT+2*t+cc}, v{OUT+2*t+cc}, v{vv+cc}")
    for cc in range(2):
        for hf in range(2):
            d = 192 + (cc*2+hf)*4
            for m in range(4):
                mm = hf*4 + m
                W(f"v_cvt_pk_bf16_f32 v{d+m}, v{OUT+2*(15-2*mm)+cc}, v{OUT+2*(14-2*mm)+cc}")
            W(f"ds_write_b128 v23, {vr(d,4)} offset:{cc*272+hf*16}")
    W("s_waitcnt lgkmcnt(0)")
    W("BARRIER")
    for i in range(4): W(f"ds_read_b128 {vr(192+4*i,4)}, v24 offset:{i*4*272}")
    KVL = "nokvl" not in OPT
    def kvstores():
        def block(pol):
            for i in range(4):
                A(f"s_waitcnt lgkmcnt({3-i})")
                V.issue(f"buffer_store_dwordx4 {vr(192+4*i,4)}, v{27 if i < 2 else 3}, s[72:75], s{80+4*(i&1)} offen{pol}", "kvt")
        if not KVL:
            block(" sc1"); return
        V.wait("cls")
        local_check(A, 247, 246, 96, 98)
        A("s_cbranch_scc0 h_kvl")
        n0 = V.n
        block(" sc1")
        A("s_branch h_kve")
        A("h_kvl:")
        V.n = n0
        block("")
        A("h_kve:")
    W(kvstores)
    if "kvfirst" in OPT:
        gate_part = work[gate_begin:gate_end]
        del work[gate_begin:gate_end]
        work.extend(gate_part)
    wpos = [0]
    blocked = [False]
    cur = [0]
    PL = opt("pl", 1)
    KVW = PL + opt("kvd", 3)
    def do_work(n):
        while n > 0 and wpos[0] < len(work) and not blocked[0]:
            w = work[wpos[0]]
            wpos[0] += 1
            if w == "BARRIER":
                blocked[0] = True; return
            if w == "KVSTART":
                if cur[0] < KVW:
                    wpos[0] -= 1; return
                continue
            if callable(w): w()
            else: A(w)
            n -= 1
    PREP0 = opt("prep0", 1)
    UL = 40
    ACC = 64; BF = 96; AFR = 160; KD = 224
    def setup_conv(A):
        A("s_lshl_b32 s12, s88, 12")
        srd(A, 64, "ssmk", 4096, off_sreg=12)
        srd(A, 68, "ws", 4096, WS_KVT, off_sreg=12)
        A("s_mov_b32 s80, s100")
        A("s_mov_b32 s81, s101")
        A("v_and_b32 v37, 15, v1")
        A("s_lshr_b32 s8, s88, 6")
        A("s_and_b32 s8, s8, 1")
        A("s_lshl_b32 s8, s8, 3")
        A("s_add_u32 s8, s8, s54")
        A("v_lshl_add_u32 v32, v37, 4, s8")
        A("s_lshr_b32 s8, s4, 2")
        A("s_lshl_b32 s8, s8, 1")
        A("s_and_b32 s9, s4, 3")
        A("s_lshl_b32 s9, s9, 3")
        A("s_add_u32 s8, s8, s9")
        A("v_lshrrev_b32 v38, 3, v37")
        A("v_and_b32 v39, 7, v37")
        A("v_lshl_add_u32 v38, v39, 5, v38")
        A("v_add_u32 v38, s8, v38")
        A("v_and_b32 v39, 16, v1")
        A("v_cmp_ne_u32 vcc, 0, v39")
        A("v_cndmask_b32 v32, v32, v38, vcc")
        A("v_lshlrev_b32 v32, 7, v32")
        A(f"v_add_u32 v32, {KF_OFF:#x}, v32")
        A("v_lshlrev_b32 v33, 2, v1")
        srd(A, 76, "dbg", 256)
        A(f"s_mul_i32 s13, s3, 8320")
        A(f"s_add_u32 s13, s13, {KREG}")
        A(f"s_mul_i32 s82, s3, 4608")
        A(f"s_add_u32 s82, s82, {UREG}")
        A("v_add_u32 v36, 2, v25")
        A("v_and_b32 v38, 7, v1")
        A("v_lshlrev_b32 v38, 2, v38")
        A("v_bfe_u32 v39, v1, 3, 1")
        A("v_mul_u32_u24 v39, 4160, v39")
        A("v_add3_u32 v38, v38, v39, s13")
        A("s_lshl_b32 s80, s80, 16")
        A("v_mov_b32 v56, s80")
        A("v_cmp_eq_u32 vcc, 15, v37")
        A("v_cndmask_b32 v56, 0, v56, vcc")
        A("ds_write_b32 v38, v56")
        A("s_and_b32 s14, s88, 1")
        A("s_lshl_b32 s14, s14, 4")
        A("s_lshr_b32 s81, s81, s14")
        A("s_lshl_b32 s81, s81, 16")
        A(f"v_mov_b32 v60, {LFLAG:#x}")
        A("v_mov_b32 v61, 1")
    def setup_late(A):
        A("v_lshrrev_b32 v5, 4, v1")
        A("v_and_b32 v37, 15, v1")
        A("v_lshl_add_u32 v38, v5, 3, v37")
        A("v_lshlrev_b32 v38, 1, v38")
        A("v_and_b32 v39, 1, v1")
        A("v_mul_u32_u24 v39, 4158, v39")
        A("v_sub_u32 v38, v38, v39")
        A("s_add_u32 s14, s13, 4160")
        A("v_add_u32 v16, s14, v38")
        for i in range(1, 4): A(f"v_add_u32 v{16+i}, {1024*i}, v16")
        A("v_lshlrev_b32 v38, 5, v37")
        A("v_lshlrev_b32 v39, 4, v5")
        A("v_sub_u32 v20, v39, v38")
        A("s_add_u32 s14, s82, 480")
        A("v_add_u32 v20, s14, v20")
        A("v_lshl_add_u32 v39, v5, 3, v38")
        A("s_add_u32 s14, s82, 504")
        A("v_sub_u32 v21, s14, v39")
        A("v_and_b32 v39, 1, v5")
        A("v_lshl_add_u32 v22, v39, 9, v38")
        A("v_lshrrev_b32 v39, 1, v5")
        A("v_lshl_add_u32 v22, v39, 4, v22")
        A("v_add_u32 v23, s82, v25")
    setup_conv(W)
    print("prep work items", len(work))
    def cissue(st):
        tile_of(A, st >> 1, 11)
        A("s_lshl_b32 s11, s11, 7")
        sr_ = "s[56:59]" if st % 2 == 0 else "s[60:63]"
        A("s_add_u32 s99, s11, s91")
        A(f"s_add_u32 m0, s10, {(st % NS2)*16384:#x}")
        for n in range(2):
            V.issue(f"buffer_load_dwordx4 v{VC+n}, {sr_}, s99 offen offset:{n*1024} lds")
        A("s_add_u32 s11, s11, s90")
        A(f"s_add_u32 m0, s10, {(st % NS2)*16384 + 8192:#x}")
        for n in range(2):
            V.issue(f"buffer_load_dwordx4 v{VC+n}, {sr_}, s11 offen offset:{n*1024} lds", ("C", st))
    def uloads():
        for i in range(4): A(f"buffer_load_dwordx4 {vr(UL+4*i,4)}, v25, s[68:71], 0 offen offset:{i*1024} sc1")
    def ctouch():
        A("s_cmp_ge_u32 s3, 2")
        A(f"s_cselect_b32 s96, s{P['Cim']}, s{P['Cre']}")
        A(f"s_cselect_b32 s97, s{P['Cim']+1}, s{P['Cre']+1}")
        A("s_lshl_b32 s98, s2, 13")
        A("s_and_b32 s99, s3, 1")
        A("s_lshl_b32 s99, s99, 12")
        A("s_add_u32 s98, s98, s99")
        A("v_and_b32 v240, 31, v1")
        if "km" in OPT:
            A("s_add_u32 s96, s96, s98")
            A("s_addc_u32 s97, s97, 0")
            A("s_lshl_b32 s98, s88, 12")
            A(f"s_add_u32 s98, s{P['ssmk']}, s98")
            A(f"s_addc_u32 s99, s{P['ssmk']+1}, 0")
            A("v_mov_b32 v242, s96")
            A("v_mov_b32 v243, s97")
            A("v_mov_b32 v244, s98")
            A("v_mov_b32 v245, s99")
            A("v_cmp_lt_u32 s[96:97], 31, v1")
            A("v_cndmask_b32 v242, v242, v244, s[96:97]")
            A("v_cndmask_b32 v243, v243, v245, s[96:97]")
            A("v_lshlrev_b32 v240, 7, v240")
            A("v_add_co_u32 v242, s[96:97], v242, v240")
            A("v_addc_co_u32 v243, s[96:97], 0, v243, s[96:97]")
            V.issue("global_load_dword v241, v[242:243], off")
        else:
            A("v_lshl_add_u32 v240, v240, 7, s98")
            V.issue("global_load_dword v241, v240, s[96:97]")
    FILL = opt("fill", 10)
    kst = [None]
    KW = opt("kw", 2)
    CHK = opt("chk", 13)
    KFS = opt("kfs", 12)
    KDS = opt("kds", 11)
    UWS = opt("uws", 14)
    WEND = min(KFS, KDS, 12)
    CM = opt("cm", 6)
    assert CHK < UWS <= 15 and opt("lates", 14) <= UWS
    nU = [0]; cdone = [0]
    NC0 = opt("nc0", 2)
    A(f"v_mov_b32 v6, {LFLAG:#x}")
    A("v_mov_b32 v7, 0")
    for o in (4, 8, 12, 16, 20): A(f"ds_write_b32 v6, v7 offset:{o}")
    ST()
    A("s_waitcnt lgkmcnt(0)")
    V.wait("clr")
    ST()
    if "fine0" in OPT: STH()
    A("s_barrier")
    issue(2)
    if "fine0" in OPT: STH()
    for t, tag in gl: V.issue(t, tag)
    for s in range(N1):
        V.wait(("S", min(s+1, N1-1)))
        if kst[0] is not None and s == min(kst[0] + KW, 15): V.wait("kvt"); V.wait("g")
        if "fine1" in OPT: STH()
        A("s_barrier")
        if kst[0] is not None and s == min(kst[0] + KW, 15):
            A("s_cmp_lg_u32 s3, 0")
            A("s_cbranch_scc1 h_kflag")
            A("v_mov_b32 v6, 1")
            A("buffer_store_dword v6, v30, s[92:95], 0 offen sc1")
            A("h_kflag:")
            print("k flag after barrier", s+1)
        blocked[0] = False
        cur[0] = s
        FM = opt("fmode", 0)
        fl = opt("fill0", FILL) if s < opt("fill0n", 0) else FILL
        if s+3 < N1 and FM == 0: issue(s+3, fl if s >= PREP0 else 0)
        elif s+3 < N1 and FM == 1:
            issue(s+3)
            if s >= PREP0: do_work(8*FILL)
        if s == PL - 100: pass
        if s == PL and PL >= 0: kvdma()
        if s == CM: ctouch()
        if KVL and s == opt("cls", 6):
            A("v_lshlrev_b32 v246, 2, v1")
            V.issue(f"global_load_dword v247, v246, {sp('dbg')} sc1", "cls")
        if kst[0] is None and "kvt" in V.tags and "g" in V.tags: kst[0] = s
        if s == WEND:
            do_work(10000)
            assert wpos[0] == len(work), (wpos[0], len(work))
        if s == KFS:
            V.issue("buffer_load_dword v34, v33, s[76:79], 0 offen sc1")
            V.issue("buffer_load_dword v35, v32, s[92:95], 0 offen sc1", "kf")
            ST()
        if s == KDS and KDS < CHK:
            V.wait("g")
            A("s_add_u32 m0, s13, 32")
            for i in range(4): V.issue(f"buffer_load_dwordx4 v25, s[64:67], 0 offen offset:{i*1024}{NTP} lds")
            A("s_add_u32 m0, s13, 4192")
            for i in range(4): V.issue(f"buffer_load_dwordx4 v36, s[64:67], 0 offen offset:{i*1024}{NTP} lds", "K")
        if s == 13:
            srd(A, 56, "Cre", 2 << 20)
            srd(A, 60, "Cim", 2 << 20)
            A("s_lshl_b32 s10, s3, 11")
            A(f"s_add_u32 s10, s10, {CRING:#x}")
            A("s_lshr_b32 s90, s5, 3")
            A("s_xor_b32 s91, s90, 1")
            A("s_lshl_b32 s91, s91, 20")
            A("s_lshl_b32 s11, s90, 10")
            A("s_add_u32 s91, s91, s11")
            A("s_mul_i32 s90, s90, 0x100400")
            A("v_mov_b32 v56, 0")
            A("v_mov_b32 v57, 0")
            A("v_lshlrev_b32 v38, 3, v1")
            A("v_add_u32 v38, s82, v38")
            A("ds_write_b64 v38, v[56:57] offset:4096")
            ST()
        if s == CHK:
            V.wait("kf")
            A("s_mov_b32 s83, 0")
            A("v_and_b32 v34, 15, v34")
            A("v_cmp_ne_u32 vcc, 15, v34")
            A("v_cmp_ne_u32 s[84:85], 1, v35")
            A("s_or_b64 vcc, vcc, s[84:85]")
            A("s_cbranch_scc1 h_nou")
            A("s_mov_b32 s83, 1")
            uloads()
            A("h_nou:")
            nU[0] = V.n
        if s == KDS and KDS >= CHK:
            V.wait("g")
            A("s_add_u32 m0, s13, 32")
            for i in range(4): V.issue(f"buffer_load_dwordx4 v25, s[64:67], 0 offen offset:{i*1024}{NTP} lds")
            A("s_add_u32 m0, s13, 4192")
            for i in range(4): V.issue(f"buffer_load_dwordx4 v36, s[64:67], 0 offen offset:{i*1024}{NTP} lds", "K")
        if s == opt("lates", 14): setup_late(A)
        if s == 15:
            for z in range(NC0): cissue(z)
            cdone[0] = NC0
        if s == UWS:
            A("s_cmp_lg_u32 s83, 1")
            A("s_cbranch_scc1 h_nouw")
            A(f"s_waitcnt vmcnt({V.n - nU[0]})")
            for i in range(4): A(f"ds_write_b128 v23, {vr(UL+4*i,4)} offset:{1024*i}")
            A("h_nouw:")
    ST()
    if "hprio1" in OPT: A("s_setprio 0")
    A("s_cmp_lg_u32 s83, 0")
    A("s_cbranch_scc1 h_haveu")
    spin_all(A, "h_init", 34, "buffer_load_dword v34, v33, s[76:79], 0 offen sc1", "15", pre="v_and_b32 v34, 15, v34")
    spin_all(A, "h_kf", 35, "buffer_load_dword v35, v32, s[92:95], 0 offen sc1")
    uloads()
    A("s_waitcnt vmcnt(0)")
    for i in range(4): A(f"ds_write_b128 v23, {vr(UL+4*i,4)} offset:{1024*i}")
    A("h_haveu:")
    V.done = max(V.done, nU[0])
    V.wait("K")
    if "lowp" in OPT: A("s_setprio 1")
    lds_inc(A, 60, 61, 8)
    for i in range(4): A(f"s_mov_b32 s{84+i}, s{68+i}")
    srd(A, 68, "ws", 4 << 20, WS_KVT)
    A("s_waitcnt lgkmcnt(0)")
    ST()
    L = LQ(A)
    ops = []
    def reads(r):
        R = []
        s = r & 1
        for i in range(8):
            R.append((f"ds_read_b128 {vr(BF+s*32+i*4,4)}, v20 offset:{3584-512*i+64*r}", ("B", r, i)))
            o = 128*(i & 1) + 16*r
            d = AFR + s*32 + i*4
            R.append((f"ds_read2_b32 {vr(d,2)}, v{16+(i>>1)} offset0:{o} offset1:{o+1}", None))
            R.append((f"ds_read2_b32 {vr(d+2,2)}, v{16+(i>>1)} offset0:{o+2} offset1:{o+3}", ("A", r, i)))
        return R
    def first_order(R):
        return R[1:3] + [R[3*i] for i in range(8)] + [x for i in range(1, 8) for x in R[3*i+1:3*i+3]]
    KVT = 40
    for n in range(8): ops.append(("rd", f"ds_read_b64 {vr(KVT+2*n,2)}, v21 offset:{3584-512*n}", ("KV", n)))
    for t, tag in first_order(reads(0)): ops.append(("rd", t, tag))
    fill = []
    fill.append(("s_mov_b32 s12, 0xffff0000", None)); fill.append(("v_mov_b32 v26, s81", None))
    for n in range(8):
        k = KD + 4*n
        c = [f"v_and_b32 v{k}, s12, v{KVT+2*n+1}", f"v_lshlrev_b32 v{k+1}, 16, v{KVT+2*n+1}", f"v_and_b32 v{k+2}, s12, v{KVT+2*n}", f"v_lshlrev_b32 v{k+3}, 16, v{KVT+2*n}"]
        c += [f"v_mul_f32 v{k+i}, v{k+i}, v26" for i in range(4)]
        c += [f"v_cvt_pk_bf16_f32 v56, v{k}, v{k+1}", f"v_cvt_pk_bf16_f32 v57, v{k+2}, v{k+3}",
              f"v_lshlrev_b32 v{k}, 16, v56", f"v_and_b32 v{k+1}, s12, v56", f"v_lshlrev_b32 v{k+2}, 16, v57", f"v_and_b32 v{k+3}, s12, v57"]
        for i, t in enumerate(c): fill.append((t, ("KV", n) if i == 0 else None))
    YD = 40
    def post(n):
        y = ACC + 4*n; k = KD + 4*n
        d = YD + (n >> 1)*4 + (n & 1)*2
        c = [f"v_cvt_pk_bf16_f32 v56, v{y}, v{y+1}", f"v_cvt_pk_bf16_f32 v57, v{y+2}, v{y+3}",
             f"v_lshlrev_b32 v{y}, 16, v56", f"v_and_b32 v{y+1}, s12, v56", f"v_lshlrev_b32 v{y+2}, 16, v57", f"v_and_b32 v{y+3}, s12, v57"]
        c += [f"v_add_f32 v{k+i}, v{k+i}, v{y+i}" for i in range(4)]
        c += [f"v_cvt_pk_bf16_f32 v{d}, v{k}, v{k+1}", f"v_cvt_pk_bf16_f32 v{d+1}, v{k+2}, v{k+3}"]
        if n & 1:
            d = YD + (n >> 1)*4
            c += [f"v_permlane16_swap_b32 v{d}, v{d+2}", f"v_permlane16_swap_b32 v{d+1}, v{d+3}"]
            if "yinl" in OPT: c += [f"YST{n >> 1}"]
        return c
    ystores = [f"buffer_store_dwordx4 {vr(YD+4*k,4)}, v22, s[84:87], 0 offen offset:{k*1024} sc1" for k in range(4)]
    LATEC = opt("latec", 200)
    CFM = opt("cfm", 80)
    FPM = opt("fpm", 2)
    nmf = 0
    postq = []
    for r in range(8):
        s = r & 1
        nxt = first_order(reads(r+1)) if r < 7 else []
        cnt = 0
        for q in range(8):
            for n in range(q, 8):
                c = vr(ACC+4*n, 4)
                ops.append(("mf", f"v_mfma_f32_16x16x32_bf16 {c}, {vr(AFR+s*32+4*q,4)}, {vr(BF+s*32+4*(n-q),4)}, {'0' if (r == 0 and q == 0) else c}",
                            [("A", r, q), ("B", r, n-q)]))
                nmf += 1; cnt += 1
                if nxt and cnt >= 2:
                    t, tag = nxt.pop(0); ops.append(("rd", t, tag))
                elif r < 7:
                    for z in range(FPM):
                        if fill: ops.append(("fill",) + fill.pop(0))
                if nmf == LATEC: ops.append(("latec",))
                if nmf == CFM: ops.append(("cf",))
                if nmf == opt("cf2m", 270) and FBAR > 1: ops.append(("cf2",))
                if r == 7:
                    if n == q: postq += [(nmf + 3, t) for t in post(n)]
                    for z in range(opt("ppm", 3)):
                        if postq and postq[0][0] <= nmf and q < 7: ops.append(("fill", postq.pop(0)[1], None))
        assert not nxt
    assert not fill and CFM < LATEC
    for _, t in postq: ops.append(("fill", t, None))
    for op in ops:
        if op[0] == "rd": L.issue(op[1], op[2])
        elif op[0] == "mf":
            for t in op[2]: pass
            k = max(op[2], key=lambda t: L.tags[t])
            L.wait(k)
            A(op[1])
        elif op[0] == "fill":
            if op[2] is not None: L.wait(op[2])
            if op[1].startswith("YST"): V.issue(ystores[int(op[1][3:])], "y2")
            else: A(op[1])
        elif op[0] == "latec":
            while cdone[0] < NS2: cissue(cdone[0]); cdone[0] += 1
        elif op[0] == "cf2":
            V.wait(("C", 3))
            lds_inc(A, 60, 61, 20); L.n += 1
        elif op[0] == "cf":
            while cdone[0] < 2: cissue(cdone[0]); cdone[0] += 1
            V.wait(("C", 1))
            lds_inc(A, 60, 61, 16); L.n += 1
    ST()
    if "lowp" in OPT: A("s_setprio 0")
    YST = opt("yst", 0)
    if YST == 0 and "yinl" not in OPT:
        for t in ystores: V.issue(t, "y2")
    A("v_lshrrev_b32 v8, 4, v1")
    A("s_lshl_b32 s8, s3, 4")
    A("v_add_u32 v8, s8, v8")
    A("v_and_b32 v11, 15, v1")
    A("s_lshl_b32 s9, s5, 11")
    A(f"s_add_u32 s9, s9, {YF_OFF:#x}")
    A("v_lshl_add_u32 v10, v11, 7, s9")
    A("v_lshlrev_b32 v11, 4, v11")
    A("v_mul_u32_u24 v9, 272, v8")
    A("v_add_u32 v9, v9, v11")
    A("s_lshl_b32 s8, s5, 6")
    A("v_add_u32 v8, s8, v8")
    A("v_lshl_add_u32 v8, v8, 12, v11")
    A("s_lshl_b32 s8, s4, 8")
    A("v_add_u32 v8, s8, v8")
    ST()
    YR = 116
    YFL_LD = "buffer_load_dword v19, v10, s[92:95], 0 offen sc1"
    YFL, GYF, GYL, GYW = opt("yfl", 5), opt("gyf", 8), opt("gyl", 10), opt("gyw", 12)
    for st in range(FBAR, N2-1):
        V.wait(("C", st+1))
        if "fineh" in OPT: STH()
        A("s_barrier")
        if st == FBAR:
            for z in range(NS2, FBAR + NS2): cissue(z)
        elif st + NS2 - 1 < N2: cissue(st + NS2 - 1)
        if "abl" in OPT and st >= 2 and st < 13 and int(OPT["abl"]) & 1:
            continue_ = True
            for tg in ("y2", "xt", "yf", "eps"): V.tags.setdefault(tg, 0)
            continue
        if YST and st == YST:
            for t in ystores: V.issue(t, "y2")
        if st == YFL:
            V.wait("y2")
            A("s_mov_b64 exec, 1")
            A("ds_add_rtn_u32 v62, v60, v61 offset:4")
            A("s_mov_b64 exec, -1")
            A("s_waitcnt lgkmcnt(0)")
            A("v_readfirstlane_b32 s83, v62")
            A("s_cmp_lg_u32 s83, 3")
            A("s_cbranch_scc1 h_noy")
            A("buffer_store_dword v61, v31, s[92:95], 0 offen sc1")
            A("h_noy:")
        if st == GYF: V.issue(YFL_LD, "yf")
        if st == GYL:
            V.wait("yf")
            spin_all(A, "h_yf", 19, YFL_LD)
            for i in range(4):
                A(f"s_mov_b32 s8, {i*16384}")
                V.issue(f"buffer_load_dwordx4 {vr(YR+i*4,4)}, v8, s[68:71], s8 offen sc1", "eps")
        if st == GYW:
            V.wait("eps")
            for i in range(4): A(f"ds_write_b128 v9, {vr(YR+i*4,4)} offset:{i*4*272}")
            A("s_waitcnt lgkmcnt(0)")
    assert YST < YFL < GYF < GYL < GYW <= N2 - 3
    STH.flush()
    ST.flush()
    A("s_endpgm")

def build():
    s = header_comments()
    s += "; generated by tools/gen9.py (fused single kernel, split-K GEMM2; gen8 h layout)\n"
    s += "; @launch grid=(256,1,1) block=(512,1,1) lds=163840\n"
    s += '.amdgcn_target "amdgcn-amd-amdhsa--gfx950"\n.text\n'
    A = Asm()
    A.raw(f".globl {KN}\n.p2align 8\n.type {KN},@function")
    gen_kernel(A)
    s += A.render()
    s += descriptor(KN, 256, 102)
    import subprocess, tempfile, re
    with tempfile.TemporaryDirectory() as td:
        open(td + "/a.s", "w").write(s.replace("CODE_LAST", "0x12345"))
        subprocess.run(["clang", "-x", "assembler", "-target", "amdgcn-amd-amdhsa", "-mcpu=gfx950", "-c", td + "/a.s", "-o", td + "/a.o"], check=True)
        o = subprocess.run(["llvm-objdump", "-h", td + "/a.o"], capture_output=True, text=True).stdout
    size = int(re.search(r"\.text\s+([0-9a-f]+)", o).group(1), 16)
    print("code bytes", size)
    assert size <= 65536
    return s.replace("CODE_LAST", hex(size - 4))

if __name__ == "__main__":
    out = sys.argv[1] if len(sys.argv) > 1 and not sys.argv[1].startswith("--") else os.path.join(os.path.dirname(os.path.abspath(__file__)), "..", NAME + ".s")
    open(out, "w").write(build())
    print("wrote", out)
```

```python
import sys, os
sys.path.insert(0, os.path.dirname(os.path.abspath(__file__)))
from asmlib import Asm
from gen import (NAME, P, sp, vr, sr, load_kernargs, srd, pk, cmul, tile_ids, Stamper, OPT, header_comments, descriptor)
import gen

KN = NAME + "_kernel"
WS_H    = 0
WS_KVT  = 8 << 20
WS_G    = 16 << 20
WS_EBOX = 17 << 20
WS_FLG  = 18 << 20
HF_OFF  = 0
KF_OFF  = 128 << 10
YF_OFF  = 160 << 10
PF_OFF  = 192 << 10
FLG_SZ  = 320 << 10
WS_PART = 24 << 20
N1 = 16
N2 = 16
NS2 = 4
PD = 4
CRING = 32768
KREG = 98304
UREG = KREG + 4*8320
LFLAG = UREG + 4*4608
SPIN = int(OPT.get("spin", 1 << 16))
SLEEP = int(OPT.get("sleep", 4))
def opt(k, d): return int(OPT.get(k, d))

class VQ:
    def __init__(self, A): self.A = A; self.n = 0; self.tags = {}; self.done = 0
    def issue(self, text, tag=None):
        self.A(text); self.n += 1
        if tag is not None: self.tags[tag] = self.n
    def wait(self, tag):
        k = self.tags[tag]
        if k <= self.done: return
        cnt = min(63, self.n - k)
        self.A(f"s_waitcnt vmcnt({cnt})"); self.done = self.n - cnt
    def drained(self): self.done = self.n

class LQ:
    def __init__(self, A): self.A = A; self.n = 0; self.tags = {}; self.done = 0
    def issue(self, text, tag=None):
        self.A(text); self.n += 1
        if tag is not None: self.tags[tag] = self.n
    def wait(self, tag):
        k = self.tags[tag]
        if k > self.done:
            self.A(f"s_waitcnt lgkmcnt({min(15, self.n - k)})"); self.done = max(k, self.n - 15)
    def drain(self):
        self.A("s_waitcnt lgkmcnt(0)"); self.done = self.n

def spin_all(A, name, vreg, reload, cmpval="1", sctr=89, pre=None):
    A(f"s_mov_b32 s{sctr}, {SPIN}")
    A(f"{name}_chk:")
    if pre: A(pre)
    A(f"v_cmp_ne_u32 vcc, {cmpval}, v{vreg}")
    A("s_cmp_eq_u64 vcc, 0")
    A(f"s_cbranch_scc1 {name}_ok")
    A(f"s_sub_u32 s{sctr}, s{sctr}, 1")
    A(f"s_cbranch_scc1 {name}_ok")
    A(f"s_sleep {SLEEP}")
    A(reload)
    A("s_waitcnt vmcnt(0)")
    A(f"s_branch {name}_chk")
    A(f"{name}_ok:")

def lds_spin(A, name, vaddr, off, vtmp, target, stmp=8, sctr=89):
    A(f"s_mov_b32 s{sctr}, {SPIN*4}")
    A(f"{name}:")
    A(f"ds_read_b32 v{vtmp}, v{vaddr} offset:{off}")
    A("s_waitcnt lgkmcnt(0)")
    A(f"v_readfirstlane_b32 s{stmp}, v{vtmp}")
    A(f"s_cmp_ge_u32 s{stmp}, {target}")
    A(f"s_cbranch_scc1 {name}_ok")
    A(f"s_sub_u32 s{sctr}, s{sctr}, 1")
    A(f"s_cbranch_scc0 {name}")
    A(f"{name}_ok:")

def lds_inc(A, vaddr, vone, off):
    A("s_mov_b64 exec, 1")
    A(f"ds_add_u32 v{vaddr}, v{vone} offset:{off}")
    A("s_mov_b64 exec, -1")

def zip_chains(A, chains):
    chains = [[x for t in c for x in t.split("\n")] for c in chains]
    for i in range(max(len(c) for c in chains)):
        for c in chains:
            if i < len(c): A(c[i])

def local_check(A, vbits, vtmp, sdst_pair, stmp):
    A(f"s_getreg_b32 s{stmp}, hwreg(HW_REG_XCC_ID, 0, 4)")
    A(f"s_lshl_b32 s{stmp}, 0x100, s{stmp}")
    A(f"s_or_b32 s{stmp}, s{stmp}, 15")
    A(f"v_and_b32 v{vtmp}, 7, v1")
    A(f"v_cmp_eq_u32 s[{sdst_pair}:{sdst_pair+1}], s54, v{vtmp}")
    A(f"v_cmp_ne_u32 vcc, s{stmp}, v{vbits}")
    A(f"s_and_b64 vcc, vcc, s[{sdst_pair}:{sdst_pair+1}]")

SNT = opt("snt", 1)
PB = opt("pb", 1)
NPQ = 4 if PB else 8
FBAR = opt("fb", 1)
ORD = opt("ord", 1)
def tile_of(A, i, dst):
    if i == 0: A(f"s_mov_b32 s{dst}, s15")
    elif ORD:
        A(f"s_cmp_le_u32 s15, {i-1}")
        A(f"s_cselect_b32 s{dst}, {i}, {i-1}")
    else:
        A(f"s_add_u32 s{dst}, s15, {i}")
        A(f"s_and_b32 s{dst}, s{dst}, 7")

def gen_kernel(A):
    A(f"{KN}:")
    A("s_cmp_ge_u32 s2, 256")
    A("s_cbranch_scc1 L_end")
    load_kernargs(A)
    tile_ids(A)
    A("v_and_b32 v1, 63, v0")
    A("v_lshrrev_b32 v2, 6, v0")
    A("s_and_b32 s15, s5, 7")
    A("v_readfirstlane_b32 s3, v2")
    A("s_cmp_ge_u32 s3, 4")
    A("s_cbranch_scc0 L_consumer")
    helper(A)
    A("L_consumer:")
    consumer(A)
    A("L_end:")
    A("s_endpgm")


def consumer(A):
    ACC = 64
    FA, FB = 128, 144
    AD, BD = 160, 168
    LAM, C2, MU, MU2, MU4, MU8 = 176, 178, 180, 182, 184, 186
    EL = 192
    UR2 = 224
    ST = Stamper(A, 0, 63)
    ST()
    A(f"s_setprio {opt('prio', 2)}")
    A("s_and_b32 s6, s3, 1")
    A("s_lshr_b32 s7, s3, 1")
    A("v_and_b32 v4, 31, v1")
    A("s_lshl_b32 s8, s5, 6")
    A("s_lshl_b32 s9, s7, 5")
    A("s_add_u32 s8, s8, s9")
    A("v_add_u32 v3, s8, v4")
    A("v_lshlrev_b32 v5, 1, v3")
    A("v_lshrrev_b32 v6, 5, v1")
    A("s_lshl_b32 s10, s4, 1")
    A("s_add_u32 s10, s10, s6")
    if "nocode" not in OPT:
        A("s_getpc_b64 s[12:13]")
        A("c_pc:")
        A(f"s_sub_u32 s12, s12, c_pc-{KN}")
        A("s_subb_u32 s13, s13, 0")
        A("s_lshl_b32 s11, s3, 14")
        A("v_lshl_add_u32 v24, v1, 7, s11")
        A("v_min_u32 v24, CODE_LAST, v24")
        A("global_load_dword v25, v24, s[12:13]")
        A("v_add_u32 v24, 0x2000, v24")
        A("v_min_u32 v24, CODE_LAST, v24")
        A("global_load_dword v26, v24, s[12:13]")
    A("s_waitcnt lgkmcnt(0)")
    A(f"global_load_ushort v8, v5, {sp('Lre')}")
    A(f"global_load_ushort v9, v5, {sp('Lim')}")
    A(f"global_load_ushort v10, v5, {sp('logdt')}")
    srd(A, 56, "ws", 256 << 10, WS_EBOX)
    srd(A, 60, "ws", 8 << 20, WS_H)
    srd(A, 64, "dbg", 256)
    srd(A, 68, "ws", FLG_SZ, WS_FLG)
    A("s_lshl_b32 s11, s10, 13")
    A("v_lshl_add_u32 v7, v3, 3, s11")
    A("v_mov_b32 v12, 0")
    A("v_mov_b32 v13, 0")
    A("buffer_store_dwordx2 v[12:13], v7, s[56:59], 0 offen sc1")
    A("s_lshl_b32 s11, s10, 4")
    A("s_add_u32 s11, s11, s5")
    A("s_lshl_b32 s11, s11, 1")
    A("s_add_u32 s11, s11, s7")
    A("s_lshl_b32 s11, s11, 7")
    A("v_mov_b32 v60, s11")
    A("buffer_store_dword v12, v60, s[68:71], 0 offen sc1")
    A("s_lshl_b32 s72, s4, 4")
    A("s_add_u32 s72, s72, s5")
    A("s_lshl_b32 s72, s72, 2")
    A("s_add_u32 s72, s72, s3")
    A("s_lshl_b32 s72, s72, 7")
    A(f"s_add_u32 s11, s72, {PF_OFF:#x}")
    A("v_mov_b32 v30, s11")
    A("buffer_store_dword v12, v30, s[68:71], 0 offen sc1")
    A("v_mov_b32 v23, 1")
    A("v_bfe_u32 v11, v1, 1, 3")
    A("v_xor_b32 v11, v11, v6")
    A("s_lshl_b32 s11, s6, 13")
    A("v_lshl_add_u32 v14, v4, 7, s11")
    A("s_lshl_b32 s11, s7, 12")
    A("s_add_u32 s11, s11, 16384")
    A("v_lshl_add_u32 v15, v4, 7, s11")
    for ks in range(4):
        A(f"v_xor_b32 v16, {2*ks}, v11")
        A(f"v_lshl_add_u32 v{AD+ks}, v16, 4, v14")
        A(f"v_lshl_add_u32 v{BD+ks}, v16, 4, v15")
        A(f"v_add_u32 v{AD+4+ks}, 0x10000, v{AD+ks}")
        A(f"v_add_u32 v{BD+4+ks}, 0x10000, v{BD+ks}")
    A("v_lshlrev_b32 v21, 2, v1")
    A("s_waitcnt vmcnt(0)")
    A("v_lshlrev_b32 v8, 16, v8")
    A("v_lshlrev_b32 v9, 16, v9")
    A("v_lshlrev_b32 v10, 16, v10")
    A("s_mov_b32 s12, 0x3fb8aa3b")
    A("v_mul_f32 v10, s12, v10")
    A("v_exp_f32 v10, v10")
    A("v_cvt_pk_bf16_f32 v10, v10, v10")
    A("v_lshlrev_b32 v10, 16, v10")
    A("v_mul_f32 v16, v10, v8")
    A("v_mul_f32 v17, v10, v9")
    A("v_mul_f32 v16, s12, v16")
    A("v_exp_f32 v16, v16")
    A("v_mul_f32 v17, 0.15915494, v17")
    A("v_rndne_f32 v18, v17")
    A("v_sub_f32 v17, v17, v18")
    A("v_cos_f32 v18, v17")
    A("v_sin_f32 v19, v17")
    A(f"v_mul_f32 v{LAM}, v16, v18")
    A(f"v_mul_f32 v{LAM+1}, v16, v19")
    A(f"v_add_f32 v16, -1.0, v{LAM}")
    A("v_mul_f32 v17, v8, v8")
    A("v_fma_f32 v17, v9, v9, v17")
    A("v_rcp_f32 v17, v17")
    A("v_mul_f32 v18, v16, v8")
    A(f"v_fma_f32 v18, v{LAM+1}, v9, v18")
    A(f"v_mul_f32 v19, v{LAM+1}, v8")
    A("v_fma_f32 v19, -v16, v9, v19")
    A("v_add_f32 v17, v17, v17")
    A(f"v_mul_f32 v{C2}, v18, v17")
    A(f"v_mul_f32 v{C2+1}, v19, v17")
    cmul(A, 16, LAM, LAM); cmul(A, 18, 16, 16); cmul(A, 16, 18, 18)
    cmul(A, MU, 16, 16); cmul(A, MU2, MU, MU); cmul(A, MU4, MU2, MU2); cmul(A, MU8, MU4, MU4)
    cmul(A, 48, C2, MU2)
    A("v_cmp_lt_u32 vcc, 31, v1")
    A(f"v_cndmask_b32 v48, v{C2}, v48, vcc")
    A(f"v_cndmask_b32 v49, v{C2+1}, v49, vcc")
    A("v_lshlrev_b32 v50, 13, v6")
    A("v_sub_u32 v50, v7, v50")
    A("s_add_u32 s11, s10, 1")
    A("v_sub_u32 v51, s11, v6")
    A("v_lshrrev_b32 v51, 1, v51")
    A("s_lshl_b32 s11, s4, 2")
    A("s_add_u32 s11, s11, s3")
    A("s_lshl_b32 s11, s11, 5")
    A("v_lshrrev_b32 v52, 3, v1")
    A("v_add_u32 v52, s11, v52")
    A("v_lshlrev_b32 v52, 11, v52")
    A("v_and_b32 v16, 7, v1")
    A("v_lshl_add_u32 v52, v16, 4, v52")
    A("s_lshl_b32 s11, s5, 7")
    A("v_add_u32 v52, s11, v52")
    A("s_lshl_b32 s11, s3, 13")
    A("v_lshlrev_b32 v53, 11, v6")
    A("v_lshl_add_u32 v53, v4, 1, v53")
    A("v_add_u32 v53, s11, v53")
    A("s_lshl_b32 s11, s5, 6")
    A("v_add_u32 v54, s11, v4")
    A("v_lshlrev_b32 v54, 1, v54")
    srd(A, 76, "x", 4 << 20)
    srd(A, 92, "ws", 8 << 20, WS_PART)
    A("s_xor_b32 s73, s72, 4096")
    A("s_lshl_b32 s74, s73, 6")
    A("s_add_u32 s75, s74, 4096")
    A("v_lshlrev_b32 v59, 4, v1")

    def rd(stage, ks, buf, which):
        slot = stage % 3
        hi = 4 if slot >= 2 else 0
        so = (slot & 1) * 32768
        if which < 2:
            return f"ds_read_b128 {vr(FA+buf*8+which*4,4)}, v{AD+hi+ks} offset:{so + which*4096}"
        ri = which - 2
        return f"ds_read_b128 {vr(FB+buf*8+ri*4,4)}, v{BD+hi+ks} offset:{so + ri*8192}"
    def mf(buf, mt, ri, first):
        acc = ACC + ri*32 + mt*16
        return f"v_mfma_f32_32x32x16_bf16 {vr(acc,16)}, {vr(FA+buf*8+mt*4,4)}, {vr(FB+buf*8+ri*4,4)}, {'0' if first else vr(acc,16)}"
    RD_ORDER = [0, 2, 1, 3]
    MF_ORDER = [(0,0), (1,0), (1,1), (0,1)]
    ST()
    A("s_barrier")
    ST()
    A("s_cmp_lg_u32 s3, 0")
    A("s_cbranch_scc1 c_noflag")
    A("s_lshr_b32 s11, s2, 6")
    A("s_lshl_b32 s11, 1, s11")
    A("s_getreg_b32 s12, hwreg(HW_REG_XCC_ID, 0, 4)")
    A("s_lshl_b32 s12, 0x100, s12")
    A("s_or_b32 s11, s11, s12")
    A("v_mov_b32 v16, s11")
    A("s_and_b32 s11, s2, 63")
    A("s_lshl_b32 s11, s11, 2")
    A("v_mov_b32 v17, s11")
    A("s_mov_b64 exec, 1")
    A("buffer_atomic_or v16, v17, s[64:67], 0 offen sc1")
    A("s_mov_b64 exec, -1")
    A("c_noflag:")
    for w in RD_ORDER: A(rd(0, 0, 0, w))
    for s in range(N1):
        for ks in range(4):
            buf = ks & 1
            last = (s == N1-1 and ks == 3)
            if ks == 3:
                A("s_waitcnt lgkmcnt(0)")
                A("s_barrier")
            ns, nks = (s, ks+1) if ks < 3 else (s+1, 0)
            for i in range(4):
                if ks < 3 and i < 3: A("s_waitcnt lgkmcnt(2)")
                A(mf(buf, *MF_ORDER[i], s == 0 and ks == 0))
                if not last: A(rd(ns, nks, buf ^ 1, RD_ORDER[i]))
            if (s in (3, 7, 11) if "fine1" not in OPT else s >= 3) and ks == 3: ST()
            if s == 12 and ks == 0:
                A("buffer_load_dword v20, v21, s[64:67], 0 offen sc1")
    ST()
    if "fine1" in OPT: ST.n = 40
    gen.SAFE_PK[0] = bool(opt("pk", 0) & 1)
    def UR(t): return ACC + (t >> 3)*16 + 2*(t & 7)
    def UI(t): return ACC + 32 + (t >> 3)*16 + 2*(t & 7)
    E = [(24, 26), (28, 30 - 30 + 44)]
    cr, ci = UR(0), UI(0)
    for t in range(1, 16):
        nr, ni = E[t & 1]
        A(pk("fma", nr, cr, LAM, UR(t), bsel=0))
        A(pk("fma", ni, ci, LAM, UI(t), bsel=0))
        A(pk("fma", nr, ci, LAM, nr, bsel=1, neg_b=True))
        A(pk("fma", ni, cr, LAM, ni, bsel=1))
        cr, ci = nr, ni
    A("v_mov_b32 v32, v28\nv_mov_b32 v33, v44\nv_mov_b32 v34, v29\nv_mov_b32 v35, v45")
    cmul(A, 36, MU, 32, add=34)
    A("v_mov_b32 v38, v36\nv_mov_b32 v39, v37\nv_mov_b32 v40, 0\nv_mov_b32 v41, 0")
    A("v_permlane32_swap_b32 v40, v38")
    A("v_permlane32_swap_b32 v41, v39")
    cmul(A, 42, MU2, 40, add=36)
    A("v_or_b32 v42, 1, v42")
    A("s_mov_b32 s12, 0")
    A("s_mov_b32 s13, -1")
    A("s_mov_b64 exec, s[12:13]")
    A("buffer_store_dwordx2 v[42:43], v7, s[56:59], 0 offen sc1")
    A("s_mov_b64 exec, -1")
    def scaling():
        for t in range(16):
            n = UR2 + 2*t
            A(pk("mul", n, UR(t), C2, bsel=0))
            A(pk("fma", n, UI(t), C2, n, bsel=1, neg_b=True))
            A(pk("mul", UI(t), UI(t), C2, bsel=0))
            A(pk("fma", UI(t), UR(t), C2, UI(t), bsel=1))
        cmul(A, 44, C2, 40)
        cmul(A, 46, C2, 32)
    if "lowp" in OPT: A("s_setprio 0")
    ST()
    A("s_lshl_b32 s9, s3, 13")
    for i in range(4):
        A(f"s_add_u32 m0, s9, {i*1024}")
        A(f"s_mov_b32 s8, {i*16384}")
        A("buffer_load_dwordx4 v52, s[76:79], s8 offen lds")
    for q in range(2):
        A(f"global_load_ushort v{9+q}, v54, {sp('Dskip')} offset:{q*64}")
    if SNT:
        for i in range(4): A(f"v_mov_b32 v{24+i}, -1")
        for i in range(NPQ): A(f"buffer_store_dwordx4 v[24:27], v59, s[92:95], s{74 if i < 4 else 75} offen offset:{(i & 3)*1024} sc1")
    if "pollfirst" not in OPT: scaling()
    for k in range(16):
        A(f"v_subrev_u32 v{128+k}, {(1+2*k)*8192:#x}, v50")
    ST()
    A(f"s_waitcnt vmcnt({7 + NPQ if SNT else 7})")
    spin_all(A, "c_init", 52, "buffer_load_dword v20, v21, s[64:67], 0 offen sc1", "15", pre="v_and_b32 v52, 15, v20")
    local_check(A, 20, 52, 12, 11)
    A("s_cselect_b32 s14, 0, 1")
    if "nolocal" in OPT: A("s_mov_b32 s14, 0")
    for k in range(16):
        A(f"buffer_load_dwordx2 {vr(EL+2*k,2)}, v{128+k}, s[56:59], 0 offen sc1")
    if "pollfirst" in OPT: scaling()
    XP = list(range(73, 89))
    XDP = [89, 90, 91, 92, 93, 94, 95, 54, 55, 56, 57, 58, 59, 61, 5, 12]
    A(f"s_waitcnt vmcnt({16 + NPQ if SNT else 16})")
    XT = [160 + i for i in range(16)] + [73 + i for i in range(16)]
    for nt in range(2):
        for r in range(16): A(f"ds_read_u16 v{XT[nt*16+r]}, v53 offset:{r*128+nt*64}")
    A("s_waitcnt lgkmcnt(0)")
    for m in range(8): A(f"v_lshl_or_b32 v{XP[8+m]}, v{XT[16+2*m+1]}, 16, v{XT[16+2*m]}" if False else f"v_lshl_or_b32 v{64+m}, v{XT[16+2*m+1]}, 16, v{XT[16+2*m]}")
    for m in range(8): A(f"v_lshl_or_b32 v{XP[m]}, v{XT[2*m+1]}, 16, v{XT[2*m]}")
    for m in range(8): A(f"v_mov_b32 v{XP[8+m]}, v{64+m}")
    BD2 = 32
    A("s_lshl_b32 s11, s3, 13")
    A("v_lshl_add_u32 v16, v6, 11, s11")
    A("v_lshl_add_u32 v16, v4, 6, v16")
    A("v_bfe_u32 v17, v1, 1, 2")
    for q in range(4):
        A(f"v_xor_b32 v18, {q}, v17")
        A(f"v_lshl_add_u32 v{64+q}, v18, 4, v16")
    A("v_mov_b32 v31, 1")
    A("v_bfe_u32 v16, v1, 2, 2")
    A("v_lshl_add_u32 v16, v6, 3, v16")
    A("v_and_b32 v24, 1, v1")
    A("v_bfe_u32 v18, v1, 4, 1")
    A("v_lshl_add_u32 v24, v24, 1, v18")
    A("v_bfe_u32 v18, v16, 1, 2")
    A("v_xor_b32 v24, v24, v18")
    A("v_lshlrev_b32 v24, 4, v24")
    A("v_lshl_add_u32 v24, v16, 6, v24")
    A("v_bfe_u32 v18, v1, 1, 1")
    A("v_lshl_add_u32 v24, v18, 3, v24")
    A("v_xor_b32 v25, 32, v24")
    A("v_add_u32 v25, 256, v25")
    A("v_add_u32 v68, s11, v24")
    A("v_add_u32 v69, s11, v25")
    A("s_lshl_b32 s11, s4, 7")
    A("s_lshl_b32 s12, s6, 6")
    A("s_add_u32 s11, s11, s12")
    A("s_and_b32 s12, s5, 7")
    A("s_lshl_b32 s12, s12, 2")
    A("s_add_u32 s11, s11, s12")
    A("s_add_u32 s11, s11, s7")
    A("s_lshl_b32 s11, s11, 12")
    A("s_lshr_b32 s13, s5, 3")
    A("s_lshl_b32 s13, s13, 11")
    A("s_add_u32 s11, s11, s13")
    A("v_lshl_add_u32 v72, v1, 4, s11")
    A(f"v_mov_b32 v20, {LFLAG:#x}")
    A("s_lshl_b32 s6, s4, 2")
    A("s_add_u32 s6, s6, s3")
    A("s_lshr_b32 s7, s3, 1")
    A("s_lshl_b32 s7, s7, 13")
    A("s_and_b32 s8, s3, 1")
    A("s_lshl_b32 s8, s8, 11")
    A("s_add_u32 s7, s7, s8")
    A("v_add_u32 v70, s7, v24")
    A("v_add_u32 v71, s7, v25")
    A("s_lshl_b32 s7, s6, 17")
    A("s_add_u32 s7, s7, s13")
    A("v_lshl_add_u32 v3, v1, 4, s7")
    A("v_add_u32 v2, 0x1000, v3")
    A(f"v_lshlrev_b32 v14, 7, v4")
    A(f"v_add_u32 v14, {CRING:#x}, v14")
    for ks in range(4):
        A(f"v_xor_b32 v16, {2*ks}, v11")
        A(f"v_lshl_add_u32 v{BD2+ks}, v16, 4, v14")
    A("s_lshr_b32 s7, s6, 1")
    A("s_lshl_b32 s7, s7, 12")
    A("s_add_u32 s7, s7, s13")
    A("v_bfe_u32 v16, v1, 1, 3")
    if ORD:
        A("v_subrev_u32 v14, 1, v16")
        A("v_cmp_le_u32 vcc, s15, v14")
        A("v_cndmask_b32 v14, v14, v16, vcc")
        A("v_mov_b32 v19, s15")
        A("v_cmp_eq_u32 vcc, 0, v16")
        A("v_cndmask_b32 v16, v14, v19, vcc")
    else:
        A("v_add_u32 v16, s15, v16")
        A("v_and_b32 v16, 7, v16")
    A("v_and_b32 v14, 1, v1")
    A("v_lshl_add_u32 v16, v16, 1, v14")
    A("v_lshl_add_u32 v22, v16, 7, s7")
    srd(A, 64, "ws", 8192, WS_G)
    srd(A, 76, "out", 8 << 20)
    for i in range(8):
        A(f"s_mov_b32 s{80+i}, {i*4096}")
    A("s_lshl_b32 s7, s6, 5")
    A("v_lshl_add_u32 v7, v6, 4, s7")
    A("s_lshl_b32 s8, s5, 6")
    A("v_add_u32 v8, s8, v4")
    A("v_lshlrev_b32 v26, 12, v7")
    A("v_lshl_add_u32 v26, v8, 2, v26")
    A("v_add_u32 v27, 0x8000, v26")
    A("v_lshlrev_b32 v7, 2, v7")
    A("v_mul_u32_u24 v21, 272, v4")
    A("v_lshl_add_u32 v21, v6, 5, v21")
    A("s_lshl_b32 s8, s3, 6")
    A("v_add_u32 v21, s8, v21")
    A(f"s_add_u32 s8, s73, {PF_OFF:#x}")
    A("v_mov_b32 v29, s8")
    A("v_lshlrev_b32 v28, 4, v1")
    A("v_mov_b32 v23, 1")
    A(f"s_mov_b32 s88, {SPIN}")
    A("c_poll:")
    A("s_waitcnt vmcnt(0)")
    A("v_mov_b32 v52, 0")
    for k in range(16):
        A(f"v_and_b32 v{144+k}, 1, v{EL+2*k}")
    for k in range(0, 16, 2):
        A(f"v_add3_u32 v52, v52, v{144+k}, v{145+k}")
    A("v_cmp_ne_u32 vcc, v52, v51")
    A("s_cmp_eq_u64 vcc, 0")
    A("s_cbranch_scc1 c_polled")
    A("s_sub_u32 s88, s88, 1")
    A("s_cbranch_scc1 c_polled")
    A(f"s_sleep {opt('psleep', SLEEP)}")
    for k in range(16):
        A(f"v_cmp_eq_u32 vcc, 0, v{144+k}")
        A("s_mov_b64 exec, vcc")
        A(f"buffer_load_dwordx2 {vr(EL+2*k,2)}, v{128+k}, s[56:59], 0 offen sc1")
        A("s_mov_b64 exec, -1")
    A("s_branch c_poll")
    A("c_polled:")
    if "lowp" in OPT: A(f"s_setprio {opt('prio', 2)}")
    ST()
    g = EL + 30
    G = [52, 54]
    for k in range(14, -1, -1):
        n = G[k & 1]
        A(pk("fma", n, g, MU8, EL+2*k, bsel=0))
        A(pk("fma", n, g, MU8, n, bsel=1, asel="swap", neg_lo=[1,0,0]))
        g = n
    A("v_mov_b32 v54, v52\nv_mov_b32 v55, v53\nv_mov_b32 v56, v52\nv_mov_b32 v57, v53")
    A("v_permlane32_swap_b32 v54, v56")
    A("v_permlane32_swap_b32 v55, v57")
    cmul(A, 58, MU4, 56, add=54)
    cmul(A, 52, 48, 58, add=44)
    cmul(A, 54, MU, 52, add=46)
    A("v_mov_b32 v56, v52\nv_mov_b32 v57, v54\nv_mov_b32 v58, v53\nv_mov_b32 v59, v55")
    cr, ci = 56, 58
    def packhalf(hf):
        for plane in range(2):
            for e in range(2):
                d = 128 + ((plane*2 + e)*2 + hf)*4
                for m in range(4):
                    t = hf*8 + 2*m
                    if plane == 0: A(f"v_cvt_pk_bf16_f32 v{d+m}, v{UR2+2*t+e}, v{UR2+2*(t+1)+e}")
                    else: A(f"v_cvt_pk_bf16_f32 v{d+m}, -v{UI(t)+e}, -v{UI(t+1)+e}")
                A(f"ds_write_b128 v{64+2*e+hf}, {vr(d,4)} offset:{plane*4096}")
    for t in range(16):
        nr, ni = UR2 + 2*t, UI(t)
        A(pk("fma", nr, cr, LAM, nr, bsel=0))
        A(pk("fma", ni, ci, LAM, ni, bsel=0))
        A(pk("fma", nr, ci, LAM, nr, bsel=1, neg_b=True))
        A(pk("fma", ni, cr, LAM, ni, bsel=1))
        cr, ci = nr, ni
        if t == 7: packhalf(0)
    packhalf(1)
    gen.SAFE_PK[0] = False
    EARLY = opt("early", 0)
    HFL = "buffer_load_dword v19, v22, s[68:71], 0 offen sc1"
    if EARLY: A(HFL)
    ST()
    A("s_waitcnt lgkmcnt(0)")
    lds_inc(A, 20, 31, 12)
    AF = 160
    idx = 0
    for tblk in range(2):
        for plane in range(2):
            for ksl in range(2):
                d = AF + idx*4
                o = plane*4096 + tblk*2048 + ksl*1024
                A(f"ds_read_b64_tr_b16 {vr(d,2)}, v68 offset:{o}")
                A(f"ds_read_b64_tr_b16 {vr(d+2,2)}, v69 offset:{o}")
                idx += 1
    V = VQ(A)
    idx = 0
    for tblk in range(2):
        for plane in range(2):
            A(f"s_mov_b32 s12, {tblk*131072 + plane*8192:#x}")
            for ksl in range(2):
                d = AF + idx*4
                A(f"s_waitcnt lgkmcnt({min(15, 14 - 2*idx)})")
                V.issue(f"buffer_store_dwordx4 {vr(d,4)}, v72, s[60:63], s12 offen offset:{ksl*1024} sc1", "hst")
                idx += 1
    ACC2 = 96
    FB2 = 224
    GR = 36
    ST2 = Stamper(A, 1, 62)
    A(f"s_mov_b32 s89, {SPIN*4}")
    A("c_lw:")
    A("ds_read_b128 v[52:55], v20 offset:4")
    A("s_waitcnt lgkmcnt(0)")
    A("v_min_u32 v54, v54, v55")
    A("v_min_u32 v53, 1, v53")
    A("v_readfirstlane_b32 s8, v54")
    A("v_readfirstlane_b32 s9, v53")
    A("s_add_u32 s8, s8, s9")
    A("s_cmp_ge_u32 s8, 5")
    A("s_cbranch_scc1 c_lwok")
    A("s_sub_u32 s89, s89, 1")
    A("s_cbranch_scc0 c_lw")
    A("c_lwok:")
    L = LQ(A)
    for st in range(2):
        for ks in range(4):
            d = AF + (st*4 + ks)*4
            o = (ks >> 1)*16384 + st*4096 + (ks & 1)*1024
            L.issue(f"ds_read_b64_tr_b16 {vr(d,2)}, v70 offset:{o}")
            L.issue(f"ds_read_b64_tr_b16 {vr(d+2,2)}, v71 offset:{o}", ("A", st, ks))
    A("s_mov_b32 s13, 0")
    if EARLY:
        A("s_waitcnt vmcnt(8)")
        A("v_cmp_eq_u32 s[90:91], 1, v19")
        A("s_and_b32 s88, s90, 0xc")
        A("s_cmp_eq_u32 s88, 0xc")
        A("s_cbranch_scc0 c_noearly")
        A("s_mov_b32 s13, 1")
        for z in (2, 3):
            tile_of(A, z >> 1, 11)
            A("s_lshl_b32 s11, s11, 14")
            if z & 1: A("s_add_u32 s11, s11, 8192")
            for k2 in range(4):
                A(f"buffer_load_dwordx4 {vr(AF + (z*4 + k2)*4,4)}, v{3 if k2 < 2 else 2}, s[60:63], s11 offen offset:{(k2 & 1)*1024} sc1")
        A("c_noearly:")
    for q in range(4):
        V.issue(f"buffer_load_dwordx4 {vr(GR+q*4,4)}, v7, s[64:67], 0 offen offset:{q*16} sc1", "g")
    ST()
    slowp = []
    def need(i):
        m = ((1 << (2*i + 2)) - 1) & ~3
        name = f"c_n{len(slowp)}"
        A(f"s_and_b32 s88, s90, {m:#x}")
        A(f"s_cmp_eq_u32 s88, {m:#x}")
        A(f"s_cbranch_scc0 {name}_s")
        A(f"{name}:")
        slowp.append((name, m))
    alast = [None]
    def aload(st, ks):
        if alast[0] != st:
            alast[0] = st
            tile_of(A, st >> 1, 11)
            A("s_lshl_b32 s11, s11, 14")
            if st & 1: A("s_add_u32 s11, s11, 8192")
        r = AF + ((st % PD)*4 + ks)*4
        V.issue(f"buffer_load_dwordx4 {vr(r,4)}, v{3 if ks < 2 else 2}, s[60:63], s11 offen offset:{(ks & 1)*1024} sc1", ("A", st, ks))
    def rd2(st, ks, nt, slot):
        return f"ds_read_b128 {vr(FB2+slot*4,4)}, v{BD2+ks} offset:{(st % NS2)*16384 + nt*4096}"
    def mf2(st, ks, nt, slot):
        a = AF + ((st % PD)*4 + ks)*4
        c = vr(ACC2+nt*16, 16)
        return f"v_mfma_f32_32x32x16_bf16 {c}, {vr(a,4)}, {vr(FB2+slot*4,4)}, {'0' if (st == 0 and ks == 0) else c}"
    def await_(st, ks):
        if st < 2: L.wait(("A", st, ks))
        else: V.wait(("A", st, ks))
    ST2()
    for nt in range(4): L.issue(rd2(0, 0, nt, nt), (0, 0, nt))
    HFK = opt("hfk", 3)
    N1K = opt("n1k", 2)
    XPS = opt("xps", 1)
    xfill = []
    def xpart(A=A):
        A("v_lshlrev_b32 v9, 16, v9")
        A("v_lshlrev_b32 v10, 16, v10")
        A("s_mov_b32 s12, 0xffff0000")
        TT = [13, 15, 16, 17, 18, 24, 25, 8]
        for k0 in range(0, 16, 4):
            ch = []
            for k in range(k0, k0 + 4):
                t0, t1 = TT[2*(k & 3)], TT[2*(k & 3) + 1]
                dk = 9 + (k >> 3)
                ch.append([f"v_lshlrev_b32 v{t0}, 16, v{XP[k]}", f"v_and_b32 v{t1}, s12, v{XP[k]}", f"v_mul_f32 v{t0}, v{t0}, v{dk}", f"v_mul_f32 v{t1}, v{t1}, v{dk}",
                           f"v_cvt_pk_bf16_f32 v{XDP[k]}, v{t0}, v{t1}"])
            zip_chains(A, ch)
    if XPS == 2: xpart(xfill.append)
    DIST = opt("dist", 3)
    assert DIST in (2, 3, 4)
    polls = [0]
    def hfpoll():
        polls[0] += 1
        V.issue(HFL, ("hf", polls[0]))
    def hfseen():
        V.wait(("hf", polls[0]))
        A("v_cmp_eq_u32 s[90:91], 1, v19")
    FS = opt("fs", 4)
    assert FS == 1 or (FS in (3, 4) and DIST >= 3)
    for st in range(N2 - FS):
        for ks in range(4):
            buf = ks & 1
            if ks == 3 and st >= FBAR: A("s_barrier")
            if ks == 3 and st == 1 and FBAR > 1:
                lds_spin(A, "c_cf2", 20, 20, 14, 4); L.done = L.n
            ns, nks = (st, ks+1) if ks < 3 else (st+1, 0)
            await_(st, ks)
            for nt in range(4):
                L.wait((st, ks, nt))
                A(mf2(st, ks, nt, buf*4 + nt))
                L.issue(rd2(ns, nks, nt, (buf ^ 1)*4 + nt), (ns, nks, nt))
                for z in range(opt("xfm", 3)):
                    if xfill: A(xfill.pop(0))
            if st == 0 and ks == HFK:
                if EARLY:
                    cnt = V.n - V.tags["hst"]
                    A("s_cmp_eq_u32 s13, 1")
                    A("s_cbranch_scc1 c_hw_e")
                    A(f"s_waitcnt vmcnt({cnt})")
                    A("s_branch c_hw_d")
                    A("c_hw_e:")
                    A(f"s_waitcnt vmcnt({cnt + 8})")
                    A("c_hw_d:")
                    V.done = V.tags["hst"]
                else: V.wait("hst")
                A("s_cmp_eq_u32 s14, 1")
                A("s_cbranch_scc1 c_hfs_l")
                A("buffer_store_dword v23, v60, s[68:71], 0 offen sc1")
                A("s_branch c_hfs_e")
                A("c_hfs_l:")
                A("buffer_store_dword v23, v60, s[68:71], 0 offen")
                A("c_hfs_e:")
                V.n += 1
                if SNT: V.issue("buffer_store_dword v23, v30, s[68:71], 0 offen sc1")
                hfpoll()
                if "fine3" in OPT: ST2()
            if st == 1 and ks == opt("rp", -1): hfpoll()
            if st == 1 and ks == N1K:
                if "fine3" in OPT: ST2()
                if EARLY:
                    A("s_cmp_eq_u32 s13, 1")
                    A("s_cbranch_scc1 c_skipy")
                hfseen(); need(1)
                if "fine3" in OPT: ST2()
                for z in (2, 3):
                    for k2 in range(4): aload(z, k2)
                if EARLY:
                    A("c_skipy:")
                    V.done = min(V.done, V.tags[("hf", polls[0])] - 1)
                hfpoll()
                if XPS == 0: xpart()
            if st == 1 and ks == 3 and XPS == 1: xpart()
            if st >= 2:
                if st == 2 and ks == 0:
                    if "fine3" in OPT: ST2()
                    hfseen(); need(2)
                    if "fine3" in OPT: ST2()
                    for z in range(4, 2 + DIST):
                        for k2 in range(4): aload(z, k2)
                    hfpoll()
                z = st + DIST
                if z < N2:
                    if ks == 0 and z % 2 == 0 and z // 2 >= 3:
                        if z // 2 == 3: hfseen()
                        if not (int(OPT.get("abl", 0)) & 2): need(z // 2)
                    aload(z, ks)
            if SNT and st == opt("pfl", 5) and ks == 0: V.issue("buffer_load_dword v14, v29, s[68:71], 0 offen sc1", "pf")
            if SNT and st == opt("pfc", 8) and ks == 0:
                V.wait("pf")
                A("v_cmp_ne_u32 vcc, 1, v14")
                A("s_cmp_eq_u64 vcc, 0")
                A("s_cbranch_scc0 c_pfs")
                A("c_pfr:")
            if "fine3" in OPT:
                if st in (1, 2, 3, 4) and ks == 3: ST2()
                if st == 2 and ks == 0: ST2()
            elif "fine4" in OPT:
                if st == N2 - FS - 1 and ks == 3: ST2()
            elif (st % 2 == 1 if 'fine2' not in OPT else True) and ks == 3: ST2()
    f0 = N2 - FS
    S_ = lambda z: [(z, ks, nt) for ks in range(4) for nt in (0, 1)]
    K_ = lambda z: [(z, ks, nt) for ks in range(4) for nt in (2, 3)]
    if FS == 1: order = S_(15) + K_(15); nsend = 8
    elif FS == 3: order = S_(13) + ["b13"] + S_(14) + K_(13) + ["b14"] + S_(15) + K_(14) + K_(15); nsend = 32
    else:
        BP = opt("bp", 4)
        order = []
        if opt("fso", 1) == 0:
            for z in (12, 13, 14): order += S_(z)[:BP] + [f"b{z}"] + S_(z)[BP:]
            order += S_(15) + K_(12) + K_(13) + K_(14) + K_(15); nsend = 32
        else:
            order = S_(12)[:BP] + ["b12"] + S_(12)[BP:] + S_(13) + K_(12)[:BP] + ["b13"] + K_(12)[BP:] + S_(14)[:BP] + ["b14"] + S_(14)[BP:] + S_(15) + K_(13) + K_(14) + K_(15)
            nsend = 40
        for z in range(N2):
            if ("A", z, 0) not in V.tags and z >= 2:
                for k2 in range(4): aload(z, k2)
    mfs = [x for x in order if not isinstance(x, str)]
    slot = {(f0, 0, nt): nt for nt in range(4)}
    pend = [x for x in mfs if x not in slot]
    free = [4, 5, 6]
    pub = [f0]
    def fill():
        while pend and free and pend[0][0] <= pub[0]:
            x = pend.pop(0); sl = free.pop(0); slot[x] = sl
            L.issue(rd2(x[0], x[1], x[2], sl), x)
    fill()
    pst = [f"buffer_store_dwordx4 {vr(ACC2+4*i,4)}, v28, s[92:95], s{74 if i < 4 else 75} offen offset:{(i & 3)*1024} sc1" for i in range(NPQ)]
    pcv = [f"v_cvt_pk_bf16_f32 v{ACC2+k}, v{ACC2+2*k}, v{ACC2+2*k+1}" for k in range(16)] if PB else []
    i = 0; prev = None
    for x in order:
        if isinstance(x, str):
            A("s_barrier"); pub[0] += 1; fill(); continue
        V.wait(("A", x[0], x[1]))
        if x not in slot: fill()
        L.wait(x)
        A(mf2(x[0], x[1], x[2], slot[x]))
        free.append(slot[prev] if prev is not None else 7)
        prev = x
        fill()
        i += 1
        SP = opt("sp", 0)
        if i >= nsend + 3 and pcv:
            for z in range(4): A(pcv.pop(0))
            V.issue(pst.pop(0), "ps")
        elif i >= nsend + 3:
            if SP == 0:
                for z in range(2):
                    if pst: V.issue(pst.pop(0), "ps")
            elif (i - nsend - 3) % SP == 0 and pst: V.issue(pst.pop(0), "ps")
        if "fine4" in OPT and i % 8 == 0: ST2()
    while pst: V.issue(pst.pop(0), "ps")
    ST2()
    YR, OM, GF, T0, RV = 160, 176, 192, 208, ACC2
    KEEP = ACC2 + 32
    PFL = "buffer_load_dword v19, v29, s[68:71], 0 offen sc1"
    A("s_mov_b32 s12, 0xffff0000")
    for nt in range(2):
        for hf in range(2): A(f"ds_read_b128 {vr(YR+nt*8+hf*4,4)}, v21 offset:{nt*32*272 + hf*16}")
    for r in range(16):
        A(f"v_lshlrev_b32 v{GF+r}, 16, v{GR+r}")
        A(f"v_and_b32 v{OM+r}, s12, v{GR+r}")
    A("s_waitcnt lgkmcnt(0)")
    if SNT:
        RCG = opt("rcg", 2)
        def recv_full():
            for i in range(NPQ):
                A(f"buffer_load_dwordx4 {vr(RV+4*i,4)}, v28, s[92:95], s{90 if i < 4 else 91} offen offset:{(i & 3)*1024} sc1")
        first = [True]
        def recv():
            if "lp" in OPT and first[0]:
                first[0] = False
                A(f"buffer_load_dwordx4 {vr(RV+4*NPQ-4,4)}, v28, s[92:95], s{90 if PB else 91} offen offset:3072 sc1")
            else: recv_full()
        A("s_lshl_b32 s90, s72, 6")
        A("s_add_u32 s91, s90, 4096")
        gi = 0
        for nt in range(2):
            for m0 in range(0, 8, 4):
                if gi == RCG: recv()
                gi += 1
                ch = []
                for m in range(m0, m0 + 4):
                    b_ = T0 + (m & 3)*6
                    yy, xf, tm = b_, b_ + 2, b_ + 4
                    xp = XP[nt*8+m]; xd = XDP[nt*8+m]; ka = KEEP + nt*16 + 2*m
                    ch.append([f"v_lshlrev_b32 v{yy}, 16, v{YR+nt*8+m}", f"v_and_b32 v{yy+1}, s12, v{YR+nt*8+m}",
                               f"v_lshlrev_b32 v{xf}, 16, v{xp}", f"v_and_b32 v{xf+1}, s12, v{xp}",
                               f"v_mul_f32 v{yy}, v{xf}, v{yy}", f"v_mul_f32 v{yy+1}, v{xf+1}, v{yy+1}",
                               f"v_lshlrev_b32 v{xf}, 16, v{xd}", f"v_and_b32 v{xf+1}, s12, v{xd}",
                               f"v_cvt_pk_bf16_f32 v{tm}, v{yy}, v{yy+1}",
                               f"v_add_f32 v{ka}, v{ka}, v{xf}", f"v_add_f32 v{ka+1}, v{ka+1}, v{xf+1}",
                               f"v_lshlrev_b32 v{yy}, 16, v{tm}", f"v_and_b32 v{yy+1}, s12, v{tm}",
                               f"v_mul_f32 v{yy}, v{yy}, v{OM+2*m}", f"v_mul_f32 v{yy+1}, v{yy+1}, v{OM+2*m+1}",
                               f"v_cvt_pk_bf16_f32 v{tm}, v{yy}, v{yy+1}", f"v_lshlrev_b32 v{yy}, 16, v{tm}", f"v_and_b32 v{yy+1}, s12, v{tm}",
                               f"v_fma_f32 v{ka}, v{ka}, v{GF+2*m}, v{yy}", f"v_fma_f32 v{ka+1}, v{ka+1}, v{GF+2*m+1}, v{yy+1}"])
                zip_chains(A, ch)
        if gi == RCG: recv()
        ST2()
        if "lp" in OPT:
            LP = f"buffer_load_dwordx4 {vr(RV+4*NPQ-4,4)}, v28, s[92:95], s{90 if PB else 91} offen offset:3072 sc1"
            A(f"s_mov_b32 s89, {SPIN}")
            A("c_lp:")
            A("s_waitcnt vmcnt(0)")
            A(f"v_cmp_eq_u32 vcc, -1, v{RV+4*NPQ-1}")
            A("s_cmp_eq_u64 vcc, 0")
            A("s_cbranch_scc1 c_lpok")
            A("s_sub_u32 s89, s89, 1")
            A("s_cbranch_scc1 c_lpok")
            A(LP)
            A("s_branch c_lp")
            A("c_lpok:")
            recv_full()
        A(f"s_mov_b32 s89, {SPIN}")
        A("c_rc:")
        A("s_waitcnt vmcnt(0)")
        A(f"v_max3_u32 v19, v{RV}, v{RV+1}, v{RV+2}")
        for i in range(3, 4*NPQ-1, 2): A(f"v_max3_u32 v19, v19, v{RV+i}, v{RV+i+1}")
        A(f"v_max_u32 v19, v19, v{RV+4*NPQ-1}")
        A("v_cmp_eq_u32 vcc, -1, v19")
        A("s_cmp_eq_u64 vcc, 0")
        A("s_cbranch_scc1 c_rcok")
        A("s_sub_u32 s89, s89, 1")
        A("s_cbranch_scc1 c_rcok")
        recv()
        A("s_branch c_rc")
        A("c_rcok:")
        ST2()
        for nt in range(2):
            for r in range(16):
                a = KEEP + nt*16 + r
                if PB:
                    w = RV + nt*8 + (r >> 1); t = T0 + (r & 3)
                    A(f"v_and_b32 v{t}, s12, v{w}" if r & 1 else f"v_lshlrev_b32 v{t}, 16, v{w}")
                    A(f"v_fma_f32 v{a}, v{t}, v{GF+r}, v{a}")
                else: A(f"v_fma_f32 v{a}, v{RV+nt*16+r}, v{GF+r}, v{a}")
                A(f"buffer_store_dword v{a}, v{26 if r < 8 else 27}, s[76:79], s{80+(r&7)} offen offset:{nt*128} nt")
        ST2()
    else:
        assert not PB
        PFG = opt("pfg", 2)
        gi = 0
        def pfstore():
            A("s_waitcnt vmcnt(0)")
            A("buffer_store_dword v23, v30, s[68:71], 0 offen sc1")
            A(PFL)
        RCG = opt("rcg", 3)
        def recv():
            A("s_lshl_b32 s12, s72, 6")
            A("s_add_u32 s13, s12, 4096")
            for i in range(8):
                A(f"buffer_load_dwordx4 {vr(RV+4*i,4)}, v28, s[92:95], s{12 if i < 4 else 13} offen offset:{(i & 3)*1024} sc1")
            A("s_mov_b32 s12, 0xffff0000")
        A("s_mov_b32 s90, 0")
        for nt in range(2):
            for m0 in range(0, 8, 4):
                if gi == PFG: pfstore()
                if gi == RCG and RCG > PFG:
                    A("s_waitcnt vmcnt(0)")
                    A("v_cmp_ne_u32 vcc, 1, v19")
                    A("s_cmp_eq_u64 vcc, 0")
                    A("s_cbranch_scc0 c_norc")
                    recv()
                    A("s_mov_b32 s90, 1")
                    A("c_norc:")
                gi += 1
                ch = []
                for m in range(m0, m0 + 4):
                    b_ = T0 + (m & 3)*6
                    yy, xf, tm = b_, b_ + 2, b_ + 4
                    xp = XP[nt*8+m]; xd = XDP[nt*8+m]; ka = KEEP + nt*16 + 2*m
                    ch.append([f"v_lshlrev_b32 v{yy}, 16, v{YR+nt*8+m}", f"v_and_b32 v{yy+1}, s12, v{YR+nt*8+m}",
                               f"v_lshlrev_b32 v{xf}, 16, v{xp}", f"v_and_b32 v{xf+1}, s12, v{xp}",
                               f"v_mul_f32 v{yy}, v{xf}, v{yy}", f"v_mul_f32 v{yy+1}, v{xf+1}, v{yy+1}",
                               f"v_lshlrev_b32 v{xf}, 16, v{xd}", f"v_and_b32 v{xf+1}, s12, v{xd}",
                               f"v_cvt_pk_bf16_f32 v{tm}, v{yy}, v{yy+1}",
                               f"v_add_f32 v{ka}, v{ka}, v{xf}", f"v_add_f32 v{ka+1}, v{ka+1}, v{xf+1}",
                               f"v_lshlrev_b32 v{yy}, 16, v{tm}", f"v_and_b32 v{yy+1}, s12, v{tm}",
                               f"v_mul_f32 v{yy}, v{yy}, v{OM+2*m}", f"v_mul_f32 v{yy+1}, v{yy+1}, v{OM+2*m+1}",
                               f"v_cvt_pk_bf16_f32 v{tm}, v{yy}, v{yy+1}", f"v_lshlrev_b32 v{yy}, 16, v{tm}", f"v_and_b32 v{yy+1}, s12, v{tm}",
                               f"v_fma_f32 v{ka}, v{ka}, v{GF+2*m}, v{yy}", f"v_fma_f32 v{ka+1}, v{ka+1}, v{GF+2*m+1}, v{yy+1}"])
                zip_chains(A, ch)
        if gi == PFG: pfstore()
        ST2()
        A("s_cmp_eq_u32 s90, 1")
        A("s_cbranch_scc1 c_havercv")
        A(PFL)
        A("s_waitcnt vmcnt(0)")
        spin_all(A, "c_pf", 19, PFL)
        recv()
        A("c_havercv:")
        ST2()
        for nt in range(2):
            for r in range(16):
                i = (nt*16 + r) // 4
                if r % 4 == 0: A(f"s_waitcnt vmcnt({7 - i + nt*16 + r})")
                a = KEEP + nt*16 + r
                A(f"v_fma_f32 v{a}, v{RV+nt*16+r}, v{GF+r}, v{a}")
                A(f"buffer_store_dword v{a}, v{26 if r < 8 else 27}, s[76:79], s{80+(r&7)} offen offset:{nt*128} nt")
        ST2()
    if "leak" in OPT:
        i = int(OPT["leak"])
        A("s_cmp_lg_u32 s2, 8")
        A("s_cbranch_scc1 c_noleak")
        A("s_cmp_lg_u32 s3, 0")
        A("s_cbranch_scc1 c_noleak")
        A("v_readlane_b32 s8, v63, 0")
        A(f"v_readlane_b32 s9, v{63 if i < 100 else 62}, {i % 100}")
        A("s_sub_u32 s9, s9, s8")
        A("s_memrealtime s[10:11]")
        A("s_waitcnt lgkmcnt(0)")
        A("s_add_u32 s9, s9, s10")
        A("c_leak:")
        A("s_memrealtime s[10:11]")
        A("s_waitcnt lgkmcnt(0)")
        A("s_sub_u32 s12, s9, s10")
        A("s_cmp_gt_i32 s12, 0")
        A("s_cbranch_scc1 c_leak")
        A("c_noleak:")
    if "leak2" in OPT:
        X, i = str(OPT["leak2"]).split(":"); i = int(i)
        if X != "all":
            A(f"s_cmp_lg_u32 s2, {int(X)}")
            A("s_cbranch_scc1 c_noleak2")
        A("s_cmp_lg_u32 s3, 0")
        A("s_cbranch_scc1 c_noleak2")
        A(f"v_readlane_b32 s9, v{63 if i < 100 else 62}, {i % 100}")
        A("s_add_u32 s9, s9, 4000")
        A("c_leak2:")
        A("s_memrealtime s[10:11]")
        A("s_waitcnt lgkmcnt(0)")
        A("s_sub_u32 s12, s9, s10")
        A("s_cmp_gt_i32 s12, 0")
        A("s_cbranch_scc1 c_leak2")
        A("c_noleak2:")
    ST.flush()
    ST2.flush()
    A("s_endpgm")
    if SNT:
        A("c_pfs:")
        A(f"s_mov_b32 s89, {SPIN}")
        A("c_pfs_l:")
        A("s_waitcnt vmcnt(0)")
        A("buffer_load_dword v14, v29, s[68:71], 0 offen sc1")
        A("s_waitcnt vmcnt(0)")
        A("v_cmp_ne_u32 vcc, 1, v14")
        A("s_cmp_eq_u64 vcc, 0")
        A("s_cbranch_scc1 c_pfr")
        A("s_sub_u32 s89, s89, 1")
        A("s_cbranch_scc1 c_pfr")
        A("s_branch c_pfs_l")
    for name, m in slowp:
        A(f"{name}_s:")
        A(f"s_mov_b32 s89, {SPIN}")
        A(f"{name}_l:")
        A("s_waitcnt vmcnt(0)")
        A(HFL)
        A("s_waitcnt vmcnt(0)")
        A("v_cmp_eq_u32 s[90:91], 1, v19")
        A(f"s_and_b32 s88, s90, {m:#x}")
        A(f"s_cmp_eq_u32 s88, {m:#x}")
        A(f"s_cbranch_scc1 {name}")
        A("s_sub_u32 s89, s89, 1")
        A(f"s_cbranch_scc1 {name}")
        A(f"s_branch {name}_l")

def helper(A):
    V = VQ(A)
    VA, VB = 8, 12
    ST = Stamper(A, 0, 58)
    STH = Stamper(A, 1, 59)
    ST()
    if "hprio1" in OPT: A(f"s_setprio {OPT['hprio1']}")
    A("s_sub_u32 s3, s3, 4")
    A("s_lshr_b32 s6, s3, 1")
    A("s_and_b32 s7, s3, 1")
    A("v_lshrrev_b32 v3, 5, v1")
    A("v_lshlrev_b32 v3, 5, v3")
    A("v_bfe_u32 v4, v1, 3, 1")
    A("v_lshl_add_u32 v3, v4, 4, v3")
    A("v_bfe_u32 v4, v1, 4, 1")
    A("v_add_u32 v3, v3, v4")
    A("s_lshl_b32 s8, s4, 7")
    A("s_lshl_b32 s9, s6, 6")
    A("s_add_u32 s8, s8, s9")
    A("s_lshl_b32 s9, s7, 3")
    A("s_add_u32 s8, s8, s9")
    A("v_add_u32 v3, s8, v3")
    A("v_lshlrev_b32 v3, 11, v3")
    A("v_and_b32 v4, 7, v1")
    A("v_lshrrev_b32 v5, 4, v1")
    A("v_xor_b32 v4, v4, v5")
    A("v_lshlrev_b32 v4, 4, v4")
    A(f"v_add_u32 v{VA}, v3, v4")
    A("s_lshl_b32 s10, s3, 12")
    A("s_lshr_b32 s90, s55, 2")
    A("s_lshl_b32 s90, s90, 1")
    A("s_and_b32 s91, s55, 3")
    A("s_lshl_b32 s91, s91, 2")
    A("s_add_u32 s90, s90, s91")
    A("s_and_b32 s11, s90, 15")
    A("s_lshl_b32 s11, s11, 7")
    A("s_mov_b32 m0, s10")
    A(f"s_mov_b32 s58, {4<<20:#x}")
    A("s_mov_b32 s59, 0x20000")
    if "fine0" in OPT: STH()
    A("s_waitcnt lgkmcnt(0)")
    if "fine0" in OPT: STH()
    A(f"s_mov_b32 s56, s{P['x']}")
    A(f"s_mov_b32 s57, s{P['x']+1}")
    V.issue(f"buffer_load_dwordx4 v{VA}, s[56:59], s11 offen lds")
    A("v_xor_b32 v5, 64, v4")
    A(f"v_add_u32 v{VA+1}, v3, v5")
    A(f"v_add_u32 v{VA+1}, {4096-1024}, v{VA+1}")
    V.issue(f"buffer_load_dwordx4 v{VA+1}, s[56:59], s11 offen offset:1024 lds")
    A(f"v_add_u32 v{VA+2}, {2*(4096-1024)}, v{VA}")
    V.issue(f"buffer_load_dwordx4 v{VA+2}, s[56:59], s11 offen offset:2048 lds")
    A(f"v_add_u32 v{VA+3}, {2*(4096-1024)}, v{VA+1}")
    V.issue(f"buffer_load_dwordx4 v{VA+3}, s[56:59], s11 offen offset:3072 lds")
    A("s_lshl_b32 s8, s5, 6")
    A("s_lshl_b32 s9, s7, 5")
    A("s_add_u32 s8, s8, s9")
    A("v_lshrrev_b32 v6, 3, v1")
    A("v_add_u32 v7, s8, v6")
    A("v_lshlrev_b32 v7, 11, v7")
    A(f"v_add_u32 v{VB}, v7, v4")
    A("s_cmp_ge_u32 s3, 2")
    A(f"s_cselect_b32 s60, s{P['Bim']}, s{P['Bre']}")
    A(f"s_cselect_b32 s61, s{P['Bim']+1}, s{P['Bre']+1}")
    A(f"s_mov_b32 s62, {2<<20:#x}")
    A("s_mov_b32 s63, 0x20000")
    A("s_add_u32 m0, s10, 16384")
    A(f"v_add_u32 v{VB+1}, v7, v5")
    V.issue(f"buffer_load_dwordx4 v{VB}, s[60:63], s11 offen lds")
    A(f"v_add_u32 v{VB+1}, {16384-1024}, v{VB+1}")
    V.issue(f"buffer_load_dwordx4 v{VB+1}, s[60:63], s11 offen offset:1024 lds")
    A(f"v_add_u32 v{VB+2}, {2*(16384-1024)}, v{VB}")
    V.issue(f"buffer_load_dwordx4 v{VB+2}, s[60:63], s11 offen offset:2048 lds")
    A(f"v_add_u32 v{VB+3}, {2*(16384-1024)}, v{VB+1}")
    V.issue(f"buffer_load_dwordx4 v{VB+3}, s[60:63], s11 offen offset:3072 lds", ("S", 0))
    def issue(st, fill=0):
        slot = st % 3
        A(f"s_add_u32 s11, s90, {st}")
        A("s_and_b32 s11, s11, 15")
        A("s_lshl_b32 s11, s11, 7")
        A(f"s_add_u32 m0, s10, {slot*32768:#x}")
        for n in range(4):
            V.issue(f"buffer_load_dwordx4 v{VA+n}, s[56:59], s11 offen offset:{n*1024} lds")
            if fill: do_work(fill)
        A(f"s_add_u32 m0, s10, {slot*32768+16384:#x}")
        for n in range(4):
            V.issue(f"buffer_load_dwordx4 v{VB+n}, s[60:63], s11 offen offset:{n*1024} lds", ("S", st))
            if fill: do_work(fill)
    if "fine0" in OPT: STH()
    VC = 28
    A("s_and_b32 s8, s5, 7")
    A("s_lshl_b32 s8, s8, 6")
    A("s_lshl_b32 s9, s3, 4")
    A("s_add_u32 s8, s8, s9")
    A("v_add_u32 v7, s8, v6")
    A("v_lshlrev_b32 v7, 11, v7")
    A(f"v_add_u32 v{VC}, v7, v4")
    A(f"v_add_u32 v{VC+1}, v7, v5")
    A(f"v_add_u32 v{VC+1}, {16384-1024}, v{VC+1}")
    A("s_and_b32 s12, s55, 1")
    A("s_lshl_b32 s13, s54, 1")
    A("s_add_u32 s12, s12, s13")
    A("s_lshr_b32 s13, s55, 1")
    A("s_lshl_b32 s8, s2, 7")
    A(f"s_add_u32 s8, s8, {KF_OFF:#x}")
    A("v_mov_b32 v30, s8")
    A("s_lshl_b32 s88, s54, 5")
    A("s_add_u32 s88, s88, s55")
    A("s_lshl_b32 s8, s88, 7")
    A(f"s_add_u32 s8, s8, {YF_OFF:#x}")
    A("v_mov_b32 v31, s8")
    A("s_lshl_b32 s88, s88, 2")
    A("s_add_u32 s88, s88, s3")
    A("v_mov_b32 v2, 0")
    srd(A, 92, "ws", FLG_SZ, WS_FLG)
    A("s_lshl_b32 s8, s88, 12")
    A(f"s_load_dword s100, {sp('ssmk')}, s8")
    A("s_lshr_b32 s8, s88, 1")
    A("s_lshl_b32 s8, s8, 2")
    A(f"s_load_dword s101, {sp('ssmD')}, s8")
    V.issue("buffer_store_dword v2, v30, s[92:95], 0 offen sc1")
    V.issue("buffer_store_dword v2, v31, s[92:95], 0 offen sc1", "clr")
    if opt("pl", 1) >= 0: issue(1)
    if "fine0" in OPT: STH()
    KR, VR_, SK = 32, 208, 68
    XG, GW = 72, 88
    A("s_lshl_b32 s13, s13, 7")
    A("s_lshl_b32 s14, s3, 5")
    A("s_add_u32 s13, s13, s14")
    A("v_and_b32 v17, 31, v1")
    A("s_lshl_b32 s14, s12, 5")
    A("v_add_u32 v17, s14, v17")
    A("v_lshlrev_b32 v22, 4, v17")
    A("v_and_b32 v23, 31, v1")
    A("v_mul_u32_u24 v23, 544, v23")
    A("v_lshrrev_b32 v24, 5, v1")
    A("v_lshlrev_b32 v24, 5, v24")
    A("v_sub_u32 v23, v23, v24")
    A("s_lshl_b32 s8, s3, 6")
    A(f"s_sub_u32 s8, {UREG+224}, s8")
    A("v_add_u32 v23, s8, v23")
    A("v_lshrrev_b32 v24, 4, v1")
    A("s_lshl_b32 s8, s3, 4")
    A("v_add_u32 v24, s8, v24")
    A("v_and_b32 v2, 15, v1")
    A("v_lshlrev_b32 v2, 4, v2")
    A("s_lshl_b32 s8, s12, 6")
    A("v_add_u32 v27, s8, v24")
    A("v_lshl_add_u32 v27, v27, 12, v2")
    A("s_lshr_b32 s8, s55, 1")
    A("s_lshl_b32 s8, s8, 8")
    A("s_sub_u32 s8, 3840, s8")
    A("v_add_u32 v27, s8, v27")
    A("v_mul_u32_u24 v24, 272, v24")
    A("v_add_u32 v24, v24, v2")
    A(f"v_add_u32 v24, {UREG:#x}, v24")
    A("s_lshl_b32 s14, s4, 7")
    A("s_lshl_b32 s8, s5, 3")
    A("s_add_u32 s14, s14, s8")
    A("s_lshl_b32 s8, s3, 1")
    A("s_add_u32 s14, s14, s8")
    A("s_lshl_b32 s8, s14, 11")
    A("v_lshlrev_b32 v25, 4, v1")
    A("v_add_u32 v26, s8, v25")
    A("v_add_u32 v3, 0x8000, v27")
    srd(A, 64, "k", 4 << 20)
    srd(A, 68, "v", 4 << 20)
    srd(A, 72, "ws", 4 << 20, WS_KVT)
    srd(A, 76, "ws", 8192, WS_G)
    for i in range(8):
        A(f"s_mov_b32 s{80+i}, {i*4096}")
    NTP = " nt" if "ntp" in OPT else ""
    A("v_lshrrev_b32 v19, 3, v1")
    A("v_add_u32 v19, s13, v19")
    A("v_lshlrev_b32 v19, 11, v19")
    A("v_and_b32 v20, 7, v1")
    A("v_lshl_add_u32 v19, v20, 4, v19")
    A("s_lshl_b32 s8, s12, 7")
    A("v_add_u32 v19, s8, v19")
    A("v_subrev_u32 v20, 16384, v19")
    A("v_lshrrev_b32 v21, 5, v1")
    A("v_lshlrev_b32 v21, 11, v21")
    A("v_and_b32 v18, 31, v1")
    A("v_lshl_add_u32 v21, v18, 2, v21")
    A("s_lshl_b32 s8, s3, 12")
    A(f"s_add_u32 s91, s8, {KREG}")
    A("v_add_u32 v21, s91, v21")
    def kvdma():
        A("s_add_u32 m0, s91, 16384")
        V.issue(f"buffer_load_dwordx4 v20, s[64:67], 0 offen{NTP} lds")
        for i in range(4):
            A(f"s_add_u32 m0, s91, {16384 + 1024*(i+1)}")
            A(f"s_mov_b32 s99, {i*16384}")
            V.issue(f"buffer_load_dwordx4 v19, s[64:67], s99 offen{NTP} lds")
        V.issue(f"global_load_dwordx4 {vr(SK,4)}, v22, {sp('shk')}", "k")
        for i in range(4):
            A(f"s_add_u32 m0, s91, {1024*i}")
            A(f"s_mov_b32 s99, {i*16384}")
            V.issue(f"buffer_load_dwordx4 v19, s[68:71], s99 offen{NTP} lds", "v")
    if opt("pl", 1) < 0:
        kvdma(); issue(1)
    gl = []
    for r in range(2):
        for hh in range(2): gl.append((f"buffer_load_dwordx4 {vr(XG+r*8+hh*4,4)}, v26, s[56:59], 0 offen offset:{r*2048+hh*1024}", None))
    for hh in range(2): gl.append((f"global_load_dwordx4 {vr(GW+hh*4,4)}, v25, {sp('gw')} offset:{hh*1024}", "gate"))
    KF = 96; SP = 136; OUT = 144
    work = []
    def W(x):
        if callable(x): work.append(x)
        else: work.extend(x.split("\n"))
    def rndW(pair, tmp):
        W(f"v_cvt_pk_bf16_f32 v{tmp}, v{pair}, v{pair+1}")
        W(f"v_lshlrev_b32 v{pair}, 16, v{tmp}")
        W(f"v_and_b32 v{pair+1}, s12, v{tmp}")
    W("s_mov_b32 s12, 0xffff0000")
    gate_begin = len(work)
    W(lambda: V.wait("gate"))
    for i in range(8):
        W(f"v_lshlrev_b32 v{96+2*i}, 16, v{GW+i}")
        W(f"v_and_b32 v{97+2*i}, s12, v{GW+i}")
    for r in range(2):
        acc = 112 + r
        W(f"v_mov_b32 v{acc}, 0")
        for i in range(8):
            W(f"v_lshlrev_b32 v116, 16, v{XG+r*8+i}")
            W(f"v_and_b32 v117, s12, v{XG+r*8+i}")
            W(pk("mul", 116, 116, 96+2*i))
            rndW(116, 118)
            W(f"v_add_f32 v{acc}, v{acc}, v116")
            W(f"v_add_f32 v{acc}, v{acc}, v117")
    for r in range(2):
        acc = 112 + r
        for sh in (1, 2, 4, 8):
            W(f"v_add_f32_dpp v{acc}, v{acc}, v{acc} row_shr:{sh} row_mask:0xf bank_mask:0xf bound_ctrl:0")
        W(f"v_add_f32_dpp v{acc}, v{acc}, v{acc} row_bcast:15 row_mask:0xa bank_mask:0xf")
        W(f"v_add_f32_dpp v{acc}, v{acc}, v{acc} row_bcast:31 row_mask:0xc bank_mask:0xf")
    for t in ["v_readlane_b32 s8, v112, 63", "v_readlane_b32 s9, v113, 63", "v_mov_b32 v116, s8", "v_mov_b32 v117, s9",
              "v_cmp_eq_u32 vcc, 1, v1", "v_cndmask_b32 v116, v116, v117, vcc", "v_cvt_pk_bf16_f32 v116, v116, v116",
              "v_lshlrev_b32 v116, 16, v116", "v_mul_f32 v116, 0xbfb8aa3b, v116", "v_exp_f32 v116, v116", "v_add_f32 v116, 1.0, v116",
              "v_rcp_f32 v116, v116", "v_cvt_pk_bf16_f32 v117, v116, v116", "v_lshlrev_b32 v116, 16, v117", "v_sub_f32 v118, 1.0, v116",
              "v_cvt_pk_bf16_f32 v116, v116, v118", "s_lshl_b32 s14, s14, 2", "v_lshl_add_u32 v117, v1, 2, s14"]:
        W(t)
    def gstore():
        A("s_mov_b64 exec, 3")
        V.issue("buffer_store_dword v116, v117, s[76:79], 0 offen sc1", "g")
        A("s_mov_b64 exec, -1")
    W(gstore)
    gate_end = len(work)
    W("KVSTART")
    W(lambda: V.wait("k"))
    for i in range(19):
        W(f"ds_read_b32 v{KR+i}, v21 offset:{16384 + (5+i)*128}")
        if i == 9: W("s_waitcnt lgkmcnt(0)")
    W("s_waitcnt lgkmcnt(0)")
    for i in range(19):
        W(f"v_lshlrev_b32 v{KF+2*i}, 16, v{KR+i}")
        W(f"v_and_b32 v{KF+2*i+1}, s12, v{KR+i}")
    for jx in range(4):
        for cc in range(2):
            src = SK + cc*2 + (jx >> 1)
            W(f"v_and_b32 v{SP+2*jx+cc}, s12, v{src}" if jx & 1 else f"v_lshlrev_b32 v{SP+2*jx+cc}, 16, v{src}")
    W(lambda: V.wait("v"))
    for i in range(16):
        W(f"ds_read_b32 v{VR_+i}, v21 offset:{i*128}")
        if i == 7: W("s_waitcnt lgkmcnt(0)")
    W("s_waitcnt lgkmcnt(0)")
    for t in range(16):
        vv = 176 + (t & 1)*2
        W(f"v_lshlrev_b32 v{vv}, 16, v{VR_+t}")
        W(f"v_and_b32 v{vv+1}, s12, v{VR_+t}")
        if opt("pk", 0) & 2:
            o = OUT + 2*t
            W(f"v_pk_mul_f32 {vr(o,2)}, {vr(KF+2*t,2)}, {vr(SP+6,2)}")
            for jx in (2, 1, 0): W(f"v_pk_fma_f32 {vr(o,2)}, {vr(KF+2*(t+3-jx),2)}, {vr(SP+2*jx,2)}, {vr(o,2)}")
            W(f"v_pk_mul_f32 {vr(o,2)}, {vr(o,2)}, {vr(vv,2)}")
            continue
        for cc in range(2): W(f"v_mul_f32 v{OUT+2*t+cc}, v{KF+2*t+cc}, v{SP+6+cc}")
        for jx in (2, 1, 0):
            for cc in range(2): W(f"v_fmac_f32 v{OUT+2*t+cc}, v{KF+2*(t+3-jx)+cc}, v{SP+2*jx+cc}")
        for cc in range(2): W(f"v_mul_f32 v{OUT+2*t+cc}, v{OUT+2*t+cc}, v{vv+cc}")
    for cc in range(2):
        for hf in range(2):
            d = 192 + (cc*2+hf)*4
            for m in range(4):
                mm = hf*4 + m
                W(f"v_cvt_pk_bf16_f32 v{d+m}, v{OUT+2*(15-2*mm)+cc}, v{OUT+2*(14-2*mm)+cc}")
            W(f"ds_write_b128 v23, {vr(d,4)} offset:{cc*272+hf*16}")
    W("s_waitcnt lgkmcnt(0)")
    W("BARRIER")
    for i in range(4): W(f"ds_read_b128 {vr(192+4*i,4)}, v24 offset:{i*4*272}")
    KVL = "nokvl" not in OPT
    def kvstores():
        def block(pol):
            for i in range(4):
                A(f"s_waitcnt lgkmcnt({3-i})")
                V.issue(f"buffer_store_dwordx4 {vr(192+4*i,4)}, v{27 if i < 2 else 3}, s[72:75], s{80+4*(i&1)} offen{pol}", "kvt")
        if not KVL:
            block(" sc1"); return
        V.wait("cls")
        local_check(A, 247, 246, 96, 98)
        A("s_cbranch_scc0 h_kvl")
        n0 = V.n
        block(" sc1")
        A("s_branch h_kve")
        A("h_kvl:")
        V.n = n0
        block("")
        A("h_kve:")
    W(kvstores)
    if "kvfirst" in OPT:
        gate_part = work[gate_begin:gate_end]
        del work[gate_begin:gate_end]
        work.extend(gate_part)
    wpos = [0]
    blocked = [False]
    cur = [0]
    PL = opt("pl", 1)
    KVW = PL + opt("kvd", 3)
    def do_work(n):
        while n > 0 and wpos[0] < len(work) and not blocked[0]:
            w = work[wpos[0]]
            wpos[0] += 1
            if w == "BARRIER":
                blocked[0] = True; return
            if w == "KVSTART":
                if cur[0] < KVW:
                    wpos[0] -= 1; return
                continue
            if callable(w): w()
            else: A(w)
            n -= 1
    PREP0 = opt("prep0", 1)
    UL = 40
    ACC = 64; BF = 96; AFR = 160; KD = 224
    def setup_conv(A):
        A("s_lshl_b32 s12, s88, 12")
        srd(A, 64, "ssmk", 4096, off_sreg=12)
        srd(A, 68, "ws", 4096, WS_KVT, off_sreg=12)
        A("s_mov_b32 s80, s100")
        A("s_mov_b32 s81, s101")
        A("v_and_b32 v37, 15, v1")
        A("s_lshr_b32 s8, s88, 6")
        A("s_and_b32 s8, s8, 1")
        A("s_lshl_b32 s8, s8, 3")
        A("s_add_u32 s8, s8, s54")
        A("v_lshl_add_u32 v32, v37, 4, s8")
        A("s_lshr_b32 s8, s4, 2")
        A("s_lshl_b32 s8, s8, 1")
        A("s_and_b32 s9, s4, 3")
        A("s_lshl_b32 s9, s9, 3")
        A("s_add_u32 s8, s8, s9")
        A("v_lshrrev_b32 v38, 3, v37")
        A("v_and_b32 v39, 7, v37")
        A("v_lshl_add_u32 v38, v39, 5, v38")
        A("v_add_u32 v38, s8, v38")
        A("v_and_b32 v39, 16, v1")
        A("v_cmp_ne_u32 vcc, 0, v39")
        A("v_cndmask_b32 v32, v32, v38, vcc")
        A("v_lshlrev_b32 v32, 7, v32")
        A(f"v_add_u32 v32, {KF_OFF:#x}, v32")
        A("v_lshlrev_b32 v33, 2, v1")
        srd(A, 76, "dbg", 256)
        A(f"s_mul_i32 s13, s3, 8320")
        A(f"s_add_u32 s13, s13, {KREG}")
        A(f"s_mul_i32 s82, s3, 4608")
        A(f"s_add_u32 s82, s82, {UREG}")
        A("v_add_u32 v36, 2, v25")
        A("v_and_b32 v38, 7, v1")
        A("v_lshlrev_b32 v38, 2, v38")
        A("v_bfe_u32 v39, v1, 3, 1")
        A("v_mul_u32_u24 v39, 4160, v39")
        A("v_add3_u32 v38, v38, v39, s13")
        A("s_lshl_b32 s80, s80, 16")
        A("v_mov_b32 v56, s80")
        A("v_cmp_eq_u32 vcc, 15, v37")
        A("v_cndmask_b32 v56, 0, v56, vcc")
        A("ds_write_b32 v38, v56")
        A("s_and_b32 s14, s88, 1")
        A("s_lshl_b32 s14, s14, 4")
        A("s_lshr_b32 s81, s81, s14")
        A("s_lshl_b32 s81, s81, 16")
        A(f"v_mov_b32 v60, {LFLAG:#x}")
        A("v_mov_b32 v61, 1")
    def setup_late(A):
        A("v_lshrrev_b32 v5, 4, v1")
        A("v_and_b32 v37, 15, v1")
        A("v_lshl_add_u32 v38, v5, 3, v37")
        A("v_lshlrev_b32 v38, 1, v38")
        A("v_and_b32 v39, 1, v1")
        A("v_mul_u32_u24 v39, 4158, v39")
        A("v_sub_u32 v38, v38, v39")
        A("s_add_u32 s14, s13, 4160")
        A("v_add_u32 v16, s14, v38")
        for i in range(1, 4): A(f"v_add_u32 v{16+i}, {1024*i}, v16")
        A("v_lshlrev_b32 v38, 5, v37")
        A("v_lshlrev_b32 v39, 4, v5")
        A("v_sub_u32 v20, v39, v38")
        A("s_add_u32 s14, s82, 480")
        A("v_add_u32 v20, s14, v20")
        A("v_lshl_add_u32 v39, v5, 3, v38")
        A("s_add_u32 s14, s82, 504")
        A("v_sub_u32 v21, s14, v39")
        A("v_and_b32 v39, 1, v5")
        A("v_lshl_add_u32 v22, v39, 9, v38")
        A("v_lshrrev_b32 v39, 1, v5")
        A("v_lshl_add_u32 v22, v39, 4, v22")
        A("v_add_u32 v23, s82, v25")
    setup_conv(W)
    print("prep work items", len(work))
    def cissue(st):
        tile_of(A, st >> 1, 11)
        A("s_lshl_b32 s11, s11, 7")
        sr_ = "s[56:59]" if st % 2 == 0 else "s[60:63]"
        A("s_add_u32 s99, s11, s91")
        A(f"s_add_u32 m0, s10, {(st % NS2)*16384:#x}")
        for n in range(2):
            V.issue(f"buffer_load_dwordx4 v{VC+n}, {sr_}, s99 offen offset:{n*1024} lds")
        A("s_add_u32 s11, s11, s90")
        A(f"s_add_u32 m0, s10, {(st % NS2)*16384 + 8192:#x}")
        for n in range(2):
            V.issue(f"buffer_load_dwordx4 v{VC+n}, {sr_}, s11 offen offset:{n*1024} lds", ("C", st))
    def uloads():
        for i in range(4): A(f"buffer_load_dwordx4 {vr(UL+4*i,4)}, v25, s[68:71], 0 offen offset:{i*1024} sc1")
    def ctouch():
        A("s_cmp_ge_u32 s3, 2")
        A(f"s_cselect_b32 s96, s{P['Cim']}, s{P['Cre']}")
        A(f"s_cselect_b32 s97, s{P['Cim']+1}, s{P['Cre']+1}")
        A("s_lshl_b32 s98, s2, 13")
        A("s_and_b32 s99, s3, 1")
        A("s_lshl_b32 s99, s99, 12")
        A("s_add_u32 s98, s98, s99")
        A("v_and_b32 v240, 31, v1")
        if "km" in OPT:
            A("s_add_u32 s96, s96, s98")
            A("s_addc_u32 s97, s97, 0")
            A("s_lshl_b32 s98, s88, 12")
            A(f"s_add_u32 s98, s{P['ssmk']}, s98")
            A(f"s_addc_u32 s99, s{P['ssmk']+1}, 0")
            A("v_mov_b32 v242, s96")
            A("v_mov_b32 v243, s97")
            A("v_mov_b32 v244, s98")
            A("v_mov_b32 v245, s99")
            A("v_cmp_lt_u32 s[96:97], 31, v1")
            A("v_cndmask_b32 v242, v242, v244, s[96:97]")
            A("v_cndmask_b32 v243, v243, v245, s[96:97]")
            A("v_lshlrev_b32 v240, 7, v240")
            A("v_add_co_u32 v242, s[96:97], v242, v240")
            A("v_addc_co_u32 v243, s[96:97], 0, v243, s[96:97]")
            V.issue("global_load_dword v241, v[242:243], off")
        else:
            A("v_lshl_add_u32 v240, v240, 7, s98")
            V.issue("global_load_dword v241, v240, s[96:97]")
    FILL = opt("fill", 10)
    kst = [None]
    KW = opt("kw", 2)
    CHK = opt("chk", 13)
    KFS = opt("kfs", 12)
    KDS = opt("kds", 11)
    UWS = opt("uws", 14)
    WEND = min(KFS, KDS, 12)
    CM = opt("cm", 6)
    assert CHK < UWS <= 15 and opt("lates", 14) <= UWS
    nU = [0]; cdone = [0]
    NC0 = opt("nc0", 2)
    A(f"v_mov_b32 v6, {LFLAG:#x}")
    A("v_mov_b32 v7, 0")
    for o in (4, 8, 12, 16, 20): A(f"ds_write_b32 v6, v7 offset:{o}")
    ST()
    A("s_waitcnt lgkmcnt(0)")
    V.wait("clr")
    ST()
    if "fine0" in OPT: STH()
    A("s_barrier")
    issue(2)
    if "fine0" in OPT: STH()
    for t, tag in gl: V.issue(t, tag)
    for s in range(N1):
        V.wait(("S", min(s+1, N1-1)))
        if kst[0] is not None and s == min(kst[0] + KW, 15): V.wait("kvt"); V.wait("g")
        if "fine1" in OPT: STH()
        A("s_barrier")
        if kst[0] is not None and s == min(kst[0] + KW, 15):
            A("s_cmp_lg_u32 s3, 0")
            A("s_cbranch_scc1 h_kflag")
            A("v_mov_b32 v6, 1")
            A("buffer_store_dword v6, v30, s[92:95], 0 offen sc1")
            A("h_kflag:")
            print("k flag after barrier", s+1)
        blocked[0] = False
        cur[0] = s
        FM = opt("fmode", 0)
        fl = opt("fill0", FILL) if s < opt("fill0n", 0) else FILL
        if s+3 < N1 and FM == 0: issue(s+3, fl if s >= PREP0 else 0)
        elif s+3 < N1 and FM == 1:
            issue(s+3)
            if s >= PREP0: do_work(8*FILL)
        if s == PL - 100: pass
        if s == PL and PL >= 0: kvdma()
        if s == CM: ctouch()
        if KVL and s == opt("cls", 6):
            A("v_lshlrev_b32 v246, 2, v1")
            V.issue(f"global_load_dword v247, v246, {sp('dbg')} sc1", "cls")
        if kst[0] is None and "kvt" in V.tags and "g" in V.tags: kst[0] = s
        if s == WEND:
            do_work(10000)
            assert wpos[0] == len(work), (wpos[0], len(work))
        if s == KFS:
            V.issue("buffer_load_dword v34, v33, s[76:79], 0 offen sc1")
            V.issue("buffer_load_dword v35, v32, s[92:95], 0 offen sc1", "kf")
            ST()
        if s == KDS and KDS < CHK:
            V.wait("g")
            A("s_add_u32 m0, s13, 32")
            for i in range(4): V.issue(f"buffer_load_dwordx4 v25, s[64:67], 0 offen offset:{i*1024}{NTP} lds")
            A("s_add_u32 m0, s13, 4192")
            for i in range(4): V.issue(f"buffer_load_dwordx4 v36, s[64:67], 0 offen offset:{i*1024}{NTP} lds", "K")
        if s == 13:
            srd(A, 56, "Cre", 2 << 20)
            srd(A, 60, "Cim", 2 << 20)
            A("s_lshl_b32 s10, s3, 11")
            A(f"s_add_u32 s10, s10, {CRING:#x}")
            A("s_lshr_b32 s90, s5, 3")
            A("s_xor_b32 s91, s90, 1")
            A("s_lshl_b32 s91, s91, 20")
            A("s_lshl_b32 s11, s90, 10")
            A("s_add_u32 s91, s91, s11")
            A("s_mul_i32 s90, s90, 0x100400")
            A("v_mov_b32 v56, 0")
            A("v_mov_b32 v57, 0")
            A("v_lshlrev_b32 v38, 3, v1")
            A("v_add_u32 v38, s82, v38")
            A("ds_write_b64 v38, v[56:57] offset:4096")
            ST()
        if s == CHK:
            V.wait("kf")
            A("s_mov_b32 s83, 0")
            A("v_and_b32 v34, 15, v34")
            A("v_cmp_ne_u32 vcc, 15, v34")
            A("v_cmp_ne_u32 s[84:85], 1, v35")
            A("s_or_b64 vcc, vcc, s[84:85]")
            A("s_cbranch_scc1 h_nou")
            A("s_mov_b32 s83, 1")
            uloads()
            A("h_nou:")
            nU[0] = V.n
        if s == KDS and KDS >= CHK:
            V.wait("g")
            A("s_add_u32 m0, s13, 32")
            for i in range(4): V.issue(f"buffer_load_dwordx4 v25, s[64:67], 0 offen offset:{i*1024}{NTP} lds")
            A("s_add_u32 m0, s13, 4192")
            for i in range(4): V.issue(f"buffer_load_dwordx4 v36, s[64:67], 0 offen offset:{i*1024}{NTP} lds", "K")
        if s == opt("lates", 14): setup_late(A)
        if s == 15:
            for z in range(NC0): cissue(z)
            cdone[0] = NC0
        if s == UWS:
            A("s_cmp_lg_u32 s83, 1")
            A("s_cbranch_scc1 h_nouw")
            A(f"s_waitcnt vmcnt({V.n - nU[0]})")
            for i in range(4): A(f"ds_write_b128 v23, {vr(UL+4*i,4)} offset:{1024*i}")
            A("h_nouw:")
    ST()
    if "hprio1" in OPT: A("s_setprio 0")
    A("s_cmp_lg_u32 s83, 0")
    A("s_cbranch_scc1 h_haveu")
    spin_all(A, "h_init", 34, "buffer_load_dword v34, v33, s[76:79], 0 offen sc1", "15", pre="v_and_b32 v34, 15, v34")
    spin_all(A, "h_kf", 35, "buffer_load_dword v35, v32, s[92:95], 0 offen sc1")
    uloads()
    A("s_waitcnt vmcnt(0)")
    for i in range(4): A(f"ds_write_b128 v23, {vr(UL+4*i,4)} offset:{1024*i}")
    A("h_haveu:")
    V.done = max(V.done, nU[0])
    V.wait("K")
    if "lowp" in OPT: A("s_setprio 1")
    lds_inc(A, 60, 61, 8)
    for i in range(4): A(f"s_mov_b32 s{84+i}, s{68+i}")
    srd(A, 68, "ws", 4 << 20, WS_KVT)
    A("s_waitcnt lgkmcnt(0)")
    ST()
    L = LQ(A)
    ops = []
    def reads(r):
        R = []
        s = r & 1
        for i in range(8):
            R.append((f"ds_read_b128 {vr(BF+s*32+i*4,4)}, v20 offset:{3584-512*i+64*r}", ("B", r, i)))
            o = 128*(i & 1) + 16*r
            d = AFR + s*32 + i*4
            R.append((f"ds_read2_b32 {vr(d,2)}, v{16+(i>>1)} offset0:{o} offset1:{o+1}", None))
            R.append((f"ds_read2_b32 {vr(d+2,2)}, v{16+(i>>1)} offset0:{o+2} offset1:{o+3}", ("A", r, i)))
        return R
    def first_order(R):
        return R[1:3] + [R[3*i] for i in range(8)] + [x for i in range(1, 8) for x in R[3*i+1:3*i+3]]
    KVT = 40
    for n in range(8): ops.append(("rd", f"ds_read_b64 {vr(KVT+2*n,2)}, v21 offset:{3584-512*n}", ("KV", n)))
    for t, tag in first_order(reads(0)): ops.append(("rd", t, tag))
    fill = []
    fill.append(("s_mov_b32 s12, 0xffff0000", None)); fill.append(("v_mov_b32 v26, s81", None))
    for n in range(8):
        k = KD + 4*n
        c = [f"v_and_b32 v{k}, s12, v{KVT+2*n+1}", f"v_lshlrev_b32 v{k+1}, 16, v{KVT+2*n+1}", f"v_and_b32 v{k+2}, s12, v{KVT+2*n}", f"v_lshlrev_b32 v{k+3}, 16, v{KVT+2*n}"]
        c += [f"v_mul_f32 v{k+i}, v{k+i}, v26" for i in range(4)]
        c += [f"v_cvt_pk_bf16_f32 v56, v{k}, v{k+1}", f"v_cvt_pk_bf16_f32 v57, v{k+2}, v{k+3}",
              f"v_lshlrev_b32 v{k}, 16, v56", f"v_and_b32 v{k+1}, s12, v56", f"v_lshlrev_b32 v{k+2}, 16, v57", f"v_and_b32 v{k+3}, s12, v57"]
        for i, t in enumerate(c): fill.append((t, ("KV", n) if i == 0 else None))
    YD = 40
    def post(n):
        y = ACC + 4*n; k = KD + 4*n
        d = YD + (n >> 1)*4 + (n & 1)*2
        c = [f"v_cvt_pk_bf16_f32 v56, v{y}, v{y+1}", f"v_cvt_pk_bf16_f32 v57, v{y+2}, v{y+3}",
             f"v_lshlrev_b32 v{y}, 16, v56", f"v_and_b32 v{y+1}, s12, v56", f"v_lshlrev_b32 v{y+2}, 16, v57", f"v_and_b32 v{y+3}, s12, v57"]
        c += [f"v_add_f32 v{k+i}, v{k+i}, v{y+i}" for i in range(4)]
        c += [f"v_cvt_pk_bf16_f32 v{d}, v{k}, v{k+1}", f"v_cvt_pk_bf16_f32 v{d+1}, v{k+2}, v{k+3}"]
        if n & 1:
            d = YD + (n >> 1)*4
            c += [f"v_permlane16_swap_b32 v{d}, v{d+2}", f"v_permlane16_swap_b32 v{d+1}, v{d+3}"]
            if "yinl" in OPT: c += [f"YST{n >> 1}"]
        return c
    ystores = [f"buffer_store_dwordx4 {vr(YD+4*k,4)}, v22, s[84:87], 0 offen offset:{k*1024} sc1" for k in range(4)]
    LATEC = opt("latec", 200)
    CFM = opt("cfm", 80)
    FPM = opt("fpm", 2)
    nmf = 0
    postq = []
    for r in range(8):
        s = r & 1
        nxt = first_order(reads(r+1)) if r < 7 else []
        cnt = 0
        for q in range(8):
            for n in range(q, 8):
                c = vr(ACC+4*n, 4)
                ops.append(("mf", f"v_mfma_f32_16x16x32_bf16 {c}, {vr(AFR+s*32+4*q,4)}, {vr(BF+s*32+4*(n-q),4)}, {'0' if (r == 0 and q == 0) else c}",
                            [("A", r, q), ("B", r, n-q)]))
                nmf += 1; cnt += 1
                if nxt and cnt >= 2:
                    t, tag = nxt.pop(0); ops.append(("rd", t, tag))
                elif r < 7:
                    for z in range(FPM):
                        if fill: ops.append(("fill",) + fill.pop(0))
                if nmf == LATEC: ops.append(("latec",))
                if nmf == CFM: ops.append(("cf",))
                if nmf == opt("cf2m", 270) and FBAR > 1: ops.append(("cf2",))
                if r == 7:
                    if n == q: postq += [(nmf + 3, t) for t in post(n)]
                    for z in range(opt("ppm", 3)):
                        if postq and postq[0][0] <= nmf and q < 7: ops.append(("fill", postq.pop(0)[1], None))
        assert not nxt
    assert not fill and CFM < LATEC
    for _, t in postq: ops.append(("fill", t, None))
    for op in ops:
        if op[0] == "rd": L.issue(op[1], op[2])
        elif op[0] == "mf":
            for t in op[2]: pass
            k = max(op[2], key=lambda t: L.tags[t])
            L.wait(k)
            A(op[1])
        elif op[0] == "fill":
            if op[2] is not None: L.wait(op[2])
            if op[1].startswith("YST"): V.issue(ystores[int(op[1][3:])], "y2")
            else: A(op[1])
        elif op[0] == "latec":
            while cdone[0] < NS2: cissue(cdone[0]); cdone[0] += 1
        elif op[0] == "cf2":
            V.wait(("C", 3))
            lds_inc(A, 60, 61, 20); L.n += 1
        elif op[0] == "cf":
            while cdone[0] < 2: cissue(cdone[0]); cdone[0] += 1
            V.wait(("C", 1))
            lds_inc(A, 60, 61, 16); L.n += 1
    ST()
    if "lowp" in OPT: A("s_setprio 0")
    YST = opt("yst", 0)
    if YST == 0 and "yinl" not in OPT:
        for t in ystores: V.issue(t, "y2")
    A("v_lshrrev_b32 v8, 4, v1")
    A("s_lshl_b32 s8, s3, 4")
    A("v_add_u32 v8, s8, v8")
    A("v_and_b32 v11, 15, v1")
    A("s_lshl_b32 s9, s5, 11")
    A(f"s_add_u32 s9, s9, {YF_OFF:#x}")
    A("v_lshl_add_u32 v10, v11, 7, s9")
    A("v_lshlrev_b32 v11, 4, v11")
    A("v_mul_u32_u24 v9, 272, v8")
    A("v_add_u32 v9, v9, v11")
    A("s_lshl_b32 s8, s5, 6")
    A("v_add_u32 v8, s8, v8")
    A("v_lshl_add_u32 v8, v8, 12, v11")
    A("s_lshl_b32 s8, s4, 8")
    A("v_add_u32 v8, s8, v8")
    ST()
    YR = 116
    YFL_LD = "buffer_load_dword v19, v10, s[92:95], 0 offen sc1"
    YFL, GYF, GYL, GYW = opt("yfl", 5), opt("gyf", 8), opt("gyl", 10), opt("gyw", 12)
    for st in range(FBAR, N2-1):
        V.wait(("C", st+1))
        if "fineh" in OPT: STH()
        A("s_barrier")
        if st == FBAR:
            for z in range(NS2, FBAR + NS2): cissue(z)
        elif st + NS2 - 1 < N2: cissue(st + NS2 - 1)
        if "abl" in OPT and st >= 2 and st < 13 and int(OPT["abl"]) & 1:
            continue_ = True
            for tg in ("y2", "xt", "yf", "eps"): V.tags.setdefault(tg, 0)
            continue
        if YST and st == YST:
            for t in ystores: V.issue(t, "y2")
        if st == YFL:
            V.wait("y2")
            A("s_mov_b64 exec, 1")
            A("ds_add_rtn_u32 v62, v60, v61 offset:4")
            A("s_mov_b64 exec, -1")
            A("s_waitcnt lgkmcnt(0)")
            A("v_readfirstlane_b32 s83, v62")
            A("s_cmp_lg_u32 s83, 3")
            A("s_cbranch_scc1 h_noy")
            A("buffer_store_dword v61, v31, s[92:95], 0 offen sc1")
            A("h_noy:")
        if st == GYF: V.issue(YFL_LD, "yf")
        if st == GYL:
            V.wait("yf")
            spin_all(A, "h_yf", 19, YFL_LD)
            for i in range(4):
                A(f"s_mov_b32 s8, {i*16384}")
                V.issue(f"buffer_load_dwordx4 {vr(YR+i*4,4)}, v8, s[68:71], s8 offen sc1", "eps")
        if st == GYW:
            V.wait("eps")
            for i in range(4): A(f"ds_write_b128 v9, {vr(YR+i*4,4)} offset:{i*4*272}")
            A("s_waitcnt lgkmcnt(0)")
    assert YST < YFL < GYF < GYL < GYW <= N2 - 3
    STH.flush()
    ST.flush()
    A("s_endpgm")

def build():
    s = header_comments()
    s += "; generated by tools/gen9.py (fused single kernel, split-K GEMM2; gen8 h layout)\n"
    s += "; @launch grid=(256,1,1) block=(512,1,1) lds=163840\n"
    s += '.amdgcn_target "amdgcn-amd-amdhsa--gfx950"\n.text\n'
    A = Asm()
    A.raw(f".globl {KN}\n.p2align 8\n.type {KN},@function")
    gen_kernel(A)
    s += A.render()
    s += descriptor(KN, 256, 102)
    import subprocess, tempfile, re
    with tempfile.TemporaryDirectory() as td:
        open(td + "/a.s", "w").write(s.replace("CODE_LAST", "0x12345"))
        subprocess.run(["clang", "-x", "assembler", "-target", "amdgcn-amd-amdhsa", "-mcpu=gfx950", "-c", td + "/a.s", "-o", td + "/a.o"], check=True)
        o = subprocess.run(["llvm-objdump", "-h", td + "/a.o"], capture_output=True, text=True).stdout
    size = int(re.search(r"\.text\s+([0-9a-f]+)", o).group(1), 16)
    if "al8" in OPT:
        pat = {"1": ("v_mfma_f32_32x32",), "2": ("v_mfma",), "3": ("v_mfma", "ds_read_b128", "ds_read_b64_tr", "buffer_load_dwordx4")}[str(OPT["al8"])]
        with tempfile.TemporaryDirectory() as td:
            open(td + "/a.s", "w").write(s.replace("CODE_LAST", "0x12345"))
            subprocess.run(["clang", "-x", "assembler", "-target", "amdgcn-amd-amdhsa", "-mcpu=gfx950", "-c", td + "/a.s", "-o", td + "/a.o"], check=True)
            d = subprocess.run(["llvm-objdump", "-d", td + "/a.o"], capture_output=True, text=True).stdout
        sizes = [4 * len(m.group(1).split()) for m in re.finditer(r"// [0-9A-F]+: ([0-9A-F ]+)$", d, re.M)]
        out = []; addr = 0; k = 0; incode = False; nins = 0
        for ln in s.split("\n"):
            st = ln.strip()
            if st == f"{KN}:": incode = True
            if st.startswith(".section"): incode = False
            if incode and ln.startswith("    ") and st and not st.startswith(";"):
                sz = sizes[k]; k += 1
                if sz == 8 and addr % 8 == 4 and st.startswith(pat):
                    out.append("    s_nop 0"); addr += 4; nins += 1
                addr += sz
            out.append(ln)
        assert k == len(sizes), (k, len(sizes))
        s = "\n".join(out); size = addr
        print("alignment nops", nins)
    if "shift" in OPT:
        s = s.replace(f"{KN}:\n", f"{KN}:\n" + "    s_nop 0\n" * int(OPT["shift"]), 1); size += 4 * int(OPT["shift"])
    print("code bytes", size)
    assert size <= 65536
    return s.replace("CODE_LAST", hex(size - 4))

if __name__ == "__main__":
    out = sys.argv[1] if len(sys.argv) > 1 and not sys.argv[1].startswith("--") else os.path.join(os.path.dirname(os.path.abspath(__file__)), "..", NAME + ".s")
    open(out, "w").write(build())
    print("wrote", out)
```

```python
import sys, os
sys.path.insert(0, os.path.dirname(os.path.abspath(__file__)))
from asmlib import Asm
from gen import (NAME, P, sp, vr, sr, load_kernargs, srd, pk, cmul, tile_ids, Stamper, OPT, header_comments, descriptor)
import gen

KN = NAME + "_kernel"
WS_H    = 0
WS_KVT  = 8 << 20
WS_G    = 16 << 20
WS_EBOX = 17 << 20
WS_FLG  = 18 << 20
HF_OFF  = 0
KF_OFF  = 128 << 10
YF_OFF  = 160 << 10
PF_OFF  = 192 << 10
FLG_SZ  = 320 << 10
WS_PART = 24 << 20
N1 = 16
N2 = 16
NS2 = 4
PD = 4
CRING = 32768
KREG = 98304
UREG = KREG + 4*8320
LFLAG = UREG + 4*4608
SPIN = int(OPT.get("spin", 1 << 16))
SLEEP = int(OPT.get("sleep", 4))
def opt(k, d): return int(OPT.get(k, d))

class VQ:
    def __init__(self, A): self.A = A; self.n = 0; self.tags = {}; self.done = 0
    def issue(self, text, tag=None):
        self.A(text); self.n += 1
        if tag is not None: self.tags[tag] = self.n
    def wait(self, tag):
        k = self.tags[tag]
        if k <= self.done: return
        cnt = min(63, self.n - k)
        self.A(f"s_waitcnt vmcnt({cnt})"); self.done = self.n - cnt
    def drained(self): self.done = self.n

class LQ:
    def __init__(self, A): self.A = A; self.n = 0; self.tags = {}; self.done = 0
    def issue(self, text, tag=None):
        self.A(text); self.n += 1
        if tag is not None: self.tags[tag] = self.n
    def wait(self, tag):
        k = self.tags[tag]
        if k > self.done:
            self.A(f"s_waitcnt lgkmcnt({min(15, self.n - k)})"); self.done = max(k, self.n - 15)
    def drain(self):
        self.A("s_waitcnt lgkmcnt(0)"); self.done = self.n

def spin_all(A, name, vreg, reload, cmpval="1", sctr=89, pre=None):
    A(f"s_mov_b32 s{sctr}, {SPIN}")
    A(f"{name}_chk:")
    if pre: A(pre)
    A(f"v_cmp_ne_u32 vcc, {cmpval}, v{vreg}")
    A("s_cmp_eq_u64 vcc, 0")
    A(f"s_cbranch_scc1 {name}_ok")
    A(f"s_sub_u32 s{sctr}, s{sctr}, 1")
    A(f"s_cbranch_scc1 {name}_ok")
    A(f"s_sleep {SLEEP}")
    A(reload)
    A("s_waitcnt vmcnt(0)")
    A(f"s_branch {name}_chk")
    A(f"{name}_ok:")

def lds_spin(A, name, vaddr, off, vtmp, target, stmp=8, sctr=89):
    A(f"s_mov_b32 s{sctr}, {SPIN*4}")
    A(f"{name}:")
    A(f"ds_read_b32 v{vtmp}, v{vaddr} offset:{off}")
    A("s_waitcnt lgkmcnt(0)")
    A(f"v_readfirstlane_b32 s{stmp}, v{vtmp}")
    A(f"s_cmp_ge_u32 s{stmp}, {target}")
    A(f"s_cbranch_scc1 {name}_ok")
    A(f"s_sub_u32 s{sctr}, s{sctr}, 1")
    A(f"s_cbranch_scc0 {name}")
    A(f"{name}_ok:")

def lds_inc(A, vaddr, vone, off):
    A("s_mov_b64 exec, 1")
    A(f"ds_add_u32 v{vaddr}, v{vone} offset:{off}")
    A("s_mov_b64 exec, -1")

def zip_chains(A, chains):
    chains = [[x for t in c for x in t.split("\n")] for c in chains]
    for i in range(max(len(c) for c in chains)):
        for c in chains:
            if i < len(c): A(c[i])

def local_check(A, vbits, vtmp, sdst_pair, stmp):
    A(f"s_getreg_b32 s{stmp}, hwreg(HW_REG_XCC_ID, 0, 4)")
    A(f"s_lshl_b32 s{stmp}, 0x100, s{stmp}")
    A(f"s_or_b32 s{stmp}, s{stmp}, 15")
    A(f"v_and_b32 v{vtmp}, 7, v1")
    A(f"v_cmp_eq_u32 s[{sdst_pair}:{sdst_pair+1}], s54, v{vtmp}")
    A(f"v_cmp_ne_u32 vcc, s{stmp}, v{vbits}")
    A(f"s_and_b64 vcc, vcc, s[{sdst_pair}:{sdst_pair+1}]")

SNT = opt("snt", 1)
PB = opt("pb", 1)
NPQ = 4 if PB else 8
FBAR = opt("fb", 2)
ORD = opt("ord", 1)
def tile_of(A, i, dst):
    if i == 0: A(f"s_mov_b32 s{dst}, s15")
    elif ORD:
        A(f"s_cmp_le_u32 s15, {i-1}")
        A(f"s_cselect_b32 s{dst}, {i}, {i-1}")
    else:
        A(f"s_add_u32 s{dst}, s15, {i}")
        A(f"s_and_b32 s{dst}, s{dst}, 7")

def gen_kernel(A):
    A(f"{KN}:")
    A("s_cmp_ge_u32 s2, 256")
    A("s_cbranch_scc1 L_end")
    load_kernargs(A)
    tile_ids(A)
    A("v_and_b32 v1, 63, v0")
    A("v_lshrrev_b32 v2, 6, v0")
    A("s_and_b32 s15, s5, 7")
    A("v_readfirstlane_b32 s3, v2")
    A("s_cmp_ge_u32 s3, 4")
    A("s_cbranch_scc0 L_consumer")
    helper(A)
    A("L_consumer:")
    consumer(A)
    A("L_end:")
    A("s_endpgm")


def consumer(A):
    ACC = 64
    FA, FB = 128, 144
    AD, BD = 160, 168
    LAM, C2, MU, MU2, MU4, MU8 = 176, 178, 180, 182, 184, 186
    EL = 192
    UR2 = 224
    ST = Stamper(A, 0, 63)
    ST()
    A(f"s_setprio {opt('prio', 2)}")
    A("s_and_b32 s6, s3, 1")
    A("s_lshr_b32 s7, s3, 1")
    A("v_and_b32 v4, 31, v1")
    A("s_lshl_b32 s8, s5, 6")
    A("s_lshl_b32 s9, s7, 5")
    A("s_add_u32 s8, s8, s9")
    A("v_add_u32 v3, s8, v4")
    A("v_lshlrev_b32 v5, 1, v3")
    A("v_lshrrev_b32 v6, 5, v1")
    A("s_lshl_b32 s10, s4, 1")
    A("s_add_u32 s10, s10, s6")
    if "nocode" not in OPT:
        A("s_getpc_b64 s[12:13]")
        A("c_pc:")
        A(f"s_sub_u32 s12, s12, c_pc-{KN}")
        A("s_subb_u32 s13, s13, 0")
        A("s_lshl_b32 s11, s3, 14")
        A("v_lshl_add_u32 v24, v1, 7, s11")
        A("v_min_u32 v24, CODE_LAST, v24")
        A("global_load_dword v25, v24, s[12:13]")
        A("v_add_u32 v24, 0x2000, v24")
        A("v_min_u32 v24, CODE_LAST, v24")
        A("global_load_dword v26, v24, s[12:13]")
    A("s_waitcnt lgkmcnt(0)")
    A(f"global_load_ushort v8, v5, {sp('Lre')}")
    A(f"global_load_ushort v9, v5, {sp('Lim')}")
    A(f"global_load_ushort v10, v5, {sp('logdt')}")
    srd(A, 56, "ws", 256 << 10, WS_EBOX)
    srd(A, 60, "ws", 8 << 20, WS_H)
    srd(A, 64, "dbg", 256)
    srd(A, 68, "ws", FLG_SZ, WS_FLG)
    A("s_lshl_b32 s11, s10, 13")
    A("v_lshl_add_u32 v7, v3, 3, s11")
    A("v_mov_b32 v12, 0")
    A("v_mov_b32 v13, 0")
    A("buffer_store_dwordx2 v[12:13], v7, s[56:59], 0 offen sc1")
    A("s_lshl_b32 s11, s10, 4")
    A("s_add_u32 s11, s11, s5")
    A("s_lshl_b32 s11, s11, 1")
    A("s_add_u32 s11, s11, s7")
    A("s_lshl_b32 s11, s11, 7")
    A("v_mov_b32 v60, s11")
    A("buffer_store_dword v12, v60, s[68:71], 0 offen sc1")
    A("s_lshl_b32 s72, s4, 4")
    A("s_add_u32 s72, s72, s5")
    A("s_lshl_b32 s72, s72, 2")
    A("s_add_u32 s72, s72, s3")
    A("s_lshl_b32 s72, s72, 7")
    A(f"s_add_u32 s11, s72, {PF_OFF:#x}")
    A("v_mov_b32 v30, s11")
    A("buffer_store_dword v12, v30, s[68:71], 0 offen sc1")
    A("v_mov_b32 v23, 1")
    A("v_bfe_u32 v11, v1, 1, 3")
    A("v_xor_b32 v11, v11, v6")
    A("s_lshl_b32 s11, s6, 13")
    A("v_lshl_add_u32 v14, v4, 7, s11")
    A("s_lshl_b32 s11, s7, 12")
    A("s_add_u32 s11, s11, 16384")
    A("v_lshl_add_u32 v15, v4, 7, s11")
    for ks in range(4):
        A(f"v_xor_b32 v16, {2*ks}, v11")
        A(f"v_lshl_add_u32 v{AD+ks}, v16, 4, v14")
        A(f"v_lshl_add_u32 v{BD+ks}, v16, 4, v15")
        A(f"v_add_u32 v{AD+4+ks}, 0x10000, v{AD+ks}")
        A(f"v_add_u32 v{BD+4+ks}, 0x10000, v{BD+ks}")
    A("v_lshlrev_b32 v21, 2, v1")
    A("s_waitcnt vmcnt(0)")
    A("v_lshlrev_b32 v8, 16, v8")
    A("v_lshlrev_b32 v9, 16, v9")
    A("v_lshlrev_b32 v10, 16, v10")
    A("s_mov_b32 s12, 0x3fb8aa3b")
    A("v_mul_f32 v10, s12, v10")
    A("v_exp_f32 v10, v10")
    A("v_cvt_pk_bf16_f32 v10, v10, v10")
    A("v_lshlrev_b32 v10, 16, v10")
    A("v_mul_f32 v16, v10, v8")
    A("v_mul_f32 v17, v10, v9")
    A("v_mul_f32 v16, s12, v16")
    A("v_exp_f32 v16, v16")
    A("v_mul_f32 v17, 0.15915494, v17")
    A("v_rndne_f32 v18, v17")
    A("v_sub_f32 v17, v17, v18")
    A("v_cos_f32 v18, v17")
    A("v_sin_f32 v19, v17")
    A(f"v_mul_f32 v{LAM}, v16, v18")
    A(f"v_mul_f32 v{LAM+1}, v16, v19")
    A(f"v_add_f32 v16, -1.0, v{LAM}")
    A("v_mul_f32 v17, v8, v8")
    A("v_fma_f32 v17, v9, v9, v17")
    A("v_rcp_f32 v17, v17")
    A("v_mul_f32 v18, v16, v8")
    A(f"v_fma_f32 v18, v{LAM+1}, v9, v18")
    A(f"v_mul_f32 v19, v{LAM+1}, v8")
    A("v_fma_f32 v19, -v16, v9, v19")
    A("v_add_f32 v17, v17, v17")
    A(f"v_mul_f32 v{C2}, v18, v17")
    A(f"v_mul_f32 v{C2+1}, v19, v17")
    cmul(A, 16, LAM, LAM); cmul(A, 18, 16, 16); cmul(A, 16, 18, 18)
    cmul(A, MU, 16, 16); cmul(A, MU2, MU, MU); cmul(A, MU4, MU2, MU2); cmul(A, MU8, MU4, MU4)
    cmul(A, 48, C2, MU2)
    A("v_cmp_lt_u32 vcc, 31, v1")
    A(f"v_cndmask_b32 v48, v{C2}, v48, vcc")
    A(f"v_cndmask_b32 v49, v{C2+1}, v49, vcc")
    A("v_lshlrev_b32 v50, 13, v6")
    A("v_sub_u32 v50, v7, v50")
    A("s_add_u32 s11, s10, 1")
    A("v_sub_u32 v51, s11, v6")
    A("v_lshrrev_b32 v51, 1, v51")
    A("s_lshl_b32 s11, s4, 2")
    A("s_add_u32 s11, s11, s3")
    A("s_lshl_b32 s11, s11, 5")
    A("v_lshrrev_b32 v52, 3, v1")
    A("v_add_u32 v52, s11, v52")
    A("v_lshlrev_b32 v52, 11, v52")
    A("v_and_b32 v16, 7, v1")
    A("v_lshl_add_u32 v52, v16, 4, v52")
    A("s_lshl_b32 s11, s5, 7")
    A("v_add_u32 v52, s11, v52")
    A("s_lshl_b32 s11, s3, 13")
    A("v_lshlrev_b32 v53, 11, v6")
    A("v_lshl_add_u32 v53, v4, 1, v53")
    A("v_add_u32 v53, s11, v53")
    A("s_lshl_b32 s11, s5, 6")
    A("v_add_u32 v54, s11, v4")
    A("v_lshlrev_b32 v54, 1, v54")
    srd(A, 76, "x", 4 << 20)
    srd(A, 92, "ws", 8 << 20, WS_PART)
    A("s_xor_b32 s73, s72, 4096")
    A("s_lshl_b32 s74, s73, 6")
    A("s_add_u32 s75, s74, 4096")
    A("v_lshlrev_b32 v59, 4, v1")

    def rd(stage, ks, buf, which):
        slot = stage % 3
        hi = 4 if slot >= 2 else 0
        so = (slot & 1) * 32768
        if which < 2:
            return f"ds_read_b128 {vr(FA+buf*8+which*4,4)}, v{AD+hi+ks} offset:{so + which*4096}"
        ri = which - 2
        return f"ds_read_b128 {vr(FB+buf*8+ri*4,4)}, v{BD+hi+ks} offset:{so + ri*8192}"
    def mf(buf, mt, ri, first):
        acc = ACC + ri*32 + mt*16
        return f"v_mfma_f32_32x32x16_bf16 {vr(acc,16)}, {vr(FA+buf*8+mt*4,4)}, {vr(FB+buf*8+ri*4,4)}, {'0' if first else vr(acc,16)}"
    RD_ORDER = [0, 2, 1, 3]
    MF_ORDER = [(0,0), (1,0), (1,1), (0,1)]
    ST()
    A("s_barrier")
    ST()
    A("s_cmp_lg_u32 s3, 0")
    A("s_cbranch_scc1 c_noflag")
    A("s_lshr_b32 s11, s2, 6")
    A("s_lshl_b32 s11, 1, s11")
    A("s_getreg_b32 s12, hwreg(HW_REG_XCC_ID, 0, 4)")
    A("s_lshl_b32 s12, 0x100, s12")
    A("s_or_b32 s11, s11, s12")
    A("v_mov_b32 v16, s11")
    A("s_and_b32 s11, s2, 63")
    A("s_lshl_b32 s11, s11, 2")
    A("v_mov_b32 v17, s11")
    A("s_mov_b64 exec, 1")
    A("buffer_atomic_or v16, v17, s[64:67], 0 offen sc1")
    A("s_mov_b64 exec, -1")
    A("c_noflag:")
    for w in RD_ORDER: A(rd(0, 0, 0, w))
    for s in range(N1):
        for ks in range(4):
            buf = ks & 1
            last = (s == N1-1 and ks == 3)
            if ks == 3:
                A("s_waitcnt lgkmcnt(0)")
                A("s_barrier")
            ns, nks = (s, ks+1) if ks < 3 else (s+1, 0)
            for i in range(4):
                if ks < 3 and i < 3: A("s_waitcnt lgkmcnt(2)")
                A(mf(buf, *MF_ORDER[i], s == 0 and ks == 0))
                if not last: A(rd(ns, nks, buf ^ 1, RD_ORDER[i]))
            if (s in (3, 7, 11) if "fine1" not in OPT else s >= 3) and ks == 3: ST()
            if s == 12 and ks == 0:
                A("buffer_load_dword v20, v21, s[64:67], 0 offen sc1")
    ST()
    if "fine1" in OPT: ST.n = 40
    gen.SAFE_PK[0] = bool(opt("pk", 0) & 1)
    def UR(t): return ACC + (t >> 3)*16 + 2*(t & 7)
    def UI(t): return ACC + 32 + (t >> 3)*16 + 2*(t & 7)
    E = [(24, 26), (28, 30 - 30 + 44)]
    cr, ci = UR(0), UI(0)
    for t in range(1, 16):
        nr, ni = E[t & 1]
        A(pk("fma", nr, cr, LAM, UR(t), bsel=0))
        A(pk("fma", ni, ci, LAM, UI(t), bsel=0))
        A(pk("fma", nr, ci, LAM, nr, bsel=1, neg_b=True))
        A(pk("fma", ni, cr, LAM, ni, bsel=1))
        cr, ci = nr, ni
    A("v_mov_b32 v32, v28\nv_mov_b32 v33, v44\nv_mov_b32 v34, v29\nv_mov_b32 v35, v45")
    cmul(A, 36, MU, 32, add=34)
    A("v_mov_b32 v38, v36\nv_mov_b32 v39, v37\nv_mov_b32 v40, 0\nv_mov_b32 v41, 0")
    A("v_permlane32_swap_b32 v40, v38")
    A("v_permlane32_swap_b32 v41, v39")
    cmul(A, 42, MU2, 40, add=36)
    A("v_or_b32 v42, 1, v42")
    A("s_mov_b32 s12, 0")
    A("s_mov_b32 s13, -1")
    A("s_mov_b64 exec, s[12:13]")
    A("buffer_store_dwordx2 v[42:43], v7, s[56:59], 0 offen sc1")
    A("s_mov_b64 exec, -1")
    def scaling():
        for t in range(16):
            n = UR2 + 2*t
            A(pk("mul", n, UR(t), C2, bsel=0))
            A(pk("fma", n, UI(t), C2, n, bsel=1, neg_b=True))
            A(pk("mul", UI(t), UI(t), C2, bsel=0))
            A(pk("fma", UI(t), UR(t), C2, UI(t), bsel=1))
        cmul(A, 44, C2, 40)
        cmul(A, 46, C2, 32)
    if "lowp" in OPT: A("s_setprio 0")
    ST()
    A("s_lshl_b32 s9, s3, 13")
    for i in range(4):
        A(f"s_add_u32 m0, s9, {i*1024}")
        A(f"s_mov_b32 s8, {i*16384}")
        A("buffer_load_dwordx4 v52, s[76:79], s8 offen lds")
    for q in range(2):
        A(f"global_load_ushort v{9+q}, v54, {sp('Dskip')} offset:{q*64}")
    if SNT:
        for i in range(4): A(f"v_mov_b32 v{24+i}, -1")
        for i in range(NPQ): A(f"buffer_store_dwordx4 v[24:27], v59, s[92:95], s{74 if i < 4 else 75} offen offset:{(i & 3)*1024} sc1")
    if "pollfirst" not in OPT: scaling()
    for k in range(16):
        A(f"v_subrev_u32 v{128+k}, {(1+2*k)*8192:#x}, v50")
    ST()
    A(f"s_waitcnt vmcnt({7 + NPQ if SNT else 7})")
    spin_all(A, "c_init", 52, "buffer_load_dword v20, v21, s[64:67], 0 offen sc1", "15", pre="v_and_b32 v52, 15, v20")
    local_check(A, 20, 52, 12, 11)
    A("s_cselect_b32 s14, 0, 1")
    if "nolocal" in OPT: A("s_mov_b32 s14, 0")
    for k in range(16):
        A(f"buffer_load_dwordx2 {vr(EL+2*k,2)}, v{128+k}, s[56:59], 0 offen sc1")
    if "pollfirst" in OPT: scaling()
    XP = list(range(73, 89))
    XDP = [89, 90, 91, 92, 93, 94, 95, 54, 55, 56, 57, 58, 59, 61, 5, 12]
    A(f"s_waitcnt vmcnt({16 + NPQ if SNT else 16})")
    XT = [160 + i for i in range(16)] + [73 + i for i in range(16)]
    for nt in range(2):
        for r in range(16): A(f"ds_read_u16 v{XT[nt*16+r]}, v53 offset:{r*128+nt*64}")
    A("s_waitcnt lgkmcnt(0)")
    for m in range(8): A(f"v_lshl_or_b32 v{XP[8+m]}, v{XT[16+2*m+1]}, 16, v{XT[16+2*m]}" if False else f"v_lshl_or_b32 v{64+m}, v{XT[16+2*m+1]}, 16, v{XT[16+2*m]}")
    for m in range(8): A(f"v_lshl_or_b32 v{XP[m]}, v{XT[2*m+1]}, 16, v{XT[2*m]}")
    for m in range(8): A(f"v_mov_b32 v{XP[8+m]}, v{64+m}")
    BD2 = 32
    A("s_lshl_b32 s11, s3, 13")
    A("v_lshl_add_u32 v16, v6, 11, s11")
    A("v_lshl_add_u32 v16, v4, 6, v16")
    A("v_bfe_u32 v17, v1, 1, 2")
    for q in range(4):
        A(f"v_xor_b32 v18, {q}, v17")
        A(f"v_lshl_add_u32 v{64+q}, v18, 4, v16")
    A("v_mov_b32 v31, 1")
    A("v_bfe_u32 v16, v1, 2, 2")
    A("v_lshl_add_u32 v16, v6, 3, v16")
    A("v_and_b32 v24, 1, v1")
    A("v_bfe_u32 v18, v1, 4, 1")
    A("v_lshl_add_u32 v24, v24, 1, v18")
    A("v_bfe_u32 v18, v16, 1, 2")
    A("v_xor_b32 v24, v24, v18")
    A("v_lshlrev_b32 v24, 4, v24")
    A("v_lshl_add_u32 v24, v16, 6, v24")
    A("v_bfe_u32 v18, v1, 1, 1")
    A("v_lshl_add_u32 v24, v18, 3, v24")
    A("v_xor_b32 v25, 32, v24")
    A("v_add_u32 v25, 256, v25")
    A("v_add_u32 v68, s11, v24")
    A("v_add_u32 v69, s11, v25")
    A("s_lshl_b32 s11, s4, 7")
    A("s_lshl_b32 s12, s6, 6")
    A("s_add_u32 s11, s11, s12")
    A("s_and_b32 s12, s5, 7")
    A("s_lshl_b32 s12, s12, 2")
    A("s_add_u32 s11, s11, s12")
    A("s_add_u32 s11, s11, s7")
    A("s_lshl_b32 s11, s11, 12")
    A("s_lshr_b32 s13, s5, 3")
    A("s_lshl_b32 s13, s13, 11")
    A("s_add_u32 s11, s11, s13")
    A("v_lshl_add_u32 v72, v1, 4, s11")
    A(f"v_mov_b32 v20, {LFLAG:#x}")
    A("s_lshl_b32 s6, s4, 2")
    A("s_add_u32 s6, s6, s3")
    A("s_lshr_b32 s7, s3, 1")
    A("s_lshl_b32 s7, s7, 13")
    A("s_and_b32 s8, s3, 1")
    A("s_lshl_b32 s8, s8, 11")
    A("s_add_u32 s7, s7, s8")
    A("v_add_u32 v70, s7, v24")
    A("v_add_u32 v71, s7, v25")
    A("s_lshl_b32 s7, s6, 17")
    A("s_add_u32 s7, s7, s13")
    A("v_lshl_add_u32 v3, v1, 4, s7")
    A("v_add_u32 v2, 0x1000, v3")
    A(f"v_lshlrev_b32 v14, 7, v4")
    A(f"v_add_u32 v14, {CRING:#x}, v14")
    for ks in range(4):
        A(f"v_xor_b32 v16, {2*ks}, v11")
        A(f"v_lshl_add_u32 v{BD2+ks}, v16, 4, v14")
    A("s_lshr_b32 s7, s6, 1")
    A("s_lshl_b32 s7, s7, 12")
    A("s_add_u32 s7, s7, s13")
    A("v_bfe_u32 v16, v1, 1, 3")
    if ORD:
        A("v_subrev_u32 v14, 1, v16")
        A("v_cmp_le_u32 vcc, s15, v14")
        A("v_cndmask_b32 v14, v14, v16, vcc")
        A("v_mov_b32 v19, s15")
        A("v_cmp_eq_u32 vcc, 0, v16")
        A("v_cndmask_b32 v16, v14, v19, vcc")
    else:
        A("v_add_u32 v16, s15, v16")
        A("v_and_b32 v16, 7, v16")
    A("v_and_b32 v14, 1, v1")
    A("v_lshl_add_u32 v16, v16, 1, v14")
    A("v_lshl_add_u32 v22, v16, 7, s7")
    srd(A, 64, "ws", 8192, WS_G)
    srd(A, 76, "out", 8 << 20)
    for i in range(8):
        A(f"s_mov_b32 s{80+i}, {i*4096}")
    A("s_lshl_b32 s7, s6, 5")
    A("v_lshl_add_u32 v7, v6, 4, s7")
    A("s_lshl_b32 s8, s5, 6")
    A("v_add_u32 v8, s8, v4")
    A("v_lshlrev_b32 v26, 12, v7")
    A("v_lshl_add_u32 v26, v8, 2, v26")
    A("v_add_u32 v27, 0x8000, v26")
    A("v_lshlrev_b32 v7, 2, v7")
    A("v_mul_u32_u24 v21, 272, v4")
    A("v_lshl_add_u32 v21, v6, 5, v21")
    A("s_lshl_b32 s8, s3, 6")
    A("v_add_u32 v21, s8, v21")
    A(f"s_add_u32 s8, s73, {PF_OFF:#x}")
    A("v_mov_b32 v29, s8")
    A("v_lshlrev_b32 v28, 4, v1")
    A("v_mov_b32 v23, 1")
    A(f"s_mov_b32 s88, {SPIN}")
    A("c_poll:")
    A("s_waitcnt vmcnt(0)")
    A("v_mov_b32 v52, 0")
    for k in range(16):
        A(f"v_and_b32 v{144+k}, 1, v{EL+2*k}")
    for k in range(0, 16, 2):
        A(f"v_add3_u32 v52, v52, v{144+k}, v{145+k}")
    A("v_cmp_ne_u32 vcc, v52, v51")
    A("s_cmp_eq_u64 vcc, 0")
    A("s_cbranch_scc1 c_polled")
    A("s_sub_u32 s88, s88, 1")
    A("s_cbranch_scc1 c_polled")
    A(f"s_sleep {opt('psleep', SLEEP)}")
    for k in range(16):
        A(f"v_cmp_eq_u32 vcc, 0, v{144+k}")
        A("s_mov_b64 exec, vcc")
        A(f"buffer_load_dwordx2 {vr(EL+2*k,2)}, v{128+k}, s[56:59], 0 offen sc1")
        A("s_mov_b64 exec, -1")
    A("s_branch c_poll")
    A("c_polled:")
    if "lowp" in OPT: A(f"s_setprio {opt('prio', 2)}")
    ST()
    g = EL + 30
    G = [52, 54]
    for k in range(14, -1, -1):
        n = G[k & 1]
        A(pk("fma", n, g, MU8, EL+2*k, bsel=0))
        A(pk("fma", n, g, MU8, n, bsel=1, asel="swap", neg_lo=[1,0,0]))
        g = n
    A("v_mov_b32 v54, v52\nv_mov_b32 v55, v53\nv_mov_b32 v56, v52\nv_mov_b32 v57, v53")
    A("v_permlane32_swap_b32 v54, v56")
    A("v_permlane32_swap_b32 v55, v57")
    cmul(A, 58, MU4, 56, add=54)
    cmul(A, 52, 48, 58, add=44)
    cmul(A, 54, MU, 52, add=46)
    A("v_mov_b32 v56, v52\nv_mov_b32 v57, v54\nv_mov_b32 v58, v53\nv_mov_b32 v59, v55")
    cr, ci = 56, 58
    def packhalf(hf):
        for plane in range(2):
            for e in range(2):
                d = 128 + ((plane*2 + e)*2 + hf)*4
                for m in range(4):
                    t = hf*8 + 2*m
                    if plane == 0: A(f"v_cvt_pk_bf16_f32 v{d+m}, v{UR2+2*t+e}, v{UR2+2*(t+1)+e}")
                    else: A(f"v_cvt_pk_bf16_f32 v{d+m}, -v{UI(t)+e}, -v{UI(t+1)+e}")
                A(f"ds_write_b128 v{64+2*e+hf}, {vr(d,4)} offset:{plane*4096}")
    for t in range(16):
        nr, ni = UR2 + 2*t, UI(t)
        A(pk("fma", nr, cr, LAM, nr, bsel=0))
        A(pk("fma", ni, ci, LAM, ni, bsel=0))
        A(pk("fma", nr, ci, LAM, nr, bsel=1, neg_b=True))
        A(pk("fma", ni, cr, LAM, ni, bsel=1))
        cr, ci = nr, ni
        if t == 7: packhalf(0)
    packhalf(1)
    gen.SAFE_PK[0] = False
    EARLY = opt("early", 0)
    HFL = "buffer_load_dword v19, v22, s[68:71], 0 offen sc1"
    if EARLY: A(HFL)
    ST()
    A("s_waitcnt lgkmcnt(0)")
    lds_inc(A, 20, 31, 12)
    AF = 160
    idx = 0
    for tblk in range(2):
        for plane in range(2):
            for ksl in range(2):
                d = AF + idx*4
                o = plane*4096 + tblk*2048 + ksl*1024
                A(f"ds_read_b64_tr_b16 {vr(d,2)}, v68 offset:{o}")
                A(f"ds_read_b64_tr_b16 {vr(d+2,2)}, v69 offset:{o}")
                idx += 1
    V = VQ(A)
    idx = 0
    for tblk in range(2):
        for plane in range(2):
            A(f"s_mov_b32 s12, {tblk*131072 + plane*8192:#x}")
            for ksl in range(2):
                d = AF + idx*4
                A(f"s_waitcnt lgkmcnt({min(15, 14 - 2*idx)})")
                V.issue(f"buffer_store_dwordx4 {vr(d,4)}, v72, s[60:63], s12 offen offset:{ksl*1024} sc1", "hst")
                idx += 1
    ACC2 = 96
    FB2 = 224
    GR = 36
    ST2 = Stamper(A, 1, 62)
    A(f"s_mov_b32 s89, {SPIN*4}")
    A("c_lw:")
    A("ds_read_b128 v[52:55], v20 offset:4")
    A("s_waitcnt lgkmcnt(0)")
    A("v_min_u32 v54, v54, v55")
    A("v_min_u32 v53, 1, v53")
    A("v_readfirstlane_b32 s8, v54")
    A("v_readfirstlane_b32 s9, v53")
    A("s_add_u32 s8, s8, s9")
    A("s_cmp_ge_u32 s8, 5")
    A("s_cbranch_scc1 c_lwok")
    A("s_sub_u32 s89, s89, 1")
    A("s_cbranch_scc0 c_lw")
    A("c_lwok:")
    L = LQ(A)
    for st in range(2):
        for ks in range(4):
            d = AF + (st*4 + ks)*4
            o = (ks >> 1)*16384 + st*4096 + (ks & 1)*1024
            L.issue(f"ds_read_b64_tr_b16 {vr(d,2)}, v70 offset:{o}")
            L.issue(f"ds_read_b64_tr_b16 {vr(d+2,2)}, v71 offset:{o}", ("A", st, ks))
    A("s_mov_b32 s13, 0")
    if EARLY:
        A("s_waitcnt vmcnt(8)")
        A("v_cmp_eq_u32 s[90:91], 1, v19")
        A("s_and_b32 s88, s90, 0xc")
        A("s_cmp_eq_u32 s88, 0xc")
        A("s_cbranch_scc0 c_noearly")
        A("s_mov_b32 s13, 1")
        for z in (2, 3):
            tile_of(A, z >> 1, 11)
            A("s_lshl_b32 s11, s11, 14")
            if z & 1: A("s_add_u32 s11, s11, 8192")
            for k2 in range(4):
                A(f"buffer_load_dwordx4 {vr(AF + (z*4 + k2)*4,4)}, v{3 if k2 < 2 else 2}, s[60:63], s11 offen offset:{(k2 & 1)*1024} sc1")
        A("c_noearly:")
    for q in range(4):
        V.issue(f"buffer_load_dwordx4 {vr(GR+q*4,4)}, v7, s[64:67], 0 offen offset:{q*16} sc1", "g")
    ST()
    slowp = []
    def need(i):
        m = ((1 << (2*i + 2)) - 1) & ~3
        name = f"c_n{len(slowp)}"
        A(f"s_and_b32 s88, s90, {m:#x}")
        A(f"s_cmp_eq_u32 s88, {m:#x}")
        A(f"s_cbranch_scc0 {name}_s")
        A(f"{name}:")
        slowp.append((name, m))
    alast = [None]
    def aload(st, ks):
        if alast[0] != st:
            alast[0] = st
            tile_of(A, st >> 1, 11)
            A("s_lshl_b32 s11, s11, 14")
            if st & 1: A("s_add_u32 s11, s11, 8192")
        r = AF + ((st % PD)*4 + ks)*4
        V.issue(f"buffer_load_dwordx4 {vr(r,4)}, v{3 if ks < 2 else 2}, s[60:63], s11 offen offset:{(ks & 1)*1024} sc1", ("A", st, ks))
    def rd2(st, ks, nt, slot):
        return f"ds_read_b128 {vr(FB2+slot*4,4)}, v{BD2+ks} offset:{(st % NS2)*16384 + nt*4096}"
    def mf2(st, ks, nt, slot):
        a = AF + ((st % PD)*4 + ks)*4
        c = vr(ACC2+nt*16, 16)
        return f"v_mfma_f32_32x32x16_bf16 {c}, {vr(a,4)}, {vr(FB2+slot*4,4)}, {'0' if (st == 0 and ks == 0) else c}"
    def await_(st, ks):
        if st < 2: L.wait(("A", st, ks))
        else: V.wait(("A", st, ks))
    ST2()
    for nt in range(4): L.issue(rd2(0, 0, nt, nt), (0, 0, nt))
    HFK = opt("hfk", 3)
    N1K = opt("n1k", 2)
    XPS = opt("xps", 1)
    xfill = []
    def xpart(A=A):
        A("v_lshlrev_b32 v9, 16, v9")
        A("v_lshlrev_b32 v10, 16, v10")
        A("s_mov_b32 s12, 0xffff0000")
        TT = [13, 15, 16, 17, 18, 24, 25, 8]
        for k0 in range(0, 16, 4):
            ch = []
            for k in range(k0, k0 + 4):
                t0, t1 = TT[2*(k & 3)], TT[2*(k & 3) + 1]
                dk = 9 + (k >> 3)
                ch.append([f"v_lshlrev_b32 v{t0}, 16, v{XP[k]}", f"v_and_b32 v{t1}, s12, v{XP[k]}", f"v_mul_f32 v{t0}, v{t0}, v{dk}", f"v_mul_f32 v{t1}, v{t1}, v{dk}",
                           f"v_cvt_pk_bf16_f32 v{XDP[k]}, v{t0}, v{t1}"])
            zip_chains(A, ch)
    if XPS == 2: xpart(xfill.append)
    DIST = opt("dist", 3)
    assert DIST in (2, 3, 4)
    polls = [0]
    def hfpoll():
        polls[0] += 1
        V.issue(HFL, ("hf", polls[0]))
    def hfseen():
        V.wait(("hf", polls[0]))
        A("v_cmp_eq_u32 s[90:91], 1, v19")
    FS = opt("fs", 4)
    assert FS == 1 or (FS in (3, 4) and DIST >= 3)
    for st in range(N2 - FS):
        for ks in range(4):
            buf = ks & 1
            if ks == 3 and st >= FBAR: A("s_barrier")
            if ks == 3 and st == 1 and FBAR > 1:
                lds_spin(A, "c_cf2", 20, 20, 14, 4); L.done = L.n
            ns, nks = (st, ks+1) if ks < 3 else (st+1, 0)
            await_(st, ks)
            for nt in range(4):
                L.wait((st, ks, nt))
                A(mf2(st, ks, nt, buf*4 + nt))
                L.issue(rd2(ns, nks, nt, (buf ^ 1)*4 + nt), (ns, nks, nt))
                for z in range(opt("xfm", 3)):
                    if xfill: A(xfill.pop(0))
            if st == 0 and ks == HFK:
                if EARLY:
                    cnt = V.n - V.tags["hst"]
                    A("s_cmp_eq_u32 s13, 1")
                    A("s_cbranch_scc1 c_hw_e")
                    A(f"s_waitcnt vmcnt({cnt})")
                    A("s_branch c_hw_d")
                    A("c_hw_e:")
                    A(f"s_waitcnt vmcnt({cnt + 8})")
                    A("c_hw_d:")
                    V.done = V.tags["hst"]
                else: V.wait("hst")
                A("s_cmp_eq_u32 s14, 1")
                A("s_cbranch_scc1 c_hfs_l")
                A("buffer_store_dword v23, v60, s[68:71], 0 offen sc1")
                A("s_branch c_hfs_e")
                A("c_hfs_l:")
                A("buffer_store_dword v23, v60, s[68:71], 0 offen")
                A("c_hfs_e:")
                V.n += 1
                if SNT: V.issue("buffer_store_dword v23, v30, s[68:71], 0 offen sc1")
                hfpoll()
                if "fine3" in OPT: ST2()
            if st == 1 and ks == opt("rp", -1): hfpoll()
            if st == 1 and ks == N1K:
                if "fine3" in OPT: ST2()
                if EARLY:
                    A("s_cmp_eq_u32 s13, 1")
                    A("s_cbranch_scc1 c_skipy")
                hfseen(); need(1)
                if "fine3" in OPT: ST2()
                for z in (2, 3):
                    for k2 in range(4): aload(z, k2)
                if EARLY:
                    A("c_skipy:")
                    V.done = min(V.done, V.tags[("hf", polls[0])] - 1)
                hfpoll()
                if XPS == 0: xpart()
            if st == 1 and ks == 3 and XPS == 1: xpart()
            if st >= 2:
                if st == 2 and ks == 0:
                    if "fine3" in OPT: ST2()
                    hfseen(); need(2)
                    if "fine3" in OPT: ST2()
                    for z in range(4, 2 + DIST):
                        for k2 in range(4): aload(z, k2)
                    hfpoll()
                z = st + DIST
                if z < N2:
                    if ks == 0 and z % 2 == 0 and z // 2 >= 3:
                        if z // 2 == 3: hfseen()
                        if not (int(OPT.get("abl", 0)) & 2): need(z // 2)
                    aload(z, ks)
            if SNT and st == opt("pfl", 5) and ks == 0: V.issue("buffer_load_dword v14, v29, s[68:71], 0 offen sc1", "pf")
            if SNT and st == opt("pfc", 8) and ks == 0:
                V.wait("pf")
                A("v_cmp_ne_u32 vcc, 1, v14")
                A("s_cmp_eq_u64 vcc, 0")
                A("s_cbranch_scc0 c_pfs")
                A("c_pfr:")
            if "fine3" in OPT:
                if st in (1, 2, 3, 4) and ks == 3: ST2()
                if st == 2 and ks == 0: ST2()
            elif "fine4" in OPT:
                if st == N2 - FS - 1 and ks == 3: ST2()
            elif (st % 2 == 1 if 'fine2' not in OPT else True) and ks == 3: ST2()
    f0 = N2 - FS
    S_ = lambda z: [(z, ks, nt) for ks in range(4) for nt in (0, 1)]
    K_ = lambda z: [(z, ks, nt) for ks in range(4) for nt in (2, 3)]
    if FS == 1: order = S_(15) + K_(15); nsend = 8
    elif FS == 3: order = S_(13) + ["b13"] + S_(14) + K_(13) + ["b14"] + S_(15) + K_(14) + K_(15); nsend = 32
    else:
        BP = opt("bp", 4)
        order = []
        if opt("fso", 1) == 0:
            for z in (12, 13, 14): order += S_(z)[:BP] + [f"b{z}"] + S_(z)[BP:]
            order += S_(15) + K_(12) + K_(13) + K_(14) + K_(15); nsend = 32
        else:
            order = S_(12)[:BP] + ["b12"] + S_(12)[BP:] + S_(13) + K_(12)[:BP] + ["b13"] + K_(12)[BP:] + S_(14)[:BP] + ["b14"] + S_(14)[BP:] + S_(15) + K_(13) + K_(14) + K_(15)
            nsend = 40
        for z in range(N2):
            if ("A", z, 0) not in V.tags and z >= 2:
                for k2 in range(4): aload(z, k2)
    mfs = [x for x in order if not isinstance(x, str)]
    slot = {(f0, 0, nt): nt for nt in range(4)}
    pend = [x for x in mfs if x not in slot]
    free = [4, 5, 6]
    pub = [f0]
    def fill():
        while pend and free and pend[0][0] <= pub[0]:
            x = pend.pop(0); sl = free.pop(0); slot[x] = sl
            L.issue(rd2(x[0], x[1], x[2], sl), x)
    fill()
    pst = [f"buffer_store_dwordx4 {vr(ACC2+4*i,4)}, v28, s[92:95], s{74 if i < 4 else 75} offen offset:{(i & 3)*1024} sc1" for i in range(NPQ)]
    pcv = [f"v_cvt_pk_bf16_f32 v{ACC2+k}, v{ACC2+2*k}, v{ACC2+2*k+1}" for k in range(16)] if PB else []
    i = 0; prev = None
    for x in order:
        if isinstance(x, str):
            A("s_barrier"); pub[0] += 1; fill(); continue
        V.wait(("A", x[0], x[1]))
        if x not in slot: fill()
        L.wait(x)
        A(mf2(x[0], x[1], x[2], slot[x]))
        free.append(slot[prev] if prev is not None else 7)
        prev = x
        fill()
        i += 1
        SP = opt("sp", 0)
        if i >= nsend + 3 and pcv:
            for z in range(4): A(pcv.pop(0))
            V.issue(pst.pop(0), "ps")
        elif i >= nsend + 3:
            if SP == 0:
                for z in range(2):
                    if pst: V.issue(pst.pop(0), "ps")
            elif (i - nsend - 3) % SP == 0 and pst: V.issue(pst.pop(0), "ps")
        if "fine4" in OPT and i % 8 == 0: ST2()
    while pst: V.issue(pst.pop(0), "ps")
    ST2()
    YR, OM, GF, T0, RV = 160, 176, 192, 208, ACC2
    KEEP = ACC2 + 32
    PFL = "buffer_load_dword v19, v29, s[68:71], 0 offen sc1"
    A("s_mov_b32 s12, 0xffff0000")
    for nt in range(2):
        for hf in range(2): A(f"ds_read_b128 {vr(YR+nt*8+hf*4,4)}, v21 offset:{nt*32*272 + hf*16}")
    for r in range(16):
        A(f"v_lshlrev_b32 v{GF+r}, 16, v{GR+r}")
        A(f"v_and_b32 v{OM+r}, s12, v{GR+r}")
    A("s_waitcnt lgkmcnt(0)")
    if SNT:
        RCG = opt("rcg", 2)
        def recv_full():
            for i in range(NPQ):
                A(f"buffer_load_dwordx4 {vr(RV+4*i,4)}, v28, s[92:95], s{90 if i < 4 else 91} offen offset:{(i & 3)*1024} sc1")
        first = [True]
        def recv():
            if "lp" in OPT and first[0]:
                first[0] = False
                A(f"buffer_load_dwordx4 {vr(RV+4*NPQ-4,4)}, v28, s[92:95], s{90 if PB else 91} offen offset:3072 sc1")
            else: recv_full()
        A("s_lshl_b32 s90, s72, 6")
        A("s_add_u32 s91, s90, 4096")
        gi = 0
        for nt in range(2):
            for m0 in range(0, 8, 4):
                if gi == RCG: recv()
                gi += 1
                ch = []
                for m in range(m0, m0 + 4):
                    b_ = T0 + (m & 3)*6
                    yy, xf, tm = b_, b_ + 2, b_ + 4
                    xp = XP[nt*8+m]; xd = XDP[nt*8+m]; ka = KEEP + nt*16 + 2*m
                    ch.append([f"v_lshlrev_b32 v{yy}, 16, v{YR+nt*8+m}", f"v_and_b32 v{yy+1}, s12, v{YR+nt*8+m}",
                               f"v_lshlrev_b32 v{xf}, 16, v{xp}", f"v_and_b32 v{xf+1}, s12, v{xp}",
                               f"v_mul_f32 v{yy}, v{xf}, v{yy}", f"v_mul_f32 v{yy+1}, v{xf+1}, v{yy+1}",
                               f"v_lshlrev_b32 v{xf}, 16, v{xd}", f"v_and_b32 v{xf+1}, s12, v{xd}",
                               f"v_cvt_pk_bf16_f32 v{tm}, v{yy}, v{yy+1}",
                               f"v_add_f32 v{ka}, v{ka}, v{xf}", f"v_add_f32 v{ka+1}, v{ka+1}, v{xf+1}",
                               f"v_lshlrev_b32 v{yy}, 16, v{tm}", f"v_and_b32 v{yy+1}, s12, v{tm}",
                               f"v_mul_f32 v{yy}, v{yy}, v{OM+2*m}", f"v_mul_f32 v{yy+1}, v{yy+1}, v{OM+2*m+1}",
                               f"v_cvt_pk_bf16_f32 v{tm}, v{yy}, v{yy+1}", f"v_lshlrev_b32 v{yy}, 16, v{tm}", f"v_and_b32 v{yy+1}, s12, v{tm}",
                               f"v_fma_f32 v{ka}, v{ka}, v{GF+2*m}, v{yy}", f"v_fma_f32 v{ka+1}, v{ka+1}, v{GF+2*m+1}, v{yy+1}"])
                zip_chains(A, ch)
        if gi == RCG: recv()
        ST2()
        if "lp" in OPT:
            LP = f"buffer_load_dwordx4 {vr(RV+4*NPQ-4,4)}, v28, s[92:95], s{90 if PB else 91} offen offset:3072 sc1"
            A(f"s_mov_b32 s89, {SPIN}")
            A("c_lp:")
            A("s_waitcnt vmcnt(0)")
            A(f"v_cmp_eq_u32 vcc, -1, v{RV+4*NPQ-1}")
            A("s_cmp_eq_u64 vcc, 0")
            A("s_cbranch_scc1 c_lpok")
            A("s_sub_u32 s89, s89, 1")
            A("s_cbranch_scc1 c_lpok")
            A(LP)
            A("s_branch c_lp")
            A("c_lpok:")
            recv_full()
        A(f"s_mov_b32 s89, {SPIN}")
        A("c_rc:")
        A("s_waitcnt vmcnt(0)")
        A(f"v_max3_u32 v19, v{RV}, v{RV+1}, v{RV+2}")
        for i in range(3, 4*NPQ-1, 2): A(f"v_max3_u32 v19, v19, v{RV+i}, v{RV+i+1}")
        A(f"v_max_u32 v19, v19, v{RV+4*NPQ-1}")
        A("v_cmp_eq_u32 vcc, -1, v19")
        A("s_cmp_eq_u64 vcc, 0")
        A("s_cbranch_scc1 c_rcok")
        A("s_sub_u32 s89, s89, 1")
        A("s_cbranch_scc1 c_rcok")
        recv()
        A("s_branch c_rc")
        A("c_rcok:")
        ST2()
        for nt in range(2):
            for r in range(16):
                a = KEEP + nt*16 + r
                if PB:
                    w = RV + nt*8 + (r >> 1); t = T0 + (r & 3)
                    A(f"v_and_b32 v{t}, s12, v{w}" if r & 1 else f"v_lshlrev_b32 v{t}, 16, v{w}")
                    A(f"v_fma_f32 v{a}, v{t}, v{GF+r}, v{a}")
                else: A(f"v_fma_f32 v{a}, v{RV+nt*16+r}, v{GF+r}, v{a}")
                A(f"buffer_store_dword v{a}, v{26 if r < 8 else 27}, s[76:79], s{80+(r&7)} offen offset:{nt*128} nt")
        ST2()
    else:
        PFG = opt("pfg", 2)
        gi = 0
        def pfstore():
            A("s_waitcnt vmcnt(0)")
            A("buffer_store_dword v23, v30, s[68:71], 0 offen sc1")
            A(PFL)
        RCG = opt("rcg", 3)
        def recv():
            A("s_lshl_b32 s12, s72, 6")
            A("s_add_u32 s13, s12, 4096")
            for i in range(NPQ):
                A(f"buffer_load_dwordx4 {vr(RV+4*i,4)}, v28, s[92:95], s{12 if i < 4 else 13} offen offset:{(i & 3)*1024} sc1")
            A("s_mov_b32 s12, 0xffff0000")
        A("s_mov_b32 s90, 0")
        for nt in range(2):
            for m0 in range(0, 8, 4):
                if gi == PFG: pfstore()
                if gi == RCG and RCG > PFG:
                    A("s_waitcnt vmcnt(0)")
                    A("v_cmp_ne_u32 vcc, 1, v19")
                    A("s_cmp_eq_u64 vcc, 0")
                    A("s_cbranch_scc0 c_norc")
                    recv()
                    A("s_mov_b32 s90, 1")
                    A("c_norc:")
                gi += 1
                ch = []
                for m in range(m0, m0 + 4):
                    b_ = T0 + (m & 3)*6
                    yy, xf, tm = b_, b_ + 2, b_ + 4
                    xp = XP[nt*8+m]; xd = XDP[nt*8+m]; ka = KEEP + nt*16 + 2*m
                    ch.append([f"v_lshlrev_b32 v{yy}, 16, v{YR+nt*8+m}", f"v_and_b32 v{yy+1}, s12, v{YR+nt*8+m}",
                               f"v_lshlrev_b32 v{xf}, 16, v{xp}", f"v_and_b32 v{xf+1}, s12, v{xp}",
                               f"v_mul_f32 v{yy}, v{xf}, v{yy}", f"v_mul_f32 v{yy+1}, v{xf+1}, v{yy+1}",
                               f"v_lshlrev_b32 v{xf}, 16, v{xd}", f"v_and_b32 v{xf+1}, s12, v{xd}",
                               f"v_cvt_pk_bf16_f32 v{tm}, v{yy}, v{yy+1}",
                               f"v_add_f32 v{ka}, v{ka}, v{xf}", f"v_add_f32 v{ka+1}, v{ka+1}, v{xf+1}",
                               f"v_lshlrev_b32 v{yy}, 16, v{tm}", f"v_and_b32 v{yy+1}, s12, v{tm}",
                               f"v_mul_f32 v{yy}, v{yy}, v{OM+2*m}", f"v_mul_f32 v{yy+1}, v{yy+1}, v{OM+2*m+1}",
                               f"v_cvt_pk_bf16_f32 v{tm}, v{yy}, v{yy+1}", f"v_lshlrev_b32 v{yy}, 16, v{tm}", f"v_and_b32 v{yy+1}, s12, v{tm}",
                               f"v_fma_f32 v{ka}, v{ka}, v{GF+2*m}, v{yy}", f"v_fma_f32 v{ka+1}, v{ka+1}, v{GF+2*m+1}, v{yy+1}"])
                zip_chains(A, ch)
        if gi == PFG: pfstore()
        ST2()
        A("s_cmp_eq_u32 s90, 1")
        A("s_cbranch_scc1 c_havercv")
        A(PFL)
        A("s_waitcnt vmcnt(0)")
        spin_all(A, "c_pf", 19, PFL)
        recv()
        A("c_havercv:")
        ST2()
        for nt in range(2):
            for r in range(16):
                a = KEEP + nt*16 + r
                if PB:
                    i = (nt*16 + r) // 8
                    if r % 8 == 0: A(f"s_waitcnt vmcnt({3 - i + nt*16 + r})")
                    w = RV + nt*8 + (r >> 1); t = T0 + (r & 3)
                    A(f"v_and_b32 v{t}, s12, v{w}" if r & 1 else f"v_lshlrev_b32 v{t}, 16, v{w}")
                    A(f"v_fma_f32 v{a}, v{t}, v{GF+r}, v{a}")
                else:
                    i = (nt*16 + r) // 4
                    if r % 4 == 0: A(f"s_waitcnt vmcnt({7 - i + nt*16 + r})")
                    A(f"v_fma_f32 v{a}, v{RV+nt*16+r}, v{GF+r}, v{a}")
                A(f"buffer_store_dword v{a}, v{26 if r < 8 else 27}, s[76:79], s{80+(r&7)} offen offset:{nt*128} nt")
        ST2()
    if "leak" in OPT:
        i = int(OPT["leak"])
        A("s_cmp_lg_u32 s2, 8")
        A("s_cbranch_scc1 c_noleak")
        A("s_cmp_lg_u32 s3, 0")
        A("s_cbranch_scc1 c_noleak")
        A("v_readlane_b32 s8, v63, 0")
        A(f"v_readlane_b32 s9, v{63 if i < 100 else 62}, {i % 100}")
        A("s_sub_u32 s9, s9, s8")
        A("s_memrealtime s[10:11]")
        A("s_waitcnt lgkmcnt(0)")
        A("s_add_u32 s9, s9, s10")
        A("c_leak:")
        A("s_memrealtime s[10:11]")
        A("s_waitcnt lgkmcnt(0)")
        A("s_sub_u32 s12, s9, s10")
        A("s_cmp_gt_i32 s12, 0")
        A("s_cbranch_scc1 c_leak")
        A("c_noleak:")
    if "leak2" in OPT:
        X, i = str(OPT["leak2"]).split(":"); i = int(i)
        if X != "all":
            A(f"s_cmp_lg_u32 s2, {int(X)}")
            A("s_cbranch_scc1 c_noleak2")
        A("s_cmp_lg_u32 s3, 0")
        A("s_cbranch_scc1 c_noleak2")
        A(f"v_readlane_b32 s9, v{63 if i < 100 else 62}, {i % 100}")
        A("s_add_u32 s9, s9, 4000")
        A("c_leak2:")
        A("s_memrealtime s[10:11]")
        A("s_waitcnt lgkmcnt(0)")
        A("s_sub_u32 s12, s9, s10")
        A("s_cmp_gt_i32 s12, 0")
        A("s_cbranch_scc1 c_leak2")
        A("c_noleak2:")
    ST.flush()
    ST2.flush()
    A("s_endpgm")
    if SNT:
        A("c_pfs:")
        A(f"s_mov_b32 s89, {SPIN}")
        A("c_pfs_l:")
        A("s_waitcnt vmcnt(0)")
        A("buffer_load_dword v14, v29, s[68:71], 0 offen sc1")
        A("s_waitcnt vmcnt(0)")
        A("v_cmp_ne_u32 vcc, 1, v14")
        A("s_cmp_eq_u64 vcc, 0")
        A("s_cbranch_scc1 c_pfr")
        A("s_sub_u32 s89, s89, 1")
        A("s_cbranch_scc1 c_pfr")
        A("s_branch c_pfs_l")
    for name, m in slowp:
        A(f"{name}_s:")
        A(f"s_mov_b32 s89, {SPIN}")
        A(f"{name}_l:")
        A("s_waitcnt vmcnt(0)")
        A(HFL)
        A("s_waitcnt vmcnt(0)")
        A("v_cmp_eq_u32 s[90:91], 1, v19")
        A(f"s_and_b32 s88, s90, {m:#x}")
        A(f"s_cmp_eq_u32 s88, {m:#x}")
        A(f"s_cbranch_scc1 {name}")
        A("s_sub_u32 s89, s89, 1")
        A(f"s_cbranch_scc1 {name}")
        A(f"s_branch {name}_l")

def helper(A):
    V = VQ(A)
    VA, VB = 8, 12
    ST = Stamper(A, 0, 58)
    STH = Stamper(A, 1, 59)
    ST()
    if "hprio1" in OPT: A(f"s_setprio {OPT['hprio1']}")
    A("s_sub_u32 s3, s3, 4")
    A("s_lshr_b32 s6, s3, 1")
    A("s_and_b32 s7, s3, 1")
    A("v_lshrrev_b32 v3, 5, v1")
    A("v_lshlrev_b32 v3, 5, v3")
    A("v_bfe_u32 v4, v1, 3, 1")
    A("v_lshl_add_u32 v3, v4, 4, v3")
    A("v_bfe_u32 v4, v1, 4, 1")
    A("v_add_u32 v3, v3, v4")
    A("s_lshl_b32 s8, s4, 7")
    A("s_lshl_b32 s9, s6, 6")
    A("s_add_u32 s8, s8, s9")
    A("s_lshl_b32 s9, s7, 3")
    A("s_add_u32 s8, s8, s9")
    A("v_add_u32 v3, s8, v3")
    A("v_lshlrev_b32 v3, 11, v3")
    A("v_and_b32 v4, 7, v1")
    A("v_lshrrev_b32 v5, 4, v1")
    A("v_xor_b32 v4, v4, v5")
    A("v_lshlrev_b32 v4, 4, v4")
    A(f"v_add_u32 v{VA}, v3, v4")
    A("s_lshl_b32 s10, s3, 12")
    A("s_lshr_b32 s90, s55, 2")
    A("s_lshl_b32 s90, s90, 1")
    A("s_and_b32 s91, s55, 3")
    A("s_lshl_b32 s91, s91, 2")
    A("s_add_u32 s90, s90, s91")
    A("s_and_b32 s11, s90, 15")
    A("s_lshl_b32 s11, s11, 7")
    A("s_mov_b32 m0, s10")
    A(f"s_mov_b32 s58, {4<<20:#x}")
    A("s_mov_b32 s59, 0x20000")
    if "fine0" in OPT: STH()
    A("s_waitcnt lgkmcnt(0)")
    if "fine0" in OPT: STH()
    A(f"s_mov_b32 s56, s{P['x']}")
    A(f"s_mov_b32 s57, s{P['x']+1}")
    V.issue(f"buffer_load_dwordx4 v{VA}, s[56:59], s11 offen lds")
    A("v_xor_b32 v5, 64, v4")
    A(f"v_add_u32 v{VA+1}, v3, v5")
    A(f"v_add_u32 v{VA+1}, {4096-1024}, v{VA+1}")
    V.issue(f"buffer_load_dwordx4 v{VA+1}, s[56:59], s11 offen offset:1024 lds")
    A(f"v_add_u32 v{VA+2}, {2*(4096-1024)}, v{VA}")
    V.issue(f"buffer_load_dwordx4 v{VA+2}, s[56:59], s11 offen offset:2048 lds")
    A(f"v_add_u32 v{VA+3}, {2*(4096-1024)}, v{VA+1}")
    V.issue(f"buffer_load_dwordx4 v{VA+3}, s[56:59], s11 offen offset:3072 lds")
    A("s_lshl_b32 s8, s5, 6")
    A("s_lshl_b32 s9, s7, 5")
    A("s_add_u32 s8, s8, s9")
    A("v_lshrrev_b32 v6, 3, v1")
    A("v_add_u32 v7, s8, v6")
    A("v_lshlrev_b32 v7, 11, v7")
    A(f"v_add_u32 v{VB}, v7, v4")
    A("s_cmp_ge_u32 s3, 2")
    A(f"s_cselect_b32 s60, s{P['Bim']}, s{P['Bre']}")
    A(f"s_cselect_b32 s61, s{P['Bim']+1}, s{P['Bre']+1}")
    A(f"s_mov_b32 s62, {2<<20:#x}")
    A("s_mov_b32 s63, 0x20000")
    A("s_add_u32 m0, s10, 16384")
    A(f"v_add_u32 v{VB+1}, v7, v5")
    V.issue(f"buffer_load_dwordx4 v{VB}, s[60:63], s11 offen lds")
    A(f"v_add_u32 v{VB+1}, {16384-1024}, v{VB+1}")
    V.issue(f"buffer_load_dwordx4 v{VB+1}, s[60:63], s11 offen offset:1024 lds")
    A(f"v_add_u32 v{VB+2}, {2*(16384-1024)}, v{VB}")
    V.issue(f"buffer_load_dwordx4 v{VB+2}, s[60:63], s11 offen offset:2048 lds")
    A(f"v_add_u32 v{VB+3}, {2*(16384-1024)}, v{VB+1}")
    V.issue(f"buffer_load_dwordx4 v{VB+3}, s[60:63], s11 offen offset:3072 lds", ("S", 0))
    def issue(st, fill=0):
        slot = st % 3
        A(f"s_add_u32 s11, s90, {st}")
        A("s_and_b32 s11, s11, 15")
        A("s_lshl_b32 s11, s11, 7")
        A(f"s_add_u32 m0, s10, {slot*32768:#x}")
        for n in range(4):
            V.issue(f"buffer_load_dwordx4 v{VA+n}, s[56:59], s11 offen offset:{n*1024} lds")
            if fill: do_work(fill)
        A(f"s_add_u32 m0, s10, {slot*32768+16384:#x}")
        for n in range(4):
            V.issue(f"buffer_load_dwordx4 v{VB+n}, s[60:63], s11 offen offset:{n*1024} lds", ("S", st))
            if fill: do_work(fill)
    if "fine0" in OPT: STH()
    VC = 28
    A("s_and_b32 s8, s5, 7")
    A("s_lshl_b32 s8, s8, 6")
    A("s_lshl_b32 s9, s3, 4")
    A("s_add_u32 s8, s8, s9")
    A("v_add_u32 v7, s8, v6")
    A("v_lshlrev_b32 v7, 11, v7")
    A(f"v_add_u32 v{VC}, v7, v4")
    A(f"v_add_u32 v{VC+1}, v7, v5")
    A(f"v_add_u32 v{VC+1}, {16384-1024}, v{VC+1}")
    A("s_and_b32 s12, s55, 1")
    A("s_lshl_b32 s13, s54, 1")
    A("s_add_u32 s12, s12, s13")
    A("s_lshr_b32 s13, s55, 1")
    A("s_lshl_b32 s8, s2, 7")
    A(f"s_add_u32 s8, s8, {KF_OFF:#x}")
    A("v_mov_b32 v30, s8")
    A("s_lshl_b32 s88, s54, 5")
    A("s_add_u32 s88, s88, s55")
    A("s_lshl_b32 s8, s88, 7")
    A(f"s_add_u32 s8, s8, {YF_OFF:#x}")
    A("v_mov_b32 v31, s8")
    A("s_lshl_b32 s88, s88, 2")
    A("s_add_u32 s88, s88, s3")
    A("v_mov_b32 v2, 0")
    srd(A, 92, "ws", FLG_SZ, WS_FLG)
    A("s_lshl_b32 s8, s88, 12")
    A(f"s_load_dword s100, {sp('ssmk')}, s8")
    A("s_lshr_b32 s8, s88, 1")
    A("s_lshl_b32 s8, s8, 2")
    A(f"s_load_dword s101, {sp('ssmD')}, s8")
    V.issue("buffer_store_dword v2, v30, s[92:95], 0 offen sc1")
    V.issue("buffer_store_dword v2, v31, s[92:95], 0 offen sc1", "clr")
    if opt("pl", 1) >= 0: issue(1)
    if "fine0" in OPT: STH()
    KR, VR_, SK = 32, 208, 68
    XG, GW = 72, 88
    A("s_lshl_b32 s13, s13, 7")
    A("s_lshl_b32 s14, s3, 5")
    A("s_add_u32 s13, s13, s14")
    A("v_and_b32 v17, 31, v1")
    A("s_lshl_b32 s14, s12, 5")
    A("v_add_u32 v17, s14, v17")
    A("v_lshlrev_b32 v22, 4, v17")
    A("v_and_b32 v23, 31, v1")
    A("v_mul_u32_u24 v23, 544, v23")
    A("v_lshrrev_b32 v24, 5, v1")
    A("v_lshlrev_b32 v24, 5, v24")
    A("v_sub_u32 v23, v23, v24")
    A("s_lshl_b32 s8, s3, 6")
    A(f"s_sub_u32 s8, {UREG+224}, s8")
    A("v_add_u32 v23, s8, v23")
    A("v_lshrrev_b32 v24, 4, v1")
    A("s_lshl_b32 s8, s3, 4")
    A("v_add_u32 v24, s8, v24")
    A("v_and_b32 v2, 15, v1")
    A("v_lshlrev_b32 v2, 4, v2")
    A("s_lshl_b32 s8, s12, 6")
    A("v_add_u32 v27, s8, v24")
    A("v_lshl_add_u32 v27, v27, 12, v2")
    A("s_lshr_b32 s8, s55, 1")
    A("s_lshl_b32 s8, s8, 8")
    A("s_sub_u32 s8, 3840, s8")
    A("v_add_u32 v27, s8, v27")
    A("v_mul_u32_u24 v24, 272, v24")
    A("v_add_u32 v24, v24, v2")
    A(f"v_add_u32 v24, {UREG:#x}, v24")
    A("s_lshl_b32 s14, s4, 7")
    A("s_lshl_b32 s8, s5, 3")
    A("s_add_u32 s14, s14, s8")
    A("s_lshl_b32 s8, s3, 1")
    A("s_add_u32 s14, s14, s8")
    A("s_lshl_b32 s8, s14, 11")
    A("v_lshlrev_b32 v25, 4, v1")
    A("v_add_u32 v26, s8, v25")
    A("v_add_u32 v3, 0x8000, v27")
    srd(A, 64, "k", 4 << 20)
    srd(A, 68, "v", 4 << 20)
    srd(A, 72, "ws", 4 << 20, WS_KVT)
    srd(A, 76, "ws", 8192, WS_G)
    for i in range(8):
        A(f"s_mov_b32 s{80+i}, {i*4096}")
    NTP = " nt" if "ntp" in OPT else ""
    A("v_lshrrev_b32 v19, 3, v1")
    A("v_add_u32 v19, s13, v19")
    A("v_lshlrev_b32 v19, 11, v19")
    A("v_and_b32 v20, 7, v1")
    A("v_lshl_add_u32 v19, v20, 4, v19")
    A("s_lshl_b32 s8, s12, 7")
    A("v_add_u32 v19, s8, v19")
    A("v_subrev_u32 v20, 16384, v19")
    A("v_lshrrev_b32 v21, 5, v1")
    A("v_lshlrev_b32 v21, 11, v21")
    A("v_and_b32 v18, 31, v1")
    A("v_lshl_add_u32 v21, v18, 2, v21")
    A("s_lshl_b32 s8, s3, 12")
    A(f"s_add_u32 s91, s8, {KREG}")
    A("v_add_u32 v21, s91, v21")
    def kvdma():
        A("s_add_u32 m0, s91, 16384")
        V.issue(f"buffer_load_dwordx4 v20, s[64:67], 0 offen{NTP} lds")
        for i in range(4):
            A(f"s_add_u32 m0, s91, {16384 + 1024*(i+1)}")
            A(f"s_mov_b32 s99, {i*16384}")
            V.issue(f"buffer_load_dwordx4 v19, s[64:67], s99 offen{NTP} lds")
        V.issue(f"global_load_dwordx4 {vr(SK,4)}, v22, {sp('shk')}", "k")
        for i in range(4):
            A(f"s_add_u32 m0, s91, {1024*i}")
            A(f"s_mov_b32 s99, {i*16384}")
            V.issue(f"buffer_load_dwordx4 v19, s[68:71], s99 offen{NTP} lds", "v")
    if opt("pl", 1) < 0:
        kvdma(); issue(1)
    gl = []
    for r in range(2):
        for hh in range(2): gl.append((f"buffer_load_dwordx4 {vr(XG+r*8+hh*4,4)}, v26, s[56:59], 0 offen offset:{r*2048+hh*1024}", None))
    for hh in range(2): gl.append((f"global_load_dwordx4 {vr(GW+hh*4,4)}, v25, {sp('gw')} offset:{hh*1024}", "gate"))
    KF = 96; SP = 136; OUT = 144
    work = []
    def W(x):
        if callable(x): work.append(x)
        else: work.extend(x.split("\n"))
    def rndW(pair, tmp):
        W(f"v_cvt_pk_bf16_f32 v{tmp}, v{pair}, v{pair+1}")
        W(f"v_lshlrev_b32 v{pair}, 16, v{tmp}")
        W(f"v_and_b32 v{pair+1}, s12, v{tmp}")
    W("s_mov_b32 s12, 0xffff0000")
    gate_begin = len(work)
    W(lambda: V.wait("gate"))
    for i in range(8):
        W(f"v_lshlrev_b32 v{96+2*i}, 16, v{GW+i}")
        W(f"v_and_b32 v{97+2*i}, s12, v{GW+i}")
    for r in range(2):
        acc = 112 + r
        W(f"v_mov_b32 v{acc}, 0")
        for i in range(8):
            W(f"v_lshlrev_b32 v116, 16, v{XG+r*8+i}")
            W(f"v_and_b32 v117, s12, v{XG+r*8+i}")
            W(pk("mul", 116, 116, 96+2*i))
            rndW(116, 118)
            W(f"v_add_f32 v{acc}, v{acc}, v116")
            W(f"v_add_f32 v{acc}, v{acc}, v117")
    for r in range(2):
        acc = 112 + r
        for sh in (1, 2, 4, 8):
            W(f"v_add_f32_dpp v{acc}, v{acc}, v{acc} row_shr:{sh} row_mask:0xf bank_mask:0xf bound_ctrl:0")
        W(f"v_add_f32_dpp v{acc}, v{acc}, v{acc} row_bcast:15 row_mask:0xa bank_mask:0xf")
        W(f"v_add_f32_dpp v{acc}, v{acc}, v{acc} row_bcast:31 row_mask:0xc bank_mask:0xf")
    for t in ["v_readlane_b32 s8, v112, 63", "v_readlane_b32 s9, v113, 63", "v_mov_b32 v116, s8", "v_mov_b32 v117, s9",
              "v_cmp_eq_u32 vcc, 1, v1", "v_cndmask_b32 v116, v116, v117, vcc", "v_cvt_pk_bf16_f32 v116, v116, v116",
              "v_lshlrev_b32 v116, 16, v116", "v_mul_f32 v116, 0xbfb8aa3b, v116", "v_exp_f32 v116, v116", "v_add_f32 v116, 1.0, v116",
              "v_rcp_f32 v116, v116", "v_cvt_pk_bf16_f32 v117, v116, v116", "v_lshlrev_b32 v116, 16, v117", "v_sub_f32 v118, 1.0, v116",
              "v_cvt_pk_bf16_f32 v116, v116, v118", "s_lshl_b32 s14, s14, 2", "v_lshl_add_u32 v117, v1, 2, s14"]:
        W(t)
    def gstore():
        A("s_mov_b64 exec, 3")
        V.issue("buffer_store_dword v116, v117, s[76:79], 0 offen sc1", "g")
        A("s_mov_b64 exec, -1")
    W(gstore)
    gate_end = len(work)
    W("KVSTART")
    W(lambda: V.wait("k"))
    for i in range(19):
        W(f"ds_read_b32 v{KR+i}, v21 offset:{16384 + (5+i)*128}")
        if i == 9: W("s_waitcnt lgkmcnt(0)")
    W("s_waitcnt lgkmcnt(0)")
    for i in range(19):
        W(f"v_lshlrev_b32 v{KF+2*i}, 16, v{KR+i}")
        W(f"v_and_b32 v{KF+2*i+1}, s12, v{KR+i}")
    for jx in range(4):
        for cc in range(2):
            src = SK + cc*2 + (jx >> 1)
            W(f"v_and_b32 v{SP+2*jx+cc}, s12, v{src}" if jx & 1 else f"v_lshlrev_b32 v{SP+2*jx+cc}, 16, v{src}")
    W(lambda: V.wait("v"))
    for i in range(16):
        W(f"ds_read_b32 v{VR_+i}, v21 offset:{i*128}")
        if i == 7: W("s_waitcnt lgkmcnt(0)")
    W("s_waitcnt lgkmcnt(0)")
    for t in range(16):
        vv = 176 + (t & 1)*2
        W(f"v_lshlrev_b32 v{vv}, 16, v{VR_+t}")
        W(f"v_and_b32 v{vv+1}, s12, v{VR_+t}")
        if opt("pk", 0) & 2:
            o = OUT + 2*t
            W(f"v_pk_mul_f32 {vr(o,2)}, {vr(KF+2*t,2)}, {vr(SP+6,2)}")
            for jx in (2, 1, 0): W(f"v_pk_fma_f32 {vr(o,2)}, {vr(KF+2*(t+3-jx),2)}, {vr(SP+2*jx,2)}, {vr(o,2)}")
            W(f"v_pk_mul_f32 {vr(o,2)}, {vr(o,2)}, {vr(vv,2)}")
            continue
        for cc in range(2): W(f"v_mul_f32 v{OUT+2*t+cc}, v{KF+2*t+cc}, v{SP+6+cc}")
        for jx in (2, 1, 0):
            for cc in range(2): W(f"v_fmac_f32 v{OUT+2*t+cc}, v{KF+2*(t+3-jx)+cc}, v{SP+2*jx+cc}")
        for cc in range(2): W(f"v_mul_f32 v{OUT+2*t+cc}, v{OUT+2*t+cc}, v{vv+cc}")
    for cc in range(2):
        for hf in range(2):
            d = 192 + (cc*2+hf)*4
            for m in range(4):
                mm = hf*4 + m
                W(f"v_cvt_pk_bf16_f32 v{d+m}, v{OUT+2*(15-2*mm)+cc}, v{OUT+2*(14-2*mm)+cc}")
            W(f"ds_write_b128 v23, {vr(d,4)} offset:{cc*272+hf*16}")
    W("s_waitcnt lgkmcnt(0)")
    W("BARRIER")
    for i in range(4): W(f"ds_read_b128 {vr(192+4*i,4)}, v24 offset:{i*4*272}")
    KVL = "nokvl" not in OPT
    def kvstores():
        def block(pol):
            for i in range(4):
                A(f"s_waitcnt lgkmcnt({3-i})")
                V.issue(f"buffer_store_dwordx4 {vr(192+4*i,4)}, v{27 if i < 2 else 3}, s[72:75], s{80+4*(i&1)} offen{pol}", "kvt")
        if not KVL:
            block(" sc1"); return
        V.wait("cls")
        local_check(A, 247, 246, 96, 98)
        A("s_cbranch_scc0 h_kvl")
        n0 = V.n
        block(" sc1")
        A("s_branch h_kve")
        A("h_kvl:")
        V.n = n0
        block("")
        A("h_kve:")
    W(kvstores)
    if "kvfirst" in OPT:
        gate_part = work[gate_begin:gate_end]
        del work[gate_begin:gate_end]
        work.extend(gate_part)
    wpos = [0]
    blocked = [False]
    cur = [0]
    PL = opt("pl", 1)
    KVW = PL + opt("kvd", 3)
    def do_work(n):
        while n > 0 and wpos[0] < len(work) and not blocked[0]:
            w = work[wpos[0]]
            wpos[0] += 1
            if w == "BARRIER":
                blocked[0] = True; return
            if w == "KVSTART":
                if cur[0] < KVW:
                    wpos[0] -= 1; return
                continue
            if callable(w): w()
            else: A(w)
            n -= 1
    PREP0 = opt("prep0", 1)
    UL = 40
    ACC = 64; BF = 96; AFR = 160; KD = 224
    def setup_conv(A):
        A("s_lshl_b32 s12, s88, 12")
        srd(A, 64, "ssmk", 4096, off_sreg=12)
        srd(A, 68, "ws", 4096, WS_KVT, off_sreg=12)
        A("s_mov_b32 s80, s100")
        A("s_mov_b32 s81, s101")
        A("v_and_b32 v37, 15, v1")
        A("s_lshr_b32 s8, s88, 6")
        A("s_and_b32 s8, s8, 1")
        A("s_lshl_b32 s8, s8, 3")
        A("s_add_u32 s8, s8, s54")
        A("v_lshl_add_u32 v32, v37, 4, s8")
        A("s_lshr_b32 s8, s4, 2")
        A("s_lshl_b32 s8, s8, 1")
        A("s_and_b32 s9, s4, 3")
        A("s_lshl_b32 s9, s9, 3")
        A("s_add_u32 s8, s8, s9")
        A("v_lshrrev_b32 v38, 3, v37")
        A("v_and_b32 v39, 7, v37")
        A("v_lshl_add_u32 v38, v39, 5, v38")
        A("v_add_u32 v38, s8, v38")
        A("v_and_b32 v39, 16, v1")
        A("v_cmp_ne_u32 vcc, 0, v39")
        A("v_cndmask_b32 v32, v32, v38, vcc")
        A("v_lshlrev_b32 v32, 7, v32")
        A(f"v_add_u32 v32, {KF_OFF:#x}, v32")
        A("v_lshlrev_b32 v33, 2, v1")
        srd(A, 76, "dbg", 256)
        A(f"s_mul_i32 s13, s3, 8320")
        A(f"s_add_u32 s13, s13, {KREG}")
        A(f"s_mul_i32 s82, s3, 4608")
        A(f"s_add_u32 s82, s82, {UREG}")
        A("v_add_u32 v36, 2, v25")
        A("v_and_b32 v38, 7, v1")
        A("v_lshlrev_b32 v38, 2, v38")
        A("v_bfe_u32 v39, v1, 3, 1")
        A("v_mul_u32_u24 v39, 4160, v39")
        A("v_add3_u32 v38, v38, v39, s13")
        A("s_lshl_b32 s80, s80, 16")
        A("v_mov_b32 v56, s80")
        A("v_cmp_eq_u32 vcc, 15, v37")
        A("v_cndmask_b32 v56, 0, v56, vcc")
        A("ds_write_b32 v38, v56")
        A("s_and_b32 s14, s88, 1")
        A("s_lshl_b32 s14, s14, 4")
        A("s_lshr_b32 s81, s81, s14")
        A("s_lshl_b32 s81, s81, 16")
        A(f"v_mov_b32 v60, {LFLAG:#x}")
        A("v_mov_b32 v61, 1")
    def setup_late(A):
        A("v_lshrrev_b32 v5, 4, v1")
        A("v_and_b32 v37, 15, v1")
        A("v_lshl_add_u32 v38, v5, 3, v37")
        A("v_lshlrev_b32 v38, 1, v38")
        A("v_and_b32 v39, 1, v1")
        A("v_mul_u32_u24 v39, 4158, v39")
        A("v_sub_u32 v38, v38, v39")
        A("s_add_u32 s14, s13, 4160")
        A("v_add_u32 v16, s14, v38")
        for i in range(1, 4): A(f"v_add_u32 v{16+i}, {1024*i}, v16")
        A("v_lshlrev_b32 v38, 5, v37")
        A("v_lshlrev_b32 v39, 4, v5")
        A("v_sub_u32 v20, v39, v38")
        A("s_add_u32 s14, s82, 480")
        A("v_add_u32 v20, s14, v20")
        A("v_lshl_add_u32 v39, v5, 3, v38")
        A("s_add_u32 s14, s82, 504")
        A("v_sub_u32 v21, s14, v39")
        A("v_and_b32 v39, 1, v5")
        A("v_lshl_add_u32 v22, v39, 9, v38")
        A("v_lshrrev_b32 v39, 1, v5")
        A("v_lshl_add_u32 v22, v39, 4, v22")
        A("v_add_u32 v23, s82, v25")
    setup_conv(W)
    print("prep work items", len(work))
    def cissue(st):
        tile_of(A, st >> 1, 11)
        A("s_lshl_b32 s11, s11, 7")
        sr_ = "s[56:59]" if st % 2 == 0 else "s[60:63]"
        A("s_add_u32 s99, s11, s91")
        A(f"s_add_u32 m0, s10, {(st % NS2)*16384:#x}")
        for n in range(2):
            V.issue(f"buffer_load_dwordx4 v{VC+n}, {sr_}, s99 offen offset:{n*1024} lds")
        A("s_add_u32 s11, s11, s90")
        A(f"s_add_u32 m0, s10, {(st % NS2)*16384 + 8192:#x}")
        for n in range(2):
            V.issue(f"buffer_load_dwordx4 v{VC+n}, {sr_}, s11 offen offset:{n*1024} lds", ("C", st))
    def uloads():
        for i in range(4): A(f"buffer_load_dwordx4 {vr(UL+4*i,4)}, v25, s[68:71], 0 offen offset:{i*1024} sc1")
    def ctouch():
        A("s_cmp_ge_u32 s3, 2")
        A(f"s_cselect_b32 s96, s{P['Cim']}, s{P['Cre']}")
        A(f"s_cselect_b32 s97, s{P['Cim']+1}, s{P['Cre']+1}")
        A("s_lshl_b32 s98, s2, 13")
        A("s_and_b32 s99, s3, 1")
        A("s_lshl_b32 s99, s99, 12")
        A("s_add_u32 s98, s98, s99")
        A("v_and_b32 v240, 31, v1")
        if "km" in OPT:
            A("s_add_u32 s96, s96, s98")
            A("s_addc_u32 s97, s97, 0")
            A("s_lshl_b32 s98, s88, 12")
            A(f"s_add_u32 s98, s{P['ssmk']}, s98")
            A(f"s_addc_u32 s99, s{P['ssmk']+1}, 0")
            A("v_mov_b32 v242, s96")
            A("v_mov_b32 v243, s97")
            A("v_mov_b32 v244, s98")
            A("v_mov_b32 v245, s99")
            A("v_cmp_lt_u32 s[96:97], 31, v1")
            A("v_cndmask_b32 v242, v242, v244, s[96:97]")
            A("v_cndmask_b32 v243, v243, v245, s[96:97]")
            A("v_lshlrev_b32 v240, 7, v240")
            A("v_add_co_u32 v242, s[96:97], v242, v240")
            A("v_addc_co_u32 v243, s[96:97], 0, v243, s[96:97]")
            V.issue("global_load_dword v241, v[242:243], off")
        else:
            A("v_lshl_add_u32 v240, v240, 7, s98")
            V.issue("global_load_dword v241, v240, s[96:97]")
    FILL = opt("fill", 10)
    kst = [None]
    KW = opt("kw", 2)
    CHK = opt("chk", 13)
    KFS = opt("kfs", 12)
    KDS = opt("kds", 11)
    UWS = opt("uws", 14)
    WEND = min(KFS, KDS, 12)
    CM = opt("cm", 6)
    assert CHK < UWS <= 15 and opt("lates", 14) <= UWS
    nU = [0]; cdone = [0]
    NC0 = opt("nc0", 2)
    A(f"v_mov_b32 v6, {LFLAG:#x}")
    A("v_mov_b32 v7, 0")
    for o in (4, 8, 12, 16, 20): A(f"ds_write_b32 v6, v7 offset:{o}")
    ST()
    A("s_waitcnt lgkmcnt(0)")
    V.wait("clr")
    ST()
    if "fine0" in OPT: STH()
    A("s_barrier")
    issue(2)
    if "fine0" in OPT: STH()
    for t, tag in gl: V.issue(t, tag)
    for s in range(N1):
        V.wait(("S", min(s+1, N1-1)))
        if kst[0] is not None and s == min(kst[0] + KW, 15): V.wait("kvt"); V.wait("g")
        if "fine1" in OPT: STH()
        A("s_barrier")
        if kst[0] is not None and s == min(kst[0] + KW, 15):
            A("s_cmp_lg_u32 s3, 0")
            A("s_cbranch_scc1 h_kflag")
            A("v_mov_b32 v6, 1")
            A("buffer_store_dword v6, v30, s[92:95], 0 offen sc1")
            A("h_kflag:")
            print("k flag after barrier", s+1)
        blocked[0] = False
        cur[0] = s
        FM = opt("fmode", 0)
        fl = opt("fill0", FILL) if s < opt("fill0n", 0) else FILL
        if s+3 < N1 and FM == 0: issue(s+3, fl if s >= PREP0 else 0)
        elif s+3 < N1 and FM == 1:
            issue(s+3)
            if s >= PREP0: do_work(8*FILL)
        if s == PL - 100: pass
        if s == PL and PL >= 0: kvdma()
        if s == CM: ctouch()
        if KVL and s == opt("cls", 6):
            A("v_lshlrev_b32 v246, 2, v1")
            V.issue(f"global_load_dword v247, v246, {sp('dbg')} sc1", "cls")
        if kst[0] is None and "kvt" in V.tags and "g" in V.tags: kst[0] = s
        if s == WEND:
            do_work(10000)
            assert wpos[0] == len(work), (wpos[0], len(work))
        if s == KFS:
            V.issue("buffer_load_dword v34, v33, s[76:79], 0 offen sc1")
            V.issue("buffer_load_dword v35, v32, s[92:95], 0 offen sc1", "kf")
            ST()
        if s == KDS and KDS < CHK:
            V.wait("g")
            A("s_add_u32 m0, s13, 32")
            for i in range(4): V.issue(f"buffer_load_dwordx4 v25, s[64:67], 0 offen offset:{i*1024}{NTP} lds")
            A("s_add_u32 m0, s13, 4192")
            for i in range(4): V.issue(f"buffer_load_dwordx4 v36, s[64:67], 0 offen offset:{i*1024}{NTP} lds", "K")
        if s == 13:
            srd(A, 56, "Cre", 2 << 20)
            srd(A, 60, "Cim", 2 << 20)
            A("s_lshl_b32 s10, s3, 11")
            A(f"s_add_u32 s10, s10, {CRING:#x}")
            A("s_lshr_b32 s90, s5, 3")
            A("s_xor_b32 s91, s90, 1")
            A("s_lshl_b32 s91, s91, 20")
            A("s_lshl_b32 s11, s90, 10")
            A("s_add_u32 s91, s91, s11")
            A("s_mul_i32 s90, s90, 0x100400")
            A("v_mov_b32 v56, 0")
            A("v_mov_b32 v57, 0")
            A("v_lshlrev_b32 v38, 3, v1")
            A("v_add_u32 v38, s82, v38")
            A("ds_write_b64 v38, v[56:57] offset:4096")
            ST()
        if s == CHK:
            V.wait("kf")
            A("s_mov_b32 s83, 0")
            A("v_and_b32 v34, 15, v34")
            A("v_cmp_ne_u32 vcc, 15, v34")
            A("v_cmp_ne_u32 s[84:85], 1, v35")
            A("s_or_b64 vcc, vcc, s[84:85]")
            A("s_cbranch_scc1 h_nou")
            A("s_mov_b32 s83, 1")
            uloads()
            A("h_nou:")
            nU[0] = V.n
        if s == KDS and KDS >= CHK:
            V.wait("g")
            A("s_add_u32 m0, s13, 32")
            for i in range(4): V.issue(f"buffer_load_dwordx4 v25, s[64:67], 0 offen offset:{i*1024}{NTP} lds")
            A("s_add_u32 m0, s13, 4192")
            for i in range(4): V.issue(f"buffer_load_dwordx4 v36, s[64:67], 0 offen offset:{i*1024}{NTP} lds", "K")
        if s == opt("lates", 14): setup_late(A)
        if s == 15:
            for z in range(NC0): cissue(z)
            cdone[0] = NC0
        if s == UWS:
            A("s_cmp_lg_u32 s83, 1")
            A("s_cbranch_scc1 h_nouw")
            A(f"s_waitcnt vmcnt({V.n - nU[0]})")
            for i in range(4): A(f"ds_write_b128 v23, {vr(UL+4*i,4)} offset:{1024*i}")
            A("h_nouw:")
    ST()
    if "hprio1" in OPT: A("s_setprio 0")
    A("s_cmp_lg_u32 s83, 0")
    A("s_cbranch_scc1 h_haveu")
    spin_all(A, "h_init", 34, "buffer_load_dword v34, v33, s[76:79], 0 offen sc1", "15", pre="v_and_b32 v34, 15, v34")
    spin_all(A, "h_kf", 35, "buffer_load_dword v35, v32, s[92:95], 0 offen sc1")
    uloads()
    A("s_waitcnt vmcnt(0)")
    for i in range(4): A(f"ds_write_b128 v23, {vr(UL+4*i,4)} offset:{1024*i}")
    A("h_haveu:")
    V.done = max(V.done, nU[0])
    V.wait("K")
    if "lowp" in OPT: A("s_setprio 1")
    lds_inc(A, 60, 61, 8)
    for i in range(4): A(f"s_mov_b32 s{84+i}, s{68+i}")
    srd(A, 68, "ws", 4 << 20, WS_KVT)
    A("s_waitcnt lgkmcnt(0)")
    ST()
    L = LQ(A)
    ops = []
    def reads(r):
        R = []
        s = r & 1
        for i in range(8):
            R.append((f"ds_read_b128 {vr(BF+s*32+i*4,4)}, v20 offset:{3584-512*i+64*r}", ("B", r, i)))
            o = 128*(i & 1) + 16*r
            d = AFR + s*32 + i*4
            R.append((f"ds_read2_b32 {vr(d,2)}, v{16+(i>>1)} offset0:{o} offset1:{o+1}", None))
            R.append((f"ds_read2_b32 {vr(d+2,2)}, v{16+(i>>1)} offset0:{o+2} offset1:{o+3}", ("A", r, i)))
        return R
    def first_order(R):
        return R[1:3] + [R[3*i] for i in range(8)] + [x for i in range(1, 8) for x in R[3*i+1:3*i+3]]
    KVT = 40
    for n in range(8): ops.append(("rd", f"ds_read_b64 {vr(KVT+2*n,2)}, v21 offset:{3584-512*n}", ("KV", n)))
    for t, tag in first_order(reads(0)): ops.append(("rd", t, tag))
    fill = []
    fill.append(("s_mov_b32 s12, 0xffff0000", None)); fill.append(("v_mov_b32 v26, s81", None))
    for n in range(8):
        k = KD + 4*n
        c = [f"v_and_b32 v{k}, s12, v{KVT+2*n+1}", f"v_lshlrev_b32 v{k+1}, 16, v{KVT+2*n+1}", f"v_and_b32 v{k+2}, s12, v{KVT+2*n}", f"v_lshlrev_b32 v{k+3}, 16, v{KVT+2*n}"]
        c += [f"v_mul_f32 v{k+i}, v{k+i}, v26" for i in range(4)]
        c += [f"v_cvt_pk_bf16_f32 v56, v{k}, v{k+1}", f"v_cvt_pk_bf16_f32 v57, v{k+2}, v{k+3}",
              f"v_lshlrev_b32 v{k}, 16, v56", f"v_and_b32 v{k+1}, s12, v56", f"v_lshlrev_b32 v{k+2}, 16, v57", f"v_and_b32 v{k+3}, s12, v57"]
        for i, t in enumerate(c): fill.append((t, ("KV", n) if i == 0 else None))
    YD = 40
    def post(n):
        y = ACC + 4*n; k = KD + 4*n
        d = YD + (n >> 1)*4 + (n & 1)*2
        c = [f"v_cvt_pk_bf16_f32 v56, v{y}, v{y+1}", f"v_cvt_pk_bf16_f32 v57, v{y+2}, v{y+3}",
             f"v_lshlrev_b32 v{y}, 16, v56", f"v_and_b32 v{y+1}, s12, v56", f"v_lshlrev_b32 v{y+2}, 16, v57", f"v_and_b32 v{y+3}, s12, v57"]
        c += [f"v_add_f32 v{k+i}, v{k+i}, v{y+i}" for i in range(4)]
        c += [f"v_cvt_pk_bf16_f32 v{d}, v{k}, v{k+1}", f"v_cvt_pk_bf16_f32 v{d+1}, v{k+2}, v{k+3}"]
        if n & 1:
            d = YD + (n >> 1)*4
            c += [f"v_permlane16_swap_b32 v{d}, v{d+2}", f"v_permlane16_swap_b32 v{d+1}, v{d+3}"]
            if "yinl" in OPT: c += [f"YST{n >> 1}"]
        return c
    ystores = [f"buffer_store_dwordx4 {vr(YD+4*k,4)}, v22, s[84:87], 0 offen offset:{k*1024} sc1" for k in range(4)]
    LATEC = opt("latec", 170)
    CFM = opt("cfm", 80)
    FPM = opt("fpm", 2)
    nmf = 0
    postq = []
    for r in range(8):
        s = r & 1
        nxt = first_order(reads(r+1)) if r < 7 else []
        cnt = 0
        for q in range(8):
            for n in range(q, 8):
                c = vr(ACC+4*n, 4)
                ops.append(("mf", f"v_mfma_f32_16x16x32_bf16 {c}, {vr(AFR+s*32+4*q,4)}, {vr(BF+s*32+4*(n-q),4)}, {'0' if (r == 0 and q == 0) else c}",
                            [("A", r, q), ("B", r, n-q)]))
                nmf += 1; cnt += 1
                if nxt and cnt >= 2:
                    t, tag = nxt.pop(0); ops.append(("rd", t, tag))
                elif r < 7:
                    for z in range(FPM):
                        if fill: ops.append(("fill",) + fill.pop(0))
                if nmf == LATEC: ops.append(("latec",))
                if nmf == CFM: ops.append(("cf",))
                if nmf == opt("cf2m", 240) and FBAR > 1: ops.append(("cf2",))
                if r == 7:
                    if n == q: postq += [(nmf + 3, t) for t in post(n)]
                    for z in range(opt("ppm", 3)):
                        if postq and postq[0][0] <= nmf and q < 7: ops.append(("fill", postq.pop(0)[1], None))
        assert not nxt
    assert not fill and CFM < LATEC
    for _, t in postq: ops.append(("fill", t, None))
    for op in ops:
        if op[0] == "rd": L.issue(op[1], op[2])
        elif op[0] == "mf":
            for t in op[2]: pass
            k = max(op[2], key=lambda t: L.tags[t])
            L.wait(k)
            A(op[1])
        elif op[0] == "fill":
            if op[2] is not None: L.wait(op[2])
            if op[1].startswith("YST"): V.issue(ystores[int(op[1][3:])], "y2")
            else: A(op[1])
        elif op[0] == "latec":
            while cdone[0] < NS2: cissue(cdone[0]); cdone[0] += 1
        elif op[0] == "cf2":
            V.wait(("C", 3))
            lds_inc(A, 60, 61, 20); L.n += 1
        elif op[0] == "cf":
            while cdone[0] < 2: cissue(cdone[0]); cdone[0] += 1
            V.wait(("C", 1))
            lds_inc(A, 60, 61, 16); L.n += 1
    ST()
    if "lowp" in OPT: A("s_setprio 0")
    YST = opt("yst", 0)
    if YST == 0 and "yinl" not in OPT:
        for t in ystores: V.issue(t, "y2")
    A("v_lshrrev_b32 v8, 4, v1")
    A("s_lshl_b32 s8, s3, 4")
    A("v_add_u32 v8, s8, v8")
    A("v_and_b32 v11, 15, v1")
    A("s_lshl_b32 s9, s5, 11")
    A(f"s_add_u32 s9, s9, {YF_OFF:#x}")
    A("v_lshl_add_u32 v10, v11, 7, s9")
    A("v_lshlrev_b32 v11, 4, v11")
    A("v_mul_u32_u24 v9, 272, v8")
    A("v_add_u32 v9, v9, v11")
    A("s_lshl_b32 s8, s5, 6")
    A("v_add_u32 v8, s8, v8")
    A("v_lshl_add_u32 v8, v8, 12, v11")
    A("s_lshl_b32 s8, s4, 8")
    A("v_add_u32 v8, s8, v8")
    ST()
    YR = 116
    YFL_LD = "buffer_load_dword v19, v10, s[92:95], 0 offen sc1"
    YFL, GYF, GYL, GYW = opt("yfl", 5), opt("gyf", 8), opt("gyl", 10), opt("gyw", 12)
    for st in range(FBAR, N2-1):
        V.wait(("C", st+1))
        if "fineh" in OPT: STH()
        A("s_barrier")
        if st == FBAR:
            for z in range(NS2, FBAR + NS2): cissue(z)
        elif st + NS2 - 1 < N2: cissue(st + NS2 - 1)
        if "abl" in OPT and st >= 2 and st < 13 and int(OPT["abl"]) & 1:
            continue_ = True
            for tg in ("y2", "xt", "yf", "eps"): V.tags.setdefault(tg, 0)
            continue
        if YST and st == YST:
            for t in ystores: V.issue(t, "y2")
        if st == YFL:
            V.wait("y2")
            A("s_mov_b64 exec, 1")
            A("ds_add_rtn_u32 v62, v60, v61 offset:4")
            A("s_mov_b64 exec, -1")
            A("s_waitcnt lgkmcnt(0)")
            A("v_readfirstlane_b32 s83, v62")
            A("s_cmp_lg_u32 s83, 3")
            A("s_cbranch_scc1 h_noy")
            A("buffer_store_dword v61, v31, s[92:95], 0 offen sc1")
            A("h_noy:")
        if st == GYF: V.issue(YFL_LD, "yf")
        if st == GYL:
            V.wait("yf")
            spin_all(A, "h_yf", 19, YFL_LD)
            for i in range(4):
                A(f"s_mov_b32 s8, {i*16384}")
                V.issue(f"buffer_load_dwordx4 {vr(YR+i*4,4)}, v8, s[68:71], s8 offen sc1", "eps")
        if st == GYW:
            V.wait("eps")
            for i in range(4): A(f"ds_write_b128 v9, {vr(YR+i*4,4)} offset:{i*4*272}")
            A("s_waitcnt lgkmcnt(0)")
    assert YST < YFL < GYF < GYL < GYW <= N2 - 3
    STH.flush()
    ST.flush()
    A("s_endpgm")

def build():
    s = header_comments()
    s += "; generated by tools/gen9.py (fused single kernel, split-K GEMM2; gen8 h layout)\n"
    s += "; @launch grid=(256,1,1) block=(512,1,1) lds=163840\n"
    s += '.amdgcn_target "amdgcn-amd-amdhsa--gfx950"\n.text\n'
    A = Asm()
    A.raw(f".globl {KN}\n.p2align 8\n.type {KN},@function")
    gen_kernel(A)
    s += A.render()
    s += descriptor(KN, 256, 102)
    import subprocess, tempfile, re
    with tempfile.TemporaryDirectory() as td:
        open(td + "/a.s", "w").write(s.replace("CODE_LAST", "0x12345"))
        subprocess.run(["clang", "-x", "assembler", "-target", "amdgcn-amd-amdhsa", "-mcpu=gfx950", "-c", td + "/a.s", "-o", td + "/a.o"], check=True)
        o = subprocess.run(["llvm-objdump", "-h", td + "/a.o"], capture_output=True, text=True).stdout
    size = int(re.search(r"\.text\s+([0-9a-f]+)", o).group(1), 16)
    if "al8" in OPT:
        pat = {"1": ("v_mfma_f32_32x32",), "2": ("v_mfma",), "3": ("v_mfma", "ds_read_b128", "ds_read_b64_tr", "buffer_load_dwordx4")}[str(OPT["al8"])]
        with tempfile.TemporaryDirectory() as td:
            open(td + "/a.s", "w").write(s.replace("CODE_LAST", "0x12345"))
            subprocess.run(["clang", "-x", "assembler", "-target", "amdgcn-amd-amdhsa", "-mcpu=gfx950", "-c", td + "/a.s", "-o", td + "/a.o"], check=True)
            d = subprocess.run(["llvm-objdump", "-d", td + "/a.o"], capture_output=True, text=True).stdout
        sizes = [4 * len(m.group(1).split()) for m in re.finditer(r"// [0-9A-F]+: ([0-9A-F ]+)$", d, re.M)]
        out = []; addr = 0; k = 0; incode = False; nins = 0
        for ln in s.split("\n"):
            st = ln.strip()
            if st == f"{KN}:": incode = True
            if st.startswith(".section"): incode = False
            if incode and ln.startswith("    ") and st and not st.startswith(";"):
                sz = sizes[k]; k += 1
                if sz == 8 and addr % 8 == 4 and st.startswith(pat):
                    out.append("    s_nop 0"); addr += 4; nins += 1
                addr += sz
            out.append(ln)
        assert k == len(sizes), (k, len(sizes))
        s = "\n".join(out); size = addr
        print("alignment nops", nins)
    if "shift" in OPT:
        s = s.replace(f"{KN}:\n", f"{KN}:\n" + "    s_nop 0\n" * int(OPT["shift"]), 1); size += 4 * int(OPT["shift"])
    print("code bytes", size)
    assert size <= 65536
    return s.replace("CODE_LAST", hex(size - 4))

if __name__ == "__main__":
    out = sys.argv[1] if len(sys.argv) > 1 and not sys.argv[1].startswith("--") else os.path.join(os.path.dirname(os.path.abspath(__file__)), "..", NAME + ".s")
    open(out, "w").write(build())
    print("wrote", out)
```

```python
import sys, os
sys.path.insert(0, os.path.dirname(os.path.abspath(__file__)))
from asmlib import Asm
from gen import (NAME, P, sp, vr, sr, load_kernargs, srd, pk, cmul, tile_ids, Stamper, OPT, header_comments, descriptor)
import gen

KN = NAME + "_kernel"
WS_H    = 0
WS_KVT  = 8 << 20
WS_G    = 16 << 20
WS_EBOX = 17 << 20
WS_FLG  = 18 << 20
HF_OFF  = 0
KF_OFF  = 128 << 10
YF_OFF  = 160 << 10
PF_OFF  = 192 << 10
FLG_SZ  = 320 << 10
WS_PART = 24 << 20
N1 = 16
N2 = 16
NS2 = 4
PD = 4
CRING = 32768
KREG = 98304
UREG = KREG + 4*8320
LFLAG = UREG + 4*4608
SPIN = int(OPT.get("spin", 1 << 16))
SLEEP = int(OPT.get("sleep", 4))
def opt(k, d): return int(OPT.get(k, d))

class VQ:
    def __init__(self, A): self.A = A; self.n = 0; self.tags = {}; self.done = 0
    def issue(self, text, tag=None):
        self.A(text); self.n += 1
        if tag is not None: self.tags[tag] = self.n
    def wait(self, tag):
        k = self.tags[tag]
        if k <= self.done: return
        cnt = min(63, self.n - k)
        self.A(f"s_waitcnt vmcnt({cnt})"); self.done = self.n - cnt
    def drained(self): self.done = self.n

class LQ:
    def __init__(self, A): self.A = A; self.n = 0; self.tags = {}; self.done = 0
    def issue(self, text, tag=None):
        self.A(text); self.n += 1
        if tag is not None: self.tags[tag] = self.n
    def wait(self, tag):
        k = self.tags[tag]
        if k > self.done:
            self.A(f"s_waitcnt lgkmcnt({min(15, self.n - k)})"); self.done = max(k, self.n - 15)
    def drain(self):
        self.A("s_waitcnt lgkmcnt(0)"); self.done = self.n

def spin_all(A, name, vreg, reload, cmpval="1", sctr=89, pre=None):
    A(f"s_mov_b32 s{sctr}, {SPIN}")
    A(f"{name}_chk:")
    if pre: A(pre)
    A(f"v_cmp_ne_u32 vcc, {cmpval}, v{vreg}")
    A("s_cmp_eq_u64 vcc, 0")
    A(f"s_cbranch_scc1 {name}_ok")
    A(f"s_sub_u32 s{sctr}, s{sctr}, 1")
    A(f"s_cbranch_scc1 {name}_ok")
    A(f"s_sleep {SLEEP}")
    A(reload)
    A("s_waitcnt vmcnt(0)")
    A(f"s_branch {name}_chk")
    A(f"{name}_ok:")

def lds_spin(A, name, vaddr, off, vtmp, target, stmp=8, sctr=89):
    A(f"s_mov_b32 s{sctr}, {SPIN*4}")
    A(f"{name}:")
    A(f"ds_read_b32 v{vtmp}, v{vaddr} offset:{off}")
    A("s_waitcnt lgkmcnt(0)")
    A(f"v_readfirstlane_b32 s{stmp}, v{vtmp}")
    A(f"s_cmp_ge_u32 s{stmp}, {target}")
    A(f"s_cbranch_scc1 {name}_ok")
    A(f"s_sub_u32 s{sctr}, s{sctr}, 1")
    A(f"s_cbranch_scc0 {name}")
    A(f"{name}_ok:")

def lds_inc(A, vaddr, vone, off):
    A("s_mov_b64 exec, 1")
    A(f"ds_add_u32 v{vaddr}, v{vone} offset:{off}")
    A("s_mov_b64 exec, -1")

def zip_chains(A, chains):
    chains = [[x for t in c for x in t.split("\n")] for c in chains]
    for i in range(max(len(c) for c in chains)):
        for c in chains:
            if i < len(c): A(c[i])

def local_check(A, vbits, vtmp, sdst_pair, stmp):
    A(f"s_getreg_b32 s{stmp}, hwreg(HW_REG_XCC_ID, 0, 4)")
    A(f"s_lshl_b32 s{stmp}, 0x100, s{stmp}")
    A(f"s_or_b32 s{stmp}, s{stmp}, 15")
    A(f"v_and_b32 v{vtmp}, 7, v1")
    A(f"v_cmp_eq_u32 s[{sdst_pair}:{sdst_pair+1}], s54, v{vtmp}")
    A(f"v_cmp_ne_u32 vcc, s{stmp}, v{vbits}")
    A(f"s_and_b64 vcc, vcc, s[{sdst_pair}:{sdst_pair+1}]")

SNT = opt("snt", 1)
PB = opt("pb", 1)
NPQ = 4 if PB else 8
FBAR = opt("fb", 2)
OS = str(OPT.get("os", "_nt")).replace("_", " ")
ORD = opt("ord", 1)
def tile_of(A, i, dst):
    if i == 0: A(f"s_mov_b32 s{dst}, s15")
    elif ORD:
        A(f"s_cmp_le_u32 s15, {i-1}")
        A(f"s_cselect_b32 s{dst}, {i}, {i-1}")
    else:
        A(f"s_add_u32 s{dst}, s15, {i}")
        A(f"s_and_b32 s{dst}, s{dst}, 7")

def gen_kernel(A):
    A(f"{KN}:")
    A("s_cmp_ge_u32 s2, 256")
    A("s_cbranch_scc1 L_end")
    load_kernargs(A)
    tile_ids(A)
    A("v_and_b32 v1, 63, v0")
    A("v_lshrrev_b32 v2, 6, v0")
    A("s_and_b32 s15, s5, 7")
    A("v_readfirstlane_b32 s3, v2")
    A("s_cmp_ge_u32 s3, 4")
    A("s_cbranch_scc0 L_consumer")
    helper(A)
    A("L_consumer:")
    consumer(A)
    A("L_end:")
    A("s_endpgm")


def consumer(A):
    ACC = 64
    FA, FB = 128, 144
    AD, BD = 160, 168
    LAM, C2, MU, MU2, MU4, MU8 = 176, 178, 180, 182, 184, 186
    EL = 192
    UR2 = 224
    ST = Stamper(A, 0, 63)
    ST()
    A(f"s_setprio {opt('prio', 2)}")
    A("s_and_b32 s6, s3, 1")
    A("s_lshr_b32 s7, s3, 1")
    A("v_and_b32 v4, 31, v1")
    A("s_lshl_b32 s8, s5, 6")
    A("s_lshl_b32 s9, s7, 5")
    A("s_add_u32 s8, s8, s9")
    A("v_add_u32 v3, s8, v4")
    A("v_lshlrev_b32 v5, 1, v3")
    A("v_lshrrev_b32 v6, 5, v1")
    A("s_lshl_b32 s10, s4, 1")
    A("s_add_u32 s10, s10, s6")
    if "nocode" not in OPT:
        A("s_getpc_b64 s[12:13]")
        A("c_pc:")
        A(f"s_sub_u32 s12, s12, c_pc-{KN}")
        A("s_subb_u32 s13, s13, 0")
        A("s_lshl_b32 s11, s3, 14")
        A("v_lshl_add_u32 v24, v1, 7, s11")
        A("v_min_u32 v24, CODE_LAST, v24")
        A("global_load_dword v25, v24, s[12:13]")
        A("v_add_u32 v24, 0x2000, v24")
        A("v_min_u32 v24, CODE_LAST, v24")
        A("global_load_dword v26, v24, s[12:13]")
    A("s_waitcnt lgkmcnt(0)")
    A(f"global_load_ushort v8, v5, {sp('Lre')}")
    A(f"global_load_ushort v9, v5, {sp('Lim')}")
    A(f"global_load_ushort v10, v5, {sp('logdt')}")
    srd(A, 56, "ws", 256 << 10, WS_EBOX)
    srd(A, 60, "ws", 8 << 20, WS_H)
    srd(A, 64, "dbg", 256)
    srd(A, 68, "ws", FLG_SZ, WS_FLG)
    A("s_lshl_b32 s11, s10, 13")
    A("v_lshl_add_u32 v7, v3, 3, s11")
    A("v_mov_b32 v12, 0")
    A("v_mov_b32 v13, 0")
    A("buffer_store_dwordx2 v[12:13], v7, s[56:59], 0 offen sc1")
    A("s_lshl_b32 s11, s10, 4")
    A("s_add_u32 s11, s11, s5")
    A("s_lshl_b32 s11, s11, 1")
    A("s_add_u32 s11, s11, s7")
    A("s_lshl_b32 s11, s11, 7")
    A("v_mov_b32 v60, s11")
    A("buffer_store_dword v12, v60, s[68:71], 0 offen sc1")
    A("s_lshl_b32 s72, s4, 4")
    A("s_add_u32 s72, s72, s5")
    A("s_lshl_b32 s72, s72, 2")
    A("s_add_u32 s72, s72, s3")
    A("s_lshl_b32 s72, s72, 7")
    A(f"s_add_u32 s11, s72, {PF_OFF:#x}")
    A("v_mov_b32 v30, s11")
    A("buffer_store_dword v12, v30, s[68:71], 0 offen sc1")
    A("v_mov_b32 v23, 1")
    A("v_bfe_u32 v11, v1, 1, 3")
    A("v_xor_b32 v11, v11, v6")
    A("s_lshl_b32 s11, s6, 13")
    A("v_lshl_add_u32 v14, v4, 7, s11")
    A("s_lshl_b32 s11, s7, 12")
    A("s_add_u32 s11, s11, 16384")
    A("v_lshl_add_u32 v15, v4, 7, s11")
    for ks in range(4):
        A(f"v_xor_b32 v16, {2*ks}, v11")
        A(f"v_lshl_add_u32 v{AD+ks}, v16, 4, v14")
        A(f"v_lshl_add_u32 v{BD+ks}, v16, 4, v15")
        A(f"v_add_u32 v{AD+4+ks}, 0x10000, v{AD+ks}")
        A(f"v_add_u32 v{BD+4+ks}, 0x10000, v{BD+ks}")
    A("v_lshlrev_b32 v21, 2, v1")
    A("s_waitcnt vmcnt(0)")
    A("v_lshlrev_b32 v8, 16, v8")
    A("v_lshlrev_b32 v9, 16, v9")
    A("v_lshlrev_b32 v10, 16, v10")
    A("s_mov_b32 s12, 0x3fb8aa3b")
    A("v_mul_f32 v10, s12, v10")
    A("v_exp_f32 v10, v10")
    A("v_cvt_pk_bf16_f32 v10, v10, v10")
    A("v_lshlrev_b32 v10, 16, v10")
    A("v_mul_f32 v16, v10, v8")
    A("v_mul_f32 v17, v10, v9")
    A("v_mul_f32 v16, s12, v16")
    A("v_exp_f32 v16, v16")
    A("v_mul_f32 v17, 0.15915494, v17")
    A("v_rndne_f32 v18, v17")
    A("v_sub_f32 v17, v17, v18")
    A("v_cos_f32 v18, v17")
    A("v_sin_f32 v19, v17")
    A(f"v_mul_f32 v{LAM}, v16, v18")
    A(f"v_mul_f32 v{LAM+1}, v16, v19")
    A(f"v_add_f32 v16, -1.0, v{LAM}")
    A("v_mul_f32 v17, v8, v8")
    A("v_fma_f32 v17, v9, v9, v17")
    A("v_rcp_f32 v17, v17")
    A("v_mul_f32 v18, v16, v8")
    A(f"v_fma_f32 v18, v{LAM+1}, v9, v18")
    A(f"v_mul_f32 v19, v{LAM+1}, v8")
    A("v_fma_f32 v19, -v16, v9, v19")
    A("v_add_f32 v17, v17, v17")
    A(f"v_mul_f32 v{C2}, v18, v17")
    A(f"v_mul_f32 v{C2+1}, v19, v17")
    cmul(A, 16, LAM, LAM); cmul(A, 18, 16, 16); cmul(A, 16, 18, 18)
    cmul(A, MU, 16, 16); cmul(A, MU2, MU, MU); cmul(A, MU4, MU2, MU2); cmul(A, MU8, MU4, MU4)
    cmul(A, 48, C2, MU2)
    A("v_cmp_lt_u32 vcc, 31, v1")
    A(f"v_cndmask_b32 v48, v{C2}, v48, vcc")
    A(f"v_cndmask_b32 v49, v{C2+1}, v49, vcc")
    A("v_lshlrev_b32 v50, 13, v6")
    A("v_sub_u32 v50, v7, v50")
    A("s_add_u32 s11, s10, 1")
    A("v_sub_u32 v51, s11, v6")
    A("v_lshrrev_b32 v51, 1, v51")
    A("s_lshl_b32 s11, s4, 2")
    A("s_add_u32 s11, s11, s3")
    A("s_lshl_b32 s11, s11, 5")
    A("v_lshrrev_b32 v52, 3, v1")
    A("v_add_u32 v52, s11, v52")
    A("v_lshlrev_b32 v52, 11, v52")
    A("v_and_b32 v16, 7, v1")
    A("v_lshl_add_u32 v52, v16, 4, v52")
    A("s_lshl_b32 s11, s5, 7")
    A("v_add_u32 v52, s11, v52")
    A("s_lshl_b32 s11, s3, 13")
    A("v_lshlrev_b32 v53, 11, v6")
    A("v_lshl_add_u32 v53, v4, 1, v53")
    A("v_add_u32 v53, s11, v53")
    A("s_lshl_b32 s11, s5, 6")
    A("v_add_u32 v54, s11, v4")
    A("v_lshlrev_b32 v54, 1, v54")
    srd(A, 76, "x", 4 << 20)
    srd(A, 92, "ws", 8 << 20, WS_PART)
    A("s_xor_b32 s73, s72, 4096")
    A("s_lshl_b32 s74, s73, 6")
    A("s_add_u32 s75, s74, 4096")
    A("v_lshlrev_b32 v59, 4, v1")

    def rd(stage, ks, buf, which):
        slot = stage % 3
        hi = 4 if slot >= 2 else 0
        so = (slot & 1) * 32768
        if which < 2:
            return f"ds_read_b128 {vr(FA+buf*8+which*4,4)}, v{AD+hi+ks} offset:{so + which*4096}"
        ri = which - 2
        return f"ds_read_b128 {vr(FB+buf*8+ri*4,4)}, v{BD+hi+ks} offset:{so + ri*8192}"
    def mf(buf, mt, ri, first):
        acc = ACC + ri*32 + mt*16
        return f"v_mfma_f32_32x32x16_bf16 {vr(acc,16)}, {vr(FA+buf*8+mt*4,4)}, {vr(FB+buf*8+ri*4,4)}, {'0' if first else vr(acc,16)}"
    RD_ORDER = [0, 2, 1, 3]
    MF_ORDER = [(0,0), (1,0), (1,1), (0,1)]
    ST()
    A("s_barrier")
    ST()
    A("s_cmp_lg_u32 s3, 0")
    A("s_cbranch_scc1 c_noflag")
    A("s_lshr_b32 s11, s2, 6")
    A("s_lshl_b32 s11, 1, s11")
    A("s_getreg_b32 s12, hwreg(HW_REG_XCC_ID, 0, 4)")
    A("s_lshl_b32 s12, 0x100, s12")
    A("s_or_b32 s11, s11, s12")
    A("v_mov_b32 v16, s11")
    A("s_and_b32 s11, s2, 63")
    A("s_lshl_b32 s11, s11, 2")
    A("v_mov_b32 v17, s11")
    A("s_mov_b64 exec, 1")
    A("buffer_atomic_or v16, v17, s[64:67], 0 offen sc1")
    A("s_mov_b64 exec, -1")
    A("c_noflag:")
    for w in RD_ORDER: A(rd(0, 0, 0, w))
    for s in range(N1):
        for ks in range(4):
            buf = ks & 1
            last = (s == N1-1 and ks == 3)
            if ks == 3:
                A("s_waitcnt lgkmcnt(0)")
                A("s_barrier")
            ns, nks = (s, ks+1) if ks < 3 else (s+1, 0)
            for i in range(4):
                if ks < 3 and i < 3: A("s_waitcnt lgkmcnt(2)")
                A(mf(buf, *MF_ORDER[i], s == 0 and ks == 0))
                if not last: A(rd(ns, nks, buf ^ 1, RD_ORDER[i]))
            if (s in (3, 7, 11) if "fine1" not in OPT else s >= 3) and ks == 3: ST()
            if s == 12 and ks == 0:
                A("buffer_load_dword v20, v21, s[64:67], 0 offen sc1")
    ST()
    if "fine1" in OPT: ST.n = 40
    gen.SAFE_PK[0] = bool(opt("pk", 0) & 1)
    def UR(t): return ACC + (t >> 3)*16 + 2*(t & 7)
    def UI(t): return ACC + 32 + (t >> 3)*16 + 2*(t & 7)
    E = [(24, 26), (28, 30 - 30 + 44)]
    cr, ci = UR(0), UI(0)
    for t in range(1, 16):
        nr, ni = E[t & 1]
        A(pk("fma", nr, cr, LAM, UR(t), bsel=0))
        A(pk("fma", ni, ci, LAM, UI(t), bsel=0))
        A(pk("fma", nr, ci, LAM, nr, bsel=1, neg_b=True))
        A(pk("fma", ni, cr, LAM, ni, bsel=1))
        cr, ci = nr, ni
    A("v_mov_b32 v32, v28\nv_mov_b32 v33, v44\nv_mov_b32 v34, v29\nv_mov_b32 v35, v45")
    cmul(A, 36, MU, 32, add=34)
    A("v_mov_b32 v38, v36\nv_mov_b32 v39, v37\nv_mov_b32 v40, 0\nv_mov_b32 v41, 0")
    A("v_permlane32_swap_b32 v40, v38")
    A("v_permlane32_swap_b32 v41, v39")
    cmul(A, 42, MU2, 40, add=36)
    A("v_or_b32 v42, 1, v42")
    A("s_mov_b32 s12, 0")
    A("s_mov_b32 s13, -1")
    A("s_mov_b64 exec, s[12:13]")
    A("buffer_store_dwordx2 v[42:43], v7, s[56:59], 0 offen sc1")
    A("s_mov_b64 exec, -1")
    def scaling():
        for t in range(16):
            n = UR2 + 2*t
            A(pk("mul", n, UR(t), C2, bsel=0))
            A(pk("fma", n, UI(t), C2, n, bsel=1, neg_b=True))
            A(pk("mul", UI(t), UI(t), C2, bsel=0))
            A(pk("fma", UI(t), UR(t), C2, UI(t), bsel=1))
        cmul(A, 44, C2, 40)
        cmul(A, 46, C2, 32)
    if "lowp" in OPT: A("s_setprio 0")
    ST()
    A("s_lshl_b32 s9, s3, 13")
    for i in range(4):
        A(f"s_add_u32 m0, s9, {i*1024}")
        A(f"s_mov_b32 s8, {i*16384}")
        A("buffer_load_dwordx4 v52, s[76:79], s8 offen lds")
    for q in range(2):
        A(f"global_load_ushort v{9+q}, v54, {sp('Dskip')} offset:{q*64}")
    if SNT:
        for i in range(4): A(f"v_mov_b32 v{24+i}, -1")
        for i in range(NPQ): A(f"buffer_store_dwordx4 v[24:27], v59, s[92:95], s{74 if i < 4 else 75} offen offset:{(i & 3)*1024} sc1")
    if "pollfirst" not in OPT: scaling()
    for k in range(16):
        A(f"v_subrev_u32 v{128+k}, {(1+2*k)*8192:#x}, v50")
    ST()
    A(f"s_waitcnt vmcnt({7 + NPQ if SNT else 7})")
    spin_all(A, "c_init", 52, "buffer_load_dword v20, v21, s[64:67], 0 offen sc1", "15", pre="v_and_b32 v52, 15, v20")
    local_check(A, 20, 52, 12, 11)
    A("s_cselect_b32 s14, 0, 1")
    if "nolocal" in OPT: A("s_mov_b32 s14, 0")
    for k in range(16):
        A(f"buffer_load_dwordx2 {vr(EL+2*k,2)}, v{128+k}, s[56:59], 0 offen sc1")
    if "pollfirst" in OPT: scaling()
    XP = list(range(73, 89))
    XDP = [89, 90, 91, 92, 93, 94, 95, 54, 55, 56, 57, 58, 59, 61, 5, 12]
    A(f"s_waitcnt vmcnt({16 + NPQ if SNT else 16})")
    XT = [160 + i for i in range(16)] + [73 + i for i in range(16)]
    for nt in range(2):
        for r in range(16): A(f"ds_read_u16 v{XT[nt*16+r]}, v53 offset:{r*128+nt*64}")
    A("s_waitcnt lgkmcnt(0)")
    for m in range(8): A(f"v_lshl_or_b32 v{XP[8+m]}, v{XT[16+2*m+1]}, 16, v{XT[16+2*m]}" if False else f"v_lshl_or_b32 v{64+m}, v{XT[16+2*m+1]}, 16, v{XT[16+2*m]}")
    for m in range(8): A(f"v_lshl_or_b32 v{XP[m]}, v{XT[2*m+1]}, 16, v{XT[2*m]}")
    for m in range(8): A(f"v_mov_b32 v{XP[8+m]}, v{64+m}")
    BD2 = 32
    A("s_lshl_b32 s11, s3, 13")
    A("v_lshl_add_u32 v16, v6, 11, s11")
    A("v_lshl_add_u32 v16, v4, 6, v16")
    A("v_bfe_u32 v17, v1, 1, 2")
    for q in range(4):
        A(f"v_xor_b32 v18, {q}, v17")
        A(f"v_lshl_add_u32 v{64+q}, v18, 4, v16")
    A("v_mov_b32 v31, 1")
    A("v_bfe_u32 v16, v1, 2, 2")
    A("v_lshl_add_u32 v16, v6, 3, v16")
    A("v_and_b32 v24, 1, v1")
    A("v_bfe_u32 v18, v1, 4, 1")
    A("v_lshl_add_u32 v24, v24, 1, v18")
    A("v_bfe_u32 v18, v16, 1, 2")
    A("v_xor_b32 v24, v24, v18")
    A("v_lshlrev_b32 v24, 4, v24")
    A("v_lshl_add_u32 v24, v16, 6, v24")
    A("v_bfe_u32 v18, v1, 1, 1")
    A("v_lshl_add_u32 v24, v18, 3, v24")
    A("v_xor_b32 v25, 32, v24")
    A("v_add_u32 v25, 256, v25")
    A("v_add_u32 v68, s11, v24")
    A("v_add_u32 v69, s11, v25")
    A("s_lshl_b32 s11, s4, 7")
    A("s_lshl_b32 s12, s6, 6")
    A("s_add_u32 s11, s11, s12")
    A("s_and_b32 s12, s5, 7")
    A("s_lshl_b32 s12, s12, 2")
    A("s_add_u32 s11, s11, s12")
    A("s_add_u32 s11, s11, s7")
    A("s_lshl_b32 s11, s11, 12")
    A("s_lshr_b32 s13, s5, 3")
    A("s_lshl_b32 s13, s13, 11")
    A("s_add_u32 s11, s11, s13")
    A("v_lshl_add_u32 v72, v1, 4, s11")
    A(f"v_mov_b32 v20, {LFLAG:#x}")
    A("s_lshl_b32 s6, s4, 2")
    A("s_add_u32 s6, s6, s3")
    A("s_lshr_b32 s7, s3, 1")
    A("s_lshl_b32 s7, s7, 13")
    A("s_and_b32 s8, s3, 1")
    A("s_lshl_b32 s8, s8, 11")
    A("s_add_u32 s7, s7, s8")
    A("v_add_u32 v70, s7, v24")
    A("v_add_u32 v71, s7, v25")
    A("s_lshl_b32 s7, s6, 17")
    A("s_add_u32 s7, s7, s13")
    A("v_lshl_add_u32 v3, v1, 4, s7")
    A("v_add_u32 v2, 0x1000, v3")
    A(f"v_lshlrev_b32 v14, 7, v4")
    A(f"v_add_u32 v14, {CRING:#x}, v14")
    for ks in range(4):
        A(f"v_xor_b32 v16, {2*ks}, v11")
        A(f"v_lshl_add_u32 v{BD2+ks}, v16, 4, v14")
    A("s_lshr_b32 s7, s6, 1")
    A("s_lshl_b32 s7, s7, 12")
    A("s_add_u32 s7, s7, s13")
    A("v_bfe_u32 v16, v1, 1, 3")
    if ORD:
        A("v_subrev_u32 v14, 1, v16")
        A("v_cmp_le_u32 vcc, s15, v14")
        A("v_cndmask_b32 v14, v14, v16, vcc")
        A("v_mov_b32 v19, s15")
        A("v_cmp_eq_u32 vcc, 0, v16")
        A("v_cndmask_b32 v16, v14, v19, vcc")
    else:
        A("v_add_u32 v16, s15, v16")
        A("v_and_b32 v16, 7, v16")
    A("v_and_b32 v14, 1, v1")
    A("v_lshl_add_u32 v16, v16, 1, v14")
    A("v_lshl_add_u32 v22, v16, 7, s7")
    srd(A, 64, "ws", 8192, WS_G)
    srd(A, 76, "out", 8 << 20)
    for i in range(8):
        A(f"s_mov_b32 s{80+i}, {i*4096}")
    A("s_lshl_b32 s7, s6, 5")
    A("v_lshl_add_u32 v7, v6, 4, s7")
    A("s_lshl_b32 s8, s5, 6")
    A("v_add_u32 v8, s8, v4")
    A("v_lshlrev_b32 v26, 12, v7")
    A("v_lshl_add_u32 v26, v8, 2, v26")
    A("v_add_u32 v27, 0x8000, v26")
    A("v_lshlrev_b32 v7, 2, v7")
    A("v_mul_u32_u24 v21, 272, v4")
    A("v_lshl_add_u32 v21, v6, 5, v21")
    A("s_lshl_b32 s8, s3, 6")
    A("v_add_u32 v21, s8, v21")
    A(f"s_add_u32 s8, s73, {PF_OFF:#x}")
    A("v_mov_b32 v29, s8")
    A("v_lshlrev_b32 v28, 4, v1")
    A("v_mov_b32 v23, 1")
    A(f"s_mov_b32 s88, {SPIN}")
    A("c_poll:")
    A("s_waitcnt vmcnt(0)")
    A("v_mov_b32 v52, 0")
    for k in range(16):
        A(f"v_and_b32 v{144+k}, 1, v{EL+2*k}")
    for k in range(0, 16, 2):
        A(f"v_add3_u32 v52, v52, v{144+k}, v{145+k}")
    A("v_cmp_ne_u32 vcc, v52, v51")
    A("s_cmp_eq_u64 vcc, 0")
    A("s_cbranch_scc1 c_polled")
    A("s_sub_u32 s88, s88, 1")
    A("s_cbranch_scc1 c_polled")
    A(f"s_sleep {opt('psleep', SLEEP)}")
    for k in range(16):
        A(f"v_cmp_eq_u32 vcc, 0, v{144+k}")
        A("s_mov_b64 exec, vcc")
        A(f"buffer_load_dwordx2 {vr(EL+2*k,2)}, v{128+k}, s[56:59], 0 offen sc1")
        A("s_mov_b64 exec, -1")
    A("s_branch c_poll")
    A("c_polled:")
    if "pz" in OPT:
        A("s_lshl_b32 s8, s3, 2")
        A(f"s_add_u32 s8, s8, {LFLAG + 24:#x}")
        A("v_mov_b32 v16, s8")
        A("s_mov_b64 exec, 1")
        A("ds_write_b32 v16, v31")
        A("s_mov_b64 exec, -1")
    if "lowp" in OPT: A(f"s_setprio {opt('prio', 2)}")
    ST()
    g = EL + 30
    G = [52, 54]
    for k in range(14, -1, -1):
        n = G[k & 1]
        A(pk("fma", n, g, MU8, EL+2*k, bsel=0))
        A(pk("fma", n, g, MU8, n, bsel=1, asel="swap", neg_lo=[1,0,0]))
        g = n
    A("v_mov_b32 v54, v52\nv_mov_b32 v55, v53\nv_mov_b32 v56, v52\nv_mov_b32 v57, v53")
    A("v_permlane32_swap_b32 v54, v56")
    A("v_permlane32_swap_b32 v55, v57")
    cmul(A, 58, MU4, 56, add=54)
    cmul(A, 52, 48, 58, add=44)
    cmul(A, 54, MU, 52, add=46)
    A("v_mov_b32 v56, v52\nv_mov_b32 v57, v54\nv_mov_b32 v58, v53\nv_mov_b32 v59, v55")
    cr, ci = 56, 58
    def packhalf(hf):
        for plane in range(2):
            for e in range(2):
                d = 128 + ((plane*2 + e)*2 + hf)*4
                for m in range(4):
                    t = hf*8 + 2*m
                    if plane == 0: A(f"v_cvt_pk_bf16_f32 v{d+m}, v{UR2+2*t+e}, v{UR2+2*(t+1)+e}")
                    else: A(f"v_cvt_pk_bf16_f32 v{d+m}, -v{UI(t)+e}, -v{UI(t+1)+e}")
                A(f"ds_write_b128 v{64+2*e+hf}, {vr(d,4)} offset:{plane*4096}")
    for t in range(16):
        nr, ni = UR2 + 2*t, UI(t)
        if "ablb" in OPT:
            if t == 7: packhalf(0)
            continue
        A(pk("fma", nr, cr, LAM, nr, bsel=0))
        A(pk("fma", ni, ci, LAM, ni, bsel=0))
        A(pk("fma", nr, ci, LAM, nr, bsel=1, neg_b=True))
        A(pk("fma", ni, cr, LAM, ni, bsel=1))
        cr, ci = nr, ni
        if t == 7: packhalf(0)
    packhalf(1)
    if "pz" in OPT:
        A("v_mov_b32 v17, 0")
        A("s_mov_b64 exec, 1")
        A("ds_write_b32 v16, v17")
        A("s_mov_b64 exec, -1")
    gen.SAFE_PK[0] = False
    EARLY = opt("early", 0)
    HFL = "buffer_load_dword v19, v22, s[68:71], 0 offen sc1"
    if EARLY: A(HFL)
    ST()
    A("s_waitcnt lgkmcnt(0)")
    lds_inc(A, 20, 31, 12)
    AF = 160
    idx = 0
    for tblk in range(2):
        for plane in range(2):
            for ksl in range(2):
                d = AF + idx*4
                o = plane*4096 + tblk*2048 + ksl*1024
                A(f"ds_read_b64_tr_b16 {vr(d,2)}, v68 offset:{o}")
                A(f"ds_read_b64_tr_b16 {vr(d+2,2)}, v69 offset:{o}")
                idx += 1
    V = VQ(A)
    idx = 0
    for tblk in range(2):
        for plane in range(2):
            A(f"s_mov_b32 s12, {tblk*131072 + plane*8192:#x}")
            for ksl in range(2):
                d = AF + idx*4
                A(f"s_waitcnt lgkmcnt({min(15, 14 - 2*idx)})")
                V.issue(f"buffer_store_dwordx4 {vr(d,4)}, v72, s[60:63], s12 offen offset:{ksl*1024} sc1", "hst")
                idx += 1
    ACC2 = 96
    FB2 = 224
    GR = 36
    ST2 = Stamper(A, 1, 62)
    A(f"s_mov_b32 s89, {SPIN*4}")
    A("c_lw:")
    A("ds_read_b128 v[52:55], v20 offset:4")
    A("s_waitcnt lgkmcnt(0)")
    A("v_min_u32 v54, v54, v55")
    A("v_min_u32 v53, 1, v53")
    A("v_readfirstlane_b32 s8, v54")
    A("v_readfirstlane_b32 s9, v53")
    A("s_add_u32 s8, s8, s9")
    A("s_cmp_ge_u32 s8, 5")
    A("s_cbranch_scc1 c_lwok")
    A("s_sub_u32 s89, s89, 1")
    A("s_cbranch_scc0 c_lw")
    A("c_lwok:")
    L = LQ(A)
    for st in range(2):
        for ks in range(4):
            d = AF + (st*4 + ks)*4
            o = (ks >> 1)*16384 + st*4096 + (ks & 1)*1024
            L.issue(f"ds_read_b64_tr_b16 {vr(d,2)}, v70 offset:{o}")
            L.issue(f"ds_read_b64_tr_b16 {vr(d+2,2)}, v71 offset:{o}", ("A", st, ks))
    A("s_mov_b32 s13, 0")
    if EARLY:
        A("s_waitcnt vmcnt(8)")
        A("v_cmp_eq_u32 s[90:91], 1, v19")
        A("s_and_b32 s88, s90, 0xc")
        A("s_cmp_eq_u32 s88, 0xc")
        A("s_cbranch_scc0 c_noearly")
        A("s_mov_b32 s13, 1")
        for z in (2, 3):
            tile_of(A, z >> 1, 11)
            A("s_lshl_b32 s11, s11, 14")
            if z & 1: A("s_add_u32 s11, s11, 8192")
            for k2 in range(4):
                A(f"buffer_load_dwordx4 {vr(AF + (z*4 + k2)*4,4)}, v{3 if k2 < 2 else 2}, s[60:63], s11 offen offset:{(k2 & 1)*1024} sc1")
        A("c_noearly:")
    for q in range(4):
        V.issue(f"buffer_load_dwordx4 {vr(GR+q*4,4)}, v7, s[64:67], 0 offen offset:{q*16} sc1", "g")
    ST()
    slowp = []
    def need(i):
        m = ((1 << (2*i + 2)) - 1) & ~3
        name = f"c_n{len(slowp)}"
        A(f"s_and_b32 s88, s90, {m:#x}")
        A(f"s_cmp_eq_u32 s88, {m:#x}")
        A(f"s_cbranch_scc0 {name}_s")
        A(f"{name}:")
        slowp.append((name, m))
    alast = [None]
    def aload(st, ks):
        if alast[0] != st:
            alast[0] = st
            tile_of(A, st >> 1, 11)
            A("s_lshl_b32 s11, s11, 14")
            if st & 1: A("s_add_u32 s11, s11, 8192")
        r = AF + ((st % PD)*4 + ks)*4
        V.issue(f"buffer_load_dwordx4 {vr(r,4)}, v{3 if ks < 2 else 2}, s[60:63], s11 offen offset:{(ks & 1)*1024} sc1", ("A", st, ks))
    def rd2(st, ks, nt, slot):
        return f"ds_read_b128 {vr(FB2+slot*4,4)}, v{BD2+ks} offset:{(st % NS2)*16384 + nt*4096}"
    def mf2(st, ks, nt, slot):
        a = AF + ((st % PD)*4 + ks)*4
        c = vr(ACC2+nt*16, 16)
        return f"v_mfma_f32_32x32x16_bf16 {c}, {vr(a,4)}, {vr(FB2+slot*4,4)}, {'0' if (st == 0 and ks == 0) else c}"
    def await_(st, ks):
        if st < 2: L.wait(("A", st, ks))
        else: V.wait(("A", st, ks))
    ST2()
    for nt in range(4): L.issue(rd2(0, 0, nt, nt), (0, 0, nt))
    HFK = opt("hfk", 3)
    N1K = opt("n1k", 2)
    XPS = opt("xps", 1)
    xfill = []
    def xpart(A=A):
        A("v_lshlrev_b32 v9, 16, v9")
        A("v_lshlrev_b32 v10, 16, v10")
        A("s_mov_b32 s12, 0xffff0000")
        TT = [13, 15, 16, 17, 18, 24, 25, 8]
        for k0 in range(0, 16, 4):
            ch = []
            for k in range(k0, k0 + 4):
                t0, t1 = TT[2*(k & 3)], TT[2*(k & 3) + 1]
                dk = 9 + (k >> 3)
                ch.append([f"v_lshlrev_b32 v{t0}, 16, v{XP[k]}", f"v_and_b32 v{t1}, s12, v{XP[k]}", f"v_mul_f32 v{t0}, v{t0}, v{dk}", f"v_mul_f32 v{t1}, v{t1}, v{dk}",
                           f"v_cvt_pk_bf16_f32 v{XDP[k]}, v{t0}, v{t1}"])
            zip_chains(A, ch)
    if XPS == 2: xpart(xfill.append)
    DIST = opt("dist", 3)
    assert DIST in (2, 3, 4)
    polls = [0]
    def hfpoll():
        polls[0] += 1
        V.issue(HFL, ("hf", polls[0]))
    def hfseen():
        V.wait(("hf", polls[0]))
        A("v_cmp_eq_u32 s[90:91], 1, v19")
    FS = opt("fs", 4)
    assert FS == 1 or (FS in (3, 4) and DIST >= 3)
    for st in range(N2 - FS):
        for ks in range(4):
            buf = ks & 1
            if ks == 3 and st >= FBAR: A("s_barrier")
            if ks == 3 and st == 1 and FBAR > 1:
                lds_spin(A, "c_cf2", 20, 20, 14, 4); L.done = L.n
            ns, nks = (st, ks+1) if ks < 3 else (st+1, 0)
            await_(st, ks)
            for nt in range(4):
                L.wait((st, ks, nt))
                A(mf2(st, ks, nt, buf*4 + nt))
                L.issue(rd2(ns, nks, nt, (buf ^ 1)*4 + nt), (ns, nks, nt))
                for z in range(opt("xfm", 3)):
                    if xfill: A(xfill.pop(0))
            if st == 0 and ks == HFK:
                if EARLY:
                    cnt = V.n - V.tags["hst"]
                    A("s_cmp_eq_u32 s13, 1")
                    A("s_cbranch_scc1 c_hw_e")
                    A(f"s_waitcnt vmcnt({cnt})")
                    A("s_branch c_hw_d")
                    A("c_hw_e:")
                    A(f"s_waitcnt vmcnt({cnt + 8})")
                    A("c_hw_d:")
                    V.done = V.tags["hst"]
                else: V.wait("hst")
                A("s_cmp_eq_u32 s14, 1")
                A("s_cbranch_scc1 c_hfs_l")
                A("buffer_store_dword v23, v60, s[68:71], 0 offen sc1")
                A("s_branch c_hfs_e")
                A("c_hfs_l:")
                A("buffer_store_dword v23, v60, s[68:71], 0 offen")
                A("c_hfs_e:")
                V.n += 1
                if SNT: V.issue("buffer_store_dword v23, v30, s[68:71], 0 offen sc1")
                hfpoll()
                if "fine3" in OPT: ST2()
            if st == 1 and ks == opt("rp", -1): hfpoll()
            if st == 1 and ks == N1K:
                if "fine3" in OPT: ST2()
                if EARLY:
                    A("s_cmp_eq_u32 s13, 1")
                    A("s_cbranch_scc1 c_skipy")
                hfseen(); need(1)
                if "fine3" in OPT: ST2()
                for z in (2, 3):
                    for k2 in range(4): aload(z, k2)
                if EARLY:
                    A("c_skipy:")
                    V.done = min(V.done, V.tags[("hf", polls[0])] - 1)
                hfpoll()
                if XPS == 0: xpart()
            if st == 1 and ks == 3 and XPS == 1: xpart()
            if st >= 2:
                if st == 2 and ks == 0:
                    if "fine3" in OPT: ST2()
                    hfseen(); need(2)
                    if "fine3" in OPT: ST2()
                    for z in range(4, 2 + DIST):
                        for k2 in range(4): aload(z, k2)
                    hfpoll()
                z = st + DIST
                if z < N2:
                    if ks == 0 and z % 2 == 0 and z // 2 >= 3:
                        if z // 2 == 3: hfseen()
                        if not (int(OPT.get("abl", 0)) & 2): need(z // 2)
                    aload(z, ks)
            if SNT and st == opt("pfl", 5) and ks == 0: V.issue("buffer_load_dword v14, v29, s[68:71], 0 offen sc1", "pf")
            if SNT and st == opt("pfc", 8) and ks == 0:
                V.wait("pf")
                A("v_cmp_ne_u32 vcc, 1, v14")
                A("s_cmp_eq_u64 vcc, 0")
                A("s_cbranch_scc0 c_pfs")
                A("c_pfr:")
            if "fine3" in OPT:
                if st in (1, 2, 3, 4) and ks == 3: ST2()
                if st == 2 and ks == 0: ST2()
            elif "fine4" in OPT:
                if st == N2 - FS - 1 and ks == 3: ST2()
            elif (st % 2 == 1 if 'fine2' not in OPT else True) and ks == 3: ST2()
    f0 = N2 - FS
    S_ = lambda z: [(z, ks, nt) for ks in range(4) for nt in (0, 1)]
    K_ = lambda z: [(z, ks, nt) for ks in range(4) for nt in (2, 3)]
    if FS == 1: order = S_(15) + K_(15); nsend = 8
    elif FS == 3: order = S_(13) + ["b13"] + S_(14) + K_(13) + ["b14"] + S_(15) + K_(14) + K_(15); nsend = 32
    else:
        BP = opt("bp", 4)
        order = []
        if opt("fso", 1) == 0:
            for z in (12, 13, 14): order += S_(z)[:BP] + [f"b{z}"] + S_(z)[BP:]
            order += S_(15) + K_(12) + K_(13) + K_(14) + K_(15); nsend = 32
        else:
            order = S_(12)[:BP] + ["b12"] + S_(12)[BP:] + S_(13) + K_(12)[:BP] + ["b13"] + K_(12)[BP:] + S_(14)[:BP] + ["b14"] + S_(14)[BP:] + S_(15) + K_(13) + K_(14) + K_(15)
            nsend = 40
        for z in range(N2):
            if ("A", z, 0) not in V.tags and z >= 2:
                for k2 in range(4): aload(z, k2)
    mfs = [x for x in order if not isinstance(x, str)]
    slot = {(f0, 0, nt): nt for nt in range(4)}
    pend = [x for x in mfs if x not in slot]
    free = [4, 5, 6]
    pub = [f0]
    def fill():
        while pend and free and pend[0][0] <= pub[0]:
            x = pend.pop(0); sl = free.pop(0); slot[x] = sl
            L.issue(rd2(x[0], x[1], x[2], sl), x)
    fill()
    pst = [f"buffer_store_dwordx4 {vr(ACC2+4*i,4)}, v28, s[92:95], s{74 if i < 4 else 75} offen offset:{(i & 3)*1024} sc1" for i in range(NPQ)]
    pcv = [f"v_cvt_pk_bf16_f32 v{ACC2+k}, v{ACC2+2*k}, v{ACC2+2*k+1}" for k in range(16)] if PB else []
    i = 0; prev = None
    for x in order:
        if isinstance(x, str):
            A("s_barrier"); pub[0] += 1; fill(); continue
        V.wait(("A", x[0], x[1]))
        if x not in slot: fill()
        L.wait(x)
        A(mf2(x[0], x[1], x[2], slot[x]))
        free.append(slot[prev] if prev is not None else 7)
        prev = x
        fill()
        i += 1
        SP = opt("sp", 0)
        if i >= nsend + 3 and pcv:
            for z in range(4): A(pcv.pop(0))
            V.issue(pst.pop(0), "ps")
        elif i >= nsend + 3:
            if SP == 0:
                for z in range(2):
                    if pst: V.issue(pst.pop(0), "ps")
            elif (i - nsend - 3) % SP == 0 and pst: V.issue(pst.pop(0), "ps")
        if "fine4" in OPT and i % 8 == 0: ST2()
    while pst: V.issue(pst.pop(0), "ps")
    ST2()
    YR, OM, GF, T0, RV = 160, 176, 192, 208, ACC2
    KEEP = ACC2 + 32
    PFL = "buffer_load_dword v19, v29, s[68:71], 0 offen sc1"
    A("s_mov_b32 s12, 0xffff0000")
    for nt in range(2):
        for hf in range(2): A(f"ds_read_b128 {vr(YR+nt*8+hf*4,4)}, v21 offset:{nt*32*272 + hf*16}")
    for r in range(16):
        A(f"v_lshlrev_b32 v{GF+r}, 16, v{GR+r}")
        A(f"v_and_b32 v{OM+r}, s12, v{GR+r}")
    A("s_waitcnt lgkmcnt(0)")
    if SNT:
        RCG = opt("rcg", 2)
        def recv_full():
            for i in range(NPQ):
                A(f"buffer_load_dwordx4 {vr(RV+4*i,4)}, v28, s[92:95], s{90 if i < 4 else 91} offen offset:{(i & 3)*1024} sc1")
        first = [True]
        def recv():
            if "lp" in OPT and first[0]:
                first[0] = False
                A(f"buffer_load_dwordx4 {vr(RV+4*NPQ-4,4)}, v28, s[92:95], s{90 if PB else 91} offen offset:3072 sc1")
            else: recv_full()
        A("s_lshl_b32 s90, s72, 6")
        A("s_add_u32 s91, s90, 4096")
        gi = 0
        for nt in range(2):
            for m0 in range(0, 8, 4):
                if gi == RCG: recv()
                gi += 1
                ch = []
                for m in range(m0, m0 + 4):
                    b_ = T0 + (m & 3)*6
                    yy, xf, tm = b_, b_ + 2, b_ + 4
                    xp = XP[nt*8+m]; xd = XDP[nt*8+m]; ka = KEEP + nt*16 + 2*m
                    ch.append([f"v_lshlrev_b32 v{yy}, 16, v{YR+nt*8+m}", f"v_and_b32 v{yy+1}, s12, v{YR+nt*8+m}",
                               f"v_lshlrev_b32 v{xf}, 16, v{xp}", f"v_and_b32 v{xf+1}, s12, v{xp}",
                               f"v_mul_f32 v{yy}, v{xf}, v{yy}", f"v_mul_f32 v{yy+1}, v{xf+1}, v{yy+1}",
                               f"v_lshlrev_b32 v{xf}, 16, v{xd}", f"v_and_b32 v{xf+1}, s12, v{xd}",
                               f"v_cvt_pk_bf16_f32 v{tm}, v{yy}, v{yy+1}",
                               f"v_add_f32 v{ka}, v{ka}, v{xf}", f"v_add_f32 v{ka+1}, v{ka+1}, v{xf+1}",
                               f"v_lshlrev_b32 v{yy}, 16, v{tm}", f"v_and_b32 v{yy+1}, s12, v{tm}",
                               f"v_mul_f32 v{yy}, v{yy}, v{OM+2*m}", f"v_mul_f32 v{yy+1}, v{yy+1}, v{OM+2*m+1}",
                               f"v_cvt_pk_bf16_f32 v{tm}, v{yy}, v{yy+1}", f"v_lshlrev_b32 v{yy}, 16, v{tm}", f"v_and_b32 v{yy+1}, s12, v{tm}",
                               f"v_fma_f32 v{ka}, v{ka}, v{GF+2*m}, v{yy}", f"v_fma_f32 v{ka+1}, v{ka+1}, v{GF+2*m+1}, v{yy+1}"])
                zip_chains(A, ch)
        if gi == RCG: recv()
        ST2()
        if "lp" in OPT:
            LP = f"buffer_load_dwordx4 {vr(RV+4*NPQ-4,4)}, v28, s[92:95], s{90 if PB else 91} offen offset:3072 sc1"
            A(f"s_mov_b32 s89, {SPIN}")
            A("c_lp:")
            A("s_waitcnt vmcnt(0)")
            A(f"v_cmp_eq_u32 vcc, -1, v{RV+4*NPQ-1}")
            A("s_cmp_eq_u64 vcc, 0")
            A("s_cbranch_scc1 c_lpok")
            A("s_sub_u32 s89, s89, 1")
            A("s_cbranch_scc1 c_lpok")
            A(LP)
            A("s_branch c_lp")
            A("c_lpok:")
            recv_full()
        A(f"s_mov_b32 s89, {SPIN}")
        A("c_rc:")
        A("s_waitcnt vmcnt(0)")
        A(f"v_max3_u32 v19, v{RV}, v{RV+1}, v{RV+2}")
        for i in range(3, 4*NPQ-1, 2): A(f"v_max3_u32 v19, v19, v{RV+i}, v{RV+i+1}")
        A(f"v_max_u32 v19, v19, v{RV+4*NPQ-1}")
        A("v_cmp_eq_u32 vcc, -1, v19")
        A("s_cmp_eq_u64 vcc, 0")
        A("s_cbranch_scc1 c_rcok")
        A("s_sub_u32 s89, s89, 1")
        A("s_cbranch_scc1 c_rcok")
        recv()
        A("s_branch c_rc")
        A("c_rcok:")
        ST2()
        for nt in range(2):
            for r in range(16):
                a = KEEP + nt*16 + r
                if PB:
                    w = RV + nt*8 + (r >> 1); t = T0 + (r & 3)
                    A(f"v_and_b32 v{t}, s12, v{w}" if r & 1 else f"v_lshlrev_b32 v{t}, 16, v{w}")
                    A(f"v_fma_f32 v{a}, v{t}, v{GF+r}, v{a}")
                else: A(f"v_fma_f32 v{a}, v{RV+nt*16+r}, v{GF+r}, v{a}")
                A(f"buffer_store_dword v{a}, v{26 if r < 8 else 27}, s[76:79], s{80+(r&7)} offen offset:{nt*128}{OS}")
        ST2()
    else:
        PFG = opt("pfg", 2)
        gi = 0
        def pfstore():
            A("s_waitcnt vmcnt(0)")
            A("buffer_store_dword v23, v30, s[68:71], 0 offen sc1")
            A(PFL)
        RCG = opt("rcg", 3)
        def recv():
            A("s_lshl_b32 s12, s72, 6")
            A("s_add_u32 s13, s12, 4096")
            for i in range(NPQ):
                A(f"buffer_load_dwordx4 {vr(RV+4*i,4)}, v28, s[92:95], s{12 if i < 4 else 13} offen offset:{(i & 3)*1024} sc1")
            A("s_mov_b32 s12, 0xffff0000")
        A("s_mov_b32 s90, 0")
        for nt in range(2):
            for m0 in range(0, 8, 4):
                if gi == PFG: pfstore()
                if gi == RCG and RCG > PFG:
                    A("s_waitcnt vmcnt(0)")
                    A("v_cmp_ne_u32 vcc, 1, v19")
                    A("s_cmp_eq_u64 vcc, 0")
                    A("s_cbranch_scc0 c_norc")
                    recv()
                    A("s_mov_b32 s90, 1")
                    A("c_norc:")
                gi += 1
                ch = []
                for m in range(m0, m0 + 4):
                    b_ = T0 + (m & 3)*6
                    yy, xf, tm = b_, b_ + 2, b_ + 4
                    xp = XP[nt*8+m]; xd = XDP[nt*8+m]; ka = KEEP + nt*16 + 2*m
                    ch.append([f"v_lshlrev_b32 v{yy}, 16, v{YR+nt*8+m}", f"v_and_b32 v{yy+1}, s12, v{YR+nt*8+m}",
                               f"v_lshlrev_b32 v{xf}, 16, v{xp}", f"v_and_b32 v{xf+1}, s12, v{xp}",
                               f"v_mul_f32 v{yy}, v{xf}, v{yy}", f"v_mul_f32 v{yy+1}, v{xf+1}, v{yy+1}",
                               f"v_lshlrev_b32 v{xf}, 16, v{xd}", f"v_and_b32 v{xf+1}, s12, v{xd}",
                               f"v_cvt_pk_bf16_f32 v{tm}, v{yy}, v{yy+1}",
                               f"v_add_f32 v{ka}, v{ka}, v{xf}", f"v_add_f32 v{ka+1}, v{ka+1}, v{xf+1}",
                               f"v_lshlrev_b32 v{yy}, 16, v{tm}", f"v_and_b32 v{yy+1}, s12, v{tm}",
                               f"v_mul_f32 v{yy}, v{yy}, v{OM+2*m}", f"v_mul_f32 v{yy+1}, v{yy+1}, v{OM+2*m+1}",
                               f"v_cvt_pk_bf16_f32 v{tm}, v{yy}, v{yy+1}", f"v_lshlrev_b32 v{yy}, 16, v{tm}", f"v_and_b32 v{yy+1}, s12, v{tm}",
                               f"v_fma_f32 v{ka}, v{ka}, v{GF+2*m}, v{yy}", f"v_fma_f32 v{ka+1}, v{ka+1}, v{GF+2*m+1}, v{yy+1}"])
                zip_chains(A, ch)
        if gi == PFG: pfstore()
        ST2()
        A("s_cmp_eq_u32 s90, 1")
        A("s_cbranch_scc1 c_havercv")
        A(PFL)
        A("s_waitcnt vmcnt(0)")
        spin_all(A, "c_pf", 19, PFL)
        recv()
        A("c_havercv:")
        ST2()
        for nt in range(2):
            for r in range(16):
                a = KEEP + nt*16 + r
                if PB:
                    i = (nt*16 + r) // 8
                    if r % 8 == 0: A(f"s_waitcnt vmcnt({3 - i + nt*16 + r})")
                    w = RV + nt*8 + (r >> 1); t = T0 + (r & 3)
                    A(f"v_and_b32 v{t}, s12, v{w}" if r & 1 else f"v_lshlrev_b32 v{t}, 16, v{w}")
                    A(f"v_fma_f32 v{a}, v{t}, v{GF+r}, v{a}")
                else:
                    i = (nt*16 + r) // 4
                    if r % 4 == 0: A(f"s_waitcnt vmcnt({7 - i + nt*16 + r})")
                    A(f"v_fma_f32 v{a}, v{RV+nt*16+r}, v{GF+r}, v{a}")
                A(f"buffer_store_dword v{a}, v{26 if r < 8 else 27}, s[76:79], s{80+(r&7)} offen offset:{nt*128}{OS}")
        ST2()
    if "leak" in OPT:
        i = int(OPT["leak"])
        A("s_cmp_lg_u32 s2, 8")
        A("s_cbranch_scc1 c_noleak")
        A("s_cmp_lg_u32 s3, 0")
        A("s_cbranch_scc1 c_noleak")
        A("v_readlane_b32 s8, v63, 0")
        A(f"v_readlane_b32 s9, v{63 if i < 100 else 62}, {i % 100}")
        A("s_sub_u32 s9, s9, s8")
        A("s_memrealtime s[10:11]")
        A("s_waitcnt lgkmcnt(0)")
        A("s_add_u32 s9, s9, s10")
        A("c_leak:")
        A("s_memrealtime s[10:11]")
        A("s_waitcnt lgkmcnt(0)")
        A("s_sub_u32 s12, s9, s10")
        A("s_cmp_gt_i32 s12, 0")
        A("s_cbranch_scc1 c_leak")
        A("c_noleak:")
    if "leak2" in OPT:
        X, i = str(OPT["leak2"]).split(":"); i = int(i)
        if X != "all":
            A(f"s_cmp_lg_u32 s2, {int(X)}")
            A("s_cbranch_scc1 c_noleak2")
        A("s_cmp_lg_u32 s3, 0")
        A("s_cbranch_scc1 c_noleak2")
        A(f"v_readlane_b32 s9, v{63 if i < 100 else 62}, {i % 100}")
        A("s_add_u32 s9, s9, 4000")
        A("c_leak2:")
        A("s_memrealtime s[10:11]")
        A("s_waitcnt lgkmcnt(0)")
        A("s_sub_u32 s12, s9, s10")
        A("s_cmp_gt_i32 s12, 0")
        A("s_cbranch_scc1 c_leak2")
        A("c_noleak2:")
    ST.flush()
    ST2.flush()
    A("s_endpgm")
    if SNT:
        A("c_pfs:")
        A(f"s_mov_b32 s89, {SPIN}")
        A("c_pfs_l:")
        A("s_waitcnt vmcnt(0)")
        A("buffer_load_dword v14, v29, s[68:71], 0 offen sc1")
        A("s_waitcnt vmcnt(0)")
        A("v_cmp_ne_u32 vcc, 1, v14")
        A("s_cmp_eq_u64 vcc, 0")
        A("s_cbranch_scc1 c_pfr")
        A("s_sub_u32 s89, s89, 1")
        A("s_cbranch_scc1 c_pfr")
        A("s_branch c_pfs_l")
    for name, m in slowp:
        A(f"{name}_s:")
        A(f"s_mov_b32 s89, {SPIN}")
        A(f"{name}_l:")
        A("s_waitcnt vmcnt(0)")
        A(HFL)
        A("s_waitcnt vmcnt(0)")
        A("v_cmp_eq_u32 s[90:91], 1, v19")
        A(f"s_and_b32 s88, s90, {m:#x}")
        A(f"s_cmp_eq_u32 s88, {m:#x}")
        A(f"s_cbranch_scc1 {name}")
        A("s_sub_u32 s89, s89, 1")
        A(f"s_cbranch_scc1 {name}")
        A(f"s_branch {name}_l")

def helper(A):
    V = VQ(A)
    VA, VB = 8, 12
    ST = Stamper(A, 0, 58)
    STH = Stamper(A, 1, 59)
    ST()
    if "hprio1" in OPT: A(f"s_setprio {OPT['hprio1']}")
    A("s_sub_u32 s3, s3, 4")
    A("s_lshr_b32 s6, s3, 1")
    A("s_and_b32 s7, s3, 1")
    A("v_lshrrev_b32 v3, 5, v1")
    A("v_lshlrev_b32 v3, 5, v3")
    A("v_bfe_u32 v4, v1, 3, 1")
    A("v_lshl_add_u32 v3, v4, 4, v3")
    A("v_bfe_u32 v4, v1, 4, 1")
    A("v_add_u32 v3, v3, v4")
    A("s_lshl_b32 s8, s4, 7")
    A("s_lshl_b32 s9, s6, 6")
    A("s_add_u32 s8, s8, s9")
    A("s_lshl_b32 s9, s7, 3")
    A("s_add_u32 s8, s8, s9")
    A("v_add_u32 v3, s8, v3")
    A("v_lshlrev_b32 v3, 11, v3")
    A("v_and_b32 v4, 7, v1")
    A("v_lshrrev_b32 v5, 4, v1")
    A("v_xor_b32 v4, v4, v5")
    A("v_lshlrev_b32 v4, 4, v4")
    A(f"v_add_u32 v{VA}, v3, v4")
    A("s_lshl_b32 s10, s3, 12")
    A("s_lshr_b32 s90, s55, 2")
    A("s_lshl_b32 s90, s90, 1")
    A("s_and_b32 s91, s55, 3")
    A("s_lshl_b32 s91, s91, 2")
    A("s_add_u32 s90, s90, s91")
    A("s_and_b32 s11, s90, 15")
    A("s_lshl_b32 s11, s11, 7")
    A("s_mov_b32 m0, s10")
    A(f"s_mov_b32 s58, {4<<20:#x}")
    A("s_mov_b32 s59, 0x20000")
    if "fine0" in OPT: STH()
    A("s_waitcnt lgkmcnt(0)")
    if "fine0" in OPT: STH()
    A(f"s_mov_b32 s56, s{P['x']}")
    A(f"s_mov_b32 s57, s{P['x']+1}")
    V.issue(f"buffer_load_dwordx4 v{VA}, s[56:59], s11 offen lds")
    A("v_xor_b32 v5, 64, v4")
    A(f"v_add_u32 v{VA+1}, v3, v5")
    A(f"v_add_u32 v{VA+1}, {4096-1024}, v{VA+1}")
    V.issue(f"buffer_load_dwordx4 v{VA+1}, s[56:59], s11 offen offset:1024 lds")
    A(f"v_add_u32 v{VA+2}, {2*(4096-1024)}, v{VA}")
    V.issue(f"buffer_load_dwordx4 v{VA+2}, s[56:59], s11 offen offset:2048 lds")
    A(f"v_add_u32 v{VA+3}, {2*(4096-1024)}, v{VA+1}")
    V.issue(f"buffer_load_dwordx4 v{VA+3}, s[56:59], s11 offen offset:3072 lds")
    A("s_lshl_b32 s8, s5, 6")
    A("s_lshl_b32 s9, s7, 5")
    A("s_add_u32 s8, s8, s9")
    A("v_lshrrev_b32 v6, 3, v1")
    A("v_add_u32 v7, s8, v6")
    A("v_lshlrev_b32 v7, 11, v7")
    A(f"v_add_u32 v{VB}, v7, v4")
    A("s_cmp_ge_u32 s3, 2")
    A(f"s_cselect_b32 s60, s{P['Bim']}, s{P['Bre']}")
    A(f"s_cselect_b32 s61, s{P['Bim']+1}, s{P['Bre']+1}")
    A(f"s_mov_b32 s62, {2<<20:#x}")
    A("s_mov_b32 s63, 0x20000")
    A("s_add_u32 m0, s10, 16384")
    A(f"v_add_u32 v{VB+1}, v7, v5")
    V.issue(f"buffer_load_dwordx4 v{VB}, s[60:63], s11 offen lds")
    A(f"v_add_u32 v{VB+1}, {16384-1024}, v{VB+1}")
    V.issue(f"buffer_load_dwordx4 v{VB+1}, s[60:63], s11 offen offset:1024 lds")
    A(f"v_add_u32 v{VB+2}, {2*(16384-1024)}, v{VB}")
    V.issue(f"buffer_load_dwordx4 v{VB+2}, s[60:63], s11 offen offset:2048 lds")
    A(f"v_add_u32 v{VB+3}, {2*(16384-1024)}, v{VB+1}")
    V.issue(f"buffer_load_dwordx4 v{VB+3}, s[60:63], s11 offen offset:3072 lds", ("S", 0))
    def issue(st, fill=0):
        slot = st % 3
        A(f"s_add_u32 s11, s90, {st}")
        A("s_and_b32 s11, s11, 15")
        A("s_lshl_b32 s11, s11, 7")
        A(f"s_add_u32 m0, s10, {slot*32768:#x}")
        for n in range(4):
            V.issue(f"buffer_load_dwordx4 v{VA+n}, s[56:59], s11 offen offset:{n*1024} lds")
            if fill: do_work(fill)
        A(f"s_add_u32 m0, s10, {slot*32768+16384:#x}")
        for n in range(4):
            V.issue(f"buffer_load_dwordx4 v{VB+n}, s[60:63], s11 offen offset:{n*1024} lds", ("S", st))
            if fill: do_work(fill)
    if "fine0" in OPT: STH()
    VC = 28
    A("s_and_b32 s8, s5, 7")
    A("s_lshl_b32 s8, s8, 6")
    A("s_lshl_b32 s9, s3, 4")
    A("s_add_u32 s8, s8, s9")
    A("v_add_u32 v7, s8, v6")
    A("v_lshlrev_b32 v7, 11, v7")
    A(f"v_add_u32 v{VC}, v7, v4")
    A(f"v_add_u32 v{VC+1}, v7, v5")
    A(f"v_add_u32 v{VC+1}, {16384-1024}, v{VC+1}")
    A("s_and_b32 s12, s55, 1")
    A("s_lshl_b32 s13, s54, 1")
    A("s_add_u32 s12, s12, s13")
    A("s_lshr_b32 s13, s55, 1")
    A("s_lshl_b32 s8, s2, 7")
    A(f"s_add_u32 s8, s8, {KF_OFF:#x}")
    A("v_mov_b32 v30, s8")
    A("s_lshl_b32 s88, s54, 5")
    A("s_add_u32 s88, s88, s55")
    A("s_lshl_b32 s8, s88, 7")
    A(f"s_add_u32 s8, s8, {YF_OFF:#x}")
    A("v_mov_b32 v31, s8")
    A("s_lshl_b32 s88, s88, 2")
    A("s_add_u32 s88, s88, s3")
    A("v_mov_b32 v2, 0")
    srd(A, 92, "ws", FLG_SZ, WS_FLG)
    A("s_lshl_b32 s8, s88, 12")
    A(f"s_load_dword s100, {sp('ssmk')}, s8")
    A("s_lshr_b32 s8, s88, 1")
    A("s_lshl_b32 s8, s8, 2")
    A(f"s_load_dword s101, {sp('ssmD')}, s8")
    V.issue("buffer_store_dword v2, v30, s[92:95], 0 offen sc1")
    V.issue("buffer_store_dword v2, v31, s[92:95], 0 offen sc1", "clr")
    if opt("pl", 1) >= 0: issue(1)
    if "fine0" in OPT: STH()
    KR, VR_, SK = 32, 208, 68
    XG, GW = 72, 88
    A("s_lshl_b32 s13, s13, 7")
    A("s_lshl_b32 s14, s3, 5")
    A("s_add_u32 s13, s13, s14")
    A("v_and_b32 v17, 31, v1")
    A("s_lshl_b32 s14, s12, 5")
    A("v_add_u32 v17, s14, v17")
    A("v_lshlrev_b32 v22, 4, v17")
    A("v_and_b32 v23, 31, v1")
    A("v_mul_u32_u24 v23, 544, v23")
    A("v_lshrrev_b32 v24, 5, v1")
    A("v_lshlrev_b32 v24, 5, v24")
    A("v_sub_u32 v23, v23, v24")
    A("s_lshl_b32 s8, s3, 6")
    A(f"s_sub_u32 s8, {UREG+224}, s8")
    A("v_add_u32 v23, s8, v23")
    A("v_lshrrev_b32 v24, 4, v1")
    A("s_lshl_b32 s8, s3, 4")
    A("v_add_u32 v24, s8, v24")
    A("v_and_b32 v2, 15, v1")
    A("v_lshlrev_b32 v2, 4, v2")
    A("s_lshl_b32 s8, s12, 6")
    A("v_add_u32 v27, s8, v24")
    A("v_lshl_add_u32 v27, v27, 12, v2")
    A("s_lshr_b32 s8, s55, 1")
    A("s_lshl_b32 s8, s8, 8")
    A("s_sub_u32 s8, 3840, s8")
    A("v_add_u32 v27, s8, v27")
    A("v_mul_u32_u24 v24, 272, v24")
    A("v_add_u32 v24, v24, v2")
    A(f"v_add_u32 v24, {UREG:#x}, v24")
    A("s_lshl_b32 s14, s4, 7")
    A("s_lshl_b32 s8, s5, 3")
    A("s_add_u32 s14, s14, s8")
    A("s_lshl_b32 s8, s3, 1")
    A("s_add_u32 s14, s14, s8")
    A("s_lshl_b32 s8, s14, 11")
    A("v_lshlrev_b32 v25, 4, v1")
    A("v_add_u32 v26, s8, v25")
    A("v_add_u32 v3, 0x8000, v27")
    srd(A, 64, "k", 4 << 20)
    srd(A, 68, "v", 4 << 20)
    srd(A, 72, "ws", 4 << 20, WS_KVT)
    srd(A, 76, "ws", 8192, WS_G)
    for i in range(8):
        A(f"s_mov_b32 s{80+i}, {i*4096}")
    NTP = " nt" if "ntp" in OPT else ""
    A("v_lshrrev_b32 v19, 3, v1")
    A("v_add_u32 v19, s13, v19")
    A("v_lshlrev_b32 v19, 11, v19")
    A("v_and_b32 v20, 7, v1")
    A("v_lshl_add_u32 v19, v20, 4, v19")
    A("s_lshl_b32 s8, s12, 7")
    A("v_add_u32 v19, s8, v19")
    A("v_subrev_u32 v20, 16384, v19")
    A("v_lshrrev_b32 v21, 5, v1")
    A("v_lshlrev_b32 v21, 11, v21")
    A("v_and_b32 v18, 31, v1")
    A("v_lshl_add_u32 v21, v18, 2, v21")
    A("s_lshl_b32 s8, s3, 12")
    A(f"s_add_u32 s91, s8, {KREG}")
    A("v_add_u32 v21, s91, v21")
    def kvdma():
        A("s_add_u32 m0, s91, 16384")
        V.issue(f"buffer_load_dwordx4 v20, s[64:67], 0 offen{NTP} lds")
        for i in range(4):
            A(f"s_add_u32 m0, s91, {16384 + 1024*(i+1)}")
            A(f"s_mov_b32 s99, {i*16384}")
            V.issue(f"buffer_load_dwordx4 v19, s[64:67], s99 offen{NTP} lds")
        V.issue(f"global_load_dwordx4 {vr(SK,4)}, v22, {sp('shk')}", "k")
        for i in range(4):
            A(f"s_add_u32 m0, s91, {1024*i}")
            A(f"s_mov_b32 s99, {i*16384}")
            V.issue(f"buffer_load_dwordx4 v19, s[68:71], s99 offen{NTP} lds", "v")
    if opt("pl", 1) < 0:
        kvdma(); issue(1)
    gl = []
    for r in range(2):
        for hh in range(2): gl.append((f"buffer_load_dwordx4 {vr(XG+r*8+hh*4,4)}, v26, s[56:59], 0 offen offset:{r*2048+hh*1024}", None))
    for hh in range(2): gl.append((f"global_load_dwordx4 {vr(GW+hh*4,4)}, v25, {sp('gw')} offset:{hh*1024}", "gate"))
    KF = 96; SP = 136; OUT = 144
    work = []
    def W(x):
        if callable(x): work.append(x)
        else: work.extend(x.split("\n"))
    def rndW(pair, tmp):
        W(f"v_cvt_pk_bf16_f32 v{tmp}, v{pair}, v{pair+1}")
        W(f"v_lshlrev_b32 v{pair}, 16, v{tmp}")
        W(f"v_and_b32 v{pair+1}, s12, v{tmp}")
    W("s_mov_b32 s12, 0xffff0000")
    gate_begin = len(work)
    W(lambda: V.wait("gate"))
    for i in range(8):
        W(f"v_lshlrev_b32 v{96+2*i}, 16, v{GW+i}")
        W(f"v_and_b32 v{97+2*i}, s12, v{GW+i}")
    for r in range(2):
        acc = 112 + r
        W(f"v_mov_b32 v{acc}, 0")
        for i in range(8):
            W(f"v_lshlrev_b32 v116, 16, v{XG+r*8+i}")
            W(f"v_and_b32 v117, s12, v{XG+r*8+i}")
            W(pk("mul", 116, 116, 96+2*i))
            rndW(116, 118)
            W(f"v_add_f32 v{acc}, v{acc}, v116")
            W(f"v_add_f32 v{acc}, v{acc}, v117")
    for r in range(2):
        acc = 112 + r
        for sh in (1, 2, 4, 8):
            W(f"v_add_f32_dpp v{acc}, v{acc}, v{acc} row_shr:{sh} row_mask:0xf bank_mask:0xf bound_ctrl:0")
        W(f"v_add_f32_dpp v{acc}, v{acc}, v{acc} row_bcast:15 row_mask:0xa bank_mask:0xf")
        W(f"v_add_f32_dpp v{acc}, v{acc}, v{acc} row_bcast:31 row_mask:0xc bank_mask:0xf")
    for t in ["v_readlane_b32 s8, v112, 63", "v_readlane_b32 s9, v113, 63", "v_mov_b32 v116, s8", "v_mov_b32 v117, s9",
              "v_cmp_eq_u32 vcc, 1, v1", "v_cndmask_b32 v116, v116, v117, vcc", "v_cvt_pk_bf16_f32 v116, v116, v116",
              "v_lshlrev_b32 v116, 16, v116", "v_mul_f32 v116, 0xbfb8aa3b, v116", "v_exp_f32 v116, v116", "v_add_f32 v116, 1.0, v116",
              "v_rcp_f32 v116, v116", "v_cvt_pk_bf16_f32 v117, v116, v116", "v_lshlrev_b32 v116, 16, v117", "v_sub_f32 v118, 1.0, v116",
              "v_cvt_pk_bf16_f32 v116, v116, v118", "s_lshl_b32 s14, s14, 2", "v_lshl_add_u32 v117, v1, 2, s14"]:
        W(t)
    def gstore():
        A("s_mov_b64 exec, 3")
        V.issue("buffer_store_dword v116, v117, s[76:79], 0 offen sc1", "g")
        A("s_mov_b64 exec, -1")
    W(gstore)
    gate_end = len(work)
    W("KVSTART")
    W(lambda: V.wait("k"))
    for i in range(19):
        W(f"ds_read_b32 v{KR+i}, v21 offset:{16384 + (5+i)*128}")
        if i == 9: W("s_waitcnt lgkmcnt(0)")
    W("s_waitcnt lgkmcnt(0)")
    for i in range(19):
        W(f"v_lshlrev_b32 v{KF+2*i}, 16, v{KR+i}")
        W(f"v_and_b32 v{KF+2*i+1}, s12, v{KR+i}")
    for jx in range(4):
        for cc in range(2):
            src = SK + cc*2 + (jx >> 1)
            W(f"v_and_b32 v{SP+2*jx+cc}, s12, v{src}" if jx & 1 else f"v_lshlrev_b32 v{SP+2*jx+cc}, 16, v{src}")
    W(lambda: V.wait("v"))
    for i in range(16):
        W(f"ds_read_b32 v{VR_+i}, v21 offset:{i*128}")
        if i == 7: W("s_waitcnt lgkmcnt(0)")
    W("s_waitcnt lgkmcnt(0)")
    for t in range(16):
        vv = 176 + (t & 1)*2
        W(f"v_lshlrev_b32 v{vv}, 16, v{VR_+t}")
        W(f"v_and_b32 v{vv+1}, s12, v{VR_+t}")
        if opt("pk", 0) & 2:
            o = OUT + 2*t
            W(f"v_pk_mul_f32 {vr(o,2)}, {vr(KF+2*t,2)}, {vr(SP+6,2)}")
            for jx in (2, 1, 0): W(f"v_pk_fma_f32 {vr(o,2)}, {vr(KF+2*(t+3-jx),2)}, {vr(SP+2*jx,2)}, {vr(o,2)}")
            W(f"v_pk_mul_f32 {vr(o,2)}, {vr(o,2)}, {vr(vv,2)}")
            continue
        for cc in range(2): W(f"v_mul_f32 v{OUT+2*t+cc}, v{KF+2*t+cc}, v{SP+6+cc}")
        for jx in (2, 1, 0):
            for cc in range(2): W(f"v_fmac_f32 v{OUT+2*t+cc}, v{KF+2*(t+3-jx)+cc}, v{SP+2*jx+cc}")
        for cc in range(2): W(f"v_mul_f32 v{OUT+2*t+cc}, v{OUT+2*t+cc}, v{vv+cc}")
    for cc in range(2):
        for hf in range(2):
            d = 192 + (cc*2+hf)*4
            for m in range(4):
                mm = hf*4 + m
                W(f"v_cvt_pk_bf16_f32 v{d+m}, v{OUT+2*(15-2*mm)+cc}, v{OUT+2*(14-2*mm)+cc}")
            W(f"ds_write_b128 v23, {vr(d,4)} offset:{cc*272+hf*16}")
    W("s_waitcnt lgkmcnt(0)")
    W("BARRIER")
    for i in range(4): W(f"ds_read_b128 {vr(192+4*i,4)}, v24 offset:{i*4*272}")
    KVL = "nokvl" not in OPT
    def kvstores():
        def block(pol):
            for i in range(4):
                A(f"s_waitcnt lgkmcnt({3-i})")
                V.issue(f"buffer_store_dwordx4 {vr(192+4*i,4)}, v{27 if i < 2 else 3}, s[72:75], s{80+4*(i&1)} offen{pol}", "kvt")
        if not KVL:
            block(" sc1"); return
        V.wait("cls")
        local_check(A, 247, 246, 96, 98)
        A("s_cbranch_scc0 h_kvl")
        n0 = V.n
        block(" sc1")
        A("s_branch h_kve")
        A("h_kvl:")
        V.n = n0
        block("")
        A("h_kve:")
    W(kvstores)
    kv_end = len(work)
    if "kvfirst" in OPT:
        gate_part = work[gate_begin:gate_end]
        del work[gate_begin:gate_end]
        work.extend(gate_part)
    wpos = [0]
    blocked = [False]
    cur = [0]
    PL = opt("pl", 1)
    KVW = PL + opt("kvd", 3)
    def do_work(n):
        while n > 0 and wpos[0] < len(work) and not blocked[0]:
            w = work[wpos[0]]
            wpos[0] += 1
            if w == "BARRIER":
                blocked[0] = True; return
            if w == "KVSTART":
                if cur[0] < KVW:
                    wpos[0] -= 1; return
                continue
            if callable(w): w()
            elif "ablkv" in OPT and w.startswith("v_") and wpos[0] > gate_end and wpos[0] < kv_end: pass
            else: A(w)
            n -= 1
    PREP0 = opt("prep0", 1)
    UL = 40
    ACC = 64; BF = 96; AFR = 160; KD = 224
    def setup_conv(A):
        A("s_lshl_b32 s12, s88, 12")
        srd(A, 64, "ssmk", 4096, off_sreg=12)
        srd(A, 68, "ws", 4096, WS_KVT, off_sreg=12)
        A("s_mov_b32 s80, s100")
        A("s_mov_b32 s81, s101")
        A("v_and_b32 v37, 15, v1")
        A("s_lshr_b32 s8, s88, 6")
        A("s_and_b32 s8, s8, 1")
        A("s_lshl_b32 s8, s8, 3")
        A("s_add_u32 s8, s8, s54")
        A("v_lshl_add_u32 v32, v37, 4, s8")
        A("s_lshr_b32 s8, s4, 2")
        A("s_lshl_b32 s8, s8, 1")
        A("s_and_b32 s9, s4, 3")
        A("s_lshl_b32 s9, s9, 3")
        A("s_add_u32 s8, s8, s9")
        A("v_lshrrev_b32 v38, 3, v37")
        A("v_and_b32 v39, 7, v37")
        A("v_lshl_add_u32 v38, v39, 5, v38")
        A("v_add_u32 v38, s8, v38")
        A("v_and_b32 v39, 16, v1")
        A("v_cmp_ne_u32 vcc, 0, v39")
        A("v_cndmask_b32 v32, v32, v38, vcc")
        A("v_lshlrev_b32 v32, 7, v32")
        A(f"v_add_u32 v32, {KF_OFF:#x}, v32")
        A("v_lshlrev_b32 v33, 2, v1")
        srd(A, 76, "dbg", 256)
        A(f"s_mul_i32 s13, s3, 8320")
        A(f"s_add_u32 s13, s13, {KREG}")
        A(f"s_mul_i32 s82, s3, 4608")
        A(f"s_add_u32 s82, s82, {UREG}")
        A("v_add_u32 v36, 2, v25")
        A("v_and_b32 v38, 7, v1")
        A("v_lshlrev_b32 v38, 2, v38")
        A("v_bfe_u32 v39, v1, 3, 1")
        A("v_mul_u32_u24 v39, 4160, v39")
        A("v_add3_u32 v38, v38, v39, s13")
        A("s_lshl_b32 s80, s80, 16")
        A("v_mov_b32 v56, s80")
        A("v_cmp_eq_u32 vcc, 15, v37")
        A("v_cndmask_b32 v56, 0, v56, vcc")
        A("ds_write_b32 v38, v56")
        A("s_and_b32 s14, s88, 1")
        A("s_lshl_b32 s14, s14, 4")
        A("s_lshr_b32 s81, s81, s14")
        A("s_lshl_b32 s81, s81, 16")
        A(f"v_mov_b32 v60, {LFLAG:#x}")
        A("v_mov_b32 v61, 1")
    def setup_late(A):
        A("v_lshrrev_b32 v5, 4, v1")
        A("v_and_b32 v37, 15, v1")
        A("v_lshl_add_u32 v38, v5, 3, v37")
        A("v_lshlrev_b32 v38, 1, v38")
        A("v_and_b32 v39, 1, v1")
        A("v_mul_u32_u24 v39, 4158, v39")
        A("v_sub_u32 v38, v38, v39")
        A("s_add_u32 s14, s13, 4160")
        A("v_add_u32 v16, s14, v38")
        for i in range(1, 4): A(f"v_add_u32 v{16+i}, {1024*i}, v16")
        A("v_lshlrev_b32 v38, 5, v37")
        A("v_lshlrev_b32 v39, 4, v5")
        A("v_sub_u32 v20, v39, v38")
        A("s_add_u32 s14, s82, 480")
        A("v_add_u32 v20, s14, v20")
        A("v_lshl_add_u32 v39, v5, 3, v38")
        A("s_add_u32 s14, s82, 504")
        A("v_sub_u32 v21, s14, v39")
        A("v_and_b32 v39, 1, v5")
        A("v_lshl_add_u32 v22, v39, 9, v38")
        A("v_lshrrev_b32 v39, 1, v5")
        A("v_lshl_add_u32 v22, v39, 4, v22")
        A("v_add_u32 v23, s82, v25")
    setup_conv(W)
    print("prep work items", len(work))
    def cissue(st):
        tile_of(A, st >> 1, 11)
        A("s_lshl_b32 s11, s11, 7")
        sr_ = "s[56:59]" if st % 2 == 0 else "s[60:63]"
        A("s_add_u32 s99, s11, s91")
        A(f"s_add_u32 m0, s10, {(st % NS2)*16384:#x}")
        for n in range(2):
            V.issue(f"buffer_load_dwordx4 v{VC+n}, {sr_}, s99 offen offset:{n*1024} lds")
        A("s_add_u32 s11, s11, s90")
        A(f"s_add_u32 m0, s10, {(st % NS2)*16384 + 8192:#x}")
        for n in range(2):
            V.issue(f"buffer_load_dwordx4 v{VC+n}, {sr_}, s11 offen offset:{n*1024} lds", ("C", st))
    def uloads():
        for i in range(4): A(f"buffer_load_dwordx4 {vr(UL+4*i,4)}, v25, s[68:71], 0 offen offset:{i*1024} sc1")
    def ctouch():
        A("s_cmp_ge_u32 s3, 2")
        A(f"s_cselect_b32 s96, s{P['Cim']}, s{P['Cre']}")
        A(f"s_cselect_b32 s97, s{P['Cim']+1}, s{P['Cre']+1}")
        A("s_lshl_b32 s98, s2, 13")
        A("s_and_b32 s99, s3, 1")
        A("s_lshl_b32 s99, s99, 12")
        A("s_add_u32 s98, s98, s99")
        A("v_and_b32 v240, 31, v1")
        if "km" in OPT:
            A("s_add_u32 s96, s96, s98")
            A("s_addc_u32 s97, s97, 0")
            A("s_lshl_b32 s98, s88, 12")
            A(f"s_add_u32 s98, s{P['ssmk']}, s98")
            A(f"s_addc_u32 s99, s{P['ssmk']+1}, 0")
            A("v_mov_b32 v242, s96")
            A("v_mov_b32 v243, s97")
            A("v_mov_b32 v244, s98")
            A("v_mov_b32 v245, s99")
            A("v_cmp_lt_u32 s[96:97], 31, v1")
            A("v_cndmask_b32 v242, v242, v244, s[96:97]")
            A("v_cndmask_b32 v243, v243, v245, s[96:97]")
            A("v_lshlrev_b32 v240, 7, v240")
            A("v_add_co_u32 v242, s[96:97], v242, v240")
            A("v_addc_co_u32 v243, s[96:97], 0, v243, s[96:97]")
            V.issue("global_load_dword v241, v[242:243], off")
        else:
            A("v_lshl_add_u32 v240, v240, 7, s98")
            V.issue("global_load_dword v241, v240, s[96:97]")
    FILL = opt("fill", 10)
    kst = [None]
    KW = opt("kw", 2)
    CHK = opt("chk", 13)
    KFS = opt("kfs", 12)
    KDS = opt("kds", 11)
    UWS = opt("uws", 14)
    WEND = min(KFS, KDS, 12)
    CM = opt("cm", 6)
    assert CHK < UWS <= 15 and opt("lates", 14) <= UWS
    nU = [0]; cdone = [0]
    NC0 = opt("nc0", 2)
    A(f"v_mov_b32 v6, {LFLAG:#x}")
    A("v_mov_b32 v7, 0")
    for o in (4, 8, 12, 16, 20) + ((24, 28, 32, 36) if "pz" in OPT else ()): A(f"ds_write_b32 v6, v7 offset:{o}")
    ST()
    A("s_waitcnt lgkmcnt(0)")
    V.wait("clr")
    ST()
    if "fine0" in OPT: STH()
    A("s_barrier")
    issue(2)
    if "fine0" in OPT: STH()
    for t, tag in gl: V.issue(t, tag)
    for s in range(N1):
        V.wait(("S", min(s+1, N1-1)))
        if kst[0] is not None and s == min(kst[0] + KW, 15): V.wait("kvt"); V.wait("g")
        if "fine1" in OPT: STH()
        A("s_barrier")
        if kst[0] is not None and s == min(kst[0] + KW, 15):
            A("s_cmp_lg_u32 s3, 0")
            A("s_cbranch_scc1 h_kflag")
            A("v_mov_b32 v6, 1")
            A("buffer_store_dword v6, v30, s[92:95], 0 offen sc1")
            A("h_kflag:")
            print("k flag after barrier", s+1)
        blocked[0] = False
        cur[0] = s
        FM = opt("fmode", 0)
        fl = opt("fill0", FILL) if s < opt("fill0n", 0) else FILL
        if s+3 < N1 and FM == 0: issue(s+3, fl if s >= PREP0 else 0)
        elif s+3 < N1 and FM == 1:
            issue(s+3)
            if s >= PREP0: do_work(8*FILL)
        if s == PL - 100: pass
        if s == PL and PL >= 0: kvdma()
        if s == CM: ctouch()
        if KVL and s == opt("cls", 6):
            A("v_lshlrev_b32 v246, 2, v1")
            V.issue(f"global_load_dword v247, v246, {sp('dbg')} sc1", "cls")
        if kst[0] is None and "kvt" in V.tags and "g" in V.tags: kst[0] = s
        if s == WEND:
            do_work(10000)
            assert wpos[0] == len(work), (wpos[0], len(work))
        if s == KFS:
            V.issue("buffer_load_dword v34, v33, s[76:79], 0 offen sc1")
            V.issue("buffer_load_dword v35, v32, s[92:95], 0 offen sc1", "kf")
            ST()
        if s == KDS and KDS < CHK:
            V.wait("g")
            A("s_add_u32 m0, s13, 32")
            for i in range(4): V.issue(f"buffer_load_dwordx4 v25, s[64:67], 0 offen offset:{i*1024}{NTP} lds")
            A("s_add_u32 m0, s13, 4192")
            for i in range(4): V.issue(f"buffer_load_dwordx4 v36, s[64:67], 0 offen offset:{i*1024}{NTP} lds", "K")
        if s == 13:
            srd(A, 56, "Cre", 2 << 20)
            srd(A, 60, "Cim", 2 << 20)
            A("s_lshl_b32 s10, s3, 11")
            A(f"s_add_u32 s10, s10, {CRING:#x}")
            A("s_lshr_b32 s90, s5, 3")
            A("s_xor_b32 s91, s90, 1")
            A("s_lshl_b32 s91, s91, 20")
            A("s_lshl_b32 s11, s90, 10")
            A("s_add_u32 s91, s91, s11")
            A("s_mul_i32 s90, s90, 0x100400")
            A("v_mov_b32 v56, 0")
            A("v_mov_b32 v57, 0")
            A("v_lshlrev_b32 v38, 3, v1")
            A("v_add_u32 v38, s82, v38")
            A("ds_write_b64 v38, v[56:57] offset:4096")
            ST()
        if s == CHK:
            V.wait("kf")
            A("s_mov_b32 s83, 0")
            A("v_and_b32 v34, 15, v34")
            A("v_cmp_ne_u32 vcc, 15, v34")
            A("v_cmp_ne_u32 s[84:85], 1, v35")
            A("s_or_b64 vcc, vcc, s[84:85]")
            A("s_cbranch_scc1 h_nou")
            A("s_mov_b32 s83, 1")
            uloads()
            A("h_nou:")
            nU[0] = V.n
        if s == KDS and KDS >= CHK:
            V.wait("g")
            A("s_add_u32 m0, s13, 32")
            for i in range(4): V.issue(f"buffer_load_dwordx4 v25, s[64:67], 0 offen offset:{i*1024}{NTP} lds")
            A("s_add_u32 m0, s13, 4192")
            for i in range(4): V.issue(f"buffer_load_dwordx4 v36, s[64:67], 0 offen offset:{i*1024}{NTP} lds", "K")
        if s == opt("lates", 14): setup_late(A)
        if s == 15:
            for z in range(NC0): cissue(z)
            cdone[0] = NC0
        if s == UWS:
            A("s_cmp_lg_u32 s83, 1")
            A("s_cbranch_scc1 h_nouw")
            A(f"s_waitcnt vmcnt({V.n - nU[0]})")
            for i in range(4): A(f"ds_write_b128 v23, {vr(UL+4*i,4)} offset:{1024*i}")
            A("h_nouw:")
    ST()
    if "hprio1" in OPT: A("s_setprio 0")
    A("s_cmp_lg_u32 s83, 0")
    A("s_cbranch_scc1 h_haveu")
    spin_all(A, "h_init", 34, "buffer_load_dword v34, v33, s[76:79], 0 offen sc1", "15", pre="v_and_b32 v34, 15, v34")
    spin_all(A, "h_kf", 35, "buffer_load_dword v35, v32, s[92:95], 0 offen sc1")
    uloads()
    A("s_waitcnt vmcnt(0)")
    for i in range(4): A(f"ds_write_b128 v23, {vr(UL+4*i,4)} offset:{1024*i}")
    A("h_haveu:")
    V.done = max(V.done, nU[0])
    V.wait("K")
    if "lowp" in OPT: A("s_setprio 1")
    lds_inc(A, 60, 61, 8)
    for i in range(4): A(f"s_mov_b32 s{84+i}, s{68+i}")
    srd(A, 68, "ws", 4 << 20, WS_KVT)
    A("s_waitcnt lgkmcnt(0)")
    ST()
    L = LQ(A)
    ops = []
    def reads(r):
        R = []
        s = r & 1
        for i in range(8):
            R.append((f"ds_read_b128 {vr(BF+s*32+i*4,4)}, v20 offset:{3584-512*i+64*r}", ("B", r, i)))
            o = 128*(i & 1) + 16*r
            d = AFR + s*32 + i*4
            R.append((f"ds_read2_b32 {vr(d,2)}, v{16+(i>>1)} offset0:{o} offset1:{o+1}", None))
            R.append((f"ds_read2_b32 {vr(d+2,2)}, v{16+(i>>1)} offset0:{o+2} offset1:{o+3}", ("A", r, i)))
        return R
    def first_order(R):
        return R[1:3] + [R[3*i] for i in range(8)] + [x for i in range(1, 8) for x in R[3*i+1:3*i+3]]
    KVT = 40
    for n in range(8): ops.append(("rd", f"ds_read_b64 {vr(KVT+2*n,2)}, v21 offset:{3584-512*n}", ("KV", n)))
    for t, tag in first_order(reads(0)): ops.append(("rd", t, tag))
    fill = []
    fill.append(("s_mov_b32 s12, 0xffff0000", None)); fill.append(("v_mov_b32 v26, s81", None))
    for n in range(8):
        k = KD + 4*n
        c = [f"v_and_b32 v{k}, s12, v{KVT+2*n+1}", f"v_lshlrev_b32 v{k+1}, 16, v{KVT+2*n+1}", f"v_and_b32 v{k+2}, s12, v{KVT+2*n}", f"v_lshlrev_b32 v{k+3}, 16, v{KVT+2*n}"]
        c += [f"v_mul_f32 v{k+i}, v{k+i}, v26" for i in range(4)]
        c += [f"v_cvt_pk_bf16_f32 v56, v{k}, v{k+1}", f"v_cvt_pk_bf16_f32 v57, v{k+2}, v{k+3}",
              f"v_lshlrev_b32 v{k}, 16, v56", f"v_and_b32 v{k+1}, s12, v56", f"v_lshlrev_b32 v{k+2}, 16, v57", f"v_and_b32 v{k+3}, s12, v57"]
        for i, t in enumerate(c): fill.append((t, ("KV", n) if i == 0 else None))
    YD = 40
    def post(n):
        y = ACC + 4*n; k = KD + 4*n
        d = YD + (n >> 1)*4 + (n & 1)*2
        c = [f"v_cvt_pk_bf16_f32 v56, v{y}, v{y+1}", f"v_cvt_pk_bf16_f32 v57, v{y+2}, v{y+3}",
             f"v_lshlrev_b32 v{y}, 16, v56", f"v_and_b32 v{y+1}, s12, v56", f"v_lshlrev_b32 v{y+2}, 16, v57", f"v_and_b32 v{y+3}, s12, v57"]
        c += [f"v_add_f32 v{k+i}, v{k+i}, v{y+i}" for i in range(4)]
        c += [f"v_cvt_pk_bf16_f32 v{d}, v{k}, v{k+1}", f"v_cvt_pk_bf16_f32 v{d+1}, v{k+2}, v{k+3}"]
        if n & 1:
            d = YD + (n >> 1)*4
            c += [f"v_permlane16_swap_b32 v{d}, v{d+2}", f"v_permlane16_swap_b32 v{d+1}, v{d+3}"]
            if "yinl" in OPT: c += [f"YST{n >> 1}"]
        return c
    ystores = [f"buffer_store_dwordx4 {vr(YD+4*k,4)}, v22, s[84:87], 0 offen offset:{k*1024} sc1" for k in range(4)]
    LATEC = opt("latec", 170)
    CFM = opt("cfm", 80)
    FPM = opt("fpm", 2)
    nmf = 0
    postq = []
    for r in range(8):
        s = r & 1
        nxt = first_order(reads(r+1)) if r < 7 else []
        cnt = 0
        for q in range(8):
            for n in range(q, 8):
                c = vr(ACC+4*n, 4)
                ops.append(("mf", f"v_mfma_f32_16x16x32_bf16 {c}, {vr(AFR+s*32+4*q,4)}, {vr(BF+s*32+4*(n-q),4)}, {'0' if (r == 0 and q == 0) else c}",
                            [("A", r, q), ("B", r, n-q)]))
                nmf += 1; cnt += 1
                if nxt and cnt >= 2:
                    t, tag = nxt.pop(0); ops.append(("rd", t, tag))
                elif r < 7:
                    for z in range(FPM):
                        if fill: ops.append(("fill",) + fill.pop(0))
                if "pz" in OPT and opt("pz0", 90) <= nmf <= opt("pz1", 250) and (nmf - opt("pz0", 90)) % opt("pzs", 12) == 0:
                    ops.append(("pzr", nmf))
                if "pz" in OPT and opt("pz0", 90) <= nmf - 6 <= opt("pz1", 250) and (nmf - 6 - opt("pz0", 90)) % opt("pzs", 12) == 0:
                    ops.append(("pzc", nmf - 6))
                if nmf == LATEC: ops.append(("latec",))
                if nmf == CFM: ops.append(("cf",))
                if nmf == opt("cf2m", 240) and FBAR > 1: ops.append(("cf2",))
                if r == 7:
                    if n == q: postq += [(nmf + 3, t) for t in post(n)]
                    for z in range(opt("ppm", 3)):
                        if postq and postq[0][0] <= nmf and q < 7: ops.append(("fill", postq.pop(0)[1], None))
        assert not nxt
    assert not fill and CFM < LATEC
    for _, t in postq: ops.append(("fill", t, None))
    pzslow = []
    if "pz" in OPT:
        A("s_lshl_b32 s8, s3, 2")
        A(f"s_add_u32 s8, s8, {LFLAG:#x}")
        A("v_mov_b32 v62, s8")
    AB = int(OPT.get("ablc", 0))
    for op in ops:
        if AB & 1 and op[0] in ("rd", "mf", "fill"): continue
        if op[0] == "rd": L.issue(op[1], op[2])
        elif op[0] == "mf":
            for t in op[2]: pass
            k = max(op[2], key=lambda t: L.tags[t])
            L.wait(k)
            A(op[1])
        elif op[0] == "fill":
            if op[2] is not None: L.wait(op[2])
            if op[1].startswith("YST"): V.issue(ystores[int(op[1][3:])], "y2")
            else: A(op[1])
        elif op[0] == "pzr": L.issue("ds_read_b32 v63, v62 offset:24", ("Z", op[1]))
        elif op[0] == "pzc":
            L.wait(("Z", op[1]))
            A("v_readfirstlane_b32 s83, v63")
            A("s_cmp_lg_u32 s83, 0")
            A(f"s_cbranch_scc1 h_pz{op[1]}_s")
            A(f"h_pz{op[1]}:")
            pzslow.append(op[1])
        elif op[0] == "latec":
            while cdone[0] < NS2: cissue(cdone[0]); cdone[0] += 1
        elif op[0] == "cf2":
            V.wait(("C", 3))
            lds_inc(A, 60, 61, 20); L.n += 1
        elif op[0] == "cf":
            while cdone[0] < 2: cissue(cdone[0]); cdone[0] += 1
            V.wait(("C", 1))
            lds_inc(A, 60, 61, 16); L.n += 1
    ST()
    if "lowp" in OPT: A("s_setprio 0")
    YST = opt("yst", 0)
    if YST == 0 and "yinl" not in OPT:
        for t in ystores:
            if AB & 2: V.tags["y2"] = V.n
            else: V.issue(t, "y2")
    A("v_lshrrev_b32 v8, 4, v1")
    A("s_lshl_b32 s8, s3, 4")
    A("v_add_u32 v8, s8, v8")
    A("v_and_b32 v11, 15, v1")
    A("s_lshl_b32 s9, s5, 11")
    A(f"s_add_u32 s9, s9, {YF_OFF:#x}")
    A("v_lshl_add_u32 v10, v11, 7, s9")
    A("v_lshlrev_b32 v11, 4, v11")
    A("v_mul_u32_u24 v9, 272, v8")
    A("v_add_u32 v9, v9, v11")
    A("s_lshl_b32 s8, s5, 6")
    A("v_add_u32 v8, s8, v8")
    A("v_lshl_add_u32 v8, v8, 12, v11")
    A("s_lshl_b32 s8, s4, 8")
    A("v_add_u32 v8, s8, v8")
    ST()
    YR = 116
    YFL_LD = "buffer_load_dword v19, v10, s[92:95], 0 offen sc1"
    YFL, GYF, GYL, GYW = opt("yfl", 5), opt("gyf", 8), opt("gyl", 10), opt("gyw", 12)
    for st in range(FBAR, N2-1):
        V.wait(("C", st+1))
        if "fineh" in OPT: STH()
        A("s_barrier")
        if st == FBAR:
            for z in range(NS2, FBAR + NS2): cissue(z)
        elif st + NS2 - 1 < N2: cissue(st + NS2 - 1)
        if "abl" in OPT and st >= 2 and st < 13 and int(OPT["abl"]) & 1:
            continue_ = True
            for tg in ("y2", "xt", "yf", "eps"): V.tags.setdefault(tg, 0)
            continue
        if YST and st == YST:
            for t in ystores: V.issue(t, "y2")
        if st == YFL:
            V.wait("y2")
            A("s_mov_b64 exec, 1")
            A("ds_add_rtn_u32 v62, v60, v61 offset:4")
            A("s_mov_b64 exec, -1")
            A("s_waitcnt lgkmcnt(0)")
            A("v_readfirstlane_b32 s83, v62")
            A("s_cmp_lg_u32 s83, 3")
            A("s_cbranch_scc1 h_noy")
            A("buffer_store_dword v61, v31, s[92:95], 0 offen sc1")
            A("h_noy:")
        if st == GYF: V.issue(YFL_LD, "yf")
        if st == GYL:
            V.wait("yf")
            spin_all(A, "h_yf", 19, YFL_LD)
            for i in range(4):
                A(f"s_mov_b32 s8, {i*16384}")
                V.issue(f"buffer_load_dwordx4 {vr(YR+i*4,4)}, v8, s[68:71], s8 offen sc1", "eps")
        if st == GYW:
            V.wait("eps")
            for i in range(4): A(f"ds_write_b128 v9, {vr(YR+i*4,4)} offset:{i*4*272}")
            A("s_waitcnt lgkmcnt(0)")
    assert YST < YFL < GYF < GYL < GYW <= N2 - 3
    STH.flush()
    ST.flush()
    A("s_endpgm")
    for k in pzslow:
        A(f"h_pz{k}_s:")
        A(f"s_mov_b32 s89, {SPIN*4}")
        A(f"h_pz{k}_l:")
        A("s_sleep 1")
        A("ds_read_b32 v63, v62 offset:24")
        A("s_waitcnt lgkmcnt(0)")
        A("v_readfirstlane_b32 s83, v63")
        A("s_cmp_eq_u32 s83, 0")
        A(f"s_cbranch_scc1 h_pz{k}")
        A("s_sub_u32 s89, s89, 1")
        A(f"s_cbranch_scc1 h_pz{k}")
        A(f"s_branch h_pz{k}_l")

def build():
    s = header_comments()
    s += "; generated by tools/gen9.py (fused single kernel, split-K GEMM2; gen8 h layout)\n"
    s += "; @launch grid=(256,1,1) block=(512,1,1) lds=163840\n"
    s += '.amdgcn_target "amdgcn-amd-amdhsa--gfx950"\n.text\n'
    A = Asm()
    A.raw(f".globl {KN}\n.p2align 8\n.type {KN},@function")
    gen_kernel(A)
    s += A.render()
    s += descriptor(KN, 256, 102)
    import subprocess, tempfile, re
    with tempfile.TemporaryDirectory() as td:
        open(td + "/a.s", "w").write(s.replace("CODE_LAST", "0x12345"))
        subprocess.run(["clang", "-x", "assembler", "-target", "amdgcn-amd-amdhsa", "-mcpu=gfx950", "-c", td + "/a.s", "-o", td + "/a.o"], check=True)
        o = subprocess.run(["llvm-objdump", "-h", td + "/a.o"], capture_output=True, text=True).stdout
    size = int(re.search(r"\.text\s+([0-9a-f]+)", o).group(1), 16)
    if "al8" in OPT:
        pat = {"1": ("v_mfma_f32_32x32",), "2": ("v_mfma",), "3": ("v_mfma", "ds_read_b128", "ds_read_b64_tr", "buffer_load_dwordx4")}[str(OPT["al8"])]
        with tempfile.TemporaryDirectory() as td:
            open(td + "/a.s", "w").write(s.replace("CODE_LAST", "0x12345"))
            subprocess.run(["clang", "-x", "assembler", "-target", "amdgcn-amd-amdhsa", "-mcpu=gfx950", "-c", td + "/a.s", "-o", td + "/a.o"], check=True)
            d = subprocess.run(["llvm-objdump", "-d", td + "/a.o"], capture_output=True, text=True).stdout
        sizes = [4 * len(m.group(1).split()) for m in re.finditer(r"// [0-9A-F]+: ([0-9A-F ]+)$", d, re.M)]
        out = []; addr = 0; k = 0; incode = False; nins = 0
        for ln in s.split("\n"):
            st = ln.strip()
            if st == f"{KN}:": incode = True
            if st.startswith(".section"): incode = False
            if incode and ln.startswith("    ") and st and not st.startswith(";"):
                sz = sizes[k]; k += 1
                if sz == 8 and addr % 8 == 4 and st.startswith(pat):
                    out.append("    s_nop 0"); addr += 4; nins += 1
                addr += sz
            out.append(ln)
        assert k == len(sizes), (k, len(sizes))
        s = "\n".join(out); size = addr
        print("alignment nops", nins)
    if "shift" in OPT:
        s = s.replace(f"{KN}:\n", f"{KN}:\n" + "    s_nop 0\n" * int(OPT["shift"]), 1); size += 4 * int(OPT["shift"])
    print("code bytes", size)
    assert size <= 65536
    return s.replace("CODE_LAST", hex(size - 4))

if __name__ == "__main__":
    out = sys.argv[1] if len(sys.argv) > 1 and not sys.argv[1].startswith("--") else os.path.join(os.path.dirname(os.path.abspath(__file__)), "..", NAME + ".s")
    open(out, "w").write(build())
    print("wrote", out)
```

```python
import sys, os
sys.path.insert(0, os.path.dirname(os.path.abspath(__file__)))
from asmlib import Asm
from gen import (NAME, P, sp, vr, sr, load_kernargs, srd, pk, cmul, tile_ids, Stamper, OPT, header_comments, descriptor)
import gen

KN = NAME + "_kernel"
WS_H    = 0
WS_KVT  = 8 << 20
WS_G    = 16 << 20
WS_EBOX = 17 << 20
WS_FLG  = 18 << 20
HF_OFF  = 0
KF_OFF  = 128 << 10
YF_OFF  = 160 << 10
PF_OFF  = 192 << 10
FLG_SZ  = 320 << 10
WS_PART = 24 << 20
N1 = 16
N2 = 16
NS2 = 4
PD = 4
CRING = 32768
KREG = 98304
UREG = KREG + 4*8320
LFLAG = UREG + 4*4608
SPIN = int(OPT.get("spin", 1 << 16))
SLEEP = int(OPT.get("sleep", 4))
def opt(k, d): return int(OPT.get(k, d))

class VQ:
    def __init__(self, A): self.A = A; self.n = 0; self.tags = {}; self.done = 0
    def issue(self, text, tag=None):
        self.A(text); self.n += 1
        if tag is not None: self.tags[tag] = self.n
    def wait(self, tag):
        k = self.tags[tag]
        if k <= self.done: return
        cnt = min(63, self.n - k)
        self.A(f"s_waitcnt vmcnt({cnt})"); self.done = self.n - cnt
    def drained(self): self.done = self.n

class LQ:
    def __init__(self, A): self.A = A; self.n = 0; self.tags = {}; self.done = 0
    def issue(self, text, tag=None):
        self.A(text); self.n += 1
        if tag is not None: self.tags[tag] = self.n
    def wait(self, tag):
        k = self.tags[tag]
        if k > self.done:
            self.A(f"s_waitcnt lgkmcnt({min(15, self.n - k)})"); self.done = max(k, self.n - 15)
    def drain(self):
        self.A("s_waitcnt lgkmcnt(0)"); self.done = self.n

def spin_all(A, name, vreg, reload, cmpval="1", sctr=89, pre=None):
    A(f"s_mov_b32 s{sctr}, {SPIN}")
    A(f"{name}_chk:")
    if pre: A(pre)
    A(f"v_cmp_ne_u32 vcc, {cmpval}, v{vreg}")
    A("s_cmp_eq_u64 vcc, 0")
    A(f"s_cbranch_scc1 {name}_ok")
    A(f"s_sub_u32 s{sctr}, s{sctr}, 1")
    A(f"s_cbranch_scc1 {name}_ok")
    A(f"s_sleep {SLEEP}")
    A(reload)
    A("s_waitcnt vmcnt(0)")
    A(f"s_branch {name}_chk")
    A(f"{name}_ok:")

def lds_spin(A, name, vaddr, off, vtmp, target, stmp=8, sctr=89):
    A(f"s_mov_b32 s{sctr}, {SPIN*4}")
    A(f"{name}:")
    A(f"ds_read_b32 v{vtmp}, v{vaddr} offset:{off}")
    A("s_waitcnt lgkmcnt(0)")
    A(f"v_readfirstlane_b32 s{stmp}, v{vtmp}")
    A(f"s_cmp_ge_u32 s{stmp}, {target}")
    A(f"s_cbranch_scc1 {name}_ok")
    A(f"s_sub_u32 s{sctr}, s{sctr}, 1")
    A(f"s_cbranch_scc0 {name}")
    A(f"{name}_ok:")

def lds_inc(A, vaddr, vone, off):
    A("s_mov_b64 exec, 1")
    A(f"ds_add_u32 v{vaddr}, v{vone} offset:{off}")
    A("s_mov_b64 exec, -1")

def zip_chains(A, chains):
    chains = [[x for t in c for x in t.split("\n")] for c in chains]
    for i in range(max(len(c) for c in chains)):
        for c in chains:
            if i < len(c): A(c[i])

def local_check(A, vbits, vtmp, sdst_pair, stmp):
    A(f"s_getreg_b32 s{stmp}, hwreg(HW_REG_XCC_ID, 0, 4)")
    A(f"s_lshl_b32 s{stmp}, 0x100, s{stmp}")
    A(f"s_or_b32 s{stmp}, s{stmp}, 15")
    A(f"v_and_b32 v{vtmp}, 7, v1")
    A(f"v_cmp_eq_u32 s[{sdst_pair}:{sdst_pair+1}], s54, v{vtmp}")
    A(f"v_cmp_ne_u32 vcc, s{stmp}, v{vbits}")
    A(f"s_and_b64 vcc, vcc, s[{sdst_pair}:{sdst_pair+1}]")

SNT = opt("snt", 1)
PB = opt("pb", 1)
NPQ = 4 if PB else 8
FBAR = opt("fb", 2)
OS = str(OPT.get("os", "_nt")).replace("_", " ")
ORD = opt("ord", 1)
def tile_of(A, i, dst):
    if i == 0: A(f"s_mov_b32 s{dst}, s15")
    elif ORD:
        A(f"s_cmp_le_u32 s15, {i-1}")
        A(f"s_cselect_b32 s{dst}, {i}, {i-1}")
    else:
        A(f"s_add_u32 s{dst}, s15, {i}")
        A(f"s_and_b32 s{dst}, s{dst}, 7")

def gen_kernel(A):
    A(f"{KN}:")
    A("s_cmp_ge_u32 s2, 256")
    A("s_cbranch_scc1 L_end")
    load_kernargs(A)
    tile_ids(A)
    A("v_and_b32 v1, 63, v0")
    A("v_lshrrev_b32 v2, 6, v0")
    A("s_and_b32 s15, s5, 7")
    A("v_readfirstlane_b32 s3, v2")
    A("s_cmp_ge_u32 s3, 4")
    A("s_cbranch_scc0 L_consumer")
    helper(A)
    A("L_consumer:")
    consumer(A)
    A("L_end:")
    A("s_endpgm")


def consumer(A):
    ACC = 64
    FA, FB = 128, 144
    AD, BD = 160, 168
    LAM, C2, MU, MU2, MU4, MU8 = 176, 178, 180, 182, 184, 186
    EL = 192
    UR2 = 224
    ST = Stamper(A, 0, 63)
    ST()
    A(f"s_setprio {opt('prio', 2)}")
    A("s_and_b32 s6, s3, 1")
    A("s_lshr_b32 s7, s3, 1")
    A("v_and_b32 v4, 31, v1")
    A("s_lshl_b32 s8, s5, 6")
    A("s_lshl_b32 s9, s7, 5")
    A("s_add_u32 s8, s8, s9")
    A("v_add_u32 v3, s8, v4")
    A("v_lshlrev_b32 v5, 1, v3")
    A("v_lshrrev_b32 v6, 5, v1")
    A("s_lshl_b32 s10, s4, 1")
    A("s_add_u32 s10, s10, s6")
    if "nocode" not in OPT:
        A("s_getpc_b64 s[12:13]")
        A("c_pc:")
        A(f"s_sub_u32 s12, s12, c_pc-{KN}")
        A("s_subb_u32 s13, s13, 0")
        if opt("cpf", 1) == 0:
            A("s_lshl_b32 s11, s3, 14")
            A("v_lshl_add_u32 v24, v1, 7, s11")
            A("v_min_u32 v24, CODE_LAST, v24")
            A("global_load_dword v25, v24, s[12:13]")
            A("v_add_u32 v24, 0x2000, v24")
            A("v_min_u32 v24, CODE_LAST, v24")
            A("global_load_dword v26, v24, s[12:13]")
        else:
            A("s_lshl_b32 s11, s55, 2")
            A("s_add_u32 s11, s11, s3")
            A("s_lshl_b32 s11, s11, 9")
            A("v_and_b32 v24, 3, v1")
            A("v_lshl_add_u32 v24, v24, 7, s11")
            A("v_min_u32 v24, CODE_LAST, v24")
            A("global_load_dword v25, v24, s[12:13]")
    A("s_waitcnt lgkmcnt(0)")
    A(f"global_load_ushort v8, v5, {sp('Lre')}")
    A(f"global_load_ushort v9, v5, {sp('Lim')}")
    A(f"global_load_ushort v10, v5, {sp('logdt')}")
    srd(A, 56, "ws", 256 << 10, WS_EBOX)
    srd(A, 60, "ws", 8 << 20, WS_H)
    srd(A, 64, "dbg", 256)
    srd(A, 68, "ws", FLG_SZ, WS_FLG)
    A("s_lshl_b32 s11, s10, 13")
    A("v_lshl_add_u32 v7, v3, 3, s11")
    A("v_mov_b32 v12, 0")
    A("v_mov_b32 v13, 0")
    A("buffer_store_dwordx2 v[12:13], v7, s[56:59], 0 offen sc1")
    A("s_lshl_b32 s11, s10, 4")
    A("s_add_u32 s11, s11, s5")
    A("s_lshl_b32 s11, s11, 1")
    A("s_add_u32 s11, s11, s7")
    A("s_lshl_b32 s11, s11, 7")
    A("v_mov_b32 v60, s11")
    A("buffer_store_dword v12, v60, s[68:71], 0 offen sc1")
    A("s_lshl_b32 s72, s4, 4")
    A("s_add_u32 s72, s72, s5")
    A("s_lshl_b32 s72, s72, 2")
    A("s_add_u32 s72, s72, s3")
    A("s_lshl_b32 s72, s72, 7")
    A(f"s_add_u32 s11, s72, {PF_OFF:#x}")
    A("v_mov_b32 v30, s11")
    A("buffer_store_dword v12, v30, s[68:71], 0 offen sc1")
    A("v_mov_b32 v23, 1")
    A("v_bfe_u32 v11, v1, 1, 3")
    A("v_xor_b32 v11, v11, v6")
    A("s_lshl_b32 s11, s6, 13")
    A("v_lshl_add_u32 v14, v4, 7, s11")
    A("s_lshl_b32 s11, s7, 12")
    A("s_add_u32 s11, s11, 16384")
    A("v_lshl_add_u32 v15, v4, 7, s11")
    for ks in range(4):
        A(f"v_xor_b32 v16, {2*ks}, v11")
        A(f"v_lshl_add_u32 v{AD+ks}, v16, 4, v14")
        A(f"v_lshl_add_u32 v{BD+ks}, v16, 4, v15")
        A(f"v_add_u32 v{AD+4+ks}, 0x10000, v{AD+ks}")
        A(f"v_add_u32 v{BD+4+ks}, 0x10000, v{BD+ks}")
    A("v_lshlrev_b32 v21, 2, v1")
    A("s_waitcnt vmcnt(0)")
    A("v_lshlrev_b32 v8, 16, v8")
    A("v_lshlrev_b32 v9, 16, v9")
    A("v_lshlrev_b32 v10, 16, v10")
    A("s_mov_b32 s12, 0x3fb8aa3b")
    A("v_mul_f32 v10, s12, v10")
    A("v_exp_f32 v10, v10")
    A("v_cvt_pk_bf16_f32 v10, v10, v10")
    A("v_lshlrev_b32 v10, 16, v10")
    A("v_mul_f32 v16, v10, v8")
    A("v_mul_f32 v17, v10, v9")
    A("v_mul_f32 v16, s12, v16")
    A("v_exp_f32 v16, v16")
    A("v_mul_f32 v17, 0.15915494, v17")
    A("v_rndne_f32 v18, v17")
    A("v_sub_f32 v17, v17, v18")
    A("v_cos_f32 v18, v17")
    A("v_sin_f32 v19, v17")
    A(f"v_mul_f32 v{LAM}, v16, v18")
    A(f"v_mul_f32 v{LAM+1}, v16, v19")
    A(f"v_add_f32 v16, -1.0, v{LAM}")
    A("v_mul_f32 v17, v8, v8")
    A("v_fma_f32 v17, v9, v9, v17")
    A("v_rcp_f32 v17, v17")
    A("v_mul_f32 v18, v16, v8")
    A(f"v_fma_f32 v18, v{LAM+1}, v9, v18")
    A(f"v_mul_f32 v19, v{LAM+1}, v8")
    A("v_fma_f32 v19, -v16, v9, v19")
    A("v_add_f32 v17, v17, v17")
    A(f"v_mul_f32 v{C2}, v18, v17")
    A(f"v_mul_f32 v{C2+1}, v19, v17")
    cmul(A, 16, LAM, LAM); cmul(A, 18, 16, 16); cmul(A, 16, 18, 18)
    cmul(A, MU, 16, 16); cmul(A, MU2, MU, MU); cmul(A, MU4, MU2, MU2); cmul(A, MU8, MU4, MU4)
    cmul(A, 48, C2, MU2)
    A("v_cmp_lt_u32 vcc, 31, v1")
    A(f"v_cndmask_b32 v48, v{C2}, v48, vcc")
    A(f"v_cndmask_b32 v49, v{C2+1}, v49, vcc")
    A("v_lshlrev_b32 v50, 13, v6")
    A("v_sub_u32 v50, v7, v50")
    A("s_add_u32 s11, s10, 1")
    A("v_sub_u32 v51, s11, v6")
    A("v_lshrrev_b32 v51, 1, v51")
    A("s_lshl_b32 s11, s4, 2")
    A("s_add_u32 s11, s11, s3")
    A("s_lshl_b32 s11, s11, 5")
    A("v_lshrrev_b32 v52, 3, v1")
    A("v_add_u32 v52, s11, v52")
    A("v_lshlrev_b32 v52, 11, v52")
    A("v_and_b32 v16, 7, v1")
    A("v_lshl_add_u32 v52, v16, 4, v52")
    A("s_lshl_b32 s11, s5, 7")
    A("v_add_u32 v52, s11, v52")
    A("s_lshl_b32 s11, s3, 13")
    A("v_lshlrev_b32 v53, 11, v6")
    A("v_lshl_add_u32 v53, v4, 1, v53")
    A("v_add_u32 v53, s11, v53")
    A("s_lshl_b32 s11, s5, 6")
    A("v_add_u32 v54, s11, v4")
    A("v_lshlrev_b32 v54, 1, v54")
    srd(A, 76, "x", 4 << 20)
    srd(A, 92, "ws", 8 << 20, WS_PART)
    A("s_xor_b32 s73, s72, 4096")
    A("s_lshl_b32 s74, s73, 6")
    A("s_add_u32 s75, s74, 4096")
    A("v_lshlrev_b32 v59, 4, v1")

    def rd(stage, ks, buf, which):
        slot = stage % 3
        hi = 4 if slot >= 2 else 0
        so = (slot & 1) * 32768
        if which < 2:
            return f"ds_read_b128 {vr(FA+buf*8+which*4,4)}, v{AD+hi+ks} offset:{so + which*4096}"
        ri = which - 2
        return f"ds_read_b128 {vr(FB+buf*8+ri*4,4)}, v{BD+hi+ks} offset:{so + ri*8192}"
    def mf(buf, mt, ri, first):
        acc = ACC + ri*32 + mt*16
        return f"v_mfma_f32_32x32x16_bf16 {vr(acc,16)}, {vr(FA+buf*8+mt*4,4)}, {vr(FB+buf*8+ri*4,4)}, {'0' if first else vr(acc,16)}"
    RD_ORDER = [0, 2, 1, 3]
    MF_ORDER = [(0,0), (1,0), (1,1), (0,1)]
    ST()
    A("s_barrier")
    ST()
    A("s_cmp_lg_u32 s3, 0")
    A("s_cbranch_scc1 c_noflag")
    A("s_lshr_b32 s11, s2, 6")
    A("s_lshl_b32 s11, 1, s11")
    A("s_getreg_b32 s12, hwreg(HW_REG_XCC_ID, 0, 4)")
    A("s_lshl_b32 s12, 0x100, s12")
    A("s_or_b32 s11, s11, s12")
    A("v_mov_b32 v16, s11")
    A("s_and_b32 s11, s2, 63")
    A("s_lshl_b32 s11, s11, 2")
    A("v_mov_b32 v17, s11")
    A("s_mov_b64 exec, 1")
    A("buffer_atomic_or v16, v17, s[64:67], 0 offen sc1")
    A("s_mov_b64 exec, -1")
    A("c_noflag:")
    for w in RD_ORDER: A(rd(0, 0, 0, w))
    for s in range(N1):
        for ks in range(4):
            buf = ks & 1
            last = (s == N1-1 and ks == 3)
            if ks == 3:
                A("s_waitcnt lgkmcnt(0)")
                A("s_barrier")
            ns, nks = (s, ks+1) if ks < 3 else (s+1, 0)
            for i in range(4):
                if ks < 3 and i < 3: A("s_waitcnt lgkmcnt(2)")
                A(mf(buf, *MF_ORDER[i], s == 0 and ks == 0))
                if not last: A(rd(ns, nks, buf ^ 1, RD_ORDER[i]))
            if (s in (3, 7, 11) if "fine1" not in OPT else s >= 3) and ks == 3: ST()
            if s == 12 and ks == 0:
                A("buffer_load_dword v20, v21, s[64:67], 0 offen sc1")
    ST()
    if "fine1" in OPT: ST.n = 40
    gen.SAFE_PK[0] = bool(opt("pk", 0) & 1)
    def UR(t): return ACC + (t >> 3)*16 + 2*(t & 7)
    def UI(t): return ACC + 32 + (t >> 3)*16 + 2*(t & 7)
    E = [(24, 26), (28, 30 - 30 + 44)]
    cr, ci = UR(0), UI(0)
    for t in range(1, 16):
        nr, ni = E[t & 1]
        A(pk("fma", nr, cr, LAM, UR(t), bsel=0))
        A(pk("fma", ni, ci, LAM, UI(t), bsel=0))
        A(pk("fma", nr, ci, LAM, nr, bsel=1, neg_b=True))
        A(pk("fma", ni, cr, LAM, ni, bsel=1))
        cr, ci = nr, ni
    A("v_mov_b32 v32, v28\nv_mov_b32 v33, v44\nv_mov_b32 v34, v29\nv_mov_b32 v35, v45")
    cmul(A, 36, MU, 32, add=34)
    A("v_mov_b32 v38, v36\nv_mov_b32 v39, v37\nv_mov_b32 v40, 0\nv_mov_b32 v41, 0")
    A("v_permlane32_swap_b32 v40, v38")
    A("v_permlane32_swap_b32 v41, v39")
    cmul(A, 42, MU2, 40, add=36)
    A("v_or_b32 v42, 1, v42")
    A("s_mov_b32 s12, 0")
    A("s_mov_b32 s13, -1")
    A("s_mov_b64 exec, s[12:13]")
    A("buffer_store_dwordx2 v[42:43], v7, s[56:59], 0 offen sc1")
    A("s_mov_b64 exec, -1")
    def scaling():
        for t in range(16):
            n = UR2 + 2*t
            A(pk("mul", n, UR(t), C2, bsel=0))
            A(pk("fma", n, UI(t), C2, n, bsel=1, neg_b=True))
            A(pk("mul", UI(t), UI(t), C2, bsel=0))
            A(pk("fma", UI(t), UR(t), C2, UI(t), bsel=1))
        cmul(A, 44, C2, 40)
        cmul(A, 46, C2, 32)
    if "lowp" in OPT: A("s_setprio 0")
    ST()
    A("s_lshl_b32 s9, s3, 13")
    for i in range(4):
        A(f"s_add_u32 m0, s9, {i*1024}")
        A(f"s_mov_b32 s8, {i*16384}")
        A("buffer_load_dwordx4 v52, s[76:79], s8 offen lds")
    for q in range(2):
        A(f"global_load_ushort v{9+q}, v54, {sp('Dskip')} offset:{q*64}")
    if SNT:
        for i in range(4): A(f"v_mov_b32 v{24+i}, -1")
        for i in range(NPQ): A(f"buffer_store_dwordx4 v[24:27], v59, s[92:95], s{74 if i < 4 else 75} offen offset:{(i & 3)*1024} sc1")
    if "pollfirst" not in OPT: scaling()
    for k in range(16):
        A(f"v_subrev_u32 v{128+k}, {(1+2*k)*8192:#x}, v50")
    ST()
    A(f"s_waitcnt vmcnt({7 + NPQ if SNT else 7})")
    spin_all(A, "c_init", 52, "buffer_load_dword v20, v21, s[64:67], 0 offen sc1", "15", pre="v_and_b32 v52, 15, v20")
    local_check(A, 20, 52, 12, 11)
    A("s_cselect_b32 s14, 0, 1")
    if "nolocal" in OPT: A("s_mov_b32 s14, 0")
    for k in range(16):
        A(f"buffer_load_dwordx2 {vr(EL+2*k,2)}, v{128+k}, s[56:59], 0 offen sc1")
    if "pollfirst" in OPT: scaling()
    XP = list(range(73, 89))
    XDP = [89, 90, 91, 92, 93, 94, 95, 54, 55, 56, 57, 58, 59, 61, 5, 12]
    A(f"s_waitcnt vmcnt({16 + NPQ if SNT else 16})")
    XT = [160 + i for i in range(16)] + [73 + i for i in range(16)]
    for nt in range(2):
        for r in range(16): A(f"ds_read_u16 v{XT[nt*16+r]}, v53 offset:{r*128+nt*64}")
    A("s_waitcnt lgkmcnt(0)")
    for m in range(8): A(f"v_lshl_or_b32 v{XP[8+m]}, v{XT[16+2*m+1]}, 16, v{XT[16+2*m]}" if False else f"v_lshl_or_b32 v{64+m}, v{XT[16+2*m+1]}, 16, v{XT[16+2*m]}")
    for m in range(8): A(f"v_lshl_or_b32 v{XP[m]}, v{XT[2*m+1]}, 16, v{XT[2*m]}")
    for m in range(8): A(f"v_mov_b32 v{XP[8+m]}, v{64+m}")
    BD2 = 32
    A("s_lshl_b32 s11, s3, 13")
    A("v_lshl_add_u32 v16, v6, 11, s11")
    A("v_lshl_add_u32 v16, v4, 6, v16")
    A("v_bfe_u32 v17, v1, 1, 2")
    for q in range(4):
        A(f"v_xor_b32 v18, {q}, v17")
        A(f"v_lshl_add_u32 v{64+q}, v18, 4, v16")
    A("v_mov_b32 v31, 1")
    A("v_bfe_u32 v16, v1, 2, 2")
    A("v_lshl_add_u32 v16, v6, 3, v16")
    A("v_and_b32 v24, 1, v1")
    A("v_bfe_u32 v18, v1, 4, 1")
    A("v_lshl_add_u32 v24, v24, 1, v18")
    A("v_bfe_u32 v18, v16, 1, 2")
    A("v_xor_b32 v24, v24, v18")
    A("v_lshlrev_b32 v24, 4, v24")
    A("v_lshl_add_u32 v24, v16, 6, v24")
    A("v_bfe_u32 v18, v1, 1, 1")
    A("v_lshl_add_u32 v24, v18, 3, v24")
    A("v_xor_b32 v25, 32, v24")
    A("v_add_u32 v25, 256, v25")
    A("v_add_u32 v68, s11, v24")
    A("v_add_u32 v69, s11, v25")
    A("s_lshl_b32 s11, s4, 7")
    A("s_lshl_b32 s12, s6, 6")
    A("s_add_u32 s11, s11, s12")
    A("s_and_b32 s12, s5, 7")
    A("s_lshl_b32 s12, s12, 2")
    A("s_add_u32 s11, s11, s12")
    A("s_add_u32 s11, s11, s7")
    A("s_lshl_b32 s11, s11, 12")
    A("s_lshr_b32 s13, s5, 3")
    A("s_lshl_b32 s13, s13, 11")
    A("s_add_u32 s11, s11, s13")
    A("v_lshl_add_u32 v72, v1, 4, s11")
    A(f"v_mov_b32 v20, {LFLAG:#x}")
    A("s_lshl_b32 s6, s4, 2")
    A("s_add_u32 s6, s6, s3")
    A("s_lshr_b32 s7, s3, 1")
    A("s_lshl_b32 s7, s7, 13")
    A("s_and_b32 s8, s3, 1")
    A("s_lshl_b32 s8, s8, 11")
    A("s_add_u32 s7, s7, s8")
    A("v_add_u32 v70, s7, v24")
    A("v_add_u32 v71, s7, v25")
    A("s_lshl_b32 s7, s6, 17")
    A("s_add_u32 s7, s7, s13")
    A("v_lshl_add_u32 v3, v1, 4, s7")
    A("v_add_u32 v2, 0x1000, v3")
    A(f"v_lshlrev_b32 v14, 7, v4")
    A(f"v_add_u32 v14, {CRING:#x}, v14")
    for ks in range(4):
        A(f"v_xor_b32 v16, {2*ks}, v11")
        A(f"v_lshl_add_u32 v{BD2+ks}, v16, 4, v14")
    A("s_lshr_b32 s7, s6, 1")
    A("s_lshl_b32 s7, s7, 12")
    A("s_add_u32 s7, s7, s13")
    A("v_bfe_u32 v16, v1, 1, 3")
    if ORD:
        A("v_subrev_u32 v14, 1, v16")
        A("v_cmp_le_u32 vcc, s15, v14")
        A("v_cndmask_b32 v14, v14, v16, vcc")
        A("v_mov_b32 v19, s15")
        A("v_cmp_eq_u32 vcc, 0, v16")
        A("v_cndmask_b32 v16, v14, v19, vcc")
    else:
        A("v_add_u32 v16, s15, v16")
        A("v_and_b32 v16, 7, v16")
    A("v_and_b32 v14, 1, v1")
    A("v_lshl_add_u32 v16, v16, 1, v14")
    A("v_lshl_add_u32 v22, v16, 7, s7")
    srd(A, 64, "ws", 8192, WS_G)
    srd(A, 76, "out", 8 << 20)
    for i in range(8):
        A(f"s_mov_b32 s{80+i}, {i*4096}")
    A("s_lshl_b32 s7, s6, 5")
    A("v_lshl_add_u32 v7, v6, 4, s7")
    A("s_lshl_b32 s8, s5, 6")
    A("v_add_u32 v8, s8, v4")
    A("v_lshlrev_b32 v26, 12, v7")
    A("v_lshl_add_u32 v26, v8, 2, v26")
    A("v_add_u32 v27, 0x8000, v26")
    A("v_lshlrev_b32 v7, 2, v7")
    A("v_mul_u32_u24 v21, 272, v4")
    A("v_lshl_add_u32 v21, v6, 5, v21")
    A("s_lshl_b32 s8, s3, 6")
    A("v_add_u32 v21, s8, v21")
    A(f"s_add_u32 s8, s73, {PF_OFF:#x}")
    A("v_mov_b32 v29, s8")
    A("v_lshlrev_b32 v28, 4, v1")
    A("v_mov_b32 v23, 1")
    A(f"s_mov_b32 s88, {SPIN}")
    A("c_poll:")
    A("s_waitcnt vmcnt(0)")
    A("v_mov_b32 v52, 0")
    for k in range(16):
        A(f"v_and_b32 v{144+k}, 1, v{EL+2*k}")
    for k in range(0, 16, 2):
        A(f"v_add3_u32 v52, v52, v{144+k}, v{145+k}")
    A("v_cmp_ne_u32 vcc, v52, v51")
    A("s_cmp_eq_u64 vcc, 0")
    A("s_cbranch_scc1 c_polled")
    A("s_sub_u32 s88, s88, 1")
    A("s_cbranch_scc1 c_polled")
    A(f"s_sleep {opt('psleep', SLEEP)}")
    for k in range(16):
        A(f"v_cmp_eq_u32 vcc, 0, v{144+k}")
        A("s_mov_b64 exec, vcc")
        A(f"buffer_load_dwordx2 {vr(EL+2*k,2)}, v{128+k}, s[56:59], 0 offen sc1")
        A("s_mov_b64 exec, -1")
    A("s_branch c_poll")
    A("c_polled:")
    if "pz" in OPT:
        A("s_lshl_b32 s8, s3, 2")
        A(f"s_add_u32 s8, s8, {LFLAG + 24:#x}")
        A("v_mov_b32 v16, s8")
        A("s_mov_b64 exec, 1")
        A("ds_write_b32 v16, v31")
        A("s_mov_b64 exec, -1")
    if "lowp" in OPT: A(f"s_setprio {opt('prio', 2)}")
    ST()
    g = EL + 30
    G = [52, 54]
    for k in range(14, -1, -1):
        n = G[k & 1]
        A(pk("fma", n, g, MU8, EL+2*k, bsel=0))
        A(pk("fma", n, g, MU8, n, bsel=1, asel="swap", neg_lo=[1,0,0]))
        g = n
    A("v_mov_b32 v54, v52\nv_mov_b32 v55, v53\nv_mov_b32 v56, v52\nv_mov_b32 v57, v53")
    A("v_permlane32_swap_b32 v54, v56")
    A("v_permlane32_swap_b32 v55, v57")
    cmul(A, 58, MU4, 56, add=54)
    cmul(A, 52, 48, 58, add=44)
    cmul(A, 54, MU, 52, add=46)
    A("v_mov_b32 v56, v52\nv_mov_b32 v57, v54\nv_mov_b32 v58, v53\nv_mov_b32 v59, v55")
    cr, ci = 56, 58
    def packhalf(hf):
        for plane in range(2):
            for e in range(2):
                d = 128 + ((plane*2 + e)*2 + hf)*4
                for m in range(4):
                    t = hf*8 + 2*m
                    if plane == 0: A(f"v_cvt_pk_bf16_f32 v{d+m}, v{UR2+2*t+e}, v{UR2+2*(t+1)+e}")
                    else: A(f"v_cvt_pk_bf16_f32 v{d+m}, -v{UI(t)+e}, -v{UI(t+1)+e}")
                A(f"ds_write_b128 v{64+2*e+hf}, {vr(d,4)} offset:{plane*4096}")
    for t in range(16):
        nr, ni = UR2 + 2*t, UI(t)
        if "ablb" in OPT:
            if t == 7: packhalf(0)
            continue
        A(pk("fma", nr, cr, LAM, nr, bsel=0))
        A(pk("fma", ni, ci, LAM, ni, bsel=0))
        A(pk("fma", nr, ci, LAM, nr, bsel=1, neg_b=True))
        A(pk("fma", ni, cr, LAM, ni, bsel=1))
        cr, ci = nr, ni
        if t == 7: packhalf(0)
    packhalf(1)
    if "pz" in OPT:
        A("v_mov_b32 v17, 0")
        A("s_mov_b64 exec, 1")
        A("ds_write_b32 v16, v17")
        A("s_mov_b64 exec, -1")
    gen.SAFE_PK[0] = False
    EARLY = opt("early", 0)
    HFL = "buffer_load_dword v19, v22, s[68:71], 0 offen sc1"
    if EARLY: A(HFL)
    ST()
    A("s_waitcnt lgkmcnt(0)")
    lds_inc(A, 20, 31, 12)
    AF = 160
    idx = 0
    for tblk in range(2):
        for plane in range(2):
            for ksl in range(2):
                d = AF + idx*4
                o = plane*4096 + tblk*2048 + ksl*1024
                A(f"ds_read_b64_tr_b16 {vr(d,2)}, v68 offset:{o}")
                A(f"ds_read_b64_tr_b16 {vr(d+2,2)}, v69 offset:{o}")
                idx += 1
    V = VQ(A)
    idx = 0
    for tblk in range(2):
        for plane in range(2):
            A(f"s_mov_b32 s12, {tblk*131072 + plane*8192:#x}")
            for ksl in range(2):
                d = AF + idx*4
                A(f"s_waitcnt lgkmcnt({min(15, 14 - 2*idx)})")
                V.issue(f"buffer_store_dwordx4 {vr(d,4)}, v72, s[60:63], s12 offen offset:{ksl*1024} sc1", "hst")
                idx += 1
    ACC2 = 96
    FB2 = 224
    GR = 36
    ST2 = Stamper(A, 1, 62)
    A(f"s_mov_b32 s89, {SPIN*4}")
    A("c_lw:")
    A("ds_read_b128 v[52:55], v20 offset:4")
    A("s_waitcnt lgkmcnt(0)")
    A("v_min_u32 v54, v54, v55")
    A("v_min_u32 v53, 1, v53")
    A("v_readfirstlane_b32 s8, v54")
    A("v_readfirstlane_b32 s9, v53")
    A("s_add_u32 s8, s8, s9")
    A("s_cmp_ge_u32 s8, 5")
    A("s_cbranch_scc1 c_lwok")
    A("s_sub_u32 s89, s89, 1")
    A("s_cbranch_scc0 c_lw")
    A("c_lwok:")
    L = LQ(A)
    for st in range(2):
        for ks in range(4):
            d = AF + (st*4 + ks)*4
            o = (ks >> 1)*16384 + st*4096 + (ks & 1)*1024
            L.issue(f"ds_read_b64_tr_b16 {vr(d,2)}, v70 offset:{o}")
            L.issue(f"ds_read_b64_tr_b16 {vr(d+2,2)}, v71 offset:{o}", ("A", st, ks))
    A("s_mov_b32 s13, 0")
    if EARLY:
        A("s_waitcnt vmcnt(8)")
        A("v_cmp_eq_u32 s[90:91], 1, v19")
        A("s_and_b32 s88, s90, 0xc")
        A("s_cmp_eq_u32 s88, 0xc")
        A("s_cbranch_scc0 c_noearly")
        A("s_mov_b32 s13, 1")
        for z in (2, 3):
            tile_of(A, z >> 1, 11)
            A("s_lshl_b32 s11, s11, 14")
            if z & 1: A("s_add_u32 s11, s11, 8192")
            for k2 in range(4):
                A(f"buffer_load_dwordx4 {vr(AF + (z*4 + k2)*4,4)}, v{3 if k2 < 2 else 2}, s[60:63], s11 offen offset:{(k2 & 1)*1024} sc1")
        A("c_noearly:")
    for q in range(4):
        V.issue(f"buffer_load_dwordx4 {vr(GR+q*4,4)}, v7, s[64:67], 0 offen offset:{q*16} sc1", "g")
    ST()
    slowp = []
    def need(i):
        m = ((1 << (2*i + 2)) - 1) & ~3
        name = f"c_n{len(slowp)}"
        A(f"s_and_b32 s88, s90, {m:#x}")
        A(f"s_cmp_eq_u32 s88, {m:#x}")
        A(f"s_cbranch_scc0 {name}_s")
        A(f"{name}:")
        slowp.append((name, m))
    alast = [None]
    def aload(st, ks):
        if alast[0] != st:
            alast[0] = st
            tile_of(A, st >> 1, 11)
            A("s_lshl_b32 s11, s11, 14")
            if st & 1: A("s_add_u32 s11, s11, 8192")
        r = AF + ((st % PD)*4 + ks)*4
        V.issue(f"buffer_load_dwordx4 {vr(r,4)}, v{3 if ks < 2 else 2}, s[60:63], s11 offen offset:{(ks & 1)*1024} sc1", ("A", st, ks))
    def rd2(st, ks, nt, slot):
        return f"ds_read_b128 {vr(FB2+slot*4,4)}, v{BD2+ks} offset:{(st % NS2)*16384 + nt*4096}"
    def mf2(st, ks, nt, slot):
        a = AF + ((st % PD)*4 + ks)*4
        c = vr(ACC2+nt*16, 16)
        return f"v_mfma_f32_32x32x16_bf16 {c}, {vr(a,4)}, {vr(FB2+slot*4,4)}, {'0' if (st == 0 and ks == 0) else c}"
    def await_(st, ks):
        if st < 2: L.wait(("A", st, ks))
        else: V.wait(("A", st, ks))
    ST2()
    for nt in range(4): L.issue(rd2(0, 0, nt, nt), (0, 0, nt))
    HFK = opt("hfk", 3)
    N1K = opt("n1k", 2)
    XPS = opt("xps", 1)
    xfill = []
    def xpart(A=A):
        A("v_lshlrev_b32 v9, 16, v9")
        A("v_lshlrev_b32 v10, 16, v10")
        A("s_mov_b32 s12, 0xffff0000")
        TT = [13, 15, 16, 17, 18, 24, 25, 8]
        for k0 in range(0, 16, 4):
            ch = []
            for k in range(k0, k0 + 4):
                t0, t1 = TT[2*(k & 3)], TT[2*(k & 3) + 1]
                dk = 9 + (k >> 3)
                ch.append([f"v_lshlrev_b32 v{t0}, 16, v{XP[k]}", f"v_and_b32 v{t1}, s12, v{XP[k]}", f"v_mul_f32 v{t0}, v{t0}, v{dk}", f"v_mul_f32 v{t1}, v{t1}, v{dk}",
                           f"v_cvt_pk_bf16_f32 v{XDP[k]}, v{t0}, v{t1}"])
            zip_chains(A, ch)
    if XPS == 2: xpart(xfill.append)
    DIST = opt("dist", 3)
    assert DIST in (2, 3, 4)
    polls = [0]
    def hfpoll():
        polls[0] += 1
        V.issue(HFL, ("hf", polls[0]))
    def hfseen():
        V.wait(("hf", polls[0]))
        A("v_cmp_eq_u32 s[90:91], 1, v19")
    FS = opt("fs", 4)
    assert FS == 1 or (FS in (3, 4) and DIST >= 3)
    for st in range(N2 - FS):
        for ks in range(4):
            buf = ks & 1
            if ks == 3 and st >= FBAR: A("s_barrier")
            if ks == 3 and st == 1 and FBAR > 1:
                lds_spin(A, "c_cf2", 20, 20, 14, 4); L.done = L.n
            ns, nks = (st, ks+1) if ks < 3 else (st+1, 0)
            await_(st, ks)
            for nt in range(4):
                L.wait((st, ks, nt))
                A(mf2(st, ks, nt, buf*4 + nt))
                L.issue(rd2(ns, nks, nt, (buf ^ 1)*4 + nt), (ns, nks, nt))
                for z in range(opt("xfm", 3)):
                    if xfill: A(xfill.pop(0))
            if st == 0 and ks == HFK:
                if EARLY:
                    cnt = V.n - V.tags["hst"]
                    A("s_cmp_eq_u32 s13, 1")
                    A("s_cbranch_scc1 c_hw_e")
                    A(f"s_waitcnt vmcnt({cnt})")
                    A("s_branch c_hw_d")
                    A("c_hw_e:")
                    A(f"s_waitcnt vmcnt({cnt + 8})")
                    A("c_hw_d:")
                    V.done = V.tags["hst"]
                else: V.wait("hst")
                A("s_cmp_eq_u32 s14, 1")
                A("s_cbranch_scc1 c_hfs_l")
                A("buffer_store_dword v23, v60, s[68:71], 0 offen sc1")
                A("s_branch c_hfs_e")
                A("c_hfs_l:")
                A("buffer_store_dword v23, v60, s[68:71], 0 offen")
                A("c_hfs_e:")
                V.n += 1
                if SNT: V.issue("buffer_store_dword v23, v30, s[68:71], 0 offen sc1")
                hfpoll()
                if "fine3" in OPT: ST2()
            if st == 1 and ks == opt("rp", -1): hfpoll()
            if st == 1 and ks == N1K:
                if "fine3" in OPT: ST2()
                if EARLY:
                    A("s_cmp_eq_u32 s13, 1")
                    A("s_cbranch_scc1 c_skipy")
                hfseen(); need(1)
                if "fine3" in OPT: ST2()
                for z in (2, 3):
                    for k2 in range(4): aload(z, k2)
                if EARLY:
                    A("c_skipy:")
                    V.done = min(V.done, V.tags[("hf", polls[0])] - 1)
                hfpoll()
                if XPS == 0: xpart()
            if st == 1 and ks == 3 and XPS == 1: xpart()
            if st >= 2:
                if st == 2 and ks == 0:
                    if "fine3" in OPT: ST2()
                    hfseen(); need(2)
                    if "fine3" in OPT: ST2()
                    for z in range(4, 2 + DIST):
                        for k2 in range(4): aload(z, k2)
                    hfpoll()
                z = st + DIST
                if z < N2:
                    if ks == 0 and z % 2 == 0 and z // 2 >= 3:
                        if z // 2 == 3: hfseen()
                        if not (int(OPT.get("abl", 0)) & 2): need(z // 2)
                    aload(z, ks)
            if SNT and st == opt("pfl", 5) and ks == 0: V.issue("buffer_load_dword v14, v29, s[68:71], 0 offen sc1", "pf")
            if SNT and st == opt("pfc", 8) and ks == 0:
                V.wait("pf")
                A("v_cmp_ne_u32 vcc, 1, v14")
                A("s_cmp_eq_u64 vcc, 0")
                A("s_cbranch_scc0 c_pfs")
                A("c_pfr:")
            if "fine3" in OPT:
                if st in (1, 2, 3, 4) and ks == 3: ST2()
                if st == 2 and ks == 0: ST2()
            elif "fine4" in OPT:
                if st == N2 - FS - 1 and ks == 3: ST2()
            elif (st % 2 == 1 if 'fine2' not in OPT else True) and ks == 3: ST2()
    f0 = N2 - FS
    S_ = lambda z: [(z, ks, nt) for ks in range(4) for nt in (0, 1)]
    K_ = lambda z: [(z, ks, nt) for ks in range(4) for nt in (2, 3)]
    if FS == 1: order = S_(15) + K_(15); nsend = 8
    elif FS == 3: order = S_(13) + ["b13"] + S_(14) + K_(13) + ["b14"] + S_(15) + K_(14) + K_(15); nsend = 32
    else:
        BP = opt("bp", 4)
        order = []
        if opt("fso", 1) == 0:
            for z in (12, 13, 14): order += S_(z)[:BP] + [f"b{z}"] + S_(z)[BP:]
            order += S_(15) + K_(12) + K_(13) + K_(14) + K_(15); nsend = 32
        else:
            order = S_(12)[:BP] + ["b12"] + S_(12)[BP:] + S_(13) + K_(12)[:BP] + ["b13"] + K_(12)[BP:] + S_(14)[:BP] + ["b14"] + S_(14)[BP:] + S_(15) + K_(13) + K_(14) + K_(15)
            nsend = 40
        for z in range(N2):
            if ("A", z, 0) not in V.tags and z >= 2:
                for k2 in range(4): aload(z, k2)
    mfs = [x for x in order if not isinstance(x, str)]
    slot = {(f0, 0, nt): nt for nt in range(4)}
    pend = [x for x in mfs if x not in slot]
    free = [4, 5, 6]
    pub = [f0]
    def fill():
        while pend and free and pend[0][0] <= pub[0]:
            x = pend.pop(0); sl = free.pop(0); slot[x] = sl
            L.issue(rd2(x[0], x[1], x[2], sl), x)
    fill()
    pst = [f"buffer_store_dwordx4 {vr(ACC2+4*i,4)}, v28, s[92:95], s{74 if i < 4 else 75} offen offset:{(i & 3)*1024} sc1" for i in range(NPQ)]
    pcv = [f"v_cvt_pk_bf16_f32 v{ACC2+k}, v{ACC2+2*k}, v{ACC2+2*k+1}" for k in range(16)] if PB else []
    i = 0; prev = None
    for x in order:
        if isinstance(x, str):
            A("s_barrier"); pub[0] += 1; fill(); continue
        V.wait(("A", x[0], x[1]))
        if x not in slot: fill()
        L.wait(x)
        A(mf2(x[0], x[1], x[2], slot[x]))
        free.append(slot[prev] if prev is not None else 7)
        prev = x
        fill()
        i += 1
        SP = opt("sp", 0)
        if i >= nsend + 3 and pcv:
            for z in range(4): A(pcv.pop(0))
            V.issue(pst.pop(0), "ps")
        elif i >= nsend + 3:
            if SP == 0:
                for z in range(2):
                    if pst: V.issue(pst.pop(0), "ps")
            elif (i - nsend - 3) % SP == 0 and pst: V.issue(pst.pop(0), "ps")
        if "fine4" in OPT and i % 8 == 0: ST2()
    while pst: V.issue(pst.pop(0), "ps")
    ST2()
    YR, OM, GF, T0, RV = 160, 176, 192, 208, ACC2
    KEEP = ACC2 + 32
    PFL = "buffer_load_dword v19, v29, s[68:71], 0 offen sc1"
    A("s_mov_b32 s12, 0xffff0000")
    for nt in range(2):
        for hf in range(2): A(f"ds_read_b128 {vr(YR+nt*8+hf*4,4)}, v21 offset:{nt*32*272 + hf*16}")
    for r in range(16):
        A(f"v_lshlrev_b32 v{GF+r}, 16, v{GR+r}")
        A(f"v_and_b32 v{OM+r}, s12, v{GR+r}")
    A("s_waitcnt lgkmcnt(0)")
    if SNT:
        RCG = opt("rcg", 2)
        def recv_full():
            for i in range(NPQ):
                A(f"buffer_load_dwordx4 {vr(RV+4*i,4)}, v28, s[92:95], s{90 if i < 4 else 91} offen offset:{(i & 3)*1024} sc1")
        first = [True]
        def recv():
            if "lp" in OPT and first[0]:
                first[0] = False
                A(f"buffer_load_dwordx4 {vr(RV+4*NPQ-4,4)}, v28, s[92:95], s{90 if PB else 91} offen offset:3072 sc1")
            else: recv_full()
        A("s_lshl_b32 s90, s72, 6")
        A("s_add_u32 s91, s90, 4096")
        gi = 0
        for nt in range(2):
            for m0 in range(0, 8, 4):
                if gi == RCG: recv()
                gi += 1
                ch = []
                for m in range(m0, m0 + 4):
                    b_ = T0 + (m & 3)*6
                    yy, xf, tm = b_, b_ + 2, b_ + 4
                    xp = XP[nt*8+m]; xd = XDP[nt*8+m]; ka = KEEP + nt*16 + 2*m
                    ch.append([f"v_lshlrev_b32 v{yy}, 16, v{YR+nt*8+m}", f"v_and_b32 v{yy+1}, s12, v{YR+nt*8+m}",
                               f"v_lshlrev_b32 v{xf}, 16, v{xp}", f"v_and_b32 v{xf+1}, s12, v{xp}",
                               f"v_mul_f32 v{yy}, v{xf}, v{yy}", f"v_mul_f32 v{yy+1}, v{xf+1}, v{yy+1}",
                               f"v_lshlrev_b32 v{xf}, 16, v{xd}", f"v_and_b32 v{xf+1}, s12, v{xd}",
                               f"v_cvt_pk_bf16_f32 v{tm}, v{yy}, v{yy+1}",
                               f"v_add_f32 v{ka}, v{ka}, v{xf}", f"v_add_f32 v{ka+1}, v{ka+1}, v{xf+1}",
                               f"v_lshlrev_b32 v{yy}, 16, v{tm}", f"v_and_b32 v{yy+1}, s12, v{tm}",
                               f"v_mul_f32 v{yy}, v{yy}, v{OM+2*m}", f"v_mul_f32 v{yy+1}, v{yy+1}, v{OM+2*m+1}",
                               f"v_cvt_pk_bf16_f32 v{tm}, v{yy}, v{yy+1}", f"v_lshlrev_b32 v{yy}, 16, v{tm}", f"v_and_b32 v{yy+1}, s12, v{tm}",
                               f"v_fma_f32 v{ka}, v{ka}, v{GF+2*m}, v{yy}", f"v_fma_f32 v{ka+1}, v{ka+1}, v{GF+2*m+1}, v{yy+1}"])
                zip_chains(A, ch)
        if gi == RCG: recv()
        ST2()
        if "lp" in OPT:
            LP = f"buffer_load_dwordx4 {vr(RV+4*NPQ-4,4)}, v28, s[92:95], s{90 if PB else 91} offen offset:3072 sc1"
            A(f"s_mov_b32 s89, {SPIN}")
            A("c_lp:")
            A("s_waitcnt vmcnt(0)")
            A(f"v_cmp_eq_u32 vcc, -1, v{RV+4*NPQ-1}")
            A("s_cmp_eq_u64 vcc, 0")
            A("s_cbranch_scc1 c_lpok")
            A("s_sub_u32 s89, s89, 1")
            A("s_cbranch_scc1 c_lpok")
            A(LP)
            A("s_branch c_lp")
            A("c_lpok:")
            recv_full()
        A(f"s_mov_b32 s89, {SPIN}")
        A("c_rc:")
        A("s_waitcnt vmcnt(0)")
        A(f"v_max3_u32 v19, v{RV}, v{RV+1}, v{RV+2}")
        for i in range(3, 4*NPQ-1, 2): A(f"v_max3_u32 v19, v19, v{RV+i}, v{RV+i+1}")
        A(f"v_max_u32 v19, v19, v{RV+4*NPQ-1}")
        A("v_cmp_eq_u32 vcc, -1, v19")
        A("s_cmp_eq_u64 vcc, 0")
        A("s_cbranch_scc1 c_rcok")
        A("s_sub_u32 s89, s89, 1")
        A("s_cbranch_scc1 c_rcok")
        recv()
        A("s_branch c_rc")
        A("c_rcok:")
        ST2()
        for nt in range(2):
            for r in range(16):
                a = KEEP + nt*16 + r
                if PB:
                    w = RV + nt*8 + (r >> 1); t = T0 + (r & 3)
                    A(f"v_and_b32 v{t}, s12, v{w}" if r & 1 else f"v_lshlrev_b32 v{t}, 16, v{w}")
                    A(f"v_fma_f32 v{a}, v{t}, v{GF+r}, v{a}")
                else: A(f"v_fma_f32 v{a}, v{RV+nt*16+r}, v{GF+r}, v{a}")
                A(f"buffer_store_dword v{a}, v{26 if r < 8 else 27}, s[76:79], s{80+(r&7)} offen offset:{nt*128}{OS}")
        ST2()
    else:
        PFG = opt("pfg", 2)
        gi = 0
        def pfstore():
            A("s_waitcnt vmcnt(0)")
            A("buffer_store_dword v23, v30, s[68:71], 0 offen sc1")
            A(PFL)
        RCG = opt("rcg", 3)
        def recv():
            A("s_lshl_b32 s12, s72, 6")
            A("s_add_u32 s13, s12, 4096")
            for i in range(NPQ):
                A(f"buffer_load_dwordx4 {vr(RV+4*i,4)}, v28, s[92:95], s{12 if i < 4 else 13} offen offset:{(i & 3)*1024} sc1")
            A("s_mov_b32 s12, 0xffff0000")
        A("s_mov_b32 s90, 0")
        for nt in range(2):
            for m0 in range(0, 8, 4):
                if gi == PFG: pfstore()
                if gi == RCG and RCG > PFG:
                    A("s_waitcnt vmcnt(0)")
                    A("v_cmp_ne_u32 vcc, 1, v19")
                    A("s_cmp_eq_u64 vcc, 0")
                    A("s_cbranch_scc0 c_norc")
                    recv()
                    A("s_mov_b32 s90, 1")
                    A("c_norc:")
                gi += 1
                ch = []
                for m in range(m0, m0 + 4):
                    b_ = T0 + (m & 3)*6
                    yy, xf, tm = b_, b_ + 2, b_ + 4
                    xp = XP[nt*8+m]; xd = XDP[nt*8+m]; ka = KEEP + nt*16 + 2*m
                    ch.append([f"v_lshlrev_b32 v{yy}, 16, v{YR+nt*8+m}", f"v_and_b32 v{yy+1}, s12, v{YR+nt*8+m}",
                               f"v_lshlrev_b32 v{xf}, 16, v{xp}", f"v_and_b32 v{xf+1}, s12, v{xp}",
                               f"v_mul_f32 v{yy}, v{xf}, v{yy}", f"v_mul_f32 v{yy+1}, v{xf+1}, v{yy+1}",
                               f"v_lshlrev_b32 v{xf}, 16, v{xd}", f"v_and_b32 v{xf+1}, s12, v{xd}",
                               f"v_cvt_pk_bf16_f32 v{tm}, v{yy}, v{yy+1}",
                               f"v_add_f32 v{ka}, v{ka}, v{xf}", f"v_add_f32 v{ka+1}, v{ka+1}, v{xf+1}",
                               f"v_lshlrev_b32 v{yy}, 16, v{tm}", f"v_and_b32 v{yy+1}, s12, v{tm}",
                               f"v_mul_f32 v{yy}, v{yy}, v{OM+2*m}", f"v_mul_f32 v{yy+1}, v{yy+1}, v{OM+2*m+1}",
                               f"v_cvt_pk_bf16_f32 v{tm}, v{yy}, v{yy+1}", f"v_lshlrev_b32 v{yy}, 16, v{tm}", f"v_and_b32 v{yy+1}, s12, v{tm}",
                               f"v_fma_f32 v{ka}, v{ka}, v{GF+2*m}, v{yy}", f"v_fma_f32 v{ka+1}, v{ka+1}, v{GF+2*m+1}, v{yy+1}"])
                zip_chains(A, ch)
        if gi == PFG: pfstore()
        ST2()
        A("s_cmp_eq_u32 s90, 1")
        A("s_cbranch_scc1 c_havercv")
        A(PFL)
        A("s_waitcnt vmcnt(0)")
        spin_all(A, "c_pf", 19, PFL)
        recv()
        A("c_havercv:")
        ST2()
        for nt in range(2):
            for r in range(16):
                a = KEEP + nt*16 + r
                if PB:
                    i = (nt*16 + r) // 8
                    if r % 8 == 0: A(f"s_waitcnt vmcnt({3 - i + nt*16 + r})")
                    w = RV + nt*8 + (r >> 1); t = T0 + (r & 3)
                    A(f"v_and_b32 v{t}, s12, v{w}" if r & 1 else f"v_lshlrev_b32 v{t}, 16, v{w}")
                    A(f"v_fma_f32 v{a}, v{t}, v{GF+r}, v{a}")
                else:
                    i = (nt*16 + r) // 4
                    if r % 4 == 0: A(f"s_waitcnt vmcnt({7 - i + nt*16 + r})")
                    A(f"v_fma_f32 v{a}, v{RV+nt*16+r}, v{GF+r}, v{a}")
                A(f"buffer_store_dword v{a}, v{26 if r < 8 else 27}, s[76:79], s{80+(r&7)} offen offset:{nt*128}{OS}")
        ST2()
    if "leak" in OPT:
        i = int(OPT["leak"])
        A("s_cmp_lg_u32 s2, 8")
        A("s_cbranch_scc1 c_noleak")
        A("s_cmp_lg_u32 s3, 0")
        A("s_cbranch_scc1 c_noleak")
        A("v_readlane_b32 s8, v63, 0")
        A(f"v_readlane_b32 s9, v{63 if i < 100 else 62}, {i % 100}")
        A("s_sub_u32 s9, s9, s8")
        A("s_memrealtime s[10:11]")
        A("s_waitcnt lgkmcnt(0)")
        A("s_add_u32 s9, s9, s10")
        A("c_leak:")
        A("s_memrealtime s[10:11]")
        A("s_waitcnt lgkmcnt(0)")
        A("s_sub_u32 s12, s9, s10")
        A("s_cmp_gt_i32 s12, 0")
        A("s_cbranch_scc1 c_leak")
        A("c_noleak:")
    if "leak2" in OPT:
        X, i = str(OPT["leak2"]).split(":"); i = int(i)
        if X != "all":
            A(f"s_cmp_lg_u32 s2, {int(X)}")
            A("s_cbranch_scc1 c_noleak2")
        A("s_cmp_lg_u32 s3, 0")
        A("s_cbranch_scc1 c_noleak2")
        A(f"v_readlane_b32 s9, v{63 if i < 100 else 62}, {i % 100}")
        A("s_add_u32 s9, s9, 4000")
        A("c_leak2:")
        A("s_memrealtime s[10:11]")
        A("s_waitcnt lgkmcnt(0)")
        A("s_sub_u32 s12, s9, s10")
        A("s_cmp_gt_i32 s12, 0")
        A("s_cbranch_scc1 c_leak2")
        A("c_noleak2:")
    ST.flush()
    ST2.flush()
    A("s_endpgm")
    if SNT:
        A("c_pfs:")
        A(f"s_mov_b32 s89, {SPIN}")
        A("c_pfs_l:")
        A("s_waitcnt vmcnt(0)")
        A("buffer_load_dword v14, v29, s[68:71], 0 offen sc1")
        A("s_waitcnt vmcnt(0)")
        A("v_cmp_ne_u32 vcc, 1, v14")
        A("s_cmp_eq_u64 vcc, 0")
        A("s_cbranch_scc1 c_pfr")
        A("s_sub_u32 s89, s89, 1")
        A("s_cbranch_scc1 c_pfr")
        A("s_branch c_pfs_l")
    for name, m in slowp:
        A(f"{name}_s:")
        A(f"s_mov_b32 s89, {SPIN}")
        A(f"{name}_l:")
        A("s_waitcnt vmcnt(0)")
        A(HFL)
        A("s_waitcnt vmcnt(0)")
        A("v_cmp_eq_u32 s[90:91], 1, v19")
        A(f"s_and_b32 s88, s90, {m:#x}")
        A(f"s_cmp_eq_u32 s88, {m:#x}")
        A(f"s_cbranch_scc1 {name}")
        A("s_sub_u32 s89, s89, 1")
        A(f"s_cbranch_scc1 {name}")
        A(f"s_branch {name}_l")

def helper(A):
    V = VQ(A)
    VA, VB = 8, 12
    ST = Stamper(A, 0, 58)
    STH = Stamper(A, 1, 59)
    ST()
    if "hprio1" in OPT: A(f"s_setprio {OPT['hprio1']}")
    A("s_sub_u32 s3, s3, 4")
    A("s_lshr_b32 s6, s3, 1")
    A("s_and_b32 s7, s3, 1")
    A("v_lshrrev_b32 v3, 5, v1")
    A("v_lshlrev_b32 v3, 5, v3")
    A("v_bfe_u32 v4, v1, 3, 1")
    A("v_lshl_add_u32 v3, v4, 4, v3")
    A("v_bfe_u32 v4, v1, 4, 1")
    A("v_add_u32 v3, v3, v4")
    A("s_lshl_b32 s8, s4, 7")
    A("s_lshl_b32 s9, s6, 6")
    A("s_add_u32 s8, s8, s9")
    A("s_lshl_b32 s9, s7, 3")
    A("s_add_u32 s8, s8, s9")
    A("v_add_u32 v3, s8, v3")
    A("v_lshlrev_b32 v3, 11, v3")
    A("v_and_b32 v4, 7, v1")
    A("v_lshrrev_b32 v5, 4, v1")
    A("v_xor_b32 v4, v4, v5")
    A("v_lshlrev_b32 v4, 4, v4")
    A(f"v_add_u32 v{VA}, v3, v4")
    A("s_lshl_b32 s10, s3, 12")
    A("s_lshr_b32 s90, s55, 2")
    A("s_lshl_b32 s90, s90, 1")
    A("s_and_b32 s91, s55, 3")
    A("s_lshl_b32 s91, s91, 2")
    A("s_add_u32 s90, s90, s91")
    A("s_and_b32 s11, s90, 15")
    A("s_lshl_b32 s11, s11, 7")
    A("s_mov_b32 m0, s10")
    A(f"s_mov_b32 s58, {4<<20:#x}")
    A("s_mov_b32 s59, 0x20000")
    if "fine0" in OPT: STH()
    A("s_waitcnt lgkmcnt(0)")
    if "fine0" in OPT: STH()
    A(f"s_mov_b32 s56, s{P['x']}")
    A(f"s_mov_b32 s57, s{P['x']+1}")
    V.issue(f"buffer_load_dwordx4 v{VA}, s[56:59], s11 offen lds")
    A("v_xor_b32 v5, 64, v4")
    A(f"v_add_u32 v{VA+1}, v3, v5")
    A(f"v_add_u32 v{VA+1}, {4096-1024}, v{VA+1}")
    V.issue(f"buffer_load_dwordx4 v{VA+1}, s[56:59], s11 offen offset:1024 lds")
    A(f"v_add_u32 v{VA+2}, {2*(4096-1024)}, v{VA}")
    V.issue(f"buffer_load_dwordx4 v{VA+2}, s[56:59], s11 offen offset:2048 lds")
    A(f"v_add_u32 v{VA+3}, {2*(4096-1024)}, v{VA+1}")
    V.issue(f"buffer_load_dwordx4 v{VA+3}, s[56:59], s11 offen offset:3072 lds")
    A("s_lshl_b32 s8, s5, 6")
    A("s_lshl_b32 s9, s7, 5")
    A("s_add_u32 s8, s8, s9")
    A("v_lshrrev_b32 v6, 3, v1")
    A("v_add_u32 v7, s8, v6")
    A("v_lshlrev_b32 v7, 11, v7")
    A(f"v_add_u32 v{VB}, v7, v4")
    A("s_cmp_ge_u32 s3, 2")
    A(f"s_cselect_b32 s60, s{P['Bim']}, s{P['Bre']}")
    A(f"s_cselect_b32 s61, s{P['Bim']+1}, s{P['Bre']+1}")
    A(f"s_mov_b32 s62, {2<<20:#x}")
    A("s_mov_b32 s63, 0x20000")
    A("s_add_u32 m0, s10, 16384")
    A(f"v_add_u32 v{VB+1}, v7, v5")
    V.issue(f"buffer_load_dwordx4 v{VB}, s[60:63], s11 offen lds")
    A(f"v_add_u32 v{VB+1}, {16384-1024}, v{VB+1}")
    V.issue(f"buffer_load_dwordx4 v{VB+1}, s[60:63], s11 offen offset:1024 lds")
    A(f"v_add_u32 v{VB+2}, {2*(16384-1024)}, v{VB}")
    V.issue(f"buffer_load_dwordx4 v{VB+2}, s[60:63], s11 offen offset:2048 lds")
    A(f"v_add_u32 v{VB+3}, {2*(16384-1024)}, v{VB+1}")
    V.issue(f"buffer_load_dwordx4 v{VB+3}, s[60:63], s11 offen offset:3072 lds", ("S", 0))
    def issue(st, fill=0):
        slot = st % 3
        A(f"s_add_u32 s11, s90, {st}")
        A("s_and_b32 s11, s11, 15")
        A("s_lshl_b32 s11, s11, 7")
        A(f"s_add_u32 m0, s10, {slot*32768:#x}")
        for n in range(4):
            V.issue(f"buffer_load_dwordx4 v{VA+n}, s[56:59], s11 offen offset:{n*1024} lds")
            if fill: do_work(fill)
        A(f"s_add_u32 m0, s10, {slot*32768+16384:#x}")
        for n in range(4):
            V.issue(f"buffer_load_dwordx4 v{VB+n}, s[60:63], s11 offen offset:{n*1024} lds", ("S", st))
            if fill: do_work(fill)
    if "fine0" in OPT: STH()
    VC = 28
    A("s_and_b32 s8, s5, 7")
    A("s_lshl_b32 s8, s8, 6")
    A("s_lshl_b32 s9, s3, 4")
    A("s_add_u32 s8, s8, s9")
    A("v_add_u32 v7, s8, v6")
    A("v_lshlrev_b32 v7, 11, v7")
    A(f"v_add_u32 v{VC}, v7, v4")
    A(f"v_add_u32 v{VC+1}, v7, v5")
    A(f"v_add_u32 v{VC+1}, {16384-1024}, v{VC+1}")
    A("s_and_b32 s12, s55, 1")
    A("s_lshl_b32 s13, s54, 1")
    A("s_add_u32 s12, s12, s13")
    A("s_lshr_b32 s13, s55, 1")
    A("s_lshl_b32 s8, s2, 7")
    A(f"s_add_u32 s8, s8, {KF_OFF:#x}")
    A("v_mov_b32 v30, s8")
    A("s_lshl_b32 s88, s54, 5")
    A("s_add_u32 s88, s88, s55")
    A("s_lshl_b32 s8, s88, 7")
    A(f"s_add_u32 s8, s8, {YF_OFF:#x}")
    A("v_mov_b32 v31, s8")
    A("s_lshl_b32 s88, s88, 2")
    A("s_add_u32 s88, s88, s3")
    A("v_mov_b32 v2, 0")
    srd(A, 92, "ws", FLG_SZ, WS_FLG)
    A("s_lshl_b32 s8, s88, 12")
    A(f"s_load_dword s100, {sp('ssmk')}, s8")
    A("s_lshr_b32 s8, s88, 1")
    A("s_lshl_b32 s8, s8, 2")
    A(f"s_load_dword s101, {sp('ssmD')}, s8")
    V.issue("buffer_store_dword v2, v30, s[92:95], 0 offen sc1")
    V.issue("buffer_store_dword v2, v31, s[92:95], 0 offen sc1", "clr")
    if opt("pl", 1) >= 0: issue(1)
    if "fine0" in OPT: STH()
    KR, VR_, SK = 32, 208, 68
    XG, GW = 72, 88
    A("s_lshl_b32 s13, s13, 7")
    A("s_lshl_b32 s14, s3, 5")
    A("s_add_u32 s13, s13, s14")
    A("v_and_b32 v17, 31, v1")
    A("s_lshl_b32 s14, s12, 5")
    A("v_add_u32 v17, s14, v17")
    A("v_lshlrev_b32 v22, 4, v17")
    A("v_and_b32 v23, 31, v1")
    A("v_mul_u32_u24 v23, 544, v23")
    A("v_lshrrev_b32 v24, 5, v1")
    A("v_lshlrev_b32 v24, 5, v24")
    A("v_sub_u32 v23, v23, v24")
    A("s_lshl_b32 s8, s3, 6")
    A(f"s_sub_u32 s8, {UREG+224}, s8")
    A("v_add_u32 v23, s8, v23")
    A("v_lshrrev_b32 v24, 4, v1")
    A("s_lshl_b32 s8, s3, 4")
    A("v_add_u32 v24, s8, v24")
    A("v_and_b32 v2, 15, v1")
    A("v_lshlrev_b32 v2, 4, v2")
    A("s_lshl_b32 s8, s12, 6")
    A("v_add_u32 v27, s8, v24")
    A("v_lshl_add_u32 v27, v27, 12, v2")
    A("s_lshr_b32 s8, s55, 1")
    A("s_lshl_b32 s8, s8, 8")
    A("s_sub_u32 s8, 3840, s8")
    A("v_add_u32 v27, s8, v27")
    A("v_mul_u32_u24 v24, 272, v24")
    A("v_add_u32 v24, v24, v2")
    A(f"v_add_u32 v24, {UREG:#x}, v24")
    A("s_lshl_b32 s14, s4, 7")
    A("s_lshl_b32 s8, s5, 3")
    A("s_add_u32 s14, s14, s8")
    A("s_lshl_b32 s8, s3, 1")
    A("s_add_u32 s14, s14, s8")
    A("s_lshl_b32 s8, s14, 11")
    A("v_lshlrev_b32 v25, 4, v1")
    A("v_add_u32 v26, s8, v25")
    A("v_add_u32 v3, 0x8000, v27")
    srd(A, 64, "k", 4 << 20)
    srd(A, 68, "v", 4 << 20)
    srd(A, 72, "ws", 4 << 20, WS_KVT)
    srd(A, 76, "ws", 8192, WS_G)
    for i in range(8):
        A(f"s_mov_b32 s{80+i}, {i*4096}")
    NTP = " nt" if "ntp" in OPT else ""
    A("v_lshrrev_b32 v19, 3, v1")
    A("v_add_u32 v19, s13, v19")
    A("v_lshlrev_b32 v19, 11, v19")
    A("v_and_b32 v20, 7, v1")
    A("v_lshl_add_u32 v19, v20, 4, v19")
    A("s_lshl_b32 s8, s12, 7")
    A("v_add_u32 v19, s8, v19")
    A("v_subrev_u32 v20, 16384, v19")
    A("v_lshrrev_b32 v21, 5, v1")
    A("v_lshlrev_b32 v21, 11, v21")
    A("v_and_b32 v18, 31, v1")
    A("v_lshl_add_u32 v21, v18, 2, v21")
    A("s_lshl_b32 s8, s3, 12")
    A(f"s_add_u32 s91, s8, {KREG}")
    A("v_add_u32 v21, s91, v21")
    def kvdma():
        A("s_add_u32 m0, s91, 16384")
        V.issue(f"buffer_load_dwordx4 v20, s[64:67], 0 offen{NTP} lds")
        for i in range(4):
            A(f"s_add_u32 m0, s91, {16384 + 1024*(i+1)}")
            A(f"s_mov_b32 s99, {i*16384}")
            V.issue(f"buffer_load_dwordx4 v19, s[64:67], s99 offen{NTP} lds")
        V.issue(f"global_load_dwordx4 {vr(SK,4)}, v22, {sp('shk')}", "k")
        for i in range(4):
            A(f"s_add_u32 m0, s91, {1024*i}")
            A(f"s_mov_b32 s99, {i*16384}")
            V.issue(f"buffer_load_dwordx4 v19, s[68:71], s99 offen{NTP} lds", "v")
    if opt("pl", 1) < 0:
        kvdma(); issue(1)
    gl = []
    for r in range(2):
        for hh in range(2): gl.append((f"buffer_load_dwordx4 {vr(XG+r*8+hh*4,4)}, v26, s[56:59], 0 offen offset:{r*2048+hh*1024}", None))
    for hh in range(2): gl.append((f"global_load_dwordx4 {vr(GW+hh*4,4)}, v25, {sp('gw')} offset:{hh*1024}", "gate"))
    KF = 96; SP = 136; OUT = 144
    work = []
    def W(x):
        if callable(x): work.append(x)
        else: work.extend(x.split("\n"))
    def rndW(pair, tmp):
        W(f"v_cvt_pk_bf16_f32 v{tmp}, v{pair}, v{pair+1}")
        W(f"v_lshlrev_b32 v{pair}, 16, v{tmp}")
        W(f"v_and_b32 v{pair+1}, s12, v{tmp}")
    W("s_mov_b32 s12, 0xffff0000")
    gate_begin = len(work)
    W(lambda: V.wait("gate"))
    for i in range(8):
        W(f"v_lshlrev_b32 v{96+2*i}, 16, v{GW+i}")
        W(f"v_and_b32 v{97+2*i}, s12, v{GW+i}")
    for r in range(2):
        acc = 112 + r
        W(f"v_mov_b32 v{acc}, 0")
        for i in range(8):
            W(f"v_lshlrev_b32 v116, 16, v{XG+r*8+i}")
            W(f"v_and_b32 v117, s12, v{XG+r*8+i}")
            W(pk("mul", 116, 116, 96+2*i))
            rndW(116, 118)
            W(f"v_add_f32 v{acc}, v{acc}, v116")
            W(f"v_add_f32 v{acc}, v{acc}, v117")
    for r in range(2):
        acc = 112 + r
        for sh in (1, 2, 4, 8):
            W(f"v_add_f32_dpp v{acc}, v{acc}, v{acc} row_shr:{sh} row_mask:0xf bank_mask:0xf bound_ctrl:0")
        W(f"v_add_f32_dpp v{acc}, v{acc}, v{acc} row_bcast:15 row_mask:0xa bank_mask:0xf")
        W(f"v_add_f32_dpp v{acc}, v{acc}, v{acc} row_bcast:31 row_mask:0xc bank_mask:0xf")
    for t in ["v_readlane_b32 s8, v112, 63", "v_readlane_b32 s9, v113, 63", "v_mov_b32 v116, s8", "v_mov_b32 v117, s9",
              "v_cmp_eq_u32 vcc, 1, v1", "v_cndmask_b32 v116, v116, v117, vcc", "v_cvt_pk_bf16_f32 v116, v116, v116",
              "v_lshlrev_b32 v116, 16, v116", "v_mul_f32 v116, 0xbfb8aa3b, v116", "v_exp_f32 v116, v116", "v_add_f32 v116, 1.0, v116",
              "v_rcp_f32 v116, v116", "v_cvt_pk_bf16_f32 v117, v116, v116", "v_lshlrev_b32 v116, 16, v117", "v_sub_f32 v118, 1.0, v116",
              "v_cvt_pk_bf16_f32 v116, v116, v118", "s_lshl_b32 s14, s14, 2", "v_lshl_add_u32 v117, v1, 2, s14"]:
        W(t)
    def gstore():
        A("s_mov_b64 exec, 3")
        V.issue("buffer_store_dword v116, v117, s[76:79], 0 offen sc1", "g")
        A("s_mov_b64 exec, -1")
    W(gstore)
    gate_end = len(work)
    W("KVSTART")
    W(lambda: V.wait("k"))
    for i in range(19):
        W(f"ds_read_b32 v{KR+i}, v21 offset:{16384 + (5+i)*128}")
        if i == 9: W("s_waitcnt lgkmcnt(0)")
    W("s_waitcnt lgkmcnt(0)")
    for i in range(19):
        W(f"v_lshlrev_b32 v{KF+2*i}, 16, v{KR+i}")
        W(f"v_and_b32 v{KF+2*i+1}, s12, v{KR+i}")
    for jx in range(4):
        for cc in range(2):
            src = SK + cc*2 + (jx >> 1)
            W(f"v_and_b32 v{SP+2*jx+cc}, s12, v{src}" if jx & 1 else f"v_lshlrev_b32 v{SP+2*jx+cc}, 16, v{src}")
    W(lambda: V.wait("v"))
    for i in range(16):
        W(f"ds_read_b32 v{VR_+i}, v21 offset:{i*128}")
        if i == 7: W("s_waitcnt lgkmcnt(0)")
    W("s_waitcnt lgkmcnt(0)")
    for t in range(16):
        vv = 176 + (t & 1)*2
        W(f"v_lshlrev_b32 v{vv}, 16, v{VR_+t}")
        W(f"v_and_b32 v{vv+1}, s12, v{VR_+t}")
        if opt("pk", 0) & 2:
            o = OUT + 2*t
            W(f"v_pk_mul_f32 {vr(o,2)}, {vr(KF+2*t,2)}, {vr(SP+6,2)}")
            for jx in (2, 1, 0): W(f"v_pk_fma_f32 {vr(o,2)}, {vr(KF+2*(t+3-jx),2)}, {vr(SP+2*jx,2)}, {vr(o,2)}")
            W(f"v_pk_mul_f32 {vr(o,2)}, {vr(o,2)}, {vr(vv,2)}")
            continue
        for cc in range(2): W(f"v_mul_f32 v{OUT+2*t+cc}, v{KF+2*t+cc}, v{SP+6+cc}")
        for jx in (2, 1, 0):
            for cc in range(2): W(f"v_fmac_f32 v{OUT+2*t+cc}, v{KF+2*(t+3-jx)+cc}, v{SP+2*jx+cc}")
        for cc in range(2): W(f"v_mul_f32 v{OUT+2*t+cc}, v{OUT+2*t+cc}, v{vv+cc}")
    for cc in range(2):
        for hf in range(2):
            d = 192 + (cc*2+hf)*4
            for m in range(4):
                mm = hf*4 + m
                W(f"v_cvt_pk_bf16_f32 v{d+m}, v{OUT+2*(15-2*mm)+cc}, v{OUT+2*(14-2*mm)+cc}")
            W(f"ds_write_b128 v23, {vr(d,4)} offset:{cc*272+hf*16}")
    W("s_waitcnt lgkmcnt(0)")
    W("BARRIER")
    for i in range(4): W(f"ds_read_b128 {vr(192+4*i,4)}, v24 offset:{i*4*272}")
    KVL = "nokvl" not in OPT
    def kvstores():
        def block(pol):
            for i in range(4):
                A(f"s_waitcnt lgkmcnt({3-i})")
                V.issue(f"buffer_store_dwordx4 {vr(192+4*i,4)}, v{27 if i < 2 else 3}, s[72:75], s{80+4*(i&1)} offen{pol}", "kvt")
        if not KVL:
            block(" sc1"); return
        V.wait("cls")
        local_check(A, 247, 246, 96, 98)
        A("s_cbranch_scc0 h_kvl")
        n0 = V.n
        block(" sc1")
        A("s_branch h_kve")
        A("h_kvl:")
        V.n = n0
        block("")
        A("h_kve:")
    W(kvstores)
    kv_end = len(work)
    if "kvfirst" in OPT:
        gate_part = work[gate_begin:gate_end]
        del work[gate_begin:gate_end]
        work.extend(gate_part)
    wpos = [0]
    blocked = [False]
    cur = [0]
    PL = opt("pl", 1)
    KVW = PL + opt("kvd", 3)
    def do_work(n):
        while n > 0 and wpos[0] < len(work) and not blocked[0]:
            w = work[wpos[0]]
            wpos[0] += 1
            if w == "BARRIER":
                blocked[0] = True; return
            if w == "KVSTART":
                if cur[0] < KVW:
                    wpos[0] -= 1; return
                continue
            if callable(w): w()
            elif "ablkv" in OPT and w.startswith("v_") and wpos[0] > gate_end and wpos[0] < kv_end: pass
            else: A(w)
            n -= 1
    PREP0 = opt("prep0", 1)
    UL = 40
    ACC = 64; BF = 96; AFR = 160; KD = 224
    def setup_conv(A):
        A("s_lshl_b32 s12, s88, 12")
        srd(A, 64, "ssmk", 4096, off_sreg=12)
        srd(A, 68, "ws", 4096, WS_KVT, off_sreg=12)
        A("s_mov_b32 s80, s100")
        A("s_mov_b32 s81, s101")
        A("v_and_b32 v37, 15, v1")
        A("s_lshr_b32 s8, s88, 6")
        A("s_and_b32 s8, s8, 1")
        A("s_lshl_b32 s8, s8, 3")
        A("s_add_u32 s8, s8, s54")
        A("v_lshl_add_u32 v32, v37, 4, s8")
        A("s_lshr_b32 s8, s4, 2")
        A("s_lshl_b32 s8, s8, 1")
        A("s_and_b32 s9, s4, 3")
        A("s_lshl_b32 s9, s9, 3")
        A("s_add_u32 s8, s8, s9")
        A("v_lshrrev_b32 v38, 3, v37")
        A("v_and_b32 v39, 7, v37")
        A("v_lshl_add_u32 v38, v39, 5, v38")
        A("v_add_u32 v38, s8, v38")
        A("v_and_b32 v39, 16, v1")
        A("v_cmp_ne_u32 vcc, 0, v39")
        A("v_cndmask_b32 v32, v32, v38, vcc")
        A("v_lshlrev_b32 v32, 7, v32")
        A(f"v_add_u32 v32, {KF_OFF:#x}, v32")
        A("v_lshlrev_b32 v33, 2, v1")
        srd(A, 76, "dbg", 256)
        A(f"s_mul_i32 s13, s3, 8320")
        A(f"s_add_u32 s13, s13, {KREG}")
        A(f"s_mul_i32 s82, s3, 4608")
        A(f"s_add_u32 s82, s82, {UREG}")
        A("v_add_u32 v36, 2, v25")
        A("v_and_b32 v38, 7, v1")
        A("v_lshlrev_b32 v38, 2, v38")
        A("v_bfe_u32 v39, v1, 3, 1")
        A("v_mul_u32_u24 v39, 4160, v39")
        A("v_add3_u32 v38, v38, v39, s13")
        A("s_lshl_b32 s80, s80, 16")
        A("v_mov_b32 v56, s80")
        A("v_cmp_eq_u32 vcc, 15, v37")
        A("v_cndmask_b32 v56, 0, v56, vcc")
        A("ds_write_b32 v38, v56")
        A("s_and_b32 s14, s88, 1")
        A("s_lshl_b32 s14, s14, 4")
        A("s_lshr_b32 s81, s81, s14")
        A("s_lshl_b32 s81, s81, 16")
        A(f"v_mov_b32 v60, {LFLAG:#x}")
        A("v_mov_b32 v61, 1")
    def setup_late(A):
        A("v_lshrrev_b32 v5, 4, v1")
        A("v_and_b32 v37, 15, v1")
        A("v_lshl_add_u32 v38, v5, 3, v37")
        A("v_lshlrev_b32 v38, 1, v38")
        A("v_and_b32 v39, 1, v1")
        A("v_mul_u32_u24 v39, 4158, v39")
        A("v_sub_u32 v38, v38, v39")
        A("s_add_u32 s14, s13, 4160")
        A("v_add_u32 v16, s14, v38")
        for i in range(1, 4): A(f"v_add_u32 v{16+i}, {1024*i}, v16")
        A("v_lshlrev_b32 v38, 5, v37")
        A("v_lshlrev_b32 v39, 4, v5")
        A("v_sub_u32 v20, v39, v38")
        A("s_add_u32 s14, s82, 480")
        A("v_add_u32 v20, s14, v20")
        A("v_lshl_add_u32 v39, v5, 3, v38")
        A("s_add_u32 s14, s82, 504")
        A("v_sub_u32 v21, s14, v39")
        A("v_and_b32 v39, 1, v5")
        A("v_lshl_add_u32 v22, v39, 9, v38")
        A("v_lshrrev_b32 v39, 1, v5")
        A("v_lshl_add_u32 v22, v39, 4, v22")
        A("v_add_u32 v23, s82, v25")
    setup_conv(W)
    print("prep work items", len(work))
    def cissue(st):
        tile_of(A, st >> 1, 11)
        A("s_lshl_b32 s11, s11, 7")
        sr_ = "s[56:59]" if st % 2 == 0 else "s[60:63]"
        A("s_add_u32 s99, s11, s91")
        A(f"s_add_u32 m0, s10, {(st % NS2)*16384:#x}")
        for n in range(2):
            V.issue(f"buffer_load_dwordx4 v{VC+n}, {sr_}, s99 offen offset:{n*1024} lds")
        A("s_add_u32 s11, s11, s90")
        A(f"s_add_u32 m0, s10, {(st % NS2)*16384 + 8192:#x}")
        for n in range(2):
            V.issue(f"buffer_load_dwordx4 v{VC+n}, {sr_}, s11 offen offset:{n*1024} lds", ("C", st))
    def uloads():
        for i in range(4): A(f"buffer_load_dwordx4 {vr(UL+4*i,4)}, v25, s[68:71], 0 offen offset:{i*1024} sc1")
    def ctouch():
        A("s_cmp_ge_u32 s3, 2")
        A(f"s_cselect_b32 s96, s{P['Cim']}, s{P['Cre']}")
        A(f"s_cselect_b32 s97, s{P['Cim']+1}, s{P['Cre']+1}")
        A("s_lshl_b32 s98, s2, 13")
        A("s_and_b32 s99, s3, 1")
        A("s_lshl_b32 s99, s99, 12")
        A("s_add_u32 s98, s98, s99")
        A("v_and_b32 v240, 31, v1")
        if "km" in OPT:
            A("s_add_u32 s96, s96, s98")
            A("s_addc_u32 s97, s97, 0")
            A("s_lshl_b32 s98, s88, 12")
            A(f"s_add_u32 s98, s{P['ssmk']}, s98")
            A(f"s_addc_u32 s99, s{P['ssmk']+1}, 0")
            A("v_mov_b32 v242, s96")
            A("v_mov_b32 v243, s97")
            A("v_mov_b32 v244, s98")
            A("v_mov_b32 v245, s99")
            A("v_cmp_lt_u32 s[96:97], 31, v1")
            A("v_cndmask_b32 v242, v242, v244, s[96:97]")
            A("v_cndmask_b32 v243, v243, v245, s[96:97]")
            A("v_lshlrev_b32 v240, 7, v240")
            A("v_add_co_u32 v242, s[96:97], v242, v240")
            A("v_addc_co_u32 v243, s[96:97], 0, v243, s[96:97]")
            V.issue("global_load_dword v241, v[242:243], off")
        else:
            A("v_lshl_add_u32 v240, v240, 7, s98")
            V.issue("global_load_dword v241, v240, s[96:97]")
    FILL = opt("fill", 10)
    kst = [None]
    KW = opt("kw", 2)
    CHK = opt("chk", 13)
    KFS = opt("kfs", 12)
    KDS = opt("kds", 11)
    UWS = opt("uws", 14)
    WEND = min(KFS, KDS, 12)
    CM = opt("cm", 6)
    assert CHK < UWS <= 15 and opt("lates", 14) <= UWS
    nU = [0]; cdone = [0]
    NC0 = opt("nc0", 2)
    A(f"v_mov_b32 v6, {LFLAG:#x}")
    A("v_mov_b32 v7, 0")
    for o in (4, 8, 12, 16, 20) + ((24, 28, 32, 36) if "pz" in OPT else ()): A(f"ds_write_b32 v6, v7 offset:{o}")
    ST()
    A("s_waitcnt lgkmcnt(0)")
    V.wait("clr")
    ST()
    if "fine0" in OPT: STH()
    A("s_barrier")
    issue(2)
    if "fine0" in OPT: STH()
    for t, tag in gl: V.issue(t, tag)
    for s in range(N1):
        V.wait(("S", min(s+1, N1-1)))
        if kst[0] is not None and s == min(kst[0] + KW, 15): V.wait("kvt"); V.wait("g")
        if "fine1" in OPT: STH()
        A("s_barrier")
        if kst[0] is not None and s == min(kst[0] + KW, 15):
            A("s_cmp_lg_u32 s3, 0")
            A("s_cbranch_scc1 h_kflag")
            A("v_mov_b32 v6, 1")
            A("buffer_store_dword v6, v30, s[92:95], 0 offen sc1")
            A("h_kflag:")
            print("k flag after barrier", s+1)
        blocked[0] = False
        cur[0] = s
        FM = opt("fmode", 0)
        fl = opt("fill0", FILL) if s < opt("fill0n", 0) else FILL
        if s+3 < N1 and FM == 0: issue(s+3, fl if s >= PREP0 else 0)
        elif s+3 < N1 and FM == 1:
            issue(s+3)
            if s >= PREP0: do_work(8*FILL)
        if s == PL - 100: pass
        if s == PL and PL >= 0: kvdma()
        if s == CM: ctouch()
        if KVL and s == opt("cls", 6):
            A("v_lshlrev_b32 v246, 2, v1")
            V.issue(f"global_load_dword v247, v246, {sp('dbg')} sc1", "cls")
        if kst[0] is None and "kvt" in V.tags and "g" in V.tags: kst[0] = s
        if s == WEND:
            do_work(10000)
            assert wpos[0] == len(work), (wpos[0], len(work))
        if s == KFS:
            V.issue("buffer_load_dword v34, v33, s[76:79], 0 offen sc1")
            V.issue("buffer_load_dword v35, v32, s[92:95], 0 offen sc1", "kf")
            ST()
        if s == KDS and KDS < CHK:
            V.wait("g")
            A("s_add_u32 m0, s13, 32")
            for i in range(4): V.issue(f"buffer_load_dwordx4 v25, s[64:67], 0 offen offset:{i*1024}{NTP} lds")
            A("s_add_u32 m0, s13, 4192")
            for i in range(4): V.issue(f"buffer_load_dwordx4 v36, s[64:67], 0 offen offset:{i*1024}{NTP} lds", "K")
        if s == 13:
            srd(A, 56, "Cre", 2 << 20)
            srd(A, 60, "Cim", 2 << 20)
            A("s_lshl_b32 s10, s3, 11")
            A(f"s_add_u32 s10, s10, {CRING:#x}")
            A("s_lshr_b32 s90, s5, 3")
            A("s_xor_b32 s91, s90, 1")
            A("s_lshl_b32 s91, s91, 20")
            A("s_lshl_b32 s11, s90, 10")
            A("s_add_u32 s91, s91, s11")
            A("s_mul_i32 s90, s90, 0x100400")
            A("v_mov_b32 v56, 0")
            A("v_mov_b32 v57, 0")
            A("v_lshlrev_b32 v38, 3, v1")
            A("v_add_u32 v38, s82, v38")
            A("ds_write_b64 v38, v[56:57] offset:4096")
            ST()
        if s == CHK:
            V.wait("kf")
            A("s_mov_b32 s83, 0")
            A("v_and_b32 v34, 15, v34")
            A("v_cmp_ne_u32 vcc, 15, v34")
            A("v_cmp_ne_u32 s[84:85], 1, v35")
            A("s_or_b64 vcc, vcc, s[84:85]")
            A("s_cbranch_scc1 h_nou")
            A("s_mov_b32 s83, 1")
            uloads()
            A("h_nou:")
            nU[0] = V.n
        if s == KDS and KDS >= CHK:
            V.wait("g")
            A("s_add_u32 m0, s13, 32")
            for i in range(4): V.issue(f"buffer_load_dwordx4 v25, s[64:67], 0 offen offset:{i*1024}{NTP} lds")
            A("s_add_u32 m0, s13, 4192")
            for i in range(4): V.issue(f"buffer_load_dwordx4 v36, s[64:67], 0 offen offset:{i*1024}{NTP} lds", "K")
        if s == opt("lates", 14): setup_late(A)
        if s == 15:
            for z in range(NC0): cissue(z)
            cdone[0] = NC0
        if s == UWS:
            A("s_cmp_lg_u32 s83, 1")
            A("s_cbranch_scc1 h_nouw")
            A(f"s_waitcnt vmcnt({V.n - nU[0]})")
            for i in range(4): A(f"ds_write_b128 v23, {vr(UL+4*i,4)} offset:{1024*i}")
            A("h_nouw:")
    ST()
    if "hprio1" in OPT: A("s_setprio 0")
    A("s_cmp_lg_u32 s83, 0")
    A("s_cbranch_scc1 h_haveu")
    spin_all(A, "h_init", 34, "buffer_load_dword v34, v33, s[76:79], 0 offen sc1", "15", pre="v_and_b32 v34, 15, v34")
    spin_all(A, "h_kf", 35, "buffer_load_dword v35, v32, s[92:95], 0 offen sc1")
    uloads()
    A("s_waitcnt vmcnt(0)")
    for i in range(4): A(f"ds_write_b128 v23, {vr(UL+4*i,4)} offset:{1024*i}")
    A("h_haveu:")
    V.done = max(V.done, nU[0])
    V.wait("K")
    if "lowp" in OPT: A("s_setprio 1")
    lds_inc(A, 60, 61, 8)
    for i in range(4): A(f"s_mov_b32 s{84+i}, s{68+i}")
    srd(A, 68, "ws", 4 << 20, WS_KVT)
    A("s_waitcnt lgkmcnt(0)")
    ST()
    L = LQ(A)
    ops = []
    def reads(r):
        R = []
        s = r & 1
        for i in range(8):
            R.append((f"ds_read_b128 {vr(BF+s*32+i*4,4)}, v20 offset:{3584-512*i+64*r}", ("B", r, i)))
            o = 128*(i & 1) + 16*r
            d = AFR + s*32 + i*4
            R.append((f"ds_read2_b32 {vr(d,2)}, v{16+(i>>1)} offset0:{o} offset1:{o+1}", None))
            R.append((f"ds_read2_b32 {vr(d+2,2)}, v{16+(i>>1)} offset0:{o+2} offset1:{o+3}", ("A", r, i)))
        return R
    def first_order(R):
        return R[1:3] + [R[3*i] for i in range(8)] + [x for i in range(1, 8) for x in R[3*i+1:3*i+3]]
    KVT = 40
    for n in range(8): ops.append(("rd", f"ds_read_b64 {vr(KVT+2*n,2)}, v21 offset:{3584-512*n}", ("KV", n)))
    for t, tag in first_order(reads(0)): ops.append(("rd", t, tag))
    fill = []
    fill.append(("s_mov_b32 s12, 0xffff0000", None)); fill.append(("v_mov_b32 v26, s81", None))
    for n in range(8):
        k = KD + 4*n
        c = [f"v_and_b32 v{k}, s12, v{KVT+2*n+1}", f"v_lshlrev_b32 v{k+1}, 16, v{KVT+2*n+1}", f"v_and_b32 v{k+2}, s12, v{KVT+2*n}", f"v_lshlrev_b32 v{k+3}, 16, v{KVT+2*n}"]
        c += [f"v_mul_f32 v{k+i}, v{k+i}, v26" for i in range(4)]
        c += [f"v_cvt_pk_bf16_f32 v56, v{k}, v{k+1}", f"v_cvt_pk_bf16_f32 v57, v{k+2}, v{k+3}",
              f"v_lshlrev_b32 v{k}, 16, v56", f"v_and_b32 v{k+1}, s12, v56", f"v_lshlrev_b32 v{k+2}, 16, v57", f"v_and_b32 v{k+3}, s12, v57"]
        for i, t in enumerate(c): fill.append((t, ("KV", n) if i == 0 else None))
    YD = 40
    def post(n):
        y = ACC + 4*n; k = KD + 4*n
        d = YD + (n >> 1)*4 + (n & 1)*2
        c = [f"v_cvt_pk_bf16_f32 v56, v{y}, v{y+1}", f"v_cvt_pk_bf16_f32 v57, v{y+2}, v{y+3}",
             f"v_lshlrev_b32 v{y}, 16, v56", f"v_and_b32 v{y+1}, s12, v56", f"v_lshlrev_b32 v{y+2}, 16, v57", f"v_and_b32 v{y+3}, s12, v57"]
        c += [f"v_add_f32 v{k+i}, v{k+i}, v{y+i}" for i in range(4)]
        c += [f"v_cvt_pk_bf16_f32 v{d}, v{k}, v{k+1}", f"v_cvt_pk_bf16_f32 v{d+1}, v{k+2}, v{k+3}"]
        if n & 1:
            d = YD + (n >> 1)*4
            c += [f"v_permlane16_swap_b32 v{d}, v{d+2}", f"v_permlane16_swap_b32 v{d+1}, v{d+3}"]
            if "yinl" in OPT: c += [f"YST{n >> 1}"]
        return c
    ystores = [f"buffer_store_dwordx4 {vr(YD+4*k,4)}, v22, s[84:87], 0 offen offset:{k*1024} sc1" for k in range(4)]
    LATEC = opt("latec", 170)
    CFM = opt("cfm", 80)
    FPM = opt("fpm", 2)
    nmf = 0
    postq = []
    for r in range(8):
        s = r & 1
        nxt = first_order(reads(r+1)) if r < 7 else []
        cnt = 0
        for q in range(8):
            for n in range(q, 8):
                c = vr(ACC+4*n, 4)
                ops.append(("mf", f"v_mfma_f32_16x16x32_bf16 {c}, {vr(AFR+s*32+4*q,4)}, {vr(BF+s*32+4*(n-q),4)}, {'0' if (r == 0 and q == 0) else c}",
                            [("A", r, q), ("B", r, n-q)]))
                nmf += 1; cnt += 1
                if nxt and cnt >= 2:
                    t, tag = nxt.pop(0); ops.append(("rd", t, tag))
                elif r < 7:
                    for z in range(FPM):
                        if fill: ops.append(("fill",) + fill.pop(0))
                if "pz" in OPT and opt("pz0", 90) <= nmf <= opt("pz1", 250) and (nmf - opt("pz0", 90)) % opt("pzs", 12) == 0:
                    ops.append(("pzr", nmf))
                if "pz" in OPT and opt("pz0", 90) <= nmf - 6 <= opt("pz1", 250) and (nmf - 6 - opt("pz0", 90)) % opt("pzs", 12) == 0:
                    ops.append(("pzc", nmf - 6))
                if nmf == LATEC: ops.append(("latec",))
                if nmf == CFM: ops.append(("cf",))
                if nmf == opt("cf2m", 240) and FBAR > 1: ops.append(("cf2",))
                if r == 7:
                    if n == q: postq += [(nmf + 3, t) for t in post(n)]
                    for z in range(opt("ppm", 3)):
                        if postq and postq[0][0] <= nmf and q < 7: ops.append(("fill", postq.pop(0)[1], None))
        assert not nxt
    assert not fill and CFM < LATEC
    for _, t in postq: ops.append(("fill", t, None))
    pzslow = []
    if "pz" in OPT:
        A("s_lshl_b32 s8, s3, 2")
        A(f"s_add_u32 s8, s8, {LFLAG:#x}")
        A("v_mov_b32 v62, s8")
    AB = int(OPT.get("ablc", 0))
    for op in ops:
        if AB & 1 and op[0] in ("rd", "mf", "fill"): continue
        if op[0] == "rd": L.issue(op[1], op[2])
        elif op[0] == "mf":
            for t in op[2]: pass
            k = max(op[2], key=lambda t: L.tags[t])
            L.wait(k)
            A(op[1])
        elif op[0] == "fill":
            if op[2] is not None: L.wait(op[2])
            if op[1].startswith("YST"): V.issue(ystores[int(op[1][3:])], "y2")
            else: A(op[1])
        elif op[0] == "pzr": L.issue("ds_read_b32 v63, v62 offset:24", ("Z", op[1]))
        elif op[0] == "pzc":
            L.wait(("Z", op[1]))
            A("v_readfirstlane_b32 s83, v63")
            A("s_cmp_lg_u32 s83, 0")
            A(f"s_cbranch_scc1 h_pz{op[1]}_s")
            A(f"h_pz{op[1]}:")
            pzslow.append(op[1])
        elif op[0] == "latec":
            while cdone[0] < NS2: cissue(cdone[0]); cdone[0] += 1
        elif op[0] == "cf2":
            V.wait(("C", 3))
            lds_inc(A, 60, 61, 20); L.n += 1
        elif op[0] == "cf":
            while cdone[0] < 2: cissue(cdone[0]); cdone[0] += 1
            V.wait(("C", 1))
            lds_inc(A, 60, 61, 16); L.n += 1
    ST()
    if "lowp" in OPT: A("s_setprio 0")
    YST = opt("yst", 0)
    if YST == 0 and "yinl" not in OPT:
        for t in ystores:
            if AB & 2: V.tags["y2"] = V.n
            else: V.issue(t, "y2")
    A("v_lshrrev_b32 v8, 4, v1")
    A("s_lshl_b32 s8, s3, 4")
    A("v_add_u32 v8, s8, v8")
    A("v_and_b32 v11, 15, v1")
    A("s_lshl_b32 s9, s5, 11")
    A(f"s_add_u32 s9, s9, {YF_OFF:#x}")
    A("v_lshl_add_u32 v10, v11, 7, s9")
    A("v_lshlrev_b32 v11, 4, v11")
    A("v_mul_u32_u24 v9, 272, v8")
    A("v_add_u32 v9, v9, v11")
    A("s_lshl_b32 s8, s5, 6")
    A("v_add_u32 v8, s8, v8")
    A("v_lshl_add_u32 v8, v8, 12, v11")
    A("s_lshl_b32 s8, s4, 8")
    A("v_add_u32 v8, s8, v8")
    ST()
    YR = 116
    YFL_LD = "buffer_load_dword v19, v10, s[92:95], 0 offen sc1"
    YFL, GYF, GYL, GYW = opt("yfl", 5), opt("gyf", 8), opt("gyl", 10), opt("gyw", 12)
    for st in range(FBAR, N2-1):
        V.wait(("C", st+1))
        if "fineh" in OPT: STH()
        A("s_barrier")
        if st == FBAR:
            for z in range(NS2, FBAR + NS2): cissue(z)
        elif st + NS2 - 1 < N2: cissue(st + NS2 - 1)
        if "abl" in OPT and st >= 2 and st < 13 and int(OPT["abl"]) & 1:
            continue_ = True
            for tg in ("y2", "xt", "yf", "eps"): V.tags.setdefault(tg, 0)
            continue
        if YST and st == YST:
            for t in ystores: V.issue(t, "y2")
        if st == YFL:
            V.wait("y2")
            A("s_mov_b64 exec, 1")
            A("ds_add_rtn_u32 v62, v60, v61 offset:4")
            A("s_mov_b64 exec, -1")
            A("s_waitcnt lgkmcnt(0)")
            A("v_readfirstlane_b32 s83, v62")
            A("s_cmp_lg_u32 s83, 3")
            A("s_cbranch_scc1 h_noy")
            A("buffer_store_dword v61, v31, s[92:95], 0 offen sc1")
            A("h_noy:")
        if st == GYF: V.issue(YFL_LD, "yf")
        if st == GYL:
            V.wait("yf")
            spin_all(A, "h_yf", 19, YFL_LD)
            for i in range(4):
                A(f"s_mov_b32 s8, {i*16384}")
                V.issue(f"buffer_load_dwordx4 {vr(YR+i*4,4)}, v8, s[68:71], s8 offen sc1", "eps")
        if st == GYW:
            V.wait("eps")
            for i in range(4): A(f"ds_write_b128 v9, {vr(YR+i*4,4)} offset:{i*4*272}")
            A("s_waitcnt lgkmcnt(0)")
    assert YST < YFL < GYF < GYL < GYW <= N2 - 3
    STH.flush()
    ST.flush()
    A("s_endpgm")
    for k in pzslow:
        A(f"h_pz{k}_s:")
        A(f"s_mov_b32 s89, {SPIN*4}")
        A(f"h_pz{k}_l:")
        A("s_sleep 1")
        A("ds_read_b32 v63, v62 offset:24")
        A("s_waitcnt lgkmcnt(0)")
        A("v_readfirstlane_b32 s83, v63")
        A("s_cmp_eq_u32 s83, 0")
        A(f"s_cbranch_scc1 h_pz{k}")
        A("s_sub_u32 s89, s89, 1")
        A(f"s_cbranch_scc1 h_pz{k}")
        A(f"s_branch h_pz{k}_l")

def build():
    s = header_comments()
    s += "; generated by tools/gen9.py (fused single kernel, split-K GEMM2; gen8 h layout)\n"
    s += "; @launch grid=(256,1,1) block=(512,1,1) lds=163840\n"
    s += '.amdgcn_target "amdgcn-amd-amdhsa--gfx950"\n.text\n'
    A = Asm()
    A.raw(f".globl {KN}\n.p2align 8\n.type {KN},@function")
    gen_kernel(A)
    s += A.render()
    s += descriptor(KN, 256, 102)
    import subprocess, tempfile, re
    with tempfile.TemporaryDirectory() as td:
        open(td + "/a.s", "w").write(s.replace("CODE_LAST", "0x12345"))
        subprocess.run(["clang", "-x", "assembler", "-target", "amdgcn-amd-amdhsa", "-mcpu=gfx950", "-c", td + "/a.s", "-o", td + "/a.o"], check=True)
        o = subprocess.run(["llvm-objdump", "-h", td + "/a.o"], capture_output=True, text=True).stdout
    size = int(re.search(r"\.text\s+([0-9a-f]+)", o).group(1), 16)
    if "al8" in OPT:
        pat = {"1": ("v_mfma_f32_32x32",), "2": ("v_mfma",), "3": ("v_mfma", "ds_read_b128", "ds_read_b64_tr", "buffer_load_dwordx4")}[str(OPT["al8"])]
        with tempfile.TemporaryDirectory() as td:
            open(td + "/a.s", "w").write(s.replace("CODE_LAST", "0x12345"))
            subprocess.run(["clang", "-x", "assembler", "-target", "amdgcn-amd-amdhsa", "-mcpu=gfx950", "-c", td + "/a.s", "-o", td + "/a.o"], check=True)
            d = subprocess.run(["llvm-objdump", "-d", td + "/a.o"], capture_output=True, text=True).stdout
        sizes = [4 * len(m.group(1).split()) for m in re.finditer(r"// [0-9A-F]+: ([0-9A-F ]+)$", d, re.M)]
        out = []; addr = 0; k = 0; incode = False; nins = 0
        for ln in s.split("\n"):
            st = ln.strip()
            if st == f"{KN}:": incode = True
            if st.startswith(".section"): incode = False
            if incode and ln.startswith("    ") and st and not st.startswith(";"):
                sz = sizes[k]; k += 1
                if sz == 8 and addr % 8 == 4 and st.startswith(pat):
                    out.append("    s_nop 0"); addr += 4; nins += 1
                addr += sz
            out.append(ln)
        assert k == len(sizes), (k, len(sizes))
        s = "\n".join(out); size = addr
        print("alignment nops", nins)
    if "shift" in OPT:
        s = s.replace(f"{KN}:\n", f"{KN}:\n" + "    s_nop 0\n" * int(OPT["shift"]), 1); size += 4 * int(OPT["shift"])
    print("code bytes", size)
    assert size <= 65536
    return s.replace("CODE_LAST", hex(size - 4))

if __name__ == "__main__":
    out = sys.argv[1] if len(sys.argv) > 1 and not sys.argv[1].startswith("--") else os.path.join(os.path.dirname(os.path.abspath(__file__)), "..", NAME + ".s")
    open(out, "w").write(build())
    print("wrote", out)
```

```python
import sys, os
sys.path.insert(0, os.path.dirname(os.path.abspath(__file__)))
from asmlib import Asm
from gen import (NAME, P, sp, vr, sr, load_kernargs, srd, pk, cmul, tile_ids, Stamper, OPT, header_comments, descriptor)
import gen

KN = NAME + "_kernel"
WS_H    = 0
WS_KVT  = 8 << 20
WS_G    = 16 << 20
WS_EBOX = 17 << 20
WS_FLG  = 18 << 20
HF_OFF  = 0
KF_OFF  = 128 << 10
YF_OFF  = 160 << 10
PF_OFF  = 192 << 10
FLG_SZ  = 320 << 10
WS_PART = 24 << 20
N1 = 16
N2 = 16
NS2 = 4
PD = 4
CRING = 32768
KREG = 98304
UREG = KREG + 4*8320
LFLAG = UREG + 4*4608
SPIN = int(OPT.get("spin", 1 << 16))
SLEEP = int(OPT.get("sleep", 4))
def opt(k, d): return int(OPT.get(k, d))

class VQ:
    def __init__(self, A): self.A = A; self.n = 0; self.tags = {}; self.done = 0
    def issue(self, text, tag=None):
        self.A(text); self.n += 1
        if tag is not None: self.tags[tag] = self.n
    def wait(self, tag):
        k = self.tags[tag]
        if k <= self.done: return
        cnt = min(63, self.n - k)
        self.A(f"s_waitcnt vmcnt({cnt})"); self.done = self.n - cnt
    def drained(self): self.done = self.n

class LQ:
    def __init__(self, A): self.A = A; self.n = 0; self.tags = {}; self.done = 0
    def issue(self, text, tag=None):
        self.A(text); self.n += 1
        if tag is not None: self.tags[tag] = self.n
    def wait(self, tag):
        k = self.tags[tag]
        if k > self.done:
            self.A(f"s_waitcnt lgkmcnt({min(15, self.n - k)})"); self.done = max(k, self.n - 15)
    def drain(self):
        self.A("s_waitcnt lgkmcnt(0)"); self.done = self.n

def spin_all(A, name, vreg, reload, cmpval="1", sctr=89, pre=None):
    A(f"s_mov_b32 s{sctr}, {SPIN}")
    A(f"{name}_chk:")
    if pre: A(pre)
    A(f"v_cmp_ne_u32 vcc, {cmpval}, v{vreg}")
    A("s_cmp_eq_u64 vcc, 0")
    A(f"s_cbranch_scc1 {name}_ok")
    A(f"s_sub_u32 s{sctr}, s{sctr}, 1")
    A(f"s_cbranch_scc1 {name}_ok")
    A(f"s_sleep {SLEEP}")
    A(reload)
    A("s_waitcnt vmcnt(0)")
    A(f"s_branch {name}_chk")
    A(f"{name}_ok:")

def lds_spin(A, name, vaddr, off, vtmp, target, stmp=8, sctr=89):
    A(f"s_mov_b32 s{sctr}, {SPIN*4}")
    A(f"{name}:")
    A(f"ds_read_b32 v{vtmp}, v{vaddr} offset:{off}")
    A("s_waitcnt lgkmcnt(0)")
    A(f"v_readfirstlane_b32 s{stmp}, v{vtmp}")
    A(f"s_cmp_ge_u32 s{stmp}, {target}")
    A(f"s_cbranch_scc1 {name}_ok")
    A(f"s_sub_u32 s{sctr}, s{sctr}, 1")
    A(f"s_cbranch_scc0 {name}")
    A(f"{name}_ok:")

def lds_inc(A, vaddr, vone, off):
    A("s_mov_b64 exec, 1")
    A(f"ds_add_u32 v{vaddr}, v{vone} offset:{off}")
    A("s_mov_b64 exec, -1")

def zip_chains(A, chains):
    chains = [[x for t in c for x in t.split("\n")] for c in chains]
    for i in range(max(len(c) for c in chains)):
        for c in chains:
            if i < len(c): A(c[i])

def local_check(A, vbits, vtmp, sdst_pair, stmp):
    A(f"s_getreg_b32 s{stmp}, hwreg(HW_REG_XCC_ID, 0, 4)")
    A(f"s_lshl_b32 s{stmp}, 0x100, s{stmp}")
    A(f"s_or_b32 s{stmp}, s{stmp}, 15")
    A(f"v_and_b32 v{vtmp}, 7, v1")
    A(f"v_cmp_eq_u32 s[{sdst_pair}:{sdst_pair+1}], s54, v{vtmp}")
    A(f"v_cmp_ne_u32 vcc, s{stmp}, v{vbits}")
    A(f"s_and_b64 vcc, vcc, s[{sdst_pair}:{sdst_pair+1}]")

SNT = opt("snt", 1)
PB = opt("pb", 1)
NPQ = 4 if PB else 8
FBAR = opt("fb", 2)
OS = str(OPT.get("os", "_nt")).replace("_", " ")
ORD = opt("ord", 1)
def tile_of(A, i, dst):
    if i == 0: A(f"s_mov_b32 s{dst}, s15")
    elif ORD:
        A(f"s_cmp_le_u32 s15, {i-1}")
        A(f"s_cselect_b32 s{dst}, {i}, {i-1}")
    else:
        A(f"s_add_u32 s{dst}, s15, {i}")
        A(f"s_and_b32 s{dst}, s{dst}, 7")

def gen_kernel(A):
    A(f"{KN}:")
    A("s_cmp_ge_u32 s2, 256")
    A("s_cbranch_scc1 L_end")
    load_kernargs(A)
    tile_ids(A)
    A("v_and_b32 v1, 63, v0")
    A("v_lshrrev_b32 v2, 6, v0")
    A("s_and_b32 s15, s5, 7")
    A("v_readfirstlane_b32 s3, v2")
    A("s_cmp_ge_u32 s3, 4")
    A("s_cbranch_scc0 L_consumer")
    helper(A)
    A("L_consumer:")
    consumer(A)
    A("L_end:")
    A("s_endpgm")


def consumer(A):
    ACC = 64
    FA, FB = 128, 144
    AD, BD = 160, 168
    LAM, C2, MU, MU2, MU4, MU8 = 176, 178, 180, 182, 184, 186
    EL = 192
    UR2 = 224
    ST = Stamper(A, 0, 63)
    ST()
    A(f"s_setprio {opt('prio', 2)}")
    A("s_and_b32 s6, s3, 1")
    A("s_lshr_b32 s7, s3, 1")
    A("v_and_b32 v4, 31, v1")
    A("s_lshl_b32 s8, s5, 6")
    A("s_lshl_b32 s9, s7, 5")
    A("s_add_u32 s8, s8, s9")
    A("v_add_u32 v3, s8, v4")
    A("v_lshlrev_b32 v5, 1, v3")
    A("v_lshrrev_b32 v6, 5, v1")
    A("s_lshl_b32 s10, s4, 1")
    A("s_add_u32 s10, s10, s6")
    if "nocode" not in OPT:
        A("s_getpc_b64 s[12:13]")
        A("c_pc:")
        A(f"s_sub_u32 s12, s12, c_pc-{KN}")
        A("s_subb_u32 s13, s13, 0")
        if opt("cpf", 1) == 0:
            A("s_lshl_b32 s11, s3, 14")
            A("v_lshl_add_u32 v24, v1, 7, s11")
            A("v_min_u32 v24, CODE_LAST, v24")
            A("global_load_dword v25, v24, s[12:13]")
            A("v_add_u32 v24, 0x2000, v24")
            A("v_min_u32 v24, CODE_LAST, v24")
            A("global_load_dword v26, v24, s[12:13]")
        else:
            A("s_lshl_b32 s11, s55, 2")
            A("s_add_u32 s11, s11, s3")
            A("s_lshl_b32 s11, s11, 9")
            A("v_and_b32 v24, 3, v1")
            A("v_lshl_add_u32 v24, v24, 7, s11")
            A("v_min_u32 v24, CODE_LAST, v24")
            A("global_load_dword v25, v24, s[12:13]")
    A("s_waitcnt lgkmcnt(0)")
    A(f"global_load_ushort v8, v5, {sp('Lre')}")
    A(f"global_load_ushort v9, v5, {sp('Lim')}")
    A(f"global_load_ushort v10, v5, {sp('logdt')}")
    srd(A, 56, "ws", 256 << 10, WS_EBOX)
    srd(A, 60, "ws", 8 << 20, WS_H)
    srd(A, 64, "dbg", 256)
    srd(A, 68, "ws", FLG_SZ, WS_FLG)
    A("s_lshl_b32 s11, s10, 13")
    A("v_lshl_add_u32 v7, v3, 3, s11")
    A("v_mov_b32 v12, 0")
    A("v_mov_b32 v13, 0")
    A("buffer_store_dwordx2 v[12:13], v7, s[56:59], 0 offen sc1")
    A("s_lshl_b32 s11, s10, 4")
    A("s_add_u32 s11, s11, s5")
    A("s_lshl_b32 s11, s11, 1")
    A("s_add_u32 s11, s11, s7")
    A("s_lshl_b32 s11, s11, 7")
    A("v_mov_b32 v60, s11")
    A("buffer_store_dword v12, v60, s[68:71], 0 offen sc1")
    A("s_lshl_b32 s72, s4, 4")
    A("s_add_u32 s72, s72, s5")
    A("s_lshl_b32 s72, s72, 2")
    A("s_add_u32 s72, s72, s3")
    A("s_lshl_b32 s72, s72, 7")
    A(f"s_add_u32 s11, s72, {PF_OFF:#x}")
    A("v_mov_b32 v30, s11")
    A("buffer_store_dword v12, v30, s[68:71], 0 offen sc1")
    A("v_mov_b32 v23, 1")
    A("v_bfe_u32 v11, v1, 1, 3")
    A("v_xor_b32 v11, v11, v6")
    A("s_lshl_b32 s11, s6, 13")
    A("v_lshl_add_u32 v14, v4, 7, s11")
    A("s_lshl_b32 s11, s7, 12")
    A("s_add_u32 s11, s11, 16384")
    A("v_lshl_add_u32 v15, v4, 7, s11")
    for ks in range(4):
        A(f"v_xor_b32 v16, {2*ks}, v11")
        A(f"v_lshl_add_u32 v{AD+ks}, v16, 4, v14")
        A(f"v_lshl_add_u32 v{BD+ks}, v16, 4, v15")
        A(f"v_add_u32 v{AD+4+ks}, 0x10000, v{AD+ks}")
        A(f"v_add_u32 v{BD+4+ks}, 0x10000, v{BD+ks}")
    A("v_lshlrev_b32 v21, 2, v1")
    A("s_waitcnt vmcnt(0)")
    A("v_lshlrev_b32 v8, 16, v8")
    A("v_lshlrev_b32 v9, 16, v9")
    A("v_lshlrev_b32 v10, 16, v10")
    A("s_mov_b32 s12, 0x3fb8aa3b")
    A("v_mul_f32 v10, s12, v10")
    A("v_exp_f32 v10, v10")
    A("v_cvt_pk_bf16_f32 v10, v10, v10")
    A("v_lshlrev_b32 v10, 16, v10")
    A("v_mul_f32 v16, v10, v8")
    A("v_mul_f32 v17, v10, v9")
    A("v_mul_f32 v16, s12, v16")
    A("v_exp_f32 v16, v16")
    A("v_mul_f32 v17, 0.15915494, v17")
    A("v_rndne_f32 v18, v17")
    A("v_sub_f32 v17, v17, v18")
    A("v_cos_f32 v18, v17")
    A("v_sin_f32 v19, v17")
    A(f"v_mul_f32 v{LAM}, v16, v18")
    A(f"v_mul_f32 v{LAM+1}, v16, v19")
    A(f"v_add_f32 v16, -1.0, v{LAM}")
    A("v_mul_f32 v17, v8, v8")
    A("v_fma_f32 v17, v9, v9, v17")
    A("v_rcp_f32 v17, v17")
    A("v_mul_f32 v18, v16, v8")
    A(f"v_fma_f32 v18, v{LAM+1}, v9, v18")
    A(f"v_mul_f32 v19, v{LAM+1}, v8")
    A("v_fma_f32 v19, -v16, v9, v19")
    A("v_add_f32 v17, v17, v17")
    A(f"v_mul_f32 v{C2}, v18, v17")
    A(f"v_mul_f32 v{C2+1}, v19, v17")
    cmul(A, 16, LAM, LAM); cmul(A, 18, 16, 16); cmul(A, 16, 18, 18)
    cmul(A, MU, 16, 16); cmul(A, MU2, MU, MU); cmul(A, MU4, MU2, MU2); cmul(A, MU8, MU4, MU4)
    cmul(A, 48, C2, MU2)
    A("v_cmp_lt_u32 vcc, 31, v1")
    A(f"v_cndmask_b32 v48, v{C2}, v48, vcc")
    A(f"v_cndmask_b32 v49, v{C2+1}, v49, vcc")
    A("v_lshlrev_b32 v50, 13, v6")
    A("v_sub_u32 v50, v7, v50")
    A("s_add_u32 s11, s10, 1")
    A("v_sub_u32 v51, s11, v6")
    A("v_lshrrev_b32 v51, 1, v51")
    A("s_lshl_b32 s11, s4, 2")
    A("s_add_u32 s11, s11, s3")
    A("s_lshl_b32 s11, s11, 5")
    A("v_lshrrev_b32 v52, 3, v1")
    A("v_add_u32 v52, s11, v52")
    A("v_lshlrev_b32 v52, 11, v52")
    A("v_and_b32 v16, 7, v1")
    A("v_lshl_add_u32 v52, v16, 4, v52")
    A("s_lshl_b32 s11, s5, 7")
    A("v_add_u32 v52, s11, v52")
    A("s_lshl_b32 s11, s3, 13")
    A("v_lshlrev_b32 v53, 11, v6")
    A("v_lshl_add_u32 v53, v4, 1, v53")
    A("v_add_u32 v53, s11, v53")
    A("s_lshl_b32 s11, s5, 6")
    A("v_add_u32 v54, s11, v4")
    A("v_lshlrev_b32 v54, 1, v54")
    srd(A, 76, "x", 4 << 20)
    srd(A, 92, "ws", 8 << 20, WS_PART)
    A("s_xor_b32 s73, s72, 4096")
    A("s_lshl_b32 s74, s73, 6")
    A("s_add_u32 s75, s74, 4096")
    A("v_lshlrev_b32 v59, 4, v1")
    if "tlb" in OPT:
        A("s_lshl_b32 s11, s4, 19")
        A("v_mov_b32 v16, s11")
        A("buffer_load_dword v55, v16, s[60:63], 0 offen sc1")
        srd(A, 84, "out", 8 << 20)
        A("buffer_load_dword v56, v16, s[84:87], 0 offen sc1")
        A("v_mov_b32 v16, s74")
        A("buffer_load_dword v57, v16, s[92:95], 0 offen sc1")
        A("s_lshl_b32 s11, s72, 6")
        A("v_mov_b32 v16, s11")
        A("buffer_load_dword v58, v16, s[92:95], 0 offen sc1")

    def rd(stage, ks, buf, which):
        slot = stage % 3
        hi = 4 if slot >= 2 else 0
        so = (slot & 1) * 32768
        if which < 2:
            return f"ds_read_b128 {vr(FA+buf*8+which*4,4)}, v{AD+hi+ks} offset:{so + which*4096}"
        ri = which - 2
        return f"ds_read_b128 {vr(FB+buf*8+ri*4,4)}, v{BD+hi+ks} offset:{so + ri*8192}"
    def mf(buf, mt, ri, first):
        acc = ACC + ri*32 + mt*16
        return f"v_mfma_f32_32x32x16_bf16 {vr(acc,16)}, {vr(FA+buf*8+mt*4,4)}, {vr(FB+buf*8+ri*4,4)}, {'0' if first else vr(acc,16)}"
    RD_ORDER = [0, 2, 1, 3]
    MF_ORDER = [(0,0), (1,0), (1,1), (0,1)]
    ST()
    A("s_barrier")
    ST()
    A("s_cmp_lg_u32 s3, 0")
    A("s_cbranch_scc1 c_noflag")
    A("s_lshr_b32 s11, s2, 6")
    A("s_lshl_b32 s11, 1, s11")
    A("s_getreg_b32 s12, hwreg(HW_REG_XCC_ID, 0, 4)")
    A("s_lshl_b32 s12, 0x100, s12")
    A("s_or_b32 s11, s11, s12")
    A("v_mov_b32 v16, s11")
    A("s_and_b32 s11, s2, 63")
    A("s_lshl_b32 s11, s11, 2")
    A("v_mov_b32 v17, s11")
    A("s_mov_b64 exec, 1")
    A("buffer_atomic_or v16, v17, s[64:67], 0 offen sc1")
    A("s_mov_b64 exec, -1")
    A("c_noflag:")
    for w in RD_ORDER: A(rd(0, 0, 0, w))
    for s in range(N1):
        for ks in range(4):
            buf = ks & 1
            last = (s == N1-1 and ks == 3)
            if ks == 3:
                A("s_waitcnt lgkmcnt(0)")
                A("s_barrier")
            ns, nks = (s, ks+1) if ks < 3 else (s+1, 0)
            for i in range(4):
                if ks < 3 and i < 3: A("s_waitcnt lgkmcnt(2)")
                A(mf(buf, *MF_ORDER[i], s == 0 and ks == 0))
                if not last: A(rd(ns, nks, buf ^ 1, RD_ORDER[i]))
            if (s in (3, 7, 11) if "fine1" not in OPT else s >= 3) and ks == 3: ST()
            if s == 12 and ks == 0:
                A("buffer_load_dword v20, v21, s[64:67], 0 offen sc1")
    ST()
    if "fine1" in OPT: ST.n = 40
    gen.SAFE_PK[0] = bool(opt("pk", 0) & 1)
    def UR(t): return ACC + (t >> 3)*16 + 2*(t & 7)
    def UI(t): return ACC + 32 + (t >> 3)*16 + 2*(t & 7)
    E = [(24, 26), (28, 30 - 30 + 44)]
    cr, ci = UR(0), UI(0)
    for t in range(1, 16):
        nr, ni = E[t & 1]
        A(pk("fma", nr, cr, LAM, UR(t), bsel=0))
        A(pk("fma", ni, ci, LAM, UI(t), bsel=0))
        A(pk("fma", nr, ci, LAM, nr, bsel=1, neg_b=True))
        A(pk("fma", ni, cr, LAM, ni, bsel=1))
        cr, ci = nr, ni
    A("v_mov_b32 v32, v28\nv_mov_b32 v33, v44\nv_mov_b32 v34, v29\nv_mov_b32 v35, v45")
    cmul(A, 36, MU, 32, add=34)
    A("v_mov_b32 v38, v36\nv_mov_b32 v39, v37\nv_mov_b32 v40, 0\nv_mov_b32 v41, 0")
    A("v_permlane32_swap_b32 v40, v38")
    A("v_permlane32_swap_b32 v41, v39")
    cmul(A, 42, MU2, 40, add=36)
    A("v_or_b32 v42, 1, v42")
    A("s_mov_b32 s12, 0")
    A("s_mov_b32 s13, -1")
    A("s_mov_b64 exec, s[12:13]")
    A("buffer_store_dwordx2 v[42:43], v7, s[56:59], 0 offen sc1")
    A("s_mov_b64 exec, -1")
    def scaling():
        for t in range(16):
            n = UR2 + 2*t
            A(pk("mul", n, UR(t), C2, bsel=0))
            A(pk("fma", n, UI(t), C2, n, bsel=1, neg_b=True))
            A(pk("mul", UI(t), UI(t), C2, bsel=0))
            A(pk("fma", UI(t), UR(t), C2, UI(t), bsel=1))
        cmul(A, 44, C2, 40)
        cmul(A, 46, C2, 32)
    if "lowp" in OPT: A("s_setprio 0")
    ST()
    A("s_lshl_b32 s9, s3, 13")
    for i in range(4):
        A(f"s_add_u32 m0, s9, {i*1024}")
        A(f"s_mov_b32 s8, {i*16384}")
        A("buffer_load_dwordx4 v52, s[76:79], s8 offen lds")
    for q in range(2):
        A(f"global_load_ushort v{9+q}, v54, {sp('Dskip')} offset:{q*64}")
    if SNT:
        for i in range(4): A(f"v_mov_b32 v{24+i}, -1")
        for i in range(NPQ): A(f"buffer_store_dwordx4 v[24:27], v59, s[92:95], s{74 if i < 4 else 75} offen offset:{(i & 3)*1024} sc1")
    if "pollfirst" not in OPT: scaling()
    for k in range(16):
        A(f"v_subrev_u32 v{128+k}, {(1+2*k)*8192:#x}, v50")
    ST()
    A(f"s_waitcnt vmcnt({7 + NPQ if SNT else 7})")
    spin_all(A, "c_init", 52, "buffer_load_dword v20, v21, s[64:67], 0 offen sc1", "15", pre="v_and_b32 v52, 15, v20")
    local_check(A, 20, 52, 12, 11)
    A("s_cselect_b32 s14, 0, 1")
    if "nolocal" in OPT: A("s_mov_b32 s14, 0")
    for k in range(16):
        A(f"buffer_load_dwordx2 {vr(EL+2*k,2)}, v{128+k}, s[56:59], 0 offen sc1")
    if "pollfirst" in OPT: scaling()
    XP = list(range(73, 89))
    XDP = [89, 90, 91, 92, 93, 94, 95, 54, 55, 56, 57, 58, 59, 61, 5, 12]
    A(f"s_waitcnt vmcnt({16 + NPQ if SNT else 16})")
    XT = [160 + i for i in range(16)] + [73 + i for i in range(16)]
    for nt in range(2):
        for r in range(16): A(f"ds_read_u16 v{XT[nt*16+r]}, v53 offset:{r*128+nt*64}")
    A("s_waitcnt lgkmcnt(0)")
    for m in range(8): A(f"v_lshl_or_b32 v{XP[8+m]}, v{XT[16+2*m+1]}, 16, v{XT[16+2*m]}" if False else f"v_lshl_or_b32 v{64+m}, v{XT[16+2*m+1]}, 16, v{XT[16+2*m]}")
    for m in range(8): A(f"v_lshl_or_b32 v{XP[m]}, v{XT[2*m+1]}, 16, v{XT[2*m]}")
    for m in range(8): A(f"v_mov_b32 v{XP[8+m]}, v{64+m}")
    BD2 = 32
    A("s_lshl_b32 s11, s3, 13")
    A("v_lshl_add_u32 v16, v6, 11, s11")
    A("v_lshl_add_u32 v16, v4, 6, v16")
    A("v_bfe_u32 v17, v1, 1, 2")
    for q in range(4):
        A(f"v_xor_b32 v18, {q}, v17")
        A(f"v_lshl_add_u32 v{64+q}, v18, 4, v16")
    A("v_mov_b32 v31, 1")
    A("v_bfe_u32 v16, v1, 2, 2")
    A("v_lshl_add_u32 v16, v6, 3, v16")
    A("v_and_b32 v24, 1, v1")
    A("v_bfe_u32 v18, v1, 4, 1")
    A("v_lshl_add_u32 v24, v24, 1, v18")
    A("v_bfe_u32 v18, v16, 1, 2")
    A("v_xor_b32 v24, v24, v18")
    A("v_lshlrev_b32 v24, 4, v24")
    A("v_lshl_add_u32 v24, v16, 6, v24")
    A("v_bfe_u32 v18, v1, 1, 1")
    A("v_lshl_add_u32 v24, v18, 3, v24")
    A("v_xor_b32 v25, 32, v24")
    A("v_add_u32 v25, 256, v25")
    A("v_add_u32 v68, s11, v24")
    A("v_add_u32 v69, s11, v25")
    A("s_lshl_b32 s11, s4, 7")
    A("s_lshl_b32 s12, s6, 6")
    A("s_add_u32 s11, s11, s12")
    A("s_and_b32 s12, s5, 7")
    A("s_lshl_b32 s12, s12, 2")
    A("s_add_u32 s11, s11, s12")
    A("s_add_u32 s11, s11, s7")
    A("s_lshl_b32 s11, s11, 12")
    A("s_lshr_b32 s13, s5, 3")
    A("s_lshl_b32 s13, s13, 11")
    A("s_add_u32 s11, s11, s13")
    A("v_lshl_add_u32 v72, v1, 4, s11")
    A(f"v_mov_b32 v20, {LFLAG:#x}")
    A("s_lshl_b32 s6, s4, 2")
    A("s_add_u32 s6, s6, s3")
    A("s_lshr_b32 s7, s3, 1")
    A("s_lshl_b32 s7, s7, 13")
    A("s_and_b32 s8, s3, 1")
    A("s_lshl_b32 s8, s8, 11")
    A("s_add_u32 s7, s7, s8")
    A("v_add_u32 v70, s7, v24")
    A("v_add_u32 v71, s7, v25")
    A("s_lshl_b32 s7, s6, 17")
    A("s_add_u32 s7, s7, s13")
    A("v_lshl_add_u32 v3, v1, 4, s7")
    A("v_add_u32 v2, 0x1000, v3")
    A(f"v_lshlrev_b32 v14, 7, v4")
    A(f"v_add_u32 v14, {CRING:#x}, v14")
    for ks in range(4):
        A(f"v_xor_b32 v16, {2*ks}, v11")
        A(f"v_lshl_add_u32 v{BD2+ks}, v16, 4, v14")
    A("s_lshr_b32 s7, s6, 1")
    A("s_lshl_b32 s7, s7, 12")
    A("s_add_u32 s7, s7, s13")
    A("v_bfe_u32 v16, v1, 1, 3")
    if ORD:
        A("v_subrev_u32 v14, 1, v16")
        A("v_cmp_le_u32 vcc, s15, v14")
        A("v_cndmask_b32 v14, v14, v16, vcc")
        A("v_mov_b32 v19, s15")
        A("v_cmp_eq_u32 vcc, 0, v16")
        A("v_cndmask_b32 v16, v14, v19, vcc")
    else:
        A("v_add_u32 v16, s15, v16")
        A("v_and_b32 v16, 7, v16")
    A("v_and_b32 v14, 1, v1")
    A("v_lshl_add_u32 v16, v16, 1, v14")
    A("v_lshl_add_u32 v22, v16, 7, s7")
    srd(A, 64, "ws", 8192, WS_G)
    srd(A, 76, "out", 8 << 20)
    for i in range(8):
        A(f"s_mov_b32 s{80+i}, {i*4096}")
    A("s_lshl_b32 s7, s6, 5")
    A("v_lshl_add_u32 v7, v6, 4, s7")
    A("s_lshl_b32 s8, s5, 6")
    A("v_add_u32 v8, s8, v4")
    A("v_lshlrev_b32 v26, 12, v7")
    A("v_lshl_add_u32 v26, v8, 2, v26")
    A("v_add_u32 v27, 0x8000, v26")
    A("v_lshlrev_b32 v7, 2, v7")
    A("v_mul_u32_u24 v21, 272, v4")
    A("v_lshl_add_u32 v21, v6, 5, v21")
    A("s_lshl_b32 s8, s3, 6")
    A("v_add_u32 v21, s8, v21")
    A(f"s_add_u32 s8, s73, {PF_OFF:#x}")
    A("v_mov_b32 v29, s8")
    A("v_lshlrev_b32 v28, 4, v1")
    A("v_mov_b32 v23, 1")
    A(f"s_mov_b32 s88, {SPIN}")
    A("c_poll:")
    A("s_waitcnt vmcnt(0)")
    A("v_mov_b32 v52, 0")
    for k in range(16):
        A(f"v_and_b32 v{144+k}, 1, v{EL+2*k}")
    for k in range(0, 16, 2):
        A(f"v_add3_u32 v52, v52, v{144+k}, v{145+k}")
    A("v_cmp_ne_u32 vcc, v52, v51")
    A("s_cmp_eq_u64 vcc, 0")
    A("s_cbranch_scc1 c_polled")
    A("s_sub_u32 s88, s88, 1")
    A("s_cbranch_scc1 c_polled")
    A(f"s_sleep {opt('psleep', SLEEP)}")
    for k in range(16):
        A(f"v_cmp_eq_u32 vcc, 0, v{144+k}")
        A("s_mov_b64 exec, vcc")
        A(f"buffer_load_dwordx2 {vr(EL+2*k,2)}, v{128+k}, s[56:59], 0 offen sc1")
        A("s_mov_b64 exec, -1")
    A("s_branch c_poll")
    A("c_polled:")
    if "pz" in OPT:
        A("s_lshl_b32 s8, s3, 2")
        A(f"s_add_u32 s8, s8, {LFLAG + 24:#x}")
        A("v_mov_b32 v16, s8")
        A("s_mov_b64 exec, 1")
        A("ds_write_b32 v16, v31")
        A("s_mov_b64 exec, -1")
    if "lowp" in OPT: A(f"s_setprio {opt('prio', 2)}")
    ST()
    g = EL + 30
    G = [52, 54]
    for k in range(14, -1, -1):
        n = G[k & 1]
        A(pk("fma", n, g, MU8, EL+2*k, bsel=0))
        A(pk("fma", n, g, MU8, n, bsel=1, asel="swap", neg_lo=[1,0,0]))
        g = n
    A("v_mov_b32 v54, v52\nv_mov_b32 v55, v53\nv_mov_b32 v56, v52\nv_mov_b32 v57, v53")
    A("v_permlane32_swap_b32 v54, v56")
    A("v_permlane32_swap_b32 v55, v57")
    cmul(A, 58, MU4, 56, add=54)
    cmul(A, 52, 48, 58, add=44)
    cmul(A, 54, MU, 52, add=46)
    A("v_mov_b32 v56, v52\nv_mov_b32 v57, v54\nv_mov_b32 v58, v53\nv_mov_b32 v59, v55")
    cr, ci = 56, 58
    def packhalf(hf):
        for plane in range(2):
            for e in range(2):
                d = 128 + ((plane*2 + e)*2 + hf)*4
                for m in range(4):
                    t = hf*8 + 2*m
                    if plane == 0: A(f"v_cvt_pk_bf16_f32 v{d+m}, v{UR2+2*t+e}, v{UR2+2*(t+1)+e}")
                    else: A(f"v_cvt_pk_bf16_f32 v{d+m}, -v{UI(t)+e}, -v{UI(t+1)+e}")
                A(f"ds_write_b128 v{64+2*e+hf}, {vr(d,4)} offset:{plane*4096}")
    for t in range(16):
        nr, ni = UR2 + 2*t, UI(t)
        if "ablb" in OPT:
            if t == 7: packhalf(0)
            continue
        A(pk("fma", nr, cr, LAM, nr, bsel=0))
        A(pk("fma", ni, ci, LAM, ni, bsel=0))
        A(pk("fma", nr, ci, LAM, nr, bsel=1, neg_b=True))
        A(pk("fma", ni, cr, LAM, ni, bsel=1))
        cr, ci = nr, ni
        if t == 7: packhalf(0)
    packhalf(1)
    if "pz" in OPT:
        A("v_mov_b32 v17, 0")
        A("s_mov_b64 exec, 1")
        A("ds_write_b32 v16, v17")
        A("s_mov_b64 exec, -1")
    gen.SAFE_PK[0] = False
    EARLY = opt("early", 0)
    HFL = "buffer_load_dword v19, v22, s[68:71], 0 offen sc1"
    if EARLY: A(HFL)
    ST()
    A("s_waitcnt lgkmcnt(0)")
    lds_inc(A, 20, 31, 12)
    AF = 160
    idx = 0
    for tblk in range(2):
        for plane in range(2):
            for ksl in range(2):
                d = AF + idx*4
                o = plane*4096 + tblk*2048 + ksl*1024
                A(f"ds_read_b64_tr_b16 {vr(d,2)}, v68 offset:{o}")
                A(f"ds_read_b64_tr_b16 {vr(d+2,2)}, v69 offset:{o}")
                idx += 1
    V = VQ(A)
    idx = 0
    for tblk in range(2):
        for plane in range(2):
            A(f"s_mov_b32 s12, {tblk*131072 + plane*8192:#x}")
            for ksl in range(2):
                d = AF + idx*4
                A(f"s_waitcnt lgkmcnt({min(15, 14 - 2*idx)})")
                V.issue(f"buffer_store_dwordx4 {vr(d,4)}, v72, s[60:63], s12 offen offset:{ksl*1024} sc1", "hst")
                idx += 1
    ACC2 = 96
    FB2 = 224
    GR = 36
    ST2 = Stamper(A, 1, 62)
    A(f"s_mov_b32 s89, {SPIN*4}")
    A("c_lw:")
    A("ds_read_b128 v[52:55], v20 offset:4")
    A("s_waitcnt lgkmcnt(0)")
    A("v_min_u32 v54, v54, v55")
    A("v_min_u32 v53, 1, v53")
    A("v_readfirstlane_b32 s8, v54")
    A("v_readfirstlane_b32 s9, v53")
    A("s_add_u32 s8, s8, s9")
    A("s_cmp_ge_u32 s8, 5")
    A("s_cbranch_scc1 c_lwok")
    A("s_sub_u32 s89, s89, 1")
    A("s_cbranch_scc0 c_lw")
    A("c_lwok:")
    L = LQ(A)
    for st in range(2):
        for ks in range(4):
            d = AF + (st*4 + ks)*4
            o = (ks >> 1)*16384 + st*4096 + (ks & 1)*1024
            L.issue(f"ds_read_b64_tr_b16 {vr(d,2)}, v70 offset:{o}")
            L.issue(f"ds_read_b64_tr_b16 {vr(d+2,2)}, v71 offset:{o}", ("A", st, ks))
    A("s_mov_b32 s13, 0")
    if EARLY:
        A("s_waitcnt vmcnt(8)")
        A("v_cmp_eq_u32 s[90:91], 1, v19")
        A("s_and_b32 s88, s90, 0xc")
        A("s_cmp_eq_u32 s88, 0xc")
        A("s_cbranch_scc0 c_noearly")
        A("s_mov_b32 s13, 1")
        for z in (2, 3):
            tile_of(A, z >> 1, 11)
            A("s_lshl_b32 s11, s11, 14")
            if z & 1: A("s_add_u32 s11, s11, 8192")
            for k2 in range(4):
                A(f"buffer_load_dwordx4 {vr(AF + (z*4 + k2)*4,4)}, v{3 if k2 < 2 else 2}, s[60:63], s11 offen offset:{(k2 & 1)*1024} sc1")
        A("c_noearly:")
    for q in range(4):
        V.issue(f"buffer_load_dwordx4 {vr(GR+q*4,4)}, v7, s[64:67], 0 offen offset:{q*16} sc1", "g")
    ST()
    slowp = []
    def need(i):
        m = ((1 << (2*i + 2)) - 1) & ~3
        name = f"c_n{len(slowp)}"
        A(f"s_and_b32 s88, s90, {m:#x}")
        A(f"s_cmp_eq_u32 s88, {m:#x}")
        A(f"s_cbranch_scc0 {name}_s")
        A(f"{name}:")
        slowp.append((name, m))
    alast = [None]
    def aload(st, ks):
        if alast[0] != st:
            alast[0] = st
            tile_of(A, st >> 1, 11)
            A("s_lshl_b32 s11, s11, 14")
            if st & 1: A("s_add_u32 s11, s11, 8192")
        r = AF + ((st % PD)*4 + ks)*4
        V.issue(f"buffer_load_dwordx4 {vr(r,4)}, v{3 if ks < 2 else 2}, s[60:63], s11 offen offset:{(ks & 1)*1024} sc1", ("A", st, ks))
    def rd2(st, ks, nt, slot):
        return f"ds_read_b128 {vr(FB2+slot*4,4)}, v{BD2+ks} offset:{(st % NS2)*16384 + nt*4096}"
    def mf2(st, ks, nt, slot):
        a = AF + ((st % PD)*4 + ks)*4
        c = vr(ACC2+nt*16, 16)
        return f"v_mfma_f32_32x32x16_bf16 {c}, {vr(a,4)}, {vr(FB2+slot*4,4)}, {'0' if (st == 0 and ks == 0) else c}"
    def await_(st, ks):
        if st < 2: L.wait(("A", st, ks))
        else: V.wait(("A", st, ks))
    ST2()
    for nt in range(4): L.issue(rd2(0, 0, nt, nt), (0, 0, nt))
    HFK = opt("hfk", 3)
    N1K = opt("n1k", 2)
    XPS = opt("xps", 1)
    xfill = []
    def xpart(A=A):
        A("v_lshlrev_b32 v9, 16, v9")
        A("v_lshlrev_b32 v10, 16, v10")
        A("s_mov_b32 s12, 0xffff0000")
        TT = [13, 15, 16, 17, 18, 24, 25, 8]
        for k0 in range(0, 16, 4):
            ch = []
            for k in range(k0, k0 + 4):
                t0, t1 = TT[2*(k & 3)], TT[2*(k & 3) + 1]
                dk = 9 + (k >> 3)
                ch.append([f"v_lshlrev_b32 v{t0}, 16, v{XP[k]}", f"v_and_b32 v{t1}, s12, v{XP[k]}", f"v_mul_f32 v{t0}, v{t0}, v{dk}", f"v_mul_f32 v{t1}, v{t1}, v{dk}",
                           f"v_cvt_pk_bf16_f32 v{XDP[k]}, v{t0}, v{t1}"])
            zip_chains(A, ch)
    if XPS == 2: xpart(xfill.append)
    DIST = opt("dist", 3)
    assert DIST in (2, 3, 4)
    polls = [0]
    def hfpoll():
        polls[0] += 1
        V.issue(HFL, ("hf", polls[0]))
    def hfseen():
        V.wait(("hf", polls[0]))
        A("v_cmp_eq_u32 s[90:91], 1, v19")
    FS = opt("fs", 4)
    assert FS == 1 or (FS in (3, 4) and DIST >= 3)
    for st in range(N2 - FS):
        for ks in range(4):
            buf = ks & 1
            if ks == 3 and st >= FBAR: A("s_barrier")
            if ks == 3 and st == 1 and FBAR > 1:
                lds_spin(A, "c_cf2", 20, 20, 14, 4); L.done = L.n
            ns, nks = (st, ks+1) if ks < 3 else (st+1, 0)
            await_(st, ks)
            for nt in range(4):
                L.wait((st, ks, nt))
                A(mf2(st, ks, nt, buf*4 + nt))
                L.issue(rd2(ns, nks, nt, (buf ^ 1)*4 + nt), (ns, nks, nt))
                for z in range(opt("xfm", 3)):
                    if xfill: A(xfill.pop(0))
            if st == 0 and ks == HFK:
                if EARLY:
                    cnt = V.n - V.tags["hst"]
                    A("s_cmp_eq_u32 s13, 1")
                    A("s_cbranch_scc1 c_hw_e")
                    A(f"s_waitcnt vmcnt({cnt})")
                    A("s_branch c_hw_d")
                    A("c_hw_e:")
                    A(f"s_waitcnt vmcnt({cnt + 8})")
                    A("c_hw_d:")
                    V.done = V.tags["hst"]
                else: V.wait("hst")
                A("s_cmp_eq_u32 s14, 1")
                A("s_cbranch_scc1 c_hfs_l")
                A("buffer_store_dword v23, v60, s[68:71], 0 offen sc1")
                A("s_branch c_hfs_e")
                A("c_hfs_l:")
                A("buffer_store_dword v23, v60, s[68:71], 0 offen")
                A("c_hfs_e:")
                V.n += 1
                if SNT: V.issue("buffer_store_dword v23, v30, s[68:71], 0 offen sc1")
                hfpoll()
                if "fine3" in OPT: ST2()
            if st == 1 and ks == opt("rp", -1): hfpoll()
            if st == 1 and ks == N1K:
                if "fine3" in OPT: ST2()
                if EARLY:
                    A("s_cmp_eq_u32 s13, 1")
                    A("s_cbranch_scc1 c_skipy")
                hfseen(); need(1)
                if "fine3" in OPT: ST2()
                for z in (2, 3):
                    for k2 in range(4): aload(z, k2)
                if EARLY:
                    A("c_skipy:")
                    V.done = min(V.done, V.tags[("hf", polls[0])] - 1)
                hfpoll()
                if XPS == 0: xpart()
            if st == 1 and ks == 3 and XPS == 1: xpart()
            if st >= 2:
                if st == 2 and ks == 0:
                    if "fine3" in OPT: ST2()
                    hfseen(); need(2)
                    if "fine3" in OPT: ST2()
                    for z in range(4, 2 + DIST):
                        for k2 in range(4): aload(z, k2)
                    hfpoll()
                z = st + DIST
                if z < N2:
                    if ks == 0 and z % 2 == 0 and z // 2 >= 3:
                        if z // 2 == 3: hfseen()
                        if not (int(OPT.get("abl", 0)) & 2): need(z // 2)
                    aload(z, ks)
            if SNT and st == opt("pfl", 5) and ks == 0: V.issue("buffer_load_dword v14, v29, s[68:71], 0 offen sc1", "pf")
            if SNT and st == opt("pfc", 8) and ks == 0:
                V.wait("pf")
                A("v_cmp_ne_u32 vcc, 1, v14")
                A("s_cmp_eq_u64 vcc, 0")
                A("s_cbranch_scc0 c_pfs")
                A("c_pfr:")
            if "fine3" in OPT:
                if st in (1, 2, 3, 4) and ks == 3: ST2()
                if st == 2 and ks == 0: ST2()
            elif "fine4" in OPT:
                if st == N2 - FS - 1 and ks == 3: ST2()
            elif (st % 2 == 1 if 'fine2' not in OPT else True) and ks == 3: ST2()
    f0 = N2 - FS
    S_ = lambda z: [(z, ks, nt) for ks in range(4) for nt in (0, 1)]
    K_ = lambda z: [(z, ks, nt) for ks in range(4) for nt in (2, 3)]
    if FS == 1: order = S_(15) + K_(15); nsend = 8
    elif FS == 3: order = S_(13) + ["b13"] + S_(14) + K_(13) + ["b14"] + S_(15) + K_(14) + K_(15); nsend = 32
    else:
        BP = opt("bp", 4)
        order = []
        if opt("fso", 1) == 0:
            for z in (12, 13, 14): order += S_(z)[:BP] + [f"b{z}"] + S_(z)[BP:]
            order += S_(15) + K_(12) + K_(13) + K_(14) + K_(15); nsend = 32
        else:
            order = S_(12)[:BP] + ["b12"] + S_(12)[BP:] + S_(13) + K_(12)[:BP] + ["b13"] + K_(12)[BP:] + S_(14)[:BP] + ["b14"] + S_(14)[BP:] + S_(15) + K_(13) + K_(14) + K_(15)
            nsend = 40
        for z in range(N2):
            if ("A", z, 0) not in V.tags and z >= 2:
                for k2 in range(4): aload(z, k2)
    mfs = [x for x in order if not isinstance(x, str)]
    slot = {(f0, 0, nt): nt for nt in range(4)}
    pend = [x for x in mfs if x not in slot]
    free = [4, 5, 6]
    pub = [f0]
    def fill():
        while pend and free and pend[0][0] <= pub[0]:
            x = pend.pop(0); sl = free.pop(0); slot[x] = sl
            L.issue(rd2(x[0], x[1], x[2], sl), x)
    fill()
    pst = [f"buffer_store_dwordx4 {vr(ACC2+4*i,4)}, v28, s[92:95], s{74 if i < 4 else 75} offen offset:{(i & 3)*1024} sc1" for i in range(NPQ)]
    pcv = [f"v_cvt_pk_bf16_f32 v{ACC2+k}, v{ACC2+2*k}, v{ACC2+2*k+1}" for k in range(16)] if PB else []
    i = 0; prev = None
    for x in order:
        if isinstance(x, str):
            A("s_barrier"); pub[0] += 1; fill(); continue
        V.wait(("A", x[0], x[1]))
        if x not in slot: fill()
        L.wait(x)
        A(mf2(x[0], x[1], x[2], slot[x]))
        free.append(slot[prev] if prev is not None else 7)
        prev = x
        fill()
        i += 1
        SP = opt("sp", 0)
        if i >= nsend + 3 and pcv:
            for z in range(4): A(pcv.pop(0))
            V.issue(pst.pop(0), "ps")
        elif i >= nsend + 3:
            if SP == 0:
                for z in range(2):
                    if pst: V.issue(pst.pop(0), "ps")
            elif (i - nsend - 3) % SP == 0 and pst: V.issue(pst.pop(0), "ps")
        if "fine4" in OPT and i % 8 == 0: ST2()
    while pst: V.issue(pst.pop(0), "ps")
    ST2()
    YR, OM, GF, T0, RV = 160, 176, 192, 208, ACC2
    KEEP = ACC2 + 32
    PFL = "buffer_load_dword v19, v29, s[68:71], 0 offen sc1"
    A("s_mov_b32 s12, 0xffff0000")
    for nt in range(2):
        for hf in range(2): A(f"ds_read_b128 {vr(YR+nt*8+hf*4,4)}, v21 offset:{nt*32*272 + hf*16}")
    for r in range(16):
        A(f"v_lshlrev_b32 v{GF+r}, 16, v{GR+r}")
        A(f"v_and_b32 v{OM+r}, s12, v{GR+r}")
    A("s_waitcnt lgkmcnt(0)")
    if SNT:
        RCG = opt("rcg", 2)
        def recv_full():
            for i in range(NPQ):
                A(f"buffer_load_dwordx4 {vr(RV+4*i,4)}, v28, s[92:95], s{90 if i < 4 else 91} offen offset:{(i & 3)*1024} sc1")
        first = [True]
        def recv():
            if "lp" in OPT and first[0]:
                first[0] = False
                A(f"buffer_load_dwordx4 {vr(RV+4*NPQ-4,4)}, v28, s[92:95], s{90 if PB else 91} offen offset:3072 sc1")
            else: recv_full()
        A("s_lshl_b32 s90, s72, 6")
        A("s_add_u32 s91, s90, 4096")
        gi = 0
        for nt in range(2):
            for m0 in range(0, 8, 4):
                if gi == RCG: recv()
                gi += 1
                ch = []
                for m in range(m0, m0 + 4):
                    b_ = T0 + (m & 3)*6
                    yy, xf, tm = b_, b_ + 2, b_ + 4
                    xp = XP[nt*8+m]; xd = XDP[nt*8+m]; ka = KEEP + nt*16 + 2*m
                    ch.append([f"v_lshlrev_b32 v{yy}, 16, v{YR+nt*8+m}", f"v_and_b32 v{yy+1}, s12, v{YR+nt*8+m}",
                               f"v_lshlrev_b32 v{xf}, 16, v{xp}", f"v_and_b32 v{xf+1}, s12, v{xp}",
                               f"v_mul_f32 v{yy}, v{xf}, v{yy}", f"v_mul_f32 v{yy+1}, v{xf+1}, v{yy+1}",
                               f"v_lshlrev_b32 v{xf}, 16, v{xd}", f"v_and_b32 v{xf+1}, s12, v{xd}",
                               f"v_cvt_pk_bf16_f32 v{tm}, v{yy}, v{yy+1}",
                               f"v_add_f32 v{ka}, v{ka}, v{xf}", f"v_add_f32 v{ka+1}, v{ka+1}, v{xf+1}",
                               f"v_lshlrev_b32 v{yy}, 16, v{tm}", f"v_and_b32 v{yy+1}, s12, v{tm}",
                               f"v_mul_f32 v{yy}, v{yy}, v{OM+2*m}", f"v_mul_f32 v{yy+1}, v{yy+1}, v{OM+2*m+1}",
                               f"v_cvt_pk_bf16_f32 v{tm}, v{yy}, v{yy+1}", f"v_lshlrev_b32 v{yy}, 16, v{tm}", f"v_and_b32 v{yy+1}, s12, v{tm}",
                               f"v_fma_f32 v{ka}, v{ka}, v{GF+2*m}, v{yy}", f"v_fma_f32 v{ka+1}, v{ka+1}, v{GF+2*m+1}, v{yy+1}"])
                zip_chains(A, ch)
        if gi == RCG: recv()
        ST2()
        if "lp" in OPT:
            LP = f"buffer_load_dwordx4 {vr(RV+4*NPQ-4,4)}, v28, s[92:95], s{90 if PB else 91} offen offset:3072 sc1"
            A(f"s_mov_b32 s89, {SPIN}")
            A("c_lp:")
            A("s_waitcnt vmcnt(0)")
            A(f"v_cmp_eq_u32 vcc, -1, v{RV+4*NPQ-1}")
            A("s_cmp_eq_u64 vcc, 0")
            A("s_cbranch_scc1 c_lpok")
            A("s_sub_u32 s89, s89, 1")
            A("s_cbranch_scc1 c_lpok")
            A(LP)
            A("s_branch c_lp")
            A("c_lpok:")
            recv_full()
        A(f"s_mov_b32 s89, {SPIN}")
        A("c_rc:")
        A("s_waitcnt vmcnt(0)")
        A(f"v_max3_u32 v19, v{RV}, v{RV+1}, v{RV+2}")
        for i in range(3, 4*NPQ-1, 2): A(f"v_max3_u32 v19, v19, v{RV+i}, v{RV+i+1}")
        A(f"v_max_u32 v19, v19, v{RV+4*NPQ-1}")
        A("v_cmp_eq_u32 vcc, -1, v19")
        A("s_cmp_eq_u64 vcc, 0")
        A("s_cbranch_scc1 c_rcok")
        A("s_sub_u32 s89, s89, 1")
        A("s_cbranch_scc1 c_rcok")
        recv()
        A("s_branch c_rc")
        A("c_rcok:")
        ST2()
        for nt in range(2):
            for r in range(16):
                a = KEEP + nt*16 + r
                if PB:
                    w = RV + nt*8 + (r >> 1); t = T0 + (r & 3)
                    A(f"v_and_b32 v{t}, s12, v{w}" if r & 1 else f"v_lshlrev_b32 v{t}, 16, v{w}")
                    A(f"v_fma_f32 v{a}, v{t}, v{GF+r}, v{a}")
                else: A(f"v_fma_f32 v{a}, v{RV+nt*16+r}, v{GF+r}, v{a}")
                A(f"buffer_store_dword v{a}, v{26 if r < 8 else 27}, s[76:79], s{80+(r&7)} offen offset:{nt*128}{OS}")
        ST2()
    else:
        PFG = opt("pfg", 2)
        gi = 0
        def pfstore():
            A("s_waitcnt vmcnt(0)")
            A("buffer_store_dword v23, v30, s[68:71], 0 offen sc1")
            A(PFL)
        RCG = opt("rcg", 3)
        def recv():
            A("s_lshl_b32 s12, s72, 6")
            A("s_add_u32 s13, s12, 4096")
            for i in range(NPQ):
                A(f"buffer_load_dwordx4 {vr(RV+4*i,4)}, v28, s[92:95], s{12 if i < 4 else 13} offen offset:{(i & 3)*1024} sc1")
            A("s_mov_b32 s12, 0xffff0000")
        A("s_mov_b32 s90, 0")
        for nt in range(2):
            for m0 in range(0, 8, 4):
                if gi == PFG: pfstore()
                if gi == RCG and RCG > PFG:
                    A("s_waitcnt vmcnt(0)")
                    A("v_cmp_ne_u32 vcc, 1, v19")
                    A("s_cmp_eq_u64 vcc, 0")
                    A("s_cbranch_scc0 c_norc")
                    recv()
                    A("s_mov_b32 s90, 1")
                    A("c_norc:")
                gi += 1
                ch = []
                for m in range(m0, m0 + 4):
                    b_ = T0 + (m & 3)*6
                    yy, xf, tm = b_, b_ + 2, b_ + 4
                    xp = XP[nt*8+m]; xd = XDP[nt*8+m]; ka = KEEP + nt*16 + 2*m
                    ch.append([f"v_lshlrev_b32 v{yy}, 16, v{YR+nt*8+m}", f"v_and_b32 v{yy+1}, s12, v{YR+nt*8+m}",
                               f"v_lshlrev_b32 v{xf}, 16, v{xp}", f"v_and_b32 v{xf+1}, s12, v{xp}",
                               f"v_mul_f32 v{yy}, v{xf}, v{yy}", f"v_mul_f32 v{yy+1}, v{xf+1}, v{yy+1}",
                               f"v_lshlrev_b32 v{xf}, 16, v{xd}", f"v_and_b32 v{xf+1}, s12, v{xd}",
                               f"v_cvt_pk_bf16_f32 v{tm}, v{yy}, v{yy+1}",
                               f"v_add_f32 v{ka}, v{ka}, v{xf}", f"v_add_f32 v{ka+1}, v{ka+1}, v{xf+1}",
                               f"v_lshlrev_b32 v{yy}, 16, v{tm}", f"v_and_b32 v{yy+1}, s12, v{tm}",
                               f"v_mul_f32 v{yy}, v{yy}, v{OM+2*m}", f"v_mul_f32 v{yy+1}, v{yy+1}, v{OM+2*m+1}",
                               f"v_cvt_pk_bf16_f32 v{tm}, v{yy}, v{yy+1}", f"v_lshlrev_b32 v{yy}, 16, v{tm}", f"v_and_b32 v{yy+1}, s12, v{tm}",
                               f"v_fma_f32 v{ka}, v{ka}, v{GF+2*m}, v{yy}", f"v_fma_f32 v{ka+1}, v{ka+1}, v{GF+2*m+1}, v{yy+1}"])
                zip_chains(A, ch)
        if gi == PFG: pfstore()
        ST2()
        A("s_cmp_eq_u32 s90, 1")
        A("s_cbranch_scc1 c_havercv")
        A(PFL)
        A("s_waitcnt vmcnt(0)")
        spin_all(A, "c_pf", 19, PFL)
        recv()
        A("c_havercv:")
        ST2()
        for nt in range(2):
            for r in range(16):
                a = KEEP + nt*16 + r
                if PB:
                    i = (nt*16 + r) // 8
                    if r % 8 == 0: A(f"s_waitcnt vmcnt({3 - i + nt*16 + r})")
                    w = RV + nt*8 + (r >> 1); t = T0 + (r & 3)
                    A(f"v_and_b32 v{t}, s12, v{w}" if r & 1 else f"v_lshlrev_b32 v{t}, 16, v{w}")
                    A(f"v_fma_f32 v{a}, v{t}, v{GF+r}, v{a}")
                else:
                    i = (nt*16 + r) // 4
                    if r % 4 == 0: A(f"s_waitcnt vmcnt({7 - i + nt*16 + r})")
                    A(f"v_fma_f32 v{a}, v{RV+nt*16+r}, v{GF+r}, v{a}")
                A(f"buffer_store_dword v{a}, v{26 if r < 8 else 27}, s[76:79], s{80+(r&7)} offen offset:{nt*128}{OS}")
        ST2()
    if "leak" in OPT:
        i = int(OPT["leak"])
        A("s_cmp_lg_u32 s2, 8")
        A("s_cbranch_scc1 c_noleak")
        A("s_cmp_lg_u32 s3, 0")
        A("s_cbranch_scc1 c_noleak")
        A("v_readlane_b32 s8, v63, 0")
        A(f"v_readlane_b32 s9, v{63 if i < 100 else 62}, {i % 100}")
        A("s_sub_u32 s9, s9, s8")
        A("s_memrealtime s[10:11]")
        A("s_waitcnt lgkmcnt(0)")
        A("s_add_u32 s9, s9, s10")
        A("c_leak:")
        A("s_memrealtime s[10:11]")
        A("s_waitcnt lgkmcnt(0)")
        A("s_sub_u32 s12, s9, s10")
        A("s_cmp_gt_i32 s12, 0")
        A("s_cbranch_scc1 c_leak")
        A("c_noleak:")
    if "leak2" in OPT:
        X, i = str(OPT["leak2"]).split(":"); i = int(i)
        if X != "all":
            A(f"s_cmp_lg_u32 s2, {int(X)}")
            A("s_cbranch_scc1 c_noleak2")
        A("s_cmp_lg_u32 s3, 0")
        A("s_cbranch_scc1 c_noleak2")
        A(f"v_readlane_b32 s9, v{63 if i < 100 else 62}, {i % 100}")
        A("s_add_u32 s9, s9, 4000")
        A("c_leak2:")
        A("s_memrealtime s[10:11]")
        A("s_waitcnt lgkmcnt(0)")
        A("s_sub_u32 s12, s9, s10")
        A("s_cmp_gt_i32 s12, 0")
        A("s_cbranch_scc1 c_leak2")
        A("c_noleak2:")
    ST.flush()
    ST2.flush()
    A("s_endpgm")
    if SNT:
        A("c_pfs:")
        A(f"s_mov_b32 s89, {SPIN}")
        A("c_pfs_l:")
        A("s_waitcnt vmcnt(0)")
        A("buffer_load_dword v14, v29, s[68:71], 0 offen sc1")
        A("s_waitcnt vmcnt(0)")
        A("v_cmp_ne_u32 vcc, 1, v14")
        A("s_cmp_eq_u64 vcc, 0")
        A("s_cbranch_scc1 c_pfr")
        A("s_sub_u32 s89, s89, 1")
        A("s_cbranch_scc1 c_pfr")
        A("s_branch c_pfs_l")
    for name, m in slowp:
        A(f"{name}_s:")
        A(f"s_mov_b32 s89, {SPIN}")
        A(f"{name}_l:")
        A("s_waitcnt vmcnt(0)")
        A(HFL)
        A("s_waitcnt vmcnt(0)")
        A("v_cmp_eq_u32 s[90:91], 1, v19")
        A(f"s_and_b32 s88, s90, {m:#x}")
        A(f"s_cmp_eq_u32 s88, {m:#x}")
        A(f"s_cbranch_scc1 {name}")
        A("s_sub_u32 s89, s89, 1")
        A(f"s_cbranch_scc1 {name}")
        A(f"s_branch {name}_l")

def helper(A):
    V = VQ(A)
    VA, VB = 8, 12
    ST = Stamper(A, 0, 58)
    STH = Stamper(A, 1, 59)
    ST()
    if "hprio1" in OPT: A(f"s_setprio {OPT['hprio1']}")
    A("s_sub_u32 s3, s3, 4")
    A("s_lshr_b32 s6, s3, 1")
    A("s_and_b32 s7, s3, 1")
    A("v_lshrrev_b32 v3, 5, v1")
    A("v_lshlrev_b32 v3, 5, v3")
    A("v_bfe_u32 v4, v1, 3, 1")
    A("v_lshl_add_u32 v3, v4, 4, v3")
    A("v_bfe_u32 v4, v1, 4, 1")
    A("v_add_u32 v3, v3, v4")
    A("s_lshl_b32 s8, s4, 7")
    A("s_lshl_b32 s9, s6, 6")
    A("s_add_u32 s8, s8, s9")
    A("s_lshl_b32 s9, s7, 3")
    A("s_add_u32 s8, s8, s9")
    A("v_add_u32 v3, s8, v3")
    A("v_lshlrev_b32 v3, 11, v3")
    A("v_and_b32 v4, 7, v1")
    A("v_lshrrev_b32 v5, 4, v1")
    A("v_xor_b32 v4, v4, v5")
    A("v_lshlrev_b32 v4, 4, v4")
    A(f"v_add_u32 v{VA}, v3, v4")
    A("s_lshl_b32 s10, s3, 12")
    A("s_lshr_b32 s90, s55, 2")
    A("s_lshl_b32 s90, s90, 1")
    A("s_and_b32 s91, s55, 3")
    A("s_lshl_b32 s91, s91, 2")
    A("s_add_u32 s90, s90, s91")
    A("s_and_b32 s11, s90, 15")
    A("s_lshl_b32 s11, s11, 7")
    A("s_mov_b32 m0, s10")
    A(f"s_mov_b32 s58, {4<<20:#x}")
    A("s_mov_b32 s59, 0x20000")
    if "fine0" in OPT: STH()
    A("s_waitcnt lgkmcnt(0)")
    if "fine0" in OPT: STH()
    A(f"s_mov_b32 s56, s{P['x']}")
    A(f"s_mov_b32 s57, s{P['x']+1}")
    V.issue(f"buffer_load_dwordx4 v{VA}, s[56:59], s11 offen lds")
    A("v_xor_b32 v5, 64, v4")
    A(f"v_add_u32 v{VA+1}, v3, v5")
    A(f"v_add_u32 v{VA+1}, {4096-1024}, v{VA+1}")
    V.issue(f"buffer_load_dwordx4 v{VA+1}, s[56:59], s11 offen offset:1024 lds")
    A(f"v_add_u32 v{VA+2}, {2*(4096-1024)}, v{VA}")
    V.issue(f"buffer_load_dwordx4 v{VA+2}, s[56:59], s11 offen offset:2048 lds")
    A(f"v_add_u32 v{VA+3}, {2*(4096-1024)}, v{VA+1}")
    V.issue(f"buffer_load_dwordx4 v{VA+3}, s[56:59], s11 offen offset:3072 lds")
    A("s_lshl_b32 s8, s5, 6")
    A("s_lshl_b32 s9, s7, 5")
    A("s_add_u32 s8, s8, s9")
    A("v_lshrrev_b32 v6, 3, v1")
    A("v_add_u32 v7, s8, v6")
    A("v_lshlrev_b32 v7, 11, v7")
    A(f"v_add_u32 v{VB}, v7, v4")
    A("s_cmp_ge_u32 s3, 2")
    A(f"s_cselect_b32 s60, s{P['Bim']}, s{P['Bre']}")
    A(f"s_cselect_b32 s61, s{P['Bim']+1}, s{P['Bre']+1}")
    A(f"s_mov_b32 s62, {2<<20:#x}")
    A("s_mov_b32 s63, 0x20000")
    A("s_add_u32 m0, s10, 16384")
    A(f"v_add_u32 v{VB+1}, v7, v5")
    V.issue(f"buffer_load_dwordx4 v{VB}, s[60:63], s11 offen lds")
    A(f"v_add_u32 v{VB+1}, {16384-1024}, v{VB+1}")
    V.issue(f"buffer_load_dwordx4 v{VB+1}, s[60:63], s11 offen offset:1024 lds")
    A(f"v_add_u32 v{VB+2}, {2*(16384-1024)}, v{VB}")
    V.issue(f"buffer_load_dwordx4 v{VB+2}, s[60:63], s11 offen offset:2048 lds")
    A(f"v_add_u32 v{VB+3}, {2*(16384-1024)}, v{VB+1}")
    V.issue(f"buffer_load_dwordx4 v{VB+3}, s[60:63], s11 offen offset:3072 lds", ("S", 0))
    def issue(st, fill=0):
        slot = st % 3
        A(f"s_add_u32 s11, s90, {st}")
        A("s_and_b32 s11, s11, 15")
        A("s_lshl_b32 s11, s11, 7")
        A(f"s_add_u32 m0, s10, {slot*32768:#x}")
        for n in range(4):
            V.issue(f"buffer_load_dwordx4 v{VA+n}, s[56:59], s11 offen offset:{n*1024} lds")
            if fill: do_work(fill)
        A(f"s_add_u32 m0, s10, {slot*32768+16384:#x}")
        for n in range(4):
            V.issue(f"buffer_load_dwordx4 v{VB+n}, s[60:63], s11 offen offset:{n*1024} lds", ("S", st))
            if fill: do_work(fill)
    if "fine0" in OPT: STH()
    VC = 28
    A("s_and_b32 s8, s5, 7")
    A("s_lshl_b32 s8, s8, 6")
    A("s_lshl_b32 s9, s3, 4")
    A("s_add_u32 s8, s8, s9")
    A("v_add_u32 v7, s8, v6")
    A("v_lshlrev_b32 v7, 11, v7")
    A(f"v_add_u32 v{VC}, v7, v4")
    A(f"v_add_u32 v{VC+1}, v7, v5")
    A(f"v_add_u32 v{VC+1}, {16384-1024}, v{VC+1}")
    A("s_and_b32 s12, s55, 1")
    A("s_lshl_b32 s13, s54, 1")
    A("s_add_u32 s12, s12, s13")
    A("s_lshr_b32 s13, s55, 1")
    A("s_lshl_b32 s8, s2, 7")
    A(f"s_add_u32 s8, s8, {KF_OFF:#x}")
    A("v_mov_b32 v30, s8")
    A("s_lshl_b32 s88, s54, 5")
    A("s_add_u32 s88, s88, s55")
    A("s_lshl_b32 s8, s88, 7")
    A(f"s_add_u32 s8, s8, {YF_OFF:#x}")
    A("v_mov_b32 v31, s8")
    A("s_lshl_b32 s88, s88, 2")
    A("s_add_u32 s88, s88, s3")
    A("v_mov_b32 v2, 0")
    srd(A, 92, "ws", FLG_SZ, WS_FLG)
    A("s_lshl_b32 s8, s88, 12")
    A(f"s_load_dword s100, {sp('ssmk')}, s8")
    A("s_lshr_b32 s8, s88, 1")
    A("s_lshl_b32 s8, s8, 2")
    A(f"s_load_dword s101, {sp('ssmD')}, s8")
    V.issue("buffer_store_dword v2, v30, s[92:95], 0 offen sc1")
    V.issue("buffer_store_dword v2, v31, s[92:95], 0 offen sc1", "clr")
    if opt("pl", 1) >= 0: issue(1)
    if "fine0" in OPT: STH()
    KR, VR_, SK = 32, 208, 68
    XG, GW = 72, 88
    A("s_lshl_b32 s13, s13, 7")
    A("s_lshl_b32 s14, s3, 5")
    A("s_add_u32 s13, s13, s14")
    A("v_and_b32 v17, 31, v1")
    A("s_lshl_b32 s14, s12, 5")
    A("v_add_u32 v17, s14, v17")
    A("v_lshlrev_b32 v22, 4, v17")
    A("v_and_b32 v23, 31, v1")
    A("v_mul_u32_u24 v23, 544, v23")
    A("v_lshrrev_b32 v24, 5, v1")
    A("v_lshlrev_b32 v24, 5, v24")
    A("v_sub_u32 v23, v23, v24")
    A("s_lshl_b32 s8, s3, 6")
    A(f"s_sub_u32 s8, {UREG+224}, s8")
    A("v_add_u32 v23, s8, v23")
    A("v_lshrrev_b32 v24, 4, v1")
    A("s_lshl_b32 s8, s3, 4")
    A("v_add_u32 v24, s8, v24")
    A("v_and_b32 v2, 15, v1")
    A("v_lshlrev_b32 v2, 4, v2")
    A("s_lshl_b32 s8, s12, 6")
    A("v_add_u32 v27, s8, v24")
    A("v_lshl_add_u32 v27, v27, 12, v2")
    A("s_lshr_b32 s8, s55, 1")
    A("s_lshl_b32 s8, s8, 8")
    A("s_sub_u32 s8, 3840, s8")
    A("v_add_u32 v27, s8, v27")
    A("v_mul_u32_u24 v24, 272, v24")
    A("v_add_u32 v24, v24, v2")
    A(f"v_add_u32 v24, {UREG:#x}, v24")
    A("s_lshl_b32 s14, s4, 7")
    A("s_lshl_b32 s8, s5, 3")
    A("s_add_u32 s14, s14, s8")
    A("s_lshl_b32 s8, s3, 1")
    A("s_add_u32 s14, s14, s8")
    A("s_lshl_b32 s8, s14, 11")
    A("v_lshlrev_b32 v25, 4, v1")
    A("v_add_u32 v26, s8, v25")
    A("v_add_u32 v3, 0x8000, v27")
    srd(A, 64, "k", 4 << 20)
    srd(A, 68, "v", 4 << 20)
    srd(A, 72, "ws", 4 << 20, WS_KVT)
    srd(A, 76, "ws", 8192, WS_G)
    for i in range(8):
        A(f"s_mov_b32 s{80+i}, {i*4096}")
    NTP = " nt" if "ntp" in OPT else ""
    A("v_lshrrev_b32 v19, 3, v1")
    A("v_add_u32 v19, s13, v19")
    A("v_lshlrev_b32 v19, 11, v19")
    A("v_and_b32 v20, 7, v1")
    A("v_lshl_add_u32 v19, v20, 4, v19")
    A("s_lshl_b32 s8, s12, 7")
    A("v_add_u32 v19, s8, v19")
    A("v_subrev_u32 v20, 16384, v19")
    A("v_lshrrev_b32 v21, 5, v1")
    A("v_lshlrev_b32 v21, 11, v21")
    A("v_and_b32 v18, 31, v1")
    A("v_lshl_add_u32 v21, v18, 2, v21")
    A("s_lshl_b32 s8, s3, 12")
    A(f"s_add_u32 s91, s8, {KREG}")
    A("v_add_u32 v21, s91, v21")
    def kvdma():
        A("s_add_u32 m0, s91, 16384")
        V.issue(f"buffer_load_dwordx4 v20, s[64:67], 0 offen{NTP} lds")
        for i in range(4):
            A(f"s_add_u32 m0, s91, {16384 + 1024*(i+1)}")
            A(f"s_mov_b32 s99, {i*16384}")
            V.issue(f"buffer_load_dwordx4 v19, s[64:67], s99 offen{NTP} lds")
        V.issue(f"global_load_dwordx4 {vr(SK,4)}, v22, {sp('shk')}", "k")
        for i in range(4):
            A(f"s_add_u32 m0, s91, {1024*i}")
            A(f"s_mov_b32 s99, {i*16384}")
            V.issue(f"buffer_load_dwordx4 v19, s[68:71], s99 offen{NTP} lds", "v")
    if opt("pl", 1) < 0:
        kvdma(); issue(1)
    gl = []
    for r in range(2):
        for hh in range(2): gl.append((f"buffer_load_dwordx4 {vr(XG+r*8+hh*4,4)}, v26, s[56:59], 0 offen offset:{r*2048+hh*1024}", None))
    for hh in range(2): gl.append((f"global_load_dwordx4 {vr(GW+hh*4,4)}, v25, {sp('gw')} offset:{hh*1024}", "gate"))
    KF = 96; SP = 136; OUT = 144
    work = []
    def W(x):
        if callable(x): work.append(x)
        else: work.extend(x.split("\n"))
    def rndW(pair, tmp):
        W(f"v_cvt_pk_bf16_f32 v{tmp}, v{pair}, v{pair+1}")
        W(f"v_lshlrev_b32 v{pair}, 16, v{tmp}")
        W(f"v_and_b32 v{pair+1}, s12, v{tmp}")
    W("s_mov_b32 s12, 0xffff0000")
    gate_begin = len(work)
    W(lambda: V.wait("gate"))
    for i in range(8):
        W(f"v_lshlrev_b32 v{96+2*i}, 16, v{GW+i}")
        W(f"v_and_b32 v{97+2*i}, s12, v{GW+i}")
    for r in range(2):
        acc = 112 + r
        W(f"v_mov_b32 v{acc}, 0")
        for i in range(8):
            W(f"v_lshlrev_b32 v116, 16, v{XG+r*8+i}")
            W(f"v_and_b32 v117, s12, v{XG+r*8+i}")
            W(pk("mul", 116, 116, 96+2*i))
            rndW(116, 118)
            W(f"v_add_f32 v{acc}, v{acc}, v116")
            W(f"v_add_f32 v{acc}, v{acc}, v117")
    for r in range(2):
        acc = 112 + r
        for sh in (1, 2, 4, 8):
            W(f"v_add_f32_dpp v{acc}, v{acc}, v{acc} row_shr:{sh} row_mask:0xf bank_mask:0xf bound_ctrl:0")
        W(f"v_add_f32_dpp v{acc}, v{acc}, v{acc} row_bcast:15 row_mask:0xa bank_mask:0xf")
        W(f"v_add_f32_dpp v{acc}, v{acc}, v{acc} row_bcast:31 row_mask:0xc bank_mask:0xf")
    for t in ["v_readlane_b32 s8, v112, 63", "v_readlane_b32 s9, v113, 63", "v_mov_b32 v116, s8", "v_mov_b32 v117, s9",
              "v_cmp_eq_u32 vcc, 1, v1", "v_cndmask_b32 v116, v116, v117, vcc", "v_cvt_pk_bf16_f32 v116, v116, v116",
              "v_lshlrev_b32 v116, 16, v116", "v_mul_f32 v116, 0xbfb8aa3b, v116", "v_exp_f32 v116, v116", "v_add_f32 v116, 1.0, v116",
              "v_rcp_f32 v116, v116", "v_cvt_pk_bf16_f32 v117, v116, v116", "v_lshlrev_b32 v116, 16, v117", "v_sub_f32 v118, 1.0, v116",
              "v_cvt_pk_bf16_f32 v116, v116, v118", "s_lshl_b32 s14, s14, 2", "v_lshl_add_u32 v117, v1, 2, s14"]:
        W(t)
    def gstore():
        A("s_mov_b64 exec, 3")
        V.issue("buffer_store_dword v116, v117, s[76:79], 0 offen sc1", "g")
        A("s_mov_b64 exec, -1")
    W(gstore)
    gate_end = len(work)
    W("KVSTART")
    W(lambda: V.wait("k"))
    for i in range(19):
        W(f"ds_read_b32 v{KR+i}, v21 offset:{16384 + (5+i)*128}")
        if i == 9: W("s_waitcnt lgkmcnt(0)")
    W("s_waitcnt lgkmcnt(0)")
    for i in range(19):
        W(f"v_lshlrev_b32 v{KF+2*i}, 16, v{KR+i}")
        W(f"v_and_b32 v{KF+2*i+1}, s12, v{KR+i}")
    for jx in range(4):
        for cc in range(2):
            src = SK + cc*2 + (jx >> 1)
            W(f"v_and_b32 v{SP+2*jx+cc}, s12, v{src}" if jx & 1 else f"v_lshlrev_b32 v{SP+2*jx+cc}, 16, v{src}")
    W(lambda: V.wait("v"))
    for i in range(16):
        W(f"ds_read_b32 v{VR_+i}, v21 offset:{i*128}")
        if i == 7: W("s_waitcnt lgkmcnt(0)")
    W("s_waitcnt lgkmcnt(0)")
    for t in range(16):
        vv = 176 + (t & 1)*2
        W(f"v_lshlrev_b32 v{vv}, 16, v{VR_+t}")
        W(f"v_and_b32 v{vv+1}, s12, v{VR_+t}")
        if opt("pk", 0) & 2:
            o = OUT + 2*t
            W(f"v_pk_mul_f32 {vr(o,2)}, {vr(KF+2*t,2)}, {vr(SP+6,2)}")
            for jx in (2, 1, 0): W(f"v_pk_fma_f32 {vr(o,2)}, {vr(KF+2*(t+3-jx),2)}, {vr(SP+2*jx,2)}, {vr(o,2)}")
            W(f"v_pk_mul_f32 {vr(o,2)}, {vr(o,2)}, {vr(vv,2)}")
            continue
        for cc in range(2): W(f"v_mul_f32 v{OUT+2*t+cc}, v{KF+2*t+cc}, v{SP+6+cc}")
        for jx in (2, 1, 0):
            for cc in range(2): W(f"v_fmac_f32 v{OUT+2*t+cc}, v{KF+2*(t+3-jx)+cc}, v{SP+2*jx+cc}")
        for cc in range(2): W(f"v_mul_f32 v{OUT+2*t+cc}, v{OUT+2*t+cc}, v{vv+cc}")
    for cc in range(2):
        for hf in range(2):
            d = 192 + (cc*2+hf)*4
            for m in range(4):
                mm = hf*4 + m
                W(f"v_cvt_pk_bf16_f32 v{d+m}, v{OUT+2*(15-2*mm)+cc}, v{OUT+2*(14-2*mm)+cc}")
            W(f"ds_write_b128 v23, {vr(d,4)} offset:{cc*272+hf*16}")
    W("s_waitcnt lgkmcnt(0)")
    W("BARRIER")
    for i in range(4): W(f"ds_read_b128 {vr(192+4*i,4)}, v24 offset:{i*4*272}")
    KVL = "nokvl" not in OPT
    def kvstores():
        def block(pol):
            for i in range(4):
                A(f"s_waitcnt lgkmcnt({3-i})")
                V.issue(f"buffer_store_dwordx4 {vr(192+4*i,4)}, v{27 if i < 2 else 3}, s[72:75], s{80+4*(i&1)} offen{pol}", "kvt")
        if not KVL:
            block(" sc1"); return
        V.wait("cls")
        local_check(A, 247, 246, 96, 98)
        A("s_cbranch_scc0 h_kvl")
        n0 = V.n
        block(" sc1")
        A("s_branch h_kve")
        A("h_kvl:")
        V.n = n0
        block("")
        A("h_kve:")
    W(kvstores)
    kv_end = len(work)
    if "kvfirst" in OPT:
        gate_part = work[gate_begin:gate_end]
        del work[gate_begin:gate_end]
        work.extend(gate_part)
    wpos = [0]
    blocked = [False]
    cur = [0]
    PL = opt("pl", 1)
    KVW = PL + opt("kvd", 3)
    def do_work(n):
        while n > 0 and wpos[0] < len(work) and not blocked[0]:
            w = work[wpos[0]]
            wpos[0] += 1
            if w == "BARRIER":
                blocked[0] = True; return
            if w == "KVSTART":
                if cur[0] < KVW:
                    wpos[0] -= 1; return
                continue
            if callable(w): w()
            elif "ablkv" in OPT and w.startswith("v_") and wpos[0] > gate_end and wpos[0] < kv_end: pass
            else: A(w)
            n -= 1
    PREP0 = opt("prep0", 1)
    UL = 40
    ACC = 64; BF = 96; AFR = 160; KD = 224
    def setup_conv(A):
        A("s_lshl_b32 s12, s88, 12")
        srd(A, 64, "ssmk", 4096, off_sreg=12)
        srd(A, 68, "ws", 4096, WS_KVT, off_sreg=12)
        A("s_mov_b32 s80, s100")
        A("s_mov_b32 s81, s101")
        A("v_and_b32 v37, 15, v1")
        A("s_lshr_b32 s8, s88, 6")
        A("s_and_b32 s8, s8, 1")
        A("s_lshl_b32 s8, s8, 3")
        A("s_add_u32 s8, s8, s54")
        A("v_lshl_add_u32 v32, v37, 4, s8")
        A("s_lshr_b32 s8, s4, 2")
        A("s_lshl_b32 s8, s8, 1")
        A("s_and_b32 s9, s4, 3")
        A("s_lshl_b32 s9, s9, 3")
        A("s_add_u32 s8, s8, s9")
        A("v_lshrrev_b32 v38, 3, v37")
        A("v_and_b32 v39, 7, v37")
        A("v_lshl_add_u32 v38, v39, 5, v38")
        A("v_add_u32 v38, s8, v38")
        A("v_and_b32 v39, 16, v1")
        A("v_cmp_ne_u32 vcc, 0, v39")
        A("v_cndmask_b32 v32, v32, v38, vcc")
        A("v_lshlrev_b32 v32, 7, v32")
        A(f"v_add_u32 v32, {KF_OFF:#x}, v32")
        A("v_lshlrev_b32 v33, 2, v1")
        srd(A, 76, "dbg", 256)
        A(f"s_mul_i32 s13, s3, 8320")
        A(f"s_add_u32 s13, s13, {KREG}")
        A(f"s_mul_i32 s82, s3, 4608")
        A(f"s_add_u32 s82, s82, {UREG}")
        A("v_add_u32 v36, 2, v25")
        A("v_and_b32 v38, 7, v1")
        A("v_lshlrev_b32 v38, 2, v38")
        A("v_bfe_u32 v39, v1, 3, 1")
        A("v_mul_u32_u24 v39, 4160, v39")
        A("v_add3_u32 v38, v38, v39, s13")
        A("s_lshl_b32 s80, s80, 16")
        A("v_mov_b32 v56, s80")
        A("v_cmp_eq_u32 vcc, 15, v37")
        A("v_cndmask_b32 v56, 0, v56, vcc")
        A("ds_write_b32 v38, v56")
        A("s_and_b32 s14, s88, 1")
        A("s_lshl_b32 s14, s14, 4")
        A("s_lshr_b32 s81, s81, s14")
        A("s_lshl_b32 s81, s81, 16")
        A(f"v_mov_b32 v60, {LFLAG:#x}")
        A("v_mov_b32 v61, 1")
    def setup_late(A):
        A("v_lshrrev_b32 v5, 4, v1")
        A("v_and_b32 v37, 15, v1")
        A("v_lshl_add_u32 v38, v5, 3, v37")
        A("v_lshlrev_b32 v38, 1, v38")
        A("v_and_b32 v39, 1, v1")
        A("v_mul_u32_u24 v39, 4158, v39")
        A("v_sub_u32 v38, v38, v39")
        A("s_add_u32 s14, s13, 4160")
        A("v_add_u32 v16, s14, v38")
        for i in range(1, 4): A(f"v_add_u32 v{16+i}, {1024*i}, v16")
        A("v_lshlrev_b32 v38, 5, v37")
        A("v_lshlrev_b32 v39, 4, v5")
        A("v_sub_u32 v20, v39, v38")
        A("s_add_u32 s14, s82, 480")
        A("v_add_u32 v20, s14, v20")
        A("v_lshl_add_u32 v39, v5, 3, v38")
        A("s_add_u32 s14, s82, 504")
        A("v_sub_u32 v21, s14, v39")
        A("v_and_b32 v39, 1, v5")
        A("v_lshl_add_u32 v22, v39, 9, v38")
        A("v_lshrrev_b32 v39, 1, v5")
        A("v_lshl_add_u32 v22, v39, 4, v22")
        A("v_add_u32 v23, s82, v25")
    setup_conv(W)
    print("prep work items", len(work))
    def cissue(st):
        tile_of(A, st >> 1, 11)
        A("s_lshl_b32 s11, s11, 7")
        sr_ = "s[56:59]" if st % 2 == 0 else "s[60:63]"
        A("s_add_u32 s99, s11, s91")
        A(f"s_add_u32 m0, s10, {(st % NS2)*16384:#x}")
        for n in range(2):
            V.issue(f"buffer_load_dwordx4 v{VC+n}, {sr_}, s99 offen offset:{n*1024} lds")
        A("s_add_u32 s11, s11, s90")
        A(f"s_add_u32 m0, s10, {(st % NS2)*16384 + 8192:#x}")
        for n in range(2):
            V.issue(f"buffer_load_dwordx4 v{VC+n}, {sr_}, s11 offen offset:{n*1024} lds", ("C", st))
    def uloads():
        for i in range(4): A(f"buffer_load_dwordx4 {vr(UL+4*i,4)}, v25, s[68:71], 0 offen offset:{i*1024} sc1")
    def ctouch():
        A("s_cmp_ge_u32 s3, 2")
        A(f"s_cselect_b32 s96, s{P['Cim']}, s{P['Cre']}")
        A(f"s_cselect_b32 s97, s{P['Cim']+1}, s{P['Cre']+1}")
        A("s_lshl_b32 s98, s2, 13")
        A("s_and_b32 s99, s3, 1")
        A("s_lshl_b32 s99, s99, 12")
        A("s_add_u32 s98, s98, s99")
        A("v_and_b32 v240, 31, v1")
        if "km" in OPT:
            A("s_add_u32 s96, s96, s98")
            A("s_addc_u32 s97, s97, 0")
            A("s_lshl_b32 s98, s88, 12")
            A(f"s_add_u32 s98, s{P['ssmk']}, s98")
            A(f"s_addc_u32 s99, s{P['ssmk']+1}, 0")
            A("v_mov_b32 v242, s96")
            A("v_mov_b32 v243, s97")
            A("v_mov_b32 v244, s98")
            A("v_mov_b32 v245, s99")
            A("v_cmp_lt_u32 s[96:97], 31, v1")
            A("v_cndmask_b32 v242, v242, v244, s[96:97]")
            A("v_cndmask_b32 v243, v243, v245, s[96:97]")
            A("v_lshlrev_b32 v240, 7, v240")
            A("v_add_co_u32 v242, s[96:97], v242, v240")
            A("v_addc_co_u32 v243, s[96:97], 0, v243, s[96:97]")
            V.issue("global_load_dword v241, v[242:243], off")
        else:
            A("v_lshl_add_u32 v240, v240, 7, s98")
            V.issue("global_load_dword v241, v240, s[96:97]")
    FILL = opt("fill", 10)
    kst = [None]
    KW = opt("kw", 2)
    CHK = opt("chk", 13)
    KFS = opt("kfs", 12)
    KDS = opt("kds", 11)
    UWS = opt("uws", 14)
    WEND = min(KFS, KDS, 12)
    CM = opt("cm", 6)
    assert CHK < UWS <= 15 and opt("lates", 14) <= UWS
    nU = [0]; cdone = [0]
    NC0 = opt("nc0", 2)
    A(f"v_mov_b32 v6, {LFLAG:#x}")
    A("v_mov_b32 v7, 0")
    for o in (4, 8, 12, 16, 20) + ((24, 28, 32, 36) if "pz" in OPT else ()): A(f"ds_write_b32 v6, v7 offset:{o}")
    ST()
    A("s_waitcnt lgkmcnt(0)")
    V.wait("clr")
    ST()
    if "fine0" in OPT: STH()
    A("s_barrier")
    issue(2)
    if "fine0" in OPT: STH()
    for t, tag in gl: V.issue(t, tag)
    for s in range(N1):
        V.wait(("S", min(s+1, N1-1)))
        if kst[0] is not None and s == min(kst[0] + KW, 15): V.wait("kvt"); V.wait("g")
        if "fine1" in OPT: STH()
        A("s_barrier")
        if kst[0] is not None and s == min(kst[0] + KW, 15):
            A("s_cmp_lg_u32 s3, 0")
            A("s_cbranch_scc1 h_kflag")
            A("v_mov_b32 v6, 1")
            A("buffer_store_dword v6, v30, s[92:95], 0 offen sc1")
            A("h_kflag:")
            print("k flag after barrier", s+1)
        blocked[0] = False
        cur[0] = s
        FM = opt("fmode", 0)
        fl = opt("fill0", FILL) if s < opt("fill0n", 0) else FILL
        if s+3 < N1 and FM == 0: issue(s+3, fl if s >= PREP0 else 0)
        elif s+3 < N1 and FM == 1:
            issue(s+3)
            if s >= PREP0: do_work(8*FILL)
        if s == PL - 100: pass
        if s == PL and PL >= 0: kvdma()
        if s == CM: ctouch()
        if KVL and s == opt("cls", 6):
            A("v_lshlrev_b32 v246, 2, v1")
            V.issue(f"global_load_dword v247, v246, {sp('dbg')} sc1", "cls")
        if kst[0] is None and "kvt" in V.tags and "g" in V.tags: kst[0] = s
        if s == WEND:
            do_work(10000)
            assert wpos[0] == len(work), (wpos[0], len(work))
        if s == KFS:
            V.issue("buffer_load_dword v34, v33, s[76:79], 0 offen sc1")
            V.issue("buffer_load_dword v35, v32, s[92:95], 0 offen sc1", "kf")
            ST()
        if s == KDS and KDS < CHK:
            V.wait("g")
            A("s_add_u32 m0, s13, 32")
            for i in range(4): V.issue(f"buffer_load_dwordx4 v25, s[64:67], 0 offen offset:{i*1024}{NTP} lds")
            A("s_add_u32 m0, s13, 4192")
            for i in range(4): V.issue(f"buffer_load_dwordx4 v36, s[64:67], 0 offen offset:{i*1024}{NTP} lds", "K")
        if s == 13:
            srd(A, 56, "Cre", 2 << 20)
            srd(A, 60, "Cim", 2 << 20)
            A("s_lshl_b32 s10, s3, 11")
            A(f"s_add_u32 s10, s10, {CRING:#x}")
            A("s_lshr_b32 s90, s5, 3")
            A("s_xor_b32 s91, s90, 1")
            A("s_lshl_b32 s91, s91, 20")
            A("s_lshl_b32 s11, s90, 10")
            A("s_add_u32 s91, s91, s11")
            A("s_mul_i32 s90, s90, 0x100400")
            A("v_mov_b32 v56, 0")
            A("v_mov_b32 v57, 0")
            A("v_lshlrev_b32 v38, 3, v1")
            A("v_add_u32 v38, s82, v38")
            A("ds_write_b64 v38, v[56:57] offset:4096")
            ST()
        if s == CHK:
            V.wait("kf")
            A("s_mov_b32 s83, 0")
            A("v_and_b32 v34, 15, v34")
            A("v_cmp_ne_u32 vcc, 15, v34")
            A("v_cmp_ne_u32 s[84:85], 1, v35")
            A("s_or_b64 vcc, vcc, s[84:85]")
            A("s_cbranch_scc1 h_nou")
            A("s_mov_b32 s83, 1")
            uloads()
            A("h_nou:")
            nU[0] = V.n
        if s == KDS and KDS >= CHK:
            V.wait("g")
            A("s_add_u32 m0, s13, 32")
            for i in range(4): V.issue(f"buffer_load_dwordx4 v25, s[64:67], 0 offen offset:{i*1024}{NTP} lds")
            A("s_add_u32 m0, s13, 4192")
            for i in range(4): V.issue(f"buffer_load_dwordx4 v36, s[64:67], 0 offen offset:{i*1024}{NTP} lds", "K")
        if s == opt("lates", 14): setup_late(A)
        if s == 15:
            for z in range(NC0): cissue(z)
            cdone[0] = NC0
        if s == UWS:
            A("s_cmp_lg_u32 s83, 1")
            A("s_cbranch_scc1 h_nouw")
            A(f"s_waitcnt vmcnt({V.n - nU[0]})")
            for i in range(4): A(f"ds_write_b128 v23, {vr(UL+4*i,4)} offset:{1024*i}")
            A("h_nouw:")
    ST()
    if "hprio1" in OPT: A("s_setprio 0")
    A("s_cmp_lg_u32 s83, 0")
    A("s_cbranch_scc1 h_haveu")
    spin_all(A, "h_init", 34, "buffer_load_dword v34, v33, s[76:79], 0 offen sc1", "15", pre="v_and_b32 v34, 15, v34")
    spin_all(A, "h_kf", 35, "buffer_load_dword v35, v32, s[92:95], 0 offen sc1")
    uloads()
    A("s_waitcnt vmcnt(0)")
    for i in range(4): A(f"ds_write_b128 v23, {vr(UL+4*i,4)} offset:{1024*i}")
    A("h_haveu:")
    V.done = max(V.done, nU[0])
    V.wait("K")
    if "lowp" in OPT: A("s_setprio 1")
    lds_inc(A, 60, 61, 8)
    for i in range(4): A(f"s_mov_b32 s{84+i}, s{68+i}")
    srd(A, 68, "ws", 4 << 20, WS_KVT)
    A("s_waitcnt lgkmcnt(0)")
    ST()
    L = LQ(A)
    ops = []
    def reads(r):
        R = []
        s = r & 1
        for i in range(8):
            R.append((f"ds_read_b128 {vr(BF+s*32+i*4,4)}, v20 offset:{3584-512*i+64*r}", ("B", r, i)))
            o = 128*(i & 1) + 16*r
            d = AFR + s*32 + i*4
            R.append((f"ds_read2_b32 {vr(d,2)}, v{16+(i>>1)} offset0:{o} offset1:{o+1}", None))
            R.append((f"ds_read2_b32 {vr(d+2,2)}, v{16+(i>>1)} offset0:{o+2} offset1:{o+3}", ("A", r, i)))
        return R
    def first_order(R):
        return R[1:3] + [R[3*i] for i in range(8)] + [x for i in range(1, 8) for x in R[3*i+1:3*i+3]]
    KVT = 40
    for n in range(8): ops.append(("rd", f"ds_read_b64 {vr(KVT+2*n,2)}, v21 offset:{3584-512*n}", ("KV", n)))
    for t, tag in first_order(reads(0)): ops.append(("rd", t, tag))
    fill = []
    fill.append(("s_mov_b32 s12, 0xffff0000", None)); fill.append(("v_mov_b32 v26, s81", None))
    for n in range(8):
        k = KD + 4*n
        c = [f"v_and_b32 v{k}, s12, v{KVT+2*n+1}", f"v_lshlrev_b32 v{k+1}, 16, v{KVT+2*n+1}", f"v_and_b32 v{k+2}, s12, v{KVT+2*n}", f"v_lshlrev_b32 v{k+3}, 16, v{KVT+2*n}"]
        c += [f"v_mul_f32 v{k+i}, v{k+i}, v26" for i in range(4)]
        c += [f"v_cvt_pk_bf16_f32 v56, v{k}, v{k+1}", f"v_cvt_pk_bf16_f32 v57, v{k+2}, v{k+3}",
              f"v_lshlrev_b32 v{k}, 16, v56", f"v_and_b32 v{k+1}, s12, v56", f"v_lshlrev_b32 v{k+2}, 16, v57", f"v_and_b32 v{k+3}, s12, v57"]
        for i, t in enumerate(c): fill.append((t, ("KV", n) if i == 0 else None))
    YD = 40
    def post(n):
        y = ACC + 4*n; k = KD + 4*n
        d = YD + (n >> 1)*4 + (n & 1)*2
        c = [f"v_cvt_pk_bf16_f32 v56, v{y}, v{y+1}", f"v_cvt_pk_bf16_f32 v57, v{y+2}, v{y+3}",
             f"v_lshlrev_b32 v{y}, 16, v56", f"v_and_b32 v{y+1}, s12, v56", f"v_lshlrev_b32 v{y+2}, 16, v57", f"v_and_b32 v{y+3}, s12, v57"]
        c += [f"v_add_f32 v{k+i}, v{k+i}, v{y+i}" for i in range(4)]
        c += [f"v_cvt_pk_bf16_f32 v{d}, v{k}, v{k+1}", f"v_cvt_pk_bf16_f32 v{d+1}, v{k+2}, v{k+3}"]
        if n & 1:
            d = YD + (n >> 1)*4
            c += [f"v_permlane16_swap_b32 v{d}, v{d+2}", f"v_permlane16_swap_b32 v{d+1}, v{d+3}"]
            if "yinl" in OPT: c += [f"YST{n >> 1}"]
        return c
    ystores = [f"buffer_store_dwordx4 {vr(YD+4*k,4)}, v22, s[84:87], 0 offen offset:{k*1024} sc1" for k in range(4)]
    LATEC = opt("latec", 170)
    CFM = opt("cfm", 80)
    FPM = opt("fpm", 2)
    nmf = 0
    postq = []
    for r in range(8):
        s = r & 1
        nxt = first_order(reads(r+1)) if r < 7 else []
        cnt = 0
        for q in range(8):
            for n in range(q, 8):
                c = vr(ACC+4*n, 4)
                ops.append(("mf", f"v_mfma_f32_16x16x32_bf16 {c}, {vr(AFR+s*32+4*q,4)}, {vr(BF+s*32+4*(n-q),4)}, {'0' if (r == 0 and q == 0) else c}",
                            [("A", r, q), ("B", r, n-q)]))
                nmf += 1; cnt += 1
                if nxt and cnt >= 2:
                    t, tag = nxt.pop(0); ops.append(("rd", t, tag))
                elif r < 7:
                    for z in range(FPM):
                        if fill: ops.append(("fill",) + fill.pop(0))
                if "pz" in OPT and opt("pz0", 90) <= nmf <= opt("pz1", 250) and (nmf - opt("pz0", 90)) % opt("pzs", 12) == 0:
                    ops.append(("pzr", nmf))
                if "pz" in OPT and opt("pz0", 90) <= nmf - 6 <= opt("pz1", 250) and (nmf - 6 - opt("pz0", 90)) % opt("pzs", 12) == 0:
                    ops.append(("pzc", nmf - 6))
                if nmf == LATEC: ops.append(("latec",))
                if nmf == CFM: ops.append(("cf",))
                if nmf == opt("cf2m", 240) and FBAR > 1: ops.append(("cf2",))
                if r == 7:
                    if n == q: postq += [(nmf + 3, t) for t in post(n)]
                    for z in range(opt("ppm", 3)):
                        if postq and postq[0][0] <= nmf and q < 7: ops.append(("fill", postq.pop(0)[1], None))
        assert not nxt
    assert not fill and CFM < LATEC
    for _, t in postq: ops.append(("fill", t, None))
    pzslow = []
    if "pz" in OPT:
        A("s_lshl_b32 s8, s3, 2")
        A(f"s_add_u32 s8, s8, {LFLAG:#x}")
        A("v_mov_b32 v62, s8")
    AB = int(OPT.get("ablc", 0))
    for op in ops:
        if AB & 1 and op[0] in ("rd", "mf", "fill"): continue
        if op[0] == "rd": L.issue(op[1], op[2])
        elif op[0] == "mf":
            for t in op[2]: pass
            k = max(op[2], key=lambda t: L.tags[t])
            L.wait(k)
            A(op[1])
        elif op[0] == "fill":
            if op[2] is not None: L.wait(op[2])
            if op[1].startswith("YST"): V.issue(ystores[int(op[1][3:])], "y2")
            else: A(op[1])
        elif op[0] == "pzr": L.issue("ds_read_b32 v63, v62 offset:24", ("Z", op[1]))
        elif op[0] == "pzc":
            L.wait(("Z", op[1]))
            A("v_readfirstlane_b32 s83, v63")
            A("s_cmp_lg_u32 s83, 0")
            A(f"s_cbranch_scc1 h_pz{op[1]}_s")
            A(f"h_pz{op[1]}:")
            pzslow.append(op[1])
        elif op[0] == "latec":
            while cdone[0] < NS2: cissue(cdone[0]); cdone[0] += 1
        elif op[0] == "cf2":
            V.wait(("C", 3))
            lds_inc(A, 60, 61, 20); L.n += 1
        elif op[0] == "cf":
            while cdone[0] < 2: cissue(cdone[0]); cdone[0] += 1
            V.wait(("C", 1))
            lds_inc(A, 60, 61, 16); L.n += 1
    ST()
    if "lowp" in OPT: A("s_setprio 0")
    YST = opt("yst", 0)
    if YST == 0 and "yinl" not in OPT:
        for t in ystores:
            if AB & 2: V.tags["y2"] = V.n
            else: V.issue(t, "y2")
    A("v_lshrrev_b32 v8, 4, v1")
    A("s_lshl_b32 s8, s3, 4")
    A("v_add_u32 v8, s8, v8")
    A("v_and_b32 v11, 15, v1")
    A("s_lshl_b32 s9, s5, 11")
    A(f"s_add_u32 s9, s9, {YF_OFF:#x}")
    A("v_lshl_add_u32 v10, v11, 7, s9")
    A("v_lshlrev_b32 v11, 4, v11")
    A("v_mul_u32_u24 v9, 272, v8")
    A("v_add_u32 v9, v9, v11")
    A("s_lshl_b32 s8, s5, 6")
    A("v_add_u32 v8, s8, v8")
    A("v_lshl_add_u32 v8, v8, 12, v11")
    A("s_lshl_b32 s8, s4, 8")
    A("v_add_u32 v8, s8, v8")
    ST()
    YR = 116
    YFL_LD = "buffer_load_dword v19, v10, s[92:95], 0 offen sc1"
    YFL, GYF, GYL, GYW = opt("yfl", 5), opt("gyf", 8), opt("gyl", 10), opt("gyw", 12)
    for st in range(FBAR, N2-1):
        V.wait(("C", st+1))
        if "fineh" in OPT: STH()
        A("s_barrier")
        if st == FBAR:
            for z in range(NS2, FBAR + NS2): cissue(z)
        elif st + NS2 - 1 < N2: cissue(st + NS2 - 1)
        if "abl" in OPT and st >= 2 and st < 13 and int(OPT["abl"]) & 1:
            continue_ = True
            for tg in ("y2", "xt", "yf", "eps"): V.tags.setdefault(tg, 0)
            continue
        if YST and st == YST:
            for t in ystores: V.issue(t, "y2")
        if st == YFL:
            V.wait("y2")
            A("s_mov_b64 exec, 1")
            A("ds_add_rtn_u32 v62, v60, v61 offset:4")
            A("s_mov_b64 exec, -1")
            A("s_waitcnt lgkmcnt(0)")
            A("v_readfirstlane_b32 s83, v62")
            A("s_cmp_lg_u32 s83, 3")
            A("s_cbranch_scc1 h_noy")
            A("buffer_store_dword v61, v31, s[92:95], 0 offen sc1")
            A("h_noy:")
        if st == GYF: V.issue(YFL_LD, "yf")
        if st == GYL:
            V.wait("yf")
            spin_all(A, "h_yf", 19, YFL_LD)
            for i in range(4):
                A(f"s_mov_b32 s8, {i*16384}")
                V.issue(f"buffer_load_dwordx4 {vr(YR+i*4,4)}, v8, s[68:71], s8 offen sc1", "eps")
        if st == GYW:
            V.wait("eps")
            for i in range(4): A(f"ds_write_b128 v9, {vr(YR+i*4,4)} offset:{i*4*272}")
            A("s_waitcnt lgkmcnt(0)")
    assert YST < YFL < GYF < GYL < GYW <= N2 - 3
    STH.flush()
    ST.flush()
    A("s_endpgm")
    for k in pzslow:
        A(f"h_pz{k}_s:")
        A(f"s_mov_b32 s89, {SPIN*4}")
        A(f"h_pz{k}_l:")
        A("s_sleep 1")
        A("ds_read_b32 v63, v62 offset:24")
        A("s_waitcnt lgkmcnt(0)")
        A("v_readfirstlane_b32 s83, v63")
        A("s_cmp_eq_u32 s83, 0")
        A(f"s_cbranch_scc1 h_pz{k}")
        A("s_sub_u32 s89, s89, 1")
        A(f"s_cbranch_scc1 h_pz{k}")
        A(f"s_branch h_pz{k}_l")

def build():
    s = header_comments()
    s += "; generated by tools/gen9.py (fused single kernel, split-K GEMM2; gen8 h layout)\n"
    s += "; @launch grid=(256,1,1) block=(512,1,1) lds=163840\n"
    s += '.amdgcn_target "amdgcn-amd-amdhsa--gfx950"\n.text\n'
    A = Asm()
    A.raw(f".globl {KN}\n.p2align 8\n.type {KN},@function")
    gen_kernel(A)
    s += A.render()
    s += descriptor(KN, 256, 102)
    import subprocess, tempfile, re
    with tempfile.TemporaryDirectory() as td:
        open(td + "/a.s", "w").write(s.replace("CODE_LAST", "0x12345"))
        subprocess.run(["clang", "-x", "assembler", "-target", "amdgcn-amd-amdhsa", "-mcpu=gfx950", "-c", td + "/a.s", "-o", td + "/a.o"], check=True)
        o = subprocess.run(["llvm-objdump", "-h", td + "/a.o"], capture_output=True, text=True).stdout
    size = int(re.search(r"\.text\s+([0-9a-f]+)", o).group(1), 16)
    if "al8" in OPT:
        pat = {"1": ("v_mfma_f32_32x32",), "2": ("v_mfma",), "3": ("v_mfma", "ds_read_b128", "ds_read_b64_tr", "buffer_load_dwordx4")}[str(OPT["al8"])]
        with tempfile.TemporaryDirectory() as td:
            open(td + "/a.s", "w").write(s.replace("CODE_LAST", "0x12345"))
            subprocess.run(["clang", "-x", "assembler", "-target", "amdgcn-amd-amdhsa", "-mcpu=gfx950", "-c", td + "/a.s", "-o", td + "/a.o"], check=True)
            d = subprocess.run(["llvm-objdump", "-d", td + "/a.o"], capture_output=True, text=True).stdout
        sizes = [4 * len(m.group(1).split()) for m in re.finditer(r"// [0-9A-F]+: ([0-9A-F ]+)$", d, re.M)]
        out = []; addr = 0; k = 0; incode = False; nins = 0
        for ln in s.split("\n"):
            st = ln.strip()
            if st == f"{KN}:": incode = True
            if st.startswith(".section"): incode = False
            if incode and ln.startswith("    ") and st and not st.startswith(";"):
                sz = sizes[k]; k += 1
                if sz == 8 and addr % 8 == 4 and st.startswith(pat):
                    out.append("    s_nop 0"); addr += 4; nins += 1
                addr += sz
            out.append(ln)
        assert k == len(sizes), (k, len(sizes))
        s = "\n".join(out); size = addr
        print("alignment nops", nins)
    if "shift" in OPT:
        s = s.replace(f"{KN}:\n", f"{KN}:\n" + "    s_nop 0\n" * int(OPT["shift"]), 1); size += 4 * int(OPT["shift"])
    print("code bytes", size)
    assert size <= 65536
    return s.replace("CODE_LAST", hex(size - 4))

if __name__ == "__main__":
    out = sys.argv[1] if len(sys.argv) > 1 and not sys.argv[1].startswith("--") else os.path.join(os.path.dirname(os.path.abspath(__file__)), "..", NAME + ".s")
    open(out, "w").write(build())
    print("wrote", out)
```

```python
import sys, os
sys.path.insert(0, os.path.dirname(os.path.abspath(__file__)))
from asmlib import Asm
from gen import (NAME, P, sp, vr, sr, load_kernargs, srd, pk, cmul, tile_ids, Stamper, OPT, header_comments, descriptor)
import gen

KN = NAME + "_kernel"
WS_H    = 0
WS_KVT  = 8 << 20
WS_G    = 16 << 20
WS_EBOX = 17 << 20
WS_FLG  = 18 << 20
HF_OFF  = 0
KF_OFF  = 128 << 10
YF_OFF  = 160 << 10
PF_OFF  = 192 << 10
FLG_SZ  = 320 << 10
WS_PART = 24 << 20
N1 = 16
N2 = 16
NS2 = 4
PD = 4
CRING = 32768
KREG = 98304
UREG = KREG + 4*8320
LFLAG = UREG + 4*4608
SPIN = int(OPT.get("spin", 1 << 16))
SLEEP = int(OPT.get("sleep", 4))
def opt(k, d): return int(OPT.get(k, d))

class VQ:
    def __init__(self, A): self.A = A; self.n = 0; self.tags = {}; self.done = 0
    def issue(self, text, tag=None):
        self.A(text); self.n += 1
        if tag is not None: self.tags[tag] = self.n
    def wait(self, tag):
        k = self.tags[tag]
        if k <= self.done: return
        cnt = min(63, self.n - k)
        self.A(f"s_waitcnt vmcnt({cnt})"); self.done = self.n - cnt
    def drained(self): self.done = self.n

class LQ:
    def __init__(self, A): self.A = A; self.n = 0; self.tags = {}; self.done = 0
    def issue(self, text, tag=None):
        self.A(text); self.n += 1
        if tag is not None: self.tags[tag] = self.n
    def wait(self, tag):
        k = self.tags[tag]
        if k > self.done:
            self.A(f"s_waitcnt lgkmcnt({min(15, self.n - k)})"); self.done = max(k, self.n - 15)
    def drain(self):
        self.A("s_waitcnt lgkmcnt(0)"); self.done = self.n

def spin_all(A, name, vreg, reload, cmpval="1", sctr=89, pre=None):
    A(f"s_mov_b32 s{sctr}, {SPIN}")
    A(f"{name}_chk:")
    if pre: A(pre)
    A(f"v_cmp_ne_u32 vcc, {cmpval}, v{vreg}")
    A("s_cmp_eq_u64 vcc, 0")
    A(f"s_cbranch_scc1 {name}_ok")
    A(f"s_sub_u32 s{sctr}, s{sctr}, 1")
    A(f"s_cbranch_scc1 {name}_ok")
    A(f"s_sleep {SLEEP}")
    A(reload)
    A("s_waitcnt vmcnt(0)")
    A(f"s_branch {name}_chk")
    A(f"{name}_ok:")

def lds_spin(A, name, vaddr, off, vtmp, target, stmp=8, sctr=89):
    A(f"s_mov_b32 s{sctr}, {SPIN*4}")
    A(f"{name}:")
    A(f"ds_read_b32 v{vtmp}, v{vaddr} offset:{off}")
    A("s_waitcnt lgkmcnt(0)")
    A(f"v_readfirstlane_b32 s{stmp}, v{vtmp}")
    A(f"s_cmp_ge_u32 s{stmp}, {target}")
    A(f"s_cbranch_scc1 {name}_ok")
    A(f"s_sub_u32 s{sctr}, s{sctr}, 1")
    A(f"s_cbranch_scc0 {name}")
    A(f"{name}_ok:")

def lds_inc(A, vaddr, vone, off):
    A("s_mov_b64 exec, 1")
    A(f"ds_add_u32 v{vaddr}, v{vone} offset:{off}")
    A("s_mov_b64 exec, -1")

def zip_chains(A, chains):
    chains = [[x for t in c for x in t.split("\n")] for c in chains]
    for i in range(max(len(c) for c in chains)):
        for c in chains:
            if i < len(c): A(c[i])

def local_check(A, vbits, vtmp, sdst_pair, stmp):
    A(f"s_getreg_b32 s{stmp}, hwreg(HW_REG_XCC_ID, 0, 4)")
    A(f"s_lshl_b32 s{stmp}, 0x100, s{stmp}")
    A(f"s_or_b32 s{stmp}, s{stmp}, 15")
    A(f"v_and_b32 v{vtmp}, 7, v1")
    A(f"v_cmp_eq_u32 s[{sdst_pair}:{sdst_pair+1}], s54, v{vtmp}")
    A(f"v_cmp_ne_u32 vcc, s{stmp}, v{vbits}")
    A(f"s_and_b64 vcc, vcc, s[{sdst_pair}:{sdst_pair+1}]")

SNT = opt("snt", 1)
PB = opt("pb", 1)
NPQ = 4 if PB else 8
FBAR = opt("fb", 2)
OS = str(OPT.get("os", "_nt")).replace("_", " ")
ORD = opt("ord", 1)
def tile_of(A, i, dst):
    if i == 0: A(f"s_mov_b32 s{dst}, s15")
    elif ORD:
        A(f"s_cmp_le_u32 s15, {i-1}")
        A(f"s_cselect_b32 s{dst}, {i}, {i-1}")
    else:
        A(f"s_add_u32 s{dst}, s15, {i}")
        A(f"s_and_b32 s{dst}, s{dst}, 7")

def gen_kernel(A):
    A(f"{KN}:")
    A("s_cmp_ge_u32 s2, 256")
    A("s_cbranch_scc1 L_end")
    load_kernargs(A)
    tile_ids(A)
    A("v_and_b32 v1, 63, v0")
    A("v_lshrrev_b32 v2, 6, v0")
    A("s_and_b32 s15, s5, 7")
    A("v_readfirstlane_b32 s3, v2")
    A("s_cmp_ge_u32 s3, 4")
    A("s_cbranch_scc0 L_consumer")
    helper(A)
    A("L_consumer:")
    consumer(A)
    A("L_end:")
    A("s_endpgm")


def consumer(A):
    ACC = 64
    FA, FB = 128, 144
    AD, BD = 160, 168
    LAM, C2, MU, MU2, MU4, MU8 = 176, 178, 180, 182, 184, 186
    EL = 192
    UR2 = 224
    ST = Stamper(A, 0, 63)
    ST()
    A(f"s_setprio {opt('prio', 2)}")
    A("s_and_b32 s6, s3, 1")
    A("s_lshr_b32 s7, s3, 1")
    A("v_and_b32 v4, 31, v1")
    A("s_lshl_b32 s8, s5, 6")
    A("s_lshl_b32 s9, s7, 5")
    A("s_add_u32 s8, s8, s9")
    A("v_add_u32 v3, s8, v4")
    A("v_lshlrev_b32 v5, 1, v3")
    A("v_lshrrev_b32 v6, 5, v1")
    A("s_lshl_b32 s10, s4, 1")
    A("s_add_u32 s10, s10, s6")
    if "nocode" not in OPT:
        A("s_getpc_b64 s[12:13]")
        A("c_pc:")
        A(f"s_sub_u32 s12, s12, c_pc-{KN}")
        A("s_subb_u32 s13, s13, 0")
        if opt("cpf", 1) == 0:
            A("s_lshl_b32 s11, s3, 14")
            A("v_lshl_add_u32 v24, v1, 7, s11")
            A("v_min_u32 v24, CODE_LAST, v24")
            A("global_load_dword v25, v24, s[12:13]")
            A("v_add_u32 v24, 0x2000, v24")
            A("v_min_u32 v24, CODE_LAST, v24")
            A("global_load_dword v26, v24, s[12:13]")
        else:
            A("s_lshl_b32 s11, s55, 2")
            A("s_add_u32 s11, s11, s3")
            A("s_lshl_b32 s11, s11, 9")
            A("v_and_b32 v24, 3, v1")
            A("v_lshl_add_u32 v24, v24, 7, s11")
            A("v_min_u32 v24, CODE_LAST, v24")
            A("global_load_dword v25, v24, s[12:13]")
    A("s_waitcnt lgkmcnt(0)")
    A(f"global_load_ushort v8, v5, {sp('Lre')}")
    A(f"global_load_ushort v9, v5, {sp('Lim')}")
    A(f"global_load_ushort v10, v5, {sp('logdt')}")
    srd(A, 56, "ws", 256 << 10, WS_EBOX)
    srd(A, 60, "ws", 8 << 20, WS_H)
    srd(A, 64, "dbg", 256)
    srd(A, 68, "ws", FLG_SZ, WS_FLG)
    A("s_lshl_b32 s11, s10, 13")
    A("v_lshl_add_u32 v7, v3, 3, s11")
    A("v_mov_b32 v12, 0")
    A("v_mov_b32 v13, 0")
    A("buffer_store_dwordx2 v[12:13], v7, s[56:59], 0 offen sc1")
    A("s_lshl_b32 s11, s10, 4")
    A("s_add_u32 s11, s11, s5")
    A("s_lshl_b32 s11, s11, 1")
    A("s_add_u32 s11, s11, s7")
    A("s_lshl_b32 s11, s11, 7")
    A("v_mov_b32 v60, s11")
    A("buffer_store_dword v12, v60, s[68:71], 0 offen sc1")
    A("s_lshl_b32 s72, s4, 4")
    A("s_add_u32 s72, s72, s5")
    A("s_lshl_b32 s72, s72, 2")
    A("s_add_u32 s72, s72, s3")
    A("s_lshl_b32 s72, s72, 7")
    A(f"s_add_u32 s11, s72, {PF_OFF:#x}")
    A("v_mov_b32 v30, s11")
    A("buffer_store_dword v12, v30, s[68:71], 0 offen sc1")
    A("v_mov_b32 v23, 1")
    A("v_bfe_u32 v11, v1, 1, 3")
    A("v_xor_b32 v11, v11, v6")
    A("s_lshl_b32 s11, s6, 13")
    A("v_lshl_add_u32 v14, v4, 7, s11")
    A("s_lshl_b32 s11, s7, 12")
    A("s_add_u32 s11, s11, 16384")
    A("v_lshl_add_u32 v15, v4, 7, s11")
    for ks in range(4):
        A(f"v_xor_b32 v16, {2*ks}, v11")
        A(f"v_lshl_add_u32 v{AD+ks}, v16, 4, v14")
        A(f"v_lshl_add_u32 v{BD+ks}, v16, 4, v15")
        A(f"v_add_u32 v{AD+4+ks}, 0x10000, v{AD+ks}")
        A(f"v_add_u32 v{BD+4+ks}, 0x10000, v{BD+ks}")
    A("v_lshlrev_b32 v21, 2, v1")
    A("s_waitcnt vmcnt(0)")
    A("v_lshlrev_b32 v8, 16, v8")
    A("v_lshlrev_b32 v9, 16, v9")
    A("v_lshlrev_b32 v10, 16, v10")
    A("s_mov_b32 s12, 0x3fb8aa3b")
    A("v_mul_f32 v10, s12, v10")
    A("v_exp_f32 v10, v10")
    A("v_cvt_pk_bf16_f32 v10, v10, v10")
    A("v_lshlrev_b32 v10, 16, v10")
    A("v_mul_f32 v16, v10, v8")
    A("v_mul_f32 v17, v10, v9")
    A("v_mul_f32 v16, s12, v16")
    A("v_exp_f32 v16, v16")
    A("v_mul_f32 v17, 0.15915494, v17")
    A("v_rndne_f32 v18, v17")
    A("v_sub_f32 v17, v17, v18")
    A("v_cos_f32 v18, v17")
    A("v_sin_f32 v19, v17")
    A(f"v_mul_f32 v{LAM}, v16, v18")
    A(f"v_mul_f32 v{LAM+1}, v16, v19")
    A(f"v_add_f32 v16, -1.0, v{LAM}")
    A("v_mul_f32 v17, v8, v8")
    A("v_fma_f32 v17, v9, v9, v17")
    A("v_rcp_f32 v17, v17")
    A("v_mul_f32 v18, v16, v8")
    A(f"v_fma_f32 v18, v{LAM+1}, v9, v18")
    A(f"v_mul_f32 v19, v{LAM+1}, v8")
    A("v_fma_f32 v19, -v16, v9, v19")
    A("v_add_f32 v17, v17, v17")
    A(f"v_mul_f32 v{C2}, v18, v17")
    A(f"v_mul_f32 v{C2+1}, v19, v17")
    cmul(A, 16, LAM, LAM); cmul(A, 18, 16, 16); cmul(A, 16, 18, 18)
    cmul(A, MU, 16, 16); cmul(A, MU2, MU, MU); cmul(A, MU4, MU2, MU2); cmul(A, MU8, MU4, MU4)
    cmul(A, 48, C2, MU2)
    A("v_cmp_lt_u32 vcc, 31, v1")
    A(f"v_cndmask_b32 v48, v{C2}, v48, vcc")
    A(f"v_cndmask_b32 v49, v{C2+1}, v49, vcc")
    A("v_lshlrev_b32 v50, 13, v6")
    A("v_sub_u32 v50, v7, v50")
    A("s_add_u32 s11, s10, 1")
    A("v_sub_u32 v51, s11, v6")
    A("v_lshrrev_b32 v51, 1, v51")
    A("s_lshl_b32 s11, s4, 2")
    A("s_add_u32 s11, s11, s3")
    A("s_lshl_b32 s11, s11, 5")
    A("v_lshrrev_b32 v52, 3, v1")
    A("v_add_u32 v52, s11, v52")
    A("v_lshlrev_b32 v52, 11, v52")
    A("v_and_b32 v16, 7, v1")
    A("v_lshl_add_u32 v52, v16, 4, v52")
    A("s_lshl_b32 s11, s5, 7")
    A("v_add_u32 v52, s11, v52")
    A("s_lshl_b32 s11, s3, 13")
    A("v_lshlrev_b32 v53, 11, v6")
    A("v_lshl_add_u32 v53, v4, 1, v53")
    A("v_add_u32 v53, s11, v53")
    A("s_lshl_b32 s11, s5, 6")
    A("v_add_u32 v54, s11, v4")
    A("v_lshlrev_b32 v54, 1, v54")
    srd(A, 76, "x", 4 << 20)
    srd(A, 92, "ws", 8 << 20, WS_PART)
    A("s_xor_b32 s73, s72, 4096")
    A("s_lshl_b32 s74, s73, 6")
    A("s_add_u32 s75, s74, 4096")
    A("v_lshlrev_b32 v59, 4, v1")
    if opt("tlb", 0) & 1:
        A("s_lshl_b32 s11, s4, 19")
        A("v_mov_b32 v16, s11")
        A("buffer_load_dword v55, v16, s[60:63], 0 offen sc1")
        srd(A, 84, "out", 8 << 20)
        A("buffer_load_dword v56, v16, s[84:87], 0 offen sc1")
        A("v_mov_b32 v16, s74")
        A("buffer_load_dword v57, v16, s[92:95], 0 offen sc1")
        A("s_lshl_b32 s11, s72, 6")
        A("v_mov_b32 v16, s11")
        A("buffer_load_dword v58, v16, s[92:95], 0 offen sc1")

    def rd(stage, ks, buf, which):
        slot = stage % 3
        hi = 4 if slot >= 2 else 0
        so = (slot & 1) * 32768
        if which < 2:
            return f"ds_read_b128 {vr(FA+buf*8+which*4,4)}, v{AD+hi+ks} offset:{so + which*4096}"
        ri = which - 2
        return f"ds_read_b128 {vr(FB+buf*8+ri*4,4)}, v{BD+hi+ks} offset:{so + ri*8192}"
    def mf(buf, mt, ri, first):
        acc = ACC + ri*32 + mt*16
        return f"v_mfma_f32_32x32x16_bf16 {vr(acc,16)}, {vr(FA+buf*8+mt*4,4)}, {vr(FB+buf*8+ri*4,4)}, {'0' if first else vr(acc,16)}"
    RD_ORDER = [0, 2, 1, 3]
    MF_ORDER = [(0,0), (1,0), (1,1), (0,1)]
    ST()
    A("s_barrier")
    ST()
    A("s_cmp_lg_u32 s3, 0")
    A("s_cbranch_scc1 c_noflag")
    A("s_lshr_b32 s11, s2, 6")
    A("s_lshl_b32 s11, 1, s11")
    A("s_getreg_b32 s12, hwreg(HW_REG_XCC_ID, 0, 4)")
    A("s_lshl_b32 s12, 0x100, s12")
    A("s_or_b32 s11, s11, s12")
    A("v_mov_b32 v16, s11")
    A("s_and_b32 s11, s2, 63")
    A("s_lshl_b32 s11, s11, 2")
    A("v_mov_b32 v17, s11")
    A("s_mov_b64 exec, 1")
    A("buffer_atomic_or v16, v17, s[64:67], 0 offen sc1")
    A("s_mov_b64 exec, -1")
    A("c_noflag:")
    for w in RD_ORDER: A(rd(0, 0, 0, w))
    for s in range(N1):
        for ks in range(4):
            buf = ks & 1
            last = (s == N1-1 and ks == 3)
            if ks == 3:
                A("s_waitcnt lgkmcnt(0)")
                A("s_barrier")
            ns, nks = (s, ks+1) if ks < 3 else (s+1, 0)
            for i in range(4):
                if ks < 3 and i < 3: A("s_waitcnt lgkmcnt(2)")
                A(mf(buf, *MF_ORDER[i], s == 0 and ks == 0))
                if not last: A(rd(ns, nks, buf ^ 1, RD_ORDER[i]))
            if (s in (3, 7, 11) if "fine1" not in OPT else s >= 3) and ks == 3: ST()
            if s == 12 and ks == 0:
                A("buffer_load_dword v20, v21, s[64:67], 0 offen sc1")
    ST()
    if "fine1" in OPT: ST.n = 40
    gen.SAFE_PK[0] = bool(opt("pk", 0) & 1)
    def UR(t): return ACC + (t >> 3)*16 + 2*(t & 7)
    def UI(t): return ACC + 32 + (t >> 3)*16 + 2*(t & 7)
    E = [(24, 26), (28, 30 - 30 + 44)]
    cr, ci = UR(0), UI(0)
    for t in range(1, 16):
        nr, ni = E[t & 1]
        A(pk("fma", nr, cr, LAM, UR(t), bsel=0))
        A(pk("fma", ni, ci, LAM, UI(t), bsel=0))
        A(pk("fma", nr, ci, LAM, nr, bsel=1, neg_b=True))
        A(pk("fma", ni, cr, LAM, ni, bsel=1))
        cr, ci = nr, ni
    A("v_mov_b32 v32, v28\nv_mov_b32 v33, v44\nv_mov_b32 v34, v29\nv_mov_b32 v35, v45")
    cmul(A, 36, MU, 32, add=34)
    A("v_mov_b32 v38, v36\nv_mov_b32 v39, v37\nv_mov_b32 v40, 0\nv_mov_b32 v41, 0")
    A("v_permlane32_swap_b32 v40, v38")
    A("v_permlane32_swap_b32 v41, v39")
    cmul(A, 42, MU2, 40, add=36)
    A("v_or_b32 v42, 1, v42")
    A("s_mov_b32 s12, 0")
    A("s_mov_b32 s13, -1")
    A("s_mov_b64 exec, s[12:13]")
    A("buffer_store_dwordx2 v[42:43], v7, s[56:59], 0 offen sc1")
    A("s_mov_b64 exec, -1")
    def scaling():
        for t in range(16):
            n = UR2 + 2*t
            A(pk("mul", n, UR(t), C2, bsel=0))
            A(pk("fma", n, UI(t), C2, n, bsel=1, neg_b=True))
            A(pk("mul", UI(t), UI(t), C2, bsel=0))
            A(pk("fma", UI(t), UR(t), C2, UI(t), bsel=1))
        cmul(A, 44, C2, 40)
        cmul(A, 46, C2, 32)
    if "lowp" in OPT: A("s_setprio 0")
    ST()
    A("s_lshl_b32 s9, s3, 13")
    for i in range(4):
        A(f"s_add_u32 m0, s9, {i*1024}")
        A(f"s_mov_b32 s8, {i*16384}")
        A("buffer_load_dwordx4 v52, s[76:79], s8 offen lds")
    for q in range(2):
        A(f"global_load_ushort v{9+q}, v54, {sp('Dskip')} offset:{q*64}")
    if SNT:
        for i in range(4): A(f"v_mov_b32 v{24+i}, -1")
        for i in range(NPQ): A(f"buffer_store_dwordx4 v[24:27], v59, s[92:95], s{74 if i < 4 else 75} offen offset:{(i & 3)*1024} sc1")
    if "pollfirst" not in OPT: scaling()
    for k in range(16):
        A(f"v_subrev_u32 v{128+k}, {(1+2*k)*8192:#x}, v50")
    ST()
    A(f"s_waitcnt vmcnt({7 + NPQ if SNT else 7})")
    spin_all(A, "c_init", 52, "buffer_load_dword v20, v21, s[64:67], 0 offen sc1", "15", pre="v_and_b32 v52, 15, v20")
    local_check(A, 20, 52, 12, 11)
    A("s_cselect_b32 s14, 0, 1")
    if "nolocal" in OPT: A("s_mov_b32 s14, 0")
    for k in range(16):
        A(f"buffer_load_dwordx2 {vr(EL+2*k,2)}, v{128+k}, s[56:59], 0 offen sc1")
    if "pollfirst" in OPT: scaling()
    XP = list(range(73, 89))
    XDP = [89, 90, 91, 92, 93, 94, 95, 54, 55, 56, 57, 58, 59, 61, 5, 12]
    A(f"s_waitcnt vmcnt({16 + NPQ if SNT else 16})")
    XT = [160 + i for i in range(16)] + [73 + i for i in range(16)]
    for nt in range(2):
        for r in range(16): A(f"ds_read_u16 v{XT[nt*16+r]}, v53 offset:{r*128+nt*64}")
    A("s_waitcnt lgkmcnt(0)")
    for m in range(8): A(f"v_lshl_or_b32 v{XP[8+m]}, v{XT[16+2*m+1]}, 16, v{XT[16+2*m]}" if False else f"v_lshl_or_b32 v{64+m}, v{XT[16+2*m+1]}, 16, v{XT[16+2*m]}")
    for m in range(8): A(f"v_lshl_or_b32 v{XP[m]}, v{XT[2*m+1]}, 16, v{XT[2*m]}")
    for m in range(8): A(f"v_mov_b32 v{XP[8+m]}, v{64+m}")
    BD2 = 32
    A("s_lshl_b32 s11, s3, 13")
    A("v_lshl_add_u32 v16, v6, 11, s11")
    A("v_lshl_add_u32 v16, v4, 6, v16")
    A("v_bfe_u32 v17, v1, 1, 2")
    for q in range(4):
        A(f"v_xor_b32 v18, {q}, v17")
        A(f"v_lshl_add_u32 v{64+q}, v18, 4, v16")
    A("v_mov_b32 v31, 1")
    A("v_bfe_u32 v16, v1, 2, 2")
    A("v_lshl_add_u32 v16, v6, 3, v16")
    A("v_and_b32 v24, 1, v1")
    A("v_bfe_u32 v18, v1, 4, 1")
    A("v_lshl_add_u32 v24, v24, 1, v18")
    A("v_bfe_u32 v18, v16, 1, 2")
    A("v_xor_b32 v24, v24, v18")
    A("v_lshlrev_b32 v24, 4, v24")
    A("v_lshl_add_u32 v24, v16, 6, v24")
    A("v_bfe_u32 v18, v1, 1, 1")
    A("v_lshl_add_u32 v24, v18, 3, v24")
    A("v_xor_b32 v25, 32, v24")
    A("v_add_u32 v25, 256, v25")
    A("v_add_u32 v68, s11, v24")
    A("v_add_u32 v69, s11, v25")
    A("s_lshl_b32 s11, s4, 7")
    A("s_lshl_b32 s12, s6, 6")
    A("s_add_u32 s11, s11, s12")
    A("s_and_b32 s12, s5, 7")
    A("s_lshl_b32 s12, s12, 2")
    A("s_add_u32 s11, s11, s12")
    A("s_add_u32 s11, s11, s7")
    A("s_lshl_b32 s11, s11, 12")
    A("s_lshr_b32 s13, s5, 3")
    A("s_lshl_b32 s13, s13, 11")
    A("s_add_u32 s11, s11, s13")
    A("v_lshl_add_u32 v72, v1, 4, s11")
    A(f"v_mov_b32 v20, {LFLAG:#x}")
    A("s_lshl_b32 s6, s4, 2")
    A("s_add_u32 s6, s6, s3")
    A("s_lshr_b32 s7, s3, 1")
    A("s_lshl_b32 s7, s7, 13")
    A("s_and_b32 s8, s3, 1")
    A("s_lshl_b32 s8, s8, 11")
    A("s_add_u32 s7, s7, s8")
    A("v_add_u32 v70, s7, v24")
    A("v_add_u32 v71, s7, v25")
    A("s_lshl_b32 s7, s6, 17")
    A("s_add_u32 s7, s7, s13")
    A("v_lshl_add_u32 v3, v1, 4, s7")
    A("v_add_u32 v2, 0x1000, v3")
    A(f"v_lshlrev_b32 v14, 7, v4")
    A(f"v_add_u32 v14, {CRING:#x}, v14")
    for ks in range(4):
        A(f"v_xor_b32 v16, {2*ks}, v11")
        A(f"v_lshl_add_u32 v{BD2+ks}, v16, 4, v14")
    A("s_lshr_b32 s7, s6, 1")
    A("s_lshl_b32 s7, s7, 12")
    A("s_add_u32 s7, s7, s13")
    A("v_bfe_u32 v16, v1, 1, 3")
    if ORD:
        A("v_subrev_u32 v14, 1, v16")
        A("v_cmp_le_u32 vcc, s15, v14")
        A("v_cndmask_b32 v14, v14, v16, vcc")
        A("v_mov_b32 v19, s15")
        A("v_cmp_eq_u32 vcc, 0, v16")
        A("v_cndmask_b32 v16, v14, v19, vcc")
    else:
        A("v_add_u32 v16, s15, v16")
        A("v_and_b32 v16, 7, v16")
    A("v_and_b32 v14, 1, v1")
    A("v_lshl_add_u32 v16, v16, 1, v14")
    A("v_lshl_add_u32 v22, v16, 7, s7")
    srd(A, 64, "ws", 8192, WS_G)
    srd(A, 76, "out", 8 << 20)
    for i in range(8):
        A(f"s_mov_b32 s{80+i}, {i*4096}")
    A("s_lshl_b32 s7, s6, 5")
    A("v_lshl_add_u32 v7, v6, 4, s7")
    A("s_lshl_b32 s8, s5, 6")
    A("v_add_u32 v8, s8, v4")
    A("v_lshlrev_b32 v26, 12, v7")
    A("v_lshl_add_u32 v26, v8, 2, v26")
    A("v_add_u32 v27, 0x8000, v26")
    A("v_lshlrev_b32 v7, 2, v7")
    A("v_mul_u32_u24 v21, 272, v4")
    A("v_lshl_add_u32 v21, v6, 5, v21")
    A("s_lshl_b32 s8, s3, 6")
    A("v_add_u32 v21, s8, v21")
    A(f"s_add_u32 s8, s73, {PF_OFF:#x}")
    A("v_mov_b32 v29, s8")
    A("v_lshlrev_b32 v28, 4, v1")
    A("v_mov_b32 v23, 1")
    A(f"s_mov_b32 s88, {SPIN}")
    A("c_poll:")
    A("s_waitcnt vmcnt(0)")
    A("v_mov_b32 v52, 0")
    for k in range(16):
        A(f"v_and_b32 v{144+k}, 1, v{EL+2*k}")
    for k in range(0, 16, 2):
        A(f"v_add3_u32 v52, v52, v{144+k}, v{145+k}")
    A("v_cmp_ne_u32 vcc, v52, v51")
    A("s_cmp_eq_u64 vcc, 0")
    A("s_cbranch_scc1 c_polled")
    A("s_sub_u32 s88, s88, 1")
    A("s_cbranch_scc1 c_polled")
    A(f"s_sleep {opt('psleep', SLEEP)}")
    for k in range(16):
        A(f"v_cmp_eq_u32 vcc, 0, v{144+k}")
        A("s_mov_b64 exec, vcc")
        A(f"buffer_load_dwordx2 {vr(EL+2*k,2)}, v{128+k}, s[56:59], 0 offen sc1")
        A("s_mov_b64 exec, -1")
    A("s_branch c_poll")
    A("c_polled:")
    if "pz" in OPT:
        A("s_lshl_b32 s8, s3, 2")
        A(f"s_add_u32 s8, s8, {LFLAG + 24:#x}")
        A("v_mov_b32 v16, s8")
        A("s_mov_b64 exec, 1")
        A("ds_write_b32 v16, v31")
        A("s_mov_b64 exec, -1")
    if "lowp" in OPT: A(f"s_setprio {opt('prio', 2)}")
    ST()
    g = EL + 30
    G = [52, 54]
    for k in range(14, -1, -1):
        n = G[k & 1]
        A(pk("fma", n, g, MU8, EL+2*k, bsel=0))
        A(pk("fma", n, g, MU8, n, bsel=1, asel="swap", neg_lo=[1,0,0]))
        g = n
    A("v_mov_b32 v54, v52\nv_mov_b32 v55, v53\nv_mov_b32 v56, v52\nv_mov_b32 v57, v53")
    A("v_permlane32_swap_b32 v54, v56")
    A("v_permlane32_swap_b32 v55, v57")
    cmul(A, 58, MU4, 56, add=54)
    cmul(A, 52, 48, 58, add=44)
    cmul(A, 54, MU, 52, add=46)
    A("v_mov_b32 v56, v52\nv_mov_b32 v57, v54\nv_mov_b32 v58, v53\nv_mov_b32 v59, v55")
    cr, ci = 56, 58
    def packhalf(hf):
        for plane in range(2):
            for e in range(2):
                d = 128 + ((plane*2 + e)*2 + hf)*4
                for m in range(4):
                    t = hf*8 + 2*m
                    if plane == 0: A(f"v_cvt_pk_bf16_f32 v{d+m}, v{UR2+2*t+e}, v{UR2+2*(t+1)+e}")
                    else: A(f"v_cvt_pk_bf16_f32 v{d+m}, -v{UI(t)+e}, -v{UI(t+1)+e}")
                A(f"ds_write_b128 v{64+2*e+hf}, {vr(d,4)} offset:{plane*4096}")
    for t in range(16):
        nr, ni = UR2 + 2*t, UI(t)
        if "ablb" in OPT:
            if t == 7: packhalf(0)
            continue
        A(pk("fma", nr, cr, LAM, nr, bsel=0))
        A(pk("fma", ni, ci, LAM, ni, bsel=0))
        A(pk("fma", nr, ci, LAM, nr, bsel=1, neg_b=True))
        A(pk("fma", ni, cr, LAM, ni, bsel=1))
        cr, ci = nr, ni
        if t == 7: packhalf(0)
    packhalf(1)
    if "pz" in OPT:
        A("v_mov_b32 v17, 0")
        A("s_mov_b64 exec, 1")
        A("ds_write_b32 v16, v17")
        A("s_mov_b64 exec, -1")
    gen.SAFE_PK[0] = False
    EARLY = opt("early", 0)
    HFL = "buffer_load_dword v19, v22, s[68:71], 0 offen sc1"
    if EARLY: A(HFL)
    ST()
    A("s_waitcnt lgkmcnt(0)")
    lds_inc(A, 20, 31, 12)
    AF = 160
    idx = 0
    for tblk in range(2):
        for plane in range(2):
            for ksl in range(2):
                d = AF + idx*4
                o = plane*4096 + tblk*2048 + ksl*1024
                A(f"ds_read_b64_tr_b16 {vr(d,2)}, v68 offset:{o}")
                A(f"ds_read_b64_tr_b16 {vr(d+2,2)}, v69 offset:{o}")
                idx += 1
    V = VQ(A)
    idx = 0
    for tblk in range(2):
        for plane in range(2):
            A(f"s_mov_b32 s12, {tblk*131072 + plane*8192:#x}")
            for ksl in range(2):
                d = AF + idx*4
                A(f"s_waitcnt lgkmcnt({min(15, 14 - 2*idx)})")
                V.issue(f"buffer_store_dwordx4 {vr(d,4)}, v72, s[60:63], s12 offen offset:{ksl*1024} sc1", "hst")
                idx += 1
    ACC2 = 96
    FB2 = 224
    GR = 36
    ST2 = Stamper(A, 1, 62)
    A(f"s_mov_b32 s89, {SPIN*4}")
    A("c_lw:")
    A("ds_read_b128 v[52:55], v20 offset:4")
    A("s_waitcnt lgkmcnt(0)")
    A("v_min_u32 v54, v54, v55")
    A("v_min_u32 v53, 1, v53")
    A("v_readfirstlane_b32 s8, v54")
    A("v_readfirstlane_b32 s9, v53")
    A("s_add_u32 s8, s8, s9")
    A("s_cmp_ge_u32 s8, 5")
    A("s_cbranch_scc1 c_lwok")
    A("s_sub_u32 s89, s89, 1")
    A("s_cbranch_scc0 c_lw")
    A("c_lwok:")
    L = LQ(A)
    for st in range(2):
        for ks in range(4):
            d = AF + (st*4 + ks)*4
            o = (ks >> 1)*16384 + st*4096 + (ks & 1)*1024
            L.issue(f"ds_read_b64_tr_b16 {vr(d,2)}, v70 offset:{o}")
            L.issue(f"ds_read_b64_tr_b16 {vr(d+2,2)}, v71 offset:{o}", ("A", st, ks))
    A("s_mov_b32 s13, 0")
    if EARLY:
        A("s_waitcnt vmcnt(8)")
        A("v_cmp_eq_u32 s[90:91], 1, v19")
        A("s_and_b32 s88, s90, 0xc")
        A("s_cmp_eq_u32 s88, 0xc")
        A("s_cbranch_scc0 c_noearly")
        A("s_mov_b32 s13, 1")
        for z in (2, 3):
            tile_of(A, z >> 1, 11)
            A("s_lshl_b32 s11, s11, 14")
            if z & 1: A("s_add_u32 s11, s11, 8192")
            for k2 in range(4):
                A(f"buffer_load_dwordx4 {vr(AF + (z*4 + k2)*4,4)}, v{3 if k2 < 2 else 2}, s[60:63], s11 offen offset:{(k2 & 1)*1024} sc1")
        A("c_noearly:")
    for q in range(4):
        V.issue(f"buffer_load_dwordx4 {vr(GR+q*4,4)}, v7, s[64:67], 0 offen offset:{q*16} sc1", "g")
    ST()
    slowp = []
    def need(i):
        m = ((1 << (2*i + 2)) - 1) & ~3
        name = f"c_n{len(slowp)}"
        A(f"s_and_b32 s88, s90, {m:#x}")
        A(f"s_cmp_eq_u32 s88, {m:#x}")
        A(f"s_cbranch_scc0 {name}_s")
        A(f"{name}:")
        slowp.append((name, m))
    alast = [None]
    def aload(st, ks):
        if alast[0] != st:
            alast[0] = st
            tile_of(A, st >> 1, 11)
            A("s_lshl_b32 s11, s11, 14")
            if st & 1: A("s_add_u32 s11, s11, 8192")
        r = AF + ((st % PD)*4 + ks)*4
        V.issue(f"buffer_load_dwordx4 {vr(r,4)}, v{3 if ks < 2 else 2}, s[60:63], s11 offen offset:{(ks & 1)*1024} sc1", ("A", st, ks))
    def rd2(st, ks, nt, slot):
        return f"ds_read_b128 {vr(FB2+slot*4,4)}, v{BD2+ks} offset:{(st % NS2)*16384 + nt*4096}"
    def mf2(st, ks, nt, slot):
        a = AF + ((st % PD)*4 + ks)*4
        c = vr(ACC2+nt*16, 16)
        return f"v_mfma_f32_32x32x16_bf16 {c}, {vr(a,4)}, {vr(FB2+slot*4,4)}, {'0' if (st == 0 and ks == 0) else c}"
    def await_(st, ks):
        if st < 2: L.wait(("A", st, ks))
        else: V.wait(("A", st, ks))
    ST2()
    for nt in range(4): L.issue(rd2(0, 0, nt, nt), (0, 0, nt))
    HFK = opt("hfk", 3)
    N1K = opt("n1k", 2)
    XPS = opt("xps", 1)
    xfill = []
    def xpart(A=A):
        A("v_lshlrev_b32 v9, 16, v9")
        A("v_lshlrev_b32 v10, 16, v10")
        A("s_mov_b32 s12, 0xffff0000")
        TT = [13, 15, 16, 17, 18, 24, 25, 8]
        for k0 in range(0, 16, 4):
            ch = []
            for k in range(k0, k0 + 4):
                t0, t1 = TT[2*(k & 3)], TT[2*(k & 3) + 1]
                dk = 9 + (k >> 3)
                ch.append([f"v_lshlrev_b32 v{t0}, 16, v{XP[k]}", f"v_and_b32 v{t1}, s12, v{XP[k]}", f"v_mul_f32 v{t0}, v{t0}, v{dk}", f"v_mul_f32 v{t1}, v{t1}, v{dk}",
                           f"v_cvt_pk_bf16_f32 v{XDP[k]}, v{t0}, v{t1}"])
            zip_chains(A, ch)
    if XPS == 2: xpart(xfill.append)
    DIST = opt("dist", 3)
    assert DIST in (2, 3, 4)
    polls = [0]
    def hfpoll():
        polls[0] += 1
        V.issue(HFL, ("hf", polls[0]))
    def hfseen():
        V.wait(("hf", polls[0]))
        A("v_cmp_eq_u32 s[90:91], 1, v19")
    FS = opt("fs", 4)
    assert FS == 1 or (FS in (3, 4) and DIST >= 3)
    for st in range(N2 - FS):
        for ks in range(4):
            buf = ks & 1
            if ks == 3 and st >= FBAR: A("s_barrier")
            if ks == 3 and st == 1 and FBAR > 1:
                lds_spin(A, "c_cf2", 20, 20, 14, 4); L.done = L.n
            ns, nks = (st, ks+1) if ks < 3 else (st+1, 0)
            await_(st, ks)
            for nt in range(4):
                L.wait((st, ks, nt))
                A(mf2(st, ks, nt, buf*4 + nt))
                L.issue(rd2(ns, nks, nt, (buf ^ 1)*4 + nt), (ns, nks, nt))
                for z in range(opt("xfm", 3)):
                    if xfill: A(xfill.pop(0))
            if st == 0 and ks == HFK:
                if EARLY:
                    cnt = V.n - V.tags["hst"]
                    A("s_cmp_eq_u32 s13, 1")
                    A("s_cbranch_scc1 c_hw_e")
                    A(f"s_waitcnt vmcnt({cnt})")
                    A("s_branch c_hw_d")
                    A("c_hw_e:")
                    A(f"s_waitcnt vmcnt({cnt + 8})")
                    A("c_hw_d:")
                    V.done = V.tags["hst"]
                else: V.wait("hst")
                A("s_cmp_eq_u32 s14, 1")
                A("s_cbranch_scc1 c_hfs_l")
                A("buffer_store_dword v23, v60, s[68:71], 0 offen sc1")
                A("s_branch c_hfs_e")
                A("c_hfs_l:")
                A("buffer_store_dword v23, v60, s[68:71], 0 offen")
                A("c_hfs_e:")
                V.n += 1
                if SNT: V.issue("buffer_store_dword v23, v30, s[68:71], 0 offen sc1")
                hfpoll()
                if "fine3" in OPT: ST2()
            if st == 1 and ks == opt("rp", -1): hfpoll()
            if st == 1 and ks == N1K:
                if "fine3" in OPT: ST2()
                if EARLY:
                    A("s_cmp_eq_u32 s13, 1")
                    A("s_cbranch_scc1 c_skipy")
                hfseen(); need(1)
                if "fine3" in OPT: ST2()
                for z in (2, 3):
                    for k2 in range(4): aload(z, k2)
                if EARLY:
                    A("c_skipy:")
                    V.done = min(V.done, V.tags[("hf", polls[0])] - 1)
                hfpoll()
                if XPS == 0: xpart()
            if st == 1 and ks == 3 and XPS == 1: xpart()
            if st >= 2:
                if st == 2 and ks == 0:
                    if "fine3" in OPT: ST2()
                    hfseen(); need(2)
                    if "fine3" in OPT: ST2()
                    for z in range(4, 2 + DIST):
                        for k2 in range(4): aload(z, k2)
                    hfpoll()
                z = st + DIST
                if z < N2:
                    if ks == 0 and z % 2 == 0 and z // 2 >= 3:
                        if z // 2 == 3: hfseen()
                        if not (int(OPT.get("abl", 0)) & 2): need(z // 2)
                    aload(z, ks)
            if SNT and st == opt("pfl", 5) and ks == 0: V.issue("buffer_load_dword v14, v29, s[68:71], 0 offen sc1", "pf")
            if SNT and st == opt("pfc", 8) and ks == 0:
                V.wait("pf")
                A("v_cmp_ne_u32 vcc, 1, v14")
                A("s_cmp_eq_u64 vcc, 0")
                A("s_cbranch_scc0 c_pfs")
                A("c_pfr:")
            if "fine3" in OPT:
                if st in (1, 2, 3, 4) and ks == 3: ST2()
                if st == 2 and ks == 0: ST2()
            elif "fine4" in OPT:
                if st == N2 - FS - 1 and ks == 3: ST2()
            elif (st % 2 == 1 if 'fine2' not in OPT else True) and ks == 3: ST2()
    f0 = N2 - FS
    S_ = lambda z: [(z, ks, nt) for ks in range(4) for nt in (0, 1)]
    K_ = lambda z: [(z, ks, nt) for ks in range(4) for nt in (2, 3)]
    if FS == 1: order = S_(15) + K_(15); nsend = 8
    elif FS == 3: order = S_(13) + ["b13"] + S_(14) + K_(13) + ["b14"] + S_(15) + K_(14) + K_(15); nsend = 32
    else:
        BP = opt("bp", 4)
        order = []
        if opt("fso", 1) == 0:
            for z in (12, 13, 14): order += S_(z)[:BP] + [f"b{z}"] + S_(z)[BP:]
            order += S_(15) + K_(12) + K_(13) + K_(14) + K_(15); nsend = 32
        else:
            order = S_(12)[:BP] + ["b12"] + S_(12)[BP:] + S_(13) + K_(12)[:BP] + ["b13"] + K_(12)[BP:] + S_(14)[:BP] + ["b14"] + S_(14)[BP:] + S_(15) + K_(13) + K_(14) + K_(15)
            nsend = 40
        for z in range(N2):
            if ("A", z, 0) not in V.tags and z >= 2:
                for k2 in range(4): aload(z, k2)
    mfs = [x for x in order if not isinstance(x, str)]
    slot = {(f0, 0, nt): nt for nt in range(4)}
    pend = [x for x in mfs if x not in slot]
    free = [4, 5, 6]
    pub = [f0]
    def fill():
        while pend and free and pend[0][0] <= pub[0]:
            x = pend.pop(0); sl = free.pop(0); slot[x] = sl
            L.issue(rd2(x[0], x[1], x[2], sl), x)
    fill()
    pst = [f"buffer_store_dwordx4 {vr(ACC2+4*i,4)}, v28, s[92:95], s{74 if i < 4 else 75} offen offset:{(i & 3)*1024} sc1" for i in range(NPQ)]
    pcv = [f"v_cvt_pk_bf16_f32 v{ACC2+k}, v{ACC2+2*k}, v{ACC2+2*k+1}" for k in range(16)] if PB else []
    i = 0; prev = None
    for x in order:
        if isinstance(x, str):
            A("s_barrier"); pub[0] += 1; fill(); continue
        V.wait(("A", x[0], x[1]))
        if x not in slot: fill()
        L.wait(x)
        A(mf2(x[0], x[1], x[2], slot[x]))
        free.append(slot[prev] if prev is not None else 7)
        prev = x
        fill()
        i += 1
        SP = opt("sp", 0)
        if i >= nsend + 3 and pcv:
            for z in range(4): A(pcv.pop(0))
            V.issue(pst.pop(0), "ps")
        elif i >= nsend + 3:
            if SP == 0:
                for z in range(2):
                    if pst: V.issue(pst.pop(0), "ps")
            elif (i - nsend - 3) % SP == 0 and pst: V.issue(pst.pop(0), "ps")
        if "fine4" in OPT and i % 8 == 0: ST2()
    while pst: V.issue(pst.pop(0), "ps")
    ST2()
    YR, OM, GF, T0, RV = 160, 176, 192, 208, ACC2
    KEEP = ACC2 + 32
    PFL = "buffer_load_dword v19, v29, s[68:71], 0 offen sc1"
    A("s_mov_b32 s12, 0xffff0000")
    for nt in range(2):
        for hf in range(2): A(f"ds_read_b128 {vr(YR+nt*8+hf*4,4)}, v21 offset:{nt*32*272 + hf*16}")
    for r in range(16):
        A(f"v_lshlrev_b32 v{GF+r}, 16, v{GR+r}")
        A(f"v_and_b32 v{OM+r}, s12, v{GR+r}")
    A("s_waitcnt lgkmcnt(0)")
    if SNT:
        RCG = opt("rcg", 2)
        def recv_full():
            for i in range(NPQ):
                A(f"buffer_load_dwordx4 {vr(RV+4*i,4)}, v28, s[92:95], s{90 if i < 4 else 91} offen offset:{(i & 3)*1024} sc1")
        first = [True]
        def recv():
            if "lp" in OPT and first[0]:
                first[0] = False
                A(f"buffer_load_dwordx4 {vr(RV+4*NPQ-4,4)}, v28, s[92:95], s{90 if PB else 91} offen offset:3072 sc1")
            else: recv_full()
        A("s_lshl_b32 s90, s72, 6")
        A("s_add_u32 s91, s90, 4096")
        gi = 0
        for nt in range(2):
            for m0 in range(0, 8, 4):
                if gi == RCG: recv()
                gi += 1
                ch = []
                for m in range(m0, m0 + 4):
                    b_ = T0 + (m & 3)*6
                    yy, xf, tm = b_, b_ + 2, b_ + 4
                    xp = XP[nt*8+m]; xd = XDP[nt*8+m]; ka = KEEP + nt*16 + 2*m
                    ch.append([f"v_lshlrev_b32 v{yy}, 16, v{YR+nt*8+m}", f"v_and_b32 v{yy+1}, s12, v{YR+nt*8+m}",
                               f"v_lshlrev_b32 v{xf}, 16, v{xp}", f"v_and_b32 v{xf+1}, s12, v{xp}",
                               f"v_mul_f32 v{yy}, v{xf}, v{yy}", f"v_mul_f32 v{yy+1}, v{xf+1}, v{yy+1}",
                               f"v_lshlrev_b32 v{xf}, 16, v{xd}", f"v_and_b32 v{xf+1}, s12, v{xd}",
                               f"v_cvt_pk_bf16_f32 v{tm}, v{yy}, v{yy+1}",
                               f"v_add_f32 v{ka}, v{ka}, v{xf}", f"v_add_f32 v{ka+1}, v{ka+1}, v{xf+1}",
                               f"v_lshlrev_b32 v{yy}, 16, v{tm}", f"v_and_b32 v{yy+1}, s12, v{tm}",
                               f"v_mul_f32 v{yy}, v{yy}, v{OM+2*m}", f"v_mul_f32 v{yy+1}, v{yy+1}, v{OM+2*m+1}",
                               f"v_cvt_pk_bf16_f32 v{tm}, v{yy}, v{yy+1}", f"v_lshlrev_b32 v{yy}, 16, v{tm}", f"v_and_b32 v{yy+1}, s12, v{tm}",
                               f"v_fma_f32 v{ka}, v{ka}, v{GF+2*m}, v{yy}", f"v_fma_f32 v{ka+1}, v{ka+1}, v{GF+2*m+1}, v{yy+1}"])
                zip_chains(A, ch)
        if gi == RCG: recv()
        ST2()
        if "lp" in OPT:
            LP = f"buffer_load_dwordx4 {vr(RV+4*NPQ-4,4)}, v28, s[92:95], s{90 if PB else 91} offen offset:3072 sc1"
            A(f"s_mov_b32 s89, {SPIN}")
            A("c_lp:")
            A("s_waitcnt vmcnt(0)")
            A(f"v_cmp_eq_u32 vcc, -1, v{RV+4*NPQ-1}")
            A("s_cmp_eq_u64 vcc, 0")
            A("s_cbranch_scc1 c_lpok")
            A("s_sub_u32 s89, s89, 1")
            A("s_cbranch_scc1 c_lpok")
            A(LP)
            A("s_branch c_lp")
            A("c_lpok:")
            recv_full()
        A(f"s_mov_b32 s89, {SPIN}")
        A("c_rc:")
        A("s_waitcnt vmcnt(0)")
        A(f"v_max3_u32 v19, v{RV}, v{RV+1}, v{RV+2}")
        for i in range(3, 4*NPQ-1, 2): A(f"v_max3_u32 v19, v19, v{RV+i}, v{RV+i+1}")
        A(f"v_max_u32 v19, v19, v{RV+4*NPQ-1}")
        A("v_cmp_eq_u32 vcc, -1, v19")
        A("s_cmp_eq_u64 vcc, 0")
        A("s_cbranch_scc1 c_rcok")
        A("s_sub_u32 s89, s89, 1")
        A("s_cbranch_scc1 c_rcok")
        recv()
        A("s_branch c_rc")
        A("c_rcok:")
        ST2()
        for nt in range(2):
            for r in range(16):
                a = KEEP + nt*16 + r
                if PB:
                    w = RV + nt*8 + (r >> 1); t = T0 + (r & 3)
                    A(f"v_and_b32 v{t}, s12, v{w}" if r & 1 else f"v_lshlrev_b32 v{t}, 16, v{w}")
                    A(f"v_fma_f32 v{a}, v{t}, v{GF+r}, v{a}")
                else: A(f"v_fma_f32 v{a}, v{RV+nt*16+r}, v{GF+r}, v{a}")
                A(f"buffer_store_dword v{a}, v{26 if r < 8 else 27}, s[76:79], s{80+(r&7)} offen offset:{nt*128}{OS}")
        ST2()
    else:
        PFG = opt("pfg", 2)
        gi = 0
        def pfstore():
            A("s_waitcnt vmcnt(0)")
            A("buffer_store_dword v23, v30, s[68:71], 0 offen sc1")
            A(PFL)
        RCG = opt("rcg", 3)
        def recv():
            A("s_lshl_b32 s12, s72, 6")
            A("s_add_u32 s13, s12, 4096")
            for i in range(NPQ):
                A(f"buffer_load_dwordx4 {vr(RV+4*i,4)}, v28, s[92:95], s{12 if i < 4 else 13} offen offset:{(i & 3)*1024} sc1")
            A("s_mov_b32 s12, 0xffff0000")
        A("s_mov_b32 s90, 0")
        for nt in range(2):
            for m0 in range(0, 8, 4):
                if gi == PFG: pfstore()
                if gi == RCG and RCG > PFG:
                    A("s_waitcnt vmcnt(0)")
                    A("v_cmp_ne_u32 vcc, 1, v19")
                    A("s_cmp_eq_u64 vcc, 0")
                    A("s_cbranch_scc0 c_norc")
                    recv()
                    A("s_mov_b32 s90, 1")
                    A("c_norc:")
                gi += 1
                ch = []
                for m in range(m0, m0 + 4):
                    b_ = T0 + (m & 3)*6
                    yy, xf, tm = b_, b_ + 2, b_ + 4
                    xp = XP[nt*8+m]; xd = XDP[nt*8+m]; ka = KEEP + nt*16 + 2*m
                    ch.append([f"v_lshlrev_b32 v{yy}, 16, v{YR+nt*8+m}", f"v_and_b32 v{yy+1}, s12, v{YR+nt*8+m}",
                               f"v_lshlrev_b32 v{xf}, 16, v{xp}", f"v_and_b32 v{xf+1}, s12, v{xp}",
                               f"v_mul_f32 v{yy}, v{xf}, v{yy}", f"v_mul_f32 v{yy+1}, v{xf+1}, v{yy+1}",
                               f"v_lshlrev_b32 v{xf}, 16, v{xd}", f"v_and_b32 v{xf+1}, s12, v{xd}",
                               f"v_cvt_pk_bf16_f32 v{tm}, v{yy}, v{yy+1}",
                               f"v_add_f32 v{ka}, v{ka}, v{xf}", f"v_add_f32 v{ka+1}, v{ka+1}, v{xf+1}",
                               f"v_lshlrev_b32 v{yy}, 16, v{tm}", f"v_and_b32 v{yy+1}, s12, v{tm}",
                               f"v_mul_f32 v{yy}, v{yy}, v{OM+2*m}", f"v_mul_f32 v{yy+1}, v{yy+1}, v{OM+2*m+1}",
                               f"v_cvt_pk_bf16_f32 v{tm}, v{yy}, v{yy+1}", f"v_lshlrev_b32 v{yy}, 16, v{tm}", f"v_and_b32 v{yy+1}, s12, v{tm}",
                               f"v_fma_f32 v{ka}, v{ka}, v{GF+2*m}, v{yy}", f"v_fma_f32 v{ka+1}, v{ka+1}, v{GF+2*m+1}, v{yy+1}"])
                zip_chains(A, ch)
        if gi == PFG: pfstore()
        ST2()
        A("s_cmp_eq_u32 s90, 1")
        A("s_cbranch_scc1 c_havercv")
        A(PFL)
        A("s_waitcnt vmcnt(0)")
        spin_all(A, "c_pf", 19, PFL)
        recv()
        A("c_havercv:")
        ST2()
        for nt in range(2):
            for r in range(16):
                a = KEEP + nt*16 + r
                if PB:
                    i = (nt*16 + r) // 8
                    if r % 8 == 0: A(f"s_waitcnt vmcnt({3 - i + nt*16 + r})")
                    w = RV + nt*8 + (r >> 1); t = T0 + (r & 3)
                    A(f"v_and_b32 v{t}, s12, v{w}" if r & 1 else f"v_lshlrev_b32 v{t}, 16, v{w}")
                    A(f"v_fma_f32 v{a}, v{t}, v{GF+r}, v{a}")
                else:
                    i = (nt*16 + r) // 4
                    if r % 4 == 0: A(f"s_waitcnt vmcnt({7 - i + nt*16 + r})")
                    A(f"v_fma_f32 v{a}, v{RV+nt*16+r}, v{GF+r}, v{a}")
                A(f"buffer_store_dword v{a}, v{26 if r < 8 else 27}, s[76:79], s{80+(r&7)} offen offset:{nt*128}{OS}")
        ST2()
    if "leak" in OPT:
        i = int(OPT["leak"])
        A("s_cmp_lg_u32 s2, 8")
        A("s_cbranch_scc1 c_noleak")
        A("s_cmp_lg_u32 s3, 0")
        A("s_cbranch_scc1 c_noleak")
        A("v_readlane_b32 s8, v63, 0")
        A(f"v_readlane_b32 s9, v{63 if i < 100 else 62}, {i % 100}")
        A("s_sub_u32 s9, s9, s8")
        A("s_memrealtime s[10:11]")
        A("s_waitcnt lgkmcnt(0)")
        A("s_add_u32 s9, s9, s10")
        A("c_leak:")
        A("s_memrealtime s[10:11]")
        A("s_waitcnt lgkmcnt(0)")
        A("s_sub_u32 s12, s9, s10")
        A("s_cmp_gt_i32 s12, 0")
        A("s_cbranch_scc1 c_leak")
        A("c_noleak:")
    if "leak2" in OPT:
        X, i = str(OPT["leak2"]).split(":"); i = int(i)
        if X != "all":
            A(f"s_cmp_lg_u32 s2, {int(X)}")
            A("s_cbranch_scc1 c_noleak2")
        A("s_cmp_lg_u32 s3, 0")
        A("s_cbranch_scc1 c_noleak2")
        A(f"v_readlane_b32 s9, v{63 if i < 100 else 62}, {i % 100}")
        A("s_add_u32 s9, s9, 4000")
        A("c_leak2:")
        A("s_memrealtime s[10:11]")
        A("s_waitcnt lgkmcnt(0)")
        A("s_sub_u32 s12, s9, s10")
        A("s_cmp_gt_i32 s12, 0")
        A("s_cbranch_scc1 c_leak2")
        A("c_noleak2:")
    ST.flush()
    ST2.flush()
    A("s_endpgm")
    if SNT:
        A("c_pfs:")
        A(f"s_mov_b32 s89, {SPIN}")
        A("c_pfs_l:")
        A("s_waitcnt vmcnt(0)")
        A("buffer_load_dword v14, v29, s[68:71], 0 offen sc1")
        A("s_waitcnt vmcnt(0)")
        A("v_cmp_ne_u32 vcc, 1, v14")
        A("s_cmp_eq_u64 vcc, 0")
        A("s_cbranch_scc1 c_pfr")
        A("s_sub_u32 s89, s89, 1")
        A("s_cbranch_scc1 c_pfr")
        A("s_branch c_pfs_l")
    for name, m in slowp:
        A(f"{name}_s:")
        A(f"s_mov_b32 s89, {SPIN}")
        A(f"{name}_l:")
        A("s_waitcnt vmcnt(0)")
        A(HFL)
        A("s_waitcnt vmcnt(0)")
        A("v_cmp_eq_u32 s[90:91], 1, v19")
        A(f"s_and_b32 s88, s90, {m:#x}")
        A(f"s_cmp_eq_u32 s88, {m:#x}")
        A(f"s_cbranch_scc1 {name}")
        A("s_sub_u32 s89, s89, 1")
        A(f"s_cbranch_scc1 {name}")
        A(f"s_branch {name}_l")

def helper(A):
    V = VQ(A)
    VA, VB = 8, 12
    ST = Stamper(A, 0, 58)
    STH = Stamper(A, 1, 59)
    ST()
    if "hprio1" in OPT: A(f"s_setprio {OPT['hprio1']}")
    A("s_sub_u32 s3, s3, 4")
    A("s_lshr_b32 s6, s3, 1")
    A("s_and_b32 s7, s3, 1")
    A("v_lshrrev_b32 v3, 5, v1")
    A("v_lshlrev_b32 v3, 5, v3")
    A("v_bfe_u32 v4, v1, 3, 1")
    A("v_lshl_add_u32 v3, v4, 4, v3")
    A("v_bfe_u32 v4, v1, 4, 1")
    A("v_add_u32 v3, v3, v4")
    A("s_lshl_b32 s8, s4, 7")
    A("s_lshl_b32 s9, s6, 6")
    A("s_add_u32 s8, s8, s9")
    A("s_lshl_b32 s9, s7, 3")
    A("s_add_u32 s8, s8, s9")
    A("v_add_u32 v3, s8, v3")
    A("v_lshlrev_b32 v3, 11, v3")
    A("v_and_b32 v4, 7, v1")
    A("v_lshrrev_b32 v5, 4, v1")
    A("v_xor_b32 v4, v4, v5")
    A("v_lshlrev_b32 v4, 4, v4")
    A(f"v_add_u32 v{VA}, v3, v4")
    A("s_lshl_b32 s10, s3, 12")
    A("s_lshr_b32 s90, s55, 2")
    A("s_lshl_b32 s90, s90, 1")
    A("s_and_b32 s91, s55, 3")
    A("s_lshl_b32 s91, s91, 2")
    A("s_add_u32 s90, s90, s91")
    A("s_and_b32 s11, s90, 15")
    A("s_lshl_b32 s11, s11, 7")
    A("s_mov_b32 m0, s10")
    A(f"s_mov_b32 s58, {4<<20:#x}")
    A("s_mov_b32 s59, 0x20000")
    if "fine0" in OPT: STH()
    A("s_waitcnt lgkmcnt(0)")
    if "fine0" in OPT: STH()
    A(f"s_mov_b32 s56, s{P['x']}")
    A(f"s_mov_b32 s57, s{P['x']+1}")
    V.issue(f"buffer_load_dwordx4 v{VA}, s[56:59], s11 offen lds")
    A("v_xor_b32 v5, 64, v4")
    A(f"v_add_u32 v{VA+1}, v3, v5")
    A(f"v_add_u32 v{VA+1}, {4096-1024}, v{VA+1}")
    V.issue(f"buffer_load_dwordx4 v{VA+1}, s[56:59], s11 offen offset:1024 lds")
    A(f"v_add_u32 v{VA+2}, {2*(4096-1024)}, v{VA}")
    V.issue(f"buffer_load_dwordx4 v{VA+2}, s[56:59], s11 offen offset:2048 lds")
    A(f"v_add_u32 v{VA+3}, {2*(4096-1024)}, v{VA+1}")
    V.issue(f"buffer_load_dwordx4 v{VA+3}, s[56:59], s11 offen offset:3072 lds")
    A("s_lshl_b32 s8, s5, 6")
    A("s_lshl_b32 s9, s7, 5")
    A("s_add_u32 s8, s8, s9")
    A("v_lshrrev_b32 v6, 3, v1")
    A("v_add_u32 v7, s8, v6")
    A("v_lshlrev_b32 v7, 11, v7")
    A(f"v_add_u32 v{VB}, v7, v4")
    A("s_cmp_ge_u32 s3, 2")
    A(f"s_cselect_b32 s60, s{P['Bim']}, s{P['Bre']}")
    A(f"s_cselect_b32 s61, s{P['Bim']+1}, s{P['Bre']+1}")
    A(f"s_mov_b32 s62, {2<<20:#x}")
    A("s_mov_b32 s63, 0x20000")
    A("s_add_u32 m0, s10, 16384")
    A(f"v_add_u32 v{VB+1}, v7, v5")
    V.issue(f"buffer_load_dwordx4 v{VB}, s[60:63], s11 offen lds")
    A(f"v_add_u32 v{VB+1}, {16384-1024}, v{VB+1}")
    V.issue(f"buffer_load_dwordx4 v{VB+1}, s[60:63], s11 offen offset:1024 lds")
    A(f"v_add_u32 v{VB+2}, {2*(16384-1024)}, v{VB}")
    V.issue(f"buffer_load_dwordx4 v{VB+2}, s[60:63], s11 offen offset:2048 lds")
    A(f"v_add_u32 v{VB+3}, {2*(16384-1024)}, v{VB+1}")
    V.issue(f"buffer_load_dwordx4 v{VB+3}, s[60:63], s11 offen offset:3072 lds", ("S", 0))
    def issue(st, fill=0):
        slot = st % 3
        A(f"s_add_u32 s11, s90, {st}")
        A("s_and_b32 s11, s11, 15")
        A("s_lshl_b32 s11, s11, 7")
        A(f"s_add_u32 m0, s10, {slot*32768:#x}")
        for n in range(4):
            V.issue(f"buffer_load_dwordx4 v{VA+n}, s[56:59], s11 offen offset:{n*1024} lds")
            if fill: do_work(fill)
        A(f"s_add_u32 m0, s10, {slot*32768+16384:#x}")
        for n in range(4):
            V.issue(f"buffer_load_dwordx4 v{VB+n}, s[60:63], s11 offen offset:{n*1024} lds", ("S", st))
            if fill: do_work(fill)
    if "fine0" in OPT: STH()
    VC = 28
    A("s_and_b32 s8, s5, 7")
    A("s_lshl_b32 s8, s8, 6")
    A("s_lshl_b32 s9, s3, 4")
    A("s_add_u32 s8, s8, s9")
    A("v_add_u32 v7, s8, v6")
    A("v_lshlrev_b32 v7, 11, v7")
    A(f"v_add_u32 v{VC}, v7, v4")
    A(f"v_add_u32 v{VC+1}, v7, v5")
    A(f"v_add_u32 v{VC+1}, {16384-1024}, v{VC+1}")
    A("s_and_b32 s12, s55, 1")
    A("s_lshl_b32 s13, s54, 1")
    A("s_add_u32 s12, s12, s13")
    A("s_lshr_b32 s13, s55, 1")
    A("s_lshl_b32 s8, s2, 7")
    A(f"s_add_u32 s8, s8, {KF_OFF:#x}")
    A("v_mov_b32 v30, s8")
    A("s_lshl_b32 s88, s54, 5")
    A("s_add_u32 s88, s88, s55")
    A("s_lshl_b32 s8, s88, 7")
    A(f"s_add_u32 s8, s8, {YF_OFF:#x}")
    A("v_mov_b32 v31, s8")
    A("s_lshl_b32 s88, s88, 2")
    A("s_add_u32 s88, s88, s3")
    A("v_mov_b32 v2, 0")
    srd(A, 92, "ws", FLG_SZ, WS_FLG)
    A("s_lshl_b32 s8, s88, 12")
    A(f"s_load_dword s100, {sp('ssmk')}, s8")
    A("s_lshr_b32 s8, s88, 1")
    A("s_lshl_b32 s8, s8, 2")
    A(f"s_load_dword s101, {sp('ssmD')}, s8")
    if opt("tlb", 0) & 2:
        A("s_lshl_b32 s8, s88, 12")
        A("v_mov_b32 v248, s8")
        V.issue(f"global_load_dword v249, v248, {sp('ssmk')}")
    V.issue("buffer_store_dword v2, v30, s[92:95], 0 offen sc1")
    V.issue("buffer_store_dword v2, v31, s[92:95], 0 offen sc1", "clr")
    if opt("pl", 1) >= 0: issue(1)
    if "fine0" in OPT: STH()
    KR, VR_, SK = 32, 208, 68
    XG, GW = 72, 88
    A("s_lshl_b32 s13, s13, 7")
    A("s_lshl_b32 s14, s3, 5")
    A("s_add_u32 s13, s13, s14")
    A("v_and_b32 v17, 31, v1")
    A("s_lshl_b32 s14, s12, 5")
    A("v_add_u32 v17, s14, v17")
    A("v_lshlrev_b32 v22, 4, v17")
    A("v_and_b32 v23, 31, v1")
    A("v_mul_u32_u24 v23, 544, v23")
    A("v_lshrrev_b32 v24, 5, v1")
    A("v_lshlrev_b32 v24, 5, v24")
    A("v_sub_u32 v23, v23, v24")
    A("s_lshl_b32 s8, s3, 6")
    A(f"s_sub_u32 s8, {UREG+224}, s8")
    A("v_add_u32 v23, s8, v23")
    A("v_lshrrev_b32 v24, 4, v1")
    A("s_lshl_b32 s8, s3, 4")
    A("v_add_u32 v24, s8, v24")
    A("v_and_b32 v2, 15, v1")
    A("v_lshlrev_b32 v2, 4, v2")
    A("s_lshl_b32 s8, s12, 6")
    A("v_add_u32 v27, s8, v24")
    A("v_lshl_add_u32 v27, v27, 12, v2")
    A("s_lshr_b32 s8, s55, 1")
    A("s_lshl_b32 s8, s8, 8")
    A("s_sub_u32 s8, 3840, s8")
    A("v_add_u32 v27, s8, v27")
    A("v_mul_u32_u24 v24, 272, v24")
    A("v_add_u32 v24, v24, v2")
    A(f"v_add_u32 v24, {UREG:#x}, v24")
    A("s_lshl_b32 s14, s4, 7")
    A("s_lshl_b32 s8, s5, 3")
    A("s_add_u32 s14, s14, s8")
    A("s_lshl_b32 s8, s3, 1")
    A("s_add_u32 s14, s14, s8")
    A("s_lshl_b32 s8, s14, 11")
    A("v_lshlrev_b32 v25, 4, v1")
    A("v_add_u32 v26, s8, v25")
    A("v_add_u32 v3, 0x8000, v27")
    srd(A, 64, "k", 4 << 20)
    srd(A, 68, "v", 4 << 20)
    srd(A, 72, "ws", 4 << 20, WS_KVT)
    srd(A, 76, "ws", 8192, WS_G)
    for i in range(8):
        A(f"s_mov_b32 s{80+i}, {i*4096}")
    NTP = " nt" if "ntp" in OPT else ""
    A("v_lshrrev_b32 v19, 3, v1")
    A("v_add_u32 v19, s13, v19")
    A("v_lshlrev_b32 v19, 11, v19")
    A("v_and_b32 v20, 7, v1")
    A("v_lshl_add_u32 v19, v20, 4, v19")
    A("s_lshl_b32 s8, s12, 7")
    A("v_add_u32 v19, s8, v19")
    A("v_subrev_u32 v20, 16384, v19")
    A("v_lshrrev_b32 v21, 5, v1")
    A("v_lshlrev_b32 v21, 11, v21")
    A("v_and_b32 v18, 31, v1")
    A("v_lshl_add_u32 v21, v18, 2, v21")
    A("s_lshl_b32 s8, s3, 12")
    A(f"s_add_u32 s91, s8, {KREG}")
    A("v_add_u32 v21, s91, v21")
    def kvdma():
        A("s_add_u32 m0, s91, 16384")
        V.issue(f"buffer_load_dwordx4 v20, s[64:67], 0 offen{NTP} lds")
        for i in range(4):
            A(f"s_add_u32 m0, s91, {16384 + 1024*(i+1)}")
            A(f"s_mov_b32 s99, {i*16384}")
            V.issue(f"buffer_load_dwordx4 v19, s[64:67], s99 offen{NTP} lds")
        V.issue(f"global_load_dwordx4 {vr(SK,4)}, v22, {sp('shk')}", "k")
        for i in range(4):
            A(f"s_add_u32 m0, s91, {1024*i}")
            A(f"s_mov_b32 s99, {i*16384}")
            V.issue(f"buffer_load_dwordx4 v19, s[68:71], s99 offen{NTP} lds", "v")
    if opt("pl", 1) < 0:
        kvdma(); issue(1)
    gl = []
    for r in range(2):
        for hh in range(2): gl.append((f"buffer_load_dwordx4 {vr(XG+r*8+hh*4,4)}, v26, s[56:59], 0 offen offset:{r*2048+hh*1024}", None))
    for hh in range(2): gl.append((f"global_load_dwordx4 {vr(GW+hh*4,4)}, v25, {sp('gw')} offset:{hh*1024}", "gate"))
    KF = 96; SP = 136; OUT = 144
    work = []
    def W(x):
        if callable(x): work.append(x)
        else: work.extend(x.split("\n"))
    def rndW(pair, tmp):
        W(f"v_cvt_pk_bf16_f32 v{tmp}, v{pair}, v{pair+1}")
        W(f"v_lshlrev_b32 v{pair}, 16, v{tmp}")
        W(f"v_and_b32 v{pair+1}, s12, v{tmp}")
    W("s_mov_b32 s12, 0xffff0000")
    gate_begin = len(work)
    W(lambda: V.wait("gate"))
    for i in range(8):
        W(f"v_lshlrev_b32 v{96+2*i}, 16, v{GW+i}")
        W(f"v_and_b32 v{97+2*i}, s12, v{GW+i}")
    for r in range(2):
        acc = 112 + r
        W(f"v_mov_b32 v{acc}, 0")
        for i in range(8):
            W(f"v_lshlrev_b32 v116, 16, v{XG+r*8+i}")
            W(f"v_and_b32 v117, s12, v{XG+r*8+i}")
            W(pk("mul", 116, 116, 96+2*i))
            rndW(116, 118)
            W(f"v_add_f32 v{acc}, v{acc}, v116")
            W(f"v_add_f32 v{acc}, v{acc}, v117")
    for r in range(2):
        acc = 112 + r
        for sh in (1, 2, 4, 8):
            W(f"v_add_f32_dpp v{acc}, v{acc}, v{acc} row_shr:{sh} row_mask:0xf bank_mask:0xf bound_ctrl:0")
        W(f"v_add_f32_dpp v{acc}, v{acc}, v{acc} row_bcast:15 row_mask:0xa bank_mask:0xf")
        W(f"v_add_f32_dpp v{acc}, v{acc}, v{acc} row_bcast:31 row_mask:0xc bank_mask:0xf")
    for t in ["v_readlane_b32 s8, v112, 63", "v_readlane_b32 s9, v113, 63", "v_mov_b32 v116, s8", "v_mov_b32 v117, s9",
              "v_cmp_eq_u32 vcc, 1, v1", "v_cndmask_b32 v116, v116, v117, vcc", "v_cvt_pk_bf16_f32 v116, v116, v116",
              "v_lshlrev_b32 v116, 16, v116", "v_mul_f32 v116, 0xbfb8aa3b, v116", "v_exp_f32 v116, v116", "v_add_f32 v116, 1.0, v116",
              "v_rcp_f32 v116, v116", "v_cvt_pk_bf16_f32 v117, v116, v116", "v_lshlrev_b32 v116, 16, v117", "v_sub_f32 v118, 1.0, v116",
              "v_cvt_pk_bf16_f32 v116, v116, v118", "s_lshl_b32 s14, s14, 2", "v_lshl_add_u32 v117, v1, 2, s14"]:
        W(t)
    def gstore():
        A("s_mov_b64 exec, 3")
        V.issue("buffer_store_dword v116, v117, s[76:79], 0 offen sc1", "g")
        A("s_mov_b64 exec, -1")
    W(gstore)
    gate_end = len(work)
    W("KVSTART")
    W(lambda: V.wait("k"))
    for i in range(19):
        W(f"ds_read_b32 v{KR+i}, v21 offset:{16384 + (5+i)*128}")
        if i == 9: W("s_waitcnt lgkmcnt(0)")
    W("s_waitcnt lgkmcnt(0)")
    for i in range(19):
        W(f"v_lshlrev_b32 v{KF+2*i}, 16, v{KR+i}")
        W(f"v_and_b32 v{KF+2*i+1}, s12, v{KR+i}")
    for jx in range(4):
        for cc in range(2):
            src = SK + cc*2 + (jx >> 1)
            W(f"v_and_b32 v{SP+2*jx+cc}, s12, v{src}" if jx & 1 else f"v_lshlrev_b32 v{SP+2*jx+cc}, 16, v{src}")
    W(lambda: V.wait("v"))
    for i in range(16):
        W(f"ds_read_b32 v{VR_+i}, v21 offset:{i*128}")
        if i == 7: W("s_waitcnt lgkmcnt(0)")
    W("s_waitcnt lgkmcnt(0)")
    for t in range(16):
        vv = 176 + (t & 1)*2
        W(f"v_lshlrev_b32 v{vv}, 16, v{VR_+t}")
        W(f"v_and_b32 v{vv+1}, s12, v{VR_+t}")
        if opt("pk", 0) & 2:
            o = OUT + 2*t
            W(f"v_pk_mul_f32 {vr(o,2)}, {vr(KF+2*t,2)}, {vr(SP+6,2)}")
            for jx in (2, 1, 0): W(f"v_pk_fma_f32 {vr(o,2)}, {vr(KF+2*(t+3-jx),2)}, {vr(SP+2*jx,2)}, {vr(o,2)}")
            W(f"v_pk_mul_f32 {vr(o,2)}, {vr(o,2)}, {vr(vv,2)}")
            continue
        for cc in range(2): W(f"v_mul_f32 v{OUT+2*t+cc}, v{KF+2*t+cc}, v{SP+6+cc}")
        for jx in (2, 1, 0):
            for cc in range(2): W(f"v_fmac_f32 v{OUT+2*t+cc}, v{KF+2*(t+3-jx)+cc}, v{SP+2*jx+cc}")
        for cc in range(2): W(f"v_mul_f32 v{OUT+2*t+cc}, v{OUT+2*t+cc}, v{vv+cc}")
    for cc in range(2):
        for hf in range(2):
            d = 192 + (cc*2+hf)*4
            for m in range(4):
                mm = hf*4 + m
                W(f"v_cvt_pk_bf16_f32 v{d+m}, v{OUT+2*(15-2*mm)+cc}, v{OUT+2*(14-2*mm)+cc}")
            W(f"ds_write_b128 v23, {vr(d,4)} offset:{cc*272+hf*16}")
    W("s_waitcnt lgkmcnt(0)")
    W("BARRIER")
    for i in range(4): W(f"ds_read_b128 {vr(192+4*i,4)}, v24 offset:{i*4*272}")
    KVL = "nokvl" not in OPT
    def kvstores():
        def block(pol):
            for i in range(4):
                A(f"s_waitcnt lgkmcnt({3-i})")
                V.issue(f"buffer_store_dwordx4 {vr(192+4*i,4)}, v{27 if i < 2 else 3}, s[72:75], s{80+4*(i&1)} offen{pol}", "kvt")
        if not KVL:
            block(" sc1"); return
        V.wait("cls")
        local_check(A, 247, 246, 96, 98)
        A("s_cbranch_scc0 h_kvl")
        n0 = V.n
        block(" sc1")
        A("s_branch h_kve")
        A("h_kvl:")
        V.n = n0
        block("")
        A("h_kve:")
    W(kvstores)
    kv_end = len(work)
    if "kvfirst" in OPT:
        gate_part = work[gate_begin:gate_end]
        del work[gate_begin:gate_end]
        work.extend(gate_part)
    wpos = [0]
    blocked = [False]
    cur = [0]
    PL = opt("pl", 1)
    KVW = PL + opt("kvd", 3)
    def do_work(n):
        while n > 0 and wpos[0] < len(work) and not blocked[0]:
            w = work[wpos[0]]
            wpos[0] += 1
            if w == "BARRIER":
                blocked[0] = True; return
            if w == "KVSTART":
                if cur[0] < KVW:
                    wpos[0] -= 1; return
                continue
            if callable(w): w()
            elif "ablkv" in OPT and w.startswith("v_") and wpos[0] > gate_end and wpos[0] < kv_end: pass
            else: A(w)
            n -= 1
    PREP0 = opt("prep0", 1)
    UL = 40
    ACC = 64; BF = 96; AFR = 160; KD = 224
    def setup_conv(A):
        A("s_lshl_b32 s12, s88, 12")
        srd(A, 64, "ssmk", 4096, off_sreg=12)
        srd(A, 68, "ws", 4096, WS_KVT, off_sreg=12)
        A("s_mov_b32 s80, s100")
        A("s_mov_b32 s81, s101")
        A("v_and_b32 v37, 15, v1")
        A("s_lshr_b32 s8, s88, 6")
        A("s_and_b32 s8, s8, 1")
        A("s_lshl_b32 s8, s8, 3")
        A("s_add_u32 s8, s8, s54")
        A("v_lshl_add_u32 v32, v37, 4, s8")
        A("s_lshr_b32 s8, s4, 2")
        A("s_lshl_b32 s8, s8, 1")
        A("s_and_b32 s9, s4, 3")
        A("s_lshl_b32 s9, s9, 3")
        A("s_add_u32 s8, s8, s9")
        A("v_lshrrev_b32 v38, 3, v37")
        A("v_and_b32 v39, 7, v37")
        A("v_lshl_add_u32 v38, v39, 5, v38")
        A("v_add_u32 v38, s8, v38")
        A("v_and_b32 v39, 16, v1")
        A("v_cmp_ne_u32 vcc, 0, v39")
        A("v_cndmask_b32 v32, v32, v38, vcc")
        A("v_lshlrev_b32 v32, 7, v32")
        A(f"v_add_u32 v32, {KF_OFF:#x}, v32")
        A("v_lshlrev_b32 v33, 2, v1")
        srd(A, 76, "dbg", 256)
        A(f"s_mul_i32 s13, s3, 8320")
        A(f"s_add_u32 s13, s13, {KREG}")
        A(f"s_mul_i32 s82, s3, 4608")
        A(f"s_add_u32 s82, s82, {UREG}")
        A("v_add_u32 v36, 2, v25")
        A("v_and_b32 v38, 7, v1")
        A("v_lshlrev_b32 v38, 2, v38")
        A("v_bfe_u32 v39, v1, 3, 1")
        A("v_mul_u32_u24 v39, 4160, v39")
        A("v_add3_u32 v38, v38, v39, s13")
        A("s_lshl_b32 s80, s80, 16")
        A("v_mov_b32 v56, s80")
        A("v_cmp_eq_u32 vcc, 15, v37")
        A("v_cndmask_b32 v56, 0, v56, vcc")
        A("ds_write_b32 v38, v56")
        A("s_and_b32 s14, s88, 1")
        A("s_lshl_b32 s14, s14, 4")
        A("s_lshr_b32 s81, s81, s14")
        A("s_lshl_b32 s81, s81, 16")
        A(f"v_mov_b32 v60, {LFLAG:#x}")
        A("v_mov_b32 v61, 1")
    def setup_late(A):
        A("v_lshrrev_b32 v5, 4, v1")
        A("v_and_b32 v37, 15, v1")
        A("v_lshl_add_u32 v38, v5, 3, v37")
        A("v_lshlrev_b32 v38, 1, v38")
        A("v_and_b32 v39, 1, v1")
        A("v_mul_u32_u24 v39, 4158, v39")
        A("v_sub_u32 v38, v38, v39")
        A("s_add_u32 s14, s13, 4160")
        A("v_add_u32 v16, s14, v38")
        for i in range(1, 4): A(f"v_add_u32 v{16+i}, {1024*i}, v16")
        A("v_lshlrev_b32 v38, 5, v37")
        A("v_lshlrev_b32 v39, 4, v5")
        A("v_sub_u32 v20, v39, v38")
        A("s_add_u32 s14, s82, 480")
        A("v_add_u32 v20, s14, v20")
        A("v_lshl_add_u32 v39, v5, 3, v38")
        A("s_add_u32 s14, s82, 504")
        A("v_sub_u32 v21, s14, v39")
        A("v_and_b32 v39, 1, v5")
        A("v_lshl_add_u32 v22, v39, 9, v38")
        A("v_lshrrev_b32 v39, 1, v5")
        A("v_lshl_add_u32 v22, v39, 4, v22")
        A("v_add_u32 v23, s82, v25")
    setup_conv(W)
    print("prep work items", len(work))
    def cissue(st):
        tile_of(A, st >> 1, 11)
        A("s_lshl_b32 s11, s11, 7")
        sr_ = "s[56:59]" if st % 2 == 0 else "s[60:63]"
        A("s_add_u32 s99, s11, s91")
        A(f"s_add_u32 m0, s10, {(st % NS2)*16384:#x}")
        for n in range(2):
            V.issue(f"buffer_load_dwordx4 v{VC+n}, {sr_}, s99 offen offset:{n*1024} lds")
        A("s_add_u32 s11, s11, s90")
        A(f"s_add_u32 m0, s10, {(st % NS2)*16384 + 8192:#x}")
        for n in range(2):
            V.issue(f"buffer_load_dwordx4 v{VC+n}, {sr_}, s11 offen offset:{n*1024} lds", ("C", st))
    def uloads():
        for i in range(4): A(f"buffer_load_dwordx4 {vr(UL+4*i,4)}, v25, s[68:71], 0 offen offset:{i*1024} sc1")
    def ctouch():
        A("s_cmp_ge_u32 s3, 2")
        A(f"s_cselect_b32 s96, s{P['Cim']}, s{P['Cre']}")
        A(f"s_cselect_b32 s97, s{P['Cim']+1}, s{P['Cre']+1}")
        A("s_lshl_b32 s98, s2, 13")
        A("s_and_b32 s99, s3, 1")
        A("s_lshl_b32 s99, s99, 12")
        A("s_add_u32 s98, s98, s99")
        A("v_and_b32 v240, 31, v1")
        if "km" in OPT:
            A("s_add_u32 s96, s96, s98")
            A("s_addc_u32 s97, s97, 0")
            A("s_lshl_b32 s98, s88, 12")
            A(f"s_add_u32 s98, s{P['ssmk']}, s98")
            A(f"s_addc_u32 s99, s{P['ssmk']+1}, 0")
            A("v_mov_b32 v242, s96")
            A("v_mov_b32 v243, s97")
            A("v_mov_b32 v244, s98")
            A("v_mov_b32 v245, s99")
            A("v_cmp_lt_u32 s[96:97], 31, v1")
            A("v_cndmask_b32 v242, v242, v244, s[96:97]")
            A("v_cndmask_b32 v243, v243, v245, s[96:97]")
            A("v_lshlrev_b32 v240, 7, v240")
            A("v_add_co_u32 v242, s[96:97], v242, v240")
            A("v_addc_co_u32 v243, s[96:97], 0, v243, s[96:97]")
            V.issue("global_load_dword v241, v[242:243], off")
        else:
            A("v_lshl_add_u32 v240, v240, 7, s98")
            V.issue("global_load_dword v241, v240, s[96:97]")
    FILL = opt("fill", 10)
    kst = [None]
    KW = opt("kw", 2)
    CHK = opt("chk", 13)
    KFS = opt("kfs", 12)
    KDS = opt("kds", 11)
    UWS = opt("uws", 14)
    WEND = min(KFS, KDS, 12)
    CM = opt("cm", 6)
    assert CHK < UWS <= 15 and opt("lates", 14) <= UWS
    nU = [0]; cdone = [0]
    NC0 = opt("nc0", 2)
    A(f"v_mov_b32 v6, {LFLAG:#x}")
    A("v_mov_b32 v7, 0")
    for o in (4, 8, 12, 16, 20) + ((24, 28, 32, 36) if "pz" in OPT else ()): A(f"ds_write_b32 v6, v7 offset:{o}")
    ST()
    A("s_waitcnt lgkmcnt(0)")
    V.wait("clr")
    ST()
    if "fine0" in OPT: STH()
    A("s_barrier")
    issue(2)
    if "fine0" in OPT: STH()
    for t, tag in gl: V.issue(t, tag)
    for s in range(N1):
        V.wait(("S", min(s+1, N1-1)))
        if kst[0] is not None and s == min(kst[0] + KW, 15): V.wait("kvt"); V.wait("g")
        if "fine1" in OPT: STH()
        A("s_barrier")
        if kst[0] is not None and s == min(kst[0] + KW, 15):
            A("s_cmp_lg_u32 s3, 0")
            A("s_cbranch_scc1 h_kflag")
            A("v_mov_b32 v6, 1")
            A("buffer_store_dword v6, v30, s[92:95], 0 offen sc1")
            A("h_kflag:")
            print("k flag after barrier", s+1)
        blocked[0] = False
        cur[0] = s
        FM = opt("fmode", 0)
        fl = opt("fill0", FILL) if s < opt("fill0n", 0) else FILL
        if s+3 < N1 and FM == 0: issue(s+3, fl if s >= PREP0 else 0)
        elif s+3 < N1 and FM == 1:
            issue(s+3)
            if s >= PREP0: do_work(8*FILL)
        if s == PL - 100: pass
        if s == PL and PL >= 0: kvdma()
        if s == CM: ctouch()
        if KVL and s == opt("cls", 6):
            A("v_lshlrev_b32 v246, 2, v1")
            V.issue(f"global_load_dword v247, v246, {sp('dbg')} sc1", "cls")
        if kst[0] is None and "kvt" in V.tags and "g" in V.tags: kst[0] = s
        if s == WEND:
            do_work(10000)
            assert wpos[0] == len(work), (wpos[0], len(work))
        if s == KFS:
            V.issue("buffer_load_dword v34, v33, s[76:79], 0 offen sc1")
            V.issue("buffer_load_dword v35, v32, s[92:95], 0 offen sc1", "kf")
            ST()
        if s == KDS and KDS < CHK:
            V.wait("g")
            A("s_add_u32 m0, s13, 32")
            for i in range(4): V.issue(f"buffer_load_dwordx4 v25, s[64:67], 0 offen offset:{i*1024}{NTP} lds")
            A("s_add_u32 m0, s13, 4192")
            for i in range(4): V.issue(f"buffer_load_dwordx4 v36, s[64:67], 0 offen offset:{i*1024}{NTP} lds", "K")
        if s == 13:
            srd(A, 56, "Cre", 2 << 20)
            srd(A, 60, "Cim", 2 << 20)
            A("s_lshl_b32 s10, s3, 11")
            A(f"s_add_u32 s10, s10, {CRING:#x}")
            A("s_lshr_b32 s90, s5, 3")
            A("s_xor_b32 s91, s90, 1")
            A("s_lshl_b32 s91, s91, 20")
            A("s_lshl_b32 s11, s90, 10")
            A("s_add_u32 s91, s91, s11")
            A("s_mul_i32 s90, s90, 0x100400")
            A("v_mov_b32 v56, 0")
            A("v_mov_b32 v57, 0")
            A("v_lshlrev_b32 v38, 3, v1")
            A("v_add_u32 v38, s82, v38")
            A("ds_write_b64 v38, v[56:57] offset:4096")
            ST()
        if s == CHK:
            V.wait("kf")
            A("s_mov_b32 s83, 0")
            A("v_and_b32 v34, 15, v34")
            A("v_cmp_ne_u32 vcc, 15, v34")
            A("v_cmp_ne_u32 s[84:85], 1, v35")
            A("s_or_b64 vcc, vcc, s[84:85]")
            A("s_cbranch_scc1 h_nou")
            A("s_mov_b32 s83, 1")
            uloads()
            A("h_nou:")
            nU[0] = V.n
        if s == KDS and KDS >= CHK:
            V.wait("g")
            A("s_add_u32 m0, s13, 32")
            for i in range(4): V.issue(f"buffer_load_dwordx4 v25, s[64:67], 0 offen offset:{i*1024}{NTP} lds")
            A("s_add_u32 m0, s13, 4192")
            for i in range(4): V.issue(f"buffer_load_dwordx4 v36, s[64:67], 0 offen offset:{i*1024}{NTP} lds", "K")
        if s == opt("lates", 14): setup_late(A)
        if s == 15:
            for z in range(NC0): cissue(z)
            cdone[0] = NC0
        if s == UWS:
            A("s_cmp_lg_u32 s83, 1")
            A("s_cbranch_scc1 h_nouw")
            A(f"s_waitcnt vmcnt({V.n - nU[0]})")
            for i in range(4): A(f"ds_write_b128 v23, {vr(UL+4*i,4)} offset:{1024*i}")
            A("h_nouw:")
    ST()
    if "hprio1" in OPT: A("s_setprio 0")
    A("s_cmp_lg_u32 s83, 0")
    A("s_cbranch_scc1 h_haveu")
    spin_all(A, "h_init", 34, "buffer_load_dword v34, v33, s[76:79], 0 offen sc1", "15", pre="v_and_b32 v34, 15, v34")
    spin_all(A, "h_kf", 35, "buffer_load_dword v35, v32, s[92:95], 0 offen sc1")
    uloads()
    A("s_waitcnt vmcnt(0)")
    for i in range(4): A(f"ds_write_b128 v23, {vr(UL+4*i,4)} offset:{1024*i}")
    A("h_haveu:")
    V.done = max(V.done, nU[0])
    V.wait("K")
    if "lowp" in OPT: A("s_setprio 1")
    lds_inc(A, 60, 61, 8)
    for i in range(4): A(f"s_mov_b32 s{84+i}, s{68+i}")
    srd(A, 68, "ws", 4 << 20, WS_KVT)
    A("s_waitcnt lgkmcnt(0)")
    ST()
    L = LQ(A)
    ops = []
    def reads(r):
        R = []
        s = r & 1
        for i in range(8):
            R.append((f"ds_read_b128 {vr(BF+s*32+i*4,4)}, v20 offset:{3584-512*i+64*r}", ("B", r, i)))
            o = 128*(i & 1) + 16*r
            d = AFR + s*32 + i*4
            R.append((f"ds_read2_b32 {vr(d,2)}, v{16+(i>>1)} offset0:{o} offset1:{o+1}", None))
            R.append((f"ds_read2_b32 {vr(d+2,2)}, v{16+(i>>1)} offset0:{o+2} offset1:{o+3}", ("A", r, i)))
        return R
    def first_order(R):
        return R[1:3] + [R[3*i] for i in range(8)] + [x for i in range(1, 8) for x in R[3*i+1:3*i+3]]
    KVT = 40
    for n in range(8): ops.append(("rd", f"ds_read_b64 {vr(KVT+2*n,2)}, v21 offset:{3584-512*n}", ("KV", n)))
    for t, tag in first_order(reads(0)): ops.append(("rd", t, tag))
    fill = []
    fill.append(("s_mov_b32 s12, 0xffff0000", None)); fill.append(("v_mov_b32 v26, s81", None))
    for n in range(8):
        k = KD + 4*n
        c = [f"v_and_b32 v{k}, s12, v{KVT+2*n+1}", f"v_lshlrev_b32 v{k+1}, 16, v{KVT+2*n+1}", f"v_and_b32 v{k+2}, s12, v{KVT+2*n}", f"v_lshlrev_b32 v{k+3}, 16, v{KVT+2*n}"]
        c += [f"v_mul_f32 v{k+i}, v{k+i}, v26" for i in range(4)]
        c += [f"v_cvt_pk_bf16_f32 v56, v{k}, v{k+1}", f"v_cvt_pk_bf16_f32 v57, v{k+2}, v{k+3}",
              f"v_lshlrev_b32 v{k}, 16, v56", f"v_and_b32 v{k+1}, s12, v56", f"v_lshlrev_b32 v{k+2}, 16, v57", f"v_and_b32 v{k+3}, s12, v57"]
        for i, t in enumerate(c): fill.append((t, ("KV", n) if i == 0 else None))
    YD = 40
    def post(n):
        y = ACC + 4*n; k = KD + 4*n
        d = YD + (n >> 1)*4 + (n & 1)*2
        c = [f"v_cvt_pk_bf16_f32 v56, v{y}, v{y+1}", f"v_cvt_pk_bf16_f32 v57, v{y+2}, v{y+3}",
             f"v_lshlrev_b32 v{y}, 16, v56", f"v_and_b32 v{y+1}, s12, v56", f"v_lshlrev_b32 v{y+2}, 16, v57", f"v_and_b32 v{y+3}, s12, v57"]
        c += [f"v_add_f32 v{k+i}, v{k+i}, v{y+i}" for i in range(4)]
        c += [f"v_cvt_pk_bf16_f32 v{d}, v{k}, v{k+1}", f"v_cvt_pk_bf16_f32 v{d+1}, v{k+2}, v{k+3}"]
        if n & 1:
            d = YD + (n >> 1)*4
            c += [f"v_permlane16_swap_b32 v{d}, v{d+2}", f"v_permlane16_swap_b32 v{d+1}, v{d+3}"]
            if "yinl" in OPT: c += [f"YST{n >> 1}"]
        return c
    ystores = [f"buffer_store_dwordx4 {vr(YD+4*k,4)}, v22, s[84:87], 0 offen offset:{k*1024} sc1" for k in range(4)]
    LATEC = opt("latec", 170)
    CFM = opt("cfm", 80)
    FPM = opt("fpm", 2)
    nmf = 0
    postq = []
    for r in range(8):
        s = r & 1
        nxt = first_order(reads(r+1)) if r < 7 else []
        cnt = 0
        for q in range(8):
            for n in range(q, 8):
                c = vr(ACC+4*n, 4)
                ops.append(("mf", f"v_mfma_f32_16x16x32_bf16 {c}, {vr(AFR+s*32+4*q,4)}, {vr(BF+s*32+4*(n-q),4)}, {'0' if (r == 0 and q == 0) else c}",
                            [("A", r, q), ("B", r, n-q)]))
                nmf += 1; cnt += 1
                if nxt and cnt >= 2:
                    t, tag = nxt.pop(0); ops.append(("rd", t, tag))
                elif r < 7:
                    for z in range(FPM):
                        if fill: ops.append(("fill",) + fill.pop(0))
                if "pz" in OPT and opt("pz0", 90) <= nmf <= opt("pz1", 250) and (nmf - opt("pz0", 90)) % opt("pzs", 12) == 0:
                    ops.append(("pzr", nmf))
                if "pz" in OPT and opt("pz0", 90) <= nmf - 6 <= opt("pz1", 250) and (nmf - 6 - opt("pz0", 90)) % opt("pzs", 12) == 0:
                    ops.append(("pzc", nmf - 6))
                if nmf == LATEC: ops.append(("latec",))
                if nmf == CFM: ops.append(("cf",))
                if nmf == opt("cf2m", 240) and FBAR > 1: ops.append(("cf2",))
                if r == 7:
                    if n == q: postq += [(nmf + 3, t) for t in post(n)]
                    for z in range(opt("ppm", 3)):
                        if postq and postq[0][0] <= nmf and q < 7: ops.append(("fill", postq.pop(0)[1], None))
        assert not nxt
    assert not fill and CFM < LATEC
    for _, t in postq: ops.append(("fill", t, None))
    pzslow = []
    if "pz" in OPT:
        A("s_lshl_b32 s8, s3, 2")
        A(f"s_add_u32 s8, s8, {LFLAG:#x}")
        A("v_mov_b32 v62, s8")
    AB = int(OPT.get("ablc", 0))
    for op in ops:
        if AB & 1 and op[0] in ("rd", "mf", "fill"): continue
        if op[0] == "rd": L.issue(op[1], op[2])
        elif op[0] == "mf":
            for t in op[2]: pass
            k = max(op[2], key=lambda t: L.tags[t])
            L.wait(k)
            A(op[1])
        elif op[0] == "fill":
            if op[2] is not None: L.wait(op[2])
            if op[1].startswith("YST"): V.issue(ystores[int(op[1][3:])], "y2")
            else: A(op[1])
        elif op[0] == "pzr": L.issue("ds_read_b32 v63, v62 offset:24", ("Z", op[1]))
        elif op[0] == "pzc":
            L.wait(("Z", op[1]))
            A("v_readfirstlane_b32 s83, v63")
            A("s_cmp_lg_u32 s83, 0")
            A(f"s_cbranch_scc1 h_pz{op[1]}_s")
            A(f"h_pz{op[1]}:")
            pzslow.append(op[1])
        elif op[0] == "latec":
            while cdone[0] < NS2: cissue(cdone[0]); cdone[0] += 1
        elif op[0] == "cf2":
            V.wait(("C", 3))
            lds_inc(A, 60, 61, 20); L.n += 1
        elif op[0] == "cf":
            while cdone[0] < 2: cissue(cdone[0]); cdone[0] += 1
            V.wait(("C", 1))
            lds_inc(A, 60, 61, 16); L.n += 1
    ST()
    if "lowp" in OPT: A("s_setprio 0")
    YST = opt("yst", 0)
    if YST == 0 and "yinl" not in OPT:
        for t in ystores:
            if AB & 2: V.tags["y2"] = V.n
            else: V.issue(t, "y2")
    A("v_lshrrev_b32 v8, 4, v1")
    A("s_lshl_b32 s8, s3, 4")
    A("v_add_u32 v8, s8, v8")
    A("v_and_b32 v11, 15, v1")
    A("s_lshl_b32 s9, s5, 11")
    A(f"s_add_u32 s9, s9, {YF_OFF:#x}")
    A("v_lshl_add_u32 v10, v11, 7, s9")
    A("v_lshlrev_b32 v11, 4, v11")
    A("v_mul_u32_u24 v9, 272, v8")
    A("v_add_u32 v9, v9, v11")
    A("s_lshl_b32 s8, s5, 6")
    A("v_add_u32 v8, s8, v8")
    A("v_lshl_add_u32 v8, v8, 12, v11")
    A("s_lshl_b32 s8, s4, 8")
    A("v_add_u32 v8, s8, v8")
    ST()
    YR = 116
    YFL_LD = "buffer_load_dword v19, v10, s[92:95], 0 offen sc1"
    YFL, GYF, GYL, GYW = opt("yfl", 5), opt("gyf", 8), opt("gyl", 10), opt("gyw", 12)
    for st in range(FBAR, N2-1):
        V.wait(("C", st+1))
        if "fineh" in OPT: STH()
        A("s_barrier")
        if st == FBAR:
            for z in range(NS2, FBAR + NS2): cissue(z)
        elif st + NS2 - 1 < N2: cissue(st + NS2 - 1)
        if "abl" in OPT and st >= 2 and st < 13 and int(OPT["abl"]) & 1:
            continue_ = True
            for tg in ("y2", "xt", "yf", "eps"): V.tags.setdefault(tg, 0)
            continue
        if YST and st == YST:
            for t in ystores: V.issue(t, "y2")
        if st == YFL:
            V.wait("y2")
            A("s_mov_b64 exec, 1")
            A("ds_add_rtn_u32 v62, v60, v61 offset:4")
            A("s_mov_b64 exec, -1")
            A("s_waitcnt lgkmcnt(0)")
            A("v_readfirstlane_b32 s83, v62")
            A("s_cmp_lg_u32 s83, 3")
            A("s_cbranch_scc1 h_noy")
            A("buffer_store_dword v61, v31, s[92:95], 0 offen sc1")
            A("h_noy:")
        if st == GYF: V.issue(YFL_LD, "yf")
        if st == GYL:
            V.wait("yf")
            spin_all(A, "h_yf", 19, YFL_LD)
            for i in range(4):
                A(f"s_mov_b32 s8, {i*16384}")
                V.issue(f"buffer_load_dwordx4 {vr(YR+i*4,4)}, v8, s[68:71], s8 offen sc1", "eps")
        if st == GYW:
            V.wait("eps")
            for i in range(4): A(f"ds_write_b128 v9, {vr(YR+i*4,4)} offset:{i*4*272}")
            A("s_waitcnt lgkmcnt(0)")
    assert YST < YFL < GYF < GYL < GYW <= N2 - 3
    STH.flush()
    ST.flush()
    A("s_endpgm")
    for k in pzslow:
        A(f"h_pz{k}_s:")
        A(f"s_mov_b32 s89, {SPIN*4}")
        A(f"h_pz{k}_l:")
        A("s_sleep 1")
        A("ds_read_b32 v63, v62 offset:24")
        A("s_waitcnt lgkmcnt(0)")
        A("v_readfirstlane_b32 s83, v63")
        A("s_cmp_eq_u32 s83, 0")
        A(f"s_cbranch_scc1 h_pz{k}")
        A("s_sub_u32 s89, s89, 1")
        A(f"s_cbranch_scc1 h_pz{k}")
        A(f"s_branch h_pz{k}_l")

def build():
    s = header_comments()
    s += "; generated by tools/gen9.py (fused single kernel, split-K GEMM2; gen8 h layout)\n"
    s += "; @launch grid=(256,1,1) block=(512,1,1) lds=163840\n"
    s += '.amdgcn_target "amdgcn-amd-amdhsa--gfx950"\n.text\n'
    A = Asm()
    A.raw(f".globl {KN}\n.p2align 8\n.type {KN},@function")
    gen_kernel(A)
    s += A.render()
    s += descriptor(KN, 256, 102)
    import subprocess, tempfile, re
    with tempfile.TemporaryDirectory() as td:
        open(td + "/a.s", "w").write(s.replace("CODE_LAST", "0x12345"))
        subprocess.run(["clang", "-x", "assembler", "-target", "amdgcn-amd-amdhsa", "-mcpu=gfx950", "-c", td + "/a.s", "-o", td + "/a.o"], check=True)
        o = subprocess.run(["llvm-objdump", "-h", td + "/a.o"], capture_output=True, text=True).stdout
    size = int(re.search(r"\.text\s+([0-9a-f]+)", o).group(1), 16)
    if "al8" in OPT:
        pat = {"1": ("v_mfma_f32_32x32",), "2": ("v_mfma",), "3": ("v_mfma", "ds_read_b128", "ds_read_b64_tr", "buffer_load_dwordx4")}[str(OPT["al8"])]
        with tempfile.TemporaryDirectory() as td:
            open(td + "/a.s", "w").write(s.replace("CODE_LAST", "0x12345"))
            subprocess.run(["clang", "-x", "assembler", "-target", "amdgcn-amd-amdhsa", "-mcpu=gfx950", "-c", td + "/a.s", "-o", td + "/a.o"], check=True)
            d = subprocess.run(["llvm-objdump", "-d", td + "/a.o"], capture_output=True, text=True).stdout
        sizes = [4 * len(m.group(1).split()) for m in re.finditer(r"// [0-9A-F]+: ([0-9A-F ]+)$", d, re.M)]
        out = []; addr = 0; k = 0; incode = False; nins = 0
        for ln in s.split("\n"):
            st = ln.strip()
            if st == f"{KN}:": incode = True
            if st.startswith(".section"): incode = False
            if incode and ln.startswith("    ") and st and not st.startswith(";"):
                sz = sizes[k]; k += 1
                if sz == 8 and addr % 8 == 4 and st.startswith(pat):
                    out.append("    s_nop 0"); addr += 4; nins += 1
                addr += sz
            out.append(ln)
        assert k == len(sizes), (k, len(sizes))
        s = "\n".join(out); size = addr
        print("alignment nops", nins)
    if "shift" in OPT:
        s = s.replace(f"{KN}:\n", f"{KN}:\n" + "    s_nop 0\n" * int(OPT["shift"]), 1); size += 4 * int(OPT["shift"])
    print("code bytes", size)
    assert size <= 65536
    return s.replace("CODE_LAST", hex(size - 4))

if __name__ == "__main__":
    out = sys.argv[1] if len(sys.argv) > 1 and not sys.argv[1].startswith("--") else os.path.join(os.path.dirname(os.path.abspath(__file__)), "..", NAME + ".s")
    open(out, "w").write(build())
    print("wrote", out)
```

```python
import sys, os
sys.path.insert(0, os.path.dirname(os.path.abspath(__file__)))
from asmlib import Asm
from gen import (NAME, P, sp, vr, sr, load_kernargs, srd, pk, cmul, tile_ids, Stamper, OPT, header_comments, descriptor)
import gen

KN = NAME + "_kernel"
WS_H    = 0
WS_KVT  = 8 << 20
WS_G    = 16 << 20
WS_EBOX = 17 << 20
WS_FLG  = 18 << 20
HF_OFF  = 0
KF_OFF  = 128 << 10
YF_OFF  = 160 << 10
PF_OFF  = 192 << 10
FLG_SZ  = 320 << 10
WS_PART = 24 << 20
N1 = 16
N2 = 16
NS2 = 4
PD = 4
CRING = 32768
KREG = 98304
UREG = KREG + 4*8320
LFLAG = UREG + 4*4608
SPIN = int(OPT.get("spin", 1 << 16))
SLEEP = int(OPT.get("sleep", 4))
def opt(k, d): return int(OPT.get(k, d))

class VQ:
    def __init__(self, A): self.A = A; self.n = 0; self.tags = {}; self.done = 0
    def issue(self, text, tag=None):
        self.A(text); self.n += 1
        if tag is not None: self.tags[tag] = self.n
    def wait(self, tag):
        k = self.tags[tag]
        if k <= self.done: return
        cnt = min(63, self.n - k)
        self.A(f"s_waitcnt vmcnt({cnt})"); self.done = self.n - cnt
    def drained(self): self.done = self.n

class LQ:
    def __init__(self, A): self.A = A; self.n = 0; self.tags = {}; self.done = 0
    def issue(self, text, tag=None):
        self.A(text); self.n += 1
        if tag is not None: self.tags[tag] = self.n
    def wait(self, tag):
        k = self.tags[tag]
        if k > self.done:
            self.A(f"s_waitcnt lgkmcnt({min(15, self.n - k)})"); self.done = max(k, self.n - 15)
    def drain(self):
        self.A("s_waitcnt lgkmcnt(0)"); self.done = self.n

def spin_all(A, name, vreg, reload, cmpval="1", sctr=89, pre=None):
    A(f"s_mov_b32 s{sctr}, {SPIN}")
    A(f"{name}_chk:")
    if pre: A(pre)
    A(f"v_cmp_ne_u32 vcc, {cmpval}, v{vreg}")
    A("s_cmp_eq_u64 vcc, 0")
    A(f"s_cbranch_scc1 {name}_ok")
    A(f"s_sub_u32 s{sctr}, s{sctr}, 1")
    A(f"s_cbranch_scc1 {name}_ok")
    A(f"s_sleep {SLEEP}")
    A(reload)
    A("s_waitcnt vmcnt(0)")
    A(f"s_branch {name}_chk")
    A(f"{name}_ok:")

def lds_spin(A, name, vaddr, off, vtmp, target, stmp=8, sctr=89):
    A(f"s_mov_b32 s{sctr}, {SPIN*4}")
    A(f"{name}:")
    A(f"ds_read_b32 v{vtmp}, v{vaddr} offset:{off}")
    A("s_waitcnt lgkmcnt(0)")
    A(f"v_readfirstlane_b32 s{stmp}, v{vtmp}")
    A(f"s_cmp_ge_u32 s{stmp}, {target}")
    A(f"s_cbranch_scc1 {name}_ok")
    A(f"s_sub_u32 s{sctr}, s{sctr}, 1")
    A(f"s_cbranch_scc0 {name}")
    A(f"{name}_ok:")

def lds_inc(A, vaddr, vone, off):
    A("s_mov_b64 exec, 1")
    A(f"ds_add_u32 v{vaddr}, v{vone} offset:{off}")
    A("s_mov_b64 exec, -1")

def zip_chains(A, chains):
    chains = [[x for t in c for x in t.split("\n")] for c in chains]
    for i in range(max(len(c) for c in chains)):
        for c in chains:
            if i < len(c): A(c[i])

def local_check(A, vbits, vtmp, sdst_pair, stmp):
    A(f"s_getreg_b32 s{stmp}, hwreg(HW_REG_XCC_ID, 0, 4)")
    A(f"s_lshl_b32 s{stmp}, 0x100, s{stmp}")
    A(f"s_or_b32 s{stmp}, s{stmp}, 15")
    A(f"v_and_b32 v{vtmp}, 7, v1")
    A(f"v_cmp_eq_u32 s[{sdst_pair}:{sdst_pair+1}], s54, v{vtmp}")
    A(f"v_cmp_ne_u32 vcc, s{stmp}, v{vbits}")
    A(f"s_and_b64 vcc, vcc, s[{sdst_pair}:{sdst_pair+1}]")

SNT = opt("snt", 1)
PB = opt("pb", 1)
NPQ = 4 if PB else 8
FBAR = opt("fb", 2)
OS = str(OPT.get("os", "_nt")).replace("_", " ")
ORD = opt("ord", 1)
def tile_of(A, i, dst):
    if i == 0: A(f"s_mov_b32 s{dst}, s15")
    elif ORD:
        A(f"s_cmp_le_u32 s15, {i-1}")
        A(f"s_cselect_b32 s{dst}, {i}, {i-1}")
    else:
        A(f"s_add_u32 s{dst}, s15, {i}")
        A(f"s_and_b32 s{dst}, s{dst}, 7")

def gen_kernel(A):
    A(f"{KN}:")
    A("s_cmp_ge_u32 s2, 256")
    A("s_cbranch_scc1 L_end")
    load_kernargs(A)
    tile_ids(A)
    A("v_and_b32 v1, 63, v0")
    A("v_lshrrev_b32 v2, 6, v0")
    A("s_and_b32 s15, s5, 7")
    A("v_readfirstlane_b32 s3, v2")
    A("s_cmp_ge_u32 s3, 4")
    A("s_cbranch_scc0 L_consumer")
    helper(A)
    A("L_consumer:")
    consumer(A)
    A("L_end:")
    A("s_endpgm")


def consumer(A):
    ACC = 64
    FA, FB = 128, 144
    AD, BD = 160, 168
    LAM, C2, MU, MU2, MU4, MU8 = 176, 178, 180, 182, 184, 186
    EL = 192
    UR2 = 224
    ST = Stamper(A, 0, 63)
    ST()
    A(f"s_setprio {opt('prio', 2)}")
    A("s_and_b32 s6, s3, 1")
    A("s_lshr_b32 s7, s3, 1")
    A("v_and_b32 v4, 31, v1")
    A("s_lshl_b32 s8, s5, 6")
    A("s_lshl_b32 s9, s7, 5")
    A("s_add_u32 s8, s8, s9")
    A("v_add_u32 v3, s8, v4")
    A("v_lshlrev_b32 v5, 1, v3")
    A("v_lshrrev_b32 v6, 5, v1")
    A("s_lshl_b32 s10, s4, 1")
    A("s_add_u32 s10, s10, s6")
    if "nocode" not in OPT:
        A("s_getpc_b64 s[12:13]")
        A("c_pc:")
        A(f"s_sub_u32 s12, s12, c_pc-{KN}")
        A("s_subb_u32 s13, s13, 0")
        if opt("cpf", 1) == 0:
            A("s_lshl_b32 s11, s3, 14")
            A("v_lshl_add_u32 v24, v1, 7, s11")
            A("v_min_u32 v24, CODE_LAST, v24")
            A("global_load_dword v25, v24, s[12:13]")
            A("v_add_u32 v24, 0x2000, v24")
            A("v_min_u32 v24, CODE_LAST, v24")
            A("global_load_dword v26, v24, s[12:13]")
        else:
            A("s_lshl_b32 s11, s55, 2")
            A("s_add_u32 s11, s11, s3")
            A("s_lshl_b32 s11, s11, 9")
            A("v_and_b32 v24, 3, v1")
            A("v_lshl_add_u32 v24, v24, 7, s11")
            A("v_min_u32 v24, CODE_LAST, v24")
            A("global_load_dword v25, v24, s[12:13]")
    A("s_waitcnt lgkmcnt(0)")
    A(f"global_load_ushort v8, v5, {sp('Lre')}")
    A(f"global_load_ushort v9, v5, {sp('Lim')}")
    A(f"global_load_ushort v10, v5, {sp('logdt')}")
    srd(A, 56, "ws", 256 << 10, WS_EBOX)
    srd(A, 60, "ws", 8 << 20, WS_H)
    srd(A, 64, "dbg", 256)
    srd(A, 68, "ws", FLG_SZ, WS_FLG)
    A("s_lshl_b32 s11, s10, 13")
    A("v_lshl_add_u32 v7, v3, 3, s11")
    A("v_mov_b32 v12, 0")
    A("v_mov_b32 v13, 0")
    A("buffer_store_dwordx2 v[12:13], v7, s[56:59], 0 offen sc1")
    A("s_lshl_b32 s11, s10, 4")
    A("s_add_u32 s11, s11, s5")
    A("s_lshl_b32 s11, s11, 1")
    A("s_add_u32 s11, s11, s7")
    A("s_lshl_b32 s11, s11, 7")
    A("v_mov_b32 v60, s11")
    A("buffer_store_dword v12, v60, s[68:71], 0 offen sc1")
    A("s_lshl_b32 s72, s4, 4")
    A("s_add_u32 s72, s72, s5")
    A("s_lshl_b32 s72, s72, 2")
    A("s_add_u32 s72, s72, s3")
    A("s_lshl_b32 s72, s72, 7")
    A(f"s_add_u32 s11, s72, {PF_OFF:#x}")
    A("v_mov_b32 v30, s11")
    A("buffer_store_dword v12, v30, s[68:71], 0 offen sc1")
    A("v_mov_b32 v23, 1")
    A("v_bfe_u32 v11, v1, 1, 3")
    A("v_xor_b32 v11, v11, v6")
    A("s_lshl_b32 s11, s6, 13")
    A("v_lshl_add_u32 v14, v4, 7, s11")
    A("s_lshl_b32 s11, s7, 12")
    A("s_add_u32 s11, s11, 16384")
    A("v_lshl_add_u32 v15, v4, 7, s11")
    for ks in range(4):
        A(f"v_xor_b32 v16, {2*ks}, v11")
        A(f"v_lshl_add_u32 v{AD+ks}, v16, 4, v14")
        A(f"v_lshl_add_u32 v{BD+ks}, v16, 4, v15")
        A(f"v_add_u32 v{AD+4+ks}, 0x10000, v{AD+ks}")
        A(f"v_add_u32 v{BD+4+ks}, 0x10000, v{BD+ks}")
    A("v_lshlrev_b32 v21, 2, v1")
    A("s_waitcnt vmcnt(0)")
    A("v_lshlrev_b32 v8, 16, v8")
    A("v_lshlrev_b32 v9, 16, v9")
    A("v_lshlrev_b32 v10, 16, v10")
    A("s_mov_b32 s12, 0x3fb8aa3b")
    A("v_mul_f32 v10, s12, v10")
    A("v_exp_f32 v10, v10")
    A("v_cvt_pk_bf16_f32 v10, v10, v10")
    A("v_lshlrev_b32 v10, 16, v10")
    A("v_mul_f32 v16, v10, v8")
    A("v_mul_f32 v17, v10, v9")
    A("v_mul_f32 v16, s12, v16")
    A("v_exp_f32 v16, v16")
    A("v_mul_f32 v17, 0.15915494, v17")
    A("v_rndne_f32 v18, v17")
    A("v_sub_f32 v17, v17, v18")
    A("v_cos_f32 v18, v17")
    A("v_sin_f32 v19, v17")
    A(f"v_mul_f32 v{LAM}, v16, v18")
    A(f"v_mul_f32 v{LAM+1}, v16, v19")
    A(f"v_add_f32 v16, -1.0, v{LAM}")
    A("v_mul_f32 v17, v8, v8")
    A("v_fma_f32 v17, v9, v9, v17")
    A("v_rcp_f32 v17, v17")
    A("v_mul_f32 v18, v16, v8")
    A(f"v_fma_f32 v18, v{LAM+1}, v9, v18")
    A(f"v_mul_f32 v19, v{LAM+1}, v8")
    A("v_fma_f32 v19, -v16, v9, v19")
    A("v_add_f32 v17, v17, v17")
    A(f"v_mul_f32 v{C2}, v18, v17")
    A(f"v_mul_f32 v{C2+1}, v19, v17")
    cmul(A, 16, LAM, LAM); cmul(A, 18, 16, 16); cmul(A, 16, 18, 18)
    cmul(A, MU, 16, 16); cmul(A, MU2, MU, MU); cmul(A, MU4, MU2, MU2); cmul(A, MU8, MU4, MU4)
    cmul(A, 48, C2, MU2)
    A("v_cmp_lt_u32 vcc, 31, v1")
    A(f"v_cndmask_b32 v48, v{C2}, v48, vcc")
    A(f"v_cndmask_b32 v49, v{C2+1}, v49, vcc")
    A("v_lshlrev_b32 v50, 13, v6")
    A("v_sub_u32 v50, v7, v50")
    A("s_add_u32 s11, s10, 1")
    A("v_sub_u32 v51, s11, v6")
    A("v_lshrrev_b32 v51, 1, v51")
    A("s_lshl_b32 s11, s4, 2")
    A("s_add_u32 s11, s11, s3")
    A("s_lshl_b32 s11, s11, 5")
    A("v_lshrrev_b32 v52, 3, v1")
    A("v_add_u32 v52, s11, v52")
    A("v_lshlrev_b32 v52, 11, v52")
    A("v_and_b32 v16, 7, v1")
    A("v_lshl_add_u32 v52, v16, 4, v52")
    A("s_lshl_b32 s11, s5, 7")
    A("v_add_u32 v52, s11, v52")
    A("s_lshl_b32 s11, s3, 13")
    A("v_lshlrev_b32 v53, 11, v6")
    A("v_lshl_add_u32 v53, v4, 1, v53")
    A("v_add_u32 v53, s11, v53")
    A("s_lshl_b32 s11, s5, 6")
    A("v_add_u32 v54, s11, v4")
    A("v_lshlrev_b32 v54, 1, v54")
    srd(A, 76, "x", 4 << 20)
    srd(A, 92, "ws", 8 << 20, WS_PART)
    A("s_xor_b32 s73, s72, 4096")
    A("s_lshl_b32 s74, s73, 6")
    A("s_add_u32 s75, s74, 4096")
    A("v_lshlrev_b32 v59, 4, v1")
    if "tlb" in OPT:
        A("s_lshl_b32 s11, s4, 19")
        A("v_mov_b32 v16, s11")
        A("buffer_load_dword v17, v16, s[60:63], 0 offen sc1")
        srd(A, 84, "out", 8 << 20)
        A("buffer_load_dword v18, v16, s[84:87], 0 offen sc1")
        A("v_mov_b32 v16, s74")
        A("buffer_load_dword v19, v16, s[92:95], 0 offen sc1")
        A("s_lshl_b32 s11, s72, 6")
        A("v_mov_b32 v16, s11")
        A("buffer_load_dword v24, v16, s[92:95], 0 offen sc1")

    def rd(stage, ks, buf, which):
        slot = stage % 3
        hi = 4 if slot >= 2 else 0
        so = (slot & 1) * 32768
        if which < 2:
            return f"ds_read_b128 {vr(FA+buf*8+which*4,4)}, v{AD+hi+ks} offset:{so + which*4096}"
        ri = which - 2
        return f"ds_read_b128 {vr(FB+buf*8+ri*4,4)}, v{BD+hi+ks} offset:{so + ri*8192}"
    def mf(buf, mt, ri, first):
        acc = ACC + ri*32 + mt*16
        return f"v_mfma_f32_32x32x16_bf16 {vr(acc,16)}, {vr(FA+buf*8+mt*4,4)}, {vr(FB+buf*8+ri*4,4)}, {'0' if first else vr(acc,16)}"
    RD_ORDER = [0, 2, 1, 3]
    MF_ORDER = [(0,0), (1,0), (1,1), (0,1)]
    ST()
    A("s_barrier")
    ST()
    A("s_cmp_lg_u32 s3, 0")
    A("s_cbranch_scc1 c_noflag")
    A("s_lshr_b32 s11, s2, 6")
    A("s_lshl_b32 s11, 1, s11")
    A("s_getreg_b32 s12, hwreg(HW_REG_XCC_ID, 0, 4)")
    A("s_lshl_b32 s12, 0x100, s12")
    A("s_or_b32 s11, s11, s12")
    A("v_mov_b32 v16, s11")
    A("s_and_b32 s11, s2, 63")
    A("s_lshl_b32 s11, s11, 2")
    A("v_mov_b32 v17, s11")
    A("s_mov_b64 exec, 1")
    A("buffer_atomic_or v16, v17, s[64:67], 0 offen sc1")
    A("s_mov_b64 exec, -1")
    A("c_noflag:")
    for w in RD_ORDER: A(rd(0, 0, 0, w))
    for s in range(N1):
        for ks in range(4):
            buf = ks & 1
            last = (s == N1-1 and ks == 3)
            if ks == 3:
                A("s_waitcnt lgkmcnt(0)")
                A("s_barrier")
            ns, nks = (s, ks+1) if ks < 3 else (s+1, 0)
            for i in range(4):
                if ks < 3 and i < 3: A("s_waitcnt lgkmcnt(2)")
                A(mf(buf, *MF_ORDER[i], s == 0 and ks == 0))
                if not last: A(rd(ns, nks, buf ^ 1, RD_ORDER[i]))
            if (s in (3, 7, 11) if "fine1" not in OPT else s >= 3) and ks == 3: ST()
            if s == 12 and ks == 0:
                A("buffer_load_dword v20, v21, s[64:67], 0 offen sc1")
    ST()
    if "fine1" in OPT: ST.n = 40
    gen.SAFE_PK[0] = bool(opt("pk", 0) & 1)
    def UR(t): return ACC + (t >> 3)*16 + 2*(t & 7)
    def UI(t): return ACC + 32 + (t >> 3)*16 + 2*(t & 7)
    E = [(24, 26), (28, 30 - 30 + 44)]
    cr, ci = UR(0), UI(0)
    for t in range(1, 16):
        nr, ni = E[t & 1]
        A(pk("fma", nr, cr, LAM, UR(t), bsel=0))
        A(pk("fma", ni, ci, LAM, UI(t), bsel=0))
        A(pk("fma", nr, ci, LAM, nr, bsel=1, neg_b=True))
        A(pk("fma", ni, cr, LAM, ni, bsel=1))
        cr, ci = nr, ni
    A("v_mov_b32 v32, v28\nv_mov_b32 v33, v44\nv_mov_b32 v34, v29\nv_mov_b32 v35, v45")
    cmul(A, 36, MU, 32, add=34)
    A("v_mov_b32 v38, v36\nv_mov_b32 v39, v37\nv_mov_b32 v40, 0\nv_mov_b32 v41, 0")
    A("v_permlane32_swap_b32 v40, v38")
    A("v_permlane32_swap_b32 v41, v39")
    cmul(A, 42, MU2, 40, add=36)
    A("v_or_b32 v42, 1, v42")
    A("s_mov_b32 s12, 0")
    A("s_mov_b32 s13, -1")
    A("s_mov_b64 exec, s[12:13]")
    A("buffer_store_dwordx2 v[42:43], v7, s[56:59], 0 offen sc1")
    A("s_mov_b64 exec, -1")
    def scaling():
        for t in range(16):
            n = UR2 + 2*t
            A(pk("mul", n, UR(t), C2, bsel=0))
            A(pk("fma", n, UI(t), C2, n, bsel=1, neg_b=True))
            A(pk("mul", UI(t), UI(t), C2, bsel=0))
            A(pk("fma", UI(t), UR(t), C2, UI(t), bsel=1))
        cmul(A, 44, C2, 40)
        cmul(A, 46, C2, 32)
    if "lowp" in OPT: A("s_setprio 0")
    ST()
    A("s_lshl_b32 s9, s3, 13")
    for i in range(4):
        A(f"s_add_u32 m0, s9, {i*1024}")
        A(f"s_mov_b32 s8, {i*16384}")
        A("buffer_load_dwordx4 v52, s[76:79], s8 offen lds")
    for q in range(2):
        A(f"global_load_ushort v{9+q}, v54, {sp('Dskip')} offset:{q*64}")
    if SNT:
        for i in range(4): A(f"v_mov_b32 v{24+i}, -1")
        for i in range(NPQ): A(f"buffer_store_dwordx4 v[24:27], v59, s[92:95], s{74 if i < 4 else 75} offen offset:{(i & 3)*1024} sc1")
    if "pollfirst" not in OPT: scaling()
    for k in range(16):
        A(f"v_subrev_u32 v{128+k}, {(1+2*k)*8192:#x}, v50")
    ST()
    A(f"s_waitcnt vmcnt({7 + NPQ if SNT else 7})")
    spin_all(A, "c_init", 52, "buffer_load_dword v20, v21, s[64:67], 0 offen sc1", "15", pre="v_and_b32 v52, 15, v20")
    local_check(A, 20, 52, 12, 11)
    A("s_cselect_b32 s14, 0, 1")
    if "nolocal" in OPT: A("s_mov_b32 s14, 0")
    for k in range(16):
        A(f"buffer_load_dwordx2 {vr(EL+2*k,2)}, v{128+k}, s[56:59], 0 offen sc1")
    if "pollfirst" in OPT: scaling()
    XP = list(range(73, 89))
    XDP = [89, 90, 91, 92, 93, 94, 95, 54, 55, 56, 57, 58, 59, 61, 5, 12]
    A(f"s_waitcnt vmcnt({16 + NPQ if SNT else 16})")
    XT = [160 + i for i in range(16)] + [73 + i for i in range(16)]
    for nt in range(2):
        for r in range(16): A(f"ds_read_u16 v{XT[nt*16+r]}, v53 offset:{r*128+nt*64}")
    A("s_waitcnt lgkmcnt(0)")
    for m in range(8): A(f"v_lshl_or_b32 v{XP[8+m]}, v{XT[16+2*m+1]}, 16, v{XT[16+2*m]}" if False else f"v_lshl_or_b32 v{64+m}, v{XT[16+2*m+1]}, 16, v{XT[16+2*m]}")
    for m in range(8): A(f"v_lshl_or_b32 v{XP[m]}, v{XT[2*m+1]}, 16, v{XT[2*m]}")
    for m in range(8): A(f"v_mov_b32 v{XP[8+m]}, v{64+m}")
    BD2 = 32
    A("s_lshl_b32 s11, s3, 13")
    A("v_lshl_add_u32 v16, v6, 11, s11")
    A("v_lshl_add_u32 v16, v4, 6, v16")
    A("v_bfe_u32 v17, v1, 1, 2")
    for q in range(4):
        A(f"v_xor_b32 v18, {q}, v17")
        A(f"v_lshl_add_u32 v{64+q}, v18, 4, v16")
    A("v_mov_b32 v31, 1")
    A("v_bfe_u32 v16, v1, 2, 2")
    A("v_lshl_add_u32 v16, v6, 3, v16")
    A("v_and_b32 v24, 1, v1")
    A("v_bfe_u32 v18, v1, 4, 1")
    A("v_lshl_add_u32 v24, v24, 1, v18")
    A("v_bfe_u32 v18, v16, 1, 2")
    A("v_xor_b32 v24, v24, v18")
    A("v_lshlrev_b32 v24, 4, v24")
    A("v_lshl_add_u32 v24, v16, 6, v24")
    A("v_bfe_u32 v18, v1, 1, 1")
    A("v_lshl_add_u32 v24, v18, 3, v24")
    A("v_xor_b32 v25, 32, v24")
    A("v_add_u32 v25, 256, v25")
    A("v_add_u32 v68, s11, v24")
    A("v_add_u32 v69, s11, v25")
    A("s_lshl_b32 s11, s4, 7")
    A("s_lshl_b32 s12, s6, 6")
    A("s_add_u32 s11, s11, s12")
    A("s_and_b32 s12, s5, 7")
    A("s_lshl_b32 s12, s12, 2")
    A("s_add_u32 s11, s11, s12")
    A("s_add_u32 s11, s11, s7")
    A("s_lshl_b32 s11, s11, 12")
    A("s_lshr_b32 s13, s5, 3")
    A("s_lshl_b32 s13, s13, 11")
    A("s_add_u32 s11, s11, s13")
    A("v_lshl_add_u32 v72, v1, 4, s11")
    A(f"v_mov_b32 v20, {LFLAG:#x}")
    A("s_lshl_b32 s6, s4, 2")
    A("s_add_u32 s6, s6, s3")
    A("s_lshr_b32 s7, s3, 1")
    A("s_lshl_b32 s7, s7, 13")
    A("s_and_b32 s8, s3, 1")
    A("s_lshl_b32 s8, s8, 11")
    A("s_add_u32 s7, s7, s8")
    A("v_add_u32 v70, s7, v24")
    A("v_add_u32 v71, s7, v25")
    A("s_lshl_b32 s7, s6, 17")
    A("s_add_u32 s7, s7, s13")
    A("v_lshl_add_u32 v3, v1, 4, s7")
    A("v_add_u32 v2, 0x1000, v3")
    A(f"v_lshlrev_b32 v14, 7, v4")
    A(f"v_add_u32 v14, {CRING:#x}, v14")
    for ks in range(4):
        A(f"v_xor_b32 v16, {2*ks}, v11")
        A(f"v_lshl_add_u32 v{BD2+ks}, v16, 4, v14")
    A("s_lshr_b32 s7, s6, 1")
    A("s_lshl_b32 s7, s7, 12")
    A("s_add_u32 s7, s7, s13")
    A("v_bfe_u32 v16, v1, 1, 3")
    if ORD:
        A("v_subrev_u32 v14, 1, v16")
        A("v_cmp_le_u32 vcc, s15, v14")
        A("v_cndmask_b32 v14, v14, v16, vcc")
        A("v_mov_b32 v19, s15")
        A("v_cmp_eq_u32 vcc, 0, v16")
        A("v_cndmask_b32 v16, v14, v19, vcc")
    else:
        A("v_add_u32 v16, s15, v16")
        A("v_and_b32 v16, 7, v16")
    A("v_and_b32 v14, 1, v1")
    A("v_lshl_add_u32 v16, v16, 1, v14")
    A("v_lshl_add_u32 v22, v16, 7, s7")
    srd(A, 64, "ws", 8192, WS_G)
    srd(A, 76, "out", 8 << 20)
    for i in range(8):
        A(f"s_mov_b32 s{80+i}, {i*4096}")
    A("s_lshl_b32 s7, s6, 5")
    A("v_lshl_add_u32 v7, v6, 4, s7")
    A("s_lshl_b32 s8, s5, 6")
    A("v_add_u32 v8, s8, v4")
    A("v_lshlrev_b32 v26, 12, v7")
    A("v_lshl_add_u32 v26, v8, 2, v26")
    A("v_add_u32 v27, 0x8000, v26")
    A("v_lshlrev_b32 v7, 2, v7")
    A("v_mul_u32_u24 v21, 272, v4")
    A("v_lshl_add_u32 v21, v6, 5, v21")
    A("s_lshl_b32 s8, s3, 6")
    A("v_add_u32 v21, s8, v21")
    A(f"s_add_u32 s8, s73, {PF_OFF:#x}")
    A("v_mov_b32 v29, s8")
    A("v_lshlrev_b32 v28, 4, v1")
    A("v_mov_b32 v23, 1")
    A(f"s_mov_b32 s88, {SPIN}")
    A("c_poll:")
    A("s_waitcnt vmcnt(0)")
    A("v_mov_b32 v52, 0")
    for k in range(16):
        A(f"v_and_b32 v{144+k}, 1, v{EL+2*k}")
    for k in range(0, 16, 2):
        A(f"v_add3_u32 v52, v52, v{144+k}, v{145+k}")
    A("v_cmp_ne_u32 vcc, v52, v51")
    A("s_cmp_eq_u64 vcc, 0")
    A("s_cbranch_scc1 c_polled")
    A("s_sub_u32 s88, s88, 1")
    A("s_cbranch_scc1 c_polled")
    A(f"s_sleep {opt('psleep', SLEEP)}")
    for k in range(16):
        A(f"v_cmp_eq_u32 vcc, 0, v{144+k}")
        A("s_mov_b64 exec, vcc")
        A(f"buffer_load_dwordx2 {vr(EL+2*k,2)}, v{128+k}, s[56:59], 0 offen sc1")
        A("s_mov_b64 exec, -1")
    A("s_branch c_poll")
    A("c_polled:")
    if "pz" in OPT:
        A("s_lshl_b32 s8, s3, 2")
        A(f"s_add_u32 s8, s8, {LFLAG + 24:#x}")
        A("v_mov_b32 v16, s8")
        A("s_mov_b64 exec, 1")
        A("ds_write_b32 v16, v31")
        A("s_mov_b64 exec, -1")
    if "lowp" in OPT: A(f"s_setprio {opt('prio', 2)}")
    ST()
    g = EL + 30
    G = [52, 54]
    for k in range(14, -1, -1):
        n = G[k & 1]
        A(pk("fma", n, g, MU8, EL+2*k, bsel=0))
        A(pk("fma", n, g, MU8, n, bsel=1, asel="swap", neg_lo=[1,0,0]))
        g = n
    A("v_mov_b32 v54, v52\nv_mov_b32 v55, v53\nv_mov_b32 v56, v52\nv_mov_b32 v57, v53")
    A("v_permlane32_swap_b32 v54, v56")
    A("v_permlane32_swap_b32 v55, v57")
    cmul(A, 58, MU4, 56, add=54)
    cmul(A, 52, 48, 58, add=44)
    cmul(A, 54, MU, 52, add=46)
    A("v_mov_b32 v56, v52\nv_mov_b32 v57, v54\nv_mov_b32 v58, v53\nv_mov_b32 v59, v55")
    cr, ci = 56, 58
    def packhalf(hf):
        for plane in range(2):
            for e in range(2):
                d = 128 + ((plane*2 + e)*2 + hf)*4
                for m in range(4):
                    t = hf*8 + 2*m
                    if plane == 0: A(f"v_cvt_pk_bf16_f32 v{d+m}, v{UR2+2*t+e}, v{UR2+2*(t+1)+e}")
                    else: A(f"v_cvt_pk_bf16_f32 v{d+m}, -v{UI(t)+e}, -v{UI(t+1)+e}")
                A(f"ds_write_b128 v{64+2*e+hf}, {vr(d,4)} offset:{plane*4096}")
    for t in range(16):
        nr, ni = UR2 + 2*t, UI(t)
        if "ablb" in OPT:
            if t == 7: packhalf(0)
            continue
        A(pk("fma", nr, cr, LAM, nr, bsel=0))
        A(pk("fma", ni, ci, LAM, ni, bsel=0))
        A(pk("fma", nr, ci, LAM, nr, bsel=1, neg_b=True))
        A(pk("fma", ni, cr, LAM, ni, bsel=1))
        cr, ci = nr, ni
        if t == 7: packhalf(0)
    packhalf(1)
    if "pz" in OPT:
        A("v_mov_b32 v17, 0")
        A("s_mov_b64 exec, 1")
        A("ds_write_b32 v16, v17")
        A("s_mov_b64 exec, -1")
    gen.SAFE_PK[0] = False
    EARLY = opt("early", 0)
    HFL = "buffer_load_dword v19, v22, s[68:71], 0 offen sc1"
    if EARLY: A(HFL)
    ST()
    A("s_waitcnt lgkmcnt(0)")
    lds_inc(A, 20, 31, 12)
    AF = 160
    idx = 0
    for tblk in range(2):
        for plane in range(2):
            for ksl in range(2):
                d = AF + idx*4
                o = plane*4096 + tblk*2048 + ksl*1024
                A(f"ds_read_b64_tr_b16 {vr(d,2)}, v68 offset:{o}")
                A(f"ds_read_b64_tr_b16 {vr(d+2,2)}, v69 offset:{o}")
                idx += 1
    V = VQ(A)
    idx = 0
    for tblk in range(2):
        for plane in range(2):
            A(f"s_mov_b32 s12, {tblk*131072 + plane*8192:#x}")
            for ksl in range(2):
                d = AF + idx*4
                A(f"s_waitcnt lgkmcnt({min(15, 14 - 2*idx)})")
                V.issue(f"buffer_store_dwordx4 {vr(d,4)}, v72, s[60:63], s12 offen offset:{ksl*1024} sc1", "hst")
                idx += 1
    ACC2 = 96
    FB2 = 224
    GR = 36
    ST2 = Stamper(A, 1, 62)
    A(f"s_mov_b32 s89, {SPIN*4}")
    A("c_lw:")
    A("ds_read_b128 v[52:55], v20 offset:4")
    A("s_waitcnt lgkmcnt(0)")
    A("v_min_u32 v54, v54, v55")
    A("v_min_u32 v53, 1, v53")
    A("v_readfirstlane_b32 s8, v54")
    A("v_readfirstlane_b32 s9, v53")
    A("s_add_u32 s8, s8, s9")
    A("s_cmp_ge_u32 s8, 5")
    A("s_cbranch_scc1 c_lwok")
    A("s_sub_u32 s89, s89, 1")
    A("s_cbranch_scc0 c_lw")
    A("c_lwok:")
    L = LQ(A)
    for st in range(2):
        for ks in range(4):
            d = AF + (st*4 + ks)*4
            o = (ks >> 1)*16384 + st*4096 + (ks & 1)*1024
            L.issue(f"ds_read_b64_tr_b16 {vr(d,2)}, v70 offset:{o}")
            L.issue(f"ds_read_b64_tr_b16 {vr(d+2,2)}, v71 offset:{o}", ("A", st, ks))
    A("s_mov_b32 s13, 0")
    if EARLY:
        A("s_waitcnt vmcnt(8)")
        A("v_cmp_eq_u32 s[90:91], 1, v19")
        A("s_and_b32 s88, s90, 0xc")
        A("s_cmp_eq_u32 s88, 0xc")
        A("s_cbranch_scc0 c_noearly")
        A("s_mov_b32 s13, 1")
        for z in (2, 3):
            tile_of(A, z >> 1, 11)
            A("s_lshl_b32 s11, s11, 14")
            if z & 1: A("s_add_u32 s11, s11, 8192")
            for k2 in range(4):
                A(f"buffer_load_dwordx4 {vr(AF + (z*4 + k2)*4,4)}, v{3 if k2 < 2 else 2}, s[60:63], s11 offen offset:{(k2 & 1)*1024} sc1")
        A("c_noearly:")
    for q in range(4):
        V.issue(f"buffer_load_dwordx4 {vr(GR+q*4,4)}, v7, s[64:67], 0 offen offset:{q*16} sc1", "g")
    ST()
    slowp = []
    def need(i):
        m = ((1 << (2*i + 2)) - 1) & ~3
        name = f"c_n{len(slowp)}"
        A(f"s_and_b32 s88, s90, {m:#x}")
        A(f"s_cmp_eq_u32 s88, {m:#x}")
        A(f"s_cbranch_scc0 {name}_s")
        A(f"{name}:")
        slowp.append((name, m))
    alast = [None]
    def aload(st, ks):
        if alast[0] != st:
            alast[0] = st
            tile_of(A, st >> 1, 11)
            A("s_lshl_b32 s11, s11, 14")
            if st & 1: A("s_add_u32 s11, s11, 8192")
        r = AF + ((st % PD)*4 + ks)*4
        V.issue(f"buffer_load_dwordx4 {vr(r,4)}, v{3 if ks < 2 else 2}, s[60:63], s11 offen offset:{(ks & 1)*1024} sc1", ("A", st, ks))
    def rd2(st, ks, nt, slot):
        return f"ds_read_b128 {vr(FB2+slot*4,4)}, v{BD2+ks} offset:{(st % NS2)*16384 + nt*4096}"
    def mf2(st, ks, nt, slot):
        a = AF + ((st % PD)*4 + ks)*4
        c = vr(ACC2+nt*16, 16)
        return f"v_mfma_f32_32x32x16_bf16 {c}, {vr(a,4)}, {vr(FB2+slot*4,4)}, {'0' if (st == 0 and ks == 0) else c}"
    def await_(st, ks):
        if st < 2: L.wait(("A", st, ks))
        else: V.wait(("A", st, ks))
    ST2()
    for nt in range(4): L.issue(rd2(0, 0, nt, nt), (0, 0, nt))
    HFK = opt("hfk", 3)
    N1K = opt("n1k", 2)
    XPS = opt("xps", 1)
    xfill = []
    def xpart(A=A):
        A("v_lshlrev_b32 v9, 16, v9")
        A("v_lshlrev_b32 v10, 16, v10")
        A("s_mov_b32 s12, 0xffff0000")
        TT = [13, 15, 16, 17, 18, 24, 25, 8]
        for k0 in range(0, 16, 4):
            ch = []
            for k in range(k0, k0 + 4):
                t0, t1 = TT[2*(k & 3)], TT[2*(k & 3) + 1]
                dk = 9 + (k >> 3)
                ch.append([f"v_lshlrev_b32 v{t0}, 16, v{XP[k]}", f"v_and_b32 v{t1}, s12, v{XP[k]}", f"v_mul_f32 v{t0}, v{t0}, v{dk}", f"v_mul_f32 v{t1}, v{t1}, v{dk}",
                           f"v_cvt_pk_bf16_f32 v{XDP[k]}, v{t0}, v{t1}"])
            zip_chains(A, ch)
    if XPS == 2: xpart(xfill.append)
    DIST = opt("dist", 3)
    assert DIST in (2, 3, 4)
    polls = [0]
    def hfpoll():
        polls[0] += 1
        V.issue(HFL, ("hf", polls[0]))
    def hfseen():
        V.wait(("hf", polls[0]))
        A("v_cmp_eq_u32 s[90:91], 1, v19")
    FS = opt("fs", 4)
    assert FS == 1 or (FS in (3, 4) and DIST >= 3)
    for st in range(N2 - FS):
        for ks in range(4):
            buf = ks & 1
            if ks == 3 and st >= FBAR: A("s_barrier")
            if ks == 3 and st == 1 and FBAR > 1:
                lds_spin(A, "c_cf2", 20, 20, 14, 4); L.done = L.n
            ns, nks = (st, ks+1) if ks < 3 else (st+1, 0)
            await_(st, ks)
            for nt in range(4):
                L.wait((st, ks, nt))
                A(mf2(st, ks, nt, buf*4 + nt))
                L.issue(rd2(ns, nks, nt, (buf ^ 1)*4 + nt), (ns, nks, nt))
                for z in range(opt("xfm", 3)):
                    if xfill: A(xfill.pop(0))
            if st == 0 and ks == HFK:
                if EARLY:
                    cnt = V.n - V.tags["hst"]
                    A("s_cmp_eq_u32 s13, 1")
                    A("s_cbranch_scc1 c_hw_e")
                    A(f"s_waitcnt vmcnt({cnt})")
                    A("s_branch c_hw_d")
                    A("c_hw_e:")
                    A(f"s_waitcnt vmcnt({cnt + 8})")
                    A("c_hw_d:")
                    V.done = V.tags["hst"]
                else: V.wait("hst")
                A("s_cmp_eq_u32 s14, 1")
                A("s_cbranch_scc1 c_hfs_l")
                A("buffer_store_dword v23, v60, s[68:71], 0 offen sc1")
                A("s_branch c_hfs_e")
                A("c_hfs_l:")
                A("buffer_store_dword v23, v60, s[68:71], 0 offen")
                A("c_hfs_e:")
                V.n += 1
                if SNT: V.issue("buffer_store_dword v23, v30, s[68:71], 0 offen sc1")
                hfpoll()
                if "fine3" in OPT: ST2()
            if st == 1 and ks == opt("rp", -1): hfpoll()
            if st == 1 and ks == N1K:
                if "fine3" in OPT: ST2()
                if EARLY:
                    A("s_cmp_eq_u32 s13, 1")
                    A("s_cbranch_scc1 c_skipy")
                hfseen(); need(1)
                if "fine3" in OPT: ST2()
                for z in (2, 3):
                    for k2 in range(4): aload(z, k2)
                if EARLY:
                    A("c_skipy:")
                    V.done = min(V.done, V.tags[("hf", polls[0])] - 1)
                hfpoll()
                if XPS == 0: xpart()
            if st == 1 and ks == 3 and XPS == 1: xpart()
            if st >= 2:
                if st == 2 and ks == 0:
                    if "fine3" in OPT: ST2()
                    hfseen(); need(2)
                    if "fine3" in OPT: ST2()
                    for z in range(4, 2 + DIST):
                        for k2 in range(4): aload(z, k2)
                    hfpoll()
                z = st + DIST
                if z < N2:
                    if ks == 0 and z % 2 == 0 and z // 2 >= 3:
                        if z // 2 == 3: hfseen()
                        if not (int(OPT.get("abl", 0)) & 2): need(z // 2)
                    aload(z, ks)
            if SNT and st == opt("pfl", 5) and ks == 0: V.issue("buffer_load_dword v14, v29, s[68:71], 0 offen sc1", "pf")
            if SNT and st == opt("pfc", 8) and ks == 0:
                V.wait("pf")
                A("v_cmp_ne_u32 vcc, 1, v14")
                A("s_cmp_eq_u64 vcc, 0")
                A("s_cbranch_scc0 c_pfs")
                A("c_pfr:")
            if "fine3" in OPT:
                if st in (1, 2, 3, 4) and ks == 3: ST2()
                if st == 2 and ks == 0: ST2()
            elif "fine4" in OPT:
                if st == N2 - FS - 1 and ks == 3: ST2()
            elif (st % 2 == 1 if 'fine2' not in OPT else True) and ks == 3: ST2()
    f0 = N2 - FS
    S_ = lambda z: [(z, ks, nt) for ks in range(4) for nt in (0, 1)]
    K_ = lambda z: [(z, ks, nt) for ks in range(4) for nt in (2, 3)]
    if FS == 1: order = S_(15) + K_(15); nsend = 8
    elif FS == 3: order = S_(13) + ["b13"] + S_(14) + K_(13) + ["b14"] + S_(15) + K_(14) + K_(15); nsend = 32
    else:
        BP = opt("bp", 4)
        order = []
        if opt("fso", 1) == 0:
            for z in (12, 13, 14): order += S_(z)[:BP] + [f"b{z}"] + S_(z)[BP:]
            order += S_(15) + K_(12) + K_(13) + K_(14) + K_(15); nsend = 32
        else:
            order = S_(12)[:BP] + ["b12"] + S_(12)[BP:] + S_(13) + K_(12)[:BP] + ["b13"] + K_(12)[BP:] + S_(14)[:BP] + ["b14"] + S_(14)[BP:] + S_(15) + K_(13) + K_(14) + K_(15)
            nsend = 40
        for z in range(N2):
            if ("A", z, 0) not in V.tags and z >= 2:
                for k2 in range(4): aload(z, k2)
    mfs = [x for x in order if not isinstance(x, str)]
    slot = {(f0, 0, nt): nt for nt in range(4)}
    pend = [x for x in mfs if x not in slot]
    free = [4, 5, 6]
    pub = [f0]
    def fill():
        while pend and free and pend[0][0] <= pub[0]:
            x = pend.pop(0); sl = free.pop(0); slot[x] = sl
            L.issue(rd2(x[0], x[1], x[2], sl), x)
    fill()
    pst = [f"buffer_store_dwordx4 {vr(ACC2+4*i,4)}, v28, s[92:95], s{74 if i < 4 else 75} offen offset:{(i & 3)*1024} sc1" for i in range(NPQ)]
    pcv = [f"v_cvt_pk_bf16_f32 v{ACC2+k}, v{ACC2+2*k}, v{ACC2+2*k+1}" for k in range(16)] if PB else []
    i = 0; prev = None
    for x in order:
        if isinstance(x, str):
            A("s_barrier"); pub[0] += 1; fill(); continue
        V.wait(("A", x[0], x[1]))
        if x not in slot: fill()
        L.wait(x)
        A(mf2(x[0], x[1], x[2], slot[x]))
        free.append(slot[prev] if prev is not None else 7)
        prev = x
        fill()
        i += 1
        SP = opt("sp", 0)
        if i >= nsend + 3 and pcv:
            for z in range(4): A(pcv.pop(0))
            V.issue(pst.pop(0), "ps")
        elif i >= nsend + 3:
            if SP == 0:
                for z in range(2):
                    if pst: V.issue(pst.pop(0), "ps")
            elif (i - nsend - 3) % SP == 0 and pst: V.issue(pst.pop(0), "ps")
        if "fine4" in OPT and i % 8 == 0: ST2()
    while pst: V.issue(pst.pop(0), "ps")
    ST2()
    YR, OM, GF, T0, RV = 160, 176, 192, 208, ACC2
    KEEP = ACC2 + 32
    PFL = "buffer_load_dword v19, v29, s[68:71], 0 offen sc1"
    A("s_mov_b32 s12, 0xffff0000")
    for nt in range(2):
        for hf in range(2): A(f"ds_read_b128 {vr(YR+nt*8+hf*4,4)}, v21 offset:{nt*32*272 + hf*16}")
    for r in range(16):
        A(f"v_lshlrev_b32 v{GF+r}, 16, v{GR+r}")
        A(f"v_and_b32 v{OM+r}, s12, v{GR+r}")
    A("s_waitcnt lgkmcnt(0)")
    if SNT:
        RCG = opt("rcg", 2)
        def recv_full():
            for i in range(NPQ):
                A(f"buffer_load_dwordx4 {vr(RV+4*i,4)}, v28, s[92:95], s{90 if i < 4 else 91} offen offset:{(i & 3)*1024} sc1")
        first = [True]
        def recv():
            if "lp" in OPT and first[0]:
                first[0] = False
                A(f"buffer_load_dwordx4 {vr(RV+4*NPQ-4,4)}, v28, s[92:95], s{90 if PB else 91} offen offset:3072 sc1")
            else: recv_full()
        A("s_lshl_b32 s90, s72, 6")
        A("s_add_u32 s91, s90, 4096")
        gi = 0
        for nt in range(2):
            for m0 in range(0, 8, 4):
                if gi == RCG: recv()
                gi += 1
                ch = []
                for m in range(m0, m0 + 4):
                    b_ = T0 + (m & 3)*6
                    yy, xf, tm = b_, b_ + 2, b_ + 4
                    xp = XP[nt*8+m]; xd = XDP[nt*8+m]; ka = KEEP + nt*16 + 2*m
                    ch.append([f"v_lshlrev_b32 v{yy}, 16, v{YR+nt*8+m}", f"v_and_b32 v{yy+1}, s12, v{YR+nt*8+m}",
                               f"v_lshlrev_b32 v{xf}, 16, v{xp}", f"v_and_b32 v{xf+1}, s12, v{xp}",
                               f"v_mul_f32 v{yy}, v{xf}, v{yy}", f"v_mul_f32 v{yy+1}, v{xf+1}, v{yy+1}",
                               f"v_lshlrev_b32 v{xf}, 16, v{xd}", f"v_and_b32 v{xf+1}, s12, v{xd}",
                               f"v_cvt_pk_bf16_f32 v{tm}, v{yy}, v{yy+1}",
                               f"v_add_f32 v{ka}, v{ka}, v{xf}", f"v_add_f32 v{ka+1}, v{ka+1}, v{xf+1}",
                               f"v_lshlrev_b32 v{yy}, 16, v{tm}", f"v_and_b32 v{yy+1}, s12, v{tm}",
                               f"v_mul_f32 v{yy}, v{yy}, v{OM+2*m}", f"v_mul_f32 v{yy+1}, v{yy+1}, v{OM+2*m+1}",
                               f"v_cvt_pk_bf16_f32 v{tm}, v{yy}, v{yy+1}", f"v_lshlrev_b32 v{yy}, 16, v{tm}", f"v_and_b32 v{yy+1}, s12, v{tm}",
                               f"v_fma_f32 v{ka}, v{ka}, v{GF+2*m}, v{yy}", f"v_fma_f32 v{ka+1}, v{ka+1}, v{GF+2*m+1}, v{yy+1}"])
                zip_chains(A, ch)
        if gi == RCG: recv()
        ST2()
        if "lp" in OPT:
            LP = f"buffer_load_dwordx4 {vr(RV+4*NPQ-4,4)}, v28, s[92:95], s{90 if PB else 91} offen offset:3072 sc1"
            A(f"s_mov_b32 s89, {SPIN}")
            A("c_lp:")
            A("s_waitcnt vmcnt(0)")
            A(f"v_cmp_eq_u32 vcc, -1, v{RV+4*NPQ-1}")
            A("s_cmp_eq_u64 vcc, 0")
            A("s_cbranch_scc1 c_lpok")
            A("s_sub_u32 s89, s89, 1")
            A("s_cbranch_scc1 c_lpok")
            A(LP)
            A("s_branch c_lp")
            A("c_lpok:")
            recv_full()
        A(f"s_mov_b32 s89, {SPIN}")
        A("c_rc:")
        A("s_waitcnt vmcnt(0)")
        A(f"v_max3_u32 v19, v{RV}, v{RV+1}, v{RV+2}")
        for i in range(3, 4*NPQ-1, 2): A(f"v_max3_u32 v19, v19, v{RV+i}, v{RV+i+1}")
        A(f"v_max_u32 v19, v19, v{RV+4*NPQ-1}")
        A("v_cmp_eq_u32 vcc, -1, v19")
        A("s_cmp_eq_u64 vcc, 0")
        A("s_cbranch_scc1 c_rcok")
        A("s_sub_u32 s89, s89, 1")
        A("s_cbranch_scc1 c_rcok")
        recv()
        A("s_branch c_rc")
        A("c_rcok:")
        ST2()
        for nt in range(2):
            for r in range(16):
                a = KEEP + nt*16 + r
                if PB:
                    w = RV + nt*8 + (r >> 1); t = T0 + (r & 3)
                    A(f"v_and_b32 v{t}, s12, v{w}" if r & 1 else f"v_lshlrev_b32 v{t}, 16, v{w}")
                    A(f"v_fma_f32 v{a}, v{t}, v{GF+r}, v{a}")
                else: A(f"v_fma_f32 v{a}, v{RV+nt*16+r}, v{GF+r}, v{a}")
                A(f"buffer_store_dword v{a}, v{26 if r < 8 else 27}, s[76:79], s{80+(r&7)} offen offset:{nt*128}{OS}")
        ST2()
    else:
        PFG = opt("pfg", 2)
        gi = 0
        def pfstore():
            A("s_waitcnt vmcnt(0)")
            A("buffer_store_dword v23, v30, s[68:71], 0 offen sc1")
            A(PFL)
        RCG = opt("rcg", 3)
        def recv():
            A("s_lshl_b32 s12, s72, 6")
            A("s_add_u32 s13, s12, 4096")
            for i in range(NPQ):
                A(f"buffer_load_dwordx4 {vr(RV+4*i,4)}, v28, s[92:95], s{12 if i < 4 else 13} offen offset:{(i & 3)*1024} sc1")
            A("s_mov_b32 s12, 0xffff0000")
        A("s_mov_b32 s90, 0")
        for nt in range(2):
            for m0 in range(0, 8, 4):
                if gi == PFG: pfstore()
                if gi == RCG and RCG > PFG:
                    A("s_waitcnt vmcnt(0)")
                    A("v_cmp_ne_u32 vcc, 1, v19")
                    A("s_cmp_eq_u64 vcc, 0")
                    A("s_cbranch_scc0 c_norc")
                    recv()
                    A("s_mov_b32 s90, 1")
                    A("c_norc:")
                gi += 1
                ch = []
                for m in range(m0, m0 + 4):
                    b_ = T0 + (m & 3)*6
                    yy, xf, tm = b_, b_ + 2, b_ + 4
                    xp = XP[nt*8+m]; xd = XDP[nt*8+m]; ka = KEEP + nt*16 + 2*m
                    ch.append([f"v_lshlrev_b32 v{yy}, 16, v{YR+nt*8+m}", f"v_and_b32 v{yy+1}, s12, v{YR+nt*8+m}",
                               f"v_lshlrev_b32 v{xf}, 16, v{xp}", f"v_and_b32 v{xf+1}, s12, v{xp}",
                               f"v_mul_f32 v{yy}, v{xf}, v{yy}", f"v_mul_f32 v{yy+1}, v{xf+1}, v{yy+1}",
                               f"v_lshlrev_b32 v{xf}, 16, v{xd}", f"v_and_b32 v{xf+1}, s12, v{xd}",
                               f"v_cvt_pk_bf16_f32 v{tm}, v{yy}, v{yy+1}",
                               f"v_add_f32 v{ka}, v{ka}, v{xf}", f"v_add_f32 v{ka+1}, v{ka+1}, v{xf+1}",
                               f"v_lshlrev_b32 v{yy}, 16, v{tm}", f"v_and_b32 v{yy+1}, s12, v{tm}",
                               f"v_mul_f32 v{yy}, v{yy}, v{OM+2*m}", f"v_mul_f32 v{yy+1}, v{yy+1}, v{OM+2*m+1}",
                               f"v_cvt_pk_bf16_f32 v{tm}, v{yy}, v{yy+1}", f"v_lshlrev_b32 v{yy}, 16, v{tm}", f"v_and_b32 v{yy+1}, s12, v{tm}",
                               f"v_fma_f32 v{ka}, v{ka}, v{GF+2*m}, v{yy}", f"v_fma_f32 v{ka+1}, v{ka+1}, v{GF+2*m+1}, v{yy+1}"])
                zip_chains(A, ch)
        if gi == PFG: pfstore()
        ST2()
        A("s_cmp_eq_u32 s90, 1")
        A("s_cbranch_scc1 c_havercv")
        A(PFL)
        A("s_waitcnt vmcnt(0)")
        spin_all(A, "c_pf", 19, PFL)
        recv()
        A("c_havercv:")
        ST2()
        for nt in range(2):
            for r in range(16):
                a = KEEP + nt*16 + r
                if PB:
                    i = (nt*16 + r) // 8
                    if r % 8 == 0: A(f"s_waitcnt vmcnt({3 - i + nt*16 + r})")
                    w = RV + nt*8 + (r >> 1); t = T0 + (r & 3)
                    A(f"v_and_b32 v{t}, s12, v{w}" if r & 1 else f"v_lshlrev_b32 v{t}, 16, v{w}")
                    A(f"v_fma_f32 v{a}, v{t}, v{GF+r}, v{a}")
                else:
                    i = (nt*16 + r) // 4
                    if r % 4 == 0: A(f"s_waitcnt vmcnt({7 - i + nt*16 + r})")
                    A(f"v_fma_f32 v{a}, v{RV+nt*16+r}, v{GF+r}, v{a}")
                A(f"buffer_store_dword v{a}, v{26 if r < 8 else 27}, s[76:79], s{80+(r&7)} offen offset:{nt*128}{OS}")
        ST2()
    if "leak" in OPT:
        i = int(OPT["leak"])
        A("s_cmp_lg_u32 s2, 8")
        A("s_cbranch_scc1 c_noleak")
        A("s_cmp_lg_u32 s3, 0")
        A("s_cbranch_scc1 c_noleak")
        A("v_readlane_b32 s8, v63, 0")
        A(f"v_readlane_b32 s9, v{63 if i < 100 else 62}, {i % 100}")
        A("s_sub_u32 s9, s9, s8")
        A("s_memrealtime s[10:11]")
        A("s_waitcnt lgkmcnt(0)")
        A("s_add_u32 s9, s9, s10")
        A("c_leak:")
        A("s_memrealtime s[10:11]")
        A("s_waitcnt lgkmcnt(0)")
        A("s_sub_u32 s12, s9, s10")
        A("s_cmp_gt_i32 s12, 0")
        A("s_cbranch_scc1 c_leak")
        A("c_noleak:")
    if "leak2" in OPT:
        X, i = str(OPT["leak2"]).split(":"); i = int(i)
        if X != "all":
            A(f"s_cmp_lg_u32 s2, {int(X)}")
            A("s_cbranch_scc1 c_noleak2")
        A("s_cmp_lg_u32 s3, 0")
        A("s_cbranch_scc1 c_noleak2")
        A(f"v_readlane_b32 s9, v{63 if i < 100 else 62}, {i % 100}")
        A("s_add_u32 s9, s9, 4000")
        A("c_leak2:")
        A("s_memrealtime s[10:11]")
        A("s_waitcnt lgkmcnt(0)")
        A("s_sub_u32 s12, s9, s10")
        A("s_cmp_gt_i32 s12, 0")
        A("s_cbranch_scc1 c_leak2")
        A("c_noleak2:")
    ST.flush()
    ST2.flush()
    A("s_endpgm")
    if SNT:
        A("c_pfs:")
        A(f"s_mov_b32 s89, {SPIN}")
        A("c_pfs_l:")
        A("s_waitcnt vmcnt(0)")
        A("buffer_load_dword v14, v29, s[68:71], 0 offen sc1")
        A("s_waitcnt vmcnt(0)")
        A("v_cmp_ne_u32 vcc, 1, v14")
        A("s_cmp_eq_u64 vcc, 0")
        A("s_cbranch_scc1 c_pfr")
        A("s_sub_u32 s89, s89, 1")
        A("s_cbranch_scc1 c_pfr")
        A("s_branch c_pfs_l")
    for name, m in slowp:
        A(f"{name}_s:")
        A(f"s_mov_b32 s89, {SPIN}")
        A(f"{name}_l:")
        A("s_waitcnt vmcnt(0)")
        A(HFL)
        A("s_waitcnt vmcnt(0)")
        A("v_cmp_eq_u32 s[90:91], 1, v19")
        A(f"s_and_b32 s88, s90, {m:#x}")
        A(f"s_cmp_eq_u32 s88, {m:#x}")
        A(f"s_cbranch_scc1 {name}")
        A("s_sub_u32 s89, s89, 1")
        A(f"s_cbranch_scc1 {name}")
        A(f"s_branch {name}_l")

def helper(A):
    V = VQ(A)
    VA, VB = 8, 12
    ST = Stamper(A, 0, 58)
    STH = Stamper(A, 1, 59)
    ST()
    if "hprio1" in OPT: A(f"s_setprio {OPT['hprio1']}")
    A("s_sub_u32 s3, s3, 4")
    A("s_lshr_b32 s6, s3, 1")
    A("s_and_b32 s7, s3, 1")
    A("v_lshrrev_b32 v3, 5, v1")
    A("v_lshlrev_b32 v3, 5, v3")
    A("v_bfe_u32 v4, v1, 3, 1")
    A("v_lshl_add_u32 v3, v4, 4, v3")
    A("v_bfe_u32 v4, v1, 4, 1")
    A("v_add_u32 v3, v3, v4")
    A("s_lshl_b32 s8, s4, 7")
    A("s_lshl_b32 s9, s6, 6")
    A("s_add_u32 s8, s8, s9")
    A("s_lshl_b32 s9, s7, 3")
    A("s_add_u32 s8, s8, s9")
    A("v_add_u32 v3, s8, v3")
    A("v_lshlrev_b32 v3, 11, v3")
    A("v_and_b32 v4, 7, v1")
    A("v_lshrrev_b32 v5, 4, v1")
    A("v_xor_b32 v4, v4, v5")
    A("v_lshlrev_b32 v4, 4, v4")
    A(f"v_add_u32 v{VA}, v3, v4")
    A("s_lshl_b32 s10, s3, 12")
    A("s_lshr_b32 s90, s55, 2")
    A("s_lshl_b32 s90, s90, 1")
    A("s_and_b32 s91, s55, 3")
    A("s_lshl_b32 s91, s91, 2")
    A("s_add_u32 s90, s90, s91")
    A("s_and_b32 s11, s90, 15")
    A("s_lshl_b32 s11, s11, 7")
    A("s_mov_b32 m0, s10")
    A(f"s_mov_b32 s58, {4<<20:#x}")
    A("s_mov_b32 s59, 0x20000")
    if "fine0" in OPT: STH()
    A("s_waitcnt lgkmcnt(0)")
    if "fine0" in OPT: STH()
    A(f"s_mov_b32 s56, s{P['x']}")
    A(f"s_mov_b32 s57, s{P['x']+1}")
    V.issue(f"buffer_load_dwordx4 v{VA}, s[56:59], s11 offen lds")
    A("v_xor_b32 v5, 64, v4")
    A(f"v_add_u32 v{VA+1}, v3, v5")
    A(f"v_add_u32 v{VA+1}, {4096-1024}, v{VA+1}")
    V.issue(f"buffer_load_dwordx4 v{VA+1}, s[56:59], s11 offen offset:1024 lds")
    A(f"v_add_u32 v{VA+2}, {2*(4096-1024)}, v{VA}")
    V.issue(f"buffer_load_dwordx4 v{VA+2}, s[56:59], s11 offen offset:2048 lds")
    A(f"v_add_u32 v{VA+3}, {2*(4096-1024)}, v{VA+1}")
    V.issue(f"buffer_load_dwordx4 v{VA+3}, s[56:59], s11 offen offset:3072 lds")
    A("s_lshl_b32 s8, s5, 6")
    A("s_lshl_b32 s9, s7, 5")
    A("s_add_u32 s8, s8, s9")
    A("v_lshrrev_b32 v6, 3, v1")
    A("v_add_u32 v7, s8, v6")
    A("v_lshlrev_b32 v7, 11, v7")
    A(f"v_add_u32 v{VB}, v7, v4")
    A("s_cmp_ge_u32 s3, 2")
    A(f"s_cselect_b32 s60, s{P['Bim']}, s{P['Bre']}")
    A(f"s_cselect_b32 s61, s{P['Bim']+1}, s{P['Bre']+1}")
    A(f"s_mov_b32 s62, {2<<20:#x}")
    A("s_mov_b32 s63, 0x20000")
    A("s_add_u32 m0, s10, 16384")
    A(f"v_add_u32 v{VB+1}, v7, v5")
    V.issue(f"buffer_load_dwordx4 v{VB}, s[60:63], s11 offen lds")
    A(f"v_add_u32 v{VB+1}, {16384-1024}, v{VB+1}")
    V.issue(f"buffer_load_dwordx4 v{VB+1}, s[60:63], s11 offen offset:1024 lds")
    A(f"v_add_u32 v{VB+2}, {2*(16384-1024)}, v{VB}")
    V.issue(f"buffer_load_dwordx4 v{VB+2}, s[60:63], s11 offen offset:2048 lds")
    A(f"v_add_u32 v{VB+3}, {2*(16384-1024)}, v{VB+1}")
    V.issue(f"buffer_load_dwordx4 v{VB+3}, s[60:63], s11 offen offset:3072 lds", ("S", 0))
    def issue(st, fill=0):
        slot = st % 3
        A(f"s_add_u32 s11, s90, {st}")
        A("s_and_b32 s11, s11, 15")
        A("s_lshl_b32 s11, s11, 7")
        A(f"s_add_u32 m0, s10, {slot*32768:#x}")
        for n in range(4):
            V.issue(f"buffer_load_dwordx4 v{VA+n}, s[56:59], s11 offen offset:{n*1024} lds")
            if fill: do_work(fill)
        A(f"s_add_u32 m0, s10, {slot*32768+16384:#x}")
        for n in range(4):
            V.issue(f"buffer_load_dwordx4 v{VB+n}, s[60:63], s11 offen offset:{n*1024} lds", ("S", st))
            if fill: do_work(fill)
    if "fine0" in OPT: STH()
    VC = 28
    A("s_and_b32 s8, s5, 7")
    A("s_lshl_b32 s8, s8, 6")
    A("s_lshl_b32 s9, s3, 4")
    A("s_add_u32 s8, s8, s9")
    A("v_add_u32 v7, s8, v6")
    A("v_lshlrev_b32 v7, 11, v7")
    A(f"v_add_u32 v{VC}, v7, v4")
    A(f"v_add_u32 v{VC+1}, v7, v5")
    A(f"v_add_u32 v{VC+1}, {16384-1024}, v{VC+1}")
    A("s_and_b32 s12, s55, 1")
    A("s_lshl_b32 s13, s54, 1")
    A("s_add_u32 s12, s12, s13")
    A("s_lshr_b32 s13, s55, 1")
    A("s_lshl_b32 s8, s2, 7")
    A(f"s_add_u32 s8, s8, {KF_OFF:#x}")
    A("v_mov_b32 v30, s8")
    A("s_lshl_b32 s88, s54, 5")
    A("s_add_u32 s88, s88, s55")
    A("s_lshl_b32 s8, s88, 7")
    A(f"s_add_u32 s8, s8, {YF_OFF:#x}")
    A("v_mov_b32 v31, s8")
    A("s_lshl_b32 s88, s88, 2")
    A("s_add_u32 s88, s88, s3")
    A("v_mov_b32 v2, 0")
    srd(A, 92, "ws", FLG_SZ, WS_FLG)
    A("s_lshl_b32 s8, s88, 12")
    A(f"s_load_dword s100, {sp('ssmk')}, s8")
    A("s_lshr_b32 s8, s88, 1")
    A("s_lshl_b32 s8, s8, 2")
    A(f"s_load_dword s101, {sp('ssmD')}, s8")
    V.issue("buffer_store_dword v2, v30, s[92:95], 0 offen sc1")
    V.issue("buffer_store_dword v2, v31, s[92:95], 0 offen sc1", "clr")
    if opt("pl", 1) >= 0: issue(1)
    if "fine0" in OPT: STH()
    KR, VR_, SK = 32, 208, 68
    XG, GW = 72, 88
    A("s_lshl_b32 s13, s13, 7")
    A("s_lshl_b32 s14, s3, 5")
    A("s_add_u32 s13, s13, s14")
    A("v_and_b32 v17, 31, v1")
    A("s_lshl_b32 s14, s12, 5")
    A("v_add_u32 v17, s14, v17")
    A("v_lshlrev_b32 v22, 4, v17")
    A("v_and_b32 v23, 31, v1")
    A("v_mul_u32_u24 v23, 544, v23")
    A("v_lshrrev_b32 v24, 5, v1")
    A("v_lshlrev_b32 v24, 5, v24")
    A("v_sub_u32 v23, v23, v24")
    A("s_lshl_b32 s8, s3, 6")
    A(f"s_sub_u32 s8, {UREG+224}, s8")
    A("v_add_u32 v23, s8, v23")
    A("v_lshrrev_b32 v24, 4, v1")
    A("s_lshl_b32 s8, s3, 4")
    A("v_add_u32 v24, s8, v24")
    A("v_and_b32 v2, 15, v1")
    A("v_lshlrev_b32 v2, 4, v2")
    A("s_lshl_b32 s8, s12, 6")
    A("v_add_u32 v27, s8, v24")
    A("v_lshl_add_u32 v27, v27, 12, v2")
    A("s_lshr_b32 s8, s55, 1")
    A("s_lshl_b32 s8, s8, 8")
    A("s_sub_u32 s8, 3840, s8")
    A("v_add_u32 v27, s8, v27")
    A("v_mul_u32_u24 v24, 272, v24")
    A("v_add_u32 v24, v24, v2")
    A(f"v_add_u32 v24, {UREG:#x}, v24")
    A("s_lshl_b32 s14, s4, 7")
    A("s_lshl_b32 s8, s5, 3")
    A("s_add_u32 s14, s14, s8")
    A("s_lshl_b32 s8, s3, 1")
    A("s_add_u32 s14, s14, s8")
    A("s_lshl_b32 s8, s14, 11")
    A("v_lshlrev_b32 v25, 4, v1")
    A("v_add_u32 v26, s8, v25")
    A("v_add_u32 v3, 0x8000, v27")
    srd(A, 64, "k", 4 << 20)
    srd(A, 68, "v", 4 << 20)
    srd(A, 72, "ws", 4 << 20, WS_KVT)
    srd(A, 76, "ws", 8192, WS_G)
    for i in range(8):
        A(f"s_mov_b32 s{80+i}, {i*4096}")
    NTP = " nt" if "ntp" in OPT else ""
    A("v_lshrrev_b32 v19, 3, v1")
    A("v_add_u32 v19, s13, v19")
    A("v_lshlrev_b32 v19, 11, v19")
    A("v_and_b32 v20, 7, v1")
    A("v_lshl_add_u32 v19, v20, 4, v19")
    A("s_lshl_b32 s8, s12, 7")
    A("v_add_u32 v19, s8, v19")
    A("v_subrev_u32 v20, 16384, v19")
    A("v_lshrrev_b32 v21, 5, v1")
    A("v_lshlrev_b32 v21, 11, v21")
    A("v_and_b32 v18, 31, v1")
    A("v_lshl_add_u32 v21, v18, 2, v21")
    A("s_lshl_b32 s8, s3, 12")
    A(f"s_add_u32 s91, s8, {KREG}")
    A("v_add_u32 v21, s91, v21")
    def kvdma():
        A("s_add_u32 m0, s91, 16384")
        V.issue(f"buffer_load_dwordx4 v20, s[64:67], 0 offen{NTP} lds")
        for i in range(4):
            A(f"s_add_u32 m0, s91, {16384 + 1024*(i+1)}")
            A(f"s_mov_b32 s99, {i*16384}")
            V.issue(f"buffer_load_dwordx4 v19, s[64:67], s99 offen{NTP} lds")
        V.issue(f"global_load_dwordx4 {vr(SK,4)}, v22, {sp('shk')}", "k")
        for i in range(4):
            A(f"s_add_u32 m0, s91, {1024*i}")
            A(f"s_mov_b32 s99, {i*16384}")
            V.issue(f"buffer_load_dwordx4 v19, s[68:71], s99 offen{NTP} lds", "v")
    if opt("pl", 1) < 0:
        kvdma(); issue(1)
    gl = []
    for r in range(2):
        for hh in range(2): gl.append((f"buffer_load_dwordx4 {vr(XG+r*8+hh*4,4)}, v26, s[56:59], 0 offen offset:{r*2048+hh*1024}", None))
    for hh in range(2): gl.append((f"global_load_dwordx4 {vr(GW+hh*4,4)}, v25, {sp('gw')} offset:{hh*1024}", "gate"))
    KF = 96; SP = 136; OUT = 144
    work = []
    def W(x):
        if callable(x): work.append(x)
        else: work.extend(x.split("\n"))
    def rndW(pair, tmp):
        W(f"v_cvt_pk_bf16_f32 v{tmp}, v{pair}, v{pair+1}")
        W(f"v_lshlrev_b32 v{pair}, 16, v{tmp}")
        W(f"v_and_b32 v{pair+1}, s12, v{tmp}")
    W("s_mov_b32 s12, 0xffff0000")
    gate_begin = len(work)
    W(lambda: V.wait("gate"))
    for i in range(8):
        W(f"v_lshlrev_b32 v{96+2*i}, 16, v{GW+i}")
        W(f"v_and_b32 v{97+2*i}, s12, v{GW+i}")
    for r in range(2):
        acc = 112 + r
        W(f"v_mov_b32 v{acc}, 0")
        for i in range(8):
            W(f"v_lshlrev_b32 v116, 16, v{XG+r*8+i}")
            W(f"v_and_b32 v117, s12, v{XG+r*8+i}")
            W(pk("mul", 116, 116, 96+2*i))
            rndW(116, 118)
            W(f"v_add_f32 v{acc}, v{acc}, v116")
            W(f"v_add_f32 v{acc}, v{acc}, v117")
    for r in range(2):
        acc = 112 + r
        for sh in (1, 2, 4, 8):
            W(f"v_add_f32_dpp v{acc}, v{acc}, v{acc} row_shr:{sh} row_mask:0xf bank_mask:0xf bound_ctrl:0")
        W(f"v_add_f32_dpp v{acc}, v{acc}, v{acc} row_bcast:15 row_mask:0xa bank_mask:0xf")
        W(f"v_add_f32_dpp v{acc}, v{acc}, v{acc} row_bcast:31 row_mask:0xc bank_mask:0xf")
    for t in ["v_readlane_b32 s8, v112, 63", "v_readlane_b32 s9, v113, 63", "v_mov_b32 v116, s8", "v_mov_b32 v117, s9",
              "v_cmp_eq_u32 vcc, 1, v1", "v_cndmask_b32 v116, v116, v117, vcc", "v_cvt_pk_bf16_f32 v116, v116, v116",
              "v_lshlrev_b32 v116, 16, v116", "v_mul_f32 v116, 0xbfb8aa3b, v116", "v_exp_f32 v116, v116", "v_add_f32 v116, 1.0, v116",
              "v_rcp_f32 v116, v116", "v_cvt_pk_bf16_f32 v117, v116, v116", "v_lshlrev_b32 v116, 16, v117", "v_sub_f32 v118, 1.0, v116",
              "v_cvt_pk_bf16_f32 v116, v116, v118", "s_lshl_b32 s14, s14, 2", "v_lshl_add_u32 v117, v1, 2, s14"]:
        W(t)
    def gstore():
        A("s_mov_b64 exec, 3")
        V.issue("buffer_store_dword v116, v117, s[76:79], 0 offen sc1", "g")
        A("s_mov_b64 exec, -1")
    W(gstore)
    gate_end = len(work)
    W("KVSTART")
    W(lambda: V.wait("k"))
    for i in range(19):
        W(f"ds_read_b32 v{KR+i}, v21 offset:{16384 + (5+i)*128}")
        if i == 9: W("s_waitcnt lgkmcnt(0)")
    W("s_waitcnt lgkmcnt(0)")
    for i in range(19):
        W(f"v_lshlrev_b32 v{KF+2*i}, 16, v{KR+i}")
        W(f"v_and_b32 v{KF+2*i+1}, s12, v{KR+i}")
    for jx in range(4):
        for cc in range(2):
            src = SK + cc*2 + (jx >> 1)
            W(f"v_and_b32 v{SP+2*jx+cc}, s12, v{src}" if jx & 1 else f"v_lshlrev_b32 v{SP+2*jx+cc}, 16, v{src}")
    W(lambda: V.wait("v"))
    for i in range(16):
        W(f"ds_read_b32 v{VR_+i}, v21 offset:{i*128}")
        if i == 7: W("s_waitcnt lgkmcnt(0)")
    W("s_waitcnt lgkmcnt(0)")
    for t in range(16):
        vv = 176 + (t & 1)*2
        W(f"v_lshlrev_b32 v{vv}, 16, v{VR_+t}")
        W(f"v_and_b32 v{vv+1}, s12, v{VR_+t}")
        if opt("pk", 0) & 2:
            o = OUT + 2*t
            W(f"v_pk_mul_f32 {vr(o,2)}, {vr(KF+2*t,2)}, {vr(SP+6,2)}")
            for jx in (2, 1, 0): W(f"v_pk_fma_f32 {vr(o,2)}, {vr(KF+2*(t+3-jx),2)}, {vr(SP+2*jx,2)}, {vr(o,2)}")
            W(f"v_pk_mul_f32 {vr(o,2)}, {vr(o,2)}, {vr(vv,2)}")
            continue
        for cc in range(2): W(f"v_mul_f32 v{OUT+2*t+cc}, v{KF+2*t+cc}, v{SP+6+cc}")
        for jx in (2, 1, 0):
            for cc in range(2): W(f"v_fmac_f32 v{OUT+2*t+cc}, v{KF+2*(t+3-jx)+cc}, v{SP+2*jx+cc}")
        for cc in range(2): W(f"v_mul_f32 v{OUT+2*t+cc}, v{OUT+2*t+cc}, v{vv+cc}")
    for cc in range(2):
        for hf in range(2):
            d = 192 + (cc*2+hf)*4
            for m in range(4):
                mm = hf*4 + m
                W(f"v_cvt_pk_bf16_f32 v{d+m}, v{OUT+2*(15-2*mm)+cc}, v{OUT+2*(14-2*mm)+cc}")
            W(f"ds_write_b128 v23, {vr(d,4)} offset:{cc*272+hf*16}")
    W("s_waitcnt lgkmcnt(0)")
    W("BARRIER")
    for i in range(4): W(f"ds_read_b128 {vr(192+4*i,4)}, v24 offset:{i*4*272}")
    KVL = "nokvl" not in OPT
    def kvstores():
        def block(pol):
            for i in range(4):
                A(f"s_waitcnt lgkmcnt({3-i})")
                V.issue(f"buffer_store_dwordx4 {vr(192+4*i,4)}, v{27 if i < 2 else 3}, s[72:75], s{80+4*(i&1)} offen{pol}", "kvt")
        if not KVL:
            block(" sc1"); return
        V.wait("cls")
        local_check(A, 247, 246, 96, 98)
        A("s_cbranch_scc0 h_kvl")
        n0 = V.n
        block(" sc1")
        A("s_branch h_kve")
        A("h_kvl:")
        V.n = n0
        block("")
        A("h_kve:")
    W(kvstores)
    kv_end = len(work)
    if "kvfirst" in OPT:
        gate_part = work[gate_begin:gate_end]
        del work[gate_begin:gate_end]
        work.extend(gate_part)
    wpos = [0]
    blocked = [False]
    cur = [0]
    PL = opt("pl", 1)
    KVW = PL + opt("kvd", 3)
    def do_work(n):
        while n > 0 and wpos[0] < len(work) and not blocked[0]:
            w = work[wpos[0]]
            wpos[0] += 1
            if w == "BARRIER":
                blocked[0] = True; return
            if w == "KVSTART":
                if cur[0] < KVW:
                    wpos[0] -= 1; return
                continue
            if callable(w): w()
            elif "ablkv" in OPT and w.startswith("v_") and wpos[0] > gate_end and wpos[0] < kv_end: pass
            else: A(w)
            n -= 1
    PREP0 = opt("prep0", 1)
    UL = 40
    ACC = 64; BF = 96; AFR = 160; KD = 224
    def setup_conv(A):
        A("s_lshl_b32 s12, s88, 12")
        srd(A, 64, "ssmk", 4096, off_sreg=12)
        srd(A, 68, "ws", 4096, WS_KVT, off_sreg=12)
        A("s_mov_b32 s80, s100")
        A("s_mov_b32 s81, s101")
        A("v_and_b32 v37, 15, v1")
        A("s_lshr_b32 s8, s88, 6")
        A("s_and_b32 s8, s8, 1")
        A("s_lshl_b32 s8, s8, 3")
        A("s_add_u32 s8, s8, s54")
        A("v_lshl_add_u32 v32, v37, 4, s8")
        A("s_lshr_b32 s8, s4, 2")
        A("s_lshl_b32 s8, s8, 1")
        A("s_and_b32 s9, s4, 3")
        A("s_lshl_b32 s9, s9, 3")
        A("s_add_u32 s8, s8, s9")
        A("v_lshrrev_b32 v38, 3, v37")
        A("v_and_b32 v39, 7, v37")
        A("v_lshl_add_u32 v38, v39, 5, v38")
        A("v_add_u32 v38, s8, v38")
        A("v_and_b32 v39, 16, v1")
        A("v_cmp_ne_u32 vcc, 0, v39")
        A("v_cndmask_b32 v32, v32, v38, vcc")
        A("v_lshlrev_b32 v32, 7, v32")
        A(f"v_add_u32 v32, {KF_OFF:#x}, v32")
        A("v_lshlrev_b32 v33, 2, v1")
        srd(A, 76, "dbg", 256)
        A(f"s_mul_i32 s13, s3, 8320")
        A(f"s_add_u32 s13, s13, {KREG}")
        A(f"s_mul_i32 s82, s3, 4608")
        A(f"s_add_u32 s82, s82, {UREG}")
        A("v_add_u32 v36, 2, v25")
        A("v_and_b32 v38, 7, v1")
        A("v_lshlrev_b32 v38, 2, v38")
        A("v_bfe_u32 v39, v1, 3, 1")
        A("v_mul_u32_u24 v39, 4160, v39")
        A("v_add3_u32 v38, v38, v39, s13")
        A("s_lshl_b32 s80, s80, 16")
        A("v_mov_b32 v56, s80")
        A("v_cmp_eq_u32 vcc, 15, v37")
        A("v_cndmask_b32 v56, 0, v56, vcc")
        A("ds_write_b32 v38, v56")
        A("s_and_b32 s14, s88, 1")
        A("s_lshl_b32 s14, s14, 4")
        A("s_lshr_b32 s81, s81, s14")
        A("s_lshl_b32 s81, s81, 16")
        A(f"v_mov_b32 v60, {LFLAG:#x}")
        A("v_mov_b32 v61, 1")
    def setup_late(A):
        A("v_lshrrev_b32 v5, 4, v1")
        A("v_and_b32 v37, 15, v1")
        A("v_lshl_add_u32 v38, v5, 3, v37")
        A("v_lshlrev_b32 v38, 1, v38")
        A("v_and_b32 v39, 1, v1")
        A("v_mul_u32_u24 v39, 4158, v39")
        A("v_sub_u32 v38, v38, v39")
        A("s_add_u32 s14, s13, 4160")
        A("v_add_u32 v16, s14, v38")
        for i in range(1, 4): A(f"v_add_u32 v{16+i}, {1024*i}, v16")
        A("v_lshlrev_b32 v38, 5, v37")
        A("v_lshlrev_b32 v39, 4, v5")
        A("v_sub_u32 v20, v39, v38")
        A("s_add_u32 s14, s82, 480")
        A("v_add_u32 v20, s14, v20")
        A("v_lshl_add_u32 v39, v5, 3, v38")
        A("s_add_u32 s14, s82, 504")
        A("v_sub_u32 v21, s14, v39")
        A("v_and_b32 v39, 1, v5")
        A("v_lshl_add_u32 v22, v39, 9, v38")
        A("v_lshrrev_b32 v39, 1, v5")
        A("v_lshl_add_u32 v22, v39, 4, v22")
        A("v_add_u32 v23, s82, v25")
    setup_conv(W)
    print("prep work items", len(work))
    def cissue(st):
        tile_of(A, st >> 1, 11)
        A("s_lshl_b32 s11, s11, 7")
        sr_ = "s[56:59]" if st % 2 == 0 else "s[60:63]"
        A("s_add_u32 s99, s11, s91")
        A(f"s_add_u32 m0, s10, {(st % NS2)*16384:#x}")
        for n in range(2):
            V.issue(f"buffer_load_dwordx4 v{VC+n}, {sr_}, s99 offen offset:{n*1024} lds")
        A("s_add_u32 s11, s11, s90")
        A(f"s_add_u32 m0, s10, {(st % NS2)*16384 + 8192:#x}")
        for n in range(2):
            V.issue(f"buffer_load_dwordx4 v{VC+n}, {sr_}, s11 offen offset:{n*1024} lds", ("C", st))
    def uloads():
        for i in range(4): A(f"buffer_load_dwordx4 {vr(UL+4*i,4)}, v25, s[68:71], 0 offen offset:{i*1024} sc1")
    def ctouch():
        A("s_cmp_ge_u32 s3, 2")
        A(f"s_cselect_b32 s96, s{P['Cim']}, s{P['Cre']}")
        A(f"s_cselect_b32 s97, s{P['Cim']+1}, s{P['Cre']+1}")
        A("s_lshl_b32 s98, s2, 13")
        A("s_and_b32 s99, s3, 1")
        A("s_lshl_b32 s99, s99, 12")
        A("s_add_u32 s98, s98, s99")
        A("v_and_b32 v240, 31, v1")
        if "km" in OPT:
            A("s_add_u32 s96, s96, s98")
            A("s_addc_u32 s97, s97, 0")
            A("s_lshl_b32 s98, s88, 12")
            A(f"s_add_u32 s98, s{P['ssmk']}, s98")
            A(f"s_addc_u32 s99, s{P['ssmk']+1}, 0")
            A("v_mov_b32 v242, s96")
            A("v_mov_b32 v243, s97")
            A("v_mov_b32 v244, s98")
            A("v_mov_b32 v245, s99")
            A("v_cmp_lt_u32 s[96:97], 31, v1")
            A("v_cndmask_b32 v242, v242, v244, s[96:97]")
            A("v_cndmask_b32 v243, v243, v245, s[96:97]")
            A("v_lshlrev_b32 v240, 7, v240")
            A("v_add_co_u32 v242, s[96:97], v242, v240")
            A("v_addc_co_u32 v243, s[96:97], 0, v243, s[96:97]")
            V.issue("global_load_dword v241, v[242:243], off")
        else:
            A("v_lshl_add_u32 v240, v240, 7, s98")
            V.issue("global_load_dword v241, v240, s[96:97]")
    FILL = opt("fill", 10)
    kst = [None]
    KW = opt("kw", 2)
    CHK = opt("chk", 13)
    KFS = opt("kfs", 12)
    KDS = opt("kds", 11)
    UWS = opt("uws", 14)
    WEND = min(KFS, KDS, 12)
    CM = opt("cm", 6)
    assert CHK < UWS <= 15 and opt("lates", 14) <= UWS
    nU = [0]; cdone = [0]
    NC0 = opt("nc0", 2)
    A(f"v_mov_b32 v6, {LFLAG:#x}")
    A("v_mov_b32 v7, 0")
    for o in (4, 8, 12, 16, 20) + ((24, 28, 32, 36) if "pz" in OPT else ()): A(f"ds_write_b32 v6, v7 offset:{o}")
    ST()
    A("s_waitcnt lgkmcnt(0)")
    V.wait("clr")
    ST()
    if "fine0" in OPT: STH()
    A("s_barrier")
    issue(2)
    if "fine0" in OPT: STH()
    for t, tag in gl: V.issue(t, tag)
    for s in range(N1):
        V.wait(("S", min(s+1, N1-1)))
        if kst[0] is not None and s == min(kst[0] + KW, 15): V.wait("kvt"); V.wait("g")
        if "fine1" in OPT: STH()
        A("s_barrier")
        if kst[0] is not None and s == min(kst[0] + KW, 15):
            A("s_cmp_lg_u32 s3, 0")
            A("s_cbranch_scc1 h_kflag")
            A("v_mov_b32 v6, 1")
            A("buffer_store_dword v6, v30, s[92:95], 0 offen sc1")
            A("h_kflag:")
            print("k flag after barrier", s+1)
        blocked[0] = False
        cur[0] = s
        FM = opt("fmode", 0)
        fl = opt("fill0", FILL) if s < opt("fill0n", 0) else FILL
        if s+3 < N1 and FM == 0: issue(s+3, fl if s >= PREP0 else 0)
        elif s+3 < N1 and FM == 1:
            issue(s+3)
            if s >= PREP0: do_work(8*FILL)
        if s == PL - 100: pass
        if s == PL and PL >= 0: kvdma()
        if s == CM: ctouch()
        if KVL and s == opt("cls", 6):
            A("v_lshlrev_b32 v246, 2, v1")
            V.issue(f"global_load_dword v247, v246, {sp('dbg')} sc1", "cls")
        if kst[0] is None and "kvt" in V.tags and "g" in V.tags: kst[0] = s
        if s == WEND:
            do_work(10000)
            assert wpos[0] == len(work), (wpos[0], len(work))
        if s == KFS:
            V.issue("buffer_load_dword v34, v33, s[76:79], 0 offen sc1")
            V.issue("buffer_load_dword v35, v32, s[92:95], 0 offen sc1", "kf")
            ST()
        if s == KDS and KDS < CHK:
            V.wait("g")
            A("s_add_u32 m0, s13, 32")
            for i in range(4): V.issue(f"buffer_load_dwordx4 v25, s[64:67], 0 offen offset:{i*1024}{NTP} lds")
            A("s_add_u32 m0, s13, 4192")
            for i in range(4): V.issue(f"buffer_load_dwordx4 v36, s[64:67], 0 offen offset:{i*1024}{NTP} lds", "K")
        if s == 13:
            srd(A, 56, "Cre", 2 << 20)
            srd(A, 60, "Cim", 2 << 20)
            A("s_lshl_b32 s10, s3, 11")
            A(f"s_add_u32 s10, s10, {CRING:#x}")
            A("s_lshr_b32 s90, s5, 3")
            A("s_xor_b32 s91, s90, 1")
            A("s_lshl_b32 s91, s91, 20")
            A("s_lshl_b32 s11, s90, 10")
            A("s_add_u32 s91, s91, s11")
            A("s_mul_i32 s90, s90, 0x100400")
            A("v_mov_b32 v56, 0")
            A("v_mov_b32 v57, 0")
            A("v_lshlrev_b32 v38, 3, v1")
            A("v_add_u32 v38, s82, v38")
            A("ds_write_b64 v38, v[56:57] offset:4096")
            ST()
        if s == CHK:
            V.wait("kf")
            A("s_mov_b32 s83, 0")
            A("v_and_b32 v34, 15, v34")
            A("v_cmp_ne_u32 vcc, 15, v34")
            A("v_cmp_ne_u32 s[84:85], 1, v35")
            A("s_or_b64 vcc, vcc, s[84:85]")
            A("s_cbranch_scc1 h_nou")
            A("s_mov_b32 s83, 1")
            uloads()
            A("h_nou:")
            nU[0] = V.n
        if s == KDS and KDS >= CHK:
            V.wait("g")
            A("s_add_u32 m0, s13, 32")
            for i in range(4): V.issue(f"buffer_load_dwordx4 v25, s[64:67], 0 offen offset:{i*1024}{NTP} lds")
            A("s_add_u32 m0, s13, 4192")
            for i in range(4): V.issue(f"buffer_load_dwordx4 v36, s[64:67], 0 offen offset:{i*1024}{NTP} lds", "K")
        if s == opt("lates", 14): setup_late(A)
        if s == 15:
            for z in range(NC0): cissue(z)
            cdone[0] = NC0
        if s == UWS:
            A("s_cmp_lg_u32 s83, 1")
            A("s_cbranch_scc1 h_nouw")
            A(f"s_waitcnt vmcnt({V.n - nU[0]})")
            for i in range(4): A(f"ds_write_b128 v23, {vr(UL+4*i,4)} offset:{1024*i}")
            A("h_nouw:")
    ST()
    if "hprio1" in OPT: A("s_setprio 0")
    A("s_cmp_lg_u32 s83, 0")
    A("s_cbranch_scc1 h_haveu")
    spin_all(A, "h_init", 34, "buffer_load_dword v34, v33, s[76:79], 0 offen sc1", "15", pre="v_and_b32 v34, 15, v34")
    spin_all(A, "h_kf", 35, "buffer_load_dword v35, v32, s[92:95], 0 offen sc1")
    uloads()
    A("s_waitcnt vmcnt(0)")
    for i in range(4): A(f"ds_write_b128 v23, {vr(UL+4*i,4)} offset:{1024*i}")
    A("h_haveu:")
    V.done = max(V.done, nU[0])
    V.wait("K")
    if "lowp" in OPT: A("s_setprio 1")
    lds_inc(A, 60, 61, 8)
    for i in range(4): A(f"s_mov_b32 s{84+i}, s{68+i}")
    srd(A, 68, "ws", 4 << 20, WS_KVT)
    A("s_waitcnt lgkmcnt(0)")
    ST()
    L = LQ(A)
    ops = []
    def reads(r):
        R = []
        s = r & 1
        for i in range(8):
            R.append((f"ds_read_b128 {vr(BF+s*32+i*4,4)}, v20 offset:{3584-512*i+64*r}", ("B", r, i)))
            o = 128*(i & 1) + 16*r
            d = AFR + s*32 + i*4
            R.append((f"ds_read2_b32 {vr(d,2)}, v{16+(i>>1)} offset0:{o} offset1:{o+1}", None))
            R.append((f"ds_read2_b32 {vr(d+2,2)}, v{16+(i>>1)} offset0:{o+2} offset1:{o+3}", ("A", r, i)))
        return R
    def first_order(R):
        return R[1:3] + [R[3*i] for i in range(8)] + [x for i in range(1, 8) for x in R[3*i+1:3*i+3]]
    KVT = 40
    for n in range(8): ops.append(("rd", f"ds_read_b64 {vr(KVT+2*n,2)}, v21 offset:{3584-512*n}", ("KV", n)))
    for t, tag in first_order(reads(0)): ops.append(("rd", t, tag))
    fill = []
    fill.append(("s_mov_b32 s12, 0xffff0000", None)); fill.append(("v_mov_b32 v26, s81", None))
    for n in range(8):
        k = KD + 4*n
        c = [f"v_and_b32 v{k}, s12, v{KVT+2*n+1}", f"v_lshlrev_b32 v{k+1}, 16, v{KVT+2*n+1}", f"v_and_b32 v{k+2}, s12, v{KVT+2*n}", f"v_lshlrev_b32 v{k+3}, 16, v{KVT+2*n}"]
        c += [f"v_mul_f32 v{k+i}, v{k+i}, v26" for i in range(4)]
        c += [f"v_cvt_pk_bf16_f32 v56, v{k}, v{k+1}", f"v_cvt_pk_bf16_f32 v57, v{k+2}, v{k+3}",
              f"v_lshlrev_b32 v{k}, 16, v56", f"v_and_b32 v{k+1}, s12, v56", f"v_lshlrev_b32 v{k+2}, 16, v57", f"v_and_b32 v{k+3}, s12, v57"]
        for i, t in enumerate(c): fill.append((t, ("KV", n) if i == 0 else None))
    YD = 40
    def post(n):
        y = ACC + 4*n; k = KD + 4*n
        d = YD + (n >> 1)*4 + (n & 1)*2
        c = [f"v_cvt_pk_bf16_f32 v56, v{y}, v{y+1}", f"v_cvt_pk_bf16_f32 v57, v{y+2}, v{y+3}",
             f"v_lshlrev_b32 v{y}, 16, v56", f"v_and_b32 v{y+1}, s12, v56", f"v_lshlrev_b32 v{y+2}, 16, v57", f"v_and_b32 v{y+3}, s12, v57"]
        c += [f"v_add_f32 v{k+i}, v{k+i}, v{y+i}" for i in range(4)]
        c += [f"v_cvt_pk_bf16_f32 v{d}, v{k}, v{k+1}", f"v_cvt_pk_bf16_f32 v{d+1}, v{k+2}, v{k+3}"]
        if n & 1:
            d = YD + (n >> 1)*4
            c += [f"v_permlane16_swap_b32 v{d}, v{d+2}", f"v_permlane16_swap_b32 v{d+1}, v{d+3}"]
            if "yinl" in OPT: c += [f"YST{n >> 1}"]
        return c
    ystores = [f"buffer_store_dwordx4 {vr(YD+4*k,4)}, v22, s[84:87], 0 offen offset:{k*1024} sc1" for k in range(4)]
    LATEC = opt("latec", 170)
    CFM = opt("cfm", 80)
    FPM = opt("fpm", 2)
    nmf = 0
    postq = []
    for r in range(8):
        s = r & 1
        nxt = first_order(reads(r+1)) if r < 7 else []
        cnt = 0
        for q in range(8):
            for n in range(q, 8):
                c = vr(ACC+4*n, 4)
                ops.append(("mf", f"v_mfma_f32_16x16x32_bf16 {c}, {vr(AFR+s*32+4*q,4)}, {vr(BF+s*32+4*(n-q),4)}, {'0' if (r == 0 and q == 0) else c}",
                            [("A", r, q), ("B", r, n-q)]))
                nmf += 1; cnt += 1
                if nxt and cnt >= 2:
                    t, tag = nxt.pop(0); ops.append(("rd", t, tag))
                elif r < 7:
                    for z in range(FPM):
                        if fill: ops.append(("fill",) + fill.pop(0))
                if "pz" in OPT and opt("pz0", 90) <= nmf <= opt("pz1", 250) and (nmf - opt("pz0", 90)) % opt("pzs", 12) == 0:
                    ops.append(("pzr", nmf))
                if "pz" in OPT and opt("pz0", 90) <= nmf - 6 <= opt("pz1", 250) and (nmf - 6 - opt("pz0", 90)) % opt("pzs", 12) == 0:
                    ops.append(("pzc", nmf - 6))
                if nmf == LATEC: ops.append(("latec",))
                if nmf == CFM: ops.append(("cf",))
                if nmf == opt("cf2m", 240) and FBAR > 1: ops.append(("cf2",))
                if r == 7:
                    if n == q: postq += [(nmf + 3, t) for t in post(n)]
                    for z in range(opt("ppm", 3)):
                        if postq and postq[0][0] <= nmf and q < 7: ops.append(("fill", postq.pop(0)[1], None))
        assert not nxt
    assert not fill and CFM < LATEC
    for _, t in postq: ops.append(("fill", t, None))
    pzslow = []
    if "pz" in OPT:
        A("s_lshl_b32 s8, s3, 2")
        A(f"s_add_u32 s8, s8, {LFLAG:#x}")
        A("v_mov_b32 v62, s8")
    AB = int(OPT.get("ablc", 0))
    for op in ops:
        if AB & 1 and op[0] in ("rd", "mf", "fill"): continue
        if op[0] == "rd": L.issue(op[1], op[2])
        elif op[0] == "mf":
            for t in op[2]: pass
            k = max(op[2], key=lambda t: L.tags[t])
            L.wait(k)
            A(op[1])
        elif op[0] == "fill":
            if op[2] is not None: L.wait(op[2])
            if op[1].startswith("YST"): V.issue(ystores[int(op[1][3:])], "y2")
            else: A(op[1])
        elif op[0] == "pzr": L.issue("ds_read_b32 v63, v62 offset:24", ("Z", op[1]))
        elif op[0] == "pzc":
            L.wait(("Z", op[1]))
            A("v_readfirstlane_b32 s83, v63")
            A("s_cmp_lg_u32 s83, 0")
            A(f"s_cbranch_scc1 h_pz{op[1]}_s")
            A(f"h_pz{op[1]}:")
            pzslow.append(op[1])
        elif op[0] == "latec":
            while cdone[0] < NS2: cissue(cdone[0]); cdone[0] += 1
        elif op[0] == "cf2":
            V.wait(("C", 3))
            lds_inc(A, 60, 61, 20); L.n += 1
        elif op[0] == "cf":
            while cdone[0] < 2: cissue(cdone[0]); cdone[0] += 1
            V.wait(("C", 1))
            lds_inc(A, 60, 61, 16); L.n += 1
    ST()
    if "lowp" in OPT: A("s_setprio 0")
    YST = opt("yst", 0)
    if YST == 0 and "yinl" not in OPT:
        for t in ystores:
            if AB & 2: V.tags["y2"] = V.n
            else: V.issue(t, "y2")
    A("v_lshrrev_b32 v8, 4, v1")
    A("s_lshl_b32 s8, s3, 4")
    A("v_add_u32 v8, s8, v8")
    A("v_and_b32 v11, 15, v1")
    A("s_lshl_b32 s9, s5, 11")
    A(f"s_add_u32 s9, s9, {YF_OFF:#x}")
    A("v_lshl_add_u32 v10, v11, 7, s9")
    A("v_lshlrev_b32 v11, 4, v11")
    A("v_mul_u32_u24 v9, 272, v8")
    A("v_add_u32 v9, v9, v11")
    A("s_lshl_b32 s8, s5, 6")
    A("v_add_u32 v8, s8, v8")
    A("v_lshl_add_u32 v8, v8, 12, v11")
    A("s_lshl_b32 s8, s4, 8")
    A("v_add_u32 v8, s8, v8")
    ST()
    YR = 116
    YFL_LD = "buffer_load_dword v19, v10, s[92:95], 0 offen sc1"
    YFL, GYF, GYL, GYW = opt("yfl", 5), opt("gyf", 8), opt("gyl", 10), opt("gyw", 12)
    for st in range(FBAR, N2-1):
        V.wait(("C", st+1))
        if "fineh" in OPT: STH()
        A("s_barrier")
        if st == FBAR:
            for z in range(NS2, FBAR + NS2): cissue(z)
        elif st + NS2 - 1 < N2: cissue(st + NS2 - 1)
        if "abl" in OPT and st >= 2 and st < 13 and int(OPT["abl"]) & 1:
            continue_ = True
            for tg in ("y2", "xt", "yf", "eps"): V.tags.setdefault(tg, 0)
            continue
        if YST and st == YST:
            for t in ystores: V.issue(t, "y2")
        if st == YFL:
            V.wait("y2")
            A("s_mov_b64 exec, 1")
            A("ds_add_rtn_u32 v62, v60, v61 offset:4")
            A("s_mov_b64 exec, -1")
            A("s_waitcnt lgkmcnt(0)")
            A("v_readfirstlane_b32 s83, v62")
            A("s_cmp_lg_u32 s83, 3")
            A("s_cbranch_scc1 h_noy")
            A("buffer_store_dword v61, v31, s[92:95], 0 offen sc1")
            A("h_noy:")
        if st == GYF: V.issue(YFL_LD, "yf")
        if st == GYL:
            V.wait("yf")
            spin_all(A, "h_yf", 19, YFL_LD)
            for i in range(4):
                A(f"s_mov_b32 s8, {i*16384}")
                V.issue(f"buffer_load_dwordx4 {vr(YR+i*4,4)}, v8, s[68:71], s8 offen sc1", "eps")
        if st == GYW:
            V.wait("eps")
            for i in range(4): A(f"ds_write_b128 v9, {vr(YR+i*4,4)} offset:{i*4*272}")
            A("s_waitcnt lgkmcnt(0)")
    assert YST < YFL < GYF < GYL < GYW <= N2 - 3
    STH.flush()
    ST.flush()
    A("s_endpgm")
    for k in pzslow:
        A(f"h_pz{k}_s:")
        A(f"s_mov_b32 s89, {SPIN*4}")
        A(f"h_pz{k}_l:")
        A("s_sleep 1")
        A("ds_read_b32 v63, v62 offset:24")
        A("s_waitcnt lgkmcnt(0)")
        A("v_readfirstlane_b32 s83, v63")
        A("s_cmp_eq_u32 s83, 0")
        A(f"s_cbranch_scc1 h_pz{k}")
        A("s_sub_u32 s89, s89, 1")
        A(f"s_cbranch_scc1 h_pz{k}")
        A(f"s_branch h_pz{k}_l")

def build():
    s = header_comments()
    s += "; generated by tools/gen9.py (fused single kernel, split-K GEMM2; gen8 h layout)\n"
    s += "; @launch grid=(256,1,1) block=(512,1,1) lds=163840\n"
    s += '.amdgcn_target "amdgcn-amd-amdhsa--gfx950"\n.text\n'
    A = Asm()
    A.raw(f".globl {KN}\n.p2align 8\n.type {KN},@function")
    gen_kernel(A)
    s += A.render()
    s += descriptor(KN, 256, 102)
    import subprocess, tempfile, re
    with tempfile.TemporaryDirectory() as td:
        open(td + "/a.s", "w").write(s.replace("CODE_LAST", "0x12345"))
        subprocess.run(["clang", "-x", "assembler", "-target", "amdgcn-amd-amdhsa", "-mcpu=gfx950", "-c", td + "/a.s", "-o", td + "/a.o"], check=True)
        o = subprocess.run(["llvm-objdump", "-h", td + "/a.o"], capture_output=True, text=True).stdout
    size = int(re.search(r"\.text\s+([0-9a-f]+)", o).group(1), 16)
    if "al8" in OPT:
        pat = {"1": ("v_mfma_f32_32x32",), "2": ("v_mfma",), "3": ("v_mfma", "ds_read_b128", "ds_read_b64_tr", "buffer_load_dwordx4")}[str(OPT["al8"])]
        with tempfile.TemporaryDirectory() as td:
            open(td + "/a.s", "w").write(s.replace("CODE_LAST", "0x12345"))
            subprocess.run(["clang", "-x", "assembler", "-target", "amdgcn-amd-amdhsa", "-mcpu=gfx950", "-c", td + "/a.s", "-o", td + "/a.o"], check=True)
            d = subprocess.run(["llvm-objdump", "-d", td + "/a.o"], capture_output=True, text=True).stdout
        sizes = [4 * len(m.group(1).split()) for m in re.finditer(r"// [0-9A-F]+: ([0-9A-F ]+)$", d, re.M)]
        out = []; addr = 0; k = 0; incode = False; nins = 0
        for ln in s.split("\n"):
            st = ln.strip()
            if st == f"{KN}:": incode = True
            if st.startswith(".section"): incode = False
            if incode and ln.startswith("    ") and st and not st.startswith(";"):
                sz = sizes[k]; k += 1
                if sz == 8 and addr % 8 == 4 and st.startswith(pat):
                    out.append("    s_nop 0"); addr += 4; nins += 1
                addr += sz
            out.append(ln)
        assert k == len(sizes), (k, len(sizes))
        s = "\n".join(out); size = addr
        print("alignment nops", nins)
    if "shift" in OPT:
        s = s.replace(f"{KN}:\n", f"{KN}:\n" + "    s_nop 0\n" * int(OPT["shift"]), 1); size += 4 * int(OPT["shift"])
    print("code bytes", size)
    assert size <= 65536
    return s.replace("CODE_LAST", hex(size - 4))

if __name__ == "__main__":
    out = sys.argv[1] if len(sys.argv) > 1 and not sys.argv[1].startswith("--") else os.path.join(os.path.dirname(os.path.abspath(__file__)), "..", NAME + ".s")
    open(out, "w").write(build())
    print("wrote", out)
```

```python
import sys, os
sys.path.insert(0, os.path.dirname(os.path.abspath(__file__)))
from asmlib import Asm
from gen import (NAME, P, sp, vr, sr, load_kernargs, srd, pk, cmul, tile_ids, Stamper, OPT, header_comments, descriptor)
import gen

KN = NAME + "_kernel"
WS_H    = 0
WS_KVT  = 8 << 20
WS_G    = 16 << 20
WS_EBOX = 17 << 20
WS_FLG  = 18 << 20
HF_OFF  = 0
KF_OFF  = 128 << 10
YF_OFF  = 160 << 10
PF_OFF  = 192 << 10
FLG_SZ  = 320 << 10
WS_PART = 24 << 20
N1 = 16
N2 = 16
NS2 = 4
PD = 4
CRING = 32768
KREG = 98304
UREG = KREG + 4*8320
LFLAG = UREG + 4*4608
SPIN = int(OPT.get("spin", 1 << 16))
SLEEP = int(OPT.get("sleep", 4))
def opt(k, d): return int(OPT.get(k, d))

class VQ:
    def __init__(self, A): self.A = A; self.n = 0; self.tags = {}; self.done = 0
    def issue(self, text, tag=None):
        self.A(text); self.n += 1
        if tag is not None: self.tags[tag] = self.n
    def wait(self, tag):
        k = self.tags[tag]
        if k <= self.done: return
        cnt = min(63, self.n - k)
        self.A(f"s_waitcnt vmcnt({cnt})"); self.done = self.n - cnt
    def drained(self): self.done = self.n

class LQ:
    def __init__(self, A): self.A = A; self.n = 0; self.tags = {}; self.done = 0
    def issue(self, text, tag=None):
        self.A(text); self.n += 1
        if tag is not None: self.tags[tag] = self.n
    def wait(self, tag):
        k = self.tags[tag]
        if k > self.done:
            self.A(f"s_waitcnt lgkmcnt({min(15, self.n - k)})"); self.done = max(k, self.n - 15)
    def drain(self):
        self.A("s_waitcnt lgkmcnt(0)"); self.done = self.n

def spin_all(A, name, vreg, reload, cmpval="1", sctr=89, pre=None):
    A(f"s_mov_b32 s{sctr}, {SPIN}")
    A(f"{name}_chk:")
    if pre: A(pre)
    A(f"v_cmp_ne_u32 vcc, {cmpval}, v{vreg}")
    A("s_cmp_eq_u64 vcc, 0")
    A(f"s_cbranch_scc1 {name}_ok")
    A(f"s_sub_u32 s{sctr}, s{sctr}, 1")
    A(f"s_cbranch_scc1 {name}_ok")
    A(f"s_sleep {SLEEP}")
    A(reload)
    A("s_waitcnt vmcnt(0)")
    A(f"s_branch {name}_chk")
    A(f"{name}_ok:")

def lds_spin(A, name, vaddr, off, vtmp, target, stmp=8, sctr=89):
    A(f"s_mov_b32 s{sctr}, {SPIN*4}")
    A(f"{name}:")
    A(f"ds_read_b32 v{vtmp}, v{vaddr} offset:{off}")
    A("s_waitcnt lgkmcnt(0)")
    A(f"v_readfirstlane_b32 s{stmp}, v{vtmp}")
    A(f"s_cmp_ge_u32 s{stmp}, {target}")
    A(f"s_cbranch_scc1 {name}_ok")
    A(f"s_sub_u32 s{sctr}, s{sctr}, 1")
    A(f"s_cbranch_scc0 {name}")
    A(f"{name}_ok:")

def lds_inc(A, vaddr, vone, off):
    A("s_mov_b64 exec, 1")
    A(f"ds_add_u32 v{vaddr}, v{vone} offset:{off}")
    A("s_mov_b64 exec, -1")

def zip_chains(A, chains):
    chains = [[x for t in c for x in t.split("\n")] for c in chains]
    for i in range(max(len(c) for c in chains)):
        for c in chains:
            if i < len(c): A(c[i])

def local_check(A, vbits, vtmp, sdst_pair, stmp):
    A(f"s_getreg_b32 s{stmp}, hwreg(HW_REG_XCC_ID, 0, 4)")
    A(f"s_lshl_b32 s{stmp}, 0x100, s{stmp}")
    A(f"s_or_b32 s{stmp}, s{stmp}, 15")
    A(f"v_and_b32 v{vtmp}, 7, v1")
    A(f"v_cmp_eq_u32 s[{sdst_pair}:{sdst_pair+1}], s54, v{vtmp}")
    A(f"v_cmp_ne_u32 vcc, s{stmp}, v{vbits}")
    A(f"s_and_b64 vcc, vcc, s[{sdst_pair}:{sdst_pair+1}]")

SNT = opt("snt", 1)
PB = opt("pb", 1)
NPQ = 4 if PB else 8
FBAR = opt("fb", 2)
OS = str(OPT.get("os", "_nt")).replace("_", " ")
ORD = opt("ord", 1)
def tile_of(A, i, dst):
    if i == 0: A(f"s_mov_b32 s{dst}, s15")
    elif ORD:
        A(f"s_cmp_le_u32 s15, {i-1}")
        A(f"s_cselect_b32 s{dst}, {i}, {i-1}")
    else:
        A(f"s_add_u32 s{dst}, s15, {i}")
        A(f"s_and_b32 s{dst}, s{dst}, 7")

def gen_kernel(A):
    A(f"{KN}:")
    A("s_cmp_ge_u32 s2, 256")
    A("s_cbranch_scc1 L_end")
    load_kernargs(A)
    tile_ids(A)
    A("v_and_b32 v1, 63, v0")
    A("v_lshrrev_b32 v2, 6, v0")
    A("s_and_b32 s15, s5, 7")
    A("v_readfirstlane_b32 s3, v2")
    A("s_cmp_ge_u32 s3, 4")
    A("s_cbranch_scc0 L_consumer")
    helper(A)
    A("L_consumer:")
    consumer(A)
    A("L_end:")
    A("s_endpgm")


def consumer(A):
    ACC = 64
    FA, FB = 128, 144
    AD, BD = 160, 168
    LAM, C2, MU, MU2, MU4, MU8 = 176, 178, 180, 182, 184, 186
    EL = 192
    UR2 = 224
    ST = Stamper(A, 0, 63)
    ST()
    A(f"s_setprio {opt('prio', 2)}")
    A("s_and_b32 s6, s3, 1")
    A("s_lshr_b32 s7, s3, 1")
    A("v_and_b32 v4, 31, v1")
    A("s_lshl_b32 s8, s5, 6")
    A("s_lshl_b32 s9, s7, 5")
    A("s_add_u32 s8, s8, s9")
    A("v_add_u32 v3, s8, v4")
    A("v_lshlrev_b32 v5, 1, v3")
    A("v_lshrrev_b32 v6, 5, v1")
    A("s_lshl_b32 s10, s4, 1")
    A("s_add_u32 s10, s10, s6")
    if "nocode" not in OPT:
        A("s_getpc_b64 s[12:13]")
        A("c_pc:")
        A(f"s_sub_u32 s12, s12, c_pc-{KN}")
        A("s_subb_u32 s13, s13, 0")
        if opt("cpf", 1) == 0:
            A("s_lshl_b32 s11, s3, 14")
            A("v_lshl_add_u32 v24, v1, 7, s11")
            A("v_min_u32 v24, CODE_LAST, v24")
            A("global_load_dword v25, v24, s[12:13]")
            A("v_add_u32 v24, 0x2000, v24")
            A("v_min_u32 v24, CODE_LAST, v24")
            A("global_load_dword v26, v24, s[12:13]")
        else:
            A("s_lshl_b32 s11, s55, 2")
            A("s_add_u32 s11, s11, s3")
            A("s_lshl_b32 s11, s11, 9")
            A("v_and_b32 v24, 3, v1")
            A("v_lshl_add_u32 v24, v24, 7, s11")
            A("v_min_u32 v24, CODE_LAST, v24")
            A("global_load_dword v25, v24, s[12:13]")
    A("s_waitcnt lgkmcnt(0)")
    A(f"global_load_ushort v8, v5, {sp('Lre')}")
    A(f"global_load_ushort v9, v5, {sp('Lim')}")
    A(f"global_load_ushort v10, v5, {sp('logdt')}")
    srd(A, 56, "ws", 256 << 10, WS_EBOX)
    srd(A, 60, "ws", 8 << 20, WS_H)
    srd(A, 64, "dbg", 256)
    srd(A, 68, "ws", FLG_SZ, WS_FLG)
    A("s_lshl_b32 s11, s10, 13")
    A("v_lshl_add_u32 v7, v3, 3, s11")
    A("v_mov_b32 v12, 0")
    A("v_mov_b32 v13, 0")
    A("buffer_store_dwordx2 v[12:13], v7, s[56:59], 0 offen sc1")
    A("s_lshl_b32 s11, s10, 4")
    A("s_add_u32 s11, s11, s5")
    A("s_lshl_b32 s11, s11, 1")
    A("s_add_u32 s11, s11, s7")
    A("s_lshl_b32 s11, s11, 7")
    A("v_mov_b32 v60, s11")
    A("buffer_store_dword v12, v60, s[68:71], 0 offen sc1")
    A("s_lshl_b32 s72, s4, 4")
    A("s_add_u32 s72, s72, s5")
    A("s_lshl_b32 s72, s72, 2")
    A("s_add_u32 s72, s72, s3")
    A("s_lshl_b32 s72, s72, 7")
    A(f"s_add_u32 s11, s72, {PF_OFF:#x}")
    A("v_mov_b32 v30, s11")
    A("buffer_store_dword v12, v30, s[68:71], 0 offen sc1")
    A("v_mov_b32 v23, 1")
    A("v_bfe_u32 v11, v1, 1, 3")
    A("v_xor_b32 v11, v11, v6")
    A("s_lshl_b32 s11, s6, 13")
    A("v_lshl_add_u32 v14, v4, 7, s11")
    A("s_lshl_b32 s11, s7, 12")
    A("s_add_u32 s11, s11, 16384")
    A("v_lshl_add_u32 v15, v4, 7, s11")
    for ks in range(4):
        A(f"v_xor_b32 v16, {2*ks}, v11")
        A(f"v_lshl_add_u32 v{AD+ks}, v16, 4, v14")
        A(f"v_lshl_add_u32 v{BD+ks}, v16, 4, v15")
        A(f"v_add_u32 v{AD+4+ks}, 0x10000, v{AD+ks}")
        A(f"v_add_u32 v{BD+4+ks}, 0x10000, v{BD+ks}")
    A("v_lshlrev_b32 v21, 2, v1")
    A("s_waitcnt vmcnt(0)")
    A("v_lshlrev_b32 v8, 16, v8")
    A("v_lshlrev_b32 v9, 16, v9")
    A("v_lshlrev_b32 v10, 16, v10")
    A("s_mov_b32 s12, 0x3fb8aa3b")
    A("v_mul_f32 v10, s12, v10")
    A("v_exp_f32 v10, v10")
    A("v_cvt_pk_bf16_f32 v10, v10, v10")
    A("v_lshlrev_b32 v10, 16, v10")
    A("v_mul_f32 v16, v10, v8")
    A("v_mul_f32 v17, v10, v9")
    A("v_mul_f32 v16, s12, v16")
    A("v_exp_f32 v16, v16")
    A("v_mul_f32 v17, 0.15915494, v17")
    A("v_rndne_f32 v18, v17")
    A("v_sub_f32 v17, v17, v18")
    A("v_cos_f32 v18, v17")
    A("v_sin_f32 v19, v17")
    A(f"v_mul_f32 v{LAM}, v16, v18")
    A(f"v_mul_f32 v{LAM+1}, v16, v19")
    A(f"v_add_f32 v16, -1.0, v{LAM}")
    A("v_mul_f32 v17, v8, v8")
    A("v_fma_f32 v17, v9, v9, v17")
    A("v_rcp_f32 v17, v17")
    A("v_mul_f32 v18, v16, v8")
    A(f"v_fma_f32 v18, v{LAM+1}, v9, v18")
    A(f"v_mul_f32 v19, v{LAM+1}, v8")
    A("v_fma_f32 v19, -v16, v9, v19")
    A("v_add_f32 v17, v17, v17")
    A(f"v_mul_f32 v{C2}, v18, v17")
    A(f"v_mul_f32 v{C2+1}, v19, v17")
    cmul(A, 16, LAM, LAM); cmul(A, 18, 16, 16); cmul(A, 16, 18, 18)
    cmul(A, MU, 16, 16); cmul(A, MU2, MU, MU); cmul(A, MU4, MU2, MU2); cmul(A, MU8, MU4, MU4)
    cmul(A, 48, C2, MU2)
    A("v_cmp_lt_u32 vcc, 31, v1")
    A(f"v_cndmask_b32 v48, v{C2}, v48, vcc")
    A(f"v_cndmask_b32 v49, v{C2+1}, v49, vcc")
    A("v_lshlrev_b32 v50, 13, v6")
    A("v_sub_u32 v50, v7, v50")
    A("s_add_u32 s11, s10, 1")
    A("v_sub_u32 v51, s11, v6")
    A("v_lshrrev_b32 v51, 1, v51")
    A("s_lshl_b32 s11, s4, 2")
    A("s_add_u32 s11, s11, s3")
    A("s_lshl_b32 s11, s11, 5")
    A("v_lshrrev_b32 v52, 3, v1")
    A("v_add_u32 v52, s11, v52")
    A("v_lshlrev_b32 v52, 11, v52")
    A("v_and_b32 v16, 7, v1")
    A("v_lshl_add_u32 v52, v16, 4, v52")
    A("s_lshl_b32 s11, s5, 7")
    A("v_add_u32 v52, s11, v52")
    A("s_lshl_b32 s11, s3, 13")
    A("v_lshlrev_b32 v53, 11, v6")
    A("v_lshl_add_u32 v53, v4, 1, v53")
    A("v_add_u32 v53, s11, v53")
    A("s_lshl_b32 s11, s5, 6")
    A("v_add_u32 v54, s11, v4")
    A("v_lshlrev_b32 v54, 1, v54")
    srd(A, 76, "x", 4 << 20)
    srd(A, 92, "ws", 8 << 20, WS_PART)
    A("s_xor_b32 s73, s72, 4096")
    A("s_lshl_b32 s74, s73, 6")
    A("s_add_u32 s75, s74, 4096")
    A("v_lshlrev_b32 v59, 4, v1")
    if opt("tlb", 0) & 1:
        A("s_lshl_b32 s11, s4, 19")
        A("v_mov_b32 v16, s11")
        A("buffer_load_dword v55, v16, s[60:63], 0 offen sc1")
        srd(A, 84, "out", 8 << 20)
        A("buffer_load_dword v56, v16, s[84:87], 0 offen sc1")
        A("v_mov_b32 v16, s74")
        A("buffer_load_dword v57, v16, s[92:95], 0 offen sc1")
        A("s_lshl_b32 s11, s72, 6")
        A("v_mov_b32 v16, s11")
        A("buffer_load_dword v58, v16, s[92:95], 0 offen sc1")

    def rd(stage, ks, buf, which):
        slot = stage % 3
        hi = 4 if slot >= 2 else 0
        so = (slot & 1) * 32768
        if which < 2:
            return f"ds_read_b128 {vr(FA+buf*8+which*4,4)}, v{AD+hi+ks} offset:{so + which*4096}"
        ri = which - 2
        return f"ds_read_b128 {vr(FB+buf*8+ri*4,4)}, v{BD+hi+ks} offset:{so + ri*8192}"
    def mf(buf, mt, ri, first):
        acc = ACC + ri*32 + mt*16
        if int(OPT.get("abl16", 0)) & 2:
            c0 = vr(acc + buf*8, 4); c1 = vr(acc + buf*8 + 4, 4)
            return (f"v_mfma_f32_16x16x32_bf16 {c0}, {vr(FA+buf*8+mt*4,4)}, {vr(FB+buf*8+ri*4,4)}, {c0}\n"
                    f"v_mfma_f32_16x16x32_bf16 {c1}, {vr(FA+buf*8+mt*4,4)}, {vr(FB+buf*8+ri*4,4)}, {c1}")
        return f"v_mfma_f32_32x32x16_bf16 {vr(acc,16)}, {vr(FA+buf*8+mt*4,4)}, {vr(FB+buf*8+ri*4,4)}, {'0' if first else vr(acc,16)}"
    RD_ORDER = [0, 2, 1, 3]
    MF_ORDER = [(0,0), (1,0), (1,1), (0,1)]
    ST()
    A("s_barrier")
    ST()
    A("s_cmp_lg_u32 s3, 0")
    A("s_cbranch_scc1 c_noflag")
    A("s_lshr_b32 s11, s2, 6")
    A("s_lshl_b32 s11, 1, s11")
    A("s_getreg_b32 s12, hwreg(HW_REG_XCC_ID, 0, 4)")
    A("s_lshl_b32 s12, 0x100, s12")
    A("s_or_b32 s11, s11, s12")
    A("v_mov_b32 v16, s11")
    A("s_and_b32 s11, s2, 63")
    A("s_lshl_b32 s11, s11, 2")
    A("v_mov_b32 v17, s11")
    A("s_mov_b64 exec, 1")
    A("buffer_atomic_or v16, v17, s[64:67], 0 offen sc1")
    A("s_mov_b64 exec, -1")
    A("c_noflag:")
    for w in RD_ORDER: A(rd(0, 0, 0, w))
    for s in range(N1):
        for ks in range(4):
            buf = ks & 1
            last = (s == N1-1 and ks == 3)
            if ks == 3:
                A("s_waitcnt lgkmcnt(0)")
                A("s_barrier")
            ns, nks = (s, ks+1) if ks < 3 else (s+1, 0)
            for i in range(4):
                if ks < 3 and i < 3: A("s_waitcnt lgkmcnt(2)")
                A(mf(buf, *MF_ORDER[i], s == 0 and ks == 0))
                if not last: A(rd(ns, nks, buf ^ 1, RD_ORDER[i]))
            if (s in (3, 7, 11) if "fine1" not in OPT else s >= 3) and ks == 3: ST()
            if s == 12 and ks == 0:
                A("buffer_load_dword v20, v21, s[64:67], 0 offen sc1")
    ST()
    if "fine1" in OPT: ST.n = 40
    gen.SAFE_PK[0] = bool(opt("pk", 0) & 1)
    def UR(t): return ACC + (t >> 3)*16 + 2*(t & 7)
    def UI(t): return ACC + 32 + (t >> 3)*16 + 2*(t & 7)
    E = [(24, 26), (28, 30 - 30 + 44)]
    cr, ci = UR(0), UI(0)
    for t in range(1, 16):
        nr, ni = E[t & 1]
        A(pk("fma", nr, cr, LAM, UR(t), bsel=0))
        A(pk("fma", ni, ci, LAM, UI(t), bsel=0))
        A(pk("fma", nr, ci, LAM, nr, bsel=1, neg_b=True))
        A(pk("fma", ni, cr, LAM, ni, bsel=1))
        cr, ci = nr, ni
    A("v_mov_b32 v32, v28\nv_mov_b32 v33, v44\nv_mov_b32 v34, v29\nv_mov_b32 v35, v45")
    cmul(A, 36, MU, 32, add=34)
    A("v_mov_b32 v38, v36\nv_mov_b32 v39, v37\nv_mov_b32 v40, 0\nv_mov_b32 v41, 0")
    A("v_permlane32_swap_b32 v40, v38")
    A("v_permlane32_swap_b32 v41, v39")
    cmul(A, 42, MU2, 40, add=36)
    A("v_or_b32 v42, 1, v42")
    A("s_mov_b32 s12, 0")
    A("s_mov_b32 s13, -1")
    A("s_mov_b64 exec, s[12:13]")
    A("buffer_store_dwordx2 v[42:43], v7, s[56:59], 0 offen sc1")
    A("s_mov_b64 exec, -1")
    def scaling():
        for t in range(16):
            n = UR2 + 2*t
            A(pk("mul", n, UR(t), C2, bsel=0))
            A(pk("fma", n, UI(t), C2, n, bsel=1, neg_b=True))
            A(pk("mul", UI(t), UI(t), C2, bsel=0))
            A(pk("fma", UI(t), UR(t), C2, UI(t), bsel=1))
        cmul(A, 44, C2, 40)
        cmul(A, 46, C2, 32)
    if "lowp" in OPT: A("s_setprio 0")
    ST()
    A("s_lshl_b32 s9, s3, 13")
    for i in range(4):
        A(f"s_add_u32 m0, s9, {i*1024}")
        A(f"s_mov_b32 s8, {i*16384}")
        A("buffer_load_dwordx4 v52, s[76:79], s8 offen lds")
    for q in range(2):
        A(f"global_load_ushort v{9+q}, v54, {sp('Dskip')} offset:{q*64}")
    if SNT:
        for i in range(4): A(f"v_mov_b32 v{24+i}, -1")
        for i in range(NPQ): A(f"buffer_store_dwordx4 v[24:27], v59, s[92:95], s{74 if i < 4 else 75} offen offset:{(i & 3)*1024} sc1")
    if "pollfirst" not in OPT: scaling()
    for k in range(16):
        A(f"v_subrev_u32 v{128+k}, {(1+2*k)*8192:#x}, v50")
    ST()
    A(f"s_waitcnt vmcnt({7 + NPQ if SNT else 7})")
    spin_all(A, "c_init", 52, "buffer_load_dword v20, v21, s[64:67], 0 offen sc1", "15", pre="v_and_b32 v52, 15, v20")
    local_check(A, 20, 52, 12, 11)
    A("s_cselect_b32 s14, 0, 1")
    if "nolocal" in OPT: A("s_mov_b32 s14, 0")
    for k in range(16):
        A(f"buffer_load_dwordx2 {vr(EL+2*k,2)}, v{128+k}, s[56:59], 0 offen sc1")
    if "pollfirst" in OPT: scaling()
    XP = list(range(73, 89))
    XDP = [89, 90, 91, 92, 93, 94, 95, 54, 55, 56, 57, 58, 59, 61, 5, 12]
    A(f"s_waitcnt vmcnt({16 + NPQ if SNT else 16})")
    XT = [160 + i for i in range(16)] + [73 + i for i in range(16)]
    for nt in range(2):
        for r in range(16): A(f"ds_read_u16 v{XT[nt*16+r]}, v53 offset:{r*128+nt*64}")
    A("s_waitcnt lgkmcnt(0)")
    for m in range(8): A(f"v_lshl_or_b32 v{XP[8+m]}, v{XT[16+2*m+1]}, 16, v{XT[16+2*m]}" if False else f"v_lshl_or_b32 v{64+m}, v{XT[16+2*m+1]}, 16, v{XT[16+2*m]}")
    for m in range(8): A(f"v_lshl_or_b32 v{XP[m]}, v{XT[2*m+1]}, 16, v{XT[2*m]}")
    for m in range(8): A(f"v_mov_b32 v{XP[8+m]}, v{64+m}")
    BD2 = 32
    A("s_lshl_b32 s11, s3, 13")
    A("v_lshl_add_u32 v16, v6, 11, s11")
    A("v_lshl_add_u32 v16, v4, 6, v16")
    A("v_bfe_u32 v17, v1, 1, 2")
    for q in range(4):
        A(f"v_xor_b32 v18, {q}, v17")
        A(f"v_lshl_add_u32 v{64+q}, v18, 4, v16")
    A("v_mov_b32 v31, 1")
    A("v_bfe_u32 v16, v1, 2, 2")
    A("v_lshl_add_u32 v16, v6, 3, v16")
    A("v_and_b32 v24, 1, v1")
    A("v_bfe_u32 v18, v1, 4, 1")
    A("v_lshl_add_u32 v24, v24, 1, v18")
    A("v_bfe_u32 v18, v16, 1, 2")
    A("v_xor_b32 v24, v24, v18")
    A("v_lshlrev_b32 v24, 4, v24")
    A("v_lshl_add_u32 v24, v16, 6, v24")
    A("v_bfe_u32 v18, v1, 1, 1")
    A("v_lshl_add_u32 v24, v18, 3, v24")
    A("v_xor_b32 v25, 32, v24")
    A("v_add_u32 v25, 256, v25")
    A("v_add_u32 v68, s11, v24")
    A("v_add_u32 v69, s11, v25")
    A("s_lshl_b32 s11, s4, 7")
    A("s_lshl_b32 s12, s6, 6")
    A("s_add_u32 s11, s11, s12")
    A("s_and_b32 s12, s5, 7")
    A("s_lshl_b32 s12, s12, 2")
    A("s_add_u32 s11, s11, s12")
    A("s_add_u32 s11, s11, s7")
    A("s_lshl_b32 s11, s11, 12")
    A("s_lshr_b32 s13, s5, 3")
    A("s_lshl_b32 s13, s13, 11")
    A("s_add_u32 s11, s11, s13")
    A("v_lshl_add_u32 v72, v1, 4, s11")
    A(f"v_mov_b32 v20, {LFLAG:#x}")
    A("s_lshl_b32 s6, s4, 2")
    A("s_add_u32 s6, s6, s3")
    A("s_lshr_b32 s7, s3, 1")
    A("s_lshl_b32 s7, s7, 13")
    A("s_and_b32 s8, s3, 1")
    A("s_lshl_b32 s8, s8, 11")
    A("s_add_u32 s7, s7, s8")
    A("v_add_u32 v70, s7, v24")
    A("v_add_u32 v71, s7, v25")
    A("s_lshl_b32 s7, s6, 17")
    A("s_add_u32 s7, s7, s13")
    A("v_lshl_add_u32 v3, v1, 4, s7")
    A("v_add_u32 v2, 0x1000, v3")
    A(f"v_lshlrev_b32 v14, 7, v4")
    A(f"v_add_u32 v14, {CRING:#x}, v14")
    for ks in range(4):
        A(f"v_xor_b32 v16, {2*ks}, v11")
        A(f"v_lshl_add_u32 v{BD2+ks}, v16, 4, v14")
    A("s_lshr_b32 s7, s6, 1")
    A("s_lshl_b32 s7, s7, 12")
    A("s_add_u32 s7, s7, s13")
    A("v_bfe_u32 v16, v1, 1, 3")
    if ORD:
        A("v_subrev_u32 v14, 1, v16")
        A("v_cmp_le_u32 vcc, s15, v14")
        A("v_cndmask_b32 v14, v14, v16, vcc")
        A("v_mov_b32 v19, s15")
        A("v_cmp_eq_u32 vcc, 0, v16")
        A("v_cndmask_b32 v16, v14, v19, vcc")
    else:
        A("v_add_u32 v16, s15, v16")
        A("v_and_b32 v16, 7, v16")
    A("v_and_b32 v14, 1, v1")
    A("v_lshl_add_u32 v16, v16, 1, v14")
    A("v_lshl_add_u32 v22, v16, 7, s7")
    srd(A, 64, "ws", 8192, WS_G)
    srd(A, 76, "out", 8 << 20)
    for i in range(8):
        A(f"s_mov_b32 s{80+i}, {i*4096}")
    A("s_lshl_b32 s7, s6, 5")
    A("v_lshl_add_u32 v7, v6, 4, s7")
    A("s_lshl_b32 s8, s5, 6")
    A("v_add_u32 v8, s8, v4")
    A("v_lshlrev_b32 v26, 12, v7")
    A("v_lshl_add_u32 v26, v8, 2, v26")
    A("v_add_u32 v27, 0x8000, v26")
    A("v_lshlrev_b32 v7, 2, v7")
    A("v_mul_u32_u24 v21, 272, v4")
    A("v_lshl_add_u32 v21, v6, 5, v21")
    A("s_lshl_b32 s8, s3, 6")
    A("v_add_u32 v21, s8, v21")
    A(f"s_add_u32 s8, s73, {PF_OFF:#x}")
    A("v_mov_b32 v29, s8")
    A("v_lshlrev_b32 v28, 4, v1")
    A("v_mov_b32 v23, 1")
    A(f"s_mov_b32 s88, {SPIN}")
    A("c_poll:")
    A("s_waitcnt vmcnt(0)")
    A("v_mov_b32 v52, 0")
    for k in range(16):
        A(f"v_and_b32 v{144+k}, 1, v{EL+2*k}")
    for k in range(0, 16, 2):
        A(f"v_add3_u32 v52, v52, v{144+k}, v{145+k}")
    A("v_cmp_ne_u32 vcc, v52, v51")
    A("s_cmp_eq_u64 vcc, 0")
    A("s_cbranch_scc1 c_polled")
    A("s_sub_u32 s88, s88, 1")
    A("s_cbranch_scc1 c_polled")
    A(f"s_sleep {opt('psleep', SLEEP)}")
    for k in range(16):
        A(f"v_cmp_eq_u32 vcc, 0, v{144+k}")
        A("s_mov_b64 exec, vcc")
        A(f"buffer_load_dwordx2 {vr(EL+2*k,2)}, v{128+k}, s[56:59], 0 offen sc1")
        A("s_mov_b64 exec, -1")
    A("s_branch c_poll")
    A("c_polled:")
    if "pz" in OPT:
        A("s_lshl_b32 s8, s3, 2")
        A(f"s_add_u32 s8, s8, {LFLAG + 24:#x}")
        A("v_mov_b32 v16, s8")
        A("s_mov_b64 exec, 1")
        A("ds_write_b32 v16, v31")
        A("s_mov_b64 exec, -1")
    if "lowp" in OPT: A(f"s_setprio {opt('prio', 2)}")
    ST()
    g = EL + 30
    G = [52, 54]
    for k in range(14, -1, -1):
        n = G[k & 1]
        A(pk("fma", n, g, MU8, EL+2*k, bsel=0))
        A(pk("fma", n, g, MU8, n, bsel=1, asel="swap", neg_lo=[1,0,0]))
        g = n
    A("v_mov_b32 v54, v52\nv_mov_b32 v55, v53\nv_mov_b32 v56, v52\nv_mov_b32 v57, v53")
    A("v_permlane32_swap_b32 v54, v56")
    A("v_permlane32_swap_b32 v55, v57")
    cmul(A, 58, MU4, 56, add=54)
    cmul(A, 52, 48, 58, add=44)
    cmul(A, 54, MU, 52, add=46)
    A("v_mov_b32 v56, v52\nv_mov_b32 v57, v54\nv_mov_b32 v58, v53\nv_mov_b32 v59, v55")
    cr, ci = 56, 58
    def packhalf(hf):
        for plane in range(2):
            for e in range(2):
                d = 128 + ((plane*2 + e)*2 + hf)*4
                for m in range(4):
                    t = hf*8 + 2*m
                    if plane == 0: A(f"v_cvt_pk_bf16_f32 v{d+m}, v{UR2+2*t+e}, v{UR2+2*(t+1)+e}")
                    else: A(f"v_cvt_pk_bf16_f32 v{d+m}, -v{UI(t)+e}, -v{UI(t+1)+e}")
                A(f"ds_write_b128 v{64+2*e+hf}, {vr(d,4)} offset:{plane*4096}")
    for t in range(16):
        nr, ni = UR2 + 2*t, UI(t)
        if "ablb" in OPT:
            if t == 7: packhalf(0)
            continue
        A(pk("fma", nr, cr, LAM, nr, bsel=0))
        A(pk("fma", ni, ci, LAM, ni, bsel=0))
        A(pk("fma", nr, ci, LAM, nr, bsel=1, neg_b=True))
        A(pk("fma", ni, cr, LAM, ni, bsel=1))
        cr, ci = nr, ni
        if t == 7: packhalf(0)
    packhalf(1)
    if "pz" in OPT:
        A("v_mov_b32 v17, 0")
        A("s_mov_b64 exec, 1")
        A("ds_write_b32 v16, v17")
        A("s_mov_b64 exec, -1")
    gen.SAFE_PK[0] = False
    EARLY = opt("early", 0)
    HFL = "buffer_load_dword v19, v22, s[68:71], 0 offen sc1"
    if EARLY: A(HFL)
    ST()
    A("s_waitcnt lgkmcnt(0)")
    lds_inc(A, 20, 31, 12)
    AF = 160
    idx = 0
    for tblk in range(2):
        for plane in range(2):
            for ksl in range(2):
                d = AF + idx*4
                o = plane*4096 + tblk*2048 + ksl*1024
                A(f"ds_read_b64_tr_b16 {vr(d,2)}, v68 offset:{o}")
                A(f"ds_read_b64_tr_b16 {vr(d+2,2)}, v69 offset:{o}")
                idx += 1
    V = VQ(A)
    idx = 0
    for tblk in range(2):
        for plane in range(2):
            A(f"s_mov_b32 s12, {tblk*131072 + plane*8192:#x}")
            for ksl in range(2):
                d = AF + idx*4
                A(f"s_waitcnt lgkmcnt({min(15, 14 - 2*idx)})")
                V.issue(f"buffer_store_dwordx4 {vr(d,4)}, v72, s[60:63], s12 offen offset:{ksl*1024} sc1", "hst")
                idx += 1
    ACC2 = 96
    FB2 = 224
    GR = 36
    ST2 = Stamper(A, 1, 62)
    A(f"s_mov_b32 s89, {SPIN*4}")
    A("c_lw:")
    A("ds_read_b128 v[52:55], v20 offset:4")
    A("s_waitcnt lgkmcnt(0)")
    A("v_min_u32 v54, v54, v55")
    A("v_min_u32 v53, 1, v53")
    A("v_readfirstlane_b32 s8, v54")
    A("v_readfirstlane_b32 s9, v53")
    A("s_add_u32 s8, s8, s9")
    A("s_cmp_ge_u32 s8, 5")
    A("s_cbranch_scc1 c_lwok")
    A("s_sub_u32 s89, s89, 1")
    A("s_cbranch_scc0 c_lw")
    A("c_lwok:")
    L = LQ(A)
    for st in range(2):
        for ks in range(4):
            d = AF + (st*4 + ks)*4
            o = (ks >> 1)*16384 + st*4096 + (ks & 1)*1024
            L.issue(f"ds_read_b64_tr_b16 {vr(d,2)}, v70 offset:{o}")
            L.issue(f"ds_read_b64_tr_b16 {vr(d+2,2)}, v71 offset:{o}", ("A", st, ks))
    A("s_mov_b32 s13, 0")
    if EARLY:
        A("s_waitcnt vmcnt(8)")
        A("v_cmp_eq_u32 s[90:91], 1, v19")
        A("s_and_b32 s88, s90, 0xc")
        A("s_cmp_eq_u32 s88, 0xc")
        A("s_cbranch_scc0 c_noearly")
        A("s_mov_b32 s13, 1")
        for z in (2, 3):
            tile_of(A, z >> 1, 11)
            A("s_lshl_b32 s11, s11, 14")
            if z & 1: A("s_add_u32 s11, s11, 8192")
            for k2 in range(4):
                A(f"buffer_load_dwordx4 {vr(AF + (z*4 + k2)*4,4)}, v{3 if k2 < 2 else 2}, s[60:63], s11 offen offset:{(k2 & 1)*1024} sc1")
        A("c_noearly:")
    for q in range(4):
        V.issue(f"buffer_load_dwordx4 {vr(GR+q*4,4)}, v7, s[64:67], 0 offen offset:{q*16} sc1", "g")
    ST()
    slowp = []
    def need(i):
        m = ((1 << (2*i + 2)) - 1) & ~3
        name = f"c_n{len(slowp)}"
        A(f"s_and_b32 s88, s90, {m:#x}")
        A(f"s_cmp_eq_u32 s88, {m:#x}")
        A(f"s_cbranch_scc0 {name}_s")
        A(f"{name}:")
        slowp.append((name, m))
    alast = [None]
    def aload(st, ks):
        if alast[0] != st:
            alast[0] = st
            tile_of(A, st >> 1, 11)
            A("s_lshl_b32 s11, s11, 14")
            if st & 1: A("s_add_u32 s11, s11, 8192")
        r = AF + ((st % PD)*4 + ks)*4
        V.issue(f"buffer_load_dwordx4 {vr(r,4)}, v{3 if ks < 2 else 2}, s[60:63], s11 offen offset:{(ks & 1)*1024} sc1", ("A", st, ks))
    def rd2(st, ks, nt, slot):
        return f"ds_read_b128 {vr(FB2+slot*4,4)}, v{BD2+ks} offset:{(st % NS2)*16384 + nt*4096}"
    def mf2(st, ks, nt, slot):
        a = AF + ((st % PD)*4 + ks)*4
        c = vr(ACC2+nt*16, 16)
        if int(OPT.get("abl16", 0)) & 1:
            z = (ks & 1)*8
            c0 = vr(ACC2+nt*16+z, 4); c1 = vr(ACC2+nt*16+z+4, 4)
            f = st == 0 and ks < 2
            return (f"v_mfma_f32_16x16x32_bf16 {c0}, {vr(a,4)}, {vr(FB2+slot*4,4)}, {'0' if f else c0}\n"
                    f"v_mfma_f32_16x16x32_bf16 {c1}, {vr(a,4)}, {vr(FB2+slot*4,4)}, {'0' if f else c1}")
        return f"v_mfma_f32_32x32x16_bf16 {c}, {vr(a,4)}, {vr(FB2+slot*4,4)}, {'0' if (st == 0 and ks == 0) else c}"
    def await_(st, ks):
        if st < 2: L.wait(("A", st, ks))
        else: V.wait(("A", st, ks))
    ST2()
    for nt in range(4): L.issue(rd2(0, 0, nt, nt), (0, 0, nt))
    HFK = opt("hfk", 3)
    N1K = opt("n1k", 2)
    XPS = opt("xps", 1)
    xfill = []
    def xpart(A=A):
        A("v_lshlrev_b32 v9, 16, v9")
        A("v_lshlrev_b32 v10, 16, v10")
        A("s_mov_b32 s12, 0xffff0000")
        TT = [13, 15, 16, 17, 18, 24, 25, 8]
        for k0 in range(0, 16, 4):
            ch = []
            for k in range(k0, k0 + 4):
                t0, t1 = TT[2*(k & 3)], TT[2*(k & 3) + 1]
                dk = 9 + (k >> 3)
                ch.append([f"v_lshlrev_b32 v{t0}, 16, v{XP[k]}", f"v_and_b32 v{t1}, s12, v{XP[k]}", f"v_mul_f32 v{t0}, v{t0}, v{dk}", f"v_mul_f32 v{t1}, v{t1}, v{dk}",
                           f"v_cvt_pk_bf16_f32 v{XDP[k]}, v{t0}, v{t1}"])
            zip_chains(A, ch)
    if XPS == 2: xpart(xfill.append)
    DIST = opt("dist", 3)
    assert DIST in (2, 3, 4)
    polls = [0]
    def hfpoll():
        polls[0] += 1
        V.issue(HFL, ("hf", polls[0]))
    def hfseen():
        V.wait(("hf", polls[0]))
        A("v_cmp_eq_u32 s[90:91], 1, v19")
    FS = opt("fs", 4)
    assert FS == 1 or (FS in (3, 4) and DIST >= 3)
    for st in range(N2 - FS):
        for ks in range(4):
            buf = ks & 1
            if ks == 3 and st >= FBAR: A("s_barrier")
            if ks == 3 and st == 1 and FBAR > 1:
                lds_spin(A, "c_cf2", 20, 20, 14, 4); L.done = L.n
            ns, nks = (st, ks+1) if ks < 3 else (st+1, 0)
            await_(st, ks)
            for nt in range(4):
                L.wait((st, ks, nt))
                A(mf2(st, ks, nt, buf*4 + nt))
                L.issue(rd2(ns, nks, nt, (buf ^ 1)*4 + nt), (ns, nks, nt))
                for z in range(opt("xfm", 3)):
                    if xfill: A(xfill.pop(0))
            if st == 0 and ks == HFK:
                if EARLY:
                    cnt = V.n - V.tags["hst"]
                    A("s_cmp_eq_u32 s13, 1")
                    A("s_cbranch_scc1 c_hw_e")
                    A(f"s_waitcnt vmcnt({cnt})")
                    A("s_branch c_hw_d")
                    A("c_hw_e:")
                    A(f"s_waitcnt vmcnt({cnt + 8})")
                    A("c_hw_d:")
                    V.done = V.tags["hst"]
                else: V.wait("hst")
                A("s_cmp_eq_u32 s14, 1")
                A("s_cbranch_scc1 c_hfs_l")
                A("buffer_store_dword v23, v60, s[68:71], 0 offen sc1")
                A("s_branch c_hfs_e")
                A("c_hfs_l:")
                A("buffer_store_dword v23, v60, s[68:71], 0 offen")
                A("c_hfs_e:")
                V.n += 1
                if SNT: V.issue("buffer_store_dword v23, v30, s[68:71], 0 offen sc1")
                hfpoll()
                if "fine3" in OPT: ST2()
            if st == 1 and ks == opt("rp", -1): hfpoll()
            if st == 1 and ks == N1K:
                if "fine3" in OPT: ST2()
                if EARLY:
                    A("s_cmp_eq_u32 s13, 1")
                    A("s_cbranch_scc1 c_skipy")
                hfseen(); need(1)
                if "fine3" in OPT: ST2()
                for z in (2, 3):
                    for k2 in range(4): aload(z, k2)
                if EARLY:
                    A("c_skipy:")
                    V.done = min(V.done, V.tags[("hf", polls[0])] - 1)
                hfpoll()
                if XPS == 0: xpart()
            if st == 1 and ks == 3 and XPS == 1: xpart()
            if st >= 2:
                if st == 2 and ks == 0:
                    if "fine3" in OPT: ST2()
                    hfseen(); need(2)
                    if "fine3" in OPT: ST2()
                    for z in range(4, 2 + DIST):
                        for k2 in range(4): aload(z, k2)
                    hfpoll()
                z = st + DIST
                if z < N2:
                    if ks == 0 and z % 2 == 0 and z // 2 >= 3:
                        if z // 2 == 3: hfseen()
                        if not (int(OPT.get("abl", 0)) & 2): need(z // 2)
                    aload(z, ks)
            if SNT and st == opt("pfl", 5) and ks == 0: V.issue("buffer_load_dword v14, v29, s[68:71], 0 offen sc1", "pf")
            if SNT and st == opt("pfc", 8) and ks == 0:
                V.wait("pf")
                A("v_cmp_ne_u32 vcc, 1, v14")
                A("s_cmp_eq_u64 vcc, 0")
                A("s_cbranch_scc0 c_pfs")
                A("c_pfr:")
            if "fine3" in OPT:
                if st in (1, 2, 3, 4) and ks == 3: ST2()
                if st == 2 and ks == 0: ST2()
            elif "fine4" in OPT:
                if st == N2 - FS - 1 and ks == 3: ST2()
            elif (st % 2 == 1 if 'fine2' not in OPT else True) and ks == 3: ST2()
    f0 = N2 - FS
    S_ = lambda z: [(z, ks, nt) for ks in range(4) for nt in (0, 1)]
    K_ = lambda z: [(z, ks, nt) for ks in range(4) for nt in (2, 3)]
    if FS == 1: order = S_(15) + K_(15); nsend = 8
    elif FS == 3: order = S_(13) + ["b13"] + S_(14) + K_(13) + ["b14"] + S_(15) + K_(14) + K_(15); nsend = 32
    else:
        BP = opt("bp", 4)
        order = []
        if opt("fso", 1) == 0:
            for z in (12, 13, 14): order += S_(z)[:BP] + [f"b{z}"] + S_(z)[BP:]
            order += S_(15) + K_(12) + K_(13) + K_(14) + K_(15); nsend = 32
        else:
            order = S_(12)[:BP] + ["b12"] + S_(12)[BP:] + S_(13) + K_(12)[:BP] + ["b13"] + K_(12)[BP:] + S_(14)[:BP] + ["b14"] + S_(14)[BP:] + S_(15) + K_(13) + K_(14) + K_(15)
            nsend = 40
        for z in range(N2):
            if ("A", z, 0) not in V.tags and z >= 2:
                for k2 in range(4): aload(z, k2)
    mfs = [x for x in order if not isinstance(x, str)]
    slot = {(f0, 0, nt): nt for nt in range(4)}
    pend = [x for x in mfs if x not in slot]
    free = [4, 5, 6]
    pub = [f0]
    def fill():
        while pend and free and pend[0][0] <= pub[0]:
            x = pend.pop(0); sl = free.pop(0); slot[x] = sl
            L.issue(rd2(x[0], x[1], x[2], sl), x)
    fill()
    pst = [f"buffer_store_dwordx4 {vr(ACC2+4*i,4)}, v28, s[92:95], s{74 if i < 4 else 75} offen offset:{(i & 3)*1024} sc1" for i in range(NPQ)]
    pcv = [f"v_cvt_pk_bf16_f32 v{ACC2+k}, v{ACC2+2*k}, v{ACC2+2*k+1}" for k in range(16)] if PB else []
    i = 0; prev = None
    for x in order:
        if isinstance(x, str):
            A("s_barrier"); pub[0] += 1; fill(); continue
        V.wait(("A", x[0], x[1]))
        if x not in slot: fill()
        L.wait(x)
        A(mf2(x[0], x[1], x[2], slot[x]))
        free.append(slot[prev] if prev is not None else 7)
        prev = x
        fill()
        i += 1
        SP = opt("sp", 0)
        if i >= nsend + 3 and pcv:
            for z in range(4): A(pcv.pop(0))
            V.issue(pst.pop(0), "ps")
        elif i >= nsend + 3:
            if SP == 0:
                for z in range(2):
                    if pst: V.issue(pst.pop(0), "ps")
            elif (i - nsend - 3) % SP == 0 and pst: V.issue(pst.pop(0), "ps")
        if "fine4" in OPT and i % 8 == 0: ST2()
    while pst: V.issue(pst.pop(0), "ps")
    ST2()
    YR, OM, GF, T0, RV = 160, 176, 192, 208, ACC2
    KEEP = ACC2 + 32
    PFL = "buffer_load_dword v19, v29, s[68:71], 0 offen sc1"
    A("s_mov_b32 s12, 0xffff0000")
    for nt in range(2):
        for hf in range(2): A(f"ds_read_b128 {vr(YR+nt*8+hf*4,4)}, v21 offset:{nt*32*272 + hf*16}")
    for r in range(16):
        A(f"v_lshlrev_b32 v{GF+r}, 16, v{GR+r}")
        A(f"v_and_b32 v{OM+r}, s12, v{GR+r}")
    A("s_waitcnt lgkmcnt(0)")
    if SNT:
        RCG = opt("rcg", 2)
        def recv_full():
            for i in range(NPQ):
                A(f"buffer_load_dwordx4 {vr(RV+4*i,4)}, v28, s[92:95], s{90 if i < 4 else 91} offen offset:{(i & 3)*1024} sc1")
        first = [True]
        def recv():
            if "lp" in OPT and first[0]:
                first[0] = False
                A(f"buffer_load_dwordx4 {vr(RV+4*NPQ-4,4)}, v28, s[92:95], s{90 if PB else 91} offen offset:3072 sc1")
            else: recv_full()
        A("s_lshl_b32 s90, s72, 6")
        A("s_add_u32 s91, s90, 4096")
        gi = 0
        for nt in range(2):
            for m0 in range(0, 8, 4):
                if gi == RCG: recv()
                gi += 1
                ch = []
                for m in range(m0, m0 + 4):
                    b_ = T0 + (m & 3)*6
                    yy, xf, tm = b_, b_ + 2, b_ + 4
                    xp = XP[nt*8+m]; xd = XDP[nt*8+m]; ka = KEEP + nt*16 + 2*m
                    ch.append([f"v_lshlrev_b32 v{yy}, 16, v{YR+nt*8+m}", f"v_and_b32 v{yy+1}, s12, v{YR+nt*8+m}",
                               f"v_lshlrev_b32 v{xf}, 16, v{xp}", f"v_and_b32 v{xf+1}, s12, v{xp}",
                               f"v_mul_f32 v{yy}, v{xf}, v{yy}", f"v_mul_f32 v{yy+1}, v{xf+1}, v{yy+1}",
                               f"v_lshlrev_b32 v{xf}, 16, v{xd}", f"v_and_b32 v{xf+1}, s12, v{xd}",
                               f"v_cvt_pk_bf16_f32 v{tm}, v{yy}, v{yy+1}",
                               f"v_add_f32 v{ka}, v{ka}, v{xf}", f"v_add_f32 v{ka+1}, v{ka+1}, v{xf+1}",
                               f"v_lshlrev_b32 v{yy}, 16, v{tm}", f"v_and_b32 v{yy+1}, s12, v{tm}",
                               f"v_mul_f32 v{yy}, v{yy}, v{OM+2*m}", f"v_mul_f32 v{yy+1}, v{yy+1}, v{OM+2*m+1}",
                               f"v_cvt_pk_bf16_f32 v{tm}, v{yy}, v{yy+1}", f"v_lshlrev_b32 v{yy}, 16, v{tm}", f"v_and_b32 v{yy+1}, s12, v{tm}",
                               f"v_fma_f32 v{ka}, v{ka}, v{GF+2*m}, v{yy}", f"v_fma_f32 v{ka+1}, v{ka+1}, v{GF+2*m+1}, v{yy+1}"])
                zip_chains(A, ch)
        if gi == RCG: recv()
        ST2()
        if "lp" in OPT:
            LP = f"buffer_load_dwordx4 {vr(RV+4*NPQ-4,4)}, v28, s[92:95], s{90 if PB else 91} offen offset:3072 sc1"
            A(f"s_mov_b32 s89, {SPIN}")
            A("c_lp:")
            A("s_waitcnt vmcnt(0)")
            A(f"v_cmp_eq_u32 vcc, -1, v{RV+4*NPQ-1}")
            A("s_cmp_eq_u64 vcc, 0")
            A("s_cbranch_scc1 c_lpok")
            A("s_sub_u32 s89, s89, 1")
            A("s_cbranch_scc1 c_lpok")
            A(LP)
            A("s_branch c_lp")
            A("c_lpok:")
            recv_full()
        A(f"s_mov_b32 s89, {SPIN}")
        A("c_rc:")
        A("s_waitcnt vmcnt(0)")
        A(f"v_max3_u32 v19, v{RV}, v{RV+1}, v{RV+2}")
        for i in range(3, 4*NPQ-1, 2): A(f"v_max3_u32 v19, v19, v{RV+i}, v{RV+i+1}")
        A(f"v_max_u32 v19, v19, v{RV+4*NPQ-1}")
        A("v_cmp_eq_u32 vcc, -1, v19")
        A("s_cmp_eq_u64 vcc, 0")
        A("s_cbranch_scc1 c_rcok")
        A("s_sub_u32 s89, s89, 1")
        A("s_cbranch_scc1 c_rcok")
        recv()
        A("s_branch c_rc")
        A("c_rcok:")
        ST2()
        for nt in range(2):
            for r in range(16):
                a = KEEP + nt*16 + r
                if PB:
                    w = RV + nt*8 + (r >> 1); t = T0 + (r & 3)
                    A(f"v_and_b32 v{t}, s12, v{w}" if r & 1 else f"v_lshlrev_b32 v{t}, 16, v{w}")
                    A(f"v_fma_f32 v{a}, v{t}, v{GF+r}, v{a}")
                else: A(f"v_fma_f32 v{a}, v{RV+nt*16+r}, v{GF+r}, v{a}")
                A(f"buffer_store_dword v{a}, v{26 if r < 8 else 27}, s[76:79], s{80+(r&7)} offen offset:{nt*128}{OS}")
        ST2()
    else:
        PFG = opt("pfg", 2)
        gi = 0
        def pfstore():
            A("s_waitcnt vmcnt(0)")
            A("buffer_store_dword v23, v30, s[68:71], 0 offen sc1")
            A(PFL)
        RCG = opt("rcg", 3)
        def recv():
            A("s_lshl_b32 s12, s72, 6")
            A("s_add_u32 s13, s12, 4096")
            for i in range(NPQ):
                A(f"buffer_load_dwordx4 {vr(RV+4*i,4)}, v28, s[92:95], s{12 if i < 4 else 13} offen offset:{(i & 3)*1024} sc1")
            A("s_mov_b32 s12, 0xffff0000")
        A("s_mov_b32 s90, 0")
        for nt in range(2):
            for m0 in range(0, 8, 4):
                if gi == PFG: pfstore()
                if gi == RCG and RCG > PFG:
                    A("s_waitcnt vmcnt(0)")
                    A("v_cmp_ne_u32 vcc, 1, v19")
                    A("s_cmp_eq_u64 vcc, 0")
                    A("s_cbranch_scc0 c_norc")
                    recv()
                    A("s_mov_b32 s90, 1")
                    A("c_norc:")
                gi += 1
                ch = []
                for m in range(m0, m0 + 4):
                    b_ = T0 + (m & 3)*6
                    yy, xf, tm = b_, b_ + 2, b_ + 4
                    xp = XP[nt*8+m]; xd = XDP[nt*8+m]; ka = KEEP + nt*16 + 2*m
                    ch.append([f"v_lshlrev_b32 v{yy}, 16, v{YR+nt*8+m}", f"v_and_b32 v{yy+1}, s12, v{YR+nt*8+m}",
                               f"v_lshlrev_b32 v{xf}, 16, v{xp}", f"v_and_b32 v{xf+1}, s12, v{xp}",
                               f"v_mul_f32 v{yy}, v{xf}, v{yy}", f"v_mul_f32 v{yy+1}, v{xf+1}, v{yy+1}",
                               f"v_lshlrev_b32 v{xf}, 16, v{xd}", f"v_and_b32 v{xf+1}, s12, v{xd}",
                               f"v_cvt_pk_bf16_f32 v{tm}, v{yy}, v{yy+1}",
                               f"v_add_f32 v{ka}, v{ka}, v{xf}", f"v_add_f32 v{ka+1}, v{ka+1}, v{xf+1}",
                               f"v_lshlrev_b32 v{yy}, 16, v{tm}", f"v_and_b32 v{yy+1}, s12, v{tm}",
                               f"v_mul_f32 v{yy}, v{yy}, v{OM+2*m}", f"v_mul_f32 v{yy+1}, v{yy+1}, v{OM+2*m+1}",
                               f"v_cvt_pk_bf16_f32 v{tm}, v{yy}, v{yy+1}", f"v_lshlrev_b32 v{yy}, 16, v{tm}", f"v_and_b32 v{yy+1}, s12, v{tm}",
                               f"v_fma_f32 v{ka}, v{ka}, v{GF+2*m}, v{yy}", f"v_fma_f32 v{ka+1}, v{ka+1}, v{GF+2*m+1}, v{yy+1}"])
                zip_chains(A, ch)
        if gi == PFG: pfstore()
        ST2()
        A("s_cmp_eq_u32 s90, 1")
        A("s_cbranch_scc1 c_havercv")
        A(PFL)
        A("s_waitcnt vmcnt(0)")
        spin_all(A, "c_pf", 19, PFL)
        recv()
        A("c_havercv:")
        ST2()
        for nt in range(2):
            for r in range(16):
                a = KEEP + nt*16 + r
                if PB:
                    i = (nt*16 + r) // 8
                    if r % 8 == 0: A(f"s_waitcnt vmcnt({3 - i + nt*16 + r})")
                    w = RV + nt*8 + (r >> 1); t = T0 + (r & 3)
                    A(f"v_and_b32 v{t}, s12, v{w}" if r & 1 else f"v_lshlrev_b32 v{t}, 16, v{w}")
                    A(f"v_fma_f32 v{a}, v{t}, v{GF+r}, v{a}")
                else:
                    i = (nt*16 + r) // 4
                    if r % 4 == 0: A(f"s_waitcnt vmcnt({7 - i + nt*16 + r})")
                    A(f"v_fma_f32 v{a}, v{RV+nt*16+r}, v{GF+r}, v{a}")
                A(f"buffer_store_dword v{a}, v{26 if r < 8 else 27}, s[76:79], s{80+(r&7)} offen offset:{nt*128}{OS}")
        ST2()
    if "leak" in OPT:
        i = int(OPT["leak"])
        A("s_cmp_lg_u32 s2, 8")
        A("s_cbranch_scc1 c_noleak")
        A("s_cmp_lg_u32 s3, 0")
        A("s_cbranch_scc1 c_noleak")
        A("v_readlane_b32 s8, v63, 0")
        A(f"v_readlane_b32 s9, v{63 if i < 100 else 62}, {i % 100}")
        A("s_sub_u32 s9, s9, s8")
        A("s_memrealtime s[10:11]")
        A("s_waitcnt lgkmcnt(0)")
        A("s_add_u32 s9, s9, s10")
        A("c_leak:")
        A("s_memrealtime s[10:11]")
        A("s_waitcnt lgkmcnt(0)")
        A("s_sub_u32 s12, s9, s10")
        A("s_cmp_gt_i32 s12, 0")
        A("s_cbranch_scc1 c_leak")
        A("c_noleak:")
    if "leak2" in OPT:
        X, i = str(OPT["leak2"]).split(":"); i = int(i)
        if X != "all":
            A(f"s_cmp_lg_u32 s2, {int(X)}")
            A("s_cbranch_scc1 c_noleak2")
        A("s_cmp_lg_u32 s3, 0")
        A("s_cbranch_scc1 c_noleak2")
        A(f"v_readlane_b32 s9, v{63 if i < 100 else 62}, {i % 100}")
        A("s_add_u32 s9, s9, 4000")
        A("c_leak2:")
        A("s_memrealtime s[10:11]")
        A("s_waitcnt lgkmcnt(0)")
        A("s_sub_u32 s12, s9, s10")
        A("s_cmp_gt_i32 s12, 0")
        A("s_cbranch_scc1 c_leak2")
        A("c_noleak2:")
    ST.flush()
    ST2.flush()
    A("s_endpgm")
    if SNT:
        A("c_pfs:")
        A(f"s_mov_b32 s89, {SPIN}")
        A("c_pfs_l:")
        A("s_waitcnt vmcnt(0)")
        A("buffer_load_dword v14, v29, s[68:71], 0 offen sc1")
        A("s_waitcnt vmcnt(0)")
        A("v_cmp_ne_u32 vcc, 1, v14")
        A("s_cmp_eq_u64 vcc, 0")
        A("s_cbranch_scc1 c_pfr")
        A("s_sub_u32 s89, s89, 1")
        A("s_cbranch_scc1 c_pfr")
        A("s_branch c_pfs_l")
    for name, m in slowp:
        A(f"{name}_s:")
        A(f"s_mov_b32 s89, {SPIN}")
        A(f"{name}_l:")
        A("s_waitcnt vmcnt(0)")
        A(HFL)
        A("s_waitcnt vmcnt(0)")
        A("v_cmp_eq_u32 s[90:91], 1, v19")
        A(f"s_and_b32 s88, s90, {m:#x}")
        A(f"s_cmp_eq_u32 s88, {m:#x}")
        A(f"s_cbranch_scc1 {name}")
        A("s_sub_u32 s89, s89, 1")
        A(f"s_cbranch_scc1 {name}")
        A(f"s_branch {name}_l")

def helper(A):
    V = VQ(A)
    VA, VB = 8, 12
    ST = Stamper(A, 0, 58)
    STH = Stamper(A, 1, 59)
    ST()
    if "hprio1" in OPT: A(f"s_setprio {OPT['hprio1']}")
    A("s_sub_u32 s3, s3, 4")
    A("s_lshr_b32 s6, s3, 1")
    A("s_and_b32 s7, s3, 1")
    A("v_lshrrev_b32 v3, 5, v1")
    A("v_lshlrev_b32 v3, 5, v3")
    A("v_bfe_u32 v4, v1, 3, 1")
    A("v_lshl_add_u32 v3, v4, 4, v3")
    A("v_bfe_u32 v4, v1, 4, 1")
    A("v_add_u32 v3, v3, v4")
    A("s_lshl_b32 s8, s4, 7")
    A("s_lshl_b32 s9, s6, 6")
    A("s_add_u32 s8, s8, s9")
    A("s_lshl_b32 s9, s7, 3")
    A("s_add_u32 s8, s8, s9")
    A("v_add_u32 v3, s8, v3")
    A("v_lshlrev_b32 v3, 11, v3")
    A("v_and_b32 v4, 7, v1")
    A("v_lshrrev_b32 v5, 4, v1")
    A("v_xor_b32 v4, v4, v5")
    A("v_lshlrev_b32 v4, 4, v4")
    A(f"v_add_u32 v{VA}, v3, v4")
    A("s_lshl_b32 s10, s3, 12")
    A("s_lshr_b32 s90, s55, 2")
    A("s_lshl_b32 s90, s90, 1")
    A("s_and_b32 s91, s55, 3")
    A("s_lshl_b32 s91, s91, 2")
    A("s_add_u32 s90, s90, s91")
    A("s_and_b32 s11, s90, 15")
    A("s_lshl_b32 s11, s11, 7")
    A("s_mov_b32 m0, s10")
    A(f"s_mov_b32 s58, {4<<20:#x}")
    A("s_mov_b32 s59, 0x20000")
    if "fine0" in OPT: STH()
    A("s_waitcnt lgkmcnt(0)")
    if "fine0" in OPT: STH()
    A(f"s_mov_b32 s56, s{P['x']}")
    A(f"s_mov_b32 s57, s{P['x']+1}")
    V.issue(f"buffer_load_dwordx4 v{VA}, s[56:59], s11 offen lds")
    A("v_xor_b32 v5, 64, v4")
    A(f"v_add_u32 v{VA+1}, v3, v5")
    A(f"v_add_u32 v{VA+1}, {4096-1024}, v{VA+1}")
    V.issue(f"buffer_load_dwordx4 v{VA+1}, s[56:59], s11 offen offset:1024 lds")
    A(f"v_add_u32 v{VA+2}, {2*(4096-1024)}, v{VA}")
    V.issue(f"buffer_load_dwordx4 v{VA+2}, s[56:59], s11 offen offset:2048 lds")
    A(f"v_add_u32 v{VA+3}, {2*(4096-1024)}, v{VA+1}")
    V.issue(f"buffer_load_dwordx4 v{VA+3}, s[56:59], s11 offen offset:3072 lds")
    A("s_lshl_b32 s8, s5, 6")
    A("s_lshl_b32 s9, s7, 5")
    A("s_add_u32 s8, s8, s9")
    A("v_lshrrev_b32 v6, 3, v1")
    A("v_add_u32 v7, s8, v6")
    A("v_lshlrev_b32 v7, 11, v7")
    A(f"v_add_u32 v{VB}, v7, v4")
    A("s_cmp_ge_u32 s3, 2")
    A(f"s_cselect_b32 s60, s{P['Bim']}, s{P['Bre']}")
    A(f"s_cselect_b32 s61, s{P['Bim']+1}, s{P['Bre']+1}")
    A(f"s_mov_b32 s62, {2<<20:#x}")
    A("s_mov_b32 s63, 0x20000")
    A("s_add_u32 m0, s10, 16384")
    A(f"v_add_u32 v{VB+1}, v7, v5")
    V.issue(f"buffer_load_dwordx4 v{VB}, s[60:63], s11 offen lds")
    A(f"v_add_u32 v{VB+1}, {16384-1024}, v{VB+1}")
    V.issue(f"buffer_load_dwordx4 v{VB+1}, s[60:63], s11 offen offset:1024 lds")
    A(f"v_add_u32 v{VB+2}, {2*(16384-1024)}, v{VB}")
    V.issue(f"buffer_load_dwordx4 v{VB+2}, s[60:63], s11 offen offset:2048 lds")
    A(f"v_add_u32 v{VB+3}, {2*(16384-1024)}, v{VB+1}")
    V.issue(f"buffer_load_dwordx4 v{VB+3}, s[60:63], s11 offen offset:3072 lds", ("S", 0))
    def issue(st, fill=0):
        slot = st % 3
        A(f"s_add_u32 s11, s90, {st}")
        A("s_and_b32 s11, s11, 15")
        A("s_lshl_b32 s11, s11, 7")
        A(f"s_add_u32 m0, s10, {slot*32768:#x}")
        for n in range(4):
            V.issue(f"buffer_load_dwordx4 v{VA+n}, s[56:59], s11 offen offset:{n*1024} lds")
            if fill: do_work(fill)
        A(f"s_add_u32 m0, s10, {slot*32768+16384:#x}")
        for n in range(4):
            V.issue(f"buffer_load_dwordx4 v{VB+n}, s[60:63], s11 offen offset:{n*1024} lds", ("S", st))
            if fill: do_work(fill)
    if "fine0" in OPT: STH()
    VC = 28
    A("s_and_b32 s8, s5, 7")
    A("s_lshl_b32 s8, s8, 6")
    A("s_lshl_b32 s9, s3, 4")
    A("s_add_u32 s8, s8, s9")
    A("v_add_u32 v7, s8, v6")
    A("v_lshlrev_b32 v7, 11, v7")
    A(f"v_add_u32 v{VC}, v7, v4")
    A(f"v_add_u32 v{VC+1}, v7, v5")
    A(f"v_add_u32 v{VC+1}, {16384-1024}, v{VC+1}")
    A("s_and_b32 s12, s55, 1")
    A("s_lshl_b32 s13, s54, 1")
    A("s_add_u32 s12, s12, s13")
    A("s_lshr_b32 s13, s55, 1")
    A("s_lshl_b32 s8, s2, 7")
    A(f"s_add_u32 s8, s8, {KF_OFF:#x}")
    A("v_mov_b32 v30, s8")
    A("s_lshl_b32 s88, s54, 5")
    A("s_add_u32 s88, s88, s55")
    A("s_lshl_b32 s8, s88, 7")
    A(f"s_add_u32 s8, s8, {YF_OFF:#x}")
    A("v_mov_b32 v31, s8")
    A("s_lshl_b32 s88, s88, 2")
    A("s_add_u32 s88, s88, s3")
    A("v_mov_b32 v2, 0")
    srd(A, 92, "ws", FLG_SZ, WS_FLG)
    A("s_lshl_b32 s8, s88, 12")
    A(f"s_load_dword s100, {sp('ssmk')}, s8")
    A("s_lshr_b32 s8, s88, 1")
    A("s_lshl_b32 s8, s8, 2")
    A(f"s_load_dword s101, {sp('ssmD')}, s8")
    if opt("tlb", 0) & 2:
        A("s_lshl_b32 s8, s88, 12")
        A("v_mov_b32 v248, s8")
        V.issue(f"global_load_dword v249, v248, {sp('ssmk')}")
    V.issue("buffer_store_dword v2, v30, s[92:95], 0 offen sc1")
    V.issue("buffer_store_dword v2, v31, s[92:95], 0 offen sc1", "clr")
    if opt("pl", 1) >= 0: issue(1)
    if "fine0" in OPT: STH()
    KR, VR_, SK = 32, 208, 68
    XG, GW = 72, 88
    A("s_lshl_b32 s13, s13, 7")
    A("s_lshl_b32 s14, s3, 5")
    A("s_add_u32 s13, s13, s14")
    A("v_and_b32 v17, 31, v1")
    A("s_lshl_b32 s14, s12, 5")
    A("v_add_u32 v17, s14, v17")
    A("v_lshlrev_b32 v22, 4, v17")
    A("v_and_b32 v23, 31, v1")
    A("v_mul_u32_u24 v23, 544, v23")
    A("v_lshrrev_b32 v24, 5, v1")
    A("v_lshlrev_b32 v24, 5, v24")
    A("v_sub_u32 v23, v23, v24")
    A("s_lshl_b32 s8, s3, 6")
    A(f"s_sub_u32 s8, {UREG+224}, s8")
    A("v_add_u32 v23, s8, v23")
    A("v_lshrrev_b32 v24, 4, v1")
    A("s_lshl_b32 s8, s3, 4")
    A("v_add_u32 v24, s8, v24")
    A("v_and_b32 v2, 15, v1")
    A("v_lshlrev_b32 v2, 4, v2")
    A("s_lshl_b32 s8, s12, 6")
    A("v_add_u32 v27, s8, v24")
    A("v_lshl_add_u32 v27, v27, 12, v2")
    A("s_lshr_b32 s8, s55, 1")
    A("s_lshl_b32 s8, s8, 8")
    A("s_sub_u32 s8, 3840, s8")
    A("v_add_u32 v27, s8, v27")
    A("v_mul_u32_u24 v24, 272, v24")
    A("v_add_u32 v24, v24, v2")
    A(f"v_add_u32 v24, {UREG:#x}, v24")
    A("s_lshl_b32 s14, s4, 7")
    A("s_lshl_b32 s8, s5, 3")
    A("s_add_u32 s14, s14, s8")
    A("s_lshl_b32 s8, s3, 1")
    A("s_add_u32 s14, s14, s8")
    A("s_lshl_b32 s8, s14, 11")
    A("v_lshlrev_b32 v25, 4, v1")
    A("v_add_u32 v26, s8, v25")
    A("v_add_u32 v3, 0x8000, v27")
    srd(A, 64, "k", 4 << 20)
    srd(A, 68, "v", 4 << 20)
    srd(A, 72, "ws", 4 << 20, WS_KVT)
    srd(A, 76, "ws", 8192, WS_G)
    for i in range(8):
        A(f"s_mov_b32 s{80+i}, {i*4096}")
    NTP = " nt" if "ntp" in OPT else ""
    A("v_lshrrev_b32 v19, 3, v1")
    A("v_add_u32 v19, s13, v19")
    A("v_lshlrev_b32 v19, 11, v19")
    A("v_and_b32 v20, 7, v1")
    A("v_lshl_add_u32 v19, v20, 4, v19")
    A("s_lshl_b32 s8, s12, 7")
    A("v_add_u32 v19, s8, v19")
    A("v_subrev_u32 v20, 16384, v19")
    A("v_lshrrev_b32 v21, 5, v1")
    A("v_lshlrev_b32 v21, 11, v21")
    A("v_and_b32 v18, 31, v1")
    A("v_lshl_add_u32 v21, v18, 2, v21")
    A("s_lshl_b32 s8, s3, 12")
    A(f"s_add_u32 s91, s8, {KREG}")
    A("v_add_u32 v21, s91, v21")
    def kvdma():
        A("s_add_u32 m0, s91, 16384")
        V.issue(f"buffer_load_dwordx4 v20, s[64:67], 0 offen{NTP} lds")
        for i in range(4):
            A(f"s_add_u32 m0, s91, {16384 + 1024*(i+1)}")
            A(f"s_mov_b32 s99, {i*16384}")
            V.issue(f"buffer_load_dwordx4 v19, s[64:67], s99 offen{NTP} lds")
        V.issue(f"global_load_dwordx4 {vr(SK,4)}, v22, {sp('shk')}", "k")
        for i in range(4):
            A(f"s_add_u32 m0, s91, {1024*i}")
            A(f"s_mov_b32 s99, {i*16384}")
            V.issue(f"buffer_load_dwordx4 v19, s[68:71], s99 offen{NTP} lds", "v")
    if opt("pl", 1) < 0:
        kvdma(); issue(1)
    gl = []
    for r in range(2):
        for hh in range(2): gl.append((f"buffer_load_dwordx4 {vr(XG+r*8+hh*4,4)}, v26, s[56:59], 0 offen offset:{r*2048+hh*1024}", None))
    for hh in range(2): gl.append((f"global_load_dwordx4 {vr(GW+hh*4,4)}, v25, {sp('gw')} offset:{hh*1024}", "gate"))
    KF = 96; SP = 136; OUT = 144
    work = []
    def W(x):
        if callable(x): work.append(x)
        else: work.extend(x.split("\n"))
    def rndW(pair, tmp):
        W(f"v_cvt_pk_bf16_f32 v{tmp}, v{pair}, v{pair+1}")
        W(f"v_lshlrev_b32 v{pair}, 16, v{tmp}")
        W(f"v_and_b32 v{pair+1}, s12, v{tmp}")
    W("s_mov_b32 s12, 0xffff0000")
    gate_begin = len(work)
    W(lambda: V.wait("gate"))
    for i in range(8):
        W(f"v_lshlrev_b32 v{96+2*i}, 16, v{GW+i}")
        W(f"v_and_b32 v{97+2*i}, s12, v{GW+i}")
    for r in range(2):
        acc = 112 + r
        W(f"v_mov_b32 v{acc}, 0")
        for i in range(8):
            W(f"v_lshlrev_b32 v116, 16, v{XG+r*8+i}")
            W(f"v_and_b32 v117, s12, v{XG+r*8+i}")
            W(pk("mul", 116, 116, 96+2*i))
            rndW(116, 118)
            W(f"v_add_f32 v{acc}, v{acc}, v116")
            W(f"v_add_f32 v{acc}, v{acc}, v117")
    for r in range(2):
        acc = 112 + r
        for sh in (1, 2, 4, 8):
            W(f"v_add_f32_dpp v{acc}, v{acc}, v{acc} row_shr:{sh} row_mask:0xf bank_mask:0xf bound_ctrl:0")
        W(f"v_add_f32_dpp v{acc}, v{acc}, v{acc} row_bcast:15 row_mask:0xa bank_mask:0xf")
        W(f"v_add_f32_dpp v{acc}, v{acc}, v{acc} row_bcast:31 row_mask:0xc bank_mask:0xf")
    for t in ["v_readlane_b32 s8, v112, 63", "v_readlane_b32 s9, v113, 63", "v_mov_b32 v116, s8", "v_mov_b32 v117, s9",
              "v_cmp_eq_u32 vcc, 1, v1", "v_cndmask_b32 v116, v116, v117, vcc", "v_cvt_pk_bf16_f32 v116, v116, v116",
              "v_lshlrev_b32 v116, 16, v116", "v_mul_f32 v116, 0xbfb8aa3b, v116", "v_exp_f32 v116, v116", "v_add_f32 v116, 1.0, v116",
              "v_rcp_f32 v116, v116", "v_cvt_pk_bf16_f32 v117, v116, v116", "v_lshlrev_b32 v116, 16, v117", "v_sub_f32 v118, 1.0, v116",
              "v_cvt_pk_bf16_f32 v116, v116, v118", "s_lshl_b32 s14, s14, 2", "v_lshl_add_u32 v117, v1, 2, s14"]:
        W(t)
    def gstore():
        A("s_mov_b64 exec, 3")
        V.issue("buffer_store_dword v116, v117, s[76:79], 0 offen sc1", "g")
        A("s_mov_b64 exec, -1")
    W(gstore)
    gate_end = len(work)
    W("KVSTART")
    W(lambda: V.wait("k"))
    for i in range(19):
        W(f"ds_read_b32 v{KR+i}, v21 offset:{16384 + (5+i)*128}")
        if i == 9: W("s_waitcnt lgkmcnt(0)")
    W("s_waitcnt lgkmcnt(0)")
    for i in range(19):
        W(f"v_lshlrev_b32 v{KF+2*i}, 16, v{KR+i}")
        W(f"v_and_b32 v{KF+2*i+1}, s12, v{KR+i}")
    for jx in range(4):
        for cc in range(2):
            src = SK + cc*2 + (jx >> 1)
            W(f"v_and_b32 v{SP+2*jx+cc}, s12, v{src}" if jx & 1 else f"v_lshlrev_b32 v{SP+2*jx+cc}, 16, v{src}")
    W(lambda: V.wait("v"))
    for i in range(16):
        W(f"ds_read_b32 v{VR_+i}, v21 offset:{i*128}")
        if i == 7: W("s_waitcnt lgkmcnt(0)")
    W("s_waitcnt lgkmcnt(0)")
    for t in range(16):
        vv = 176 + (t & 1)*2
        W(f"v_lshlrev_b32 v{vv}, 16, v{VR_+t}")
        W(f"v_and_b32 v{vv+1}, s12, v{VR_+t}")
        if opt("pk", 0) & 2:
            o = OUT + 2*t
            W(f"v_pk_mul_f32 {vr(o,2)}, {vr(KF+2*t,2)}, {vr(SP+6,2)}")
            for jx in (2, 1, 0): W(f"v_pk_fma_f32 {vr(o,2)}, {vr(KF+2*(t+3-jx),2)}, {vr(SP+2*jx,2)}, {vr(o,2)}")
            W(f"v_pk_mul_f32 {vr(o,2)}, {vr(o,2)}, {vr(vv,2)}")
            continue
        for cc in range(2): W(f"v_mul_f32 v{OUT+2*t+cc}, v{KF+2*t+cc}, v{SP+6+cc}")
        for jx in (2, 1, 0):
            for cc in range(2): W(f"v_fmac_f32 v{OUT+2*t+cc}, v{KF+2*(t+3-jx)+cc}, v{SP+2*jx+cc}")
        for cc in range(2): W(f"v_mul_f32 v{OUT+2*t+cc}, v{OUT+2*t+cc}, v{vv+cc}")
    for cc in range(2):
        for hf in range(2):
            d = 192 + (cc*2+hf)*4
            for m in range(4):
                mm = hf*4 + m
                W(f"v_cvt_pk_bf16_f32 v{d+m}, v{OUT+2*(15-2*mm)+cc}, v{OUT+2*(14-2*mm)+cc}")
            W(f"ds_write_b128 v23, {vr(d,4)} offset:{cc*272+hf*16}")
    W("s_waitcnt lgkmcnt(0)")
    W("BARRIER")
    for i in range(4): W(f"ds_read_b128 {vr(192+4*i,4)}, v24 offset:{i*4*272}")
    KVL = "nokvl" not in OPT
    def kvstores():
        def block(pol):
            for i in range(4):
                A(f"s_waitcnt lgkmcnt({3-i})")
                V.issue(f"buffer_store_dwordx4 {vr(192+4*i,4)}, v{27 if i < 2 else 3}, s[72:75], s{80+4*(i&1)} offen{pol}", "kvt")
        if not KVL:
            block(" sc1"); return
        V.wait("cls")
        local_check(A, 247, 246, 96, 98)
        A("s_cbranch_scc0 h_kvl")
        n0 = V.n
        block(" sc1")
        A("s_branch h_kve")
        A("h_kvl:")
        V.n = n0
        block("")
        A("h_kve:")
    W(kvstores)
    kv_end = len(work)
    if "kvfirst" in OPT:
        gate_part = work[gate_begin:gate_end]
        del work[gate_begin:gate_end]
        work.extend(gate_part)
    wpos = [0]
    blocked = [False]
    cur = [0]
    PL = opt("pl", 1)
    KVW = PL + opt("kvd", 3)
    def do_work(n):
        while n > 0 and wpos[0] < len(work) and not blocked[0]:
            w = work[wpos[0]]
            wpos[0] += 1
            if w == "BARRIER":
                blocked[0] = True; return
            if w == "KVSTART":
                if cur[0] < KVW:
                    wpos[0] -= 1; return
                continue
            if callable(w): w()
            elif "ablkv" in OPT and w.startswith("v_") and wpos[0] > gate_end and wpos[0] < kv_end: pass
            else: A(w)
            n -= 1
    PREP0 = opt("prep0", 1)
    UL = 40
    ACC = 64; BF = 96; AFR = 160; KD = 224
    def setup_conv(A):
        A("s_lshl_b32 s12, s88, 12")
        srd(A, 64, "ssmk", 4096, off_sreg=12)
        srd(A, 68, "ws", 4096, WS_KVT, off_sreg=12)
        A("s_mov_b32 s80, s100")
        A("s_mov_b32 s81, s101")
        A("v_and_b32 v37, 15, v1")
        A("s_lshr_b32 s8, s88, 6")
        A("s_and_b32 s8, s8, 1")
        A("s_lshl_b32 s8, s8, 3")
        A("s_add_u32 s8, s8, s54")
        A("v_lshl_add_u32 v32, v37, 4, s8")
        A("s_lshr_b32 s8, s4, 2")
        A("s_lshl_b32 s8, s8, 1")
        A("s_and_b32 s9, s4, 3")
        A("s_lshl_b32 s9, s9, 3")
        A("s_add_u32 s8, s8, s9")
        A("v_lshrrev_b32 v38, 3, v37")
        A("v_and_b32 v39, 7, v37")
        A("v_lshl_add_u32 v38, v39, 5, v38")
        A("v_add_u32 v38, s8, v38")
        A("v_and_b32 v39, 16, v1")
        A("v_cmp_ne_u32 vcc, 0, v39")
        A("v_cndmask_b32 v32, v32, v38, vcc")
        A("v_lshlrev_b32 v32, 7, v32")
        A(f"v_add_u32 v32, {KF_OFF:#x}, v32")
        A("v_lshlrev_b32 v33, 2, v1")
        srd(A, 76, "dbg", 256)
        A(f"s_mul_i32 s13, s3, 8320")
        A(f"s_add_u32 s13, s13, {KREG}")
        A(f"s_mul_i32 s82, s3, 4608")
        A(f"s_add_u32 s82, s82, {UREG}")
        A("v_add_u32 v36, 2, v25")
        A("v_and_b32 v38, 7, v1")
        A("v_lshlrev_b32 v38, 2, v38")
        A("v_bfe_u32 v39, v1, 3, 1")
        A("v_mul_u32_u24 v39, 4160, v39")
        A("v_add3_u32 v38, v38, v39, s13")
        A("s_lshl_b32 s80, s80, 16")
        A("v_mov_b32 v56, s80")
        A("v_cmp_eq_u32 vcc, 15, v37")
        A("v_cndmask_b32 v56, 0, v56, vcc")
        A("ds_write_b32 v38, v56")
        A("s_and_b32 s14, s88, 1")
        A("s_lshl_b32 s14, s14, 4")
        A("s_lshr_b32 s81, s81, s14")
        A("s_lshl_b32 s81, s81, 16")
        A(f"v_mov_b32 v60, {LFLAG:#x}")
        A("v_mov_b32 v61, 1")
    def setup_late(A):
        A("v_lshrrev_b32 v5, 4, v1")
        A("v_and_b32 v37, 15, v1")
        A("v_lshl_add_u32 v38, v5, 3, v37")
        A("v_lshlrev_b32 v38, 1, v38")
        A("v_and_b32 v39, 1, v1")
        A("v_mul_u32_u24 v39, 4158, v39")
        A("v_sub_u32 v38, v38, v39")
        A("s_add_u32 s14, s13, 4160")
        A("v_add_u32 v16, s14, v38")
        for i in range(1, 4): A(f"v_add_u32 v{16+i}, {1024*i}, v16")
        A("v_lshlrev_b32 v38, 5, v37")
        A("v_lshlrev_b32 v39, 4, v5")
        A("v_sub_u32 v20, v39, v38")
        A("s_add_u32 s14, s82, 480")
        A("v_add_u32 v20, s14, v20")
        A("v_lshl_add_u32 v39, v5, 3, v38")
        A("s_add_u32 s14, s82, 504")
        A("v_sub_u32 v21, s14, v39")
        A("v_and_b32 v39, 1, v5")
        A("v_lshl_add_u32 v22, v39, 9, v38")
        A("v_lshrrev_b32 v39, 1, v5")
        A("v_lshl_add_u32 v22, v39, 4, v22")
        A("v_add_u32 v23, s82, v25")
    setup_conv(W)
    print("prep work items", len(work))
    def cissue(st):
        tile_of(A, st >> 1, 11)
        A("s_lshl_b32 s11, s11, 7")
        sr_ = "s[56:59]" if st % 2 == 0 else "s[60:63]"
        A("s_add_u32 s99, s11, s91")
        A(f"s_add_u32 m0, s10, {(st % NS2)*16384:#x}")
        for n in range(2):
            V.issue(f"buffer_load_dwordx4 v{VC+n}, {sr_}, s99 offen offset:{n*1024} lds")
        A("s_add_u32 s11, s11, s90")
        A(f"s_add_u32 m0, s10, {(st % NS2)*16384 + 8192:#x}")
        for n in range(2):
            V.issue(f"buffer_load_dwordx4 v{VC+n}, {sr_}, s11 offen offset:{n*1024} lds", ("C", st))
    def uloads():
        for i in range(4): A(f"buffer_load_dwordx4 {vr(UL+4*i,4)}, v25, s[68:71], 0 offen offset:{i*1024} sc1")
    def ctouch():
        A("s_cmp_ge_u32 s3, 2")
        A(f"s_cselect_b32 s96, s{P['Cim']}, s{P['Cre']}")
        A(f"s_cselect_b32 s97, s{P['Cim']+1}, s{P['Cre']+1}")
        A("s_lshl_b32 s98, s2, 13")
        A("s_and_b32 s99, s3, 1")
        A("s_lshl_b32 s99, s99, 12")
        A("s_add_u32 s98, s98, s99")
        A("v_and_b32 v240, 31, v1")
        if "km" in OPT:
            A("s_add_u32 s96, s96, s98")
            A("s_addc_u32 s97, s97, 0")
            A("s_lshl_b32 s98, s88, 12")
            A(f"s_add_u32 s98, s{P['ssmk']}, s98")
            A(f"s_addc_u32 s99, s{P['ssmk']+1}, 0")
            A("v_mov_b32 v242, s96")
            A("v_mov_b32 v243, s97")
            A("v_mov_b32 v244, s98")
            A("v_mov_b32 v245, s99")
            A("v_cmp_lt_u32 s[96:97], 31, v1")
            A("v_cndmask_b32 v242, v242, v244, s[96:97]")
            A("v_cndmask_b32 v243, v243, v245, s[96:97]")
            A("v_lshlrev_b32 v240, 7, v240")
            A("v_add_co_u32 v242, s[96:97], v242, v240")
            A("v_addc_co_u32 v243, s[96:97], 0, v243, s[96:97]")
            V.issue("global_load_dword v241, v[242:243], off")
        else:
            A("v_lshl_add_u32 v240, v240, 7, s98")
            V.issue("global_load_dword v241, v240, s[96:97]")
    FILL = opt("fill", 10)
    kst = [None]
    KW = opt("kw", 2)
    CHK = opt("chk", 13)
    KFS = opt("kfs", 12)
    KDS = opt("kds", 11)
    UWS = opt("uws", 14)
    WEND = min(KFS, KDS, 12)
    CM = opt("cm", 6)
    assert CHK < UWS <= 15 and opt("lates", 14) <= UWS
    nU = [0]; cdone = [0]
    NC0 = opt("nc0", 2)
    A(f"v_mov_b32 v6, {LFLAG:#x}")
    A("v_mov_b32 v7, 0")
    for o in (4, 8, 12, 16, 20) + ((24, 28, 32, 36) if "pz" in OPT else ()): A(f"ds_write_b32 v6, v7 offset:{o}")
    ST()
    A("s_waitcnt lgkmcnt(0)")
    V.wait("clr")
    ST()
    if "fine0" in OPT: STH()
    A("s_barrier")
    issue(2)
    if "fine0" in OPT: STH()
    for t, tag in gl: V.issue(t, tag)
    for s in range(N1):
        V.wait(("S", min(s+1, N1-1)))
        if kst[0] is not None and s == min(kst[0] + KW, 15): V.wait("kvt"); V.wait("g")
        if "fine1" in OPT: STH()
        A("s_barrier")
        if kst[0] is not None and s == min(kst[0] + KW, 15):
            A("s_cmp_lg_u32 s3, 0")
            A("s_cbranch_scc1 h_kflag")
            A("v_mov_b32 v6, 1")
            A("buffer_store_dword v6, v30, s[92:95], 0 offen sc1")
            A("h_kflag:")
            print("k flag after barrier", s+1)
        blocked[0] = False
        cur[0] = s
        FM = opt("fmode", 0)
        fl = opt("fill0", FILL) if s < opt("fill0n", 0) else FILL
        if s+3 < N1 and FM == 0: issue(s+3, fl if s >= PREP0 else 0)
        elif s+3 < N1 and FM == 1:
            issue(s+3)
            if s >= PREP0: do_work(8*FILL)
        if s == PL - 100: pass
        if s == PL and PL >= 0: kvdma()
        if s == CM: ctouch()
        if KVL and s == opt("cls", 6):
            A("v_lshlrev_b32 v246, 2, v1")
            V.issue(f"global_load_dword v247, v246, {sp('dbg')} sc1", "cls")
        if kst[0] is None and "kvt" in V.tags and "g" in V.tags: kst[0] = s
        if s == WEND:
            do_work(10000)
            assert wpos[0] == len(work), (wpos[0], len(work))
        if s == KFS:
            V.issue("buffer_load_dword v34, v33, s[76:79], 0 offen sc1")
            V.issue("buffer_load_dword v35, v32, s[92:95], 0 offen sc1", "kf")
            ST()
        if s == KDS and KDS < CHK:
            V.wait("g")
            A("s_add_u32 m0, s13, 32")
            for i in range(4): V.issue(f"buffer_load_dwordx4 v25, s[64:67], 0 offen offset:{i*1024}{NTP} lds")
            A("s_add_u32 m0, s13, 4192")
            for i in range(4): V.issue(f"buffer_load_dwordx4 v36, s[64:67], 0 offen offset:{i*1024}{NTP} lds", "K")
        if s == 13:
            srd(A, 56, "Cre", 2 << 20)
            srd(A, 60, "Cim", 2 << 20)
            A("s_lshl_b32 s10, s3, 11")
            A(f"s_add_u32 s10, s10, {CRING:#x}")
            A("s_lshr_b32 s90, s5, 3")
            A("s_xor_b32 s91, s90, 1")
            A("s_lshl_b32 s91, s91, 20")
            A("s_lshl_b32 s11, s90, 10")
            A("s_add_u32 s91, s91, s11")
            A("s_mul_i32 s90, s90, 0x100400")
            A("v_mov_b32 v56, 0")
            A("v_mov_b32 v57, 0")
            A("v_lshlrev_b32 v38, 3, v1")
            A("v_add_u32 v38, s82, v38")
            A("ds_write_b64 v38, v[56:57] offset:4096")
            ST()
        if s == CHK:
            V.wait("kf")
            A("s_mov_b32 s83, 0")
            A("v_and_b32 v34, 15, v34")
            A("v_cmp_ne_u32 vcc, 15, v34")
            A("v_cmp_ne_u32 s[84:85], 1, v35")
            A("s_or_b64 vcc, vcc, s[84:85]")
            A("s_cbranch_scc1 h_nou")
            A("s_mov_b32 s83, 1")
            uloads()
            A("h_nou:")
            nU[0] = V.n
        if s == KDS and KDS >= CHK:
            V.wait("g")
            A("s_add_u32 m0, s13, 32")
            for i in range(4): V.issue(f"buffer_load_dwordx4 v25, s[64:67], 0 offen offset:{i*1024}{NTP} lds")
            A("s_add_u32 m0, s13, 4192")
            for i in range(4): V.issue(f"buffer_load_dwordx4 v36, s[64:67], 0 offen offset:{i*1024}{NTP} lds", "K")
        if s == opt("lates", 14): setup_late(A)
        if s == 15:
            for z in range(NC0): cissue(z)
            cdone[0] = NC0
        if s == UWS:
            A("s_cmp_lg_u32 s83, 1")
            A("s_cbranch_scc1 h_nouw")
            A(f"s_waitcnt vmcnt({V.n - nU[0]})")
            for i in range(4): A(f"ds_write_b128 v23, {vr(UL+4*i,4)} offset:{1024*i}")
            A("h_nouw:")
    ST()
    if "hprio1" in OPT: A("s_setprio 0")
    A("s_cmp_lg_u32 s83, 0")
    A("s_cbranch_scc1 h_haveu")
    spin_all(A, "h_init", 34, "buffer_load_dword v34, v33, s[76:79], 0 offen sc1", "15", pre="v_and_b32 v34, 15, v34")
    spin_all(A, "h_kf", 35, "buffer_load_dword v35, v32, s[92:95], 0 offen sc1")
    uloads()
    A("s_waitcnt vmcnt(0)")
    for i in range(4): A(f"ds_write_b128 v23, {vr(UL+4*i,4)} offset:{1024*i}")
    A("h_haveu:")
    V.done = max(V.done, nU[0])
    V.wait("K")
    if "lowp" in OPT: A("s_setprio 1")
    lds_inc(A, 60, 61, 8)
    for i in range(4): A(f"s_mov_b32 s{84+i}, s{68+i}")
    srd(A, 68, "ws", 4 << 20, WS_KVT)
    A("s_waitcnt lgkmcnt(0)")
    ST()
    L = LQ(A)
    ops = []
    def reads(r):
        R = []
        s = r & 1
        for i in range(8):
            R.append((f"ds_read_b128 {vr(BF+s*32+i*4,4)}, v20 offset:{3584-512*i+64*r}", ("B", r, i)))
            o = 128*(i & 1) + 16*r
            d = AFR + s*32 + i*4
            R.append((f"ds_read2_b32 {vr(d,2)}, v{16+(i>>1)} offset0:{o} offset1:{o+1}", None))
            R.append((f"ds_read2_b32 {vr(d+2,2)}, v{16+(i>>1)} offset0:{o+2} offset1:{o+3}", ("A", r, i)))
        return R
    def first_order(R):
        return R[1:3] + [R[3*i] for i in range(8)] + [x for i in range(1, 8) for x in R[3*i+1:3*i+3]]
    KVT = 40
    for n in range(8): ops.append(("rd", f"ds_read_b64 {vr(KVT+2*n,2)}, v21 offset:{3584-512*n}", ("KV", n)))
    for t, tag in first_order(reads(0)): ops.append(("rd", t, tag))
    fill = []
    fill.append(("s_mov_b32 s12, 0xffff0000", None)); fill.append(("v_mov_b32 v26, s81", None))
    for n in range(8):
        k = KD + 4*n
        c = [f"v_and_b32 v{k}, s12, v{KVT+2*n+1}", f"v_lshlrev_b32 v{k+1}, 16, v{KVT+2*n+1}", f"v_and_b32 v{k+2}, s12, v{KVT+2*n}", f"v_lshlrev_b32 v{k+3}, 16, v{KVT+2*n}"]
        c += [f"v_mul_f32 v{k+i}, v{k+i}, v26" for i in range(4)]
        c += [f"v_cvt_pk_bf16_f32 v56, v{k}, v{k+1}", f"v_cvt_pk_bf16_f32 v57, v{k+2}, v{k+3}",
              f"v_lshlrev_b32 v{k}, 16, v56", f"v_and_b32 v{k+1}, s12, v56", f"v_lshlrev_b32 v{k+2}, 16, v57", f"v_and_b32 v{k+3}, s12, v57"]
        for i, t in enumerate(c): fill.append((t, ("KV", n) if i == 0 else None))
    YD = 40
    def post(n):
        y = ACC + 4*n; k = KD + 4*n
        d = YD + (n >> 1)*4 + (n & 1)*2
        c = [f"v_cvt_pk_bf16_f32 v56, v{y}, v{y+1}", f"v_cvt_pk_bf16_f32 v57, v{y+2}, v{y+3}",
             f"v_lshlrev_b32 v{y}, 16, v56", f"v_and_b32 v{y+1}, s12, v56", f"v_lshlrev_b32 v{y+2}, 16, v57", f"v_and_b32 v{y+3}, s12, v57"]
        c += [f"v_add_f32 v{k+i}, v{k+i}, v{y+i}" for i in range(4)]
        c += [f"v_cvt_pk_bf16_f32 v{d}, v{k}, v{k+1}", f"v_cvt_pk_bf16_f32 v{d+1}, v{k+2}, v{k+3}"]
        if n & 1:
            d = YD + (n >> 1)*4
            c += [f"v_permlane16_swap_b32 v{d}, v{d+2}", f"v_permlane16_swap_b32 v{d+1}, v{d+3}"]
            if "yinl" in OPT: c += [f"YST{n >> 1}"]
        return c
    ystores = [f"buffer_store_dwordx4 {vr(YD+4*k,4)}, v22, s[84:87], 0 offen offset:{k*1024} sc1" for k in range(4)]
    LATEC = opt("latec", 170)
    CFM = opt("cfm", 80)
    FPM = opt("fpm", 2)
    nmf = 0
    postq = []
    for r in range(8):
        s = r & 1
        nxt = first_order(reads(r+1)) if r < 7 else []
        cnt = 0
        for q in range(8):
            for n in range(q, 8):
                c = vr(ACC+4*n, 4)
                ops.append(("mf", f"v_mfma_f32_16x16x32_bf16 {c}, {vr(AFR+s*32+4*q,4)}, {vr(BF+s*32+4*(n-q),4)}, {'0' if (r == 0 and q == 0) else c}",
                            [("A", r, q), ("B", r, n-q)]))
                nmf += 1; cnt += 1
                if nxt and cnt >= 2:
                    t, tag = nxt.pop(0); ops.append(("rd", t, tag))
                elif r < 7:
                    for z in range(FPM):
                        if fill: ops.append(("fill",) + fill.pop(0))
                if "pz" in OPT and opt("pz0", 90) <= nmf <= opt("pz1", 250) and (nmf - opt("pz0", 90)) % opt("pzs", 12) == 0:
                    ops.append(("pzr", nmf))
                if "pz" in OPT and opt("pz0", 90) <= nmf - 6 <= opt("pz1", 250) and (nmf - 6 - opt("pz0", 90)) % opt("pzs", 12) == 0:
                    ops.append(("pzc", nmf - 6))
                if nmf == LATEC: ops.append(("latec",))
                if nmf == CFM: ops.append(("cf",))
                if nmf == opt("cf2m", 240) and FBAR > 1: ops.append(("cf2",))
                if r == 7:
                    if n == q: postq += [(nmf + 3, t) for t in post(n)]
                    for z in range(opt("ppm", 3)):
                        if postq and postq[0][0] <= nmf and q < 7: ops.append(("fill", postq.pop(0)[1], None))
        assert not nxt
    assert not fill and CFM < LATEC
    for _, t in postq: ops.append(("fill", t, None))
    pzslow = []
    if "pz" in OPT:
        A("s_lshl_b32 s8, s3, 2")
        A(f"s_add_u32 s8, s8, {LFLAG:#x}")
        A("v_mov_b32 v62, s8")
    AB = int(OPT.get("ablc", 0))
    for op in ops:
        if AB & 1 and op[0] in ("rd", "mf", "fill"): continue
        if op[0] == "rd": L.issue(op[1], op[2])
        elif op[0] == "mf":
            for t in op[2]: pass
            k = max(op[2], key=lambda t: L.tags[t])
            L.wait(k)
            A(op[1])
        elif op[0] == "fill":
            if op[2] is not None: L.wait(op[2])
            if op[1].startswith("YST"): V.issue(ystores[int(op[1][3:])], "y2")
            else: A(op[1])
        elif op[0] == "pzr": L.issue("ds_read_b32 v63, v62 offset:24", ("Z", op[1]))
        elif op[0] == "pzc":
            L.wait(("Z", op[1]))
            A("v_readfirstlane_b32 s83, v63")
            A("s_cmp_lg_u32 s83, 0")
            A(f"s_cbranch_scc1 h_pz{op[1]}_s")
            A(f"h_pz{op[1]}:")
            pzslow.append(op[1])
        elif op[0] == "latec":
            while cdone[0] < NS2: cissue(cdone[0]); cdone[0] += 1
        elif op[0] == "cf2":
            V.wait(("C", 3))
            lds_inc(A, 60, 61, 20); L.n += 1
        elif op[0] == "cf":
            while cdone[0] < 2: cissue(cdone[0]); cdone[0] += 1
            V.wait(("C", 1))
            lds_inc(A, 60, 61, 16); L.n += 1
    ST()
    if "lowp" in OPT: A("s_setprio 0")
    YST = opt("yst", 0)
    if YST == 0 and "yinl" not in OPT:
        for t in ystores:
            if AB & 2: V.tags["y2"] = V.n
            else: V.issue(t, "y2")
    A("v_lshrrev_b32 v8, 4, v1")
    A("s_lshl_b32 s8, s3, 4")
    A("v_add_u32 v8, s8, v8")
    A("v_and_b32 v11, 15, v1")
    A("s_lshl_b32 s9, s5, 11")
    A(f"s_add_u32 s9, s9, {YF_OFF:#x}")
    A("v_lshl_add_u32 v10, v11, 7, s9")
    A("v_lshlrev_b32 v11, 4, v11")
    A("v_mul_u32_u24 v9, 272, v8")
    A("v_add_u32 v9, v9, v11")
    A("s_lshl_b32 s8, s5, 6")
    A("v_add_u32 v8, s8, v8")
    A("v_lshl_add_u32 v8, v8, 12, v11")
    A("s_lshl_b32 s8, s4, 8")
    A("v_add_u32 v8, s8, v8")
    ST()
    YR = 116
    YFL_LD = "buffer_load_dword v19, v10, s[92:95], 0 offen sc1"
    YFL, GYF, GYL, GYW = opt("yfl", 5), opt("gyf", 8), opt("gyl", 10), opt("gyw", 12)
    for st in range(FBAR, N2-1):
        V.wait(("C", st+1))
        if "fineh" in OPT: STH()
        A("s_barrier")
        if st == FBAR:
            for z in range(NS2, FBAR + NS2): cissue(z)
        elif st + NS2 - 1 < N2: cissue(st + NS2 - 1)
        if "abl" in OPT and st >= 2 and st < 13 and int(OPT["abl"]) & 1:
            continue_ = True
            for tg in ("y2", "xt", "yf", "eps"): V.tags.setdefault(tg, 0)
            continue
        if YST and st == YST:
            for t in ystores: V.issue(t, "y2")
        if st == YFL:
            V.wait("y2")
            A("s_mov_b64 exec, 1")
            A("ds_add_rtn_u32 v62, v60, v61 offset:4")
            A("s_mov_b64 exec, -1")
            A("s_waitcnt lgkmcnt(0)")
            A("v_readfirstlane_b32 s83, v62")
            A("s_cmp_lg_u32 s83, 3")
            A("s_cbranch_scc1 h_noy")
            A("buffer_store_dword v61, v31, s[92:95], 0 offen sc1")
            A("h_noy:")
        if st == GYF: V.issue(YFL_LD, "yf")
        if st == GYL:
            V.wait("yf")
            spin_all(A, "h_yf", 19, YFL_LD)
            for i in range(4):
                A(f"s_mov_b32 s8, {i*16384}")
                V.issue(f"buffer_load_dwordx4 {vr(YR+i*4,4)}, v8, s[68:71], s8 offen sc1", "eps")
        if st == GYW:
            V.wait("eps")
            for i in range(4): A(f"ds_write_b128 v9, {vr(YR+i*4,4)} offset:{i*4*272}")
            A("s_waitcnt lgkmcnt(0)")
    assert YST < YFL < GYF < GYL < GYW <= N2 - 3
    STH.flush()
    ST.flush()
    A("s_endpgm")
    for k in pzslow:
        A(f"h_pz{k}_s:")
        A(f"s_mov_b32 s89, {SPIN*4}")
        A(f"h_pz{k}_l:")
        A("s_sleep 1")
        A("ds_read_b32 v63, v62 offset:24")
        A("s_waitcnt lgkmcnt(0)")
        A("v_readfirstlane_b32 s83, v63")
        A("s_cmp_eq_u32 s83, 0")
        A(f"s_cbranch_scc1 h_pz{k}")
        A("s_sub_u32 s89, s89, 1")
        A(f"s_cbranch_scc1 h_pz{k}")
        A(f"s_branch h_pz{k}_l")

def build():
    s = header_comments()
    s += "; generated by tools/gen9.py (fused single kernel, split-K GEMM2; gen8 h layout)\n"
    s += "; @launch grid=(256,1,1) block=(512,1,1) lds=163840\n"
    s += '.amdgcn_target "amdgcn-amd-amdhsa--gfx950"\n.text\n'
    A = Asm()
    A.raw(f".globl {KN}\n.p2align 8\n.type {KN},@function")
    gen_kernel(A)
    s += A.render()
    s += descriptor(KN, 256, 102)
    import subprocess, tempfile, re
    with tempfile.TemporaryDirectory() as td:
        open(td + "/a.s", "w").write(s.replace("CODE_LAST", "0x12345"))
        subprocess.run(["clang", "-x", "assembler", "-target", "amdgcn-amd-amdhsa", "-mcpu=gfx950", "-c", td + "/a.s", "-o", td + "/a.o"], check=True)
        o = subprocess.run(["llvm-objdump", "-h", td + "/a.o"], capture_output=True, text=True).stdout
    size = int(re.search(r"\.text\s+([0-9a-f]+)", o).group(1), 16)
    if "al8" in OPT:
        pat = {"1": ("v_mfma_f32_32x32",), "2": ("v_mfma",), "3": ("v_mfma", "ds_read_b128", "ds_read_b64_tr", "buffer_load_dwordx4")}[str(OPT["al8"])]
        with tempfile.TemporaryDirectory() as td:
            open(td + "/a.s", "w").write(s.replace("CODE_LAST", "0x12345"))
            subprocess.run(["clang", "-x", "assembler", "-target", "amdgcn-amd-amdhsa", "-mcpu=gfx950", "-c", td + "/a.s", "-o", td + "/a.o"], check=True)
            d = subprocess.run(["llvm-objdump", "-d", td + "/a.o"], capture_output=True, text=True).stdout
        sizes = [4 * len(m.group(1).split()) for m in re.finditer(r"// [0-9A-F]+: ([0-9A-F ]+)$", d, re.M)]
        out = []; addr = 0; k = 0; incode = False; nins = 0
        for ln in s.split("\n"):
            st = ln.strip()
            if st == f"{KN}:": incode = True
            if st.startswith(".section"): incode = False
            if incode and ln.startswith("    ") and st and not st.startswith(";"):
                sz = sizes[k]; k += 1
                if sz == 8 and addr % 8 == 4 and st.startswith(pat):
                    out.append("    s_nop 0"); addr += 4; nins += 1
                addr += sz
            out.append(ln)
        assert k == len(sizes), (k, len(sizes))
        s = "\n".join(out); size = addr
        print("alignment nops", nins)
    if "shift" in OPT:
        s = s.replace(f"{KN}:\n", f"{KN}:\n" + "    s_nop 0\n" * int(OPT["shift"]), 1); size += 4 * int(OPT["shift"])
    print("code bytes", size)
    assert size <= 65536
    return s.replace("CODE_LAST", hex(size - 4))

if __name__ == "__main__":
    out = sys.argv[1] if len(sys.argv) > 1 and not sys.argv[1].startswith("--") else os.path.join(os.path.dirname(os.path.abspath(__file__)), "..", NAME + ".s")
    open(out, "w").write(build())
    print("wrote", out)
```

```python
import sys, os
sys.path.insert(0, os.path.dirname(os.path.abspath(__file__)))
from asmlib import Asm
from gen import (NAME, P, sp, vr, sr, load_kernargs, srd, pk, cmul, tile_ids, Stamper, OPT, header_comments, descriptor)
import gen

KN = NAME + "_kernel"
WS_H    = 0
WS_KVT  = 8 << 20
WS_G    = 16 << 20
WS_EBOX = 17 << 20
WS_FLG  = 18 << 20
HF_OFF  = 0
KF_OFF  = 128 << 10
YF_OFF  = 160 << 10
PF_OFF  = 192 << 10
FLG_SZ  = 320 << 10
WS_PART = 24 << 20
N1 = 16
N2 = 16
NS2 = 4
PD = 4
CRING = 32768
KREG = 98304
UREG = KREG + 4*8320
LFLAG = UREG + 4*4608
SPIN = int(OPT.get("spin", 1 << 16))
SLEEP = int(OPT.get("sleep", 4))
def opt(k, d): return int(OPT.get(k, d))

class VQ:
    def __init__(self, A): self.A = A; self.n = 0; self.tags = {}; self.done = 0
    def issue(self, text, tag=None):
        self.A(text); self.n += 1
        if tag is not None: self.tags[tag] = self.n
    def wait(self, tag):
        k = self.tags[tag]
        if k <= self.done: return
        cnt = min(63, self.n - k)
        self.A(f"s_waitcnt vmcnt({cnt})"); self.done = self.n - cnt
    def drained(self): self.done = self.n

class LQ:
    def __init__(self, A): self.A = A; self.n = 0; self.tags = {}; self.done = 0
    def issue(self, text, tag=None):
        self.A(text); self.n += 1
        if tag is not None: self.tags[tag] = self.n
    def wait(self, tag):
        k = self.tags[tag]
        if k > self.done:
            self.A(f"s_waitcnt lgkmcnt({min(15, self.n - k)})"); self.done = max(k, self.n - 15)
    def drain(self):
        self.A("s_waitcnt lgkmcnt(0)"); self.done = self.n

def spin_all(A, name, vreg, reload, cmpval="1", sctr=89, pre=None):
    A(f"s_mov_b32 s{sctr}, {SPIN}")
    A(f"{name}_chk:")
    if pre: A(pre)
    A(f"v_cmp_ne_u32 vcc, {cmpval}, v{vreg}")
    A("s_cmp_eq_u64 vcc, 0")
    A(f"s_cbranch_scc1 {name}_ok")
    A(f"s_sub_u32 s{sctr}, s{sctr}, 1")
    A(f"s_cbranch_scc1 {name}_ok")
    A(f"s_sleep {SLEEP}")
    A(reload)
    A("s_waitcnt vmcnt(0)")
    A(f"s_branch {name}_chk")
    A(f"{name}_ok:")

def lds_spin(A, name, vaddr, off, vtmp, target, stmp=8, sctr=89):
    A(f"s_mov_b32 s{sctr}, {SPIN*4}")
    A(f"{name}:")
    A(f"ds_read_b32 v{vtmp}, v{vaddr} offset:{off}")
    A("s_waitcnt lgkmcnt(0)")
    A(f"v_readfirstlane_b32 s{stmp}, v{vtmp}")
    A(f"s_cmp_ge_u32 s{stmp}, {target}")
    A(f"s_cbranch_scc1 {name}_ok")
    A(f"s_sub_u32 s{sctr}, s{sctr}, 1")
    A(f"s_cbranch_scc0 {name}")
    A(f"{name}_ok:")

def lds_inc(A, vaddr, vone, off):
    A("s_mov_b64 exec, 1")
    A(f"ds_add_u32 v{vaddr}, v{vone} offset:{off}")
    A("s_mov_b64 exec, -1")

def zip_chains(A, chains):
    chains = [[x for t in c for x in t.split("\n")] for c in chains]
    for i in range(max(len(c) for c in chains)):
        for c in chains:
            if i < len(c): A(c[i])

def local_check(A, vbits, vtmp, sdst_pair, stmp):
    A(f"s_getreg_b32 s{stmp}, hwreg(HW_REG_XCC_ID, 0, 4)")
    A(f"s_lshl_b32 s{stmp}, 0x100, s{stmp}")
    A(f"s_or_b32 s{stmp}, s{stmp}, 15")
    A(f"v_and_b32 v{vtmp}, 7, v1")
    A(f"v_cmp_eq_u32 s[{sdst_pair}:{sdst_pair+1}], s54, v{vtmp}")
    A(f"v_cmp_ne_u32 vcc, s{stmp}, v{vbits}")
    A(f"s_and_b64 vcc, vcc, s[{sdst_pair}:{sdst_pair+1}]")

SNT = opt("snt", 1)
PB = opt("pb", 1)
NPQ = 4 if PB else 8
FBAR = opt("fb", 2)
OS = str(OPT.get("os", "_nt")).replace("_", " ")
ORD = opt("ord", 1)
def tile_of(A, i, dst):
    if i == 0: A(f"s_mov_b32 s{dst}, s15")
    elif ORD:
        A(f"s_cmp_le_u32 s15, {i-1}")
        A(f"s_cselect_b32 s{dst}, {i}, {i-1}")
    else:
        A(f"s_add_u32 s{dst}, s15, {i}")
        A(f"s_and_b32 s{dst}, s{dst}, 7")

def gen_kernel(A):
    A(f"{KN}:")
    A("s_cmp_ge_u32 s2, 256")
    A("s_cbranch_scc1 L_end")
    load_kernargs(A)
    tile_ids(A)
    A("v_and_b32 v1, 63, v0")
    A("v_lshrrev_b32 v2, 6, v0")
    A("s_and_b32 s15, s5, 7")
    A("v_readfirstlane_b32 s3, v2")
    A("s_cmp_ge_u32 s3, 4")
    A("s_cbranch_scc0 L_consumer")
    helper(A)
    A("L_consumer:")
    consumer(A)
    A("L_end:")
    A("s_endpgm")


def consumer(A):
    ACC = 64
    FA, FB = 128, 144
    AD, BD = 160, 168
    LAM, C2, MU, MU2, MU4, MU8 = 176, 178, 180, 182, 184, 186
    EL = 192
    UR2 = 224
    ST = Stamper(A, 0, 63)
    ST()
    A(f"s_setprio {opt('prio', 2)}")
    A("s_and_b32 s6, s3, 1")
    A("s_lshr_b32 s7, s3, 1")
    A("v_and_b32 v4, 31, v1")
    A("s_lshl_b32 s8, s5, 6")
    A("s_lshl_b32 s9, s7, 5")
    A("s_add_u32 s8, s8, s9")
    A("v_add_u32 v3, s8, v4")
    A("v_lshlrev_b32 v5, 1, v3")
    A("v_lshrrev_b32 v6, 5, v1")
    A("s_lshl_b32 s10, s4, 1")
    A("s_add_u32 s10, s10, s6")
    if "nocode" not in OPT:
        A("s_getpc_b64 s[12:13]")
        A("c_pc:")
        A(f"s_sub_u32 s12, s12, c_pc-{KN}")
        A("s_subb_u32 s13, s13, 0")
        if opt("cpf", 1) == 0:
            A("s_lshl_b32 s11, s3, 14")
            A("v_lshl_add_u32 v24, v1, 7, s11")
            A("v_min_u32 v24, CODE_LAST, v24")
            A("global_load_dword v25, v24, s[12:13]")
            A("v_add_u32 v24, 0x2000, v24")
            A("v_min_u32 v24, CODE_LAST, v24")
            A("global_load_dword v26, v24, s[12:13]")
        else:
            A("s_lshl_b32 s11, s55, 2")
            A("s_add_u32 s11, s11, s3")
            A("s_lshl_b32 s11, s11, 9")
            A("v_and_b32 v24, 3, v1")
            A("v_lshl_add_u32 v24, v24, 7, s11")
            A("v_min_u32 v24, CODE_LAST, v24")
            A("global_load_dword v25, v24, s[12:13]")
    A("s_waitcnt lgkmcnt(0)")
    A(f"global_load_ushort v8, v5, {sp('Lre')}")
    A(f"global_load_ushort v9, v5, {sp('Lim')}")
    A(f"global_load_ushort v10, v5, {sp('logdt')}")
    srd(A, 56, "ws", 256 << 10, WS_EBOX)
    srd(A, 60, "ws", 8 << 20, WS_H)
    srd(A, 64, "dbg", 256)
    srd(A, 68, "ws", FLG_SZ, WS_FLG)
    A("s_lshl_b32 s11, s10, 13")
    A("v_lshl_add_u32 v7, v3, 3, s11")
    A("v_mov_b32 v12, 0")
    A("v_mov_b32 v13, 0")
    A("buffer_store_dwordx2 v[12:13], v7, s[56:59], 0 offen sc1")
    A("s_lshl_b32 s11, s10, 4")
    A("s_add_u32 s11, s11, s5")
    A("s_lshl_b32 s11, s11, 1")
    A("s_add_u32 s11, s11, s7")
    A("s_lshl_b32 s11, s11, 7")
    A("v_mov_b32 v60, s11")
    A("buffer_store_dword v12, v60, s[68:71], 0 offen sc1")
    A("s_lshl_b32 s72, s4, 4")
    A("s_add_u32 s72, s72, s5")
    A("s_lshl_b32 s72, s72, 2")
    A("s_add_u32 s72, s72, s3")
    A("s_lshl_b32 s72, s72, 7")
    A(f"s_add_u32 s11, s72, {PF_OFF:#x}")
    A("v_mov_b32 v30, s11")
    A("buffer_store_dword v12, v30, s[68:71], 0 offen sc1")
    A("v_mov_b32 v23, 1")
    A("v_bfe_u32 v11, v1, 1, 3")
    A("v_xor_b32 v11, v11, v6")
    A("s_lshl_b32 s11, s6, 13")
    A("v_lshl_add_u32 v14, v4, 7, s11")
    A("s_lshl_b32 s11, s7, 12")
    A("s_add_u32 s11, s11, 16384")
    A("v_lshl_add_u32 v15, v4, 7, s11")
    for ks in range(4):
        A(f"v_xor_b32 v16, {2*ks}, v11")
        A(f"v_lshl_add_u32 v{AD+ks}, v16, 4, v14")
        A(f"v_lshl_add_u32 v{BD+ks}, v16, 4, v15")
        A(f"v_add_u32 v{AD+4+ks}, 0x10000, v{AD+ks}")
        A(f"v_add_u32 v{BD+4+ks}, 0x10000, v{BD+ks}")
    A("v_lshlrev_b32 v21, 2, v1")
    A("s_waitcnt vmcnt(0)")
    A("v_lshlrev_b32 v8, 16, v8")
    A("v_lshlrev_b32 v9, 16, v9")
    A("v_lshlrev_b32 v10, 16, v10")
    A("s_mov_b32 s12, 0x3fb8aa3b")
    A("v_mul_f32 v10, s12, v10")
    A("v_exp_f32 v10, v10")
    A("v_cvt_pk_bf16_f32 v10, v10, v10")
    A("v_lshlrev_b32 v10, 16, v10")
    A("v_mul_f32 v16, v10, v8")
    A("v_mul_f32 v17, v10, v9")
    A("v_mul_f32 v16, s12, v16")
    A("v_exp_f32 v16, v16")
    A("v_mul_f32 v17, 0.15915494, v17")
    A("v_rndne_f32 v18, v17")
    A("v_sub_f32 v17, v17, v18")
    A("v_cos_f32 v18, v17")
    A("v_sin_f32 v19, v17")
    A(f"v_mul_f32 v{LAM}, v16, v18")
    A(f"v_mul_f32 v{LAM+1}, v16, v19")
    A(f"v_add_f32 v16, -1.0, v{LAM}")
    A("v_mul_f32 v17, v8, v8")
    A("v_fma_f32 v17, v9, v9, v17")
    A("v_rcp_f32 v17, v17")
    A("v_mul_f32 v18, v16, v8")
    A(f"v_fma_f32 v18, v{LAM+1}, v9, v18")
    A(f"v_mul_f32 v19, v{LAM+1}, v8")
    A("v_fma_f32 v19, -v16, v9, v19")
    A("v_add_f32 v17, v17, v17")
    A(f"v_mul_f32 v{C2}, v18, v17")
    A(f"v_mul_f32 v{C2+1}, v19, v17")
    cmul(A, 16, LAM, LAM); cmul(A, 18, 16, 16); cmul(A, 16, 18, 18)
    cmul(A, MU, 16, 16); cmul(A, MU2, MU, MU); cmul(A, MU4, MU2, MU2); cmul(A, MU8, MU4, MU4)
    cmul(A, 48, C2, MU2)
    A("v_cmp_lt_u32 vcc, 31, v1")
    A(f"v_cndmask_b32 v48, v{C2}, v48, vcc")
    A(f"v_cndmask_b32 v49, v{C2+1}, v49, vcc")
    A("v_lshlrev_b32 v50, 13, v6")
    A("v_sub_u32 v50, v7, v50")
    A("s_add_u32 s11, s10, 1")
    A("v_sub_u32 v51, s11, v6")
    A("v_lshrrev_b32 v51, 1, v51")
    A("s_lshl_b32 s11, s4, 2")
    A("s_add_u32 s11, s11, s3")
    A("s_lshl_b32 s11, s11, 5")
    A("v_lshrrev_b32 v52, 3, v1")
    A("v_add_u32 v52, s11, v52")
    A("v_lshlrev_b32 v52, 11, v52")
    A("v_and_b32 v16, 7, v1")
    A("v_lshl_add_u32 v52, v16, 4, v52")
    A("s_lshl_b32 s11, s5, 7")
    A("v_add_u32 v52, s11, v52")
    A("s_lshl_b32 s11, s3, 13")
    A("v_lshlrev_b32 v53, 11, v6")
    A("v_lshl_add_u32 v53, v4, 1, v53")
    A("v_add_u32 v53, s11, v53")
    A("s_lshl_b32 s11, s5, 6")
    A("v_add_u32 v54, s11, v4")
    A("v_lshlrev_b32 v54, 1, v54")
    srd(A, 76, "x", 4 << 20)
    srd(A, 92, "ws", 8 << 20, WS_PART)
    A("s_xor_b32 s73, s72, 4096")
    A("s_lshl_b32 s74, s73, 6")
    A("s_add_u32 s75, s74, 4096")
    A("v_lshlrev_b32 v59, 4, v1")
    if SNT and opt("sfp", 0) == 1:
        for i in range(4): A(f"v_mov_b32 v{24+i}, -1")
        for i in range(NPQ): A(f"buffer_store_dwordx4 v[24:27], v59, s[92:95], s{74 if i < 4 else 75} offen offset:{(i & 3)*1024} sc1")
    if opt("tlb", 0) & 1:
        A("s_lshl_b32 s11, s4, 19")
        A("v_mov_b32 v16, s11")
        A("buffer_load_dword v55, v16, s[60:63], 0 offen sc1")
        srd(A, 84, "out", 8 << 20)
        A("buffer_load_dword v56, v16, s[84:87], 0 offen sc1")
        A("v_mov_b32 v16, s74")
        A("buffer_load_dword v57, v16, s[92:95], 0 offen sc1")
        A("s_lshl_b32 s11, s72, 6")
        A("v_mov_b32 v16, s11")
        A("buffer_load_dword v58, v16, s[92:95], 0 offen sc1")

    def rd(stage, ks, buf, which):
        slot = stage % 3
        hi = 4 if slot >= 2 else 0
        so = (slot & 1) * 32768
        if which < 2:
            return f"ds_read_b128 {vr(FA+buf*8+which*4,4)}, v{AD+hi+ks} offset:{so + which*4096}"
        ri = which - 2
        return f"ds_read_b128 {vr(FB+buf*8+ri*4,4)}, v{BD+hi+ks} offset:{so + ri*8192}"
    def mf(buf, mt, ri, first):
        acc = ACC + ri*32 + mt*16
        if int(OPT.get("abl16", 0)) & 2:
            c0 = vr(acc + buf*8, 4); c1 = vr(acc + buf*8 + 4, 4)
            return (f"v_mfma_f32_16x16x32_bf16 {c0}, {vr(FA+buf*8+mt*4,4)}, {vr(FB+buf*8+ri*4,4)}, {c0}\n"
                    f"v_mfma_f32_16x16x32_bf16 {c1}, {vr(FA+buf*8+mt*4,4)}, {vr(FB+buf*8+ri*4,4)}, {c1}")
        return f"v_mfma_f32_32x32x16_bf16 {vr(acc,16)}, {vr(FA+buf*8+mt*4,4)}, {vr(FB+buf*8+ri*4,4)}, {'0' if first else vr(acc,16)}"
    RD_ORDER = [0, 2, 1, 3]
    MF_ORDER = [(0,0), (1,0), (1,1), (0,1)]
    ST()
    A("s_barrier")
    ST()
    A("s_cmp_lg_u32 s3, 0")
    A("s_cbranch_scc1 c_noflag")
    A("s_lshr_b32 s11, s2, 6")
    A("s_lshl_b32 s11, 1, s11")
    A("s_getreg_b32 s12, hwreg(HW_REG_XCC_ID, 0, 4)")
    A("s_lshl_b32 s12, 0x100, s12")
    A("s_or_b32 s11, s11, s12")
    A("v_mov_b32 v16, s11")
    A("s_and_b32 s11, s2, 63")
    A("s_lshl_b32 s11, s11, 2")
    A("v_mov_b32 v17, s11")
    A("s_mov_b64 exec, 1")
    A("buffer_atomic_or v16, v17, s[64:67], 0 offen sc1")
    A("s_mov_b64 exec, -1")
    A("c_noflag:")
    for w in RD_ORDER: A(rd(0, 0, 0, w))
    for s in range(N1):
        for ks in range(4):
            buf = ks & 1
            last = (s == N1-1 and ks == 3)
            if ks == 3:
                A("s_waitcnt lgkmcnt(0)")
                A("s_barrier")
            ns, nks = (s, ks+1) if ks < 3 else (s+1, 0)
            for i in range(4):
                if ks < 3 and i < 3: A("s_waitcnt lgkmcnt(2)")
                A(mf(buf, *MF_ORDER[i], s == 0 and ks == 0))
                if not last: A(rd(ns, nks, buf ^ 1, RD_ORDER[i]))
            if (s in (3, 7, 11) if "fine1" not in OPT else s >= 3) and ks == 3: ST()
            if s == 12 and ks == 0:
                A("buffer_load_dword v20, v21, s[64:67], 0 offen sc1")
    ST()
    if "fine1" in OPT: ST.n = 40
    gen.SAFE_PK[0] = bool(opt("pk", 0) & 1)
    def UR(t): return ACC + (t >> 3)*16 + 2*(t & 7)
    def UI(t): return ACC + 32 + (t >> 3)*16 + 2*(t & 7)
    E = [(24, 26), (28, 30 - 30 + 44)]
    cr, ci = UR(0), UI(0)
    for t in range(1, 16):
        nr, ni = E[t & 1]
        A(pk("fma", nr, cr, LAM, UR(t), bsel=0))
        A(pk("fma", ni, ci, LAM, UI(t), bsel=0))
        A(pk("fma", nr, ci, LAM, nr, bsel=1, neg_b=True))
        A(pk("fma", ni, cr, LAM, ni, bsel=1))
        cr, ci = nr, ni
    A("v_mov_b32 v32, v28\nv_mov_b32 v33, v44\nv_mov_b32 v34, v29\nv_mov_b32 v35, v45")
    cmul(A, 36, MU, 32, add=34)
    A("v_mov_b32 v38, v36\nv_mov_b32 v39, v37\nv_mov_b32 v40, 0\nv_mov_b32 v41, 0")
    A("v_permlane32_swap_b32 v40, v38")
    A("v_permlane32_swap_b32 v41, v39")
    cmul(A, 42, MU2, 40, add=36)
    A("v_or_b32 v42, 1, v42")
    A("s_mov_b32 s12, 0")
    A("s_mov_b32 s13, -1")
    A("s_mov_b64 exec, s[12:13]")
    A("buffer_store_dwordx2 v[42:43], v7, s[56:59], 0 offen sc1")
    A("s_mov_b64 exec, -1")
    def scaling():
        for t in range(16):
            n = UR2 + 2*t
            A(pk("mul", n, UR(t), C2, bsel=0))
            A(pk("fma", n, UI(t), C2, n, bsel=1, neg_b=True))
            A(pk("mul", UI(t), UI(t), C2, bsel=0))
            A(pk("fma", UI(t), UR(t), C2, UI(t), bsel=1))
        cmul(A, 44, C2, 40)
        cmul(A, 46, C2, 32)
    if "lowp" in OPT: A("s_setprio 0")
    ST()
    A("s_lshl_b32 s9, s3, 13")
    for i in range(4):
        A(f"s_add_u32 m0, s9, {i*1024}")
        A(f"s_mov_b32 s8, {i*16384}")
        A("buffer_load_dwordx4 v52, s[76:79], s8 offen lds")
    for q in range(2):
        A(f"global_load_ushort v{9+q}, v54, {sp('Dskip')} offset:{q*64}")
    SFP = opt("sfp", 0)
    if SNT and SFP == 0:
        for i in range(4): A(f"v_mov_b32 v{24+i}, -1")
        for i in range(NPQ): A(f"buffer_store_dwordx4 v[24:27], v59, s[92:95], s{74 if i < 4 else 75} offen offset:{(i & 3)*1024} sc1")
    if "pollfirst" not in OPT: scaling()
    for k in range(16):
        A(f"v_subrev_u32 v{128+k}, {(1+2*k)*8192:#x}, v50")
    ST()
    NFILL = NPQ if (SNT and opt("sfp", 0) == 0) else 0
    A(f"s_waitcnt vmcnt({7 + NFILL})")
    spin_all(A, "c_init", 52, "buffer_load_dword v20, v21, s[64:67], 0 offen sc1", "15", pre="v_and_b32 v52, 15, v20")
    local_check(A, 20, 52, 12, 11)
    A("s_cselect_b32 s14, 0, 1")
    if "nolocal" in OPT: A("s_mov_b32 s14, 0")
    for k in range(16):
        A(f"buffer_load_dwordx2 {vr(EL+2*k,2)}, v{128+k}, s[56:59], 0 offen sc1")
    if "pollfirst" in OPT: scaling()
    XP = list(range(73, 89))
    XDP = [89, 90, 91, 92, 93, 94, 95, 54, 55, 56, 57, 58, 59, 61, 5, 12]
    A(f"s_waitcnt vmcnt({16 + NFILL})")
    XT = [160 + i for i in range(16)] + [73 + i for i in range(16)]
    for nt in range(2):
        for r in range(16): A(f"ds_read_u16 v{XT[nt*16+r]}, v53 offset:{r*128+nt*64}")
    A("s_waitcnt lgkmcnt(0)")
    for m in range(8): A(f"v_lshl_or_b32 v{XP[8+m]}, v{XT[16+2*m+1]}, 16, v{XT[16+2*m]}" if False else f"v_lshl_or_b32 v{64+m}, v{XT[16+2*m+1]}, 16, v{XT[16+2*m]}")
    for m in range(8): A(f"v_lshl_or_b32 v{XP[m]}, v{XT[2*m+1]}, 16, v{XT[2*m]}")
    for m in range(8): A(f"v_mov_b32 v{XP[8+m]}, v{64+m}")
    BD2 = 32
    A("s_lshl_b32 s11, s3, 13")
    A("v_lshl_add_u32 v16, v6, 11, s11")
    A("v_lshl_add_u32 v16, v4, 6, v16")
    A("v_bfe_u32 v17, v1, 1, 2")
    for q in range(4):
        A(f"v_xor_b32 v18, {q}, v17")
        A(f"v_lshl_add_u32 v{64+q}, v18, 4, v16")
    A("v_mov_b32 v31, 1")
    A("v_bfe_u32 v16, v1, 2, 2")
    A("v_lshl_add_u32 v16, v6, 3, v16")
    A("v_and_b32 v24, 1, v1")
    A("v_bfe_u32 v18, v1, 4, 1")
    A("v_lshl_add_u32 v24, v24, 1, v18")
    A("v_bfe_u32 v18, v16, 1, 2")
    A("v_xor_b32 v24, v24, v18")
    A("v_lshlrev_b32 v24, 4, v24")
    A("v_lshl_add_u32 v24, v16, 6, v24")
    A("v_bfe_u32 v18, v1, 1, 1")
    A("v_lshl_add_u32 v24, v18, 3, v24")
    A("v_xor_b32 v25, 32, v24")
    A("v_add_u32 v25, 256, v25")
    A("v_add_u32 v68, s11, v24")
    A("v_add_u32 v69, s11, v25")
    A("s_lshl_b32 s11, s4, 7")
    A("s_lshl_b32 s12, s6, 6")
    A("s_add_u32 s11, s11, s12")
    A("s_and_b32 s12, s5, 7")
    A("s_lshl_b32 s12, s12, 2")
    A("s_add_u32 s11, s11, s12")
    A("s_add_u32 s11, s11, s7")
    A("s_lshl_b32 s11, s11, 12")
    A("s_lshr_b32 s13, s5, 3")
    A("s_lshl_b32 s13, s13, 11")
    A("s_add_u32 s11, s11, s13")
    A("v_lshl_add_u32 v72, v1, 4, s11")
    A(f"v_mov_b32 v20, {LFLAG:#x}")
    A("s_lshl_b32 s6, s4, 2")
    A("s_add_u32 s6, s6, s3")
    A("s_lshr_b32 s7, s3, 1")
    A("s_lshl_b32 s7, s7, 13")
    A("s_and_b32 s8, s3, 1")
    A("s_lshl_b32 s8, s8, 11")
    A("s_add_u32 s7, s7, s8")
    A("v_add_u32 v70, s7, v24")
    A("v_add_u32 v71, s7, v25")
    A("s_lshl_b32 s7, s6, 17")
    A("s_add_u32 s7, s7, s13")
    A("v_lshl_add_u32 v3, v1, 4, s7")
    A("v_add_u32 v2, 0x1000, v3")
    A(f"v_lshlrev_b32 v14, 7, v4")
    A(f"v_add_u32 v14, {CRING:#x}, v14")
    for ks in range(4):
        A(f"v_xor_b32 v16, {2*ks}, v11")
        A(f"v_lshl_add_u32 v{BD2+ks}, v16, 4, v14")
    A("s_lshr_b32 s7, s6, 1")
    A("s_lshl_b32 s7, s7, 12")
    A("s_add_u32 s7, s7, s13")
    A("v_bfe_u32 v16, v1, 1, 3")
    if ORD:
        A("v_subrev_u32 v14, 1, v16")
        A("v_cmp_le_u32 vcc, s15, v14")
        A("v_cndmask_b32 v14, v14, v16, vcc")
        A("v_mov_b32 v19, s15")
        A("v_cmp_eq_u32 vcc, 0, v16")
        A("v_cndmask_b32 v16, v14, v19, vcc")
    else:
        A("v_add_u32 v16, s15, v16")
        A("v_and_b32 v16, 7, v16")
    A("v_and_b32 v14, 1, v1")
    A("v_lshl_add_u32 v16, v16, 1, v14")
    A("v_lshl_add_u32 v22, v16, 7, s7")
    srd(A, 64, "ws", 8192, WS_G)
    srd(A, 76, "out", 8 << 20)
    for i in range(8):
        A(f"s_mov_b32 s{80+i}, {i*4096}")
    A("s_lshl_b32 s7, s6, 5")
    A("v_lshl_add_u32 v7, v6, 4, s7")
    A("s_lshl_b32 s8, s5, 6")
    A("v_add_u32 v8, s8, v4")
    A("v_lshlrev_b32 v26, 12, v7")
    A("v_lshl_add_u32 v26, v8, 2, v26")
    A("v_add_u32 v27, 0x8000, v26")
    A("v_lshlrev_b32 v7, 2, v7")
    A("v_mul_u32_u24 v21, 272, v4")
    A("v_lshl_add_u32 v21, v6, 5, v21")
    A("s_lshl_b32 s8, s3, 6")
    A("v_add_u32 v21, s8, v21")
    A(f"s_add_u32 s8, s73, {PF_OFF:#x}")
    A("v_mov_b32 v29, s8")
    A("v_lshlrev_b32 v28, 4, v1")
    A("v_mov_b32 v23, 1")
    A(f"s_mov_b32 s88, {SPIN}")
    A("c_poll:")
    A("s_waitcnt vmcnt(0)")
    A("v_mov_b32 v52, 0")
    for k in range(16):
        A(f"v_and_b32 v{144+k}, 1, v{EL+2*k}")
    for k in range(0, 16, 2):
        A(f"v_add3_u32 v52, v52, v{144+k}, v{145+k}")
    A("v_cmp_ne_u32 vcc, v52, v51")
    A("s_cmp_eq_u64 vcc, 0")
    A("s_cbranch_scc1 c_polled")
    A("s_sub_u32 s88, s88, 1")
    A("s_cbranch_scc1 c_polled")
    A(f"s_sleep {opt('psleep', SLEEP)}")
    for k in range(16):
        A(f"v_cmp_eq_u32 vcc, 0, v{144+k}")
        if "tpoll" in OPT:
            A(f"v_cmp_lt_u32 s[12:13], {k}, v51")
            A("s_and_b64 vcc, vcc, s[12:13]")
            A(f"s_cbranch_scc0 c_pk{k}")
        A("s_mov_b64 exec, vcc")
        A(f"buffer_load_dwordx2 {vr(EL+2*k,2)}, v{128+k}, s[56:59], 0 offen sc1")
        A("s_mov_b64 exec, -1")
        if "tpoll" in OPT: A(f"c_pk{k}:")
    A("s_branch c_poll")
    A("c_polled:")
    if "pz" in OPT:
        A("s_lshl_b32 s8, s3, 2")
        A(f"s_add_u32 s8, s8, {LFLAG + 24:#x}")
        A("v_mov_b32 v16, s8")
        A("s_mov_b64 exec, 1")
        A("ds_write_b32 v16, v31")
        A("s_mov_b64 exec, -1")
    if "lowp" in OPT: A(f"s_setprio {opt('prio', 2)}")
    ST()
    g = EL + 30
    G = [52, 54]
    for k in range(14, -1, -1):
        n = G[k & 1]
        A(pk("fma", n, g, MU8, EL+2*k, bsel=0))
        A(pk("fma", n, g, MU8, n, bsel=1, asel="swap", neg_lo=[1,0,0]))
        g = n
    A("v_mov_b32 v54, v52\nv_mov_b32 v55, v53\nv_mov_b32 v56, v52\nv_mov_b32 v57, v53")
    A("v_permlane32_swap_b32 v54, v56")
    A("v_permlane32_swap_b32 v55, v57")
    cmul(A, 58, MU4, 56, add=54)
    cmul(A, 52, 48, 58, add=44)
    cmul(A, 54, MU, 52, add=46)
    A("v_mov_b32 v56, v52\nv_mov_b32 v57, v54\nv_mov_b32 v58, v53\nv_mov_b32 v59, v55")
    cr, ci = 56, 58
    def packhalf(hf):
        for plane in range(2):
            for e in range(2):
                d = 128 + ((plane*2 + e)*2 + hf)*4
                for m in range(4):
                    t = hf*8 + 2*m
                    if plane == 0: A(f"v_cvt_pk_bf16_f32 v{d+m}, v{UR2+2*t+e}, v{UR2+2*(t+1)+e}")
                    else: A(f"v_cvt_pk_bf16_f32 v{d+m}, -v{UI(t)+e}, -v{UI(t+1)+e}")
                A(f"ds_write_b128 v{64+2*e+hf}, {vr(d,4)} offset:{plane*4096}")
    for t in range(16):
        nr, ni = UR2 + 2*t, UI(t)
        if "ablb" in OPT:
            if t == 7: packhalf(0)
            continue
        A(pk("fma", nr, cr, LAM, nr, bsel=0))
        A(pk("fma", ni, ci, LAM, ni, bsel=0))
        A(pk("fma", nr, ci, LAM, nr, bsel=1, neg_b=True))
        A(pk("fma", ni, cr, LAM, ni, bsel=1))
        cr, ci = nr, ni
        if t == 7: packhalf(0)
    packhalf(1)
    if "pz" in OPT:
        A("v_mov_b32 v17, 0")
        A("s_mov_b64 exec, 1")
        A("ds_write_b32 v16, v17")
        A("s_mov_b64 exec, -1")
    gen.SAFE_PK[0] = False
    EARLY = opt("early", 0)
    HFL = "buffer_load_dword v19, v22, s[68:71], 0 offen sc1"
    if EARLY: A(HFL)
    ST()
    A("s_waitcnt lgkmcnt(0)")
    lds_inc(A, 20, 31, 12)
    AF = 160
    idx = 0
    for tblk in range(2):
        for plane in range(2):
            for ksl in range(2):
                d = AF + idx*4
                o = plane*4096 + tblk*2048 + ksl*1024
                A(f"ds_read_b64_tr_b16 {vr(d,2)}, v68 offset:{o}")
                A(f"ds_read_b64_tr_b16 {vr(d+2,2)}, v69 offset:{o}")
                idx += 1
    V = VQ(A)
    idx = 0
    for tblk in range(2):
        for plane in range(2):
            A(f"s_mov_b32 s12, {tblk*131072 + plane*8192:#x}")
            for ksl in range(2):
                d = AF + idx*4
                A(f"s_waitcnt lgkmcnt({min(15, 14 - 2*idx)})")
                V.issue(f"buffer_store_dwordx4 {vr(d,4)}, v72, s[60:63], s12 offen offset:{ksl*1024} sc1", "hst")
                idx += 1
    ACC2 = 96
    FB2 = 224
    GR = 36
    ST2 = Stamper(A, 1, 62)
    A(f"s_mov_b32 s89, {SPIN*4}")
    A("c_lw:")
    A("ds_read_b128 v[52:55], v20 offset:4")
    A("s_waitcnt lgkmcnt(0)")
    A("v_min_u32 v54, v54, v55")
    A("v_min_u32 v53, 1, v53")
    A("v_readfirstlane_b32 s8, v54")
    A("v_readfirstlane_b32 s9, v53")
    A("s_add_u32 s8, s8, s9")
    A("s_cmp_ge_u32 s8, 5")
    A("s_cbranch_scc1 c_lwok")
    A("s_sub_u32 s89, s89, 1")
    A("s_cbranch_scc0 c_lw")
    A("c_lwok:")
    L = LQ(A)
    for st in range(2):
        for ks in range(4):
            d = AF + (st*4 + ks)*4
            o = (ks >> 1)*16384 + st*4096 + (ks & 1)*1024
            L.issue(f"ds_read_b64_tr_b16 {vr(d,2)}, v70 offset:{o}")
            L.issue(f"ds_read_b64_tr_b16 {vr(d+2,2)}, v71 offset:{o}", ("A", st, ks))
    A("s_mov_b32 s13, 0")
    if EARLY:
        A("s_waitcnt vmcnt(8)")
        A("v_cmp_eq_u32 s[90:91], 1, v19")
        A("s_and_b32 s88, s90, 0xc")
        A("s_cmp_eq_u32 s88, 0xc")
        A("s_cbranch_scc0 c_noearly")
        A("s_mov_b32 s13, 1")
        for z in (2, 3):
            tile_of(A, z >> 1, 11)
            A("s_lshl_b32 s11, s11, 14")
            if z & 1: A("s_add_u32 s11, s11, 8192")
            for k2 in range(4):
                A(f"buffer_load_dwordx4 {vr(AF + (z*4 + k2)*4,4)}, v{3 if k2 < 2 else 2}, s[60:63], s11 offen offset:{(k2 & 1)*1024} sc1")
        A("c_noearly:")
    for q in range(4):
        V.issue(f"buffer_load_dwordx4 {vr(GR+q*4,4)}, v7, s[64:67], 0 offen offset:{q*16} sc1", "g")
    ST()
    slowp = []
    def need(i):
        m = ((1 << (2*i + 2)) - 1) & ~3
        name = f"c_n{len(slowp)}"
        A(f"s_and_b32 s88, s90, {m:#x}")
        A(f"s_cmp_eq_u32 s88, {m:#x}")
        A(f"s_cbranch_scc0 {name}_s")
        A(f"{name}:")
        slowp.append((name, m))
    alast = [None]
    def aload(st, ks):
        if alast[0] != st:
            alast[0] = st
            tile_of(A, st >> 1, 11)
            A("s_lshl_b32 s11, s11, 14")
            if st & 1: A("s_add_u32 s11, s11, 8192")
        r = AF + ((st % PD)*4 + ks)*4
        V.issue(f"buffer_load_dwordx4 {vr(r,4)}, v{3 if ks < 2 else 2}, s[60:63], s11 offen offset:{(ks & 1)*1024} sc1", ("A", st, ks))
    def rd2(st, ks, nt, slot):
        return f"ds_read_b128 {vr(FB2+slot*4,4)}, v{BD2+ks} offset:{(st % NS2)*16384 + nt*4096}"
    def mf2(st, ks, nt, slot):
        a = AF + ((st % PD)*4 + ks)*4
        c = vr(ACC2+nt*16, 16)
        if int(OPT.get("abl16", 0)) & 1:
            z = (ks & 1)*8
            c0 = vr(ACC2+nt*16+z, 4); c1 = vr(ACC2+nt*16+z+4, 4)
            f = st == 0 and ks < 2
            return (f"v_mfma_f32_16x16x32_bf16 {c0}, {vr(a,4)}, {vr(FB2+slot*4,4)}, {'0' if f else c0}\n"
                    f"v_mfma_f32_16x16x32_bf16 {c1}, {vr(a,4)}, {vr(FB2+slot*4,4)}, {'0' if f else c1}")
        return f"v_mfma_f32_32x32x16_bf16 {c}, {vr(a,4)}, {vr(FB2+slot*4,4)}, {'0' if (st == 0 and ks == 0) else c}"
    def await_(st, ks):
        if st < 2: L.wait(("A", st, ks))
        else: V.wait(("A", st, ks))
    ST2()
    for nt in range(4): L.issue(rd2(0, 0, nt, nt), (0, 0, nt))
    HFK = opt("hfk", 3)
    N1K = opt("n1k", 2)
    XPS = opt("xps", 1)
    xfill = []
    def xpart(A=A):
        A("v_lshlrev_b32 v9, 16, v9")
        A("v_lshlrev_b32 v10, 16, v10")
        A("s_mov_b32 s12, 0xffff0000")
        TT = [13, 15, 16, 17, 18, 24, 25, 8]
        for k0 in range(0, 16, 4):
            ch = []
            for k in range(k0, k0 + 4):
                t0, t1 = TT[2*(k & 3)], TT[2*(k & 3) + 1]
                dk = 9 + (k >> 3)
                ch.append([f"v_lshlrev_b32 v{t0}, 16, v{XP[k]}", f"v_and_b32 v{t1}, s12, v{XP[k]}", f"v_mul_f32 v{t0}, v{t0}, v{dk}", f"v_mul_f32 v{t1}, v{t1}, v{dk}",
                           f"v_cvt_pk_bf16_f32 v{XDP[k]}, v{t0}, v{t1}"])
            zip_chains(A, ch)
    if XPS == 2: xpart(xfill.append)
    DIST = opt("dist", 3)
    assert DIST in (2, 3, 4)
    polls = [0]
    def hfpoll():
        polls[0] += 1
        V.issue(HFL, ("hf", polls[0]))
    def hfseen():
        V.wait(("hf", polls[0]))
        A("v_cmp_eq_u32 s[90:91], 1, v19")
    FS = opt("fs", 4)
    assert FS == 1 or (FS in (3, 4) and DIST >= 3)
    for st in range(N2 - FS):
        for ks in range(4):
            buf = ks & 1
            if ks == 3 and st >= FBAR: A("s_barrier")
            if ks == 3 and st == 1 and FBAR > 1:
                lds_spin(A, "c_cf2", 20, 20, 14, 4); L.done = L.n
            ns, nks = (st, ks+1) if ks < 3 else (st+1, 0)
            await_(st, ks)
            for nt in range(4):
                L.wait((st, ks, nt))
                A(mf2(st, ks, nt, buf*4 + nt))
                L.issue(rd2(ns, nks, nt, (buf ^ 1)*4 + nt), (ns, nks, nt))
                for z in range(opt("xfm", 3)):
                    if xfill: A(xfill.pop(0))
            if st == 0 and ks == HFK:
                if EARLY:
                    cnt = V.n - V.tags["hst"]
                    A("s_cmp_eq_u32 s13, 1")
                    A("s_cbranch_scc1 c_hw_e")
                    A(f"s_waitcnt vmcnt({cnt})")
                    A("s_branch c_hw_d")
                    A("c_hw_e:")
                    A(f"s_waitcnt vmcnt({cnt + 8})")
                    A("c_hw_d:")
                    V.done = V.tags["hst"]
                else: V.wait("hst")
                A("s_cmp_eq_u32 s14, 1")
                A("s_cbranch_scc1 c_hfs_l")
                A("buffer_store_dword v23, v60, s[68:71], 0 offen sc1")
                A("s_branch c_hfs_e")
                A("c_hfs_l:")
                A("buffer_store_dword v23, v60, s[68:71], 0 offen")
                A("c_hfs_e:")
                V.n += 1
                if SNT: V.issue("buffer_store_dword v23, v30, s[68:71], 0 offen sc1")
                hfpoll()
                if "fine3" in OPT: ST2()
            if st == 1 and ks == opt("rp", -1): hfpoll()
            if st == 1 and ks == N1K:
                if "fine3" in OPT: ST2()
                if EARLY:
                    A("s_cmp_eq_u32 s13, 1")
                    A("s_cbranch_scc1 c_skipy")
                hfseen(); need(1)
                if "fine3" in OPT: ST2()
                for z in (2, 3):
                    for k2 in range(4): aload(z, k2)
                if EARLY:
                    A("c_skipy:")
                    V.done = min(V.done, V.tags[("hf", polls[0])] - 1)
                hfpoll()
                if XPS == 0: xpart()
            if st == 1 and ks == 3 and XPS == 1: xpart()
            if st >= 2:
                if st == 2 and ks == 0:
                    if "fine3" in OPT: ST2()
                    hfseen(); need(2)
                    if "fine3" in OPT: ST2()
                    for z in range(4, 2 + DIST):
                        for k2 in range(4): aload(z, k2)
                    hfpoll()
                z = st + DIST
                if z < N2:
                    if ks == 0 and z % 2 == 0 and z // 2 >= 3:
                        if z // 2 == 3: hfseen()
                        if not (int(OPT.get("abl", 0)) & 2): need(z // 2)
                    aload(z, ks)
            if SNT and st == opt("pfl", 5) and ks == 0: V.issue("buffer_load_dword v14, v29, s[68:71], 0 offen sc1", "pf")
            if SNT and st == opt("pfc", 8) and ks == 0:
                V.wait("pf")
                A("v_cmp_ne_u32 vcc, 1, v14")
                A("s_cmp_eq_u64 vcc, 0")
                A("s_cbranch_scc0 c_pfs")
                A("c_pfr:")
            if "fine3" in OPT:
                if st in (1, 2, 3, 4) and ks == 3: ST2()
                if st == 2 and ks == 0: ST2()
            elif "fine4" in OPT:
                if st == N2 - FS - 1 and ks == 3: ST2()
            elif (st % 2 == 1 if 'fine2' not in OPT else True) and ks == 3: ST2()
    f0 = N2 - FS
    S_ = lambda z: [(z, ks, nt) for ks in range(4) for nt in (0, 1)]
    K_ = lambda z: [(z, ks, nt) for ks in range(4) for nt in (2, 3)]
    if FS == 1: order = S_(15) + K_(15); nsend = 8
    elif FS == 3: order = S_(13) + ["b13"] + S_(14) + K_(13) + ["b14"] + S_(15) + K_(14) + K_(15); nsend = 32
    else:
        BP = opt("bp", 4)
        order = []
        if opt("fso", 1) == 0:
            for z in (12, 13, 14): order += S_(z)[:BP] + [f"b{z}"] + S_(z)[BP:]
            order += S_(15) + K_(12) + K_(13) + K_(14) + K_(15); nsend = 32
        else:
            order = S_(12)[:BP] + ["b12"] + S_(12)[BP:] + S_(13) + K_(12)[:BP] + ["b13"] + K_(12)[BP:] + S_(14)[:BP] + ["b14"] + S_(14)[BP:] + S_(15) + K_(13) + K_(14) + K_(15)
            nsend = 40
        for z in range(N2):
            if ("A", z, 0) not in V.tags and z >= 2:
                for k2 in range(4): aload(z, k2)
    mfs = [x for x in order if not isinstance(x, str)]
    slot = {(f0, 0, nt): nt for nt in range(4)}
    pend = [x for x in mfs if x not in slot]
    free = [4, 5, 6]
    pub = [f0]
    def fill():
        while pend and free and pend[0][0] <= pub[0]:
            x = pend.pop(0); sl = free.pop(0); slot[x] = sl
            L.issue(rd2(x[0], x[1], x[2], sl), x)
    fill()
    pst = [f"buffer_store_dwordx4 {vr(ACC2+4*i,4)}, v28, s[92:95], s{74 if i < 4 else 75} offen offset:{(i & 3)*1024} sc1" for i in range(NPQ)]
    pcv = [f"v_cvt_pk_bf16_f32 v{ACC2+k}, v{ACC2+2*k}, v{ACC2+2*k+1}" for k in range(16)] if PB else []
    i = 0; prev = None
    for x in order:
        if isinstance(x, str):
            A("s_barrier"); pub[0] += 1; fill(); continue
        V.wait(("A", x[0], x[1]))
        if x not in slot: fill()
        L.wait(x)
        A(mf2(x[0], x[1], x[2], slot[x]))
        free.append(slot[prev] if prev is not None else 7)
        prev = x
        fill()
        i += 1
        SP = opt("sp", 0)
        if i >= nsend + 3 and pcv:
            for z in range(4): A(pcv.pop(0))
            V.issue(pst.pop(0), "ps")
        elif i >= nsend + 3:
            if SP == 0:
                for z in range(2):
                    if pst: V.issue(pst.pop(0), "ps")
            elif (i - nsend - 3) % SP == 0 and pst: V.issue(pst.pop(0), "ps")
        if "fine4" in OPT and i % 8 == 0: ST2()
    while pst: V.issue(pst.pop(0), "ps")
    ST2()
    YR, OM, GF, T0, RV = 160, 176, 192, 208, ACC2
    KEEP = ACC2 + 32
    PFL = "buffer_load_dword v19, v29, s[68:71], 0 offen sc1"
    A("s_mov_b32 s12, 0xffff0000")
    for nt in range(2):
        for hf in range(2): A(f"ds_read_b128 {vr(YR+nt*8+hf*4,4)}, v21 offset:{nt*32*272 + hf*16}")
    for r in range(16):
        A(f"v_lshlrev_b32 v{GF+r}, 16, v{GR+r}")
        A(f"v_and_b32 v{OM+r}, s12, v{GR+r}")
    A("s_waitcnt lgkmcnt(0)")
    if SNT:
        RCG = opt("rcg", 2)
        def recv_full():
            for i in range(NPQ):
                A(f"buffer_load_dwordx4 {vr(RV+4*i,4)}, v28, s[92:95], s{90 if i < 4 else 91} offen offset:{(i & 3)*1024} sc1")
        first = [True]
        def recv():
            if "lp" in OPT and first[0]:
                first[0] = False
                A(f"buffer_load_dwordx4 {vr(RV+4*NPQ-4,4)}, v28, s[92:95], s{90 if PB else 91} offen offset:3072 sc1")
            else: recv_full()
        A("s_lshl_b32 s90, s72, 6")
        A("s_add_u32 s91, s90, 4096")
        gi = 0
        for nt in range(2):
            for m0 in range(0, 8, 4):
                if gi == RCG: recv()
                gi += 1
                ch = []
                for m in range(m0, m0 + 4):
                    b_ = T0 + (m & 3)*6
                    yy, xf, tm = b_, b_ + 2, b_ + 4
                    xp = XP[nt*8+m]; xd = XDP[nt*8+m]; ka = KEEP + nt*16 + 2*m
                    ch.append([f"v_lshlrev_b32 v{yy}, 16, v{YR+nt*8+m}", f"v_and_b32 v{yy+1}, s12, v{YR+nt*8+m}",
                               f"v_lshlrev_b32 v{xf}, 16, v{xp}", f"v_and_b32 v{xf+1}, s12, v{xp}",
                               f"v_mul_f32 v{yy}, v{xf}, v{yy}", f"v_mul_f32 v{yy+1}, v{xf+1}, v{yy+1}",
                               f"v_lshlrev_b32 v{xf}, 16, v{xd}", f"v_and_b32 v{xf+1}, s12, v{xd}",
                               f"v_cvt_pk_bf16_f32 v{tm}, v{yy}, v{yy+1}",
                               f"v_add_f32 v{ka}, v{ka}, v{xf}", f"v_add_f32 v{ka+1}, v{ka+1}, v{xf+1}",
                               f"v_lshlrev_b32 v{yy}, 16, v{tm}", f"v_and_b32 v{yy+1}, s12, v{tm}",
                               f"v_mul_f32 v{yy}, v{yy}, v{OM+2*m}", f"v_mul_f32 v{yy+1}, v{yy+1}, v{OM+2*m+1}",
                               f"v_cvt_pk_bf16_f32 v{tm}, v{yy}, v{yy+1}", f"v_lshlrev_b32 v{yy}, 16, v{tm}", f"v_and_b32 v{yy+1}, s12, v{tm}",
                               f"v_fma_f32 v{ka}, v{ka}, v{GF+2*m}, v{yy}", f"v_fma_f32 v{ka+1}, v{ka+1}, v{GF+2*m+1}, v{yy+1}"])
                zip_chains(A, ch)
        if gi == RCG: recv()
        ST2()
        if "lp" in OPT:
            LP = f"buffer_load_dwordx4 {vr(RV+4*NPQ-4,4)}, v28, s[92:95], s{90 if PB else 91} offen offset:3072 sc1"
            A(f"s_mov_b32 s89, {SPIN}")
            A("c_lp:")
            A("s_waitcnt vmcnt(0)")
            A(f"v_cmp_eq_u32 vcc, -1, v{RV+4*NPQ-1}")
            A("s_cmp_eq_u64 vcc, 0")
            A("s_cbranch_scc1 c_lpok")
            A("s_sub_u32 s89, s89, 1")
            A("s_cbranch_scc1 c_lpok")
            A(LP)
            A("s_branch c_lp")
            A("c_lpok:")
            recv_full()
        A(f"s_mov_b32 s89, {SPIN}")
        A("c_rc:")
        A("s_waitcnt vmcnt(0)")
        A(f"v_max3_u32 v19, v{RV}, v{RV+1}, v{RV+2}")
        for i in range(3, 4*NPQ-1, 2): A(f"v_max3_u32 v19, v19, v{RV+i}, v{RV+i+1}")
        A(f"v_max_u32 v19, v19, v{RV+4*NPQ-1}")
        A("v_cmp_eq_u32 vcc, -1, v19")
        A("s_cmp_eq_u64 vcc, 0")
        A("s_cbranch_scc1 c_rcok")
        A("s_sub_u32 s89, s89, 1")
        A("s_cbranch_scc1 c_rcok")
        recv()
        A("s_branch c_rc")
        A("c_rcok:")
        ST2()
        for nt in range(2):
            for r in range(16):
                a = KEEP + nt*16 + r
                if PB:
                    w = RV + nt*8 + (r >> 1); t = T0 + (r & 3)
                    A(f"v_and_b32 v{t}, s12, v{w}" if r & 1 else f"v_lshlrev_b32 v{t}, 16, v{w}")
                    A(f"v_fma_f32 v{a}, v{t}, v{GF+r}, v{a}")
                else: A(f"v_fma_f32 v{a}, v{RV+nt*16+r}, v{GF+r}, v{a}")
                A(f"buffer_store_dword v{a}, v{26 if r < 8 else 27}, s[76:79], s{80+(r&7)} offen offset:{nt*128}{OS}")
        ST2()
    else:
        PFG = opt("pfg", 2)
        gi = 0
        def pfstore():
            A("s_waitcnt vmcnt(0)")
            A("buffer_store_dword v23, v30, s[68:71], 0 offen sc1")
            A(PFL)
        RCG = opt("rcg", 3)
        def recv():
            A("s_lshl_b32 s12, s72, 6")
            A("s_add_u32 s13, s12, 4096")
            for i in range(NPQ):
                A(f"buffer_load_dwordx4 {vr(RV+4*i,4)}, v28, s[92:95], s{12 if i < 4 else 13} offen offset:{(i & 3)*1024} sc1")
            A("s_mov_b32 s12, 0xffff0000")
        A("s_mov_b32 s90, 0")
        for nt in range(2):
            for m0 in range(0, 8, 4):
                if gi == PFG: pfstore()
                if gi == RCG and RCG > PFG:
                    A("s_waitcnt vmcnt(0)")
                    A("v_cmp_ne_u32 vcc, 1, v19")
                    A("s_cmp_eq_u64 vcc, 0")
                    A("s_cbranch_scc0 c_norc")
                    recv()
                    A("s_mov_b32 s90, 1")
                    A("c_norc:")
                gi += 1
                ch = []
                for m in range(m0, m0 + 4):
                    b_ = T0 + (m & 3)*6
                    yy, xf, tm = b_, b_ + 2, b_ + 4
                    xp = XP[nt*8+m]; xd = XDP[nt*8+m]; ka = KEEP + nt*16 + 2*m
                    ch.append([f"v_lshlrev_b32 v{yy}, 16, v{YR+nt*8+m}", f"v_and_b32 v{yy+1}, s12, v{YR+nt*8+m}",
                               f"v_lshlrev_b32 v{xf}, 16, v{xp}", f"v_and_b32 v{xf+1}, s12, v{xp}",
                               f"v_mul_f32 v{yy}, v{xf}, v{yy}", f"v_mul_f32 v{yy+1}, v{xf+1}, v{yy+1}",
                               f"v_lshlrev_b32 v{xf}, 16, v{xd}", f"v_and_b32 v{xf+1}, s12, v{xd}",
                               f"v_cvt_pk_bf16_f32 v{tm}, v{yy}, v{yy+1}",
                               f"v_add_f32 v{ka}, v{ka}, v{xf}", f"v_add_f32 v{ka+1}, v{ka+1}, v{xf+1}",
                               f"v_lshlrev_b32 v{yy}, 16, v{tm}", f"v_and_b32 v{yy+1}, s12, v{tm}",
                               f"v_mul_f32 v{yy}, v{yy}, v{OM+2*m}", f"v_mul_f32 v{yy+1}, v{yy+1}, v{OM+2*m+1}",
                               f"v_cvt_pk_bf16_f32 v{tm}, v{yy}, v{yy+1}", f"v_lshlrev_b32 v{yy}, 16, v{tm}", f"v_and_b32 v{yy+1}, s12, v{tm}",
                               f"v_fma_f32 v{ka}, v{ka}, v{GF+2*m}, v{yy}", f"v_fma_f32 v{ka+1}, v{ka+1}, v{GF+2*m+1}, v{yy+1}"])
                zip_chains(A, ch)
        if gi == PFG: pfstore()
        ST2()
        A("s_cmp_eq_u32 s90, 1")
        A("s_cbranch_scc1 c_havercv")
        A(PFL)
        A("s_waitcnt vmcnt(0)")
        spin_all(A, "c_pf", 19, PFL)
        recv()
        A("c_havercv:")
        ST2()
        for nt in range(2):
            for r in range(16):
                a = KEEP + nt*16 + r
                if PB:
                    i = (nt*16 + r) // 8
                    if r % 8 == 0: A(f"s_waitcnt vmcnt({3 - i + nt*16 + r})")
                    w = RV + nt*8 + (r >> 1); t = T0 + (r & 3)
                    A(f"v_and_b32 v{t}, s12, v{w}" if r & 1 else f"v_lshlrev_b32 v{t}, 16, v{w}")
                    A(f"v_fma_f32 v{a}, v{t}, v{GF+r}, v{a}")
                else:
                    i = (nt*16 + r) // 4
                    if r % 4 == 0: A(f"s_waitcnt vmcnt({7 - i + nt*16 + r})")
                    A(f"v_fma_f32 v{a}, v{RV+nt*16+r}, v{GF+r}, v{a}")
                A(f"buffer_store_dword v{a}, v{26 if r < 8 else 27}, s[76:79], s{80+(r&7)} offen offset:{nt*128}{OS}")
        ST2()
    if "leak" in OPT:
        i = int(OPT["leak"])
        A("s_cmp_lg_u32 s2, 8")
        A("s_cbranch_scc1 c_noleak")
        A("s_cmp_lg_u32 s3, 0")
        A("s_cbranch_scc1 c_noleak")
        A("v_readlane_b32 s8, v63, 0")
        A(f"v_readlane_b32 s9, v{63 if i < 100 else 62}, {i % 100}")
        A("s_sub_u32 s9, s9, s8")
        A("s_memrealtime s[10:11]")
        A("s_waitcnt lgkmcnt(0)")
        A("s_add_u32 s9, s9, s10")
        A("c_leak:")
        A("s_memrealtime s[10:11]")
        A("s_waitcnt lgkmcnt(0)")
        A("s_sub_u32 s12, s9, s10")
        A("s_cmp_gt_i32 s12, 0")
        A("s_cbranch_scc1 c_leak")
        A("c_noleak:")
    if "leak2" in OPT:
        X, i = str(OPT["leak2"]).split(":"); i = int(i)
        if X != "all":
            A(f"s_cmp_lg_u32 s2, {int(X)}")
            A("s_cbranch_scc1 c_noleak2")
        A("s_cmp_lg_u32 s3, 0")
        A("s_cbranch_scc1 c_noleak2")
        A(f"v_readlane_b32 s9, v{63 if i < 100 else 62}, {i % 100}")
        A("s_add_u32 s9, s9, 4000")
        A("c_leak2:")
        A("s_memrealtime s[10:11]")
        A("s_waitcnt lgkmcnt(0)")
        A("s_sub_u32 s12, s9, s10")
        A("s_cmp_gt_i32 s12, 0")
        A("s_cbranch_scc1 c_leak2")
        A("c_noleak2:")
    ST.flush()
    ST2.flush()
    A("s_endpgm")
    if SNT:
        A("c_pfs:")
        A(f"s_mov_b32 s89, {SPIN}")
        A("c_pfs_l:")
        A("s_waitcnt vmcnt(0)")
        A("buffer_load_dword v14, v29, s[68:71], 0 offen sc1")
        A("s_waitcnt vmcnt(0)")
        A("v_cmp_ne_u32 vcc, 1, v14")
        A("s_cmp_eq_u64 vcc, 0")
        A("s_cbranch_scc1 c_pfr")
        A("s_sub_u32 s89, s89, 1")
        A("s_cbranch_scc1 c_pfr")
        A("s_branch c_pfs_l")
    for name, m in slowp:
        A(f"{name}_s:")
        A(f"s_mov_b32 s89, {SPIN}")
        A(f"{name}_l:")
        A("s_waitcnt vmcnt(0)")
        A(HFL)
        A("s_waitcnt vmcnt(0)")
        A("v_cmp_eq_u32 s[90:91], 1, v19")
        A(f"s_and_b32 s88, s90, {m:#x}")
        A(f"s_cmp_eq_u32 s88, {m:#x}")
        A(f"s_cbranch_scc1 {name}")
        A("s_sub_u32 s89, s89, 1")
        A(f"s_cbranch_scc1 {name}")
        A(f"s_branch {name}_l")

def helper(A):
    V = VQ(A)
    VA, VB = 8, 12
    ST = Stamper(A, 0, 58)
    STH = Stamper(A, 1, 59)
    ST()
    if "hprio1" in OPT: A(f"s_setprio {OPT['hprio1']}")
    A("s_sub_u32 s3, s3, 4")
    A("s_lshr_b32 s6, s3, 1")
    A("s_and_b32 s7, s3, 1")
    A("v_lshrrev_b32 v3, 5, v1")
    A("v_lshlrev_b32 v3, 5, v3")
    A("v_bfe_u32 v4, v1, 3, 1")
    A("v_lshl_add_u32 v3, v4, 4, v3")
    A("v_bfe_u32 v4, v1, 4, 1")
    A("v_add_u32 v3, v3, v4")
    A("s_lshl_b32 s8, s4, 7")
    A("s_lshl_b32 s9, s6, 6")
    A("s_add_u32 s8, s8, s9")
    A("s_lshl_b32 s9, s7, 3")
    A("s_add_u32 s8, s8, s9")
    A("v_add_u32 v3, s8, v3")
    A("v_lshlrev_b32 v3, 11, v3")
    A("v_and_b32 v4, 7, v1")
    A("v_lshrrev_b32 v5, 4, v1")
    A("v_xor_b32 v4, v4, v5")
    A("v_lshlrev_b32 v4, 4, v4")
    A(f"v_add_u32 v{VA}, v3, v4")
    A("s_lshl_b32 s10, s3, 12")
    A("s_lshr_b32 s90, s55, 2")
    A("s_lshl_b32 s90, s90, 1")
    A("s_and_b32 s91, s55, 3")
    A("s_lshl_b32 s91, s91, 2")
    A("s_add_u32 s90, s90, s91")
    A("s_and_b32 s11, s90, 15")
    A("s_lshl_b32 s11, s11, 7")
    A("s_mov_b32 m0, s10")
    A(f"s_mov_b32 s58, {4<<20:#x}")
    A("s_mov_b32 s59, 0x20000")
    if "fine0" in OPT: STH()
    A("s_waitcnt lgkmcnt(0)")
    if "fine0" in OPT: STH()
    A(f"s_mov_b32 s56, s{P['x']}")
    A(f"s_mov_b32 s57, s{P['x']+1}")
    V.issue(f"buffer_load_dwordx4 v{VA}, s[56:59], s11 offen lds")
    A("v_xor_b32 v5, 64, v4")
    A(f"v_add_u32 v{VA+1}, v3, v5")
    A(f"v_add_u32 v{VA+1}, {4096-1024}, v{VA+1}")
    V.issue(f"buffer_load_dwordx4 v{VA+1}, s[56:59], s11 offen offset:1024 lds")
    A(f"v_add_u32 v{VA+2}, {2*(4096-1024)}, v{VA}")
    V.issue(f"buffer_load_dwordx4 v{VA+2}, s[56:59], s11 offen offset:2048 lds")
    A(f"v_add_u32 v{VA+3}, {2*(4096-1024)}, v{VA+1}")
    V.issue(f"buffer_load_dwordx4 v{VA+3}, s[56:59], s11 offen offset:3072 lds")
    A("s_lshl_b32 s8, s5, 6")
    A("s_lshl_b32 s9, s7, 5")
    A("s_add_u32 s8, s8, s9")
    A("v_lshrrev_b32 v6, 3, v1")
    A("v_add_u32 v7, s8, v6")
    A("v_lshlrev_b32 v7, 11, v7")
    A(f"v_add_u32 v{VB}, v7, v4")
    A("s_cmp_ge_u32 s3, 2")
    A(f"s_cselect_b32 s60, s{P['Bim']}, s{P['Bre']}")
    A(f"s_cselect_b32 s61, s{P['Bim']+1}, s{P['Bre']+1}")
    A(f"s_mov_b32 s62, {2<<20:#x}")
    A("s_mov_b32 s63, 0x20000")
    A("s_add_u32 m0, s10, 16384")
    A(f"v_add_u32 v{VB+1}, v7, v5")
    V.issue(f"buffer_load_dwordx4 v{VB}, s[60:63], s11 offen lds")
    A(f"v_add_u32 v{VB+1}, {16384-1024}, v{VB+1}")
    V.issue(f"buffer_load_dwordx4 v{VB+1}, s[60:63], s11 offen offset:1024 lds")
    A(f"v_add_u32 v{VB+2}, {2*(16384-1024)}, v{VB}")
    V.issue(f"buffer_load_dwordx4 v{VB+2}, s[60:63], s11 offen offset:2048 lds")
    A(f"v_add_u32 v{VB+3}, {2*(16384-1024)}, v{VB+1}")
    V.issue(f"buffer_load_dwordx4 v{VB+3}, s[60:63], s11 offen offset:3072 lds", ("S", 0))
    def issue(st, fill=0):
        slot = st % 3
        A(f"s_add_u32 s11, s90, {st}")
        A("s_and_b32 s11, s11, 15")
        A("s_lshl_b32 s11, s11, 7")
        A(f"s_add_u32 m0, s10, {slot*32768:#x}")
        for n in range(4):
            V.issue(f"buffer_load_dwordx4 v{VA+n}, s[56:59], s11 offen offset:{n*1024} lds")
            if fill: do_work(fill)
        A(f"s_add_u32 m0, s10, {slot*32768+16384:#x}")
        for n in range(4):
            V.issue(f"buffer_load_dwordx4 v{VB+n}, s[60:63], s11 offen offset:{n*1024} lds", ("S", st))
            if fill: do_work(fill)
    if "fine0" in OPT: STH()
    VC = 28
    A("s_and_b32 s8, s5, 7")
    A("s_lshl_b32 s8, s8, 6")
    A("s_lshl_b32 s9, s3, 4")
    A("s_add_u32 s8, s8, s9")
    A("v_add_u32 v7, s8, v6")
    A("v_lshlrev_b32 v7, 11, v7")
    A(f"v_add_u32 v{VC}, v7, v4")
    A(f"v_add_u32 v{VC+1}, v7, v5")
    A(f"v_add_u32 v{VC+1}, {16384-1024}, v{VC+1}")
    A("s_and_b32 s12, s55, 1")
    A("s_lshl_b32 s13, s54, 1")
    A("s_add_u32 s12, s12, s13")
    A("s_lshr_b32 s13, s55, 1")
    A("s_lshl_b32 s8, s2, 7")
    A(f"s_add_u32 s8, s8, {KF_OFF:#x}")
    A("v_mov_b32 v30, s8")
    A("s_lshl_b32 s88, s54, 5")
    A("s_add_u32 s88, s88, s55")
    A("s_lshl_b32 s8, s88, 7")
    A(f"s_add_u32 s8, s8, {YF_OFF:#x}")
    A("v_mov_b32 v31, s8")
    A("s_lshl_b32 s88, s88, 2")
    A("s_add_u32 s88, s88, s3")
    A("v_mov_b32 v2, 0")
    srd(A, 92, "ws", FLG_SZ, WS_FLG)
    A("s_lshl_b32 s8, s88, 12")
    A(f"s_load_dword s100, {sp('ssmk')}, s8")
    A("s_lshr_b32 s8, s88, 1")
    A("s_lshl_b32 s8, s8, 2")
    A(f"s_load_dword s101, {sp('ssmD')}, s8")
    if opt("tlb", 0) & 2:
        A("s_lshl_b32 s8, s88, 12")
        A("v_mov_b32 v248, s8")
        V.issue(f"global_load_dword v249, v248, {sp('ssmk')}")
    V.issue("buffer_store_dword v2, v30, s[92:95], 0 offen sc1")
    V.issue("buffer_store_dword v2, v31, s[92:95], 0 offen sc1", "clr")
    if opt("pl", 1) >= 0: issue(1)
    if "fine0" in OPT: STH()
    KR, VR_, SK = 32, 208, 68
    XG, GW = 72, 88
    A("s_lshl_b32 s13, s13, 7")
    A("s_lshl_b32 s14, s3, 5")
    A("s_add_u32 s13, s13, s14")
    A("v_and_b32 v17, 31, v1")
    A("s_lshl_b32 s14, s12, 5")
    A("v_add_u32 v17, s14, v17")
    A("v_lshlrev_b32 v22, 4, v17")
    A("v_and_b32 v23, 31, v1")
    A("v_mul_u32_u24 v23, 544, v23")
    A("v_lshrrev_b32 v24, 5, v1")
    A("v_lshlrev_b32 v24, 5, v24")
    A("v_sub_u32 v23, v23, v24")
    A("s_lshl_b32 s8, s3, 6")
    A(f"s_sub_u32 s8, {UREG+224}, s8")
    A("v_add_u32 v23, s8, v23")
    A("v_lshrrev_b32 v24, 4, v1")
    A("s_lshl_b32 s8, s3, 4")
    A("v_add_u32 v24, s8, v24")
    A("v_and_b32 v2, 15, v1")
    A("v_lshlrev_b32 v2, 4, v2")
    A("s_lshl_b32 s8, s12, 6")
    A("v_add_u32 v27, s8, v24")
    A("v_lshl_add_u32 v27, v27, 12, v2")
    A("s_lshr_b32 s8, s55, 1")
    A("s_lshl_b32 s8, s8, 8")
    A("s_sub_u32 s8, 3840, s8")
    A("v_add_u32 v27, s8, v27")
    A("v_mul_u32_u24 v24, 272, v24")
    A("v_add_u32 v24, v24, v2")
    A(f"v_add_u32 v24, {UREG:#x}, v24")
    A("s_lshl_b32 s14, s4, 7")
    A("s_lshl_b32 s8, s5, 3")
    A("s_add_u32 s14, s14, s8")
    A("s_lshl_b32 s8, s3, 1")
    A("s_add_u32 s14, s14, s8")
    A("s_lshl_b32 s8, s14, 11")
    A("v_lshlrev_b32 v25, 4, v1")
    A("v_add_u32 v26, s8, v25")
    A("v_add_u32 v3, 0x8000, v27")
    srd(A, 64, "k", 4 << 20)
    srd(A, 68, "v", 4 << 20)
    srd(A, 72, "ws", 4 << 20, WS_KVT)
    srd(A, 76, "ws", 8192, WS_G)
    for i in range(8):
        A(f"s_mov_b32 s{80+i}, {i*4096}")
    NTP = " nt" if "ntp" in OPT else ""
    A("v_lshrrev_b32 v19, 3, v1")
    A("v_add_u32 v19, s13, v19")
    A("v_lshlrev_b32 v19, 11, v19")
    A("v_and_b32 v20, 7, v1")
    A("v_lshl_add_u32 v19, v20, 4, v19")
    A("s_lshl_b32 s8, s12, 7")
    A("v_add_u32 v19, s8, v19")
    A("v_subrev_u32 v20, 16384, v19")
    A("v_lshrrev_b32 v21, 5, v1")
    A("v_lshlrev_b32 v21, 11, v21")
    A("v_and_b32 v18, 31, v1")
    A("v_lshl_add_u32 v21, v18, 2, v21")
    A("s_lshl_b32 s8, s3, 12")
    A(f"s_add_u32 s91, s8, {KREG}")
    A("v_add_u32 v21, s91, v21")
    def kvdma():
        A("s_add_u32 m0, s91, 16384")
        V.issue(f"buffer_load_dwordx4 v20, s[64:67], 0 offen{NTP} lds")
        for i in range(4):
            A(f"s_add_u32 m0, s91, {16384 + 1024*(i+1)}")
            A(f"s_mov_b32 s99, {i*16384}")
            V.issue(f"buffer_load_dwordx4 v19, s[64:67], s99 offen{NTP} lds")
        V.issue(f"global_load_dwordx4 {vr(SK,4)}, v22, {sp('shk')}", "k")
        for i in range(4):
            A(f"s_add_u32 m0, s91, {1024*i}")
            A(f"s_mov_b32 s99, {i*16384}")
            V.issue(f"buffer_load_dwordx4 v19, s[68:71], s99 offen{NTP} lds", "v")
    if opt("pl", 1) < 0:
        kvdma(); issue(1)
    gl = []
    for r in range(2):
        for hh in range(2): gl.append((f"buffer_load_dwordx4 {vr(XG+r*8+hh*4,4)}, v26, s[56:59], 0 offen offset:{r*2048+hh*1024}", None))
    for hh in range(2): gl.append((f"global_load_dwordx4 {vr(GW+hh*4,4)}, v25, {sp('gw')} offset:{hh*1024}", "gate"))
    KF = 96; SP = 136; OUT = 144
    work = []
    def W(x):
        if callable(x): work.append(x)
        else: work.extend(x.split("\n"))
    def rndW(pair, tmp):
        W(f"v_cvt_pk_bf16_f32 v{tmp}, v{pair}, v{pair+1}")
        W(f"v_lshlrev_b32 v{pair}, 16, v{tmp}")
        W(f"v_and_b32 v{pair+1}, s12, v{tmp}")
    W("s_mov_b32 s12, 0xffff0000")
    gate_begin = len(work)
    W(lambda: V.wait("gate"))
    for i in range(8):
        W(f"v_lshlrev_b32 v{96+2*i}, 16, v{GW+i}")
        W(f"v_and_b32 v{97+2*i}, s12, v{GW+i}")
    for r in range(2):
        acc = 112 + r
        W(f"v_mov_b32 v{acc}, 0")
        for i in range(8):
            W(f"v_lshlrev_b32 v116, 16, v{XG+r*8+i}")
            W(f"v_and_b32 v117, s12, v{XG+r*8+i}")
            W(pk("mul", 116, 116, 96+2*i))
            rndW(116, 118)
            W(f"v_add_f32 v{acc}, v{acc}, v116")
            W(f"v_add_f32 v{acc}, v{acc}, v117")
    for r in range(2):
        acc = 112 + r
        for sh in (1, 2, 4, 8):
            W(f"v_add_f32_dpp v{acc}, v{acc}, v{acc} row_shr:{sh} row_mask:0xf bank_mask:0xf bound_ctrl:0")
        W(f"v_add_f32_dpp v{acc}, v{acc}, v{acc} row_bcast:15 row_mask:0xa bank_mask:0xf")
        W(f"v_add_f32_dpp v{acc}, v{acc}, v{acc} row_bcast:31 row_mask:0xc bank_mask:0xf")
    for t in ["v_readlane_b32 s8, v112, 63", "v_readlane_b32 s9, v113, 63", "v_mov_b32 v116, s8", "v_mov_b32 v117, s9",
              "v_cmp_eq_u32 vcc, 1, v1", "v_cndmask_b32 v116, v116, v117, vcc", "v_cvt_pk_bf16_f32 v116, v116, v116",
              "v_lshlrev_b32 v116, 16, v116", "v_mul_f32 v116, 0xbfb8aa3b, v116", "v_exp_f32 v116, v116", "v_add_f32 v116, 1.0, v116",
              "v_rcp_f32 v116, v116", "v_cvt_pk_bf16_f32 v117, v116, v116", "v_lshlrev_b32 v116, 16, v117", "v_sub_f32 v118, 1.0, v116",
              "v_cvt_pk_bf16_f32 v116, v116, v118", "s_lshl_b32 s14, s14, 2", "v_lshl_add_u32 v117, v1, 2, s14"]:
        W(t)
    def gstore():
        A("s_mov_b64 exec, 3")
        V.issue("buffer_store_dword v116, v117, s[76:79], 0 offen sc1", "g")
        A("s_mov_b64 exec, -1")
    W(gstore)
    gate_end = len(work)
    W("KVSTART")
    W(lambda: V.wait("k"))
    for i in range(19):
        W(f"ds_read_b32 v{KR+i}, v21 offset:{16384 + (5+i)*128}")
        if i == 9: W("s_waitcnt lgkmcnt(0)")
    W("s_waitcnt lgkmcnt(0)")
    for i in range(19):
        W(f"v_lshlrev_b32 v{KF+2*i}, 16, v{KR+i}")
        W(f"v_and_b32 v{KF+2*i+1}, s12, v{KR+i}")
    for jx in range(4):
        for cc in range(2):
            src = SK + cc*2 + (jx >> 1)
            W(f"v_and_b32 v{SP+2*jx+cc}, s12, v{src}" if jx & 1 else f"v_lshlrev_b32 v{SP+2*jx+cc}, 16, v{src}")
    W(lambda: V.wait("v"))
    for i in range(16):
        W(f"ds_read_b32 v{VR_+i}, v21 offset:{i*128}")
        if i == 7: W("s_waitcnt lgkmcnt(0)")
    W("s_waitcnt lgkmcnt(0)")
    for t in range(16):
        vv = 176 + (t & 1)*2
        W(f"v_lshlrev_b32 v{vv}, 16, v{VR_+t}")
        W(f"v_and_b32 v{vv+1}, s12, v{VR_+t}")
        if opt("pk", 0) & 2:
            o = OUT + 2*t
            W(f"v_pk_mul_f32 {vr(o,2)}, {vr(KF+2*t,2)}, {vr(SP+6,2)}")
            for jx in (2, 1, 0): W(f"v_pk_fma_f32 {vr(o,2)}, {vr(KF+2*(t+3-jx),2)}, {vr(SP+2*jx,2)}, {vr(o,2)}")
            W(f"v_pk_mul_f32 {vr(o,2)}, {vr(o,2)}, {vr(vv,2)}")
            continue
        for cc in range(2): W(f"v_mul_f32 v{OUT+2*t+cc}, v{KF+2*t+cc}, v{SP+6+cc}")
        for jx in (2, 1, 0):
            for cc in range(2): W(f"v_fmac_f32 v{OUT+2*t+cc}, v{KF+2*(t+3-jx)+cc}, v{SP+2*jx+cc}")
        for cc in range(2): W(f"v_mul_f32 v{OUT+2*t+cc}, v{OUT+2*t+cc}, v{vv+cc}")
    for cc in range(2):
        for hf in range(2):
            d = 192 + (cc*2+hf)*4
            for m in range(4):
                mm = hf*4 + m
                W(f"v_cvt_pk_bf16_f32 v{d+m}, v{OUT+2*(15-2*mm)+cc}, v{OUT+2*(14-2*mm)+cc}")
            W(f"ds_write_b128 v23, {vr(d,4)} offset:{cc*272+hf*16}")
    W("s_waitcnt lgkmcnt(0)")
    W("BARRIER")
    for i in range(4): W(f"ds_read_b128 {vr(192+4*i,4)}, v24 offset:{i*4*272}")
    KVL = "nokvl" not in OPT
    def kvstores():
        def block(pol):
            for i in range(4):
                A(f"s_waitcnt lgkmcnt({3-i})")
                V.issue(f"buffer_store_dwordx4 {vr(192+4*i,4)}, v{27 if i < 2 else 3}, s[72:75], s{80+4*(i&1)} offen{pol}", "kvt")
        if not KVL:
            block(" sc1"); return
        V.wait("cls")
        local_check(A, 247, 246, 96, 98)
        A("s_cbranch_scc0 h_kvl")
        n0 = V.n
        block(" sc1")
        A("s_branch h_kve")
        A("h_kvl:")
        V.n = n0
        block("")
        A("h_kve:")
    W(kvstores)
    kv_end = len(work)
    if "kvfirst" in OPT:
        gate_part = work[gate_begin:gate_end]
        del work[gate_begin:gate_end]
        work.extend(gate_part)
    wpos = [0]
    blocked = [False]
    cur = [0]
    PL = opt("pl", 1)
    KVW = PL + opt("kvd", 3)
    def do_work(n):
        while n > 0 and wpos[0] < len(work) and not blocked[0]:
            w = work[wpos[0]]
            wpos[0] += 1
            if w == "BARRIER":
                blocked[0] = True; return
            if w == "KVSTART":
                if cur[0] < KVW:
                    wpos[0] -= 1; return
                continue
            if callable(w): w()
            elif "ablkv" in OPT and w.startswith("v_") and wpos[0] > gate_end and wpos[0] < kv_end: pass
            else: A(w)
            n -= 1
    PREP0 = opt("prep0", 1)
    UL = 40
    ACC = 64; BF = 96; AFR = 160; KD = 224
    def setup_conv(A):
        A("s_lshl_b32 s12, s88, 12")
        srd(A, 64, "ssmk", 4096, off_sreg=12)
        srd(A, 68, "ws", 4096, WS_KVT, off_sreg=12)
        A("s_mov_b32 s80, s100")
        A("s_mov_b32 s81, s101")
        A("v_and_b32 v37, 15, v1")
        A("s_lshr_b32 s8, s88, 6")
        A("s_and_b32 s8, s8, 1")
        A("s_lshl_b32 s8, s8, 3")
        A("s_add_u32 s8, s8, s54")
        A("v_lshl_add_u32 v32, v37, 4, s8")
        A("s_lshr_b32 s8, s4, 2")
        A("s_lshl_b32 s8, s8, 1")
        A("s_and_b32 s9, s4, 3")
        A("s_lshl_b32 s9, s9, 3")
        A("s_add_u32 s8, s8, s9")
        A("v_lshrrev_b32 v38, 3, v37")
        A("v_and_b32 v39, 7, v37")
        A("v_lshl_add_u32 v38, v39, 5, v38")
        A("v_add_u32 v38, s8, v38")
        A("v_and_b32 v39, 16, v1")
        A("v_cmp_ne_u32 vcc, 0, v39")
        A("v_cndmask_b32 v32, v32, v38, vcc")
        A("v_lshlrev_b32 v32, 7, v32")
        A(f"v_add_u32 v32, {KF_OFF:#x}, v32")
        A("v_lshlrev_b32 v33, 2, v1")
        srd(A, 76, "dbg", 256)
        A(f"s_mul_i32 s13, s3, 8320")
        A(f"s_add_u32 s13, s13, {KREG}")
        A(f"s_mul_i32 s82, s3, 4608")
        A(f"s_add_u32 s82, s82, {UREG}")
        A("v_add_u32 v36, 2, v25")
        A("v_and_b32 v38, 7, v1")
        A("v_lshlrev_b32 v38, 2, v38")
        A("v_bfe_u32 v39, v1, 3, 1")
        A("v_mul_u32_u24 v39, 4160, v39")
        A("v_add3_u32 v38, v38, v39, s13")
        A("s_lshl_b32 s80, s80, 16")
        A("v_mov_b32 v56, s80")
        A("v_cmp_eq_u32 vcc, 15, v37")
        A("v_cndmask_b32 v56, 0, v56, vcc")
        A("ds_write_b32 v38, v56")
        A("s_and_b32 s14, s88, 1")
        A("s_lshl_b32 s14, s14, 4")
        A("s_lshr_b32 s81, s81, s14")
        A("s_lshl_b32 s81, s81, 16")
        A(f"v_mov_b32 v60, {LFLAG:#x}")
        A("v_mov_b32 v61, 1")
    def setup_late(A):
        A("v_lshrrev_b32 v5, 4, v1")
        A("v_and_b32 v37, 15, v1")
        A("v_lshl_add_u32 v38, v5, 3, v37")
        A("v_lshlrev_b32 v38, 1, v38")
        A("v_and_b32 v39, 1, v1")
        A("v_mul_u32_u24 v39, 4158, v39")
        A("v_sub_u32 v38, v38, v39")
        A("s_add_u32 s14, s13, 4160")
        A("v_add_u32 v16, s14, v38")
        for i in range(1, 4): A(f"v_add_u32 v{16+i}, {1024*i}, v16")
        A("v_lshlrev_b32 v38, 5, v37")
        A("v_lshlrev_b32 v39, 4, v5")
        A("v_sub_u32 v20, v39, v38")
        A("s_add_u32 s14, s82, 480")
        A("v_add_u32 v20, s14, v20")
        A("v_lshl_add_u32 v39, v5, 3, v38")
        A("s_add_u32 s14, s82, 504")
        A("v_sub_u32 v21, s14, v39")
        A("v_and_b32 v39, 1, v5")
        A("v_lshl_add_u32 v22, v39, 9, v38")
        A("v_lshrrev_b32 v39, 1, v5")
        A("v_lshl_add_u32 v22, v39, 4, v22")
        A("v_add_u32 v23, s82, v25")
    setup_conv(W)
    print("prep work items", len(work))
    def cissue(st):
        tile_of(A, st >> 1, 11)
        A("s_lshl_b32 s11, s11, 7")
        sr_ = "s[56:59]" if st % 2 == 0 else "s[60:63]"
        A("s_add_u32 s99, s11, s91")
        A(f"s_add_u32 m0, s10, {(st % NS2)*16384:#x}")
        for n in range(2):
            V.issue(f"buffer_load_dwordx4 v{VC+n}, {sr_}, s99 offen offset:{n*1024} lds")
        A("s_add_u32 s11, s11, s90")
        A(f"s_add_u32 m0, s10, {(st % NS2)*16384 + 8192:#x}")
        for n in range(2):
            V.issue(f"buffer_load_dwordx4 v{VC+n}, {sr_}, s11 offen offset:{n*1024} lds", ("C", st))
    def uloads():
        for i in range(4): A(f"buffer_load_dwordx4 {vr(UL+4*i,4)}, v25, s[68:71], 0 offen offset:{i*1024} sc1")
    def ctouch():
        A("s_cmp_ge_u32 s3, 2")
        A(f"s_cselect_b32 s96, s{P['Cim']}, s{P['Cre']}")
        A(f"s_cselect_b32 s97, s{P['Cim']+1}, s{P['Cre']+1}")
        A("s_lshl_b32 s98, s2, 13")
        A("s_and_b32 s99, s3, 1")
        A("s_lshl_b32 s99, s99, 12")
        A("s_add_u32 s98, s98, s99")
        A("v_and_b32 v240, 31, v1")
        if "km" in OPT:
            A("s_add_u32 s96, s96, s98")
            A("s_addc_u32 s97, s97, 0")
            A("s_lshl_b32 s98, s88, 12")
            A(f"s_add_u32 s98, s{P['ssmk']}, s98")
            A(f"s_addc_u32 s99, s{P['ssmk']+1}, 0")
            A("v_mov_b32 v242, s96")
            A("v_mov_b32 v243, s97")
            A("v_mov_b32 v244, s98")
            A("v_mov_b32 v245, s99")
            A("v_cmp_lt_u32 s[96:97], 31, v1")
            A("v_cndmask_b32 v242, v242, v244, s[96:97]")
            A("v_cndmask_b32 v243, v243, v245, s[96:97]")
            A("v_lshlrev_b32 v240, 7, v240")
            A("v_add_co_u32 v242, s[96:97], v242, v240")
            A("v_addc_co_u32 v243, s[96:97], 0, v243, s[96:97]")
            V.issue("global_load_dword v241, v[242:243], off")
        else:
            A("v_lshl_add_u32 v240, v240, 7, s98")
            V.issue("global_load_dword v241, v240, s[96:97]")
    FILL = opt("fill", 10)
    kst = [None]
    KW = opt("kw", 2)
    CHK = opt("chk", 13)
    KFS = opt("kfs", 12)
    KDS = opt("kds", 11)
    UWS = opt("uws", 14)
    WEND = min(KFS, KDS, 12)
    CM = opt("cm", 6)
    assert CHK < UWS <= 15 and opt("lates", 14) <= UWS
    nU = [0]; cdone = [0]
    NC0 = opt("nc0", 2)
    A(f"v_mov_b32 v6, {LFLAG:#x}")
    A("v_mov_b32 v7, 0")
    for o in (4, 8, 12, 16, 20) + ((24, 28, 32, 36) if "pz" in OPT else ()): A(f"ds_write_b32 v6, v7 offset:{o}")
    ST()
    A("s_waitcnt lgkmcnt(0)")
    V.wait("clr")
    ST()
    if "fine0" in OPT: STH()
    A("s_barrier")
    issue(2)
    if "fine0" in OPT: STH()
    for t, tag in gl: V.issue(t, tag)
    for s in range(N1):
        V.wait(("S", min(s+1, N1-1)))
        if kst[0] is not None and s == min(kst[0] + KW, 15): V.wait("kvt"); V.wait("g")
        if "fine1" in OPT: STH()
        A("s_barrier")
        if kst[0] is not None and s == min(kst[0] + KW, 15):
            A("s_cmp_lg_u32 s3, 0")
            A("s_cbranch_scc1 h_kflag")
            A("v_mov_b32 v6, 1")
            A("buffer_store_dword v6, v30, s[92:95], 0 offen sc1")
            A("h_kflag:")
            print("k flag after barrier", s+1)
        blocked[0] = False
        cur[0] = s
        FM = opt("fmode", 0)
        fl = opt("fill0", FILL) if s < opt("fill0n", 0) else FILL
        if s+3 < N1 and FM == 0: issue(s+3, fl if s >= PREP0 else 0)
        elif s+3 < N1 and FM == 1:
            issue(s+3)
            if s >= PREP0: do_work(8*FILL)
        if s == PL - 100: pass
        if s == PL and PL >= 0: kvdma()
        if s == CM: ctouch()
        if KVL and s == opt("cls", 6):
            A("v_lshlrev_b32 v246, 2, v1")
            V.issue(f"global_load_dword v247, v246, {sp('dbg')} sc1", "cls")
        if kst[0] is None and "kvt" in V.tags and "g" in V.tags: kst[0] = s
        if s == WEND:
            do_work(10000)
            assert wpos[0] == len(work), (wpos[0], len(work))
        if s == KFS:
            V.issue("buffer_load_dword v34, v33, s[76:79], 0 offen sc1")
            V.issue("buffer_load_dword v35, v32, s[92:95], 0 offen sc1", "kf")
            ST()
        if s == KDS and KDS < CHK:
            V.wait("g")
            A("s_add_u32 m0, s13, 32")
            for i in range(4): V.issue(f"buffer_load_dwordx4 v25, s[64:67], 0 offen offset:{i*1024}{NTP} lds")
            A("s_add_u32 m0, s13, 4192")
            for i in range(4): V.issue(f"buffer_load_dwordx4 v36, s[64:67], 0 offen offset:{i*1024}{NTP} lds", "K")
        if s == 13:
            srd(A, 56, "Cre", 2 << 20)
            srd(A, 60, "Cim", 2 << 20)
            A("s_lshl_b32 s10, s3, 11")
            A(f"s_add_u32 s10, s10, {CRING:#x}")
            A("s_lshr_b32 s90, s5, 3")
            A("s_xor_b32 s91, s90, 1")
            A("s_lshl_b32 s91, s91, 20")
            A("s_lshl_b32 s11, s90, 10")
            A("s_add_u32 s91, s91, s11")
            A("s_mul_i32 s90, s90, 0x100400")
            A("v_mov_b32 v56, 0")
            A("v_mov_b32 v57, 0")
            A("v_lshlrev_b32 v38, 3, v1")
            A("v_add_u32 v38, s82, v38")
            A("ds_write_b64 v38, v[56:57] offset:4096")
            ST()
        if s == CHK:
            V.wait("kf")
            A("s_mov_b32 s83, 0")
            A("v_and_b32 v34, 15, v34")
            A("v_cmp_ne_u32 vcc, 15, v34")
            A("v_cmp_ne_u32 s[84:85], 1, v35")
            A("s_or_b64 vcc, vcc, s[84:85]")
            A("s_cbranch_scc1 h_nou")
            A("s_mov_b32 s83, 1")
            uloads()
            A("h_nou:")
            nU[0] = V.n
        if s == KDS and KDS >= CHK:
            V.wait("g")
            A("s_add_u32 m0, s13, 32")
            for i in range(4): V.issue(f"buffer_load_dwordx4 v25, s[64:67], 0 offen offset:{i*1024}{NTP} lds")
            A("s_add_u32 m0, s13, 4192")
            for i in range(4): V.issue(f"buffer_load_dwordx4 v36, s[64:67], 0 offen offset:{i*1024}{NTP} lds", "K")
        if s == opt("lates", 14): setup_late(A)
        if s == 15:
            for z in range(NC0): cissue(z)
            cdone[0] = NC0
        if s == UWS:
            A("s_cmp_lg_u32 s83, 1")
            A("s_cbranch_scc1 h_nouw")
            A(f"s_waitcnt vmcnt({V.n - nU[0]})")
            for i in range(4): A(f"ds_write_b128 v23, {vr(UL+4*i,4)} offset:{1024*i}")
            A("h_nouw:")
    ST()
    if "hprio1" in OPT: A("s_setprio 0")
    A("s_cmp_lg_u32 s83, 0")
    A("s_cbranch_scc1 h_haveu")
    spin_all(A, "h_init", 34, "buffer_load_dword v34, v33, s[76:79], 0 offen sc1", "15", pre="v_and_b32 v34, 15, v34")
    spin_all(A, "h_kf", 35, "buffer_load_dword v35, v32, s[92:95], 0 offen sc1")
    uloads()
    A("s_waitcnt vmcnt(0)")
    for i in range(4): A(f"ds_write_b128 v23, {vr(UL+4*i,4)} offset:{1024*i}")
    A("h_haveu:")
    V.done = max(V.done, nU[0])
    V.wait("K")
    if "lowp" in OPT: A("s_setprio 1")
    lds_inc(A, 60, 61, 8)
    for i in range(4): A(f"s_mov_b32 s{84+i}, s{68+i}")
    srd(A, 68, "ws", 4 << 20, WS_KVT)
    A("s_waitcnt lgkmcnt(0)")
    ST()
    L = LQ(A)
    ops = []
    def reads(r):
        R = []
        s = r & 1
        for i in range(8):
            R.append((f"ds_read_b128 {vr(BF+s*32+i*4,4)}, v20 offset:{3584-512*i+64*r}", ("B", r, i)))
            o = 128*(i & 1) + 16*r
            d = AFR + s*32 + i*4
            R.append((f"ds_read2_b32 {vr(d,2)}, v{16+(i>>1)} offset0:{o} offset1:{o+1}", None))
            R.append((f"ds_read2_b32 {vr(d+2,2)}, v{16+(i>>1)} offset0:{o+2} offset1:{o+3}", ("A", r, i)))
        return R
    def first_order(R):
        return R[1:3] + [R[3*i] for i in range(8)] + [x for i in range(1, 8) for x in R[3*i+1:3*i+3]]
    KVT = 40
    for n in range(8): ops.append(("rd", f"ds_read_b64 {vr(KVT+2*n,2)}, v21 offset:{3584-512*n}", ("KV", n)))
    for t, tag in first_order(reads(0)): ops.append(("rd", t, tag))
    fill = []
    fill.append(("s_mov_b32 s12, 0xffff0000", None)); fill.append(("v_mov_b32 v26, s81", None))
    for n in range(8):
        k = KD + 4*n
        c = [f"v_and_b32 v{k}, s12, v{KVT+2*n+1}", f"v_lshlrev_b32 v{k+1}, 16, v{KVT+2*n+1}", f"v_and_b32 v{k+2}, s12, v{KVT+2*n}", f"v_lshlrev_b32 v{k+3}, 16, v{KVT+2*n}"]
        c += [f"v_mul_f32 v{k+i}, v{k+i}, v26" for i in range(4)]
        c += [f"v_cvt_pk_bf16_f32 v56, v{k}, v{k+1}", f"v_cvt_pk_bf16_f32 v57, v{k+2}, v{k+3}",
              f"v_lshlrev_b32 v{k}, 16, v56", f"v_and_b32 v{k+1}, s12, v56", f"v_lshlrev_b32 v{k+2}, 16, v57", f"v_and_b32 v{k+3}, s12, v57"]
        for i, t in enumerate(c): fill.append((t, ("KV", n) if i == 0 else None))
    YD = 40
    def post(n):
        y = ACC + 4*n; k = KD + 4*n
        d = YD + (n >> 1)*4 + (n & 1)*2
        c = [f"v_cvt_pk_bf16_f32 v56, v{y}, v{y+1}", f"v_cvt_pk_bf16_f32 v57, v{y+2}, v{y+3}",
             f"v_lshlrev_b32 v{y}, 16, v56", f"v_and_b32 v{y+1}, s12, v56", f"v_lshlrev_b32 v{y+2}, 16, v57", f"v_and_b32 v{y+3}, s12, v57"]
        c += [f"v_add_f32 v{k+i}, v{k+i}, v{y+i}" for i in range(4)]
        c += [f"v_cvt_pk_bf16_f32 v{d}, v{k}, v{k+1}", f"v_cvt_pk_bf16_f32 v{d+1}, v{k+2}, v{k+3}"]
        if n & 1:
            d = YD + (n >> 1)*4
            c += [f"v_permlane16_swap_b32 v{d}, v{d+2}", f"v_permlane16_swap_b32 v{d+1}, v{d+3}"]
            if "yinl" in OPT: c += [f"YST{n >> 1}"]
        return c
    ystores = [f"buffer_store_dwordx4 {vr(YD+4*k,4)}, v22, s[84:87], 0 offen offset:{k*1024} sc1" for k in range(4)]
    LATEC = opt("latec", 170)
    CFM = opt("cfm", 80)
    FPM = opt("fpm", 2)
    nmf = 0
    postq = []
    for r in range(8):
        s = r & 1
        nxt = first_order(reads(r+1)) if r < 7 else []
        cnt = 0
        for q in range(8):
            for n in range(q, 8):
                c = vr(ACC+4*n, 4)
                ops.append(("mf", f"v_mfma_f32_16x16x32_bf16 {c}, {vr(AFR+s*32+4*q,4)}, {vr(BF+s*32+4*(n-q),4)}, {'0' if (r == 0 and q == 0) else c}",
                            [("A", r, q), ("B", r, n-q)]))
                nmf += 1; cnt += 1
                if nxt and cnt >= 2:
                    t, tag = nxt.pop(0); ops.append(("rd", t, tag))
                elif r < 7:
                    for z in range(FPM):
                        if fill: ops.append(("fill",) + fill.pop(0))
                if "pz" in OPT and opt("pz0", 90) <= nmf <= opt("pz1", 250) and (nmf - opt("pz0", 90)) % opt("pzs", 12) == 0:
                    ops.append(("pzr", nmf))
                if "pz" in OPT and opt("pz0", 90) <= nmf - 6 <= opt("pz1", 250) and (nmf - 6 - opt("pz0", 90)) % opt("pzs", 12) == 0:
                    ops.append(("pzc", nmf - 6))
                if nmf == LATEC: ops.append(("latec",))
                if nmf == CFM: ops.append(("cf",))
                if nmf == opt("cf2m", 240) and FBAR > 1: ops.append(("cf2",))
                if r == 7:
                    if n == q: postq += [(nmf + 3, t) for t in post(n)]
                    for z in range(opt("ppm", 3)):
                        if postq and postq[0][0] <= nmf and q < 7: ops.append(("fill", postq.pop(0)[1], None))
        assert not nxt
    assert not fill and CFM < LATEC
    for _, t in postq: ops.append(("fill", t, None))
    pzslow = []
    if "pz" in OPT:
        A("s_lshl_b32 s8, s3, 2")
        A(f"s_add_u32 s8, s8, {LFLAG:#x}")
        A("v_mov_b32 v62, s8")
    AB = int(OPT.get("ablc", 0))
    for op in ops:
        if AB & 1 and op[0] in ("rd", "mf", "fill"): continue
        if op[0] == "rd": L.issue(op[1], op[2])
        elif op[0] == "mf":
            for t in op[2]: pass
            k = max(op[2], key=lambda t: L.tags[t])
            L.wait(k)
            A(op[1])
        elif op[0] == "fill":
            if op[2] is not None: L.wait(op[2])
            if op[1].startswith("YST"): V.issue(ystores[int(op[1][3:])], "y2")
            else: A(op[1])
        elif op[0] == "pzr": L.issue("ds_read_b32 v63, v62 offset:24", ("Z", op[1]))
        elif op[0] == "pzc":
            L.wait(("Z", op[1]))
            A("v_readfirstlane_b32 s83, v63")
            A("s_cmp_lg_u32 s83, 0")
            A(f"s_cbranch_scc1 h_pz{op[1]}_s")
            A(f"h_pz{op[1]}:")
            pzslow.append(op[1])
        elif op[0] == "latec":
            while cdone[0] < NS2: cissue(cdone[0]); cdone[0] += 1
        elif op[0] == "cf2":
            V.wait(("C", 3))
            lds_inc(A, 60, 61, 20); L.n += 1
        elif op[0] == "cf":
            while cdone[0] < 2: cissue(cdone[0]); cdone[0] += 1
            V.wait(("C", 1))
            lds_inc(A, 60, 61, 16); L.n += 1
    ST()
    if "lowp" in OPT: A("s_setprio 0")
    YST = opt("yst", 0)
    if YST == 0 and "yinl" not in OPT:
        for t in ystores:
            if AB & 2: V.tags["y2"] = V.n
            else: V.issue(t, "y2")
    A("v_lshrrev_b32 v8, 4, v1")
    A("s_lshl_b32 s8, s3, 4")
    A("v_add_u32 v8, s8, v8")
    A("v_and_b32 v11, 15, v1")
    A("s_lshl_b32 s9, s5, 11")
    A(f"s_add_u32 s9, s9, {YF_OFF:#x}")
    A("v_lshl_add_u32 v10, v11, 7, s9")
    A("v_lshlrev_b32 v11, 4, v11")
    A("v_mul_u32_u24 v9, 272, v8")
    A("v_add_u32 v9, v9, v11")
    A("s_lshl_b32 s8, s5, 6")
    A("v_add_u32 v8, s8, v8")
    A("v_lshl_add_u32 v8, v8, 12, v11")
    A("s_lshl_b32 s8, s4, 8")
    A("v_add_u32 v8, s8, v8")
    ST()
    YR = 116
    YFL_LD = "buffer_load_dword v19, v10, s[92:95], 0 offen sc1"
    YFL, GYF, GYL, GYW = opt("yfl", 5), opt("gyf", 8), opt("gyl", 10), opt("gyw", 12)
    for st in range(FBAR, N2-1):
        V.wait(("C", st+1))
        if "fineh" in OPT: STH()
        A("s_barrier")
        if st == FBAR:
            for z in range(NS2, FBAR + NS2): cissue(z)
        elif st + NS2 - 1 < N2: cissue(st + NS2 - 1)
        if "abl" in OPT and st >= 2 and st < 13 and int(OPT["abl"]) & 1:
            continue_ = True
            for tg in ("y2", "xt", "yf", "eps"): V.tags.setdefault(tg, 0)
            continue
        if YST and st == YST:
            for t in ystores: V.issue(t, "y2")
        if st == YFL:
            V.wait("y2")
            A("s_mov_b64 exec, 1")
            A("ds_add_rtn_u32 v62, v60, v61 offset:4")
            A("s_mov_b64 exec, -1")
            A("s_waitcnt lgkmcnt(0)")
            A("v_readfirstlane_b32 s83, v62")
            A("s_cmp_lg_u32 s83, 3")
            A("s_cbranch_scc1 h_noy")
            A("buffer_store_dword v61, v31, s[92:95], 0 offen sc1")
            A("h_noy:")
        if st == GYF: V.issue(YFL_LD, "yf")
        if st == GYL:
            V.wait("yf")
            spin_all(A, "h_yf", 19, YFL_LD)
            for i in range(4):
                A(f"s_mov_b32 s8, {i*16384}")
                V.issue(f"buffer_load_dwordx4 {vr(YR+i*4,4)}, v8, s[68:71], s8 offen sc1", "eps")
        if st == GYW:
            V.wait("eps")
            for i in range(4): A(f"ds_write_b128 v9, {vr(YR+i*4,4)} offset:{i*4*272}")
            A("s_waitcnt lgkmcnt(0)")
    assert YST < YFL < GYF < GYL < GYW <= N2 - 3
    STH.flush()
    ST.flush()
    A("s_endpgm")
    for k in pzslow:
        A(f"h_pz{k}_s:")
        A(f"s_mov_b32 s89, {SPIN*4}")
        A(f"h_pz{k}_l:")
        A("s_sleep 1")
        A("ds_read_b32 v63, v62 offset:24")
        A("s_waitcnt lgkmcnt(0)")
        A("v_readfirstlane_b32 s83, v63")
        A("s_cmp_eq_u32 s83, 0")
        A(f"s_cbranch_scc1 h_pz{k}")
        A("s_sub_u32 s89, s89, 1")
        A(f"s_cbranch_scc1 h_pz{k}")
        A(f"s_branch h_pz{k}_l")

def build():
    s = header_comments()
    s += "; generated by tools/gen9.py (fused single kernel, split-K GEMM2; gen8 h layout)\n"
    s += "; @launch grid=(256,1,1) block=(512,1,1) lds=163840\n"
    s += '.amdgcn_target "amdgcn-amd-amdhsa--gfx950"\n.text\n'
    A = Asm()
    A.raw(f".globl {KN}\n.p2align 8\n.type {KN},@function")
    gen_kernel(A)
    s += A.render()
    s += descriptor(KN, 256, 102)
    import subprocess, tempfile, re
    with tempfile.TemporaryDirectory() as td:
        open(td + "/a.s", "w").write(s.replace("CODE_LAST", "0x12345"))
        subprocess.run(["clang", "-x", "assembler", "-target", "amdgcn-amd-amdhsa", "-mcpu=gfx950", "-c", td + "/a.s", "-o", td + "/a.o"], check=True)
        o = subprocess.run(["llvm-objdump", "-h", td + "/a.o"], capture_output=True, text=True).stdout
    size = int(re.search(r"\.text\s+([0-9a-f]+)", o).group(1), 16)
    if "al8" in OPT:
        pat = {"1": ("v_mfma_f32_32x32",), "2": ("v_mfma",), "3": ("v_mfma", "ds_read_b128", "ds_read_b64_tr", "buffer_load_dwordx4")}[str(OPT["al8"])]
        with tempfile.TemporaryDirectory() as td:
            open(td + "/a.s", "w").write(s.replace("CODE_LAST", "0x12345"))
            subprocess.run(["clang", "-x", "assembler", "-target", "amdgcn-amd-amdhsa", "-mcpu=gfx950", "-c", td + "/a.s", "-o", td + "/a.o"], check=True)
            d = subprocess.run(["llvm-objdump", "-d", td + "/a.o"], capture_output=True, text=True).stdout
        sizes = [4 * len(m.group(1).split()) for m in re.finditer(r"// [0-9A-F]+: ([0-9A-F ]+)$", d, re.M)]
        out = []; addr = 0; k = 0; incode = False; nins = 0
        for ln in s.split("\n"):
            st = ln.strip()
            if st == f"{KN}:": incode = True
            if st.startswith(".section"): incode = False
            if incode and ln.startswith("    ") and st and not st.startswith(";"):
                sz = sizes[k]; k += 1
                if sz == 8 and addr % 8 == 4 and st.startswith(pat):
                    out.append("    s_nop 0"); addr += 4; nins += 1
                addr += sz
            out.append(ln)
        assert k == len(sizes), (k, len(sizes))
        s = "\n".join(out); size = addr
        print("alignment nops", nins)
    if "shift" in OPT:
        s = s.replace(f"{KN}:\n", f"{KN}:\n" + "    s_nop 0\n" * int(OPT["shift"]), 1); size += 4 * int(OPT["shift"])
    print("code bytes", size)
    assert size <= 65536
    return s.replace("CODE_LAST", hex(size - 4))

if __name__ == "__main__":
    out = sys.argv[1] if len(sys.argv) > 1 and not sys.argv[1].startswith("--") else os.path.join(os.path.dirname(os.path.abspath(__file__)), "..", NAME + ".s")
    open(out, "w").write(build())
    print("wrote", out)
```
